```python
import torch

def _softmax(x, axis=-1):
    return torch.softmax(x, dim=axis)
def _gelu(x):
    return torch.nn.functional.gelu(x, approximate="tanh")
def _silu(x):
    return torch.nn.functional.silu(x)
def _sigmoid(x):
    return torch.sigmoid(x)
def _layernorm(x, axis=-1, eps=1e-5):
    m = x.mean(dim=axis, keepdim=True)
    v = x.var(dim=axis, keepdim=True, unbiased=False)
    return (x - m) / torch.sqrt(v + eps)
def _scatter_add(tgt, idx, src, axis=0):
    return tgt.clone().index_add_(axis, idx, src)
def _segment_sum(src, seg, n):
    out = torch.zeros((n,) + src.shape[1:], dtype=src.dtype)
    return out.index_add_(0, seg, src)
def _pad(x, pw):
    flat = tuple(v for pair in reversed(pw) for v in pair)
    return torch.nn.functional.pad(x, flat)

kernel_name = 'gather_scatter__edge_featured_mpnn_gatedgcn__graph'

def setup_inputs():

    _w = (lambda a: (lambda t: t.to(torch.bfloat16) if t.is_floating_point() else t)(torch.as_tensor(a)))
    N, deg, D, De = 25000, 32, 64, max(0, 1)
    E = N * deg
    return {
        "x": _w((lambda *s: torch.randn(*s, dtype=torch.bfloat16) * 0.8)(N, D)),
        "e_attr": _w((lambda *s: torch.randn(*s, dtype=torch.bfloat16) * 0.8)(E, De)),
        "src": _w((lambda lo, hi, *s: torch.randint(lo, hi, s))(0, N, E).to(torch.int64)),
        "dst": _w((lambda lo, hi, *s: torch.randint(lo, hi, s))(0, N, E).to(torch.int64)),
        "w_a": _w((lambda *s: torch.randn(*s, dtype=torch.bfloat16) * 0.8)(D, D)),
        "w_b": _w((lambda *s: torch.randn(*s, dtype=torch.bfloat16) * 0.8)(D, D)),
        "w_c": _w((lambda *s: torch.randn(*s, dtype=torch.bfloat16) * 0.8)(De, D)),
        "w_u": _w((lambda *s: torch.randn(*s, dtype=torch.bfloat16) * 0.05)(D, D)),
        "w_v": _w((lambda *s: torch.randn(*s, dtype=torch.bfloat16) * 0.05)(D, D)),
    }

def reference(x, e_attr, src, dst, w_a, w_b, w_c, w_u, w_v):
    N, D = x.shape
    hv = x @ w_v
    g = x[dst] @ w_a + x[src] @ w_b + e_attr @ w_c
    eta = _sigmoid(g)
    denom = _segment_sum(eta, dst, N) + 1e-6
    eta_n = eta / denom[dst]
    agg = _segment_sum(eta_n * hv[src], dst, N)
    z = x @ w_u + agg
    relu_z = torch.where(z > 0, z, 0 * z)
    return x + relu_z
```

```python
class Regs:
    def __init__(self, prefix, start, limit):
        self.prefix = prefix; self.next = start; self.limit = limit; self.names = {}; self.hi = start
    def alloc(self, name, n=1, align=1):
        s = (self.next + align - 1) // align * align
        assert s + n <= self.limit, f'out of {self.prefix} regs allocating {name}'
        self.next = s + n; self.hi = max(self.hi, self.next)
        self.names[name] = (s, n)
        return s
    def mark(self): return self.next
    def release(self, m): self.next = m

class Asm:
    def __init__(self):
        self.lines = []
        self.uid = 0
    def __call__(self, s):
        for ln in s.strip('\n').split('\n'):
            self.lines.append(ln if ln.rstrip().endswith(':') and not ln.startswith(' ') else '    ' + ln.strip())
    def label(self, name): self.lines.append(name + ':')
    def newlabel(self, base):
        self.uid += 1
        return f'L_{base}_{self.uid}'
    def raw(self, s): self.lines.append(s)
    def text(self): return '\n'.join(self.lines) + '\n'

def v(a, n=1):
    return f'v{a}' if n == 1 else f'v[{a}:{a+n-1}]'
def s(a, n=1):
    return f's{a}' if n == 1 else f's[{a}:{a+n-1}]'
```

```python
import sys, os
sys.path.insert(0, os.path.dirname(__file__))
from asmlib import *

N = 25000; E = 800000; D = 64
NBK = 256
CH = 3136
RECB = CH * 8
WS_REC = 0
WS_TAB = 0x700000
WS_FRAG = 0x780000
MAGIC_B = 43980466
LOG2E = 0xBFB8AA3B
SBITS = 50
C_SCALE = (127 - SBITS) << 23
EPS_SCALED = 0x4E8637BD
import struct
assert abs(struct.unpack('<f', struct.pack('<I', EPS_SCALED))[0] / (1e-6 * 2.0**50) - 1) < 1e-6, struct.pack('<f', 1e-6*2.0**50)[::-1].hex()

NW = 12
NSTREAM = 2 * NW
CAP = 3456
WSLOW = 13
ROWB = 768
MAXN = 98
L_ACC = 0
L_ENT = MAXN * ROWB
ENT_QUADS = 968
L_QI = L_ENT + ENT_QUADS * 16
L_CNT = L_QI + ENT_QUADS * 4
L_TABC = L_CNT + 512
L_DMA = L_TABC + NW * 512
L_DMA = (L_DMA + 1023) // 1024 * 1024
LDS_MAIN = L_DMA + NW * 4096
assert LDS_MAIN <= 163840, LDS_MAIN

K1_THREADS = 896
K1_HIST = 0
K1_STAGE = 1024
LDS_K1 = K1_STAGE + RECB

HEADER = open(os.path.join(os.path.dirname(__file__), 'header.txt')).read()

def srd(a, sreg, ptr, size):
    a(f's_mov_b32 s{sreg}, s{ptr}')
    a(f's_and_b32 s{sreg+1}, s{ptr+1}, 0xffff')
    a(f's_mov_b32 s{sreg+2}, {size}')
    a(f's_mov_b32 s{sreg+3}, 0x20000')

def wave_scan_add(a, r):
    for sh in (1, 2, 4, 8):
        a('s_nop 1')
        a(f'v_add_u32_dpp v{r}, v{r}, v{r} row_shr:{sh} row_mask:0xf bank_mask:0xf')
    a('s_nop 1')
    a(f'v_add_u32_dpp v{r}, v{r}, v{r} row_bcast:15 row_mask:0xa bank_mask:0xf')
    a('s_nop 1')
    a(f'v_add_u32_dpp v{r}, v{r}, v{r} row_bcast:31 row_mask:0xc bank_mask:0xf')

def wave_scan_max(a, r):
    for sh in (1, 2, 4, 8):
        a('s_nop 1')
        a(f'v_max_u32_dpp v{r}, v{r}, v{r} row_shr:{sh} row_mask:0xf bank_mask:0xf')
    a('s_nop 1')
    a(f'v_max_u32_dpp v{r}, v{r}, v{r} row_bcast:15 row_mask:0xa bank_mask:0xf')
    a('s_nop 1')
    a(f'v_max_u32_dpp v{r}, v{r}, v{r} row_bcast:31 row_mask:0xc bank_mask:0xf')

def gen_k1(a):
    a.raw('.p2align 8')
    a.raw('.globl gs_part_kernel')
    a.raw('.type gs_part_kernel,@function')
    a.label('gs_part_kernel')
    a('s_cmp_ge_u32 s2, 256')
    a('s_cbranch_scc1 K1_END')
    a('s_load_dwordx4 s[4:7], s[0:1], 8')
    a('s_load_dwordx2 s[8:9], s[0:1], 24')
    a('s_load_dwordx2 s[10:11], s[0:1], 88')
    a('v_lshrrev_b32 v1, 6, v0')
    a('s_nop 0')
    a('v_readfirstlane_b32 s3, v1')
    a('s_nop 3')
    a('s_cmp_eq_u32 s3, 13')
    a('s_cbranch_scc1 K1_FRAG')
    a('s_mul_i32 s12, s2, %d' % (CH * 4))
    a('s_lshr_b32 s13, s12, 1')
    a('v_lshlrev_b32 v2, 4, v0')
    a('v_add_u32 v2, s12, v2')
    a('v_lshlrev_b32 v3, 3, v0')
    a('v_add_u32 v3, s13, v3')
    a('v_cmp_gt_u32 vcc, %d, v0' % (CH // 4))
    a('s_mov_b32 s14, %d' % (E * 4))
    a('v_cmp_gt_u32 s[16:17], s14, v2')
    a('s_and_b64 s[16:17], s[16:17], vcc')
    a('s_waitcnt lgkmcnt(0)')
    srd(a, 20, 8, E * 4)
    srd(a, 24, 6, E * 4)
    srd(a, 28, 4, E * 2)
    a('buffer_load_dwordx4 v[4:7], v2, s[20:23], 0 offen')
    a('buffer_load_dwordx4 v[8:11], v2, s[24:27], 0 offen')
    a('buffer_load_dwordx2 v[12:13], v3, s[28:31], 0 offen')
    a('s_mul_i32 s15, s2, %d' % RECB)
    a('s_add_u32 s32, s10, s15')
    a('s_addc_u32 s33, s11, 0')
    a('s_and_b32 s33, s33, 0xffff')
    a('s_mov_b32 s34, %d' % RECB)
    a('s_mov_b32 s35, 0x20000')
    a('s_add_u32 s36, s10, %d' % WS_TAB)
    a('s_addc_u32 s37, s11, 0')
    a('s_and_b32 s37, s37, 0xffff')
    a('s_mov_b32 s38, %d' % (256 * 1024))
    a('s_mov_b32 s39, 0x20000')
    a('v_lshlrev_b32 v14, 2, v0')
    a('v_mov_b32 v15, 0')
    a('v_cmp_gt_u32 vcc, 256, v0')
    a('s_and_saveexec_b64 s[18:19], vcc')
    a('ds_write_b32 v14, v15 offset:%d' % K1_HIST)
    a('s_mov_b64 exec, s[18:19]')
    a('s_waitcnt lgkmcnt(0)')
    a('s_barrier')
    a('s_mov_b32 s40, %d' % MAGIC_B)
    a('s_movk_i32 s41, 3125')
    a('v_mov_b32 v15, 1')
    a('s_mov_b64 exec, s[16:17]')
    a('s_cbranch_execz K1_NOEDGE1')
    a('s_waitcnt vmcnt(2)')
    for k in range(4):
        a(f'v_mul_hi_u32 v{16+k}, v{4+k}, s40')
    for k in range(4):
        a(f'v_lshlrev_b32 v{20+k}, 2, v{16+k}')
        a(f'ds_add_rtn_u32 v{24+k}, v{20+k}, v15 offset:{K1_HIST}')
    for k in range(4):
        a(f'v_mul_u32_u24 v{28+k}, s41, v{16+k}')
        a(f'v_add_u32 v{28+k}, 31, v{28+k}')
        a(f'v_lshrrev_b32 v{28+k}, 5, v{28+k}')
        a(f'v_sub_u32 v{4+k}, v{4+k}, v{28+k}')
    a('s_waitcnt vmcnt(0)')
    a('s_mov_b32 s42, 0xffff0000')
    a('v_lshl_or_b32 v8, v12, 16, v8')
    a('v_and_or_b32 v9, v12, s42, v9')
    a('v_lshl_or_b32 v10, v13, 16, v10')
    a('v_and_or_b32 v11, v13, s42, v11')
    a.label('K1_NOEDGE1')
    a('s_mov_b64 exec, -1')
    a('s_waitcnt lgkmcnt(0)')
    a('s_barrier')
    a('s_cmp_lg_u32 s3, 0')
    a('s_cbranch_scc1 K1_SCANDONE')
    a('v_lshlrev_b32 v32, 4, v0')
    a('ds_read_b128 v[36:39], v32 offset:%d' % K1_HIST)
    a('s_waitcnt lgkmcnt(0)')
    a('v_add_u32 v40, v36, v37')
    a('v_add_u32 v41, v40, v38')
    a('v_add_u32 v42, v41, v39')
    a('v_mov_b32 v43, v42')
    wave_scan_add(a, 43)
    a('v_sub_u32 v44, v43, v42')
    a('v_add_u32 v45, v44, v36')
    a('v_add_u32 v46, v44, v40')
    a('v_add_u32 v47, v44, v41')
    a('ds_write_b128 v32, v[44:47] offset:%d' % K1_HIST)
    for k in range(4):
        a(f'v_lshl_or_b32 v{48+k}, v{36+k}, 16, v{44+k}')
    a('v_lshlrev_b32 v33, 12, v0')
    a('s_lshl_b32 s15, s2, 2')
    a('v_add_u32 v33, s15, v33')
    for k in range(4):
        a(f'buffer_store_dword v{48+k}, v33, s[36:39], 0 offen offset:{k*1024}')
    a.label('K1_SCANDONE')
    a('s_waitcnt lgkmcnt(0)')
    a('s_barrier')
    a('s_mov_b64 exec, s[16:17]')
    a('s_cbranch_execz K1_NOEDGE2')
    for k in range(4):
        a(f'ds_read_b32 v{28+k}, v{20+k} offset:{K1_HIST}')
    for k in range(4):
        a(f's_waitcnt lgkmcnt({3-k})')
        a(f'v_add_lshl_u32 v{28+k}, v{28+k}, v{24+k}, 3')
    for k in range(4):
        a(f'v_mov_b32 v{32+2*k}, v{8+k}')
        a(f'v_mov_b32 v{33+2*k}, v{4+k}')
        a(f'ds_write_b64 v{28+k}, v[{32+2*k}:{33+2*k}] offset:{K1_STAGE}')
    a.label('K1_NOEDGE2')
    a('s_mov_b64 exec, -1')
    a('s_waitcnt lgkmcnt(0)')
    a('s_barrier')
    a('v_cmp_gt_u32 vcc, %d, v0' % (CH // 4))
    a('s_and_saveexec_b64 s[18:19], vcc')
    a('s_cbranch_execz K1_END')
    a('v_lshlrev_b32 v2, 4, v0')
    a('ds_read_b128 v[4:7], v2 offset:%d' % K1_STAGE)
    a('ds_read_b128 v[8:11], v2 offset:%d' % (K1_STAGE + RECB // 2))
    a('v_add_u32 v3, %d, v2' % (RECB // 2))
    a('s_waitcnt lgkmcnt(1)')
    a('buffer_store_dwordx4 v[4:7], v2, s[32:35], 0 offen')
    a('s_waitcnt lgkmcnt(0)')
    a('buffer_store_dwordx4 v[8:11], v3, s[32:35], 0 offen')
    a('s_endpgm')
    a.label('K1_FRAG')
    a('s_cmp_ge_u32 s2, 32')
    a('s_cbranch_scc1 K1_END')
    a('s_load_dwordx4 s[12:15], s[0:1], 32')
    a('s_load_dwordx4 s[16:19], s[0:1], 56')
    a('s_lshr_b32 s20, s2, 3')
    a('s_waitcnt lgkmcnt(0)')
    a('s_mov_b32 s22, s14')
    a('s_mov_b32 s23, s15')
    a('s_cmp_eq_u32 s20, 1')
    a('s_cselect_b32 s22, s18, s22')
    a('s_cselect_b32 s23, s19, s23')
    a('s_cmp_eq_u32 s20, 2')
    a('s_cselect_b32 s22, s12, s22')
    a('s_cselect_b32 s23, s13, s23')
    a('s_cmp_eq_u32 s20, 3')
    a('s_cselect_b32 s22, s16, s22')
    a('s_cselect_b32 s23, s17, s23')
    srd(a, 24, 22, 64 * 64 * 2)
    a('s_add_u32 s28, s10, %d' % WS_FRAG)
    a('s_addc_u32 s29, s11, 0')
    a('s_and_b32 s29, s29, 0xffff')
    a('s_mov_b32 s30, %d' % (32 * 1024))
    a('s_mov_b32 s31, 0x20000')
    a('s_and_b32 s32, s2, 3')
    a('s_lshr_b32 s33, s2, 2')
    a('s_and_b32 s33, s33, 1')
    a('s_lshl_b32 s32, s32, 11')
    a('s_lshl_b32 s33, s33, 6')
    a('s_add_u32 s32, s32, s33')
    a('v_and_b32 v1, 63, v0')
    a('v_and_b32 v2, 31, v1')
    a('v_lshlrev_b32 v2, 1, v2')
    a('v_lshrrev_b32 v3, 5, v1')
    a('v_lshlrev_b32 v3, 10, v3')
    a('v_add3_u32 v2, v2, v3, s32')
    for i in range(8):
        a(f'buffer_load_ushort v{8+i}, v2, s[24:27], 0 offen offset:{i*128}')
    a('s_mov_b32 s34, 1.0')
    a('s_cmp_eq_u32 s20, 0')
    a('s_cselect_b32 s34, 0x%x, s34' % LOG2E)
    a('s_waitcnt vmcnt(0)')
    for i in range(8):
        a(f'v_lshlrev_b32 v{8+i}, 16, v{8+i}')
        a(f'v_mul_f32 v{8+i}, s34, v{8+i}')
    for i in range(4):
        a(f'v_cvt_pk_bf16_f32 v{16+i}, v{8+2*i}, v{9+2*i}')
    a('v_lshlrev_b32 v4, 4, v1')
    a('s_lshl_b32 s35, s2, 10')
    a('v_add_u32 v4, s35, v4')
    a('buffer_store_dwordx4 v[16:19], v4, s[28:31], 0 offen')
    a.label('K1_END')
    a('s_endpgm')

def gen_k2(a, opts):
    vTID = 0; vLANE = 1; BC = 2
    WB = 4; WV = 36; AX = 68; G = 84; H = 100
    OV = 116
    AE = OV; BE = AE + 4; DEN = BE + 8; NUM = DEN + 4; P = NUM + 4; T = P + 2; Z = T + 2
    QA = Z + 2
    EN = 148
    RA = 152; CO = 156
    pEN = 160; pEE = 161; pQI = 162; pQF = 163; C4 = 164; SEL = 165
    mT0 = 146; mT1 = 147
    EE = P; QF = P + 1
    REC = OV; RK = REC + 22; SG = RK + 11; tA = SG + 11; tB = tA + 1; tC = tA + 2; tD = tA + 3; tE = tA + 4; tF = tA + 5
    assert tF < 168
    TT = G; ZQ = H
    nvgpr = 168
    S = Regs('s', 3, 100)
    sX = S.alloc('x', 2, 2); sWC = S.alloc('wc', 2, 2); sOUT = S.alloc('out', 2, 2); sWS = S.alloc('ws', 2, 2)
    rX = S.alloc('rX', 4, 4); rT = S.alloc('rT', 4, 4); rR = S.alloc('rR', 4, 4); rF = S.alloc('rF', 4, 4)
    rO = S.alloc('rO', 4, 4); rW = S.alloc('rW', 4, 4)
    sW = S.alloc('w'); sNS = S.alloc('ns'); sNN = S.alloc('nn')
    sP = S.alloc('pass'); sNP = S.alloc('npass'); sWD = S.alloc('wd')
    sL = S.alloc('L'); sNT = S.alloc('nt'); sREM = S.alloc('rem'); sTI = S.alloc('ti')
    sDB = S.alloc('dmabase')
    sC = S.alloc('C', 2, 2)
    sF = S.alloc('F', 2, 2); sANY = S.alloc('any')
    s128 = S.alloc('c128'); sQM = S.alloc('qmask')
    t0 = S.alloc('t0'); t1 = S.alloc('t1'); t2 = S.alloc('t2'); t3 = S.alloc('t3')
    sSV = S.alloc('sv', 2, 2)
    sM0 = S.alloc('m0s', 4)
    MK = S.alloc('MK', 22, 2)
    nsgpr = S.hi

    def seg_loads():
        a(f'v_lshrrev_b32 v{tB}, 5, v{vLANE}')
        a(f's_lshl_b32 s{t0}, s{sW}, 1')
        a(f'v_add_u32 v{tB}, s{t0}, v{tB}')
        a(f'v_lshlrev_b32 v{tC}, 2, v{tB}')
        for it in range(11):
            a(f'buffer_load_dword v{SG+it}, v{tC}, s[{rT}:{rT+3}], 0 offen offset:{it*96}')
    def rec_base():
        a(f's_mov_b32 s{t0}, {RECB}')
        a(f'v_mul_lo_u32 v{tB}, v{tB}, s{t0}')
        a(f'v_and_b32 v{tC}, 31, v{vLANE}')
        a(f'v_lshl_add_u32 v{tB}, v{tC}, 3, v{tB}')

    a.raw('.p2align 8')
    a.raw('.globl gs_main_kernel')
    a.raw('.type gs_main_kernel,@function')
    a.label('gs_main_kernel')
    a('s_cmp_ge_u32 s2, 256')
    a('s_cbranch_scc1 K2_END')
    a(f's_load_dwordx2 s[{sX}:{sX+1}], s[0:1], 0')
    a(f's_load_dwordx2 s[{sWC}:{sWC+1}], s[0:1], 48')
    a(f's_load_dwordx2 s[{sOUT}:{sOUT+1}], s[0:1], 72')
    a(f's_load_dwordx2 s[{sWS}:{sWS+1}], s[0:1], 88')
    a(f'v_lshrrev_b32 v{tA}, 6, v0')
    a(f'v_and_b32 v{vLANE}, 63, v0')
    a(f'v_readfirstlane_b32 s{sW}, v{tA}')
    a(f's_mul_i32 s{t0}, s2, 3125')
    a(f's_add_u32 s{sNS}, s{t0}, 31')
    a(f's_lshr_b32 s{sNS}, s{sNS}, 5')
    a(f's_add_u32 s{t0}, s{t0}, {3125+31}')
    a(f's_lshr_b32 s{t0}, s{t0}, 5')
    a(f's_sub_u32 s{sNN}, s{t0}, s{sNS}')
    a(f's_lshl_b32 s{sDB}, s{sW}, 12')
    a(f's_add_u32 s{sDB}, s{sDB}, {L_DMA}')
    for i in range(4):
        a(f's_add_u32 s{sM0+i}, s{sDB}, {i*1024}')
    a('s_waitcnt lgkmcnt(0)')
    srd(a, rX, sX, N * 128)
    srd(a, rO, sOUT, N * 128)
    srd(a, rW, sWC, 128)
    a(f's_lshl_b32 s{t0}, s2, 10')
    a(f's_add_u32 s{t0}, s{t0}, {WS_TAB}')
    a(f's_add_u32 s{rT}, s{sWS}, s{t0}')
    a(f's_addc_u32 s{rT+1}, s{sWS+1}, 0')
    a(f's_and_b32 s{rT+1}, s{rT+1}, 0xffff')
    a(f's_mov_b32 s{rT+2}, 1024')
    a(f's_mov_b32 s{rT+3}, 0x20000')
    srd(a, rR, sWS, NBK * RECB)
    a(f's_add_u32 s{rF}, s{sWS}, {WS_FRAG}')
    a(f's_addc_u32 s{rF+1}, s{sWS+1}, 0')
    a(f's_and_b32 s{rF+1}, s{rF+1}, 0xffff')
    a(f's_mov_b32 s{rF+2}, {32*1024}')
    a(f's_mov_b32 s{rF+3}, 0x20000')
    a(f'v_lshlrev_b32 v{tA}, 4, v{vLANE}')
    a(f'buffer_load_dwordx4 v[{TT}:{TT+3}], v{tA}, s[{rT}:{rT+3}], 0 offen')
    seg_loads()
    a(f'v_and_b32 v{tD}, 31, v{vLANE}')
    a(f'v_lshlrev_b32 v{tD}, 1, v{tD}')
    a(f'buffer_load_ushort v{BC}, v{tD}, s[{rW}:{rW+3}], 0 offen')
    a(f'buffer_load_ushort v{BC+1}, v{tD}, s[{rW}:{rW+3}], 0 offen offset:64')
    a(f's_cmp_ge_u32 s{sW}, 8')
    a('s_cbranch_scc1 K2_CLSB')
    a(f'v_lshrrev_b32 v{tD}, 3, v{vLANE}')
    a(f'v_and_b32 v{tE}, 3, v{tD}')
    a(f'v_lshlrev_b32 v{tE}, 3, v{tE}')
    a(f'v_lshrrev_b32 v{tD}, 2, v{tD}')
    a(f'v_lshl_add_u32 v{tE}, v{tD}, 2, v{tE}')
    a(f's_lshr_b32 s{t0}, s{sW}, 1')
    a(f's_lshl_b32 s{t0}, s{t0}, 5')
    a(f's_add_u32 s{t0}, s{t0}, s{sNS}')
    a(f'v_add_u32 v{tE}, s{t0}, v{tE}')
    a(f'v_lshlrev_b32 v{tE}, 7, v{tE}')
    a(f'v_lshrrev_b32 v{tD}, 4, v{vLANE}')
    a(f'v_and_b32 v{tD}, 1, v{tD}')
    a(f'v_and_b32 v{tF}, 7, v{vLANE}')
    a(f'v_xor_b32 v{tD}, v{tD}, v{tF}')
    for i in range(4):
        a(f'v_xor_b32 v{tF}, {2*i}, v{tD}')
        a(f'v_lshl_add_u32 v{tF}, v{tF}, 4, v{tE}')
        if i: a(f'v_add_u32 v{tF}, {128*i}, v{tF}')
        a(f's_mov_b32 m0, s{sM0+i}')
        a('s_nop 0')
        a(f'buffer_load_dwordx4 v{tF}, s[{rX}:{rX+3}], 0 offen lds')
    a(f's_and_b32 s{t0}, s{sW}, 1')
    a(f's_lshl_b32 s{t0}, s{t0}, 12')
    a(f's_add_u32 s{t1}, s{t0}, {2*8*1024}')
    for kp in range(4):
        a(f'buffer_load_dwordx4 v[{WB+4*kp}:{WB+4*kp+3}], v{tA}, s[{rF}:{rF+3}], s{t1} offen offset:{kp*1024}')
    a(f's_add_u32 s{t1}, s{t0}, {3*8*1024}')
    for kp in range(4):
        a(f'buffer_load_dwordx4 v[{WB+16+4*kp}:{WB+16+4*kp+3}], v{tA}, s[{rF}:{rF+3}], s{t1} offen offset:{kp*1024}')
    a('s_branch K2_CLSDONE')
    a.label('K2_CLSB')
    a(f's_sub_u32 s{t0}, s{sW}, 8')
    a(f's_lshl_b32 s{t0}, s{t0}, 12')
    for i in range(4):
        a(f's_mov_b32 m0, s{sM0+i}')
        a(f's_add_u32 s{t2}, s{t0}, {i*1024}')
        a(f'buffer_load_dwordx4 v{tA}, s[{rF}:{rF+3}], s{t2} offen lds')
    a.label('K2_CLSDONE')
    a(f'v_lshrrev_b32 v{tD}, 5, v0')
    a(f'v_mul_u32_u24 v{tD}, {ROWB}, v{tD}')
    a(f'v_and_b32 v{tE}, 31, v{vLANE}')
    a(f'v_lshl_add_u32 v{tD}, v{tE}, 4, v{tD}')
    for i in range(4):
        a(f'v_mov_b32 v{ZQ+i}, 0')
    for i in range(3):
        a(f'ds_write_b128 v{tD}, v[{ZQ}:{ZQ+3}] offset:{L_ACC + i*24*ROWB}')
    a(f'v_add_u32 v{tD}, {3*24*ROWB}, v{tD}')
    a(f'ds_write_b128 v{tD}, v[{ZQ}:{ZQ+3}] offset:{L_ACC}')
    a(f's_cmp_lg_u32 s{sW}, 0')
    a('s_cbranch_scc1 K2_ZDONE')
    a(f'ds_write_b128 v{tD}, v[{ZQ}:{ZQ+3}] offset:{L_ACC + 24*ROWB}')
    a.label('K2_ZDONE')
    a(f's_cmp_ge_u32 s{sW}, 8')
    a('s_cbranch_scc1 K2_WTB')
    a('s_waitcnt vmcnt(14)')
    a('s_branch K2_WTD')
    a.label('K2_WTB')
    a('s_waitcnt vmcnt(6)')
    a.label('K2_WTD')
    for i in range(4):
        a(f'v_lshrrev_b32 v{TT+i}, 16, v{TT+i}')
    a(f'v_add_u32 v{tD}, v{TT}, v{TT+1}')
    a(f'v_add3_u32 v{tD}, v{tD}, v{TT+2}, v{TT+3}')
    a(f'v_max_u32 v{TT}, v{TT}, v{TT+1}')
    a(f'v_max3_u32 v{TT}, v{TT}, v{TT+2}, v{TT+3}')
    wave_scan_add(a, tD)
    wave_scan_max(a, TT)
    a('s_nop 0')
    a(f'v_readlane_b32 s{t0}, v{tD}, 63')
    a(f'v_readlane_b32 s{t1}, v{TT}, 63')
    a(f's_mov_b32 s{sWD}, 32')
    a(f's_mov_b32 s{sNP}, 1')
    a(f's_cmp_le_u32 s{t0}, {CAP}')
    a(f's_cselect_b32 s{t2}, 1, 0')
    a(f's_cmp_le_u32 s{t1}, 32')
    a(f's_cselect_b32 s{t2}, s{t2}, 0')
    a(f's_cmp_eq_u32 s{t2}, 1')
    a('s_cbranch_scc1 K2_FAST')
    a(f's_mov_b32 s{sWD}, {WSLOW}')
    a(f's_add_u32 s{t1}, s{t1}, {WSLOW-1}')
    a(f's_mul_i32 s{t1}, s{t1}, 5042')
    a(f's_lshr_b32 s{sNP}, s{t1}, 16')
    a.label('K2_FAST')
    a(f's_mov_b32 s{sP}, 0')
    rec_base()
    a.label('K2_PASS')
    a(f's_mul_i32 s{t0}, s{sP}, s{sWD}')
    a(f'v_and_b32 v{tC}, 31, v{vLANE}')
    a(f'v_add_u32 v{tC}, s{t0}, v{tC}')
    a(f's_add_u32 s{t1}, s{t0}, s{sWD}')
    a(f's_lshl_b32 s{t0}, s{t0}, 3')
    a(f'v_add_u32 v{tD}, s{t0}, v{tB}')
    a(f's_mov_b32 s{t2}, 0')
    for it in range(11):
        a(f'v_mad_u32_u16 v{RK+it}, v{SG+it}, 8, v{tD}')
        a(f'buffer_load_dwordx2 v[{REC+2*it}:{REC+2*it+1}], v{RK+it}, s[{rR}:{rR+3}], s{t2} offen')
        if it < 10: a(f's_add_u32 s{t2}, s{t2}, {24*RECB}')
    for it in range(11):
        a(f'v_lshrrev_b32 v{tA}, 16, v{SG+it}')
        a(f'v_min_u32 v{tA}, s{t1}, v{tA}')
        a(f'v_cmp_gt_u32 s[{MK+2*it}:{MK+2*it+1}], v{tA}, v{tC}')
    a(f'v_lshlrev_b32 v{tA}, 4, v0')
    for i in range(4):
        a(f'v_mov_b32 v{ZQ+i}, 0xffff')
    a(f'ds_write_b128 v{tA}, v[{ZQ}:{ZQ+3}] offset:{L_ENT & 0xffff}') if L_ENT < 65536 else None
    if L_ENT >= 65536:
        a(f'v_add_u32 v{tE}, {L_ENT}, v{tA}')
        a(f'ds_write_b128 v{tE}, v[{ZQ}:{ZQ+3}]')
    a(f'v_cmp_gt_u32 vcc, {ENT_QUADS - 768}, v0')
    a(f's_and_saveexec_b64 s[{sSV}:{sSV+1}], vcc')
    a(f'ds_write_b128 v{tE}, v[{ZQ}:{ZQ+3}] offset:{768*16}')
    a(f's_mov_b64 exec, s[{sSV}:{sSV+1}]')
    for i in range(4):
        a(f'v_mov_b32 v{TT+i}, 0')
    assert (ENT_QUADS * 4 + 512) % 16 == 0 and L_CNT == L_QI + ENT_QUADS * 4
    nz = (ENT_QUADS * 4 + 512) // 16
    a(f'v_add_u32 v{tE}, {L_QI}, v{tA}')
    a(f'v_cmp_gt_u32 vcc, {nz}, v0')
    a(f's_and_saveexec_b64 s[{sSV}:{sSV+1}], vcc')
    a(f'ds_write_b128 v{tE}, v[{TT}:{TT+3}]')
    a(f's_mov_b64 exec, s[{sSV}:{sSV+1}]')
    a('s_waitcnt vmcnt(11) lgkmcnt(0)')
    a('s_barrier')
    a(f's_cmp_lg_u32 s{sP}, 0')
    a('s_cbranch_scc1 K2_NOTFIRST')
    def ra_base(dst, tmp1, tmp2):
        a(f'v_and_b32 v{tmp1}, 3, v{vLANE}')
        a(f'v_bfe_u32 v{tmp2}, v{vLANE}, 3, 2')
        a(f'v_lshl_add_u32 v{dst}, v{tmp1}, 3, v{tmp2}')
        a(f'v_lshlrev_b32 v{tmp1}, 1, v{tmp1}')
        a(f'v_lshrrev_b32 v{tmp2}, 1, v{tmp2}')
        a(f'v_add_u32 v{tmp1}, v{tmp1}, v{tmp2}')
        a(f'v_bfe_u32 v{tmp2}, v{vLANE}, 2, 1')
        a(f'v_lshl_add_u32 v{dst}, v{tmp2}, 2, v{dst}')
        a(f'v_lshrrev_b32 v{tmp2}, 5, v{vLANE}')
        a(f'v_xor_b32 v{tmp1}, v{tmp1}, v{tmp2}')
        a(f'v_lshlrev_b32 v{tmp1}, 4, v{tmp1}')
        a(f'v_lshl_add_u32 v{dst}, v{dst}, 7, v{tmp1}')
        a(f'v_add_u32 v{dst}, s{sDB}, v{dst}')
    a(f's_cmp_ge_u32 s{sW}, 8')
    a('s_cbranch_scc1 K2_NOGEMM')
    ra_base(tA, tE, tF)
    for kp in range(4):
        if kp:
            a(f'v_xor_b32 v{tE}, {32*kp}, v{tA}')
            a(f'ds_read_b128 v[{AX+4*kp}:{AX+4*kp+3}], v{tE}')
        else:
            a(f'ds_read_b128 v[{AX}:{AX+3}], v{tA}')
    a('s_waitcnt lgkmcnt(0)')
    for kp in range(4):
        c = '0' if kp == 0 else f'v[{G}:{G+15}]'
        a(f'v_mfma_f32_32x32x16_bf16 v[{G}:{G+15}], v[{AX+4*kp}:{AX+4*kp+3}], v[{WB+4*kp}:{WB+4*kp+3}], {c}')
        c = '0' if kp == 0 else f'v[{H}:{H+15}]'
        a(f'v_mfma_f32_32x32x16_bf16 v[{H}:{H+15}], v[{AX+4*kp}:{AX+4*kp+3}], v[{WB+16+4*kp}:{WB+16+4*kp+3}], {c}')
    a(f's_lshr_b32 s{t0}, s{sW}, 1')
    a(f's_mul_i32 s{t1}, s{t0}, {32*ROWB}')
    a(f's_and_b32 s{t2}, s{sW}, 1')
    a(f'v_lshrrev_b32 v{tA}, 5, v{vLANE}')
    a(f'v_mul_u32_u24 v{tA}, {4*ROWB}, v{tA}')
    a(f'v_add_u32 v{tA}, s{t1}, v{tA}')
    a(f'v_and_b32 v{tE}, 31, v{vLANE}')
    a(f's_lshl_b32 s{t3}, s{t2}, 1')
    a(f'v_lshl_add_u32 v{tF}, v{tE}, 2, v{tA}')
    a(f'v_add_u32 v{tF}, s{t3}, v{tF}')
    a(f's_lshl_b32 s{t3}, s{t2}, 6')
    a(f'v_lshl_add_u32 v{tA}, v{tE}, 1, v{tA}')
    a(f'v_add_u32 v{tA}, s{t3}, v{tA}')
    a(f's_mov_b32 s{t3}, 0x{LOG2E:x}')
    a('s_nop 7')
    for i in range(16):
        a(f'v_mul_f32 v{G+i}, s{t3}, v{G+i}')
    for i in range(0, 16, 2):
        a(f'v_cvt_pk_bf16_f32 v{G+i}, v{G+i}, v{G+i+1}')
        a(f'v_cvt_pk_bf16_f32 v{H+i}, v{H+i}, v{H+i+1}')
    def wr_rows(regs):
        for vv in regs:
            j, i = vv // 4, vv % 4
            ro = (8 * j + i) * ROWB
            op = 'ds_write_b16' if i % 2 == 0 else 'ds_write_b16_d16_hi'
            src = vv - (vv % 2)
            a(f'{op} v{tF}, v{G+src} offset:{L_ACC + ro + 512}')
            a(f'{op} v{tA}, v{H+src} offset:{L_ACC + ro + 640}')
    a(f's_cmp_eq_u32 s{t0}, 3')
    a('s_cbranch_scc1 K2_RT3')
    wr_rows(range(16))
    a('s_branch K2_NOGEMM')
    a.label('K2_RT3')
    a('s_mov_b32 exec_lo, -1')
    a('s_mov_b32 exec_hi, 0')
    wr_rows([0, 1])
    a('s_mov_b64 exec, -1')
    a.label('K2_NOGEMM')
    a(f'v_lshlrev_b32 v{tA}, 4, v{vLANE}')
    a(f'v_add_u32 v{tA}, {L_DMA + 8*4096}, v{tA}')
    for f in range(8):
        a(f'ds_read_b128 v[{WB+4*f}:{WB+4*f+3}], v{tA} offset:{f*1024}')
    for f in range(8):
        a(f'ds_read_b128 v[{WV+4*f}:{WV+4*f+3}], v{tA} offset:{(8+f)*1024}')
    a(f's_mov_b32 s{t3}, 0x{LOG2E:x}')
    for cc in range(2):
        a(f'v_lshlrev_b32 v{BC+cc}, 16, v{BC+cc}')
        a(f'v_mul_f32 v{BC+cc}, s{t3}, v{BC+cc}')
        a(f'v_cvt_pk_bf16_f32 v{BC+cc}, 0, v{BC+cc}')
        a(f'v_and_b32 v{BC+cc}, 0xffff0000, v{BC+cc}')
    a(f'v_mov_b32 v{tE}, 0xb2000000')
    a(f'v_cmp_gt_u32 vcc, 32, v{vLANE}')
    a('s_nop 1')
    for cc in range(2):
        a(f'v_cndmask_b32 v{BC+cc}, v{tE}, v{BC+cc}, vcc')
    a.label('K2_NOTFIRST')
    a('s_waitcnt vmcnt(0)')
    a(f'v_mov_b32 v{tE}, 1')
    a(f'v_mov_b32 v{tF}, {L_CNT}')
    for it in range(11):
        a(f's_mov_b64 exec, s[{MK+2*it}:{MK+2*it+1}]')
        a(f'v_lshl_add_u32 v{tA}, v{REC+2*it+1}, 2, v{tF}')
        a(f'ds_add_rtn_u32 v{RK+it}, v{tA}, v{tE}')
    a('s_mov_b64 exec, -1')
    a('s_waitcnt lgkmcnt(0)')
    a('s_barrier')
    a(f'v_lshlrev_b32 v{tA}, 3, v{vLANE}')
    a(f'v_add_u32 v{tB}, {L_CNT}, v{tA}')
    a(f'ds_read_b64 v[{TT}:{TT+1}], v{tB}')
    a(f's_lshl_b32 s{t0}, s{sW}, 9')
    a(f's_add_u32 s{t0}, s{t0}, {L_TABC}')
    a('s_waitcnt lgkmcnt(0)')
    a(f'v_add_u32 v{TT+2}, 3, v{TT}')
    a(f'v_and_b32 v{TT+2}, -4, v{TT+2}')
    a(f'v_add_u32 v{TT+3}, 3, v{TT+1}')
    a(f'v_and_b32 v{TT+3}, -4, v{TT+3}')
    a(f'v_add_u32 v{tC}, v{TT+2}, v{TT+3}')
    a(f'v_mov_b32 v{tD}, v{tC}')
    wave_scan_add(a, tD)
    a(f'v_sub_u32 v{tC}, v{tD}, v{tC}')
    a(f'v_add_u32 v{TT+2}, v{tC}, v{TT+2}')
    a(f'v_lshl_or_b32 v{TT}, v{TT}, 16, v{tC}')
    a(f'v_lshl_or_b32 v{TT+1}, v{TT+1}, 16, v{TT+2}')
    a(f'v_add_u32 v{tA}, s{t0}, v{tA}')
    a(f'ds_write_b64 v{tA}, v[{TT}:{TT+1}]')
    a(f'v_readlane_b32 s{t1}, v{tD}, 63')
    a(f's_lshr_b32 s{t1}, s{t1}, 2')
    a(f's_add_u32 s{t1}, s{t1}, {NSTREAM-1}')
    a(f's_mul_i32 s{t1}, s{t1}, 43691')
    a(f's_lshr_b32 s{sL}, s{t1}, 20')
    a(f's_add_u32 s{sNT}, s{sL}, 3')
    a(f's_lshr_b32 s{sNT}, s{sNT}, 2')
    a(f's_and_b32 s{sREM}, s{sL}, 3')
    a(f'v_mov_b32 v{tF}, s{t0}')
    a('s_waitcnt lgkmcnt(0)')
    for it in range(11):
        a(f's_mov_b64 exec, s[{MK+2*it}:{MK+2*it+1}]')
        a(f'v_lshl_add_u32 v{tA}, v{REC+2*it+1}, 2, v{tF}')
        a(f'ds_read_b32 v{SG+it}, v{tA}')
    a(f's_mov_b32 s{t1}, {ROWB}')
    a(f's_mov_b32 s{t2}, {L_ENT}')
    a(f's_mov_b32 s{t3}, {L_QI}')
    a('s_mov_b64 exec, -1')
    a('s_waitcnt lgkmcnt(0)')
    for it in range(11):
        a(f's_mov_b64 exec, s[{MK+2*it}:{MK+2*it+1}]')
        a(f'v_and_b32 v{tA}, 0xffff, v{SG+it}')
        a(f'v_add_u32 v{tA}, v{tA}, v{RK+it}')
        a(f'v_lshl_add_u32 v{tB}, v{tA}, 2, s{t2}')
        a(f'ds_write_b32 v{tB}, v{REC+2*it}')
        a(f'v_and_b32 v{tA}, -4, v{tA}')
        a(f'v_add_u32 v{tA}, s{t3}, v{tA}')
        a(f'v_or_b32 v{tC}, 3, v{RK+it}')
        a(f'v_add_u32 v{tC}, 1, v{tC}')
        a(f'v_lshrrev_b32 v{tD}, 16, v{SG+it}')
        a(f'v_cmp_ge_u32 vcc, v{tC}, v{tD}')
        a(f'v_mul_u32_u24 v{tB}, s{t1}, v{REC+2*it+1}')
        a(f'v_or_b32 v{tC}, 0x80000000, v{tB}')
        a(f'v_cndmask_b32 v{tB}, v{tB}, v{tC}, vcc')
        a(f'ds_write_b32 v{tA}, v{tB}')
    a('s_mov_b64 exec, -1')
    a('s_waitcnt lgkmcnt(0)')
    a('s_barrier')
    a(f's_cmp_eq_u32 s{sL}, 0')
    a('s_cbranch_scc1 K2_MAINDONE')
    a(f's_mov_b32 s{sC}, 0x{C_SCALE:x}')
    a(f's_mov_b32 s{sC+1}, 0x{C_SCALE:x}')
    a(f's_mov_b32 s{s128}, 128')
    a(f's_mov_b32 s{sQM}, 0x7fffffff')
    a(f's_lshl_b32 s{t0}, s{sW}, 1')
    a(f'v_lshrrev_b32 v{mT0}, 5, v{vLANE}')
    a(f'v_add_u32 v{mT1}, s{t0}, v{mT0}')
    a(f'v_mul_lo_u32 v{pQI}, v{mT1}, s{sL}')
    a(f'v_lshlrev_b32 v{pQI}, 2, v{pQI}')
    a(f'v_add_u32 v{pQI}, {L_QI}, v{pQI}')
    a(f's_sub_u32 s{t1}, s{sL}, 1')
    a(f's_lshl_b32 s{t1}, s{t1}, 2')
    a(f'v_add_u32 v{mT1}, s{t1}, v{pQI}')
    a(f'v_mov_b32 v{mT0}, 0x80000000')
    a('s_mov_b32 exec_lo, 1')
    a('s_mov_b32 exec_hi, 1')
    a(f'ds_or_b32 v{mT1}, v{mT0}')
    a('s_mov_b64 exec, -1')
    a(f'v_lshrrev_b32 v{mT0}, 5, v{vLANE}')
    a(f'v_add_u32 v{mT0}, s{t0}, v{mT0}')
    a(f'v_mul_lo_u32 v{mT0}, v{mT0}, s{sL}')
    a(f'v_bfe_u32 v{mT1}, v{vLANE}, 3, 2')
    a(f'v_add_u32 v{mT0}, v{mT0}, v{mT1}')
    a(f'v_lshlrev_b32 v{pQF}, 2, v{mT0}')
    a(f'v_add_u32 v{pQF}, {L_QI}, v{pQF}')
    a(f'v_lshlrev_b32 v{pEN}, 4, v{mT0}')
    a(f'v_add_u32 v{pEN}, {L_ENT}, v{pEN}')
    a(f'v_bfe_u32 v{mT0}, v{vLANE}, 2, 1')
    a(f'v_add_u32 v{mT0}, s{t0}, v{mT0}')
    a(f'v_mul_lo_u32 v{mT0}, v{mT0}, s{sL}')
    a(f'v_bfe_u32 v{mT1}, v{vLANE}, 3, 2')
    a(f'v_add_u32 v{mT0}, v{mT0}, v{mT1}')
    a(f'v_and_b32 v{mT1}, 3, v{vLANE}')
    a(f'v_lshl_add_u32 v{mT0}, v{mT0}, 2, v{mT1}')
    a(f'v_lshlrev_b32 v{pEE}, 2, v{mT0}')
    a(f'v_add_u32 v{pEE}, {L_ENT}, v{pEE}')
    a(f'ds_read_b128 v[{EN}:{EN+3}], v{pEN}')
    def ra_base2():
        a(f'v_and_b32 v{mT0}, 3, v{vLANE}')
        a(f'v_bfe_u32 v{mT1}, v{vLANE}, 3, 2')
        a(f'v_lshl_add_u32 v{RA}, v{mT0}, 3, v{mT1}')
        a(f'v_lshlrev_b32 v{mT0}, 1, v{mT0}')
        a(f'v_lshrrev_b32 v{mT1}, 1, v{mT1}')
        a(f'v_add_u32 v{mT0}, v{mT0}, v{mT1}')
        a(f'v_bfe_u32 v{mT1}, v{vLANE}, 2, 1')
        a(f'v_lshl_add_u32 v{RA}, v{mT1}, 2, v{RA}')
        a(f'v_lshrrev_b32 v{mT1}, 5, v{vLANE}')
        a(f'v_xor_b32 v{mT0}, v{mT0}, v{mT1}')
        a(f'v_lshlrev_b32 v{mT0}, 4, v{mT0}')
        a(f'v_lshl_add_u32 v{RA}, v{RA}, 7, v{mT0}')
        a(f'v_add_u32 v{RA}, s{sDB}, v{RA}')
        for kp in range(1, 4):
            a(f'v_xor_b32 v{RA+kp}, {32*kp}, v{RA}')
    ra_base2()
    a(f'v_bfe_u32 v{mT0}, v{vLANE}, 4, 1')
    a(f'v_and_b32 v{mT1}, 7, v{vLANE}')
    a(f'v_xor_b32 v{mT0}, v{mT0}, v{mT1}')
    a(f'v_lshlrev_b32 v{CO}, 4, v{mT0}')
    for i in range(1, 4):
        a(f'v_xor_b32 v{CO+i}, {32*i}, v{CO}')
    a(f'v_and_b32 v{C4}, 31, v{vLANE}')
    a(f'v_lshlrev_b32 v{C4}, 2, v{C4}')
    assert L_ACC == 0
    a(f'v_bfe_u32 v{mT0}, v{vLANE}, 2, 1')
    a(f'v_lshrrev_b32 v{mT1}, 5, v{vLANE}')
    a(f'v_cmp_eq_u32 vcc, v{mT0}, v{mT1}')
    a(f'v_bfe_u32 v{mT0}, v{vLANE}, 3, 2')
    a(f'v_mov_b32 v{mT1}, 0x3f80')
    a(f'v_cndmask_b32 v{mT1}, 0, v{mT1}, vcc')
    for q in range(4):
        a(f'v_cmp_eq_u32 vcc, {q}, v{mT0}')
        a('s_nop 1')
        a(f'v_cndmask_b32 v{AE+q}, 0, v{mT1}, vcc')
    a(f'v_mov_b32 v{mT0}, 0x0a0c0100')
    a(f'v_mov_b32 v{mT1}, 0x07060100')
    a(f'v_cmp_gt_u32 vcc, 32, v{vLANE}')
    a('s_nop 1')
    a(f'v_cndmask_b32 v{SEL}, v{mT0}, v{mT1}, vcc')
    for i in range(4):
        a(f'v_mov_b32 v{DEN+i}, 0')
        a(f'v_mov_b32 v{NUM+i}, 0')
    a('s_waitcnt lgkmcnt(0)')
    def dma_issue():
        for i in range(4):
            a(f'v_mad_u32_u16 v{EN+i}, v{EN+i}, s{s128}, v{CO+i}')
        for i in range(4):
            a(f's_mov_b32 m0, s{sM0+i}')
            a('s_nop 0')
            a(f'buffer_load_dwordx4 v{EN+i}, s[{rX}:{rX+3}], 0 offen lds')
    dma_issue()
    a(f's_mov_b32 s{sTI}, 1')
    def quad(cc, j):
        g = G + 4*j; h = H + 4*j
        X = f'v[{g}:{g+1}]'; Y = f'v[{g+2}:{g+3}]'
        for i in range(4):
            a(f'v_exp_f32 v{g+i}, v{g+i}')
        a(f'v_pk_fma_f32 {X}, {X}, s[{sC}:{sC+1}], s[{sC}:{sC+1}] clamp')
        a(f'v_pk_fma_f32 {Y}, {Y}, s[{sC}:{sC+1}], s[{sC}:{sC+1}] clamp')
        a(f'v_pk_mul_f32 v[{P}:{P+1}], {X}, {Y}')
        a(f'v_pk_mul_f32 v[{T}:{T+1}], {Y}, v[{h}:{h+1}]')
        a(f'v_rcp_f32 v{P}, v{P}')
        a(f'v_rcp_f32 v{P+1}, v{P+1}')
        a(f'v_pk_fma_f32 v[{T}:{T+1}], {X}, v[{h+2}:{h+3}], v[{T}:{T+1}]')
        a(f'v_pk_add_f32 v[{Z}:{Z+1}], {X}, {Y}')
        a(f'v_pk_fma_f32 v[{NUM+2*cc}:{NUM+2*cc+1}], v[{P}:{P+1}], v[{T}:{T+1}], v[{NUM+2*cc}:{NUM+2*cc+1}]')
        a(f'v_pk_fma_f32 v[{DEN+2*cc}:{DEN+2*cc+1}], v[{P}:{P+1}], v[{Z}:{Z+1}], v[{DEN+2*cc}:{DEN+2*cc+1}]')
        skip = a.newlabel('nf')
        a(f's_bitcmp1_b32 s{sANY}, {8*j}')
        a(f's_cbranch_scc0 {skip}')
        a(f's_bfe_i32 exec_lo, s{sF}, 0x{(1<<16)|(8*j):x}')
        a(f's_bfe_i32 exec_hi, s{sF+1}, 0x{(1<<16)|(8*j):x}')
        a(f'ds_add_f32 v{QA+j}, v{DEN+2*cc} offset:{cc*128}')
        a(f'ds_add_f32 v{QA+j}, v{DEN+2*cc+1} offset:{cc*128}')
        a(f'ds_add_f32 v{QA+j}, v{NUM+2*cc} offset:{256+cc*128}')
        a(f'ds_add_f32 v{QA+j}, v{NUM+2*cc+1} offset:{256+cc*128}')
        a(f'v_mov_b64 v[{DEN+2*cc}:{DEN+2*cc+1}], 0')
        a(f'v_mov_b64 v[{NUM+2*cc}:{NUM+2*cc+1}], 0')
        a('s_mov_b64 exec, -1')
        a.label(skip)
    def mfmas(cc):
        Gs = f'v[{G}:{G+15}]'; Hs = f'v[{H}:{H+15}]'
        a(f'v_mfma_f32_32x32x16_bf16 {Gs}, v[{AE}:{AE+3}], v[{BE+4*cc}:{BE+4*cc+3}], 0')
        for kp in range(4):
            wb = WB + 16*cc + 4*kp; wv = WV + 16*cc + 4*kp; ax = AX + 4*kp
            if kp < 3:
                a(f'v_mfma_f32_32x32x16_bf16 {Hs}, v[{ax}:{ax+3}], v[{wv}:{wv+3}], {"0" if kp == 0 else Hs}')
                a(f'v_mfma_f32_32x32x16_bf16 {Gs}, v[{ax}:{ax+3}], v[{wb}:{wb+3}], {Gs}')
            else:
                a(f'v_mfma_f32_32x32x16_bf16 {Gs}, v[{ax}:{ax+3}], v[{wb}:{wb+3}], {Gs}')
                a(f'v_mfma_f32_32x32x16_bf16 {Hs}, v[{ax}:{ax+3}], v[{wv}:{wv+3}], {Hs}')
        a('s_nop 10')
    def compute(tail):
        for cc in range(2):
            mfmas(cc)
            done = a.newlabel('cdone')
            for j in range(4):
                if tail and j > 0:
                    a(f's_cmp_le_u32 s{sREM}, {j}')
                    a(f's_cbranch_scc1 {done}')
                quad(cc, j)
            a.label(done)
    a.label('K2_TILE')
    a('s_waitcnt vmcnt(0)')
    for kp in range(4):
        a(f'ds_read_b128 v[{AX+4*kp}:{AX+4*kp+3}], v{RA+kp}')
    a(f'ds_read2_b32 v[{QA}:{QA+1}], v{pQI} offset0:0 offset1:1')
    a(f'ds_read2_b32 v[{QA+2}:{QA+3}], v{pQI} offset0:2 offset1:3')
    a(f'ds_read_b32 v{QF}, v{pQF}')
    a(f'ds_read_b32 v{EE}, v{pEE}')
    a(f'ds_read_b128 v[{EN}:{EN+3}], v{pEN} offset:64')
    a(f'v_add_u32 v{pQI}, 16, v{pQI}')
    a(f'v_add_u32 v{pQF}, 16, v{pQF}')
    a(f'v_add_u32 v{pEE}, 64, v{pEE}')
    a(f'v_add_u32 v{pEN}, 64, v{pEN}')
    a('s_waitcnt lgkmcnt(3)')
    for q in range(4):
        a(f'v_and_or_b32 v{QA+q}, v{QA+q}, s{sQM}, v{C4}')
    for cc in range(2):
        for q in range(4):
            a(f'ds_read_u16 v{BE+4*cc+q}, v{QA+q} offset:{512+2*cc}')
    a('s_waitcnt lgkmcnt(8)')
    a(f'v_cmp_gt_i32 s[{sF}:{sF+1}], 0, v{QF}')
    a(f'v_perm_b32 v{AE}, v{EE}, v{AE}, v{SEL}')
    a(f's_cmp_ge_u32 s{sTI}, s{sNT}')
    a('s_cbranch_scc1 K2_NODMA')
    dma_issue()
    a.label('K2_NODMA')
    a(f's_or_b32 s{sANY}, s{sF}, s{sF+1}')
    a('s_waitcnt lgkmcnt(0)')
    for cc in range(2):
        a(f'v_or_b32 v{BE+4*cc}, v{BC+cc}, v{BE+4*cc}')
    a(f's_cmp_lt_u32 s{sTI}, s{sNT}')
    a('s_cbranch_scc1 K2_FULL')
    a(f's_cmp_lg_u32 s{sREM}, 0')
    a('s_cbranch_scc1 K2_TAIL')
    a.label('K2_FULL')
    a('s_nop 0')
    compute(False)
    a(f's_add_u32 s{sTI}, s{sTI}, 1')
    a(f's_cmp_le_u32 s{sTI}, s{sNT}')
    a('s_cbranch_scc1 K2_TILE')
    a('s_branch K2_MAINDONE')
    a.label('K2_TAIL')
    a('s_nop 0')
    compute(True)
    a.label('K2_MAINDONE')
    a(f's_add_u32 s{sP}, s{sP}, 1')
    a(f's_cmp_ge_u32 s{sP}, s{sNP}')
    a('s_cbranch_scc1 K2_EPI')
    a('s_waitcnt lgkmcnt(0)')
    a('s_barrier')
    seg_loads()
    rec_base()
    a('s_waitcnt vmcnt(0)')
    a('s_branch K2_PASS')
    a.label('K2_EPI')
    e0 = 4
    XV = e0; DN = e0 + 4; NM = e0 + 12; UU = e0 + 20; AD = e0 + 24; GO = e0 + 25; T1 = e0 + 26; T2 = e0 + 27; O = e0 + 28
    def epi_addr(base):
        a(f'v_add_u32 v{T1}, {base}, v0')
        a(f'v_lshrrev_b32 v{T2}, 3, v{T1}')
        a(f'v_and_b32 v{T1}, 7, v{T1}')
        a(f'v_cmp_gt_u32 vcc, s{sNN}, v{T2}')
        a(f'v_mul_u32_u24 v{AD}, {ROWB}, v{T2}')
        a(f'v_add_u32 v{GO}, s{sNS}, v{T2}')
        a(f'v_lshlrev_b32 v{GO}, 7, v{GO}')
        a(f'v_lshl_add_u32 v{GO}, v{T1}, 4, v{GO}')
    def epi_body():
        a(f'v_lshl_add_u32 v{T2}, v{T1}, 5, v{AD}')
        a(f'ds_read_b128 v[{DN}:{DN+3}], v{T2}')
        a(f'ds_read_b128 v[{DN+4}:{DN+7}], v{T2} offset:16')
        a(f'ds_read_b128 v[{NM}:{NM+3}], v{T2} offset:256')
        a(f'ds_read_b128 v[{NM+4}:{NM+7}], v{T2} offset:272')
        a(f'v_lshl_add_u32 v{T2}, v{T1}, 4, v{AD}')
        a(f'ds_read_b128 v[{UU}:{UU+3}], v{T2} offset:640')
        a(f's_mov_b32 s{t0}, 0x{EPS_SCALED:x}')
        a(f's_mov_b32 s{t1}, 0xffff0000')
        a('s_waitcnt vmcnt(0) lgkmcnt(0)')
        for i in range(8):
            a(f'v_add_f32 v{DN+i}, s{t0}, v{DN+i}')
        for i in range(8):
            a(f'v_rcp_f32 v{DN+i}, v{DN+i}')
        for i in range(8):
            if i % 2 == 0: a(f'v_lshlrev_b32 v{T2}, 16, v{UU+i//2}')
            else: a(f'v_and_b32 v{T2}, s{t1}, v{UU+i//2}')
            a(f'v_fma_f32 v{NM+i}, v{NM+i}, v{DN+i}, v{T2}')
            a(f'v_mul_f32 v{T2}, 0, v{NM+i}')
            a(f'v_cmp_lt_f32 vcc, 0, v{NM+i}')
            a('s_nop 1')
            a(f'v_cndmask_b32 v{NM+i}, v{T2}, v{NM+i}, vcc')
            if i % 2 == 0: a(f'v_lshlrev_b32 v{T2}, 16, v{XV+i//2}')
            else: a(f'v_and_b32 v{T2}, s{t1}, v{XV+i//2}')
            a(f'v_add_f32 v{NM+i}, v{T2}, v{NM+i}')
        for i in range(4):
            a(f'v_cvt_pk_bf16_f32 v{O+i}, v{NM+2*i}, v{NM+2*i+1}')
        a(f'buffer_store_dwordx4 v[{O}:{O+3}], v{GO}, s[{rO}:{rO+3}], 0 offen')
    epi_addr(0)
    a(f'buffer_load_dwordx4 v[{XV}:{XV+3}], v{GO}, s[{rX}:{rX+3}], 0 offen')
    a(f's_mov_b64 s[{sSV}:{sSV+1}], vcc')
    a('s_waitcnt lgkmcnt(0)')
    a('s_barrier')
    a(f's_mov_b64 exec, s[{sSV}:{sSV+1}]')
    a('s_cbranch_execz K2_EPI2')
    epi_body()
    a.label('K2_EPI2')
    a('s_mov_b64 exec, -1')
    a(f's_cmp_lg_u32 s{sW}, 0')
    a('s_cbranch_scc1 K2_END')
    epi_addr(768)
    a(f's_and_b64 exec, exec, vcc')
    a('s_cbranch_execz K2_END')
    a(f'buffer_load_dwordx4 v[{XV}:{XV+3}], v{GO}, s[{rX}:{rX+3}], 0 offen')
    epi_body()
    a.label('K2_END')
    a('s_endpgm')
    return nvgpr, nsgpr

def kd(name, nv, ns):
    acc = (nv + 3) // 4 * 4
    return f'''.amdhsa_kernel {name}
  .amdhsa_next_free_vgpr {nv}
  .amdhsa_next_free_sgpr {ns}
  .amdhsa_accum_offset {acc}
  .amdhsa_group_segment_fixed_size 0
  .amdhsa_kernarg_size 96
  .amdhsa_user_sgpr_count 2
  .amdhsa_user_sgpr_kernarg_segment_ptr 1
  .amdhsa_system_sgpr_workgroup_id_x 1
  .amdhsa_float_denorm_mode_32 3
.end_amdhsa_kernel
'''

def build(opts=None):
    opts = opts or {}
    a = Asm()
    gen_k1(a)
    nv, ns = gen_k2(a, opts)
    out = HEADER
    out += f'; @launch kernel=gs_part_kernel grid=(256,1,1) block=({K1_THREADS},1,1) lds={LDS_K1}\n'
    out += f'; @launch kernel=gs_main_kernel grid=(256,1,1) block=({NW*64},1,1) lds={LDS_MAIN}\n'
    out += '.amdgcn_target "amdgcn-amd-amdhsa--gfx950"\n.text\n'
    out += a.text()
    out += '.section .rodata,"a"\n.p2align 6\n'
    out += kd('gs_part_kernel', 56, 48)
    out += '.p2align 6\n'
    out += kd('gs_main_kernel', nv, ns)
    return out

if __name__ == '__main__':
    path = sys.argv[1] if len(sys.argv) > 1 else 'gather_scatter__edge_featured_mpnn_gatedgcn__graph.s'
    open(path, 'w').write(build())
    print('written', path)
```

```python
import sys, os, struct
sys.path.insert(0, os.path.dirname(__file__))
from asmlib import *

N = 25000; E = 800000
NBK = 256
CH = 3136
RECB = CH * 8
WS_TAB = 0x700000
WS_FRAG = 0x780000
MAGIC_B = 43980466
LOG2E = 0xBFB8AA3B
SBITS = 50
C_SCALE = (127 - SBITS) << 23
EPS_SCALED = 0x4E8637BD
assert abs(struct.unpack('<f', struct.pack('<I', EPS_SCALED))[0] / (1e-6 * 2.0**50) - 1) < 1e-6

NW = 8
NSTREAM = 16
NIT = 16
CAP = 3456
WSLOW = 13
ROWB = 784
MAXN = 98
ENT_QUADS = 960
VROWB = 640
L_CNT = 0
L_ZERO = 1024
L_TAB = 1536
L_QI = 2560
L_ENT = L_QI + ENT_QUADS * 4
L_ACC = L_ENT + ENT_QUADS * 16
L_VIRT = L_ACC + MAXN * ROWB
L_WST = L_VIRT + NSTREAM * VROWB
L_WST = (L_WST + 255) // 256 * 256
L_DMA = L_WST + 16384
LDS_MAIN = L_DMA + NW * 4096
assert LDS_MAIN <= 163840, LDS_MAIN
assert L_ACC % 16 == 0 and L_VIRT % 16 == 0

K1_THREADS = 896
K1_HIST = 0
K1_STAGE = 1024
LDS_K1 = K1_STAGE + RECB

HEADER = open(os.path.join(os.path.dirname(__file__), 'header.txt')).read()

def srd(a, sreg, ptr, size):
    a(f's_mov_b32 s{sreg}, s{ptr}')
    a(f's_and_b32 s{sreg+1}, s{ptr+1}, 0xffff')
    a(f's_mov_b32 s{sreg+2}, {size}')
    a(f's_mov_b32 s{sreg+3}, 0x20000')

def srd_off(a, sreg, ptr, off, size):
    a(f's_add_u32 s{sreg}, s{ptr}, {off}')
    a(f's_addc_u32 s{sreg+1}, s{ptr+1}, 0')
    a(f's_and_b32 s{sreg+1}, s{sreg+1}, 0xffff')
    a(f's_mov_b32 s{sreg+2}, {size}')
    a(f's_mov_b32 s{sreg+3}, 0x20000')

def wave_scan(a, op, r):
    for sh in (1, 2, 4, 8):
        a('s_nop 1')
        a(f'{op}_dpp v{r}, v{r}, v{r} row_shr:{sh} row_mask:0xf bank_mask:0xf')
    a('s_nop 1')
    a(f'{op}_dpp v{r}, v{r}, v{r} row_bcast:15 row_mask:0xa bank_mask:0xf')
    a('s_nop 1')
    a(f'{op}_dpp v{r}, v{r}, v{r} row_bcast:31 row_mask:0xc bank_mask:0xf')

def wave_scan2(a, op1, r1, op2, r2):
    steps = [f'row_shr:{sh} row_mask:0xf bank_mask:0xf' for sh in (1, 2, 4, 8)] + \
            ['row_bcast:15 row_mask:0xa bank_mask:0xf', 'row_bcast:31 row_mask:0xc bank_mask:0xf']
    a('s_nop 1')
    for st in steps:
        a(f'{op1}_dpp v{r1}, v{r1}, v{r1} {st}')
        a(f'{op2}_dpp v{r2}, v{r2}, v{r2} {st}')
        a('s_nop 0')

def gen_k1(a, opts):
    a.raw('.p2align 8')
    a.raw('.globl gs_part_kernel')
    a.raw('.type gs_part_kernel,@function')
    a.label('gs_part_kernel')
    a('s_cmp_ge_u32 s2, 256')
    a('s_cbranch_scc1 K1_END')
    a('s_load_dwordx4 s[4:7], s[0:1], 8')
    a('s_load_dwordx2 s[8:9], s[0:1], 24')
    a('s_load_dwordx2 s[10:11], s[0:1], 88')
    a('v_lshrrev_b32 v1, 6, v0')
    a('s_mul_i32 s12, s2, %d' % (CH * 4))
    a('v_readfirstlane_b32 s3, v1')
    a('s_lshr_b32 s13, s12, 1')
    a('v_lshlrev_b32 v2, 4, v0')
    a('v_add_u32 v2, s12, v2')
    a('s_cmp_eq_u32 s3, 13')
    a('s_cbranch_scc1 K1_FRAG')
    a('v_lshlrev_b32 v3, 3, v0')
    a('v_add_u32 v3, s13, v3')
    a('s_waitcnt lgkmcnt(0)')
    srd(a, 20, 8, E * 4)
    a('buffer_load_dwordx4 v[4:7], v2, s[20:23], 0 offen')
    srd(a, 24, 6, E * 4)
    a('buffer_load_dwordx4 v[8:11], v2, s[24:27], 0 offen')
    srd(a, 28, 4, E * 2)
    a('buffer_load_dwordx2 v[12:13], v3, s[28:31], 0 offen')
    a('v_lshlrev_b32 v14, 2, v0')
    a('v_mov_b32 v15, 0')
    a('v_cmp_gt_u32 vcc, 256, v0')
    a('s_and_saveexec_b64 s[18:19], vcc')
    a('ds_write_b32 v14, v15 offset:%d' % K1_HIST)
    a('s_mov_b64 exec, s[18:19]')
    a('v_cmp_gt_u32 vcc, %d, v0' % (CH // 4))
    a('s_mov_b32 s14, %d' % (E * 4))
    a('v_cmp_gt_u32 s[16:17], s14, v2')
    a('s_and_b64 s[16:17], s[16:17], vcc')
    a('s_mul_i32 s15, s2, %d' % RECB)
    srd_off(a, 32, 10, 's15', RECB)
    srd_off(a, 36, 10, WS_TAB, 256 * 1024)
    a('s_mov_b32 s40, %d' % MAGIC_B)
    a('s_movk_i32 s41, 3125')
    a('v_mov_b32 v15, 1')
    a('s_waitcnt lgkmcnt(0)')
    a('s_barrier')
    a('s_mov_b64 exec, s[16:17]')
    a('s_cbranch_execz K1_NOEDGE1')
    a('s_waitcnt vmcnt(2)')
    for k in range(4):
        a(f'v_mul_hi_u32 v{16+k}, v{4+k}, s40')
    for k in range(4):
        a(f'v_lshlrev_b32 v{20+k}, 2, v{16+k}')
        a(f'ds_add_rtn_u32 v{24+k}, v{20+k}, v15 offset:{K1_HIST}')
    for k in range(4):
        a(f'v_mul_u32_u24 v{28+k}, s41, v{16+k}')
        a(f'v_add_u32 v{28+k}, 31, v{28+k}')
        a(f'v_lshrrev_b32 v{28+k}, 5, v{28+k}')
        a(f'v_sub_u32 v{28+k}, v{4+k}, v{28+k}')
        a(f'v_lshlrev_b32 v{33+2*k}, 3, v{28+k}')
    a('s_waitcnt vmcnt(0)')
    a('s_mov_b32 s42, 0xffff0000')
    a('v_lshl_or_b32 v32, v12, 16, v8')
    a('v_and_or_b32 v34, v12, s42, v9')
    a('v_lshl_or_b32 v36, v13, 16, v10')
    a('v_and_or_b32 v38, v13, s42, v11')
    a.label('K1_NOEDGE1')
    a('s_mov_b64 exec, -1')
    a('s_waitcnt lgkmcnt(0)')
    a('s_barrier')
    a('s_cmp_lg_u32 s3, 0')
    a('s_cbranch_scc1 K1_SCANDONE')
    a('v_lshlrev_b32 v40, 4, v0')
    a('ds_read_b128 v[44:47], v40 offset:%d' % K1_HIST)
    a('v_lshlrev_b32 v41, 12, v0')
    a('s_lshl_b32 s15, s2, 2')
    a('v_add_u32 v41, s15, v41')
    a('s_waitcnt lgkmcnt(0)')
    a('v_add_u32 v48, v44, v45')
    a('v_add_u32 v49, v48, v46')
    a('v_add_u32 v50, v49, v47')
    a('v_mov_b32 v51, v50')
    wave_scan(a, 'v_add_u32', 51)
    a('v_sub_u32 v52, v51, v50')
    a('v_add_u32 v53, v52, v44')
    a('v_add_u32 v54, v52, v48')
    a('v_add_u32 v55, v52, v49')
    a('ds_write_b128 v40, v[52:55] offset:%d' % K1_HIST)
    for k in range(4):
        a(f'v_lshl_or_b32 v{44+k}, v{44+k}, 16, v{52+k}')
        a(f'buffer_store_dword v{44+k}, v41, s[36:39], 0 offen offset:{k*1024}')
    a.label('K1_SCANDONE')
    a('s_waitcnt lgkmcnt(0)')
    a('s_barrier')
    a('s_mov_b64 exec, s[16:17]')
    a('s_cbranch_execz K1_NOEDGE2')
    for k in range(4):
        a(f'ds_read_b32 v{28+k}, v{20+k} offset:{K1_HIST}')
    for k in range(4):
        a(f's_waitcnt lgkmcnt({3 if k == 0 else 3})')
        a(f'v_add_lshl_u32 v{28+k}, v{28+k}, v{24+k}, 3')
        a(f'ds_write_b64 v{28+k}, v[{32+2*k}:{33+2*k}] offset:{K1_STAGE}')
    a.label('K1_NOEDGE2')
    a('s_mov_b64 exec, -1')
    a('v_lshlrev_b32 v2, 4, v0')
    a('v_add_u32 v3, %d, v2' % (RECB // 2))
    a('v_cmp_gt_u32 vcc, %d, v0' % (CH // 4))
    a('s_waitcnt lgkmcnt(0)')
    a('s_barrier')
    a('s_and_saveexec_b64 s[18:19], vcc')
    a('s_cbranch_execz K1_END')
    a('ds_read_b128 v[4:7], v2 offset:%d' % K1_STAGE)
    a('ds_read_b128 v[8:11], v2 offset:%d' % (K1_STAGE + RECB // 2))
    a('s_waitcnt lgkmcnt(1)')
    a('buffer_store_dwordx4 v[4:7], v2, s[32:35], 0 offen')
    a('s_waitcnt lgkmcnt(0)')
    a('buffer_store_dwordx4 v[8:11], v3, s[32:35], 0 offen')
    a('s_endpgm')
    a.label('K1_FRAG')
    a('s_cmp_ge_u32 s2, 32')
    a('s_cbranch_scc1 K1_END')
    a('s_load_dwordx4 s[12:15], s[0:1], 32')
    a('s_load_dwordx4 s[16:19], s[0:1], 56')
    a('s_lshr_b32 s20, s2, 3')
    a('s_waitcnt lgkmcnt(0)')
    a('s_mov_b32 s22, s14')
    a('s_mov_b32 s23, s15')
    a('s_cmp_eq_u32 s20, 1')
    a('s_cselect_b32 s22, s18, s22')
    a('s_cselect_b32 s23, s19, s23')
    a('s_cmp_eq_u32 s20, 2')
    a('s_cselect_b32 s22, s12, s22')
    a('s_cselect_b32 s23, s13, s23')
    a('s_cmp_eq_u32 s20, 3')
    a('s_cselect_b32 s22, s16, s22')
    a('s_cselect_b32 s23, s17, s23')
    srd(a, 24, 22, 64 * 64 * 2)
    srd_off(a, 28, 10, WS_FRAG, 32 * 1024)
    a('s_and_b32 s32, s2, 3')
    a('s_lshr_b32 s33, s2, 2')
    a('s_and_b32 s33, s33, 1')
    a('s_lshl_b32 s32, s32, 11')
    a('s_lshl_b32 s33, s33, 6')
    a('s_add_u32 s32, s32, s33')
    a('v_and_b32 v1, 63, v0')
    a('v_and_b32 v2, 31, v1')
    a('v_lshlrev_b32 v2, 1, v2')
    a('v_lshrrev_b32 v3, 5, v1')
    a('v_lshlrev_b32 v3, 10, v3')
    a('v_add3_u32 v2, v2, v3, s32')
    for i in range(8):
        a(f'buffer_load_ushort v{8+i}, v2, s[24:27], 0 offen offset:{i*128}')
    a('s_mov_b32 s34, 1.0')
    a('s_cmp_eq_u32 s20, 0')
    a('s_cselect_b32 s34, 0x%x, s34' % LOG2E)
    a('s_waitcnt vmcnt(0)')
    for i in range(8):
        a(f'v_lshlrev_b32 v{8+i}, 16, v{8+i}')
        a(f'v_mul_f32 v{8+i}, s34, v{8+i}')
    for i in range(4):
        a(f'v_cvt_pk_bf16_f32 v{16+i}, v{8+2*i}, v{9+2*i}')
    a('v_lshlrev_b32 v4, 4, v1')
    a('s_lshl_b32 s35, s2, 10')
    a('v_add_u32 v4, s35, v4')
    a('buffer_store_dwordx4 v[16:19], v4, s[28:31], 0 offen')
    a.label('K1_END')
    a('s_endpgm')

def gen_k2(a, opts):
    STAMP = opts.get('stamp', False)
    vLANE = 1; BC = 2
    WB = 4; WV = 36; AX = 68
    GA = 84; HA = 100; GB = 116; HB = 132
    PP = 148; TT_ = 156; ZZ = 164
    DEN = 172; NUM = 176
    AE = 180; BE = 184
    QA = [192, 196]
    EN = 200; RA = 204; CO = 208
    pEN = 212; pEE = 213; pQI = 214; pQF = 215
    C4 = 216; SEL = 217; EE = 218; QF = 219
    F0 = 220; F1 = 221
    tA = 222; tB = 223; tC = 224; tD = 225; tE = 226; tF = 227; tG = 228; tH = 229
    TQ = 232
    TR = 236
    nvgpr = 240
    REC = PP
    RK = GB
    SG = HB
    G_ = [GA, GB]; H_ = [HA, HB]
    S = Regs('s', 3, 102)
    sX = S.alloc('x', 2, 2); sWC = S.alloc('wc', 2, 2); sOUT = S.alloc('out', 2, 2); sWS = S.alloc('ws', 2, 2)
    rX = S.alloc('rX', 4, 4); rT = S.alloc('rT', 4, 4); rR = S.alloc('rR', 4, 4); rF = S.alloc('rF', 4, 4)
    sW = S.alloc('w'); sNS = S.alloc('ns'); sNN = S.alloc('nn')
    sP = S.alloc('pass'); sNP = S.alloc('npass')
    sL = S.alloc('L'); sNT = S.alloc('nt'); sREM = S.alloc('rem'); sTI = S.alloc('ti')
    sC = S.alloc('C', 2, 2)
    sF = [S.alloc('F0', 2, 2), S.alloc('F1', 2, 2)]
    sANY = [S.alloc('any0'), S.alloc('any1')]
    s128 = S.alloc('c128'); sQM = S.alloc('qmask')
    t0 = S.alloc('t0'); t1 = S.alloc('t1'); t2 = S.alloc('t2', 1, 2); t3 = S.alloc('t3')
    sSV = S.alloc('sv', 2, 2)
    sM0 = S.alloc('m0s', 4)
    MK = S.alloc('MK', 32, 2)
    rO = rT
    rW = rF
    nsgpr = S.hi
    sST = MK
    stamp_regs = []
    def stamp(i):
        if not STAMP: return
        a(f's_memtime s[{t2}:{t3}]') if (t2 % 2 == 0 and t3 == t2 + 1) else None
        assert t2 % 2 == 0 and t3 == t2 + 1
        a('s_waitcnt lgkmcnt(0)')
        a(f'v_writelane_b32 v{tH}, s{t2}, {i}')
    assert t2 % 2 == 0 or not STAMP, t2

    a.raw('.p2align 8')
    a.raw('.globl gs_main_kernel')
    a.raw('.type gs_main_kernel,@function')
    a.label('gs_main_kernel')
    a('s_cmp_ge_u32 s2, 256')
    a('s_cbranch_scc1 K2_END')
    if opts.get('xcdmap', 1):
        a('s_and_b32 s3, s2, 7')
        a('s_lshr_b32 s2, s2, 3')
        a('s_lshl_b32 s3, s3, 5')
        a('s_add_u32 s2, s2, s3')
    a(f's_load_dwordx2 s[{sX}:{sX+1}], s[0:1], 0')
    a(f's_load_dwordx2 s[{sWC}:{sWC+1}], s[0:1], 48')
    a(f's_load_dwordx2 s[{sOUT}:{sOUT+1}], s[0:1], 72')
    a(f's_load_dwordx2 s[{sWS}:{sWS+1}], s[0:1], 88')
    if STAMP:
        a(f'v_mov_b32 v{tH}, 0')
    stamp(0)
    a(f'v_lshrrev_b32 v{tA}, 6, v0')
    a(f'v_and_b32 v{vLANE}, 63, v0')
    a(f'v_readfirstlane_b32 s{sW}, v{tA}')
    a(f'v_lshrrev_b32 v{tB}, 5, v{vLANE}')
    a(f'v_and_b32 v{tC}, 31, v{vLANE}')
    a(f's_mul_i32 s{t0}, s2, 3125')
    a(f's_add_u32 s{sNS}, s{t0}, 31')
    a(f's_lshr_b32 s{sNS}, s{sNS}, 5')
    a(f's_add_u32 s{t0}, s{t0}, {3125+31}')
    a(f's_lshr_b32 s{t0}, s{t0}, 5')
    a(f's_sub_u32 s{sNN}, s{t0}, s{sNS}')
    a(f's_lshl_b32 s{t0}, s{sW}, 1')
    a(f'v_add_u32 v{tB}, s{t0}, v{tB}')
    a(f'v_lshlrev_b32 v{tD}, 6, v{tB}')
    a(f'v_lshlrev_b32 v{tA}, 4, v{vLANE}')
    a(f's_lshl_b32 s{t1}, s2, 10')
    a(f's_add_u32 s{t1}, s{t1}, {WS_TAB}')
    a('s_waitcnt lgkmcnt(0)')
    srd_off(a, rT, sWS, f's{t1}', 1024)
    for i in range(4):
        a(f'buffer_load_dwordx4 v[{SG+4*i}:{SG+4*i+3}], v{tD}, s[{rT}:{rT+3}], 0 offen offset:{16*i}')
    a(f'buffer_load_dwordx4 v[{TQ}:{TQ+3}], v{tA}, s[{rT}:{rT+3}], 0 offen')
    srd(a, rX, sX, N * 128)
    srd_off(a, rF, sWS, WS_FRAG, 32 * 1024)
    a(f's_lshl_b32 s{t0}, s{sW}, 12')
    a(f's_add_u32 s{t0}, s{t0}, {L_DMA}')
    for i in range(4):
        a(f's_add_u32 s{sM0+i}, s{t0}, {i*1024}')
    a(f's_lshl_b32 s{t0}, s{sW}, 11')
    a(f's_add_u32 s{t1}, s{t0}, {L_WST}')
    a(f's_mov_b32 m0, s{t1}')
    a(f's_add_u32 s{t2}, s{t0}, 0')
    a(f'buffer_load_dwordx4 v{tA}, s[{rF}:{rF+3}], s{t2} offen lds')
    a(f'buffer_load_dwordx4 v{tA}, s[{rF}:{rF+3}], s{t2} offen offset:1024 lds')
    a(f's_add_u32 s{t1}, s{t0}, {L_DMA + 4*4096}')
    a(f's_mov_b32 m0, s{t1}')
    a(f's_add_u32 s{t2}, s{t0}, {16*1024}')
    a(f'buffer_load_dwordx4 v{tA}, s[{rF}:{rF+3}], s{t2} offen lds')
    a(f'buffer_load_dwordx4 v{tA}, s[{rF}:{rF+3}], s{t2} offen offset:1024 lds')
    a(f'v_bfe_u32 v{tE}, v{vLANE}, 4, 1')
    a(f'v_and_b32 v{tF}, 7, v{vLANE}')
    a(f'v_xor_b32 v{tE}, v{tE}, v{tF}')
    a(f'v_lshlrev_b32 v{CO}, 4, v{tE}')
    for i in range(1, 4):
        a(f'v_xor_b32 v{CO+i}, {32*i}, v{CO}')
    a(f'v_bfe_u32 v{tE}, v{vLANE}, 3, 2')
    a(f'v_lshlrev_b32 v{tE}, 3, v{tE}')
    a(f'v_lshrrev_b32 v{tF}, 5, v{vLANE}')
    a(f'v_lshl_add_u32 v{tE}, v{tF}, 2, v{tE}')
    a(f's_lshr_b32 s{t0}, s{sW}, 1')
    a(f's_lshl_b32 s{t1}, s{t0}, 5')
    a(f's_add_u32 s{t1}, s{t1}, s{sNS}')
    a(f's_and_b32 s{t2}, s{sW}, 1')
    a(f's_lshl_b32 s{t2}, s{t2}, 1')
    a(f's_add_u32 s{t1}, s{t1}, s{t2}')
    a(f'v_add_u32 v{tE}, s{t1}, v{tE}')
    a(f'v_lshlrev_b32 v{tE}, 7, v{tE}')
    a(f's_lshl_b32 s{t0}, s{t0}, 12')
    a(f's_lshl_b32 s{t3}, s{t2}, 10')
    a(f's_add_u32 s{t0}, s{t0}, s{t3}')
    a(f's_add_u32 s{t0}, s{t0}, {L_DMA}')
    a(f's_cmp_eq_u32 s{t2}, 0')
    a(f's_cbranch_scc0 K2_XI2')
    a(f'v_add_u32 v{tF}, v{tE}, v{CO}')
    a(f'v_add_u32 v{tG}, v{tE}, v{CO+1}')
    a('s_branch K2_XI')
    a.label('K2_XI2')
    a(f'v_add_u32 v{tF}, v{tE}, v{CO+2}')
    a(f'v_add_u32 v{tG}, v{tE}, v{CO+3}')
    a.label('K2_XI')
    a(f'v_add_u32 v{tG}, 128, v{tG}')
    a(f's_mov_b32 m0, s{t0}')
    a(f's_add_u32 s{t0}, s{t0}, 1024')
    a(f'buffer_load_dwordx4 v{tF}, s[{rX}:{rX+3}], 0 offen lds')
    a(f's_mov_b32 m0, s{t0}')
    a('s_nop 0')
    a(f'buffer_load_dwordx4 v{tG}, s[{rX}:{rX+3}], 0 offen lds')
    srd(a, rR, sWC, 128)
    a(f'v_lshlrev_b32 v{tE}, 1, v{tC}')
    a(f'buffer_load_ushort v{BC}, v{tE}, s[{rR}:{rR+3}], 0 offen')
    a(f'buffer_load_ushort v{BC+1}, v{tE}, s[{rR}:{rR+3}], 0 offen offset:64')
    a(f's_mov_b32 s{t0}, {16*RECB}')
    a(f'v_mul_lo_u32 v{tB}, v{tB}, s{t0}')
    a(f'v_lshl_add_u32 v{tB}, v{tC}, 3, v{tB}')
    def lds_init():
        a(f'v_lshlrev_b32 v{tE}, 4, v0')
        for i in range(4):
            a(f'v_mov_b32 v{TR+i}, 0xffff')
        a(f'ds_write_b128 v{tE}, v[{TR}:{TR+3}] offset:{L_ENT}')
        a(f'v_cmp_gt_u32 vcc, {ENT_QUADS - 512}, v0')
        a(f's_and_saveexec_b64 s[{sSV}:{sSV+1}], vcc')
        a(f'ds_write_b128 v{tE}, v[{TR}:{TR+3}] offset:{L_ENT + 512*16}')
        a(f's_mov_b64 exec, s[{sSV}:{sSV+1}]')
        for i in range(4):
            a(f'v_mov_b32 v{TR+i}, {L_VIRT}')
        a(f'v_cmp_gt_u32 vcc, {ENT_QUADS // 4}, v0')
        a(f's_and_saveexec_b64 s[{sSV}:{sSV+1}], vcc')
        a(f'ds_write_b128 v{tE}, v[{TR}:{TR+3}] offset:{L_QI}')
        a(f's_mov_b64 exec, s[{sSV}:{sSV+1}]')
        for i in range(4):
            a(f'v_mov_b32 v{TR+i}, 0')
        a(f'v_cmp_gt_u32 vcc, {(1024 + 512) // 16}, v0')
        a(f's_and_saveexec_b64 s[{sSV}:{sSV+1}], vcc')
        a(f'ds_write_b128 v{tE}, v[{TR}:{TR+3}] offset:{L_CNT}')
        a(f's_mov_b64 exec, s[{sSV}:{sSV+1}]')
        a(f'v_add_u32 v{tE}, {L_VIRT + 512}, v{tE}')
        a(f'v_cmp_gt_u32 vcc, 8, v0')
        a(f's_and_saveexec_b64 s[{sSV}:{sSV+1}], vcc')
        a(f'ds_write_b128 v{tE}, v[{TR}:{TR+3}]')
        a(f's_mov_b64 exec, s[{sSV}:{sSV+1}]')
    lds_init()
    a('s_waitcnt vmcnt(8)')
    stamp(1)
    srd(a, rR, sWS, NBK * RECB)
    def rec_loads(vbase, vkk):
        a(f's_mov_b32 s{t2}, 0')
        for it in range(NIT):
            a(f'v_mad_u32_u16 v{RK+it}, v{SG+it}, 8, v{vbase}')
            a(f'buffer_load_dwordx2 v[{REC+2*it}:{REC+2*it+1}], v{RK+it}, s[{rR}:{rR+3}], s{t2} offen')
            if it < NIT - 1: a(f's_add_u32 s{t2}, s{t2}, {RECB}')
        for it in range(NIT):
            a(f'v_cmp_gt_u32_sdwa s[{MK+2*it}:{MK+2*it+1}], v{SG+it}, v{vkk} src0_sel:WORD_1 src1_sel:DWORD')
    rec_loads(tB, tC)
    for i in range(4):
        a(f'v_lshrrev_b32 v{TQ+i}, 16, v{TQ+i}')
    a(f'v_add_u32 v{tD}, v{TQ}, v{TQ+1}')
    a(f'v_max_u32 v{tE}, v{TQ}, v{TQ+1}')
    a(f'v_add3_u32 v{tD}, v{tD}, v{TQ+2}, v{TQ+3}')
    a(f'v_max3_u32 v{tE}, v{tE}, v{TQ+2}, v{TQ+3}')
    wave_scan2(a, 'v_add_u32', tD, 'v_max_u32', tE)
    a(f'v_readlane_b32 s{t0}, v{tD}, 63')
    a(f'v_readlane_b32 s{t1}, v{tE}, 63')
    a(f's_mov_b32 s{sNP}, s{t1}')
    a(f's_cmp_gt_u32 s{t0}, {CAP}')
    a('s_cbranch_scc1 K2_SLOW')
    a(f's_cmp_gt_u32 s{t1}, 32')
    a('s_cbranch_scc1 K2_SLOW')

    def one_time(tag):
        a(f'v_and_b32 v{tE}, 3, v{vLANE}')
        a(f'v_bfe_u32 v{tF}, v{vLANE}, 3, 2')
        a(f'v_lshl_add_u32 v{RA}, v{tE}, 3, v{tF}')
        a(f'v_lshlrev_b32 v{tE}, 1, v{tE}')
        a(f'v_lshrrev_b32 v{tF}, 1, v{tF}')
        a(f'v_add_u32 v{tE}, v{tE}, v{tF}')
        a(f'v_bfe_u32 v{tF}, v{vLANE}, 2, 1')
        a(f'v_lshl_add_u32 v{RA}, v{tF}, 2, v{RA}')
        a(f'v_lshrrev_b32 v{tF}, 5, v{vLANE}')
        a(f'v_xor_b32 v{tE}, v{tE}, v{tF}')
        a(f'v_lshlrev_b32 v{tE}, 4, v{tE}')
        a(f'v_lshl_add_u32 v{RA}, v{RA}, 7, v{tE}')
        a(f's_lshr_b32 s{t0}, s{sW}, 1')
        a(f's_lshl_b32 s{t1}, s{t0}, 12')
        a(f's_add_u32 s{t1}, s{t1}, {L_DMA}')
        a(f'v_add_u32 v{tE}, s{t1}, v{RA}')
        for kp in range(4):
            if kp:
                a(f'v_xor_b32 v{tF}, {32*kp}, v{tE}')
                a(f'ds_read_b128 v[{AX+4*kp}:{AX+4*kp+3}], v{tF}')
            else:
                a(f'ds_read_b128 v[{AX}:{AX+3}], v{tE}')
        a(f's_and_b32 s{t2}, s{sW}, 1')
        a(f's_lshl_b32 s{t3}, s{t2}, 12')
        a(f's_add_u32 s{t3}, s{t3}, {L_DMA + 4*4096}')
        a(f'v_lshlrev_b32 v{tF}, 4, v{vLANE}')
        a(f'v_add_u32 v{tG}, s{t3}, v{tF}')
        for kp in range(4):
            a(f'ds_read_b128 v[{WB+4*kp}:{WB+4*kp+3}], v{tG} offset:{kp*1024}')
        for kp in range(4):
            a(f'ds_read_b128 v[{WB+16+4*kp}:{WB+16+4*kp+3}], v{tG} offset:{8192+kp*1024}')
        a(f'v_add_u32 v{RA}, s{sM0}, v{RA}')
        for kp in range(1, 4):
            a(f'v_xor_b32 v{RA+kp}, {32*kp}, v{RA}')
        a(f's_mul_i32 s{t1}, s{t0}, {32*ROWB}')
        a(f's_add_u32 s{t1}, s{t1}, {L_ACC}')
        a(f'v_lshrrev_b32 v{tE}, 5, v{vLANE}')
        a(f'v_mul_u32_u24 v{tE}, {4*ROWB}, v{tE}')
        a(f'v_add_u32 v{tE}, s{t1}, v{tE}')
        a(f'v_and_b32 v{C4}, 31, v{vLANE}')
        a(f's_lshl_b32 s{t3}, s{t2}, 6')
        a(f'v_lshl_add_u32 v{tG}, v{C4}, 1, v{tE}')
        a(f'v_add_u32 v{tG}, s{t3}, v{tG}')
        a(f'v_lshlrev_b32 v{C4}, 2, v{C4}')
        a(f's_lshl_b32 s{t3}, s{t2}, 1')
        a(f'v_add3_u32 v{tE}, v{tE}, v{C4}, s{t3}')
        a('s_waitcnt lgkmcnt(0)')
        for kp in range(4):
            c = '0' if kp == 0 else f'v[{GA}:{GA+15}]'
            a(f'v_mfma_f32_32x32x16_bf16 v[{GA}:{GA+15}], v[{AX+4*kp}:{AX+4*kp+3}], v[{WB+4*kp}:{WB+4*kp+3}], {c}')
            c = '0' if kp == 0 else f'v[{HA}:{HA+15}]'
            a(f'v_mfma_f32_32x32x16_bf16 v[{HA}:{HA+15}], v[{AX+4*kp}:{AX+4*kp+3}], v[{WB+16+4*kp}:{WB+16+4*kp+3}], {c}')
        a(f'v_add_u32 v{tF}, {L_WST}, v{tF}')
        for f in range(8):
            a(f'ds_read_b128 v[{WV+4*f}:{WV+4*f+3}], v{tF} offset:{(8+f)*1024}')
        a(f's_mov_b32 s{t3}, 0x{LOG2E:x}')
        for cc in range(2):
            a(f'v_lshlrev_b32 v{BC+cc}, 16, v{BC+cc}')
            a(f'v_mul_f32 v{BC+cc}, s{t3}, v{BC+cc}')
            a(f'v_cvt_pk_bf16_f32 v{BC+cc}, 0, v{BC+cc}')
        a(f'v_mov_b32 v{TQ}, 0xb2000000')
        a(f'v_cmp_gt_u32 vcc, 32, v{vLANE}')
        a(f'v_mov_b32 v{TQ+1}, 0x0a0c0100')
        a(f'v_mov_b32 v{TQ+2}, 0x07060100')
        for cc in range(2):
            a(f'v_cndmask_b32 v{BC+cc}, v{TQ}, v{BC+cc}, vcc')
        a(f'v_cndmask_b32 v{SEL}, v{TQ+1}, v{TQ+2}, vcc')
        a(f'v_bfe_u32 v{TQ}, v{vLANE}, 2, 1')
        a(f'v_lshrrev_b32 v{TQ+1}, 5, v{vLANE}')
        a(f'v_cmp_eq_u32 vcc, v{TQ}, v{TQ+1}')
        a(f'v_bfe_u32 v{TQ}, v{vLANE}, 3, 2')
        a(f'v_mov_b32 v{TQ+1}, 0x3f80')
        a(f'v_cndmask_b32 v{TQ+1}, 0, v{TQ+1}, vcc')
        for q in range(4):
            a(f'v_cmp_eq_u32 vcc, {q}, v{TQ}')
            a('s_nop 1')
            a(f'v_cndmask_b32 v{AE+q}, 0, v{TQ+1}, vcc')
        for f in range(8):
            a(f'ds_read_b128 v[{WB+4*f}:{WB+4*f+3}], v{tF} offset:{f*1024}')
        a(f's_mov_b32 s{t3}, 0x{LOG2E:x}')
        for i in range(16):
            a(f'v_mul_f32 v{GA+i}, s{t3}, v{GA+i}')
        for i in range(0, 16, 2):
            a(f'v_cvt_pk_bf16_f32 v{GA+i}, v{GA+i}, v{GA+i+1}')
            a(f'v_cvt_pk_bf16_f32 v{HA+i}, v{HA+i}, v{HA+i+1}')
        def wr_rows(regs):
            for vv in regs:
                j, i = vv // 4, vv % 4
                ro = (8 * j + i) * ROWB
                op = 'ds_write_b16' if i % 2 == 0 else 'ds_write_b16_d16_hi'
                src = vv - (vv % 2)
                a(f'{op} v{tE}, v{GA+src} offset:{ro + 512}')
                a(f'{op} v{tG}, v{HA+src} offset:{ro + 640}')
        a(f's_cmp_eq_u32 s{t0}, 3')
        a(f's_cbranch_scc1 K2_RT3{tag}')
        wr_rows(range(16))
        a(f's_branch K2_RTD{tag}')
        a.label(f'K2_RT3{tag}')
        a('s_mov_b32 exec_hi, 0')
        wr_rows([0, 1])
        a('s_mov_b64 exec, -1')
        a.label(f'K2_RTD{tag}')

    def hist():
        a(f'v_mov_b32 v{tE}, 1')
        for it in range(NIT):
            a(f's_mov_b64 exec, s[{MK+2*it}:{MK+2*it+1}]')
            a(f'ds_add_rtn_u32 v{RK+it}, v{REC+2*it+1}, v{tE} offset:{L_CNT}')
        a('s_mov_b64 exec, -1')

    def scan_nodes():
        a(f'v_lshlrev_b32 v{tA}, 4, v{vLANE}')
        a(f'ds_read_b128 v[{TQ}:{TQ+3}], v{tA} offset:{L_CNT}')
        a(f's_mov_b32 s{t0}, {2*ROWB}')
        a(f'v_mul_u32_u24 v{tG}, s{t0}, v{vLANE}')
        a(f'v_add_u32 v{tG}, {L_ACC}, v{tG}')
        a('s_waitcnt lgkmcnt(0)')
        a(f'v_add_u32 v{tE}, 3, v{TQ}')
        a(f'v_add_u32 v{tF}, 3, v{TQ+2}')
        a(f'v_and_b32 v{tE}, -4, v{tE}')
        a(f'v_and_b32 v{tF}, -4, v{tF}')
        a(f'v_add_u32 v{tC}, v{tE}, v{tF}')
        a(f'v_max_u32 v{tB}, v{tE}, v{tF}')
        a(f'v_mov_b32 v{tD}, v{tC}')
        wave_scan2(a, 'v_add_u32', tD, 'v_max_u32', tB)
        a(f'v_sub_u32 v{tC}, v{tD}, v{tC}')
        a(f'v_readlane_b32 s{t1}, v{tD}, 63')
        a(f'v_readlane_b32 s{t2}, v{tB}, 63')
        a(f'v_add_u32 v{tD}, v{tC}, v{tE}')
        a(f'v_lshlrev_b32 v{TR}, 2, v{tC}')
        a(f'v_mov_b32 v{TR+1}, v{tG}')
        a(f'v_lshlrev_b32 v{TR+2}, 2, v{tD}')
        a(f'v_add_u32 v{TR+3}, {ROWB}, v{tG}')
        a(f'ds_write_b128 v{tA}, v[{TR}:{TR+3}] offset:{L_TAB}')
        a(f's_lshr_b32 s{t1}, s{t1}, 2')
        a(f's_add_u32 s{t1}, s{t1}, {NSTREAM-1}')
        a(f's_lshr_b32 s{sL}, s{t1}, 4')
        a(f's_add_u32 s{sNT}, s{sL}, 3')
        a(f's_lshr_b32 s{sNT}, s{sNT}, 2')
        a(f's_sub_u32 s{sREM}, s{sL}, 1')
        a(f's_and_b32 s{sREM}, s{sREM}, 3')
        a(f's_add_u32 s{sREM}, s{sREM}, 1')

    def scatter():
        a('s_waitcnt lgkmcnt(0)')
        for b0 in (0, 8):
            for it in range(b0, b0 + 8):
                a(f's_mov_b64 exec, s[{MK+2*it}:{MK+2*it+1}]')
                a(f'ds_read_b64 v[{AX+2*(it-b0)}:{AX+2*(it-b0)+1}], v{REC+2*it+1} offset:{L_TAB}')
            for it in range(b0, b0 + 8):
                tb = AX + 2*(it-b0)
                a(f's_mov_b64 exec, s[{MK+2*it}:{MK+2*it+1}]')
                a(f's_waitcnt lgkmcnt({min(15, 7 - (it-b0) + 2*(it-b0))})')
                a(f'v_lshl_add_u32 v{tb}, v{RK+it}, 2, v{tb}')
                a(f'v_lshrrev_b32 v{tA}, 2, v{tb}')
                a(f'ds_write_b32 v{tb}, v{REC+2*it} offset:{L_ENT}')
                a(f'v_and_b32 v{tA}, -4, v{tA}')
                a(f'ds_write_b32 v{tA}, v{tb+1} offset:{L_QI}')
        a('s_mov_b64 exec, -1')

    def main_setup_ptrs():
        a(f's_lshl_b32 s{t0}, s{sW}, 1')
        a(f'v_lshrrev_b32 v{tA}, 5, v{vLANE}')
        a(f'v_add_u32 v{tA}, s{t0}, v{tA}')
        a(f'v_mul_lo_u32 v{tA}, v{tA}, s{sL}')
        a(f'v_bfe_u32 v{tB}, v{vLANE}, 3, 2')
        a(f'v_add_u32 v{tB}, v{tA}, v{tB}')
        a(f'v_lshlrev_b32 v{pEN}, 4, v{tB}')
        a(f'ds_read_b128 v[{EN}:{EN+3}], v{pEN} offset:{L_ENT}')
        a(f'v_lshlrev_b32 v{pQF}, 2, v{tB}')
        a(f'v_lshlrev_b32 v{pQI}, 2, v{tA}')
        a(f'v_bfe_u32 v{tA}, v{vLANE}, 2, 1')
        a(f'v_add_u32 v{tA}, s{t0}, v{tA}')
        a(f'v_mul_lo_u32 v{tA}, v{tA}, s{sL}')
        a(f'v_bfe_u32 v{tB}, v{vLANE}, 3, 2')
        a(f'v_add_u32 v{tA}, v{tA}, v{tB}')
        a(f'v_and_b32 v{tB}, 3, v{vLANE}')
        a(f'v_lshl_add_u32 v{tA}, v{tA}, 2, v{tB}')
        a(f'v_lshlrev_b32 v{pEE}, 2, v{tA}')
        a(f's_mov_b32 s{sC}, 0x{C_SCALE:x}')
        a(f's_mov_b32 s{sC+1}, 0x{C_SCALE:x}')
        a(f's_mov_b32 s{s128}, 128')
        a(f's_mov_b32 s{sQM}, 0x7fffffff')

    def dma_addr():
        return [f'v_mad_u32_u16 v{EN+i}, v{EN+i}, s{s128}, v{CO+i}' for i in range(4)]
    def dma_issue():
        out = []
        for i in range(4):
            if opts.get('nodma'): break
            out.append(f's_mov_b32 m0, s{sM0+i}')
            out.append('s_nop 0')
            out.append(f'buffer_load_dwordx4 v{EN+i}, s[{rX}:{rX+3}], 0 offen lds')
        return out

    def main_loop(tag, atomic):
        flush_blocks = []
        def post(cc, par, nq_check):
            done = a.newlabel('pdone') if nq_check else None
            for j in range(4):
                if nq_check and j > 0:
                    a(f's_cmp_le_u32 s{sREM}, {j}')
                    a(f's_cbranch_scc1 {done}')
                p = PP + 2*j; t = TT_ + 2*j; z = ZZ + 2*j
                a(f'v_pk_fma_f32 v[{NUM+2*cc}:{NUM+2*cc+1}], v[{p}:{p+1}], v[{t}:{t+1}], v[{NUM+2*cc}:{NUM+2*cc+1}]')
                a(f'v_pk_fma_f32 v[{DEN+2*cc}:{DEN+2*cc+1}], v[{p}:{p+1}], v[{z}:{z+1}], v[{DEN+2*cc}:{DEN+2*cc+1}]')
                if opts.get('noflush'): continue
                fl = a.newlabel('fl'); back = a.newlabel('bk')
                a(f's_bitcmp1_b32 s{sANY[par]}, {8*j}')
                a(f's_cbranch_scc1 {fl}')
                a.label(back)
                flush_blocks.append((fl, back, cc, par, j))
            if nq_check: a.label(done)
        def pre(cur):
            g0 = G_[cur]; h0 = H_[cur]
            for j in range(4):
                g = g0 + 4*j
                a(f'v_pk_fma_f32 v[{g}:{g+1}], v[{g}:{g+1}], s[{sC}:{sC+1}], s[{sC}:{sC+1}] clamp')
                a(f'v_pk_fma_f32 v[{g+2}:{g+3}], v[{g+2}:{g+3}], s[{sC}:{sC+1}], s[{sC}:{sC+1}] clamp')
            for j in range(4):
                g = g0 + 4*j; h = h0 + 4*j
                X = f'v[{g}:{g+1}]'; Y = f'v[{g+2}:{g+3}]'
                p = PP + 2*j; t = TT_ + 2*j; z = ZZ + 2*j
                a(f'v_pk_mul_f32 v[{t}:{t+1}], {Y}, v[{h}:{h+1}]')
                a(f'v_pk_mul_f32 v[{p}:{p+1}], {X}, {Y}')
                a(f'v_pk_add_f32 v[{z}:{z+1}], {X}, {Y}')
                a(f'v_pk_fma_f32 v[{t}:{t+1}], {X}, v[{h+2}:{h+3}], v[{t}:{t+1}]')
        def mfma_list(nxt, cc):
            Gs = f'v[{G_[nxt]}:{G_[nxt]+15}]'; Hs = f'v[{H_[nxt]}:{H_[nxt]+15}]'
            out = []
            for kp in range(4):
                wb = WB + 16*cc + 4*kp; wv = WV + 16*cc + 4*kp; ax = AX + 4*kp
                out.append(f'v_mfma_f32_32x32x16_bf16 {Hs}, v[{ax}:{ax+3}], v[{wv}:{wv+3}], {"0" if kp == 0 else Hs}')
                out.append(f'v_mfma_f32_32x32x16_bf16 {Gs}, v[{ax}:{ax+3}], v[{wb}:{wb+3}], {"0" if kp == 0 else Gs}')
            out.append(f'v_mfma_f32_32x32x16_bf16 {Gs}, v[{AE}:{AE+3}], v[{BE+4*cc}:{BE+4*cc+3}], {Gs}')
            return out
        def trans_list(cur):
            return [f'v_rcp_f32 v{PP+i}, v{PP+i}' for i in range(8)] + [f'v_exp_f32 v{G_[cur]+i}, v{G_[cur]+i}' for i in range(16)]
        def weave(mf, tr, extras):
            dist = [3, 3, 3, 3, 3, 3, 2, 2, 2]
            k = 0
            for m in range(9):
                for ins in extras.get(('pre', m), []): a(ins)
                if mf: a(mf[m])
                for _ in range(dist[m]):
                    a(tr[k]); k += 1
                for ins in extras.get(m, []): a(ins)
            assert k == len(tr)
        def stage0(par):
            ex = {}
            da = dma_addr()
            ex[5] = da[:2]; ex[6] = da[2:]
            ex[7] = [f'v_add_u32 v{pEN}, 64, v{pEN}']
            weave(mfma_list(1, 1), trans_list(0), ex)
            post(1, par ^ 1, False)
            a('s_waitcnt vmcnt(0)')
            for kp in range(4):
                a(f'ds_read_b128 v[{AX+4*kp}:{AX+4*kp+3}], v{RA+kp}')
            qn = QA[par ^ 1]
            a(f'ds_read2_b32 v[{qn}:{qn+1}], v{pQI} offset0:{0} offset1:{1}')
            a(f'ds_read2_b32 v[{qn+2}:{qn+3}], v{pQI} offset0:{2} offset1:{3}')
            a(f'ds_read_b32 v{QF}, v{pQF}')
            a(f'ds_read_b32 v{EE}, v{pEE}')
            pre(0)
        def stage1(par):
            qn = QA[par ^ 1]
            ex = {}
            skip = a.newlabel('nodma')
            ex[('pre', 0)] = ['s_waitcnt lgkmcnt(0)']
            ex[0] = [f'v_mad_u32_u24 v{qn}, v{qn}, 1, v{C4}', f'v_mad_u32_u24 v{qn+1}, v{qn+1}, 1, v{C4}',
                     f's_add_u32 s{t0}, s{sTI}, 2', f's_cmp_ge_u32 s{t0}, s{sNT}', f's_cbranch_scc1 {skip}'] + dma_issue() + [skip + ':']
            ex[1] = [f'v_mad_u32_u24 v{qn+2}, v{qn+2}, 1, v{C4}', f'v_mad_u32_u24 v{qn+3}, v{qn+3}, 1, v{C4}'] + \
                    [f'ds_read_u16 v{BE+q}, v{qn+q} offset:512' for q in range(4)] + \
                    [f'ds_read_b128 v[{EN}:{EN+3}], v{pEN} offset:{L_ENT}']
            ex[2] = [f'v_perm_b32 v{AE}, v{EE}, v{AE}, v{SEL}'] + [f'ds_read_u16 v{BE+4+q}, v{qn+q} offset:514' for q in range(4)]
            ex[3] = [f'v_cmp_gt_i32 s[{sF[par^1]}:{sF[par^1]+1}], 0, v{QF}', f'v_add_u32 v{pQI}, 16, v{pQI}']
            ex[4] = [f'v_add_u32 v{pQF}, 16, v{pQF}', f'v_add_u32 v{pEE}, 64, v{pEE}', f's_or_b32 s{sANY[par^1]}, s{sF[par^1]}, s{sF[par^1]+1}']
            ex[6] = ['s_waitcnt lgkmcnt(0)', f'v_or_b32 v{BE}, v{BC}, v{BE}', f'v_or_b32 v{BE+4}, v{BC+1}, v{BE+4}']
            weave(mfma_list(0, 0), trans_list(1), ex)
            post(0, par, False)
            pre(1)
        def last_stage1(par):
            weave(None, trans_list(1), {})
            post(0, par, True)
            pre(1)
            for i in range(8):
                a(f'v_rcp_f32 v{PP+i}, v{PP+i}')
            a('s_nop 0')
            post(1, par, True)
        L0 = f'K2_T0{tag}'; L1 = f'K2_T1{tag}'; E0 = f'K2_E0{tag}'; E1 = f'K2_E1{tag}'; DONE = f'K2_MD{tag}'
        a.label(L0)
        stage0(0)
        a(f's_add_u32 s{t0}, s{sTI}, 1')
        a(f's_cmp_ge_u32 s{t0}, s{sNT}')
        a(f's_cbranch_scc1 {E0}')
        stage1(0)
        a(f's_add_u32 s{sTI}, s{sTI}, 1')
        a.label(L1)
        stage0(1)
        a(f's_add_u32 s{t0}, s{sTI}, 1')
        a(f's_cmp_ge_u32 s{t0}, s{sNT}')
        a(f's_cbranch_scc1 {E1}')
        stage1(1)
        a(f's_add_u32 s{sTI}, s{sTI}, 1')
        a(f's_branch {L0}')
        a.label(E0)
        last_stage1(0)
        a(f's_branch {DONE}')
        a.label(E1)
        last_stage1(1)
        a(f's_branch {DONE}')
        for (fl, back, cc, par, j) in flush_blocks:
            a.label(fl)
            a(f's_bfe_i32 exec_lo, s{sF[par]}, 0x{(1<<16)|(8*j):x}')
            a(f's_bfe_i32 exec_hi, s{sF[par]+1}, 0x{(1<<16)|(8*j):x}')
            a(f'v_add_f32 v{F0}, v{DEN+2*cc}, v{DEN+2*cc+1}')
            a(f'v_add_f32 v{F1}, v{NUM+2*cc}, v{NUM+2*cc+1}')
            a(f'v_mov_b64 v[{DEN+2*cc}:{DEN+2*cc+1}], 0')
            a(f'v_mov_b64 v[{NUM+2*cc}:{NUM+2*cc+1}], 0')
            if atomic:
                a(f'ds_add_f32 v{QA[par]+j}, v{F0} offset:{cc*128}')
                a(f'ds_add_f32 v{QA[par]+j}, v{F1} offset:{256+cc*128}')
            else:
                a(f'ds_write2_b32 v{QA[par]+j}, v{F0}, v{F1} offset0:{cc*32} offset1:{64+cc*32}')
            a('s_mov_b64 exec, -1')
            a(f's_branch {back}')
        a.label(DONE)

    def pipeline_fill():
        q0 = QA[0]
        a(f'ds_read2_b32 v[{q0}:{q0+1}], v{pQI} offset0:0 offset1:1')
        a(f'ds_read2_b32 v[{q0+2}:{q0+3}], v{pQI} offset0:2 offset1:3')
        a(f'ds_read_b32 v{QF}, v{pQF}')
        a(f'ds_read_b32 v{EE}, v{pEE}')
        a(f'ds_read_b128 v[{EN}:{EN+3}], v{pEN} offset:{L_ENT + 64}')
        a(f'v_add_u32 v{pQI}, 16, v{pQI}')
        a(f'v_add_u32 v{pQF}, 16, v{pQF}')
        a(f'v_add_u32 v{pEE}, 64, v{pEE}')
        a(f'v_add_u32 v{pEN}, 128, v{pEN}')
        for i in range(4):
            a(f'v_mov_b32 v{DEN+i}, 0')
            a(f'v_mov_b32 v{NUM+i}, 0')
        for i in range(8):
            a(f'v_mov_b32 v{PP+i}, 1.0')
            a(f'v_mov_b32 v{TT_+i}, 0')
            a(f'v_mov_b32 v{ZZ+i}, 0')
        a(f's_mov_b32 s{sANY[1]}, 0')
        a('s_waitcnt lgkmcnt(0)')
        for q in range(4):
            a(f'v_mad_u32_u24 v{q0+q}, v{q0+q}, 1, v{C4}')
        for q in range(4):
            a(f'ds_read_u16 v{BE+q}, v{q0+q} offset:512')
            a(f'ds_read_u16 v{BE+4+q}, v{q0+q} offset:514')
        a(f'v_perm_b32 v{AE}, v{EE}, v{AE}, v{SEL}')
        a(f'v_cmp_gt_i32 s[{sF[0]}:{sF[0]+1}], 0, v{QF}')
        for ins in dma_addr(): a(ins)
        a('s_waitcnt vmcnt(0)')
        for kp in range(4):
            a(f'ds_read_b128 v[{AX+4*kp}:{AX+4*kp+3}], v{RA+kp}')
        a(f's_or_b32 s{sANY[0]}, s{sF[0]}, s{sF[0]+1}')
        a('s_waitcnt lgkmcnt(0)')
        a(f'v_or_b32 v{BE}, v{BC}, v{BE}')
        a(f'v_or_b32 v{BE+4}, v{BC+1}, v{BE+4}')
        skip = a.newlabel('nodma1')
        a(f's_cmp_le_u32 s{sNT}, 1')
        a(f's_cbranch_scc1 {skip}')
        for ins in dma_issue(): a(ins)
        a.label(skip)
        a(f'ds_read_b128 v[{EN}:{EN+3}], v{pEN} offset:{L_ENT}')
        Gs = f'v[{GA}:{GA+15}]'; Hs = f'v[{HA}:{HA+15}]'
        for kp in range(4):
            a(f'v_mfma_f32_32x32x16_bf16 {Hs}, v[{AX+4*kp}:{AX+4*kp+3}], v[{WV+4*kp}:{WV+4*kp+3}], {"0" if kp == 0 else Hs}')
            a(f'v_mfma_f32_32x32x16_bf16 {Gs}, v[{AX+4*kp}:{AX+4*kp+3}], v[{WB+4*kp}:{WB+4*kp+3}], {"0" if kp == 0 else Gs}')
        a(f'v_mfma_f32_32x32x16_bf16 {Gs}, v[{AE}:{AE+3}], v[{BE}:{BE+3}], {Gs}')
        a(f's_mov_b32 s{sTI}, 0')
        a('s_waitcnt lgkmcnt(0)')
        a('s_nop 7')
        a('s_nop 3')

    a('s_waitcnt vmcnt(16) lgkmcnt(0)')
    a('s_barrier')
    stamp(2)
    one_time('F')
    stamp(3)
    a('s_waitcnt vmcnt(0)')
    hist()
    a('s_waitcnt lgkmcnt(0)')
    a('s_barrier')
    stamp(4)
    scan_nodes()
    a(f's_lshl_b32 s{t0}, s{sL}, 2')
    a(f's_cmp_gt_u32 s{t2}, s{t0}')
    a('s_cbranch_scc1 K2_SLOW2')
    a(f'v_mov_b32 v{tA}, {L_ZERO}')
    a(f'v_cmp_gt_u32 vcc, {MAXN // 2}, v{vLANE}')
    a(f's_and_saveexec_b64 s[{sSV}:{sSV+1}], vcc')
    a(f'ds_write_b32 v{tG}, v{tA} offset:768')
    a(f'ds_write_b32 v{tG}, v{tA} offset:{768 + ROWB}')
    a(f's_mov_b64 exec, s[{sSV}:{sSV+1}]')
    a(f'v_add_u32 v{TR}, v{tC}, v{tE}')
    a(f'v_add_u32 v{TR+1}, v{tD}, v{tF}')
    a(f'v_add_u32 v{TR}, -4, v{TR}')
    a(f'v_add_u32 v{TR+1}, -4, v{TR+1}')
    a(f'v_mov_b32 v{TR+2}, v{TQ}')
    a(f'v_mov_b32 v{TR+3}, v{TQ+2}')
    scatter()
    a('s_waitcnt lgkmcnt(0)')
    a('s_barrier')
    stamp(5)
    a(f's_cmp_eq_u32 s{sL}, 0')
    a('s_cbranch_scc1 K2_EPI')
    main_setup_ptrs()
    a(f'v_mov_b32 v{tA}, 0x80000000')
    a(f'v_cmp_lt_u32 vcc, 0, v{TR+2}')
    a(f's_and_saveexec_b64 s[{sSV}:{sSV+1}], vcc')
    a(f'ds_or_b32 v{TR}, v{tA} offset:{L_QI}')
    a(f's_mov_b64 exec, s[{sSV}:{sSV+1}]')
    a(f'v_cmp_lt_u32 vcc, 0, v{TR+3}')
    a(f's_and_saveexec_b64 s[{sSV}:{sSV+1}], vcc')
    a(f'ds_or_b32 v{TR+1}, v{tA} offset:{L_QI}')
    a(f's_mov_b64 exec, s[{sSV}:{sSV+1}]')
    a('s_waitcnt lgkmcnt(2)')
    for ins in dma_addr(): a(ins)
    for ins in dma_issue(): a(ins)
    for hs in range(2):
        lab = f'K2_NC{hs}'
        a(f's_lshl_b32 s{t0}, s{sW}, 1')
        if hs: a(f's_add_u32 s{t0}, s{t0}, 1')
        a(f's_mul_i32 s{t1}, s{t0}, s{sL}')
        a(f's_lshl_b32 s{t1}, s{t1}, 2')
        a(f'v_lshl_add_u32 v{tB}, v{vLANE}, 2, s{t1}')
        a(f's_sub_u32 s{t2}, s{t1}, 4')
        a(f'v_mov_b32 v{tC}, s{t2}')
        if hs == 0:
            a(f's_cmp_eq_u32 s{t0}, 0')
            a(f's_cbranch_scc1 {lab}')
        a(f'ds_read_b32 v{tD}, v{tB} offset:{L_QI}')
        a(f'ds_read_b32 v{tE}, v{tC} offset:{L_QI}')
        a(f's_mul_i32 s{t2}, s{t0}, {VROWB}')
        a(f's_add_u32 s{t2}, s{t2}, {L_VIRT}')
        a('s_waitcnt lgkmcnt(0)')
        a(f'v_readfirstlane_b32 s{t3}, v{tD}')
        a(f'v_and_b32 v{tE}, s{sQM}, v{tE}')
        a(f's_and_b32 s{t3}, s{t3}, s{sQM}')
        a(f's_cmp_eq_u32 s{t3}, {L_VIRT}')
        a(f's_cbranch_scc1 {lab}')
        a(f'v_cmp_eq_u32 vcc, s{t3}, v{tE}')
        a(f's_cbranch_vccz {lab}')
        a(f'v_and_b32 v{tF}, s{sQM}, v{tD}')
        a(f'v_cmp_eq_u32 vcc, s{t3}, v{tF}')
        a(f'v_cmp_gt_u32 s[{sSV}:{sSV+1}], s{sL}, v{vLANE}')
        a(f's_and_b64 vcc, vcc, s[{sSV}:{sSV+1}]')
        a(f'v_and_b32 v{tF}, 0x80000000, v{tD}')
        a(f'v_or_b32 v{tF}, s{t2}, v{tF}')
        a(f's_mov_b64 exec, vcc')
        a(f'ds_write_b32 v{tB}, v{tF} offset:{L_QI}')
        a('s_mov_b64 exec, -1')
        a(f'v_lshl_add_u32 v{tF}, v{vLANE}, 2, s{t3}')
        a(f's_mov_b32 exec_hi, 0')
        a(f'ds_read_b32 v{tD}, v{tF} offset:512')
        a(f'v_lshl_add_u32 v{tF}, v{vLANE}, 2, s{t2}')
        a(f'v_mov_b32 v{tE}, s{t2}')
        a(f'v_mov_b32 v{tC}, s{t3}')
        a('s_waitcnt lgkmcnt(0)')
        a(f'ds_write_b32 v{tF}, v{tD} offset:512')
        a(f'ds_write_b32 v{tC}, v{tE} offset:768')
        a('s_mov_b64 exec, -1')
        a.label(lab)
    a(f's_sub_u32 s{t1}, s{sL}, 1')
    a(f's_lshl_b32 s{t1}, s{t1}, 2')
    a(f'v_add_u32 v{tB}, s{t1}, v{pQI}')
    a(f'v_mov_b32 v{tA}, 0x80000000')
    a('s_mov_b32 exec_lo, 1')
    a('s_mov_b32 exec_hi, 1')
    a(f'ds_or_b32 v{tB}, v{tA} offset:{L_QI}')
    a('s_mov_b64 exec, -1')
    a(f'v_add_u32 v{pQI}, {L_QI}, v{pQI}')
    a(f'v_add_u32 v{pQF}, {L_QI}, v{pQF}')
    a(f'v_add_u32 v{pEE}, {L_ENT}, v{pEE}')
    pipeline_fill()
    stamp(6)
    main_loop('F', False)
    stamp(7)
    a.label('K2_EPI')
    srd(a, rO, sOUT, N * 128)
    e0 = 4
    XV = e0; DN = e0 + 4; NM = e0 + 12; UU = e0 + 20; CD = e0 + 24; CN = e0 + 32; O = e0 + 40
    AD = e0 + 44; GO = e0 + 45; T1 = e0 + 46; T2 = e0 + 47; CP = e0 + 48; CT = e0 + 49; ND = e0 + 50
    def epi_addr(base):
        a(f'v_add_u32 v{T1}, {base}, v0')
        a(f'v_lshrrev_b32 v{ND}, 3, v{T1}')
        a(f'v_and_b32 v{T1}, 7, v{T1}')
        a(f'v_cmp_gt_u32 vcc, s{sNN}, v{ND}')
        a(f'v_mul_u32_u24 v{AD}, {ROWB}, v{ND}')
        a(f'v_add_u32 v{AD}, {L_ACC}, v{AD}')
        a(f'v_add_u32 v{GO}, s{sNS}, v{ND}')
        a(f'v_lshlrev_b32 v{GO}, 7, v{GO}')
        a(f'v_lshl_add_u32 v{GO}, v{T1}, 4, v{GO}')
    def epi_body(carry):
        a(f'v_lshlrev_b32 v{T2}, 3, v{ND}')
        a(f'ds_read_b32 v{CT}, v{T2} offset:{L_CNT}') if carry else None
        if carry: a(f'ds_read_b32 v{CP}, v{AD} offset:768')
        a(f'v_lshl_add_u32 v{T2}, v{T1}, 5, v{AD}')
        a(f'ds_read_b128 v[{DN}:{DN+3}], v{T2}')
        a(f'ds_read_b128 v[{DN+4}:{DN+7}], v{T2} offset:16')
        a(f'ds_read_b128 v[{NM}:{NM+3}], v{T2} offset:256')
        a(f'ds_read_b128 v[{NM+4}:{NM+7}], v{T2} offset:272')
        a(f'v_lshl_add_u32 v{T2}, v{T1}, 4, v{AD}')
        a(f'ds_read_b128 v[{UU}:{UU+3}], v{T2} offset:640')
        if carry:
            a('s_waitcnt lgkmcnt(5)')
            a(f'v_lshl_add_u32 v{T2}, v{T1}, 5, v{CP}')
            a(f'ds_read_b128 v[{CD}:{CD+3}], v{T2}')
            a(f'ds_read_b128 v[{CD+4}:{CD+7}], v{T2} offset:16')
            a(f'ds_read_b128 v[{CN}:{CN+3}], v{T2} offset:256')
            a(f'ds_read_b128 v[{CN+4}:{CN+7}], v{T2} offset:272')
        a(f's_mov_b32 s{t0}, 0x{EPS_SCALED:x}')
        a(f's_mov_b32 s{t1}, 0xffff0000')
        a('s_waitcnt vmcnt(0) lgkmcnt(0)')
        if carry:
            a(f'v_cmp_lt_u32 vcc, 0, v{CT}')
            for i in range(8):
                a(f'v_add_f32 v{DN+i}, v{DN+i}, v{CD+i}')
                a(f'v_add_f32 v{NM+i}, v{NM+i}, v{CN+i}')
            for i in range(8):
                a(f'v_cndmask_b32 v{DN+i}, 0, v{DN+i}, vcc')
                a(f'v_cndmask_b32 v{NM+i}, 0, v{NM+i}, vcc')
        for i in range(8):
            a(f'v_add_f32 v{DN+i}, s{t0}, v{DN+i}')
        for i in range(8):
            a(f'v_rcp_f32 v{DN+i}, v{DN+i}')
        for i in range(8):
            if i % 2 == 0: a(f'v_lshlrev_b32 v{T2}, 16, v{UU+i//2}')
            else: a(f'v_and_b32 v{T2}, s{t1}, v{UU+i//2}')
            a(f'v_fma_f32 v{NM+i}, v{NM+i}, v{DN+i}, v{T2}')
        for i in range(8):
            a(f'v_mul_f32 v{T2}, 0, v{NM+i}')
            a(f'v_cmp_lt_f32 vcc, 0, v{NM+i}')
            if i % 2 == 0: a(f'v_lshlrev_b32 v{CT}, 16, v{XV+i//2}')
            else: a(f'v_and_b32 v{CT}, s{t1}, v{XV+i//2}')
            a('s_nop 0')
            a(f'v_cndmask_b32 v{NM+i}, v{T2}, v{NM+i}, vcc')
            a(f'v_add_f32 v{NM+i}, v{CT}, v{NM+i}')
        for i in range(4):
            a(f'v_cvt_pk_bf16_f32 v{O+i}, v{NM+2*i}, v{NM+2*i+1}')
        a(f'buffer_store_dwordx4 v[{O}:{O+3}], v{GO}, s[{rO}:{rO+3}], 0 offen')
    def epilogue(tag, carry):
        epi_addr(0)
        a(f'buffer_load_dwordx4 v[{XV}:{XV+3}], v{GO}, s[{rX}:{rX+3}], 0 offen')
        a('s_waitcnt lgkmcnt(0)')
        a('s_barrier')
        if STAMP and tag == 'F': stamp(8)
        epi_body(carry)
        epi_addr(512)
        a(f's_and_b64 exec, exec, vcc')
        a(f's_cbranch_execz K2_FIN{tag}')
        a(f'buffer_load_dwordx4 v[{XV}:{XV+3}], v{GO}, s[{rX}:{rX+3}], 0 offen')
        epi_body(carry)
        a.label(f'K2_FIN{tag}')
    epilogue('F', True)
    if STAMP:
        a('s_mov_b64 exec, -1')
        a('s_waitcnt vmcnt(0)')
        stamp(9)
        a(f's_mul_i32 s{t0}, s2, {NW}')
        a(f's_add_u32 s{t0}, s{t0}, s{sW}')
        a(f's_lshl_b32 s{t0}, s{t0}, 8')
        a(f's_add_u32 s{t0}, s{t0}, 0x1000000')
        srd_off(a, rT, sWS, f's{t0}', 256)
        a(f'v_writelane_b32 v{tH}, s{sL}, 10')
        a(f'v_lshlrev_b32 v4, 2, v{vLANE}')
        a(f'buffer_store_dword v{tH}, v4, s[{rT}:{rT+3}], 0 offen')
    a('s_endpgm')

    a.label('K2_SLOW')
    a('s_waitcnt vmcnt(0) lgkmcnt(0)')
    a('s_barrier')
    one_time('S')
    a('s_waitcnt lgkmcnt(0)')
    a.label('K2_SLOW2')
    a('s_waitcnt vmcnt(0) lgkmcnt(0)')
    a('s_barrier')
    a(f's_add_u32 s{t1}, s{sNP}, {WSLOW-1}')
    a(f's_mul_i32 s{t1}, s{t1}, 5042')
    a(f's_lshr_b32 s{sNP}, s{t1}, 16')
    a(f's_mov_b32 s{sP}, 0')
    a(f'v_mov_b32 v{TR}, 0')
    a(f'v_mov_b32 v{TR+1}, 0')
    a(f'v_mov_b32 v{TR+2}, 0')
    a(f'v_mov_b32 v{TR+3}, 0')
    a(f'v_lshrrev_b32 v{tA}, 5, v0')
    a(f'v_mul_u32_u24 v{tA}, {ROWB}, v{tA}')
    a(f'v_and_b32 v{tB}, 31, v{vLANE}')
    a(f'v_lshl_add_u32 v{tA}, v{tB}, 4, v{tA}')
    a(f'v_add_u32 v{tA}, {L_ACC}, v{tA}')
    for i in range(6):
        a(f'ds_write_b128 v{tA}, v[{TR}:{TR+3}]')
        a(f'v_add_u32 v{tA}, {16*ROWB}, v{tA}')
    a(f'v_cmp_gt_u32 vcc, 64, v0')
    a(f's_and_saveexec_b64 s[{sSV}:{sSV+1}], vcc')
    a(f'ds_write_b128 v{tA}, v[{TR}:{TR+3}]')
    a(f's_mov_b64 exec, s[{sSV}:{sSV+1}]')
    a.label('K2_SPASS')
    a(f's_lshl_b32 s{t1}, s2, 10')
    a(f's_add_u32 s{t1}, s{t1}, {WS_TAB}')
    srd_off(a, rT, sWS, f's{t1}', 1024)
    a(f'v_lshrrev_b32 v{tB}, 5, v{vLANE}')
    a(f's_lshl_b32 s{t0}, s{sW}, 1')
    a(f'v_add_u32 v{tB}, s{t0}, v{tB}')
    a(f'v_lshlrev_b32 v{tD}, 6, v{tB}')
    for i in range(4):
        a(f'buffer_load_dwordx4 v[{SG+4*i}:{SG+4*i+3}], v{tD}, s[{rT}:{rT+3}], 0 offen offset:{16*i}')
    a(f's_mov_b32 s{t0}, {16*RECB}')
    a(f'v_mul_lo_u32 v{tB}, v{tB}, s{t0}')
    a(f'v_and_b32 v{tC}, 31, v{vLANE}')
    a(f'v_lshl_add_u32 v{tB}, v{tC}, 3, v{tB}')
    a(f's_mul_i32 s{t0}, s{sP}, {WSLOW}')
    a(f's_lshl_b32 s{t1}, s{t0}, 3')
    a(f'v_add_u32 v{tB}, s{t1}, v{tB}')
    a(f'v_cmp_gt_u32 vcc, {WSLOW}, v{tC}')
    a(f'v_add_u32 v{tC}, s{t0}, v{tC}')
    a(f'v_mov_b32 v{tD}, 0x10000')
    a(f'v_cndmask_b32 v{tC}, v{tD}, v{tC}, vcc')
    a('s_waitcnt vmcnt(0)')
    rec_loads(tB, tC)
    lds_init()
    a('s_waitcnt vmcnt(0) lgkmcnt(0)')
    a('s_barrier')
    hist()
    a('s_waitcnt lgkmcnt(0)')
    a('s_barrier')
    scan_nodes()
    a(f'v_add_u32 v{TR}, v{tC}, v{tE}')
    a(f'v_add_u32 v{TR+1}, v{tD}, v{tF}')
    a(f'v_add_u32 v{TR}, -4, v{TR}')
    a(f'v_add_u32 v{TR+1}, -4, v{TR+1}')
    a(f'v_mov_b32 v{TR+2}, v{TQ}')
    a(f'v_mov_b32 v{TR+3}, v{TQ+2}')
    scatter()
    a('s_waitcnt lgkmcnt(0)')
    a('s_barrier')
    a(f's_cmp_eq_u32 s{sL}, 0')
    a('s_cbranch_scc1 K2_SNEXT')
    main_setup_ptrs()
    a(f'v_mov_b32 v{tA}, 0x80000000')
    a(f'v_cmp_lt_u32 vcc, 0, v{TR+2}')
    a(f's_and_saveexec_b64 s[{sSV}:{sSV+1}], vcc')
    a(f'ds_or_b32 v{TR}, v{tA} offset:{L_QI}')
    a(f's_mov_b64 exec, s[{sSV}:{sSV+1}]')
    a(f'v_cmp_lt_u32 vcc, 0, v{TR+3}')
    a(f's_and_saveexec_b64 s[{sSV}:{sSV+1}], vcc')
    a(f'ds_or_b32 v{TR+1}, v{tA} offset:{L_QI}')
    a(f's_mov_b64 exec, s[{sSV}:{sSV+1}]')
    a('s_waitcnt lgkmcnt(0)')
    for ins in dma_addr(): a(ins)
    for ins in dma_issue(): a(ins)
    a(f's_sub_u32 s{t1}, s{sL}, 1')
    a(f's_lshl_b32 s{t1}, s{t1}, 2')
    a(f'v_add_u32 v{tB}, s{t1}, v{pQI}')
    a(f'v_mov_b32 v{tA}, 0x80000000')
    a('s_mov_b32 exec_lo, 1')
    a('s_mov_b32 exec_hi, 1')
    a(f'ds_or_b32 v{tB}, v{tA} offset:{L_QI}')
    a('s_mov_b64 exec, -1')
    a(f'v_add_u32 v{pQI}, {L_QI}, v{pQI}')
    a(f'v_add_u32 v{pQF}, {L_QI}, v{pQF}')
    a(f'v_add_u32 v{pEE}, {L_ENT}, v{pEE}')
    pipeline_fill()
    main_loop('S', True)
    a.label('K2_SNEXT')
    a('s_waitcnt vmcnt(0) lgkmcnt(0)')
    a('s_barrier')
    a(f's_add_u32 s{sP}, s{sP}, 1')
    a(f's_cmp_lt_u32 s{sP}, s{sNP}')
    a('s_cbranch_scc1 K2_SPASS')
    srd(a, rO, sOUT, N * 128)
    epilogue('S', False)
    a.label('K2_END')
    a('s_endpgm')
    return nvgpr, nsgpr

def kd(name, nv, ns):
    acc = (nv + 3) // 4 * 4
    return f'''.amdhsa_kernel {name}
  .amdhsa_next_free_vgpr {nv}
  .amdhsa_next_free_sgpr {ns}
  .amdhsa_accum_offset {acc}
  .amdhsa_group_segment_fixed_size 0
  .amdhsa_kernarg_size 96
  .amdhsa_user_sgpr_count 2
  .amdhsa_user_sgpr_kernarg_segment_ptr 1
  .amdhsa_system_sgpr_workgroup_id_x 1
  .amdhsa_float_denorm_mode_32 3
.end_amdhsa_kernel
'''

def build(opts=None):
    opts = opts or {}
    a = Asm()
    gen_k1(a, opts)
    nv, ns = gen_k2(a, opts)
    out = HEADER
    out += f'; @launch kernel=gs_part_kernel grid=(256,1,1) block=({K1_THREADS},1,1) lds={LDS_K1}\n'
    out += f'; @launch kernel=gs_main_kernel grid=(256,1,1) block=({NW*64},1,1) lds={LDS_MAIN}\n'
    out += '.amdgcn_target "amdgcn-amd-amdhsa--gfx950"\n.text\n'
    out += a.text()
    out += '.section .rodata,"a"\n.p2align 6\n'
    out += kd('gs_part_kernel', 56, 48)
    out += '.p2align 6\n'
    out += kd('gs_main_kernel', nv, ns)
    return out

if __name__ == '__main__':
    path = sys.argv[1] if len(sys.argv) > 1 else 'gather_scatter__edge_featured_mpnn_gatedgcn__graph.s'
    opts = {}
    for o in sys.argv[2:]:
        k, _, val = o.partition('=')
        opts[k] = int(val) if val else True
    open(path, 'w').write(build(opts))
    print('written', path, 'LDS', LDS_MAIN)
```

```python
import sys, os, struct
sys.path.insert(0, os.path.dirname(__file__))
from asmlib import *

N = 25000; E = 800000
NBK = 256
CH = 3136
RECB = CH * 8
WS_TAB = 0x700000
WS_TAB2 = 0x740000
WS_FRAG = 0x780000
MAGIC_B = 43980466
LOG2E = 0xBFB8AA3B
SBITS = 50
C_SCALE = (127 - SBITS) << 23
EPS_SCALED = 0x4E8637BD
assert abs(struct.unpack('<f', struct.pack('<I', EPS_SCALED))[0] / (1e-6 * 2.0**50) - 1) < 1e-6

NW = 8
NSTREAM = 16
NIT = 16
CAP = 3456
WSLOW = 13
ROWB = 784
MAXN = 98
ENT_QUADS = 960
VROWB = 640
L_CNT = 0
L_ZERO = 512
L_TAB = 1024
L_QI = 1536
L_ENT = L_QI + ENT_QUADS * 4
L_ACC = L_ENT + ENT_QUADS * 16
L_VIRT = L_ACC + MAXN * ROWB
L_WST = L_VIRT + NSTREAM * VROWB
L_WST = (L_WST + 255) // 256 * 256
L_DMA = L_WST + 16384
LDS_MAIN = L_DMA + NW * 4096
assert LDS_MAIN <= 163840, LDS_MAIN
assert L_ACC % 16 == 0 and L_VIRT % 16 == 0

K1_THREADS = 896
K1_HIST = 0
K1_STAGE = 1024
LDS_K1 = K1_STAGE + RECB

HEADER = open(os.path.join(os.path.dirname(__file__), 'header.txt')).read()

def srd(a, sreg, ptr, size):
    a(f's_mov_b32 s{sreg}, s{ptr}')
    a(f's_and_b32 s{sreg+1}, s{ptr+1}, 0xffff')
    a(f's_mov_b32 s{sreg+2}, {size}')
    a(f's_mov_b32 s{sreg+3}, 0x20000')

def srd_off(a, sreg, ptr, off, size):
    a(f's_add_u32 s{sreg}, s{ptr}, {off}')
    a(f's_addc_u32 s{sreg+1}, s{ptr+1}, 0')
    a(f's_and_b32 s{sreg+1}, s{sreg+1}, 0xffff')
    a(f's_mov_b32 s{sreg+2}, {size}')
    a(f's_mov_b32 s{sreg+3}, 0x20000')

def wave_scan(a, op, r):
    for sh in (1, 2, 4, 8):
        a('s_nop 1')
        a(f'{op}_dpp v{r}, v{r}, v{r} row_shr:{sh} row_mask:0xf bank_mask:0xf')
    a('s_nop 1')
    a(f'{op}_dpp v{r}, v{r}, v{r} row_bcast:15 row_mask:0xa bank_mask:0xf')
    a('s_nop 1')
    a(f'{op}_dpp v{r}, v{r}, v{r} row_bcast:31 row_mask:0xc bank_mask:0xf')

def wave_scan2(a, op1, r1, op2, r2):
    steps = [f'row_shr:{sh} row_mask:0xf bank_mask:0xf' for sh in (1, 2, 4, 8)] + \
            ['row_bcast:15 row_mask:0xa bank_mask:0xf', 'row_bcast:31 row_mask:0xc bank_mask:0xf']
    a('s_nop 1')
    for st in steps:
        a(f'{op1}_dpp v{r1}, v{r1}, v{r1} {st}')
        a(f'{op2}_dpp v{r2}, v{r2}, v{r2} {st}')
        a('s_nop 0')

def gen_k1(a, opts):
    a.raw('.p2align 8')
    a.raw('.globl gs_part_kernel')
    a.raw('.type gs_part_kernel,@function')
    a.label('gs_part_kernel')
    a('s_cmp_ge_u32 s2, 256')
    a('s_cbranch_scc1 K1_END')
    a('s_load_dwordx4 s[4:7], s[0:1], 8')
    a('s_load_dwordx2 s[8:9], s[0:1], 24')
    a('s_load_dwordx2 s[10:11], s[0:1], 88')
    a('s_load_dwordx2 s[44:45], s[0:1], 0')
    a('v_lshrrev_b32 v1, 6, v0')
    a('s_mul_i32 s12, s2, %d' % (CH * 4))
    a('v_readfirstlane_b32 s3, v1')
    a('s_lshr_b32 s13, s12, 1')
    a('v_lshlrev_b32 v2, 4, v0')
    a('v_add_u32 v2, s12, v2')
    a('s_cmp_eq_u32 s3, 13')
    a('s_cbranch_scc1 K1_FRAG')
    a('v_lshlrev_b32 v3, 3, v0')
    a('v_add_u32 v3, s13, v3')
    a('s_waitcnt lgkmcnt(0)')
    srd(a, 20, 8, E * 4)
    a('buffer_load_dwordx4 v[4:7], v2, s[20:23], 0 offen')
    srd(a, 24, 6, E * 4)
    a('buffer_load_dwordx4 v[8:11], v2, s[24:27], 0 offen')
    srd(a, 28, 4, E * 2)
    a('buffer_load_dwordx2 v[12:13], v3, s[28:31], 0 offen')
    if opts.get('xpre', 1):
        a('s_and_b32 s46, s2, 7')
        a('s_lshr_b32 s47, s2, 3')
        a('s_lshl_b32 s46, s46, 5')
        a('s_add_u32 s46, s46, s47')
        a('s_mul_i32 s46, s46, 3125')
        a('s_add_u32 s46, s46, 31')
        a('s_lshr_b32 s46, s46, 5')
        a('s_lshl_b32 s46, s46, 7')
        a('s_and_b32 s45, s45, 0xffff')
        a('s_mov_b32 s48, s44')
        a('s_mov_b32 s49, s45')
        a('s_mov_b32 s50, %d' % (N * 128))
        a('s_mov_b32 s51, 0x20000')
        a('v_lshlrev_b32 v40, 4, v0')
        a('buffer_load_dwordx4 v[56:59], v40, s[48:51], s46 offen')
    a('v_lshlrev_b32 v14, 2, v0')
    a('v_mov_b32 v15, 0')
    a('v_cmp_gt_u32 vcc, 256, v0')
    a('s_and_saveexec_b64 s[18:19], vcc')
    a('ds_write_b32 v14, v15 offset:%d' % K1_HIST)
    a('s_mov_b64 exec, s[18:19]')
    a('v_cmp_gt_u32 vcc, %d, v0' % (CH // 4))
    a('s_mov_b32 s14, %d' % (E * 4))
    a('v_cmp_gt_u32 s[16:17], s14, v2')
    a('s_and_b64 s[16:17], s[16:17], vcc')
    a('s_mul_i32 s15, s2, %d' % RECB)
    srd_off(a, 32, 10, 's15', RECB)
    srd_off(a, 36, 10, WS_TAB, 0x80000)
    a('s_mov_b32 s40, %d' % MAGIC_B)
    a('s_movk_i32 s41, 3125')
    a('v_mov_b32 v15, 1')
    a('s_waitcnt lgkmcnt(0)')
    a('s_barrier')
    a('s_mov_b64 exec, s[16:17]')
    a('s_cbranch_execz K1_NOEDGE1')
    a('s_waitcnt vmcnt(%d)' % (3 if opts.get('xpre', 1) else 2))
    for k in range(4):
        a(f'v_mul_hi_u32 v{16+k}, v{4+k}, s40')
    for k in range(4):
        a(f'v_lshlrev_b32 v{20+k}, 2, v{16+k}')
        a(f'ds_add_rtn_u32 v{24+k}, v{20+k}, v15 offset:{K1_HIST}')
    for k in range(4):
        a(f'v_mul_u32_u24 v{28+k}, s41, v{16+k}')
        a(f'v_add_u32 v{28+k}, 31, v{28+k}')
        a(f'v_lshrrev_b32 v{28+k}, 5, v{28+k}')
        a(f'v_sub_u32 v{28+k}, v{4+k}, v{28+k}')
        a(f'v_lshlrev_b32 v{33+2*k}, 2, v{28+k}')
    a('s_waitcnt vmcnt(%d)' % (1 if opts.get('xpre', 1) else 0))
    a('s_mov_b32 s42, 0xffff0000')
    a('v_lshl_or_b32 v32, v12, 16, v8')
    a('v_and_or_b32 v34, v12, s42, v9')
    a('v_lshl_or_b32 v36, v13, 16, v10')
    a('v_and_or_b32 v38, v13, s42, v11')
    a.label('K1_NOEDGE1')
    a('s_mov_b64 exec, -1')
    a('s_waitcnt lgkmcnt(0)')
    a('s_barrier')
    a('s_cmp_lg_u32 s3, 0')
    a('s_cbranch_scc1 K1_SCANDONE')
    a('v_lshlrev_b32 v40, 4, v0')
    a('ds_read_b128 v[44:47], v40 offset:%d' % K1_HIST)
    a('v_lshlrev_b32 v41, 12, v0')
    a('s_lshl_b32 s15, s2, 2')
    a('v_add_u32 v41, s15, v41')
    a('s_waitcnt lgkmcnt(0)')
    a('v_add_u32 v48, v44, v45')
    a('v_add_u32 v49, v48, v46')
    a('v_add_u32 v50, v49, v47')
    a('v_mov_b32 v51, v50')
    wave_scan(a, 'v_add_u32', 51)
    a('v_sub_u32 v52, v51, v50')
    a('v_add_u32 v53, v52, v44')
    a('v_add_u32 v54, v52, v48')
    a('v_add_u32 v55, v52, v49')
    a('ds_write_b128 v40, v[52:55] offset:%d' % K1_HIST)
    a('s_mul_i32 s15, s2, %d' % CH)
    a('s_mov_b32 s43, %d' % (WS_TAB2 - WS_TAB))
    for k in range(4):
        a(f'buffer_store_dword v{44+k}, v41, s[36:39], s43 offen offset:{k*1024}')
        a(f'v_min_u32 v{48+k}, 0xff, v{44+k}')
        a(f'v_add_u32 v{52+k}, s15, v{52+k}')
        a(f'v_lshl_or_b32 v{48+k}, v{48+k}, 24, v{52+k}')
        a(f'buffer_store_dword v{48+k}, v41, s[36:39], 0 offen offset:{k*1024}')
    a.label('K1_SCANDONE')
    a('s_waitcnt lgkmcnt(0)')
    a('s_barrier')
    a('s_mov_b64 exec, s[16:17]')
    a('s_cbranch_execz K1_NOEDGE2')
    for k in range(4):
        a(f'ds_read_b32 v{28+k}, v{20+k} offset:{K1_HIST}')
    for k in range(4):
        a(f's_waitcnt lgkmcnt({3 if k == 0 else 3})')
        a(f'v_add_lshl_u32 v{28+k}, v{28+k}, v{24+k}, 3')
        a(f'ds_write_b64 v{28+k}, v[{32+2*k}:{33+2*k}] offset:{K1_STAGE}')
    a.label('K1_NOEDGE2')
    a('s_mov_b64 exec, -1')
    a('v_lshlrev_b32 v2, 4, v0')
    a('v_add_u32 v3, %d, v2' % (RECB // 2))
    a('v_cmp_gt_u32 vcc, %d, v0' % (CH // 4))
    a('s_waitcnt lgkmcnt(0)')
    a('s_barrier')
    a('s_and_saveexec_b64 s[18:19], vcc')
    a('s_cbranch_execz K1_END')
    a('ds_read_b128 v[4:7], v2 offset:%d' % K1_STAGE)
    a('ds_read_b128 v[8:11], v2 offset:%d' % (K1_STAGE + RECB // 2))
    a('s_waitcnt lgkmcnt(1)')
    a('buffer_store_dwordx4 v[4:7], v2, s[32:35], 0 offen')
    a('s_waitcnt lgkmcnt(0)')
    a('buffer_store_dwordx4 v[8:11], v3, s[32:35], 0 offen')
    a('s_endpgm')
    a.label('K1_FRAG')
    a('s_cmp_ge_u32 s2, 32')
    a('s_cbranch_scc1 K1_END')
    a('s_load_dwordx4 s[12:15], s[0:1], 32')
    a('s_load_dwordx4 s[16:19], s[0:1], 56')
    a('s_lshr_b32 s20, s2, 3')
    a('s_waitcnt lgkmcnt(0)')
    a('s_mov_b32 s22, s14')
    a('s_mov_b32 s23, s15')
    a('s_cmp_eq_u32 s20, 1')
    a('s_cselect_b32 s22, s18, s22')
    a('s_cselect_b32 s23, s19, s23')
    a('s_cmp_eq_u32 s20, 2')
    a('s_cselect_b32 s22, s12, s22')
    a('s_cselect_b32 s23, s13, s23')
    a('s_cmp_eq_u32 s20, 3')
    a('s_cselect_b32 s22, s16, s22')
    a('s_cselect_b32 s23, s17, s23')
    srd(a, 24, 22, 64 * 64 * 2)
    srd_off(a, 28, 10, WS_FRAG, 32 * 1024)
    a('s_and_b32 s32, s2, 3')
    a('s_lshr_b32 s33, s2, 2')
    a('s_and_b32 s33, s33, 1')
    a('s_lshl_b32 s32, s32, 11')
    a('s_lshl_b32 s33, s33, 6')
    a('s_add_u32 s32, s32, s33')
    a('v_and_b32 v1, 63, v0')
    a('v_and_b32 v2, 31, v1')
    a('v_lshlrev_b32 v2, 1, v2')
    a('v_lshrrev_b32 v3, 5, v1')
    a('v_lshlrev_b32 v3, 10, v3')
    a('v_add3_u32 v2, v2, v3, s32')
    for i in range(8):
        a(f'buffer_load_ushort v{8+i}, v2, s[24:27], 0 offen offset:{i*128}')
    a('s_mov_b32 s34, 1.0')
    a('s_and_b32 s36, s20, 1')
    a('s_cmp_eq_u32 s36, 0')
    a('s_cselect_b32 s34, 0x%x, s34' % LOG2E)
    a('s_waitcnt vmcnt(0)')
    for i in range(8):
        a(f'v_lshlrev_b32 v{8+i}, 16, v{8+i}')
        a(f'v_mul_f32 v{8+i}, s34, v{8+i}')
    for i in range(4):
        a(f'v_cvt_pk_bf16_f32 v{16+i}, v{8+2*i}, v{9+2*i}')
    a('v_lshlrev_b32 v4, 4, v1')
    a('s_lshl_b32 s35, s2, 10')
    a('v_add_u32 v4, s35, v4')
    a('buffer_store_dwordx4 v[16:19], v4, s[28:31], 0 offen')
    a.label('K1_END')
    a('s_endpgm')

def gen_k2(a, opts):
    STAMP = opts.get('stamp', False)
    vLANE = 1; BC = 2
    WB = 4; WV = 36; AX = 68
    GA = 84; HA = 100; GB = 116; HB = 132
    PP = 148; TT_ = 156; ZZ = 164
    DEN = 172; NUM = 176
    AE = [180, 184]; BE = 188; R0 = 192
    QA = [196, 200]
    EN = 204; RA = 208; CO = 212
    pEN = 216; pEE = 217; pQI = 218; pQF = 219
    C4 = 220; SEL = [221, 222]; EE = 223; QF = 224
    F0 = 225; F1 = 226
    tA = 227; tB = 228; tC = 229; tD = 230; tE = 231; tF = 232; tG = 233; tH = 234; tI = 235
    TQ = 236; TR = 240
    sidA = 244; jA = 245; sidR = 246; iR4 = 247
    vST = 248; GF = 249; GD = 250
    nvgpr = 252
    REC = PP; RK = GB; SG = HB
    G_ = [GA, GB]; H_ = [HA, HB]
    nOFF0 = AE[0]+0 if False else QA[0]; nOFF1 = QA[0]+1; nEND0 = QA[0]+2; nEND1 = QA[0]+3; nROW0 = QA[1]
    S = Regs('s', 3, 102)
    sX = S.alloc('x', 2, 2); sWC = S.alloc('wc', 2, 2); sOUT = S.alloc('out', 2, 2); sWS = S.alloc('ws', 2, 2)
    rX = S.alloc('rX', 4, 4); rT = S.alloc('rT', 4, 4); rR = S.alloc('rR', 4, 4); rF = S.alloc('rF', 4, 4)
    sW = S.alloc('w'); sNS = S.alloc('ns'); sNN = S.alloc('nn')
    sP = S.alloc('pass'); sNP = S.alloc('npass')
    sL = S.alloc('L'); sCNT = S.alloc('cnt'); sREM = S.alloc('rem'); sMAXP = S.alloc('maxp')
    sC = S.alloc('C', 2, 2)
    sF = [S.alloc('F0', 2, 2), S.alloc('F1', 2, 2)]
    sANY = [S.alloc('any0'), S.alloc('any1')]
    s128 = S.alloc('c128'); sLO = S.alloc('lo16'); sHI = S.alloc('hi16')
    t0 = S.alloc('t0'); t1 = S.alloc('t1'); t2 = S.alloc('t2', 1, 2); t3 = S.alloc('t3')
    sSV = S.alloc('sv', 2, 2); sSV2 = S.alloc('sv2', 2, 2)
    sDB = S.alloc('dmabase'); sSWAP = S.alloc('swap')
    MK = S.alloc('MK', 32, 2)
    rO = rT
    nsgpr = S.hi
    def stamp(i):
        if not STAMP: return
        a(f's_memtime s[{t2}:{t3}]')
        a('s_waitcnt lgkmcnt(0)')
        a(f'v_writelane_b32 v{vST}, s{t2}, {i}')
    XB = 4096

    a.raw('.p2align 8')
    a.raw('.globl gs_main_kernel')
    a.raw('.type gs_main_kernel,@function')
    a.label('gs_main_kernel')
    a('s_cmp_ge_u32 s2, 256')
    a('s_cbranch_scc1 K2_END')
    a(f's_load_dwordx2 s[{sWS}:{sWS+1}], s[0:1], 88')
    a(f's_load_dwordx2 s[{sX}:{sX+1}], s[0:1], 0')
    a(f's_load_dwordx2 s[{sWC}:{sWC+1}], s[0:1], 48')
    a(f's_load_dwordx2 s[{sOUT}:{sOUT+1}], s[0:1], 72')
    a('s_and_b32 s3, s2, 7')
    a('s_lshr_b32 s2, s2, 3')
    a('s_lshl_b32 s3, s3, 5')
    a('s_add_u32 s2, s2, s3')
    if STAMP:
        a(f'v_mov_b32 v{vST}, 0')
    stamp(0)
    if STAMP:
        a(f's_memrealtime s[{t2}:{t3}]')
        a('s_waitcnt lgkmcnt(0)')
        a(f'v_writelane_b32 v{vST}, s{t2}, 11')
    a(f'v_lshrrev_b32 v{tA}, 6, v0')
    a(f'v_and_b32 v{vLANE}, 63, v0')
    a(f'v_readfirstlane_b32 s{sW}, v{tA}')
    a(f'v_lshrrev_b32 v{sidA}, 5, v{vLANE}')
    a(f's_lshl_b32 s{t1}, s2, 10')
    a(f's_add_u32 s{t1}, s{t1}, {WS_TAB}')
    a(f's_lshl_b32 s{t0}, s{sW}, 1')
    a(f'v_add_u32 v{sidA}, s{t0}, v{sidA}')
    a(f'v_lshlrev_b32 v{tD}, 6, v{sidA}')
    a(f'v_lshlrev_b32 v{tA}, 4, v{vLANE}')
    a('s_waitcnt lgkmcnt(0)')
    srd_off(a, rT, sWS, f's{t1}', 1024)
    for i in range(4):
        a(f'buffer_load_dwordx4 v[{SG+4*i}:{SG+4*i+3}], v{tD}, s[{rT}:{rT+3}], 0 offen offset:{16*i}')
    a(f's_mul_i32 s{t0}, s2, 3125')
    a(f's_add_u32 s{sNS}, s{t0}, 31')
    a(f's_lshr_b32 s{sNS}, s{sNS}, 5')
    a(f's_add_u32 s{t0}, s{t0}, {3125+31}')
    a(f's_lshr_b32 s{t0}, s{t0}, 5')
    a(f's_sub_u32 s{sNN}, s{t0}, s{sNS}')
    a(f's_sub_u32 s{rX}, s{sX}, {XB}')
    a(f's_subb_u32 s{rX+1}, s{sX+1}, 0')
    a(f's_and_b32 s{rX+1}, s{rX+1}, 0xffff')
    a(f's_mov_b32 s{rX+2}, {N*128 + XB}')
    a(f's_mov_b32 s{rX+3}, 0x20000')
    srd_off(a, rF, sWS, WS_FRAG, 32 * 1024)
    a(f's_lshl_b32 s{sDB}, s{sW}, 12')
    a(f's_add_u32 s{sDB}, s{sDB}, {L_DMA}')
    a(f'v_bfe_u32 v{tE}, v{vLANE}, 4, 1')
    a(f'v_and_b32 v{tF}, 7, v{vLANE}')
    a(f'v_xor_b32 v{tE}, v{tE}, v{tF}')
    a(f'v_lshlrev_b32 v{tE}, 4, v{tE}')
    for i in range(4):
        if i: a(f'v_xor_b32 v{tF}, {32*i}, v{tE}')
        a(f'v_add_u32 v{CO+i}, {XB - 1024*i}, v{tF if i else tE}')
    a(f'v_bfe_u32 v{jA}, v{vLANE}, 3, 2')
    a(f'v_lshrrev_b32 v{tF}, 5, v{vLANE}')
    a(f'v_lshlrev_b32 v{tE}, 3, v{jA}')
    a(f'v_lshl_add_u32 v{tE}, v{tF}, 2, v{tE}')
    a(f's_lshr_b32 s{t0}, s{sW}, 1')
    a(f's_lshl_b32 s{t1}, s{t0}, 5')
    a(f's_add_u32 s{t1}, s{t1}, s{sNS}')
    a(f's_and_b32 s{t2}, s{sW}, 1')
    a(f's_lshl_b32 s{t2}, s{t2}, 1')
    a(f's_add_u32 s{t1}, s{t1}, s{t2}')
    a(f'v_add_u32 v{tE}, s{t1}, v{tE}')
    a(f'v_lshlrev_b32 v{tE}, 7, v{tE}')
    a(f's_cmp_eq_u32 s{t2}, 0')
    a(f's_cbranch_scc0 K2_XI2')
    a(f'v_add_u32 v{tH}, v{tE}, v{CO}')
    a(f'v_add_u32 v{tI}, v{tE}, v{CO+1}')
    a('s_branch K2_XI')
    a.label('K2_XI2')
    a(f'v_add_u32 v{tH}, v{tE}, v{CO+2}')
    a(f'v_add_u32 v{tI}, v{tE}, v{CO+3}')
    a(f'v_add_u32 v{tH}, 2048, v{tH}')
    a(f'v_add_u32 v{tI}, 2048, v{tI}')
    a.label('K2_XI')
    a(f'v_add_u32 v{tI}, 128, v{tI}')
    a(f'v_and_b32 v{C4}, 31, v{vLANE}')
    def staging():
        a(f's_lshr_b32 s{t0}, s{sW}, 1')
        a(f's_lshl_b32 s{t0}, s{t0}, 12')
        a(f's_and_b32 s{t2}, s{sW}, 1')
        a(f's_lshl_b32 s{t2}, s{t2}, 11')
        a(f's_add_u32 s{t0}, s{t0}, s{t2}')
        a(f's_add_u32 s{t0}, s{t0}, {L_DMA}')
        a(f's_mov_b32 m0, s{t0}')
        a(f'v_lshlrev_b32 v{tA}, 4, v{vLANE}')
        a(f'buffer_load_dwordx4 v{tH}, s[{rX}:{rX+3}], 0 offen lds')
        a(f'buffer_load_dwordx4 v{tI}, s[{rX}:{rX+3}], 0 offen offset:1024 lds')
        a(f's_lshl_b32 s{t0}, s{sW}, 11')
        a(f's_add_u32 s{t1}, s{t0}, {L_DMA + 4*4096}')
        a(f's_mov_b32 m0, s{t1}')
        a(f's_add_u32 s{t2}, s{t0}, {16*1024}')
        a(f'buffer_load_dwordx4 v{tA}, s[{rF}:{rF+3}], s{t2} offen lds')
        a(f'buffer_load_dwordx4 v{tA}, s[{rF}:{rF+3}], s{t2} offen offset:1024 lds')
        a(f's_add_u32 s{t1}, s{t0}, {L_WST}')
        a(f's_mov_b32 m0, s{t1}')
        a('s_nop 0')
        a(f'buffer_load_dwordx4 v{tA}, s[{rF}:{rF+3}], s{t0} offen lds')
        a(f'buffer_load_dwordx4 v{tA}, s[{rF}:{rF+3}], s{t0} offen offset:1024 lds')
        srd(a, rR, sWC, 128)
        a(f'v_lshlrev_b32 v{tE}, 1, v{C4}')
        a(f'buffer_load_ushort v{BC}, v{tE}, s[{rR}:{rR+3}], 0 offen')
        a(f'buffer_load_ushort v{BC+1}, v{tE}, s[{rR}:{rR+3}], 0 offen offset:64')
    staging()
    def lds_init():
        a(f'v_lshlrev_b32 v{tE}, 4, v0')
        for i in range(4):
            a(f'v_mov_b32 v{TR+i}, 0xffff')
        a(f'ds_write_b128 v{tE}, v[{TR}:{TR+3}] offset:{L_ENT}')
        a(f's_cmp_ge_u32 s{sW}, {(ENT_QUADS - 512) // 64}')
        a(f's_cbranch_scc1 K2_I1{tag_i[0]}')
        a(f'ds_write_b128 v{tE}, v[{TR}:{TR+3}] offset:{L_ENT + 512*16}')
        a.label(f'K2_I1{tag_i[0]}')
        assert (ENT_QUADS - 512) % 64 == 0
        for i in range(4):
            a(f'v_mov_b32 v{TR+i}, {L_VIRT}')
        a(f'v_cmp_gt_u32 vcc, {ENT_QUADS // 4}, v0')
        a(f's_and_saveexec_b64 s[{sSV}:{sSV+1}], vcc')
        a(f'ds_write_b128 v{tE}, v[{TR}:{TR+3}] offset:{L_QI}')
        a(f's_mov_b64 exec, s[{sSV}:{sSV+1}]')
        a(f's_cmp_lg_u32 s{sW}, 0')
        a(f's_cbranch_scc1 K2_I2{tag_i[0]}')
        for i in range(4):
            a(f'v_mov_b32 v{TR+i}, 0')
        a(f'ds_write_b128 v{tE}, v[{TR}:{TR+3}] offset:{L_CNT}')
        a(f'v_add_u32 v{tE}, {L_VIRT + 512}, v{tE}')
        a('s_mov_b64 exec, 0xff')
        a(f'ds_write_b128 v{tE}, v[{TR}:{TR+3}]')
        a('s_mov_b64 exec, -1')
        a.label(f'K2_I2{tag_i[0]}')
        tag_i[0] += 1
    tag_i = [0]
    lds_init()
    a(f'v_and_b32 v{tE}, 3, v{vLANE}')
    a(f'v_lshlrev_b32 v{iR4}, 2, v{tE}')
    a(f'v_lshl_add_u32 v{RA}, v{tE}, 3, v{jA}')
    a(f'v_lshrrev_b32 v{tF}, 1, v{jA}')
    a(f'v_lshl_add_u32 v{tE}, v{tE}, 1, v{tF}')
    a(f'v_bfe_u32 v{tF}, v{vLANE}, 2, 1')
    a(f's_lshl_b32 s{t0}, s{sW}, 1')
    a(f'v_add_u32 v{sidR}, s{t0}, v{tF}')
    a(f'v_lshl_add_u32 v{RA}, v{tF}, 2, v{RA}')
    a(f'v_lshrrev_b32 v{tG}, 5, v{vLANE}')
    a(f'v_cmp_eq_u32 vcc, v{tF}, v{tG}')
    a(f'v_xor_b32 v{tE}, v{tE}, v{tG}')
    a(f'v_lshlrev_b32 v{tE}, 4, v{tE}')
    a(f'v_lshl_add_u32 v{RA}, v{RA}, 7, v{tE}')
    a(f'v_mov_b32 v{tF}, 0x3f80')
    a(f'v_cndmask_b32 v{tF}, 0, v{tF}, vcc')
    for q in range(4):
        a(f'v_cmp_eq_u32 vcc, {q}, v{jA}')
        a('s_nop 1')
        a(f'v_cndmask_b32 v{AE[0]+q}, 0, v{tF}, vcc')
        a(f'v_lshlrev_b32 v{AE[1]+q}, 16, v{AE[0]+q}')
    a(f'v_cmp_gt_u32 vcc, 32, v{vLANE}')
    a(f'v_mov_b32 v{tE}, 0x0a0c0100')
    a(f'v_mov_b32 v{tF}, 0x07060100')
    a(f'v_cndmask_b32 v{SEL[0]}, v{tE}, v{tF}, vcc')
    a(f'v_mov_b32 v{tE}, 0x03020a0c')
    a(f'v_mov_b32 v{tF}, 0x03020706')
    a(f'v_cndmask_b32 v{SEL[1]}, v{tE}, v{tF}, vcc')
    a(f's_mov_b32 s{sC}, 0x{C_SCALE:x}')
    a(f's_mov_b32 s{sC+1}, 0x{C_SCALE:x}')
    a(f's_mov_b32 s{s128}, 128')
    a(f's_mov_b32 s{sLO}, 0xffff')
    a(f's_mov_b32 s{sHI}, 0xffff0000')
    a(f'v_lshlrev_b32 v{tB}, 3, v{C4}')
    a(f'v_lshlrev_b32 v{C4}, 2, v{C4}')
    a('s_waitcnt vmcnt(8)')
    stamp(1)
    srd(a, rR, sWS, NBK * RECB)
    def rec_loads(vk8):
        for it in range(NIT):
            a(f'v_mad_u32_u24 v{RK+it}, v{SG+it}, 8, v{vk8}')
        for it in range(NIT):
            a(f's_mov_b64 exec, s[{MK+2*it}:{MK+2*it+1}]')
            a(f'buffer_load_dwordx2 v[{REC+2*it}:{REC+2*it+1}], v{RK+it}, s[{rR}:{rR+3}], 0 offen')
        a('s_mov_b64 exec, -1')
    a(f'v_lshrrev_b32 v{tC}, 3, v{tB}')
    for it in range(NIT):
        a(f'v_cmp_gt_u32_sdwa s[{MK+2*it}:{MK+2*it+1}], v{SG+it}, v{tC} src0_sel:BYTE_3 src1_sel:DWORD')
    rec_loads(tB)
    a(f'v_max3_u32 v{tD}, v{SG}, v{SG+1}, v{SG+2}')
    for i in range(3, 15, 2):
        a(f'v_max3_u32 v{tD}, v{tD}, v{SG+i}, v{SG+i+1}')
    a(f'v_max_u32 v{tD}, v{tD}, v{SG+15}')
    a(f'v_lshrrev_b32 v{tD}, 24, v{tD}')
    a(f'v_cmp_lt_u32 s[{sSV2}:{sSV2+1}], 32, v{tD}')

    def gemm_issue():
        a(f's_lshr_b32 s{t0}, s{sW}, 1')
        a(f's_lshl_b32 s{t1}, s{t0}, 12')
        a(f's_add_u32 s{t1}, s{t1}, {L_DMA}')
        a(f'v_add_u32 v{tA}, s{t1}, v{RA}')
        a(f'v_xor_b32 v{tB}, 32, v{tA}')
        a(f'ds_read_b128 v[{AX}:{AX+3}], v{tA}')
        a(f'ds_read_b128 v[{AX+4}:{AX+7}], v{tB}')
        a(f'v_xor_b32 v{tB}, 64, v{tA}')
        a(f'v_xor_b32 v{tC}, 96, v{tA}')
        a(f'ds_read_b128 v[{AX+8}:{AX+11}], v{tB}')
        a(f'ds_read_b128 v[{AX+12}:{AX+15}], v{tC}')
        a(f's_and_b32 s{t2}, s{sW}, 1')
        a(f's_lshl_b32 s{t3}, s{t2}, 13')
        a(f's_add_u32 s{t3}, s{t3}, {L_DMA + 4*4096}')
        a(f'v_lshlrev_b32 v{GF}, 4, v{vLANE}')
        a(f'v_add_u32 v{GF}, s{t3}, v{GF}')
        for f in range(4):
            a(f'ds_read_b128 v[{SG+4*f}:{SG+4*f+3}], v{GF} offset:{f*1024}')
        a(f's_mul_i32 s{t1}, s{t0}, {32*ROWB}')
        a(f's_lshl_b32 s{t3}, s{t2}, 7')
        a(f's_add_u32 s{t1}, s{t1}, s{t3}')
        a(f's_add_u32 s{t1}, s{t1}, {L_ACC + 512}')
        a(f'v_lshrrev_b32 v{GD}, 5, v{vLANE}')
        a(f'v_mul_u32_u24 v{GD}, {4*ROWB}, v{GD}')
        a(f'v_add3_u32 v{GD}, v{GD}, v{C4}, s{t1}')
    def gemm_mid():
        a('s_waitcnt lgkmcnt(0)')
        for kp in range(4):
            c = '0' if kp == 0 else f'v[{GA}:{GA+15}]'
            a(f'v_mfma_f32_32x32x16_bf16 v[{GA}:{GA+15}], v[{AX+4*kp}:{AX+4*kp+3}], v[{SG+4*kp}:{SG+4*kp+3}], {c}')
        a('s_nop 3')
        for f in range(4):
            a(f'ds_read_b128 v[{SG+4*f}:{SG+4*f+3}], v{GF} offset:{(4+f)*1024}')
    def gemm_mid2():
        a('s_waitcnt lgkmcnt(0)')
        for kp in range(4):
            c = '0' if kp == 0 else f'v[{HA}:{HA+15}]'
            a(f'v_mfma_f32_32x32x16_bf16 v[{HA}:{HA+15}], v[{AX+4*kp}:{AX+4*kp+3}], v[{SG+4*kp}:{SG+4*kp+3}], {c}')
    def w_frags():
        a(f'v_lshlrev_b32 v{GF}, 4, v{vLANE}')
        a(f'v_add_u32 v{GF}, {L_WST}, v{GF}')
        for f in range(16):
            dst = (WB + 4*f) if f < 8 else (WV + 4*(f-8))
            a(f'ds_read_b128 v[{dst}:{dst+3}], v{GF} offset:{f*1024}')
    def gemm_store(tag):
        for i in range(16):
            a(f'v_cvt_pk_bf16_f32 v{GA+i}, v{GA+i}, v{HA+i}')
        a(f's_lshr_b32 s{t0}, s{sW}, 1')
        a(f's_cmp_eq_u32 s{t0}, 3')
        a(f's_cbranch_scc1 K2_RT3{tag}')
        for vv in range(16):
            a(f'ds_write_b32 v{GD}, v{GA+vv} offset:{(8*(vv//4) + vv%4) * ROWB}')
        a(f's_branch K2_RTD{tag}')
        a.label(f'K2_RT3{tag}')
        a('s_mov_b32 exec_hi, 0')
        for vv in range(2):
            a(f'ds_write_b32 v{GD}, v{GA+vv} offset:{vv * ROWB}')
        a('s_mov_b64 exec, -1')
        a.label(f'K2_RTD{tag}')
    def consts():
        a(f'v_add_u32 v{RA}, s{sDB}, v{RA}')
        for kp in range(1, 4):
            a(f'v_xor_b32 v{RA+kp}, {32*kp}, v{RA}')
        a(f's_mov_b32 s{t3}, 0x{LOG2E:x}')
        for cc in range(2):
            a(f'v_lshlrev_b32 v{BC+cc}, 16, v{BC+cc}')
            a(f'v_mul_f32 v{BC+cc}, s{t3}, v{BC+cc}')
        a(f'v_cvt_pk_bf16_f32 v{BC}, 0, v{BC}')
        a(f'v_cvt_pk_bf16_f32 v{BC+1}, v{BC+1}, 0')
        a(f'v_cmp_gt_u32 vcc, 32, v{vLANE}')
        a(f'v_mov_b32 v{tG}, 0xb2000000')
        a(f'v_mov_b32 v{tH}, 0xb200')
        a(f'v_cndmask_b32 v{BC}, v{tG}, v{BC}, vcc')
        a(f'v_cndmask_b32 v{BC+1}, v{tH}, v{BC+1}, vcc')

    def hist():
        a(f'v_mov_b32 v{tE}, 1')
        for it in range(NIT):
            a(f's_mov_b64 exec, s[{MK+2*it}:{MK+2*it+1}]')
            a(f'ds_add_rtn_u32 v{RK+it}, v{REC+2*it+1}, v{tE} offset:{L_CNT}')
        a('s_mov_b64 exec, -1')

    def scan_nodes(tag, mid=None):
        a(f'v_lshlrev_b32 v{tA}, 3, v{vLANE}')
        a(f'ds_read_b64 v[{TQ}:{TQ+1}], v{tA} offset:{L_CNT}')
        a(f'v_mul_u32_u24 v{nROW0}, {2*ROWB}, v{vLANE}')
        a(f'v_add_u32 v{nROW0}, {L_ACC}, v{nROW0}')
        if mid: mid()
        else: a('s_waitcnt lgkmcnt(0)')
        a(f'v_add_u32 v{tE}, 3, v{TQ}')
        a(f'v_add_u32 v{tF}, 3, v{TQ+1}')
        a(f'v_and_b32 v{tE}, -4, v{tE}')
        a(f'v_and_b32 v{tF}, -4, v{tF}')
        a(f'v_add_u32 v{tC}, v{tE}, v{tF}')
        a(f'v_max_u32 v{tB}, v{tE}, v{tF}')
        a(f'v_mov_b32 v{tD}, v{tC}')
        wave_scan(a, 'v_add_u32', tD)
        a(f'v_sub_u32 v{nOFF0}, v{tD}, v{tC}')
        a(f'v_readlane_b32 s{t1}, v{tD}, 63')
        a(f'v_add_u32 v{nOFF1}, v{nOFF0}, v{tE}')
        a(f'v_lshlrev_b32 v{TQ+2}, 2, v{nOFF0}')
        a(f'v_lshlrev_b32 v{TQ+3}, 2, v{nOFF1}')
        a(f'ds_write_b64 v{tA}, v[{TQ+2}:{TQ+3}] offset:{L_TAB}')
        a(f'v_mov_b32 v{nEND0}, v{nOFF1}')
        a(f'v_add_u32 v{nEND1}, v{nOFF1}, v{tF}')
        a(f's_add_u32 s{t1}, s{t1}, {4*NSTREAM-1}')
        a(f's_lshr_b32 s{sL}, s{t1}, 6')
        a(f's_add_u32 s{sCNT}, s{sL}, 3')
        a(f's_lshr_b32 s{sCNT}, s{sCNT}, 2')
        a(f's_sub_u32 s{sCNT}, s{sCNT}, 1')
        a(f's_sub_u32 s{sREM}, s{sL}, 1')
        a(f's_and_b32 s{sREM}, s{sREM}, 3')
        a(f's_add_u32 s{sREM}, s{sREM}, 1')
    def qi_fill(tag):
        a(f's_lshl_b32 s{t0}, s{sW}, 2')
        a(f'v_add_u32 v{tA}, s{t0}, v{nOFF0}')
        a(f'v_add_u32 v{tB}, s{t0}, v{nOFF1}')
        a(f'v_max_u32 v{TR}, v{tE}, v{tF}')
        a(f'v_add_u32 v{tC}, {ROWB}, v{nROW0}')
        a(f'v_or_b32 v{tD}, 0x80000000, v{nROW0}')
        a(f'v_or_b32 v{tG}, 0x80000000, v{tC}')
        lp = f'K2_QF{tag}'
        a.label(lp)
        a(f's_add_u32 s{t1}, s{t0}, 4')
        a(f'v_cmp_eq_u32 s[{sSV}:{sSV+1}], s{t1}, v{tE}')
        a(f'v_cmp_eq_u32 s[{sSV2}:{sSV2+1}], s{t1}, v{tF}')
        a(f'v_cmp_lt_u32 vcc, s{t0}, v{tE}')
        a(f'v_cndmask_b32 v{tH}, v{nROW0}, v{tD}, s[{sSV}:{sSV+1}]')
        a(f'v_cndmask_b32 v{tI}, v{tC}, v{tG}, s[{sSV2}:{sSV2+1}]')
        a(f'v_cmp_lt_u32 s[{sSV}:{sSV+1}], s{t0}, v{tF}')
        a('s_mov_b64 exec, vcc')
        a(f'ds_write_b32 v{tA}, v{tH} offset:{L_QI}')
        a(f's_mov_b64 exec, s[{sSV}:{sSV+1}]')
        a(f'ds_write_b32 v{tB}, v{tI} offset:{L_QI}')
        a('s_mov_b64 exec, -1')
        a(f's_add_u32 s{t0}, s{t0}, 32')
        a(f'v_add_u32 v{tA}, 32, v{tA}')
        a(f'v_add_u32 v{tB}, 32, v{tB}')
        a(f'v_cmp_lt_u32 vcc, s{t0}, v{TR}')
        a(f's_cbranch_vccnz {lp}')
    def scatter():
        a('s_waitcnt lgkmcnt(0)')
        for b0 in (0, 8):
            for it in range(b0, b0 + 8):
                a(f'ds_read_b32 v{AX+it}, v{REC+2*it+1} offset:{L_TAB}')
            for it in range(b0, b0 + 8):
                a(f's_mov_b64 exec, s[{MK+2*it}:{MK+2*it+1}]')
                a(f's_waitcnt lgkmcnt({7 - (it-b0) + (it-b0)})')
                a(f'v_lshl_add_u32 v{AX+it}, v{RK+it}, 2, v{AX+it}')
                a(f'ds_write_b32 v{AX+it}, v{REC+2*it} offset:{L_ENT}')
            a('s_mov_b64 exec, -1')

    def setup_ptrs():
        a(f'v_mad_u32_u24 v{tA}, v{sidA}, s{sL}, v{jA}')
        a(f'v_lshlrev_b32 v{pEN}, 4, v{tA}')
        a(f'ds_read_b128 v[{EN}:{EN+3}], v{pEN} offset:{L_ENT}')
        a(f'v_lshlrev_b32 v{pQF}, 2, v{tA}')
        a(f'v_mul_u32_u24 v{pQI}, s{sL}, v{sidA}')
        a(f'v_lshlrev_b32 v{pQI}, 2, v{pQI}')
        a(f'v_add_u32 v{pQI}, {L_QI}, v{pQI}')
        a(f'v_mad_u32_u24 v{tA}, v{sidR}, s{sL}, v{jA}')
        a(f'v_lshl_add_u32 v{pEE}, v{tA}, 4, v{iR4}')
        a(f's_mov_b32 m0, s{sDB}')

    def dma_addr():
        return [f'v_mad_u32_u16 v{EN+i}, v{EN+i}, s{s128}, v{CO+i}' for i in range(4)]
    def dma_issue():
        if opts.get('nodma'): return []
        return [f'buffer_load_dwordx4 v{EN+i}, s[{rX}:{rX+3}], 0 offen offset:{1024*i} lds' if i else
                f'buffer_load_dwordx4 v{EN}, s[{rX}:{rX+3}], 0 offen lds' for i in range(4)]

    def main_loop(tag, atomic):
        flush_blocks = []
        def post(cc, par, nq_check):
            done = a.newlabel('pdone') if nq_check else None
            for j in range(4):
                if nq_check and j > 0:
                    a(f's_cmp_le_u32 s{sREM}, {j}')
                    a(f's_cbranch_scc1 {done}')
                p = PP + 2*j; t = TT_ + 2*j; z = ZZ + 2*j
                a(f'v_pk_fma_f32 v[{NUM+2*cc}:{NUM+2*cc+1}], v[{p}:{p+1}], v[{t}:{t+1}], v[{NUM+2*cc}:{NUM+2*cc+1}]')
                a(f'v_pk_fma_f32 v[{DEN+2*cc}:{DEN+2*cc+1}], v[{p}:{p+1}], v[{z}:{z+1}], v[{DEN+2*cc}:{DEN+2*cc+1}]')
                if opts.get('noflush'): continue
                fl = a.newlabel('fl'); back = a.newlabel('bk')
                a(f's_bitcmp1_b32 s{sANY[par]}, {8*j}')
                a(f's_cbranch_scc1 {fl}')
                a.label(back)
                flush_blocks.append((fl, back, cc, par, j))
            if nq_check: a.label(done)
        def pre(cur):
            g0 = G_[cur]; h0 = H_[cur]
            for j in range(4):
                g = g0 + 4*j
                a(f'v_pk_fma_f32 v[{g}:{g+1}], v[{g}:{g+1}], s[{sC}:{sC+1}], s[{sC}:{sC+1}] clamp')
                a(f'v_pk_fma_f32 v[{g+2}:{g+3}], v[{g+2}:{g+3}], s[{sC}:{sC+1}], s[{sC}:{sC+1}] clamp')
            for j in range(4):
                g = g0 + 4*j; h = h0 + 4*j
                X = f'v[{g}:{g+1}]'; Y = f'v[{g+2}:{g+3}]'
                p = PP + 2*j; t = TT_ + 2*j; z = ZZ + 2*j
                a(f'v_pk_mul_f32 v[{t}:{t+1}], {Y}, v[{h}:{h+1}]')
                a(f'v_pk_mul_f32 v[{p}:{p+1}], {X}, {Y}')
                a(f'v_pk_add_f32 v[{z}:{z+1}], {X}, {Y}')
                a(f'v_pk_fma_f32 v[{t}:{t+1}], {X}, v[{h+2}:{h+3}], v[{t}:{t+1}]')
        def mfma_list(nxt, cc):
            Gs = f'v[{G_[nxt]}:{G_[nxt]+15}]'; Hs = f'v[{H_[nxt]}:{H_[nxt]+15}]'
            out = []
            for kp in range(4):
                wb = WB + 16*cc + 4*kp; wv = WV + 16*cc + 4*kp; ax = AX + 4*kp
                out.append(f'v_mfma_f32_32x32x16_bf16 {Hs}, v[{ax}:{ax+3}], v[{wv}:{wv+3}], {"0" if kp == 0 else Hs}')
                out.append(f'v_mfma_f32_32x32x16_bf16 {Gs}, v[{ax}:{ax+3}], v[{wb}:{wb+3}], {"0" if kp == 0 else Gs}')
            out.append(f'v_mfma_f32_32x32x16_bf16 {Gs}, v[{AE[cc]}:{AE[cc]+3}], v[{BE}:{BE+3}], {Gs}')
            return out
        def trans_list(cur):
            return [f'v_rcp_f32 v{PP+i}, v{PP+i}' for i in range(8)] + [f'v_exp_f32 v{G_[cur]+i}, v{G_[cur]+i}' for i in range(16)]
        def weave(mf, tr, gaps):
            dist = [3, 3, 3, 3, 3, 3, 2, 2, 2]
            if opts.get('nogaps'): gaps = {}
            def keep(ins):
                if opts.get('nods') and ins.startswith('ds_'): return False
                if opts.get('novalu') and ins.startswith('v_'): return False
                if opts.get('nowait') and ins.startswith('s_waitcnt'): return False
                if opts.get('novm') and ins.startswith('buffer_'): return False
                return True
            gaps = {k_: [i_ for i_ in v_ if keep(i_)] for k_, v_ in gaps.items()}
            if opts.get('nomf'): mf = None
            k = 0
            for m in range(9):
                for ins in gaps.get(('m', m), []): a(ins)
                if mf: a(mf[m])
                for _ in range(dist[m]):
                    a(tr[k])
                    for ins in gaps.get(k, []): a(ins)
                    k += 1
            assert k == len(tr)
        def stage0(par):
            g = {}
            da = dma_addr()
            g[0] = [f'ds_read_b32 v{QF}, v{pQF} offset:{L_QI + 16*(par+1)}']
            g[1] = [f'ds_read_b32 v{EE}, v{pEE} offset:{L_ENT + 64*(par+1)}']
            g[3] = [f'v_and_or_b32 v{BE}, v{R0}, s{sHI}, v{BC+1}']
            g[6] = [da[0]]; g[9] = [da[1]]; g[12] = [da[2]]; g[15] = [da[3]]
            weave(mfma_list(1, 1), trans_list(0), g)
            post(1, par ^ 1, False)
            qn = QA[par ^ 1]
            if not opts.get('nogaps') and not opts.get('nopds'):
                a(f'ds_read2_b32 v[{qn}:{qn+1}], v{pQI} offset0:{4*(par+1)} offset1:{4*(par+1)+1}')
                a(f'ds_read2_b32 v[{qn+2}:{qn+3}], v{pQI} offset0:{4*(par+1)+2} offset1:{4*(par+1)+3}')
                a('s_waitcnt vmcnt(0)')
                for kp in range(4):
                    a(f'ds_read_b128 v[{AX+4*kp}:{AX+4*kp+3}], v{RA+kp}')
            pre(0)
            a(f's_sub_u32 s{sCNT}, s{sCNT}, 1')
        def stage1(par):
            qn = QA[par ^ 1]
            g = {}
            di = dma_issue()
            g[('m', 0)] = ['s_waitcnt lgkmcnt(0)']
            g[0] = [f'v_mad_u32_u24 v{qn}, v{qn}, 1, v{C4}'] + di[0:1]
            g[1] = [f'v_mad_u32_u24 v{qn+1}, v{qn+1}, 1, v{C4}'] + di[1:2]
            g[2] = [f'ds_read_b32 v{R0}, v{qn} offset:512'] + di[2:3]
            g[3] = [f'v_mad_u32_u24 v{qn+2}, v{qn+2}, 1, v{C4}', f'ds_read_b32 v{BE+1}, v{qn+1} offset:512'] + di[3:4]
            g[4] = [f'v_mad_u32_u24 v{qn+3}, v{qn+3}, 1, v{C4}', f'ds_read_b32 v{BE+2}, v{qn+2} offset:512']
            g[5] = [f'ds_read_b32 v{BE+3}, v{qn+3} offset:512']
            g[6] = [f'ds_read_b128 v[{EN}:{EN+3}], v{pEN} offset:{L_ENT + 64*(par+3)}']
            g[7] = [f'v_perm_b32 v{AE[0]}, v{EE}, v{AE[0]}, v{SEL[0]}']
            g[9] = [f'v_perm_b32 v{AE[1]}, v{EE}, v{AE[1]}, v{SEL[1]}']
            g[11] = [f'v_cmp_gt_i32 s[{sF[par^1]}:{sF[par^1]+1}], 0, v{QF}']
            if par == 1:
                g[13] = [f'v_add_u32 v{pQI}, 32, v{pQI}']
                g[14] = [f'v_add_u32 v{pQF}, 32, v{pQF}']
                g[15] = [f'v_add_u32 v{pEE}, 128, v{pEE}']
                g[16] = [f'v_add_u32 v{pEN}, 128, v{pEN}']
            g[17] = [f's_or_b32 s{sANY[par^1]}, s{sF[par^1]}, s{sF[par^1]+1}'] if not opts.get('noany') else [f's_mov_b32 s{sANY[par^1]}, 0']
            g[19] = ['s_waitcnt lgkmcnt(0)', f'v_and_or_b32 v{BE}, v{R0}, s{sLO}, v{BC}']
            weave(mfma_list(0, 0), trans_list(1), g)
            post(0, par, False)
            pre(1)
        def last_stage1(par):
            weave(None, trans_list(1), {})
            post(0, par, True)
            pre(1)
            for i in range(8):
                a(f'v_rcp_f32 v{PP+i}, v{PP+i}')
            a('s_nop 0')
            post(1, par, True)
        L0 = f'K2_T0{tag}'; E0 = f'K2_E0{tag}'; E1 = f'K2_E1{tag}'; DONE = f'K2_MD{tag}'
        PR = opts.get('prio', 1)
        if PR:
            a(f's_add_u32 s{t0}, s{sCNT}, 1')
            a(f's_lshr_b32 s{t0}, s{t0}, {2 if PR == 1 else 1}')
            if PR == 3: a(f's_lshr_b32 s{t0}, s{t0}, 0')
            a(f's_lshl_b32 s{t0}, s{t0}, 1')
            a(f's_sub_u32 s{sSWAP}, s{sCNT}, s{t0}')
            a(f's_cmp_ge_u32 s{sW}, 4')
            a(f's_cbranch_scc0 K2_PR0{tag}')
            a('s_setprio 1')
            a.label(f'K2_PR0{tag}')
        a.label(L0)
        if PR:
            a(f's_cmp_eq_u32 s{sCNT}, s{sSWAP}')
            a(f's_cbranch_scc1 K2_SWP{tag}')
            a.label(f'K2_SWB{tag}')
        stage0(0)
        a(f's_cbranch_scc1 {E0}')
        stage1(0)
        stage0(1)
        a(f's_cbranch_scc1 {E1}')
        stage1(1)
        a(f's_branch {L0}')
        a.label(E0)
        last_stage1(0)
        a(f's_branch {DONE}')
        a.label(E1)
        last_stage1(1)
        a(f's_branch {DONE}')
        if PR:
            a.label(f'K2_SWP{tag}')
            a(f's_cmp_ge_u32 s{sW}, 4')
            a(f's_cbranch_scc1 K2_SW0{tag}')
            a('s_setprio 1')
            a(f's_branch K2_SWB{tag}')
            a.label(f'K2_SW0{tag}')
            a('s_setprio 0')
            a(f's_branch K2_SWB{tag}')
        for (fl, back, cc, par, j) in flush_blocks:
            a.label(fl)
            a(f's_bfe_i32 exec_lo, s{sF[par]}, 0x{(1<<16)|(8*j):x}')
            a(f's_bfe_i32 exec_hi, s{sF[par]+1}, 0x{(1<<16)|(8*j):x}')
            a(f'v_add_f32 v{F0}, v{DEN+2*cc}, v{DEN+2*cc+1}')
            a(f'v_add_f32 v{F1}, v{NUM+2*cc}, v{NUM+2*cc+1}')
            a(f'v_mov_b64 v[{DEN+2*cc}:{DEN+2*cc+1}], 0')
            a(f'v_mov_b64 v[{NUM+2*cc}:{NUM+2*cc+1}], 0')
            if atomic:
                a(f'ds_add_f32 v{QA[par]+j}, v{F0} offset:{cc*128}')
                a(f'ds_add_f32 v{QA[par]+j}, v{F1} offset:{256+cc*128}')
            else:
                a(f'ds_write2_b32 v{QA[par]+j}, v{F0}, v{F1} offset0:{cc*32} offset1:{64+cc*32}')
            a('s_mov_b64 exec, -1')
            a(f's_branch {back}')
        a.label(DONE)
        if PR: a('s_setprio 0')

    def pipeline_fill():
        q0 = QA[0]
        a(f'ds_read2_b32 v[{q0}:{q0+1}], v{pQI} offset0:0 offset1:1')
        a(f'ds_read2_b32 v[{q0+2}:{q0+3}], v{pQI} offset0:2 offset1:3')
        a(f'ds_read_b32 v{QF}, v{pQF} offset:{L_QI}')
        a(f'ds_read_b32 v{EE}, v{pEE} offset:{L_ENT}')
        a(f'ds_read_b128 v[{EN}:{EN+3}], v{pEN} offset:{L_ENT + 64}')
        for i in range(2):
            a(f'v_mov_b64 v[{DEN+2*i}:{DEN+2*i+1}], 0')
            a(f'v_mov_b64 v[{NUM+2*i}:{NUM+2*i+1}], 0')
        for i in range(8):
            a(f'v_mov_b32 v{PP+i}, 1.0')
        for i in range(4):
            a(f'v_mov_b64 v[{TT_+2*i}:{TT_+2*i+1}], 0')
            a(f'v_mov_b64 v[{ZZ+2*i}:{ZZ+2*i+1}], 0')
        a(f's_mov_b32 s{sANY[1]}, 0')
        a('s_waitcnt lgkmcnt(0)')
        for q in range(4):
            a(f'v_mad_u32_u24 v{q0+q}, v{q0+q}, 1, v{C4}')
        a(f'ds_read_b32 v{R0}, v{q0} offset:512')
        for q in range(1, 4):
            a(f'ds_read_b32 v{BE+q}, v{q0+q} offset:512')
        a(f'v_perm_b32 v{AE[0]}, v{EE}, v{AE[0]}, v{SEL[0]}')
        a(f'v_perm_b32 v{AE[1]}, v{EE}, v{AE[1]}, v{SEL[1]}')
        a(f'v_cmp_gt_i32 s[{sF[0]}:{sF[0]+1}], 0, v{QF}')
        for ins in dma_addr(): a(ins)
        a('s_waitcnt vmcnt(0)')
        for kp in range(4):
            a(f'ds_read_b128 v[{AX+4*kp}:{AX+4*kp+3}], v{RA+kp}')
        a(f's_or_b32 s{sANY[0]}, s{sF[0]}, s{sF[0]+1}')
        a('s_waitcnt lgkmcnt(0)')
        a(f'v_and_or_b32 v{BE}, v{R0}, s{sLO}, v{BC}')
        for ins in dma_issue(): a(ins)
        a(f'ds_read_b128 v[{EN}:{EN+3}], v{pEN} offset:{L_ENT + 128}')
        Gs = f'v[{GA}:{GA+15}]'; Hs = f'v[{HA}:{HA+15}]'
        for kp in range(4):
            a(f'v_mfma_f32_32x32x16_bf16 {Hs}, v[{AX+4*kp}:{AX+4*kp+3}], v[{WV+4*kp}:{WV+4*kp+3}], {"0" if kp == 0 else Hs}')
            a(f'v_mfma_f32_32x32x16_bf16 {Gs}, v[{AX+4*kp}:{AX+4*kp+3}], v[{WB+4*kp}:{WB+4*kp+3}], {"0" if kp == 0 else Gs}')
        a(f'v_mfma_f32_32x32x16_bf16 {Gs}, v[{AE[0]}:{AE[0]+3}], v[{BE}:{BE+3}], {Gs}')
        a('s_waitcnt lgkmcnt(0)')
        a('s_nop 7')
        a('s_nop 3')
    def forced_flags():
        a(f's_sub_u32 s{t1}, s{sL}, 1')
        a(f's_lshl_b32 s{t1}, s{t1}, 2')
        a(f'v_add_u32 v{tB}, s{t1}, v{pQI}')
        a(f'v_mov_b32 v{tA}, 0x80000000')
        a('s_mov_b32 exec_lo, 1')
        a('s_mov_b32 exec_hi, 1')
        a(f'ds_or_b32 v{tB}, v{tA}')
        a('s_mov_b64 exec, -1')

    a('s_waitcnt vmcnt(16) lgkmcnt(0)')
    a('s_barrier')
    stamp(2)
    a(f's_mov_b64 exec, s[{sSV2}:{sSV2+1}]')
    a(f'v_mov_b32 v{tD}, {L_CNT + 127*4}')
    a(f'v_mov_b32 v{tE}, 1')
    a(f'ds_write_b32 v{tD}, v{tE}')
    a('s_mov_b64 exec, -1')
    gemm_issue()
    gemm_mid()
    gemm_mid2()
    w_frags()
    consts()
    gemm_store('F')
    stamp(3)
    a('s_waitcnt vmcnt(0)')
    hist()
    a('s_waitcnt lgkmcnt(0)')
    a('s_barrier')
    stamp(4)
    scan_nodes('F')
    a(f'v_readlane_b32 s{t0}, v{TQ+1}, 63')
    a(f's_lshl_b32 s{t1}, s{sL}, 2')
    a(f'v_cmp_lt_u32 vcc, s{t1}, v{tB}')
    a(f's_cmp_lg_u32 s{t0}, 0')
    a('s_cbranch_scc1 K2_SLOW')
    a(f's_cmp_gt_u32 s{sL}, {(ENT_QUADS - 8) // NSTREAM}')
    a('s_cbranch_scc1 K2_SLOW')
    a('s_cbranch_vccnz K2_SLOW')
    a(f'v_mov_b32 v{tA}, {L_ZERO}')
    a(f'v_cmp_gt_u32 vcc, {MAXN // 2}, v{vLANE}')
    a(f'v_lshl_or_b32 v{tB}, v{vLANE}, 1, 1')
    a(f'v_cmp_le_u32 s[{sSV}:{sSV+1}], s{sNN}, v{tB}')
    a(f'v_mov_b32 v{tC}, 1')
    a('s_nop 0')
    a(f'v_cndmask_b32 v{tB}, v{TQ+1}, v{tC}, s[{sSV}:{sSV+1}]')
    a(f'v_min_u32 v{tB}, v{TQ}, v{tB}')
    a(f'v_cmp_eq_u32 s[{sSV}:{sSV+1}], 0, v{tB}')
    a('s_mov_b64 exec, vcc')
    a(f'ds_write_b32 v{nROW0}, v{tA} offset:768')
    a(f'ds_write_b32 v{nROW0}, v{tA} offset:{768 + ROWB}')
    a('s_mov_b64 exec, -1')
    a(f's_and_b64 s[{sSV}:{sSV+1}], s[{sSV}:{sSV+1}], vcc')
    a('s_cbranch_scc1 K2_ZROWS')
    a.label('K2_ZBACK')
    qi_fill('F')
    scatter()
    a('s_waitcnt lgkmcnt(0)')
    a('s_barrier')
    stamp(5)
    a(f's_cmp_eq_u32 s{sL}, 0')
    a('s_cbranch_scc1 K2_EPI')
    setup_ptrs()
    a('s_waitcnt lgkmcnt(0)')
    for ins in dma_addr(): a(ins)
    for ins in dma_issue(): a(ins)
    a(f'v_add_u32 v{tI}, {ROWB}, v{nROW0}')
    for hs in range(2):
        lab = f'K2_NC{hs}'
        a(f's_lshl_b32 s{t0}, s{sW}, 1')
        if hs: a(f's_add_u32 s{t0}, s{t0}, 1')
        a(f's_mul_i32 s{t1}, s{t0}, s{sL}')
        a(f's_lshl_b32 s{t1}, s{t1}, 2')
        a(f'v_cmp_gt_u32 vcc, s{t1}, v{nOFF0}')
        a(f'v_cmp_lt_u32 s[{sSV}:{sSV+1}], s{t1}, v{nEND0}')
        a(f's_and_b64 s[{sSV}:{sSV+1}], s[{sSV}:{sSV+1}], vcc')
        a(f'v_cmp_gt_u32 vcc, s{t1}, v{nOFF1}')
        a(f'v_cmp_lt_u32 s[{sSV2}:{sSV2+1}], s{t1}, v{nEND1}')
        a(f's_and_b64 vcc, vcc, s[{sSV2}:{sSV2+1}]')
        a(f'v_cndmask_b32 v{tA}, v{tI}, v{nROW0}, s[{sSV}:{sSV+1}]')
        a(f'v_cndmask_b32 v{tB}, v{nEND1}, v{nEND0}, s[{sSV}:{sSV+1}]')
        a(f's_or_b64 vcc, vcc, s[{sSV}:{sSV+1}]')
        a(f's_cbranch_scc0 {lab}')
        a(f's_ff1_i32_b64 s{t2}, vcc')
        a(f's_mul_i32 s{t0}, s{t0}, {VROWB}')
        a(f's_add_u32 s{t0}, s{t0}, {L_VIRT}')
        a(f'v_readlane_b32 s{t3}, v{tA}, s{t2}')
        a(f'v_readlane_b32 s{t2}, v{tB}, s{t2}')
        a(f'v_lshl_add_u32 v{tC}, v{vLANE}, 2, s{t1}')
        a(f'v_lshl_add_u32 v{tD}, v{vLANE}, 2, s{t3}')
        a(f's_mov_b32 exec_hi, 0')
        a(f'ds_read_b32 v{tE}, v{tD} offset:512')
        a('s_mov_b64 exec, -1')
        a(f'v_add_u32 v{tF}, 4, v{tC}')
        a(f'v_cmp_eq_u32 s[{sSV}:{sSV+1}], s{t2}, v{tF}')
        a(f'v_cmp_gt_u32 vcc, s{t2}, v{tC}')
        a(f'v_mov_b32 v{tF}, s{t0}')
        a(f'v_or_b32 v{tG}, 0x80000000, v{tF}')
        a(f'v_cndmask_b32 v{tG}, v{tF}, v{tG}, s[{sSV}:{sSV+1}]')
        a('s_mov_b64 exec, vcc')
        a(f'ds_write_b32 v{tC}, v{tG} offset:{L_QI}')
        a('s_mov_b32 exec_lo, -1')
        a('s_mov_b32 exec_hi, 0')
        a(f'v_lshl_add_u32 v{tD}, v{vLANE}, 2, v{tF}')
        a(f'v_mov_b32 v{tC}, s{t3}')
        a('s_waitcnt lgkmcnt(1)')
        a(f'ds_write_b32 v{tD}, v{tE} offset:512')
        a(f'ds_write_b32 v{tC}, v{tF} offset:768')
        a('s_mov_b64 exec, -1')
        a.label(lab)
    forced_flags()
    pipeline_fill()
    stamp(6)
    if STAMP:
        a(f's_memrealtime s[{t2}:{t3}]')
        a('s_waitcnt lgkmcnt(0)')
        a(f'v_writelane_b32 v{vST}, s{t2}, 13')
    if opts.get('half'):
        a(f's_cmp_ge_u32 s{sW}, 4')
        a('s_cbranch_scc1 K2_MDF')
    main_loop('F', False)
    stamp(7)
    if STAMP:
        a(f's_memrealtime s[{t2}:{t3}]')
        a('s_waitcnt lgkmcnt(0)')
        a(f'v_writelane_b32 v{vST}, s{t2}, 14')
    a.label('K2_EPI')
    e0 = 4
    XV = [e0, e0 + 4]; DN = e0 + 8; NM = e0 + 16; UU = e0 + 24; CD = e0 + 28; CN = e0 + 36; O = e0 + 44
    AD = e0 + 48; GO = [e0 + 49, e0 + 50]; T1 = e0 + 51; T2 = e0 + 52; CP = e0 + 53; ND = e0 + 54; OC = [e0 + 55, e0 + 56]; ADR = [e0 + 48, e0 + 57]
    def epi_addr(r):
        a(f'v_add_u32 v{T1}, {512*r}, v0') if r else a(f'v_mov_b32 v{T1}, v0')
        a(f'v_lshrrev_b32 v{ND}, 3, v{T1}')
        a(f'v_and_b32 v{T1}, 7, v{T1}')
        a(f'v_lshlrev_b32 v{OC[r]}, 4, v{T1}')
        a(f'v_mad_u32_u24 v{ADR[r]}, v{ND}, s{t0}, v{OC[r]}')
        a(f'v_add_u32 v{ADR[r]}, {L_ACC}, v{ADR[r]}')
        a(f'v_add_u32 v{GO[r]}, s{sNS}, v{ND}')
        a(f'v_lshlrev_b32 v{GO[r]}, 7, v{GO[r]}')
        a(f'v_lshl_add_u32 v{GO[r]}, v{T1}, 3, v{GO[r]}')
    def epi_body(r, carry):
        ad = ADR[r]; xv = XV[r]
        if carry:
            a(f'v_sub_u32 v{T2}, v{ad}, v{OC[r]}')
            a(f'ds_read_b32 v{CP}, v{T2} offset:768')
        a(f'ds_read_b128 v[{DN}:{DN+3}], v{ad}')
        a(f'ds_read_b128 v[{DN+4}:{DN+7}], v{ad} offset:128')
        a(f'ds_read_b128 v[{NM}:{NM+3}], v{ad} offset:256')
        a(f'ds_read_b128 v[{NM+4}:{NM+7}], v{ad} offset:384')
        a(f'ds_read_b128 v[{UU}:{UU+3}], v{ad} offset:640')
        if carry:
            a('s_waitcnt lgkmcnt(5)')
            a(f'v_add_u32 v{T2}, v{CP}, v{OC[r]}')
            a(f'ds_read_b128 v[{CD}:{CD+3}], v{T2}')
            a(f'ds_read_b128 v[{CD+4}:{CD+7}], v{T2} offset:128')
            a(f'ds_read_b128 v[{CN}:{CN+3}], v{T2} offset:256')
            a(f'ds_read_b128 v[{CN+4}:{CN+7}], v{T2} offset:384')
        a('s_waitcnt lgkmcnt(0)')
        if carry:
            for i in range(0, 8, 2):
                a(f'v_pk_add_f32 v[{DN+i}:{DN+i+1}], v[{DN+i}:{DN+i+1}], v[{CD+i}:{CD+i+1}]')
                a(f'v_pk_add_f32 v[{NM+i}:{NM+i+1}], v[{NM+i}:{NM+i+1}], v[{CN+i}:{CN+i+1}]')
        for i in range(0, 8, 2):
            a(f'v_pk_add_f32 v[{DN+i}:{DN+i+1}], v[{DN+i}:{DN+i+1}], s[{sC}:{sC+1}]')
        for i in range(8):
            a(f'v_rcp_f32 v{DN+i}, v{DN+i}')
        for i in range(4):
            a(f'v_lshlrev_b32 v{CD+i}, 16, v{UU+i}')
            a(f'v_and_b32 v{CD+4+i}, s{sHI}, v{UU+i}')
        for i in range(0, 8, 2):
            a(f'v_pk_fma_f32 v[{NM+i}:{NM+i+1}], v[{NM+i}:{NM+i+1}], v[{DN+i}:{DN+i+1}], v[{CD+i}:{CD+i+1}]')
        a(f's_waitcnt vmcnt({2 if r == 0 else 0})') if True else None
        for i in range(8):
            a(f'v_max_f32 v{NM+i}, 0, v{NM+i}')
        for i in range(4):
            a(f'v_lshlrev_b32 v{CD+2*i}, 16, v{xv+i}')
            a(f'v_and_b32 v{CD+2*i+1}, s{sHI}, v{xv+i}')
        for i in range(0, 8, 2):
            a(f'v_pk_add_f32 v[{NM+i}:{NM+i+1}], v[{NM+i}:{NM+i+1}], v[{CD+i}:{CD+i+1}]')
        for i in range(4):
            a(f'v_cvt_pk_bf16_f32 v{O+i}, v{NM+2*i}, v{NM+2*i+1}')
        a(f'buffer_store_dwordx2 v[{O}:{O+1}], v{GO[r]}, s[{rO}:{rO+3}], 0 offen')
        a(f'buffer_store_dwordx2 v[{O+2}:{O+3}], v{GO[r]}, s[{rO}:{rO+3}], 0 offen offset:64')
    def epilogue(tag, carry):
        srd(a, rO, sOUT, N * 128)
        srd(a, rF, sX, N * 128)
        a(f's_mov_b32 s{t0}, {ROWB}')
        a(f's_mov_b32 s{sC}, 0x{EPS_SCALED:x}')
        a(f's_mov_b32 s{sC+1}, 0x{EPS_SCALED:x}')
        a(f's_mov_b32 s{sHI}, 0xffff0000')
        a('s_waitcnt vmcnt(0)')
        epi_addr(0)
        a(f'buffer_load_dwordx2 v[{XV[0]}:{XV[0]+1}], v{GO[0]}, s[{rF}:{rF+3}], 0 offen')
        a(f'buffer_load_dwordx2 v[{XV[0]+2}:{XV[0]+3}], v{GO[0]}, s[{rF}:{rF+3}], 0 offen offset:64')
        epi_addr(1)
        a(f'v_cmp_gt_u32 s[{sSV}:{sSV+1}], s{sNN}, v{ND}')
        a(f'buffer_load_dwordx2 v[{XV[1]}:{XV[1]+1}], v{GO[1]}, s[{rF}:{rF+3}], 0 offen')
        a(f'buffer_load_dwordx2 v[{XV[1]+2}:{XV[1]+3}], v{GO[1]}, s[{rF}:{rF+3}], 0 offen offset:64')
        a('s_waitcnt lgkmcnt(0)')
        a('s_barrier')
        if STAMP and tag == 'F': stamp(8)
        epi_body(0, carry)
        a(f's_mov_b64 exec, s[{sSV}:{sSV+1}]')
        a(f's_cbranch_execz K2_FIN{tag}')
        epi_body(1, carry)
        a.label(f'K2_FIN{tag}')
    epilogue('F', True)
    if STAMP:
        a('s_mov_b64 exec, -1')
        a('s_waitcnt vmcnt(0)')
        stamp(9)
        a(f's_memrealtime s[{t2}:{t3}]')
        a('s_waitcnt lgkmcnt(0)')
        a(f'v_writelane_b32 v{vST}, s{t2}, 12')
        a(f's_mul_i32 s{t0}, s2, {NW}')
        a(f's_add_u32 s{t0}, s{t0}, s{sW}')
        a(f's_lshl_b32 s{t0}, s{t0}, 8')
        a(f's_add_u32 s{t0}, s{t0}, 0x1000000')
        srd_off(a, rT, sWS, f's{t0}', 256)
        a(f'v_writelane_b32 v{vST}, s{sL}, 10')
        a(f'v_lshlrev_b32 v4, 2, v{vLANE}')
        a(f'buffer_store_dword v{vST}, v4, s[{rT}:{rT+3}], 0 offen')
    a('s_endpgm')
    a.label('K2_ZROWS')
    a(f's_mov_b64 exec, s[{sSV}:{sSV+1}]')
    for i in range(4):
        a(f'v_mov_b32 v{TR+i}, 0')
    for nd in range(2):
        a(f'v_cmp_eq_u32 vcc, 0, v{TQ+nd}')
        a(f's_and_b64 exec, vcc, s[{sSV}:{sSV+1}]')
        for k in range(32):
            a(f'ds_write_b128 v{nROW0}, v[{TR}:{TR+3}] offset:{nd*ROWB + 16*k}')
        a(f's_mov_b64 exec, s[{sSV}:{sSV+1}]')
    a('s_mov_b64 exec, -1')
    a('s_branch K2_ZBACK')

    a.label('K2_SLOW')
    a('s_waitcnt vmcnt(0) lgkmcnt(0)')
    a('s_barrier')
    a(f's_lshl_b32 s{t1}, s2, 10')
    a(f's_add_u32 s{t1}, s{t1}, {WS_TAB2}')
    srd_off(a, rT, sWS, f's{t1}', 1024)
    a(f'v_lshlrev_b32 v{tA}, 4, v{vLANE}')
    a(f'buffer_load_dwordx4 v[{TQ}:{TQ+3}], v{tA}, s[{rT}:{rT+3}], 0 offen')
    a('s_waitcnt vmcnt(0)')
    a(f'v_max_u32 v{tE}, v{TQ}, v{TQ+1}')
    a(f'v_max3_u32 v{tE}, v{tE}, v{TQ+2}, v{TQ+3}')
    wave_scan(a, 'v_max_u32', tE)
    a('s_nop 0')
    a(f'v_readlane_b32 s{t1}, v{tE}, 63')
    a(f's_add_u32 s{t1}, s{t1}, {WSLOW-1}')
    a(f's_mul_i32 s{t1}, s{t1}, 5042')
    a(f's_lshr_b32 s{sNP}, s{t1}, 16')
    a(f's_mov_b32 s{sP}, 0')
    for i in range(4):
        a(f'v_mov_b32 v{TR+i}, 0')
    a(f'v_lshrrev_b32 v{tA}, 5, v0')
    a(f'v_mul_u32_u24 v{tA}, {ROWB}, v{tA}')
    a(f'v_and_b32 v{tB}, 31, v{vLANE}')
    a(f'v_lshl_add_u32 v{tA}, v{tB}, 4, v{tA}')
    a(f'v_add_u32 v{tA}, {L_ACC}, v{tA}')
    for i in range(6):
        a(f'ds_write_b128 v{tA}, v[{TR}:{TR+3}]')
        a(f'v_add_u32 v{tA}, {16*ROWB}, v{tA}')
    a(f'v_cmp_gt_u32 vcc, 64, v0')
    a(f's_and_saveexec_b64 s[{sSV}:{sSV+1}], vcc')
    a(f'ds_write_b128 v{tA}, v[{TR}:{TR+3}]')
    a(f's_mov_b64 exec, s[{sSV}:{sSV+1}]')
    a.label('K2_SPASS')
    a(f's_lshl_b32 s{t1}, s2, 10')
    a(f's_add_u32 s{t1}, s{t1}, {WS_TAB}')
    srd_off(a, rT, sWS, f's{t1}', WS_TAB2 - WS_TAB + 1024)
    a(f'v_lshlrev_b32 v{tD}, 6, v{sidA}')
    a(f's_mov_b32 s{t0}, {WS_TAB2 - WS_TAB}')
    for i in range(4):
        a(f'buffer_load_dwordx4 v[{SG+4*i}:{SG+4*i+3}], v{tD}, s[{rT}:{rT+3}], 0 offen offset:{16*i}')
    for i in range(4):
        a(f'buffer_load_dwordx4 v[{AX+4*i}:{AX+4*i+3}], v{tD}, s[{rT}:{rT+3}], s{t0} offen offset:{16*i}')
    a(f'v_and_b32 v{tC}, 31, v{vLANE}')
    a(f's_mul_i32 s{t0}, s{sP}, {WSLOW}')
    a(f'v_cmp_gt_u32 vcc, {WSLOW}, v{tC}')
    a(f'v_add_u32 v{tC}, s{t0}, v{tC}')
    a(f'v_lshlrev_b32 v{tB}, 3, v{tC}')
    a(f'v_mov_b32 v{tD}, 0x10000')
    a(f'v_cndmask_b32 v{tC}, v{tD}, v{tC}, vcc')
    a('s_waitcnt vmcnt(0)')
    for it in range(NIT):
        a(f'v_cmp_gt_u32 s[{MK+2*it}:{MK+2*it+1}], v{AX+it}, v{tC}')
    rec_loads(tB)
    lds_init()
    a('s_waitcnt vmcnt(0) lgkmcnt(0)')
    a('s_barrier')
    hist()
    a('s_waitcnt lgkmcnt(0)')
    a('s_barrier')
    scan_nodes('S')
    qi_fill('S')
    scatter()
    a('s_waitcnt lgkmcnt(0)')
    a('s_barrier')
    a(f's_cmp_eq_u32 s{sL}, 0')
    a('s_cbranch_scc1 K2_SNEXT')
    setup_ptrs()
    a('s_waitcnt lgkmcnt(0)')
    for ins in dma_addr(): a(ins)
    for ins in dma_issue(): a(ins)
    forced_flags()
    pipeline_fill()
    main_loop('S', True)
    a.label('K2_SNEXT')
    a('s_waitcnt vmcnt(0) lgkmcnt(0)')
    a('s_barrier')
    a(f's_add_u32 s{sP}, s{sP}, 1')
    a(f's_cmp_lt_u32 s{sP}, s{sNP}')
    a('s_cbranch_scc1 K2_SPASS')
    epilogue('S', False)
    a.label('K2_END')
    a('s_endpgm')
    return nvgpr, nsgpr

def kd(name, nv, ns):
    acc = (nv + 3) // 4 * 4
    return f'''.amdhsa_kernel {name}
  .amdhsa_next_free_vgpr {nv}
  .amdhsa_next_free_sgpr {ns}
  .amdhsa_accum_offset {acc}
  .amdhsa_group_segment_fixed_size 0
  .amdhsa_kernarg_size 96
  .amdhsa_user_sgpr_count 2
  .amdhsa_user_sgpr_kernarg_segment_ptr 1
  .amdhsa_system_sgpr_workgroup_id_x 1
  .amdhsa_float_denorm_mode_32 3
.end_amdhsa_kernel
'''

def build(opts=None):
    opts = opts or {}
    a = Asm()
    gen_k1(a, opts)
    nv, ns = gen_k2(a, opts)
    out = HEADER
    out += f'; @launch kernel=gs_part_kernel grid=(256,1,1) block=({K1_THREADS},1,1) lds={LDS_K1}\n'
    out += f'; @launch kernel=gs_main_kernel grid=(256,1,1) block=({NW*64},1,1) lds={LDS_MAIN}\n'
    out += '.amdgcn_target "amdgcn-amd-amdhsa--gfx950"\n.text\n'
    out += a.text()
    out += '.section .rodata,"a"\n.p2align 6\n'
    out += kd('gs_part_kernel', 60, 56)
    out += '.p2align 6\n'
    out += kd('gs_main_kernel', nv, ns)
    return out

if __name__ == '__main__':
    path = sys.argv[1] if len(sys.argv) > 1 else 'gather_scatter__edge_featured_mpnn_gatedgcn__graph.s'
    opts = {}
    for o in sys.argv[2:]:
        k, _, val = o.partition('=')
        opts[k] = int(val) if val else True
    open(path, 'w').write(build(opts))
    print('written', path, 'LDS', LDS_MAIN)
```

```python
import sys, os, struct
sys.path.insert(0, os.path.dirname(__file__))
from asmlib import *

N = 25000; E = 800000
NBK = 256
CH = 3136
RECB = CH * 8
WS_TAB = 0x700000
WS_TAB2 = 0x740000
WS_FRAG = 0x780000
MAGIC_B = 43980466
LOG2E = 0xBFB8AA3B
SBITS = 50
C_SCALE = (127 - SBITS) << 23
EPS_SCALED = 0x4E8637BD
assert abs(struct.unpack('<f', struct.pack('<I', EPS_SCALED))[0] / (1e-6 * 2.0**50) - 1) < 1e-6

NW = 8
NSTREAM = 16
NIT = 16
CAP = 3456
WSLOW = 13
ROWB = 784
MAXN = 98
ENT_QUADS = 960
VROWB = 640
L_CNT = 0
L_ZERO = 512
L_TAB = 1024
L_QI = 1536
L_ENT = L_QI + ENT_QUADS * 4
L_ACC = L_ENT + ENT_QUADS * 16
L_VIRT = L_ACC + MAXN * ROWB
L_WST = L_VIRT + NSTREAM * VROWB
L_WST = (L_WST + 255) // 256 * 256
L_DMA = L_WST + 16384
LDS_MAIN = L_DMA + NW * 4096
assert LDS_MAIN <= 163840, LDS_MAIN
assert L_ACC % 16 == 0 and L_VIRT % 16 == 0

K1_THREADS = 896
K1_HIST = 0
K1_STAGE = 1024
LDS_K1 = K1_STAGE + RECB

HEADER = open(os.path.join(os.path.dirname(__file__), 'header.txt')).read()

def srd(a, sreg, ptr, size):
    a(f's_mov_b32 s{sreg}, s{ptr}')
    a(f's_and_b32 s{sreg+1}, s{ptr+1}, 0xffff')
    a(f's_mov_b32 s{sreg+2}, {size}')
    a(f's_mov_b32 s{sreg+3}, 0x20000')

def srd_off(a, sreg, ptr, off, size):
    a(f's_add_u32 s{sreg}, s{ptr}, {off}')
    a(f's_addc_u32 s{sreg+1}, s{ptr+1}, 0')
    a(f's_and_b32 s{sreg+1}, s{sreg+1}, 0xffff')
    a(f's_mov_b32 s{sreg+2}, {size}')
    a(f's_mov_b32 s{sreg+3}, 0x20000')

def wave_scan(a, op, r):
    for sh in (1, 2, 4, 8):
        a('s_nop 1')
        a(f'{op}_dpp v{r}, v{r}, v{r} row_shr:{sh} row_mask:0xf bank_mask:0xf')
    a('s_nop 1')
    a(f'{op}_dpp v{r}, v{r}, v{r} row_bcast:15 row_mask:0xa bank_mask:0xf')
    a('s_nop 1')
    a(f'{op}_dpp v{r}, v{r}, v{r} row_bcast:31 row_mask:0xc bank_mask:0xf')

def wave_scan2(a, op1, r1, op2, r2):
    steps = [f'row_shr:{sh} row_mask:0xf bank_mask:0xf' for sh in (1, 2, 4, 8)] + \
            ['row_bcast:15 row_mask:0xa bank_mask:0xf', 'row_bcast:31 row_mask:0xc bank_mask:0xf']
    a('s_nop 1')
    for st in steps:
        a(f'{op1}_dpp v{r1}, v{r1}, v{r1} {st}')
        a(f'{op2}_dpp v{r2}, v{r2}, v{r2} {st}')
        a('s_nop 0')

def gen_k1(a, opts):
    a.raw('.p2align 8')
    a.raw('.globl gs_part_kernel')
    a.raw('.type gs_part_kernel,@function')
    a.label('gs_part_kernel')
    a('s_cmp_ge_u32 s2, 256')
    a('s_cbranch_scc1 K1_END')
    a('s_load_dwordx4 s[4:7], s[0:1], 8')
    a('s_load_dwordx2 s[8:9], s[0:1], 24')
    a('s_load_dwordx2 s[10:11], s[0:1], 88')
    a('s_load_dwordx2 s[44:45], s[0:1], 0')
    if opts.get('dbgtime'):
        a('s_load_dwordx2 s[52:53], s[0:1], 80')
        a('s_memrealtime s[54:55]')
        a('s_waitcnt lgkmcnt(0)')
        a('v_mov_b32 v20, s54')
        a('v_not_b32 v21, v20')
        a('v_mov_b32 v22, 0')
        a('s_mov_b64 s[56:57], exec')
        a('s_mov_b64 exec, 1')
        a('global_atomic_umax v22, v21, s[52:53]')
        a('global_atomic_umax v22, v20, s[52:53] offset:4')
        a('s_mov_b64 exec, s[56:57]')
    a('v_lshrrev_b32 v1, 6, v0')
    a('s_mul_i32 s12, s2, %d' % (CH * 4))
    a('v_readfirstlane_b32 s3, v1')
    a('s_lshr_b32 s13, s12, 1')
    a('v_lshlrev_b32 v2, 4, v0')
    a('v_add_u32 v2, s12, v2')
    a('s_cmp_eq_u32 s3, 13')
    a('s_cbranch_scc1 K1_FRAG')
    a('v_lshlrev_b32 v3, 3, v0')
    a('v_add_u32 v3, s13, v3')
    a('s_waitcnt lgkmcnt(0)')
    srd(a, 20, 8, E * 4)
    a('buffer_load_dwordx4 v[4:7], v2, s[20:23], 0 offen')
    srd(a, 24, 6, E * 4)
    a('buffer_load_dwordx4 v[8:11], v2, s[24:27], 0 offen')
    srd(a, 28, 4, E * 2)
    a('buffer_load_dwordx2 v[12:13], v3, s[28:31], 0 offen')
    if opts.get('xpre', 1):
        a('s_and_b32 s46, s2, 7')
        a('s_lshr_b32 s47, s2, 3')
        a('s_lshl_b32 s46, s46, 5')
        a('s_add_u32 s46, s46, s47')
        a('s_mul_i32 s46, s46, 3125')
        a('s_add_u32 s46, s46, 31')
        a('s_lshr_b32 s46, s46, 5')
        a('s_lshl_b32 s46, s46, 7')
        a('s_and_b32 s45, s45, 0xffff')
        a('s_mov_b32 s48, s44')
        a('s_mov_b32 s49, s45')
        a('s_mov_b32 s50, %d' % (N * 128))
        a('s_mov_b32 s51, 0x20000')
        a('v_lshlrev_b32 v40, 4, v0')
        a('buffer_load_dwordx4 v[56:59], v40, s[48:51], s46 offen')
    a('v_lshlrev_b32 v14, 2, v0')
    a('v_mov_b32 v15, 0')
    a('v_cmp_gt_u32 vcc, 256, v0')
    a('s_and_saveexec_b64 s[18:19], vcc')
    a('ds_write_b32 v14, v15 offset:%d' % K1_HIST)
    a('s_mov_b64 exec, s[18:19]')
    a('v_cmp_gt_u32 vcc, %d, v0' % (CH // 4))
    a('s_mov_b32 s14, %d' % (E * 4))
    a('v_cmp_gt_u32 s[16:17], s14, v2')
    a('s_and_b64 s[16:17], s[16:17], vcc')
    a('s_mul_i32 s15, s2, %d' % RECB)
    srd_off(a, 32, 10, 's15', RECB)
    srd_off(a, 36, 10, WS_TAB, 0x80000)
    a('s_mov_b32 s40, %d' % MAGIC_B)
    a('s_movk_i32 s41, 3125')
    a('v_mov_b32 v15, 1')
    a('s_waitcnt lgkmcnt(0)')
    a('s_barrier')
    a('s_mov_b64 exec, s[16:17]')
    a('s_cbranch_execz K1_NOEDGE1')
    a('s_waitcnt vmcnt(%d)' % (3 if opts.get('xpre', 1) else 2))
    for k in range(4):
        a(f'v_mul_hi_u32 v{16+k}, v{4+k}, s40')
    for k in range(4):
        a(f'v_lshlrev_b32 v{20+k}, 2, v{16+k}')
        a(f'ds_add_rtn_u32 v{24+k}, v{20+k}, v15 offset:{K1_HIST}')
    for k in range(4):
        a(f'v_mul_u32_u24 v{28+k}, s41, v{16+k}')
        a(f'v_add_u32 v{28+k}, 31, v{28+k}')
        a(f'v_lshrrev_b32 v{28+k}, 5, v{28+k}')
        a(f'v_sub_u32 v{28+k}, v{4+k}, v{28+k}')
        a(f'v_lshlrev_b32 v{33+2*k}, 2, v{28+k}')
    a('s_waitcnt vmcnt(%d)' % (1 if opts.get('xpre', 1) else 0))
    a('s_mov_b32 s42, 0xffff0000')
    a('v_lshl_or_b32 v32, v12, 16, v8')
    a('v_and_or_b32 v34, v12, s42, v9')
    a('v_lshl_or_b32 v36, v13, 16, v10')
    a('v_and_or_b32 v38, v13, s42, v11')
    a.label('K1_NOEDGE1')
    a('s_mov_b64 exec, -1')
    a('s_waitcnt lgkmcnt(0)')
    a('s_barrier')
    a('s_cmp_lg_u32 s3, 0')
    a('s_cbranch_scc1 K1_SCANDONE')
    a('v_lshlrev_b32 v40, 4, v0')
    a('ds_read_b128 v[44:47], v40 offset:%d' % K1_HIST)
    a('v_lshlrev_b32 v41, 12, v0')
    a('s_lshl_b32 s15, s2, 2')
    a('v_add_u32 v41, s15, v41')
    a('s_waitcnt lgkmcnt(0)')
    a('v_add_u32 v48, v44, v45')
    a('v_add_u32 v49, v48, v46')
    a('v_add_u32 v50, v49, v47')
    a('v_mov_b32 v51, v50')
    wave_scan(a, 'v_add_u32', 51)
    a('v_sub_u32 v52, v51, v50')
    a('v_add_u32 v53, v52, v44')
    a('v_add_u32 v54, v52, v48')
    a('v_add_u32 v55, v52, v49')
    a('ds_write_b128 v40, v[52:55] offset:%d' % K1_HIST)
    a('s_mul_i32 s15, s2, %d' % CH)
    a('s_mov_b32 s43, %d' % (WS_TAB2 - WS_TAB))
    for k in range(4):
        a(f'buffer_store_dword v{44+k}, v41, s[36:39], s43 offen offset:{k*1024}')
        a(f'v_min_u32 v{48+k}, 0xff, v{44+k}')
        a(f'v_add_u32 v{52+k}, s15, v{52+k}')
        a(f'v_lshl_or_b32 v{48+k}, v{48+k}, 24, v{52+k}')
        a(f'buffer_store_dword v{48+k}, v41, s[36:39], 0 offen offset:{k*1024}')
    a.label('K1_SCANDONE')
    a('s_waitcnt lgkmcnt(0)')
    a('s_barrier')
    a('s_mov_b64 exec, s[16:17]')
    a('s_cbranch_execz K1_NOEDGE2')
    for k in range(4):
        a(f'ds_read_b32 v{28+k}, v{20+k} offset:{K1_HIST}')
    for k in range(4):
        a(f's_waitcnt lgkmcnt({3 if k == 0 else 3})')
        a(f'v_add_lshl_u32 v{28+k}, v{28+k}, v{24+k}, 3')
        a(f'ds_write_b64 v{28+k}, v[{32+2*k}:{33+2*k}] offset:{K1_STAGE}')
    a.label('K1_NOEDGE2')
    a('s_mov_b64 exec, -1')
    a('v_lshlrev_b32 v2, 4, v0')
    a('v_add_u32 v3, %d, v2' % (RECB // 2))
    a('v_cmp_gt_u32 vcc, %d, v0' % (CH // 4))
    a('s_waitcnt lgkmcnt(0)')
    a('s_barrier')
    a('s_and_saveexec_b64 s[18:19], vcc')
    a('s_cbranch_execz K1_END')
    a('ds_read_b128 v[4:7], v2 offset:%d' % K1_STAGE)
    a('ds_read_b128 v[8:11], v2 offset:%d' % (K1_STAGE + RECB // 2))
    a('s_waitcnt lgkmcnt(1)')
    a('buffer_store_dwordx4 v[4:7], v2, s[32:35], 0 offen')
    a('s_waitcnt lgkmcnt(0)')
    a('buffer_store_dwordx4 v[8:11], v3, s[32:35], 0 offen')
    if opts.get('dbgtime'):
        a('s_waitcnt vmcnt(0)')
        a('s_memrealtime s[54:55]')
        a('s_waitcnt lgkmcnt(0)')
        a('v_mov_b32 v20, s54')
        a('v_mov_b32 v22, 0')
        a('s_mov_b64 exec, 1')
        a('global_atomic_umax v22, v20, s[52:53] offset:8')
    a('s_endpgm')
    a.label('K1_FRAG')
    a('s_cmp_ge_u32 s2, 32')
    a('s_cbranch_scc1 K1_END')
    a('s_load_dwordx4 s[12:15], s[0:1], 32')
    a('s_load_dwordx4 s[16:19], s[0:1], 56')
    a('s_lshr_b32 s20, s2, 3')
    a('s_waitcnt lgkmcnt(0)')
    a('s_mov_b32 s22, s14')
    a('s_mov_b32 s23, s15')
    a('s_cmp_eq_u32 s20, 1')
    a('s_cselect_b32 s22, s18, s22')
    a('s_cselect_b32 s23, s19, s23')
    a('s_cmp_eq_u32 s20, 2')
    a('s_cselect_b32 s22, s12, s22')
    a('s_cselect_b32 s23, s13, s23')
    a('s_cmp_eq_u32 s20, 3')
    a('s_cselect_b32 s22, s16, s22')
    a('s_cselect_b32 s23, s17, s23')
    srd(a, 24, 22, 64 * 64 * 2)
    srd_off(a, 28, 10, WS_FRAG, 32 * 1024)
    a('s_and_b32 s32, s2, 3')
    a('s_lshr_b32 s33, s2, 2')
    a('s_and_b32 s33, s33, 1')
    a('s_lshl_b32 s32, s32, 11')
    a('s_lshl_b32 s33, s33, 6')
    a('s_add_u32 s32, s32, s33')
    a('v_and_b32 v1, 63, v0')
    a('v_and_b32 v2, 31, v1')
    a('v_lshlrev_b32 v2, 1, v2')
    a('v_lshrrev_b32 v3, 5, v1')
    a('v_lshlrev_b32 v3, 10, v3')
    a('v_add3_u32 v2, v2, v3, s32')
    for i in range(8):
        a(f'buffer_load_ushort v{8+i}, v2, s[24:27], 0 offen offset:{i*128}')
    a('s_mov_b32 s34, 1.0')
    a('s_and_b32 s36, s20, 1')
    a('s_cmp_eq_u32 s36, 0')
    a('s_cselect_b32 s34, 0x%x, s34' % LOG2E)
    a('s_waitcnt vmcnt(0)')
    for i in range(8):
        a(f'v_lshlrev_b32 v{8+i}, 16, v{8+i}')
        a(f'v_mul_f32 v{8+i}, s34, v{8+i}')
    for i in range(4):
        a(f'v_cvt_pk_bf16_f32 v{16+i}, v{8+2*i}, v{9+2*i}')
    a('v_lshlrev_b32 v4, 4, v1')
    a('s_lshl_b32 s35, s2, 10')
    a('v_add_u32 v4, s35, v4')
    a('buffer_store_dwordx4 v[16:19], v4, s[28:31], 0 offen')
    a.label('K1_END')
    a('s_endpgm')

def gen_k2(a, opts):
    STAMP = opts.get('stamp', False)
    vLANE = 1; BC = 2
    WB = 4; WV = 36; AX = 68
    GA = 84; HA = 100; GB = 116; HB = 132
    PP = 148; TT_ = 156; ZZ = 164
    DEN = 172; NUM = 176
    AE = [180, 184]; BE = 188; R0 = 192
    QA = [196, 200]
    EN = 204; RA = 208; CO = 212
    pEN = 216; pEE = 217; pQI = 218; pQF = 219
    C4 = 220; SEL = [221, 222]; EE = 223; QF = 224
    F0 = 225; F1 = 226
    tA = 227; tB = 228; tC = 229; tD = 230; tE = 231; tF = 232; tG = 233; tH = 234; tI = 235
    TQ = 236; TR = 240
    sidA = 244; jA = 245; sidR = 246; iR4 = 247
    vST = 248; GF = 249; GD = 250
    nvgpr = 252
    REC = PP; RK = GB; SG = HB
    G_ = [GA, GB]; H_ = [HA, HB]
    nOFF0 = AE[0]+0 if False else QA[0]; nOFF1 = QA[0]+1; nEND0 = QA[0]+2; nEND1 = QA[0]+3; nROW0 = QA[1]
    S = Regs('s', 3, 102)
    sX = S.alloc('x', 2, 2); sWC = S.alloc('wc', 2, 2); sOUT = S.alloc('out', 2, 2); sWS = S.alloc('ws', 2, 2)
    rX = S.alloc('rX', 4, 4); rT = S.alloc('rT', 4, 4); rR = S.alloc('rR', 4, 4); rF = S.alloc('rF', 4, 4)
    sW = S.alloc('w'); sNS = S.alloc('ns'); sNN = S.alloc('nn')
    sP = S.alloc('pass'); sNP = S.alloc('npass')
    sL = S.alloc('L'); sCNT = S.alloc('cnt'); sREM = S.alloc('rem'); sMAXP = S.alloc('maxp')
    sC = S.alloc('C', 2, 2)
    sF = [S.alloc('F0', 2, 2), S.alloc('F1', 2, 2)]
    sANY = [S.alloc('any0'), S.alloc('any1')]
    s128 = S.alloc('c128'); sLO = S.alloc('lo16'); sHI = S.alloc('hi16')
    t0 = S.alloc('t0'); t1 = S.alloc('t1'); t2 = S.alloc('t2', 1, 2); t3 = S.alloc('t3')
    sSV = S.alloc('sv', 2, 2); sSV2 = S.alloc('sv2', 2, 2)
    sDB = S.alloc('dmabase'); sSWAP = S.alloc('swap')
    sDBG = S.alloc('dbg', 2, 2) if opts.get('dbgtime') else None
    MK = S.alloc('MK', 32, 2)
    rO = rT
    nsgpr = S.hi
    def stamp(i):
        if not STAMP: return
        a(f's_memtime s[{t2}:{t3}]')
        a('s_waitcnt lgkmcnt(0)')
        a(f'v_writelane_b32 v{vST}, s{t2}, {i}')
    XB = 4096

    a.raw('.p2align 8')
    a.raw('.globl gs_main_kernel')
    a.raw('.type gs_main_kernel,@function')
    a.label('gs_main_kernel')
    a('s_cmp_ge_u32 s2, 256')
    a('s_cbranch_scc1 K2_END')
    a(f's_load_dwordx2 s[{sWS}:{sWS+1}], s[0:1], 88')
    a(f's_load_dwordx2 s[{sX}:{sX+1}], s[0:1], 0')
    a(f's_load_dwordx2 s[{sWC}:{sWC+1}], s[0:1], 48')
    a(f's_load_dwordx2 s[{sOUT}:{sOUT+1}], s[0:1], 72')
    a('s_and_b32 s3, s2, 7')
    a('s_lshr_b32 s2, s2, 3')
    a('s_lshl_b32 s3, s3, 5')
    a('s_add_u32 s2, s2, s3')
    if opts.get('dbgtime'):
        a(f's_load_dwordx2 s[{sDBG}:{sDBG+1}], s[0:1], 80')
        a(f's_memrealtime s[{t2}:{t3}]')
        a('s_waitcnt lgkmcnt(0)')
        a(f's_sub_u32 s{sDBG}, s{sDBG}, 512')
        a(f's_subb_u32 s{sDBG+1}, s{sDBG+1}, 0')
        a(f'v_mov_b32 v20, s{t2}')
        a('v_not_b32 v21, v20')
        a('v_mov_b32 v22, 0')
        a('s_mov_b64 exec, 1')
        a(f'global_atomic_umax v22, v21, s[{sDBG}:{sDBG+1}] offset:16')
        a(f'global_atomic_umax v22, v20, s[{sDBG}:{sDBG+1}] offset:20')
        a('s_mov_b64 exec, -1')
    if STAMP:
        a(f'v_mov_b32 v{vST}, 0')
    stamp(0)
    if STAMP:
        a(f's_memrealtime s[{t2}:{t3}]')
        a('s_waitcnt lgkmcnt(0)')
        a(f'v_writelane_b32 v{vST}, s{t2}, 11')
    a(f'v_lshrrev_b32 v{tA}, 6, v0')
    a(f'v_and_b32 v{vLANE}, 63, v0')
    a(f'v_readfirstlane_b32 s{sW}, v{tA}')
    a(f'v_lshrrev_b32 v{sidA}, 5, v{vLANE}')
    a(f's_lshl_b32 s{t1}, s2, 10')
    a(f's_add_u32 s{t1}, s{t1}, {WS_TAB}')
    a(f's_lshl_b32 s{t0}, s{sW}, 1')
    a(f'v_add_u32 v{sidA}, s{t0}, v{sidA}')
    a(f'v_lshlrev_b32 v{tD}, 6, v{sidA}')
    a(f'v_lshlrev_b32 v{tA}, 4, v{vLANE}')
    a('s_waitcnt lgkmcnt(0)')
    srd_off(a, rT, sWS, f's{t1}', 1024)
    for i in range(4):
        a(f'buffer_load_dwordx4 v[{SG+4*i}:{SG+4*i+3}], v{tD}, s[{rT}:{rT+3}], 0 offen offset:{16*i}')
    a(f's_mul_i32 s{t0}, s2, 3125')
    a(f's_add_u32 s{sNS}, s{t0}, 31')
    a(f's_lshr_b32 s{sNS}, s{sNS}, 5')
    a(f's_add_u32 s{t0}, s{t0}, {3125+31}')
    a(f's_lshr_b32 s{t0}, s{t0}, 5')
    a(f's_sub_u32 s{sNN}, s{t0}, s{sNS}')
    a(f's_sub_u32 s{rX}, s{sX}, {XB}')
    a(f's_subb_u32 s{rX+1}, s{sX+1}, 0')
    a(f's_and_b32 s{rX+1}, s{rX+1}, 0xffff')
    a(f's_mov_b32 s{rX+2}, {N*128 + XB}')
    a(f's_mov_b32 s{rX+3}, 0x20000')
    srd_off(a, rF, sWS, WS_FRAG, 32 * 1024)
    a(f's_lshl_b32 s{sDB}, s{sW}, 12')
    a(f's_add_u32 s{sDB}, s{sDB}, {L_DMA}')
    a(f'v_bfe_u32 v{tE}, v{vLANE}, 4, 1')
    a(f'v_and_b32 v{tF}, 7, v{vLANE}')
    a(f'v_xor_b32 v{tE}, v{tE}, v{tF}')
    a(f'v_lshlrev_b32 v{tE}, 4, v{tE}')
    for i in range(4):
        if i: a(f'v_xor_b32 v{tF}, {32*i}, v{tE}')
        a(f'v_add_u32 v{CO+i}, {XB - 1024*i}, v{tF if i else tE}')
    a(f'v_bfe_u32 v{jA}, v{vLANE}, 3, 2')
    a(f'v_lshrrev_b32 v{tF}, 5, v{vLANE}')
    a(f'v_lshlrev_b32 v{tE}, 3, v{jA}')
    a(f'v_lshl_add_u32 v{tE}, v{tF}, 2, v{tE}')
    a(f's_lshr_b32 s{t0}, s{sW}, 1')
    a(f's_lshl_b32 s{t1}, s{t0}, 5')
    a(f's_add_u32 s{t1}, s{t1}, s{sNS}')
    a(f's_and_b32 s{t2}, s{sW}, 1')
    a(f's_lshl_b32 s{t2}, s{t2}, 1')
    a(f's_add_u32 s{t1}, s{t1}, s{t2}')
    a(f'v_add_u32 v{tE}, s{t1}, v{tE}')
    a(f'v_lshlrev_b32 v{tE}, 7, v{tE}')
    a(f's_cmp_eq_u32 s{t2}, 0')
    a(f's_cbranch_scc0 K2_XI2')
    a(f'v_add_u32 v{tH}, v{tE}, v{CO}')
    a(f'v_add_u32 v{tI}, v{tE}, v{CO+1}')
    a('s_branch K2_XI')
    a.label('K2_XI2')
    a(f'v_add_u32 v{tH}, v{tE}, v{CO+2}')
    a(f'v_add_u32 v{tI}, v{tE}, v{CO+3}')
    a(f'v_add_u32 v{tH}, 2048, v{tH}')
    a(f'v_add_u32 v{tI}, 2048, v{tI}')
    a.label('K2_XI')
    a(f'v_add_u32 v{tI}, 128, v{tI}')
    a(f'v_and_b32 v{C4}, 31, v{vLANE}')
    def staging():
        a(f's_lshr_b32 s{t0}, s{sW}, 1')
        a(f's_lshl_b32 s{t0}, s{t0}, 12')
        a(f's_and_b32 s{t2}, s{sW}, 1')
        a(f's_lshl_b32 s{t2}, s{t2}, 11')
        a(f's_add_u32 s{t0}, s{t0}, s{t2}')
        a(f's_add_u32 s{t0}, s{t0}, {L_DMA}')
        a(f's_mov_b32 m0, s{t0}')
        a(f'v_lshlrev_b32 v{tA}, 4, v{vLANE}')
        a(f'buffer_load_dwordx4 v{tH}, s[{rX}:{rX+3}], 0 offen lds')
        a(f'buffer_load_dwordx4 v{tI}, s[{rX}:{rX+3}], 0 offen offset:1024 lds')
        a(f's_lshl_b32 s{t0}, s{sW}, 11')
        a(f's_add_u32 s{t1}, s{t0}, {L_DMA + 4*4096}')
        a(f's_mov_b32 m0, s{t1}')
        a(f's_add_u32 s{t2}, s{t0}, {16*1024}')
        a(f'buffer_load_dwordx4 v{tA}, s[{rF}:{rF+3}], s{t2} offen lds')
        a(f'buffer_load_dwordx4 v{tA}, s[{rF}:{rF+3}], s{t2} offen offset:1024 lds')
        a(f's_add_u32 s{t1}, s{t0}, {L_WST}')
        a(f's_mov_b32 m0, s{t1}')
        a('s_nop 0')
        a(f'buffer_load_dwordx4 v{tA}, s[{rF}:{rF+3}], s{t0} offen lds')
        a(f'buffer_load_dwordx4 v{tA}, s[{rF}:{rF+3}], s{t0} offen offset:1024 lds')
        srd(a, rR, sWC, 128)
        a(f'v_lshlrev_b32 v{tE}, 1, v{C4}')
        a(f'buffer_load_ushort v{BC}, v{tE}, s[{rR}:{rR+3}], 0 offen')
        a(f'buffer_load_ushort v{BC+1}, v{tE}, s[{rR}:{rR+3}], 0 offen offset:64')
    staging()
    def lds_init():
        a(f'v_lshlrev_b32 v{tE}, 4, v0')
        for i in range(4):
            a(f'v_mov_b32 v{TR+i}, 0xffff')
        a(f'ds_write_b128 v{tE}, v[{TR}:{TR+3}] offset:{L_ENT}')
        a(f's_cmp_ge_u32 s{sW}, {(ENT_QUADS - 512) // 64}')
        a(f's_cbranch_scc1 K2_I1{tag_i[0]}')
        a(f'ds_write_b128 v{tE}, v[{TR}:{TR+3}] offset:{L_ENT + 512*16}')
        a.label(f'K2_I1{tag_i[0]}')
        assert (ENT_QUADS - 512) % 64 == 0
        for i in range(4):
            a(f'v_mov_b32 v{TR+i}, {L_VIRT}')
        a(f'v_cmp_gt_u32 vcc, {ENT_QUADS // 4}, v0')
        a(f's_and_saveexec_b64 s[{sSV}:{sSV+1}], vcc')
        a(f'ds_write_b128 v{tE}, v[{TR}:{TR+3}] offset:{L_QI}')
        a(f's_mov_b64 exec, s[{sSV}:{sSV+1}]')
        a(f's_cmp_lg_u32 s{sW}, 0')
        a(f's_cbranch_scc1 K2_I2{tag_i[0]}')
        for i in range(4):
            a(f'v_mov_b32 v{TR+i}, 0')
        a(f'ds_write_b128 v{tE}, v[{TR}:{TR+3}] offset:{L_CNT}')
        a(f'v_add_u32 v{tE}, {L_VIRT + 512}, v{tE}')
        a('s_mov_b64 exec, 0xff')
        a(f'ds_write_b128 v{tE}, v[{TR}:{TR+3}]')
        a('s_mov_b64 exec, -1')
        a.label(f'K2_I2{tag_i[0]}')
        tag_i[0] += 1
    tag_i = [0]
    lds_init()
    a(f'v_and_b32 v{tE}, 3, v{vLANE}')
    a(f'v_lshlrev_b32 v{iR4}, 2, v{tE}')
    a(f'v_lshl_add_u32 v{RA}, v{tE}, 3, v{jA}')
    a(f'v_lshrrev_b32 v{tF}, 1, v{jA}')
    a(f'v_lshl_add_u32 v{tE}, v{tE}, 1, v{tF}')
    a(f'v_bfe_u32 v{tF}, v{vLANE}, 2, 1')
    a(f's_lshl_b32 s{t0}, s{sW}, 1')
    a(f'v_add_u32 v{sidR}, s{t0}, v{tF}')
    a(f'v_lshl_add_u32 v{RA}, v{tF}, 2, v{RA}')
    a(f'v_lshrrev_b32 v{tG}, 5, v{vLANE}')
    a(f'v_cmp_eq_u32 vcc, v{tF}, v{tG}')
    a(f'v_xor_b32 v{tE}, v{tE}, v{tG}')
    a(f'v_lshlrev_b32 v{tE}, 4, v{tE}')
    a(f'v_lshl_add_u32 v{RA}, v{RA}, 7, v{tE}')
    a(f'v_mov_b32 v{tF}, 0x3f80')
    a(f'v_cndmask_b32 v{tF}, 0, v{tF}, vcc')
    for q in range(4):
        a(f'v_cmp_eq_u32 vcc, {q}, v{jA}')
        a('s_nop 1')
        a(f'v_cndmask_b32 v{AE[0]+q}, 0, v{tF}, vcc')
        a(f'v_lshlrev_b32 v{AE[1]+q}, 16, v{AE[0]+q}')
    a(f'v_cmp_gt_u32 vcc, 32, v{vLANE}')
    a(f'v_mov_b32 v{tE}, 0x0a0c0100')
    a(f'v_mov_b32 v{tF}, 0x07060100')
    a(f'v_cndmask_b32 v{SEL[0]}, v{tE}, v{tF}, vcc')
    a(f'v_mov_b32 v{tE}, 0x03020a0c')
    a(f'v_mov_b32 v{tF}, 0x03020706')
    a(f'v_cndmask_b32 v{SEL[1]}, v{tE}, v{tF}, vcc')
    a(f's_mov_b32 s{sC}, 0x{C_SCALE:x}')
    a(f's_mov_b32 s{sC+1}, 0x{C_SCALE:x}')
    a(f's_mov_b32 s{s128}, 128')
    a(f's_mov_b32 s{sLO}, 0xffff')
    a(f's_mov_b32 s{sHI}, 0xffff0000')
    a(f'v_lshlrev_b32 v{tB}, 3, v{C4}')
    a(f'v_lshlrev_b32 v{C4}, 2, v{C4}')
    a('s_waitcnt vmcnt(8)')
    stamp(1)
    srd(a, rR, sWS, NBK * RECB)
    def rec_loads(vk8):
        for it in range(NIT):
            a(f'v_mad_u32_u24 v{RK+it}, v{SG+it}, 8, v{vk8}')
        for it in range(NIT):
            a(f's_mov_b64 exec, s[{MK+2*it}:{MK+2*it+1}]')
            a(f'buffer_load_dwordx2 v[{REC+2*it}:{REC+2*it+1}], v{RK+it}, s[{rR}:{rR+3}], 0 offen')
        a('s_mov_b64 exec, -1')
    a(f'v_lshrrev_b32 v{tC}, 3, v{tB}')
    for it in range(NIT):
        a(f'v_cmp_gt_u32_sdwa s[{MK+2*it}:{MK+2*it+1}], v{SG+it}, v{tC} src0_sel:BYTE_3 src1_sel:DWORD')
    rec_loads(tB)
    a(f'v_max3_u32 v{tD}, v{SG}, v{SG+1}, v{SG+2}')
    for i in range(3, 15, 2):
        a(f'v_max3_u32 v{tD}, v{tD}, v{SG+i}, v{SG+i+1}')
    a(f'v_max_u32 v{tD}, v{tD}, v{SG+15}')
    a(f'v_lshrrev_b32 v{tD}, 24, v{tD}')
    a(f'v_cmp_lt_u32 s[{sSV2}:{sSV2+1}], 32, v{tD}')

    def gemm_issue():
        a(f's_lshr_b32 s{t0}, s{sW}, 1')
        a(f's_lshl_b32 s{t1}, s{t0}, 12')
        a(f's_add_u32 s{t1}, s{t1}, {L_DMA}')
        a(f'v_add_u32 v{tA}, s{t1}, v{RA}')
        a(f'v_xor_b32 v{tB}, 32, v{tA}')
        a(f'ds_read_b128 v[{AX}:{AX+3}], v{tA}')
        a(f'ds_read_b128 v[{AX+4}:{AX+7}], v{tB}')
        a(f'v_xor_b32 v{tB}, 64, v{tA}')
        a(f'v_xor_b32 v{tC}, 96, v{tA}')
        a(f'ds_read_b128 v[{AX+8}:{AX+11}], v{tB}')
        a(f'ds_read_b128 v[{AX+12}:{AX+15}], v{tC}')
        a(f's_and_b32 s{t2}, s{sW}, 1')
        a(f's_lshl_b32 s{t3}, s{t2}, 13')
        a(f's_add_u32 s{t3}, s{t3}, {L_DMA + 4*4096}')
        a(f'v_lshlrev_b32 v{GF}, 4, v{vLANE}')
        a(f'v_add_u32 v{GF}, s{t3}, v{GF}')
        for f in range(4):
            a(f'ds_read_b128 v[{SG+4*f}:{SG+4*f+3}], v{GF} offset:{f*1024}')
        a(f's_mul_i32 s{t1}, s{t0}, {32*ROWB}')
        a(f's_lshl_b32 s{t3}, s{t2}, 7')
        a(f's_add_u32 s{t1}, s{t1}, s{t3}')
        a(f's_add_u32 s{t1}, s{t1}, {L_ACC + 512}')
        a(f'v_lshrrev_b32 v{GD}, 5, v{vLANE}')
        a(f'v_mul_u32_u24 v{GD}, {4*ROWB}, v{GD}')
        a(f'v_add3_u32 v{GD}, v{GD}, v{C4}, s{t1}')
    def gemm_mid():
        a('s_waitcnt lgkmcnt(0)')
        for kp in range(4):
            c = '0' if kp == 0 else f'v[{GA}:{GA+15}]'
            a(f'v_mfma_f32_32x32x16_bf16 v[{GA}:{GA+15}], v[{AX+4*kp}:{AX+4*kp+3}], v[{SG+4*kp}:{SG+4*kp+3}], {c}')
        a('s_nop 3')
        for f in range(4):
            a(f'ds_read_b128 v[{SG+4*f}:{SG+4*f+3}], v{GF} offset:{(4+f)*1024}')
    def gemm_mid2():
        a('s_waitcnt lgkmcnt(0)')
        for kp in range(4):
            c = '0' if kp == 0 else f'v[{HA}:{HA+15}]'
            a(f'v_mfma_f32_32x32x16_bf16 v[{HA}:{HA+15}], v[{AX+4*kp}:{AX+4*kp+3}], v[{SG+4*kp}:{SG+4*kp+3}], {c}')
    def w_frags():
        a(f'v_lshlrev_b32 v{GF}, 4, v{vLANE}')
        a(f'v_add_u32 v{GF}, {L_WST}, v{GF}')
        for f in range(16):
            dst = (WB + 4*f) if f < 8 else (WV + 4*(f-8))
            a(f'ds_read_b128 v[{dst}:{dst+3}], v{GF} offset:{f*1024}')
    def gemm_store(tag):
        for i in range(16):
            a(f'v_cvt_pk_bf16_f32 v{GA+i}, v{GA+i}, v{HA+i}')
        a(f's_lshr_b32 s{t0}, s{sW}, 1')
        a(f's_cmp_eq_u32 s{t0}, 3')
        a(f's_cbranch_scc1 K2_RT3{tag}')
        for vv in range(16):
            a(f'ds_write_b32 v{GD}, v{GA+vv} offset:{(8*(vv//4) + vv%4) * ROWB}')
        a(f's_branch K2_RTD{tag}')
        a.label(f'K2_RT3{tag}')
        a('s_mov_b32 exec_hi, 0')
        for vv in range(2):
            a(f'ds_write_b32 v{GD}, v{GA+vv} offset:{vv * ROWB}')
        a('s_mov_b64 exec, -1')
        a.label(f'K2_RTD{tag}')
    def consts():
        a(f'v_add_u32 v{RA}, s{sDB}, v{RA}')
        for kp in range(1, 4):
            a(f'v_xor_b32 v{RA+kp}, {32*kp}, v{RA}')
        a(f's_mov_b32 s{t3}, 0x{LOG2E:x}')
        for cc in range(2):
            a(f'v_lshlrev_b32 v{BC+cc}, 16, v{BC+cc}')
            a(f'v_mul_f32 v{BC+cc}, s{t3}, v{BC+cc}')
        a(f'v_cvt_pk_bf16_f32 v{BC}, 0, v{BC}')
        a(f'v_cvt_pk_bf16_f32 v{BC+1}, v{BC+1}, 0')
        a(f'v_cmp_gt_u32 vcc, 32, v{vLANE}')
        a(f'v_mov_b32 v{tG}, 0xb2000000')
        a(f'v_mov_b32 v{tH}, 0xb200')
        a(f'v_cndmask_b32 v{BC}, v{tG}, v{BC}, vcc')
        a(f'v_cndmask_b32 v{BC+1}, v{tH}, v{BC+1}, vcc')

    def hist():
        a(f'v_mov_b32 v{tE}, 1')
        for it in range(NIT):
            a(f's_mov_b64 exec, s[{MK+2*it}:{MK+2*it+1}]')
            a(f'ds_add_rtn_u32 v{RK+it}, v{REC+2*it+1}, v{tE} offset:{L_CNT}')
        a('s_mov_b64 exec, -1')

    def scan_nodes(tag, mid=None):
        a(f'v_lshlrev_b32 v{tA}, 3, v{vLANE}')
        a(f'ds_read_b64 v[{TQ}:{TQ+1}], v{tA} offset:{L_CNT}')
        a(f'v_mul_u32_u24 v{nROW0}, {2*ROWB}, v{vLANE}')
        a(f'v_add_u32 v{nROW0}, {L_ACC}, v{nROW0}')
        if mid: mid()
        else: a('s_waitcnt lgkmcnt(0)')
        a(f'v_add_u32 v{tE}, 3, v{TQ}')
        a(f'v_add_u32 v{tF}, 3, v{TQ+1}')
        a(f'v_and_b32 v{tE}, -4, v{tE}')
        a(f'v_and_b32 v{tF}, -4, v{tF}')
        a(f'v_add_u32 v{tC}, v{tE}, v{tF}')
        a(f'v_max_u32 v{tB}, v{tE}, v{tF}')
        a(f'v_mov_b32 v{tD}, v{tC}')
        wave_scan(a, 'v_add_u32', tD)
        a(f'v_sub_u32 v{nOFF0}, v{tD}, v{tC}')
        a(f'v_readlane_b32 s{t1}, v{tD}, 63')
        a(f'v_add_u32 v{nOFF1}, v{nOFF0}, v{tE}')
        a(f'v_lshlrev_b32 v{TQ+2}, 2, v{nOFF0}')
        a(f'v_lshlrev_b32 v{TQ+3}, 2, v{nOFF1}')
        a(f'ds_write_b64 v{tA}, v[{TQ+2}:{TQ+3}] offset:{L_TAB}')
        a(f'v_mov_b32 v{nEND0}, v{nOFF1}')
        a(f'v_add_u32 v{nEND1}, v{nOFF1}, v{tF}')
        a(f's_add_u32 s{t1}, s{t1}, {4*NSTREAM-1}')
        a(f's_lshr_b32 s{sL}, s{t1}, 6')
        a(f's_add_u32 s{sCNT}, s{sL}, 3')
        a(f's_lshr_b32 s{sCNT}, s{sCNT}, 2')
        a(f's_sub_u32 s{sCNT}, s{sCNT}, 1')
        a(f's_sub_u32 s{sREM}, s{sL}, 1')
        a(f's_and_b32 s{sREM}, s{sREM}, 3')
        a(f's_add_u32 s{sREM}, s{sREM}, 1')
    def qi_fill(tag):
        a(f's_lshl_b32 s{t0}, s{sW}, 2')
        a(f'v_add_u32 v{tA}, s{t0}, v{nOFF0}')
        a(f'v_add_u32 v{tB}, s{t0}, v{nOFF1}')
        a(f'v_max_u32 v{TR}, v{tE}, v{tF}')
        a(f'v_add_u32 v{tC}, {ROWB}, v{nROW0}')
        a(f'v_or_b32 v{tD}, 0x80000000, v{nROW0}')
        a(f'v_or_b32 v{tG}, 0x80000000, v{tC}')
        lp = f'K2_QF{tag}'
        a.label(lp)
        a(f's_add_u32 s{t1}, s{t0}, 4')
        a(f'v_cmp_eq_u32 s[{sSV}:{sSV+1}], s{t1}, v{tE}')
        a(f'v_cmp_eq_u32 s[{sSV2}:{sSV2+1}], s{t1}, v{tF}')
        a(f'v_cmp_lt_u32 vcc, s{t0}, v{tE}')
        a(f'v_cndmask_b32 v{tH}, v{nROW0}, v{tD}, s[{sSV}:{sSV+1}]')
        a(f'v_cndmask_b32 v{tI}, v{tC}, v{tG}, s[{sSV2}:{sSV2+1}]')
        a(f'v_cmp_lt_u32 s[{sSV}:{sSV+1}], s{t0}, v{tF}')
        a('s_mov_b64 exec, vcc')
        a(f'ds_write_b32 v{tA}, v{tH} offset:{L_QI}')
        a(f's_mov_b64 exec, s[{sSV}:{sSV+1}]')
        a(f'ds_write_b32 v{tB}, v{tI} offset:{L_QI}')
        a('s_mov_b64 exec, -1')
        a(f's_add_u32 s{t0}, s{t0}, 32')
        a(f'v_add_u32 v{tA}, 32, v{tA}')
        a(f'v_add_u32 v{tB}, 32, v{tB}')
        a(f'v_cmp_lt_u32 vcc, s{t0}, v{TR}')
        a(f's_cbranch_vccnz {lp}')
    def scatter():
        a('s_waitcnt lgkmcnt(0)')
        for b0 in (0, 8):
            for it in range(b0, b0 + 8):
                a(f'ds_read_b32 v{AX+it}, v{REC+2*it+1} offset:{L_TAB}')
            for it in range(b0, b0 + 8):
                a(f's_mov_b64 exec, s[{MK+2*it}:{MK+2*it+1}]')
                a(f's_waitcnt lgkmcnt({7 - (it-b0) + (it-b0)})')
                a(f'v_lshl_add_u32 v{AX+it}, v{RK+it}, 2, v{AX+it}')
                a(f'ds_write_b32 v{AX+it}, v{REC+2*it} offset:{L_ENT}')
            a('s_mov_b64 exec, -1')

    def setup_ptrs():
        a(f'v_mad_u32_u24 v{tA}, v{sidA}, s{sL}, v{jA}')
        a(f'v_lshlrev_b32 v{pEN}, 4, v{tA}')
        a(f'ds_read_b128 v[{EN}:{EN+3}], v{pEN} offset:{L_ENT}')
        a(f'v_lshlrev_b32 v{pQF}, 2, v{tA}')
        a(f'v_mul_u32_u24 v{pQI}, s{sL}, v{sidA}')
        a(f'v_lshlrev_b32 v{pQI}, 2, v{pQI}')
        a(f'v_add_u32 v{pQI}, {L_QI}, v{pQI}')
        a(f'v_mad_u32_u24 v{tA}, v{sidR}, s{sL}, v{jA}')
        a(f'v_lshl_add_u32 v{pEE}, v{tA}, 4, v{iR4}')
        a(f's_mov_b32 m0, s{sDB}')

    def dma_addr():
        return [f'v_mad_u32_u16 v{EN+i}, v{EN+i}, s{s128}, v{CO+i}' for i in range(4)]
    def dma_issue():
        if opts.get('nodma'): return []
        return [f'buffer_load_dwordx4 v{EN+i}, s[{rX}:{rX+3}], 0 offen offset:{1024*i} lds' if i else
                f'buffer_load_dwordx4 v{EN}, s[{rX}:{rX+3}], 0 offen lds' for i in range(4)]

    def main_loop(tag, atomic):
        flush_blocks = []
        def post(cc, par, nq_check):
            done = a.newlabel('pdone') if nq_check else None
            for j in range(4):
                if nq_check and j > 0:
                    a(f's_cmp_le_u32 s{sREM}, {j}')
                    a(f's_cbranch_scc1 {done}')
                p = PP + 2*j; t = TT_ + 2*j; z = ZZ + 2*j
                a(f'v_pk_fma_f32 v[{NUM+2*cc}:{NUM+2*cc+1}], v[{p}:{p+1}], v[{t}:{t+1}], v[{NUM+2*cc}:{NUM+2*cc+1}]')
                a(f'v_pk_fma_f32 v[{DEN+2*cc}:{DEN+2*cc+1}], v[{p}:{p+1}], v[{z}:{z+1}], v[{DEN+2*cc}:{DEN+2*cc+1}]')
                if opts.get('noflush'): continue
                fl = a.newlabel('fl'); back = a.newlabel('bk')
                a(f's_bitcmp1_b32 s{sANY[par]}, {8*j}')
                a(f's_cbranch_scc1 {fl}')
                a.label(back)
                flush_blocks.append((fl, back, cc, par, j))
            if nq_check: a.label(done)
        def pre(cur):
            g0 = G_[cur]; h0 = H_[cur]
            for j in range(4):
                g = g0 + 4*j
                a(f'v_pk_fma_f32 v[{g}:{g+1}], v[{g}:{g+1}], s[{sC}:{sC+1}], s[{sC}:{sC+1}] clamp')
                a(f'v_pk_fma_f32 v[{g+2}:{g+3}], v[{g+2}:{g+3}], s[{sC}:{sC+1}], s[{sC}:{sC+1}] clamp')
            for j in range(4):
                g = g0 + 4*j; h = h0 + 4*j
                X = f'v[{g}:{g+1}]'; Y = f'v[{g+2}:{g+3}]'
                p = PP + 2*j; t = TT_ + 2*j; z = ZZ + 2*j
                a(f'v_pk_mul_f32 v[{t}:{t+1}], {Y}, v[{h}:{h+1}]')
                a(f'v_pk_mul_f32 v[{p}:{p+1}], {X}, {Y}')
                a(f'v_pk_add_f32 v[{z}:{z+1}], {X}, {Y}')
                a(f'v_pk_fma_f32 v[{t}:{t+1}], {X}, v[{h+2}:{h+3}], v[{t}:{t+1}]')
        def mfma_list(nxt, cc):
            Gs = f'v[{G_[nxt]}:{G_[nxt]+15}]'; Hs = f'v[{H_[nxt]}:{H_[nxt]+15}]'
            out = []
            for kp in range(4):
                wb = WB + 16*cc + 4*kp; wv = WV + 16*cc + 4*kp; ax = AX + 4*kp
                out.append(f'v_mfma_f32_32x32x16_bf16 {Hs}, v[{ax}:{ax+3}], v[{wv}:{wv+3}], {"0" if kp == 0 else Hs}')
                out.append(f'v_mfma_f32_32x32x16_bf16 {Gs}, v[{ax}:{ax+3}], v[{wb}:{wb+3}], {"0" if kp == 0 else Gs}')
            out.append(f'v_mfma_f32_32x32x16_bf16 {Gs}, v[{AE[cc]}:{AE[cc]+3}], v[{BE}:{BE+3}], {Gs}')
            return out
        def trans_list(cur):
            return [f'v_rcp_f32 v{PP+i}, v{PP+i}' for i in range(8)] + [f'v_exp_f32 v{G_[cur]+i}, v{G_[cur]+i}' for i in range(16)]
        def weave(mf, tr, gaps):
            dist = [3, 3, 3, 3, 3, 3, 2, 2, 2]
            if opts.get('nogaps'): gaps = {}
            def keep(ins):
                if opts.get('nods') and ins.startswith('ds_'): return False
                if opts.get('novalu') and ins.startswith('v_'): return False
                if opts.get('nowait') and ins.startswith('s_waitcnt'): return False
                if opts.get('novm') and ins.startswith('buffer_'): return False
                return True
            gaps = {k_: [i_ for i_ in v_ if keep(i_)] for k_, v_ in gaps.items()}
            if opts.get('nomf'): mf = None
            k = 0
            for m in range(9):
                for ins in gaps.get(('m', m), []): a(ins)
                if mf: a(mf[m])
                for _ in range(dist[m]):
                    a(tr[k])
                    for ins in gaps.get(k, []): a(ins)
                    k += 1
            assert k == len(tr)
        def stage0(par):
            g = {}
            da = dma_addr()
            g[0] = [f'ds_read_b32 v{QF}, v{pQF} offset:{L_QI + 16*(par+1)}']
            g[1] = [f'ds_read_b32 v{EE}, v{pEE} offset:{L_ENT + 64*(par+1)}']
            g[3] = [f'v_and_or_b32 v{BE}, v{R0}, s{sHI}, v{BC+1}']
            g[6] = [da[0]]; g[9] = [da[1]]; g[12] = [da[2]]; g[15] = [da[3]]
            weave(mfma_list(1, 1), trans_list(0), g)
            post(1, par ^ 1, False)
            qn = QA[par ^ 1]
            if not opts.get('nogaps') and not opts.get('nopds'):
                a(f'ds_read2_b32 v[{qn}:{qn+1}], v{pQI} offset0:{4*(par+1)} offset1:{4*(par+1)+1}')
                a(f'ds_read2_b32 v[{qn+2}:{qn+3}], v{pQI} offset0:{4*(par+1)+2} offset1:{4*(par+1)+3}')
                a('s_waitcnt vmcnt(0)')
                for kp in range(4):
                    a(f'ds_read_b128 v[{AX+4*kp}:{AX+4*kp+3}], v{RA+kp}')
            pre(0)
            a(f's_sub_u32 s{sCNT}, s{sCNT}, 1')
        def stage1(par):
            qn = QA[par ^ 1]
            g = {}
            di = dma_issue()
            g[('m', 0)] = ['s_waitcnt lgkmcnt(0)']
            g[0] = [f'v_mad_u32_u24 v{qn}, v{qn}, 1, v{C4}'] + di[0:1]
            g[1] = [f'v_mad_u32_u24 v{qn+1}, v{qn+1}, 1, v{C4}'] + di[1:2]
            g[2] = [f'ds_read_b32 v{R0}, v{qn} offset:512'] + di[2:3]
            g[3] = [f'v_mad_u32_u24 v{qn+2}, v{qn+2}, 1, v{C4}', f'ds_read_b32 v{BE+1}, v{qn+1} offset:512'] + di[3:4]
            g[4] = [f'v_mad_u32_u24 v{qn+3}, v{qn+3}, 1, v{C4}', f'ds_read_b32 v{BE+2}, v{qn+2} offset:512']
            g[5] = [f'ds_read_b32 v{BE+3}, v{qn+3} offset:512']
            g[6] = [f'ds_read_b128 v[{EN}:{EN+3}], v{pEN} offset:{L_ENT + 64*(par+3)}']
            g[7] = [f'v_perm_b32 v{AE[0]}, v{EE}, v{AE[0]}, v{SEL[0]}']
            g[9] = [f'v_perm_b32 v{AE[1]}, v{EE}, v{AE[1]}, v{SEL[1]}']
            g[11] = [f'v_cmp_gt_i32 s[{sF[par^1]}:{sF[par^1]+1}], 0, v{QF}']
            if par == 1:
                g[13] = [f'v_add_u32 v{pQI}, 32, v{pQI}']
                g[14] = [f'v_add_u32 v{pQF}, 32, v{pQF}']
                g[15] = [f'v_add_u32 v{pEE}, 128, v{pEE}']
                g[16] = [f'v_add_u32 v{pEN}, 128, v{pEN}']
            g[17] = [f's_or_b32 s{sANY[par^1]}, s{sF[par^1]}, s{sF[par^1]+1}'] if not opts.get('noany') else [f's_mov_b32 s{sANY[par^1]}, 0']
            g[19] = ['s_waitcnt lgkmcnt(0)', f'v_and_or_b32 v{BE}, v{R0}, s{sLO}, v{BC}']
            weave(mfma_list(0, 0), trans_list(1), g)
            post(0, par, False)
            pre(1)
        def last_stage1(par):
            weave(None, trans_list(1), {})
            post(0, par, True)
            pre(1)
            for i in range(8):
                a(f'v_rcp_f32 v{PP+i}, v{PP+i}')
            a('s_nop 0')
            post(1, par, True)
        L0 = f'K2_T0{tag}'; E0 = f'K2_E0{tag}'; E1 = f'K2_E1{tag}'; DONE = f'K2_MD{tag}'
        PR = opts.get('prio', 1)
        if PR:
            a(f's_add_u32 s{t0}, s{sCNT}, 1')
            a(f's_lshr_b32 s{t0}, s{t0}, {2 if PR == 1 else 1}')
            if PR == 3: a(f's_lshr_b32 s{t0}, s{t0}, 0')
            a(f's_lshl_b32 s{t0}, s{t0}, 1')
            a(f's_sub_u32 s{sSWAP}, s{sCNT}, s{t0}')
            a(f's_cmp_ge_u32 s{sW}, 4')
            a(f's_cbranch_scc0 K2_PR0{tag}')
            a('s_setprio 1')
            a.label(f'K2_PR0{tag}')
        a.label(L0)
        if PR:
            a(f's_cmp_eq_u32 s{sCNT}, s{sSWAP}')
            a(f's_cbranch_scc1 K2_SWP{tag}')
            a.label(f'K2_SWB{tag}')
        stage0(0)
        a(f's_cbranch_scc1 {E0}')
        stage1(0)
        stage0(1)
        a(f's_cbranch_scc1 {E1}')
        stage1(1)
        a(f's_branch {L0}')
        a.label(E0)
        last_stage1(0)
        a(f's_branch {DONE}')
        a.label(E1)
        last_stage1(1)
        a(f's_branch {DONE}')
        if PR:
            a.label(f'K2_SWP{tag}')
            a(f's_cmp_ge_u32 s{sW}, 4')
            a(f's_cbranch_scc1 K2_SW0{tag}')
            a('s_setprio 1')
            a(f's_branch K2_SWB{tag}')
            a.label(f'K2_SW0{tag}')
            a('s_setprio 0')
            a(f's_branch K2_SWB{tag}')
        for (fl, back, cc, par, j) in flush_blocks:
            a.label(fl)
            a(f's_bfe_i32 exec_lo, s{sF[par]}, 0x{(1<<16)|(8*j):x}')
            a(f's_bfe_i32 exec_hi, s{sF[par]+1}, 0x{(1<<16)|(8*j):x}')
            a(f'v_add_f32 v{F0}, v{DEN+2*cc}, v{DEN+2*cc+1}')
            a(f'v_add_f32 v{F1}, v{NUM+2*cc}, v{NUM+2*cc+1}')
            a(f'v_mov_b64 v[{DEN+2*cc}:{DEN+2*cc+1}], 0')
            a(f'v_mov_b64 v[{NUM+2*cc}:{NUM+2*cc+1}], 0')
            if atomic:
                a(f'ds_add_f32 v{QA[par]+j}, v{F0} offset:{cc*128}')
                a(f'ds_add_f32 v{QA[par]+j}, v{F1} offset:{256+cc*128}')
            else:
                a(f'ds_write2_b32 v{QA[par]+j}, v{F0}, v{F1} offset0:{cc*32} offset1:{64+cc*32}')
            a('s_mov_b64 exec, -1')
            a(f's_branch {back}')
        a.label(DONE)
        if PR: a('s_setprio 0')

    def pipeline_fill():
        q0 = QA[0]
        a(f'ds_read2_b32 v[{q0}:{q0+1}], v{pQI} offset0:0 offset1:1')
        a(f'ds_read2_b32 v[{q0+2}:{q0+3}], v{pQI} offset0:2 offset1:3')
        a(f'ds_read_b32 v{QF}, v{pQF} offset:{L_QI}')
        a(f'ds_read_b32 v{EE}, v{pEE} offset:{L_ENT}')
        a(f'ds_read_b128 v[{EN}:{EN+3}], v{pEN} offset:{L_ENT + 64}')
        for i in range(2):
            a(f'v_mov_b64 v[{DEN+2*i}:{DEN+2*i+1}], 0')
            a(f'v_mov_b64 v[{NUM+2*i}:{NUM+2*i+1}], 0')
        for i in range(8):
            a(f'v_mov_b32 v{PP+i}, 1.0')
        for i in range(4):
            a(f'v_mov_b64 v[{TT_+2*i}:{TT_+2*i+1}], 0')
            a(f'v_mov_b64 v[{ZZ+2*i}:{ZZ+2*i+1}], 0')
        a(f's_mov_b32 s{sANY[1]}, 0')
        a('s_waitcnt lgkmcnt(0)')
        for q in range(4):
            a(f'v_mad_u32_u24 v{q0+q}, v{q0+q}, 1, v{C4}')
        a(f'ds_read_b32 v{R0}, v{q0} offset:512')
        for q in range(1, 4):
            a(f'ds_read_b32 v{BE+q}, v{q0+q} offset:512')
        a(f'v_perm_b32 v{AE[0]}, v{EE}, v{AE[0]}, v{SEL[0]}')
        a(f'v_perm_b32 v{AE[1]}, v{EE}, v{AE[1]}, v{SEL[1]}')
        a(f'v_cmp_gt_i32 s[{sF[0]}:{sF[0]+1}], 0, v{QF}')
        for ins in dma_addr(): a(ins)
        a('s_waitcnt vmcnt(0)')
        for kp in range(4):
            a(f'ds_read_b128 v[{AX+4*kp}:{AX+4*kp+3}], v{RA+kp}')
        a(f's_or_b32 s{sANY[0]}, s{sF[0]}, s{sF[0]+1}')
        a('s_waitcnt lgkmcnt(0)')
        a(f'v_and_or_b32 v{BE}, v{R0}, s{sLO}, v{BC}')
        for ins in dma_issue(): a(ins)
        a(f'ds_read_b128 v[{EN}:{EN+3}], v{pEN} offset:{L_ENT + 128}')
        Gs = f'v[{GA}:{GA+15}]'; Hs = f'v[{HA}:{HA+15}]'
        for kp in range(4):
            a(f'v_mfma_f32_32x32x16_bf16 {Hs}, v[{AX+4*kp}:{AX+4*kp+3}], v[{WV+4*kp}:{WV+4*kp+3}], {"0" if kp == 0 else Hs}')
            a(f'v_mfma_f32_32x32x16_bf16 {Gs}, v[{AX+4*kp}:{AX+4*kp+3}], v[{WB+4*kp}:{WB+4*kp+3}], {"0" if kp == 0 else Gs}')
        a(f'v_mfma_f32_32x32x16_bf16 {Gs}, v[{AE[0]}:{AE[0]+3}], v[{BE}:{BE+3}], {Gs}')
        a('s_waitcnt lgkmcnt(0)')
        a('s_nop 7')
        a('s_nop 3')
    def forced_flags():
        a(f's_sub_u32 s{t1}, s{sL}, 1')
        a(f's_lshl_b32 s{t1}, s{t1}, 2')
        a(f'v_add_u32 v{tB}, s{t1}, v{pQI}')
        a(f'v_mov_b32 v{tA}, 0x80000000')
        a('s_mov_b32 exec_lo, 1')
        a('s_mov_b32 exec_hi, 1')
        a(f'ds_or_b32 v{tB}, v{tA}')
        a('s_mov_b64 exec, -1')

    a('s_waitcnt vmcnt(16) lgkmcnt(0)')
    a('s_barrier')
    stamp(2)
    a(f's_mov_b64 exec, s[{sSV2}:{sSV2+1}]')
    a(f'v_mov_b32 v{tD}, {L_CNT + 127*4}')
    a(f'v_mov_b32 v{tE}, 1')
    a(f'ds_write_b32 v{tD}, v{tE}')
    a('s_mov_b64 exec, -1')
    gemm_issue()
    gemm_mid()
    gemm_mid2()
    w_frags()
    consts()
    gemm_store('F')
    stamp(3)
    a('s_waitcnt vmcnt(0)')
    hist()
    a('s_waitcnt lgkmcnt(0)')
    a('s_barrier')
    stamp(4)
    scan_nodes('F')
    a(f'v_readlane_b32 s{t0}, v{TQ+1}, 63')
    a(f's_lshl_b32 s{t1}, s{sL}, 2')
    a(f'v_cmp_lt_u32 vcc, s{t1}, v{tB}')
    a(f's_cmp_lg_u32 s{t0}, 0')
    a('s_cbranch_scc1 K2_SLOW')
    a(f's_cmp_gt_u32 s{sL}, {(ENT_QUADS - 8) // NSTREAM}')
    a('s_cbranch_scc1 K2_SLOW')
    a('s_cbranch_vccnz K2_SLOW')
    a(f'v_mov_b32 v{tA}, {L_ZERO}')
    a(f'v_cmp_gt_u32 vcc, {MAXN // 2}, v{vLANE}')
    a(f'v_lshl_or_b32 v{tB}, v{vLANE}, 1, 1')
    a(f'v_cmp_le_u32 s[{sSV}:{sSV+1}], s{sNN}, v{tB}')
    a(f'v_mov_b32 v{tC}, 1')
    a('s_nop 0')
    a(f'v_cndmask_b32 v{tB}, v{TQ+1}, v{tC}, s[{sSV}:{sSV+1}]')
    a(f'v_min_u32 v{tB}, v{TQ}, v{tB}')
    a(f'v_cmp_eq_u32 s[{sSV}:{sSV+1}], 0, v{tB}')
    a('s_mov_b64 exec, vcc')
    a(f'ds_write_b32 v{nROW0}, v{tA} offset:768')
    a(f'ds_write_b32 v{nROW0}, v{tA} offset:{768 + ROWB}')
    a('s_mov_b64 exec, -1')
    a(f's_and_b64 s[{sSV}:{sSV+1}], s[{sSV}:{sSV+1}], vcc')
    a('s_cbranch_scc1 K2_ZROWS')
    a.label('K2_ZBACK')
    qi_fill('F')
    scatter()
    a('s_waitcnt lgkmcnt(0)')
    a('s_barrier')
    stamp(5)
    a(f's_cmp_eq_u32 s{sL}, 0')
    a('s_cbranch_scc1 K2_EPI')
    setup_ptrs()
    a('s_waitcnt lgkmcnt(0)')
    for ins in dma_addr(): a(ins)
    for ins in dma_issue(): a(ins)
    a(f'v_add_u32 v{tI}, {ROWB}, v{nROW0}')
    for hs in range(2):
        lab = f'K2_NC{hs}'
        a(f's_lshl_b32 s{t0}, s{sW}, 1')
        if hs: a(f's_add_u32 s{t0}, s{t0}, 1')
        a(f's_mul_i32 s{t1}, s{t0}, s{sL}')
        a(f's_lshl_b32 s{t1}, s{t1}, 2')
        a(f'v_cmp_gt_u32 vcc, s{t1}, v{nOFF0}')
        a(f'v_cmp_lt_u32 s[{sSV}:{sSV+1}], s{t1}, v{nEND0}')
        a(f's_and_b64 s[{sSV}:{sSV+1}], s[{sSV}:{sSV+1}], vcc')
        a(f'v_cmp_gt_u32 vcc, s{t1}, v{nOFF1}')
        a(f'v_cmp_lt_u32 s[{sSV2}:{sSV2+1}], s{t1}, v{nEND1}')
        a(f's_and_b64 vcc, vcc, s[{sSV2}:{sSV2+1}]')
        a(f'v_cndmask_b32 v{tA}, v{tI}, v{nROW0}, s[{sSV}:{sSV+1}]')
        a(f'v_cndmask_b32 v{tB}, v{nEND1}, v{nEND0}, s[{sSV}:{sSV+1}]')
        a(f's_or_b64 vcc, vcc, s[{sSV}:{sSV+1}]')
        a(f's_cbranch_scc0 {lab}')
        a(f's_ff1_i32_b64 s{t2}, vcc')
        a(f's_mul_i32 s{t0}, s{t0}, {VROWB}')
        a(f's_add_u32 s{t0}, s{t0}, {L_VIRT}')
        a(f'v_readlane_b32 s{t3}, v{tA}, s{t2}')
        a(f'v_readlane_b32 s{t2}, v{tB}, s{t2}')
        a(f'v_lshl_add_u32 v{tC}, v{vLANE}, 2, s{t1}')
        a(f'v_lshl_add_u32 v{tD}, v{vLANE}, 2, s{t3}')
        a(f's_mov_b32 exec_hi, 0')
        a(f'ds_read_b32 v{tE}, v{tD} offset:512')
        a('s_mov_b64 exec, -1')
        a(f'v_add_u32 v{tF}, 4, v{tC}')
        a(f'v_cmp_eq_u32 s[{sSV}:{sSV+1}], s{t2}, v{tF}')
        a(f'v_cmp_gt_u32 vcc, s{t2}, v{tC}')
        a(f'v_mov_b32 v{tF}, s{t0}')
        a(f'v_or_b32 v{tG}, 0x80000000, v{tF}')
        a(f'v_cndmask_b32 v{tG}, v{tF}, v{tG}, s[{sSV}:{sSV+1}]')
        a('s_mov_b64 exec, vcc')
        a(f'ds_write_b32 v{tC}, v{tG} offset:{L_QI}')
        a('s_mov_b32 exec_lo, -1')
        a('s_mov_b32 exec_hi, 0')
        a(f'v_lshl_add_u32 v{tD}, v{vLANE}, 2, v{tF}')
        a(f'v_mov_b32 v{tC}, s{t3}')
        a('s_waitcnt lgkmcnt(1)')
        a(f'ds_write_b32 v{tD}, v{tE} offset:512')
        a(f'ds_write_b32 v{tC}, v{tF} offset:768')
        a('s_mov_b64 exec, -1')
        a.label(lab)
    forced_flags()
    pipeline_fill()
    stamp(6)
    if opts.get('dbgtime'):
        a(f's_memrealtime s[{t2}:{t3}]')
        a('s_waitcnt lgkmcnt(0)')
        a(f'v_mov_b32 v{vST}, s{t2}')
        a(f'v_mov_b32 v{GF}, 0')
        a('s_mov_b64 exec, 1')
        a(f'global_atomic_umax v{GF}, v{vST}, s[{sDBG}:{sDBG+1}] offset:24')
        a('s_mov_b64 exec, -1')
    if STAMP:
        a(f's_memrealtime s[{t2}:{t3}]')
        a('s_waitcnt lgkmcnt(0)')
        a(f'v_writelane_b32 v{vST}, s{t2}, 13')
    if opts.get('half'):
        a(f's_cmp_ge_u32 s{sW}, 4')
        a('s_cbranch_scc1 K2_MDF')
    main_loop('F', False)
    stamp(7)
    if opts.get('dbgtime'):
        a(f's_memrealtime s[{t2}:{t3}]')
        a('s_waitcnt lgkmcnt(0)')
        a(f'v_mov_b32 v{vST}, s{t2}')
        a(f'v_mov_b32 v{GF}, 0')
        a('s_mov_b64 exec, 1')
        a(f'global_atomic_umax v{GF}, v{vST}, s[{sDBG}:{sDBG+1}] offset:28')
        a('s_mov_b64 exec, -1')
    if STAMP:
        a(f's_memrealtime s[{t2}:{t3}]')
        a('s_waitcnt lgkmcnt(0)')
        a(f'v_writelane_b32 v{vST}, s{t2}, 14')
    a.label('K2_EPI')
    e0 = 4
    XV = [e0, e0 + 4]; DN = e0 + 8; NM = e0 + 16; UU = e0 + 24; CD = e0 + 28; CN = e0 + 36; O = e0 + 44
    AD = e0 + 48; GO = [e0 + 49, e0 + 50]; T1 = e0 + 51; T2 = e0 + 52; CP = e0 + 53; ND = e0 + 54; OC = [e0 + 55, e0 + 56]; ADR = [e0 + 48, e0 + 57]
    def epi_addr(r):
        a(f'v_add_u32 v{T1}, {512*r}, v0') if r else a(f'v_mov_b32 v{T1}, v0')
        a(f'v_lshrrev_b32 v{ND}, 3, v{T1}')
        a(f'v_and_b32 v{T1}, 7, v{T1}')
        a(f'v_lshlrev_b32 v{OC[r]}, 4, v{T1}')
        a(f'v_mad_u32_u24 v{ADR[r]}, v{ND}, s{t0}, v{OC[r]}')
        a(f'v_add_u32 v{ADR[r]}, {L_ACC}, v{ADR[r]}')
        a(f'v_add_u32 v{GO[r]}, s{sNS}, v{ND}')
        a(f'v_lshlrev_b32 v{GO[r]}, 7, v{GO[r]}')
        a(f'v_lshl_add_u32 v{GO[r]}, v{T1}, 3, v{GO[r]}')
    def epi_body(r, carry):
        ad = ADR[r]; xv = XV[r]
        if carry:
            a(f'v_sub_u32 v{T2}, v{ad}, v{OC[r]}')
            a(f'ds_read_b32 v{CP}, v{T2} offset:768')
        a(f'ds_read_b128 v[{DN}:{DN+3}], v{ad}')
        a(f'ds_read_b128 v[{DN+4}:{DN+7}], v{ad} offset:128')
        a(f'ds_read_b128 v[{NM}:{NM+3}], v{ad} offset:256')
        a(f'ds_read_b128 v[{NM+4}:{NM+7}], v{ad} offset:384')
        a(f'ds_read_b128 v[{UU}:{UU+3}], v{ad} offset:640')
        if carry:
            a('s_waitcnt lgkmcnt(5)')
            a(f'v_add_u32 v{T2}, v{CP}, v{OC[r]}')
            a(f'ds_read_b128 v[{CD}:{CD+3}], v{T2}')
            a(f'ds_read_b128 v[{CD+4}:{CD+7}], v{T2} offset:128')
            a(f'ds_read_b128 v[{CN}:{CN+3}], v{T2} offset:256')
            a(f'ds_read_b128 v[{CN+4}:{CN+7}], v{T2} offset:384')
        a('s_waitcnt lgkmcnt(0)')
        if carry:
            for i in range(0, 8, 2):
                a(f'v_pk_add_f32 v[{DN+i}:{DN+i+1}], v[{DN+i}:{DN+i+1}], v[{CD+i}:{CD+i+1}]')
                a(f'v_pk_add_f32 v[{NM+i}:{NM+i+1}], v[{NM+i}:{NM+i+1}], v[{CN+i}:{CN+i+1}]')
        for i in range(0, 8, 2):
            a(f'v_pk_add_f32 v[{DN+i}:{DN+i+1}], v[{DN+i}:{DN+i+1}], s[{sC}:{sC+1}]')
        for i in range(8):
            a(f'v_rcp_f32 v{DN+i}, v{DN+i}')
        for i in range(4):
            a(f'v_lshlrev_b32 v{CD+i}, 16, v{UU+i}')
            a(f'v_and_b32 v{CD+4+i}, s{sHI}, v{UU+i}')
        for i in range(0, 8, 2):
            a(f'v_pk_fma_f32 v[{NM+i}:{NM+i+1}], v[{NM+i}:{NM+i+1}], v[{DN+i}:{DN+i+1}], v[{CD+i}:{CD+i+1}]')
        a(f's_waitcnt vmcnt({2 if r == 0 else 0})') if True else None
        for i in range(8):
            a(f'v_max_f32 v{NM+i}, 0, v{NM+i}')
        for i in range(4):
            a(f'v_lshlrev_b32 v{CD+2*i}, 16, v{xv+i}')
            a(f'v_and_b32 v{CD+2*i+1}, s{sHI}, v{xv+i}')
        for i in range(0, 8, 2):
            a(f'v_pk_add_f32 v[{NM+i}:{NM+i+1}], v[{NM+i}:{NM+i+1}], v[{CD+i}:{CD+i+1}]')
        for i in range(4):
            a(f'v_cvt_pk_bf16_f32 v{O+i}, v{NM+2*i}, v{NM+2*i+1}')
        a(f'buffer_store_dwordx2 v[{O}:{O+1}], v{GO[r]}, s[{rO}:{rO+3}], 0 offen')
        a(f'buffer_store_dwordx2 v[{O+2}:{O+3}], v{GO[r]}, s[{rO}:{rO+3}], 0 offen offset:64')
    def epilogue(tag, carry):
        srd(a, rO, sOUT, N * 128)
        srd(a, rF, sX, N * 128)
        a(f's_mov_b32 s{t0}, {ROWB}')
        a(f's_mov_b32 s{sC}, 0x{EPS_SCALED:x}')
        a(f's_mov_b32 s{sC+1}, 0x{EPS_SCALED:x}')
        a(f's_mov_b32 s{sHI}, 0xffff0000')
        a('s_waitcnt vmcnt(0)')
        epi_addr(0)
        a(f'buffer_load_dwordx2 v[{XV[0]}:{XV[0]+1}], v{GO[0]}, s[{rF}:{rF+3}], 0 offen')
        a(f'buffer_load_dwordx2 v[{XV[0]+2}:{XV[0]+3}], v{GO[0]}, s[{rF}:{rF+3}], 0 offen offset:64')
        epi_addr(1)
        a(f'v_cmp_gt_u32 s[{sSV}:{sSV+1}], s{sNN}, v{ND}')
        a(f'buffer_load_dwordx2 v[{XV[1]}:{XV[1]+1}], v{GO[1]}, s[{rF}:{rF+3}], 0 offen')
        a(f'buffer_load_dwordx2 v[{XV[1]+2}:{XV[1]+3}], v{GO[1]}, s[{rF}:{rF+3}], 0 offen offset:64')
        a('s_waitcnt lgkmcnt(0)')
        a('s_barrier')
        if STAMP and tag == 'F': stamp(8)
        epi_body(0, carry)
        a(f's_mov_b64 exec, s[{sSV}:{sSV+1}]')
        a(f's_cbranch_execz K2_FIN{tag}')
        epi_body(1, carry)
        a.label(f'K2_FIN{tag}')
    epilogue('F', True)
    if opts.get('dbgtime'):
        a('s_mov_b64 exec, -1')
        a('s_waitcnt vmcnt(0)')
        a(f's_memrealtime s[{t2}:{t3}]')
        a('s_waitcnt lgkmcnt(0)')
        a(f'v_mov_b32 v{vST}, s{t2}')
        a(f'v_mov_b32 v{GF}, 0')
        a('s_mov_b64 exec, 1')
        a(f'global_atomic_umax v{GF}, v{vST}, s[{sDBG}:{sDBG+1}] offset:32')
    if STAMP:
        a('s_mov_b64 exec, -1')
        a('s_waitcnt vmcnt(0)')
        stamp(9)
        a(f's_memrealtime s[{t2}:{t3}]')
        a('s_waitcnt lgkmcnt(0)')
        a(f'v_writelane_b32 v{vST}, s{t2}, 12')
        a(f's_mul_i32 s{t0}, s2, {NW}')
        a(f's_add_u32 s{t0}, s{t0}, s{sW}')
        a(f's_lshl_b32 s{t0}, s{t0}, 8')
        a(f's_add_u32 s{t0}, s{t0}, 0x1000000')
        srd_off(a, rT, sWS, f's{t0}', 256)
        a(f'v_writelane_b32 v{vST}, s{sL}, 10')
        a(f'v_lshlrev_b32 v4, 2, v{vLANE}')
        a(f'buffer_store_dword v{vST}, v4, s[{rT}:{rT+3}], 0 offen')
    a('s_endpgm')
    a.label('K2_ZROWS')
    a(f's_mov_b64 exec, s[{sSV}:{sSV+1}]')
    for i in range(4):
        a(f'v_mov_b32 v{TR+i}, 0')
    for nd in range(2):
        a(f'v_cmp_eq_u32 vcc, 0, v{TQ+nd}')
        a(f's_and_b64 exec, vcc, s[{sSV}:{sSV+1}]')
        for k in range(32):
            a(f'ds_write_b128 v{nROW0}, v[{TR}:{TR+3}] offset:{nd*ROWB + 16*k}')
        a(f's_mov_b64 exec, s[{sSV}:{sSV+1}]')
    a('s_mov_b64 exec, -1')
    a('s_branch K2_ZBACK')

    a.label('K2_SLOW')
    a('s_waitcnt vmcnt(0) lgkmcnt(0)')
    a('s_barrier')
    a(f's_lshl_b32 s{t1}, s2, 10')
    a(f's_add_u32 s{t1}, s{t1}, {WS_TAB2}')
    srd_off(a, rT, sWS, f's{t1}', 1024)
    a(f'v_lshlrev_b32 v{tA}, 4, v{vLANE}')
    a(f'buffer_load_dwordx4 v[{TQ}:{TQ+3}], v{tA}, s[{rT}:{rT+3}], 0 offen')
    a('s_waitcnt vmcnt(0)')
    a(f'v_max_u32 v{tE}, v{TQ}, v{TQ+1}')
    a(f'v_max3_u32 v{tE}, v{tE}, v{TQ+2}, v{TQ+3}')
    wave_scan(a, 'v_max_u32', tE)
    a('s_nop 0')
    a(f'v_readlane_b32 s{t1}, v{tE}, 63')
    a(f's_add_u32 s{t1}, s{t1}, {WSLOW-1}')
    a(f's_mul_i32 s{t1}, s{t1}, 5042')
    a(f's_lshr_b32 s{sNP}, s{t1}, 16')
    a(f's_mov_b32 s{sP}, 0')
    for i in range(4):
        a(f'v_mov_b32 v{TR+i}, 0')
    a(f'v_lshrrev_b32 v{tA}, 5, v0')
    a(f'v_mul_u32_u24 v{tA}, {ROWB}, v{tA}')
    a(f'v_and_b32 v{tB}, 31, v{vLANE}')
    a(f'v_lshl_add_u32 v{tA}, v{tB}, 4, v{tA}')
    a(f'v_add_u32 v{tA}, {L_ACC}, v{tA}')
    for i in range(6):
        a(f'ds_write_b128 v{tA}, v[{TR}:{TR+3}]')
        a(f'v_add_u32 v{tA}, {16*ROWB}, v{tA}')
    a(f'v_cmp_gt_u32 vcc, 64, v0')
    a(f's_and_saveexec_b64 s[{sSV}:{sSV+1}], vcc')
    a(f'ds_write_b128 v{tA}, v[{TR}:{TR+3}]')
    a(f's_mov_b64 exec, s[{sSV}:{sSV+1}]')
    a.label('K2_SPASS')
    a(f's_lshl_b32 s{t1}, s2, 10')
    a(f's_add_u32 s{t1}, s{t1}, {WS_TAB}')
    srd_off(a, rT, sWS, f's{t1}', WS_TAB2 - WS_TAB + 1024)
    a(f'v_lshlrev_b32 v{tD}, 6, v{sidA}')
    a(f's_mov_b32 s{t0}, {WS_TAB2 - WS_TAB}')
    for i in range(4):
        a(f'buffer_load_dwordx4 v[{SG+4*i}:{SG+4*i+3}], v{tD}, s[{rT}:{rT+3}], 0 offen offset:{16*i}')
    for i in range(4):
        a(f'buffer_load_dwordx4 v[{AX+4*i}:{AX+4*i+3}], v{tD}, s[{rT}:{rT+3}], s{t0} offen offset:{16*i}')
    a(f'v_and_b32 v{tC}, 31, v{vLANE}')
    a(f's_mul_i32 s{t0}, s{sP}, {WSLOW}')
    a(f'v_cmp_gt_u32 vcc, {WSLOW}, v{tC}')
    a(f'v_add_u32 v{tC}, s{t0}, v{tC}')
    a(f'v_lshlrev_b32 v{tB}, 3, v{tC}')
    a(f'v_mov_b32 v{tD}, 0x10000')
    a(f'v_cndmask_b32 v{tC}, v{tD}, v{tC}, vcc')
    a('s_waitcnt vmcnt(0)')
    for it in range(NIT):
        a(f'v_cmp_gt_u32 s[{MK+2*it}:{MK+2*it+1}], v{AX+it}, v{tC}')
    rec_loads(tB)
    lds_init()
    a('s_waitcnt vmcnt(0) lgkmcnt(0)')
    a('s_barrier')
    hist()
    a('s_waitcnt lgkmcnt(0)')
    a('s_barrier')
    scan_nodes('S')
    qi_fill('S')
    scatter()
    a('s_waitcnt lgkmcnt(0)')
    a('s_barrier')
    a(f's_cmp_eq_u32 s{sL}, 0')
    a('s_cbranch_scc1 K2_SNEXT')
    setup_ptrs()
    a('s_waitcnt lgkmcnt(0)')
    for ins in dma_addr(): a(ins)
    for ins in dma_issue(): a(ins)
    forced_flags()
    pipeline_fill()
    main_loop('S', True)
    a.label('K2_SNEXT')
    a('s_waitcnt vmcnt(0) lgkmcnt(0)')
    a('s_barrier')
    a(f's_add_u32 s{sP}, s{sP}, 1')
    a(f's_cmp_lt_u32 s{sP}, s{sNP}')
    a('s_cbranch_scc1 K2_SPASS')
    epilogue('S', False)
    a.label('K2_END')
    a('s_endpgm')
    return nvgpr, nsgpr

def kd(name, nv, ns):
    acc = (nv + 3) // 4 * 4
    return f'''.amdhsa_kernel {name}
  .amdhsa_next_free_vgpr {nv}
  .amdhsa_next_free_sgpr {ns}
  .amdhsa_accum_offset {acc}
  .amdhsa_group_segment_fixed_size 0
  .amdhsa_kernarg_size 96
  .amdhsa_user_sgpr_count 2
  .amdhsa_user_sgpr_kernarg_segment_ptr 1
  .amdhsa_system_sgpr_workgroup_id_x 1
  .amdhsa_float_denorm_mode_32 3
.end_amdhsa_kernel
'''

def build(opts=None):
    opts = opts or {}
    a = Asm()
    gen_k1(a, opts)
    nv, ns = gen_k2(a, opts)
    out = HEADER
    out += f'; @launch kernel=gs_part_kernel grid=(256,1,1) block=({K1_THREADS},1,1) lds={LDS_K1}\n'
    out += f'; @launch kernel=gs_main_kernel grid=(256,1,1) block=({NW*64},1,1) lds={LDS_MAIN}\n'
    out += '.amdgcn_target "amdgcn-amd-amdhsa--gfx950"\n.text\n'
    out += a.text()
    out += '.section .rodata,"a"\n.p2align 6\n'
    out += kd('gs_part_kernel', 60, 60)
    out += '.p2align 6\n'
    out += kd('gs_main_kernel', nv, ns)
    return out

if __name__ == '__main__':
    path = sys.argv[1] if len(sys.argv) > 1 else 'gather_scatter__edge_featured_mpnn_gatedgcn__graph.s'
    opts = {}
    for o in sys.argv[2:]:
        k, _, val = o.partition('=')
        opts[k] = int(val) if val else True
    open(path, 'w').write(build(opts))
    print('written', path, 'LDS', LDS_MAIN)
```

```python
import sys, os, struct
sys.path.insert(0, os.path.dirname(__file__))
from asmlib import *

N = 25000; E = 800000
NBK = 256
CH = 3136
RECB = CH * 8
WS_TAB = 0x700000
WS_TAB2 = 0x740000
WS_FRAG = 0x780000
MAGIC_B = 43980466
LOG2E = 0xBFB8AA3B
SBITS = 50
C_SCALE = (127 - SBITS) << 23
EPS_SCALED = 0x4E8637BD
assert abs(struct.unpack('<f', struct.pack('<I', EPS_SCALED))[0] / (1e-6 * 2.0**50) - 1) < 1e-6

NW = 8
NSTREAM = 16
NIT = 16
CAP = 3456
WSLOW = 13
ROWB = 784
MAXN = 98
ENT_QUADS = 960
VROWB = 640
L_CNT = 0
L_ZERO = 512
L_TAB = 1024
L_QI = 1536
L_ENT = L_QI + ENT_QUADS * 4
L_ACC = L_ENT + ENT_QUADS * 16
L_VIRT = L_ACC + MAXN * ROWB
L_WST = L_VIRT + NSTREAM * VROWB
L_WST = (L_WST + 255) // 256 * 256
L_DMA = L_WST + 16384
LDS_MAIN = L_DMA + NW * 4096
assert LDS_MAIN <= 163840, LDS_MAIN
assert L_ACC % 16 == 0 and L_VIRT % 16 == 0

K1_THREADS = 896
K1_HIST = 0
K1_STAGE = 1024
LDS_K1 = K1_STAGE + RECB

HEADER = open(os.path.join(os.path.dirname(__file__), 'header.txt')).read()

def srd(a, sreg, ptr, size):
    a(f's_mov_b32 s{sreg}, s{ptr}')
    a(f's_and_b32 s{sreg+1}, s{ptr+1}, 0xffff')
    a(f's_mov_b32 s{sreg+2}, {size}')
    a(f's_mov_b32 s{sreg+3}, 0x20000')

def srd_off(a, sreg, ptr, off, size):
    a(f's_add_u32 s{sreg}, s{ptr}, {off}')
    a(f's_addc_u32 s{sreg+1}, s{ptr+1}, 0')
    a(f's_and_b32 s{sreg+1}, s{sreg+1}, 0xffff')
    a(f's_mov_b32 s{sreg+2}, {size}')
    a(f's_mov_b32 s{sreg+3}, 0x20000')

def wave_scan(a, op, r):
    for sh in (1, 2, 4, 8):
        a('s_nop 1')
        a(f'{op}_dpp v{r}, v{r}, v{r} row_shr:{sh} row_mask:0xf bank_mask:0xf')
    a('s_nop 1')
    a(f'{op}_dpp v{r}, v{r}, v{r} row_bcast:15 row_mask:0xa bank_mask:0xf')
    a('s_nop 1')
    a(f'{op}_dpp v{r}, v{r}, v{r} row_bcast:31 row_mask:0xc bank_mask:0xf')

def wave_scan2(a, op1, r1, op2, r2):
    steps = [f'row_shr:{sh} row_mask:0xf bank_mask:0xf' for sh in (1, 2, 4, 8)] + \
            ['row_bcast:15 row_mask:0xa bank_mask:0xf', 'row_bcast:31 row_mask:0xc bank_mask:0xf']
    a('s_nop 1')
    for st in steps:
        a(f'{op1}_dpp v{r1}, v{r1}, v{r1} {st}')
        a(f'{op2}_dpp v{r2}, v{r2}, v{r2} {st}')
        a('s_nop 0')

def gen_k1(a, opts):
    a.raw('.p2align 8')
    a.raw('.globl gs_part_kernel')
    a.raw('.type gs_part_kernel,@function')
    a.label('gs_part_kernel')
    a('s_cmp_ge_u32 s2, 256')
    a('s_cbranch_scc1 K1_END')
    a('s_load_dwordx4 s[4:7], s[0:1], 8')
    a('s_load_dwordx2 s[8:9], s[0:1], 24')
    a('s_load_dwordx2 s[10:11], s[0:1], 88')
    a('s_load_dwordx2 s[44:45], s[0:1], 0')
    if opts.get('dbgtime'):
        a('s_memrealtime s[54:55]')
        a('s_waitcnt lgkmcnt(0)')
        a('s_cmp_ge_u32 s2, 8')
        a('s_cbranch_scc1 K1_NODBG')
        a('v_mov_b32 v20, s54')
        a('s_lshl_b32 s56, s2, 2')
        a('s_add_u32 s56, s56, 0x1200000')
        a('v_mov_b32 v22, s56')
        a('v_cmp_eq_u32 vcc, 0, v0')
        a('s_and_saveexec_b64 s[58:59], vcc')
        a('global_store_dword v22, v20, s[10:11]')
        a('s_mov_b64 exec, s[58:59]')
        a.label('K1_NODBG')
    a('v_lshrrev_b32 v1, 6, v0')
    a('s_mul_i32 s12, s2, %d' % (CH * 4))
    a('v_readfirstlane_b32 s3, v1')
    a('s_lshr_b32 s13, s12, 1')
    a('v_lshlrev_b32 v2, 4, v0')
    a('v_add_u32 v2, s12, v2')
    a('s_cmp_eq_u32 s3, 13')
    a('s_cbranch_scc1 K1_FRAG')
    a('v_lshlrev_b32 v3, 3, v0')
    a('v_add_u32 v3, s13, v3')
    a('s_waitcnt lgkmcnt(0)')
    srd(a, 20, 8, E * 4)
    a('buffer_load_dwordx4 v[4:7], v2, s[20:23], 0 offen')
    srd(a, 24, 6, E * 4)
    a('buffer_load_dwordx4 v[8:11], v2, s[24:27], 0 offen')
    srd(a, 28, 4, E * 2)
    a('buffer_load_dwordx2 v[12:13], v3, s[28:31], 0 offen')
    if opts.get('xpre', 1):
        a('s_and_b32 s46, s2, 7')
        a('s_lshr_b32 s47, s2, 3')
        a('s_lshl_b32 s46, s46, 5')
        a('s_add_u32 s46, s46, s47')
        a('s_mul_i32 s46, s46, 3125')
        a('s_add_u32 s46, s46, 31')
        a('s_lshr_b32 s46, s46, 5')
        a('s_lshl_b32 s46, s46, 7')
        a('s_and_b32 s45, s45, 0xffff')
        a('s_mov_b32 s48, s44')
        a('s_mov_b32 s49, s45')
        a('s_mov_b32 s50, %d' % (N * 128))
        a('s_mov_b32 s51, 0x20000')
        a('v_lshlrev_b32 v40, 4, v0')
        a('buffer_load_dwordx4 v[56:59], v40, s[48:51], s46 offen')
    a('v_lshlrev_b32 v14, 2, v0')
    a('v_mov_b32 v15, 0')
    a('v_cmp_gt_u32 vcc, 256, v0')
    a('s_and_saveexec_b64 s[18:19], vcc')
    a('ds_write_b32 v14, v15 offset:%d' % K1_HIST)
    a('s_mov_b64 exec, s[18:19]')
    a('v_cmp_gt_u32 vcc, %d, v0' % (CH // 4))
    a('s_mov_b32 s14, %d' % (E * 4))
    a('v_cmp_gt_u32 s[16:17], s14, v2')
    a('s_and_b64 s[16:17], s[16:17], vcc')
    a('s_mul_i32 s15, s2, %d' % RECB)
    srd_off(a, 32, 10, 's15', RECB)
    srd_off(a, 36, 10, WS_TAB, 0x80000)
    a('s_mov_b32 s40, %d' % MAGIC_B)
    a('s_movk_i32 s41, 3125')
    a('v_mov_b32 v15, 1')
    a('s_waitcnt lgkmcnt(0)')
    a('s_barrier')
    a('s_mov_b64 exec, s[16:17]')
    a('s_cbranch_execz K1_NOEDGE1')
    a('s_waitcnt vmcnt(%d)' % (3 if opts.get('xpre', 1) else 2))
    for k in range(4):
        a(f'v_mul_hi_u32 v{16+k}, v{4+k}, s40')
    for k in range(4):
        a(f'v_lshlrev_b32 v{20+k}, 2, v{16+k}')
        a(f'ds_add_rtn_u32 v{24+k}, v{20+k}, v15 offset:{K1_HIST}')
    for k in range(4):
        a(f'v_mul_u32_u24 v{28+k}, s41, v{16+k}')
        a(f'v_add_u32 v{28+k}, 31, v{28+k}')
        a(f'v_lshrrev_b32 v{28+k}, 5, v{28+k}')
        a(f'v_sub_u32 v{28+k}, v{4+k}, v{28+k}')
        a(f'v_lshlrev_b32 v{33+2*k}, 2, v{28+k}')
    a('s_waitcnt vmcnt(%d)' % (1 if opts.get('xpre', 1) else 0))
    a('s_mov_b32 s42, 0xffff0000')
    a('v_lshl_or_b32 v32, v12, 16, v8')
    a('v_and_or_b32 v34, v12, s42, v9')
    a('v_lshl_or_b32 v36, v13, 16, v10')
    a('v_and_or_b32 v38, v13, s42, v11')
    a.label('K1_NOEDGE1')
    a('s_mov_b64 exec, -1')
    a('s_waitcnt lgkmcnt(0)')
    a('s_barrier')
    a('s_cmp_lg_u32 s3, 0')
    a('s_cbranch_scc1 K1_SCANDONE')
    a('v_lshlrev_b32 v40, 4, v0')
    a('ds_read_b128 v[44:47], v40 offset:%d' % K1_HIST)
    a('v_lshlrev_b32 v41, 12, v0')
    a('s_lshl_b32 s15, s2, 2')
    a('v_add_u32 v41, s15, v41')
    a('s_waitcnt lgkmcnt(0)')
    a('v_add_u32 v48, v44, v45')
    a('v_add_u32 v49, v48, v46')
    a('v_add_u32 v50, v49, v47')
    a('v_mov_b32 v51, v50')
    wave_scan(a, 'v_add_u32', 51)
    a('v_sub_u32 v52, v51, v50')
    a('v_add_u32 v53, v52, v44')
    a('v_add_u32 v54, v52, v48')
    a('v_add_u32 v55, v52, v49')
    a('ds_write_b128 v40, v[52:55] offset:%d' % K1_HIST)
    a('s_mul_i32 s15, s2, %d' % CH)
    a('s_mov_b32 s43, %d' % (WS_TAB2 - WS_TAB))
    for k in range(4):
        a(f'buffer_store_dword v{44+k}, v41, s[36:39], s43 offen offset:{k*1024}')
        a(f'v_min_u32 v{48+k}, 0xff, v{44+k}')
        a(f'v_add_u32 v{52+k}, s15, v{52+k}')
        a(f'v_lshl_or_b32 v{48+k}, v{48+k}, 24, v{52+k}')
        a(f'buffer_store_dword v{48+k}, v41, s[36:39], 0 offen offset:{k*1024}')
    a.label('K1_SCANDONE')
    a('s_waitcnt lgkmcnt(0)')
    a('s_barrier')
    a('s_mov_b64 exec, s[16:17]')
    a('s_cbranch_execz K1_NOEDGE2')
    for k in range(4):
        a(f'ds_read_b32 v{28+k}, v{20+k} offset:{K1_HIST}')
    for k in range(4):
        a(f's_waitcnt lgkmcnt({3 if k == 0 else 3})')
        a(f'v_add_lshl_u32 v{28+k}, v{28+k}, v{24+k}, 3')
        a(f'ds_write_b64 v{28+k}, v[{32+2*k}:{33+2*k}] offset:{K1_STAGE}')
    a.label('K1_NOEDGE2')
    a('s_mov_b64 exec, -1')
    a('v_lshlrev_b32 v2, 4, v0')
    a('v_add_u32 v3, %d, v2' % (RECB // 2))
    a('v_cmp_gt_u32 vcc, %d, v0' % (CH // 4))
    a('s_waitcnt lgkmcnt(0)')
    a('s_barrier')
    a('s_and_saveexec_b64 s[18:19], vcc')
    a('s_cbranch_execz K1_END')
    a('ds_read_b128 v[4:7], v2 offset:%d' % K1_STAGE)
    a('ds_read_b128 v[8:11], v2 offset:%d' % (K1_STAGE + RECB // 2))
    a('s_waitcnt lgkmcnt(1)')
    a('buffer_store_dwordx4 v[4:7], v2, s[32:35], 0 offen')
    a('s_waitcnt lgkmcnt(0)')
    a('buffer_store_dwordx4 v[8:11], v3, s[32:35], 0 offen')
    if opts.get('dbgtime'):
        a('s_waitcnt vmcnt(0)')
        a('s_memrealtime s[54:55]')
        a('s_waitcnt lgkmcnt(0)')
        a('s_cmp_ge_u32 s2, 8')
        a('s_cbranch_scc1 K1_END')
        a('s_cmp_lg_u32 s3, 0')
        a('s_cbranch_scc1 K1_END')
        a('v_mov_b32 v20, s54')
        a('s_lshl_b32 s56, s2, 2')
        a('s_add_u32 s56, s56, 0x1200100')
        a('v_mov_b32 v22, s56')
        a('s_mov_b64 exec, 1')
        a('global_store_dword v22, v20, s[10:11]')
    a('s_endpgm')
    a.label('K1_FRAG')
    a('s_cmp_ge_u32 s2, 32')
    a('s_cbranch_scc1 K1_END')
    a('s_load_dwordx4 s[12:15], s[0:1], 32')
    a('s_load_dwordx4 s[16:19], s[0:1], 56')
    a('s_lshr_b32 s20, s2, 3')
    a('s_waitcnt lgkmcnt(0)')
    a('s_mov_b32 s22, s14')
    a('s_mov_b32 s23, s15')
    a('s_cmp_eq_u32 s20, 1')
    a('s_cselect_b32 s22, s18, s22')
    a('s_cselect_b32 s23, s19, s23')
    a('s_cmp_eq_u32 s20, 2')
    a('s_cselect_b32 s22, s12, s22')
    a('s_cselect_b32 s23, s13, s23')
    a('s_cmp_eq_u32 s20, 3')
    a('s_cselect_b32 s22, s16, s22')
    a('s_cselect_b32 s23, s17, s23')
    srd(a, 24, 22, 64 * 64 * 2)
    srd_off(a, 28, 10, WS_FRAG, 32 * 1024)
    a('s_and_b32 s32, s2, 3')
    a('s_lshr_b32 s33, s2, 2')
    a('s_and_b32 s33, s33, 1')
    a('s_lshl_b32 s32, s32, 11')
    a('s_lshl_b32 s33, s33, 6')
    a('s_add_u32 s32, s32, s33')
    a('v_and_b32 v1, 63, v0')
    a('v_and_b32 v2, 31, v1')
    a('v_lshlrev_b32 v2, 1, v2')
    a('v_lshrrev_b32 v3, 5, v1')
    a('v_lshlrev_b32 v3, 10, v3')
    a('v_add3_u32 v2, v2, v3, s32')
    for i in range(8):
        a(f'buffer_load_ushort v{8+i}, v2, s[24:27], 0 offen offset:{i*128}')
    a('s_mov_b32 s34, 1.0')
    a('s_and_b32 s36, s20, 1')
    a('s_cmp_eq_u32 s36, 0')
    a('s_cselect_b32 s34, 0x%x, s34' % LOG2E)
    a('s_waitcnt vmcnt(0)')
    for i in range(8):
        a(f'v_lshlrev_b32 v{8+i}, 16, v{8+i}')
        a(f'v_mul_f32 v{8+i}, s34, v{8+i}')
    for i in range(4):
        a(f'v_cvt_pk_bf16_f32 v{16+i}, v{8+2*i}, v{9+2*i}')
    a('v_lshlrev_b32 v4, 4, v1')
    a('s_lshl_b32 s35, s2, 10')
    a('v_add_u32 v4, s35, v4')
    a('buffer_store_dwordx4 v[16:19], v4, s[28:31], 0 offen')
    a.label('K1_END')
    a('s_endpgm')

def gen_k2(a, opts):
    STAMP = opts.get('stamp', False)
    vLANE = 1; BC = 2
    WB = 4; WV = 36; AX = 68
    GA = 84; HA = 100; GB = 116; HB = 132
    PP = 148; TT_ = 156; ZZ = 164
    DEN = 172; NUM = 176
    AE = [180, 184]; BE = 188; R0 = 192
    QA = [196, 200]
    EN = 204; RA = 208; CO = 212
    pEN = 216; pEE = 217; pQI = 218; pQF = 219
    C4 = 220; SEL = [221, 222]; EE = 223; QF = 224
    F0 = 225; F1 = 226
    tA = 227; tB = 228; tC = 229; tD = 230; tE = 231; tF = 232; tG = 233; tH = 234; tI = 235
    TQ = 236; TR = 240
    sidA = 244; jA = 245; sidR = 246; iR4 = 247
    vST = 248; GF = 249; GD = 250
    nvgpr = 252
    REC = PP; RK = GB; SG = HB
    G_ = [GA, GB]; H_ = [HA, HB]
    nOFF0 = AE[0]+0 if False else QA[0]; nOFF1 = QA[0]+1; nEND0 = QA[0]+2; nEND1 = QA[0]+3; nROW0 = QA[1]
    S = Regs('s', 3, 102)
    sX = S.alloc('x', 2, 2); sWC = S.alloc('wc', 2, 2); sOUT = S.alloc('out', 2, 2); sWS = S.alloc('ws', 2, 2)
    rX = S.alloc('rX', 4, 4); rT = S.alloc('rT', 4, 4); rR = S.alloc('rR', 4, 4); rF = S.alloc('rF', 4, 4)
    sW = S.alloc('w'); sNS = S.alloc('ns'); sNN = S.alloc('nn')
    sP = S.alloc('pass'); sNP = S.alloc('npass')
    sL = S.alloc('L'); sCNT = S.alloc('cnt'); sREM = S.alloc('rem'); sMAXP = S.alloc('maxp')
    sC = S.alloc('C', 2, 2)
    sF = [S.alloc('F0', 2, 2), S.alloc('F1', 2, 2)]
    sANY = [S.alloc('any0'), S.alloc('any1')]
    s128 = S.alloc('c128'); sLO = S.alloc('lo16'); sHI = S.alloc('hi16')
    t0 = S.alloc('t0'); t1 = S.alloc('t1'); t2 = S.alloc('t2', 1, 2); t3 = S.alloc('t3')
    sSV = S.alloc('sv', 2, 2); sSV2 = S.alloc('sv2', 2, 2)
    sDB = S.alloc('dmabase'); sSWAP = S.alloc('swap')
    sDBG = S.alloc('dbg', 2, 2) if opts.get('dbgtime') else None
    sT0 = S.alloc('dbgt0', 2, 2) if opts.get('dbgtime') else None
    sT1 = S.alloc('dbgt1') if opts.get('dbgtime') else None
    sT2 = S.alloc('dbgt2') if opts.get('dbgtime') else None
    MK = S.alloc('MK', 32, 2)
    rO = rT
    nsgpr = S.hi
    def stamp(i):
        if not STAMP: return
        a(f's_memtime s[{t2}:{t3}]')
        a('s_waitcnt lgkmcnt(0)')
        a(f'v_writelane_b32 v{vST}, s{t2}, {i}')
    XB = 4096

    a.raw('.p2align 8')
    a.raw('.globl gs_main_kernel')
    a.raw('.type gs_main_kernel,@function')
    a.label('gs_main_kernel')
    a('s_cmp_ge_u32 s2, 256')
    a('s_cbranch_scc1 K2_END')
    a(f's_load_dwordx2 s[{sWS}:{sWS+1}], s[0:1], 88')
    a(f's_load_dwordx2 s[{sX}:{sX+1}], s[0:1], 0')
    a(f's_load_dwordx2 s[{sWC}:{sWC+1}], s[0:1], 48')
    a(f's_load_dwordx2 s[{sOUT}:{sOUT+1}], s[0:1], 72')
    a('s_and_b32 s3, s2, 7')
    a('s_lshr_b32 s2, s2, 3')
    a('s_lshl_b32 s3, s3, 5')
    a('s_add_u32 s2, s2, s3')
    if opts.get('dbgtime'):
        a(f's_load_dwordx2 s[{sDBG}:{sDBG+1}], s[0:1], 80')
        a(f's_memrealtime s[{sT0}:{sT0+1}]')
        a('s_waitcnt lgkmcnt(0)')
    if STAMP:
        a(f'v_mov_b32 v{vST}, 0')
    stamp(0)
    if STAMP:
        a(f's_memrealtime s[{t2}:{t3}]')
        a('s_waitcnt lgkmcnt(0)')
        a(f'v_writelane_b32 v{vST}, s{t2}, 11')
    a(f'v_lshrrev_b32 v{tA}, 6, v0')
    a(f'v_and_b32 v{vLANE}, 63, v0')
    a(f'v_readfirstlane_b32 s{sW}, v{tA}')
    a(f'v_lshrrev_b32 v{sidA}, 5, v{vLANE}')
    a(f's_lshl_b32 s{t1}, s2, 10')
    a(f's_add_u32 s{t1}, s{t1}, {WS_TAB}')
    a(f's_lshl_b32 s{t0}, s{sW}, 1')
    a(f'v_add_u32 v{sidA}, s{t0}, v{sidA}')
    a(f'v_lshlrev_b32 v{tD}, 6, v{sidA}')
    a(f'v_lshlrev_b32 v{tA}, 4, v{vLANE}')
    a('s_waitcnt lgkmcnt(0)')
    srd_off(a, rT, sWS, f's{t1}', 1024)
    for i in range(4):
        a(f'buffer_load_dwordx4 v[{SG+4*i}:{SG+4*i+3}], v{tD}, s[{rT}:{rT+3}], 0 offen offset:{16*i}')
    a(f's_mul_i32 s{t0}, s2, 3125')
    a(f's_add_u32 s{sNS}, s{t0}, 31')
    a(f's_lshr_b32 s{sNS}, s{sNS}, 5')
    a(f's_add_u32 s{t0}, s{t0}, {3125+31}')
    a(f's_lshr_b32 s{t0}, s{t0}, 5')
    a(f's_sub_u32 s{sNN}, s{t0}, s{sNS}')
    a(f's_sub_u32 s{rX}, s{sX}, {XB}')
    a(f's_subb_u32 s{rX+1}, s{sX+1}, 0')
    a(f's_and_b32 s{rX+1}, s{rX+1}, 0xffff')
    a(f's_mov_b32 s{rX+2}, {N*128 + XB}')
    a(f's_mov_b32 s{rX+3}, 0x20000')
    srd_off(a, rF, sWS, WS_FRAG, 32 * 1024)
    a(f's_lshl_b32 s{sDB}, s{sW}, 12')
    a(f's_add_u32 s{sDB}, s{sDB}, {L_DMA}')
    a(f'v_bfe_u32 v{tE}, v{vLANE}, 4, 1')
    a(f'v_and_b32 v{tF}, 7, v{vLANE}')
    a(f'v_xor_b32 v{tE}, v{tE}, v{tF}')
    a(f'v_lshlrev_b32 v{tE}, 4, v{tE}')
    for i in range(4):
        if i: a(f'v_xor_b32 v{tF}, {32*i}, v{tE}')
        a(f'v_add_u32 v{CO+i}, {XB - 1024*i}, v{tF if i else tE}')
    a(f'v_bfe_u32 v{jA}, v{vLANE}, 3, 2')
    a(f'v_lshrrev_b32 v{tF}, 5, v{vLANE}')
    a(f'v_lshlrev_b32 v{tE}, 3, v{jA}')
    a(f'v_lshl_add_u32 v{tE}, v{tF}, 2, v{tE}')
    a(f's_lshr_b32 s{t0}, s{sW}, 1')
    a(f's_lshl_b32 s{t1}, s{t0}, 5')
    a(f's_add_u32 s{t1}, s{t1}, s{sNS}')
    a(f's_and_b32 s{t2}, s{sW}, 1')
    a(f's_lshl_b32 s{t2}, s{t2}, 1')
    a(f's_add_u32 s{t1}, s{t1}, s{t2}')
    a(f'v_add_u32 v{tE}, s{t1}, v{tE}')
    a(f'v_lshlrev_b32 v{tE}, 7, v{tE}')
    a(f's_cmp_eq_u32 s{t2}, 0')
    a(f's_cbranch_scc0 K2_XI2')
    a(f'v_add_u32 v{tH}, v{tE}, v{CO}')
    a(f'v_add_u32 v{tI}, v{tE}, v{CO+1}')
    a('s_branch K2_XI')
    a.label('K2_XI2')
    a(f'v_add_u32 v{tH}, v{tE}, v{CO+2}')
    a(f'v_add_u32 v{tI}, v{tE}, v{CO+3}')
    a(f'v_add_u32 v{tH}, 2048, v{tH}')
    a(f'v_add_u32 v{tI}, 2048, v{tI}')
    a.label('K2_XI')
    a(f'v_add_u32 v{tI}, 128, v{tI}')
    a(f'v_and_b32 v{C4}, 31, v{vLANE}')
    def staging():
        a(f's_lshr_b32 s{t0}, s{sW}, 1')
        a(f's_lshl_b32 s{t0}, s{t0}, 12')
        a(f's_and_b32 s{t2}, s{sW}, 1')
        a(f's_lshl_b32 s{t2}, s{t2}, 11')
        a(f's_add_u32 s{t0}, s{t0}, s{t2}')
        a(f's_add_u32 s{t0}, s{t0}, {L_DMA}')
        a(f's_mov_b32 m0, s{t0}')
        a(f'v_lshlrev_b32 v{tA}, 4, v{vLANE}')
        a(f'buffer_load_dwordx4 v{tH}, s[{rX}:{rX+3}], 0 offen lds')
        a(f'buffer_load_dwordx4 v{tI}, s[{rX}:{rX+3}], 0 offen offset:1024 lds')
        a(f's_lshl_b32 s{t0}, s{sW}, 11')
        a(f's_add_u32 s{t1}, s{t0}, {L_DMA + 4*4096}')
        a(f's_mov_b32 m0, s{t1}')
        a(f's_add_u32 s{t2}, s{t0}, {16*1024}')
        a(f'buffer_load_dwordx4 v{tA}, s[{rF}:{rF+3}], s{t2} offen lds')
        a(f'buffer_load_dwordx4 v{tA}, s[{rF}:{rF+3}], s{t2} offen offset:1024 lds')
        a(f's_add_u32 s{t1}, s{t0}, {L_WST}')
        a(f's_mov_b32 m0, s{t1}')
        a('s_nop 0')
        a(f'buffer_load_dwordx4 v{tA}, s[{rF}:{rF+3}], s{t0} offen lds')
        a(f'buffer_load_dwordx4 v{tA}, s[{rF}:{rF+3}], s{t0} offen offset:1024 lds')
        srd(a, rR, sWC, 128)
        a(f'v_lshlrev_b32 v{tE}, 1, v{C4}')
        a(f'buffer_load_ushort v{BC}, v{tE}, s[{rR}:{rR+3}], 0 offen')
        a(f'buffer_load_ushort v{BC+1}, v{tE}, s[{rR}:{rR+3}], 0 offen offset:64')
    staging()
    def lds_init():
        a(f'v_lshlrev_b32 v{tE}, 4, v0')
        for i in range(4):
            a(f'v_mov_b32 v{TR+i}, 0xffff')
        a(f'ds_write_b128 v{tE}, v[{TR}:{TR+3}] offset:{L_ENT}')
        a(f's_cmp_ge_u32 s{sW}, {(ENT_QUADS - 512) // 64}')
        a(f's_cbranch_scc1 K2_I1{tag_i[0]}')
        a(f'ds_write_b128 v{tE}, v[{TR}:{TR+3}] offset:{L_ENT + 512*16}')
        a.label(f'K2_I1{tag_i[0]}')
        assert (ENT_QUADS - 512) % 64 == 0
        for i in range(4):
            a(f'v_mov_b32 v{TR+i}, {L_VIRT}')
        a(f'v_cmp_gt_u32 vcc, {ENT_QUADS // 4}, v0')
        a(f's_and_saveexec_b64 s[{sSV}:{sSV+1}], vcc')
        a(f'ds_write_b128 v{tE}, v[{TR}:{TR+3}] offset:{L_QI}')
        a(f's_mov_b64 exec, s[{sSV}:{sSV+1}]')
        a(f's_cmp_lg_u32 s{sW}, 0')
        a(f's_cbranch_scc1 K2_I2{tag_i[0]}')
        for i in range(4):
            a(f'v_mov_b32 v{TR+i}, 0')
        a(f'ds_write_b128 v{tE}, v[{TR}:{TR+3}] offset:{L_CNT}')
        a(f'v_add_u32 v{tE}, {L_VIRT + 512}, v{tE}')
        a('s_mov_b64 exec, 0xff')
        a(f'ds_write_b128 v{tE}, v[{TR}:{TR+3}]')
        a('s_mov_b64 exec, -1')
        a.label(f'K2_I2{tag_i[0]}')
        tag_i[0] += 1
    tag_i = [0]
    lds_init()
    a(f'v_and_b32 v{tE}, 3, v{vLANE}')
    a(f'v_lshlrev_b32 v{iR4}, 2, v{tE}')
    a(f'v_lshl_add_u32 v{RA}, v{tE}, 3, v{jA}')
    a(f'v_lshrrev_b32 v{tF}, 1, v{jA}')
    a(f'v_lshl_add_u32 v{tE}, v{tE}, 1, v{tF}')
    a(f'v_bfe_u32 v{tF}, v{vLANE}, 2, 1')
    a(f's_lshl_b32 s{t0}, s{sW}, 1')
    a(f'v_add_u32 v{sidR}, s{t0}, v{tF}')
    a(f'v_lshl_add_u32 v{RA}, v{tF}, 2, v{RA}')
    a(f'v_lshrrev_b32 v{tG}, 5, v{vLANE}')
    a(f'v_cmp_eq_u32 vcc, v{tF}, v{tG}')
    a(f'v_xor_b32 v{tE}, v{tE}, v{tG}')
    a(f'v_lshlrev_b32 v{tE}, 4, v{tE}')
    a(f'v_lshl_add_u32 v{RA}, v{RA}, 7, v{tE}')
    a(f'v_mov_b32 v{tF}, 0x3f80')
    a(f'v_cndmask_b32 v{tF}, 0, v{tF}, vcc')
    for q in range(4):
        a(f'v_cmp_eq_u32 vcc, {q}, v{jA}')
        a('s_nop 1')
        a(f'v_cndmask_b32 v{AE[0]+q}, 0, v{tF}, vcc')
        a(f'v_lshlrev_b32 v{AE[1]+q}, 16, v{AE[0]+q}')
    a(f'v_cmp_gt_u32 vcc, 32, v{vLANE}')
    a(f'v_mov_b32 v{tE}, 0x0a0c0100')
    a(f'v_mov_b32 v{tF}, 0x07060100')
    a(f'v_cndmask_b32 v{SEL[0]}, v{tE}, v{tF}, vcc')
    a(f'v_mov_b32 v{tE}, 0x03020a0c')
    a(f'v_mov_b32 v{tF}, 0x03020706')
    a(f'v_cndmask_b32 v{SEL[1]}, v{tE}, v{tF}, vcc')
    a(f's_mov_b32 s{sC}, 0x{C_SCALE:x}')
    a(f's_mov_b32 s{sC+1}, 0x{C_SCALE:x}')
    a(f's_mov_b32 s{s128}, 128')
    a(f's_mov_b32 s{sLO}, 0xffff')
    a(f's_mov_b32 s{sHI}, 0xffff0000')
    a(f'v_lshlrev_b32 v{tB}, 3, v{C4}')
    a(f'v_lshlrev_b32 v{C4}, 2, v{C4}')
    a('s_waitcnt vmcnt(8)')
    stamp(1)
    srd(a, rR, sWS, NBK * RECB)
    def rec_loads(vk8):
        for it in range(NIT):
            a(f'v_mad_u32_u24 v{RK+it}, v{SG+it}, 8, v{vk8}')
        for it in range(NIT):
            a(f's_mov_b64 exec, s[{MK+2*it}:{MK+2*it+1}]')
            a(f'buffer_load_dwordx2 v[{REC+2*it}:{REC+2*it+1}], v{RK+it}, s[{rR}:{rR+3}], 0 offen')
        a('s_mov_b64 exec, -1')
    a(f'v_lshrrev_b32 v{tC}, 3, v{tB}')
    for it in range(NIT):
        a(f'v_cmp_gt_u32_sdwa s[{MK+2*it}:{MK+2*it+1}], v{SG+it}, v{tC} src0_sel:BYTE_3 src1_sel:DWORD')
    rec_loads(tB)
    a(f'v_max3_u32 v{tD}, v{SG}, v{SG+1}, v{SG+2}')
    for i in range(3, 15, 2):
        a(f'v_max3_u32 v{tD}, v{tD}, v{SG+i}, v{SG+i+1}')
    a(f'v_max_u32 v{tD}, v{tD}, v{SG+15}')
    a(f'v_lshrrev_b32 v{tD}, 24, v{tD}')
    a(f'v_cmp_lt_u32 s[{sSV2}:{sSV2+1}], 32, v{tD}')

    def gemm_issue():
        a(f's_lshr_b32 s{t0}, s{sW}, 1')
        a(f's_lshl_b32 s{t1}, s{t0}, 12')
        a(f's_add_u32 s{t1}, s{t1}, {L_DMA}')
        a(f'v_add_u32 v{tA}, s{t1}, v{RA}')
        a(f'v_xor_b32 v{tB}, 32, v{tA}')
        a(f'ds_read_b128 v[{AX}:{AX+3}], v{tA}')
        a(f'ds_read_b128 v[{AX+4}:{AX+7}], v{tB}')
        a(f'v_xor_b32 v{tB}, 64, v{tA}')
        a(f'v_xor_b32 v{tC}, 96, v{tA}')
        a(f'ds_read_b128 v[{AX+8}:{AX+11}], v{tB}')
        a(f'ds_read_b128 v[{AX+12}:{AX+15}], v{tC}')
        a(f's_and_b32 s{t2}, s{sW}, 1')
        a(f's_lshl_b32 s{t3}, s{t2}, 13')
        a(f's_add_u32 s{t3}, s{t3}, {L_DMA + 4*4096}')
        a(f'v_lshlrev_b32 v{GF}, 4, v{vLANE}')
        a(f'v_add_u32 v{GF}, s{t3}, v{GF}')
        for f in range(4):
            a(f'ds_read_b128 v[{SG+4*f}:{SG+4*f+3}], v{GF} offset:{f*1024}')
        a(f's_mul_i32 s{t1}, s{t0}, {32*ROWB}')
        a(f's_lshl_b32 s{t3}, s{t2}, 7')
        a(f's_add_u32 s{t1}, s{t1}, s{t3}')
        a(f's_add_u32 s{t1}, s{t1}, {L_ACC + 512}')
        a(f'v_lshrrev_b32 v{GD}, 5, v{vLANE}')
        a(f'v_mul_u32_u24 v{GD}, {4*ROWB}, v{GD}')
        a(f'v_add3_u32 v{GD}, v{GD}, v{C4}, s{t1}')
    def gemm_mid():
        a('s_waitcnt lgkmcnt(0)')
        for kp in range(4):
            c = '0' if kp == 0 else f'v[{GA}:{GA+15}]'
            a(f'v_mfma_f32_32x32x16_bf16 v[{GA}:{GA+15}], v[{AX+4*kp}:{AX+4*kp+3}], v[{SG+4*kp}:{SG+4*kp+3}], {c}')
        a('s_nop 3')
        for f in range(4):
            a(f'ds_read_b128 v[{SG+4*f}:{SG+4*f+3}], v{GF} offset:{(4+f)*1024}')
    def gemm_mid2():
        a('s_waitcnt lgkmcnt(0)')
        for kp in range(4):
            c = '0' if kp == 0 else f'v[{HA}:{HA+15}]'
            a(f'v_mfma_f32_32x32x16_bf16 v[{HA}:{HA+15}], v[{AX+4*kp}:{AX+4*kp+3}], v[{SG+4*kp}:{SG+4*kp+3}], {c}')
    def w_frags():
        a(f'v_lshlrev_b32 v{GF}, 4, v{vLANE}')
        a(f'v_add_u32 v{GF}, {L_WST}, v{GF}')
        for f in range(16):
            dst = (WB + 4*f) if f < 8 else (WV + 4*(f-8))
            a(f'ds_read_b128 v[{dst}:{dst+3}], v{GF} offset:{f*1024}')
    def gemm_store(tag):
        for i in range(16):
            a(f'v_cvt_pk_bf16_f32 v{GA+i}, v{GA+i}, v{HA+i}')
        a(f's_lshr_b32 s{t0}, s{sW}, 1')
        a(f's_cmp_eq_u32 s{t0}, 3')
        a(f's_cbranch_scc1 K2_RT3{tag}')
        for vv in range(16):
            a(f'ds_write_b32 v{GD}, v{GA+vv} offset:{(8*(vv//4) + vv%4) * ROWB}')
        a(f's_branch K2_RTD{tag}')
        a.label(f'K2_RT3{tag}')
        a('s_mov_b32 exec_hi, 0')
        for vv in range(2):
            a(f'ds_write_b32 v{GD}, v{GA+vv} offset:{vv * ROWB}')
        a('s_mov_b64 exec, -1')
        a.label(f'K2_RTD{tag}')
    def consts():
        a(f'v_add_u32 v{RA}, s{sDB}, v{RA}')
        for kp in range(1, 4):
            a(f'v_xor_b32 v{RA+kp}, {32*kp}, v{RA}')
        a(f's_mov_b32 s{t3}, 0x{LOG2E:x}')
        for cc in range(2):
            a(f'v_lshlrev_b32 v{BC+cc}, 16, v{BC+cc}')
            a(f'v_mul_f32 v{BC+cc}, s{t3}, v{BC+cc}')
        a(f'v_cvt_pk_bf16_f32 v{BC}, 0, v{BC}')
        a(f'v_cvt_pk_bf16_f32 v{BC+1}, v{BC+1}, 0')
        a(f'v_cmp_gt_u32 vcc, 32, v{vLANE}')
        a(f'v_mov_b32 v{tG}, 0xb2000000')
        a(f'v_mov_b32 v{tH}, 0xb200')
        a(f'v_cndmask_b32 v{BC}, v{tG}, v{BC}, vcc')
        a(f'v_cndmask_b32 v{BC+1}, v{tH}, v{BC+1}, vcc')

    def hist():
        a(f'v_mov_b32 v{tE}, 1')
        for it in range(NIT):
            a(f's_mov_b64 exec, s[{MK+2*it}:{MK+2*it+1}]')
            a(f'ds_add_rtn_u32 v{RK+it}, v{REC+2*it+1}, v{tE} offset:{L_CNT}')
        a('s_mov_b64 exec, -1')

    def scan_nodes(tag, mid=None):
        a(f'v_lshlrev_b32 v{tA}, 3, v{vLANE}')
        a(f'ds_read_b64 v[{TQ}:{TQ+1}], v{tA} offset:{L_CNT}')
        a(f'v_mul_u32_u24 v{nROW0}, {2*ROWB}, v{vLANE}')
        a(f'v_add_u32 v{nROW0}, {L_ACC}, v{nROW0}')
        if mid: mid()
        else: a('s_waitcnt lgkmcnt(0)')
        a(f'v_add_u32 v{tE}, 3, v{TQ}')
        a(f'v_add_u32 v{tF}, 3, v{TQ+1}')
        a(f'v_and_b32 v{tE}, -4, v{tE}')
        a(f'v_and_b32 v{tF}, -4, v{tF}')
        a(f'v_add_u32 v{tC}, v{tE}, v{tF}')
        a(f'v_max_u32 v{tB}, v{tE}, v{tF}')
        a(f'v_mov_b32 v{tD}, v{tC}')
        wave_scan(a, 'v_add_u32', tD)
        a(f'v_sub_u32 v{nOFF0}, v{tD}, v{tC}')
        a(f'v_readlane_b32 s{t1}, v{tD}, 63')
        a(f'v_add_u32 v{nOFF1}, v{nOFF0}, v{tE}')
        a(f'v_lshlrev_b32 v{TQ+2}, 2, v{nOFF0}')
        a(f'v_lshlrev_b32 v{TQ+3}, 2, v{nOFF1}')
        a(f'ds_write_b64 v{tA}, v[{TQ+2}:{TQ+3}] offset:{L_TAB}')
        a(f'v_mov_b32 v{nEND0}, v{nOFF1}')
        a(f'v_add_u32 v{nEND1}, v{nOFF1}, v{tF}')
        a(f's_add_u32 s{t1}, s{t1}, {4*NSTREAM-1}')
        a(f's_lshr_b32 s{sL}, s{t1}, 6')
        a(f's_add_u32 s{sCNT}, s{sL}, 3')
        a(f's_lshr_b32 s{sCNT}, s{sCNT}, 2')
        a(f's_sub_u32 s{sCNT}, s{sCNT}, 1')
        a(f's_sub_u32 s{sREM}, s{sL}, 1')
        a(f's_and_b32 s{sREM}, s{sREM}, 3')
        a(f's_add_u32 s{sREM}, s{sREM}, 1')
    def qi_fill(tag):
        a(f's_lshl_b32 s{t0}, s{sW}, 2')
        a(f'v_add_u32 v{tA}, s{t0}, v{nOFF0}')
        a(f'v_add_u32 v{tB}, s{t0}, v{nOFF1}')
        a(f'v_max_u32 v{TR}, v{tE}, v{tF}')
        a(f'v_add_u32 v{tC}, {ROWB}, v{nROW0}')
        a(f'v_or_b32 v{tD}, 0x80000000, v{nROW0}')
        a(f'v_or_b32 v{tG}, 0x80000000, v{tC}')
        lp = f'K2_QF{tag}'
        a.label(lp)
        a(f's_add_u32 s{t1}, s{t0}, 4')
        a(f'v_cmp_eq_u32 s[{sSV}:{sSV+1}], s{t1}, v{tE}')
        a(f'v_cmp_eq_u32 s[{sSV2}:{sSV2+1}], s{t1}, v{tF}')
        a(f'v_cmp_lt_u32 vcc, s{t0}, v{tE}')
        a(f'v_cndmask_b32 v{tH}, v{nROW0}, v{tD}, s[{sSV}:{sSV+1}]')
        a(f'v_cndmask_b32 v{tI}, v{tC}, v{tG}, s[{sSV2}:{sSV2+1}]')
        a(f'v_cmp_lt_u32 s[{sSV}:{sSV+1}], s{t0}, v{tF}')
        a('s_mov_b64 exec, vcc')
        a(f'ds_write_b32 v{tA}, v{tH} offset:{L_QI}')
        a(f's_mov_b64 exec, s[{sSV}:{sSV+1}]')
        a(f'ds_write_b32 v{tB}, v{tI} offset:{L_QI}')
        a('s_mov_b64 exec, -1')
        a(f's_add_u32 s{t0}, s{t0}, 32')
        a(f'v_add_u32 v{tA}, 32, v{tA}')
        a(f'v_add_u32 v{tB}, 32, v{tB}')
        a(f'v_cmp_lt_u32 vcc, s{t0}, v{TR}')
        a(f's_cbranch_vccnz {lp}')
    def scatter():
        a('s_waitcnt lgkmcnt(0)')
        for b0 in (0, 8):
            for it in range(b0, b0 + 8):
                a(f'ds_read_b32 v{AX+it}, v{REC+2*it+1} offset:{L_TAB}')
            for it in range(b0, b0 + 8):
                a(f's_mov_b64 exec, s[{MK+2*it}:{MK+2*it+1}]')
                a(f's_waitcnt lgkmcnt({7 - (it-b0) + (it-b0)})')
                a(f'v_lshl_add_u32 v{AX+it}, v{RK+it}, 2, v{AX+it}')
                a(f'ds_write_b32 v{AX+it}, v{REC+2*it} offset:{L_ENT}')
            a('s_mov_b64 exec, -1')

    def setup_ptrs():
        a(f'v_mad_u32_u24 v{tA}, v{sidA}, s{sL}, v{jA}')
        a(f'v_lshlrev_b32 v{pEN}, 4, v{tA}')
        a(f'ds_read_b128 v[{EN}:{EN+3}], v{pEN} offset:{L_ENT}')
        a(f'v_lshlrev_b32 v{pQF}, 2, v{tA}')
        a(f'v_mul_u32_u24 v{pQI}, s{sL}, v{sidA}')
        a(f'v_lshlrev_b32 v{pQI}, 2, v{pQI}')
        a(f'v_add_u32 v{pQI}, {L_QI}, v{pQI}')
        a(f'v_mad_u32_u24 v{tA}, v{sidR}, s{sL}, v{jA}')
        a(f'v_lshl_add_u32 v{pEE}, v{tA}, 4, v{iR4}')
        a(f's_mov_b32 m0, s{sDB}')

    def dma_addr():
        return [f'v_mad_u32_u16 v{EN+i}, v{EN+i}, s{s128}, v{CO+i}' for i in range(4)]
    def dma_issue():
        if opts.get('nodma'): return []
        return [f'buffer_load_dwordx4 v{EN+i}, s[{rX}:{rX+3}], 0 offen offset:{1024*i} lds' if i else
                f'buffer_load_dwordx4 v{EN}, s[{rX}:{rX+3}], 0 offen lds' for i in range(4)]

    def main_loop(tag, atomic):
        flush_blocks = []
        def post(cc, par, nq_check):
            done = a.newlabel('pdone') if nq_check else None
            for j in range(4):
                if nq_check and j > 0:
                    a(f's_cmp_le_u32 s{sREM}, {j}')
                    a(f's_cbranch_scc1 {done}')
                p = PP + 2*j; t = TT_ + 2*j; z = ZZ + 2*j
                a(f'v_pk_fma_f32 v[{NUM+2*cc}:{NUM+2*cc+1}], v[{p}:{p+1}], v[{t}:{t+1}], v[{NUM+2*cc}:{NUM+2*cc+1}]')
                a(f'v_pk_fma_f32 v[{DEN+2*cc}:{DEN+2*cc+1}], v[{p}:{p+1}], v[{z}:{z+1}], v[{DEN+2*cc}:{DEN+2*cc+1}]')
                if opts.get('noflush'): continue
                fl = a.newlabel('fl'); back = a.newlabel('bk')
                a(f's_bitcmp1_b32 s{sANY[par]}, {8*j}')
                a(f's_cbranch_scc1 {fl}')
                a.label(back)
                flush_blocks.append((fl, back, cc, par, j))
            if nq_check: a.label(done)
        def pre(cur):
            g0 = G_[cur]; h0 = H_[cur]
            for j in range(4):
                g = g0 + 4*j
                a(f'v_pk_fma_f32 v[{g}:{g+1}], v[{g}:{g+1}], s[{sC}:{sC+1}], s[{sC}:{sC+1}] clamp')
                a(f'v_pk_fma_f32 v[{g+2}:{g+3}], v[{g+2}:{g+3}], s[{sC}:{sC+1}], s[{sC}:{sC+1}] clamp')
            for j in range(4):
                g = g0 + 4*j; h = h0 + 4*j
                X = f'v[{g}:{g+1}]'; Y = f'v[{g+2}:{g+3}]'
                p = PP + 2*j; t = TT_ + 2*j; z = ZZ + 2*j
                a(f'v_pk_mul_f32 v[{t}:{t+1}], {Y}, v[{h}:{h+1}]')
                a(f'v_pk_mul_f32 v[{p}:{p+1}], {X}, {Y}')
                a(f'v_pk_add_f32 v[{z}:{z+1}], {X}, {Y}')
                a(f'v_pk_fma_f32 v[{t}:{t+1}], {X}, v[{h+2}:{h+3}], v[{t}:{t+1}]')
        def mfma_list(nxt, cc):
            Gs = f'v[{G_[nxt]}:{G_[nxt]+15}]'; Hs = f'v[{H_[nxt]}:{H_[nxt]+15}]'
            out = []
            for kp in range(4):
                wb = WB + 16*cc + 4*kp; wv = WV + 16*cc + 4*kp; ax = AX + 4*kp
                out.append(f'v_mfma_f32_32x32x16_bf16 {Hs}, v[{ax}:{ax+3}], v[{wv}:{wv+3}], {"0" if kp == 0 else Hs}')
                out.append(f'v_mfma_f32_32x32x16_bf16 {Gs}, v[{ax}:{ax+3}], v[{wb}:{wb+3}], {"0" if kp == 0 else Gs}')
            out.append(f'v_mfma_f32_32x32x16_bf16 {Gs}, v[{AE[cc]}:{AE[cc]+3}], v[{BE}:{BE+3}], {Gs}')
            return out
        def trans_list(cur):
            return [f'v_rcp_f32 v{PP+i}, v{PP+i}' for i in range(8)] + [f'v_exp_f32 v{G_[cur]+i}, v{G_[cur]+i}' for i in range(16)]
        def weave(mf, tr, gaps):
            dist = [3, 3, 3, 3, 3, 3, 2, 2, 2]
            if opts.get('nogaps'): gaps = {}
            def keep(ins):
                if opts.get('nods') and ins.startswith('ds_'): return False
                if opts.get('novalu') and ins.startswith('v_'): return False
                if opts.get('nowait') and ins.startswith('s_waitcnt'): return False
                if opts.get('novm') and ins.startswith('buffer_'): return False
                return True
            gaps = {k_: [i_ for i_ in v_ if keep(i_)] for k_, v_ in gaps.items()}
            if opts.get('nomf'): mf = None
            k = 0
            for m in range(9):
                for ins in gaps.get(('m', m), []): a(ins)
                if mf: a(mf[m])
                for _ in range(dist[m]):
                    a(tr[k])
                    for ins in gaps.get(k, []): a(ins)
                    k += 1
            assert k == len(tr)
        def stage0(par):
            g = {}
            da = dma_addr()
            g[0] = [f'ds_read_b32 v{QF}, v{pQF} offset:{L_QI + 16*(par+1)}']
            g[1] = [f'ds_read_b32 v{EE}, v{pEE} offset:{L_ENT + 64*(par+1)}']
            g[3] = [f'v_and_or_b32 v{BE}, v{R0}, s{sHI}, v{BC+1}']
            g[6] = [da[0]]; g[9] = [da[1]]; g[12] = [da[2]]; g[15] = [da[3]]
            weave(mfma_list(1, 1), trans_list(0), g)
            post(1, par ^ 1, False)
            qn = QA[par ^ 1]
            if not opts.get('nogaps') and not opts.get('nopds'):
                a(f'ds_read2_b32 v[{qn}:{qn+1}], v{pQI} offset0:{4*(par+1)} offset1:{4*(par+1)+1}')
                a(f'ds_read2_b32 v[{qn+2}:{qn+3}], v{pQI} offset0:{4*(par+1)+2} offset1:{4*(par+1)+3}')
                a('s_waitcnt vmcnt(0)')
                for kp in range(4):
                    a(f'ds_read_b128 v[{AX+4*kp}:{AX+4*kp+3}], v{RA+kp}')
            pre(0)
            a(f's_sub_u32 s{sCNT}, s{sCNT}, 1')
        def stage1(par):
            qn = QA[par ^ 1]
            g = {}
            di = dma_issue()
            g[('m', 0)] = ['s_waitcnt lgkmcnt(0)']
            g[0] = [f'v_mad_u32_u24 v{qn}, v{qn}, 1, v{C4}'] + di[0:1]
            g[1] = [f'v_mad_u32_u24 v{qn+1}, v{qn+1}, 1, v{C4}'] + di[1:2]
            g[2] = [f'ds_read_b32 v{R0}, v{qn} offset:512'] + di[2:3]
            g[3] = [f'v_mad_u32_u24 v{qn+2}, v{qn+2}, 1, v{C4}', f'ds_read_b32 v{BE+1}, v{qn+1} offset:512'] + di[3:4]
            g[4] = [f'v_mad_u32_u24 v{qn+3}, v{qn+3}, 1, v{C4}', f'ds_read_b32 v{BE+2}, v{qn+2} offset:512']
            g[5] = [f'ds_read_b32 v{BE+3}, v{qn+3} offset:512']
            g[6] = [f'ds_read_b128 v[{EN}:{EN+3}], v{pEN} offset:{L_ENT + 64*(par+3)}']
            g[7] = [f'v_perm_b32 v{AE[0]}, v{EE}, v{AE[0]}, v{SEL[0]}']
            g[9] = [f'v_perm_b32 v{AE[1]}, v{EE}, v{AE[1]}, v{SEL[1]}']
            g[11] = [f'v_cmp_gt_i32 s[{sF[par^1]}:{sF[par^1]+1}], 0, v{QF}']
            if par == 1:
                g[13] = [f'v_add_u32 v{pQI}, 32, v{pQI}']
                g[14] = [f'v_add_u32 v{pQF}, 32, v{pQF}']
                g[15] = [f'v_add_u32 v{pEE}, 128, v{pEE}']
                g[16] = [f'v_add_u32 v{pEN}, 128, v{pEN}']
            g[17] = [f's_or_b32 s{sANY[par^1]}, s{sF[par^1]}, s{sF[par^1]+1}'] if not opts.get('noany') else [f's_mov_b32 s{sANY[par^1]}, 0']
            g[19] = ['s_waitcnt lgkmcnt(0)', f'v_and_or_b32 v{BE}, v{R0}, s{sLO}, v{BC}']
            weave(mfma_list(0, 0), trans_list(1), g)
            post(0, par, False)
            pre(1)
        def last_stage1(par):
            weave(None, trans_list(1), {})
            post(0, par, True)
            pre(1)
            for i in range(8):
                a(f'v_rcp_f32 v{PP+i}, v{PP+i}')
            a('s_nop 0')
            post(1, par, True)
        L0 = f'K2_T0{tag}'; E0 = f'K2_E0{tag}'; E1 = f'K2_E1{tag}'; DONE = f'K2_MD{tag}'
        PR = opts.get('prio', 1)
        if PR:
            a(f's_add_u32 s{t0}, s{sCNT}, 1')
            a(f's_lshr_b32 s{t0}, s{t0}, {2 if PR == 1 else 1}')
            if PR == 3: a(f's_lshr_b32 s{t0}, s{t0}, 0')
            a(f's_lshl_b32 s{t0}, s{t0}, 1')
            a(f's_sub_u32 s{sSWAP}, s{sCNT}, s{t0}')
            a(f's_cmp_ge_u32 s{sW}, 4')
            a(f's_cbranch_scc0 K2_PR0{tag}')
            a('s_setprio 1')
            a.label(f'K2_PR0{tag}')
        a.label(L0)
        if PR:
            a(f's_cmp_eq_u32 s{sCNT}, s{sSWAP}')
            a(f's_cbranch_scc1 K2_SWP{tag}')
            a.label(f'K2_SWB{tag}')
        stage0(0)
        a(f's_cbranch_scc1 {E0}')
        stage1(0)
        stage0(1)
        a(f's_cbranch_scc1 {E1}')
        stage1(1)
        a(f's_branch {L0}')
        a.label(E0)
        last_stage1(0)
        a(f's_branch {DONE}')
        a.label(E1)
        last_stage1(1)
        a(f's_branch {DONE}')
        if PR:
            a.label(f'K2_SWP{tag}')
            a(f's_cmp_ge_u32 s{sW}, 4')
            a(f's_cbranch_scc1 K2_SW0{tag}')
            a('s_setprio 1')
            a(f's_branch K2_SWB{tag}')
            a.label(f'K2_SW0{tag}')
            a('s_setprio 0')
            a(f's_branch K2_SWB{tag}')
        for (fl, back, cc, par, j) in flush_blocks:
            a.label(fl)
            a(f's_bfe_i32 exec_lo, s{sF[par]}, 0x{(1<<16)|(8*j):x}')
            a(f's_bfe_i32 exec_hi, s{sF[par]+1}, 0x{(1<<16)|(8*j):x}')
            a(f'v_add_f32 v{F0}, v{DEN+2*cc}, v{DEN+2*cc+1}')
            a(f'v_add_f32 v{F1}, v{NUM+2*cc}, v{NUM+2*cc+1}')
            a(f'v_mov_b64 v[{DEN+2*cc}:{DEN+2*cc+1}], 0')
            a(f'v_mov_b64 v[{NUM+2*cc}:{NUM+2*cc+1}], 0')
            if atomic:
                a(f'ds_add_f32 v{QA[par]+j}, v{F0} offset:{cc*128}')
                a(f'ds_add_f32 v{QA[par]+j}, v{F1} offset:{256+cc*128}')
            else:
                a(f'ds_write2_b32 v{QA[par]+j}, v{F0}, v{F1} offset0:{cc*32} offset1:{64+cc*32}')
            a('s_mov_b64 exec, -1')
            a(f's_branch {back}')
        a.label(DONE)
        if PR: a('s_setprio 0')

    def pipeline_fill():
        q0 = QA[0]
        a(f'ds_read2_b32 v[{q0}:{q0+1}], v{pQI} offset0:0 offset1:1')
        a(f'ds_read2_b32 v[{q0+2}:{q0+3}], v{pQI} offset0:2 offset1:3')
        a(f'ds_read_b32 v{QF}, v{pQF} offset:{L_QI}')
        a(f'ds_read_b32 v{EE}, v{pEE} offset:{L_ENT}')
        a(f'ds_read_b128 v[{EN}:{EN+3}], v{pEN} offset:{L_ENT + 64}')
        for i in range(2):
            a(f'v_mov_b64 v[{DEN+2*i}:{DEN+2*i+1}], 0')
            a(f'v_mov_b64 v[{NUM+2*i}:{NUM+2*i+1}], 0')
        for i in range(8):
            a(f'v_mov_b32 v{PP+i}, 1.0')
        for i in range(4):
            a(f'v_mov_b64 v[{TT_+2*i}:{TT_+2*i+1}], 0')
            a(f'v_mov_b64 v[{ZZ+2*i}:{ZZ+2*i+1}], 0')
        a(f's_mov_b32 s{sANY[1]}, 0')
        a('s_waitcnt lgkmcnt(0)')
        for q in range(4):
            a(f'v_mad_u32_u24 v{q0+q}, v{q0+q}, 1, v{C4}')
        a(f'ds_read_b32 v{R0}, v{q0} offset:512')
        for q in range(1, 4):
            a(f'ds_read_b32 v{BE+q}, v{q0+q} offset:512')
        a(f'v_perm_b32 v{AE[0]}, v{EE}, v{AE[0]}, v{SEL[0]}')
        a(f'v_perm_b32 v{AE[1]}, v{EE}, v{AE[1]}, v{SEL[1]}')
        a(f'v_cmp_gt_i32 s[{sF[0]}:{sF[0]+1}], 0, v{QF}')
        for ins in dma_addr(): a(ins)
        a('s_waitcnt vmcnt(0)')
        for kp in range(4):
            a(f'ds_read_b128 v[{AX+4*kp}:{AX+4*kp+3}], v{RA+kp}')
        a(f's_or_b32 s{sANY[0]}, s{sF[0]}, s{sF[0]+1}')
        a('s_waitcnt lgkmcnt(0)')
        a(f'v_and_or_b32 v{BE}, v{R0}, s{sLO}, v{BC}')
        for ins in dma_issue(): a(ins)
        a(f'ds_read_b128 v[{EN}:{EN+3}], v{pEN} offset:{L_ENT + 128}')
        Gs = f'v[{GA}:{GA+15}]'; Hs = f'v[{HA}:{HA+15}]'
        for kp in range(4):
            a(f'v_mfma_f32_32x32x16_bf16 {Hs}, v[{AX+4*kp}:{AX+4*kp+3}], v[{WV+4*kp}:{WV+4*kp+3}], {"0" if kp == 0 else Hs}')
            a(f'v_mfma_f32_32x32x16_bf16 {Gs}, v[{AX+4*kp}:{AX+4*kp+3}], v[{WB+4*kp}:{WB+4*kp+3}], {"0" if kp == 0 else Gs}')
        a(f'v_mfma_f32_32x32x16_bf16 {Gs}, v[{AE[0]}:{AE[0]+3}], v[{BE}:{BE+3}], {Gs}')
        a('s_waitcnt lgkmcnt(0)')
        a('s_nop 7')
        a('s_nop 3')
    def forced_flags():
        a(f's_sub_u32 s{t1}, s{sL}, 1')
        a(f's_lshl_b32 s{t1}, s{t1}, 2')
        a(f'v_add_u32 v{tB}, s{t1}, v{pQI}')
        a(f'v_mov_b32 v{tA}, 0x80000000')
        a('s_mov_b32 exec_lo, 1')
        a('s_mov_b32 exec_hi, 1')
        a(f'ds_or_b32 v{tB}, v{tA}')
        a('s_mov_b64 exec, -1')

    a('s_waitcnt vmcnt(16) lgkmcnt(0)')
    a('s_barrier')
    stamp(2)
    a(f's_mov_b64 exec, s[{sSV2}:{sSV2+1}]')
    a(f'v_mov_b32 v{tD}, {L_CNT + 127*4}')
    a(f'v_mov_b32 v{tE}, 1')
    a(f'ds_write_b32 v{tD}, v{tE}')
    a('s_mov_b64 exec, -1')
    gemm_issue()
    gemm_mid()
    gemm_mid2()
    w_frags()
    consts()
    gemm_store('F')
    stamp(3)
    a('s_waitcnt vmcnt(0)')
    hist()
    a('s_waitcnt lgkmcnt(0)')
    a('s_barrier')
    stamp(4)
    scan_nodes('F')
    a(f'v_readlane_b32 s{t0}, v{TQ+1}, 63')
    a(f's_lshl_b32 s{t1}, s{sL}, 2')
    a(f'v_cmp_lt_u32 vcc, s{t1}, v{tB}')
    a(f's_cmp_lg_u32 s{t0}, 0')
    a('s_cbranch_scc1 K2_SLOW')
    a(f's_cmp_gt_u32 s{sL}, {(ENT_QUADS - 8) // NSTREAM}')
    a('s_cbranch_scc1 K2_SLOW')
    a('s_cbranch_vccnz K2_SLOW')
    a(f'v_mov_b32 v{tA}, {L_ZERO}')
    a(f'v_cmp_gt_u32 vcc, {MAXN // 2}, v{vLANE}')
    a(f'v_lshl_or_b32 v{tB}, v{vLANE}, 1, 1')
    a(f'v_cmp_le_u32 s[{sSV}:{sSV+1}], s{sNN}, v{tB}')
    a(f'v_mov_b32 v{tC}, 1')
    a('s_nop 0')
    a(f'v_cndmask_b32 v{tB}, v{TQ+1}, v{tC}, s[{sSV}:{sSV+1}]')
    a(f'v_min_u32 v{tB}, v{TQ}, v{tB}')
    a(f'v_cmp_eq_u32 s[{sSV}:{sSV+1}], 0, v{tB}')
    a('s_mov_b64 exec, vcc')
    a(f'ds_write_b32 v{nROW0}, v{tA} offset:768')
    a(f'ds_write_b32 v{nROW0}, v{tA} offset:{768 + ROWB}')
    a('s_mov_b64 exec, -1')
    a(f's_and_b64 s[{sSV}:{sSV+1}], s[{sSV}:{sSV+1}], vcc')
    a('s_cbranch_scc1 K2_ZROWS')
    a.label('K2_ZBACK')
    qi_fill('F')
    scatter()
    a('s_waitcnt lgkmcnt(0)')
    a('s_barrier')
    stamp(5)
    a(f's_cmp_eq_u32 s{sL}, 0')
    a('s_cbranch_scc1 K2_EPI')
    setup_ptrs()
    a('s_waitcnt lgkmcnt(0)')
    for ins in dma_addr(): a(ins)
    for ins in dma_issue(): a(ins)
    a(f'v_add_u32 v{tI}, {ROWB}, v{nROW0}')
    for hs in range(2):
        lab = f'K2_NC{hs}'
        a(f's_lshl_b32 s{t0}, s{sW}, 1')
        if hs: a(f's_add_u32 s{t0}, s{t0}, 1')
        a(f's_mul_i32 s{t1}, s{t0}, s{sL}')
        a(f's_lshl_b32 s{t1}, s{t1}, 2')
        a(f'v_cmp_gt_u32 vcc, s{t1}, v{nOFF0}')
        a(f'v_cmp_lt_u32 s[{sSV}:{sSV+1}], s{t1}, v{nEND0}')
        a(f's_and_b64 s[{sSV}:{sSV+1}], s[{sSV}:{sSV+1}], vcc')
        a(f'v_cmp_gt_u32 vcc, s{t1}, v{nOFF1}')
        a(f'v_cmp_lt_u32 s[{sSV2}:{sSV2+1}], s{t1}, v{nEND1}')
        a(f's_and_b64 vcc, vcc, s[{sSV2}:{sSV2+1}]')
        a(f'v_cndmask_b32 v{tA}, v{tI}, v{nROW0}, s[{sSV}:{sSV+1}]')
        a(f'v_cndmask_b32 v{tB}, v{nEND1}, v{nEND0}, s[{sSV}:{sSV+1}]')
        a(f's_or_b64 vcc, vcc, s[{sSV}:{sSV+1}]')
        a(f's_cbranch_scc0 {lab}')
        a(f's_ff1_i32_b64 s{t2}, vcc')
        a(f's_mul_i32 s{t0}, s{t0}, {VROWB}')
        a(f's_add_u32 s{t0}, s{t0}, {L_VIRT}')
        a(f'v_readlane_b32 s{t3}, v{tA}, s{t2}')
        a(f'v_readlane_b32 s{t2}, v{tB}, s{t2}')
        a(f'v_lshl_add_u32 v{tC}, v{vLANE}, 2, s{t1}')
        a(f'v_lshl_add_u32 v{tD}, v{vLANE}, 2, s{t3}')
        a(f's_mov_b32 exec_hi, 0')
        a(f'ds_read_b32 v{tE}, v{tD} offset:512')
        a('s_mov_b64 exec, -1')
        a(f'v_add_u32 v{tF}, 4, v{tC}')
        a(f'v_cmp_eq_u32 s[{sSV}:{sSV+1}], s{t2}, v{tF}')
        a(f'v_cmp_gt_u32 vcc, s{t2}, v{tC}')
        a(f'v_mov_b32 v{tF}, s{t0}')
        a(f'v_or_b32 v{tG}, 0x80000000, v{tF}')
        a(f'v_cndmask_b32 v{tG}, v{tF}, v{tG}, s[{sSV}:{sSV+1}]')
        a('s_mov_b64 exec, vcc')
        a(f'ds_write_b32 v{tC}, v{tG} offset:{L_QI}')
        a('s_mov_b32 exec_lo, -1')
        a('s_mov_b32 exec_hi, 0')
        a(f'v_lshl_add_u32 v{tD}, v{vLANE}, 2, v{tF}')
        a(f'v_mov_b32 v{tC}, s{t3}')
        a('s_waitcnt lgkmcnt(1)')
        a(f'ds_write_b32 v{tD}, v{tE} offset:512')
        a(f'ds_write_b32 v{tC}, v{tF} offset:768')
        a('s_mov_b64 exec, -1')
        a.label(lab)
    forced_flags()
    pipeline_fill()
    stamp(6)
    if opts.get('dbgtime'):
        a(f's_memrealtime s[{t2}:{t3}]')
        a('s_waitcnt lgkmcnt(0)')
        a(f's_mov_b32 s{sT1}, s{t2}')
    if STAMP:
        a(f's_memrealtime s[{t2}:{t3}]')
        a('s_waitcnt lgkmcnt(0)')
        a(f'v_writelane_b32 v{vST}, s{t2}, 13')
    if opts.get('half'):
        a(f's_cmp_ge_u32 s{sW}, 4')
        a('s_cbranch_scc1 K2_MDF')
    main_loop('F', False)
    stamp(7)
    if opts.get('dbgtime'):
        a(f's_memrealtime s[{t2}:{t3}]')
        a('s_waitcnt lgkmcnt(0)')
        a(f's_mov_b32 s{sT2}, s{t2}')
    if STAMP:
        a(f's_memrealtime s[{t2}:{t3}]')
        a('s_waitcnt lgkmcnt(0)')
        a(f'v_writelane_b32 v{vST}, s{t2}, 14')
    a.label('K2_EPI')
    e0 = 4
    XV = [e0, e0 + 4]; DN = e0 + 8; NM = e0 + 16; UU = e0 + 24; CD = e0 + 28; CN = e0 + 36; O = e0 + 44
    AD = e0 + 48; GO = [e0 + 49, e0 + 50]; T1 = e0 + 51; T2 = e0 + 52; CP = e0 + 53; ND = e0 + 54; OC = [e0 + 55, e0 + 56]; ADR = [e0 + 48, e0 + 57]
    def epi_addr(r):
        a(f'v_add_u32 v{T1}, {512*r}, v0') if r else a(f'v_mov_b32 v{T1}, v0')
        a(f'v_lshrrev_b32 v{ND}, 3, v{T1}')
        a(f'v_and_b32 v{T1}, 7, v{T1}')
        a(f'v_lshlrev_b32 v{OC[r]}, 4, v{T1}')
        a(f'v_mad_u32_u24 v{ADR[r]}, v{ND}, s{t0}, v{OC[r]}')
        a(f'v_add_u32 v{ADR[r]}, {L_ACC}, v{ADR[r]}')
        a(f'v_add_u32 v{GO[r]}, s{sNS}, v{ND}')
        a(f'v_lshlrev_b32 v{GO[r]}, 7, v{GO[r]}')
        a(f'v_lshl_add_u32 v{GO[r]}, v{T1}, 3, v{GO[r]}')
    def epi_body(r, carry):
        ad = ADR[r]; xv = XV[r]
        if carry:
            a(f'v_sub_u32 v{T2}, v{ad}, v{OC[r]}')
            a(f'ds_read_b32 v{CP}, v{T2} offset:768')
        a(f'ds_read_b128 v[{DN}:{DN+3}], v{ad}')
        a(f'ds_read_b128 v[{DN+4}:{DN+7}], v{ad} offset:128')
        a(f'ds_read_b128 v[{NM}:{NM+3}], v{ad} offset:256')
        a(f'ds_read_b128 v[{NM+4}:{NM+7}], v{ad} offset:384')
        a(f'ds_read_b128 v[{UU}:{UU+3}], v{ad} offset:640')
        if carry:
            a('s_waitcnt lgkmcnt(5)')
            a(f'v_add_u32 v{T2}, v{CP}, v{OC[r]}')
            a(f'ds_read_b128 v[{CD}:{CD+3}], v{T2}')
            a(f'ds_read_b128 v[{CD+4}:{CD+7}], v{T2} offset:128')
            a(f'ds_read_b128 v[{CN}:{CN+3}], v{T2} offset:256')
            a(f'ds_read_b128 v[{CN+4}:{CN+7}], v{T2} offset:384')
        a('s_waitcnt lgkmcnt(0)')
        if carry:
            for i in range(0, 8, 2):
                a(f'v_pk_add_f32 v[{DN+i}:{DN+i+1}], v[{DN+i}:{DN+i+1}], v[{CD+i}:{CD+i+1}]')
                a(f'v_pk_add_f32 v[{NM+i}:{NM+i+1}], v[{NM+i}:{NM+i+1}], v[{CN+i}:{CN+i+1}]')
        for i in range(0, 8, 2):
            a(f'v_pk_add_f32 v[{DN+i}:{DN+i+1}], v[{DN+i}:{DN+i+1}], s[{sC}:{sC+1}]')
        for i in range(8):
            a(f'v_rcp_f32 v{DN+i}, v{DN+i}')
        for i in range(4):
            a(f'v_lshlrev_b32 v{CD+i}, 16, v{UU+i}')
            a(f'v_and_b32 v{CD+4+i}, s{sHI}, v{UU+i}')
        for i in range(0, 8, 2):
            a(f'v_pk_fma_f32 v[{NM+i}:{NM+i+1}], v[{NM+i}:{NM+i+1}], v[{DN+i}:{DN+i+1}], v[{CD+i}:{CD+i+1}]')
        a(f's_waitcnt vmcnt({2 if r == 0 else 0})') if True else None
        for i in range(8):
            a(f'v_max_f32 v{NM+i}, 0, v{NM+i}')
        for i in range(4):
            a(f'v_lshlrev_b32 v{CD+2*i}, 16, v{xv+i}')
            a(f'v_and_b32 v{CD+2*i+1}, s{sHI}, v{xv+i}')
        for i in range(0, 8, 2):
            a(f'v_pk_add_f32 v[{NM+i}:{NM+i+1}], v[{NM+i}:{NM+i+1}], v[{CD+i}:{CD+i+1}]')
        for i in range(4):
            a(f'v_cvt_pk_bf16_f32 v{O+i}, v{NM+2*i}, v{NM+2*i+1}')
        a(f'buffer_store_dwordx2 v[{O}:{O+1}], v{GO[r]}, s[{rO}:{rO+3}], 0 offen')
        a(f'buffer_store_dwordx2 v[{O+2}:{O+3}], v{GO[r]}, s[{rO}:{rO+3}], 0 offen offset:64')
    def epilogue(tag, carry):
        srd(a, rO, sOUT, N * 128)
        srd(a, rF, sX, N * 128)
        a(f's_mov_b32 s{t0}, {ROWB}')
        a(f's_mov_b32 s{sC}, 0x{EPS_SCALED:x}')
        a(f's_mov_b32 s{sC+1}, 0x{EPS_SCALED:x}')
        a(f's_mov_b32 s{sHI}, 0xffff0000')
        a('s_waitcnt vmcnt(0)')
        epi_addr(0)
        a(f'buffer_load_dwordx2 v[{XV[0]}:{XV[0]+1}], v{GO[0]}, s[{rF}:{rF+3}], 0 offen')
        a(f'buffer_load_dwordx2 v[{XV[0]+2}:{XV[0]+3}], v{GO[0]}, s[{rF}:{rF+3}], 0 offen offset:64')
        epi_addr(1)
        a(f'v_cmp_gt_u32 s[{sSV}:{sSV+1}], s{sNN}, v{ND}')
        a(f'buffer_load_dwordx2 v[{XV[1]}:{XV[1]+1}], v{GO[1]}, s[{rF}:{rF+3}], 0 offen')
        a(f'buffer_load_dwordx2 v[{XV[1]+2}:{XV[1]+3}], v{GO[1]}, s[{rF}:{rF+3}], 0 offen offset:64')
        a('s_waitcnt lgkmcnt(0)')
        a('s_barrier')
        if STAMP and tag == 'F': stamp(8)
        epi_body(0, carry)
        a(f's_mov_b64 exec, s[{sSV}:{sSV+1}]')
        a(f's_cbranch_execz K2_FIN{tag}')
        epi_body(1, carry)
        a.label(f'K2_FIN{tag}')
    epilogue('F', True)
    if opts.get('dbgtime'):
        a('s_mov_b64 exec, -1')
        a('s_waitcnt vmcnt(0)')
        a(f's_memrealtime s[{t2}:{t3}]')
        a(f's_cmp_lg_u32 s{sW}, 7')
        a('s_cbranch_scc1 K2_DBGX')
        a('s_and_b32 s3, s2, 31')
        a('s_cmp_lg_u32 s3, 0')
        a('s_cbranch_scc1 K2_DBGX')
        a('s_lshr_b32 s3, s2, 5')
        a('s_cmp_ge_u32 s3, 2')
        a('s_cbranch_scc1 K2_DBGX')
        a(f's_lshl_b32 s{t0}, s3, 2')
        a(f's_add_u32 s{t0}, s{t0}, 0x1200000')
        a(f'v_mov_b32 v4, s{t0}')
        a(f'global_load_dword v5, v4, s[{sWS}:{sWS+1}]')
        a(f'global_load_dword v6, v4, s[{sWS}:{sWS+1}] offset:256')
        a('s_waitcnt vmcnt(0) lgkmcnt(0)')
        a(f'v_sub_u32 v8, v6, v5')
        a(f'v_sub_u32 v9, s{sT0}, v5')
        a(f'v_sub_u32 v10, s{sT1}, v5')
        a(f'v_sub_u32 v11, s{sT2}, v5')
        a(f'v_sub_u32 v12, s{t2}, v5')
        a('s_lshl_b32 s3, s3, 5')
        a('v_mov_b32 v4, s3')
        a('s_mov_b64 exec, 1')
        a(f'global_store_dwordx4 v4, v[8:11], s[{sDBG}:{sDBG+1}]')
        a(f'global_store_dword v4, v12, s[{sDBG}:{sDBG+1}] offset:16')
        a.label('K2_DBGX')
    if STAMP:
        a('s_mov_b64 exec, -1')
        a('s_waitcnt vmcnt(0)')
        stamp(9)
        a(f's_memrealtime s[{t2}:{t3}]')
        a('s_waitcnt lgkmcnt(0)')
        a(f'v_writelane_b32 v{vST}, s{t2}, 12')
        a(f's_mul_i32 s{t0}, s2, {NW}')
        a(f's_add_u32 s{t0}, s{t0}, s{sW}')
        a(f's_lshl_b32 s{t0}, s{t0}, 8')
        a(f's_add_u32 s{t0}, s{t0}, 0x1000000')
        srd_off(a, rT, sWS, f's{t0}', 256)
        a(f'v_writelane_b32 v{vST}, s{sL}, 10')
        a(f'v_lshlrev_b32 v4, 2, v{vLANE}')
        a(f'buffer_store_dword v{vST}, v4, s[{rT}:{rT+3}], 0 offen')
    a('s_endpgm')
    a.label('K2_ZROWS')
    a(f's_mov_b64 exec, s[{sSV}:{sSV+1}]')
    for i in range(4):
        a(f'v_mov_b32 v{TR+i}, 0')
    for nd in range(2):
        a(f'v_cmp_eq_u32 vcc, 0, v{TQ+nd}')
        a(f's_and_b64 exec, vcc, s[{sSV}:{sSV+1}]')
        for k in range(32):
            a(f'ds_write_b128 v{nROW0}, v[{TR}:{TR+3}] offset:{nd*ROWB + 16*k}')
        a(f's_mov_b64 exec, s[{sSV}:{sSV+1}]')
    a('s_mov_b64 exec, -1')
    a('s_branch K2_ZBACK')

    a.label('K2_SLOW')
    a('s_waitcnt vmcnt(0) lgkmcnt(0)')
    a('s_barrier')
    a(f's_lshl_b32 s{t1}, s2, 10')
    a(f's_add_u32 s{t1}, s{t1}, {WS_TAB2}')
    srd_off(a, rT, sWS, f's{t1}', 1024)
    a(f'v_lshlrev_b32 v{tA}, 4, v{vLANE}')
    a(f'buffer_load_dwordx4 v[{TQ}:{TQ+3}], v{tA}, s[{rT}:{rT+3}], 0 offen')
    a('s_waitcnt vmcnt(0)')
    a(f'v_max_u32 v{tE}, v{TQ}, v{TQ+1}')
    a(f'v_max3_u32 v{tE}, v{tE}, v{TQ+2}, v{TQ+3}')
    wave_scan(a, 'v_max_u32', tE)
    a('s_nop 0')
    a(f'v_readlane_b32 s{t1}, v{tE}, 63')
    a(f's_add_u32 s{t1}, s{t1}, {WSLOW-1}')
    a(f's_mul_i32 s{t1}, s{t1}, 5042')
    a(f's_lshr_b32 s{sNP}, s{t1}, 16')
    a(f's_mov_b32 s{sP}, 0')
    for i in range(4):
        a(f'v_mov_b32 v{TR+i}, 0')
    a(f'v_lshrrev_b32 v{tA}, 5, v0')
    a(f'v_mul_u32_u24 v{tA}, {ROWB}, v{tA}')
    a(f'v_and_b32 v{tB}, 31, v{vLANE}')
    a(f'v_lshl_add_u32 v{tA}, v{tB}, 4, v{tA}')
    a(f'v_add_u32 v{tA}, {L_ACC}, v{tA}')
    for i in range(6):
        a(f'ds_write_b128 v{tA}, v[{TR}:{TR+3}]')
        a(f'v_add_u32 v{tA}, {16*ROWB}, v{tA}')
    a(f'v_cmp_gt_u32 vcc, 64, v0')
    a(f's_and_saveexec_b64 s[{sSV}:{sSV+1}], vcc')
    a(f'ds_write_b128 v{tA}, v[{TR}:{TR+3}]')
    a(f's_mov_b64 exec, s[{sSV}:{sSV+1}]')
    a.label('K2_SPASS')
    a(f's_lshl_b32 s{t1}, s2, 10')
    a(f's_add_u32 s{t1}, s{t1}, {WS_TAB}')
    srd_off(a, rT, sWS, f's{t1}', WS_TAB2 - WS_TAB + 1024)
    a(f'v_lshlrev_b32 v{tD}, 6, v{sidA}')
    a(f's_mov_b32 s{t0}, {WS_TAB2 - WS_TAB}')
    for i in range(4):
        a(f'buffer_load_dwordx4 v[{SG+4*i}:{SG+4*i+3}], v{tD}, s[{rT}:{rT+3}], 0 offen offset:{16*i}')
    for i in range(4):
        a(f'buffer_load_dwordx4 v[{AX+4*i}:{AX+4*i+3}], v{tD}, s[{rT}:{rT+3}], s{t0} offen offset:{16*i}')
    a(f'v_and_b32 v{tC}, 31, v{vLANE}')
    a(f's_mul_i32 s{t0}, s{sP}, {WSLOW}')
    a(f'v_cmp_gt_u32 vcc, {WSLOW}, v{tC}')
    a(f'v_add_u32 v{tC}, s{t0}, v{tC}')
    a(f'v_lshlrev_b32 v{tB}, 3, v{tC}')
    a(f'v_mov_b32 v{tD}, 0x10000')
    a(f'v_cndmask_b32 v{tC}, v{tD}, v{tC}, vcc')
    a('s_waitcnt vmcnt(0)')
    for it in range(NIT):
        a(f'v_cmp_gt_u32 s[{MK+2*it}:{MK+2*it+1}], v{AX+it}, v{tC}')
    rec_loads(tB)
    lds_init()
    a('s_waitcnt vmcnt(0) lgkmcnt(0)')
    a('s_barrier')
    hist()
    a('s_waitcnt lgkmcnt(0)')
    a('s_barrier')
    scan_nodes('S')
    qi_fill('S')
    scatter()
    a('s_waitcnt lgkmcnt(0)')
    a('s_barrier')
    a(f's_cmp_eq_u32 s{sL}, 0')
    a('s_cbranch_scc1 K2_SNEXT')
    setup_ptrs()
    a('s_waitcnt lgkmcnt(0)')
    for ins in dma_addr(): a(ins)
    for ins in dma_issue(): a(ins)
    forced_flags()
    pipeline_fill()
    main_loop('S', True)
    a.label('K2_SNEXT')
    a('s_waitcnt vmcnt(0) lgkmcnt(0)')
    a('s_barrier')
    a(f's_add_u32 s{sP}, s{sP}, 1')
    a(f's_cmp_lt_u32 s{sP}, s{sNP}')
    a('s_cbranch_scc1 K2_SPASS')
    epilogue('S', False)
    a.label('K2_END')
    a('s_endpgm')
    return nvgpr, nsgpr

def kd(name, nv, ns):
    acc = (nv + 3) // 4 * 4
    return f'''.amdhsa_kernel {name}
  .amdhsa_next_free_vgpr {nv}
  .amdhsa_next_free_sgpr {ns}
  .amdhsa_accum_offset {acc}
  .amdhsa_group_segment_fixed_size 0
  .amdhsa_kernarg_size 96
  .amdhsa_user_sgpr_count 2
  .amdhsa_user_sgpr_kernarg_segment_ptr 1
  .amdhsa_system_sgpr_workgroup_id_x 1
  .amdhsa_float_denorm_mode_32 3
.end_amdhsa_kernel
'''

def build(opts=None):
    opts = opts or {}
    a = Asm()
    gen_k1(a, opts)
    nv, ns = gen_k2(a, opts)
    out = HEADER
    out += f'; @launch kernel=gs_part_kernel grid=(256,1,1) block=({K1_THREADS},1,1) lds={LDS_K1}\n'
    out += f'; @launch kernel=gs_main_kernel grid=(256,1,1) block=({NW*64},1,1) lds={LDS_MAIN}\n'
    out += '.amdgcn_target "amdgcn-amd-amdhsa--gfx950"\n.text\n'
    out += a.text()
    out += '.section .rodata,"a"\n.p2align 6\n'
    out += kd('gs_part_kernel', 60, 60)
    out += '.p2align 6\n'
    out += kd('gs_main_kernel', nv, ns)
    return out

if __name__ == '__main__':
    path = sys.argv[1] if len(sys.argv) > 1 else 'gather_scatter__edge_featured_mpnn_gatedgcn__graph.s'
    opts = {}
    for o in sys.argv[2:]:
        k, _, val = o.partition('=')
        opts[k] = int(val) if val else True
    open(path, 'w').write(build(opts))
    print('written', path, 'LDS', LDS_MAIN)
```

```python
import sys, os, struct
sys.path.insert(0, os.path.dirname(__file__))
from asmlib import *

N = 25000; E = 800000
NBK = 256
CH = 3136
RECB = CH * 8
WS_TAB = 0x700000
WS_TAB2 = 0x740000
WS_FRAG = 0x780000
MAGIC_B = 43980466
LOG2E = 0xBFB8AA3B
SBITS = 50
C_SCALE = (127 - SBITS) << 23
EPS_SCALED = 0x4E8637BD
assert abs(struct.unpack('<f', struct.pack('<I', EPS_SCALED))[0] / (1e-6 * 2.0**50) - 1) < 1e-6

NW = 8
NSTREAM = 16
NIT = 16
CAP = 3456
WSLOW = 13
ROWB = 784
MAXN = 98
ENT_QUADS = 960
VROWB = 640
L_CNT = 0
L_ZERO = 512
L_TAB = 1024
L_QI = 1536
L_ENT = L_QI + ENT_QUADS * 4
L_ACC = L_ENT + ENT_QUADS * 16
L_VIRT = L_ACC + MAXN * ROWB
L_WST = L_VIRT + NSTREAM * VROWB
L_WST = (L_WST + 255) // 256 * 256
L_DMA = L_WST + 16384
LDS_MAIN = L_DMA + NW * 4096
assert LDS_MAIN <= 163840, LDS_MAIN
assert L_ACC % 16 == 0 and L_VIRT % 16 == 0

K1_THREADS = 896
K1_HIST = 0
K1_STAGE = 1024
LDS_K1 = K1_STAGE + RECB

HEADER = open(os.path.join(os.path.dirname(__file__), 'header.txt')).read()

def srd(a, sreg, ptr, size):
    a(f's_mov_b32 s{sreg}, s{ptr}')
    a(f's_and_b32 s{sreg+1}, s{ptr+1}, 0xffff')
    a(f's_mov_b32 s{sreg+2}, {size}')
    a(f's_mov_b32 s{sreg+3}, 0x20000')

def srd_off(a, sreg, ptr, off, size):
    a(f's_add_u32 s{sreg}, s{ptr}, {off}')
    a(f's_addc_u32 s{sreg+1}, s{ptr+1}, 0')
    a(f's_and_b32 s{sreg+1}, s{sreg+1}, 0xffff')
    a(f's_mov_b32 s{sreg+2}, {size}')
    a(f's_mov_b32 s{sreg+3}, 0x20000')

def wave_scan(a, op, r):
    for sh in (1, 2, 4, 8):
        a('s_nop 1')
        a(f'{op}_dpp v{r}, v{r}, v{r} row_shr:{sh} row_mask:0xf bank_mask:0xf')
    a('s_nop 1')
    a(f'{op}_dpp v{r}, v{r}, v{r} row_bcast:15 row_mask:0xa bank_mask:0xf')
    a('s_nop 1')
    a(f'{op}_dpp v{r}, v{r}, v{r} row_bcast:31 row_mask:0xc bank_mask:0xf')

def wave_scan2(a, op1, r1, op2, r2):
    steps = [f'row_shr:{sh} row_mask:0xf bank_mask:0xf' for sh in (1, 2, 4, 8)] + \
            ['row_bcast:15 row_mask:0xa bank_mask:0xf', 'row_bcast:31 row_mask:0xc bank_mask:0xf']
    a('s_nop 1')
    for st in steps:
        a(f'{op1}_dpp v{r1}, v{r1}, v{r1} {st}')
        a(f'{op2}_dpp v{r2}, v{r2}, v{r2} {st}')
        a('s_nop 0')

def gen_k1(a, opts):
    a.raw('.p2align 8')
    a.raw('.globl gs_part_kernel')
    a.raw('.type gs_part_kernel,@function')
    a.label('gs_part_kernel')
    a('s_cmp_ge_u32 s2, 256')
    a('s_cbranch_scc1 K1_END')
    a('s_load_dwordx4 s[4:7], s[0:1], 8')
    a('s_load_dwordx2 s[8:9], s[0:1], 24')
    a('s_load_dwordx2 s[10:11], s[0:1], 88')
    a('s_load_dwordx2 s[44:45], s[0:1], 0')
    if opts.get('dbgtime'):
        a('s_memrealtime s[54:55]')
        a('s_waitcnt lgkmcnt(0)')
        a('s_cmp_ge_u32 s2, 8')
        a('s_cbranch_scc1 K1_NODBG')
        a('v_mov_b32 v20, s54')
        a('s_lshl_b32 s56, s2, 2')
        a('s_add_u32 s56, s56, 0x1200000')
        a('v_mov_b32 v22, s56')
        a('v_cmp_eq_u32 vcc, 0, v0')
        a('s_and_saveexec_b64 s[58:59], vcc')
        a('global_store_dword v22, v20, s[10:11]')
        a('s_mov_b64 exec, s[58:59]')
        a.label('K1_NODBG')
    a('v_lshrrev_b32 v1, 6, v0')
    a('s_mul_i32 s12, s2, %d' % (CH * 4))
    a('v_readfirstlane_b32 s3, v1')
    a('s_lshr_b32 s13, s12, 1')
    a('v_lshlrev_b32 v2, 4, v0')
    a('v_add_u32 v2, s12, v2')
    a('s_cmp_eq_u32 s3, 13')
    a('s_cbranch_scc1 K1_FRAG')
    a('v_lshlrev_b32 v3, 3, v0')
    a('v_add_u32 v3, s13, v3')
    a('s_waitcnt lgkmcnt(0)')
    srd(a, 20, 8, E * 4)
    a('buffer_load_dwordx4 v[4:7], v2, s[20:23], 0 offen')
    srd(a, 24, 6, E * 4)
    a('buffer_load_dwordx4 v[8:11], v2, s[24:27], 0 offen')
    srd(a, 28, 4, E * 2)
    a('buffer_load_dwordx2 v[12:13], v3, s[28:31], 0 offen')
    if opts.get('xpre', 1):
        a('s_and_b32 s46, s2, 7')
        a('s_lshr_b32 s47, s2, 3')
        a('s_lshl_b32 s46, s46, 5')
        a('s_add_u32 s46, s46, s47')
        a('s_mul_i32 s46, s46, 3125')
        a('s_add_u32 s46, s46, 31')
        a('s_lshr_b32 s46, s46, 5')
        a('s_lshl_b32 s46, s46, 7')
        a('s_and_b32 s45, s45, 0xffff')
        a('s_mov_b32 s48, s44')
        a('s_mov_b32 s49, s45')
        a('s_mov_b32 s50, %d' % (N * 128))
        a('s_mov_b32 s51, 0x20000')
        a('v_lshlrev_b32 v40, 4, v0')
        a('buffer_load_dwordx4 v[56:59], v40, s[48:51], s46 offen')
    a('v_lshlrev_b32 v14, 2, v0')
    a('v_mov_b32 v15, 0')
    a('v_cmp_gt_u32 vcc, 256, v0')
    a('s_and_saveexec_b64 s[18:19], vcc')
    a('ds_write_b32 v14, v15 offset:%d' % K1_HIST)
    a('s_mov_b64 exec, s[18:19]')
    a('v_cmp_gt_u32 vcc, %d, v0' % (CH // 4))
    a('s_mov_b32 s14, %d' % (E * 4))
    a('v_cmp_gt_u32 s[16:17], s14, v2')
    a('s_and_b64 s[16:17], s[16:17], vcc')
    a('s_mul_i32 s15, s2, %d' % RECB)
    srd_off(a, 32, 10, 's15', RECB)
    srd_off(a, 36, 10, WS_TAB, 0x80000)
    a('s_mov_b32 s40, %d' % MAGIC_B)
    a('s_movk_i32 s41, 3125')
    a('v_mov_b32 v15, 1')
    a('s_waitcnt lgkmcnt(0)')
    a('s_barrier')
    a('s_mov_b64 exec, s[16:17]')
    a('s_cbranch_execz K1_NOEDGE1')
    a('s_waitcnt vmcnt(%d)' % (3 if opts.get('xpre', 1) else 2))
    for k in range(4):
        a(f'v_mul_hi_u32 v{16+k}, v{4+k}, s40')
    for k in range(4):
        a(f'v_lshlrev_b32 v{20+k}, 2, v{16+k}')
        a(f'ds_add_rtn_u32 v{24+k}, v{20+k}, v15 offset:{K1_HIST}')
    for k in range(4):
        a(f'v_mul_u32_u24 v{28+k}, s41, v{16+k}')
        a(f'v_add_u32 v{28+k}, 31, v{28+k}')
        a(f'v_lshrrev_b32 v{28+k}, 5, v{28+k}')
        a(f'v_sub_u32 v{28+k}, v{4+k}, v{28+k}')
        a(f'v_lshlrev_b32 v{33+2*k}, 2, v{28+k}')
    a('s_waitcnt vmcnt(%d)' % (1 if opts.get('xpre', 1) else 0))
    a('s_mov_b32 s42, 0xffff0000')
    a('v_lshl_or_b32 v32, v12, 16, v8')
    a('v_and_or_b32 v34, v12, s42, v9')
    a('v_lshl_or_b32 v36, v13, 16, v10')
    a('v_and_or_b32 v38, v13, s42, v11')
    a.label('K1_NOEDGE1')
    a('s_mov_b64 exec, -1')
    a('s_waitcnt lgkmcnt(0)')
    a('s_barrier')
    a('s_cmp_lg_u32 s3, 0')
    a('s_cbranch_scc1 K1_SCANDONE')
    a('v_lshlrev_b32 v40, 4, v0')
    a('ds_read_b128 v[44:47], v40 offset:%d' % K1_HIST)
    a('v_lshlrev_b32 v41, 12, v0')
    a('s_lshl_b32 s15, s2, 2')
    a('v_add_u32 v41, s15, v41')
    a('s_waitcnt lgkmcnt(0)')
    a('v_add_u32 v48, v44, v45')
    a('v_add_u32 v49, v48, v46')
    a('v_add_u32 v50, v49, v47')
    a('v_mov_b32 v51, v50')
    wave_scan(a, 'v_add_u32', 51)
    a('v_sub_u32 v52, v51, v50')
    a('v_add_u32 v53, v52, v44')
    a('v_add_u32 v54, v52, v48')
    a('v_add_u32 v55, v52, v49')
    a('ds_write_b128 v40, v[52:55] offset:%d' % K1_HIST)
    a('s_mul_i32 s15, s2, %d' % CH)
    a('s_mov_b32 s43, %d' % (WS_TAB2 - WS_TAB))
    for k in range(4):
        a(f'buffer_store_dword v{44+k}, v41, s[36:39], s43 offen offset:{k*1024}')
        a(f'v_min_u32 v{48+k}, 0xff, v{44+k}')
        a(f'v_add_u32 v{52+k}, s15, v{52+k}')
        a(f'v_lshl_or_b32 v{48+k}, v{48+k}, 24, v{52+k}')
        a(f'buffer_store_dword v{48+k}, v41, s[36:39], 0 offen offset:{k*1024}')
    a.label('K1_SCANDONE')
    a('s_waitcnt lgkmcnt(0)')
    a('s_barrier')
    a('s_mov_b64 exec, s[16:17]')
    a('s_cbranch_execz K1_NOEDGE2')
    for k in range(4):
        a(f'ds_read_b32 v{28+k}, v{20+k} offset:{K1_HIST}')
    for k in range(4):
        a(f's_waitcnt lgkmcnt({3 if k == 0 else 3})')
        a(f'v_add_lshl_u32 v{28+k}, v{28+k}, v{24+k}, 3')
        a(f'ds_write_b64 v{28+k}, v[{32+2*k}:{33+2*k}] offset:{K1_STAGE}')
    a.label('K1_NOEDGE2')
    a('s_mov_b64 exec, -1')
    a('v_lshlrev_b32 v2, 4, v0')
    a('v_add_u32 v3, %d, v2' % (RECB // 2))
    a('v_cmp_gt_u32 vcc, %d, v0' % (CH // 4))
    a('s_waitcnt lgkmcnt(0)')
    a('s_barrier')
    a('s_and_saveexec_b64 s[18:19], vcc')
    a('s_cbranch_execz K1_END')
    a('ds_read_b128 v[4:7], v2 offset:%d' % K1_STAGE)
    a('ds_read_b128 v[8:11], v2 offset:%d' % (K1_STAGE + RECB // 2))
    a('s_waitcnt lgkmcnt(1)')
    a('buffer_store_dwordx4 v[4:7], v2, s[32:35], 0 offen')
    a('s_waitcnt lgkmcnt(0)')
    a('buffer_store_dwordx4 v[8:11], v3, s[32:35], 0 offen')
    if opts.get('dbgtime'):
        a('s_waitcnt vmcnt(0)')
        a('s_memrealtime s[54:55]')
        a('s_waitcnt lgkmcnt(0)')
        a('s_cmp_ge_u32 s2, 8')
        a('s_cbranch_scc1 K1_END')
        a('s_cmp_lg_u32 s3, 0')
        a('s_cbranch_scc1 K1_END')
        a('v_mov_b32 v20, s54')
        a('s_lshl_b32 s56, s2, 2')
        a('s_add_u32 s56, s56, 0x1200100')
        a('v_mov_b32 v22, s56')
        a('s_mov_b64 exec, 1')
        a('global_store_dword v22, v20, s[10:11]')
    a('s_endpgm')
    a.label('K1_FRAG')
    a('s_cmp_ge_u32 s2, 32')
    a('s_cbranch_scc1 K1_END')
    a('s_load_dwordx4 s[12:15], s[0:1], 32')
    a('s_load_dwordx4 s[16:19], s[0:1], 56')
    a('s_lshr_b32 s20, s2, 3')
    a('s_waitcnt lgkmcnt(0)')
    a('s_mov_b32 s22, s14')
    a('s_mov_b32 s23, s15')
    a('s_cmp_eq_u32 s20, 1')
    a('s_cselect_b32 s22, s18, s22')
    a('s_cselect_b32 s23, s19, s23')
    a('s_cmp_eq_u32 s20, 2')
    a('s_cselect_b32 s22, s12, s22')
    a('s_cselect_b32 s23, s13, s23')
    a('s_cmp_eq_u32 s20, 3')
    a('s_cselect_b32 s22, s16, s22')
    a('s_cselect_b32 s23, s17, s23')
    srd(a, 24, 22, 64 * 64 * 2)
    srd_off(a, 28, 10, WS_FRAG, 32 * 1024)
    a('s_and_b32 s32, s2, 3')
    a('s_lshr_b32 s33, s2, 2')
    a('s_and_b32 s33, s33, 1')
    a('s_lshl_b32 s32, s32, 11')
    a('s_lshl_b32 s33, s33, 6')
    a('s_add_u32 s32, s32, s33')
    a('v_and_b32 v1, 63, v0')
    a('v_and_b32 v2, 31, v1')
    a('v_lshlrev_b32 v2, 1, v2')
    a('v_lshrrev_b32 v3, 5, v1')
    a('v_lshlrev_b32 v3, 10, v3')
    a('v_add3_u32 v2, v2, v3, s32')
    for i in range(8):
        a(f'buffer_load_ushort v{8+i}, v2, s[24:27], 0 offen offset:{i*128}')
    a('s_mov_b32 s34, 1.0')
    a('s_and_b32 s36, s20, 1')
    a('s_cmp_eq_u32 s36, 0')
    a('s_cselect_b32 s34, 0x%x, s34' % LOG2E)
    a('s_waitcnt vmcnt(0)')
    for i in range(8):
        a(f'v_lshlrev_b32 v{8+i}, 16, v{8+i}')
        a(f'v_mul_f32 v{8+i}, s34, v{8+i}')
    for i in range(4):
        a(f'v_cvt_pk_bf16_f32 v{16+i}, v{8+2*i}, v{9+2*i}')
    a('v_lshlrev_b32 v4, 4, v1')
    a('s_lshl_b32 s35, s2, 10')
    a('v_add_u32 v4, s35, v4')
    a('buffer_store_dwordx4 v[16:19], v4, s[28:31], 0 offen')
    a.label('K1_END')
    a('s_endpgm')

def gen_k2(a, opts):
    STAMP = opts.get('stamp', False)
    vLANE = 1; BC = 2
    WB = 4; WV = 36; AX = 68
    GA = 84; HA = 100; GB = 116; HB = 132
    PP = 148; TT_ = 156; ZZ = 164
    DEN = 172; NUM = 176
    AE = [180, 184]; BE = 188; R0 = 192
    QA = [196, 200]
    EN = 204; RA = 208; CO = 212
    pEN = 216; pEE = 217; pQI = 218; pQF = 219
    C4 = 220; SEL = [221, 222]; EE = 223; QF = 224
    F0 = 225; F1 = 226
    tA = 227; tB = 228; tC = 229; tD = 230; tE = 231; tF = 232; tG = 233; tH = 234; tI = 235
    TQ = 236; TR = 240
    sidA = 244; jA = 245; sidR = 246; iR4 = 247
    vST = 248; GF = 249; GD = 250
    nvgpr = 252
    REC = PP; RK = GB; SG = HB
    G_ = [GA, GB]; H_ = [HA, HB]
    nOFF0 = AE[0]+0 if False else QA[0]; nOFF1 = QA[0]+1; nEND0 = QA[0]+2; nEND1 = QA[0]+3; nROW0 = QA[1]
    S = Regs('s', 3, 102)
    sX = S.alloc('x', 2, 2); sWC = S.alloc('wc', 2, 2); sOUT = S.alloc('out', 2, 2); sWS = S.alloc('ws', 2, 2)
    rX = S.alloc('rX', 4, 4); rT = S.alloc('rT', 4, 4); rR = S.alloc('rR', 4, 4); rF = S.alloc('rF', 4, 4)
    sW = S.alloc('w'); sNS = S.alloc('ns'); sNN = S.alloc('nn')
    sP = S.alloc('pass'); sNP = S.alloc('npass')
    sL = S.alloc('L'); sCNT = S.alloc('cnt'); sREM = S.alloc('rem'); sMAXP = S.alloc('maxp')
    sC = S.alloc('C', 2, 2)
    sF = [S.alloc('F0', 2, 2), S.alloc('F1', 2, 2)]
    sANY = [S.alloc('any0'), S.alloc('any1')]
    s128 = S.alloc('c128'); sLO = S.alloc('lo16'); sHI = S.alloc('hi16')
    t0 = S.alloc('t0'); t1 = S.alloc('t1'); t2 = S.alloc('t2', 1, 2); t3 = S.alloc('t3')
    sSV = S.alloc('sv', 2, 2); sSV2 = S.alloc('sv2', 2, 2)
    sDB = S.alloc('dmabase'); sSWAP = S.alloc('swap')
    sDBG = S.alloc('dbg', 2, 2) if opts.get('dbgtime') else None
    sT0 = S.alloc('dbgt0', 2, 2) if opts.get('dbgtime') else None
    sT1 = S.alloc('dbgt1') if opts.get('dbgtime') else None
    sT2 = S.alloc('dbgt2') if opts.get('dbgtime') else None
    MK = S.alloc('MK', 32, 2)
    rO = rT
    nsgpr = S.hi
    def stamp(i):
        if not STAMP: return
        a(f's_memtime s[{t2}:{t3}]')
        a('s_waitcnt lgkmcnt(0)')
        a(f'v_writelane_b32 v{vST}, s{t2}, {i}')
    XB = 4096

    a.raw('.p2align 8')
    a.raw('.globl gs_main_kernel')
    a.raw('.type gs_main_kernel,@function')
    a.label('gs_main_kernel')
    a('s_cmp_ge_u32 s2, 256')
    a('s_cbranch_scc1 K2_END')
    a(f's_load_dwordx2 s[{sWS}:{sWS+1}], s[0:1], 88')
    a(f's_load_dwordx2 s[{sX}:{sX+1}], s[0:1], 0')
    a(f's_load_dwordx2 s[{sWC}:{sWC+1}], s[0:1], 48')
    a(f's_load_dwordx2 s[{sOUT}:{sOUT+1}], s[0:1], 72')
    a('s_and_b32 s3, s2, 7')
    a('s_lshr_b32 s2, s2, 3')
    a('s_lshl_b32 s3, s3, 5')
    a('s_add_u32 s2, s2, s3')
    if opts.get('dbgtime'):
        a(f's_load_dwordx2 s[{sDBG}:{sDBG+1}], s[0:1], 80')
        a(f's_memrealtime s[{sT0}:{sT0+1}]')
        a('s_waitcnt lgkmcnt(0)')
    if STAMP:
        a(f'v_mov_b32 v{vST}, 0')
    stamp(0)
    if STAMP:
        a(f's_memrealtime s[{t2}:{t3}]')
        a('s_waitcnt lgkmcnt(0)')
        a(f'v_writelane_b32 v{vST}, s{t2}, 11')
    a(f'v_lshrrev_b32 v{tA}, 6, v0')
    a(f'v_and_b32 v{vLANE}, 63, v0')
    a(f'v_readfirstlane_b32 s{sW}, v{tA}')
    a(f'v_lshrrev_b32 v{sidA}, 5, v{vLANE}')
    if opts.get('proprio'):
        a('s_nop 2')
        a(f's_cmp_ge_u32 s{sW}, 4')
        a('s_cbranch_scc0 K2_PP0')
        a('s_setprio 1')
        a.label('K2_PP0')
    a(f's_lshl_b32 s{t1}, s2, 10')
    a(f's_add_u32 s{t1}, s{t1}, {WS_TAB}')
    a(f's_lshl_b32 s{t0}, s{sW}, 1')
    a(f'v_add_u32 v{sidA}, s{t0}, v{sidA}')
    a(f'v_lshrrev_b32 v{tD}, 4, v{vLANE}')
    a(f'v_lshlrev_b32 v{tD}, 5, v{tD}')
    a(f's_lshl_b32 s{t0}, s{sW}, 7')
    a(f'v_add_u32 v{tD}, s{t0}, v{tD}')
    a(f'v_lshlrev_b32 v{tA}, 4, v{vLANE}')
    a('s_waitcnt lgkmcnt(0)')
    srd_off(a, rT, sWS, f's{t1}', 1024)
    for i in range(2):
        a(f'buffer_load_dwordx4 v[{SG+4*i}:{SG+4*i+3}], v{tD}, s[{rT}:{rT+3}], 0 offen offset:{16*i}')
    a(f's_mul_i32 s{t0}, s2, 3125')
    a(f's_add_u32 s{sNS}, s{t0}, 31')
    a(f's_lshr_b32 s{sNS}, s{sNS}, 5')
    a(f's_add_u32 s{t0}, s{t0}, {3125+31}')
    a(f's_lshr_b32 s{t0}, s{t0}, 5')
    a(f's_sub_u32 s{sNN}, s{t0}, s{sNS}')
    a(f's_sub_u32 s{rX}, s{sX}, {XB}')
    a(f's_subb_u32 s{rX+1}, s{sX+1}, 0')
    a(f's_and_b32 s{rX+1}, s{rX+1}, 0xffff')
    a(f's_mov_b32 s{rX+2}, {N*128 + XB}')
    a(f's_mov_b32 s{rX+3}, 0x20000')
    srd_off(a, rF, sWS, WS_FRAG, 32 * 1024)
    a(f's_lshl_b32 s{sDB}, s{sW}, 12')
    a(f's_add_u32 s{sDB}, s{sDB}, {L_DMA}')
    a(f'v_bfe_u32 v{tE}, v{vLANE}, 4, 1')
    a(f'v_and_b32 v{tF}, 7, v{vLANE}')
    a(f'v_xor_b32 v{tE}, v{tE}, v{tF}')
    a(f'v_lshlrev_b32 v{tE}, 4, v{tE}')
    for i in range(4):
        if i: a(f'v_xor_b32 v{tF}, {32*i}, v{tE}')
        a(f'v_add_u32 v{CO+i}, {XB - 1024*i}, v{tF if i else tE}')
    a(f'v_bfe_u32 v{jA}, v{vLANE}, 3, 2')
    a(f'v_lshrrev_b32 v{tF}, 5, v{vLANE}')
    a(f'v_lshlrev_b32 v{tE}, 3, v{jA}')
    a(f'v_lshl_add_u32 v{tE}, v{tF}, 2, v{tE}')
    a(f's_lshr_b32 s{t0}, s{sW}, 1')
    a(f's_lshl_b32 s{t1}, s{t0}, 5')
    a(f's_add_u32 s{t1}, s{t1}, s{sNS}')
    a(f's_and_b32 s{t2}, s{sW}, 1')
    a(f's_lshl_b32 s{t2}, s{t2}, 1')
    a(f's_add_u32 s{t1}, s{t1}, s{t2}')
    a(f'v_add_u32 v{tE}, s{t1}, v{tE}')
    a(f'v_lshlrev_b32 v{tE}, 7, v{tE}')
    a(f's_cmp_eq_u32 s{t2}, 0')
    a(f's_cbranch_scc0 K2_XI2')
    a(f'v_add_u32 v{tH}, v{tE}, v{CO}')
    a(f'v_add_u32 v{tI}, v{tE}, v{CO+1}')
    a('s_branch K2_XI')
    a.label('K2_XI2')
    a(f'v_add_u32 v{tH}, v{tE}, v{CO+2}')
    a(f'v_add_u32 v{tI}, v{tE}, v{CO+3}')
    a(f'v_add_u32 v{tH}, 2048, v{tH}')
    a(f'v_add_u32 v{tI}, 2048, v{tI}')
    a.label('K2_XI')
    a(f'v_add_u32 v{tI}, 128, v{tI}')
    a(f'v_and_b32 v{C4}, 31, v{vLANE}')
    def staging():
        a(f's_lshr_b32 s{t0}, s{sW}, 1')
        a(f's_lshl_b32 s{t0}, s{t0}, 12')
        a(f's_and_b32 s{t2}, s{sW}, 1')
        a(f's_lshl_b32 s{t2}, s{t2}, 11')
        a(f's_add_u32 s{t0}, s{t0}, s{t2}')
        a(f's_add_u32 s{t0}, s{t0}, {L_DMA}')
        a(f's_mov_b32 m0, s{t0}')
        a(f'v_lshlrev_b32 v{tA}, 4, v{vLANE}')
        a(f'buffer_load_dwordx4 v{tH}, s[{rX}:{rX+3}], 0 offen lds')
        a(f'buffer_load_dwordx4 v{tI}, s[{rX}:{rX+3}], 0 offen offset:1024 lds')
        a(f's_lshl_b32 s{t0}, s{sW}, 11')
        a(f's_add_u32 s{t1}, s{t0}, {L_DMA + 4*4096}')
        a(f's_mov_b32 m0, s{t1}')
        a(f's_add_u32 s{t2}, s{t0}, {16*1024}')
        a(f'buffer_load_dwordx4 v{tA}, s[{rF}:{rF+3}], s{t2} offen lds')
        a(f'buffer_load_dwordx4 v{tA}, s[{rF}:{rF+3}], s{t2} offen offset:1024 lds')
        a(f's_add_u32 s{t1}, s{t0}, {L_WST}')
        a(f's_mov_b32 m0, s{t1}')
        a('s_nop 0')
        a(f'buffer_load_dwordx4 v{tA}, s[{rF}:{rF+3}], s{t0} offen lds')
        a(f'buffer_load_dwordx4 v{tA}, s[{rF}:{rF+3}], s{t0} offen offset:1024 lds')
        srd(a, rR, sWC, 128)
        a(f'v_lshlrev_b32 v{tE}, 1, v{C4}')
        a(f'buffer_load_ushort v{BC}, v{tE}, s[{rR}:{rR+3}], 0 offen')
        a(f'buffer_load_ushort v{BC+1}, v{tE}, s[{rR}:{rR+3}], 0 offen offset:64')
    staging()
    def lds_init():
        a(f'v_lshlrev_b32 v{tE}, 4, v0')
        for i in range(4):
            a(f'v_mov_b32 v{TR+i}, 0xffff')
        a(f'ds_write_b128 v{tE}, v[{TR}:{TR+3}] offset:{L_ENT}')
        a(f's_cmp_ge_u32 s{sW}, {(ENT_QUADS - 512) // 64}')
        a(f's_cbranch_scc1 K2_I1{tag_i[0]}')
        a(f'ds_write_b128 v{tE}, v[{TR}:{TR+3}] offset:{L_ENT + 512*16}')
        a.label(f'K2_I1{tag_i[0]}')
        assert (ENT_QUADS - 512) % 64 == 0
        for i in range(4):
            a(f'v_mov_b32 v{TR+i}, {L_VIRT}')
        a(f'v_cmp_gt_u32 vcc, {ENT_QUADS // 4}, v0')
        a(f's_and_saveexec_b64 s[{sSV}:{sSV+1}], vcc')
        a(f'ds_write_b128 v{tE}, v[{TR}:{TR+3}] offset:{L_QI}')
        a(f's_mov_b64 exec, s[{sSV}:{sSV+1}]')
        a(f's_cmp_lg_u32 s{sW}, 0')
        a(f's_cbranch_scc1 K2_I2{tag_i[0]}')
        for i in range(4):
            a(f'v_mov_b32 v{TR+i}, 0')
        a(f'ds_write_b128 v{tE}, v[{TR}:{TR+3}] offset:{L_CNT}')
        a(f'v_add_u32 v{tE}, {L_VIRT + 512}, v{tE}')
        a('s_mov_b64 exec, 0xff')
        a(f'ds_write_b128 v{tE}, v[{TR}:{TR+3}]')
        a('s_mov_b64 exec, -1')
        a.label(f'K2_I2{tag_i[0]}')
        tag_i[0] += 1
    tag_i = [0]
    lds_init()
    a(f'v_and_b32 v{tE}, 3, v{vLANE}')
    a(f'v_lshlrev_b32 v{iR4}, 2, v{tE}')
    a(f'v_lshl_add_u32 v{RA}, v{tE}, 3, v{jA}')
    a(f'v_lshrrev_b32 v{tF}, 1, v{jA}')
    a(f'v_lshl_add_u32 v{tE}, v{tE}, 1, v{tF}')
    a(f'v_bfe_u32 v{tF}, v{vLANE}, 2, 1')
    a(f's_lshl_b32 s{t0}, s{sW}, 1')
    a(f'v_add_u32 v{sidR}, s{t0}, v{tF}')
    a(f'v_lshl_add_u32 v{RA}, v{tF}, 2, v{RA}')
    a(f'v_lshrrev_b32 v{tG}, 5, v{vLANE}')
    a(f'v_cmp_eq_u32 vcc, v{tF}, v{tG}')
    a(f'v_xor_b32 v{tE}, v{tE}, v{tG}')
    a(f'v_lshlrev_b32 v{tE}, 4, v{tE}')
    a(f'v_lshl_add_u32 v{RA}, v{RA}, 7, v{tE}')
    a(f'v_mov_b32 v{tF}, 0x3f80')
    a(f'v_cndmask_b32 v{tF}, 0, v{tF}, vcc')
    for q in range(4):
        a(f'v_cmp_eq_u32 vcc, {q}, v{jA}')
        a('s_nop 1')
        a(f'v_cndmask_b32 v{AE[0]+q}, 0, v{tF}, vcc')
        a(f'v_lshlrev_b32 v{AE[1]+q}, 16, v{AE[0]+q}')
    a(f'v_cmp_gt_u32 vcc, 32, v{vLANE}')
    a(f'v_mov_b32 v{tE}, 0x0a0c0100')
    a(f'v_mov_b32 v{tF}, 0x07060100')
    a(f'v_cndmask_b32 v{SEL[0]}, v{tE}, v{tF}, vcc')
    a(f'v_mov_b32 v{tE}, 0x03020a0c')
    a(f'v_mov_b32 v{tF}, 0x03020706')
    a(f'v_cndmask_b32 v{SEL[1]}, v{tE}, v{tF}, vcc')
    a(f's_mov_b32 s{sC}, 0x{C_SCALE:x}')
    a(f's_mov_b32 s{sC+1}, 0x{C_SCALE:x}')
    a(f's_mov_b32 s{s128}, 128')
    a(f's_mov_b32 s{sLO}, 0xffff')
    a(f's_mov_b32 s{sHI}, 0xffff0000')
    a(f'v_and_b32 v{tB}, 15, v{vLANE}')
    a(f'v_lshlrev_b32 v{tB}, 3, v{tB}')
    a(f'v_lshlrev_b32 v{C4}, 2, v{C4}')
    a('s_waitcnt vmcnt(0) lgkmcnt(0)')
    stamp(1)
    a('s_barrier')
    srd(a, rR, sWS, NBK * RECB)
    def rec_loads(vk8, nit):
        for it in range(8):
            a(f'v_mad_u32_u24 v{RK+it}, v{SG+it}, 8, v{vk8}')
        for it in range(nit):
            a(f's_mov_b64 exec, s[{MK+2*it}:{MK+2*it+1}]')
            off = ' offset:128' if it >= 8 else ''
            sk = a.newlabel('skl') if (it >= 8 and opts.get('skipb', 1)) else None
            if sk: a(f's_cbranch_execz {sk}')
            a(f'buffer_load_dwordx2 v[{REC+2*it}:{REC+2*it+1}], v{RK+it%8}, s[{rR}:{rR+3}], 0 offen{off}')
            if sk: a.label(sk)
        a('s_mov_b64 exec, -1')
    a(f'v_lshrrev_b32 v{tC}, 3, v{tB}')
    a(f'v_add_u32 v{tD}, 16, v{tC}')
    for it in range(8):
        a(f'v_cmp_gt_u32_sdwa s[{MK+2*it}:{MK+2*it+1}], v{SG+it}, v{tC} src0_sel:BYTE_3 src1_sel:DWORD')
    for it in range(8):
        a(f'v_cmp_gt_u32_sdwa s[{MK+16+2*it}:{MK+16+2*it+1}], v{SG+it}, v{tD} src0_sel:BYTE_3 src1_sel:DWORD')
    stamp(25)
    rec_loads(tB, 16)
    stamp(26)
    a(f'v_max3_u32 v{tD}, v{SG}, v{SG+1}, v{SG+2}')
    a(f'v_max3_u32 v{tD}, v{tD}, v{SG+3}, v{SG+4}')
    a(f'v_max3_u32 v{tD}, v{tD}, v{SG+5}, v{SG+6}')
    a(f'v_max_u32 v{tD}, v{tD}, v{SG+7}')
    a(f'v_lshrrev_b32 v{tD}, 24, v{tD}')
    a(f'v_cmp_lt_u32 s[{sSV2}:{sSV2+1}], 32, v{tD}')

    def gemm_issue():
        a(f's_lshr_b32 s{t0}, s{sW}, 1')
        a(f's_lshl_b32 s{t1}, s{t0}, 12')
        a(f's_add_u32 s{t1}, s{t1}, {L_DMA}')
        a(f'v_add_u32 v{tA}, s{t1}, v{RA}')
        a(f'v_xor_b32 v{tB}, 32, v{tA}')
        a(f'ds_read_b128 v[{AX}:{AX+3}], v{tA}')
        a(f'ds_read_b128 v[{AX+4}:{AX+7}], v{tB}')
        a(f'v_xor_b32 v{tB}, 64, v{tA}')
        a(f'v_xor_b32 v{tC}, 96, v{tA}')
        a(f'ds_read_b128 v[{AX+8}:{AX+11}], v{tB}')
        a(f'ds_read_b128 v[{AX+12}:{AX+15}], v{tC}')
        a(f's_and_b32 s{t2}, s{sW}, 1')
        a(f's_lshl_b32 s{t3}, s{t2}, 13')
        a(f's_add_u32 s{t3}, s{t3}, {L_DMA + 4*4096}')
        a(f'v_lshlrev_b32 v{GF}, 4, v{vLANE}')
        a(f'v_add_u32 v{GF}, s{t3}, v{GF}')
        for f in range(4):
            a(f'ds_read_b128 v[{SG+4*f}:{SG+4*f+3}], v{GF} offset:{f*1024}')
        for f in range(4):
            a(f'ds_read_b128 v[{RK+4*f}:{RK+4*f+3}], v{GF} offset:{(4+f)*1024}')
        a(f's_mul_i32 s{t1}, s{t0}, {32*ROWB}')
        a(f's_lshl_b32 s{t3}, s{t2}, 7')
        a(f's_add_u32 s{t1}, s{t1}, s{t3}')
        a(f's_add_u32 s{t1}, s{t1}, {L_ACC + 512}')
        a(f'v_lshrrev_b32 v{GD}, 5, v{vLANE}')
        a(f'v_mul_u32_u24 v{GD}, {4*ROWB}, v{GD}')
        a(f'v_add3_u32 v{GD}, v{GD}, v{C4}, s{t1}')
    def gemm_mid():
        a('s_waitcnt lgkmcnt(0)')
        for kp in range(4):
            c = '0' if kp == 0 else f'v[{GA}:{GA+15}]'
            a(f'v_mfma_f32_32x32x16_bf16 v[{GA}:{GA+15}], v[{AX+4*kp}:{AX+4*kp+3}], v[{SG+4*kp}:{SG+4*kp+3}], {c}')
            c = '0' if kp == 0 else f'v[{HA}:{HA+15}]'
            a(f'v_mfma_f32_32x32x16_bf16 v[{HA}:{HA+15}], v[{AX+4*kp}:{AX+4*kp+3}], v[{RK+4*kp}:{RK+4*kp+3}], {c}')
    def gemm_mid2():
        a('s_nop 7')
        a('s_nop 3')
    def w_frags():
        a(f'v_lshlrev_b32 v{GF}, 4, v{vLANE}')
        a(f'v_add_u32 v{GF}, {L_WST}, v{GF}')
        for f in range(16):
            dst = (WB + 4*f) if f < 8 else (WV + 4*(f-8))
            a(f'ds_read_b128 v[{dst}:{dst+3}], v{GF} offset:{f*1024}')
    def gemm_store(tag):
        for i in range(16):
            a(f'v_cvt_pk_bf16_f32 v{GA+i}, v{GA+i}, v{HA+i}')
        a(f's_lshr_b32 s{t0}, s{sW}, 1')
        a(f's_cmp_eq_u32 s{t0}, 3')
        a(f's_cbranch_scc1 K2_RT3{tag}')
        for vv in range(16):
            a(f'ds_write_b32 v{GD}, v{GA+vv} offset:{(8*(vv//4) + vv%4) * ROWB}')
        a(f's_branch K2_RTD{tag}')
        a.label(f'K2_RT3{tag}')
        a('s_mov_b32 exec_hi, 0')
        for vv in range(2):
            a(f'ds_write_b32 v{GD}, v{GA+vv} offset:{vv * ROWB}')
        a('s_mov_b64 exec, -1')
        a.label(f'K2_RTD{tag}')
    def consts():
        a(f'v_add_u32 v{RA}, s{sDB}, v{RA}')
        for kp in range(1, 4):
            a(f'v_xor_b32 v{RA+kp}, {32*kp}, v{RA}')
        a(f's_mov_b32 s{t3}, 0x{LOG2E:x}')
        for cc in range(2):
            a(f'v_lshlrev_b32 v{BC+cc}, 16, v{BC+cc}')
            a(f'v_mul_f32 v{BC+cc}, s{t3}, v{BC+cc}')
        a(f'v_cvt_pk_bf16_f32 v{BC}, 0, v{BC}')
        a(f'v_cvt_pk_bf16_f32 v{BC+1}, v{BC+1}, 0')
        a(f'v_cmp_gt_u32 vcc, 32, v{vLANE}')
        a(f'v_mov_b32 v{tG}, 0xb2000000')
        a(f'v_mov_b32 v{tH}, 0xb200')
        a(f'v_cndmask_b32 v{BC}, v{tG}, v{BC}, vcc')
        a(f'v_cndmask_b32 v{BC+1}, v{tH}, v{BC+1}, vcc')

    def hist():
        a(f'v_mov_b32 v{tE}, 1')
        for it in range(NIT):
            a(f's_mov_b64 exec, s[{MK+2*it}:{MK+2*it+1}]')
            sk = a.newlabel('skh') if (it >= 8 and opts.get('skipb', 1)) else None
            if sk: a(f's_cbranch_execz {sk}')
            a(f'ds_add_rtn_u32 v{RK+it}, v{REC+2*it+1}, v{tE} offset:{L_CNT}')
            if sk: a.label(sk)
        a('s_mov_b64 exec, -1')

    def scan_nodes(tag, mid=None):
        a(f'v_lshlrev_b32 v{tA}, 3, v{vLANE}')
        a(f'ds_read_b64 v[{TQ}:{TQ+1}], v{tA} offset:{L_CNT}')
        a(f'v_mul_u32_u24 v{nROW0}, {2*ROWB}, v{vLANE}')
        a(f'v_add_u32 v{nROW0}, {L_ACC}, v{nROW0}')
        if mid: mid()
        else: a('s_waitcnt lgkmcnt(0)')
        a(f'v_add_u32 v{tE}, 3, v{TQ}')
        a(f'v_add_u32 v{tF}, 3, v{TQ+1}')
        a(f'v_and_b32 v{tE}, -4, v{tE}')
        a(f'v_and_b32 v{tF}, -4, v{tF}')
        a(f'v_add_u32 v{tC}, v{tE}, v{tF}')
        a(f'v_max_u32 v{tB}, v{tE}, v{tF}')
        a(f'v_mov_b32 v{tD}, v{tC}')
        wave_scan(a, 'v_add_u32', tD)
        a(f'v_sub_u32 v{nOFF0}, v{tD}, v{tC}')
        a(f'v_readlane_b32 s{t1}, v{tD}, 63')
        a(f'v_add_u32 v{nOFF1}, v{nOFF0}, v{tE}')
        a(f'v_lshlrev_b32 v{TQ+2}, 2, v{nOFF0}')
        a(f'v_lshlrev_b32 v{TQ+3}, 2, v{nOFF1}')
        a(f'ds_write_b64 v{tA}, v[{TQ+2}:{TQ+3}] offset:{L_TAB}')
        a(f'v_mov_b32 v{nEND0}, v{nOFF1}')
        a(f'v_add_u32 v{nEND1}, v{nOFF1}, v{tF}')
        a(f's_add_u32 s{t1}, s{t1}, {4*NSTREAM-1}')
        a(f's_lshr_b32 s{sL}, s{t1}, 6')
        a(f's_add_u32 s{sCNT}, s{sL}, 3')
        a(f's_lshr_b32 s{sCNT}, s{sCNT}, 2')
        a(f's_sub_u32 s{sCNT}, s{sCNT}, 1')
        a(f's_sub_u32 s{sREM}, s{sL}, 1')
        a(f's_and_b32 s{sREM}, s{sREM}, 3')
        a(f's_add_u32 s{sREM}, s{sREM}, 1')
    def qi_fill(tag, split):
        B0 = TQ + 2; B1 = TQ + 3; V0 = TR + 1; V1 = TR + 2
        a(f'v_max_u32 v{TR}, v{tE}, v{tF}')
        if split:
            a(f'v_cvt_f32_u32 v{tA}, s{sL}')
            a(f'v_rcp_f32 v{tA}, v{tA}')
            a(f'v_cvt_f32_u32 v{tB}, v{nOFF0}')
            a(f'v_cvt_f32_u32 v{tC}, v{nOFF1}')
            a(f'v_mul_f32 v{tA}, 0.25, v{tA}')
            a(f'v_add_f32 v{tB}, 2.0, v{tB}')
            a(f'v_add_f32 v{tC}, 2.0, v{tC}')
            a(f'v_mul_f32 v{tB}, v{tA}, v{tB}')
            a(f'v_mul_f32 v{tC}, v{tA}, v{tC}')
            a(f'v_cvt_u32_f32 v{tB}, v{tB}')
            a(f'v_cvt_u32_f32 v{tC}, v{tC}')
            a(f'v_add_u32 v{tB}, 1, v{tB}')
            a(f'v_add_u32 v{tC}, 1, v{tC}')
            a(f's_lshl_b32 s{t1}, s{sL}, 2')
            a(f'v_mul_u32_u24 v{B0}, s{t1}, v{tB}')
            a(f'v_mul_u32_u24 v{B1}, s{t1}, v{tC}')
            a(f's_movk_i32 s{t1}, {VROWB}')
            a(f'v_mov_b32 v{tD}, {L_VIRT}')
            a(f'v_mad_u32_u24 v{V0}, v{tB}, s{t1}, v{tD}')
            a(f'v_mad_u32_u24 v{V1}, v{tC}, s{t1}, v{tD}')
            a(f'v_add_u32 v{tD}, {ROWB}, v{nROW0}')
            for nd, (B, Vv, END, nx) in enumerate(((B0, V0, nEND0, tB), (B1, V1, nEND1, tC))):
                lab = a.newlabel('nosplit')
                a(f'v_lshrrev_b32 v{tG}, 1, v{nx}')
                a(f'v_cmp_lt_u32 vcc, v{B}, v{END}')
                a(f'v_cmp_eq_u32 s[{sSV}:{sSV+1}], s{sW}, v{tG}')
                a(f's_and_b64 vcc, vcc, s[{sSV}:{sSV+1}]')
                a(f's_cbranch_scc0 {lab}')
                lp = a.newlabel('splitlp')
                a.label(lp)
                a(f's_ff1_i32_b64 s{t0}, vcc')
                a(f's_bitset0_b64 vcc, s{t0}')
                a(f'v_readlane_b32 s{t2}, v{nROW0 if nd == 0 else tD}, s{t0}')
                a(f'v_readlane_b32 s{t3}, v{Vv}, s{t0}')
                a(f'v_lshrrev_b32 v{tG}, 0, v{C4}')
                a('s_mov_b32 exec_hi, 0')
                a(f'v_add_u32 v{tH}, s{t2}, v{tG}')
                a(f'ds_read_b32 v{tI}, v{tH} offset:512')
                a(f'v_add_u32 v{tH}, s{t3}, v{tG}')
                a(f'v_mov_b32 v{tG}, s{t2}')
                a(f'v_mov_b32 v{tA}, s{t3}')
                a(f'ds_write_b32 v{tG}, v{tA} offset:768')
                a('s_waitcnt lgkmcnt(1)')
                a(f'ds_write_b32 v{tH}, v{tI} offset:512')
                a('s_mov_b64 exec, -1')
                a(f's_cmp_lg_u64 vcc, 0')
                a(f's_cbranch_scc1 {lp}')
                a.label(lab)
        a(f's_lshl_b32 s{t0}, s{sW}, 2')
        a(f'v_add_u32 v{tA}, s{t0}, v{nOFF0}')
        a(f'v_add_u32 v{tB}, s{t0}, v{nOFF1}')
        a(f'v_add_u32 v{tC}, {ROWB}, v{nROW0}')
        lp = f'K2_QF{tag}'
        a.label(lp)
        a(f's_add_u32 s{t1}, s{t0}, 4')
        a(f'v_cmp_eq_u32 s[{sSV}:{sSV+1}], s{t1}, v{tE}')
        a(f'v_cmp_eq_u32 s[{sSV2}:{sSV2+1}], s{t1}, v{tF}')
        if split:
            a(f'v_add_u32 v{tG}, 4, v{tA}')
            a(f'v_add_u32 v{tH}, 4, v{tB}')
            a(f'v_cmp_eq_u32 vcc, v{tG}, v{B0}')
            a(f's_or_b64 s[{sSV}:{sSV+1}], s[{sSV}:{sSV+1}], vcc')
            a(f'v_cmp_eq_u32 vcc, v{tH}, v{B1}')
            a(f's_or_b64 s[{sSV2}:{sSV2+1}], s[{sSV2}:{sSV2+1}], vcc')
            a(f'v_cmp_ge_u32 vcc, v{tA}, v{B0}')
            a('s_nop 1')
            a(f'v_cndmask_b32 v{tG}, v{nROW0}, v{V0}, vcc')
            a(f'v_cmp_ge_u32 vcc, v{tB}, v{B1}')
            a('s_nop 1')
            a(f'v_cndmask_b32 v{tH}, v{tC}, v{V1}, vcc')
        else:
            a(f'v_mov_b32 v{tG}, v{nROW0}')
            a(f'v_mov_b32 v{tH}, v{tC}')
        a(f'v_or_b32 v{tD}, 0x80000000, v{tG}')
        a(f'v_or_b32 v{tI}, 0x80000000, v{tH}')
        a(f'v_cmp_lt_u32 vcc, s{t0}, v{tE}')
        a(f'v_cndmask_b32 v{tG}, v{tG}, v{tD}, s[{sSV}:{sSV+1}]')
        a(f'v_cndmask_b32 v{tH}, v{tH}, v{tI}, s[{sSV2}:{sSV2+1}]')
        a(f'v_cmp_lt_u32 s[{sSV}:{sSV+1}], s{t0}, v{tF}')
        a('s_mov_b64 exec, vcc')
        a(f'ds_write_b32 v{tA}, v{tG} offset:{L_QI}')
        a(f's_mov_b64 exec, s[{sSV}:{sSV+1}]')
        a(f'ds_write_b32 v{tB}, v{tH} offset:{L_QI}')
        a('s_mov_b64 exec, -1')
        a(f's_add_u32 s{t0}, s{t0}, 32')
        a(f'v_add_u32 v{tA}, 32, v{tA}')
        a(f'v_add_u32 v{tB}, 32, v{tB}')
        a(f'v_cmp_lt_u32 vcc, s{t0}, v{TR}')
        a(f's_cbranch_vccnz {lp}')
    def scatter():
        a('s_waitcnt lgkmcnt(0)')
        for it in range(8):
            a(f's_mov_b64 exec, s[{MK+2*it}:{MK+2*it+1}]')
            a(f'ds_read_b32 v{AX+it}, v{REC+2*it+1} offset:{L_TAB}')
        for it in range(8):
            a(f's_mov_b64 exec, s[{MK+2*it}:{MK+2*it+1}]')
            a('s_waitcnt lgkmcnt(7)')
            a(f'v_lshl_add_u32 v{AX+it}, v{RK+it}, 2, v{AX+it}')
            a(f'ds_write_b32 v{AX+it}, v{REC+2*it} offset:{L_ENT}')
        for it in range(8, 16):
            sk = a.newlabel('sks')
            a(f's_mov_b64 exec, s[{MK+2*it}:{MK+2*it+1}]')
            if opts.get('skipb', 1): a(f's_cbranch_execz {sk}')
            a(f'ds_read_b32 v{AX+it}, v{REC+2*it+1} offset:{L_TAB}')
            a('s_waitcnt lgkmcnt(0)')
            a(f'v_lshl_add_u32 v{AX+it}, v{RK+it}, 2, v{AX+it}')
            a(f'ds_write_b32 v{AX+it}, v{REC+2*it} offset:{L_ENT}')
            a.label(sk)
        a('s_mov_b64 exec, -1')

    def setup_ptrs():
        a(f'v_mad_u32_u24 v{tA}, v{sidA}, s{sL}, v{jA}')
        a(f'v_lshlrev_b32 v{pEN}, 4, v{tA}')
        a(f'ds_read_b128 v[{EN}:{EN+3}], v{pEN} offset:{L_ENT}')
        a(f'v_lshlrev_b32 v{pQF}, 2, v{tA}')
        a(f'v_mul_u32_u24 v{pQI}, s{sL}, v{sidA}')
        a(f'v_lshlrev_b32 v{pQI}, 2, v{pQI}')
        a(f'v_add_u32 v{pQI}, {L_QI}, v{pQI}')
        a(f'v_mad_u32_u24 v{tA}, v{sidR}, s{sL}, v{jA}')
        a(f'v_lshl_add_u32 v{pEE}, v{tA}, 4, v{iR4}')
        a(f's_mov_b32 m0, s{sDB}')

    def dma_addr():
        return [f'v_mad_u32_u16 v{EN+i}, v{EN+i}, s{s128}, v{CO+i}' for i in range(4)]
    def dma_issue():
        if opts.get('nodma'): return []
        return [f'buffer_load_dwordx4 v{EN+i}, s[{rX}:{rX+3}], 0 offen offset:{1024*i} lds' if i else
                f'buffer_load_dwordx4 v{EN}, s[{rX}:{rX+3}], 0 offen lds' for i in range(4)]

    def main_loop(tag, atomic):
        flush_blocks = []
        def flush_body(cc, par, j):
            a(f's_bfe_i32 exec_lo, s{sF[par]}, 0x{(1<<16)|(8*j):x}')
            a(f's_bfe_i32 exec_hi, s{sF[par]+1}, 0x{(1<<16)|(8*j):x}')
            a(f'v_add_f32 v{F0}, v{DEN+2*cc}, v{DEN+2*cc+1}')
            a(f'v_add_f32 v{F1}, v{NUM+2*cc}, v{NUM+2*cc+1}')
            a(f'v_mov_b64 v[{DEN+2*cc}:{DEN+2*cc+1}], 0')
            a(f'v_mov_b64 v[{NUM+2*cc}:{NUM+2*cc+1}], 0')
            if atomic:
                a(f'ds_add_f32 v{QA[par]+j}, v{F0} offset:{cc*128}')
                a(f'ds_add_f32 v{QA[par]+j}, v{F1} offset:{256+cc*128}')
            else:
                a(f'ds_write2_b32 v{QA[par]+j}, v{F0}, v{F1} offset0:{cc*32} offset1:{64+cc*32}')
            a('s_mov_b64 exec, -1')
        def post(cc, par, nq_check):
            done = a.newlabel('pdone') if nq_check else None
            for j in range(4):
                if nq_check and j > 0:
                    a(f's_cmp_le_u32 s{sREM}, {j}')
                    a(f's_cbranch_scc1 {done}')
                p = PP + 2*j; t = TT_ + 2*j; z = ZZ + 2*j
                a(f'v_pk_fma_f32 v[{NUM+2*cc}:{NUM+2*cc+1}], v[{p}:{p+1}], v[{t}:{t+1}], v[{NUM+2*cc}:{NUM+2*cc+1}]')
                a(f'v_pk_fma_f32 v[{DEN+2*cc}:{DEN+2*cc+1}], v[{p}:{p+1}], v[{z}:{z+1}], v[{DEN+2*cc}:{DEN+2*cc+1}]')
                if opts.get('noflush'): continue
                fl = a.newlabel('fl'); back = a.newlabel('bk')
                a(f's_bitcmp1_b32 s{sANY[par]}, {8*j}')
                if opts.get('inlinefl', 0):
                    a(f's_cbranch_scc0 {back}')
                    flush_body(cc, par, j)
                    a.label(back)
                else:
                    a(f's_cbranch_scc1 {fl}')
                    a.label(back)
                    flush_blocks.append((fl, back, cc, par, j))
            if nq_check: a.label(done)
        def pre(cur):
            g0 = G_[cur]; h0 = H_[cur]
            for j in range(4):
                g = g0 + 4*j
                a(f'v_pk_fma_f32 v[{g}:{g+1}], v[{g}:{g+1}], s[{sC}:{sC+1}], s[{sC}:{sC+1}] clamp')
                a(f'v_pk_fma_f32 v[{g+2}:{g+3}], v[{g+2}:{g+3}], s[{sC}:{sC+1}], s[{sC}:{sC+1}] clamp')
            for j in range(4):
                g = g0 + 4*j; h = h0 + 4*j
                X = f'v[{g}:{g+1}]'; Y = f'v[{g+2}:{g+3}]'
                p = PP + 2*j; t = TT_ + 2*j; z = ZZ + 2*j
                a(f'v_pk_mul_f32 v[{t}:{t+1}], {Y}, v[{h}:{h+1}]')
                a(f'v_pk_mul_f32 v[{p}:{p+1}], {X}, {Y}')
                a(f'v_pk_add_f32 v[{z}:{z+1}], {X}, {Y}')
                a(f'v_pk_fma_f32 v[{t}:{t+1}], {X}, v[{h+2}:{h+3}], v[{t}:{t+1}]')
        def mfma_list(nxt, cc):
            Gs = f'v[{G_[nxt]}:{G_[nxt]+15}]'; Hs = f'v[{H_[nxt]}:{H_[nxt]+15}]'
            out = []
            for kp in range(4):
                wb = WB + 16*cc + 4*kp; wv = WV + 16*cc + 4*kp; ax = AX + 4*kp
                out.append(f'v_mfma_f32_32x32x16_bf16 {Hs}, v[{ax}:{ax+3}], v[{wv}:{wv+3}], {"0" if kp == 0 else Hs}')
                out.append(f'v_mfma_f32_32x32x16_bf16 {Gs}, v[{ax}:{ax+3}], v[{wb}:{wb+3}], {"0" if kp == 0 else Gs}')
            out.append(f'v_mfma_f32_32x32x16_bf16 {Gs}, v[{AE[cc]}:{AE[cc]+3}], v[{BE}:{BE+3}], {Gs}')
            return out
        def trans_list(cur):
            return [f'v_rcp_f32 v{PP+i}, v{PP+i}' for i in range(8)] + [f'v_exp_f32 v{G_[cur]+i}, v{G_[cur]+i}' for i in range(16)]
        def weave(mf, tr, gaps):
            dist = [3, 3, 3, 3, 3, 3, 2, 2, 2]
            if opts.get('nogaps'): gaps = {}
            def keep(ins):
                if opts.get('nods') and ins.startswith('ds_'): return False
                if opts.get('novalu') and ins.startswith('v_'): return False
                if opts.get('nowait') and ins.startswith('s_waitcnt'): return False
                if opts.get('novm') and ins.startswith('buffer_'): return False
                return True
            gaps = {k_: [i_ for i_ in v_ if keep(i_)] for k_, v_ in gaps.items()}
            if opts.get('nomf'): mf = None
            k = 0
            for m in range(9):
                for ins in gaps.get(('m', m), []): a(ins)
                if mf: a(mf[m])
                for _ in range(dist[m]):
                    a(tr[k])
                    for ins in gaps.get(k, []): a(ins)
                    k += 1
            assert k == len(tr)
        def stage0(par):
            g = {}
            da = dma_addr()
            g[0] = [f'ds_read_b32 v{QF}, v{pQF} offset:{L_QI + 16*(par+1)}']
            g[1] = [f'ds_read_b32 v{EE}, v{pEE} offset:{L_ENT + 64*(par+1)}']
            g[3] = [f'v_and_or_b32 v{BE}, v{R0}, s{sHI}, v{BC+1}']
            g[6] = [da[0]]; g[9] = [da[1]]; g[12] = [da[2]]; g[15] = [da[3]]
            weave(mfma_list(1, 1), trans_list(0), g)
            post(1, par ^ 1, False)
            qn = QA[par ^ 1]
            if not opts.get('nogaps') and not opts.get('nopds'):
                a(f'ds_read2_b32 v[{qn}:{qn+1}], v{pQI} offset0:{4*(par+1)} offset1:{4*(par+1)+1}')
                a(f'ds_read2_b32 v[{qn+2}:{qn+3}], v{pQI} offset0:{4*(par+1)+2} offset1:{4*(par+1)+3}')
                a('s_waitcnt vmcnt(0)')
                for kp in range(4):
                    a(f'ds_read_b128 v[{AX+4*kp}:{AX+4*kp+3}], v{RA+kp}')
            pre(0)
            a(f's_sub_u32 s{sCNT}, s{sCNT}, 1')
        def stage1(par):
            qn = QA[par ^ 1]
            g = {}
            di = dma_issue()
            g[('m', 0)] = ['s_waitcnt lgkmcnt(0)']
            g[0] = [f'v_mad_u32_u24 v{qn}, v{qn}, 1, v{C4}'] + di[0:1]
            g[1] = [f'v_mad_u32_u24 v{qn+1}, v{qn+1}, 1, v{C4}'] + di[1:2]
            g[2] = [f'ds_read_b32 v{R0}, v{qn} offset:512'] + di[2:3]
            g[3] = [f'v_mad_u32_u24 v{qn+2}, v{qn+2}, 1, v{C4}', f'ds_read_b32 v{BE+1}, v{qn+1} offset:512'] + di[3:4]
            g[4] = [f'v_mad_u32_u24 v{qn+3}, v{qn+3}, 1, v{C4}', f'ds_read_b32 v{BE+2}, v{qn+2} offset:512']
            g[5] = [f'ds_read_b32 v{BE+3}, v{qn+3} offset:512']
            g[6] = [f'ds_read_b128 v[{EN}:{EN+3}], v{pEN} offset:{L_ENT + 64*(par+3)}']
            g[7] = [f'v_perm_b32 v{AE[0]}, v{EE}, v{AE[0]}, v{SEL[0]}']
            g[9] = [f'v_perm_b32 v{AE[1]}, v{EE}, v{AE[1]}, v{SEL[1]}']
            g[11] = [f'v_cmp_gt_i32 s[{sF[par^1]}:{sF[par^1]+1}], 0, v{QF}']
            if par == 1:
                g[13] = [f'v_add_u32 v{pQI}, 32, v{pQI}']
                g[14] = [f'v_add_u32 v{pQF}, 32, v{pQF}']
                g[15] = [f'v_add_u32 v{pEE}, 128, v{pEE}']
                g[16] = [f'v_add_u32 v{pEN}, 128, v{pEN}']
            g[17] = [f's_or_b32 s{sANY[par^1]}, s{sF[par^1]}, s{sF[par^1]+1}'] if not opts.get('noany') else [f's_mov_b32 s{sANY[par^1]}, 0']
            g[19] = ['s_waitcnt lgkmcnt(0)', f'v_and_or_b32 v{BE}, v{R0}, s{sLO}, v{BC}']
            weave(mfma_list(0, 0), trans_list(1), g)
            post(0, par, False)
            pre(1)
        def last_stage1(par):
            weave(None, trans_list(1), {})
            post(0, par, True)
            pre(1)
            for i in range(8):
                a(f'v_rcp_f32 v{PP+i}, v{PP+i}')
            a('s_nop 0')
            post(1, par, True)
        L0 = f'K2_T0{tag}'; E0 = f'K2_E0{tag}'; E1 = f'K2_E1{tag}'; DONE = f'K2_MD{tag}'
        PR = opts.get('prio', 1)
        if PR:
            a(f's_add_u32 s{t0}, s{sCNT}, 1')
            a(f's_lshr_b32 s{t0}, s{t0}, {2 if PR == 1 else 1}')
            if PR == 3: a(f's_lshr_b32 s{t0}, s{t0}, 0')
            a(f's_lshl_b32 s{t0}, s{t0}, 1')
            a(f's_sub_u32 s{sSWAP}, s{sCNT}, s{t0}')
            a(f's_cmp_ge_u32 s{sW}, 4')
            a(f's_cbranch_scc0 K2_PR0{tag}')
            a('s_setprio 1')
            a.label(f'K2_PR0{tag}')
        a.label(L0)
        if PR:
            a(f's_cmp_eq_u32 s{sCNT}, s{sSWAP}')
            a(f's_cbranch_scc1 K2_SWP{tag}')
            a.label(f'K2_SWB{tag}')
        stage0(0)
        a(f's_cbranch_scc1 {E0}')
        stage1(0)
        stage0(1)
        a(f's_cbranch_scc1 {E1}')
        stage1(1)
        a(f's_branch {L0}')
        a.label(E0)
        last_stage1(0)
        a(f's_branch {DONE}')
        a.label(E1)
        last_stage1(1)
        a(f's_branch {DONE}')
        if PR:
            a.label(f'K2_SWP{tag}')
            a(f's_cmp_ge_u32 s{sW}, 4')
            a(f's_cbranch_scc1 K2_SW0{tag}')
            a('s_setprio 1')
            a(f's_branch K2_SWB{tag}')
            a.label(f'K2_SW0{tag}')
            a('s_setprio 0')
            a(f's_branch K2_SWB{tag}')
        for (fl, back, cc, par, j) in flush_blocks:
            a.label(fl)
            flush_body(cc, par, j)
            a(f's_branch {back}')
        a.label(DONE)
        if PR: a('s_setprio 0')

    def pipeline_fill():
        q0 = QA[0]
        a(f'ds_read2_b32 v[{q0}:{q0+1}], v{pQI} offset0:0 offset1:1')
        a(f'ds_read2_b32 v[{q0+2}:{q0+3}], v{pQI} offset0:2 offset1:3')
        a(f'ds_read_b32 v{QF}, v{pQF} offset:{L_QI}')
        a(f'ds_read_b32 v{EE}, v{pEE} offset:{L_ENT}')
        a(f'ds_read_b128 v[{EN}:{EN+3}], v{pEN} offset:{L_ENT + 64}')
        for i in range(2):
            a(f'v_mov_b64 v[{DEN+2*i}:{DEN+2*i+1}], 0')
            a(f'v_mov_b64 v[{NUM+2*i}:{NUM+2*i+1}], 0')
        for i in range(8):
            a(f'v_mov_b32 v{PP+i}, 1.0')
        for i in range(4):
            a(f'v_mov_b64 v[{TT_+2*i}:{TT_+2*i+1}], 0')
            a(f'v_mov_b64 v[{ZZ+2*i}:{ZZ+2*i+1}], 0')
        a(f's_mov_b32 s{sANY[1]}, 0')
        a('s_waitcnt lgkmcnt(0)')
        for q in range(4):
            a(f'v_mad_u32_u24 v{q0+q}, v{q0+q}, 1, v{C4}')
        a(f'ds_read_b32 v{R0}, v{q0} offset:512')
        for q in range(1, 4):
            a(f'ds_read_b32 v{BE+q}, v{q0+q} offset:512')
        a(f'v_perm_b32 v{AE[0]}, v{EE}, v{AE[0]}, v{SEL[0]}')
        a(f'v_perm_b32 v{AE[1]}, v{EE}, v{AE[1]}, v{SEL[1]}')
        a(f'v_cmp_gt_i32 s[{sF[0]}:{sF[0]+1}], 0, v{QF}')
        for ins in dma_addr(): a(ins)
        stamp(21)
        a('s_waitcnt vmcnt(0)')
        stamp(22)
        for kp in range(4):
            a(f'ds_read_b128 v[{AX+4*kp}:{AX+4*kp+3}], v{RA+kp}')
        a(f's_or_b32 s{sANY[0]}, s{sF[0]}, s{sF[0]+1}')
        a('s_waitcnt lgkmcnt(0)')
        a(f'v_and_or_b32 v{BE}, v{R0}, s{sLO}, v{BC}')
        for ins in dma_issue(): a(ins)
        a(f'ds_read_b128 v[{EN}:{EN+3}], v{pEN} offset:{L_ENT + 128}')
        Gs = f'v[{GA}:{GA+15}]'; Hs = f'v[{HA}:{HA+15}]'
        for kp in range(4):
            a(f'v_mfma_f32_32x32x16_bf16 {Hs}, v[{AX+4*kp}:{AX+4*kp+3}], v[{WV+4*kp}:{WV+4*kp+3}], {"0" if kp == 0 else Hs}')
            a(f'v_mfma_f32_32x32x16_bf16 {Gs}, v[{AX+4*kp}:{AX+4*kp+3}], v[{WB+4*kp}:{WB+4*kp+3}], {"0" if kp == 0 else Gs}')
        a(f'v_mfma_f32_32x32x16_bf16 {Gs}, v[{AE[0]}:{AE[0]+3}], v[{BE}:{BE+3}], {Gs}')
        a('s_waitcnt lgkmcnt(0)')
        a('s_nop 7')
        a('s_nop 3')
    def forced_flags():
        a(f's_sub_u32 s{t1}, s{sL}, 1')
        a(f's_lshl_b32 s{t1}, s{t1}, 2')
        a(f'v_add_u32 v{tB}, s{t1}, v{pQI}')
        a(f'v_mov_b32 v{tA}, 0x80000000')
        a('s_mov_b32 exec_lo, 1')
        a('s_mov_b32 exec_hi, 1')
        a(f'ds_or_b32 v{tB}, v{tA}')
        a('s_mov_b64 exec, -1')

    stamp(2)
    a(f's_mov_b64 exec, s[{sSV2}:{sSV2+1}]')
    a(f'v_mov_b32 v{tD}, {L_CNT + 127*4}')
    a(f'v_mov_b32 v{tE}, 1')
    a(f'ds_write_b32 v{tD}, v{tE}')
    a('s_mov_b64 exec, -1')
    gemm_issue()
    stamp(28)
    gemm_mid()
    gemm_mid2()
    stamp(29)
    a(f's_cmp_lg_u32 s{sW}, 0')
    a('s_cbranch_scc1 K2_NOCI')
    a(f'v_mul_u32_u24 v{tA}, {2*ROWB}, v{vLANE}')
    a(f'v_mov_b32 v{tB}, {L_ZERO}')
    a(f'v_add_u32 v{tA}, {L_ACC}, v{tA}')
    a(f's_mov_b32 exec_hi, {(1 << (MAXN // 2 - 32)) - 1}')
    a(f'ds_write_b32 v{tA}, v{tB} offset:768')
    a(f'ds_write_b32 v{tA}, v{tB} offset:{768 + ROWB}')
    a('s_mov_b64 exec, -1')
    a.label('K2_NOCI')
    gemm_store('F')
    stamp(3)
    a('s_waitcnt vmcnt(0)')
    stamp(23)
    hist()
    a('s_waitcnt lgkmcnt(0)')
    stamp(24)
    if opts.get('proprio') == 1: a('s_setprio 0')
    a('s_barrier')
    stamp(4)
    scan_nodes('F')
    a(f'v_readlane_b32 s{t0}, v{TQ+1}, 63')
    a(f's_lshl_b32 s{t1}, s{sL}, 2')
    a(f'v_cmp_lt_u32 vcc, s{t1}, v{tB}')
    a(f's_cmp_lg_u32 s{t0}, 0')
    a('s_cbranch_scc1 K2_SLOW')
    a(f's_cmp_gt_u32 s{sL}, {(ENT_QUADS - 8) // NSTREAM}')
    a('s_cbranch_scc1 K2_SLOW')
    a('s_cbranch_vccnz K2_SLOW')
    stamp(15)
    scatter()
    stamp(16)
    a('s_waitcnt lgkmcnt(0)')
    a('s_barrier')
    stamp(5)
    a(f's_cmp_eq_u32 s{sL}, 0')
    a('s_cbranch_scc1 K2_NOL')
    setup_ptrs()
    a('s_waitcnt lgkmcnt(0)')
    for ins in dma_addr(): a(ins)
    for ins in dma_issue(): a(ins)
    a.label('K2_NOL')
    stamp(17)
    a(f'v_cmp_gt_u32 vcc, {MAXN // 2}, v{vLANE}')
    a(f'v_lshl_or_b32 v{tB}, v{vLANE}, 1, 1')
    a(f'v_cmp_le_u32 s[{sSV}:{sSV+1}], s{sNN}, v{tB}')
    a(f'v_mov_b32 v{tC}, 1')
    a('s_nop 0')
    a(f'v_cndmask_b32 v{tB}, v{TQ+1}, v{tC}, s[{sSV}:{sSV+1}]')
    a(f'v_min_u32 v{tB}, v{TQ}, v{tB}')
    a(f'v_cmp_eq_u32 s[{sSV}:{sSV+1}], 0, v{tB}')
    a(f's_and_b64 s[{sSV}:{sSV+1}], s[{sSV}:{sSV+1}], vcc')
    a('s_cbranch_scc1 K2_ZROWS')
    a.label('K2_ZBACK')
    qi_fill('F', True)
    stamp(18)
    w_frags()
    consts()
    a('s_waitcnt lgkmcnt(0)')
    stamp(19)
    if opts.get('proprio') == 2: a('s_setprio 0')
    a('s_barrier')
    stamp(20)
    a(f's_cmp_eq_u32 s{sL}, 0')
    a('s_cbranch_scc1 K2_EPI')
    pipeline_fill()
    stamp(6)
    if opts.get('dbgtime'):
        a(f's_memrealtime s[{t2}:{t3}]')
        a('s_waitcnt lgkmcnt(0)')
        a(f's_mov_b32 s{sT1}, s{t2}')
    if STAMP:
        a(f's_memrealtime s[{t2}:{t3}]')
        a('s_waitcnt lgkmcnt(0)')
        a(f'v_writelane_b32 v{vST}, s{t2}, 13')
    if opts.get('half'):
        a(f's_cmp_ge_u32 s{sW}, 4')
        a('s_cbranch_scc1 K2_MDF')
    main_loop('F', False)
    stamp(7)
    if opts.get('dbgtime'):
        a(f's_memrealtime s[{t2}:{t3}]')
        a('s_waitcnt lgkmcnt(0)')
        a(f's_mov_b32 s{sT2}, s{t2}')
    if STAMP:
        a(f's_memrealtime s[{t2}:{t3}]')
        a('s_waitcnt lgkmcnt(0)')
        a(f'v_writelane_b32 v{vST}, s{t2}, 14')
    a.label('K2_EPI')
    e0 = 4
    XV = [e0, e0 + 4]; DN = e0 + 8; NM = e0 + 16; UU = e0 + 24; CD = e0 + 28; CN = e0 + 36; O = e0 + 44
    AD = e0 + 48; GO = [e0 + 49, e0 + 50]; T1 = e0 + 51; T2 = e0 + 52; CP = e0 + 53; ND = e0 + 54; OC = [e0 + 55, e0 + 56]; ADR = [e0 + 48, e0 + 57]
    def epi_addr(r):
        a(f'v_add_u32 v{T1}, {512*r}, v0') if r else a(f'v_mov_b32 v{T1}, v0')
        a(f'v_lshrrev_b32 v{ND}, 3, v{T1}')
        a(f'v_and_b32 v{T1}, 7, v{T1}')
        a(f'v_lshlrev_b32 v{OC[r]}, 4, v{T1}')
        a(f'v_mad_u32_u24 v{ADR[r]}, v{ND}, s{t0}, v{OC[r]}')
        a(f'v_add_u32 v{ADR[r]}, {L_ACC}, v{ADR[r]}')
        a(f'v_add_u32 v{GO[r]}, s{sNS}, v{ND}')
        a(f'v_lshlrev_b32 v{GO[r]}, 7, v{GO[r]}')
        a(f'v_lshl_add_u32 v{GO[r]}, v{T1}, 3, v{GO[r]}')
    def epi_body(r, carry):
        ad = ADR[r]; xv = XV[r]
        if carry:
            a(f'v_sub_u32 v{T2}, v{ad}, v{OC[r]}')
            a(f'ds_read_b32 v{CP}, v{T2} offset:768')
        a(f'ds_read_b128 v[{DN}:{DN+3}], v{ad}')
        a(f'ds_read_b128 v[{DN+4}:{DN+7}], v{ad} offset:128')
        a(f'ds_read_b128 v[{NM}:{NM+3}], v{ad} offset:256')
        a(f'ds_read_b128 v[{NM+4}:{NM+7}], v{ad} offset:384')
        a(f'ds_read_b128 v[{UU}:{UU+3}], v{ad} offset:640')
        if carry:
            a('s_waitcnt lgkmcnt(5)')
            a(f'v_add_u32 v{T2}, v{CP}, v{OC[r]}')
            a(f'ds_read_b128 v[{CD}:{CD+3}], v{T2}')
            a(f'ds_read_b128 v[{CD+4}:{CD+7}], v{T2} offset:128')
            a(f'ds_read_b128 v[{CN}:{CN+3}], v{T2} offset:256')
            a(f'ds_read_b128 v[{CN+4}:{CN+7}], v{T2} offset:384')
        a('s_waitcnt lgkmcnt(0)')
        if carry:
            for i in range(0, 8, 2):
                a(f'v_pk_add_f32 v[{DN+i}:{DN+i+1}], v[{DN+i}:{DN+i+1}], v[{CD+i}:{CD+i+1}]')
                a(f'v_pk_add_f32 v[{NM+i}:{NM+i+1}], v[{NM+i}:{NM+i+1}], v[{CN+i}:{CN+i+1}]')
        for i in range(0, 8, 2):
            a(f'v_pk_add_f32 v[{DN+i}:{DN+i+1}], v[{DN+i}:{DN+i+1}], s[{sC}:{sC+1}]')
        for i in range(8):
            a(f'v_rcp_f32 v{DN+i}, v{DN+i}')
        for i in range(4):
            a(f'v_lshlrev_b32 v{CD+i}, 16, v{UU+i}')
            a(f'v_and_b32 v{CD+4+i}, s{sHI}, v{UU+i}')
        for i in range(0, 8, 2):
            a(f'v_pk_fma_f32 v[{NM+i}:{NM+i+1}], v[{NM+i}:{NM+i+1}], v[{DN+i}:{DN+i+1}], v[{CD+i}:{CD+i+1}]')
        a(f's_waitcnt vmcnt({2 if r == 0 else 0})') if True else None
        for i in range(8):
            a(f'v_max_f32 v{NM+i}, 0, v{NM+i}')
        for i in range(4):
            a(f'v_lshlrev_b32 v{CD+2*i}, 16, v{xv+i}')
            a(f'v_and_b32 v{CD+2*i+1}, s{sHI}, v{xv+i}')
        for i in range(0, 8, 2):
            a(f'v_pk_add_f32 v[{NM+i}:{NM+i+1}], v[{NM+i}:{NM+i+1}], v[{CD+i}:{CD+i+1}]')
        for i in range(4):
            a(f'v_cvt_pk_bf16_f32 v{O+i}, v{NM+2*i}, v{NM+2*i+1}')
        a(f'buffer_store_dwordx2 v[{O}:{O+1}], v{GO[r]}, s[{rO}:{rO+3}], 0 offen')
        a(f'buffer_store_dwordx2 v[{O+2}:{O+3}], v{GO[r]}, s[{rO}:{rO+3}], 0 offen offset:64')
    def epilogue(tag, carry):
        srd(a, rO, sOUT, N * 128)
        srd(a, rF, sX, N * 128)
        a(f's_mov_b32 s{t0}, {ROWB}')
        a(f's_mov_b32 s{sC}, 0x{EPS_SCALED:x}')
        a(f's_mov_b32 s{sC+1}, 0x{EPS_SCALED:x}')
        a(f's_mov_b32 s{sHI}, 0xffff0000')
        a('s_waitcnt vmcnt(0)')
        epi_addr(0)
        a(f'buffer_load_dwordx2 v[{XV[0]}:{XV[0]+1}], v{GO[0]}, s[{rF}:{rF+3}], 0 offen')
        a(f'buffer_load_dwordx2 v[{XV[0]+2}:{XV[0]+3}], v{GO[0]}, s[{rF}:{rF+3}], 0 offen offset:64')
        epi_addr(1)
        a(f'v_cmp_gt_u32 s[{sSV}:{sSV+1}], s{sNN}, v{ND}')
        a(f'buffer_load_dwordx2 v[{XV[1]}:{XV[1]+1}], v{GO[1]}, s[{rF}:{rF+3}], 0 offen')
        a(f'buffer_load_dwordx2 v[{XV[1]+2}:{XV[1]+3}], v{GO[1]}, s[{rF}:{rF+3}], 0 offen offset:64')
        a('s_waitcnt lgkmcnt(0)')
        a('s_barrier')
        if STAMP and tag == 'F': stamp(8)
        epi_body(0, carry)
        a(f's_mov_b64 exec, s[{sSV}:{sSV+1}]')
        a(f's_cbranch_execz K2_FIN{tag}')
        epi_body(1, carry)
        a.label(f'K2_FIN{tag}')
    epilogue('F', True)
    if opts.get('dbgtime'):
        a('s_mov_b64 exec, -1')
        a('s_waitcnt vmcnt(0)')
        a(f's_memrealtime s[{t2}:{t3}]')
        a(f's_cmp_lg_u32 s{sW}, 7')
        a('s_cbranch_scc1 K2_DBGX')
        a('s_and_b32 s3, s2, 31')
        a('s_cmp_lg_u32 s3, 0')
        a('s_cbranch_scc1 K2_DBGX')
        a('s_lshr_b32 s3, s2, 5')
        a('s_cmp_ge_u32 s3, 2')
        a('s_cbranch_scc1 K2_DBGX')
        a(f's_lshl_b32 s{t0}, s3, 2')
        a(f's_add_u32 s{t0}, s{t0}, 0x1200000')
        a(f'v_mov_b32 v4, s{t0}')
        a(f'global_load_dword v5, v4, s[{sWS}:{sWS+1}]')
        a(f'global_load_dword v6, v4, s[{sWS}:{sWS+1}] offset:256')
        a('s_waitcnt vmcnt(0) lgkmcnt(0)')
        a(f'v_sub_u32 v8, v6, v5')
        a(f'v_sub_u32 v9, s{sT0}, v5')
        a(f'v_sub_u32 v10, s{sT1}, v5')
        a(f'v_sub_u32 v11, s{sT2}, v5')
        a(f'v_sub_u32 v12, s{t2}, v5')
        a('s_lshl_b32 s3, s3, 5')
        a('v_mov_b32 v4, s3')
        a('s_mov_b64 exec, 1')
        a(f'global_store_dwordx4 v4, v[8:11], s[{sDBG}:{sDBG+1}]')
        a(f'global_store_dword v4, v12, s[{sDBG}:{sDBG+1}] offset:16')
        a.label('K2_DBGX')
    if STAMP:
        a('s_mov_b64 exec, -1')
        a('s_waitcnt vmcnt(0)')
        stamp(9)
        a(f's_memrealtime s[{t2}:{t3}]')
        a('s_waitcnt lgkmcnt(0)')
        a(f'v_writelane_b32 v{vST}, s{t2}, 12')
        a(f's_mul_i32 s{t0}, s2, {NW}')
        a(f's_add_u32 s{t0}, s{t0}, s{sW}')
        a(f's_lshl_b32 s{t0}, s{t0}, 8')
        a(f's_add_u32 s{t0}, s{t0}, 0x1000000')
        srd_off(a, rT, sWS, f's{t0}', 256)
        a(f'v_writelane_b32 v{vST}, s{sL}, 10')
        a(f'v_lshlrev_b32 v4, 2, v{vLANE}')
        a(f'buffer_store_dword v{vST}, v4, s[{rT}:{rT+3}], 0 offen')
    a('s_endpgm')
    a.label('K2_ZROWS')
    a(f's_mov_b64 exec, s[{sSV}:{sSV+1}]')
    for i in range(4):
        a(f'v_mov_b32 v{TR+i}, 0')
    for nd in range(2):
        a(f'v_cmp_eq_u32 vcc, 0, v{TQ+nd}')
        a(f's_and_b64 exec, vcc, s[{sSV}:{sSV+1}]')
        for k in range(32):
            a(f'ds_write_b128 v{nROW0}, v[{TR}:{TR+3}] offset:{nd*ROWB + 16*k}')
        a(f's_mov_b64 exec, s[{sSV}:{sSV+1}]')
    a('s_mov_b64 exec, -1')
    a('s_branch K2_ZBACK')

    a.label('K2_SLOW')
    w_frags()
    consts()
    a('s_waitcnt vmcnt(0) lgkmcnt(0)')
    a('s_barrier')
    a(f's_lshl_b32 s{t1}, s2, 10')
    a(f's_add_u32 s{t1}, s{t1}, {WS_TAB2}')
    srd_off(a, rT, sWS, f's{t1}', 1024)
    a(f'v_lshlrev_b32 v{tA}, 4, v{vLANE}')
    a(f'buffer_load_dwordx4 v[{TQ}:{TQ+3}], v{tA}, s[{rT}:{rT+3}], 0 offen')
    a('s_waitcnt vmcnt(0)')
    a(f'v_max_u32 v{tE}, v{TQ}, v{TQ+1}')
    a(f'v_max3_u32 v{tE}, v{tE}, v{TQ+2}, v{TQ+3}')
    wave_scan(a, 'v_max_u32', tE)
    a('s_nop 0')
    a(f'v_readlane_b32 s{t1}, v{tE}, 63')
    a(f's_add_u32 s{t1}, s{t1}, {WSLOW-1}')
    a(f's_mul_i32 s{t1}, s{t1}, 5042')
    a(f's_lshr_b32 s{sNP}, s{t1}, 16')
    a(f's_mov_b32 s{sP}, 0')
    for i in range(4):
        a(f'v_mov_b32 v{TR+i}, 0')
    a(f'v_lshrrev_b32 v{tA}, 5, v0')
    a(f'v_mul_u32_u24 v{tA}, {ROWB}, v{tA}')
    a(f'v_and_b32 v{tB}, 31, v{vLANE}')
    a(f'v_lshl_add_u32 v{tA}, v{tB}, 4, v{tA}')
    a(f'v_add_u32 v{tA}, {L_ACC}, v{tA}')
    for i in range(6):
        a(f'ds_write_b128 v{tA}, v[{TR}:{TR+3}]')
        a(f'v_add_u32 v{tA}, {16*ROWB}, v{tA}')
    a(f'v_cmp_gt_u32 vcc, 64, v0')
    a(f's_and_saveexec_b64 s[{sSV}:{sSV+1}], vcc')
    a(f'ds_write_b128 v{tA}, v[{TR}:{TR+3}]')
    a(f's_mov_b64 exec, s[{sSV}:{sSV+1}]')
    a.label('K2_SPASS')
    a(f's_lshl_b32 s{t1}, s2, 10')
    a(f's_add_u32 s{t1}, s{t1}, {WS_TAB}')
    srd_off(a, rT, sWS, f's{t1}', WS_TAB2 - WS_TAB + 1024)
    a(f'v_lshrrev_b32 v{tD}, 4, v{vLANE}')
    a(f'v_lshlrev_b32 v{tD}, 5, v{tD}')
    a(f's_lshl_b32 s{t0}, s{sW}, 7')
    a(f'v_add_u32 v{tD}, s{t0}, v{tD}')
    a(f's_mov_b32 s{t0}, {WS_TAB2 - WS_TAB}')
    for i in range(2):
        a(f'buffer_load_dwordx4 v[{SG+4*i}:{SG+4*i+3}], v{tD}, s[{rT}:{rT+3}], 0 offen offset:{16*i}')
    for i in range(2):
        a(f'buffer_load_dwordx4 v[{AX+4*i}:{AX+4*i+3}], v{tD}, s[{rT}:{rT+3}], s{t0} offen offset:{16*i}')
    a(f'v_and_b32 v{tC}, 15, v{vLANE}')
    a(f's_mul_i32 s{t0}, s{sP}, {WSLOW}')
    a(f'v_cmp_gt_u32 vcc, {WSLOW}, v{tC}')
    a(f'v_add_u32 v{tC}, s{t0}, v{tC}')
    a(f'v_lshlrev_b32 v{tB}, 3, v{tC}')
    a(f'v_mov_b32 v{tD}, 0x10000')
    a(f'v_cndmask_b32 v{tC}, v{tD}, v{tC}, vcc')
    a('s_waitcnt vmcnt(0)')
    for it in range(8):
        a(f'v_cmp_gt_u32 s[{MK+2*it}:{MK+2*it+1}], v{AX+it}, v{tC}')
        a(f's_mov_b64 s[{MK+16+2*it}:{MK+16+2*it+1}], 0')
    rec_loads(tB, 8)
    lds_init()
    a('s_waitcnt vmcnt(0) lgkmcnt(0)')
    a('s_barrier')
    hist()
    a('s_waitcnt lgkmcnt(0)')
    a('s_barrier')
    scan_nodes('S')
    qi_fill('S', False)
    scatter()
    a('s_waitcnt lgkmcnt(0)')
    a('s_barrier')
    a(f's_cmp_eq_u32 s{sL}, 0')
    a('s_cbranch_scc1 K2_SNEXT')
    setup_ptrs()
    a('s_waitcnt lgkmcnt(0)')
    for ins in dma_addr(): a(ins)
    for ins in dma_issue(): a(ins)
    forced_flags()
    pipeline_fill()
    main_loop('S', True)
    a.label('K2_SNEXT')
    a('s_waitcnt vmcnt(0) lgkmcnt(0)')
    a('s_barrier')
    a(f's_add_u32 s{sP}, s{sP}, 1')
    a(f's_cmp_lt_u32 s{sP}, s{sNP}')
    a('s_cbranch_scc1 K2_SPASS')
    epilogue('S', False)
    a.label('K2_END')
    a('s_endpgm')
    return nvgpr, nsgpr

def kd(name, nv, ns):
    acc = (nv + 3) // 4 * 4
    return f'''.amdhsa_kernel {name}
  .amdhsa_next_free_vgpr {nv}
  .amdhsa_next_free_sgpr {ns}
  .amdhsa_accum_offset {acc}
  .amdhsa_group_segment_fixed_size 0
  .amdhsa_kernarg_size 96
  .amdhsa_user_sgpr_count 2
  .amdhsa_user_sgpr_kernarg_segment_ptr 1
  .amdhsa_system_sgpr_workgroup_id_x 1
  .amdhsa_float_denorm_mode_32 3
.end_amdhsa_kernel
'''

def build(opts=None):
    opts = opts or {}
    a = Asm()
    gen_k1(a, opts)
    nv, ns = gen_k2(a, opts)
    out = HEADER
    out += f'; @launch kernel=gs_part_kernel grid=(256,1,1) block=({K1_THREADS},1,1) lds={LDS_K1}\n'
    out += f'; @launch kernel=gs_main_kernel grid=(256,1,1) block=({NW*64},1,1) lds={LDS_MAIN}\n'
    out += '.amdgcn_target "amdgcn-amd-amdhsa--gfx950"\n.text\n'
    out += a.text()
    out += '.section .rodata,"a"\n.p2align 6\n'
    out += kd('gs_part_kernel', 60, 60)
    out += '.p2align 6\n'
    out += kd('gs_main_kernel', nv, ns)
    return out

if __name__ == '__main__':
    path = sys.argv[1] if len(sys.argv) > 1 else 'gather_scatter__edge_featured_mpnn_gatedgcn__graph.s'
    opts = {}
    for o in sys.argv[2:]:
        k, _, val = o.partition('=')
        opts[k] = int(val) if val else True
    open(path, 'w').write(build(opts))
    print('written', path, 'LDS', LDS_MAIN)
```

```python
import sys, os, struct
sys.path.insert(0, os.path.dirname(__file__))
from asmlib import *

N = 25000; E = 800000
NBK = 256
CH = 3136
RECB = CH * 8
WS_TAB = 0x700000
WS_TAB2 = 0x740000
WS_FRAG = 0x780000
MAGIC_B = 43980466
LOG2E = 0xBFB8AA3B
SBITS = 50
C_SCALE = (127 - SBITS) << 23
EPS_SCALED = 0x4E8637BD
assert abs(struct.unpack('<f', struct.pack('<I', EPS_SCALED))[0] / (1e-6 * 2.0**50) - 1) < 1e-6

NW = 8
NSTREAM = 16
NIT = 16
CAP = 3456
WSLOW = 13
ROWB = 784
MAXN = 98
ENT_QUADS = 960
VROWB = 640
L_CNT = 0
L_ZERO = 512
L_TAB = 1024
L_QI = 1536
L_ENT = L_QI + ENT_QUADS * 4
L_ACC = L_ENT + ENT_QUADS * 16
L_VIRT = L_ACC + MAXN * ROWB
L_WST = L_VIRT + NSTREAM * VROWB
L_WST = (L_WST + 255) // 256 * 256
L_DMA = L_WST + 16384
LDS_MAIN = L_DMA + NW * 4096
assert LDS_MAIN <= 163840, LDS_MAIN
assert L_ACC % 16 == 0 and L_VIRT % 16 == 0

K1_THREADS = 896
K1_HIST = 0
K1_STAGE = 1024
LDS_K1 = K1_STAGE + RECB

HEADER = open(os.path.join(os.path.dirname(__file__), 'header.txt')).read()

def srd(a, sreg, ptr, size):
    a(f's_mov_b32 s{sreg}, s{ptr}')
    a(f's_and_b32 s{sreg+1}, s{ptr+1}, 0xffff')
    a(f's_mov_b32 s{sreg+2}, {size}')
    a(f's_mov_b32 s{sreg+3}, 0x20000')

def srd_off(a, sreg, ptr, off, size):
    a(f's_add_u32 s{sreg}, s{ptr}, {off}')
    a(f's_addc_u32 s{sreg+1}, s{ptr+1}, 0')
    a(f's_and_b32 s{sreg+1}, s{sreg+1}, 0xffff')
    a(f's_mov_b32 s{sreg+2}, {size}')
    a(f's_mov_b32 s{sreg+3}, 0x20000')

def wave_scan(a, op, r):
    for sh in (1, 2, 4, 8):
        a('s_nop 1')
        a(f'{op}_dpp v{r}, v{r}, v{r} row_shr:{sh} row_mask:0xf bank_mask:0xf')
    a('s_nop 1')
    a(f'{op}_dpp v{r}, v{r}, v{r} row_bcast:15 row_mask:0xa bank_mask:0xf')
    a('s_nop 1')
    a(f'{op}_dpp v{r}, v{r}, v{r} row_bcast:31 row_mask:0xc bank_mask:0xf')

def wave_scan2(a, op1, r1, op2, r2):
    steps = [f'row_shr:{sh} row_mask:0xf bank_mask:0xf' for sh in (1, 2, 4, 8)] + \
            ['row_bcast:15 row_mask:0xa bank_mask:0xf', 'row_bcast:31 row_mask:0xc bank_mask:0xf']
    a('s_nop 1')
    for st in steps:
        a(f'{op1}_dpp v{r1}, v{r1}, v{r1} {st}')
        a(f'{op2}_dpp v{r2}, v{r2}, v{r2} {st}')
        a('s_nop 0')

def gen_k1(a, opts):
    a.raw('.p2align 8')
    a.raw('.globl gs_part_kernel')
    a.raw('.type gs_part_kernel,@function')
    a.label('gs_part_kernel')
    a('s_cmp_ge_u32 s2, 256')
    a('s_cbranch_scc1 K1_END')
    a('s_load_dwordx4 s[4:7], s[0:1], 8')
    a('s_load_dwordx2 s[8:9], s[0:1], 24')
    a('s_load_dwordx2 s[10:11], s[0:1], 88')
    a('s_load_dwordx2 s[44:45], s[0:1], 0')
    if opts.get('dbgtime'):
        a('s_memrealtime s[54:55]')
        a('s_waitcnt lgkmcnt(0)')
        a('s_cmp_ge_u32 s2, 8')
        a('s_cbranch_scc1 K1_NODBG')
        a('v_mov_b32 v20, s54')
        a('s_lshl_b32 s56, s2, 2')
        a('s_add_u32 s56, s56, 0x1200000')
        a('v_mov_b32 v22, s56')
        a('v_cmp_eq_u32 vcc, 0, v0')
        a('s_and_saveexec_b64 s[58:59], vcc')
        a('global_store_dword v22, v20, s[10:11]')
        a('s_mov_b64 exec, s[58:59]')
        a.label('K1_NODBG')
    a('v_lshrrev_b32 v1, 6, v0')
    a('s_mul_i32 s12, s2, %d' % (CH * 4))
    a('v_readfirstlane_b32 s3, v1')
    a('s_lshr_b32 s13, s12, 1')
    a('v_lshlrev_b32 v2, 4, v0')
    a('v_add_u32 v2, s12, v2')
    a('s_cmp_eq_u32 s3, 13')
    a('s_cbranch_scc1 K1_FRAG')
    a('v_lshlrev_b32 v3, 3, v0')
    a('v_add_u32 v3, s13, v3')
    a('s_waitcnt lgkmcnt(0)')
    srd(a, 20, 8, E * 4)
    a('buffer_load_dwordx4 v[4:7], v2, s[20:23], 0 offen')
    srd(a, 24, 6, E * 4)
    a('buffer_load_dwordx4 v[8:11], v2, s[24:27], 0 offen')
    srd(a, 28, 4, E * 2)
    a('buffer_load_dwordx2 v[12:13], v3, s[28:31], 0 offen')
    if opts.get('xpre', 1):
        a('s_and_b32 s46, s2, 7')
        a('s_lshr_b32 s47, s2, 3')
        a('s_lshl_b32 s46, s46, 5')
        a('s_add_u32 s46, s46, s47')
        a('s_mul_i32 s46, s46, 3125')
        a('s_add_u32 s46, s46, 31')
        a('s_lshr_b32 s46, s46, 5')
        a('s_lshl_b32 s46, s46, 7')
        a('s_and_b32 s45, s45, 0xffff')
        a('s_mov_b32 s48, s44')
        a('s_mov_b32 s49, s45')
        a('s_mov_b32 s50, %d' % (N * 128))
        a('s_mov_b32 s51, 0x20000')
        a('v_lshlrev_b32 v40, 4, v0')
        a('buffer_load_dwordx4 v[56:59], v40, s[48:51], s46 offen')
    a('v_lshlrev_b32 v14, 2, v0')
    a('v_mov_b32 v15, 0')
    a('v_cmp_gt_u32 vcc, 256, v0')
    a('s_and_saveexec_b64 s[18:19], vcc')
    a('ds_write_b32 v14, v15 offset:%d' % K1_HIST)
    a('s_mov_b64 exec, s[18:19]')
    a('v_cmp_gt_u32 vcc, %d, v0' % (CH // 4))
    a('s_mov_b32 s14, %d' % (E * 4))
    a('v_cmp_gt_u32 s[16:17], s14, v2')
    a('s_and_b64 s[16:17], s[16:17], vcc')
    a('s_mul_i32 s15, s2, %d' % RECB)
    srd_off(a, 32, 10, 's15', RECB)
    srd_off(a, 36, 10, WS_TAB, 0x80000)
    a('s_mov_b32 s40, %d' % MAGIC_B)
    a('s_movk_i32 s41, 3125')
    a('v_mov_b32 v15, 1')
    a('s_waitcnt lgkmcnt(0)')
    a('s_barrier')
    a('s_mov_b64 exec, s[16:17]')
    a('s_cbranch_execz K1_NOEDGE1')
    a('s_waitcnt vmcnt(%d)' % (3 if opts.get('xpre', 1) else 2))
    for k in range(4):
        a(f'v_mul_hi_u32 v{16+k}, v{4+k}, s40')
    for k in range(4):
        a(f'v_lshlrev_b32 v{20+k}, 2, v{16+k}')
        a(f'ds_add_rtn_u32 v{24+k}, v{20+k}, v15 offset:{K1_HIST}')
    for k in range(4):
        a(f'v_mul_u32_u24 v{28+k}, s41, v{16+k}')
        a(f'v_add_u32 v{28+k}, 31, v{28+k}')
        a(f'v_lshrrev_b32 v{28+k}, 5, v{28+k}')
        a(f'v_sub_u32 v{28+k}, v{4+k}, v{28+k}')
        a(f'v_lshlrev_b32 v{33+2*k}, 2, v{28+k}')
    a('s_waitcnt vmcnt(%d)' % (1 if opts.get('xpre', 1) else 0))
    a('s_mov_b32 s42, 0xffff0000')
    a('v_lshl_or_b32 v32, v12, 16, v8')
    a('v_and_or_b32 v34, v12, s42, v9')
    a('v_lshl_or_b32 v36, v13, 16, v10')
    a('v_and_or_b32 v38, v13, s42, v11')
    a.label('K1_NOEDGE1')
    a('s_mov_b64 exec, -1')
    a('s_waitcnt lgkmcnt(0)')
    a('s_barrier')
    a('s_cmp_lg_u32 s3, 0')
    a('s_cbranch_scc1 K1_SCANDONE')
    a('v_lshlrev_b32 v40, 4, v0')
    a('ds_read_b128 v[44:47], v40 offset:%d' % K1_HIST)
    a('v_lshlrev_b32 v41, 12, v0')
    a('s_lshl_b32 s15, s2, 2')
    a('v_add_u32 v41, s15, v41')
    a('s_waitcnt lgkmcnt(0)')
    a('v_add_u32 v48, v44, v45')
    a('v_add_u32 v49, v48, v46')
    a('v_add_u32 v50, v49, v47')
    a('v_mov_b32 v51, v50')
    wave_scan(a, 'v_add_u32', 51)
    a('v_sub_u32 v52, v51, v50')
    a('v_add_u32 v53, v52, v44')
    a('v_add_u32 v54, v52, v48')
    a('v_add_u32 v55, v52, v49')
    a('ds_write_b128 v40, v[52:55] offset:%d' % K1_HIST)
    a('s_mul_i32 s15, s2, %d' % CH)
    a('s_mov_b32 s43, %d' % (WS_TAB2 - WS_TAB))
    for k in range(4):
        a(f'buffer_store_dword v{44+k}, v41, s[36:39], s43 offen offset:{k*1024}')
        a(f'v_min_u32 v{48+k}, 0xff, v{44+k}')
        a(f'v_add_u32 v{52+k}, s15, v{52+k}')
        a(f'v_lshl_or_b32 v{48+k}, v{48+k}, 24, v{52+k}')
        a(f'buffer_store_dword v{48+k}, v41, s[36:39], 0 offen offset:{k*1024}')
    a.label('K1_SCANDONE')
    a('s_waitcnt lgkmcnt(0)')
    a('s_barrier')
    a('s_mov_b64 exec, s[16:17]')
    a('s_cbranch_execz K1_NOEDGE2')
    for k in range(4):
        a(f'ds_read_b32 v{28+k}, v{20+k} offset:{K1_HIST}')
    for k in range(4):
        a(f's_waitcnt lgkmcnt({3 if k == 0 else 3})')
        a(f'v_add_lshl_u32 v{28+k}, v{28+k}, v{24+k}, 3')
        a(f'ds_write_b64 v{28+k}, v[{32+2*k}:{33+2*k}] offset:{K1_STAGE}')
    a.label('K1_NOEDGE2')
    a('s_mov_b64 exec, -1')
    a('v_lshlrev_b32 v2, 4, v0')
    a('v_add_u32 v3, %d, v2' % (RECB // 2))
    a('v_cmp_gt_u32 vcc, %d, v0' % (CH // 4))
    a('s_waitcnt lgkmcnt(0)')
    a('s_barrier')
    a('s_and_saveexec_b64 s[18:19], vcc')
    a('s_cbranch_execz K1_END')
    a('ds_read_b128 v[4:7], v2 offset:%d' % K1_STAGE)
    a('ds_read_b128 v[8:11], v2 offset:%d' % (K1_STAGE + RECB // 2))
    a('s_waitcnt lgkmcnt(1)')
    a('buffer_store_dwordx4 v[4:7], v2, s[32:35], 0 offen')
    a('s_waitcnt lgkmcnt(0)')
    a('buffer_store_dwordx4 v[8:11], v3, s[32:35], 0 offen')
    if opts.get('dbgtime'):
        a('s_waitcnt vmcnt(0)')
        a('s_memrealtime s[54:55]')
        a('s_waitcnt lgkmcnt(0)')
        a('s_cmp_ge_u32 s2, 8')
        a('s_cbranch_scc1 K1_END')
        a('s_cmp_lg_u32 s3, 0')
        a('s_cbranch_scc1 K1_END')
        a('v_mov_b32 v20, s54')
        a('s_lshl_b32 s56, s2, 2')
        a('s_add_u32 s56, s56, 0x1200100')
        a('v_mov_b32 v22, s56')
        a('s_mov_b64 exec, 1')
        a('global_store_dword v22, v20, s[10:11]')
    a('s_endpgm')
    a.label('K1_FRAG')
    if opts.get('codepre', 1):
        a('s_cmp_lt_u32 s2, 32')
        a('s_cbranch_scc1 K1_FRAG2')
        a('s_cmp_ge_u32 s2, 64')
        a('s_cbranch_scc1 K1_END')
        a('s_getpc_b64 s[12:13]')
        a.label('K1_PCREF')
        a('s_add_u32 s12, s12, gs_main_kernel-K1_PCREF')
        a('s_addc_u32 s13, s13, 0')
        a('v_and_b32 v1, 63, v0')
        a('v_lshlrev_b32 v2, 4, v1')
        for i in range(opts.get('codekb', 20)):
            a(f'global_load_dwordx4 v[4:7], v2, s[12:13]')
            a('v_add_u32 v2, 1024, v2')
        a('s_endpgm')
        a.label('K1_FRAG2')
    a('s_cmp_ge_u32 s2, 32')
    a('s_cbranch_scc1 K1_END')
    a('s_load_dwordx4 s[12:15], s[0:1], 32')
    a('s_load_dwordx4 s[16:19], s[0:1], 56')
    a('s_lshr_b32 s20, s2, 3')
    a('s_waitcnt lgkmcnt(0)')
    a('s_mov_b32 s22, s14')
    a('s_mov_b32 s23, s15')
    a('s_cmp_eq_u32 s20, 1')
    a('s_cselect_b32 s22, s18, s22')
    a('s_cselect_b32 s23, s19, s23')
    a('s_cmp_eq_u32 s20, 2')
    a('s_cselect_b32 s22, s12, s22')
    a('s_cselect_b32 s23, s13, s23')
    a('s_cmp_eq_u32 s20, 3')
    a('s_cselect_b32 s22, s16, s22')
    a('s_cselect_b32 s23, s17, s23')
    srd(a, 24, 22, 64 * 64 * 2)
    srd_off(a, 28, 10, WS_FRAG, 32 * 1024)
    a('s_and_b32 s32, s2, 3')
    a('s_lshr_b32 s33, s2, 2')
    a('s_and_b32 s33, s33, 1')
    a('s_lshl_b32 s32, s32, 11')
    a('s_lshl_b32 s33, s33, 6')
    a('s_add_u32 s32, s32, s33')
    a('v_and_b32 v1, 63, v0')
    a('v_and_b32 v2, 31, v1')
    a('v_lshlrev_b32 v2, 1, v2')
    a('v_lshrrev_b32 v3, 5, v1')
    a('v_lshlrev_b32 v3, 10, v3')
    a('v_add3_u32 v2, v2, v3, s32')
    for i in range(8):
        a(f'buffer_load_ushort v{8+i}, v2, s[24:27], 0 offen offset:{i*128}')
    a('s_mov_b32 s34, 1.0')
    a('s_and_b32 s36, s20, 1')
    a('s_cmp_eq_u32 s36, 0')
    a('s_cselect_b32 s34, 0x%x, s34' % LOG2E)
    a('s_waitcnt vmcnt(0)')
    for i in range(8):
        a(f'v_lshlrev_b32 v{8+i}, 16, v{8+i}')
        a(f'v_mul_f32 v{8+i}, s34, v{8+i}')
    for i in range(4):
        a(f'v_cvt_pk_bf16_f32 v{16+i}, v{8+2*i}, v{9+2*i}')
    a('v_lshlrev_b32 v4, 4, v1')
    a('s_lshl_b32 s35, s2, 10')
    a('v_add_u32 v4, s35, v4')
    a('buffer_store_dwordx4 v[16:19], v4, s[28:31], 0 offen')
    a.label('K1_END')
    a('s_endpgm')

def gen_k2(a, opts):
    STAMP = opts.get('stamp', False)
    vLANE = 1; BC = 2
    WB = 4; WV = 36; AX = 68
    GA = 84; HA = 100; GB = 116; HB = 132
    PP = 148; TT_ = 156; ZZ = 164
    DEN = 172; NUM = 176
    AE = [180, 184]; BE = 188; R0 = 192
    QA = [196, 200]
    EN = 204; RA = 208; CO = 212
    pEN = 216; pEE = 217; pQI = 218; pQF = 219
    C4 = 220; SEL = [221, 222]; EE = 223; QF = 224
    F0 = 225; F1 = 226
    tA = 227; tB = 228; tC = 229; tD = 230; tE = 231; tF = 232; tG = 233; tH = 234; tI = 235
    TQ = 236; TR = 240
    sidA = 244; jA = 245; sidR = 246; iR4 = 247
    vST = 248; GF = 249; GD = 250
    nvgpr = 252
    REC = PP; RK = GB; SG = HB
    G_ = [GA, GB]; H_ = [HA, HB]
    nOFF0 = AE[0]+0 if False else QA[0]; nOFF1 = QA[0]+1; nEND0 = QA[0]+2; nEND1 = QA[0]+3; nROW0 = QA[1]
    S = Regs('s', 3, 102)
    sX = S.alloc('x', 2, 2); sWC = S.alloc('wc', 2, 2); sOUT = S.alloc('out', 2, 2); sWS = S.alloc('ws', 2, 2)
    rX = S.alloc('rX', 4, 4); rT = S.alloc('rT', 4, 4); rR = S.alloc('rR', 4, 4); rF = S.alloc('rF', 4, 4)
    sW = S.alloc('w'); sNS = S.alloc('ns'); sNN = S.alloc('nn')
    sP = S.alloc('pass'); sNP = S.alloc('npass')
    sL = S.alloc('L'); sCNT = S.alloc('cnt'); sREM = S.alloc('rem'); sMAXP = S.alloc('maxp')
    sC = S.alloc('C', 2, 2)
    sF = [S.alloc('F0', 2, 2), S.alloc('F1', 2, 2)]
    sANY = [S.alloc('any0'), S.alloc('any1')]
    s128 = S.alloc('c128'); sLO = S.alloc('lo16'); sHI = S.alloc('hi16')
    t0 = S.alloc('t0'); t1 = S.alloc('t1'); t2 = S.alloc('t2', 1, 2); t3 = S.alloc('t3')
    sSV = S.alloc('sv', 2, 2); sSV2 = S.alloc('sv2', 2, 2)
    sDB = S.alloc('dmabase'); sSWAP = S.alloc('swap')
    sDBG = S.alloc('dbg', 2, 2) if opts.get('dbgtime') else None
    sT0 = S.alloc('dbgt0', 2, 2) if opts.get('dbgtime') else None
    sT1 = S.alloc('dbgt1') if opts.get('dbgtime') else None
    sT2 = S.alloc('dbgt2') if opts.get('dbgtime') else None
    MK = S.alloc('MK', 32, 2)
    rO = rT
    nsgpr = S.hi
    def stamp(i):
        if not STAMP: return
        a(f's_memtime s[{t2}:{t3}]')
        a('s_waitcnt lgkmcnt(0)')
        a(f'v_writelane_b32 v{vST}, s{t2}, {i}')
    XB = 4096

    a.raw('.p2align 8')
    a.raw('.globl gs_main_kernel')
    a.raw('.type gs_main_kernel,@function')
    a.label('gs_main_kernel')
    a('s_cmp_ge_u32 s2, 256')
    a('s_cbranch_scc1 K2_END')
    a(f's_load_dwordx2 s[{sWS}:{sWS+1}], s[0:1], 88')
    a(f's_load_dwordx2 s[{sX}:{sX+1}], s[0:1], 0')
    a(f's_load_dwordx2 s[{sWC}:{sWC+1}], s[0:1], 48')
    a(f's_load_dwordx2 s[{sOUT}:{sOUT+1}], s[0:1], 72')
    a('s_and_b32 s3, s2, 7')
    a('s_lshr_b32 s2, s2, 3')
    a('s_lshl_b32 s3, s3, 5')
    a('s_add_u32 s2, s2, s3')
    if opts.get('dbgtime'):
        a(f's_load_dwordx2 s[{sDBG}:{sDBG+1}], s[0:1], 80')
        a(f's_memrealtime s[{sT0}:{sT0+1}]')
        a('s_waitcnt lgkmcnt(0)')
    if STAMP:
        a(f'v_mov_b32 v{vST}, 0')
    stamp(0)
    if STAMP:
        a(f's_memrealtime s[{t2}:{t3}]')
        a('s_waitcnt lgkmcnt(0)')
        a(f'v_writelane_b32 v{vST}, s{t2}, 11')
    a(f'v_lshrrev_b32 v{tA}, 6, v0')
    a(f'v_and_b32 v{vLANE}, 63, v0')
    a(f'v_readfirstlane_b32 s{sW}, v{tA}')
    a(f'v_lshrrev_b32 v{sidA}, 5, v{vLANE}')
    if opts.get('proprio'):
        a('s_nop 2')
        a(f's_cmp_ge_u32 s{sW}, 4')
        a('s_cbranch_scc0 K2_PP0')
        a('s_setprio 1')
        a.label('K2_PP0')
    a(f's_lshl_b32 s{t1}, s2, 10')
    a(f's_add_u32 s{t1}, s{t1}, {WS_TAB}')
    a(f's_lshl_b32 s{t0}, s{sW}, 1')
    a(f'v_add_u32 v{sidA}, s{t0}, v{sidA}')
    a(f'v_lshrrev_b32 v{tD}, 4, v{vLANE}')
    a(f'v_lshlrev_b32 v{tD}, 5, v{tD}')
    a(f's_lshl_b32 s{t0}, s{sW}, 7')
    a(f'v_add_u32 v{tD}, s{t0}, v{tD}')
    a(f'v_lshlrev_b32 v{tA}, 4, v{vLANE}')
    a('s_waitcnt lgkmcnt(0)')
    srd_off(a, rT, sWS, f's{t1}', 1024)
    for i in range(2):
        a(f'buffer_load_dwordx4 v[{SG+4*i}:{SG+4*i+3}], v{tD}, s[{rT}:{rT+3}], 0 offen offset:{16*i}')
    a(f's_mul_i32 s{t0}, s2, 3125')
    a(f's_add_u32 s{sNS}, s{t0}, 31')
    a(f's_lshr_b32 s{sNS}, s{sNS}, 5')
    a(f's_add_u32 s{t0}, s{t0}, {3125+31}')
    a(f's_lshr_b32 s{t0}, s{t0}, 5')
    a(f's_sub_u32 s{sNN}, s{t0}, s{sNS}')
    a(f's_sub_u32 s{rX}, s{sX}, {XB}')
    a(f's_subb_u32 s{rX+1}, s{sX+1}, 0')
    a(f's_and_b32 s{rX+1}, s{rX+1}, 0xffff')
    a(f's_mov_b32 s{rX+2}, {N*128 + XB}')
    a(f's_mov_b32 s{rX+3}, 0x20000')
    srd_off(a, rF, sWS, WS_FRAG, 32 * 1024)
    a(f's_lshl_b32 s{sDB}, s{sW}, 12')
    a(f's_add_u32 s{sDB}, s{sDB}, {L_DMA}')
    a(f'v_bfe_u32 v{tE}, v{vLANE}, 4, 1')
    a(f'v_and_b32 v{tF}, 7, v{vLANE}')
    a(f'v_xor_b32 v{tE}, v{tE}, v{tF}')
    a(f'v_lshlrev_b32 v{tE}, 4, v{tE}')
    for i in range(4):
        if i: a(f'v_xor_b32 v{tF}, {32*i}, v{tE}')
        a(f'v_add_u32 v{CO+i}, {XB - 1024*i}, v{tF if i else tE}')
    a(f'v_bfe_u32 v{jA}, v{vLANE}, 3, 2')
    a(f'v_lshrrev_b32 v{tF}, 5, v{vLANE}')
    a(f'v_lshlrev_b32 v{tE}, 3, v{jA}')
    a(f'v_lshl_add_u32 v{tE}, v{tF}, 2, v{tE}')
    a(f's_lshr_b32 s{t0}, s{sW}, 1')
    a(f's_lshl_b32 s{t1}, s{t0}, 5')
    a(f's_add_u32 s{t1}, s{t1}, s{sNS}')
    a(f's_and_b32 s{t2}, s{sW}, 1')
    a(f's_lshl_b32 s{t2}, s{t2}, 1')
    a(f's_add_u32 s{t1}, s{t1}, s{t2}')
    a(f'v_add_u32 v{tE}, s{t1}, v{tE}')
    a(f'v_lshlrev_b32 v{tE}, 7, v{tE}')
    a(f's_cmp_eq_u32 s{t2}, 0')
    a(f's_cbranch_scc0 K2_XI2')
    a(f'v_add_u32 v{tH}, v{tE}, v{CO}')
    a(f'v_add_u32 v{tI}, v{tE}, v{CO+1}')
    a('s_branch K2_XI')
    a.label('K2_XI2')
    a(f'v_add_u32 v{tH}, v{tE}, v{CO+2}')
    a(f'v_add_u32 v{tI}, v{tE}, v{CO+3}')
    a(f'v_add_u32 v{tH}, 2048, v{tH}')
    a(f'v_add_u32 v{tI}, 2048, v{tI}')
    a.label('K2_XI')
    a(f'v_add_u32 v{tI}, 128, v{tI}')
    a(f'v_and_b32 v{C4}, 31, v{vLANE}')
    def staging():
        a(f's_lshr_b32 s{t0}, s{sW}, 1')
        a(f's_lshl_b32 s{t0}, s{t0}, 12')
        a(f's_and_b32 s{t2}, s{sW}, 1')
        a(f's_lshl_b32 s{t2}, s{t2}, 11')
        a(f's_add_u32 s{t0}, s{t0}, s{t2}')
        a(f's_add_u32 s{t0}, s{t0}, {L_DMA}')
        a(f's_mov_b32 m0, s{t0}')
        a(f'v_lshlrev_b32 v{tA}, 4, v{vLANE}')
        a(f'buffer_load_dwordx4 v{tH}, s[{rX}:{rX+3}], 0 offen lds')
        a(f'buffer_load_dwordx4 v{tI}, s[{rX}:{rX+3}], 0 offen offset:1024 lds')
        a(f's_lshl_b32 s{t0}, s{sW}, 11')
        a(f's_add_u32 s{t1}, s{t0}, {L_DMA + 4*4096}')
        a(f's_mov_b32 m0, s{t1}')
        a(f's_add_u32 s{t2}, s{t0}, {16*1024}')
        a(f'buffer_load_dwordx4 v{tA}, s[{rF}:{rF+3}], s{t2} offen lds')
        a(f'buffer_load_dwordx4 v{tA}, s[{rF}:{rF+3}], s{t2} offen offset:1024 lds')
        a(f's_add_u32 s{t1}, s{t0}, {L_WST}')
        a(f's_mov_b32 m0, s{t1}')
        a('s_nop 0')
        a(f'buffer_load_dwordx4 v{tA}, s[{rF}:{rF+3}], s{t0} offen lds')
        a(f'buffer_load_dwordx4 v{tA}, s[{rF}:{rF+3}], s{t0} offen offset:1024 lds')
        srd(a, rR, sWC, 128)
        a(f'v_lshlrev_b32 v{tE}, 1, v{C4}')
        a(f'buffer_load_ushort v{BC}, v{tE}, s[{rR}:{rR+3}], 0 offen')
        a(f'buffer_load_ushort v{BC+1}, v{tE}, s[{rR}:{rR+3}], 0 offen offset:64')
    staging()
    def lds_init():
        a(f'v_lshlrev_b32 v{tE}, 4, v0')
        for i in range(4):
            a(f'v_mov_b32 v{TR+i}, 0xffff')
        a(f'ds_write_b128 v{tE}, v[{TR}:{TR+3}] offset:{L_ENT}')
        a(f's_cmp_ge_u32 s{sW}, {(ENT_QUADS - 512) // 64}')
        a(f's_cbranch_scc1 K2_I1{tag_i[0]}')
        a(f'ds_write_b128 v{tE}, v[{TR}:{TR+3}] offset:{L_ENT + 512*16}')
        a.label(f'K2_I1{tag_i[0]}')
        assert (ENT_QUADS - 512) % 64 == 0
        for i in range(4):
            a(f'v_mov_b32 v{TR+i}, {L_VIRT}')
        a(f'v_cmp_gt_u32 vcc, {ENT_QUADS // 4}, v0')
        a(f's_and_saveexec_b64 s[{sSV}:{sSV+1}], vcc')
        a(f'ds_write_b128 v{tE}, v[{TR}:{TR+3}] offset:{L_QI}')
        a(f's_mov_b64 exec, s[{sSV}:{sSV+1}]')
        a(f's_cmp_lg_u32 s{sW}, 0')
        a(f's_cbranch_scc1 K2_I2{tag_i[0]}')
        for i in range(4):
            a(f'v_mov_b32 v{TR+i}, 0')
        a(f'ds_write_b128 v{tE}, v[{TR}:{TR+3}] offset:{L_CNT}')
        a(f'v_add_u32 v{tE}, {L_VIRT + 512}, v{tE}')
        a('s_mov_b64 exec, 0xff')
        a(f'ds_write_b128 v{tE}, v[{TR}:{TR+3}]')
        a('s_mov_b64 exec, -1')
        a.label(f'K2_I2{tag_i[0]}')
        tag_i[0] += 1
    tag_i = [0]
    lds_init()
    a(f'v_and_b32 v{tE}, 3, v{vLANE}')
    a(f'v_lshlrev_b32 v{iR4}, 2, v{tE}')
    a(f'v_lshl_add_u32 v{RA}, v{tE}, 3, v{jA}')
    a(f'v_lshrrev_b32 v{tF}, 1, v{jA}')
    a(f'v_lshl_add_u32 v{tE}, v{tE}, 1, v{tF}')
    a(f'v_bfe_u32 v{tF}, v{vLANE}, 2, 1')
    a(f's_lshl_b32 s{t0}, s{sW}, 1')
    a(f'v_add_u32 v{sidR}, s{t0}, v{tF}')
    a(f'v_lshl_add_u32 v{RA}, v{tF}, 2, v{RA}')
    a(f'v_lshrrev_b32 v{tG}, 5, v{vLANE}')
    a(f'v_cmp_eq_u32 vcc, v{tF}, v{tG}')
    a(f'v_xor_b32 v{tE}, v{tE}, v{tG}')
    a(f'v_lshlrev_b32 v{tE}, 4, v{tE}')
    a(f'v_lshl_add_u32 v{RA}, v{RA}, 7, v{tE}')
    a(f'v_mov_b32 v{tF}, 0x3f80')
    a(f'v_cndmask_b32 v{tF}, 0, v{tF}, vcc')
    for q in range(4):
        a(f'v_cmp_eq_u32 vcc, {q}, v{jA}')
        a('s_nop 1')
        a(f'v_cndmask_b32 v{AE[0]+q}, 0, v{tF}, vcc')
        a(f'v_lshlrev_b32 v{AE[1]+q}, 16, v{AE[0]+q}')
    a(f'v_cmp_gt_u32 vcc, 32, v{vLANE}')
    a(f'v_mov_b32 v{tE}, 0x0a0c0100')
    a(f'v_mov_b32 v{tF}, 0x07060100')
    a(f'v_cndmask_b32 v{SEL[0]}, v{tE}, v{tF}, vcc')
    a(f'v_mov_b32 v{tE}, 0x03020a0c')
    a(f'v_mov_b32 v{tF}, 0x03020706')
    a(f'v_cndmask_b32 v{SEL[1]}, v{tE}, v{tF}, vcc')
    a(f's_mov_b32 s{sC}, 0x{C_SCALE:x}')
    a(f's_mov_b32 s{sC+1}, 0x{C_SCALE:x}')
    a(f's_mov_b32 s{s128}, 128')
    a(f's_mov_b32 s{sLO}, 0xffff')
    a(f's_mov_b32 s{sHI}, 0xffff0000')
    a(f'v_and_b32 v{tB}, 15, v{vLANE}')
    a(f'v_lshlrev_b32 v{tB}, 3, v{tB}')
    a(f'v_lshlrev_b32 v{C4}, 2, v{C4}')
    a('s_waitcnt vmcnt(0) lgkmcnt(0)')
    stamp(1)
    a('s_barrier')
    srd(a, rR, sWS, NBK * RECB)
    def rec_loads(vk8, nit):
        for it in range(8):
            a(f'v_mad_u32_u24 v{RK+it}, v{SG+it}, 8, v{vk8}')
        for it in range(nit):
            a(f's_mov_b64 exec, s[{MK+2*it}:{MK+2*it+1}]')
            off = ' offset:128' if it >= 8 else ''
            sk = a.newlabel('skl') if (it >= 8 and opts.get('skipb', 1)) else None
            if sk: a(f's_cbranch_execz {sk}')
            a(f'buffer_load_dwordx2 v[{REC+2*it}:{REC+2*it+1}], v{RK+it%8}, s[{rR}:{rR+3}], 0 offen{off}')
            if sk: a.label(sk)
        a('s_mov_b64 exec, -1')
    a(f'v_lshrrev_b32 v{tC}, 3, v{tB}')
    a(f'v_add_u32 v{tD}, 16, v{tC}')
    for it in range(8):
        a(f'v_cmp_gt_u32_sdwa s[{MK+2*it}:{MK+2*it+1}], v{SG+it}, v{tC} src0_sel:BYTE_3 src1_sel:DWORD')
    for it in range(8):
        a(f'v_cmp_gt_u32_sdwa s[{MK+16+2*it}:{MK+16+2*it+1}], v{SG+it}, v{tD} src0_sel:BYTE_3 src1_sel:DWORD')
    stamp(25)
    rec_loads(tB, 16)
    stamp(26)
    a(f'v_max3_u32 v{tD}, v{SG}, v{SG+1}, v{SG+2}')
    a(f'v_max3_u32 v{tD}, v{tD}, v{SG+3}, v{SG+4}')
    a(f'v_max3_u32 v{tD}, v{tD}, v{SG+5}, v{SG+6}')
    a(f'v_max_u32 v{tD}, v{tD}, v{SG+7}')
    a(f'v_lshrrev_b32 v{tD}, 24, v{tD}')
    a(f'v_cmp_lt_u32 s[{sSV2}:{sSV2+1}], 32, v{tD}')

    def gemm_issue():
        a(f's_lshr_b32 s{t0}, s{sW}, 1')
        a(f's_lshl_b32 s{t1}, s{t0}, 12')
        a(f's_add_u32 s{t1}, s{t1}, {L_DMA}')
        a(f'v_add_u32 v{tA}, s{t1}, v{RA}')
        a(f'v_xor_b32 v{tB}, 32, v{tA}')
        a(f'ds_read_b128 v[{AX}:{AX+3}], v{tA}')
        a(f'ds_read_b128 v[{AX+4}:{AX+7}], v{tB}')
        a(f'v_xor_b32 v{tB}, 64, v{tA}')
        a(f'v_xor_b32 v{tC}, 96, v{tA}')
        a(f'ds_read_b128 v[{AX+8}:{AX+11}], v{tB}')
        a(f'ds_read_b128 v[{AX+12}:{AX+15}], v{tC}')
        a(f's_and_b32 s{t2}, s{sW}, 1')
        a(f's_lshl_b32 s{t3}, s{t2}, 13')
        a(f's_add_u32 s{t3}, s{t3}, {L_DMA + 4*4096}')
        a(f'v_lshlrev_b32 v{GF}, 4, v{vLANE}')
        a(f'v_add_u32 v{GF}, s{t3}, v{GF}')
        for f in range(4):
            a(f'ds_read_b128 v[{SG+4*f}:{SG+4*f+3}], v{GF} offset:{f*1024}')
        for f in range(4):
            a(f'ds_read_b128 v[{RK+4*f}:{RK+4*f+3}], v{GF} offset:{(4+f)*1024}')
        a(f's_mul_i32 s{t1}, s{t0}, {32*ROWB}')
        a(f's_lshl_b32 s{t3}, s{t2}, 7')
        a(f's_add_u32 s{t1}, s{t1}, s{t3}')
        a(f's_add_u32 s{t1}, s{t1}, {L_ACC + 512}')
        a(f'v_lshrrev_b32 v{GD}, 5, v{vLANE}')
        a(f'v_mul_u32_u24 v{GD}, {4*ROWB}, v{GD}')
        a(f'v_add3_u32 v{GD}, v{GD}, v{C4}, s{t1}')
    def gemm_mid():
        a('s_waitcnt lgkmcnt(0)')
        for kp in range(4):
            c = '0' if kp == 0 else f'v[{GA}:{GA+15}]'
            a(f'v_mfma_f32_32x32x16_bf16 v[{GA}:{GA+15}], v[{AX+4*kp}:{AX+4*kp+3}], v[{SG+4*kp}:{SG+4*kp+3}], {c}')
            c = '0' if kp == 0 else f'v[{HA}:{HA+15}]'
            a(f'v_mfma_f32_32x32x16_bf16 v[{HA}:{HA+15}], v[{AX+4*kp}:{AX+4*kp+3}], v[{RK+4*kp}:{RK+4*kp+3}], {c}')
    def gemm_mid2():
        a('s_nop 7')
        a('s_nop 3')
    def w_frags():
        a(f'v_lshlrev_b32 v{GF}, 4, v{vLANE}')
        a(f'v_add_u32 v{GF}, {L_WST}, v{GF}')
        for f in range(16):
            dst = (WB + 4*f) if f < 8 else (WV + 4*(f-8))
            a(f'ds_read_b128 v[{dst}:{dst+3}], v{GF} offset:{f*1024}')
    def gemm_store(tag):
        for i in range(16):
            a(f'v_cvt_pk_bf16_f32 v{GA+i}, v{GA+i}, v{HA+i}')
        a(f's_lshr_b32 s{t0}, s{sW}, 1')
        a(f's_cmp_eq_u32 s{t0}, 3')
        a(f's_cbranch_scc1 K2_RT3{tag}')
        for vv in range(16):
            a(f'ds_write_b32 v{GD}, v{GA+vv} offset:{(8*(vv//4) + vv%4) * ROWB}')
        a(f's_branch K2_RTD{tag}')
        a.label(f'K2_RT3{tag}')
        a('s_mov_b32 exec_hi, 0')
        for vv in range(2):
            a(f'ds_write_b32 v{GD}, v{GA+vv} offset:{vv * ROWB}')
        a('s_mov_b64 exec, -1')
        a.label(f'K2_RTD{tag}')
    def consts():
        a(f'v_add_u32 v{RA}, s{sDB}, v{RA}')
        for kp in range(1, 4):
            a(f'v_xor_b32 v{RA+kp}, {32*kp}, v{RA}')
        a(f's_mov_b32 s{t3}, 0x{LOG2E:x}')
        for cc in range(2):
            a(f'v_lshlrev_b32 v{BC+cc}, 16, v{BC+cc}')
            a(f'v_mul_f32 v{BC+cc}, s{t3}, v{BC+cc}')
        a(f'v_cvt_pk_bf16_f32 v{BC}, 0, v{BC}')
        a(f'v_cvt_pk_bf16_f32 v{BC+1}, v{BC+1}, 0')
        a(f'v_cmp_gt_u32 vcc, 32, v{vLANE}')
        a(f'v_mov_b32 v{tG}, 0xb2000000')
        a(f'v_mov_b32 v{tH}, 0xb200')
        a(f'v_cndmask_b32 v{BC}, v{tG}, v{BC}, vcc')
        a(f'v_cndmask_b32 v{BC+1}, v{tH}, v{BC+1}, vcc')

    def hist():
        a(f'v_mov_b32 v{tE}, 1')
        for it in range(NIT):
            a(f's_mov_b64 exec, s[{MK+2*it}:{MK+2*it+1}]')
            sk = a.newlabel('skh') if (it >= 8 and opts.get('skipb', 1)) else None
            if sk: a(f's_cbranch_execz {sk}')
            a(f'ds_add_rtn_u32 v{RK+it}, v{REC+2*it+1}, v{tE} offset:{L_CNT}')
            if sk: a.label(sk)
        a('s_mov_b64 exec, -1')

    def scan_nodes(tag, mid=None):
        a(f'v_lshlrev_b32 v{tA}, 3, v{vLANE}')
        a(f'ds_read_b64 v[{TQ}:{TQ+1}], v{tA} offset:{L_CNT}')
        a(f'v_mul_u32_u24 v{nROW0}, {2*ROWB}, v{vLANE}')
        a(f'v_add_u32 v{nROW0}, {L_ACC}, v{nROW0}')
        if mid: mid()
        else: a('s_waitcnt lgkmcnt(0)')
        a(f'v_add_u32 v{tE}, 3, v{TQ}')
        a(f'v_add_u32 v{tF}, 3, v{TQ+1}')
        a(f'v_and_b32 v{tE}, -4, v{tE}')
        a(f'v_and_b32 v{tF}, -4, v{tF}')
        a(f'v_add_u32 v{tC}, v{tE}, v{tF}')
        a(f'v_max_u32 v{tB}, v{tE}, v{tF}')
        a(f'v_mov_b32 v{tD}, v{tC}')
        wave_scan(a, 'v_add_u32', tD)
        a(f'v_sub_u32 v{nOFF0}, v{tD}, v{tC}')
        a(f'v_readlane_b32 s{t1}, v{tD}, 63')
        a(f'v_add_u32 v{nOFF1}, v{nOFF0}, v{tE}')
        a(f'v_lshlrev_b32 v{TQ+2}, 2, v{nOFF0}')
        a(f'v_lshlrev_b32 v{TQ+3}, 2, v{nOFF1}')
        a(f'ds_write_b64 v{tA}, v[{TQ+2}:{TQ+3}] offset:{L_TAB}')
        a(f'v_mov_b32 v{nEND0}, v{nOFF1}')
        a(f'v_add_u32 v{nEND1}, v{nOFF1}, v{tF}')
        a(f's_add_u32 s{t1}, s{t1}, {4*NSTREAM-1}')
        a(f's_lshr_b32 s{sL}, s{t1}, 6')
        a(f's_add_u32 s{sCNT}, s{sL}, 3')
        a(f's_lshr_b32 s{sCNT}, s{sCNT}, 2')
        a(f's_sub_u32 s{sCNT}, s{sCNT}, 1')
        a(f's_sub_u32 s{sREM}, s{sL}, 1')
        a(f's_and_b32 s{sREM}, s{sREM}, 3')
        a(f's_add_u32 s{sREM}, s{sREM}, 1')
    def qi_fill(tag, split):
        B0 = TQ + 2; B1 = TQ + 3; V0 = TR + 1; V1 = TR + 2
        a(f'v_max_u32 v{TR}, v{tE}, v{tF}')
        if split:
            a(f'v_cvt_f32_u32 v{tA}, s{sL}')
            a(f'v_rcp_f32 v{tA}, v{tA}')
            a(f'v_cvt_f32_u32 v{tB}, v{nOFF0}')
            a(f'v_cvt_f32_u32 v{tC}, v{nOFF1}')
            a(f'v_mul_f32 v{tA}, 0.25, v{tA}')
            a(f'v_add_f32 v{tB}, 2.0, v{tB}')
            a(f'v_add_f32 v{tC}, 2.0, v{tC}')
            a(f'v_mul_f32 v{tB}, v{tA}, v{tB}')
            a(f'v_mul_f32 v{tC}, v{tA}, v{tC}')
            a(f'v_cvt_u32_f32 v{tB}, v{tB}')
            a(f'v_cvt_u32_f32 v{tC}, v{tC}')
            a(f'v_add_u32 v{tB}, 1, v{tB}')
            a(f'v_add_u32 v{tC}, 1, v{tC}')
            a(f's_lshl_b32 s{t1}, s{sL}, 2')
            a(f'v_mul_u32_u24 v{B0}, s{t1}, v{tB}')
            a(f'v_mul_u32_u24 v{B1}, s{t1}, v{tC}')
            a(f's_movk_i32 s{t1}, {VROWB}')
            a(f'v_mov_b32 v{tD}, {L_VIRT}')
            a(f'v_mad_u32_u24 v{V0}, v{tB}, s{t1}, v{tD}')
            a(f'v_mad_u32_u24 v{V1}, v{tC}, s{t1}, v{tD}')
            a(f'v_add_u32 v{tD}, {ROWB}, v{nROW0}')
            for nd, (B, Vv, END, nx) in enumerate(((B0, V0, nEND0, tB), (B1, V1, nEND1, tC))):
                lab = a.newlabel('nosplit')
                a(f'v_lshrrev_b32 v{tG}, 1, v{nx}')
                a(f'v_cmp_lt_u32 vcc, v{B}, v{END}')
                a(f'v_cmp_eq_u32 s[{sSV}:{sSV+1}], s{sW}, v{tG}')
                a(f's_and_b64 vcc, vcc, s[{sSV}:{sSV+1}]')
                a(f's_cbranch_scc0 {lab}')
                lp = a.newlabel('splitlp')
                a.label(lp)
                a(f's_ff1_i32_b64 s{t0}, vcc')
                a(f's_bitset0_b64 vcc, s{t0}')
                a(f'v_readlane_b32 s{t2}, v{nROW0 if nd == 0 else tD}, s{t0}')
                a(f'v_readlane_b32 s{t3}, v{Vv}, s{t0}')
                a(f'v_lshrrev_b32 v{tG}, 0, v{C4}')
                a('s_mov_b32 exec_hi, 0')
                a(f'v_add_u32 v{tH}, s{t2}, v{tG}')
                a(f'ds_read_b32 v{tI}, v{tH} offset:512')
                a(f'v_add_u32 v{tH}, s{t3}, v{tG}')
                a(f'v_mov_b32 v{tG}, s{t2}')
                a(f'v_mov_b32 v{tA}, s{t3}')
                a(f'ds_write_b32 v{tG}, v{tA} offset:768')
                a('s_waitcnt lgkmcnt(1)')
                a(f'ds_write_b32 v{tH}, v{tI} offset:512')
                a('s_mov_b64 exec, -1')
                a(f's_cmp_lg_u64 vcc, 0')
                a(f's_cbranch_scc1 {lp}')
                a.label(lab)
        a(f's_lshl_b32 s{t0}, s{sW}, 2')
        a(f'v_add_u32 v{tA}, s{t0}, v{nOFF0}')
        a(f'v_add_u32 v{tB}, s{t0}, v{nOFF1}')
        a(f'v_add_u32 v{tC}, {ROWB}, v{nROW0}')
        lp = f'K2_QF{tag}'
        a.label(lp)
        a(f's_add_u32 s{t1}, s{t0}, 4')
        a(f'v_cmp_eq_u32 s[{sSV}:{sSV+1}], s{t1}, v{tE}')
        a(f'v_cmp_eq_u32 s[{sSV2}:{sSV2+1}], s{t1}, v{tF}')
        if split:
            a(f'v_add_u32 v{tG}, 4, v{tA}')
            a(f'v_add_u32 v{tH}, 4, v{tB}')
            a(f'v_cmp_eq_u32 vcc, v{tG}, v{B0}')
            a(f's_or_b64 s[{sSV}:{sSV+1}], s[{sSV}:{sSV+1}], vcc')
            a(f'v_cmp_eq_u32 vcc, v{tH}, v{B1}')
            a(f's_or_b64 s[{sSV2}:{sSV2+1}], s[{sSV2}:{sSV2+1}], vcc')
            a(f'v_cmp_ge_u32 vcc, v{tA}, v{B0}')
            a('s_nop 1')
            a(f'v_cndmask_b32 v{tG}, v{nROW0}, v{V0}, vcc')
            a(f'v_cmp_ge_u32 vcc, v{tB}, v{B1}')
            a('s_nop 1')
            a(f'v_cndmask_b32 v{tH}, v{tC}, v{V1}, vcc')
        else:
            a(f'v_mov_b32 v{tG}, v{nROW0}')
            a(f'v_mov_b32 v{tH}, v{tC}')
        a(f'v_or_b32 v{tD}, 0x80000000, v{tG}')
        a(f'v_or_b32 v{tI}, 0x80000000, v{tH}')
        a(f'v_cmp_lt_u32 vcc, s{t0}, v{tE}')
        a(f'v_cndmask_b32 v{tG}, v{tG}, v{tD}, s[{sSV}:{sSV+1}]')
        a(f'v_cndmask_b32 v{tH}, v{tH}, v{tI}, s[{sSV2}:{sSV2+1}]')
        a(f'v_cmp_lt_u32 s[{sSV}:{sSV+1}], s{t0}, v{tF}')
        a('s_mov_b64 exec, vcc')
        a(f'ds_write_b32 v{tA}, v{tG} offset:{L_QI}')
        a(f's_mov_b64 exec, s[{sSV}:{sSV+1}]')
        a(f'ds_write_b32 v{tB}, v{tH} offset:{L_QI}')
        a('s_mov_b64 exec, -1')
        a(f's_add_u32 s{t0}, s{t0}, 32')
        a(f'v_add_u32 v{tA}, 32, v{tA}')
        a(f'v_add_u32 v{tB}, 32, v{tB}')
        a(f'v_cmp_lt_u32 vcc, s{t0}, v{TR}')
        a(f's_cbranch_vccnz {lp}')
    def scatter():
        a('s_waitcnt lgkmcnt(0)')
        for it in range(8):
            a(f's_mov_b64 exec, s[{MK+2*it}:{MK+2*it+1}]')
            a(f'ds_read_b32 v{AX+it}, v{REC+2*it+1} offset:{L_TAB}')
        for it in range(8):
            a(f's_mov_b64 exec, s[{MK+2*it}:{MK+2*it+1}]')
            a('s_waitcnt lgkmcnt(7)')
            a(f'v_lshl_add_u32 v{AX+it}, v{RK+it}, 2, v{AX+it}')
            a(f'ds_write_b32 v{AX+it}, v{REC+2*it} offset:{L_ENT}')
        for it in range(8, 16):
            sk = a.newlabel('sks')
            a(f's_mov_b64 exec, s[{MK+2*it}:{MK+2*it+1}]')
            if opts.get('skipb', 1): a(f's_cbranch_execz {sk}')
            a(f'ds_read_b32 v{AX+it}, v{REC+2*it+1} offset:{L_TAB}')
            a('s_waitcnt lgkmcnt(0)')
            a(f'v_lshl_add_u32 v{AX+it}, v{RK+it}, 2, v{AX+it}')
            a(f'ds_write_b32 v{AX+it}, v{REC+2*it} offset:{L_ENT}')
            a.label(sk)
        a('s_mov_b64 exec, -1')

    def setup_ptrs():
        a(f'v_mad_u32_u24 v{tA}, v{sidA}, s{sL}, v{jA}')
        a(f'v_lshlrev_b32 v{pEN}, 4, v{tA}')
        a(f'ds_read_b128 v[{EN}:{EN+3}], v{pEN} offset:{L_ENT}')
        a(f'v_lshlrev_b32 v{pQF}, 2, v{tA}')
        a(f'v_mul_u32_u24 v{pQI}, s{sL}, v{sidA}')
        a(f'v_lshlrev_b32 v{pQI}, 2, v{pQI}')
        a(f'v_add_u32 v{pQI}, {L_QI}, v{pQI}')
        a(f'v_mad_u32_u24 v{tA}, v{sidR}, s{sL}, v{jA}')
        a(f'v_lshl_add_u32 v{pEE}, v{tA}, 4, v{iR4}')
        a(f's_mov_b32 m0, s{sDB}')

    def dma_addr():
        return [f'v_mad_u32_u16 v{EN+i}, v{EN+i}, s{s128}, v{CO+i}' for i in range(4)]
    def dma_issue():
        if opts.get('nodma'): return []
        return [f'buffer_load_dwordx4 v{EN+i}, s[{rX}:{rX+3}], 0 offen offset:{1024*i} lds' if i else
                f'buffer_load_dwordx4 v{EN}, s[{rX}:{rX+3}], 0 offen lds' for i in range(4)]

    def main_loop(tag, atomic):
        flush_blocks = []
        def flush_body(cc, par, j):
            a(f's_bfe_i32 exec_lo, s{sF[par]}, 0x{(1<<16)|(8*j):x}')
            a(f's_bfe_i32 exec_hi, s{sF[par]+1}, 0x{(1<<16)|(8*j):x}')
            a(f'v_add_f32 v{F0}, v{DEN+2*cc}, v{DEN+2*cc+1}')
            a(f'v_add_f32 v{F1}, v{NUM+2*cc}, v{NUM+2*cc+1}')
            a(f'v_mov_b64 v[{DEN+2*cc}:{DEN+2*cc+1}], 0')
            a(f'v_mov_b64 v[{NUM+2*cc}:{NUM+2*cc+1}], 0')
            if atomic:
                a(f'ds_add_f32 v{QA[par]+j}, v{F0} offset:{cc*128}')
                a(f'ds_add_f32 v{QA[par]+j}, v{F1} offset:{256+cc*128}')
            else:
                a(f'ds_write2_b32 v{QA[par]+j}, v{F0}, v{F1} offset0:{cc*32} offset1:{64+cc*32}')
            a('s_mov_b64 exec, -1')
        def post(cc, par, nq_check):
            done = a.newlabel('pdone') if nq_check else None
            for j in range(4):
                if nq_check and j > 0:
                    a(f's_cmp_le_u32 s{sREM}, {j}')
                    a(f's_cbranch_scc1 {done}')
                p = PP + 2*j; t = TT_ + 2*j; z = ZZ + 2*j
                a(f'v_pk_fma_f32 v[{NUM+2*cc}:{NUM+2*cc+1}], v[{p}:{p+1}], v[{t}:{t+1}], v[{NUM+2*cc}:{NUM+2*cc+1}]')
                a(f'v_pk_fma_f32 v[{DEN+2*cc}:{DEN+2*cc+1}], v[{p}:{p+1}], v[{z}:{z+1}], v[{DEN+2*cc}:{DEN+2*cc+1}]')
                if opts.get('noflush'): continue
                fl = a.newlabel('fl'); back = a.newlabel('bk')
                a(f's_bitcmp1_b32 s{sANY[par]}, {8*j}')
                if opts.get('inlinefl', 0):
                    a(f's_cbranch_scc0 {back}')
                    flush_body(cc, par, j)
                    a.label(back)
                else:
                    a(f's_cbranch_scc1 {fl}')
                    a.label(back)
                    flush_blocks.append((fl, back, cc, par, j))
            if nq_check: a.label(done)
        def pre(cur):
            g0 = G_[cur]; h0 = H_[cur]
            for j in range(4):
                g = g0 + 4*j
                a(f'v_pk_fma_f32 v[{g}:{g+1}], v[{g}:{g+1}], s[{sC}:{sC+1}], s[{sC}:{sC+1}] clamp')
                a(f'v_pk_fma_f32 v[{g+2}:{g+3}], v[{g+2}:{g+3}], s[{sC}:{sC+1}], s[{sC}:{sC+1}] clamp')
            for j in range(4):
                g = g0 + 4*j; h = h0 + 4*j
                X = f'v[{g}:{g+1}]'; Y = f'v[{g+2}:{g+3}]'
                p = PP + 2*j; t = TT_ + 2*j; z = ZZ + 2*j
                a(f'v_pk_mul_f32 v[{t}:{t+1}], {Y}, v[{h}:{h+1}]')
                a(f'v_pk_mul_f32 v[{p}:{p+1}], {X}, {Y}')
                a(f'v_pk_add_f32 v[{z}:{z+1}], {X}, {Y}')
                a(f'v_pk_fma_f32 v[{t}:{t+1}], {X}, v[{h+2}:{h+3}], v[{t}:{t+1}]')
        def mfma_list(nxt, cc):
            Gs = f'v[{G_[nxt]}:{G_[nxt]+15}]'; Hs = f'v[{H_[nxt]}:{H_[nxt]+15}]'
            out = []
            for kp in range(4):
                wb = WB + 16*cc + 4*kp; wv = WV + 16*cc + 4*kp; ax = AX + 4*kp
                out.append(f'v_mfma_f32_32x32x16_bf16 {Hs}, v[{ax}:{ax+3}], v[{wv}:{wv+3}], {"0" if kp == 0 else Hs}')
                out.append(f'v_mfma_f32_32x32x16_bf16 {Gs}, v[{ax}:{ax+3}], v[{wb}:{wb+3}], {"0" if kp == 0 else Gs}')
            out.append(f'v_mfma_f32_32x32x16_bf16 {Gs}, v[{AE[cc]}:{AE[cc]+3}], v[{BE}:{BE+3}], {Gs}')
            return out
        def trans_list(cur):
            return [f'v_rcp_f32 v{PP+i}, v{PP+i}' for i in range(8)] + [f'v_exp_f32 v{G_[cur]+i}, v{G_[cur]+i}' for i in range(16)]
        def weave(mf, tr, gaps):
            dist = [3, 3, 3, 3, 3, 3, 2, 2, 2]
            if opts.get('nogaps'): gaps = {}
            def keep(ins):
                if opts.get('nods') and ins.startswith('ds_'): return False
                if opts.get('novalu') and ins.startswith('v_'): return False
                if opts.get('nowait') and ins.startswith('s_waitcnt'): return False
                if opts.get('novm') and ins.startswith('buffer_'): return False
                return True
            gaps = {k_: [i_ for i_ in v_ if keep(i_)] for k_, v_ in gaps.items()}
            if opts.get('nomf'): mf = None
            k = 0
            for m in range(9):
                for ins in gaps.get(('m', m), []): a(ins)
                if mf: a(mf[m])
                for _ in range(dist[m]):
                    a(tr[k])
                    for ins in gaps.get(k, []): a(ins)
                    k += 1
            assert k == len(tr)
        def stage0(par):
            g = {}
            da = dma_addr()
            g[0] = [f'ds_read_b32 v{QF}, v{pQF} offset:{L_QI + 16*(par+1)}']
            g[1] = [f'ds_read_b32 v{EE}, v{pEE} offset:{L_ENT + 64*(par+1)}']
            g[3] = [f'v_and_or_b32 v{BE}, v{R0}, s{sHI}, v{BC+1}']
            g[6] = [da[0]]; g[9] = [da[1]]; g[12] = [da[2]]; g[15] = [da[3]]
            weave(mfma_list(1, 1), trans_list(0), g)
            post(1, par ^ 1, False)
            qn = QA[par ^ 1]
            if not opts.get('nogaps') and not opts.get('nopds'):
                a(f'ds_read2_b32 v[{qn}:{qn+1}], v{pQI} offset0:{4*(par+1)} offset1:{4*(par+1)+1}')
                a(f'ds_read2_b32 v[{qn+2}:{qn+3}], v{pQI} offset0:{4*(par+1)+2} offset1:{4*(par+1)+3}')
                a('s_waitcnt vmcnt(0)')
                for kp in range(4):
                    a(f'ds_read_b128 v[{AX+4*kp}:{AX+4*kp+3}], v{RA+kp}')
            pre(0)
            a(f's_sub_u32 s{sCNT}, s{sCNT}, 1')
        def stage1(par):
            qn = QA[par ^ 1]
            g = {}
            di = dma_issue()
            g[('m', 0)] = ['s_waitcnt lgkmcnt(0)']
            g[0] = [f'v_mad_u32_u24 v{qn}, v{qn}, 1, v{C4}'] + di[0:1]
            g[1] = [f'v_mad_u32_u24 v{qn+1}, v{qn+1}, 1, v{C4}'] + di[1:2]
            g[2] = [f'ds_read_b32 v{R0}, v{qn} offset:512'] + di[2:3]
            g[3] = [f'v_mad_u32_u24 v{qn+2}, v{qn+2}, 1, v{C4}', f'ds_read_b32 v{BE+1}, v{qn+1} offset:512'] + di[3:4]
            g[4] = [f'v_mad_u32_u24 v{qn+3}, v{qn+3}, 1, v{C4}', f'ds_read_b32 v{BE+2}, v{qn+2} offset:512']
            g[5] = [f'ds_read_b32 v{BE+3}, v{qn+3} offset:512']
            g[6] = [f'ds_read_b128 v[{EN}:{EN+3}], v{pEN} offset:{L_ENT + 64*(par+3)}']
            g[7] = [f'v_perm_b32 v{AE[0]}, v{EE}, v{AE[0]}, v{SEL[0]}']
            g[9] = [f'v_perm_b32 v{AE[1]}, v{EE}, v{AE[1]}, v{SEL[1]}']
            g[11] = [f'v_cmp_gt_i32 s[{sF[par^1]}:{sF[par^1]+1}], 0, v{QF}']
            if par == 1:
                g[13] = [f'v_add_u32 v{pQI}, 32, v{pQI}']
                g[14] = [f'v_add_u32 v{pQF}, 32, v{pQF}']
                g[15] = [f'v_add_u32 v{pEE}, 128, v{pEE}']
                g[16] = [f'v_add_u32 v{pEN}, 128, v{pEN}']
            g[17] = [f's_or_b32 s{sANY[par^1]}, s{sF[par^1]}, s{sF[par^1]+1}'] if not opts.get('noany') else [f's_mov_b32 s{sANY[par^1]}, 0']
            g[19] = ['s_waitcnt lgkmcnt(0)', f'v_and_or_b32 v{BE}, v{R0}, s{sLO}, v{BC}']
            weave(mfma_list(0, 0), trans_list(1), g)
            post(0, par, False)
            pre(1)
        def last_stage1(par):
            weave(None, trans_list(1), {})
            post(0, par, True)
            pre(1)
            for i in range(8):
                a(f'v_rcp_f32 v{PP+i}, v{PP+i}')
            a('s_nop 0')
            post(1, par, True)
        L0 = f'K2_T0{tag}'; E0 = f'K2_E0{tag}'; E1 = f'K2_E1{tag}'; DONE = f'K2_MD{tag}'
        PR = opts.get('prio', 1)
        if PR:
            a(f's_add_u32 s{t0}, s{sCNT}, 1')
            a(f's_lshr_b32 s{t0}, s{t0}, {2 if PR == 1 else 1}')
            if PR == 3: a(f's_lshr_b32 s{t0}, s{t0}, 0')
            a(f's_lshl_b32 s{t0}, s{t0}, 1')
            a(f's_sub_u32 s{sSWAP}, s{sCNT}, s{t0}')
            a(f's_cmp_ge_u32 s{sW}, 4')
            a(f's_cbranch_scc0 K2_PR0{tag}')
            a('s_setprio 1')
            a.label(f'K2_PR0{tag}')
        a.label(L0)
        if PR:
            a(f's_cmp_eq_u32 s{sCNT}, s{sSWAP}')
            a(f's_cbranch_scc1 K2_SWP{tag}')
            a.label(f'K2_SWB{tag}')
        stage0(0)
        a(f's_cbranch_scc1 {E0}')
        stage1(0)
        stage0(1)
        a(f's_cbranch_scc1 {E1}')
        stage1(1)
        a(f's_branch {L0}')
        a.label(E0)
        last_stage1(0)
        a(f's_branch {DONE}')
        a.label(E1)
        last_stage1(1)
        a(f's_branch {DONE}')
        if PR:
            a.label(f'K2_SWP{tag}')
            a(f's_cmp_ge_u32 s{sW}, 4')
            a(f's_cbranch_scc1 K2_SW0{tag}')
            a('s_setprio 1')
            a(f's_branch K2_SWB{tag}')
            a.label(f'K2_SW0{tag}')
            a('s_setprio 0')
            a(f's_branch K2_SWB{tag}')
        for (fl, back, cc, par, j) in flush_blocks:
            a.label(fl)
            flush_body(cc, par, j)
            a(f's_branch {back}')
        a.label(DONE)
        if PR: a('s_setprio 0')

    def pipeline_fill():
        q0 = QA[0]
        a(f'ds_read2_b32 v[{q0}:{q0+1}], v{pQI} offset0:0 offset1:1')
        a(f'ds_read2_b32 v[{q0+2}:{q0+3}], v{pQI} offset0:2 offset1:3')
        a(f'ds_read_b32 v{QF}, v{pQF} offset:{L_QI}')
        a(f'ds_read_b32 v{EE}, v{pEE} offset:{L_ENT}')
        a(f'ds_read_b128 v[{EN}:{EN+3}], v{pEN} offset:{L_ENT + 64}')
        for i in range(2):
            a(f'v_mov_b64 v[{DEN+2*i}:{DEN+2*i+1}], 0')
            a(f'v_mov_b64 v[{NUM+2*i}:{NUM+2*i+1}], 0')
        for i in range(8):
            a(f'v_mov_b32 v{PP+i}, 1.0')
        for i in range(4):
            a(f'v_mov_b64 v[{TT_+2*i}:{TT_+2*i+1}], 0')
            a(f'v_mov_b64 v[{ZZ+2*i}:{ZZ+2*i+1}], 0')
        a(f's_mov_b32 s{sANY[1]}, 0')
        a('s_waitcnt lgkmcnt(0)')
        for q in range(4):
            a(f'v_mad_u32_u24 v{q0+q}, v{q0+q}, 1, v{C4}')
        a(f'ds_read_b32 v{R0}, v{q0} offset:512')
        for q in range(1, 4):
            a(f'ds_read_b32 v{BE+q}, v{q0+q} offset:512')
        a(f'v_perm_b32 v{AE[0]}, v{EE}, v{AE[0]}, v{SEL[0]}')
        a(f'v_perm_b32 v{AE[1]}, v{EE}, v{AE[1]}, v{SEL[1]}')
        a(f'v_cmp_gt_i32 s[{sF[0]}:{sF[0]+1}], 0, v{QF}')
        for ins in dma_addr(): a(ins)
        stamp(21)
        a('s_waitcnt vmcnt(0)')
        stamp(22)
        for kp in range(4):
            a(f'ds_read_b128 v[{AX+4*kp}:{AX+4*kp+3}], v{RA+kp}')
        a(f's_or_b32 s{sANY[0]}, s{sF[0]}, s{sF[0]+1}')
        a('s_waitcnt lgkmcnt(0)')
        a(f'v_and_or_b32 v{BE}, v{R0}, s{sLO}, v{BC}')
        for ins in dma_issue(): a(ins)
        a(f'ds_read_b128 v[{EN}:{EN+3}], v{pEN} offset:{L_ENT + 128}')
        Gs = f'v[{GA}:{GA+15}]'; Hs = f'v[{HA}:{HA+15}]'
        for kp in range(4):
            a(f'v_mfma_f32_32x32x16_bf16 {Hs}, v[{AX+4*kp}:{AX+4*kp+3}], v[{WV+4*kp}:{WV+4*kp+3}], {"0" if kp == 0 else Hs}')
            a(f'v_mfma_f32_32x32x16_bf16 {Gs}, v[{AX+4*kp}:{AX+4*kp+3}], v[{WB+4*kp}:{WB+4*kp+3}], {"0" if kp == 0 else Gs}')
        a(f'v_mfma_f32_32x32x16_bf16 {Gs}, v[{AE[0]}:{AE[0]+3}], v[{BE}:{BE+3}], {Gs}')
        a('s_waitcnt lgkmcnt(0)')
        a('s_nop 7')
        a('s_nop 3')
    def forced_flags():
        a(f's_sub_u32 s{t1}, s{sL}, 1')
        a(f's_lshl_b32 s{t1}, s{t1}, 2')
        a(f'v_add_u32 v{tB}, s{t1}, v{pQI}')
        a(f'v_mov_b32 v{tA}, 0x80000000')
        a('s_mov_b32 exec_lo, 1')
        a('s_mov_b32 exec_hi, 1')
        a(f'ds_or_b32 v{tB}, v{tA}')
        a('s_mov_b64 exec, -1')

    stamp(2)
    a(f's_mov_b64 exec, s[{sSV2}:{sSV2+1}]')
    a(f'v_mov_b32 v{tD}, {L_CNT + 127*4}')
    a(f'v_mov_b32 v{tE}, 1')
    a(f'ds_write_b32 v{tD}, v{tE}')
    a('s_mov_b64 exec, -1')
    gemm_issue()
    stamp(28)
    gemm_mid()
    gemm_mid2()
    stamp(29)
    a(f's_cmp_lg_u32 s{sW}, 0')
    a('s_cbranch_scc1 K2_NOCI')
    a(f'v_mul_u32_u24 v{tA}, {2*ROWB}, v{vLANE}')
    a(f'v_mov_b32 v{tB}, {L_ZERO}')
    a(f'v_add_u32 v{tA}, {L_ACC}, v{tA}')
    a(f's_mov_b32 exec_hi, {(1 << (MAXN // 2 - 32)) - 1}')
    a(f'ds_write_b32 v{tA}, v{tB} offset:768')
    a(f'ds_write_b32 v{tA}, v{tB} offset:{768 + ROWB}')
    a('s_mov_b64 exec, -1')
    a.label('K2_NOCI')
    gemm_store('F')
    stamp(3)
    a('s_waitcnt vmcnt(0)')
    stamp(23)
    hist()
    a('s_waitcnt lgkmcnt(0)')
    stamp(24)
    if opts.get('proprio') == 1: a('s_setprio 0')
    a('s_barrier')
    stamp(4)
    scan_nodes('F')
    a(f'v_readlane_b32 s{t0}, v{TQ+1}, 63')
    a(f's_lshl_b32 s{t1}, s{sL}, 2')
    a(f'v_cmp_lt_u32 vcc, s{t1}, v{tB}')
    a(f's_cmp_lg_u32 s{t0}, 0')
    a('s_cbranch_scc1 K2_SLOW')
    a(f's_cmp_gt_u32 s{sL}, {(ENT_QUADS - 8) // NSTREAM}')
    a('s_cbranch_scc1 K2_SLOW')
    a('s_cbranch_vccnz K2_SLOW')
    stamp(15)
    scatter()
    stamp(16)
    a('s_waitcnt lgkmcnt(0)')
    a('s_barrier')
    stamp(5)
    a(f's_cmp_eq_u32 s{sL}, 0')
    a('s_cbranch_scc1 K2_NOL')
    setup_ptrs()
    a('s_waitcnt lgkmcnt(0)')
    for ins in dma_addr(): a(ins)
    for ins in dma_issue(): a(ins)
    a.label('K2_NOL')
    stamp(17)
    a(f'v_cmp_gt_u32 vcc, {MAXN // 2}, v{vLANE}')
    a(f'v_lshl_or_b32 v{tB}, v{vLANE}, 1, 1')
    a(f'v_cmp_le_u32 s[{sSV}:{sSV+1}], s{sNN}, v{tB}')
    a(f'v_mov_b32 v{tC}, 1')
    a('s_nop 0')
    a(f'v_cndmask_b32 v{tB}, v{TQ+1}, v{tC}, s[{sSV}:{sSV+1}]')
    a(f'v_min_u32 v{tB}, v{TQ}, v{tB}')
    a(f'v_cmp_eq_u32 s[{sSV}:{sSV+1}], 0, v{tB}')
    a(f's_and_b64 s[{sSV}:{sSV+1}], s[{sSV}:{sSV+1}], vcc')
    a('s_cbranch_scc1 K2_ZROWS')
    a.label('K2_ZBACK')
    qi_fill('F', True)
    stamp(18)
    w_frags()
    consts()
    a('s_waitcnt lgkmcnt(0)')
    stamp(19)
    if opts.get('proprio') == 2: a('s_setprio 0')
    a('s_barrier')
    stamp(20)
    a(f's_cmp_eq_u32 s{sL}, 0')
    a('s_cbranch_scc1 K2_EPI')
    pipeline_fill()
    stamp(6)
    if opts.get('dbgtime'):
        a(f's_memrealtime s[{t2}:{t3}]')
        a('s_waitcnt lgkmcnt(0)')
        a(f's_mov_b32 s{sT1}, s{t2}')
    if STAMP:
        a(f's_memrealtime s[{t2}:{t3}]')
        a('s_waitcnt lgkmcnt(0)')
        a(f'v_writelane_b32 v{vST}, s{t2}, 13')
    if opts.get('half'):
        a(f's_cmp_ge_u32 s{sW}, 4')
        a('s_cbranch_scc1 K2_MDF')
    main_loop('F', False)
    stamp(7)
    if opts.get('dbgtime'):
        a(f's_memrealtime s[{t2}:{t3}]')
        a('s_waitcnt lgkmcnt(0)')
        a(f's_mov_b32 s{sT2}, s{t2}')
    if STAMP:
        a(f's_memrealtime s[{t2}:{t3}]')
        a('s_waitcnt lgkmcnt(0)')
        a(f'v_writelane_b32 v{vST}, s{t2}, 14')
    a.label('K2_EPI')
    e0 = 4
    XV = [e0, e0 + 4]; DN = e0 + 8; NM = e0 + 16; UU = e0 + 24; CD = e0 + 28; CN = e0 + 36; O = e0 + 44
    AD = e0 + 48; GO = [e0 + 49, e0 + 50]; T1 = e0 + 51; T2 = e0 + 52; CP = e0 + 53; ND = e0 + 54; OC = [e0 + 55, e0 + 56]; ADR = [e0 + 48, e0 + 57]
    def epi_addr(r):
        a(f'v_add_u32 v{T1}, {512*r}, v0') if r else a(f'v_mov_b32 v{T1}, v0')
        a(f'v_lshrrev_b32 v{ND}, 3, v{T1}')
        a(f'v_and_b32 v{T1}, 7, v{T1}')
        a(f'v_lshlrev_b32 v{OC[r]}, 4, v{T1}')
        a(f'v_mad_u32_u24 v{ADR[r]}, v{ND}, s{t0}, v{OC[r]}')
        a(f'v_add_u32 v{ADR[r]}, {L_ACC}, v{ADR[r]}')
        a(f'v_add_u32 v{GO[r]}, s{sNS}, v{ND}')
        a(f'v_lshlrev_b32 v{GO[r]}, 7, v{GO[r]}')
        a(f'v_lshl_add_u32 v{GO[r]}, v{T1}, 3, v{GO[r]}')
    def epi_body(r, carry):
        ad = ADR[r]; xv = XV[r]
        if carry:
            a(f'v_sub_u32 v{T2}, v{ad}, v{OC[r]}')
            a(f'ds_read_b32 v{CP}, v{T2} offset:768')
        a(f'ds_read_b128 v[{DN}:{DN+3}], v{ad}')
        a(f'ds_read_b128 v[{DN+4}:{DN+7}], v{ad} offset:128')
        a(f'ds_read_b128 v[{NM}:{NM+3}], v{ad} offset:256')
        a(f'ds_read_b128 v[{NM+4}:{NM+7}], v{ad} offset:384')
        a(f'ds_read_b128 v[{UU}:{UU+3}], v{ad} offset:640')
        if carry:
            a('s_waitcnt lgkmcnt(5)')
            a(f'v_add_u32 v{T2}, v{CP}, v{OC[r]}')
            a(f'ds_read_b128 v[{CD}:{CD+3}], v{T2}')
            a(f'ds_read_b128 v[{CD+4}:{CD+7}], v{T2} offset:128')
            a(f'ds_read_b128 v[{CN}:{CN+3}], v{T2} offset:256')
            a(f'ds_read_b128 v[{CN+4}:{CN+7}], v{T2} offset:384')
        a('s_waitcnt lgkmcnt(0)')
        if carry:
            for i in range(0, 8, 2):
                a(f'v_pk_add_f32 v[{DN+i}:{DN+i+1}], v[{DN+i}:{DN+i+1}], v[{CD+i}:{CD+i+1}]')
                a(f'v_pk_add_f32 v[{NM+i}:{NM+i+1}], v[{NM+i}:{NM+i+1}], v[{CN+i}:{CN+i+1}]')
        for i in range(0, 8, 2):
            a(f'v_pk_add_f32 v[{DN+i}:{DN+i+1}], v[{DN+i}:{DN+i+1}], s[{sC}:{sC+1}]')
        for i in range(8):
            a(f'v_rcp_f32 v{DN+i}, v{DN+i}')
        for i in range(4):
            a(f'v_lshlrev_b32 v{CD+i}, 16, v{UU+i}')
            a(f'v_and_b32 v{CD+4+i}, s{sHI}, v{UU+i}')
        for i in range(0, 8, 2):
            a(f'v_pk_fma_f32 v[{NM+i}:{NM+i+1}], v[{NM+i}:{NM+i+1}], v[{DN+i}:{DN+i+1}], v[{CD+i}:{CD+i+1}]')
        a(f's_waitcnt vmcnt({2 if r == 0 else 0})') if True else None
        for i in range(8):
            a(f'v_max_f32 v{NM+i}, 0, v{NM+i}')
        for i in range(4):
            a(f'v_lshlrev_b32 v{CD+2*i}, 16, v{xv+i}')
            a(f'v_and_b32 v{CD+2*i+1}, s{sHI}, v{xv+i}')
        for i in range(0, 8, 2):
            a(f'v_pk_add_f32 v[{NM+i}:{NM+i+1}], v[{NM+i}:{NM+i+1}], v[{CD+i}:{CD+i+1}]')
        for i in range(4):
            a(f'v_cvt_pk_bf16_f32 v{O+i}, v{NM+2*i}, v{NM+2*i+1}')
        a(f'buffer_store_dwordx2 v[{O}:{O+1}], v{GO[r]}, s[{rO}:{rO+3}], 0 offen')
        a(f'buffer_store_dwordx2 v[{O+2}:{O+3}], v{GO[r]}, s[{rO}:{rO+3}], 0 offen offset:64')
    def epilogue(tag, carry):
        srd(a, rO, sOUT, N * 128)
        srd(a, rF, sX, N * 128)
        a(f's_mov_b32 s{t0}, {ROWB}')
        a(f's_mov_b32 s{sC}, 0x{EPS_SCALED:x}')
        a(f's_mov_b32 s{sC+1}, 0x{EPS_SCALED:x}')
        a(f's_mov_b32 s{sHI}, 0xffff0000')
        a('s_waitcnt vmcnt(0)')
        epi_addr(0)
        a(f'buffer_load_dwordx2 v[{XV[0]}:{XV[0]+1}], v{GO[0]}, s[{rF}:{rF+3}], 0 offen')
        a(f'buffer_load_dwordx2 v[{XV[0]+2}:{XV[0]+3}], v{GO[0]}, s[{rF}:{rF+3}], 0 offen offset:64')
        epi_addr(1)
        a(f'v_cmp_gt_u32 s[{sSV}:{sSV+1}], s{sNN}, v{ND}')
        a(f'buffer_load_dwordx2 v[{XV[1]}:{XV[1]+1}], v{GO[1]}, s[{rF}:{rF+3}], 0 offen')
        a(f'buffer_load_dwordx2 v[{XV[1]+2}:{XV[1]+3}], v{GO[1]}, s[{rF}:{rF+3}], 0 offen offset:64')
        a('s_waitcnt lgkmcnt(0)')
        a('s_barrier')
        if STAMP and tag == 'F': stamp(8)
        epi_body(0, carry)
        a(f's_mov_b64 exec, s[{sSV}:{sSV+1}]')
        a(f's_cbranch_execz K2_FIN{tag}')
        epi_body(1, carry)
        a.label(f'K2_FIN{tag}')
    epilogue('F', True)
    if opts.get('dbgtime'):
        a('s_mov_b64 exec, -1')
        a('s_waitcnt vmcnt(0)')
        a(f's_memrealtime s[{t2}:{t3}]')
        a(f's_cmp_lg_u32 s{sW}, 7')
        a('s_cbranch_scc1 K2_DBGX')
        a('s_and_b32 s3, s2, 31')
        a('s_cmp_lg_u32 s3, 0')
        a('s_cbranch_scc1 K2_DBGX')
        a('s_lshr_b32 s3, s2, 5')
        a('s_cmp_ge_u32 s3, 2')
        a('s_cbranch_scc1 K2_DBGX')
        a(f's_lshl_b32 s{t0}, s3, 2')
        a(f's_add_u32 s{t0}, s{t0}, 0x1200000')
        a(f'v_mov_b32 v4, s{t0}')
        a(f'global_load_dword v5, v4, s[{sWS}:{sWS+1}]')
        a(f'global_load_dword v6, v4, s[{sWS}:{sWS+1}] offset:256')
        a('s_waitcnt vmcnt(0) lgkmcnt(0)')
        a(f'v_sub_u32 v8, v6, v5')
        a(f'v_sub_u32 v9, s{sT0}, v5')
        a(f'v_sub_u32 v10, s{sT1}, v5')
        a(f'v_sub_u32 v11, s{sT2}, v5')
        a(f'v_sub_u32 v12, s{t2}, v5')
        a('s_lshl_b32 s3, s3, 5')
        a('v_mov_b32 v4, s3')
        a('s_mov_b64 exec, 1')
        a(f'global_store_dwordx4 v4, v[8:11], s[{sDBG}:{sDBG+1}]')
        a(f'global_store_dword v4, v12, s[{sDBG}:{sDBG+1}] offset:16')
        a.label('K2_DBGX')
    if STAMP:
        a('s_mov_b64 exec, -1')
        a('s_waitcnt vmcnt(0)')
        stamp(9)
        a(f's_memrealtime s[{t2}:{t3}]')
        a('s_waitcnt lgkmcnt(0)')
        a(f'v_writelane_b32 v{vST}, s{t2}, 12')
        a(f's_mul_i32 s{t0}, s2, {NW}')
        a(f's_add_u32 s{t0}, s{t0}, s{sW}')
        a(f's_lshl_b32 s{t0}, s{t0}, 8')
        a(f's_add_u32 s{t0}, s{t0}, 0x1000000')
        srd_off(a, rT, sWS, f's{t0}', 256)
        a(f'v_writelane_b32 v{vST}, s{sL}, 10')
        a(f'v_lshlrev_b32 v4, 2, v{vLANE}')
        a(f'buffer_store_dword v{vST}, v4, s[{rT}:{rT+3}], 0 offen')
    a('s_endpgm')
    a.label('K2_ZROWS')
    a(f's_mov_b64 exec, s[{sSV}:{sSV+1}]')
    for i in range(4):
        a(f'v_mov_b32 v{TR+i}, 0')
    for nd in range(2):
        a(f'v_cmp_eq_u32 vcc, 0, v{TQ+nd}')
        a(f's_and_b64 exec, vcc, s[{sSV}:{sSV+1}]')
        for k in range(32):
            a(f'ds_write_b128 v{nROW0}, v[{TR}:{TR+3}] offset:{nd*ROWB + 16*k}')
        a(f's_mov_b64 exec, s[{sSV}:{sSV+1}]')
    a('s_mov_b64 exec, -1')
    a('s_branch K2_ZBACK')

    a.label('K2_SLOW')
    w_frags()
    consts()
    a('s_waitcnt vmcnt(0) lgkmcnt(0)')
    a('s_barrier')
    a(f's_lshl_b32 s{t1}, s2, 10')
    a(f's_add_u32 s{t1}, s{t1}, {WS_TAB2}')
    srd_off(a, rT, sWS, f's{t1}', 1024)
    a(f'v_lshlrev_b32 v{tA}, 4, v{vLANE}')
    a(f'buffer_load_dwordx4 v[{TQ}:{TQ+3}], v{tA}, s[{rT}:{rT+3}], 0 offen')
    a('s_waitcnt vmcnt(0)')
    a(f'v_max_u32 v{tE}, v{TQ}, v{TQ+1}')
    a(f'v_max3_u32 v{tE}, v{tE}, v{TQ+2}, v{TQ+3}')
    wave_scan(a, 'v_max_u32', tE)
    a('s_nop 0')
    a(f'v_readlane_b32 s{t1}, v{tE}, 63')
    a(f's_add_u32 s{t1}, s{t1}, {WSLOW-1}')
    a(f's_mul_i32 s{t1}, s{t1}, 5042')
    a(f's_lshr_b32 s{sNP}, s{t1}, 16')
    a(f's_mov_b32 s{sP}, 0')
    for i in range(4):
        a(f'v_mov_b32 v{TR+i}, 0')
    a(f'v_lshrrev_b32 v{tA}, 5, v0')
    a(f'v_mul_u32_u24 v{tA}, {ROWB}, v{tA}')
    a(f'v_and_b32 v{tB}, 31, v{vLANE}')
    a(f'v_lshl_add_u32 v{tA}, v{tB}, 4, v{tA}')
    a(f'v_add_u32 v{tA}, {L_ACC}, v{tA}')
    for i in range(6):
        a(f'ds_write_b128 v{tA}, v[{TR}:{TR+3}]')
        a(f'v_add_u32 v{tA}, {16*ROWB}, v{tA}')
    a(f'v_cmp_gt_u32 vcc, 64, v0')
    a(f's_and_saveexec_b64 s[{sSV}:{sSV+1}], vcc')
    a(f'ds_write_b128 v{tA}, v[{TR}:{TR+3}]')
    a(f's_mov_b64 exec, s[{sSV}:{sSV+1}]')
    a.label('K2_SPASS')
    a(f's_lshl_b32 s{t1}, s2, 10')
    a(f's_add_u32 s{t1}, s{t1}, {WS_TAB}')
    srd_off(a, rT, sWS, f's{t1}', WS_TAB2 - WS_TAB + 1024)
    a(f'v_lshrrev_b32 v{tD}, 4, v{vLANE}')
    a(f'v_lshlrev_b32 v{tD}, 5, v{tD}')
    a(f's_lshl_b32 s{t0}, s{sW}, 7')
    a(f'v_add_u32 v{tD}, s{t0}, v{tD}')
    a(f's_mov_b32 s{t0}, {WS_TAB2 - WS_TAB}')
    for i in range(2):
        a(f'buffer_load_dwordx4 v[{SG+4*i}:{SG+4*i+3}], v{tD}, s[{rT}:{rT+3}], 0 offen offset:{16*i}')
    for i in range(2):
        a(f'buffer_load_dwordx4 v[{AX+4*i}:{AX+4*i+3}], v{tD}, s[{rT}:{rT+3}], s{t0} offen offset:{16*i}')
    a(f'v_and_b32 v{tC}, 15, v{vLANE}')
    a(f's_mul_i32 s{t0}, s{sP}, {WSLOW}')
    a(f'v_cmp_gt_u32 vcc, {WSLOW}, v{tC}')
    a(f'v_add_u32 v{tC}, s{t0}, v{tC}')
    a(f'v_lshlrev_b32 v{tB}, 3, v{tC}')
    a(f'v_mov_b32 v{tD}, 0x10000')
    a(f'v_cndmask_b32 v{tC}, v{tD}, v{tC}, vcc')
    a('s_waitcnt vmcnt(0)')
    for it in range(8):
        a(f'v_cmp_gt_u32 s[{MK+2*it}:{MK+2*it+1}], v{AX+it}, v{tC}')
        a(f's_mov_b64 s[{MK+16+2*it}:{MK+16+2*it+1}], 0')
    rec_loads(tB, 8)
    lds_init()
    a('s_waitcnt vmcnt(0) lgkmcnt(0)')
    a('s_barrier')
    hist()
    a('s_waitcnt lgkmcnt(0)')
    a('s_barrier')
    scan_nodes('S')
    qi_fill('S', False)
    scatter()
    a('s_waitcnt lgkmcnt(0)')
    a('s_barrier')
    a(f's_cmp_eq_u32 s{sL}, 0')
    a('s_cbranch_scc1 K2_SNEXT')
    setup_ptrs()
    a('s_waitcnt lgkmcnt(0)')
    for ins in dma_addr(): a(ins)
    for ins in dma_issue(): a(ins)
    forced_flags()
    pipeline_fill()
    main_loop('S', True)
    a.label('K2_SNEXT')
    a('s_waitcnt vmcnt(0) lgkmcnt(0)')
    a('s_barrier')
    a(f's_add_u32 s{sP}, s{sP}, 1')
    a(f's_cmp_lt_u32 s{sP}, s{sNP}')
    a('s_cbranch_scc1 K2_SPASS')
    epilogue('S', False)
    a.label('K2_END')
    a('s_endpgm')
    return nvgpr, nsgpr

def kd(name, nv, ns):
    acc = (nv + 3) // 4 * 4
    return f'''.amdhsa_kernel {name}
  .amdhsa_next_free_vgpr {nv}
  .amdhsa_next_free_sgpr {ns}
  .amdhsa_accum_offset {acc}
  .amdhsa_group_segment_fixed_size 0
  .amdhsa_kernarg_size 96
  .amdhsa_user_sgpr_count 2
  .amdhsa_user_sgpr_kernarg_segment_ptr 1
  .amdhsa_system_sgpr_workgroup_id_x 1
  .amdhsa_float_denorm_mode_32 3
.end_amdhsa_kernel
'''

def build(opts=None):
    opts = opts or {}
    a = Asm()
    gen_k1(a, opts)
    nv, ns = gen_k2(a, opts)
    out = HEADER
    out += f'; @launch kernel=gs_part_kernel grid=(256,1,1) block=({K1_THREADS},1,1) lds={LDS_K1}\n'
    out += f'; @launch kernel=gs_main_kernel grid=(256,1,1) block=({NW*64},1,1) lds={LDS_MAIN}\n'
    out += '.amdgcn_target "amdgcn-amd-amdhsa--gfx950"\n.text\n'
    out += a.text()
    out += '.section .rodata,"a"\n.p2align 6\n'
    out += kd('gs_part_kernel', 60, 60)
    out += '.p2align 6\n'
    out += kd('gs_main_kernel', nv, ns)
    return out

if __name__ == '__main__':
    path = sys.argv[1] if len(sys.argv) > 1 else 'gather_scatter__edge_featured_mpnn_gatedgcn__graph.s'
    opts = {}
    for o in sys.argv[2:]:
        k, _, val = o.partition('=')
        opts[k] = int(val) if val else True
    open(path, 'w').write(build(opts))
    print('written', path, 'LDS', LDS_MAIN)
```

```python
import sys, os, struct
sys.path.insert(0, os.path.dirname(__file__))
from asmlib import *

N = 25000; E = 800000
NBK = 256
CH = 3136
RECB = CH * 8
WS_TAB = 0x700000
WS_TAB2 = 0x740000
WS_FRAG = 0x780000
MAGIC_B = 43980466
LOG2E = 0xBFB8AA3B
SBITS = 50
C_SCALE = (127 - SBITS) << 23
EPS_SCALED = 0x4E8637BD
assert abs(struct.unpack('<f', struct.pack('<I', EPS_SCALED))[0] / (1e-6 * 2.0**50) - 1) < 1e-6

NW = 8
NSTREAM = 16
NIT = 16
CAP = 3456
WSLOW = 13
ROWB = 784
MAXN = 98
ENT_QUADS = 960
VROWB = 640
L_CNT = 0
L_ZERO = 512
L_TAB = 1024
L_QI = 1536
L_ENT = L_QI + ENT_QUADS * 4
L_ACC = L_ENT + ENT_QUADS * 16
L_VIRT = L_ACC + MAXN * ROWB
L_WST = L_VIRT + NSTREAM * VROWB
L_WST = (L_WST + 255) // 256 * 256
L_DMA = L_WST + 16384
LDS_MAIN = L_DMA + NW * 4096
assert LDS_MAIN <= 163840, LDS_MAIN
assert L_ACC % 16 == 0 and L_VIRT % 16 == 0

K1_THREADS = 896
K1_HIST = 0
K1_STAGE = 1024
LDS_K1 = K1_STAGE + RECB

HEADER = open(os.path.join(os.path.dirname(__file__), 'header.txt')).read()

def srd(a, sreg, ptr, size):
    a(f's_mov_b32 s{sreg}, s{ptr}')
    a(f's_and_b32 s{sreg+1}, s{ptr+1}, 0xffff')
    a(f's_mov_b32 s{sreg+2}, {size}')
    a(f's_mov_b32 s{sreg+3}, 0x20000')

def srd_off(a, sreg, ptr, off, size):
    a(f's_add_u32 s{sreg}, s{ptr}, {off}')
    a(f's_addc_u32 s{sreg+1}, s{ptr+1}, 0')
    a(f's_and_b32 s{sreg+1}, s{sreg+1}, 0xffff')
    a(f's_mov_b32 s{sreg+2}, {size}')
    a(f's_mov_b32 s{sreg+3}, 0x20000')

def wave_scan(a, op, r):
    for sh in (1, 2, 4, 8):
        a('s_nop 1')
        a(f'{op}_dpp v{r}, v{r}, v{r} row_shr:{sh} row_mask:0xf bank_mask:0xf')
    a('s_nop 1')
    a(f'{op}_dpp v{r}, v{r}, v{r} row_bcast:15 row_mask:0xa bank_mask:0xf')
    a('s_nop 1')
    a(f'{op}_dpp v{r}, v{r}, v{r} row_bcast:31 row_mask:0xc bank_mask:0xf')

def wave_scan2(a, op1, r1, op2, r2):
    steps = [f'row_shr:{sh} row_mask:0xf bank_mask:0xf' for sh in (1, 2, 4, 8)] + \
            ['row_bcast:15 row_mask:0xa bank_mask:0xf', 'row_bcast:31 row_mask:0xc bank_mask:0xf']
    a('s_nop 1')
    for st in steps:
        a(f'{op1}_dpp v{r1}, v{r1}, v{r1} {st}')
        a(f'{op2}_dpp v{r2}, v{r2}, v{r2} {st}')
        a('s_nop 0')

def gen_k1(a, opts):
    a.raw('.p2align 8')
    a.raw('.globl gs_part_kernel')
    a.raw('.type gs_part_kernel,@function')
    a.label('gs_part_kernel')
    a('s_cmp_ge_u32 s2, 256')
    a('s_cbranch_scc1 K1_END')
    a('s_load_dwordx4 s[4:7], s[0:1], 8')
    a('s_load_dwordx2 s[8:9], s[0:1], 24')
    a('s_load_dwordx2 s[10:11], s[0:1], 88')
    a('s_load_dwordx2 s[44:45], s[0:1], 0')
    if opts.get('dbgtime'):
        a('s_memrealtime s[54:55]')
        a('s_waitcnt lgkmcnt(0)')
        a('s_cmp_ge_u32 s2, 8')
        a('s_cbranch_scc1 K1_NODBG')
        a('v_mov_b32 v20, s54')
        a('s_lshl_b32 s56, s2, 2')
        a('s_add_u32 s56, s56, 0x1200000')
        a('v_mov_b32 v22, s56')
        a('v_cmp_eq_u32 vcc, 0, v0')
        a('s_and_saveexec_b64 s[58:59], vcc')
        a('global_store_dword v22, v20, s[10:11]')
        a('s_mov_b64 exec, s[58:59]')
        a.label('K1_NODBG')
    a('v_lshrrev_b32 v1, 6, v0')
    a('s_mul_i32 s12, s2, %d' % (CH * 4))
    a('v_readfirstlane_b32 s3, v1')
    a('s_lshr_b32 s13, s12, 1')
    a('v_lshlrev_b32 v2, 4, v0')
    a('v_add_u32 v2, s12, v2')
    a('s_cmp_eq_u32 s3, 13')
    a('s_cbranch_scc1 K1_FRAG')
    a('v_lshlrev_b32 v3, 3, v0')
    a('v_add_u32 v3, s13, v3')
    a('s_waitcnt lgkmcnt(0)')
    srd(a, 20, 8, E * 4)
    a('buffer_load_dwordx4 v[4:7], v2, s[20:23], 0 offen')
    srd(a, 24, 6, E * 4)
    a('buffer_load_dwordx4 v[8:11], v2, s[24:27], 0 offen')
    srd(a, 28, 4, E * 2)
    a('buffer_load_dwordx2 v[12:13], v3, s[28:31], 0 offen')
    if opts.get('xpre', 1):
        a('s_and_b32 s46, s2, 7')
        a('s_lshr_b32 s47, s2, 3')
        a('s_lshl_b32 s46, s46, 5')
        a('s_add_u32 s46, s46, s47')
        a('s_mul_i32 s46, s46, 3125')
        a('s_add_u32 s46, s46, 31')
        a('s_lshr_b32 s46, s46, 5')
        a('s_lshl_b32 s46, s46, 7')
        a('s_and_b32 s45, s45, 0xffff')
        a('s_mov_b32 s48, s44')
        a('s_mov_b32 s49, s45')
        a('s_mov_b32 s50, %d' % (N * 128))
        a('s_mov_b32 s51, 0x20000')
        a('v_lshlrev_b32 v40, 4, v0')
        a('buffer_load_dwordx4 v[56:59], v40, s[48:51], s46 offen')
    a('v_lshlrev_b32 v14, 2, v0')
    a('v_mov_b32 v15, 0')
    a('v_cmp_gt_u32 vcc, 256, v0')
    a('s_and_saveexec_b64 s[18:19], vcc')
    a('ds_write_b32 v14, v15 offset:%d' % K1_HIST)
    a('s_mov_b64 exec, s[18:19]')
    a('v_cmp_gt_u32 vcc, %d, v0' % (CH // 4))
    a('s_mov_b32 s14, %d' % (E * 4))
    a('v_cmp_gt_u32 s[16:17], s14, v2')
    a('s_and_b64 s[16:17], s[16:17], vcc')
    a('s_mul_i32 s15, s2, %d' % RECB)
    srd_off(a, 32, 10, 's15', RECB)
    srd_off(a, 36, 10, WS_TAB, 0x80000)
    a('s_mov_b32 s40, %d' % MAGIC_B)
    a('s_movk_i32 s41, 3125')
    a('v_mov_b32 v15, 1')
    a('s_waitcnt lgkmcnt(0)')
    a('s_barrier')
    a('s_mov_b64 exec, s[16:17]')
    a('s_cbranch_execz K1_NOEDGE1')
    a('s_waitcnt vmcnt(%d)' % (3 if opts.get('xpre', 1) else 2))
    for k in range(4):
        a(f'v_mul_hi_u32 v{16+k}, v{4+k}, s40')
    for k in range(4):
        a(f'v_lshlrev_b32 v{20+k}, 2, v{16+k}')
        a(f'ds_add_rtn_u32 v{24+k}, v{20+k}, v15 offset:{K1_HIST}')
    for k in range(4):
        a(f'v_mul_u32_u24 v{28+k}, s41, v{16+k}')
        a(f'v_add_u32 v{28+k}, 31, v{28+k}')
        a(f'v_lshrrev_b32 v{28+k}, 5, v{28+k}')
        a(f'v_sub_u32 v{28+k}, v{4+k}, v{28+k}')
        a(f'v_lshlrev_b32 v{33+2*k}, 2, v{28+k}')
    a('s_waitcnt vmcnt(%d)' % (1 if opts.get('xpre', 1) else 0))
    a('s_mov_b32 s42, 0xffff0000')
    a('v_lshl_or_b32 v32, v12, 16, v8')
    a('v_and_or_b32 v34, v12, s42, v9')
    a('v_lshl_or_b32 v36, v13, 16, v10')
    a('v_and_or_b32 v38, v13, s42, v11')
    a.label('K1_NOEDGE1')
    a('s_mov_b64 exec, -1')
    a('s_waitcnt lgkmcnt(0)')
    a('s_barrier')
    a('s_cmp_lg_u32 s3, 0')
    a('s_cbranch_scc1 K1_SCANDONE')
    a('v_lshlrev_b32 v40, 4, v0')
    a('ds_read_b128 v[44:47], v40 offset:%d' % K1_HIST)
    a('v_lshlrev_b32 v41, 12, v0')
    a('s_lshl_b32 s15, s2, 2')
    a('v_add_u32 v41, s15, v41')
    a('s_waitcnt lgkmcnt(0)')
    a('v_add_u32 v48, v44, v45')
    a('v_add_u32 v49, v48, v46')
    a('v_add_u32 v50, v49, v47')
    a('v_mov_b32 v51, v50')
    wave_scan(a, 'v_add_u32', 51)
    a('v_sub_u32 v52, v51, v50')
    a('v_add_u32 v53, v52, v44')
    a('v_add_u32 v54, v52, v48')
    a('v_add_u32 v55, v52, v49')
    a('ds_write_b128 v40, v[52:55] offset:%d' % K1_HIST)
    a('s_mul_i32 s15, s2, %d' % CH)
    a('s_mov_b32 s43, %d' % (WS_TAB2 - WS_TAB))
    for k in range(4):
        a(f'buffer_store_dword v{44+k}, v41, s[36:39], s43 offen offset:{k*1024}')
        a(f'v_min_u32 v{48+k}, 0xff, v{44+k}')
        a(f'v_add_u32 v{52+k}, s15, v{52+k}')
        a(f'v_lshl_or_b32 v{48+k}, v{48+k}, 24, v{52+k}')
        a(f'buffer_store_dword v{48+k}, v41, s[36:39], 0 offen offset:{k*1024}')
    a.label('K1_SCANDONE')
    a('s_waitcnt lgkmcnt(0)')
    a('s_barrier')
    a('s_mov_b64 exec, s[16:17]')
    a('s_cbranch_execz K1_NOEDGE2')
    for k in range(4):
        a(f'ds_read_b32 v{28+k}, v{20+k} offset:{K1_HIST}')
    for k in range(4):
        a(f's_waitcnt lgkmcnt({3 if k == 0 else 3})')
        a(f'v_add_lshl_u32 v{28+k}, v{28+k}, v{24+k}, 3')
        a(f'ds_write_b64 v{28+k}, v[{32+2*k}:{33+2*k}] offset:{K1_STAGE}')
    a.label('K1_NOEDGE2')
    a('s_mov_b64 exec, -1')
    a('v_lshlrev_b32 v2, 4, v0')
    a('v_add_u32 v3, %d, v2' % (RECB // 2))
    a('v_cmp_gt_u32 vcc, %d, v0' % (CH // 4))
    a('s_waitcnt lgkmcnt(0)')
    a('s_barrier')
    a('s_and_saveexec_b64 s[18:19], vcc')
    a('s_cbranch_execz K1_END')
    a('ds_read_b128 v[4:7], v2 offset:%d' % K1_STAGE)
    a('ds_read_b128 v[8:11], v2 offset:%d' % (K1_STAGE + RECB // 2))
    a('s_waitcnt lgkmcnt(1)')
    sfx = {0: '', 1: ' sc1', 2: ' nt', 3: ' sc0 sc1', 4: ' sc1 nt'}[opts.get('k1st', 0)]
    a('buffer_store_dwordx4 v[4:7], v2, s[32:35], 0 offen' + sfx)
    a('s_waitcnt lgkmcnt(0)')
    a('buffer_store_dwordx4 v[8:11], v3, s[32:35], 0 offen' + sfx)
    if opts.get('dbgtime'):
        a('s_waitcnt vmcnt(0)')
        a('s_memrealtime s[54:55]')
        a('s_waitcnt lgkmcnt(0)')
        a('s_cmp_ge_u32 s2, 8')
        a('s_cbranch_scc1 K1_END')
        a('s_cmp_lg_u32 s3, 0')
        a('s_cbranch_scc1 K1_END')
        a('v_mov_b32 v20, s54')
        a('s_lshl_b32 s56, s2, 2')
        a('s_add_u32 s56, s56, 0x1200100')
        a('v_mov_b32 v22, s56')
        a('s_mov_b64 exec, 1')
        a('global_store_dword v22, v20, s[10:11]')
    a('s_endpgm')
    a.label('K1_FRAG')
    if opts.get('codepre', 0):
        a('s_cmp_lt_u32 s2, 32')
        a('s_cbranch_scc1 K1_FRAG2')
        a('s_cmp_ge_u32 s2, 64')
        a('s_cbranch_scc1 K1_END')
        a('s_getpc_b64 s[12:13]')
        a.label('K1_PCREF')
        a('s_add_u32 s12, s12, gs_main_kernel-K1_PCREF')
        a('s_addc_u32 s13, s13, 0')
        a('v_and_b32 v1, 63, v0')
        a('v_lshlrev_b32 v2, 4, v1')
        for i in range(opts.get('codekb', 20)):
            a(f'global_load_dwordx4 v[4:7], v2, s[12:13]')
            a('v_add_u32 v2, 1024, v2')
        a('s_endpgm')
        a.label('K1_FRAG2')
    a('s_cmp_ge_u32 s2, 32')
    a('s_cbranch_scc1 K1_END')
    a('s_load_dwordx4 s[12:15], s[0:1], 32')
    a('s_load_dwordx4 s[16:19], s[0:1], 56')
    a('s_lshr_b32 s20, s2, 3')
    a('s_waitcnt lgkmcnt(0)')
    a('s_mov_b32 s22, s14')
    a('s_mov_b32 s23, s15')
    a('s_cmp_eq_u32 s20, 1')
    a('s_cselect_b32 s22, s18, s22')
    a('s_cselect_b32 s23, s19, s23')
    a('s_cmp_eq_u32 s20, 2')
    a('s_cselect_b32 s22, s12, s22')
    a('s_cselect_b32 s23, s13, s23')
    a('s_cmp_eq_u32 s20, 3')
    a('s_cselect_b32 s22, s16, s22')
    a('s_cselect_b32 s23, s17, s23')
    srd(a, 24, 22, 64 * 64 * 2)
    srd_off(a, 28, 10, WS_FRAG, 32 * 1024)
    a('s_and_b32 s32, s2, 3')
    a('s_lshr_b32 s33, s2, 2')
    a('s_and_b32 s33, s33, 1')
    a('s_lshl_b32 s32, s32, 11')
    a('s_lshl_b32 s33, s33, 6')
    a('s_add_u32 s32, s32, s33')
    a('v_and_b32 v1, 63, v0')
    a('v_and_b32 v2, 31, v1')
    a('v_lshlrev_b32 v2, 1, v2')
    a('v_lshrrev_b32 v3, 5, v1')
    a('v_lshlrev_b32 v3, 10, v3')
    a('v_add3_u32 v2, v2, v3, s32')
    for i in range(8):
        a(f'buffer_load_ushort v{8+i}, v2, s[24:27], 0 offen offset:{i*128}')
    a('s_mov_b32 s34, 1.0')
    a('s_and_b32 s36, s20, 1')
    a('s_cmp_eq_u32 s36, 0')
    a('s_cselect_b32 s34, 0x%x, s34' % LOG2E)
    a('s_waitcnt vmcnt(0)')
    for i in range(8):
        a(f'v_lshlrev_b32 v{8+i}, 16, v{8+i}')
        a(f'v_mul_f32 v{8+i}, s34, v{8+i}')
    for i in range(4):
        a(f'v_cvt_pk_bf16_f32 v{16+i}, v{8+2*i}, v{9+2*i}')
    a('v_lshlrev_b32 v4, 4, v1')
    a('s_lshl_b32 s35, s2, 10')
    a('v_add_u32 v4, s35, v4')
    a('buffer_store_dwordx4 v[16:19], v4, s[28:31], 0 offen')
    a.label('K1_END')
    a('s_endpgm')

def gen_k2(a, opts):
    STAMP = opts.get('stamp', False)
    vLANE = 1; BC = 2
    WB = 4; WV = 36; AX = 68
    GA = 84; HA = 100; GB = 116; HB = 132
    PP = 148; TT_ = 156; ZZ = 164
    DEN = 172; NUM = 176
    AE = [180, 184]; BE = 188; R0 = 192
    QA = [196, 200]
    EN = 204; RA = 208; CO = 212
    pEN = 216; pEE = 217; pQI = 218; pQF = 219
    C4 = 220; SEL = [221, 222]; EE = 223; QF = 224
    F0 = 225; F1 = 226
    tA = 227; tB = 228; tC = 229; tD = 230; tE = 231; tF = 232; tG = 233; tH = 234; tI = 235
    TQ = 236; TR = 240
    sidA = 244; jA = 245; sidR = 246; iR4 = 247
    vST = 248; GF = 249; GD = 250
    nvgpr = 252
    REC = PP; RK = GB; SG = HB
    G_ = [GA, GB]; H_ = [HA, HB]
    nOFF0 = AE[0]+0 if False else QA[0]; nOFF1 = QA[0]+1; nEND0 = QA[0]+2; nEND1 = QA[0]+3; nROW0 = QA[1]
    S = Regs('s', 3, 102)
    sX = S.alloc('x', 2, 2); sWC = S.alloc('wc', 2, 2); sOUT = S.alloc('out', 2, 2); sWS = S.alloc('ws', 2, 2)
    rX = S.alloc('rX', 4, 4); rT = S.alloc('rT', 4, 4); rR = S.alloc('rR', 4, 4); rF = S.alloc('rF', 4, 4)
    sW = S.alloc('w'); sNS = S.alloc('ns'); sNN = S.alloc('nn')
    sP = S.alloc('pass'); sNP = S.alloc('npass')
    sL = S.alloc('L'); sCNT = S.alloc('cnt'); sREM = S.alloc('rem'); sMAXP = S.alloc('maxp')
    sC = S.alloc('C', 2, 2)
    sF = [S.alloc('F0', 2, 2), S.alloc('F1', 2, 2)]
    sANY = [S.alloc('any0'), S.alloc('any1')]
    s128 = S.alloc('c128'); sLO = S.alloc('lo16'); sHI = S.alloc('hi16')
    t0 = S.alloc('t0'); t1 = S.alloc('t1'); t2 = S.alloc('t2', 1, 2); t3 = S.alloc('t3')
    sSV = S.alloc('sv', 2, 2); sSV2 = S.alloc('sv2', 2, 2)
    sDB = S.alloc('dmabase'); sSWAP = S.alloc('swap')
    sDBG = S.alloc('dbg', 2, 2) if opts.get('dbgtime') else None
    sT0 = S.alloc('dbgt0', 2, 2) if opts.get('dbgtime') else None
    sT1 = S.alloc('dbgt1') if opts.get('dbgtime') else None
    sT2 = S.alloc('dbgt2') if opts.get('dbgtime') else None
    MK = S.alloc('MK', 32, 2)
    rO = rT
    nsgpr = S.hi
    def stamp(i):
        if not STAMP: return
        a(f's_memtime s[{t2}:{t3}]')
        a('s_waitcnt lgkmcnt(0)')
        a(f'v_writelane_b32 v{vST}, s{t2}, {i}')
    XB = 4096

    a.raw('.p2align 8')
    a.raw('.globl gs_main_kernel')
    a.raw('.type gs_main_kernel,@function')
    a.label('gs_main_kernel')
    a('s_cmp_ge_u32 s2, 256')
    a('s_cbranch_scc1 K2_END')
    a(f's_load_dwordx2 s[{sWS}:{sWS+1}], s[0:1], 88')
    a(f's_load_dwordx2 s[{sX}:{sX+1}], s[0:1], 0')
    a(f's_load_dwordx2 s[{sWC}:{sWC+1}], s[0:1], 48')
    a(f's_load_dwordx2 s[{sOUT}:{sOUT+1}], s[0:1], 72')
    a('s_and_b32 s3, s2, 7')
    a('s_lshr_b32 s2, s2, 3')
    a('s_lshl_b32 s3, s3, 5')
    a('s_add_u32 s2, s2, s3')
    if opts.get('dbgtime'):
        a(f's_load_dwordx2 s[{sDBG}:{sDBG+1}], s[0:1], 80')
        a(f's_memrealtime s[{sT0}:{sT0+1}]')
        a('s_waitcnt lgkmcnt(0)')
    if STAMP:
        a(f'v_mov_b32 v{vST}, 0')
    stamp(0)
    if STAMP:
        a(f's_memrealtime s[{t2}:{t3}]')
        a('s_waitcnt lgkmcnt(0)')
        a(f'v_writelane_b32 v{vST}, s{t2}, 11')
    a(f'v_lshrrev_b32 v{tA}, 6, v0')
    a(f'v_and_b32 v{vLANE}, 63, v0')
    a(f'v_readfirstlane_b32 s{sW}, v{tA}')
    a(f'v_lshrrev_b32 v{sidA}, 5, v{vLANE}')
    if opts.get('proprio'):
        a('s_nop 2')
        a(f's_cmp_ge_u32 s{sW}, 4')
        a('s_cbranch_scc0 K2_PP0')
        a('s_setprio 1')
        a.label('K2_PP0')
    a(f's_lshl_b32 s{t1}, s2, 10')
    a(f's_add_u32 s{t1}, s{t1}, {WS_TAB}')
    a(f's_lshl_b32 s{t0}, s{sW}, 1')
    a(f'v_add_u32 v{sidA}, s{t0}, v{sidA}')
    a(f'v_lshrrev_b32 v{tD}, 4, v{vLANE}')
    a(f'v_lshlrev_b32 v{tD}, 5, v{tD}')
    a(f's_lshl_b32 s{t0}, s{sW}, 7')
    a(f'v_add_u32 v{tD}, s{t0}, v{tD}')
    a(f'v_lshlrev_b32 v{tA}, 4, v{vLANE}')
    a('s_waitcnt lgkmcnt(0)')
    srd_off(a, rT, sWS, f's{t1}', 1024)
    for i in range(2):
        a(f'buffer_load_dwordx4 v[{SG+4*i}:{SG+4*i+3}], v{tD}, s[{rT}:{rT+3}], 0 offen offset:{16*i}')
    a(f's_mul_i32 s{t0}, s2, 3125')
    a(f's_add_u32 s{sNS}, s{t0}, 31')
    a(f's_lshr_b32 s{sNS}, s{sNS}, 5')
    a(f's_add_u32 s{t0}, s{t0}, {3125+31}')
    a(f's_lshr_b32 s{t0}, s{t0}, 5')
    a(f's_sub_u32 s{sNN}, s{t0}, s{sNS}')
    a(f's_sub_u32 s{rX}, s{sX}, {XB}')
    a(f's_subb_u32 s{rX+1}, s{sX+1}, 0')
    a(f's_and_b32 s{rX+1}, s{rX+1}, 0xffff')
    a(f's_mov_b32 s{rX+2}, {N*128 + XB}')
    a(f's_mov_b32 s{rX+3}, 0x20000')
    srd_off(a, rF, sWS, WS_FRAG, 32 * 1024)
    a(f's_lshl_b32 s{sDB}, s{sW}, 12')
    a(f's_add_u32 s{sDB}, s{sDB}, {L_DMA}')
    a(f'v_bfe_u32 v{tE}, v{vLANE}, 4, 1')
    a(f'v_and_b32 v{tF}, 7, v{vLANE}')
    a(f'v_xor_b32 v{tE}, v{tE}, v{tF}')
    a(f'v_lshlrev_b32 v{tE}, 4, v{tE}')
    for i in range(4):
        if i: a(f'v_xor_b32 v{tF}, {32*i}, v{tE}')
        a(f'v_add_u32 v{CO+i}, {XB - 1024*i}, v{tF if i else tE}')
    a(f'v_bfe_u32 v{jA}, v{vLANE}, 3, 2')
    a(f'v_lshrrev_b32 v{tF}, 5, v{vLANE}')
    a(f'v_lshlrev_b32 v{tE}, 3, v{jA}')
    a(f'v_lshl_add_u32 v{tE}, v{tF}, 2, v{tE}')
    a(f's_lshr_b32 s{t0}, s{sW}, 1')
    a(f's_lshl_b32 s{t1}, s{t0}, 5')
    a(f's_add_u32 s{t1}, s{t1}, s{sNS}')
    a(f's_and_b32 s{t2}, s{sW}, 1')
    a(f's_lshl_b32 s{t2}, s{t2}, 1')
    a(f's_add_u32 s{t1}, s{t1}, s{t2}')
    a(f'v_add_u32 v{tE}, s{t1}, v{tE}')
    a(f'v_lshlrev_b32 v{tE}, 7, v{tE}')
    a(f's_cmp_eq_u32 s{t2}, 0')
    a(f's_cbranch_scc0 K2_XI2')
    a(f'v_add_u32 v{tH}, v{tE}, v{CO}')
    a(f'v_add_u32 v{tI}, v{tE}, v{CO+1}')
    a('s_branch K2_XI')
    a.label('K2_XI2')
    a(f'v_add_u32 v{tH}, v{tE}, v{CO+2}')
    a(f'v_add_u32 v{tI}, v{tE}, v{CO+3}')
    a(f'v_add_u32 v{tH}, 2048, v{tH}')
    a(f'v_add_u32 v{tI}, 2048, v{tI}')
    a.label('K2_XI')
    a(f'v_add_u32 v{tI}, 128, v{tI}')
    a(f'v_and_b32 v{C4}, 31, v{vLANE}')
    def staging():
        a(f's_lshr_b32 s{t0}, s{sW}, 1')
        a(f's_lshl_b32 s{t0}, s{t0}, 12')
        a(f's_and_b32 s{t2}, s{sW}, 1')
        a(f's_lshl_b32 s{t2}, s{t2}, 11')
        a(f's_add_u32 s{t0}, s{t0}, s{t2}')
        a(f's_add_u32 s{t0}, s{t0}, {L_DMA}')
        a(f's_mov_b32 m0, s{t0}')
        a(f'v_lshlrev_b32 v{tA}, 4, v{vLANE}')
        a(f'buffer_load_dwordx4 v{tH}, s[{rX}:{rX+3}], 0 offen lds')
        a(f'buffer_load_dwordx4 v{tI}, s[{rX}:{rX+3}], 0 offen offset:1024 lds')
        a(f's_lshl_b32 s{t0}, s{sW}, 11')
        a(f's_add_u32 s{t1}, s{t0}, {L_DMA + 4*4096}')
        a(f's_mov_b32 m0, s{t1}')
        a(f's_add_u32 s{t2}, s{t0}, {16*1024}')
        a(f'buffer_load_dwordx4 v{tA}, s[{rF}:{rF+3}], s{t2} offen lds')
        a(f'buffer_load_dwordx4 v{tA}, s[{rF}:{rF+3}], s{t2} offen offset:1024 lds')
        a(f's_add_u32 s{t1}, s{t0}, {L_WST}')
        a(f's_mov_b32 m0, s{t1}')
        a('s_nop 0')
        a(f'buffer_load_dwordx4 v{tA}, s[{rF}:{rF+3}], s{t0} offen lds')
        a(f'buffer_load_dwordx4 v{tA}, s[{rF}:{rF+3}], s{t0} offen offset:1024 lds')
        srd(a, rR, sWC, 128)
        a(f'v_lshlrev_b32 v{tE}, 1, v{C4}')
        a(f'buffer_load_ushort v{BC}, v{tE}, s[{rR}:{rR+3}], 0 offen')
        a(f'buffer_load_ushort v{BC+1}, v{tE}, s[{rR}:{rR+3}], 0 offen offset:64')
    staging()
    def lds_init():
        a(f'v_lshlrev_b32 v{tE}, 4, v0')
        for i in range(4):
            a(f'v_mov_b32 v{TR+i}, 0xffff')
        a(f'ds_write_b128 v{tE}, v[{TR}:{TR+3}] offset:{L_ENT}')
        a(f's_cmp_ge_u32 s{sW}, {(ENT_QUADS - 512) // 64}')
        a(f's_cbranch_scc1 K2_I1{tag_i[0]}')
        a(f'ds_write_b128 v{tE}, v[{TR}:{TR+3}] offset:{L_ENT + 512*16}')
        a.label(f'K2_I1{tag_i[0]}')
        assert (ENT_QUADS - 512) % 64 == 0
        for i in range(4):
            a(f'v_mov_b32 v{TR+i}, {L_VIRT}')
        a(f'v_cmp_gt_u32 vcc, {ENT_QUADS // 4}, v0')
        a(f's_and_saveexec_b64 s[{sSV}:{sSV+1}], vcc')
        a(f'ds_write_b128 v{tE}, v[{TR}:{TR+3}] offset:{L_QI}')
        a(f's_mov_b64 exec, s[{sSV}:{sSV+1}]')
        a(f's_cmp_lg_u32 s{sW}, 0')
        a(f's_cbranch_scc1 K2_I2{tag_i[0]}')
        for i in range(4):
            a(f'v_mov_b32 v{TR+i}, 0')
        a(f'ds_write_b128 v{tE}, v[{TR}:{TR+3}] offset:{L_CNT}')
        a(f'v_add_u32 v{tE}, {L_VIRT + 512}, v{tE}')
        a('s_mov_b64 exec, 0xff')
        a(f'ds_write_b128 v{tE}, v[{TR}:{TR+3}]')
        a('s_mov_b64 exec, -1')
        a.label(f'K2_I2{tag_i[0]}')
        tag_i[0] += 1
    tag_i = [0]
    lds_init()
    a(f'v_and_b32 v{tE}, 3, v{vLANE}')
    a(f'v_lshlrev_b32 v{iR4}, 2, v{tE}')
    a(f'v_lshl_add_u32 v{RA}, v{tE}, 3, v{jA}')
    a(f'v_lshrrev_b32 v{tF}, 1, v{jA}')
    a(f'v_lshl_add_u32 v{tE}, v{tE}, 1, v{tF}')
    a(f'v_bfe_u32 v{tF}, v{vLANE}, 2, 1')
    a(f's_lshl_b32 s{t0}, s{sW}, 1')
    a(f'v_add_u32 v{sidR}, s{t0}, v{tF}')
    a(f'v_lshl_add_u32 v{RA}, v{tF}, 2, v{RA}')
    a(f'v_lshrrev_b32 v{tG}, 5, v{vLANE}')
    a(f'v_cmp_eq_u32 vcc, v{tF}, v{tG}')
    a(f'v_xor_b32 v{tE}, v{tE}, v{tG}')
    a(f'v_lshlrev_b32 v{tE}, 4, v{tE}')
    a(f'v_lshl_add_u32 v{RA}, v{RA}, 7, v{tE}')
    a(f'v_mov_b32 v{tF}, 0x3f80')
    a(f'v_cndmask_b32 v{tF}, 0, v{tF}, vcc')
    for q in range(4):
        a(f'v_cmp_eq_u32 vcc, {q}, v{jA}')
        a('s_nop 1')
        a(f'v_cndmask_b32 v{AE[0]+q}, 0, v{tF}, vcc')
        a(f'v_lshlrev_b32 v{AE[1]+q}, 16, v{AE[0]+q}')
    a(f'v_cmp_gt_u32 vcc, 32, v{vLANE}')
    a(f'v_mov_b32 v{tE}, 0x0a0c0100')
    a(f'v_mov_b32 v{tF}, 0x07060100')
    a(f'v_cndmask_b32 v{SEL[0]}, v{tE}, v{tF}, vcc')
    a(f'v_mov_b32 v{tE}, 0x03020a0c')
    a(f'v_mov_b32 v{tF}, 0x03020706')
    a(f'v_cndmask_b32 v{SEL[1]}, v{tE}, v{tF}, vcc')
    a(f's_mov_b32 s{sC}, 0x{C_SCALE:x}')
    a(f's_mov_b32 s{sC+1}, 0x{C_SCALE:x}')
    a(f's_mov_b32 s{s128}, 128')
    a(f's_mov_b32 s{sLO}, 0xffff')
    a(f's_mov_b32 s{sHI}, 0xffff0000')
    a(f'v_and_b32 v{tB}, 15, v{vLANE}')
    a(f'v_lshlrev_b32 v{tB}, 3, v{tB}')
    a(f'v_lshlrev_b32 v{C4}, 2, v{C4}')
    a('s_waitcnt vmcnt(0) lgkmcnt(0)')
    stamp(1)
    a('s_barrier')
    srd(a, rR, sWS, NBK * RECB)
    def rec_loads(vk8, nit):
        for it in range(8):
            a(f'v_mad_u32_u24 v{RK+it}, v{SG+it}, 8, v{vk8}')
        for it in range(nit):
            a(f's_mov_b64 exec, s[{MK+2*it}:{MK+2*it+1}]')
            off = ' offset:128' if it >= 8 else ''
            sk = a.newlabel('skl') if (it >= 8 and opts.get('skipb', 1)) else None
            if sk: a(f's_cbranch_execz {sk}')
            a(f'buffer_load_dwordx2 v[{REC+2*it}:{REC+2*it+1}], v{RK+it%8}, s[{rR}:{rR+3}], 0 offen{off}')
            if sk: a.label(sk)
        a('s_mov_b64 exec, -1')
    a(f'v_lshrrev_b32 v{tC}, 3, v{tB}')
    a(f'v_add_u32 v{tD}, 16, v{tC}')
    for it in range(8):
        a(f'v_cmp_gt_u32_sdwa s[{MK+2*it}:{MK+2*it+1}], v{SG+it}, v{tC} src0_sel:BYTE_3 src1_sel:DWORD')
    for it in range(8):
        a(f'v_cmp_gt_u32_sdwa s[{MK+16+2*it}:{MK+16+2*it+1}], v{SG+it}, v{tD} src0_sel:BYTE_3 src1_sel:DWORD')
    stamp(25)
    rec_loads(tB, 16)
    stamp(26)
    a(f'v_max3_u32 v{tD}, v{SG}, v{SG+1}, v{SG+2}')
    a(f'v_max3_u32 v{tD}, v{tD}, v{SG+3}, v{SG+4}')
    a(f'v_max3_u32 v{tD}, v{tD}, v{SG+5}, v{SG+6}')
    a(f'v_max_u32 v{tD}, v{tD}, v{SG+7}')
    a(f'v_lshrrev_b32 v{tD}, 24, v{tD}')
    a(f'v_cmp_lt_u32 s[{sSV2}:{sSV2+1}], 32, v{tD}')

    def gemm_issue():
        a(f's_lshr_b32 s{t0}, s{sW}, 1')
        a(f's_lshl_b32 s{t1}, s{t0}, 12')
        a(f's_add_u32 s{t1}, s{t1}, {L_DMA}')
        a(f'v_add_u32 v{tA}, s{t1}, v{RA}')
        a(f'v_xor_b32 v{tB}, 32, v{tA}')
        a(f'ds_read_b128 v[{AX}:{AX+3}], v{tA}')
        a(f'ds_read_b128 v[{AX+4}:{AX+7}], v{tB}')
        a(f'v_xor_b32 v{tB}, 64, v{tA}')
        a(f'v_xor_b32 v{tC}, 96, v{tA}')
        a(f'ds_read_b128 v[{AX+8}:{AX+11}], v{tB}')
        a(f'ds_read_b128 v[{AX+12}:{AX+15}], v{tC}')
        a(f's_and_b32 s{t2}, s{sW}, 1')
        a(f's_lshl_b32 s{t3}, s{t2}, 13')
        a(f's_add_u32 s{t3}, s{t3}, {L_DMA + 4*4096}')
        a(f'v_lshlrev_b32 v{GF}, 4, v{vLANE}')
        a(f'v_add_u32 v{GF}, s{t3}, v{GF}')
        for f in range(4):
            a(f'ds_read_b128 v[{SG+4*f}:{SG+4*f+3}], v{GF} offset:{f*1024}')
        for f in range(4):
            a(f'ds_read_b128 v[{RK+4*f}:{RK+4*f+3}], v{GF} offset:{(4+f)*1024}')
        a(f's_mul_i32 s{t1}, s{t0}, {32*ROWB}')
        a(f's_lshl_b32 s{t3}, s{t2}, 7')
        a(f's_add_u32 s{t1}, s{t1}, s{t3}')
        a(f's_add_u32 s{t1}, s{t1}, {L_ACC + 512}')
        a(f'v_lshrrev_b32 v{GD}, 5, v{vLANE}')
        a(f'v_mul_u32_u24 v{GD}, {4*ROWB}, v{GD}')
        a(f'v_add3_u32 v{GD}, v{GD}, v{C4}, s{t1}')
    def gemm_mid():
        a('s_waitcnt lgkmcnt(0)')
        for kp in range(4):
            c = '0' if kp == 0 else f'v[{GA}:{GA+15}]'
            a(f'v_mfma_f32_32x32x16_bf16 v[{GA}:{GA+15}], v[{AX+4*kp}:{AX+4*kp+3}], v[{SG+4*kp}:{SG+4*kp+3}], {c}')
            c = '0' if kp == 0 else f'v[{HA}:{HA+15}]'
            a(f'v_mfma_f32_32x32x16_bf16 v[{HA}:{HA+15}], v[{AX+4*kp}:{AX+4*kp+3}], v[{RK+4*kp}:{RK+4*kp+3}], {c}')
    def gemm_mid2():
        a('s_nop 7')
        a('s_nop 3')
    def w_frags():
        a(f'v_lshlrev_b32 v{GF}, 4, v{vLANE}')
        a(f'v_add_u32 v{GF}, {L_WST}, v{GF}')
        for f in range(16):
            dst = (WB + 4*f) if f < 8 else (WV + 4*(f-8))
            a(f'ds_read_b128 v[{dst}:{dst+3}], v{GF} offset:{f*1024}')
    def gemm_store(tag):
        for i in range(16):
            a(f'v_cvt_pk_bf16_f32 v{GA+i}, v{GA+i}, v{HA+i}')
        a(f's_lshr_b32 s{t0}, s{sW}, 1')
        a(f's_cmp_eq_u32 s{t0}, 3')
        a(f's_cbranch_scc1 K2_RT3{tag}')
        for vv in range(16):
            a(f'ds_write_b32 v{GD}, v{GA+vv} offset:{(8*(vv//4) + vv%4) * ROWB}')
        a(f's_branch K2_RTD{tag}')
        a.label(f'K2_RT3{tag}')
        a('s_mov_b32 exec_hi, 0')
        for vv in range(2):
            a(f'ds_write_b32 v{GD}, v{GA+vv} offset:{vv * ROWB}')
        a('s_mov_b64 exec, -1')
        a.label(f'K2_RTD{tag}')
    def consts():
        a(f'v_add_u32 v{RA}, s{sDB}, v{RA}')
        for kp in range(1, 4):
            a(f'v_xor_b32 v{RA+kp}, {32*kp}, v{RA}')
        a(f's_mov_b32 s{t3}, 0x{LOG2E:x}')
        for cc in range(2):
            a(f'v_lshlrev_b32 v{BC+cc}, 16, v{BC+cc}')
            a(f'v_mul_f32 v{BC+cc}, s{t3}, v{BC+cc}')
        a(f'v_cvt_pk_bf16_f32 v{BC}, 0, v{BC}')
        a(f'v_cvt_pk_bf16_f32 v{BC+1}, v{BC+1}, 0')
        a(f'v_cmp_gt_u32 vcc, 32, v{vLANE}')
        a(f'v_mov_b32 v{tG}, 0xb2000000')
        a(f'v_mov_b32 v{tH}, 0xb200')
        a(f'v_cndmask_b32 v{BC}, v{tG}, v{BC}, vcc')
        a(f'v_cndmask_b32 v{BC+1}, v{tH}, v{BC+1}, vcc')

    def hist():
        a(f'v_mov_b32 v{tE}, 1')
        for it in range(NIT):
            a(f's_mov_b64 exec, s[{MK+2*it}:{MK+2*it+1}]')
            sk = a.newlabel('skh') if (it >= 8 and opts.get('skipb', 1)) else None
            if sk: a(f's_cbranch_execz {sk}')
            a(f'ds_add_rtn_u32 v{RK+it}, v{REC+2*it+1}, v{tE} offset:{L_CNT}')
            if sk: a.label(sk)
        a('s_mov_b64 exec, -1')

    def scan_nodes(tag, mid=None):
        a(f'v_lshlrev_b32 v{tA}, 3, v{vLANE}')
        a(f'ds_read_b64 v[{TQ}:{TQ+1}], v{tA} offset:{L_CNT}')
        a(f'v_mul_u32_u24 v{nROW0}, {2*ROWB}, v{vLANE}')
        a(f'v_add_u32 v{nROW0}, {L_ACC}, v{nROW0}')
        if mid: mid()
        else: a('s_waitcnt lgkmcnt(0)')
        a(f'v_add_u32 v{tE}, 3, v{TQ}')
        a(f'v_add_u32 v{tF}, 3, v{TQ+1}')
        a(f'v_and_b32 v{tE}, -4, v{tE}')
        a(f'v_and_b32 v{tF}, -4, v{tF}')
        a(f'v_add_u32 v{tC}, v{tE}, v{tF}')
        a(f'v_max_u32 v{tB}, v{tE}, v{tF}')
        a(f'v_mov_b32 v{tD}, v{tC}')
        wave_scan(a, 'v_add_u32', tD)
        a(f'v_sub_u32 v{nOFF0}, v{tD}, v{tC}')
        a(f'v_readlane_b32 s{t1}, v{tD}, 63')
        a(f'v_add_u32 v{nOFF1}, v{nOFF0}, v{tE}')
        a(f'v_lshlrev_b32 v{TQ+2}, 2, v{nOFF0}')
        a(f'v_lshlrev_b32 v{TQ+3}, 2, v{nOFF1}')
        a(f'ds_write_b64 v{tA}, v[{TQ+2}:{TQ+3}] offset:{L_TAB}')
        a(f'v_mov_b32 v{nEND0}, v{nOFF1}')
        a(f'v_add_u32 v{nEND1}, v{nOFF1}, v{tF}')
        a(f's_add_u32 s{t1}, s{t1}, {4*NSTREAM-1}')
        a(f's_lshr_b32 s{sL}, s{t1}, 6')
        a(f's_add_u32 s{sCNT}, s{sL}, 3')
        a(f's_lshr_b32 s{sCNT}, s{sCNT}, 2')
        a(f's_sub_u32 s{sCNT}, s{sCNT}, 1')
        a(f's_sub_u32 s{sREM}, s{sL}, 1')
        a(f's_and_b32 s{sREM}, s{sREM}, 3')
        a(f's_add_u32 s{sREM}, s{sREM}, 1')
    def qi_fill(tag, split):
        B0 = TQ + 2; B1 = TQ + 3; V0 = TR + 1; V1 = TR + 2
        a(f'v_max_u32 v{TR}, v{tE}, v{tF}')
        if split:
            a(f'v_cvt_f32_u32 v{tA}, s{sL}')
            a(f'v_rcp_f32 v{tA}, v{tA}')
            a(f'v_cvt_f32_u32 v{tB}, v{nOFF0}')
            a(f'v_cvt_f32_u32 v{tC}, v{nOFF1}')
            a(f'v_mul_f32 v{tA}, 0.25, v{tA}')
            a(f'v_add_f32 v{tB}, 2.0, v{tB}')
            a(f'v_add_f32 v{tC}, 2.0, v{tC}')
            a(f'v_mul_f32 v{tB}, v{tA}, v{tB}')
            a(f'v_mul_f32 v{tC}, v{tA}, v{tC}')
            a(f'v_cvt_u32_f32 v{tB}, v{tB}')
            a(f'v_cvt_u32_f32 v{tC}, v{tC}')
            a(f'v_add_u32 v{tB}, 1, v{tB}')
            a(f'v_add_u32 v{tC}, 1, v{tC}')
            a(f's_lshl_b32 s{t1}, s{sL}, 2')
            a(f'v_mul_u32_u24 v{B0}, s{t1}, v{tB}')
            a(f'v_mul_u32_u24 v{B1}, s{t1}, v{tC}')
            a(f's_movk_i32 s{t1}, {VROWB}')
            a(f'v_mov_b32 v{tD}, {L_VIRT}')
            a(f'v_mad_u32_u24 v{V0}, v{tB}, s{t1}, v{tD}')
            a(f'v_mad_u32_u24 v{V1}, v{tC}, s{t1}, v{tD}')
            a(f'v_add_u32 v{tD}, {ROWB}, v{nROW0}')
            for nd, (B, Vv, END, nx) in enumerate(((B0, V0, nEND0, tB), (B1, V1, nEND1, tC))):
                lab = a.newlabel('nosplit')
                a(f'v_lshrrev_b32 v{tG}, 1, v{nx}')
                a(f'v_cmp_lt_u32 vcc, v{B}, v{END}')
                a(f'v_cmp_eq_u32 s[{sSV}:{sSV+1}], s{sW}, v{tG}')
                a(f's_and_b64 vcc, vcc, s[{sSV}:{sSV+1}]')
                a(f's_cbranch_scc0 {lab}')
                lp = a.newlabel('splitlp')
                a.label(lp)
                a(f's_ff1_i32_b64 s{t0}, vcc')
                a(f's_bitset0_b64 vcc, s{t0}')
                a(f'v_readlane_b32 s{t2}, v{nROW0 if nd == 0 else tD}, s{t0}')
                a(f'v_readlane_b32 s{t3}, v{Vv}, s{t0}')
                a(f'v_lshrrev_b32 v{tG}, 0, v{C4}')
                a('s_mov_b32 exec_hi, 0')
                a(f'v_add_u32 v{tH}, s{t2}, v{tG}')
                a(f'ds_read_b32 v{tI}, v{tH} offset:512')
                a(f'v_add_u32 v{tH}, s{t3}, v{tG}')
                a(f'v_mov_b32 v{tG}, s{t2}')
                a(f'v_mov_b32 v{tA}, s{t3}')
                a(f'ds_write_b32 v{tG}, v{tA} offset:768')
                a('s_waitcnt lgkmcnt(1)')
                a(f'ds_write_b32 v{tH}, v{tI} offset:512')
                a('s_mov_b64 exec, -1')
                a(f's_cmp_lg_u64 vcc, 0')
                a(f's_cbranch_scc1 {lp}')
                a.label(lab)
        a(f's_lshl_b32 s{t0}, s{sW}, 2')
        a(f'v_add_u32 v{tA}, s{t0}, v{nOFF0}')
        a(f'v_add_u32 v{tB}, s{t0}, v{nOFF1}')
        a(f'v_add_u32 v{tC}, {ROWB}, v{nROW0}')
        lp = f'K2_QF{tag}'
        a.label(lp)
        a(f's_add_u32 s{t1}, s{t0}, 4')
        a(f'v_cmp_eq_u32 s[{sSV}:{sSV+1}], s{t1}, v{tE}')
        a(f'v_cmp_eq_u32 s[{sSV2}:{sSV2+1}], s{t1}, v{tF}')
        if split:
            a(f'v_add_u32 v{tG}, 4, v{tA}')
            a(f'v_add_u32 v{tH}, 4, v{tB}')
            a(f'v_cmp_eq_u32 vcc, v{tG}, v{B0}')
            a(f's_or_b64 s[{sSV}:{sSV+1}], s[{sSV}:{sSV+1}], vcc')
            a(f'v_cmp_eq_u32 vcc, v{tH}, v{B1}')
            a(f's_or_b64 s[{sSV2}:{sSV2+1}], s[{sSV2}:{sSV2+1}], vcc')
            a(f'v_cmp_ge_u32 vcc, v{tA}, v{B0}')
            a('s_nop 1')
            a(f'v_cndmask_b32 v{tG}, v{nROW0}, v{V0}, vcc')
            a(f'v_cmp_ge_u32 vcc, v{tB}, v{B1}')
            a('s_nop 1')
            a(f'v_cndmask_b32 v{tH}, v{tC}, v{V1}, vcc')
        else:
            a(f'v_mov_b32 v{tG}, v{nROW0}')
            a(f'v_mov_b32 v{tH}, v{tC}')
        a(f'v_or_b32 v{tD}, 0x80000000, v{tG}')
        a(f'v_or_b32 v{tI}, 0x80000000, v{tH}')
        a(f'v_cmp_lt_u32 vcc, s{t0}, v{tE}')
        a(f'v_cndmask_b32 v{tG}, v{tG}, v{tD}, s[{sSV}:{sSV+1}]')
        a(f'v_cndmask_b32 v{tH}, v{tH}, v{tI}, s[{sSV2}:{sSV2+1}]')
        a(f'v_cmp_lt_u32 s[{sSV}:{sSV+1}], s{t0}, v{tF}')
        a('s_mov_b64 exec, vcc')
        a(f'ds_write_b32 v{tA}, v{tG} offset:{L_QI}')
        a(f's_mov_b64 exec, s[{sSV}:{sSV+1}]')
        a(f'ds_write_b32 v{tB}, v{tH} offset:{L_QI}')
        a('s_mov_b64 exec, -1')
        a(f's_add_u32 s{t0}, s{t0}, 32')
        a(f'v_add_u32 v{tA}, 32, v{tA}')
        a(f'v_add_u32 v{tB}, 32, v{tB}')
        a(f'v_cmp_lt_u32 vcc, s{t0}, v{TR}')
        a(f's_cbranch_vccnz {lp}')
    def scatter():
        a('s_waitcnt lgkmcnt(0)')
        for it in range(8):
            a(f's_mov_b64 exec, s[{MK+2*it}:{MK+2*it+1}]')
            a(f'ds_read_b32 v{AX+it}, v{REC+2*it+1} offset:{L_TAB}')
        for it in range(8):
            a(f's_mov_b64 exec, s[{MK+2*it}:{MK+2*it+1}]')
            a('s_waitcnt lgkmcnt(7)')
            a(f'v_lshl_add_u32 v{AX+it}, v{RK+it}, 2, v{AX+it}')
            a(f'ds_write_b32 v{AX+it}, v{REC+2*it} offset:{L_ENT}')
        for it in range(8, 16):
            sk = a.newlabel('sks')
            a(f's_mov_b64 exec, s[{MK+2*it}:{MK+2*it+1}]')
            if opts.get('skipb', 1): a(f's_cbranch_execz {sk}')
            a(f'ds_read_b32 v{AX+it}, v{REC+2*it+1} offset:{L_TAB}')
            a('s_waitcnt lgkmcnt(0)')
            a(f'v_lshl_add_u32 v{AX+it}, v{RK+it}, 2, v{AX+it}')
            a(f'ds_write_b32 v{AX+it}, v{REC+2*it} offset:{L_ENT}')
            a.label(sk)
        a('s_mov_b64 exec, -1')

    def setup_ptrs():
        a(f'v_mad_u32_u24 v{tA}, v{sidA}, s{sL}, v{jA}')
        a(f'v_lshlrev_b32 v{pEN}, 4, v{tA}')
        a(f'ds_read_b128 v[{EN}:{EN+3}], v{pEN} offset:{L_ENT}')
        a(f'v_lshlrev_b32 v{pQF}, 2, v{tA}')
        a(f'v_mul_u32_u24 v{pQI}, s{sL}, v{sidA}')
        a(f'v_lshlrev_b32 v{pQI}, 2, v{pQI}')
        a(f'v_add_u32 v{pQI}, {L_QI}, v{pQI}')
        a(f'v_mad_u32_u24 v{tA}, v{sidR}, s{sL}, v{jA}')
        a(f'v_lshl_add_u32 v{pEE}, v{tA}, 4, v{iR4}')
        a(f's_mov_b32 m0, s{sDB}')

    def dma_addr():
        return [f'v_mad_u32_u16 v{EN+i}, v{EN+i}, s{s128}, v{CO+i}' for i in range(4)]
    def dma_issue():
        if opts.get('nodma'): return []
        return [f'buffer_load_dwordx4 v{EN+i}, s[{rX}:{rX+3}], 0 offen offset:{1024*i} lds' if i else
                f'buffer_load_dwordx4 v{EN}, s[{rX}:{rX+3}], 0 offen lds' for i in range(4)]

    def main_loop(tag, atomic):
        flush_blocks = []
        def flush_body(cc, par, j):
            a(f's_bfe_i32 exec_lo, s{sF[par]}, 0x{(1<<16)|(8*j):x}')
            a(f's_bfe_i32 exec_hi, s{sF[par]+1}, 0x{(1<<16)|(8*j):x}')
            a(f'v_add_f32 v{F0}, v{DEN+2*cc}, v{DEN+2*cc+1}')
            a(f'v_add_f32 v{F1}, v{NUM+2*cc}, v{NUM+2*cc+1}')
            a(f'v_mov_b64 v[{DEN+2*cc}:{DEN+2*cc+1}], 0')
            a(f'v_mov_b64 v[{NUM+2*cc}:{NUM+2*cc+1}], 0')
            if atomic:
                a(f'ds_add_f32 v{QA[par]+j}, v{F0} offset:{cc*128}')
                a(f'ds_add_f32 v{QA[par]+j}, v{F1} offset:{256+cc*128}')
            else:
                a(f'ds_write2_b32 v{QA[par]+j}, v{F0}, v{F1} offset0:{cc*32} offset1:{64+cc*32}')
            a('s_mov_b64 exec, -1')
        def post(cc, par, nq_check):
            done = a.newlabel('pdone') if nq_check else None
            for j in range(4):
                if nq_check and j > 0:
                    a(f's_cmp_le_u32 s{sREM}, {j}')
                    a(f's_cbranch_scc1 {done}')
                p = PP + 2*j; t = TT_ + 2*j; z = ZZ + 2*j
                a(f'v_pk_fma_f32 v[{NUM+2*cc}:{NUM+2*cc+1}], v[{p}:{p+1}], v[{t}:{t+1}], v[{NUM+2*cc}:{NUM+2*cc+1}]')
                a(f'v_pk_fma_f32 v[{DEN+2*cc}:{DEN+2*cc+1}], v[{p}:{p+1}], v[{z}:{z+1}], v[{DEN+2*cc}:{DEN+2*cc+1}]')
                if opts.get('noflush'): continue
                fl = a.newlabel('fl'); back = a.newlabel('bk')
                a(f's_bitcmp1_b32 s{sANY[par]}, {8*j}')
                if opts.get('inlinefl', 0):
                    a(f's_cbranch_scc0 {back}')
                    flush_body(cc, par, j)
                    a.label(back)
                else:
                    a(f's_cbranch_scc1 {fl}')
                    a.label(back)
                    flush_blocks.append((fl, back, cc, par, j))
            if nq_check: a.label(done)
        def pre(cur):
            g0 = G_[cur]; h0 = H_[cur]
            for j in range(4):
                g = g0 + 4*j
                a(f'v_pk_fma_f32 v[{g}:{g+1}], v[{g}:{g+1}], s[{sC}:{sC+1}], s[{sC}:{sC+1}] clamp')
                a(f'v_pk_fma_f32 v[{g+2}:{g+3}], v[{g+2}:{g+3}], s[{sC}:{sC+1}], s[{sC}:{sC+1}] clamp')
            for j in range(4):
                g = g0 + 4*j; h = h0 + 4*j
                X = f'v[{g}:{g+1}]'; Y = f'v[{g+2}:{g+3}]'
                p = PP + 2*j; t = TT_ + 2*j; z = ZZ + 2*j
                a(f'v_pk_mul_f32 v[{t}:{t+1}], {Y}, v[{h}:{h+1}]')
                a(f'v_pk_mul_f32 v[{p}:{p+1}], {X}, {Y}')
                a(f'v_pk_add_f32 v[{z}:{z+1}], {X}, {Y}')
                a(f'v_pk_fma_f32 v[{t}:{t+1}], {X}, v[{h+2}:{h+3}], v[{t}:{t+1}]')
        def mfma_list(nxt, cc):
            Gs = f'v[{G_[nxt]}:{G_[nxt]+15}]'; Hs = f'v[{H_[nxt]}:{H_[nxt]+15}]'
            out = []
            for kp in range(4):
                wb = WB + 16*cc + 4*kp; wv = WV + 16*cc + 4*kp; ax = AX + 4*kp
                out.append(f'v_mfma_f32_32x32x16_bf16 {Hs}, v[{ax}:{ax+3}], v[{wv}:{wv+3}], {"0" if kp == 0 else Hs}')
                out.append(f'v_mfma_f32_32x32x16_bf16 {Gs}, v[{ax}:{ax+3}], v[{wb}:{wb+3}], {"0" if kp == 0 else Gs}')
            out.append(f'v_mfma_f32_32x32x16_bf16 {Gs}, v[{AE[cc]}:{AE[cc]+3}], v[{BE}:{BE+3}], {Gs}')
            return out
        def trans_list(cur):
            return [f'v_rcp_f32 v{PP+i}, v{PP+i}' for i in range(8)] + [f'v_exp_f32 v{G_[cur]+i}, v{G_[cur]+i}' for i in range(16)]
        def weave(mf, tr, gaps):
            dist = [3, 3, 3, 3, 3, 3, 2, 2, 2]
            if opts.get('nogaps'): gaps = {}
            def keep(ins):
                if opts.get('nods') and ins.startswith('ds_'): return False
                if opts.get('novalu') and ins.startswith('v_'): return False
                if opts.get('nowait') and ins.startswith('s_waitcnt'): return False
                if opts.get('novm') and ins.startswith('buffer_'): return False
                return True
            gaps = {k_: [i_ for i_ in v_ if keep(i_)] for k_, v_ in gaps.items()}
            if opts.get('nomf'): mf = None
            k = 0
            for m in range(9):
                for ins in gaps.get(('m', m), []): a(ins)
                if mf: a(mf[m])
                for _ in range(dist[m]):
                    a(tr[k])
                    for ins in gaps.get(k, []): a(ins)
                    k += 1
            assert k == len(tr)
        def stage0(par):
            g = {}
            da = dma_addr()
            g[0] = [f'ds_read_b32 v{QF}, v{pQF} offset:{L_QI + 16*(par+1)}']
            g[1] = [f'ds_read_b32 v{EE}, v{pEE} offset:{L_ENT + 64*(par+1)}']
            g[3] = [f'v_and_or_b32 v{BE}, v{R0}, s{sHI}, v{BC+1}']
            g[6] = [da[0]]; g[9] = [da[1]]; g[12] = [da[2]]; g[15] = [da[3]]
            weave(mfma_list(1, 1), trans_list(0), g)
            post(1, par ^ 1, False)
            qn = QA[par ^ 1]
            if not opts.get('nogaps') and not opts.get('nopds'):
                a(f'ds_read2_b32 v[{qn}:{qn+1}], v{pQI} offset0:{4*(par+1)} offset1:{4*(par+1)+1}')
                a(f'ds_read2_b32 v[{qn+2}:{qn+3}], v{pQI} offset0:{4*(par+1)+2} offset1:{4*(par+1)+3}')
                a('s_waitcnt vmcnt(0)')
                for kp in range(4):
                    a(f'ds_read_b128 v[{AX+4*kp}:{AX+4*kp+3}], v{RA+kp}')
            pre(0)
            a(f's_sub_u32 s{sCNT}, s{sCNT}, 1')
        def stage1(par):
            qn = QA[par ^ 1]
            g = {}
            di = dma_issue()
            g[('m', 0)] = ['s_waitcnt lgkmcnt(0)']
            g[0] = [f'v_mad_u32_u24 v{qn}, v{qn}, 1, v{C4}'] + di[0:1]
            g[1] = [f'v_mad_u32_u24 v{qn+1}, v{qn+1}, 1, v{C4}'] + di[1:2]
            g[2] = [f'ds_read_b32 v{R0}, v{qn} offset:512'] + di[2:3]
            g[3] = [f'v_mad_u32_u24 v{qn+2}, v{qn+2}, 1, v{C4}', f'ds_read_b32 v{BE+1}, v{qn+1} offset:512'] + di[3:4]
            g[4] = [f'v_mad_u32_u24 v{qn+3}, v{qn+3}, 1, v{C4}', f'ds_read_b32 v{BE+2}, v{qn+2} offset:512']
            g[5] = [f'ds_read_b32 v{BE+3}, v{qn+3} offset:512']
            g[6] = [f'ds_read_b128 v[{EN}:{EN+3}], v{pEN} offset:{L_ENT + 64*(par+3)}']
            g[7] = [f'v_perm_b32 v{AE[0]}, v{EE}, v{AE[0]}, v{SEL[0]}']
            g[9] = [f'v_perm_b32 v{AE[1]}, v{EE}, v{AE[1]}, v{SEL[1]}']
            g[11] = [f'v_cmp_gt_i32 s[{sF[par^1]}:{sF[par^1]+1}], 0, v{QF}']
            if par == 1:
                g[13] = [f'v_add_u32 v{pQI}, 32, v{pQI}']
                g[14] = [f'v_add_u32 v{pQF}, 32, v{pQF}']
                g[15] = [f'v_add_u32 v{pEE}, 128, v{pEE}']
                g[16] = [f'v_add_u32 v{pEN}, 128, v{pEN}']
            g[17] = [f's_or_b32 s{sANY[par^1]}, s{sF[par^1]}, s{sF[par^1]+1}'] if not opts.get('noany') else [f's_mov_b32 s{sANY[par^1]}, 0']
            g[19] = ['s_waitcnt lgkmcnt(0)', f'v_and_or_b32 v{BE}, v{R0}, s{sLO}, v{BC}']
            weave(mfma_list(0, 0), trans_list(1), g)
            post(0, par, False)
            pre(1)
        def last_stage1(par):
            weave(None, trans_list(1), {})
            post(0, par, True)
            pre(1)
            for i in range(8):
                a(f'v_rcp_f32 v{PP+i}, v{PP+i}')
            a('s_nop 0')
            post(1, par, True)
        L0 = f'K2_T0{tag}'; E0 = f'K2_E0{tag}'; E1 = f'K2_E1{tag}'; DONE = f'K2_MD{tag}'
        PR = opts.get('prio', 1)
        if PR:
            a(f's_add_u32 s{t0}, s{sCNT}, 1')
            a(f's_lshr_b32 s{t0}, s{t0}, {2 if PR == 1 else 1}')
            if PR == 3: a(f's_lshr_b32 s{t0}, s{t0}, 0')
            a(f's_lshl_b32 s{t0}, s{t0}, 1')
            a(f's_sub_u32 s{sSWAP}, s{sCNT}, s{t0}')
            a(f's_cmp_ge_u32 s{sW}, 4')
            a(f's_cbranch_scc0 K2_PR0{tag}')
            a('s_setprio 1')
            a.label(f'K2_PR0{tag}')
        a.label(L0)
        if PR:
            a(f's_cmp_eq_u32 s{sCNT}, s{sSWAP}')
            a(f's_cbranch_scc1 K2_SWP{tag}')
            a.label(f'K2_SWB{tag}')
        stage0(0)
        a(f's_cbranch_scc1 {E0}')
        stage1(0)
        stage0(1)
        a(f's_cbranch_scc1 {E1}')
        stage1(1)
        a(f's_branch {L0}')
        a.label(E0)
        last_stage1(0)
        a(f's_branch {DONE}')
        a.label(E1)
        last_stage1(1)
        a(f's_branch {DONE}')
        if PR:
            a.label(f'K2_SWP{tag}')
            a(f's_cmp_ge_u32 s{sW}, 4')
            a(f's_cbranch_scc1 K2_SW0{tag}')
            a('s_setprio 1')
            a(f's_branch K2_SWB{tag}')
            a.label(f'K2_SW0{tag}')
            a('s_setprio 0')
            a(f's_branch K2_SWB{tag}')
        for (fl, back, cc, par, j) in flush_blocks:
            a.label(fl)
            flush_body(cc, par, j)
            a(f's_branch {back}')
        a.label(DONE)
        if PR: a('s_setprio 0')

    def pipeline_fill():
        q0 = QA[0]
        a(f'ds_read2_b32 v[{q0}:{q0+1}], v{pQI} offset0:0 offset1:1')
        a(f'ds_read2_b32 v[{q0+2}:{q0+3}], v{pQI} offset0:2 offset1:3')
        a(f'ds_read_b32 v{QF}, v{pQF} offset:{L_QI}')
        a(f'ds_read_b32 v{EE}, v{pEE} offset:{L_ENT}')
        a(f'ds_read_b128 v[{EN}:{EN+3}], v{pEN} offset:{L_ENT + 64}')
        for i in range(2):
            a(f'v_mov_b64 v[{DEN+2*i}:{DEN+2*i+1}], 0')
            a(f'v_mov_b64 v[{NUM+2*i}:{NUM+2*i+1}], 0')
        for i in range(8):
            a(f'v_mov_b32 v{PP+i}, 1.0')
        for i in range(4):
            a(f'v_mov_b64 v[{TT_+2*i}:{TT_+2*i+1}], 0')
            a(f'v_mov_b64 v[{ZZ+2*i}:{ZZ+2*i+1}], 0')
        a(f's_mov_b32 s{sANY[1]}, 0')
        a('s_waitcnt lgkmcnt(0)')
        for q in range(4):
            a(f'v_mad_u32_u24 v{q0+q}, v{q0+q}, 1, v{C4}')
        a(f'ds_read_b32 v{R0}, v{q0} offset:512')
        for q in range(1, 4):
            a(f'ds_read_b32 v{BE+q}, v{q0+q} offset:512')
        a(f'v_perm_b32 v{AE[0]}, v{EE}, v{AE[0]}, v{SEL[0]}')
        a(f'v_perm_b32 v{AE[1]}, v{EE}, v{AE[1]}, v{SEL[1]}')
        a(f'v_cmp_gt_i32 s[{sF[0]}:{sF[0]+1}], 0, v{QF}')
        for ins in dma_addr(): a(ins)
        stamp(21)
        a('s_waitcnt vmcnt(0)')
        stamp(22)
        for kp in range(4):
            a(f'ds_read_b128 v[{AX+4*kp}:{AX+4*kp+3}], v{RA+kp}')
        a(f's_or_b32 s{sANY[0]}, s{sF[0]}, s{sF[0]+1}')
        a('s_waitcnt lgkmcnt(0)')
        a(f'v_and_or_b32 v{BE}, v{R0}, s{sLO}, v{BC}')
        for ins in dma_issue(): a(ins)
        a(f'ds_read_b128 v[{EN}:{EN+3}], v{pEN} offset:{L_ENT + 128}')
        Gs = f'v[{GA}:{GA+15}]'; Hs = f'v[{HA}:{HA+15}]'
        for kp in range(4):
            a(f'v_mfma_f32_32x32x16_bf16 {Hs}, v[{AX+4*kp}:{AX+4*kp+3}], v[{WV+4*kp}:{WV+4*kp+3}], {"0" if kp == 0 else Hs}')
            a(f'v_mfma_f32_32x32x16_bf16 {Gs}, v[{AX+4*kp}:{AX+4*kp+3}], v[{WB+4*kp}:{WB+4*kp+3}], {"0" if kp == 0 else Gs}')
        a(f'v_mfma_f32_32x32x16_bf16 {Gs}, v[{AE[0]}:{AE[0]+3}], v[{BE}:{BE+3}], {Gs}')
        a('s_waitcnt lgkmcnt(0)')
        a('s_nop 7')
        a('s_nop 3')
    def forced_flags():
        a(f's_sub_u32 s{t1}, s{sL}, 1')
        a(f's_lshl_b32 s{t1}, s{t1}, 2')
        a(f'v_add_u32 v{tB}, s{t1}, v{pQI}')
        a(f'v_mov_b32 v{tA}, 0x80000000')
        a('s_mov_b32 exec_lo, 1')
        a('s_mov_b32 exec_hi, 1')
        a(f'ds_or_b32 v{tB}, v{tA}')
        a('s_mov_b64 exec, -1')

    stamp(2)
    a(f's_mov_b64 exec, s[{sSV2}:{sSV2+1}]')
    a(f'v_mov_b32 v{tD}, {L_CNT + 127*4}')
    a(f'v_mov_b32 v{tE}, 1')
    a(f'ds_write_b32 v{tD}, v{tE}')
    a('s_mov_b64 exec, -1')
    gemm_issue()
    stamp(28)
    gemm_mid()
    gemm_mid2()
    stamp(29)
    a(f's_cmp_lg_u32 s{sW}, 0')
    a('s_cbranch_scc1 K2_NOCI')
    a(f'v_mul_u32_u24 v{tA}, {2*ROWB}, v{vLANE}')
    a(f'v_mov_b32 v{tB}, {L_ZERO}')
    a(f'v_add_u32 v{tA}, {L_ACC}, v{tA}')
    a(f's_mov_b32 exec_hi, {(1 << (MAXN // 2 - 32)) - 1}')
    a(f'ds_write_b32 v{tA}, v{tB} offset:768')
    a(f'ds_write_b32 v{tA}, v{tB} offset:{768 + ROWB}')
    a('s_mov_b64 exec, -1')
    a.label('K2_NOCI')
    gemm_store('F')
    stamp(3)
    a('s_waitcnt vmcnt(0)')
    stamp(23)
    hist()
    a('s_waitcnt lgkmcnt(0)')
    stamp(24)
    if opts.get('proprio') == 1: a('s_setprio 0')
    a('s_barrier')
    stamp(4)
    scan_nodes('F')
    a(f'v_readlane_b32 s{t0}, v{TQ+1}, 63')
    a(f's_lshl_b32 s{t1}, s{sL}, 2')
    a(f'v_cmp_lt_u32 vcc, s{t1}, v{tB}')
    a(f's_cmp_lg_u32 s{t0}, 0')
    a('s_cbranch_scc1 K2_SLOW')
    a(f's_cmp_gt_u32 s{sL}, {(ENT_QUADS - 8) // NSTREAM}')
    a('s_cbranch_scc1 K2_SLOW')
    a('s_cbranch_vccnz K2_SLOW')
    stamp(15)
    scatter()
    stamp(16)
    a('s_waitcnt lgkmcnt(0)')
    a('s_barrier')
    stamp(5)
    a(f's_cmp_eq_u32 s{sL}, 0')
    a('s_cbranch_scc1 K2_NOL')
    setup_ptrs()
    a('s_waitcnt lgkmcnt(0)')
    for ins in dma_addr(): a(ins)
    for ins in dma_issue(): a(ins)
    a.label('K2_NOL')
    stamp(17)
    a(f'v_cmp_gt_u32 vcc, {MAXN // 2}, v{vLANE}')
    a(f'v_lshl_or_b32 v{tB}, v{vLANE}, 1, 1')
    a(f'v_cmp_le_u32 s[{sSV}:{sSV+1}], s{sNN}, v{tB}')
    a(f'v_mov_b32 v{tC}, 1')
    a('s_nop 0')
    a(f'v_cndmask_b32 v{tB}, v{TQ+1}, v{tC}, s[{sSV}:{sSV+1}]')
    a(f'v_min_u32 v{tB}, v{TQ}, v{tB}')
    a(f'v_cmp_eq_u32 s[{sSV}:{sSV+1}], 0, v{tB}')
    a(f's_and_b64 s[{sSV}:{sSV+1}], s[{sSV}:{sSV+1}], vcc')
    a('s_cbranch_scc1 K2_ZROWS')
    a.label('K2_ZBACK')
    qi_fill('F', True)
    stamp(18)
    w_frags()
    consts()
    a('s_waitcnt lgkmcnt(0)')
    stamp(19)
    if opts.get('proprio') == 2: a('s_setprio 0')
    a('s_barrier')
    stamp(20)
    a(f's_cmp_eq_u32 s{sL}, 0')
    a('s_cbranch_scc1 K2_EPI')
    pipeline_fill()
    stamp(6)
    if opts.get('dbgtime'):
        a(f's_memrealtime s[{t2}:{t3}]')
        a('s_waitcnt lgkmcnt(0)')
        a(f's_mov_b32 s{sT1}, s{t2}')
    if STAMP:
        a(f's_memrealtime s[{t2}:{t3}]')
        a('s_waitcnt lgkmcnt(0)')
        a(f'v_writelane_b32 v{vST}, s{t2}, 13')
    if opts.get('half'):
        a(f's_cmp_ge_u32 s{sW}, 4')
        a('s_cbranch_scc1 K2_MDF')
    main_loop('F', False)
    stamp(7)
    if opts.get('dbgtime'):
        a(f's_memrealtime s[{t2}:{t3}]')
        a('s_waitcnt lgkmcnt(0)')
        a(f's_mov_b32 s{sT2}, s{t2}')
    if STAMP:
        a(f's_memrealtime s[{t2}:{t3}]')
        a('s_waitcnt lgkmcnt(0)')
        a(f'v_writelane_b32 v{vST}, s{t2}, 14')
    a.label('K2_EPI')
    e0 = 4
    XV = [e0, e0 + 4]; DN = e0 + 8; NM = e0 + 16; UU = e0 + 24; CD = e0 + 28; CN = e0 + 36; O = e0 + 44
    AD = e0 + 48; GO = [e0 + 49, e0 + 50]; T1 = e0 + 51; T2 = e0 + 52; CP = e0 + 53; ND = e0 + 54; OC = [e0 + 55, e0 + 56]; ADR = [e0 + 48, e0 + 57]
    def epi_addr(r):
        a(f'v_add_u32 v{T1}, {512*r}, v0') if r else a(f'v_mov_b32 v{T1}, v0')
        a(f'v_lshrrev_b32 v{ND}, 3, v{T1}')
        a(f'v_and_b32 v{T1}, 7, v{T1}')
        a(f'v_lshlrev_b32 v{OC[r]}, 4, v{T1}')
        a(f'v_mad_u32_u24 v{ADR[r]}, v{ND}, s{t0}, v{OC[r]}')
        a(f'v_add_u32 v{ADR[r]}, {L_ACC}, v{ADR[r]}')
        a(f'v_add_u32 v{GO[r]}, s{sNS}, v{ND}')
        a(f'v_lshlrev_b32 v{GO[r]}, 7, v{GO[r]}')
        a(f'v_lshl_add_u32 v{GO[r]}, v{T1}, 3, v{GO[r]}')
    def epi_body(r, carry):
        ad = ADR[r]; xv = XV[r]
        if carry:
            a(f'v_sub_u32 v{T2}, v{ad}, v{OC[r]}')
            a(f'ds_read_b32 v{CP}, v{T2} offset:768')
        a(f'ds_read_b128 v[{DN}:{DN+3}], v{ad}')
        a(f'ds_read_b128 v[{DN+4}:{DN+7}], v{ad} offset:128')
        a(f'ds_read_b128 v[{NM}:{NM+3}], v{ad} offset:256')
        a(f'ds_read_b128 v[{NM+4}:{NM+7}], v{ad} offset:384')
        a(f'ds_read_b128 v[{UU}:{UU+3}], v{ad} offset:640')
        if carry:
            a('s_waitcnt lgkmcnt(5)')
            a(f'v_add_u32 v{T2}, v{CP}, v{OC[r]}')
            a(f'ds_read_b128 v[{CD}:{CD+3}], v{T2}')
            a(f'ds_read_b128 v[{CD+4}:{CD+7}], v{T2} offset:128')
            a(f'ds_read_b128 v[{CN}:{CN+3}], v{T2} offset:256')
            a(f'ds_read_b128 v[{CN+4}:{CN+7}], v{T2} offset:384')
        a('s_waitcnt lgkmcnt(0)')
        if carry:
            for i in range(0, 8, 2):
                a(f'v_pk_add_f32 v[{DN+i}:{DN+i+1}], v[{DN+i}:{DN+i+1}], v[{CD+i}:{CD+i+1}]')
                a(f'v_pk_add_f32 v[{NM+i}:{NM+i+1}], v[{NM+i}:{NM+i+1}], v[{CN+i}:{CN+i+1}]')
        for i in range(0, 8, 2):
            a(f'v_pk_add_f32 v[{DN+i}:{DN+i+1}], v[{DN+i}:{DN+i+1}], s[{sC}:{sC+1}]')
        for i in range(8):
            a(f'v_rcp_f32 v{DN+i}, v{DN+i}')
        for i in range(4):
            a(f'v_lshlrev_b32 v{CD+i}, 16, v{UU+i}')
            a(f'v_and_b32 v{CD+4+i}, s{sHI}, v{UU+i}')
        for i in range(0, 8, 2):
            a(f'v_pk_fma_f32 v[{NM+i}:{NM+i+1}], v[{NM+i}:{NM+i+1}], v[{DN+i}:{DN+i+1}], v[{CD+i}:{CD+i+1}]')
        a(f's_waitcnt vmcnt({2 if r == 0 else 0})') if True else None
        for i in range(8):
            a(f'v_max_f32 v{NM+i}, 0, v{NM+i}')
        for i in range(4):
            a(f'v_lshlrev_b32 v{CD+2*i}, 16, v{xv+i}')
            a(f'v_and_b32 v{CD+2*i+1}, s{sHI}, v{xv+i}')
        for i in range(0, 8, 2):
            a(f'v_pk_add_f32 v[{NM+i}:{NM+i+1}], v[{NM+i}:{NM+i+1}], v[{CD+i}:{CD+i+1}]')
        for i in range(4):
            a(f'v_cvt_pk_bf16_f32 v{O+i}, v{NM+2*i}, v{NM+2*i+1}')
        a(f'buffer_store_dwordx2 v[{O}:{O+1}], v{GO[r]}, s[{rO}:{rO+3}], 0 offen')
        a(f'buffer_store_dwordx2 v[{O+2}:{O+3}], v{GO[r]}, s[{rO}:{rO+3}], 0 offen offset:64')
    def epilogue(tag, carry):
        srd(a, rO, sOUT, N * 128)
        srd(a, rF, sX, N * 128)
        a(f's_mov_b32 s{t0}, {ROWB}')
        a(f's_mov_b32 s{sC}, 0x{EPS_SCALED:x}')
        a(f's_mov_b32 s{sC+1}, 0x{EPS_SCALED:x}')
        a(f's_mov_b32 s{sHI}, 0xffff0000')
        a('s_waitcnt vmcnt(0)')
        epi_addr(0)
        a(f'buffer_load_dwordx2 v[{XV[0]}:{XV[0]+1}], v{GO[0]}, s[{rF}:{rF+3}], 0 offen')
        a(f'buffer_load_dwordx2 v[{XV[0]+2}:{XV[0]+3}], v{GO[0]}, s[{rF}:{rF+3}], 0 offen offset:64')
        epi_addr(1)
        a(f'v_cmp_gt_u32 s[{sSV}:{sSV+1}], s{sNN}, v{ND}')
        a(f'buffer_load_dwordx2 v[{XV[1]}:{XV[1]+1}], v{GO[1]}, s[{rF}:{rF+3}], 0 offen')
        a(f'buffer_load_dwordx2 v[{XV[1]+2}:{XV[1]+3}], v{GO[1]}, s[{rF}:{rF+3}], 0 offen offset:64')
        a('s_waitcnt lgkmcnt(0)')
        a('s_barrier')
        if STAMP and tag == 'F': stamp(8)
        epi_body(0, carry)
        a(f's_mov_b64 exec, s[{sSV}:{sSV+1}]')
        a(f's_cbranch_execz K2_FIN{tag}')
        epi_body(1, carry)
        a.label(f'K2_FIN{tag}')
    epilogue('F', True)
    if opts.get('dbgtime'):
        a('s_mov_b64 exec, -1')
        a('s_waitcnt vmcnt(0)')
        a(f's_memrealtime s[{t2}:{t3}]')
        a(f's_cmp_lg_u32 s{sW}, 7')
        a('s_cbranch_scc1 K2_DBGX')
        a('s_and_b32 s3, s2, 31')
        a('s_cmp_lg_u32 s3, 0')
        a('s_cbranch_scc1 K2_DBGX')
        a('s_lshr_b32 s3, s2, 5')
        a('s_cmp_ge_u32 s3, 2')
        a('s_cbranch_scc1 K2_DBGX')
        a(f's_lshl_b32 s{t0}, s3, 2')
        a(f's_add_u32 s{t0}, s{t0}, 0x1200000')
        a(f'v_mov_b32 v4, s{t0}')
        a(f'global_load_dword v5, v4, s[{sWS}:{sWS+1}]')
        a(f'global_load_dword v6, v4, s[{sWS}:{sWS+1}] offset:256')
        a('s_waitcnt vmcnt(0) lgkmcnt(0)')
        a(f'v_sub_u32 v8, v6, v5')
        a(f'v_sub_u32 v9, s{sT0}, v5')
        a(f'v_sub_u32 v10, s{sT1}, v5')
        a(f'v_sub_u32 v11, s{sT2}, v5')
        a(f'v_sub_u32 v12, s{t2}, v5')
        a('s_lshl_b32 s3, s3, 5')
        a('v_mov_b32 v4, s3')
        a('s_mov_b64 exec, 1')
        a(f'global_store_dwordx4 v4, v[8:11], s[{sDBG}:{sDBG+1}]')
        a(f'global_store_dword v4, v12, s[{sDBG}:{sDBG+1}] offset:16')
        a.label('K2_DBGX')
    if STAMP:
        a('s_mov_b64 exec, -1')
        a('s_waitcnt vmcnt(0)')
        stamp(9)
        a(f's_memrealtime s[{t2}:{t3}]')
        a('s_waitcnt lgkmcnt(0)')
        a(f'v_writelane_b32 v{vST}, s{t2}, 12')
        a(f's_mul_i32 s{t0}, s2, {NW}')
        a(f's_add_u32 s{t0}, s{t0}, s{sW}')
        a(f's_lshl_b32 s{t0}, s{t0}, 8')
        a(f's_add_u32 s{t0}, s{t0}, 0x1000000')
        srd_off(a, rT, sWS, f's{t0}', 256)
        a(f'v_writelane_b32 v{vST}, s{sL}, 10')
        a(f'v_lshlrev_b32 v4, 2, v{vLANE}')
        a(f'buffer_store_dword v{vST}, v4, s[{rT}:{rT+3}], 0 offen')
    a('s_endpgm')
    a.label('K2_ZROWS')
    a(f's_mov_b64 exec, s[{sSV}:{sSV+1}]')
    for i in range(4):
        a(f'v_mov_b32 v{TR+i}, 0')
    for nd in range(2):
        a(f'v_cmp_eq_u32 vcc, 0, v{TQ+nd}')
        a(f's_and_b64 exec, vcc, s[{sSV}:{sSV+1}]')
        for k in range(32):
            a(f'ds_write_b128 v{nROW0}, v[{TR}:{TR+3}] offset:{nd*ROWB + 16*k}')
        a(f's_mov_b64 exec, s[{sSV}:{sSV+1}]')
    a('s_mov_b64 exec, -1')
    a('s_branch K2_ZBACK')

    a.label('K2_SLOW')
    w_frags()
    consts()
    a('s_waitcnt vmcnt(0) lgkmcnt(0)')
    a('s_barrier')
    a(f's_lshl_b32 s{t1}, s2, 10')
    a(f's_add_u32 s{t1}, s{t1}, {WS_TAB2}')
    srd_off(a, rT, sWS, f's{t1}', 1024)
    a(f'v_lshlrev_b32 v{tA}, 4, v{vLANE}')
    a(f'buffer_load_dwordx4 v[{TQ}:{TQ+3}], v{tA}, s[{rT}:{rT+3}], 0 offen')
    a('s_waitcnt vmcnt(0)')
    a(f'v_max_u32 v{tE}, v{TQ}, v{TQ+1}')
    a(f'v_max3_u32 v{tE}, v{tE}, v{TQ+2}, v{TQ+3}')
    wave_scan(a, 'v_max_u32', tE)
    a('s_nop 0')
    a(f'v_readlane_b32 s{t1}, v{tE}, 63')
    a(f's_add_u32 s{t1}, s{t1}, {WSLOW-1}')
    a(f's_mul_i32 s{t1}, s{t1}, 5042')
    a(f's_lshr_b32 s{sNP}, s{t1}, 16')
    a(f's_mov_b32 s{sP}, 0')
    for i in range(4):
        a(f'v_mov_b32 v{TR+i}, 0')
    a(f'v_lshrrev_b32 v{tA}, 5, v0')
    a(f'v_mul_u32_u24 v{tA}, {ROWB}, v{tA}')
    a(f'v_and_b32 v{tB}, 31, v{vLANE}')
    a(f'v_lshl_add_u32 v{tA}, v{tB}, 4, v{tA}')
    a(f'v_add_u32 v{tA}, {L_ACC}, v{tA}')
    for i in range(6):
        a(f'ds_write_b128 v{tA}, v[{TR}:{TR+3}]')
        a(f'v_add_u32 v{tA}, {16*ROWB}, v{tA}')
    a(f'v_cmp_gt_u32 vcc, 64, v0')
    a(f's_and_saveexec_b64 s[{sSV}:{sSV+1}], vcc')
    a(f'ds_write_b128 v{tA}, v[{TR}:{TR+3}]')
    a(f's_mov_b64 exec, s[{sSV}:{sSV+1}]')
    a.label('K2_SPASS')
    a(f's_lshl_b32 s{t1}, s2, 10')
    a(f's_add_u32 s{t1}, s{t1}, {WS_TAB}')
    srd_off(a, rT, sWS, f's{t1}', WS_TAB2 - WS_TAB + 1024)
    a(f'v_lshrrev_b32 v{tD}, 4, v{vLANE}')
    a(f'v_lshlrev_b32 v{tD}, 5, v{tD}')
    a(f's_lshl_b32 s{t0}, s{sW}, 7')
    a(f'v_add_u32 v{tD}, s{t0}, v{tD}')
    a(f's_mov_b32 s{t0}, {WS_TAB2 - WS_TAB}')
    for i in range(2):
        a(f'buffer_load_dwordx4 v[{SG+4*i}:{SG+4*i+3}], v{tD}, s[{rT}:{rT+3}], 0 offen offset:{16*i}')
    for i in range(2):
        a(f'buffer_load_dwordx4 v[{AX+4*i}:{AX+4*i+3}], v{tD}, s[{rT}:{rT+3}], s{t0} offen offset:{16*i}')
    a(f'v_and_b32 v{tC}, 15, v{vLANE}')
    a(f's_mul_i32 s{t0}, s{sP}, {WSLOW}')
    a(f'v_cmp_gt_u32 vcc, {WSLOW}, v{tC}')
    a(f'v_add_u32 v{tC}, s{t0}, v{tC}')
    a(f'v_lshlrev_b32 v{tB}, 3, v{tC}')
    a(f'v_mov_b32 v{tD}, 0x10000')
    a(f'v_cndmask_b32 v{tC}, v{tD}, v{tC}, vcc')
    a('s_waitcnt vmcnt(0)')
    for it in range(8):
        a(f'v_cmp_gt_u32 s[{MK+2*it}:{MK+2*it+1}], v{AX+it}, v{tC}')
        a(f's_mov_b64 s[{MK+16+2*it}:{MK+16+2*it+1}], 0')
    rec_loads(tB, 8)
    lds_init()
    a('s_waitcnt vmcnt(0) lgkmcnt(0)')
    a('s_barrier')
    hist()
    a('s_waitcnt lgkmcnt(0)')
    a('s_barrier')
    scan_nodes('S')
    qi_fill('S', False)
    scatter()
    a('s_waitcnt lgkmcnt(0)')
    a('s_barrier')
    a(f's_cmp_eq_u32 s{sL}, 0')
    a('s_cbranch_scc1 K2_SNEXT')
    setup_ptrs()
    a('s_waitcnt lgkmcnt(0)')
    for ins in dma_addr(): a(ins)
    for ins in dma_issue(): a(ins)
    forced_flags()
    pipeline_fill()
    main_loop('S', True)
    a.label('K2_SNEXT')
    a('s_waitcnt vmcnt(0) lgkmcnt(0)')
    a('s_barrier')
    a(f's_add_u32 s{sP}, s{sP}, 1')
    a(f's_cmp_lt_u32 s{sP}, s{sNP}')
    a('s_cbranch_scc1 K2_SPASS')
    epilogue('S', False)
    a.label('K2_END')
    a('s_endpgm')
    return nvgpr, nsgpr

def kd(name, nv, ns):
    acc = (nv + 3) // 4 * 4
    return f'''.amdhsa_kernel {name}
  .amdhsa_next_free_vgpr {nv}
  .amdhsa_next_free_sgpr {ns}
  .amdhsa_accum_offset {acc}
  .amdhsa_group_segment_fixed_size 0
  .amdhsa_kernarg_size 96
  .amdhsa_user_sgpr_count 2
  .amdhsa_user_sgpr_kernarg_segment_ptr 1
  .amdhsa_system_sgpr_workgroup_id_x 1
  .amdhsa_float_denorm_mode_32 3
.end_amdhsa_kernel
'''

def build(opts=None):
    opts = opts or {}
    a = Asm()
    gen_k1(a, opts)
    nv, ns = gen_k2(a, opts)
    out = HEADER
    out += f'; @launch kernel=gs_part_kernel grid=(256,1,1) block=({K1_THREADS},1,1) lds={LDS_K1}\n'
    out += f'; @launch kernel=gs_main_kernel grid=(256,1,1) block=({NW*64},1,1) lds={LDS_MAIN}\n'
    out += '.amdgcn_target "amdgcn-amd-amdhsa--gfx950"\n.text\n'
    out += a.text()
    out += '.section .rodata,"a"\n.p2align 6\n'
    out += kd('gs_part_kernel', 60, 60)
    out += '.p2align 6\n'
    out += kd('gs_main_kernel', nv, ns)
    return out

if __name__ == '__main__':
    path = sys.argv[1] if len(sys.argv) > 1 else 'gather_scatter__edge_featured_mpnn_gatedgcn__graph.s'
    opts = {}
    for o in sys.argv[2:]:
        k, _, val = o.partition('=')
        opts[k] = int(val) if val else True
    open(path, 'w').write(build(opts))
    print('written', path, 'LDS', LDS_MAIN)
```

```python
import sys, os, struct
sys.path.insert(0, os.path.dirname(__file__))
from asmlib import *

N = 25000; E = 800000
NBK = 256
CH = 3136
RECB = CH * 8
WS_TAB = 0x700000
WS_TAB2 = 0x740000
WS_FRAG = 0x780000
MAGIC_B = 43980466
LOG2E = 0xBFB8AA3B
SBITS = 50
C_SCALE = (127 - SBITS) << 23
EPS_SCALED = 0x4E8637BD
assert abs(struct.unpack('<f', struct.pack('<I', EPS_SCALED))[0] / (1e-6 * 2.0**50) - 1) < 1e-6

NW = 8
NSTREAM = 16
NIT = 16
CAP = 3456
WSLOW = 13
ROWB = 784
MAXN = 98
ENT_QUADS = 960
VROWB = 640
L_CNT = 0
L_ZERO = 512
L_TAB = 1024
L_QI = 1536
L_ENT = L_QI + ENT_QUADS * 4
L_ACC = L_ENT + ENT_QUADS * 16
L_VIRT = L_ACC + MAXN * ROWB
L_WST = L_VIRT + NSTREAM * VROWB
L_WST = (L_WST + 255) // 256 * 256
L_DMA = L_WST + 16384
LDS_MAIN = L_DMA + NW * 4096
assert LDS_MAIN <= 163840, LDS_MAIN
assert L_ACC % 16 == 0 and L_VIRT % 16 == 0

K1_THREADS = 896
K1_HIST = 0
K1_STAGE = 1024
LDS_K1 = K1_STAGE + RECB

HEADER = open(os.path.join(os.path.dirname(__file__), 'header.txt')).read()

def srd(a, sreg, ptr, size):
    a(f's_mov_b32 s{sreg}, s{ptr}')
    a(f's_and_b32 s{sreg+1}, s{ptr+1}, 0xffff')
    a(f's_mov_b32 s{sreg+2}, {size}')
    a(f's_mov_b32 s{sreg+3}, 0x20000')

def srd_off(a, sreg, ptr, off, size):
    a(f's_add_u32 s{sreg}, s{ptr}, {off}')
    a(f's_addc_u32 s{sreg+1}, s{ptr+1}, 0')
    a(f's_and_b32 s{sreg+1}, s{sreg+1}, 0xffff')
    a(f's_mov_b32 s{sreg+2}, {size}')
    a(f's_mov_b32 s{sreg+3}, 0x20000')

def wave_scan(a, op, r):
    for sh in (1, 2, 4, 8):
        a('s_nop 1')
        a(f'{op}_dpp v{r}, v{r}, v{r} row_shr:{sh} row_mask:0xf bank_mask:0xf')
    a('s_nop 1')
    a(f'{op}_dpp v{r}, v{r}, v{r} row_bcast:15 row_mask:0xa bank_mask:0xf')
    a('s_nop 1')
    a(f'{op}_dpp v{r}, v{r}, v{r} row_bcast:31 row_mask:0xc bank_mask:0xf')

def wave_scan2(a, op1, r1, op2, r2):
    steps = [f'row_shr:{sh} row_mask:0xf bank_mask:0xf' for sh in (1, 2, 4, 8)] + \
            ['row_bcast:15 row_mask:0xa bank_mask:0xf', 'row_bcast:31 row_mask:0xc bank_mask:0xf']
    a('s_nop 1')
    for st in steps:
        a(f'{op1}_dpp v{r1}, v{r1}, v{r1} {st}')
        a(f'{op2}_dpp v{r2}, v{r2}, v{r2} {st}')
        a('s_nop 0')

def gen_k1(a, opts):
    a.raw('.p2align 8')
    a.raw('.globl gs_part_kernel')
    a.raw('.type gs_part_kernel,@function')
    a.label('gs_part_kernel')
    a('s_cmp_ge_u32 s2, 256')
    a('s_cbranch_scc1 K1_END')
    a('s_load_dwordx4 s[4:7], s[0:1], 8')
    a('s_load_dwordx2 s[8:9], s[0:1], 24')
    a('s_load_dwordx2 s[10:11], s[0:1], 88')
    a('s_load_dwordx2 s[44:45], s[0:1], 0')
    if opts.get('dbgtime'):
        a('s_memrealtime s[54:55]')
        a('s_waitcnt lgkmcnt(0)')
        a('s_cmp_ge_u32 s2, 8')
        a('s_cbranch_scc1 K1_NODBG')
        a('v_mov_b32 v20, s54')
        a('s_lshl_b32 s56, s2, 2')
        a('s_add_u32 s56, s56, 0x1200000')
        a('v_mov_b32 v22, s56')
        a('v_cmp_eq_u32 vcc, 0, v0')
        a('s_and_saveexec_b64 s[58:59], vcc')
        a('global_store_dword v22, v20, s[10:11]')
        a('s_mov_b64 exec, s[58:59]')
        a.label('K1_NODBG')
    a('v_lshrrev_b32 v1, 6, v0')
    a('s_mul_i32 s12, s2, %d' % (CH * 4))
    a('v_readfirstlane_b32 s3, v1')
    a('s_lshr_b32 s13, s12, 1')
    a('v_lshlrev_b32 v2, 4, v0')
    a('v_add_u32 v2, s12, v2')
    a('s_cmp_eq_u32 s3, 13')
    a('s_cbranch_scc1 K1_FRAG')
    a('v_lshlrev_b32 v3, 3, v0')
    a('v_add_u32 v3, s13, v3')
    a('s_waitcnt lgkmcnt(0)')
    srd(a, 20, 8, E * 4)
    a('buffer_load_dwordx4 v[4:7], v2, s[20:23], 0 offen')
    srd(a, 24, 6, E * 4)
    a('buffer_load_dwordx4 v[8:11], v2, s[24:27], 0 offen')
    srd(a, 28, 4, E * 2)
    a('buffer_load_dwordx2 v[12:13], v3, s[28:31], 0 offen')
    if opts.get('xpre', 1):
        a('s_and_b32 s46, s2, 7')
        a('s_lshr_b32 s47, s2, 3')
        a('s_lshl_b32 s46, s46, 5')
        a('s_add_u32 s46, s46, s47')
        a('s_mul_i32 s46, s46, 3125')
        a('s_add_u32 s46, s46, 31')
        a('s_lshr_b32 s46, s46, 5')
        a('s_lshl_b32 s46, s46, 7')
        a('s_and_b32 s45, s45, 0xffff')
        a('s_mov_b32 s48, s44')
        a('s_mov_b32 s49, s45')
        a('s_mov_b32 s50, %d' % (N * 128))
        a('s_mov_b32 s51, 0x20000')
        a('v_lshlrev_b32 v40, 4, v0')
        a('buffer_load_dwordx4 v[56:59], v40, s[48:51], s46 offen')
    a('v_lshlrev_b32 v14, 2, v0')
    a('v_mov_b32 v15, 0')
    a('v_cmp_gt_u32 vcc, 256, v0')
    a('s_and_saveexec_b64 s[18:19], vcc')
    a('ds_write_b32 v14, v15 offset:%d' % K1_HIST)
    a('s_mov_b64 exec, s[18:19]')
    a('v_cmp_gt_u32 vcc, %d, v0' % (CH // 4))
    a('s_mov_b32 s14, %d' % (E * 4))
    a('v_cmp_gt_u32 s[16:17], s14, v2')
    a('s_and_b64 s[16:17], s[16:17], vcc')
    a('s_mul_i32 s15, s2, %d' % RECB)
    srd_off(a, 32, 10, 's15', RECB)
    srd_off(a, 36, 10, WS_TAB, 0x80000)
    a('s_mov_b32 s40, %d' % MAGIC_B)
    a('s_movk_i32 s41, 3125')
    a('v_mov_b32 v15, 1')
    a('s_waitcnt lgkmcnt(0)')
    a('s_barrier')
    a('s_mov_b64 exec, s[16:17]')
    a('s_cbranch_execz K1_NOEDGE1')
    a('s_waitcnt vmcnt(%d)' % (3 if opts.get('xpre', 1) else 2))
    for k in range(4):
        a(f'v_mul_hi_u32 v{16+k}, v{4+k}, s40')
    for k in range(4):
        a(f'v_lshlrev_b32 v{20+k}, 2, v{16+k}')
        a(f'ds_add_rtn_u32 v{24+k}, v{20+k}, v15 offset:{K1_HIST}')
    for k in range(4):
        a(f'v_mul_u32_u24 v{28+k}, s41, v{16+k}')
        a(f'v_add_u32 v{28+k}, 31, v{28+k}')
        a(f'v_lshrrev_b32 v{28+k}, 5, v{28+k}')
        a(f'v_sub_u32 v{28+k}, v{4+k}, v{28+k}')
        a(f'v_lshlrev_b32 v{33+2*k}, 2, v{28+k}')
    a('s_waitcnt vmcnt(%d)' % (1 if opts.get('xpre', 1) else 0))
    a('s_mov_b32 s42, 0xffff0000')
    a('v_lshl_or_b32 v32, v12, 16, v8')
    a('v_and_or_b32 v34, v12, s42, v9')
    a('v_lshl_or_b32 v36, v13, 16, v10')
    a('v_and_or_b32 v38, v13, s42, v11')
    a.label('K1_NOEDGE1')
    a('s_mov_b64 exec, -1')
    a('s_waitcnt lgkmcnt(0)')
    a('s_barrier')
    a('s_cmp_lg_u32 s3, 0')
    a('s_cbranch_scc1 K1_SCANDONE')
    a('v_lshlrev_b32 v40, 4, v0')
    a('ds_read_b128 v[44:47], v40 offset:%d' % K1_HIST)
    a('v_lshlrev_b32 v41, 12, v0')
    a('s_lshl_b32 s15, s2, 2')
    a('v_add_u32 v41, s15, v41')
    a('s_waitcnt lgkmcnt(0)')
    a('v_add_u32 v48, v44, v45')
    a('v_add_u32 v49, v48, v46')
    a('v_add_u32 v50, v49, v47')
    a('v_mov_b32 v51, v50')
    wave_scan(a, 'v_add_u32', 51)
    a('v_sub_u32 v52, v51, v50')
    a('v_add_u32 v53, v52, v44')
    a('v_add_u32 v54, v52, v48')
    a('v_add_u32 v55, v52, v49')
    a('ds_write_b128 v40, v[52:55] offset:%d' % K1_HIST)
    a('s_mul_i32 s15, s2, %d' % CH)
    a('s_mov_b32 s43, %d' % (WS_TAB2 - WS_TAB))
    for k in range(4):
        a(f'buffer_store_dword v{44+k}, v41, s[36:39], s43 offen offset:{k*1024}' + (' sc1' if opts.get('tabst', 0) else ''))
        a(f'v_min_u32 v{48+k}, 0xff, v{44+k}')
        a(f'v_add_u32 v{52+k}, s15, v{52+k}')
        a(f'v_lshl_or_b32 v{48+k}, v{48+k}, 24, v{52+k}')
        a(f'buffer_store_dword v{48+k}, v41, s[36:39], 0 offen offset:{k*1024}' + (' sc1' if opts.get('tabst', 0) else ''))
    a.label('K1_SCANDONE')
    a('s_waitcnt lgkmcnt(0)')
    a('s_barrier')
    a('s_mov_b64 exec, s[16:17]')
    a('s_cbranch_execz K1_NOEDGE2')
    for k in range(4):
        a(f'ds_read_b32 v{28+k}, v{20+k} offset:{K1_HIST}')
    for k in range(4):
        a(f's_waitcnt lgkmcnt({3 if k == 0 else 3})')
        a(f'v_add_lshl_u32 v{28+k}, v{28+k}, v{24+k}, 3')
        a(f'ds_write_b64 v{28+k}, v[{32+2*k}:{33+2*k}] offset:{K1_STAGE}')
    a.label('K1_NOEDGE2')
    a('s_mov_b64 exec, -1')
    a('v_lshlrev_b32 v2, 4, v0')
    a('v_add_u32 v3, %d, v2' % (RECB // 2))
    a('v_cmp_gt_u32 vcc, %d, v0' % (CH // 4))
    a('s_waitcnt lgkmcnt(0)')
    a('s_barrier')
    a('s_and_saveexec_b64 s[18:19], vcc')
    a('s_cbranch_execz K1_END')
    a('ds_read_b128 v[4:7], v2 offset:%d' % K1_STAGE)
    a('ds_read_b128 v[8:11], v2 offset:%d' % (K1_STAGE + RECB // 2))
    a('s_waitcnt lgkmcnt(1)')
    sfx = {0: '', 1: ' sc1', 2: ' nt', 3: ' sc0 sc1', 4: ' sc1 nt'}[opts.get('k1st', 1)]
    a('buffer_store_dwordx4 v[4:7], v2, s[32:35], 0 offen' + sfx)
    a('s_waitcnt lgkmcnt(0)')
    a('buffer_store_dwordx4 v[8:11], v3, s[32:35], 0 offen' + sfx)
    if opts.get('dbgtime'):
        a('s_waitcnt vmcnt(0)')
        a('s_memrealtime s[54:55]')
        a('s_waitcnt lgkmcnt(0)')
        a('s_cmp_ge_u32 s2, 8')
        a('s_cbranch_scc1 K1_END')
        a('s_cmp_lg_u32 s3, 0')
        a('s_cbranch_scc1 K1_END')
        a('v_mov_b32 v20, s54')
        a('s_lshl_b32 s56, s2, 2')
        a('s_add_u32 s56, s56, 0x1200100')
        a('v_mov_b32 v22, s56')
        a('s_mov_b64 exec, 1')
        a('global_store_dword v22, v20, s[10:11]')
    a('s_endpgm')
    a.label('K1_FRAG')
    if opts.get('codepre', 0):
        a('s_cmp_lt_u32 s2, 32')
        a('s_cbranch_scc1 K1_FRAG2')
        a('s_cmp_ge_u32 s2, 64')
        a('s_cbranch_scc1 K1_END')
        a('s_getpc_b64 s[12:13]')
        a.label('K1_PCREF')
        a('s_add_u32 s12, s12, gs_main_kernel-K1_PCREF')
        a('s_addc_u32 s13, s13, 0')
        a('v_and_b32 v1, 63, v0')
        a('v_lshlrev_b32 v2, 4, v1')
        for i in range(opts.get('codekb', 20)):
            a(f'global_load_dwordx4 v[4:7], v2, s[12:13]')
            a('v_add_u32 v2, 1024, v2')
        a('s_endpgm')
        a.label('K1_FRAG2')
    a('s_cmp_ge_u32 s2, 32')
    a('s_cbranch_scc1 K1_END')
    a('s_load_dwordx4 s[12:15], s[0:1], 32')
    a('s_load_dwordx4 s[16:19], s[0:1], 56')
    a('s_lshr_b32 s20, s2, 3')
    a('s_waitcnt lgkmcnt(0)')
    a('s_mov_b32 s22, s14')
    a('s_mov_b32 s23, s15')
    a('s_cmp_eq_u32 s20, 1')
    a('s_cselect_b32 s22, s18, s22')
    a('s_cselect_b32 s23, s19, s23')
    a('s_cmp_eq_u32 s20, 2')
    a('s_cselect_b32 s22, s12, s22')
    a('s_cselect_b32 s23, s13, s23')
    a('s_cmp_eq_u32 s20, 3')
    a('s_cselect_b32 s22, s16, s22')
    a('s_cselect_b32 s23, s17, s23')
    srd(a, 24, 22, 64 * 64 * 2)
    srd_off(a, 28, 10, WS_FRAG, 32 * 1024)
    a('s_and_b32 s32, s2, 3')
    a('s_lshr_b32 s33, s2, 2')
    a('s_and_b32 s33, s33, 1')
    a('s_lshl_b32 s32, s32, 11')
    a('s_lshl_b32 s33, s33, 6')
    a('s_add_u32 s32, s32, s33')
    a('v_and_b32 v1, 63, v0')
    a('v_and_b32 v2, 31, v1')
    a('v_lshlrev_b32 v2, 1, v2')
    a('v_lshrrev_b32 v3, 5, v1')
    a('v_lshlrev_b32 v3, 10, v3')
    a('v_add3_u32 v2, v2, v3, s32')
    for i in range(8):
        a(f'buffer_load_ushort v{8+i}, v2, s[24:27], 0 offen offset:{i*128}')
    a('s_mov_b32 s34, 1.0')
    a('s_and_b32 s36, s20, 1')
    a('s_cmp_eq_u32 s36, 0')
    a('s_cselect_b32 s34, 0x%x, s34' % LOG2E)
    a('s_waitcnt vmcnt(0)')
    for i in range(8):
        a(f'v_lshlrev_b32 v{8+i}, 16, v{8+i}')
        a(f'v_mul_f32 v{8+i}, s34, v{8+i}')
    for i in range(4):
        a(f'v_cvt_pk_bf16_f32 v{16+i}, v{8+2*i}, v{9+2*i}')
    a('v_lshlrev_b32 v4, 4, v1')
    a('s_lshl_b32 s35, s2, 10')
    a('v_add_u32 v4, s35, v4')
    a('buffer_store_dwordx4 v[16:19], v4, s[28:31], 0 offen')
    a.label('K1_END')
    a('s_endpgm')

def gen_k2(a, opts):
    STAMP = opts.get('stamp', False)
    vLANE = 1; BC = 2
    WB = 4; WV = 36; AX = 68
    GA = 84; HA = 100; GB = 116; HB = 132
    PP = 148; TT_ = 156; ZZ = 164
    DEN = 172; NUM = 176
    AE = [180, 184]; BE = 188; R0 = 192
    QA = [196, 200]
    EN = 204; RA = 208; CO = 212
    pEN = 216; pEE = 217; pQI = 218; pQF = 219
    C4 = 220; SEL = [221, 222]; EE = 223; QF = 224
    F0 = 225; F1 = 226
    tA = 227; tB = 228; tC = 229; tD = 230; tE = 231; tF = 232; tG = 233; tH = 234; tI = 235
    TQ = 236; TR = 240
    sidA = 244; jA = 245; sidR = 246; iR4 = 247
    vST = 248; GF = 249; GD = 250
    nvgpr = 252
    REC = PP; RK = GB; SG = HB
    G_ = [GA, GB]; H_ = [HA, HB]
    nOFF0 = AE[0]+0 if False else QA[0]; nOFF1 = QA[0]+1; nEND0 = QA[0]+2; nEND1 = QA[0]+3; nROW0 = QA[1]
    S = Regs('s', 3, 102)
    sX = S.alloc('x', 2, 2); sWC = S.alloc('wc', 2, 2); sOUT = S.alloc('out', 2, 2); sWS = S.alloc('ws', 2, 2)
    rX = S.alloc('rX', 4, 4); rT = S.alloc('rT', 4, 4); rR = S.alloc('rR', 4, 4); rF = S.alloc('rF', 4, 4)
    sW = S.alloc('w'); sNS = S.alloc('ns'); sNN = S.alloc('nn')
    sP = S.alloc('pass'); sNP = S.alloc('npass')
    sL = S.alloc('L'); sCNT = S.alloc('cnt'); sREM = S.alloc('rem'); sMAXP = S.alloc('maxp')
    sC = S.alloc('C', 2, 2)
    sF = [S.alloc('F0', 2, 2), S.alloc('F1', 2, 2)]
    sANY = [S.alloc('any0'), S.alloc('any1')]
    s128 = S.alloc('c128'); sLO = S.alloc('lo16'); sHI = S.alloc('hi16')
    t0 = S.alloc('t0'); t1 = S.alloc('t1'); t2 = S.alloc('t2', 1, 2); t3 = S.alloc('t3')
    sSV = S.alloc('sv', 2, 2); sSV2 = S.alloc('sv2', 2, 2)
    sDB = S.alloc('dmabase'); sSWAP = S.alloc('swap')
    sDBG = S.alloc('dbg', 2, 2) if opts.get('dbgtime') else None
    sT0 = S.alloc('dbgt0', 2, 2) if opts.get('dbgtime') else None
    sT1 = S.alloc('dbgt1') if opts.get('dbgtime') else None
    sT2 = S.alloc('dbgt2') if opts.get('dbgtime') else None
    MK = S.alloc('MK', 32, 2)
    rO = rT
    nsgpr = S.hi
    def stamp(i):
        if not STAMP: return
        a(f's_memtime s[{t2}:{t3}]')
        a('s_waitcnt lgkmcnt(0)')
        a(f'v_writelane_b32 v{vST}, s{t2}, {i}')
    XB = 4096

    a.raw('.p2align 8')
    a.raw('.globl gs_main_kernel')
    a.raw('.type gs_main_kernel,@function')
    a.label('gs_main_kernel')
    a('s_cmp_ge_u32 s2, 256')
    a('s_cbranch_scc1 K2_END')
    a(f's_load_dwordx2 s[{sWS}:{sWS+1}], s[0:1], 88')
    a(f's_load_dwordx2 s[{sX}:{sX+1}], s[0:1], 0')
    a(f's_load_dwordx2 s[{sWC}:{sWC+1}], s[0:1], 48')
    a(f's_load_dwordx2 s[{sOUT}:{sOUT+1}], s[0:1], 72')
    a('s_and_b32 s3, s2, 7')
    a('s_lshr_b32 s2, s2, 3')
    a('s_lshl_b32 s3, s3, 5')
    a('s_add_u32 s2, s2, s3')
    if opts.get('dbgtime'):
        a(f's_load_dwordx2 s[{sDBG}:{sDBG+1}], s[0:1], 80')
        a(f's_memrealtime s[{sT0}:{sT0+1}]')
        a('s_waitcnt lgkmcnt(0)')
    if STAMP:
        a(f'v_mov_b32 v{vST}, 0')
    stamp(0)
    if STAMP:
        a(f's_memrealtime s[{t2}:{t3}]')
        a('s_waitcnt lgkmcnt(0)')
        a(f'v_writelane_b32 v{vST}, s{t2}, 11')
    a(f'v_lshrrev_b32 v{tA}, 6, v0')
    a(f'v_and_b32 v{vLANE}, 63, v0')
    a(f'v_readfirstlane_b32 s{sW}, v{tA}')
    a(f'v_lshrrev_b32 v{sidA}, 5, v{vLANE}')
    if opts.get('proprio'):
        a('s_nop 2')
        a(f's_cmp_ge_u32 s{sW}, 4')
        a('s_cbranch_scc0 K2_PP0')
        a('s_setprio 1')
        a.label('K2_PP0')
    a(f's_lshl_b32 s{t1}, s2, 10')
    a(f's_add_u32 s{t1}, s{t1}, {WS_TAB}')
    a(f's_lshl_b32 s{t0}, s{sW}, 1')
    a(f'v_add_u32 v{sidA}, s{t0}, v{sidA}')
    a(f'v_lshrrev_b32 v{tD}, 4, v{vLANE}')
    a(f'v_lshlrev_b32 v{tD}, 5, v{tD}')
    a(f's_lshl_b32 s{t0}, s{sW}, 7')
    a(f'v_add_u32 v{tD}, s{t0}, v{tD}')
    a(f'v_lshlrev_b32 v{tA}, 4, v{vLANE}')
    a('s_waitcnt lgkmcnt(0)')
    srd_off(a, rT, sWS, f's{t1}', 1024)
    for i in range(2):
        a(f'buffer_load_dwordx4 v[{SG+4*i}:{SG+4*i+3}], v{tD}, s[{rT}:{rT+3}], 0 offen offset:{16*i}')
    a(f's_mul_i32 s{t0}, s2, 3125')
    a(f's_add_u32 s{sNS}, s{t0}, 31')
    a(f's_lshr_b32 s{sNS}, s{sNS}, 5')
    a(f's_add_u32 s{t0}, s{t0}, {3125+31}')
    a(f's_lshr_b32 s{t0}, s{t0}, 5')
    a(f's_sub_u32 s{sNN}, s{t0}, s{sNS}')
    a(f's_sub_u32 s{rX}, s{sX}, {XB}')
    a(f's_subb_u32 s{rX+1}, s{sX+1}, 0')
    a(f's_and_b32 s{rX+1}, s{rX+1}, 0xffff')
    a(f's_mov_b32 s{rX+2}, {N*128 + XB}')
    a(f's_mov_b32 s{rX+3}, 0x20000')
    srd_off(a, rF, sWS, WS_FRAG, 32 * 1024)
    a(f's_lshl_b32 s{sDB}, s{sW}, 12')
    a(f's_add_u32 s{sDB}, s{sDB}, {L_DMA}')
    a(f'v_bfe_u32 v{tE}, v{vLANE}, 4, 1')
    a(f'v_and_b32 v{tF}, 7, v{vLANE}')
    a(f'v_xor_b32 v{tE}, v{tE}, v{tF}')
    a(f'v_lshlrev_b32 v{tE}, 4, v{tE}')
    for i in range(4):
        if i: a(f'v_xor_b32 v{tF}, {32*i}, v{tE}')
        a(f'v_add_u32 v{CO+i}, {XB - 1024*i}, v{tF if i else tE}')
    a(f'v_bfe_u32 v{jA}, v{vLANE}, 3, 2')
    a(f'v_lshrrev_b32 v{tF}, 5, v{vLANE}')
    a(f'v_lshlrev_b32 v{tE}, 3, v{jA}')
    a(f'v_lshl_add_u32 v{tE}, v{tF}, 2, v{tE}')
    a(f's_lshr_b32 s{t0}, s{sW}, 1')
    a(f's_lshl_b32 s{t1}, s{t0}, 5')
    a(f's_add_u32 s{t1}, s{t1}, s{sNS}')
    a(f's_and_b32 s{t2}, s{sW}, 1')
    a(f's_lshl_b32 s{t2}, s{t2}, 1')
    a(f's_add_u32 s{t1}, s{t1}, s{t2}')
    a(f'v_add_u32 v{tE}, s{t1}, v{tE}')
    a(f'v_lshlrev_b32 v{tE}, 7, v{tE}')
    a(f's_cmp_eq_u32 s{t2}, 0')
    a(f's_cbranch_scc0 K2_XI2')
    a(f'v_add_u32 v{tH}, v{tE}, v{CO}')
    a(f'v_add_u32 v{tI}, v{tE}, v{CO+1}')
    a('s_branch K2_XI')
    a.label('K2_XI2')
    a(f'v_add_u32 v{tH}, v{tE}, v{CO+2}')
    a(f'v_add_u32 v{tI}, v{tE}, v{CO+3}')
    a(f'v_add_u32 v{tH}, 2048, v{tH}')
    a(f'v_add_u32 v{tI}, 2048, v{tI}')
    a.label('K2_XI')
    a(f'v_add_u32 v{tI}, 128, v{tI}')
    a(f'v_and_b32 v{C4}, 31, v{vLANE}')
    def staging():
        a(f's_lshr_b32 s{t0}, s{sW}, 1')
        a(f's_lshl_b32 s{t0}, s{t0}, 12')
        a(f's_and_b32 s{t2}, s{sW}, 1')
        a(f's_lshl_b32 s{t2}, s{t2}, 11')
        a(f's_add_u32 s{t0}, s{t0}, s{t2}')
        a(f's_add_u32 s{t0}, s{t0}, {L_DMA}')
        a(f's_mov_b32 m0, s{t0}')
        a(f'v_lshlrev_b32 v{tA}, 4, v{vLANE}')
        a(f'buffer_load_dwordx4 v{tH}, s[{rX}:{rX+3}], 0 offen lds')
        a(f'buffer_load_dwordx4 v{tI}, s[{rX}:{rX+3}], 0 offen offset:1024 lds')
        a(f's_lshl_b32 s{t0}, s{sW}, 11')
        a(f's_add_u32 s{t1}, s{t0}, {L_DMA + 4*4096}')
        a(f's_mov_b32 m0, s{t1}')
        a(f's_add_u32 s{t2}, s{t0}, {16*1024}')
        a(f'buffer_load_dwordx4 v{tA}, s[{rF}:{rF+3}], s{t2} offen lds')
        a(f'buffer_load_dwordx4 v{tA}, s[{rF}:{rF+3}], s{t2} offen offset:1024 lds')
        a(f's_add_u32 s{t1}, s{t0}, {L_WST}')
        a(f's_mov_b32 m0, s{t1}')
        a('s_nop 0')
        a(f'buffer_load_dwordx4 v{tA}, s[{rF}:{rF+3}], s{t0} offen lds')
        a(f'buffer_load_dwordx4 v{tA}, s[{rF}:{rF+3}], s{t0} offen offset:1024 lds')
        srd(a, rR, sWC, 128)
        a(f'v_lshlrev_b32 v{tE}, 1, v{C4}')
        a(f'buffer_load_ushort v{BC}, v{tE}, s[{rR}:{rR+3}], 0 offen')
        a(f'buffer_load_ushort v{BC+1}, v{tE}, s[{rR}:{rR+3}], 0 offen offset:64')
    staging()
    def lds_init():
        a(f'v_lshlrev_b32 v{tE}, 4, v0')
        for i in range(4):
            a(f'v_mov_b32 v{TR+i}, 0xffff')
        a(f'ds_write_b128 v{tE}, v[{TR}:{TR+3}] offset:{L_ENT}')
        a(f's_cmp_ge_u32 s{sW}, {(ENT_QUADS - 512) // 64}')
        a(f's_cbranch_scc1 K2_I1{tag_i[0]}')
        a(f'ds_write_b128 v{tE}, v[{TR}:{TR+3}] offset:{L_ENT + 512*16}')
        a.label(f'K2_I1{tag_i[0]}')
        assert (ENT_QUADS - 512) % 64 == 0
        for i in range(4):
            a(f'v_mov_b32 v{TR+i}, {L_VIRT}')
        a(f'v_cmp_gt_u32 vcc, {ENT_QUADS // 4}, v0')
        a(f's_and_saveexec_b64 s[{sSV}:{sSV+1}], vcc')
        a(f'ds_write_b128 v{tE}, v[{TR}:{TR+3}] offset:{L_QI}')
        a(f's_mov_b64 exec, s[{sSV}:{sSV+1}]')
        a(f's_cmp_lg_u32 s{sW}, 0')
        a(f's_cbranch_scc1 K2_I2{tag_i[0]}')
        for i in range(4):
            a(f'v_mov_b32 v{TR+i}, 0')
        a(f'ds_write_b128 v{tE}, v[{TR}:{TR+3}] offset:{L_CNT}')
        a(f'v_add_u32 v{tE}, {L_VIRT + 512}, v{tE}')
        a('s_mov_b64 exec, 0xff')
        a(f'ds_write_b128 v{tE}, v[{TR}:{TR+3}]')
        a('s_mov_b64 exec, -1')
        a.label(f'K2_I2{tag_i[0]}')
        tag_i[0] += 1
    tag_i = [0]
    lds_init()
    a(f'v_and_b32 v{tE}, 3, v{vLANE}')
    a(f'v_lshlrev_b32 v{iR4}, 2, v{tE}')
    a(f'v_lshl_add_u32 v{RA}, v{tE}, 3, v{jA}')
    a(f'v_lshrrev_b32 v{tF}, 1, v{jA}')
    a(f'v_lshl_add_u32 v{tE}, v{tE}, 1, v{tF}')
    a(f'v_bfe_u32 v{tF}, v{vLANE}, 2, 1')
    a(f's_lshl_b32 s{t0}, s{sW}, 1')
    a(f'v_add_u32 v{sidR}, s{t0}, v{tF}')
    a(f'v_lshl_add_u32 v{RA}, v{tF}, 2, v{RA}')
    a(f'v_lshrrev_b32 v{tG}, 5, v{vLANE}')
    a(f'v_cmp_eq_u32 vcc, v{tF}, v{tG}')
    a(f'v_xor_b32 v{tE}, v{tE}, v{tG}')
    a(f'v_lshlrev_b32 v{tE}, 4, v{tE}')
    a(f'v_lshl_add_u32 v{RA}, v{RA}, 7, v{tE}')
    a(f'v_mov_b32 v{tF}, 0x3f80')
    a(f'v_cndmask_b32 v{tF}, 0, v{tF}, vcc')
    for q in range(4):
        a(f'v_cmp_eq_u32 vcc, {q}, v{jA}')
        a('s_nop 1')
        a(f'v_cndmask_b32 v{AE[0]+q}, 0, v{tF}, vcc')
        a(f'v_lshlrev_b32 v{AE[1]+q}, 16, v{AE[0]+q}')
    a(f'v_cmp_gt_u32 vcc, 32, v{vLANE}')
    a(f'v_mov_b32 v{tE}, 0x0a0c0100')
    a(f'v_mov_b32 v{tF}, 0x07060100')
    a(f'v_cndmask_b32 v{SEL[0]}, v{tE}, v{tF}, vcc')
    a(f'v_mov_b32 v{tE}, 0x03020a0c')
    a(f'v_mov_b32 v{tF}, 0x03020706')
    a(f'v_cndmask_b32 v{SEL[1]}, v{tE}, v{tF}, vcc')
    a(f's_mov_b32 s{sC}, 0x{C_SCALE:x}')
    a(f's_mov_b32 s{sC+1}, 0x{C_SCALE:x}')
    a(f's_mov_b32 s{s128}, 128')
    a(f's_mov_b32 s{sLO}, 0xffff')
    a(f's_mov_b32 s{sHI}, 0xffff0000')
    a(f'v_and_b32 v{tB}, 15, v{vLANE}')
    a(f'v_lshlrev_b32 v{tB}, 3, v{tB}')
    a(f'v_lshlrev_b32 v{C4}, 2, v{C4}')
    a('s_waitcnt vmcnt(0) lgkmcnt(0)')
    stamp(1)
    a('s_barrier')
    srd(a, rR, sWS, NBK * RECB)
    def rec_loads(vk8, nit):
        for it in range(8):
            a(f'v_mad_u32_u24 v{RK+it}, v{SG+it}, 8, v{vk8}')
        for it in range(nit):
            a(f's_mov_b64 exec, s[{MK+2*it}:{MK+2*it+1}]')
            off = ' offset:128' if it >= 8 else ''
            sk = a.newlabel('skl') if (it >= 8 and opts.get('skipb', 1)) else None
            if sk: a(f's_cbranch_execz {sk}')
            a(f'buffer_load_dwordx2 v[{REC+2*it}:{REC+2*it+1}], v{RK+it%8}, s[{rR}:{rR+3}], 0 offen{off}')
            if sk: a.label(sk)
        a('s_mov_b64 exec, -1')
    a(f'v_lshrrev_b32 v{tC}, 3, v{tB}')
    a(f'v_add_u32 v{tD}, 16, v{tC}')
    for it in range(8):
        a(f'v_cmp_gt_u32_sdwa s[{MK+2*it}:{MK+2*it+1}], v{SG+it}, v{tC} src0_sel:BYTE_3 src1_sel:DWORD')
    for it in range(8):
        a(f'v_cmp_gt_u32_sdwa s[{MK+16+2*it}:{MK+16+2*it+1}], v{SG+it}, v{tD} src0_sel:BYTE_3 src1_sel:DWORD')
    stamp(25)
    rec_loads(tB, 16)
    stamp(26)
    a(f'v_max3_u32 v{tD}, v{SG}, v{SG+1}, v{SG+2}')
    a(f'v_max3_u32 v{tD}, v{tD}, v{SG+3}, v{SG+4}')
    a(f'v_max3_u32 v{tD}, v{tD}, v{SG+5}, v{SG+6}')
    a(f'v_max_u32 v{tD}, v{tD}, v{SG+7}')
    a(f'v_lshrrev_b32 v{tD}, 24, v{tD}')
    a(f'v_cmp_lt_u32 s[{sSV2}:{sSV2+1}], 32, v{tD}')

    def gemm_issue():
        a(f's_lshr_b32 s{t0}, s{sW}, 1')
        a(f's_lshl_b32 s{t1}, s{t0}, 12')
        a(f's_add_u32 s{t1}, s{t1}, {L_DMA}')
        a(f'v_add_u32 v{tA}, s{t1}, v{RA}')
        a(f'v_xor_b32 v{tB}, 32, v{tA}')
        a(f'ds_read_b128 v[{AX}:{AX+3}], v{tA}')
        a(f'ds_read_b128 v[{AX+4}:{AX+7}], v{tB}')
        a(f'v_xor_b32 v{tB}, 64, v{tA}')
        a(f'v_xor_b32 v{tC}, 96, v{tA}')
        a(f'ds_read_b128 v[{AX+8}:{AX+11}], v{tB}')
        a(f'ds_read_b128 v[{AX+12}:{AX+15}], v{tC}')
        a(f's_and_b32 s{t2}, s{sW}, 1')
        a(f's_lshl_b32 s{t3}, s{t2}, 13')
        a(f's_add_u32 s{t3}, s{t3}, {L_DMA + 4*4096}')
        a(f'v_lshlrev_b32 v{GF}, 4, v{vLANE}')
        a(f'v_add_u32 v{GF}, s{t3}, v{GF}')
        for f in range(4):
            a(f'ds_read_b128 v[{SG+4*f}:{SG+4*f+3}], v{GF} offset:{f*1024}')
        for f in range(4):
            a(f'ds_read_b128 v[{RK+4*f}:{RK+4*f+3}], v{GF} offset:{(4+f)*1024}')
        a(f's_mul_i32 s{t1}, s{t0}, {32*ROWB}')
        a(f's_lshl_b32 s{t3}, s{t2}, 7')
        a(f's_add_u32 s{t1}, s{t1}, s{t3}')
        a(f's_add_u32 s{t1}, s{t1}, {L_ACC + 512}')
        a(f'v_lshrrev_b32 v{GD}, 5, v{vLANE}')
        a(f'v_mul_u32_u24 v{GD}, {4*ROWB}, v{GD}')
        a(f'v_add3_u32 v{GD}, v{GD}, v{C4}, s{t1}')
    def gemm_mid():
        a('s_waitcnt lgkmcnt(0)')
        for kp in range(4):
            c = '0' if kp == 0 else f'v[{GA}:{GA+15}]'
            a(f'v_mfma_f32_32x32x16_bf16 v[{GA}:{GA+15}], v[{AX+4*kp}:{AX+4*kp+3}], v[{SG+4*kp}:{SG+4*kp+3}], {c}')
            c = '0' if kp == 0 else f'v[{HA}:{HA+15}]'
            a(f'v_mfma_f32_32x32x16_bf16 v[{HA}:{HA+15}], v[{AX+4*kp}:{AX+4*kp+3}], v[{RK+4*kp}:{RK+4*kp+3}], {c}')
    def gemm_mid2():
        a('s_nop 7')
        a('s_nop 3')
    def w_frags():
        a(f'v_lshlrev_b32 v{GF}, 4, v{vLANE}')
        a(f'v_add_u32 v{GF}, {L_WST}, v{GF}')
        for f in range(16):
            dst = (WB + 4*f) if f < 8 else (WV + 4*(f-8))
            a(f'ds_read_b128 v[{dst}:{dst+3}], v{GF} offset:{f*1024}')
    def gemm_store(tag):
        for i in range(16):
            a(f'v_cvt_pk_bf16_f32 v{GA+i}, v{GA+i}, v{HA+i}')
        a(f's_lshr_b32 s{t0}, s{sW}, 1')
        a(f's_cmp_eq_u32 s{t0}, 3')
        a(f's_cbranch_scc1 K2_RT3{tag}')
        for vv in range(16):
            a(f'ds_write_b32 v{GD}, v{GA+vv} offset:{(8*(vv//4) + vv%4) * ROWB}')
        a(f's_branch K2_RTD{tag}')
        a.label(f'K2_RT3{tag}')
        a('s_mov_b32 exec_hi, 0')
        for vv in range(2):
            a(f'ds_write_b32 v{GD}, v{GA+vv} offset:{vv * ROWB}')
        a('s_mov_b64 exec, -1')
        a.label(f'K2_RTD{tag}')
    def consts():
        a(f'v_add_u32 v{RA}, s{sDB}, v{RA}')
        for kp in range(1, 4):
            a(f'v_xor_b32 v{RA+kp}, {32*kp}, v{RA}')
        a(f's_mov_b32 s{t3}, 0x{LOG2E:x}')
        for cc in range(2):
            a(f'v_lshlrev_b32 v{BC+cc}, 16, v{BC+cc}')
            a(f'v_mul_f32 v{BC+cc}, s{t3}, v{BC+cc}')
        a(f'v_cvt_pk_bf16_f32 v{BC}, 0, v{BC}')
        a(f'v_cvt_pk_bf16_f32 v{BC+1}, v{BC+1}, 0')
        a(f'v_cmp_gt_u32 vcc, 32, v{vLANE}')
        a(f'v_mov_b32 v{tG}, 0xb2000000')
        a(f'v_mov_b32 v{tH}, 0xb200')
        a(f'v_cndmask_b32 v{BC}, v{tG}, v{BC}, vcc')
        a(f'v_cndmask_b32 v{BC+1}, v{tH}, v{BC+1}, vcc')

    def hist():
        a(f'v_mov_b32 v{tE}, 1')
        for it in range(NIT):
            a(f's_mov_b64 exec, s[{MK+2*it}:{MK+2*it+1}]')
            sk = a.newlabel('skh') if (it >= 8 and opts.get('skipb', 1)) else None
            if sk: a(f's_cbranch_execz {sk}')
            a(f'ds_add_rtn_u32 v{RK+it}, v{REC+2*it+1}, v{tE} offset:{L_CNT}')
            if sk: a.label(sk)
        a('s_mov_b64 exec, -1')

    def scan_nodes(tag, mid=None):
        a(f'v_lshlrev_b32 v{tA}, 3, v{vLANE}')
        a(f'ds_read_b64 v[{TQ}:{TQ+1}], v{tA} offset:{L_CNT}')
        a(f'v_mul_u32_u24 v{nROW0}, {2*ROWB}, v{vLANE}')
        a(f'v_add_u32 v{nROW0}, {L_ACC}, v{nROW0}')
        if mid: mid()
        else: a('s_waitcnt lgkmcnt(0)')
        a(f'v_add_u32 v{tE}, 3, v{TQ}')
        a(f'v_add_u32 v{tF}, 3, v{TQ+1}')
        a(f'v_and_b32 v{tE}, -4, v{tE}')
        a(f'v_and_b32 v{tF}, -4, v{tF}')
        a(f'v_add_u32 v{tC}, v{tE}, v{tF}')
        a(f'v_max_u32 v{tB}, v{tE}, v{tF}')
        a(f'v_mov_b32 v{tD}, v{tC}')
        wave_scan(a, 'v_add_u32', tD)
        a(f'v_sub_u32 v{nOFF0}, v{tD}, v{tC}')
        a(f'v_readlane_b32 s{t1}, v{tD}, 63')
        a(f'v_add_u32 v{nOFF1}, v{nOFF0}, v{tE}')
        a(f'v_lshlrev_b32 v{TQ+2}, 2, v{nOFF0}')
        a(f'v_lshlrev_b32 v{TQ+3}, 2, v{nOFF1}')
        a(f'ds_write_b64 v{tA}, v[{TQ+2}:{TQ+3}] offset:{L_TAB}')
        a(f'v_mov_b32 v{nEND0}, v{nOFF1}')
        a(f'v_add_u32 v{nEND1}, v{nOFF1}, v{tF}')
        a(f's_add_u32 s{t1}, s{t1}, {4*NSTREAM-1}')
        a(f's_lshr_b32 s{sL}, s{t1}, 6')
        a(f's_add_u32 s{sCNT}, s{sL}, 3')
        a(f's_lshr_b32 s{sCNT}, s{sCNT}, 2')
        a(f's_sub_u32 s{sCNT}, s{sCNT}, 1')
        a(f's_sub_u32 s{sREM}, s{sL}, 1')
        a(f's_and_b32 s{sREM}, s{sREM}, 3')
        a(f's_add_u32 s{sREM}, s{sREM}, 1')
    def qi_fill(tag, split):
        B0 = TQ + 2; B1 = TQ + 3; V0 = TR + 1; V1 = TR + 2
        a(f'v_max_u32 v{TR}, v{tE}, v{tF}')
        if split:
            a(f'v_cvt_f32_u32 v{tA}, s{sL}')
            a(f'v_rcp_f32 v{tA}, v{tA}')
            a(f'v_cvt_f32_u32 v{tB}, v{nOFF0}')
            a(f'v_cvt_f32_u32 v{tC}, v{nOFF1}')
            a(f'v_mul_f32 v{tA}, 0.25, v{tA}')
            a(f'v_add_f32 v{tB}, 2.0, v{tB}')
            a(f'v_add_f32 v{tC}, 2.0, v{tC}')
            a(f'v_mul_f32 v{tB}, v{tA}, v{tB}')
            a(f'v_mul_f32 v{tC}, v{tA}, v{tC}')
            a(f'v_cvt_u32_f32 v{tB}, v{tB}')
            a(f'v_cvt_u32_f32 v{tC}, v{tC}')
            a(f'v_add_u32 v{tB}, 1, v{tB}')
            a(f'v_add_u32 v{tC}, 1, v{tC}')
            a(f's_lshl_b32 s{t1}, s{sL}, 2')
            a(f'v_mul_u32_u24 v{B0}, s{t1}, v{tB}')
            a(f'v_mul_u32_u24 v{B1}, s{t1}, v{tC}')
            a(f's_movk_i32 s{t1}, {VROWB}')
            a(f'v_mov_b32 v{tD}, {L_VIRT}')
            a(f'v_mad_u32_u24 v{V0}, v{tB}, s{t1}, v{tD}')
            a(f'v_mad_u32_u24 v{V1}, v{tC}, s{t1}, v{tD}')
            a(f'v_add_u32 v{tD}, {ROWB}, v{nROW0}')
            for nd, (B, Vv, END, nx) in enumerate(((B0, V0, nEND0, tB), (B1, V1, nEND1, tC))):
                lab = a.newlabel('nosplit')
                a(f'v_lshrrev_b32 v{tG}, 1, v{nx}')
                a(f'v_cmp_lt_u32 vcc, v{B}, v{END}')
                a(f'v_cmp_eq_u32 s[{sSV}:{sSV+1}], s{sW}, v{tG}')
                a(f's_and_b64 vcc, vcc, s[{sSV}:{sSV+1}]')
                a(f's_cbranch_scc0 {lab}')
                lp = a.newlabel('splitlp')
                a.label(lp)
                a(f's_ff1_i32_b64 s{t0}, vcc')
                a(f's_bitset0_b64 vcc, s{t0}')
                a(f'v_readlane_b32 s{t2}, v{nROW0 if nd == 0 else tD}, s{t0}')
                a(f'v_readlane_b32 s{t3}, v{Vv}, s{t0}')
                a(f'v_lshrrev_b32 v{tG}, 0, v{C4}')
                a('s_mov_b32 exec_hi, 0')
                a(f'v_add_u32 v{tH}, s{t2}, v{tG}')
                a(f'ds_read_b32 v{tI}, v{tH} offset:512')
                a(f'v_add_u32 v{tH}, s{t3}, v{tG}')
                a(f'v_mov_b32 v{tG}, s{t2}')
                a(f'v_mov_b32 v{tA}, s{t3}')
                a(f'ds_write_b32 v{tG}, v{tA} offset:768')
                a('s_waitcnt lgkmcnt(1)')
                a(f'ds_write_b32 v{tH}, v{tI} offset:512')
                a('s_mov_b64 exec, -1')
                a(f's_cmp_lg_u64 vcc, 0')
                a(f's_cbranch_scc1 {lp}')
                a.label(lab)
        a(f's_lshl_b32 s{t0}, s{sW}, 2')
        a(f'v_add_u32 v{tA}, s{t0}, v{nOFF0}')
        a(f'v_add_u32 v{tB}, s{t0}, v{nOFF1}')
        a(f'v_add_u32 v{tC}, {ROWB}, v{nROW0}')
        lp = f'K2_QF{tag}'
        a.label(lp)
        a(f's_add_u32 s{t1}, s{t0}, 4')
        a(f'v_cmp_eq_u32 s[{sSV}:{sSV+1}], s{t1}, v{tE}')
        a(f'v_cmp_eq_u32 s[{sSV2}:{sSV2+1}], s{t1}, v{tF}')
        if split:
            a(f'v_add_u32 v{tG}, 4, v{tA}')
            a(f'v_add_u32 v{tH}, 4, v{tB}')
            a(f'v_cmp_eq_u32 vcc, v{tG}, v{B0}')
            a(f's_or_b64 s[{sSV}:{sSV+1}], s[{sSV}:{sSV+1}], vcc')
            a(f'v_cmp_eq_u32 vcc, v{tH}, v{B1}')
            a(f's_or_b64 s[{sSV2}:{sSV2+1}], s[{sSV2}:{sSV2+1}], vcc')
            a(f'v_cmp_ge_u32 vcc, v{tA}, v{B0}')
            a('s_nop 1')
            a(f'v_cndmask_b32 v{tG}, v{nROW0}, v{V0}, vcc')
            a(f'v_cmp_ge_u32 vcc, v{tB}, v{B1}')
            a('s_nop 1')
            a(f'v_cndmask_b32 v{tH}, v{tC}, v{V1}, vcc')
        else:
            a(f'v_mov_b32 v{tG}, v{nROW0}')
            a(f'v_mov_b32 v{tH}, v{tC}')
        a(f'v_or_b32 v{tD}, 0x80000000, v{tG}')
        a(f'v_or_b32 v{tI}, 0x80000000, v{tH}')
        a(f'v_cmp_lt_u32 vcc, s{t0}, v{tE}')
        a(f'v_cndmask_b32 v{tG}, v{tG}, v{tD}, s[{sSV}:{sSV+1}]')
        a(f'v_cndmask_b32 v{tH}, v{tH}, v{tI}, s[{sSV2}:{sSV2+1}]')
        a(f'v_cmp_lt_u32 s[{sSV}:{sSV+1}], s{t0}, v{tF}')
        a('s_mov_b64 exec, vcc')
        a(f'ds_write_b32 v{tA}, v{tG} offset:{L_QI}')
        a(f's_mov_b64 exec, s[{sSV}:{sSV+1}]')
        a(f'ds_write_b32 v{tB}, v{tH} offset:{L_QI}')
        a('s_mov_b64 exec, -1')
        a(f's_add_u32 s{t0}, s{t0}, 32')
        a(f'v_add_u32 v{tA}, 32, v{tA}')
        a(f'v_add_u32 v{tB}, 32, v{tB}')
        a(f'v_cmp_lt_u32 vcc, s{t0}, v{TR}')
        a(f's_cbranch_vccnz {lp}')
    def scatter():
        a('s_waitcnt lgkmcnt(0)')
        for it in range(8):
            a(f's_mov_b64 exec, s[{MK+2*it}:{MK+2*it+1}]')
            a(f'ds_read_b32 v{AX+it}, v{REC+2*it+1} offset:{L_TAB}')
        for it in range(8):
            a(f's_mov_b64 exec, s[{MK+2*it}:{MK+2*it+1}]')
            a('s_waitcnt lgkmcnt(7)')
            a(f'v_lshl_add_u32 v{AX+it}, v{RK+it}, 2, v{AX+it}')
            a(f'ds_write_b32 v{AX+it}, v{REC+2*it} offset:{L_ENT}')
        for it in range(8, 16):
            sk = a.newlabel('sks')
            a(f's_mov_b64 exec, s[{MK+2*it}:{MK+2*it+1}]')
            if opts.get('skipb', 1): a(f's_cbranch_execz {sk}')
            a(f'ds_read_b32 v{AX+it}, v{REC+2*it+1} offset:{L_TAB}')
            a('s_waitcnt lgkmcnt(0)')
            a(f'v_lshl_add_u32 v{AX+it}, v{RK+it}, 2, v{AX+it}')
            a(f'ds_write_b32 v{AX+it}, v{REC+2*it} offset:{L_ENT}')
            a.label(sk)
        a('s_mov_b64 exec, -1')

    def setup_ptrs():
        a(f'v_mad_u32_u24 v{tA}, v{sidA}, s{sL}, v{jA}')
        a(f'v_lshlrev_b32 v{pEN}, 4, v{tA}')
        a(f'ds_read_b128 v[{EN}:{EN+3}], v{pEN} offset:{L_ENT}')
        a(f'v_lshlrev_b32 v{pQF}, 2, v{tA}')
        a(f'v_mul_u32_u24 v{pQI}, s{sL}, v{sidA}')
        a(f'v_lshlrev_b32 v{pQI}, 2, v{pQI}')
        a(f'v_add_u32 v{pQI}, {L_QI}, v{pQI}')
        a(f'v_mad_u32_u24 v{tA}, v{sidR}, s{sL}, v{jA}')
        a(f'v_lshl_add_u32 v{pEE}, v{tA}, 4, v{iR4}')
        a(f's_mov_b32 m0, s{sDB}')

    def dma_addr():
        return [f'v_mad_u32_u16 v{EN+i}, v{EN+i}, s{s128}, v{CO+i}' for i in range(4)]
    def dma_issue():
        if opts.get('nodma'): return []
        return [f'buffer_load_dwordx4 v{EN+i}, s[{rX}:{rX+3}], 0 offen offset:{1024*i} lds' if i else
                f'buffer_load_dwordx4 v{EN}, s[{rX}:{rX+3}], 0 offen lds' for i in range(4)]

    def main_loop(tag, atomic):
        flush_blocks = []
        def flush_body(cc, par, j):
            a(f's_bfe_i32 exec_lo, s{sF[par]}, 0x{(1<<16)|(8*j):x}')
            a(f's_bfe_i32 exec_hi, s{sF[par]+1}, 0x{(1<<16)|(8*j):x}')
            a(f'v_add_f32 v{F0}, v{DEN+2*cc}, v{DEN+2*cc+1}')
            a(f'v_add_f32 v{F1}, v{NUM+2*cc}, v{NUM+2*cc+1}')
            a(f'v_mov_b64 v[{DEN+2*cc}:{DEN+2*cc+1}], 0')
            a(f'v_mov_b64 v[{NUM+2*cc}:{NUM+2*cc+1}], 0')
            if atomic:
                a(f'ds_add_f32 v{QA[par]+j}, v{F0} offset:{cc*128}')
                a(f'ds_add_f32 v{QA[par]+j}, v{F1} offset:{256+cc*128}')
            else:
                a(f'ds_write2_b32 v{QA[par]+j}, v{F0}, v{F1} offset0:{cc*32} offset1:{64+cc*32}')
            a('s_mov_b64 exec, -1')
        def post(cc, par, nq_check):
            done = a.newlabel('pdone') if nq_check else None
            for j in range(4):
                if nq_check and j > 0:
                    a(f's_cmp_le_u32 s{sREM}, {j}')
                    a(f's_cbranch_scc1 {done}')
                p = PP + 2*j; t = TT_ + 2*j; z = ZZ + 2*j
                a(f'v_pk_fma_f32 v[{NUM+2*cc}:{NUM+2*cc+1}], v[{p}:{p+1}], v[{t}:{t+1}], v[{NUM+2*cc}:{NUM+2*cc+1}]')
                a(f'v_pk_fma_f32 v[{DEN+2*cc}:{DEN+2*cc+1}], v[{p}:{p+1}], v[{z}:{z+1}], v[{DEN+2*cc}:{DEN+2*cc+1}]')
                if opts.get('noflush'): continue
                fl = a.newlabel('fl'); back = a.newlabel('bk')
                a(f's_bitcmp1_b32 s{sANY[par]}, {8*j}')
                if opts.get('inlinefl', 0):
                    a(f's_cbranch_scc0 {back}')
                    flush_body(cc, par, j)
                    a.label(back)
                else:
                    a(f's_cbranch_scc1 {fl}')
                    a.label(back)
                    flush_blocks.append((fl, back, cc, par, j))
            if nq_check: a.label(done)
        def pre(cur):
            g0 = G_[cur]; h0 = H_[cur]
            for j in range(4):
                g = g0 + 4*j
                a(f'v_pk_fma_f32 v[{g}:{g+1}], v[{g}:{g+1}], s[{sC}:{sC+1}], s[{sC}:{sC+1}] clamp')
                a(f'v_pk_fma_f32 v[{g+2}:{g+3}], v[{g+2}:{g+3}], s[{sC}:{sC+1}], s[{sC}:{sC+1}] clamp')
            for j in range(4):
                g = g0 + 4*j; h = h0 + 4*j
                X = f'v[{g}:{g+1}]'; Y = f'v[{g+2}:{g+3}]'
                p = PP + 2*j; t = TT_ + 2*j; z = ZZ + 2*j
                a(f'v_pk_mul_f32 v[{t}:{t+1}], {Y}, v[{h}:{h+1}]')
                a(f'v_pk_mul_f32 v[{p}:{p+1}], {X}, {Y}')
                a(f'v_pk_add_f32 v[{z}:{z+1}], {X}, {Y}')
                a(f'v_pk_fma_f32 v[{t}:{t+1}], {X}, v[{h+2}:{h+3}], v[{t}:{t+1}]')
        def mfma_list(nxt, cc):
            Gs = f'v[{G_[nxt]}:{G_[nxt]+15}]'; Hs = f'v[{H_[nxt]}:{H_[nxt]+15}]'
            out = []
            for kp in range(4):
                wb = WB + 16*cc + 4*kp; wv = WV + 16*cc + 4*kp; ax = AX + 4*kp
                out.append(f'v_mfma_f32_32x32x16_bf16 {Hs}, v[{ax}:{ax+3}], v[{wv}:{wv+3}], {"0" if kp == 0 else Hs}')
                out.append(f'v_mfma_f32_32x32x16_bf16 {Gs}, v[{ax}:{ax+3}], v[{wb}:{wb+3}], {"0" if kp == 0 else Gs}')
            out.append(f'v_mfma_f32_32x32x16_bf16 {Gs}, v[{AE[cc]}:{AE[cc]+3}], v[{BE}:{BE+3}], {Gs}')
            return out
        def trans_list(cur):
            return [f'v_rcp_f32 v{PP+i}, v{PP+i}' for i in range(8)] + [f'v_exp_f32 v{G_[cur]+i}, v{G_[cur]+i}' for i in range(16)]
        def weave(mf, tr, gaps):
            dist = [3, 3, 3, 3, 3, 3, 2, 2, 2]
            if opts.get('nogaps'): gaps = {}
            def keep(ins):
                if opts.get('nods') and ins.startswith('ds_'): return False
                if opts.get('novalu') and ins.startswith('v_'): return False
                if opts.get('nowait') and ins.startswith('s_waitcnt'): return False
                if opts.get('novm') and ins.startswith('buffer_'): return False
                return True
            gaps = {k_: [i_ for i_ in v_ if keep(i_)] for k_, v_ in gaps.items()}
            if opts.get('nomf'): mf = None
            k = 0
            for m in range(9):
                for ins in gaps.get(('m', m), []): a(ins)
                if mf: a(mf[m])
                for _ in range(dist[m]):
                    a(tr[k])
                    for ins in gaps.get(k, []): a(ins)
                    k += 1
            assert k == len(tr)
        def stage0(par):
            g = {}
            da = dma_addr()
            g[0] = [f'ds_read_b32 v{QF}, v{pQF} offset:{L_QI + 16*(par+1)}']
            g[1] = [f'ds_read_b32 v{EE}, v{pEE} offset:{L_ENT + 64*(par+1)}']
            g[3] = [f'v_and_or_b32 v{BE}, v{R0}, s{sHI}, v{BC+1}']
            g[6] = [da[0]]; g[9] = [da[1]]; g[12] = [da[2]]; g[15] = [da[3]]
            weave(mfma_list(1, 1), trans_list(0), g)
            post(1, par ^ 1, False)
            qn = QA[par ^ 1]
            if not opts.get('nogaps') and not opts.get('nopds'):
                a(f'ds_read2_b32 v[{qn}:{qn+1}], v{pQI} offset0:{4*(par+1)} offset1:{4*(par+1)+1}')
                a(f'ds_read2_b32 v[{qn+2}:{qn+3}], v{pQI} offset0:{4*(par+1)+2} offset1:{4*(par+1)+3}')
                a('s_waitcnt vmcnt(0)')
                for kp in range(4):
                    a(f'ds_read_b128 v[{AX+4*kp}:{AX+4*kp+3}], v{RA+kp}')
            pre(0)
            a(f's_sub_u32 s{sCNT}, s{sCNT}, 1')
        def stage1(par):
            qn = QA[par ^ 1]
            g = {}
            di = dma_issue()
            g[('m', 0)] = ['s_waitcnt lgkmcnt(0)']
            g[0] = [f'v_mad_u32_u24 v{qn}, v{qn}, 1, v{C4}'] + di[0:1]
            g[1] = [f'v_mad_u32_u24 v{qn+1}, v{qn+1}, 1, v{C4}'] + di[1:2]
            g[2] = [f'ds_read_b32 v{R0}, v{qn} offset:512'] + di[2:3]
            g[3] = [f'v_mad_u32_u24 v{qn+2}, v{qn+2}, 1, v{C4}', f'ds_read_b32 v{BE+1}, v{qn+1} offset:512'] + di[3:4]
            g[4] = [f'v_mad_u32_u24 v{qn+3}, v{qn+3}, 1, v{C4}', f'ds_read_b32 v{BE+2}, v{qn+2} offset:512']
            g[5] = [f'ds_read_b32 v{BE+3}, v{qn+3} offset:512']
            g[6] = [f'ds_read_b128 v[{EN}:{EN+3}], v{pEN} offset:{L_ENT + 64*(par+3)}']
            g[7] = [f'v_perm_b32 v{AE[0]}, v{EE}, v{AE[0]}, v{SEL[0]}']
            g[9] = [f'v_perm_b32 v{AE[1]}, v{EE}, v{AE[1]}, v{SEL[1]}']
            g[11] = [f'v_cmp_gt_i32 s[{sF[par^1]}:{sF[par^1]+1}], 0, v{QF}']
            if par == 1:
                g[13] = [f'v_add_u32 v{pQI}, 32, v{pQI}']
                g[14] = [f'v_add_u32 v{pQF}, 32, v{pQF}']
                g[15] = [f'v_add_u32 v{pEE}, 128, v{pEE}']
                g[16] = [f'v_add_u32 v{pEN}, 128, v{pEN}']
            g[17] = [f's_or_b32 s{sANY[par^1]}, s{sF[par^1]}, s{sF[par^1]+1}'] if not opts.get('noany') else [f's_mov_b32 s{sANY[par^1]}, 0']
            g[19] = ['s_waitcnt lgkmcnt(0)', f'v_and_or_b32 v{BE}, v{R0}, s{sLO}, v{BC}']
            weave(mfma_list(0, 0), trans_list(1), g)
            post(0, par, False)
            pre(1)
        def last_stage1(par):
            weave(None, trans_list(1), {})
            post(0, par, True)
            pre(1)
            for i in range(8):
                a(f'v_rcp_f32 v{PP+i}, v{PP+i}')
            a('s_nop 0')
            post(1, par, True)
        L0 = f'K2_T0{tag}'; E0 = f'K2_E0{tag}'; E1 = f'K2_E1{tag}'; DONE = f'K2_MD{tag}'
        PR = opts.get('prio', 1)
        if PR:
            a(f's_add_u32 s{t0}, s{sCNT}, 1')
            a(f's_lshr_b32 s{t0}, s{t0}, {2 if PR == 1 else 1}')
            if PR == 3: a(f's_lshr_b32 s{t0}, s{t0}, 0')
            a(f's_lshl_b32 s{t0}, s{t0}, 1')
            a(f's_sub_u32 s{sSWAP}, s{sCNT}, s{t0}')
            a(f's_cmp_ge_u32 s{sW}, 4')
            a(f's_cbranch_scc0 K2_PR0{tag}')
            a('s_setprio 1')
            a.label(f'K2_PR0{tag}')
        a.label(L0)
        if PR:
            a(f's_cmp_eq_u32 s{sCNT}, s{sSWAP}')
            a(f's_cbranch_scc1 K2_SWP{tag}')
            a.label(f'K2_SWB{tag}')
        stage0(0)
        a(f's_cbranch_scc1 {E0}')
        stage1(0)
        stage0(1)
        a(f's_cbranch_scc1 {E1}')
        stage1(1)
        a(f's_branch {L0}')
        a.label(E0)
        last_stage1(0)
        a(f's_branch {DONE}')
        a.label(E1)
        last_stage1(1)
        a(f's_branch {DONE}')
        if PR:
            a.label(f'K2_SWP{tag}')
            a(f's_cmp_ge_u32 s{sW}, 4')
            a(f's_cbranch_scc1 K2_SW0{tag}')
            a('s_setprio 1')
            a(f's_branch K2_SWB{tag}')
            a.label(f'K2_SW0{tag}')
            a('s_setprio 0')
            a(f's_branch K2_SWB{tag}')
        for (fl, back, cc, par, j) in flush_blocks:
            a.label(fl)
            flush_body(cc, par, j)
            a(f's_branch {back}')
        a.label(DONE)
        if PR: a('s_setprio 0')

    def pipeline_fill():
        q0 = QA[0]
        a(f'ds_read2_b32 v[{q0}:{q0+1}], v{pQI} offset0:0 offset1:1')
        a(f'ds_read2_b32 v[{q0+2}:{q0+3}], v{pQI} offset0:2 offset1:3')
        a(f'ds_read_b32 v{QF}, v{pQF} offset:{L_QI}')
        a(f'ds_read_b32 v{EE}, v{pEE} offset:{L_ENT}')
        a(f'ds_read_b128 v[{EN}:{EN+3}], v{pEN} offset:{L_ENT + 64}')
        for i in range(2):
            a(f'v_mov_b64 v[{DEN+2*i}:{DEN+2*i+1}], 0')
            a(f'v_mov_b64 v[{NUM+2*i}:{NUM+2*i+1}], 0')
        for i in range(8):
            a(f'v_mov_b32 v{PP+i}, 1.0')
        for i in range(4):
            a(f'v_mov_b64 v[{TT_+2*i}:{TT_+2*i+1}], 0')
            a(f'v_mov_b64 v[{ZZ+2*i}:{ZZ+2*i+1}], 0')
        a(f's_mov_b32 s{sANY[1]}, 0')
        a('s_waitcnt lgkmcnt(0)')
        for q in range(4):
            a(f'v_mad_u32_u24 v{q0+q}, v{q0+q}, 1, v{C4}')
        a(f'ds_read_b32 v{R0}, v{q0} offset:512')
        for q in range(1, 4):
            a(f'ds_read_b32 v{BE+q}, v{q0+q} offset:512')
        a(f'v_perm_b32 v{AE[0]}, v{EE}, v{AE[0]}, v{SEL[0]}')
        a(f'v_perm_b32 v{AE[1]}, v{EE}, v{AE[1]}, v{SEL[1]}')
        a(f'v_cmp_gt_i32 s[{sF[0]}:{sF[0]+1}], 0, v{QF}')
        for ins in dma_addr(): a(ins)
        stamp(21)
        a('s_waitcnt vmcnt(0)')
        stamp(22)
        for kp in range(4):
            a(f'ds_read_b128 v[{AX+4*kp}:{AX+4*kp+3}], v{RA+kp}')
        a(f's_or_b32 s{sANY[0]}, s{sF[0]}, s{sF[0]+1}')
        a('s_waitcnt lgkmcnt(0)')
        a(f'v_and_or_b32 v{BE}, v{R0}, s{sLO}, v{BC}')
        for ins in dma_issue(): a(ins)
        a(f'ds_read_b128 v[{EN}:{EN+3}], v{pEN} offset:{L_ENT + 128}')
        Gs = f'v[{GA}:{GA+15}]'; Hs = f'v[{HA}:{HA+15}]'
        for kp in range(4):
            a(f'v_mfma_f32_32x32x16_bf16 {Hs}, v[{AX+4*kp}:{AX+4*kp+3}], v[{WV+4*kp}:{WV+4*kp+3}], {"0" if kp == 0 else Hs}')
            a(f'v_mfma_f32_32x32x16_bf16 {Gs}, v[{AX+4*kp}:{AX+4*kp+3}], v[{WB+4*kp}:{WB+4*kp+3}], {"0" if kp == 0 else Gs}')
        a(f'v_mfma_f32_32x32x16_bf16 {Gs}, v[{AE[0]}:{AE[0]+3}], v[{BE}:{BE+3}], {Gs}')
        a('s_waitcnt lgkmcnt(0)')
        a('s_nop 7')
        a('s_nop 3')
    def forced_flags():
        a(f's_sub_u32 s{t1}, s{sL}, 1')
        a(f's_lshl_b32 s{t1}, s{t1}, 2')
        a(f'v_add_u32 v{tB}, s{t1}, v{pQI}')
        a(f'v_mov_b32 v{tA}, 0x80000000')
        a('s_mov_b32 exec_lo, 1')
        a('s_mov_b32 exec_hi, 1')
        a(f'ds_or_b32 v{tB}, v{tA}')
        a('s_mov_b64 exec, -1')

    stamp(2)
    a(f's_mov_b64 exec, s[{sSV2}:{sSV2+1}]')
    a(f'v_mov_b32 v{tD}, {L_CNT + 127*4}')
    a(f'v_mov_b32 v{tE}, 1')
    a(f'ds_write_b32 v{tD}, v{tE}')
    a('s_mov_b64 exec, -1')
    gemm_issue()
    stamp(28)
    gemm_mid()
    gemm_mid2()
    stamp(29)
    a(f's_cmp_lg_u32 s{sW}, 0')
    a('s_cbranch_scc1 K2_NOCI')
    a(f'v_mul_u32_u24 v{tA}, {2*ROWB}, v{vLANE}')
    a(f'v_mov_b32 v{tB}, {L_ZERO}')
    a(f'v_add_u32 v{tA}, {L_ACC}, v{tA}')
    a(f's_mov_b32 exec_hi, {(1 << (MAXN // 2 - 32)) - 1}')
    a(f'ds_write_b32 v{tA}, v{tB} offset:768')
    a(f'ds_write_b32 v{tA}, v{tB} offset:{768 + ROWB}')
    a('s_mov_b64 exec, -1')
    a.label('K2_NOCI')
    gemm_store('F')
    stamp(3)
    a('s_waitcnt vmcnt(0)')
    stamp(23)
    hist()
    a('s_waitcnt lgkmcnt(0)')
    stamp(24)
    if opts.get('proprio') == 1: a('s_setprio 0')
    a('s_barrier')
    stamp(4)
    scan_nodes('F')
    a(f'v_readlane_b32 s{t0}, v{TQ+1}, 63')
    a(f's_lshl_b32 s{t1}, s{sL}, 2')
    a(f'v_cmp_lt_u32 vcc, s{t1}, v{tB}')
    a(f's_cmp_lg_u32 s{t0}, 0')
    a('s_cbranch_scc1 K2_SLOW')
    a(f's_cmp_gt_u32 s{sL}, {(ENT_QUADS - 8) // NSTREAM}')
    a('s_cbranch_scc1 K2_SLOW')
    a('s_cbranch_vccnz K2_SLOW')
    stamp(15)
    scatter()
    stamp(16)
    a('s_waitcnt lgkmcnt(0)')
    a('s_barrier')
    stamp(5)
    a(f's_cmp_eq_u32 s{sL}, 0')
    a('s_cbranch_scc1 K2_NOL')
    setup_ptrs()
    a('s_waitcnt lgkmcnt(0)')
    for ins in dma_addr(): a(ins)
    for ins in dma_issue(): a(ins)
    a.label('K2_NOL')
    stamp(17)
    a(f'v_cmp_gt_u32 vcc, {MAXN // 2}, v{vLANE}')
    a(f'v_lshl_or_b32 v{tB}, v{vLANE}, 1, 1')
    a(f'v_cmp_le_u32 s[{sSV}:{sSV+1}], s{sNN}, v{tB}')
    a(f'v_mov_b32 v{tC}, 1')
    a('s_nop 0')
    a(f'v_cndmask_b32 v{tB}, v{TQ+1}, v{tC}, s[{sSV}:{sSV+1}]')
    a(f'v_min_u32 v{tB}, v{TQ}, v{tB}')
    a(f'v_cmp_eq_u32 s[{sSV}:{sSV+1}], 0, v{tB}')
    a(f's_and_b64 s[{sSV}:{sSV+1}], s[{sSV}:{sSV+1}], vcc')
    a('s_cbranch_scc1 K2_ZROWS')
    a.label('K2_ZBACK')
    qi_fill('F', True)
    stamp(18)
    w_frags()
    consts()
    a('s_waitcnt lgkmcnt(0)')
    stamp(19)
    if opts.get('proprio') == 2: a('s_setprio 0')
    a('s_barrier')
    stamp(20)
    a(f's_cmp_eq_u32 s{sL}, 0')
    a('s_cbranch_scc1 K2_EPI')
    pipeline_fill()
    stamp(6)
    if opts.get('dbgtime'):
        a(f's_memrealtime s[{t2}:{t3}]')
        a('s_waitcnt lgkmcnt(0)')
        a(f's_mov_b32 s{sT1}, s{t2}')
    if STAMP:
        a(f's_memrealtime s[{t2}:{t3}]')
        a('s_waitcnt lgkmcnt(0)')
        a(f'v_writelane_b32 v{vST}, s{t2}, 13')
    if opts.get('half'):
        a(f's_cmp_ge_u32 s{sW}, 4')
        a('s_cbranch_scc1 K2_MDF')
    main_loop('F', False)
    stamp(7)
    if opts.get('dbgtime'):
        a(f's_memrealtime s[{t2}:{t3}]')
        a('s_waitcnt lgkmcnt(0)')
        a(f's_mov_b32 s{sT2}, s{t2}')
    if STAMP:
        a(f's_memrealtime s[{t2}:{t3}]')
        a('s_waitcnt lgkmcnt(0)')
        a(f'v_writelane_b32 v{vST}, s{t2}, 14')
    a.label('K2_EPI')
    e0 = 4
    XV = [e0, e0 + 4]; DN = e0 + 8; NM = e0 + 16; UU = e0 + 24; CD = e0 + 28; CN = e0 + 36; O = e0 + 44
    AD = e0 + 48; GO = [e0 + 49, e0 + 50]; T1 = e0 + 51; T2 = e0 + 52; CP = e0 + 53; ND = e0 + 54; OC = [e0 + 55, e0 + 56]; ADR = [e0 + 48, e0 + 57]
    def epi_addr(r):
        a(f'v_add_u32 v{T1}, {512*r}, v0') if r else a(f'v_mov_b32 v{T1}, v0')
        a(f'v_lshrrev_b32 v{ND}, 3, v{T1}')
        a(f'v_and_b32 v{T1}, 7, v{T1}')
        a(f'v_lshlrev_b32 v{OC[r]}, 4, v{T1}')
        a(f'v_mad_u32_u24 v{ADR[r]}, v{ND}, s{t0}, v{OC[r]}')
        a(f'v_add_u32 v{ADR[r]}, {L_ACC}, v{ADR[r]}')
        a(f'v_add_u32 v{GO[r]}, s{sNS}, v{ND}')
        a(f'v_lshlrev_b32 v{GO[r]}, 7, v{GO[r]}')
        a(f'v_lshl_add_u32 v{GO[r]}, v{T1}, 3, v{GO[r]}')
    def epi_body(r, carry):
        ad = ADR[r]; xv = XV[r]
        if carry:
            a(f'v_sub_u32 v{T2}, v{ad}, v{OC[r]}')
            a(f'ds_read_b32 v{CP}, v{T2} offset:768')
        a(f'ds_read_b128 v[{DN}:{DN+3}], v{ad}')
        a(f'ds_read_b128 v[{DN+4}:{DN+7}], v{ad} offset:128')
        a(f'ds_read_b128 v[{NM}:{NM+3}], v{ad} offset:256')
        a(f'ds_read_b128 v[{NM+4}:{NM+7}], v{ad} offset:384')
        a(f'ds_read_b128 v[{UU}:{UU+3}], v{ad} offset:640')
        if carry:
            a('s_waitcnt lgkmcnt(5)')
            a(f'v_add_u32 v{T2}, v{CP}, v{OC[r]}')
            a(f'ds_read_b128 v[{CD}:{CD+3}], v{T2}')
            a(f'ds_read_b128 v[{CD+4}:{CD+7}], v{T2} offset:128')
            a(f'ds_read_b128 v[{CN}:{CN+3}], v{T2} offset:256')
            a(f'ds_read_b128 v[{CN+4}:{CN+7}], v{T2} offset:384')
        a('s_waitcnt lgkmcnt(0)')
        if carry:
            for i in range(0, 8, 2):
                a(f'v_pk_add_f32 v[{DN+i}:{DN+i+1}], v[{DN+i}:{DN+i+1}], v[{CD+i}:{CD+i+1}]')
                a(f'v_pk_add_f32 v[{NM+i}:{NM+i+1}], v[{NM+i}:{NM+i+1}], v[{CN+i}:{CN+i+1}]')
        for i in range(0, 8, 2):
            a(f'v_pk_add_f32 v[{DN+i}:{DN+i+1}], v[{DN+i}:{DN+i+1}], s[{sC}:{sC+1}]')
        for i in range(8):
            a(f'v_rcp_f32 v{DN+i}, v{DN+i}')
        for i in range(4):
            a(f'v_lshlrev_b32 v{CD+i}, 16, v{UU+i}')
            a(f'v_and_b32 v{CD+4+i}, s{sHI}, v{UU+i}')
        for i in range(0, 8, 2):
            a(f'v_pk_fma_f32 v[{NM+i}:{NM+i+1}], v[{NM+i}:{NM+i+1}], v[{DN+i}:{DN+i+1}], v[{CD+i}:{CD+i+1}]')
        a(f's_waitcnt vmcnt({2 if r == 0 else 0})') if True else None
        for i in range(8):
            a(f'v_max_f32 v{NM+i}, 0, v{NM+i}')
        for i in range(4):
            a(f'v_lshlrev_b32 v{CD+2*i}, 16, v{xv+i}')
            a(f'v_and_b32 v{CD+2*i+1}, s{sHI}, v{xv+i}')
        for i in range(0, 8, 2):
            a(f'v_pk_add_f32 v[{NM+i}:{NM+i+1}], v[{NM+i}:{NM+i+1}], v[{CD+i}:{CD+i+1}]')
        for i in range(4):
            a(f'v_cvt_pk_bf16_f32 v{O+i}, v{NM+2*i}, v{NM+2*i+1}')
        osf = {0: '', 1: ' sc1', 2: ' nt', 3: ' sc0 sc1'}[opts.get('outst', 0)]
        a(f'buffer_store_dwordx2 v[{O}:{O+1}], v{GO[r]}, s[{rO}:{rO+3}], 0 offen' + osf)
        a(f'buffer_store_dwordx2 v[{O+2}:{O+3}], v{GO[r]}, s[{rO}:{rO+3}], 0 offen offset:64' + osf)
    def epilogue(tag, carry):
        srd(a, rO, sOUT, N * 128)
        srd(a, rF, sX, N * 128)
        a(f's_mov_b32 s{t0}, {ROWB}')
        a(f's_mov_b32 s{sC}, 0x{EPS_SCALED:x}')
        a(f's_mov_b32 s{sC+1}, 0x{EPS_SCALED:x}')
        a(f's_mov_b32 s{sHI}, 0xffff0000')
        a('s_waitcnt vmcnt(0)')
        epi_addr(0)
        a(f'buffer_load_dwordx2 v[{XV[0]}:{XV[0]+1}], v{GO[0]}, s[{rF}:{rF+3}], 0 offen')
        a(f'buffer_load_dwordx2 v[{XV[0]+2}:{XV[0]+3}], v{GO[0]}, s[{rF}:{rF+3}], 0 offen offset:64')
        epi_addr(1)
        a(f'v_cmp_gt_u32 s[{sSV}:{sSV+1}], s{sNN}, v{ND}')
        a(f'buffer_load_dwordx2 v[{XV[1]}:{XV[1]+1}], v{GO[1]}, s[{rF}:{rF+3}], 0 offen')
        a(f'buffer_load_dwordx2 v[{XV[1]+2}:{XV[1]+3}], v{GO[1]}, s[{rF}:{rF+3}], 0 offen offset:64')
        a('s_waitcnt lgkmcnt(0)')
        a('s_barrier')
        if STAMP and tag == 'F': stamp(8)
        epi_body(0, carry)
        a(f's_mov_b64 exec, s[{sSV}:{sSV+1}]')
        a(f's_cbranch_execz K2_FIN{tag}')
        epi_body(1, carry)
        a.label(f'K2_FIN{tag}')
    epilogue('F', True)
    if opts.get('dbgtime'):
        a('s_mov_b64 exec, -1')
        a('s_waitcnt vmcnt(0)')
        a(f's_memrealtime s[{t2}:{t3}]')
        a(f's_cmp_lg_u32 s{sW}, 7')
        a('s_cbranch_scc1 K2_DBGX')
        a('s_and_b32 s3, s2, 31')
        a('s_cmp_lg_u32 s3, 0')
        a('s_cbranch_scc1 K2_DBGX')
        a('s_lshr_b32 s3, s2, 5')
        a('s_cmp_ge_u32 s3, 2')
        a('s_cbranch_scc1 K2_DBGX')
        a(f's_lshl_b32 s{t0}, s3, 2')
        a(f's_add_u32 s{t0}, s{t0}, 0x1200000')
        a(f'v_mov_b32 v4, s{t0}')
        a(f'global_load_dword v5, v4, s[{sWS}:{sWS+1}]')
        a(f'global_load_dword v6, v4, s[{sWS}:{sWS+1}] offset:256')
        a('s_waitcnt vmcnt(0) lgkmcnt(0)')
        a(f'v_sub_u32 v8, v6, v5')
        a(f'v_sub_u32 v9, s{sT0}, v5')
        a(f'v_sub_u32 v10, s{sT1}, v5')
        a(f'v_sub_u32 v11, s{sT2}, v5')
        a(f'v_sub_u32 v12, s{t2}, v5')
        a('s_lshl_b32 s3, s3, 5')
        a('v_mov_b32 v4, s3')
        a('s_mov_b64 exec, 1')
        a(f'global_store_dwordx4 v4, v[8:11], s[{sDBG}:{sDBG+1}]')
        a(f'global_store_dword v4, v12, s[{sDBG}:{sDBG+1}] offset:16')
        a.label('K2_DBGX')
    if STAMP:
        a('s_mov_b64 exec, -1')
        a('s_waitcnt vmcnt(0)')
        stamp(9)
        a(f's_memrealtime s[{t2}:{t3}]')
        a('s_waitcnt lgkmcnt(0)')
        a(f'v_writelane_b32 v{vST}, s{t2}, 12')
        a(f's_mul_i32 s{t0}, s2, {NW}')
        a(f's_add_u32 s{t0}, s{t0}, s{sW}')
        a(f's_lshl_b32 s{t0}, s{t0}, 8')
        a(f's_add_u32 s{t0}, s{t0}, 0x1000000')
        srd_off(a, rT, sWS, f's{t0}', 256)
        a(f'v_writelane_b32 v{vST}, s{sL}, 10')
        a(f'v_lshlrev_b32 v4, 2, v{vLANE}')
        a(f'buffer_store_dword v{vST}, v4, s[{rT}:{rT+3}], 0 offen')
    a('s_endpgm')
    a.label('K2_ZROWS')
    a(f's_mov_b64 exec, s[{sSV}:{sSV+1}]')
    for i in range(4):
        a(f'v_mov_b32 v{TR+i}, 0')
    for nd in range(2):
        a(f'v_cmp_eq_u32 vcc, 0, v{TQ+nd}')
        a(f's_and_b64 exec, vcc, s[{sSV}:{sSV+1}]')
        for k in range(32):
            a(f'ds_write_b128 v{nROW0}, v[{TR}:{TR+3}] offset:{nd*ROWB + 16*k}')
        a(f's_mov_b64 exec, s[{sSV}:{sSV+1}]')
    a('s_mov_b64 exec, -1')
    a('s_branch K2_ZBACK')

    a.label('K2_SLOW')
    w_frags()
    consts()
    a('s_waitcnt vmcnt(0) lgkmcnt(0)')
    a('s_barrier')
    a(f's_lshl_b32 s{t1}, s2, 10')
    a(f's_add_u32 s{t1}, s{t1}, {WS_TAB2}')
    srd_off(a, rT, sWS, f's{t1}', 1024)
    a(f'v_lshlrev_b32 v{tA}, 4, v{vLANE}')
    a(f'buffer_load_dwordx4 v[{TQ}:{TQ+3}], v{tA}, s[{rT}:{rT+3}], 0 offen')
    a('s_waitcnt vmcnt(0)')
    a(f'v_max_u32 v{tE}, v{TQ}, v{TQ+1}')
    a(f'v_max3_u32 v{tE}, v{tE}, v{TQ+2}, v{TQ+3}')
    wave_scan(a, 'v_max_u32', tE)
    a('s_nop 0')
    a(f'v_readlane_b32 s{t1}, v{tE}, 63')
    a(f's_add_u32 s{t1}, s{t1}, {WSLOW-1}')
    a(f's_mul_i32 s{t1}, s{t1}, 5042')
    a(f's_lshr_b32 s{sNP}, s{t1}, 16')
    a(f's_mov_b32 s{sP}, 0')
    for i in range(4):
        a(f'v_mov_b32 v{TR+i}, 0')
    a(f'v_lshrrev_b32 v{tA}, 5, v0')
    a(f'v_mul_u32_u24 v{tA}, {ROWB}, v{tA}')
    a(f'v_and_b32 v{tB}, 31, v{vLANE}')
    a(f'v_lshl_add_u32 v{tA}, v{tB}, 4, v{tA}')
    a(f'v_add_u32 v{tA}, {L_ACC}, v{tA}')
    for i in range(6):
        a(f'ds_write_b128 v{tA}, v[{TR}:{TR+3}]')
        a(f'v_add_u32 v{tA}, {16*ROWB}, v{tA}')
    a(f'v_cmp_gt_u32 vcc, 64, v0')
    a(f's_and_saveexec_b64 s[{sSV}:{sSV+1}], vcc')
    a(f'ds_write_b128 v{tA}, v[{TR}:{TR+3}]')
    a(f's_mov_b64 exec, s[{sSV}:{sSV+1}]')
    a.label('K2_SPASS')
    a(f's_lshl_b32 s{t1}, s2, 10')
    a(f's_add_u32 s{t1}, s{t1}, {WS_TAB}')
    srd_off(a, rT, sWS, f's{t1}', WS_TAB2 - WS_TAB + 1024)
    a(f'v_lshrrev_b32 v{tD}, 4, v{vLANE}')
    a(f'v_lshlrev_b32 v{tD}, 5, v{tD}')
    a(f's_lshl_b32 s{t0}, s{sW}, 7')
    a(f'v_add_u32 v{tD}, s{t0}, v{tD}')
    a(f's_mov_b32 s{t0}, {WS_TAB2 - WS_TAB}')
    for i in range(2):
        a(f'buffer_load_dwordx4 v[{SG+4*i}:{SG+4*i+3}], v{tD}, s[{rT}:{rT+3}], 0 offen offset:{16*i}')
    for i in range(2):
        a(f'buffer_load_dwordx4 v[{AX+4*i}:{AX+4*i+3}], v{tD}, s[{rT}:{rT+3}], s{t0} offen offset:{16*i}')
    a(f'v_and_b32 v{tC}, 15, v{vLANE}')
    a(f's_mul_i32 s{t0}, s{sP}, {WSLOW}')
    a(f'v_cmp_gt_u32 vcc, {WSLOW}, v{tC}')
    a(f'v_add_u32 v{tC}, s{t0}, v{tC}')
    a(f'v_lshlrev_b32 v{tB}, 3, v{tC}')
    a(f'v_mov_b32 v{tD}, 0x10000')
    a(f'v_cndmask_b32 v{tC}, v{tD}, v{tC}, vcc')
    a('s_waitcnt vmcnt(0)')
    for it in range(8):
        a(f'v_cmp_gt_u32 s[{MK+2*it}:{MK+2*it+1}], v{AX+it}, v{tC}')
        a(f's_mov_b64 s[{MK+16+2*it}:{MK+16+2*it+1}], 0')
    rec_loads(tB, 8)
    lds_init()
    a('s_waitcnt vmcnt(0) lgkmcnt(0)')
    a('s_barrier')
    hist()
    a('s_waitcnt lgkmcnt(0)')
    a('s_barrier')
    scan_nodes('S')
    qi_fill('S', False)
    scatter()
    a('s_waitcnt lgkmcnt(0)')
    a('s_barrier')
    a(f's_cmp_eq_u32 s{sL}, 0')
    a('s_cbranch_scc1 K2_SNEXT')
    setup_ptrs()
    a('s_waitcnt lgkmcnt(0)')
    for ins in dma_addr(): a(ins)
    for ins in dma_issue(): a(ins)
    forced_flags()
    pipeline_fill()
    main_loop('S', True)
    a.label('K2_SNEXT')
    a('s_waitcnt vmcnt(0) lgkmcnt(0)')
    a('s_barrier')
    a(f's_add_u32 s{sP}, s{sP}, 1')
    a(f's_cmp_lt_u32 s{sP}, s{sNP}')
    a('s_cbranch_scc1 K2_SPASS')
    epilogue('S', False)
    a.label('K2_END')
    a('s_endpgm')
    return nvgpr, nsgpr

def kd(name, nv, ns):
    acc = (nv + 3) // 4 * 4
    return f'''.amdhsa_kernel {name}
  .amdhsa_next_free_vgpr {nv}
  .amdhsa_next_free_sgpr {ns}
  .amdhsa_accum_offset {acc}
  .amdhsa_group_segment_fixed_size 0
  .amdhsa_kernarg_size 96
  .amdhsa_user_sgpr_count 2
  .amdhsa_user_sgpr_kernarg_segment_ptr 1
  .amdhsa_system_sgpr_workgroup_id_x 1
  .amdhsa_float_denorm_mode_32 3
.end_amdhsa_kernel
'''

def build(opts=None):
    opts = opts or {}
    a = Asm()
    gen_k1(a, opts)
    nv, ns = gen_k2(a, opts)
    out = HEADER
    out += f'; @launch kernel=gs_part_kernel grid=(256,1,1) block=({K1_THREADS},1,1) lds={LDS_K1}\n'
    out += f'; @launch kernel=gs_main_kernel grid=(256,1,1) block=({NW*64},1,1) lds={LDS_MAIN}\n'
    out += '.amdgcn_target "amdgcn-amd-amdhsa--gfx950"\n.text\n'
    out += a.text()
    out += '.section .rodata,"a"\n.p2align 6\n'
    out += kd('gs_part_kernel', 60, 60)
    out += '.p2align 6\n'
    out += kd('gs_main_kernel', nv, ns)
    return out

if __name__ == '__main__':
    path = sys.argv[1] if len(sys.argv) > 1 else 'gather_scatter__edge_featured_mpnn_gatedgcn__graph.s'
    opts = {}
    for o in sys.argv[2:]:
        k, _, val = o.partition('=')
        opts[k] = int(val) if val else True
    open(path, 'w').write(build(opts))
    print('written', path, 'LDS', LDS_MAIN)
```

```python
import sys, os, struct
sys.path.insert(0, os.path.dirname(__file__))
from asmlib import *

N = 25000; E = 800000
NBK = 256
CH = 3136
RECB = CH * 8
WS_TAB = 0x700000
WS_TAB2 = 0x740000
WS_FRAG = 0x780000
MAGIC_B = 43980466
LOG2E = 0xBFB8AA3B
SBITS = 50
C_SCALE = (127 - SBITS) << 23
EPS_SCALED = 0x4E8637BD
assert abs(struct.unpack('<f', struct.pack('<I', EPS_SCALED))[0] / (1e-6 * 2.0**50) - 1) < 1e-6

NW = 8
NSTREAM = 16
NIT = 16
CAP = 3456
WSLOW = 13
ROWB = 784
MAXN = 98
ENT_QUADS = 960
VROWB = 640
L_CNT = 0
L_ZERO = 512
L_TAB = 1024
L_QI = 1536
L_ENT = L_QI + ENT_QUADS * 4
L_ACC = L_ENT + ENT_QUADS * 16
L_VIRT = L_ACC + MAXN * ROWB
L_WST = L_VIRT + NSTREAM * VROWB
L_WST = (L_WST + 255) // 256 * 256
L_DMA = L_WST + 16384
LDS_MAIN = L_DMA + NW * 4096
assert LDS_MAIN <= 163840, LDS_MAIN
assert L_ACC % 16 == 0 and L_VIRT % 16 == 0

K1_THREADS = 896
K1_HIST = 0
K1_STAGE = 1024
LDS_K1 = K1_STAGE + RECB

HEADER = open(os.path.join(os.path.dirname(__file__), 'header.txt')).read()

def srd(a, sreg, ptr, size):
    a(f's_mov_b32 s{sreg}, s{ptr}')
    a(f's_and_b32 s{sreg+1}, s{ptr+1}, 0xffff')
    a(f's_mov_b32 s{sreg+2}, {size}')
    a(f's_mov_b32 s{sreg+3}, 0x20000')

def srd_off(a, sreg, ptr, off, size):
    a(f's_add_u32 s{sreg}, s{ptr}, {off}')
    a(f's_addc_u32 s{sreg+1}, s{ptr+1}, 0')
    a(f's_and_b32 s{sreg+1}, s{sreg+1}, 0xffff')
    a(f's_mov_b32 s{sreg+2}, {size}')
    a(f's_mov_b32 s{sreg+3}, 0x20000')

def wave_scan(a, op, r):
    for sh in (1, 2, 4, 8):
        a('s_nop 1')
        a(f'{op}_dpp v{r}, v{r}, v{r} row_shr:{sh} row_mask:0xf bank_mask:0xf')
    a('s_nop 1')
    a(f'{op}_dpp v{r}, v{r}, v{r} row_bcast:15 row_mask:0xa bank_mask:0xf')
    a('s_nop 1')
    a(f'{op}_dpp v{r}, v{r}, v{r} row_bcast:31 row_mask:0xc bank_mask:0xf')

def wave_scan2(a, op1, r1, op2, r2):
    steps = [f'row_shr:{sh} row_mask:0xf bank_mask:0xf' for sh in (1, 2, 4, 8)] + \
            ['row_bcast:15 row_mask:0xa bank_mask:0xf', 'row_bcast:31 row_mask:0xc bank_mask:0xf']
    a('s_nop 1')
    for st in steps:
        a(f'{op1}_dpp v{r1}, v{r1}, v{r1} {st}')
        a(f'{op2}_dpp v{r2}, v{r2}, v{r2} {st}')
        a('s_nop 0')

def gen_k1(a, opts):
    a.raw('.p2align 8')
    a.raw('.globl gs_part_kernel')
    a.raw('.type gs_part_kernel,@function')
    a.label('gs_part_kernel')
    a('s_cmp_ge_u32 s2, 256')
    a('s_cbranch_scc1 K1_END')
    a('s_load_dwordx4 s[4:7], s[0:1], 8')
    a('s_load_dwordx2 s[8:9], s[0:1], 24')
    a('s_load_dwordx2 s[10:11], s[0:1], 88')
    a('s_load_dwordx2 s[44:45], s[0:1], 0')
    if opts.get('dbgtime'):
        a('s_memrealtime s[54:55]')
        a('s_waitcnt lgkmcnt(0)')
        a('s_cmp_ge_u32 s2, 8')
        a('s_cbranch_scc1 K1_NODBG')
        a('v_mov_b32 v20, s54')
        a('s_lshl_b32 s56, s2, 2')
        a('s_add_u32 s56, s56, 0x1200000')
        a('v_mov_b32 v22, s56')
        a('v_cmp_eq_u32 vcc, 0, v0')
        a('s_and_saveexec_b64 s[58:59], vcc')
        a('global_store_dword v22, v20, s[10:11]')
        a('s_mov_b64 exec, s[58:59]')
        a.label('K1_NODBG')
    a('v_lshrrev_b32 v1, 6, v0')
    a('s_mul_i32 s12, s2, %d' % (CH * 4))
    a('v_readfirstlane_b32 s3, v1')
    a('s_lshr_b32 s13, s12, 1')
    a('v_lshlrev_b32 v2, 4, v0')
    a('v_add_u32 v2, s12, v2')
    a('s_cmp_eq_u32 s3, 13')
    a('s_cbranch_scc1 K1_FRAG')
    a('v_lshlrev_b32 v3, 3, v0')
    a('v_add_u32 v3, s13, v3')
    a('s_waitcnt lgkmcnt(0)')
    srd(a, 20, 8, E * 4)
    a('buffer_load_dwordx4 v[4:7], v2, s[20:23], 0 offen')
    srd(a, 24, 6, E * 4)
    a('buffer_load_dwordx4 v[8:11], v2, s[24:27], 0 offen')
    srd(a, 28, 4, E * 2)
    a('buffer_load_dwordx2 v[12:13], v3, s[28:31], 0 offen')
    if opts.get('xpre', 1):
        a('s_and_b32 s46, s2, 7')
        a('s_lshr_b32 s47, s2, 3')
        a('s_lshl_b32 s46, s46, 5')
        a('s_add_u32 s46, s46, s47')
        a('s_mul_i32 s46, s46, 3125')
        a('s_add_u32 s46, s46, 31')
        a('s_lshr_b32 s46, s46, 5')
        a('s_lshl_b32 s46, s46, 7')
        a('s_and_b32 s45, s45, 0xffff')
        a('s_mov_b32 s48, s44')
        a('s_mov_b32 s49, s45')
        a('s_mov_b32 s50, %d' % (N * 128))
        a('s_mov_b32 s51, 0x20000')
        a('v_lshlrev_b32 v40, 4, v0')
        a('buffer_load_dwordx4 v[56:59], v40, s[48:51], s46 offen')
    a('v_lshlrev_b32 v14, 2, v0')
    a('v_mov_b32 v15, 0')
    a('v_cmp_gt_u32 vcc, 256, v0')
    a('s_and_saveexec_b64 s[18:19], vcc')
    a('ds_write_b32 v14, v15 offset:%d' % K1_HIST)
    a('s_mov_b64 exec, s[18:19]')
    a('v_cmp_gt_u32 vcc, %d, v0' % (CH // 4))
    a('s_mov_b32 s14, %d' % (E * 4))
    a('v_cmp_gt_u32 s[16:17], s14, v2')
    a('s_and_b64 s[16:17], s[16:17], vcc')
    a('s_mul_i32 s15, s2, %d' % RECB)
    srd_off(a, 32, 10, 's15', RECB)
    srd_off(a, 36, 10, WS_TAB, 0x80000)
    a('s_mov_b32 s40, %d' % MAGIC_B)
    a('s_movk_i32 s41, 3125')
    a('v_mov_b32 v15, 1')
    a('s_waitcnt lgkmcnt(0)')
    a('s_barrier')
    a('s_mov_b64 exec, s[16:17]')
    a('s_cbranch_execz K1_NOEDGE1')
    a('s_waitcnt vmcnt(%d)' % (3 if opts.get('xpre', 1) else 2))
    for k in range(4):
        a(f'v_mul_hi_u32 v{16+k}, v{4+k}, s40')
    for k in range(4):
        a(f'v_lshlrev_b32 v{20+k}, 2, v{16+k}')
        a(f'ds_add_rtn_u32 v{24+k}, v{20+k}, v15 offset:{K1_HIST}')
    for k in range(4):
        a(f'v_mul_u32_u24 v{28+k}, s41, v{16+k}')
        a(f'v_add_u32 v{28+k}, 31, v{28+k}')
        a(f'v_lshrrev_b32 v{28+k}, 5, v{28+k}')
        a(f'v_sub_u32 v{28+k}, v{4+k}, v{28+k}')
        a(f'v_lshlrev_b32 v{33+2*k}, 2, v{28+k}')
    a('s_waitcnt vmcnt(%d)' % (1 if opts.get('xpre', 1) else 0))
    a('s_mov_b32 s42, 0xffff0000')
    a('v_lshl_or_b32 v32, v12, 16, v8')
    a('v_and_or_b32 v34, v12, s42, v9')
    a('v_lshl_or_b32 v36, v13, 16, v10')
    a('v_and_or_b32 v38, v13, s42, v11')
    a.label('K1_NOEDGE1')
    a('s_mov_b64 exec, -1')
    a('s_waitcnt lgkmcnt(0)')
    a('s_barrier')
    a('s_cmp_lg_u32 s3, 0')
    a('s_cbranch_scc1 K1_SCANDONE')
    a('v_lshlrev_b32 v40, 4, v0')
    a('ds_read_b128 v[44:47], v40 offset:%d' % K1_HIST)
    a('v_lshlrev_b32 v41, 12, v0')
    a('s_lshl_b32 s15, s2, 2')
    a('v_add_u32 v41, s15, v41')
    a('s_waitcnt lgkmcnt(0)')
    a('v_add_u32 v48, v44, v45')
    a('v_add_u32 v49, v48, v46')
    a('v_add_u32 v50, v49, v47')
    a('v_mov_b32 v51, v50')
    wave_scan(a, 'v_add_u32', 51)
    a('v_sub_u32 v52, v51, v50')
    a('v_add_u32 v53, v52, v44')
    a('v_add_u32 v54, v52, v48')
    a('v_add_u32 v55, v52, v49')
    a('ds_write_b128 v40, v[52:55] offset:%d' % K1_HIST)
    a('s_mul_i32 s15, s2, %d' % CH)
    a('s_mov_b32 s43, %d' % (WS_TAB2 - WS_TAB))
    for k in range(4):
        a(f'buffer_store_dword v{44+k}, v41, s[36:39], s43 offen offset:{k*1024}' + (' sc1' if opts.get('tabst', 0) else ''))
        a(f'v_min_u32 v{48+k}, 0xff, v{44+k}')
        a(f'v_add_u32 v{52+k}, s15, v{52+k}')
        a(f'v_lshl_or_b32 v{48+k}, v{48+k}, 24, v{52+k}')
        a(f'buffer_store_dword v{48+k}, v41, s[36:39], 0 offen offset:{k*1024}' + (' sc1' if opts.get('tabst', 0) else ''))
    a.label('K1_SCANDONE')
    a('s_waitcnt lgkmcnt(0)')
    a('s_barrier')
    a('s_mov_b64 exec, s[16:17]')
    a('s_cbranch_execz K1_NOEDGE2')
    for k in range(4):
        a(f'ds_read_b32 v{28+k}, v{20+k} offset:{K1_HIST}')
    for k in range(4):
        a(f's_waitcnt lgkmcnt({3 if k == 0 else 3})')
        a(f'v_add_lshl_u32 v{28+k}, v{28+k}, v{24+k}, 3')
        a(f'ds_write_b64 v{28+k}, v[{32+2*k}:{33+2*k}] offset:{K1_STAGE}')
    a.label('K1_NOEDGE2')
    a('s_mov_b64 exec, -1')
    a('v_lshlrev_b32 v2, 4, v0')
    a('v_add_u32 v3, %d, v2' % (RECB // 2))
    a('v_cmp_gt_u32 vcc, %d, v0' % (CH // 4))
    a('s_waitcnt lgkmcnt(0)')
    a('s_barrier')
    a('s_and_saveexec_b64 s[18:19], vcc')
    a('s_cbranch_execz K1_END')
    a('ds_read_b128 v[4:7], v2 offset:%d' % K1_STAGE)
    a('ds_read_b128 v[8:11], v2 offset:%d' % (K1_STAGE + RECB // 2))
    a('s_waitcnt lgkmcnt(1)')
    sfx = {0: '', 1: ' sc1', 2: ' nt', 3: ' sc0 sc1', 4: ' sc1 nt'}[opts.get('k1st', 1)]
    a('buffer_store_dwordx4 v[4:7], v2, s[32:35], 0 offen' + sfx)
    a('s_waitcnt lgkmcnt(0)')
    a('buffer_store_dwordx4 v[8:11], v3, s[32:35], 0 offen' + sfx)
    if opts.get('dbgtime'):
        a('s_waitcnt vmcnt(0)')
        a('s_memrealtime s[54:55]')
        a('s_waitcnt lgkmcnt(0)')
        a('s_cmp_ge_u32 s2, 8')
        a('s_cbranch_scc1 K1_END')
        a('s_cmp_lg_u32 s3, 0')
        a('s_cbranch_scc1 K1_END')
        a('v_mov_b32 v20, s54')
        a('s_lshl_b32 s56, s2, 2')
        a('s_add_u32 s56, s56, 0x1200100')
        a('v_mov_b32 v22, s56')
        a('s_mov_b64 exec, 1')
        a('global_store_dword v22, v20, s[10:11]')
    a('s_endpgm')
    a.label('K1_FRAG')
    if opts.get('codepre', 0):
        a('s_cmp_lt_u32 s2, 32')
        a('s_cbranch_scc1 K1_FRAG2')
        a('s_cmp_ge_u32 s2, 64')
        a('s_cbranch_scc1 K1_END')
        a('s_getpc_b64 s[12:13]')
        a.label('K1_PCREF')
        a('s_add_u32 s12, s12, gs_main_kernel-K1_PCREF')
        a('s_addc_u32 s13, s13, 0')
        a('v_and_b32 v1, 63, v0')
        a('v_lshlrev_b32 v2, 4, v1')
        for i in range(opts.get('codekb', 20)):
            a(f'global_load_dwordx4 v[4:7], v2, s[12:13]')
            a('v_add_u32 v2, 1024, v2')
        a('s_endpgm')
        a.label('K1_FRAG2')
    a('s_cmp_ge_u32 s2, 32')
    a('s_cbranch_scc1 K1_END')
    a('s_load_dwordx4 s[12:15], s[0:1], 32')
    a('s_load_dwordx4 s[16:19], s[0:1], 56')
    a('s_lshr_b32 s20, s2, 3')
    a('s_waitcnt lgkmcnt(0)')
    a('s_mov_b32 s22, s14')
    a('s_mov_b32 s23, s15')
    a('s_cmp_eq_u32 s20, 1')
    a('s_cselect_b32 s22, s18, s22')
    a('s_cselect_b32 s23, s19, s23')
    a('s_cmp_eq_u32 s20, 2')
    a('s_cselect_b32 s22, s12, s22')
    a('s_cselect_b32 s23, s13, s23')
    a('s_cmp_eq_u32 s20, 3')
    a('s_cselect_b32 s22, s16, s22')
    a('s_cselect_b32 s23, s17, s23')
    srd(a, 24, 22, 64 * 64 * 2)
    srd_off(a, 28, 10, WS_FRAG, 32 * 1024)
    a('s_and_b32 s32, s2, 3')
    a('s_lshr_b32 s33, s2, 2')
    a('s_and_b32 s33, s33, 1')
    a('s_lshl_b32 s32, s32, 11')
    a('s_lshl_b32 s33, s33, 6')
    a('s_add_u32 s32, s32, s33')
    a('v_and_b32 v1, 63, v0')
    a('v_and_b32 v2, 31, v1')
    a('v_lshlrev_b32 v2, 1, v2')
    a('v_lshrrev_b32 v3, 5, v1')
    a('v_lshlrev_b32 v3, 10, v3')
    a('v_add3_u32 v2, v2, v3, s32')
    for i in range(8):
        a(f'buffer_load_ushort v{8+i}, v2, s[24:27], 0 offen offset:{i*128}')
    a('s_mov_b32 s34, 1.0')
    a('s_and_b32 s36, s20, 1')
    a('s_cmp_eq_u32 s36, 0')
    a('s_cselect_b32 s34, 0x%x, s34' % LOG2E)
    a('s_waitcnt vmcnt(0)')
    for i in range(8):
        a(f'v_lshlrev_b32 v{8+i}, 16, v{8+i}')
        a(f'v_mul_f32 v{8+i}, s34, v{8+i}')
    for i in range(4):
        a(f'v_cvt_pk_bf16_f32 v{16+i}, v{8+2*i}, v{9+2*i}')
    a('v_lshlrev_b32 v4, 4, v1')
    a('s_lshl_b32 s35, s2, 10')
    a('v_add_u32 v4, s35, v4')
    a('buffer_store_dwordx4 v[16:19], v4, s[28:31], 0 offen')
    a.label('K1_END')
    a('s_endpgm')

def gen_k2(a, opts):
    STAMP = opts.get('stamp', False)
    vLANE = 1; BC = 2
    WB = 4; WV = 36; AX = 68
    GA = 84; HA = 100; GB = 116; HB = 132
    PP = 148; TT_ = 156; ZZ = 164
    DEN = 172; NUM = 176
    AE = [180, 184]; BE = 188; R0 = 192
    QA = [196, 200]
    EN = 204; RA = 208; CO = 212
    pEN = 216; pEE = 217; pQI = 218; pQF = 219
    C4 = 220; SEL = [221, 222]; EE = 223; QF = 224
    F0 = 225; F1 = 226
    tA = 227; tB = 228; tC = 229; tD = 230; tE = 231; tF = 232; tG = 233; tH = 234; tI = 235
    TQ = 236; TR = 240
    sidA = 244; jA = 245; sidR = 246; iR4 = 247
    vST = 248; GF = 249; GD = 250
    nvgpr = 252
    REC = PP; RK = GB; SG = HB
    G_ = [GA, GB]; H_ = [HA, HB]
    nOFF0 = AE[0]+0 if False else QA[0]; nOFF1 = QA[0]+1; nEND0 = QA[0]+2; nEND1 = QA[0]+3; nROW0 = QA[1]
    S = Regs('s', 3, 102)
    sX = S.alloc('x', 2, 2); sWC = S.alloc('wc', 2, 2); sOUT = S.alloc('out', 2, 2); sWS = S.alloc('ws', 2, 2)
    rX = S.alloc('rX', 4, 4); rT = S.alloc('rT', 4, 4); rR = S.alloc('rR', 4, 4); rF = S.alloc('rF', 4, 4)
    sW = S.alloc('w'); sNS = S.alloc('ns'); sNN = S.alloc('nn')
    sP = S.alloc('pass'); sNP = S.alloc('npass')
    sL = S.alloc('L'); sCNT = S.alloc('cnt'); sLA = S.alloc('La'); sLB = S.alloc('Lb'); sSO = S.alloc('streamoff')
    sC = S.alloc('C', 2, 2)
    sF = [S.alloc('F0', 2, 2), S.alloc('F1', 2, 2)]
    sANY = [S.alloc('any0'), S.alloc('any1')]
    s128 = S.alloc('c128'); sLO = S.alloc('lo16'); sHI = S.alloc('hi16')
    t0 = S.alloc('t0'); t1 = S.alloc('t1'); t2 = S.alloc('t2', 1, 2); t3 = S.alloc('t3')
    sSV = S.alloc('sv', 2, 2); sSV2 = S.alloc('sv2', 2, 2)
    sDB = S.alloc('dmabase'); sSWAP = S.alloc('swap')
    sDBG = S.alloc('dbg', 2, 2) if opts.get('dbgtime') else None
    sT0 = S.alloc('dbgt0', 2, 2) if opts.get('dbgtime') else None
    sT1 = S.alloc('dbgt1') if opts.get('dbgtime') else None
    sT2 = S.alloc('dbgt2') if opts.get('dbgtime') else None
    MK = S.alloc('MK', 32, 2)
    rO = rT
    nsgpr = S.hi
    def stamp(i):
        if not STAMP: return
        a(f's_memtime s[{t2}:{t3}]')
        a('s_waitcnt lgkmcnt(0)')
        a(f'v_writelane_b32 v{vST}, s{t2}, {i}')
    XB = 4096

    a.raw('.p2align 8')
    a.raw('.globl gs_main_kernel')
    a.raw('.type gs_main_kernel,@function')
    a.label('gs_main_kernel')
    a('s_cmp_ge_u32 s2, 256')
    a('s_cbranch_scc1 K2_END')
    a(f's_load_dwordx2 s[{sWS}:{sWS+1}], s[0:1], 88')
    a(f's_load_dwordx2 s[{sX}:{sX+1}], s[0:1], 0')
    a(f's_load_dwordx2 s[{sWC}:{sWC+1}], s[0:1], 48')
    a(f's_load_dwordx2 s[{sOUT}:{sOUT+1}], s[0:1], 72')
    a('s_and_b32 s3, s2, 7')
    a('s_lshr_b32 s2, s2, 3')
    a('s_lshl_b32 s3, s3, 5')
    a('s_add_u32 s2, s2, s3')
    if opts.get('dbgtime'):
        a(f's_load_dwordx2 s[{sDBG}:{sDBG+1}], s[0:1], 80')
        a(f's_memrealtime s[{sT0}:{sT0+1}]')
        a('s_waitcnt lgkmcnt(0)')
    if STAMP:
        a(f'v_mov_b32 v{vST}, 0')
    stamp(0)
    if STAMP:
        a(f's_memrealtime s[{t2}:{t3}]')
        a('s_waitcnt lgkmcnt(0)')
        a(f'v_writelane_b32 v{vST}, s{t2}, 11')
    a(f'v_lshrrev_b32 v{tA}, 6, v0')
    a(f'v_and_b32 v{vLANE}, 63, v0')
    a(f'v_readfirstlane_b32 s{sW}, v{tA}')
    a(f'v_lshrrev_b32 v{sidA}, 5, v{vLANE}')
    if opts.get('proprio'):
        a('s_nop 2')
        a(f's_cmp_ge_u32 s{sW}, 4')
        a('s_cbranch_scc0 K2_PP0')
        a('s_setprio 1')
        a.label('K2_PP0')
    a(f's_lshl_b32 s{t1}, s2, 10')
    a(f's_add_u32 s{t1}, s{t1}, {WS_TAB}')
    a(f's_lshl_b32 s{t0}, s{sW}, 1')
    a(f'v_add_u32 v{sidA}, s{t0}, v{sidA}')
    a(f'v_lshrrev_b32 v{tD}, 4, v{vLANE}')
    a(f'v_lshlrev_b32 v{tD}, 5, v{tD}')
    a(f's_lshl_b32 s{t0}, s{sW}, 7')
    a(f'v_add_u32 v{tD}, s{t0}, v{tD}')
    a(f'v_lshlrev_b32 v{tA}, 4, v{vLANE}')
    a('s_waitcnt lgkmcnt(0)')
    srd_off(a, rT, sWS, f's{t1}', 1024)
    for i in range(2):
        a(f'buffer_load_dwordx4 v[{SG+4*i}:{SG+4*i+3}], v{tD}, s[{rT}:{rT+3}], 0 offen offset:{16*i}')
    a(f's_mul_i32 s{t0}, s2, 3125')
    a(f's_add_u32 s{sNS}, s{t0}, 31')
    a(f's_lshr_b32 s{sNS}, s{sNS}, 5')
    a(f's_add_u32 s{t0}, s{t0}, {3125+31}')
    a(f's_lshr_b32 s{t0}, s{t0}, 5')
    a(f's_sub_u32 s{sNN}, s{t0}, s{sNS}')
    a(f's_sub_u32 s{rX}, s{sX}, {XB}')
    a(f's_subb_u32 s{rX+1}, s{sX+1}, 0')
    a(f's_and_b32 s{rX+1}, s{rX+1}, 0xffff')
    a(f's_mov_b32 s{rX+2}, {N*128 + XB}')
    a(f's_mov_b32 s{rX+3}, 0x20000')
    srd_off(a, rF, sWS, WS_FRAG, 32 * 1024)
    a(f's_lshl_b32 s{sDB}, s{sW}, 12')
    a(f's_add_u32 s{sDB}, s{sDB}, {L_DMA}')
    a(f'v_bfe_u32 v{tE}, v{vLANE}, 4, 1')
    a(f'v_and_b32 v{tF}, 7, v{vLANE}')
    a(f'v_xor_b32 v{tE}, v{tE}, v{tF}')
    a(f'v_lshlrev_b32 v{tE}, 4, v{tE}')
    for i in range(4):
        if i: a(f'v_xor_b32 v{tF}, {32*i}, v{tE}')
        a(f'v_add_u32 v{CO+i}, {XB - 1024*i}, v{tF if i else tE}')
    a(f'v_bfe_u32 v{jA}, v{vLANE}, 3, 2')
    a(f'v_lshrrev_b32 v{tF}, 5, v{vLANE}')
    a(f'v_lshlrev_b32 v{tE}, 3, v{jA}')
    a(f'v_lshl_add_u32 v{tE}, v{tF}, 2, v{tE}')
    a(f's_lshr_b32 s{t0}, s{sW}, 1')
    a(f's_lshl_b32 s{t1}, s{t0}, 5')
    a(f's_add_u32 s{t1}, s{t1}, s{sNS}')
    a(f's_and_b32 s{t2}, s{sW}, 1')
    a(f's_lshl_b32 s{t2}, s{t2}, 1')
    a(f's_add_u32 s{t1}, s{t1}, s{t2}')
    a(f'v_add_u32 v{tE}, s{t1}, v{tE}')
    a(f'v_lshlrev_b32 v{tE}, 7, v{tE}')
    a(f's_cmp_eq_u32 s{t2}, 0')
    a(f's_cbranch_scc0 K2_XI2')
    a(f'v_add_u32 v{tH}, v{tE}, v{CO}')
    a(f'v_add_u32 v{tI}, v{tE}, v{CO+1}')
    a('s_branch K2_XI')
    a.label('K2_XI2')
    a(f'v_add_u32 v{tH}, v{tE}, v{CO+2}')
    a(f'v_add_u32 v{tI}, v{tE}, v{CO+3}')
    a(f'v_add_u32 v{tH}, 2048, v{tH}')
    a(f'v_add_u32 v{tI}, 2048, v{tI}')
    a.label('K2_XI')
    a(f'v_add_u32 v{tI}, 128, v{tI}')
    a(f'v_and_b32 v{C4}, 31, v{vLANE}')
    def staging():
        a(f's_lshr_b32 s{t0}, s{sW}, 1')
        a(f's_lshl_b32 s{t0}, s{t0}, 12')
        a(f's_and_b32 s{t2}, s{sW}, 1')
        a(f's_lshl_b32 s{t2}, s{t2}, 11')
        a(f's_add_u32 s{t0}, s{t0}, s{t2}')
        a(f's_add_u32 s{t0}, s{t0}, {L_DMA}')
        a(f's_mov_b32 m0, s{t0}')
        a(f'v_lshlrev_b32 v{tA}, 4, v{vLANE}')
        a(f'buffer_load_dwordx4 v{tH}, s[{rX}:{rX+3}], 0 offen lds')
        a(f'buffer_load_dwordx4 v{tI}, s[{rX}:{rX+3}], 0 offen offset:1024 lds')
        a(f's_lshl_b32 s{t0}, s{sW}, 11')
        a(f's_add_u32 s{t1}, s{t0}, {L_DMA + 4*4096}')
        a(f's_mov_b32 m0, s{t1}')
        a(f's_add_u32 s{t2}, s{t0}, {16*1024}')
        a(f'buffer_load_dwordx4 v{tA}, s[{rF}:{rF+3}], s{t2} offen lds')
        a(f'buffer_load_dwordx4 v{tA}, s[{rF}:{rF+3}], s{t2} offen offset:1024 lds')
        a(f's_add_u32 s{t1}, s{t0}, {L_WST}')
        a(f's_mov_b32 m0, s{t1}')
        a('s_nop 0')
        a(f'buffer_load_dwordx4 v{tA}, s[{rF}:{rF+3}], s{t0} offen lds')
        a(f'buffer_load_dwordx4 v{tA}, s[{rF}:{rF+3}], s{t0} offen offset:1024 lds')
        srd(a, rR, sWC, 128)
        a(f'v_lshlrev_b32 v{tE}, 1, v{C4}')
        a(f'buffer_load_ushort v{BC}, v{tE}, s[{rR}:{rR+3}], 0 offen')
        a(f'buffer_load_ushort v{BC+1}, v{tE}, s[{rR}:{rR+3}], 0 offen offset:64')
    staging()
    def lds_init():
        a(f'v_lshlrev_b32 v{tE}, 4, v0')
        for i in range(4):
            a(f'v_mov_b32 v{TR+i}, 0xffff')
        a(f'ds_write_b128 v{tE}, v[{TR}:{TR+3}] offset:{L_ENT}')
        a(f's_cmp_ge_u32 s{sW}, {(ENT_QUADS - 512) // 64}')
        a(f's_cbranch_scc1 K2_I1{tag_i[0]}')
        a(f'ds_write_b128 v{tE}, v[{TR}:{TR+3}] offset:{L_ENT + 512*16}')
        a.label(f'K2_I1{tag_i[0]}')
        assert (ENT_QUADS - 512) % 64 == 0
        for i in range(4):
            a(f'v_mov_b32 v{TR+i}, {L_VIRT}')
        a(f'v_cmp_gt_u32 vcc, {ENT_QUADS // 4}, v0')
        a(f's_and_saveexec_b64 s[{sSV}:{sSV+1}], vcc')
        a(f'ds_write_b128 v{tE}, v[{TR}:{TR+3}] offset:{L_QI}')
        a(f's_mov_b64 exec, s[{sSV}:{sSV+1}]')
        a(f's_cmp_lg_u32 s{sW}, 0')
        a(f's_cbranch_scc1 K2_I2{tag_i[0]}')
        for i in range(4):
            a(f'v_mov_b32 v{TR+i}, 0')
        a(f'ds_write_b128 v{tE}, v[{TR}:{TR+3}] offset:{L_CNT}')
        a(f'v_add_u32 v{tE}, {L_VIRT + 512}, v{tE}')
        a('s_mov_b64 exec, 0xff')
        a(f'ds_write_b128 v{tE}, v[{TR}:{TR+3}]')
        a('s_mov_b64 exec, -1')
        a.label(f'K2_I2{tag_i[0]}')
        tag_i[0] += 1
    tag_i = [0]
    lds_init()
    a(f'v_and_b32 v{tE}, 3, v{vLANE}')
    a(f'v_lshlrev_b32 v{iR4}, 2, v{tE}')
    a(f'v_lshl_add_u32 v{RA}, v{tE}, 3, v{jA}')
    a(f'v_lshrrev_b32 v{tF}, 1, v{jA}')
    a(f'v_lshl_add_u32 v{tE}, v{tE}, 1, v{tF}')
    a(f'v_bfe_u32 v{tF}, v{vLANE}, 2, 1')
    a(f's_lshl_b32 s{t0}, s{sW}, 1')
    a(f'v_add_u32 v{sidR}, s{t0}, v{tF}')
    a(f'v_lshl_add_u32 v{RA}, v{tF}, 2, v{RA}')
    a(f'v_lshrrev_b32 v{tG}, 5, v{vLANE}')
    a(f'v_cmp_eq_u32 vcc, v{tF}, v{tG}')
    a(f'v_xor_b32 v{tE}, v{tE}, v{tG}')
    a(f'v_lshlrev_b32 v{tE}, 4, v{tE}')
    a(f'v_lshl_add_u32 v{RA}, v{RA}, 7, v{tE}')
    a(f'v_mov_b32 v{tF}, 0x3f80')
    a(f'v_cndmask_b32 v{tF}, 0, v{tF}, vcc')
    for q in range(4):
        a(f'v_cmp_eq_u32 vcc, {q}, v{jA}')
        a('s_nop 1')
        a(f'v_cndmask_b32 v{AE[0]+q}, 0, v{tF}, vcc')
        a(f'v_lshlrev_b32 v{AE[1]+q}, 16, v{AE[0]+q}')
    a(f'v_cmp_gt_u32 vcc, 32, v{vLANE}')
    a(f'v_mov_b32 v{tE}, 0x0a0c0100')
    a(f'v_mov_b32 v{tF}, 0x07060100')
    a(f'v_cndmask_b32 v{SEL[0]}, v{tE}, v{tF}, vcc')
    a(f'v_mov_b32 v{tE}, 0x03020a0c')
    a(f'v_mov_b32 v{tF}, 0x03020706')
    a(f'v_cndmask_b32 v{SEL[1]}, v{tE}, v{tF}, vcc')
    a(f's_mov_b32 s{sC}, 0x{C_SCALE:x}')
    a(f's_mov_b32 s{sC+1}, 0x{C_SCALE:x}')
    a(f's_mov_b32 s{s128}, 128')
    a(f's_mov_b32 s{sLO}, 0xffff')
    a(f's_mov_b32 s{sHI}, 0xffff0000')
    a(f'v_and_b32 v{tB}, 15, v{vLANE}')
    a(f'v_lshlrev_b32 v{tB}, 3, v{tB}')
    a(f'v_lshlrev_b32 v{C4}, 2, v{C4}')
    a('s_waitcnt vmcnt(0) lgkmcnt(0)')
    stamp(1)
    a('s_barrier')
    srd(a, rR, sWS, NBK * RECB)
    def rec_loads(vk8, nit):
        for it in range(8):
            a(f'v_mad_u32_u24 v{RK+it}, v{SG+it}, 8, v{vk8}')
        for it in range(nit):
            a(f's_mov_b64 exec, s[{MK+2*it}:{MK+2*it+1}]')
            off = ' offset:128' if it >= 8 else ''
            sk = a.newlabel('skl') if (it >= 8 and opts.get('skipb', 1)) else None
            if sk: a(f's_cbranch_execz {sk}')
            a(f'buffer_load_dwordx2 v[{REC+2*it}:{REC+2*it+1}], v{RK+it%8}, s[{rR}:{rR+3}], 0 offen{off}')
            if sk: a.label(sk)
        a('s_mov_b64 exec, -1')
    a(f'v_lshrrev_b32 v{tC}, 3, v{tB}')
    a(f'v_add_u32 v{tD}, 16, v{tC}')
    for it in range(8):
        a(f'v_cmp_gt_u32_sdwa s[{MK+2*it}:{MK+2*it+1}], v{SG+it}, v{tC} src0_sel:BYTE_3 src1_sel:DWORD')
    for it in range(8):
        a(f'v_cmp_gt_u32_sdwa s[{MK+16+2*it}:{MK+16+2*it+1}], v{SG+it}, v{tD} src0_sel:BYTE_3 src1_sel:DWORD')
    stamp(25)
    rec_loads(tB, 16)
    stamp(26)
    a(f'v_max3_u32 v{tD}, v{SG}, v{SG+1}, v{SG+2}')
    a(f'v_max3_u32 v{tD}, v{tD}, v{SG+3}, v{SG+4}')
    a(f'v_max3_u32 v{tD}, v{tD}, v{SG+5}, v{SG+6}')
    a(f'v_max_u32 v{tD}, v{tD}, v{SG+7}')
    a(f'v_lshrrev_b32 v{tD}, 24, v{tD}')
    a(f'v_cmp_lt_u32 s[{sSV2}:{sSV2+1}], 32, v{tD}')

    def gemm_issue():
        a(f's_lshr_b32 s{t0}, s{sW}, 1')
        a(f's_lshl_b32 s{t1}, s{t0}, 12')
        a(f's_add_u32 s{t1}, s{t1}, {L_DMA}')
        a(f'v_add_u32 v{tA}, s{t1}, v{RA}')
        a(f'v_xor_b32 v{tB}, 32, v{tA}')
        a(f'ds_read_b128 v[{AX}:{AX+3}], v{tA}')
        a(f'ds_read_b128 v[{AX+4}:{AX+7}], v{tB}')
        a(f'v_xor_b32 v{tB}, 64, v{tA}')
        a(f'v_xor_b32 v{tC}, 96, v{tA}')
        a(f'ds_read_b128 v[{AX+8}:{AX+11}], v{tB}')
        a(f'ds_read_b128 v[{AX+12}:{AX+15}], v{tC}')
        a(f's_and_b32 s{t2}, s{sW}, 1')
        a(f's_lshl_b32 s{t3}, s{t2}, 13')
        a(f's_add_u32 s{t3}, s{t3}, {L_DMA + 4*4096}')
        a(f'v_lshlrev_b32 v{GF}, 4, v{vLANE}')
        a(f'v_add_u32 v{GF}, s{t3}, v{GF}')
        for f in range(4):
            a(f'ds_read_b128 v[{SG+4*f}:{SG+4*f+3}], v{GF} offset:{f*1024}')
        for f in range(4):
            a(f'ds_read_b128 v[{RK+4*f}:{RK+4*f+3}], v{GF} offset:{(4+f)*1024}')
        a(f's_mul_i32 s{t1}, s{t0}, {32*ROWB}')
        a(f's_lshl_b32 s{t3}, s{t2}, 7')
        a(f's_add_u32 s{t1}, s{t1}, s{t3}')
        a(f's_add_u32 s{t1}, s{t1}, {L_ACC + 512}')
        a(f'v_lshrrev_b32 v{GD}, 5, v{vLANE}')
        a(f'v_mul_u32_u24 v{GD}, {4*ROWB}, v{GD}')
        a(f'v_add3_u32 v{GD}, v{GD}, v{C4}, s{t1}')
    def gemm_mid():
        a('s_waitcnt lgkmcnt(0)')
        for kp in range(4):
            c = '0' if kp == 0 else f'v[{GA}:{GA+15}]'
            a(f'v_mfma_f32_32x32x16_bf16 v[{GA}:{GA+15}], v[{AX+4*kp}:{AX+4*kp+3}], v[{SG+4*kp}:{SG+4*kp+3}], {c}')
            c = '0' if kp == 0 else f'v[{HA}:{HA+15}]'
            a(f'v_mfma_f32_32x32x16_bf16 v[{HA}:{HA+15}], v[{AX+4*kp}:{AX+4*kp+3}], v[{RK+4*kp}:{RK+4*kp+3}], {c}')
    def gemm_mid2():
        a('s_nop 7')
        a('s_nop 3')
    def w_frags():
        a(f'v_lshlrev_b32 v{GF}, 4, v{vLANE}')
        a(f'v_add_u32 v{GF}, {L_WST}, v{GF}')
        for f in range(16):
            dst = (WB + 4*f) if f < 8 else (WV + 4*(f-8))
            a(f'ds_read_b128 v[{dst}:{dst+3}], v{GF} offset:{f*1024}')
    def gemm_store(tag):
        for i in range(16):
            a(f'v_cvt_pk_bf16_f32 v{GA+i}, v{GA+i}, v{HA+i}')
        a(f's_lshr_b32 s{t0}, s{sW}, 1')
        a(f's_cmp_eq_u32 s{t0}, 3')
        a(f's_cbranch_scc1 K2_RT3{tag}')
        for vv in range(16):
            a(f'ds_write_b32 v{GD}, v{GA+vv} offset:{(8*(vv//4) + vv%4) * ROWB}')
        a(f's_branch K2_RTD{tag}')
        a.label(f'K2_RT3{tag}')
        a('s_mov_b32 exec_hi, 0')
        for vv in range(2):
            a(f'ds_write_b32 v{GD}, v{GA+vv} offset:{vv * ROWB}')
        a('s_mov_b64 exec, -1')
        a.label(f'K2_RTD{tag}')
    def consts():
        a(f'v_add_u32 v{RA}, s{sDB}, v{RA}')
        for kp in range(1, 4):
            a(f'v_xor_b32 v{RA+kp}, {32*kp}, v{RA}')
        a(f's_mov_b32 s{t3}, 0x{LOG2E:x}')
        for cc in range(2):
            a(f'v_lshlrev_b32 v{BC+cc}, 16, v{BC+cc}')
            a(f'v_mul_f32 v{BC+cc}, s{t3}, v{BC+cc}')
        a(f'v_cvt_pk_bf16_f32 v{BC}, 0, v{BC}')
        a(f'v_cvt_pk_bf16_f32 v{BC+1}, v{BC+1}, 0')
        a(f'v_cmp_gt_u32 vcc, 32, v{vLANE}')
        a(f'v_mov_b32 v{tG}, 0xb2000000')
        a(f'v_mov_b32 v{tH}, 0xb200')
        a(f'v_cndmask_b32 v{BC}, v{tG}, v{BC}, vcc')
        a(f'v_cndmask_b32 v{BC+1}, v{tH}, v{BC+1}, vcc')

    def hist():
        a(f'v_mov_b32 v{tE}, 1')
        for it in range(NIT):
            a(f's_mov_b64 exec, s[{MK+2*it}:{MK+2*it+1}]')
            sk = a.newlabel('skh') if (it >= 8 and opts.get('skipb', 1)) else None
            if sk: a(f's_cbranch_execz {sk}')
            a(f'ds_add_rtn_u32 v{RK+it}, v{REC+2*it+1}, v{tE} offset:{L_CNT}')
            if sk: a.label(sk)
        a('s_mov_b64 exec, -1')

    def scan_nodes(tag, mid=None):
        a(f'v_lshlrev_b32 v{tA}, 3, v{vLANE}')
        a(f'ds_read_b64 v[{TQ}:{TQ+1}], v{tA} offset:{L_CNT}')
        a(f'v_mul_u32_u24 v{nROW0}, {2*ROWB}, v{vLANE}')
        a(f'v_add_u32 v{nROW0}, {L_ACC}, v{nROW0}')
        if mid: mid()
        else: a('s_waitcnt lgkmcnt(0)')
        a(f'v_add_u32 v{tE}, 3, v{TQ}')
        a(f'v_add_u32 v{tF}, 3, v{TQ+1}')
        a(f'v_and_b32 v{tE}, -4, v{tE}')
        a(f'v_and_b32 v{tF}, -4, v{tF}')
        a(f'v_add_u32 v{tC}, v{tE}, v{tF}')
        a(f'v_max_u32 v{tB}, v{tE}, v{tF}')
        a(f'v_mov_b32 v{tD}, v{tC}')
        wave_scan(a, 'v_add_u32', tD)
        a(f'v_sub_u32 v{nOFF0}, v{tD}, v{tC}')
        a(f'v_readlane_b32 s{t1}, v{tD}, 63')
        a(f'v_add_u32 v{nOFF1}, v{nOFF0}, v{tE}')
        a(f'v_lshlrev_b32 v{TQ+2}, 2, v{nOFF0}')
        a(f'v_lshlrev_b32 v{TQ+3}, 2, v{nOFF1}')
        a(f'ds_write_b64 v{tA}, v[{TQ+2}:{TQ+3}] offset:{L_TAB}')
        a(f'v_mov_b32 v{nEND0}, v{nOFF1}')
        a(f'v_add_u32 v{nEND1}, v{nOFF1}, v{tF}')
        a(f's_add_u32 s{t1}, s{t1}, 127')
        a(f's_lshr_b32 s{t1}, s{t1}, 7')
        a(f's_lshr_b32 s{t0}, s{t1}, 1')
        a(f's_sub_u32 s{t1}, s{t1}, s{t0}')
        a(f's_lshl_b32 s{sLA}, s{t1}, 2')
        a(f's_lshl_b32 s{sLB}, s{t0}, 2')
        a(f's_sub_u32 s{sSO}, s{sLA}, s{sLB}')
        a(f's_lshl_b32 s{sSO}, s{sSO}, 3')
        a(f's_cmp_lt_u32 s{sW}, 4')
        a(f's_cselect_b32 s{sL}, s{sLA}, s{sLB}')
        a(f's_cselect_b32 s{sSO}, 0, s{sSO}')
        a(f's_lshr_b32 s{sCNT}, s{sL}, 2')
        a(f's_sub_u32 s{sCNT}, s{sCNT}, 1')
    def qi_fill(tag, split):
        B0 = TQ + 2; B1 = TQ + 3; V0 = TR + 1; V1 = TR + 2
        a(f'v_max_u32 v{TR}, v{tE}, v{tF}')
        if split:
            a(f'v_cvt_f32_u32 v{tA}, s{sLA}')
            a(f'v_cvt_f32_u32 v{tD}, s{sLB}')
            a(f'v_rcp_f32 v{tA}, v{tA}')
            a(f'v_rcp_f32 v{tD}, v{tD}')
            a(f's_lshl_b32 s{t0}, s{sLA}, 5')
            a(f's_sub_u32 s{t1}, s{sLA}, s{sLB}')
            a(f's_lshl_b32 s{t1}, s{t1}, 5')
            a(f'v_mul_f32 v{tA}, 0.25, v{tA}')
            a(f'v_mul_f32 v{tD}, 0.25, v{tD}')
            for (OFF, nx, B, Vv) in ((nOFF0, tB, B0, V0), (nOFF1, tC, B1, V1)):
                a(f'v_cmp_gt_u32 vcc, s{t0}, v{OFF}')
                a(f'v_subrev_u32 v{tG}, s{t1}, v{OFF}')
                a('s_nop 0')
                a(f'v_cndmask_b32 v{tG}, v{tG}, v{OFF}, vcc')
                a(f'v_cndmask_b32 v{tH}, v{tD}, v{tA}, vcc')
                a(f'v_cvt_f32_u32 v{tG}, v{tG}')
                a(f'v_add_f32 v{tG}, 2.0, v{tG}')
                a(f'v_mul_f32 v{tG}, v{tH}, v{tG}')
                a(f'v_cvt_u32_f32 v{nx}, v{tG}')
                a(f'v_add_u32 v{nx}, 1, v{nx}')
                a(f'v_mov_b32 v{tG}, s{sLB}')
                a(f'v_mov_b32 v{tH}, s{sLA}')
                a(f'v_cndmask_b32 v{tG}, v{tG}, v{tH}, vcc')
                a(f'v_mov_b32 v{tH}, s{t1}')
                a(f'v_cndmask_b32 v{tH}, v{tH}, 0, vcc')
                a(f'v_lshlrev_b32 v{tG}, 2, v{tG}')
                a(f'v_mad_u32_u24 v{B}, v{nx}, v{tG}, v{tH}')
            a(f's_movk_i32 s{t1}, {VROWB}')
            a(f'v_mov_b32 v{tD}, {L_VIRT}')
            a(f'v_mad_u32_u24 v{V0}, v{tB}, s{t1}, v{tD}')
            a(f'v_mad_u32_u24 v{V1}, v{tC}, s{t1}, v{tD}')
            a(f'v_add_u32 v{tD}, {ROWB}, v{nROW0}')
            for nd, (B, Vv, END, nx) in enumerate(((B0, V0, nEND0, tB), (B1, V1, nEND1, tC))):
                lab = a.newlabel('nosplit')
                a(f'v_lshrrev_b32 v{tG}, 1, v{nx}')
                a(f'v_cmp_lt_u32 vcc, v{B}, v{END}')
                a(f'v_cmp_eq_u32 s[{sSV}:{sSV+1}], s{sW}, v{tG}')
                a(f's_and_b64 vcc, vcc, s[{sSV}:{sSV+1}]')
                a(f's_cbranch_scc0 {lab}')
                lp = a.newlabel('splitlp')
                a.label(lp)
                a(f's_ff1_i32_b64 s{t0}, vcc')
                a(f's_bitset0_b64 vcc, s{t0}')
                a(f'v_readlane_b32 s{t2}, v{nROW0 if nd == 0 else tD}, s{t0}')
                a(f'v_readlane_b32 s{t3}, v{Vv}, s{t0}')
                a(f'v_lshrrev_b32 v{tG}, 0, v{C4}')
                a('s_mov_b32 exec_hi, 0')
                a(f'v_add_u32 v{tH}, s{t2}, v{tG}')
                a(f'ds_read_b32 v{tI}, v{tH} offset:512')
                a(f'v_add_u32 v{tH}, s{t3}, v{tG}')
                a(f'v_mov_b32 v{tG}, s{t2}')
                a(f'v_mov_b32 v{tA}, s{t3}')
                a(f'ds_write_b32 v{tG}, v{tA} offset:768')
                a('s_waitcnt lgkmcnt(1)')
                a(f'ds_write_b32 v{tH}, v{tI} offset:512')
                a('s_mov_b64 exec, -1')
                a(f's_cmp_lg_u64 vcc, 0')
                a(f's_cbranch_scc1 {lp}')
                a.label(lab)
        a(f's_lshl_b32 s{t0}, s{sW}, 2')
        a(f'v_add_u32 v{tA}, s{t0}, v{nOFF0}')
        a(f'v_add_u32 v{tB}, s{t0}, v{nOFF1}')
        a(f'v_add_u32 v{tC}, {ROWB}, v{nROW0}')
        lp = f'K2_QF{tag}'
        a.label(lp)
        a(f's_add_u32 s{t1}, s{t0}, 4')
        a(f'v_cmp_eq_u32 s[{sSV}:{sSV+1}], s{t1}, v{tE}')
        a(f'v_cmp_eq_u32 s[{sSV2}:{sSV2+1}], s{t1}, v{tF}')
        if split:
            a(f'v_add_u32 v{tG}, 4, v{tA}')
            a(f'v_add_u32 v{tH}, 4, v{tB}')
            a(f'v_cmp_eq_u32 vcc, v{tG}, v{B0}')
            a(f's_or_b64 s[{sSV}:{sSV+1}], s[{sSV}:{sSV+1}], vcc')
            a(f'v_cmp_eq_u32 vcc, v{tH}, v{B1}')
            a(f's_or_b64 s[{sSV2}:{sSV2+1}], s[{sSV2}:{sSV2+1}], vcc')
            a(f'v_cmp_ge_u32 vcc, v{tA}, v{B0}')
            a('s_nop 1')
            a(f'v_cndmask_b32 v{tG}, v{nROW0}, v{V0}, vcc')
            a(f'v_cmp_ge_u32 vcc, v{tB}, v{B1}')
            a('s_nop 1')
            a(f'v_cndmask_b32 v{tH}, v{tC}, v{V1}, vcc')
        else:
            a(f'v_mov_b32 v{tG}, v{nROW0}')
            a(f'v_mov_b32 v{tH}, v{tC}')
        a(f'v_or_b32 v{tD}, 0x80000000, v{tG}')
        a(f'v_or_b32 v{tI}, 0x80000000, v{tH}')
        a(f'v_cmp_lt_u32 vcc, s{t0}, v{tE}')
        a(f'v_cndmask_b32 v{tG}, v{tG}, v{tD}, s[{sSV}:{sSV+1}]')
        a(f'v_cndmask_b32 v{tH}, v{tH}, v{tI}, s[{sSV2}:{sSV2+1}]')
        a(f'v_cmp_lt_u32 s[{sSV}:{sSV+1}], s{t0}, v{tF}')
        a('s_mov_b64 exec, vcc')
        a(f'ds_write_b32 v{tA}, v{tG} offset:{L_QI}')
        a(f's_mov_b64 exec, s[{sSV}:{sSV+1}]')
        a(f'ds_write_b32 v{tB}, v{tH} offset:{L_QI}')
        a('s_mov_b64 exec, -1')
        a(f's_add_u32 s{t0}, s{t0}, 32')
        a(f'v_add_u32 v{tA}, 32, v{tA}')
        a(f'v_add_u32 v{tB}, 32, v{tB}')
        a(f'v_cmp_lt_u32 vcc, s{t0}, v{TR}')
        a(f's_cbranch_vccnz {lp}')
    def scatter():
        a('s_waitcnt lgkmcnt(0)')
        for it in range(8):
            a(f's_mov_b64 exec, s[{MK+2*it}:{MK+2*it+1}]')
            a(f'ds_read_b32 v{AX+it}, v{REC+2*it+1} offset:{L_TAB}')
        for it in range(8):
            a(f's_mov_b64 exec, s[{MK+2*it}:{MK+2*it+1}]')
            a('s_waitcnt lgkmcnt(7)')
            a(f'v_lshl_add_u32 v{AX+it}, v{RK+it}, 2, v{AX+it}')
            a(f'ds_write_b32 v{AX+it}, v{REC+2*it} offset:{L_ENT}')
        for it in range(8, 16):
            sk = a.newlabel('sks')
            a(f's_mov_b64 exec, s[{MK+2*it}:{MK+2*it+1}]')
            if opts.get('skipb', 1): a(f's_cbranch_execz {sk}')
            a(f'ds_read_b32 v{AX+it}, v{REC+2*it+1} offset:{L_TAB}')
            a('s_waitcnt lgkmcnt(0)')
            a(f'v_lshl_add_u32 v{AX+it}, v{RK+it}, 2, v{AX+it}')
            a(f'ds_write_b32 v{AX+it}, v{REC+2*it} offset:{L_ENT}')
            a.label(sk)
        a('s_mov_b64 exec, -1')

    def setup_ptrs():
        a(f'v_add_u32 v{tB}, s{sSO}, v{jA}')
        a(f'v_mad_u32_u24 v{tA}, v{sidA}, s{sL}, v{tB}')
        a(f'v_lshlrev_b32 v{pEN}, 4, v{tA}')
        a(f'ds_read_b128 v[{EN}:{EN+3}], v{pEN} offset:{L_ENT}')
        a(f'v_lshlrev_b32 v{pQF}, 2, v{tA}')
        a(f'v_sub_u32 v{pQI}, v{tA}, v{jA}')
        a(f'v_lshlrev_b32 v{pQI}, 2, v{pQI}')
        a(f'v_add_u32 v{pQI}, {L_QI}, v{pQI}')
        a(f'v_mad_u32_u24 v{tA}, v{sidR}, s{sL}, v{tB}')
        a(f'v_lshl_add_u32 v{pEE}, v{tA}, 4, v{iR4}')
        a(f's_mov_b32 m0, s{sDB}')

    def dma_addr():
        return [f'v_mad_u32_u16 v{EN+i}, v{EN+i}, s{s128}, v{CO+i}' for i in range(4)]
    def dma_issue():
        if opts.get('nodma'): return []
        return [f'buffer_load_dwordx4 v{EN+i}, s[{rX}:{rX+3}], 0 offen offset:{1024*i} lds' if i else
                f'buffer_load_dwordx4 v{EN}, s[{rX}:{rX+3}], 0 offen lds' for i in range(4)]

    def main_loop(tag, atomic):
        flush_blocks = []
        def flush_body(cc, par, j):
            a(f's_bfe_i32 exec_lo, s{sF[par]}, 0x{(1<<16)|(8*j):x}')
            a(f's_bfe_i32 exec_hi, s{sF[par]+1}, 0x{(1<<16)|(8*j):x}')
            a(f'v_add_f32 v{F0}, v{DEN+2*cc}, v{DEN+2*cc+1}')
            a(f'v_add_f32 v{F1}, v{NUM+2*cc}, v{NUM+2*cc+1}')
            a(f'v_mov_b64 v[{DEN+2*cc}:{DEN+2*cc+1}], 0')
            a(f'v_mov_b64 v[{NUM+2*cc}:{NUM+2*cc+1}], 0')
            if atomic:
                a(f'ds_add_f32 v{QA[par]+j}, v{F0} offset:{cc*128}')
                a(f'ds_add_f32 v{QA[par]+j}, v{F1} offset:{256+cc*128}')
            else:
                a(f'ds_write2_b32 v{QA[par]+j}, v{F0}, v{F1} offset0:{cc*32} offset1:{64+cc*32}')
            a('s_mov_b64 exec, -1')
        def post(cc, par, nq_check):
            for j in range(4):
                p = PP + 2*j; t = TT_ + 2*j; z = ZZ + 2*j
                a(f'v_pk_fma_f32 v[{NUM+2*cc}:{NUM+2*cc+1}], v[{p}:{p+1}], v[{t}:{t+1}], v[{NUM+2*cc}:{NUM+2*cc+1}]')
                a(f'v_pk_fma_f32 v[{DEN+2*cc}:{DEN+2*cc+1}], v[{p}:{p+1}], v[{z}:{z+1}], v[{DEN+2*cc}:{DEN+2*cc+1}]')
                if opts.get('noflush'): continue
                fl = a.newlabel('fl'); back = a.newlabel('bk')
                a(f's_bitcmp1_b32 s{sANY[par]}, {8*j}')
                if opts.get('inlinefl', 0):
                    a(f's_cbranch_scc0 {back}')
                    flush_body(cc, par, j)
                    a.label(back)
                else:
                    a(f's_cbranch_scc1 {fl}')
                    a.label(back)
                    flush_blocks.append((fl, back, cc, par, j))
        def pre(cur):
            g0 = G_[cur]; h0 = H_[cur]
            for j in range(4):
                g = g0 + 4*j
                a(f'v_pk_fma_f32 v[{g}:{g+1}], v[{g}:{g+1}], s[{sC}:{sC+1}], s[{sC}:{sC+1}] clamp')
                a(f'v_pk_fma_f32 v[{g+2}:{g+3}], v[{g+2}:{g+3}], s[{sC}:{sC+1}], s[{sC}:{sC+1}] clamp')
            for j in range(4):
                g = g0 + 4*j; h = h0 + 4*j
                X = f'v[{g}:{g+1}]'; Y = f'v[{g+2}:{g+3}]'
                p = PP + 2*j; t = TT_ + 2*j; z = ZZ + 2*j
                a(f'v_pk_mul_f32 v[{t}:{t+1}], {Y}, v[{h}:{h+1}]')
                a(f'v_pk_mul_f32 v[{p}:{p+1}], {X}, {Y}')
                a(f'v_pk_add_f32 v[{z}:{z+1}], {X}, {Y}')
                a(f'v_pk_fma_f32 v[{t}:{t+1}], {X}, v[{h+2}:{h+3}], v[{t}:{t+1}]')
        def mfma_list(nxt, cc):
            Gs = f'v[{G_[nxt]}:{G_[nxt]+15}]'; Hs = f'v[{H_[nxt]}:{H_[nxt]+15}]'
            out = []
            for kp in range(4):
                wb = WB + 16*cc + 4*kp; wv = WV + 16*cc + 4*kp; ax = AX + 4*kp
                out.append(f'v_mfma_f32_32x32x16_bf16 {Hs}, v[{ax}:{ax+3}], v[{wv}:{wv+3}], {"0" if kp == 0 else Hs}')
                out.append(f'v_mfma_f32_32x32x16_bf16 {Gs}, v[{ax}:{ax+3}], v[{wb}:{wb+3}], {"0" if kp == 0 else Gs}')
            out.append(f'v_mfma_f32_32x32x16_bf16 {Gs}, v[{AE[cc]}:{AE[cc]+3}], v[{BE}:{BE+3}], {Gs}')
            return out
        def trans_list(cur):
            return [f'v_rcp_f32 v{PP+i}, v{PP+i}' for i in range(8)] + [f'v_exp_f32 v{G_[cur]+i}, v{G_[cur]+i}' for i in range(16)]
        def weave(mf, tr, gaps):
            dist = [3, 3, 3, 3, 3, 3, 2, 2, 2]
            if opts.get('nogaps'): gaps = {}
            def keep(ins):
                if opts.get('nods') and ins.startswith('ds_'): return False
                if opts.get('novalu') and ins.startswith('v_'): return False
                if opts.get('nowait') and ins.startswith('s_waitcnt'): return False
                if opts.get('novm') and ins.startswith('buffer_'): return False
                return True
            gaps = {k_: [i_ for i_ in v_ if keep(i_)] for k_, v_ in gaps.items()}
            if opts.get('nomf'): mf = None
            k = 0
            for m in range(9):
                for ins in gaps.get(('m', m), []): a(ins)
                if mf: a(mf[m])
                for _ in range(dist[m]):
                    a(tr[k])
                    for ins in gaps.get(k, []): a(ins)
                    k += 1
            assert k == len(tr)
        def stage0(par):
            g = {}
            da = dma_addr()
            g[0] = [f'ds_read_b32 v{QF}, v{pQF} offset:{L_QI + 16*(par+1)}']
            g[1] = [f'ds_read_b32 v{EE}, v{pEE} offset:{L_ENT + 64*(par+1)}']
            g[3] = [f'v_and_or_b32 v{BE}, v{R0}, s{sHI}, v{BC+1}']
            g[6] = [da[0]]; g[9] = [da[1]]; g[12] = [da[2]]; g[15] = [da[3]]
            weave(mfma_list(1, 1), trans_list(0), g)
            post(1, par ^ 1, False)
            qn = QA[par ^ 1]
            if not opts.get('nogaps') and not opts.get('nopds'):
                a(f'ds_read2_b32 v[{qn}:{qn+1}], v{pQI} offset0:{4*(par+1)} offset1:{4*(par+1)+1}')
                a(f'ds_read2_b32 v[{qn+2}:{qn+3}], v{pQI} offset0:{4*(par+1)+2} offset1:{4*(par+1)+3}')
                a('s_waitcnt vmcnt(0)')
                for kp in range(4):
                    a(f'ds_read_b128 v[{AX+4*kp}:{AX+4*kp+3}], v{RA+kp}')
            pre(0)
            a(f's_sub_u32 s{sCNT}, s{sCNT}, 1')
        def stage1(par):
            qn = QA[par ^ 1]
            g = {}
            di = dma_issue()
            g[('m', 0)] = ['s_waitcnt lgkmcnt(0)']
            g[0] = [f'v_mad_u32_u24 v{qn}, v{qn}, 1, v{C4}'] + di[0:1]
            g[1] = [f'v_mad_u32_u24 v{qn+1}, v{qn+1}, 1, v{C4}'] + di[1:2]
            g[2] = [f'ds_read_b32 v{R0}, v{qn} offset:512'] + di[2:3]
            g[3] = [f'v_mad_u32_u24 v{qn+2}, v{qn+2}, 1, v{C4}', f'ds_read_b32 v{BE+1}, v{qn+1} offset:512'] + di[3:4]
            g[4] = [f'v_mad_u32_u24 v{qn+3}, v{qn+3}, 1, v{C4}', f'ds_read_b32 v{BE+2}, v{qn+2} offset:512']
            g[5] = [f'ds_read_b32 v{BE+3}, v{qn+3} offset:512']
            g[6] = [f'ds_read_b128 v[{EN}:{EN+3}], v{pEN} offset:{L_ENT + 64*(par+3)}']
            g[7] = [f'v_perm_b32 v{AE[0]}, v{EE}, v{AE[0]}, v{SEL[0]}']
            g[9] = [f'v_perm_b32 v{AE[1]}, v{EE}, v{AE[1]}, v{SEL[1]}']
            g[11] = [f'v_cmp_gt_i32 s[{sF[par^1]}:{sF[par^1]+1}], 0, v{QF}']
            if par == 1:
                g[13] = [f'v_add_u32 v{pQI}, 32, v{pQI}']
                g[14] = [f'v_add_u32 v{pQF}, 32, v{pQF}']
                g[15] = [f'v_add_u32 v{pEE}, 128, v{pEE}']
                g[16] = [f'v_add_u32 v{pEN}, 128, v{pEN}']
            g[17] = [f's_or_b32 s{sANY[par^1]}, s{sF[par^1]}, s{sF[par^1]+1}'] if not opts.get('noany') else [f's_mov_b32 s{sANY[par^1]}, 0']
            g[19] = ['s_waitcnt lgkmcnt(0)', f'v_and_or_b32 v{BE}, v{R0}, s{sLO}, v{BC}']
            weave(mfma_list(0, 0), trans_list(1), g)
            post(0, par, False)
            pre(1)
        def last_stage1(par):
            weave(None, trans_list(1), {})
            post(0, par, True)
            pre(1)
            for i in range(8):
                a(f'v_rcp_f32 v{PP+i}, v{PP+i}')
            a('s_nop 0')
            post(1, par, True)
        L0 = f'K2_T0{tag}'; E0 = f'K2_E0{tag}'; E1 = f'K2_E1{tag}'; DONE = f'K2_MD{tag}'
        PR = opts.get('prio', 1)
        if PR:
            a(f's_add_u32 s{t0}, s{sCNT}, 1')
            a(f's_lshr_b32 s{t0}, s{t0}, {2 if PR == 1 else 1}')
            if PR == 3: a(f's_lshr_b32 s{t0}, s{t0}, 0')
            a(f's_lshl_b32 s{t0}, s{t0}, 1')
            a(f's_sub_u32 s{sSWAP}, s{sCNT}, s{t0}')
            a(f's_cmp_ge_u32 s{sW}, 4')
            a(f's_cbranch_scc0 K2_PR0{tag}')
            a('s_setprio 1')
            a.label(f'K2_PR0{tag}')
        a.label(L0)
        if PR:
            a(f's_cmp_eq_u32 s{sCNT}, s{sSWAP}')
            a(f's_cbranch_scc1 K2_SWP{tag}')
            a.label(f'K2_SWB{tag}')
        stage0(0)
        a(f's_cbranch_scc1 {E0}')
        stage1(0)
        stage0(1)
        a(f's_cbranch_scc1 {E1}')
        stage1(1)
        a(f's_branch {L0}')
        a.label(E0)
        last_stage1(0)
        a(f's_branch {DONE}')
        a.label(E1)
        last_stage1(1)
        a(f's_branch {DONE}')
        if PR:
            a.label(f'K2_SWP{tag}')
            a(f's_cmp_ge_u32 s{sW}, 4')
            a(f's_cbranch_scc1 K2_SW0{tag}')
            a('s_setprio 1')
            a(f's_branch K2_SWB{tag}')
            a.label(f'K2_SW0{tag}')
            a('s_setprio 0')
            a(f's_branch K2_SWB{tag}')
        for (fl, back, cc, par, j) in flush_blocks:
            a.label(fl)
            flush_body(cc, par, j)
            a(f's_branch {back}')
        a.label(DONE)
        if PR: a('s_setprio 0')

    def pipeline_fill():
        q0 = QA[0]
        a(f'ds_read2_b32 v[{q0}:{q0+1}], v{pQI} offset0:0 offset1:1')
        a(f'ds_read2_b32 v[{q0+2}:{q0+3}], v{pQI} offset0:2 offset1:3')
        a(f'ds_read_b32 v{QF}, v{pQF} offset:{L_QI}')
        a(f'ds_read_b32 v{EE}, v{pEE} offset:{L_ENT}')
        a(f'ds_read_b128 v[{EN}:{EN+3}], v{pEN} offset:{L_ENT + 64}')
        for i in range(2):
            a(f'v_mov_b64 v[{DEN+2*i}:{DEN+2*i+1}], 0')
            a(f'v_mov_b64 v[{NUM+2*i}:{NUM+2*i+1}], 0')
        for i in range(8):
            a(f'v_mov_b32 v{PP+i}, 1.0')
        for i in range(4):
            a(f'v_mov_b64 v[{TT_+2*i}:{TT_+2*i+1}], 0')
            a(f'v_mov_b64 v[{ZZ+2*i}:{ZZ+2*i+1}], 0')
        a(f's_mov_b32 s{sANY[1]}, 0')
        a('s_waitcnt lgkmcnt(0)')
        for q in range(4):
            a(f'v_mad_u32_u24 v{q0+q}, v{q0+q}, 1, v{C4}')
        a(f'ds_read_b32 v{R0}, v{q0} offset:512')
        for q in range(1, 4):
            a(f'ds_read_b32 v{BE+q}, v{q0+q} offset:512')
        a(f'v_perm_b32 v{AE[0]}, v{EE}, v{AE[0]}, v{SEL[0]}')
        a(f'v_perm_b32 v{AE[1]}, v{EE}, v{AE[1]}, v{SEL[1]}')
        a(f'v_cmp_gt_i32 s[{sF[0]}:{sF[0]+1}], 0, v{QF}')
        for ins in dma_addr(): a(ins)
        stamp(21)
        a('s_waitcnt vmcnt(0)')
        stamp(22)
        for kp in range(4):
            a(f'ds_read_b128 v[{AX+4*kp}:{AX+4*kp+3}], v{RA+kp}')
        a(f's_or_b32 s{sANY[0]}, s{sF[0]}, s{sF[0]+1}')
        a('s_waitcnt lgkmcnt(0)')
        a(f'v_and_or_b32 v{BE}, v{R0}, s{sLO}, v{BC}')
        for ins in dma_issue(): a(ins)
        a(f'ds_read_b128 v[{EN}:{EN+3}], v{pEN} offset:{L_ENT + 128}')
        Gs = f'v[{GA}:{GA+15}]'; Hs = f'v[{HA}:{HA+15}]'
        for kp in range(4):
            a(f'v_mfma_f32_32x32x16_bf16 {Hs}, v[{AX+4*kp}:{AX+4*kp+3}], v[{WV+4*kp}:{WV+4*kp+3}], {"0" if kp == 0 else Hs}')
            a(f'v_mfma_f32_32x32x16_bf16 {Gs}, v[{AX+4*kp}:{AX+4*kp+3}], v[{WB+4*kp}:{WB+4*kp+3}], {"0" if kp == 0 else Gs}')
        a(f'v_mfma_f32_32x32x16_bf16 {Gs}, v[{AE[0]}:{AE[0]+3}], v[{BE}:{BE+3}], {Gs}')
        a('s_waitcnt lgkmcnt(0)')
        a('s_nop 7')
        a('s_nop 3')
    def forced_flags():
        a(f's_sub_u32 s{t1}, s{sL}, 1')
        a(f's_lshl_b32 s{t1}, s{t1}, 2')
        a(f'v_add_u32 v{tB}, s{t1}, v{pQI}')
        a(f'v_mov_b32 v{tA}, 0x80000000')
        a('s_mov_b32 exec_lo, 1')
        a('s_mov_b32 exec_hi, 1')
        a(f'ds_or_b32 v{tB}, v{tA}')
        a('s_mov_b64 exec, -1')

    stamp(2)
    a(f's_mov_b64 exec, s[{sSV2}:{sSV2+1}]')
    a(f'v_mov_b32 v{tD}, {L_CNT + 127*4}')
    a(f'v_mov_b32 v{tE}, 1')
    a(f'ds_write_b32 v{tD}, v{tE}')
    a('s_mov_b64 exec, -1')
    gemm_issue()
    stamp(28)
    gemm_mid()
    gemm_mid2()
    stamp(29)
    a(f's_cmp_lg_u32 s{sW}, 0')
    a('s_cbranch_scc1 K2_NOCI')
    a(f'v_mul_u32_u24 v{tA}, {2*ROWB}, v{vLANE}')
    a(f'v_mov_b32 v{tB}, {L_ZERO}')
    a(f'v_add_u32 v{tA}, {L_ACC}, v{tA}')
    a(f's_mov_b32 exec_hi, {(1 << (MAXN // 2 - 32)) - 1}')
    a(f'ds_write_b32 v{tA}, v{tB} offset:768')
    a(f'ds_write_b32 v{tA}, v{tB} offset:{768 + ROWB}')
    a('s_mov_b64 exec, -1')
    a.label('K2_NOCI')
    gemm_store('F')
    stamp(3)
    a('s_waitcnt vmcnt(0)')
    stamp(23)
    hist()
    a('s_waitcnt lgkmcnt(0)')
    stamp(24)
    if opts.get('proprio') == 1: a('s_setprio 0')
    a('s_barrier')
    stamp(4)
    scan_nodes('F')
    a(f'v_readlane_b32 s{t0}, v{TQ+1}, 63')
    a(f's_cmp_eq_u32 s{sLB}, 0')
    a(f's_cselect_b32 s{t1}, s{sLA}, s{sLB}')
    a(f's_lshl_b32 s{t1}, s{t1}, 2')
    a(f'v_cmp_lt_u32 vcc, s{t1}, v{tB}')
    a(f's_cmp_lg_u32 s{t0}, 0')
    a('s_cbranch_scc1 K2_SLOW')
    a(f's_add_u32 s{t1}, s{sLA}, s{sLB}')
    a(f's_cmp_gt_u32 s{t1}, {(ENT_QUADS - 8) // 8}')
    a('s_cbranch_scc1 K2_SLOW')
    a('s_cbranch_vccnz K2_SLOW')
    stamp(15)
    scatter()
    stamp(16)
    a('s_waitcnt lgkmcnt(0)')
    a('s_barrier')
    stamp(5)
    a(f's_cmp_eq_u32 s{sL}, 0')
    a('s_cbranch_scc1 K2_NOL')
    setup_ptrs()
    a('s_waitcnt lgkmcnt(0)')
    for ins in dma_addr(): a(ins)
    for ins in dma_issue(): a(ins)
    a.label('K2_NOL')
    stamp(17)
    a(f'v_cmp_gt_u32 vcc, {MAXN // 2}, v{vLANE}')
    a(f'v_lshl_or_b32 v{tB}, v{vLANE}, 1, 1')
    a(f'v_cmp_le_u32 s[{sSV}:{sSV+1}], s{sNN}, v{tB}')
    a(f'v_mov_b32 v{tC}, 1')
    a('s_nop 0')
    a(f'v_cndmask_b32 v{tB}, v{TQ+1}, v{tC}, s[{sSV}:{sSV+1}]')
    a(f'v_min_u32 v{tB}, v{TQ}, v{tB}')
    a(f'v_cmp_eq_u32 s[{sSV}:{sSV+1}], 0, v{tB}')
    a(f's_and_b64 s[{sSV}:{sSV+1}], s[{sSV}:{sSV+1}], vcc')
    a('s_cbranch_scc1 K2_ZROWS')
    a.label('K2_ZBACK')
    qi_fill('F', True)
    stamp(18)
    w_frags()
    consts()
    a('s_waitcnt lgkmcnt(0)')
    stamp(19)
    if opts.get('proprio') == 2: a('s_setprio 0')
    a('s_barrier')
    stamp(20)
    a(f's_cmp_eq_u32 s{sL}, 0')
    a('s_cbranch_scc1 K2_EPI')
    pipeline_fill()
    stamp(6)
    if opts.get('dbgtime'):
        a(f's_memrealtime s[{t2}:{t3}]')
        a('s_waitcnt lgkmcnt(0)')
        a(f's_mov_b32 s{sT1}, s{t2}')
    if STAMP:
        a(f's_memrealtime s[{t2}:{t3}]')
        a('s_waitcnt lgkmcnt(0)')
        a(f'v_writelane_b32 v{vST}, s{t2}, 13')
    if opts.get('half'):
        a(f's_cmp_ge_u32 s{sW}, 4')
        a('s_cbranch_scc1 K2_MDF')
    main_loop('F', False)
    stamp(7)
    if opts.get('dbgtime'):
        a(f's_memrealtime s[{t2}:{t3}]')
        a('s_waitcnt lgkmcnt(0)')
        a(f's_mov_b32 s{sT2}, s{t2}')
    if STAMP:
        a(f's_memrealtime s[{t2}:{t3}]')
        a('s_waitcnt lgkmcnt(0)')
        a(f'v_writelane_b32 v{vST}, s{t2}, 14')
    a.label('K2_EPI')
    e0 = 4
    XV = [e0, e0 + 4]; DN = e0 + 8; NM = e0 + 16; UU = e0 + 24; CD = e0 + 28; CN = e0 + 36; O = e0 + 44
    AD = e0 + 48; GO = [e0 + 49, e0 + 50]; T1 = e0 + 51; T2 = e0 + 52; CP = e0 + 53; ND = e0 + 54; OC = [e0 + 55, e0 + 56]; ADR = [e0 + 48, e0 + 57]
    def epi_addr(r):
        a(f'v_add_u32 v{T1}, {512*r}, v0') if r else a(f'v_mov_b32 v{T1}, v0')
        a(f'v_lshrrev_b32 v{ND}, 3, v{T1}')
        a(f'v_and_b32 v{T1}, 7, v{T1}')
        a(f'v_lshlrev_b32 v{OC[r]}, 4, v{T1}')
        a(f'v_mad_u32_u24 v{ADR[r]}, v{ND}, s{t0}, v{OC[r]}')
        a(f'v_add_u32 v{ADR[r]}, {L_ACC}, v{ADR[r]}')
        a(f'v_add_u32 v{GO[r]}, s{sNS}, v{ND}')
        a(f'v_lshlrev_b32 v{GO[r]}, 7, v{GO[r]}')
        a(f'v_lshl_add_u32 v{GO[r]}, v{T1}, 3, v{GO[r]}')
    def epi_body(r, carry):
        ad = ADR[r]; xv = XV[r]
        if carry:
            a(f'v_sub_u32 v{T2}, v{ad}, v{OC[r]}')
            a(f'ds_read_b32 v{CP}, v{T2} offset:768')
        a(f'ds_read_b128 v[{DN}:{DN+3}], v{ad}')
        a(f'ds_read_b128 v[{DN+4}:{DN+7}], v{ad} offset:128')
        a(f'ds_read_b128 v[{NM}:{NM+3}], v{ad} offset:256')
        a(f'ds_read_b128 v[{NM+4}:{NM+7}], v{ad} offset:384')
        a(f'ds_read_b128 v[{UU}:{UU+3}], v{ad} offset:640')
        if carry:
            a('s_waitcnt lgkmcnt(5)')
            a(f'v_add_u32 v{T2}, v{CP}, v{OC[r]}')
            a(f'ds_read_b128 v[{CD}:{CD+3}], v{T2}')
            a(f'ds_read_b128 v[{CD+4}:{CD+7}], v{T2} offset:128')
            a(f'ds_read_b128 v[{CN}:{CN+3}], v{T2} offset:256')
            a(f'ds_read_b128 v[{CN+4}:{CN+7}], v{T2} offset:384')
        a('s_waitcnt lgkmcnt(0)')
        if carry:
            for i in range(0, 8, 2):
                a(f'v_pk_add_f32 v[{DN+i}:{DN+i+1}], v[{DN+i}:{DN+i+1}], v[{CD+i}:{CD+i+1}]')
                a(f'v_pk_add_f32 v[{NM+i}:{NM+i+1}], v[{NM+i}:{NM+i+1}], v[{CN+i}:{CN+i+1}]')
        for i in range(0, 8, 2):
            a(f'v_pk_add_f32 v[{DN+i}:{DN+i+1}], v[{DN+i}:{DN+i+1}], s[{sC}:{sC+1}]')
        for i in range(8):
            a(f'v_rcp_f32 v{DN+i}, v{DN+i}')
        for i in range(4):
            a(f'v_lshlrev_b32 v{CD+i}, 16, v{UU+i}')
            a(f'v_and_b32 v{CD+4+i}, s{sHI}, v{UU+i}')
        for i in range(0, 8, 2):
            a(f'v_pk_fma_f32 v[{NM+i}:{NM+i+1}], v[{NM+i}:{NM+i+1}], v[{DN+i}:{DN+i+1}], v[{CD+i}:{CD+i+1}]')
        a(f's_waitcnt vmcnt({2 if r == 0 else 0})') if True else None
        for i in range(8):
            a(f'v_max_f32 v{NM+i}, 0, v{NM+i}')
        for i in range(4):
            a(f'v_lshlrev_b32 v{CD+2*i}, 16, v{xv+i}')
            a(f'v_and_b32 v{CD+2*i+1}, s{sHI}, v{xv+i}')
        for i in range(0, 8, 2):
            a(f'v_pk_add_f32 v[{NM+i}:{NM+i+1}], v[{NM+i}:{NM+i+1}], v[{CD+i}:{CD+i+1}]')
        for i in range(4):
            a(f'v_cvt_pk_bf16_f32 v{O+i}, v{NM+2*i}, v{NM+2*i+1}')
        osf = {0: '', 1: ' sc1', 2: ' nt', 3: ' sc0 sc1'}[opts.get('outst', 0)]
        a(f'buffer_store_dwordx2 v[{O}:{O+1}], v{GO[r]}, s[{rO}:{rO+3}], 0 offen' + osf)
        a(f'buffer_store_dwordx2 v[{O+2}:{O+3}], v{GO[r]}, s[{rO}:{rO+3}], 0 offen offset:64' + osf)
    def epilogue(tag, carry):
        srd(a, rO, sOUT, N * 128)
        srd(a, rF, sX, N * 128)
        a(f's_mov_b32 s{t0}, {ROWB}')
        a(f's_mov_b32 s{sC}, 0x{EPS_SCALED:x}')
        a(f's_mov_b32 s{sC+1}, 0x{EPS_SCALED:x}')
        a(f's_mov_b32 s{sHI}, 0xffff0000')
        a('s_waitcnt vmcnt(0)')
        epi_addr(0)
        a(f'buffer_load_dwordx2 v[{XV[0]}:{XV[0]+1}], v{GO[0]}, s[{rF}:{rF+3}], 0 offen')
        a(f'buffer_load_dwordx2 v[{XV[0]+2}:{XV[0]+3}], v{GO[0]}, s[{rF}:{rF+3}], 0 offen offset:64')
        epi_addr(1)
        a(f'v_cmp_gt_u32 s[{sSV}:{sSV+1}], s{sNN}, v{ND}')
        a(f'buffer_load_dwordx2 v[{XV[1]}:{XV[1]+1}], v{GO[1]}, s[{rF}:{rF+3}], 0 offen')
        a(f'buffer_load_dwordx2 v[{XV[1]+2}:{XV[1]+3}], v{GO[1]}, s[{rF}:{rF+3}], 0 offen offset:64')
        a('s_waitcnt lgkmcnt(0)')
        a('s_barrier')
        if STAMP and tag == 'F': stamp(8)
        epi_body(0, carry)
        a(f's_mov_b64 exec, s[{sSV}:{sSV+1}]')
        a(f's_cbranch_execz K2_FIN{tag}')
        epi_body(1, carry)
        a.label(f'K2_FIN{tag}')
    epilogue('F', True)
    if opts.get('dbgtime'):
        a('s_mov_b64 exec, -1')
        a('s_waitcnt vmcnt(0)')
        a(f's_memrealtime s[{t2}:{t3}]')
        a(f's_cmp_lg_u32 s{sW}, 7')
        a('s_cbranch_scc1 K2_DBGX')
        a('s_and_b32 s3, s2, 31')
        a('s_cmp_lg_u32 s3, 0')
        a('s_cbranch_scc1 K2_DBGX')
        a('s_lshr_b32 s3, s2, 5')
        a('s_cmp_ge_u32 s3, 2')
        a('s_cbranch_scc1 K2_DBGX')
        a(f's_lshl_b32 s{t0}, s3, 2')
        a(f's_add_u32 s{t0}, s{t0}, 0x1200000')
        a(f'v_mov_b32 v4, s{t0}')
        a(f'global_load_dword v5, v4, s[{sWS}:{sWS+1}]')
        a(f'global_load_dword v6, v4, s[{sWS}:{sWS+1}] offset:256')
        a('s_waitcnt vmcnt(0) lgkmcnt(0)')
        a(f'v_sub_u32 v8, v6, v5')
        a(f'v_sub_u32 v9, s{sT0}, v5')
        a(f'v_sub_u32 v10, s{sT1}, v5')
        a(f'v_sub_u32 v11, s{sT2}, v5')
        a(f'v_sub_u32 v12, s{t2}, v5')
        a('s_lshl_b32 s3, s3, 5')
        a('v_mov_b32 v4, s3')
        a('s_mov_b64 exec, 1')
        a(f'global_store_dwordx4 v4, v[8:11], s[{sDBG}:{sDBG+1}]')
        a(f'global_store_dword v4, v12, s[{sDBG}:{sDBG+1}] offset:16')
        a.label('K2_DBGX')
    if STAMP:
        a('s_mov_b64 exec, -1')
        a('s_waitcnt vmcnt(0)')
        stamp(9)
        a(f's_memrealtime s[{t2}:{t3}]')
        a('s_waitcnt lgkmcnt(0)')
        a(f'v_writelane_b32 v{vST}, s{t2}, 12')
        a(f's_mul_i32 s{t0}, s2, {NW}')
        a(f's_add_u32 s{t0}, s{t0}, s{sW}')
        a(f's_lshl_b32 s{t0}, s{t0}, 8')
        a(f's_add_u32 s{t0}, s{t0}, 0x1000000')
        srd_off(a, rT, sWS, f's{t0}', 256)
        a(f'v_writelane_b32 v{vST}, s{sL}, 10')
        a(f'v_lshlrev_b32 v4, 2, v{vLANE}')
        a(f'buffer_store_dword v{vST}, v4, s[{rT}:{rT+3}], 0 offen')
    a('s_endpgm')
    a.label('K2_ZROWS')
    a(f's_mov_b64 exec, s[{sSV}:{sSV+1}]')
    for i in range(4):
        a(f'v_mov_b32 v{TR+i}, 0')
    for nd in range(2):
        a(f'v_cmp_eq_u32 vcc, 0, v{TQ+nd}')
        a(f's_and_b64 exec, vcc, s[{sSV}:{sSV+1}]')
        for k in range(32):
            a(f'ds_write_b128 v{nROW0}, v[{TR}:{TR+3}] offset:{nd*ROWB + 16*k}')
        a(f's_mov_b64 exec, s[{sSV}:{sSV+1}]')
    a('s_mov_b64 exec, -1')
    a('s_branch K2_ZBACK')

    a.label('K2_SLOW')
    w_frags()
    consts()
    a('s_waitcnt vmcnt(0) lgkmcnt(0)')
    a('s_barrier')
    a(f's_lshl_b32 s{t1}, s2, 10')
    a(f's_add_u32 s{t1}, s{t1}, {WS_TAB2}')
    srd_off(a, rT, sWS, f's{t1}', 1024)
    a(f'v_lshlrev_b32 v{tA}, 4, v{vLANE}')
    a(f'buffer_load_dwordx4 v[{TQ}:{TQ+3}], v{tA}, s[{rT}:{rT+3}], 0 offen')
    a('s_waitcnt vmcnt(0)')
    a(f'v_max_u32 v{tE}, v{TQ}, v{TQ+1}')
    a(f'v_max3_u32 v{tE}, v{tE}, v{TQ+2}, v{TQ+3}')
    wave_scan(a, 'v_max_u32', tE)
    a('s_nop 0')
    a(f'v_readlane_b32 s{t1}, v{tE}, 63')
    a(f's_add_u32 s{t1}, s{t1}, {WSLOW-1}')
    a(f's_mul_i32 s{t1}, s{t1}, 5042')
    a(f's_lshr_b32 s{sNP}, s{t1}, 16')
    a(f's_mov_b32 s{sP}, 0')
    for i in range(4):
        a(f'v_mov_b32 v{TR+i}, 0')
    a(f'v_lshrrev_b32 v{tA}, 5, v0')
    a(f'v_mul_u32_u24 v{tA}, {ROWB}, v{tA}')
    a(f'v_and_b32 v{tB}, 31, v{vLANE}')
    a(f'v_lshl_add_u32 v{tA}, v{tB}, 4, v{tA}')
    a(f'v_add_u32 v{tA}, {L_ACC}, v{tA}')
    for i in range(6):
        a(f'ds_write_b128 v{tA}, v[{TR}:{TR+3}]')
        a(f'v_add_u32 v{tA}, {16*ROWB}, v{tA}')
    a(f'v_cmp_gt_u32 vcc, 64, v0')
    a(f's_and_saveexec_b64 s[{sSV}:{sSV+1}], vcc')
    a(f'ds_write_b128 v{tA}, v[{TR}:{TR+3}]')
    a(f's_mov_b64 exec, s[{sSV}:{sSV+1}]')
    a.label('K2_SPASS')
    a(f's_lshl_b32 s{t1}, s2, 10')
    a(f's_add_u32 s{t1}, s{t1}, {WS_TAB}')
    srd_off(a, rT, sWS, f's{t1}', WS_TAB2 - WS_TAB + 1024)
    a(f'v_lshrrev_b32 v{tD}, 4, v{vLANE}')
    a(f'v_lshlrev_b32 v{tD}, 5, v{tD}')
    a(f's_lshl_b32 s{t0}, s{sW}, 7')
    a(f'v_add_u32 v{tD}, s{t0}, v{tD}')
    a(f's_mov_b32 s{t0}, {WS_TAB2 - WS_TAB}')
    for i in range(2):
        a(f'buffer_load_dwordx4 v[{SG+4*i}:{SG+4*i+3}], v{tD}, s[{rT}:{rT+3}], 0 offen offset:{16*i}')
    for i in range(2):
        a(f'buffer_load_dwordx4 v[{AX+4*i}:{AX+4*i+3}], v{tD}, s[{rT}:{rT+3}], s{t0} offen offset:{16*i}')
    a(f'v_and_b32 v{tC}, 15, v{vLANE}')
    a(f's_mul_i32 s{t0}, s{sP}, {WSLOW}')
    a(f'v_cmp_gt_u32 vcc, {WSLOW}, v{tC}')
    a(f'v_add_u32 v{tC}, s{t0}, v{tC}')
    a(f'v_lshlrev_b32 v{tB}, 3, v{tC}')
    a(f'v_mov_b32 v{tD}, 0x10000')
    a(f'v_cndmask_b32 v{tC}, v{tD}, v{tC}, vcc')
    a('s_waitcnt vmcnt(0)')
    for it in range(8):
        a(f'v_cmp_gt_u32 s[{MK+2*it}:{MK+2*it+1}], v{AX+it}, v{tC}')
        a(f's_mov_b64 s[{MK+16+2*it}:{MK+16+2*it+1}], 0')
    rec_loads(tB, 8)
    lds_init()
    a('s_waitcnt vmcnt(0) lgkmcnt(0)')
    a('s_barrier')
    hist()
    a('s_waitcnt lgkmcnt(0)')
    a('s_barrier')
    scan_nodes('S')
    qi_fill('S', False)
    scatter()
    a('s_waitcnt lgkmcnt(0)')
    a('s_barrier')
    a(f's_cmp_eq_u32 s{sL}, 0')
    a('s_cbranch_scc1 K2_SNEXT')
    setup_ptrs()
    a('s_waitcnt lgkmcnt(0)')
    for ins in dma_addr(): a(ins)
    for ins in dma_issue(): a(ins)
    forced_flags()
    pipeline_fill()
    main_loop('S', True)
    a.label('K2_SNEXT')
    a('s_waitcnt vmcnt(0) lgkmcnt(0)')
    a('s_barrier')
    a(f's_add_u32 s{sP}, s{sP}, 1')
    a(f's_cmp_lt_u32 s{sP}, s{sNP}')
    a('s_cbranch_scc1 K2_SPASS')
    epilogue('S', False)
    a.label('K2_END')
    a('s_endpgm')
    return nvgpr, nsgpr

def kd(name, nv, ns):
    acc = (nv + 3) // 4 * 4
    return f'''.amdhsa_kernel {name}
  .amdhsa_next_free_vgpr {nv}
  .amdhsa_next_free_sgpr {ns}
  .amdhsa_accum_offset {acc}
  .amdhsa_group_segment_fixed_size 0
  .amdhsa_kernarg_size 96
  .amdhsa_user_sgpr_count 2
  .amdhsa_user_sgpr_kernarg_segment_ptr 1
  .amdhsa_system_sgpr_workgroup_id_x 1
  .amdhsa_float_denorm_mode_32 3
.end_amdhsa_kernel
'''

def build(opts=None):
    opts = opts or {}
    a = Asm()
    gen_k1(a, opts)
    nv, ns = gen_k2(a, opts)
    out = HEADER
    out += f'; @launch kernel=gs_part_kernel grid=(256,1,1) block=({K1_THREADS},1,1) lds={LDS_K1}\n'
    out += f'; @launch kernel=gs_main_kernel grid=(256,1,1) block=({NW*64},1,1) lds={LDS_MAIN}\n'
    out += '.amdgcn_target "amdgcn-amd-amdhsa--gfx950"\n.text\n'
    out += a.text()
    out += '.section .rodata,"a"\n.p2align 6\n'
    out += kd('gs_part_kernel', 60, 60)
    out += '.p2align 6\n'
    out += kd('gs_main_kernel', nv, ns)
    return out

if __name__ == '__main__':
    path = sys.argv[1] if len(sys.argv) > 1 else 'gather_scatter__edge_featured_mpnn_gatedgcn__graph.s'
    opts = {}
    for o in sys.argv[2:]:
        k, _, val = o.partition('=')
        opts[k] = int(val) if val else True
    open(path, 'w').write(build(opts))
    print('written', path, 'LDS', LDS_MAIN)
```

```python
import sys, os, struct
sys.path.insert(0, os.path.dirname(__file__))
from asmlib import *

N = 25000; E = 800000
NBK = 256
CH = 3136
RECB = CH * 8
WS_TAB = 0x700000
WS_TAB2 = 0x740000
WS_FRAG = 0x780000
MAGIC_B = 43980466
LOG2E = 0xBFB8AA3B
SBITS = 50
C_SCALE = (127 - SBITS) << 23
EPS_SCALED = 0x4E8637BD
assert abs(struct.unpack('<f', struct.pack('<I', EPS_SCALED))[0] / (1e-6 * 2.0**50) - 1) < 1e-6

NW = 8
NSTREAM = 16
NIT = 16
CAP = 3456
WSLOW = 13
ROWB = 784
MAXN = 98
ENT_QUADS = 960
VROWB = 640
L_CNT = 0
L_ZERO = 512
L_TAB = 1024
L_QI = 1536
L_ENT = L_QI + ENT_QUADS * 4
L_ACC = L_ENT + ENT_QUADS * 16
L_VIRT = L_ACC + MAXN * ROWB
L_WST = L_VIRT + NSTREAM * VROWB
L_WST = (L_WST + 255) // 256 * 256
L_DMA = L_WST + 16384
LDS_MAIN = L_DMA + NW * 4096
assert LDS_MAIN <= 163840, LDS_MAIN
assert L_ACC % 16 == 0 and L_VIRT % 16 == 0

K1_THREADS = 896
K1_HIST = 0
K1_STAGE = 1024
LDS_K1 = K1_STAGE + RECB

HEADER = open(os.path.join(os.path.dirname(__file__), 'header.txt')).read()

def srd(a, sreg, ptr, size):
    a(f's_mov_b32 s{sreg}, s{ptr}')
    a(f's_and_b32 s{sreg+1}, s{ptr+1}, 0xffff')
    a(f's_mov_b32 s{sreg+2}, {size}')
    a(f's_mov_b32 s{sreg+3}, 0x20000')

def srd_off(a, sreg, ptr, off, size):
    a(f's_add_u32 s{sreg}, s{ptr}, {off}')
    a(f's_addc_u32 s{sreg+1}, s{ptr+1}, 0')
    a(f's_and_b32 s{sreg+1}, s{sreg+1}, 0xffff')
    a(f's_mov_b32 s{sreg+2}, {size}')
    a(f's_mov_b32 s{sreg+3}, 0x20000')

def wave_scan(a, op, r):
    for sh in (1, 2, 4, 8):
        a('s_nop 1')
        a(f'{op}_dpp v{r}, v{r}, v{r} row_shr:{sh} row_mask:0xf bank_mask:0xf')
    a('s_nop 1')
    a(f'{op}_dpp v{r}, v{r}, v{r} row_bcast:15 row_mask:0xa bank_mask:0xf')
    a('s_nop 1')
    a(f'{op}_dpp v{r}, v{r}, v{r} row_bcast:31 row_mask:0xc bank_mask:0xf')

def wave_scan2(a, op1, r1, op2, r2):
    steps = [f'row_shr:{sh} row_mask:0xf bank_mask:0xf' for sh in (1, 2, 4, 8)] + \
            ['row_bcast:15 row_mask:0xa bank_mask:0xf', 'row_bcast:31 row_mask:0xc bank_mask:0xf']
    a('s_nop 1')
    for st in steps:
        a(f'{op1}_dpp v{r1}, v{r1}, v{r1} {st}')
        a(f'{op2}_dpp v{r2}, v{r2}, v{r2} {st}')
        a('s_nop 0')

def gen_k1(a, opts):
    a.raw('.p2align 8')
    a.raw('.globl gs_part_kernel')
    a.raw('.type gs_part_kernel,@function')
    a.label('gs_part_kernel')
    a('s_cmp_ge_u32 s2, 256')
    a('s_cbranch_scc1 K1_END')
    a('s_load_dwordx4 s[4:7], s[0:1], 8')
    a('s_load_dwordx2 s[8:9], s[0:1], 24')
    a('s_load_dwordx2 s[10:11], s[0:1], 88')
    a('s_load_dwordx2 s[44:45], s[0:1], 0')
    if opts.get('dbgtime'):
        a('s_memrealtime s[54:55]')
        a('s_waitcnt lgkmcnt(0)')
        a('s_cmp_ge_u32 s2, 8')
        a('s_cbranch_scc1 K1_NODBG')
        a('v_mov_b32 v20, s54')
        a('s_lshl_b32 s56, s2, 2')
        a('s_add_u32 s56, s56, 0x1200000')
        a('v_mov_b32 v22, s56')
        a('v_cmp_eq_u32 vcc, 0, v0')
        a('s_and_saveexec_b64 s[58:59], vcc')
        a('global_store_dword v22, v20, s[10:11]')
        a('s_mov_b64 exec, s[58:59]')
        a.label('K1_NODBG')
    a('v_lshrrev_b32 v1, 6, v0')
    a('s_mul_i32 s12, s2, %d' % (CH * 4))
    a('v_readfirstlane_b32 s3, v1')
    a('s_lshr_b32 s13, s12, 1')
    a('v_lshlrev_b32 v2, 4, v0')
    a('v_add_u32 v2, s12, v2')
    a('s_cmp_eq_u32 s3, 13')
    a('s_cbranch_scc1 K1_FRAG')
    a('v_lshlrev_b32 v3, 3, v0')
    a('v_add_u32 v3, s13, v3')
    a('s_waitcnt lgkmcnt(0)')
    srd(a, 20, 8, E * 4)
    a('buffer_load_dwordx4 v[4:7], v2, s[20:23], 0 offen')
    srd(a, 24, 6, E * 4)
    a('buffer_load_dwordx4 v[8:11], v2, s[24:27], 0 offen')
    srd(a, 28, 4, E * 2)
    a('buffer_load_dwordx2 v[12:13], v3, s[28:31], 0 offen')
    if opts.get('xpre', 1):
        a('s_and_b32 s46, s2, 7')
        a('s_lshr_b32 s47, s2, 3')
        a('s_lshl_b32 s46, s46, 5')
        a('s_add_u32 s46, s46, s47')
        a('s_mul_i32 s46, s46, 3125')
        a('s_add_u32 s46, s46, 31')
        a('s_lshr_b32 s46, s46, 5')
        a('s_lshl_b32 s46, s46, 7')
        a('s_and_b32 s45, s45, 0xffff')
        a('s_mov_b32 s48, s44')
        a('s_mov_b32 s49, s45')
        a('s_mov_b32 s50, %d' % (N * 128))
        a('s_mov_b32 s51, 0x20000')
        a('v_lshlrev_b32 v40, 4, v0')
        a('buffer_load_dwordx4 v[56:59], v40, s[48:51], s46 offen')
    a('v_lshlrev_b32 v14, 2, v0')
    a('v_mov_b32 v15, 0')
    a('v_cmp_gt_u32 vcc, 256, v0')
    a('s_and_saveexec_b64 s[18:19], vcc')
    a('ds_write_b32 v14, v15 offset:%d' % K1_HIST)
    a('s_mov_b64 exec, s[18:19]')
    a('v_cmp_gt_u32 vcc, %d, v0' % (CH // 4))
    a('s_mov_b32 s14, %d' % (E * 4))
    a('v_cmp_gt_u32 s[16:17], s14, v2')
    a('s_and_b64 s[16:17], s[16:17], vcc')
    a('s_mul_i32 s15, s2, %d' % RECB)
    srd_off(a, 32, 10, 's15', RECB)
    srd_off(a, 36, 10, WS_TAB, 0x80000)
    a('s_mov_b32 s40, %d' % MAGIC_B)
    a('s_movk_i32 s41, 3125')
    a('v_mov_b32 v15, 1')
    a('s_waitcnt lgkmcnt(0)')
    a('s_barrier')
    a('s_mov_b64 exec, s[16:17]')
    a('s_cbranch_execz K1_NOEDGE1')
    a('s_waitcnt vmcnt(%d)' % (3 if opts.get('xpre', 1) else 2))
    for k in range(4):
        a(f'v_mul_hi_u32 v{16+k}, v{4+k}, s40')
    for k in range(4):
        a(f'v_lshlrev_b32 v{20+k}, 2, v{16+k}')
        a(f'ds_add_rtn_u32 v{24+k}, v{20+k}, v15 offset:{K1_HIST}')
    for k in range(4):
        a(f'v_mul_u32_u24 v{28+k}, s41, v{16+k}')
        a(f'v_add_u32 v{28+k}, 31, v{28+k}')
        a(f'v_lshrrev_b32 v{28+k}, 5, v{28+k}')
        a(f'v_sub_u32 v{28+k}, v{4+k}, v{28+k}')
        a(f'v_lshlrev_b32 v{33+2*k}, 2, v{28+k}')
    a('s_waitcnt vmcnt(%d)' % (1 if opts.get('xpre', 1) else 0))
    a('s_mov_b32 s42, 0xffff0000')
    a('v_lshl_or_b32 v32, v12, 16, v8')
    a('v_and_or_b32 v34, v12, s42, v9')
    a('v_lshl_or_b32 v36, v13, 16, v10')
    a('v_and_or_b32 v38, v13, s42, v11')
    a.label('K1_NOEDGE1')
    a('s_mov_b64 exec, -1')
    a('s_waitcnt lgkmcnt(0)')
    a('s_barrier')
    a('s_cmp_lg_u32 s3, 0')
    a('s_cbranch_scc1 K1_SCANDONE')
    a('v_lshlrev_b32 v40, 4, v0')
    a('ds_read_b128 v[44:47], v40 offset:%d' % K1_HIST)
    a('v_lshlrev_b32 v41, 12, v0')
    a('s_lshl_b32 s15, s2, 2')
    a('v_add_u32 v41, s15, v41')
    a('s_waitcnt lgkmcnt(0)')
    a('v_add_u32 v48, v44, v45')
    a('v_add_u32 v49, v48, v46')
    a('v_add_u32 v50, v49, v47')
    a('v_mov_b32 v51, v50')
    wave_scan(a, 'v_add_u32', 51)
    a('v_sub_u32 v52, v51, v50')
    a('v_add_u32 v53, v52, v44')
    a('v_add_u32 v54, v52, v48')
    a('v_add_u32 v55, v52, v49')
    a('ds_write_b128 v40, v[52:55] offset:%d' % K1_HIST)
    a('s_mul_i32 s15, s2, %d' % CH)
    a('s_mov_b32 s43, %d' % (WS_TAB2 - WS_TAB))
    for k in range(4):
        a(f'buffer_store_dword v{44+k}, v41, s[36:39], s43 offen offset:{k*1024}' + (' sc1' if opts.get('tabst', 0) else ''))
        a(f'v_min_u32 v{48+k}, 0xff, v{44+k}')
        a(f'v_add_u32 v{52+k}, s15, v{52+k}')
        a(f'v_lshl_or_b32 v{48+k}, v{48+k}, 24, v{52+k}')
        a(f'buffer_store_dword v{48+k}, v41, s[36:39], 0 offen offset:{k*1024}' + (' sc1' if opts.get('tabst', 0) else ''))
    a.label('K1_SCANDONE')
    a('s_waitcnt lgkmcnt(0)')
    a('s_barrier')
    a('s_mov_b64 exec, s[16:17]')
    a('s_cbranch_execz K1_NOEDGE2')
    for k in range(4):
        a(f'ds_read_b32 v{28+k}, v{20+k} offset:{K1_HIST}')
    for k in range(4):
        a(f's_waitcnt lgkmcnt({3 if k == 0 else 3})')
        a(f'v_add_lshl_u32 v{28+k}, v{28+k}, v{24+k}, 3')
        a(f'ds_write_b64 v{28+k}, v[{32+2*k}:{33+2*k}] offset:{K1_STAGE}')
    a.label('K1_NOEDGE2')
    a('s_mov_b64 exec, -1')
    a('v_lshlrev_b32 v2, 4, v0')
    a('v_add_u32 v3, %d, v2' % (RECB // 2))
    a('v_cmp_gt_u32 vcc, %d, v0' % (CH // 4))
    a('s_waitcnt lgkmcnt(0)')
    a('s_barrier')
    a('s_and_saveexec_b64 s[18:19], vcc')
    a('s_cbranch_execz K1_END')
    a('ds_read_b128 v[4:7], v2 offset:%d' % K1_STAGE)
    a('ds_read_b128 v[8:11], v2 offset:%d' % (K1_STAGE + RECB // 2))
    a('s_waitcnt lgkmcnt(1)')
    sfx = {0: '', 1: ' sc1', 2: ' nt', 3: ' sc0 sc1', 4: ' sc1 nt'}[opts.get('k1st', 1)]
    a('buffer_store_dwordx4 v[4:7], v2, s[32:35], 0 offen' + sfx)
    a('s_waitcnt lgkmcnt(0)')
    a('buffer_store_dwordx4 v[8:11], v3, s[32:35], 0 offen' + sfx)
    if opts.get('dbgtime'):
        a('s_waitcnt vmcnt(0)')
        a('s_memrealtime s[54:55]')
        a('s_waitcnt lgkmcnt(0)')
        a('s_cmp_ge_u32 s2, 8')
        a('s_cbranch_scc1 K1_END')
        a('s_cmp_lg_u32 s3, 0')
        a('s_cbranch_scc1 K1_END')
        a('v_mov_b32 v20, s54')
        a('s_lshl_b32 s56, s2, 2')
        a('s_add_u32 s56, s56, 0x1200100')
        a('v_mov_b32 v22, s56')
        a('s_mov_b64 exec, 1')
        a('global_store_dword v22, v20, s[10:11]')
    a('s_endpgm')
    a.label('K1_FRAG')
    if opts.get('codepre', 0):
        a('s_cmp_lt_u32 s2, 32')
        a('s_cbranch_scc1 K1_FRAG2')
        a('s_cmp_ge_u32 s2, 64')
        a('s_cbranch_scc1 K1_END')
        a('s_getpc_b64 s[12:13]')
        a.label('K1_PCREF')
        a('s_add_u32 s12, s12, gs_main_kernel-K1_PCREF')
        a('s_addc_u32 s13, s13, 0')
        a('v_and_b32 v1, 63, v0')
        a('v_lshlrev_b32 v2, 4, v1')
        for i in range(opts.get('codekb', 20)):
            a(f'global_load_dwordx4 v[4:7], v2, s[12:13]')
            a('v_add_u32 v2, 1024, v2')
        a('s_endpgm')
        a.label('K1_FRAG2')
    a('s_cmp_ge_u32 s2, 32')
    a('s_cbranch_scc1 K1_END')
    a('s_load_dwordx4 s[12:15], s[0:1], 32')
    a('s_load_dwordx4 s[16:19], s[0:1], 56')
    a('s_lshr_b32 s20, s2, 3')
    a('s_waitcnt lgkmcnt(0)')
    a('s_mov_b32 s22, s14')
    a('s_mov_b32 s23, s15')
    a('s_cmp_eq_u32 s20, 1')
    a('s_cselect_b32 s22, s18, s22')
    a('s_cselect_b32 s23, s19, s23')
    a('s_cmp_eq_u32 s20, 2')
    a('s_cselect_b32 s22, s12, s22')
    a('s_cselect_b32 s23, s13, s23')
    a('s_cmp_eq_u32 s20, 3')
    a('s_cselect_b32 s22, s16, s22')
    a('s_cselect_b32 s23, s17, s23')
    srd(a, 24, 22, 64 * 64 * 2)
    srd_off(a, 28, 10, WS_FRAG, 32 * 1024)
    a('s_and_b32 s32, s2, 3')
    a('s_lshr_b32 s33, s2, 2')
    a('s_and_b32 s33, s33, 1')
    a('s_lshl_b32 s32, s32, 11')
    a('s_lshl_b32 s33, s33, 6')
    a('s_add_u32 s32, s32, s33')
    a('v_and_b32 v1, 63, v0')
    a('v_and_b32 v2, 31, v1')
    a('v_lshlrev_b32 v2, 1, v2')
    a('v_lshrrev_b32 v3, 5, v1')
    a('v_lshlrev_b32 v3, 10, v3')
    a('v_add3_u32 v2, v2, v3, s32')
    for i in range(8):
        a(f'buffer_load_ushort v{8+i}, v2, s[24:27], 0 offen offset:{i*128}')
    a('s_mov_b32 s34, 1.0')
    a('s_and_b32 s36, s20, 1')
    a('s_cmp_eq_u32 s36, 0')
    a('s_cselect_b32 s34, 0x%x, s34' % LOG2E)
    a('s_waitcnt vmcnt(0)')
    for i in range(8):
        a(f'v_lshlrev_b32 v{8+i}, 16, v{8+i}')
        a(f'v_mul_f32 v{8+i}, s34, v{8+i}')
    for i in range(4):
        a(f'v_cvt_pk_bf16_f32 v{16+i}, v{8+2*i}, v{9+2*i}')
    a('v_lshlrev_b32 v4, 4, v1')
    a('s_lshl_b32 s35, s2, 10')
    a('v_add_u32 v4, s35, v4')
    a('buffer_store_dwordx4 v[16:19], v4, s[28:31], 0 offen')
    a.label('K1_END')
    a('s_endpgm')

def gen_k2(a, opts):
    STAMP = opts.get('stamp', False)
    vLANE = 1; BC = 2
    WB = 4; WV = 36; AX = 68
    GA = 84; HA = 100; GB = 116; HB = 132
    PP = 148; TT_ = 156; ZZ = 164
    DEN = 172; NUM = 176
    AE = [180, 184]; BE = 188; R0 = 192
    QA = [196, 200]
    EN = 204; RA = 208; CO = 212
    pEN = 216; pEE = 217; pQI = 218; pQF = 219
    C4 = 220; SEL = [221, 222]; EE = 223; QF = 224
    F0 = 225; F1 = 226; F2 = 252; F3 = 227
    tA = 227; tB = 228; tC = 229; tD = 230; tE = 231; tF = 232; tG = 233; tH = 234; tI = 235
    TQ = 236; TR = 240
    sidA = 244; jA = 245; sidR = 246; iR4 = 247
    vST = 253; GF = 249; GD = 250
    PB = 228; TB = 236; ZB = 244
    RC = 252; RKC = 254; tJ = 255
    nvgpr = 256
    REC = PP; RK = GB; SG = HB
    G_ = [GA, GB]; H_ = [HA, HB]
    nOFF0 = AE[0]+0 if False else QA[0]; nOFF1 = QA[0]+1; nEND0 = QA[0]+2; nEND1 = QA[0]+3; nROW0 = QA[1]
    S = Regs('s', 3, 102)
    sX = S.alloc('x', 2, 2); sWC = S.alloc('wc', 2, 2); sOUT = S.alloc('out', 2, 2); sWS = S.alloc('ws', 2, 2)
    rX = S.alloc('rX', 4, 4); rT = S.alloc('rT', 4, 4); rR = S.alloc('rR', 4, 4); rF = S.alloc('rF', 4, 4)
    sW = S.alloc('w'); sNS = S.alloc('ns'); sNN = S.alloc('nn')
    sP = S.alloc('pass'); sNP = S.alloc('npass')
    sL = S.alloc('L'); sCNT = S.alloc('cnt'); sLA = S.alloc('La'); sLB = S.alloc('Lb'); sSO = S.alloc('streamoff')
    sC = S.alloc('C', 2, 2)
    sF = [S.alloc('F0', 2, 2), S.alloc('F1', 2, 2)]
    sANY = [S.alloc('any0'), S.alloc('any1')]
    s128 = S.alloc('c128'); sLO = S.alloc('lo16'); sHI = S.alloc('hi16')
    t0 = S.alloc('t0'); t1 = S.alloc('t1'); t2 = S.alloc('t2', 1, 2); t3 = S.alloc('t3')
    sSV = S.alloc('sv', 2, 2); sSV2 = S.alloc('sv2', 2, 2)
    sDB = S.alloc('dmabase'); sSWAP = S.alloc('swap')
    sDBG = S.alloc('dbg', 2, 2) if opts.get('dbgtime') else None
    sT0 = S.alloc('dbgt0', 2, 2) if opts.get('dbgtime') else None
    sT1 = S.alloc('dbgt1') if opts.get('dbgtime') else None
    sT2 = S.alloc('dbgt2') if opts.get('dbgtime') else None
    MK = S.alloc('MK', 32, 2)
    MKC = S.alloc('MKC', 2, 2)
    rO = rT
    nsgpr = S.hi
    def stamp(i):
        if not STAMP: return
        a(f's_memtime s[{t2}:{t3}]')
        a('s_waitcnt lgkmcnt(0)')
        a(f'v_writelane_b32 v{vST}, s{t2}, {i}')
    XB = 4096

    a.raw('.p2align 8')
    a.raw('.globl gs_main_kernel')
    a.raw('.type gs_main_kernel,@function')
    a.label('gs_main_kernel')
    a('s_cmp_ge_u32 s2, 256')
    a('s_cbranch_scc1 K2_END')
    a(f's_load_dwordx2 s[{sWS}:{sWS+1}], s[0:1], 88')
    a(f's_load_dwordx2 s[{sX}:{sX+1}], s[0:1], 0')
    a(f's_load_dwordx2 s[{sWC}:{sWC+1}], s[0:1], 48')
    a(f's_load_dwordx2 s[{sOUT}:{sOUT+1}], s[0:1], 72')
    a('s_and_b32 s3, s2, 7')
    a('s_lshr_b32 s2, s2, 3')
    a('s_lshl_b32 s3, s3, 5')
    a('s_add_u32 s2, s2, s3')
    if opts.get('dbgtime'):
        a(f's_load_dwordx2 s[{sDBG}:{sDBG+1}], s[0:1], 80')
        a(f's_memrealtime s[{sT0}:{sT0+1}]')
        a('s_waitcnt lgkmcnt(0)')
    if STAMP:
        a(f'v_mov_b32 v{vST}, 0')
    stamp(0)
    if STAMP:
        a(f's_memrealtime s[{t2}:{t3}]')
        a('s_waitcnt lgkmcnt(0)')
        a(f'v_writelane_b32 v{vST}, s{t2}, 11')
    a(f'v_lshrrev_b32 v{tA}, 6, v0')
    a(f'v_and_b32 v{vLANE}, 63, v0')
    a(f'v_readfirstlane_b32 s{sW}, v{tA}')
    a(f'v_lshrrev_b32 v{sidA}, 5, v{vLANE}')
    if opts.get('proprio'):
        a('s_nop 2')
        a(f's_cmp_ge_u32 s{sW}, 4')
        a('s_cbranch_scc0 K2_PP0')
        a('s_setprio 1')
        a.label('K2_PP0')
    a(f's_lshl_b32 s{t1}, s2, 10')
    a(f's_add_u32 s{t1}, s{t1}, {WS_TAB}')
    a(f's_lshl_b32 s{t0}, s{sW}, 1')
    a(f'v_add_u32 v{sidA}, s{t0}, v{sidA}')
    a(f'v_lshrrev_b32 v{tD}, 4, v{vLANE}')
    a(f'v_lshlrev_b32 v{tD}, 5, v{tD}')
    a(f's_lshl_b32 s{t0}, s{sW}, 7')
    a(f'v_add_u32 v{tD}, s{t0}, v{tD}')
    a(f'v_lshlrev_b32 v{tA}, 4, v{vLANE}')
    a('s_waitcnt lgkmcnt(0)')
    srd_off(a, rT, sWS, f's{t1}', 1024)
    for i in range(2):
        a(f'buffer_load_dwordx4 v[{SG+4*i}:{SG+4*i+3}], v{tD}, s[{rT}:{rT+3}], 0 offen offset:{16*i}')
    a(f's_mul_i32 s{t0}, s2, 3125')
    a(f's_add_u32 s{sNS}, s{t0}, 31')
    a(f's_lshr_b32 s{sNS}, s{sNS}, 5')
    a(f's_add_u32 s{t0}, s{t0}, {3125+31}')
    a(f's_lshr_b32 s{t0}, s{t0}, 5')
    a(f's_sub_u32 s{sNN}, s{t0}, s{sNS}')
    a(f's_sub_u32 s{rX}, s{sX}, {XB}')
    a(f's_subb_u32 s{rX+1}, s{sX+1}, 0')
    a(f's_and_b32 s{rX+1}, s{rX+1}, 0xffff')
    a(f's_mov_b32 s{rX+2}, {N*128 + XB}')
    a(f's_mov_b32 s{rX+3}, 0x20000')
    srd_off(a, rF, sWS, WS_FRAG, 32 * 1024)
    a(f's_lshl_b32 s{sDB}, s{sW}, 12')
    a(f's_add_u32 s{sDB}, s{sDB}, {L_DMA}')
    a(f'v_bfe_u32 v{tE}, v{vLANE}, 4, 1')
    a(f'v_and_b32 v{tF}, 7, v{vLANE}')
    a(f'v_xor_b32 v{tE}, v{tE}, v{tF}')
    a(f'v_lshlrev_b32 v{tE}, 4, v{tE}')
    for i in range(4):
        if i: a(f'v_xor_b32 v{tF}, {32*i}, v{tE}')
        a(f'v_add_u32 v{CO+i}, {XB - 1024*i}, v{tF if i else tE}')
    a(f'v_bfe_u32 v{jA}, v{vLANE}, 3, 2')
    a(f'v_lshrrev_b32 v{tF}, 5, v{vLANE}')
    a(f'v_lshlrev_b32 v{tE}, 3, v{jA}')
    a(f'v_lshl_add_u32 v{tE}, v{tF}, 2, v{tE}')
    a(f's_lshr_b32 s{t0}, s{sW}, 1')
    a(f's_lshl_b32 s{t1}, s{t0}, 5')
    a(f's_add_u32 s{t1}, s{t1}, s{sNS}')
    a(f's_and_b32 s{t2}, s{sW}, 1')
    a(f's_lshl_b32 s{t2}, s{t2}, 1')
    a(f's_add_u32 s{t1}, s{t1}, s{t2}')
    a(f'v_add_u32 v{tE}, s{t1}, v{tE}')
    a(f'v_lshlrev_b32 v{tE}, 7, v{tE}')
    a(f's_cmp_eq_u32 s{t2}, 0')
    a(f's_cbranch_scc0 K2_XI2')
    a(f'v_add_u32 v{tH}, v{tE}, v{CO}')
    a(f'v_add_u32 v{tI}, v{tE}, v{CO+1}')
    a('s_branch K2_XI')
    a.label('K2_XI2')
    a(f'v_add_u32 v{tH}, v{tE}, v{CO+2}')
    a(f'v_add_u32 v{tI}, v{tE}, v{CO+3}')
    a(f'v_add_u32 v{tH}, 2048, v{tH}')
    a(f'v_add_u32 v{tI}, 2048, v{tI}')
    a.label('K2_XI')
    a(f'v_add_u32 v{tI}, 128, v{tI}')
    a(f'v_and_b32 v{C4}, 31, v{vLANE}')
    def staging():
        a(f's_lshr_b32 s{t0}, s{sW}, 1')
        a(f's_lshl_b32 s{t0}, s{t0}, 12')
        a(f's_and_b32 s{t2}, s{sW}, 1')
        a(f's_lshl_b32 s{t2}, s{t2}, 11')
        a(f's_add_u32 s{t0}, s{t0}, s{t2}')
        a(f's_add_u32 s{t0}, s{t0}, {L_DMA}')
        a(f's_mov_b32 m0, s{t0}')
        a(f'v_lshlrev_b32 v{tA}, 4, v{vLANE}')
        a(f'buffer_load_dwordx4 v{tH}, s[{rX}:{rX+3}], 0 offen lds')
        a(f'buffer_load_dwordx4 v{tI}, s[{rX}:{rX+3}], 0 offen offset:1024 lds')
        a(f's_lshl_b32 s{t0}, s{sW}, 11')
        a(f's_add_u32 s{t1}, s{t0}, {L_DMA + 4*4096}')
        a(f's_mov_b32 m0, s{t1}')
        a(f's_add_u32 s{t2}, s{t0}, {16*1024}')
        a(f'buffer_load_dwordx4 v{tA}, s[{rF}:{rF+3}], s{t2} offen lds')
        a(f'buffer_load_dwordx4 v{tA}, s[{rF}:{rF+3}], s{t2} offen offset:1024 lds')
        a(f's_add_u32 s{t1}, s{t0}, {L_WST}')
        a(f's_mov_b32 m0, s{t1}')
        a('s_nop 0')
        a(f'buffer_load_dwordx4 v{tA}, s[{rF}:{rF+3}], s{t0} offen lds')
        a(f'buffer_load_dwordx4 v{tA}, s[{rF}:{rF+3}], s{t0} offen offset:1024 lds')
        srd(a, rR, sWC, 128)
        a(f'v_lshlrev_b32 v{tE}, 1, v{C4}')
        a(f'buffer_load_ushort v{BC}, v{tE}, s[{rR}:{rR+3}], 0 offen')
        a(f'buffer_load_ushort v{BC+1}, v{tE}, s[{rR}:{rR+3}], 0 offen offset:64')
    staging()
    def lds_init():
        a(f'v_lshlrev_b32 v{tE}, 4, v0')
        for i in range(4):
            a(f'v_mov_b32 v{TR+i}, 0xffff')
        a(f'ds_write_b128 v{tE}, v[{TR}:{TR+3}] offset:{L_ENT}')
        a(f's_cmp_ge_u32 s{sW}, {(ENT_QUADS - 512) // 64}')
        a(f's_cbranch_scc1 K2_I1{tag_i[0]}')
        a(f'ds_write_b128 v{tE}, v[{TR}:{TR+3}] offset:{L_ENT + 512*16}')
        a.label(f'K2_I1{tag_i[0]}')
        assert (ENT_QUADS - 512) % 64 == 0
        for i in range(4):
            a(f'v_mov_b32 v{TR+i}, {L_VIRT}')
        a(f'v_cmp_gt_u32 vcc, {ENT_QUADS // 4}, v0')
        a(f's_and_saveexec_b64 s[{sSV}:{sSV+1}], vcc')
        a(f'ds_write_b128 v{tE}, v[{TR}:{TR+3}] offset:{L_QI}')
        a(f's_mov_b64 exec, s[{sSV}:{sSV+1}]')
        a(f's_cmp_lg_u32 s{sW}, 0')
        a(f's_cbranch_scc1 K2_I2{tag_i[0]}')
        for i in range(4):
            a(f'v_mov_b32 v{TR+i}, 0')
        a(f'ds_write_b128 v{tE}, v[{TR}:{TR+3}] offset:{L_CNT}')
        a(f'v_add_u32 v{tE}, {L_VIRT + 512}, v{tE}')
        a('s_mov_b64 exec, 0xff')
        a(f'ds_write_b128 v{tE}, v[{TR}:{TR+3}]')
        a('s_mov_b64 exec, -1')
        a.label(f'K2_I2{tag_i[0]}')
        tag_i[0] += 1
    tag_i = [0]
    lds_init()
    a(f'v_and_b32 v{tE}, 3, v{vLANE}')
    a(f'v_lshlrev_b32 v{iR4}, 2, v{tE}')
    a(f'v_lshl_add_u32 v{RA}, v{tE}, 3, v{jA}')
    a(f'v_lshrrev_b32 v{tF}, 1, v{jA}')
    a(f'v_lshl_add_u32 v{tE}, v{tE}, 1, v{tF}')
    a(f'v_bfe_u32 v{tF}, v{vLANE}, 2, 1')
    a(f's_lshl_b32 s{t0}, s{sW}, 1')
    a(f'v_add_u32 v{sidR}, s{t0}, v{tF}')
    a(f'v_lshl_add_u32 v{RA}, v{tF}, 2, v{RA}')
    a(f'v_lshrrev_b32 v{tG}, 5, v{vLANE}')
    a(f'v_cmp_eq_u32 vcc, v{tF}, v{tG}')
    a(f'v_xor_b32 v{tE}, v{tE}, v{tG}')
    a(f'v_lshlrev_b32 v{tE}, 4, v{tE}')
    a(f'v_lshl_add_u32 v{RA}, v{RA}, 7, v{tE}')
    a(f'v_mov_b32 v{tF}, 0x3f80')
    a(f'v_cndmask_b32 v{tF}, 0, v{tF}, vcc')
    for q in range(4):
        a(f'v_cmp_eq_u32 vcc, {q}, v{jA}')
        a('s_nop 1')
        a(f'v_cndmask_b32 v{AE[0]+q}, 0, v{tF}, vcc')
        a(f'v_lshlrev_b32 v{AE[1]+q}, 16, v{AE[0]+q}')
    a(f'v_cmp_gt_u32 vcc, 32, v{vLANE}')
    a(f'v_mov_b32 v{tE}, 0x0a0c0100')
    a(f'v_mov_b32 v{tF}, 0x07060100')
    a(f'v_cndmask_b32 v{SEL[0]}, v{tE}, v{tF}, vcc')
    a(f'v_mov_b32 v{tE}, 0x03020a0c')
    a(f'v_mov_b32 v{tF}, 0x03020706')
    a(f'v_cndmask_b32 v{SEL[1]}, v{tE}, v{tF}, vcc')
    a(f's_mov_b32 s{sC}, 0x{C_SCALE:x}')
    a(f's_mov_b32 s{sC+1}, 0x{C_SCALE:x}')
    a(f's_mov_b32 s{s128}, 128')
    a(f's_mov_b32 s{sLO}, 0xffff')
    a(f's_mov_b32 s{sHI}, 0xffff0000')
    a(f'v_and_b32 v{tB}, 15, v{vLANE}')
    a(f'v_lshlrev_b32 v{tB}, 3, v{tB}')
    a(f'v_lshlrev_b32 v{C4}, 2, v{C4}')
    a('s_waitcnt vmcnt(0) lgkmcnt(0)')
    stamp(1)
    a('s_barrier')
    srd(a, rR, sWS, NBK * RECB)
    def rec_loads(vk8, nit):
        for it in range(8):
            a(f'v_mad_u32_u24 v{RK+it}, v{SG+it}, 8, v{vk8}')
        for it in range(nit):
            a(f's_mov_b64 exec, s[{MK+2*it}:{MK+2*it+1}]')
            off = ' offset:128' if it >= 8 else ''
            sk = a.newlabel('skl') if (it >= 8 and opts.get('skipb', 1)) else None
            if sk: a(f's_cbranch_execz {sk}')
            a(f'buffer_load_dwordx2 v[{REC+2*it}:{REC+2*it+1}], v{RK+it%8}, s[{rR}:{rR+3}], 0 offen{off}')
            if sk: a.label(sk)
        a('s_mov_b64 exec, -1')
    a(f'v_lshrrev_b32 v{tC}, 3, v{tB}')
    a(f'v_add_u32 v{tD}, 16, v{tC}')
    for it in range(8):
        a(f'v_cmp_gt_u32_sdwa s[{MK+2*it}:{MK+2*it+1}], v{SG+it}, v{tC} src0_sel:BYTE_3 src1_sel:DWORD')
    for it in range(8):
        a(f'v_cmp_gt_u32_sdwa s[{MK+16+2*it}:{MK+16+2*it+1}], v{SG+it}, v{tD} src0_sel:BYTE_3 src1_sel:DWORD')
    stamp(25)
    rec_loads(tB, 16)
    stamp(26)
    a(f'v_max3_u32 v{tD}, v{SG}, v{SG+1}, v{SG+2}')
    a(f'v_max3_u32 v{tD}, v{tD}, v{SG+3}, v{SG+4}')
    a(f'v_max3_u32 v{tD}, v{tD}, v{SG+5}, v{SG+6}')
    a(f'v_max_u32 v{tD}, v{tD}, v{SG+7}')
    a(f'v_lshrrev_b32 v{tD}, 24, v{tD}')
    a(f'v_cmp_lt_u32 s[{sSV2}:{sSV2+1}], 32, v{tD}')
    a(f's_mov_b64 s[{MKC}:{MKC+1}], 0')
    a(f's_cmp_lg_u64 s[{sSV2}:{sSV2+1}], 0')
    a('s_cbranch_scc1 K2_CSEL')
    a.label('K2_CBACK')

    def gemm_issue():
        a(f's_lshr_b32 s{t0}, s{sW}, 1')
        a(f's_lshl_b32 s{t1}, s{t0}, 12')
        a(f's_add_u32 s{t1}, s{t1}, {L_DMA}')
        a(f'v_add_u32 v{tA}, s{t1}, v{RA}')
        a(f'v_xor_b32 v{tB}, 32, v{tA}')
        a(f'ds_read_b128 v[{AX}:{AX+3}], v{tA}')
        a(f'ds_read_b128 v[{AX+4}:{AX+7}], v{tB}')
        a(f'v_xor_b32 v{tB}, 64, v{tA}')
        a(f'v_xor_b32 v{tC}, 96, v{tA}')
        a(f'ds_read_b128 v[{AX+8}:{AX+11}], v{tB}')
        a(f'ds_read_b128 v[{AX+12}:{AX+15}], v{tC}')
        a(f's_and_b32 s{t2}, s{sW}, 1')
        a(f's_lshl_b32 s{t3}, s{t2}, 13')
        a(f's_add_u32 s{t3}, s{t3}, {L_DMA + 4*4096}')
        a(f'v_lshlrev_b32 v{GF}, 4, v{vLANE}')
        a(f'v_add_u32 v{GF}, s{t3}, v{GF}')
        for f in range(4):
            a(f'ds_read_b128 v[{SG+4*f}:{SG+4*f+3}], v{GF} offset:{f*1024}')
        for f in range(4):
            a(f'ds_read_b128 v[{RK+4*f}:{RK+4*f+3}], v{GF} offset:{(4+f)*1024}')
        a(f's_mul_i32 s{t1}, s{t0}, {32*ROWB}')
        a(f's_lshl_b32 s{t3}, s{t2}, 7')
        a(f's_add_u32 s{t1}, s{t1}, s{t3}')
        a(f's_add_u32 s{t1}, s{t1}, {L_ACC + 512}')
        a(f'v_lshrrev_b32 v{GD}, 5, v{vLANE}')
        a(f'v_mul_u32_u24 v{GD}, {4*ROWB}, v{GD}')
        a(f'v_add3_u32 v{GD}, v{GD}, v{C4}, s{t1}')
    def gemm_mid():
        a('s_waitcnt lgkmcnt(0)')
        for kp in range(4):
            c = '0' if kp == 0 else f'v[{GA}:{GA+15}]'
            a(f'v_mfma_f32_32x32x16_bf16 v[{GA}:{GA+15}], v[{AX+4*kp}:{AX+4*kp+3}], v[{SG+4*kp}:{SG+4*kp+3}], {c}')
            c = '0' if kp == 0 else f'v[{HA}:{HA+15}]'
            a(f'v_mfma_f32_32x32x16_bf16 v[{HA}:{HA+15}], v[{AX+4*kp}:{AX+4*kp+3}], v[{RK+4*kp}:{RK+4*kp+3}], {c}')
    def gemm_mid2():
        a('s_nop 7')
        a('s_nop 3')
    def w_frags():
        a(f'v_lshlrev_b32 v{GF}, 4, v{vLANE}')
        a(f'v_add_u32 v{GF}, {L_WST}, v{GF}')
        for f in range(16):
            dst = (WB + 4*f) if f < 8 else (WV + 4*(f-8))
            if f == 12: a('s_waitcnt lgkmcnt(8)')
            a(f'ds_read_b128 v[{dst}:{dst+3}], v{GF} offset:{f*1024}')
    def gemm_store(tag):
        for i in range(16):
            a(f'v_cvt_pk_bf16_f32 v{GA+i}, v{GA+i}, v{HA+i}')
        a(f's_lshr_b32 s{t0}, s{sW}, 1')
        a(f's_cmp_eq_u32 s{t0}, 3')
        a(f's_cbranch_scc1 K2_RT3{tag}')
        for vv in range(16):
            if vv == 12: a('s_waitcnt lgkmcnt(8)')
            a(f'ds_write_b32 v{GD}, v{GA+vv} offset:{(8*(vv//4) + vv%4) * ROWB}')
        a(f's_branch K2_RTD{tag}')
        a.label(f'K2_RT3{tag}')
        a('s_mov_b32 exec_hi, 0')
        for vv in range(2):
            a(f'ds_write_b32 v{GD}, v{GA+vv} offset:{vv * ROWB}')
        a('s_mov_b64 exec, -1')
        a.label(f'K2_RTD{tag}')
    def consts():
        a(f'v_add_u32 v{RA}, s{sDB}, v{RA}')
        for kp in range(1, 4):
            a(f'v_xor_b32 v{RA+kp}, {32*kp}, v{RA}')
        a(f's_mov_b32 s{t3}, 0x{LOG2E:x}')
        for cc in range(2):
            a(f'v_lshlrev_b32 v{BC+cc}, 16, v{BC+cc}')
            a(f'v_mul_f32 v{BC+cc}, s{t3}, v{BC+cc}')
        a(f'v_cvt_pk_bf16_f32 v{BC}, 0, v{BC}')
        a(f'v_cvt_pk_bf16_f32 v{BC+1}, v{BC+1}, 0')
        a(f'v_cmp_gt_u32 vcc, 32, v{vLANE}')
        a(f'v_mov_b32 v{tG}, 0xb2000000')
        a(f'v_mov_b32 v{tH}, 0xb200')
        a(f'v_cndmask_b32 v{BC}, v{tG}, v{BC}, vcc')
        a(f'v_cndmask_b32 v{BC+1}, v{tH}, v{BC+1}, vcc')

    def hist():
        a(f'v_mov_b32 v{tE}, 1')
        for it in range(NIT):
            if it == 12: a('s_waitcnt lgkmcnt(8)')
            a(f's_mov_b64 exec, s[{MK+2*it}:{MK+2*it+1}]')
            sk = a.newlabel('skh') if (it >= 8 and opts.get('skipb', 1)) else None
            if sk: a(f's_cbranch_execz {sk}')
            a(f'ds_add_rtn_u32 v{RK+it}, v{REC+2*it+1}, v{tE} offset:{L_CNT}')
            if sk: a.label(sk)
        sk = a.newlabel('skhc')
        a(f's_mov_b64 exec, s[{MKC}:{MKC+1}]')
        a(f's_cbranch_execz {sk}')
        a(f'ds_add_rtn_u32 v{RKC}, v{RC+1}, v{tE} offset:{L_CNT}')
        a.label(sk)
        a('s_mov_b64 exec, -1')

    def scan_nodes(tag, mid=None):
        a(f'v_lshlrev_b32 v{tA}, 3, v{vLANE}')
        a(f'ds_read_b64 v[{TQ}:{TQ+1}], v{tA} offset:{L_CNT}')
        a(f'v_mul_u32_u24 v{nROW0}, {2*ROWB}, v{vLANE}')
        a(f'v_add_u32 v{nROW0}, {L_ACC}, v{nROW0}')
        if mid: mid()
        else: a('s_waitcnt lgkmcnt(0)')
        a(f'v_add_u32 v{tE}, 3, v{TQ}')
        a(f'v_add_u32 v{tF}, 3, v{TQ+1}')
        a(f'v_and_b32 v{tE}, -4, v{tE}')
        a(f'v_and_b32 v{tF}, -4, v{tF}')
        a(f'v_add_u32 v{tC}, v{tE}, v{tF}')
        a(f'v_max_u32 v{tB}, v{tE}, v{tF}')
        a(f'v_mov_b32 v{tD}, v{tC}')
        wave_scan(a, 'v_add_u32', tD)
        a(f'v_sub_u32 v{nOFF0}, v{tD}, v{tC}')
        a(f'v_readlane_b32 s{t1}, v{tD}, 63')
        a(f'v_add_u32 v{nOFF1}, v{nOFF0}, v{tE}')
        a(f'v_lshlrev_b32 v{TQ+2}, 2, v{nOFF0}')
        a(f'v_lshlrev_b32 v{TQ+3}, 2, v{nOFF1}')
        a(f'ds_write_b64 v{tA}, v[{TQ+2}:{TQ+3}] offset:{L_TAB}')
        a(f'v_mov_b32 v{nEND0}, v{nOFF1}')
        a(f'v_add_u32 v{nEND1}, v{nOFF1}, v{tF}')
        a(f's_add_u32 s{t1}, s{t1}, 127')
        a(f's_lshr_b32 s{t1}, s{t1}, 7')
        a(f's_lshr_b32 s{t0}, s{t1}, 1')
        a(f's_sub_u32 s{t1}, s{t1}, s{t0}')
        a(f's_lshl_b32 s{sLA}, s{t1}, 2')
        a(f's_lshl_b32 s{sLB}, s{t0}, 2')
        a(f's_sub_u32 s{sSO}, s{sLA}, s{sLB}')
        a(f's_lshl_b32 s{sSO}, s{sSO}, 3')
        a(f's_cmp_lt_u32 s{sW}, 4')
        a(f's_cselect_b32 s{sL}, s{sLA}, s{sLB}')
        a(f's_cselect_b32 s{sSO}, 0, s{sSO}')
        a(f's_lshr_b32 s{sCNT}, s{sL}, 2')
        a(f's_sub_u32 s{sCNT}, s{sCNT}, 1')
    def qi_fill(tag, split):
        B0 = TQ + 2; B1 = TQ + 3; V0 = TR + 1; V1 = TR + 2
        a(f'v_max_u32 v{TR}, v{tE}, v{tF}')
        if split:
            a(f'v_cvt_f32_u32 v{tA}, s{sLA}')
            a(f'v_cvt_f32_u32 v{tD}, s{sLB}')
            a(f'v_rcp_f32 v{tA}, v{tA}')
            a(f'v_rcp_f32 v{tD}, v{tD}')
            a(f's_lshl_b32 s{t0}, s{sLA}, 5')
            a(f's_sub_u32 s{t1}, s{sLA}, s{sLB}')
            a(f's_lshl_b32 s{t1}, s{t1}, 5')
            a(f'v_mul_f32 v{tA}, 0.25, v{tA}')
            a(f'v_mul_f32 v{tD}, 0.25, v{tD}')
            for (OFF, nx, B, Vv) in ((nOFF0, tB, B0, V0), (nOFF1, tC, B1, V1)):
                a(f'v_cmp_gt_u32 vcc, s{t0}, v{OFF}')
                a(f'v_subrev_u32 v{tG}, s{t1}, v{OFF}')
                a('s_nop 0')
                a(f'v_cndmask_b32 v{tG}, v{tG}, v{OFF}, vcc')
                a(f'v_cndmask_b32 v{tH}, v{tD}, v{tA}, vcc')
                a(f'v_cvt_f32_u32 v{tG}, v{tG}')
                a(f'v_add_f32 v{tG}, 2.0, v{tG}')
                a(f'v_mul_f32 v{tG}, v{tH}, v{tG}')
                a(f'v_cvt_u32_f32 v{nx}, v{tG}')
                a(f'v_add_u32 v{nx}, 1, v{nx}')
                a(f'v_mov_b32 v{tG}, s{sLB}')
                a(f'v_mov_b32 v{tH}, s{sLA}')
                a(f'v_cndmask_b32 v{tG}, v{tG}, v{tH}, vcc')
                a(f'v_mov_b32 v{tH}, s{t1}')
                a(f'v_cndmask_b32 v{tH}, v{tH}, 0, vcc')
                a(f'v_lshlrev_b32 v{tG}, 2, v{tG}')
                a(f'v_mad_u32_u24 v{B}, v{nx}, v{tG}, v{tH}')
            a(f's_movk_i32 s{t1}, {VROWB}')
            a(f'v_mov_b32 v{tD}, {L_VIRT}')
            a(f'v_mad_u32_u24 v{V0}, v{tB}, s{t1}, v{tD}')
            a(f'v_mad_u32_u24 v{V1}, v{tC}, s{t1}, v{tD}')
            a(f'v_add_u32 v{tD}, {ROWB}, v{nROW0}')
            for nd, (B, Vv, END, nx) in enumerate(((B0, V0, nEND0, tB), (B1, V1, nEND1, tC))):
                lab = a.newlabel('nosplit')
                a(f'v_lshrrev_b32 v{tG}, 1, v{nx}')
                a(f'v_cmp_lt_u32 vcc, v{B}, v{END}')
                a(f'v_cmp_eq_u32 s[{sSV}:{sSV+1}], s{sW}, v{tG}')
                a(f's_and_b64 vcc, vcc, s[{sSV}:{sSV+1}]')
                a(f's_cbranch_scc0 {lab}')
                lp = a.newlabel('splitlp')
                a.label(lp)
                a(f's_ff1_i32_b64 s{t0}, vcc')
                a(f's_bitset0_b64 vcc, s{t0}')
                a(f'v_readlane_b32 s{t2}, v{nROW0 if nd == 0 else tD}, s{t0}')
                a(f'v_readlane_b32 s{t3}, v{Vv}, s{t0}')
                a(f'v_lshrrev_b32 v{tG}, 0, v{C4}')
                a('s_mov_b32 exec_hi, 0')
                a(f'v_add_u32 v{tH}, s{t2}, v{tG}')
                a(f'ds_read_b32 v{tI}, v{tH} offset:512')
                a(f'v_add_u32 v{tH}, s{t3}, v{tG}')
                a(f'v_mov_b32 v{tG}, s{t2}')
                a(f'v_mov_b32 v{tA}, s{t3}')
                a(f'ds_write_b32 v{tG}, v{tA} offset:768')
                a('s_waitcnt lgkmcnt(1)')
                a(f'ds_write_b32 v{tH}, v{tI} offset:512')
                a('s_mov_b64 exec, -1')
                a(f's_cmp_lg_u64 vcc, 0')
                a(f's_cbranch_scc1 {lp}')
                a.label(lab)
        a(f's_lshl_b32 s{t0}, s{sW}, 2')
        a(f'v_add_u32 v{tA}, s{t0}, v{nOFF0}')
        a(f'v_add_u32 v{tB}, s{t0}, v{nOFF1}')
        a(f'v_add_u32 v{tC}, {ROWB}, v{nROW0}')
        lp = f'K2_QF{tag}'
        a.label(lp)
        a(f's_add_u32 s{t1}, s{t0}, 4')
        a(f'v_cmp_eq_u32 s[{sSV}:{sSV+1}], s{t1}, v{tE}')
        a(f'v_cmp_eq_u32 s[{sSV2}:{sSV2+1}], s{t1}, v{tF}')
        if split:
            a(f'v_add_u32 v{tG}, 4, v{tA}')
            a(f'v_add_u32 v{tH}, 4, v{tB}')
            a(f'v_cmp_eq_u32 vcc, v{tG}, v{B0}')
            a(f's_or_b64 s[{sSV}:{sSV+1}], s[{sSV}:{sSV+1}], vcc')
            a(f'v_cmp_eq_u32 vcc, v{tH}, v{B1}')
            a(f's_or_b64 s[{sSV2}:{sSV2+1}], s[{sSV2}:{sSV2+1}], vcc')
            a(f'v_cmp_ge_u32 vcc, v{tA}, v{B0}')
            a('s_nop 1')
            a(f'v_cndmask_b32 v{tG}, v{nROW0}, v{V0}, vcc')
            a(f'v_cmp_ge_u32 vcc, v{tB}, v{B1}')
            a('s_nop 1')
            a(f'v_cndmask_b32 v{tH}, v{tC}, v{V1}, vcc')
        else:
            a(f'v_mov_b32 v{tG}, v{nROW0}')
            a(f'v_mov_b32 v{tH}, v{tC}')
        a(f'v_or_b32 v{tD}, 0x80000000, v{tG}')
        a(f'v_or_b32 v{tI}, 0x80000000, v{tH}')
        a(f'v_cmp_lt_u32 vcc, s{t0}, v{tE}')
        a(f'v_cndmask_b32 v{tG}, v{tG}, v{tD}, s[{sSV}:{sSV+1}]')
        a(f'v_cndmask_b32 v{tH}, v{tH}, v{tI}, s[{sSV2}:{sSV2+1}]')
        a(f'v_cmp_lt_u32 s[{sSV}:{sSV+1}], s{t0}, v{tF}')
        a('s_mov_b64 exec, vcc')
        a(f'ds_write_b32 v{tA}, v{tG} offset:{L_QI}')
        a(f's_mov_b64 exec, s[{sSV}:{sSV+1}]')
        a(f'ds_write_b32 v{tB}, v{tH} offset:{L_QI}')
        a('s_mov_b64 exec, -1')
        a(f's_add_u32 s{t0}, s{t0}, 32')
        a(f'v_add_u32 v{tA}, 32, v{tA}')
        a(f'v_add_u32 v{tB}, 32, v{tB}')
        a(f'v_cmp_lt_u32 vcc, s{t0}, v{TR}')
        a(f's_cbranch_vccnz {lp}')
    def scatter():
        a('s_waitcnt lgkmcnt(0)')
        for it in range(8):
            a(f's_mov_b64 exec, s[{MK+2*it}:{MK+2*it+1}]')
            a(f'ds_read_b32 v{AX+it}, v{REC+2*it+1} offset:{L_TAB}')
        for it in range(8):
            a(f's_mov_b64 exec, s[{MK+2*it}:{MK+2*it+1}]')
            a('s_waitcnt lgkmcnt(7)')
            a(f'v_lshl_add_u32 v{AX+it}, v{RK+it}, 2, v{AX+it}')
            a(f'ds_write_b32 v{AX+it}, v{REC+2*it} offset:{L_ENT}')
        for it in range(8, 16):
            sk = a.newlabel('sks')
            a(f's_mov_b64 exec, s[{MK+2*it}:{MK+2*it+1}]')
            if opts.get('skipb', 1): a(f's_cbranch_execz {sk}')
            a(f'ds_read_b32 v{AX+it}, v{REC+2*it+1} offset:{L_TAB}')
            a('s_waitcnt lgkmcnt(0)')
            a(f'v_lshl_add_u32 v{AX+it}, v{RK+it}, 2, v{AX+it}')
            a(f'ds_write_b32 v{AX+it}, v{REC+2*it} offset:{L_ENT}')
            a.label(sk)
        sk = a.newlabel('sksc')
        a(f's_mov_b64 exec, s[{MKC}:{MKC+1}]')
        a(f's_cbranch_execz {sk}')
        a(f'ds_read_b32 v{tJ}, v{RC+1} offset:{L_TAB}')
        a('s_waitcnt lgkmcnt(0)')
        a(f'v_lshl_add_u32 v{tJ}, v{RKC}, 2, v{tJ}')
        a(f'ds_write_b32 v{tJ}, v{RC} offset:{L_ENT}')
        a.label(sk)
        a('s_mov_b64 exec, -1')

    def setup_ptrs():
        a(f'v_add_u32 v{tB}, s{sSO}, v{jA}')
        a(f'v_mad_u32_u24 v{tA}, v{sidA}, s{sL}, v{tB}')
        a(f'v_lshlrev_b32 v{pEN}, 4, v{tA}')
        a(f'ds_read_b128 v[{EN}:{EN+3}], v{pEN} offset:{L_ENT}')
        a(f'v_lshlrev_b32 v{pQF}, 2, v{tA}')
        a(f'v_sub_u32 v{pQI}, v{tA}, v{jA}')
        a(f'v_lshlrev_b32 v{pQI}, 2, v{pQI}')
        a(f'v_add_u32 v{pQI}, {L_QI}, v{pQI}')
        a(f'v_mad_u32_u24 v{tA}, v{sidR}, s{sL}, v{tB}')
        a(f'v_lshl_add_u32 v{pEE}, v{tA}, 4, v{iR4}')
        a(f's_mov_b32 m0, s{sDB}')

    def dma_addr():
        return [f'v_mad_u32_u16 v{EN+i}, v{EN+i}, s{s128}, v{CO+i}' for i in range(4)]
    def dma_issue():
        if opts.get('nodma'): return []
        return [f'buffer_load_dwordx4 v{EN+i}, s[{rX}:{rX+3}], 0 offen offset:{1024*i} lds' if i else
                f'buffer_load_dwordx4 v{EN}, s[{rX}:{rX+3}], 0 offen lds' for i in range(4)]

    def main_loop(tag, atomic):
        flush_blocks = []
        PS = [(PP, TT_, ZZ), (PB, TB, ZB)]
        def flush_body(par, j):
            a(f's_bfe_i32 exec_lo, s{sF[par]}, 0x{(1<<16)|(8*j):x}')
            a(f's_bfe_i32 exec_hi, s{sF[par]+1}, 0x{(1<<16)|(8*j):x}')
            a(f'v_add_f32 v{F0}, v{DEN}, v{DEN+1}')
            a(f'v_add_f32 v{F1}, v{NUM}, v{NUM+1}')
            a(f'v_add_f32 v{F2}, v{DEN+2}, v{DEN+3}')
            a(f'v_add_f32 v{F3}, v{NUM+2}, v{NUM+3}')
            a(f'v_mov_b64 v[{DEN}:{DEN+1}], 0')
            a(f'v_mov_b64 v[{NUM}:{NUM+1}], 0')
            if atomic:
                a(f'ds_add_f32 v{QA[par]+j}, v{F0}')
                a(f'ds_add_f32 v{QA[par]+j}, v{F1} offset:256')
                a(f'ds_add_f32 v{QA[par]+j}, v{F2} offset:128')
                a(f'ds_add_f32 v{QA[par]+j}, v{F3} offset:384')
            else:
                a(f'ds_write2_b32 v{QA[par]+j}, v{F0}, v{F1} offset0:0 offset1:64')
                a(f'ds_write2_b32 v{QA[par]+j}, v{F2}, v{F3} offset0:32 offset1:96')
            a(f'v_mov_b64 v[{DEN+2}:{DEN+3}], 0')
            a(f'v_mov_b64 v[{NUM+2}:{NUM+3}], 0')
            a('s_mov_b64 exec, -1')
        def post2(par):
            for j in range(4):
                for cc in range(2):
                    p, t, z = (r + 2*j for r in PS[cc])
                    a(f'v_pk_fma_f32 v[{NUM+2*cc}:{NUM+2*cc+1}], v[{p}:{p+1}], v[{t}:{t+1}], v[{NUM+2*cc}:{NUM+2*cc+1}]')
                    a(f'v_pk_fma_f32 v[{DEN+2*cc}:{DEN+2*cc+1}], v[{p}:{p+1}], v[{z}:{z+1}], v[{DEN+2*cc}:{DEN+2*cc+1}]')
                if opts.get('noflush'): continue
                fl = a.newlabel('fl'); back = a.newlabel('bk')
                a(f's_bitcmp1_b32 s{sANY[par]}, {8*j}')
                a(f's_cbranch_scc1 {fl}')
                a.label(back)
                flush_blocks.append((fl, back, par, j))
        def pre(cur):
            g0 = G_[cur]; h0 = H_[cur]; P_, T_, Z_ = PS[cur]
            for j in range(4):
                g = g0 + 4*j
                a(f'v_pk_fma_f32 v[{g}:{g+1}], v[{g}:{g+1}], s[{sC}:{sC+1}], s[{sC}:{sC+1}] clamp')
                a(f'v_pk_fma_f32 v[{g+2}:{g+3}], v[{g+2}:{g+3}], s[{sC}:{sC+1}], s[{sC}:{sC+1}] clamp')
            for j in range(4):
                g = g0 + 4*j; h = h0 + 4*j
                X = f'v[{g}:{g+1}]'; Y = f'v[{g+2}:{g+3}]'
                p = P_ + 2*j; t = T_ + 2*j; z = Z_ + 2*j
                a(f'v_pk_mul_f32 v[{t}:{t+1}], {Y}, v[{h}:{h+1}]')
                a(f'v_pk_mul_f32 v[{p}:{p+1}], {X}, {Y}')
                a(f'v_pk_add_f32 v[{z}:{z+1}], {X}, {Y}')
                a(f'v_pk_fma_f32 v[{t}:{t+1}], {X}, v[{h+2}:{h+3}], v[{t}:{t+1}]')
        def mfma_list(nxt, cc):
            Gs = f'v[{G_[nxt]}:{G_[nxt]+15}]'; Hs = f'v[{H_[nxt]}:{H_[nxt]+15}]'
            out = []
            for kp in range(4):
                wb = WB + 16*cc + 4*kp; wv = WV + 16*cc + 4*kp; ax = AX + 4*kp
                out.append(f'v_mfma_f32_32x32x16_bf16 {Hs}, v[{ax}:{ax+3}], v[{wv}:{wv+3}], {"0" if kp == 0 else Hs}')
                out.append(f'v_mfma_f32_32x32x16_bf16 {Gs}, v[{ax}:{ax+3}], v[{wb}:{wb+3}], {"0" if kp == 0 else Gs}')
            out.append(f'v_mfma_f32_32x32x16_bf16 {Gs}, v[{AE[cc]}:{AE[cc]+3}], v[{BE}:{BE+3}], {Gs}')
            return out
        def trans_list(cur):
            Pp = PS[cur ^ 1][0]
            return [f'v_rcp_f32 v{Pp+i}, v{Pp+i}' for i in range(8)] + [f'v_exp_f32 v{G_[cur]+i}, v{G_[cur]+i}' for i in range(16)]
        def weave(mf, tr, gaps):
            dist = [3, 3, 3, 3, 3, 3, 2, 2, 2]
            if opts.get('nogaps'): gaps = {}
            if opts.get('nomf'): mf = None
            k = 0
            for m in range(9):
                for ins in gaps.get(('m', m), []): a(ins)
                if mf: a(mf[m])
                for _ in range(dist[m]):
                    a(tr[k])
                    for ins in gaps.get(k, []): a(ins)
                    k += 1
            assert k == len(tr)
        def stage0(par):
            g = {}
            da = dma_addr()
            g[0] = [f'ds_read_b32 v{QF}, v{pQF} offset:{L_QI + 16*(par+1)}']
            g[1] = [f'ds_read_b32 v{EE}, v{pEE} offset:{L_ENT + 64*(par+1)}']
            g[3] = [f'v_and_or_b32 v{BE}, v{R0}, s{sHI}, v{BC+1}']
            g[6] = [da[0]]; g[9] = [da[1]]; g[12] = [da[2]]; g[15] = [da[3]]
            weave(mfma_list(1, 1), trans_list(0), g)
            post2(par ^ 1)
            qn = QA[par ^ 1]
            if not opts.get('nogaps'):
                a(f'ds_read2_b32 v[{qn}:{qn+1}], v{pQI} offset0:{4*(par+1)} offset1:{4*(par+1)+1}')
                a(f'ds_read2_b32 v[{qn+2}:{qn+3}], v{pQI} offset0:{4*(par+1)+2} offset1:{4*(par+1)+3}')
                a('s_waitcnt vmcnt(0)')
                for kp in range(4):
                    a(f'ds_read_b128 v[{AX+4*kp}:{AX+4*kp+3}], v{RA+kp}')
            pre(0)
            a(f's_sub_u32 s{sCNT}, s{sCNT}, 1')
        def stage1(par):
            qn = QA[par ^ 1]
            g = {}
            di = dma_issue()
            g[('m', 0)] = ['s_waitcnt lgkmcnt(0)']
            g[0] = [f'v_mad_u32_u24 v{qn}, v{qn}, 1, v{C4}'] + di[0:1]
            g[1] = [f'v_mad_u32_u24 v{qn+1}, v{qn+1}, 1, v{C4}'] + di[1:2]
            g[2] = [f'ds_read_b32 v{R0}, v{qn} offset:512'] + di[2:3]
            g[3] = [f'v_mad_u32_u24 v{qn+2}, v{qn+2}, 1, v{C4}', f'ds_read_b32 v{BE+1}, v{qn+1} offset:512'] + di[3:4]
            g[4] = [f'v_mad_u32_u24 v{qn+3}, v{qn+3}, 1, v{C4}', f'ds_read_b32 v{BE+2}, v{qn+2} offset:512']
            g[5] = [f'ds_read_b32 v{BE+3}, v{qn+3} offset:512']
            g[6] = [f'ds_read_b128 v[{EN}:{EN+3}], v{pEN} offset:{L_ENT + 64*(par+3)}']
            g[7] = [f'v_perm_b32 v{AE[0]}, v{EE}, v{AE[0]}, v{SEL[0]}']
            g[9] = [f'v_perm_b32 v{AE[1]}, v{EE}, v{AE[1]}, v{SEL[1]}']
            g[11] = [f'v_cmp_gt_i32 s[{sF[par^1]}:{sF[par^1]+1}], 0, v{QF}']
            if par == 1:
                g[13] = [f'v_add_u32 v{pQI}, 32, v{pQI}']
                g[14] = [f'v_add_u32 v{pQF}, 32, v{pQF}']
                g[15] = [f'v_add_u32 v{pEE}, 128, v{pEE}']
                g[16] = [f'v_add_u32 v{pEN}, 128, v{pEN}']
            g[17] = [f's_or_b32 s{sANY[par^1]}, s{sF[par^1]}, s{sF[par^1]+1}'] if not opts.get('noany') else [f's_mov_b32 s{sANY[par^1]}, 0']
            g[19] = ['s_waitcnt lgkmcnt(0)', f'v_and_or_b32 v{BE}, v{R0}, s{sLO}, v{BC}']
            weave(mfma_list(0, 0), trans_list(1), g)
            pre(1)
        def last_stage1(par):
            weave(None, trans_list(1), {})
            pre(1)
            for i in range(8):
                a(f'v_rcp_f32 v{PB+i}, v{PB+i}')
            a('s_nop 0')
            post2(par)
        L0 = f'K2_T0{tag}'; E0 = f'K2_E0{tag}'; E1 = f'K2_E1{tag}'; DONE = f'K2_MD{tag}'
        PR = opts.get('prio', 1)
        if PR:
            a(f's_add_u32 s{t0}, s{sCNT}, 1')
            a(f's_mul_i32 s{t0}, s{t0}, {opts.get("pfrac", 20)}')
            a(f's_lshr_b32 s{t0}, s{t0}, 6')
            a(f's_lshl_b32 s{t0}, s{t0}, 1')
            a(f's_sub_u32 s{sSWAP}, s{sCNT}, s{t0}')
            a(f's_cmp_ge_u32 s{sW}, 4')
            a(f's_cbranch_scc0 K2_PR0{tag}')
            a('s_setprio 1')
            a.label(f'K2_PR0{tag}')
        if PR == 3:
            a(f's_cmp_ge_u32 s{sW}, 4')
            a(f's_cselect_b32 s{sSWAP}, 1, 0')
        a.label(L0)
        if PR == 3:
            a(f's_xor_b32 s{sSWAP}, s{sSWAP}, 1')
            a(f's_cbranch_scc1 K2_PH{tag}')
            a('s_setprio 0')
            a(f's_branch K2_PD{tag}')
            a.label(f'K2_PH{tag}')
            a('s_setprio 1')
            a.label(f'K2_PD{tag}')
        elif PR:
            a(f's_cmp_eq_u32 s{sCNT}, s{sSWAP}')
            a(f's_cbranch_scc1 K2_SWP{tag}')
            a.label(f'K2_SWB{tag}')
        stage0(0)
        a(f's_cbranch_scc1 {E0}')
        stage1(0)
        stage0(1)
        a(f's_cbranch_scc1 {E1}')
        stage1(1)
        a(f's_branch {L0}')
        a.label(E0)
        last_stage1(0)
        a(f's_branch {DONE}')
        a.label(E1)
        last_stage1(1)
        a(f's_branch {DONE}')
        if PR and PR != 3:
            a.label(f'K2_SWP{tag}')
            a(f's_cmp_ge_u32 s{sW}, 4')
            a(f's_cbranch_scc1 K2_SW0{tag}')
            a('s_setprio 1')
            a(f's_branch K2_SWB{tag}')
            a.label(f'K2_SW0{tag}')
            a('s_setprio 0')
            a(f's_branch K2_SWB{tag}')
        for (fl, back, par, j) in flush_blocks:
            a.label(fl)
            flush_body(par, j)
            a(f's_branch {back}')
        a.label(DONE)
        if PR: a('s_setprio 0')

    def pipeline_fill():
        q0 = QA[0]
        a(f'ds_read2_b32 v[{q0}:{q0+1}], v{pQI} offset0:0 offset1:1')
        a(f'ds_read2_b32 v[{q0+2}:{q0+3}], v{pQI} offset0:2 offset1:3')
        a(f'ds_read_b32 v{QF}, v{pQF} offset:{L_QI}')
        a(f'ds_read_b32 v{EE}, v{pEE} offset:{L_ENT}')
        a(f'ds_read_b128 v[{EN}:{EN+3}], v{pEN} offset:{L_ENT + 64}')
        for i in range(2):
            a(f'v_mov_b64 v[{DEN+2*i}:{DEN+2*i+1}], 0')
            a(f'v_mov_b64 v[{NUM+2*i}:{NUM+2*i+1}], 0')
        for i in range(8):
            a(f'v_mov_b32 v{PP+i}, 1.0')
            a(f'v_mov_b32 v{PB+i}, 1.0')
        for i in range(4):
            a(f'v_mov_b64 v[{TT_+2*i}:{TT_+2*i+1}], 0')
            a(f'v_mov_b64 v[{ZZ+2*i}:{ZZ+2*i+1}], 0')
            a(f'v_mov_b64 v[{TB+2*i}:{TB+2*i+1}], 0')
            a(f'v_mov_b64 v[{ZB+2*i}:{ZB+2*i+1}], 0')
        a(f's_mov_b32 s{sANY[1]}, 0')
        a('s_waitcnt lgkmcnt(0)')
        for q in range(4):
            a(f'v_mad_u32_u24 v{q0+q}, v{q0+q}, 1, v{C4}')
        a(f'ds_read_b32 v{R0}, v{q0} offset:512')
        for q in range(1, 4):
            a(f'ds_read_b32 v{BE+q}, v{q0+q} offset:512')
        a(f'v_perm_b32 v{AE[0]}, v{EE}, v{AE[0]}, v{SEL[0]}')
        a(f'v_perm_b32 v{AE[1]}, v{EE}, v{AE[1]}, v{SEL[1]}')
        a(f'v_cmp_gt_i32 s[{sF[0]}:{sF[0]+1}], 0, v{QF}')
        for ins in dma_addr(): a(ins)
        stamp(21)
        a('s_waitcnt vmcnt(0)')
        stamp(22)
        for kp in range(4):
            a(f'ds_read_b128 v[{AX+4*kp}:{AX+4*kp+3}], v{RA+kp}')
        a(f's_or_b32 s{sANY[0]}, s{sF[0]}, s{sF[0]+1}')
        a('s_waitcnt lgkmcnt(0)')
        a(f'v_and_or_b32 v{BE}, v{R0}, s{sLO}, v{BC}')
        for ins in dma_issue(): a(ins)
        a(f'ds_read_b128 v[{EN}:{EN+3}], v{pEN} offset:{L_ENT + 128}')
        Gs = f'v[{GA}:{GA+15}]'; Hs = f'v[{HA}:{HA+15}]'
        for kp in range(4):
            a(f'v_mfma_f32_32x32x16_bf16 {Hs}, v[{AX+4*kp}:{AX+4*kp+3}], v[{WV+4*kp}:{WV+4*kp+3}], {"0" if kp == 0 else Hs}')
            a(f'v_mfma_f32_32x32x16_bf16 {Gs}, v[{AX+4*kp}:{AX+4*kp+3}], v[{WB+4*kp}:{WB+4*kp+3}], {"0" if kp == 0 else Gs}')
        a(f'v_mfma_f32_32x32x16_bf16 {Gs}, v[{AE[0]}:{AE[0]+3}], v[{BE}:{BE+3}], {Gs}')
        a('s_waitcnt lgkmcnt(0)')
        a('s_nop 7')
        a('s_nop 3')
    def forced_flags():
        a(f's_sub_u32 s{t1}, s{sL}, 1')
        a(f's_lshl_b32 s{t1}, s{t1}, 2')
        a(f'v_add_u32 v{tB}, s{t1}, v{pQI}')
        a(f'v_mov_b32 v{tA}, 0x80000000')
        a('s_mov_b32 exec_lo, 1')
        a('s_mov_b32 exec_hi, 1')
        a(f'ds_or_b32 v{tB}, v{tA}')
        a('s_mov_b64 exec, -1')

    stamp(2)
    a(f's_mov_b64 exec, s[{sSV2}:{sSV2+1}]')
    a(f'v_mov_b32 v{tD}, {L_CNT + 127*4}')
    a(f'v_mov_b32 v{tE}, 1')
    a(f'ds_write_b32 v{tD}, v{tE}')
    a('s_mov_b64 exec, -1')
    gemm_issue()
    stamp(28)
    gemm_mid()
    gemm_mid2()
    stamp(29)
    a(f's_cmp_lg_u32 s{sW}, 0')
    a('s_cbranch_scc1 K2_NOCI')
    a(f'v_mul_u32_u24 v{tA}, {2*ROWB}, v{vLANE}')
    a(f'v_mov_b32 v{tB}, {L_ZERO}')
    a(f'v_add_u32 v{tA}, {L_ACC}, v{tA}')
    a(f's_mov_b32 exec_hi, {(1 << (MAXN // 2 - 32)) - 1}')
    a(f'ds_write_b32 v{tA}, v{tB} offset:768')
    a(f'ds_write_b32 v{tA}, v{tB} offset:{768 + ROWB}')
    a('s_mov_b64 exec, -1')
    a.label('K2_NOCI')
    gemm_store('F')
    stamp(3)
    a('s_waitcnt vmcnt(0) lgkmcnt(0)')
    stamp(23)
    hist()
    a('s_waitcnt lgkmcnt(0)')
    stamp(24)
    if opts.get('proprio') == 1: a('s_setprio 0')
    a('s_barrier')
    stamp(4)
    scan_nodes('F')
    a(f'v_readlane_b32 s{t0}, v{TQ+1}, 63')
    a(f's_cmp_eq_u32 s{sLB}, 0')
    a(f's_cselect_b32 s{t1}, s{sLA}, s{sLB}')
    a(f's_lshl_b32 s{t1}, s{t1}, 2')
    a(f'v_cmp_lt_u32 vcc, s{t1}, v{tB}')
    a(f's_cmp_lg_u32 s{t0}, 0')
    a('s_cbranch_scc1 K2_SLOW')
    a(f's_add_u32 s{t1}, s{sLA}, s{sLB}')
    a(f's_cmp_gt_u32 s{t1}, {(ENT_QUADS - 8) // 8}')
    a('s_cbranch_scc1 K2_SLOW')
    a('s_cbranch_vccnz K2_SLOW')
    stamp(15)
    scatter()
    stamp(16)
    a('s_waitcnt lgkmcnt(0)')
    a('s_barrier')
    stamp(5)
    a(f's_cmp_eq_u32 s{sL}, 0')
    a('s_cbranch_scc1 K2_NOL')
    setup_ptrs()
    a('s_waitcnt lgkmcnt(0)')
    for ins in dma_addr(): a(ins)
    for ins in dma_issue(): a(ins)
    a.label('K2_NOL')
    stamp(17)
    a(f'v_cmp_gt_u32 vcc, {MAXN // 2}, v{vLANE}')
    a(f'v_lshl_or_b32 v{tB}, v{vLANE}, 1, 1')
    a(f'v_cmp_le_u32 s[{sSV}:{sSV+1}], s{sNN}, v{tB}')
    a(f'v_mov_b32 v{tC}, 1')
    a('s_nop 0')
    a(f'v_cndmask_b32 v{tB}, v{TQ+1}, v{tC}, s[{sSV}:{sSV+1}]')
    a(f'v_min_u32 v{tB}, v{TQ}, v{tB}')
    a(f'v_cmp_eq_u32 s[{sSV}:{sSV+1}], 0, v{tB}')
    a(f's_and_b64 s[{sSV}:{sSV+1}], s[{sSV}:{sSV+1}], vcc')
    a('s_cbranch_scc1 K2_ZROWS')
    a.label('K2_ZBACK')
    qi_fill('F', True)
    stamp(18)
    w_frags()
    consts()
    a('s_waitcnt lgkmcnt(0)')
    stamp(19)
    if opts.get('proprio') == 2: a('s_setprio 0')
    a('s_barrier')
    stamp(20)
    a(f's_cmp_eq_u32 s{sL}, 0')
    a('s_cbranch_scc1 K2_EPI')
    pipeline_fill()
    stamp(6)
    if opts.get('dbgtime'):
        a(f's_memrealtime s[{t2}:{t3}]')
        a('s_waitcnt lgkmcnt(0)')
        a(f's_mov_b32 s{sT1}, s{t2}')
    if STAMP:
        a(f's_memrealtime s[{t2}:{t3}]')
        a('s_waitcnt lgkmcnt(0)')
        a(f'v_writelane_b32 v{vST}, s{t2}, 13')
    if opts.get('half'):
        a(f's_cmp_ge_u32 s{sW}, 4')
        a('s_cbranch_scc1 K2_MDF')
    main_loop('F', False)
    stamp(7)
    if opts.get('dbgtime'):
        a(f's_memrealtime s[{t2}:{t3}]')
        a('s_waitcnt lgkmcnt(0)')
        a(f's_mov_b32 s{sT2}, s{t2}')
    if STAMP:
        a(f's_memrealtime s[{t2}:{t3}]')
        a('s_waitcnt lgkmcnt(0)')
        a(f'v_writelane_b32 v{vST}, s{t2}, 14')
    a.label('K2_EPI')
    e0 = 4
    XV = [e0, e0 + 4]; DN = e0 + 8; NM = e0 + 16; UU = e0 + 24; CD = e0 + 28; CN = e0 + 36; O = e0 + 44
    AD = e0 + 48; GO = [e0 + 49, e0 + 50]; T1 = e0 + 51; T2 = e0 + 52; CP = e0 + 53; ND = e0 + 54; OC = [e0 + 55, e0 + 56]; ADR = [e0 + 48, e0 + 57]
    def epi_addr(r):
        a(f'v_add_u32 v{T1}, {512*r}, v0') if r else a(f'v_mov_b32 v{T1}, v0')
        a(f'v_lshrrev_b32 v{ND}, 3, v{T1}')
        a(f'v_and_b32 v{T1}, 7, v{T1}')
        a(f'v_lshlrev_b32 v{OC[r]}, 4, v{T1}')
        a(f'v_mad_u32_u24 v{ADR[r]}, v{ND}, s{t0}, v{OC[r]}')
        a(f'v_add_u32 v{ADR[r]}, {L_ACC}, v{ADR[r]}')
        a(f'v_add_u32 v{GO[r]}, s{sNS}, v{ND}')
        a(f'v_lshlrev_b32 v{GO[r]}, 7, v{GO[r]}')
        a(f'v_lshl_add_u32 v{GO[r]}, v{T1}, 3, v{GO[r]}')
    def epi_body(r, carry):
        ad = ADR[r]; xv = XV[r]
        if carry:
            a(f'v_sub_u32 v{T2}, v{ad}, v{OC[r]}')
            a(f'ds_read_b32 v{CP}, v{T2} offset:768')
        a(f'ds_read_b128 v[{DN}:{DN+3}], v{ad}')
        a(f'ds_read_b128 v[{DN+4}:{DN+7}], v{ad} offset:128')
        a(f'ds_read_b128 v[{NM}:{NM+3}], v{ad} offset:256')
        a(f'ds_read_b128 v[{NM+4}:{NM+7}], v{ad} offset:384')
        a(f'ds_read_b128 v[{UU}:{UU+3}], v{ad} offset:640')
        if carry:
            a('s_waitcnt lgkmcnt(5)')
            a(f'v_add_u32 v{T2}, v{CP}, v{OC[r]}')
            a(f'ds_read_b128 v[{CD}:{CD+3}], v{T2}')
            a(f'ds_read_b128 v[{CD+4}:{CD+7}], v{T2} offset:128')
            a(f'ds_read_b128 v[{CN}:{CN+3}], v{T2} offset:256')
            a(f'ds_read_b128 v[{CN+4}:{CN+7}], v{T2} offset:384')
        a('s_waitcnt lgkmcnt(0)')
        if carry:
            for i in range(0, 8, 2):
                a(f'v_pk_add_f32 v[{DN+i}:{DN+i+1}], v[{DN+i}:{DN+i+1}], v[{CD+i}:{CD+i+1}]')
                a(f'v_pk_add_f32 v[{NM+i}:{NM+i+1}], v[{NM+i}:{NM+i+1}], v[{CN+i}:{CN+i+1}]')
        for i in range(0, 8, 2):
            a(f'v_pk_add_f32 v[{DN+i}:{DN+i+1}], v[{DN+i}:{DN+i+1}], s[{sC}:{sC+1}]')
        for i in range(8):
            a(f'v_rcp_f32 v{DN+i}, v{DN+i}')
        for i in range(4):
            a(f'v_lshlrev_b32 v{CD+i}, 16, v{UU+i}')
            a(f'v_and_b32 v{CD+4+i}, s{sHI}, v{UU+i}')
        for i in range(0, 8, 2):
            a(f'v_pk_fma_f32 v[{NM+i}:{NM+i+1}], v[{NM+i}:{NM+i+1}], v[{DN+i}:{DN+i+1}], v[{CD+i}:{CD+i+1}]')
        a(f's_waitcnt vmcnt({2 if r == 0 else 0})') if True else None
        for i in range(8):
            a(f'v_max_f32 v{NM+i}, 0, v{NM+i}')
        for i in range(4):
            a(f'v_lshlrev_b32 v{CD+2*i}, 16, v{xv+i}')
            a(f'v_and_b32 v{CD+2*i+1}, s{sHI}, v{xv+i}')
        for i in range(0, 8, 2):
            a(f'v_pk_add_f32 v[{NM+i}:{NM+i+1}], v[{NM+i}:{NM+i+1}], v[{CD+i}:{CD+i+1}]')
        for i in range(4):
            a(f'v_cvt_pk_bf16_f32 v{O+i}, v{NM+2*i}, v{NM+2*i+1}')
        osf = {0: '', 1: ' sc1', 2: ' nt', 3: ' sc0 sc1'}[opts.get('outst', 0)]
        a(f'buffer_store_dwordx2 v[{O}:{O+1}], v{GO[r]}, s[{rO}:{rO+3}], 0 offen' + osf)
        a(f'buffer_store_dwordx2 v[{O+2}:{O+3}], v{GO[r]}, s[{rO}:{rO+3}], 0 offen offset:64' + osf)
    def epilogue(tag, carry):
        srd(a, rO, sOUT, N * 128)
        srd(a, rF, sX, N * 128)
        a(f's_mov_b32 s{t0}, {ROWB}')
        a(f's_mov_b32 s{sC}, 0x{EPS_SCALED:x}')
        a(f's_mov_b32 s{sC+1}, 0x{EPS_SCALED:x}')
        a(f's_mov_b32 s{sHI}, 0xffff0000')
        a('s_waitcnt vmcnt(0)')
        epi_addr(0)
        a(f'buffer_load_dwordx2 v[{XV[0]}:{XV[0]+1}], v{GO[0]}, s[{rF}:{rF+3}], 0 offen')
        a(f'buffer_load_dwordx2 v[{XV[0]+2}:{XV[0]+3}], v{GO[0]}, s[{rF}:{rF+3}], 0 offen offset:64')
        epi_addr(1)
        a(f'v_cmp_gt_u32 s[{sSV}:{sSV+1}], s{sNN}, v{ND}')
        a(f'buffer_load_dwordx2 v[{XV[1]}:{XV[1]+1}], v{GO[1]}, s[{rF}:{rF+3}], 0 offen')
        a(f'buffer_load_dwordx2 v[{XV[1]+2}:{XV[1]+3}], v{GO[1]}, s[{rF}:{rF+3}], 0 offen offset:64')
        a('s_waitcnt lgkmcnt(0)')
        a('s_barrier')
        if STAMP and tag == 'F': stamp(8)
        epi_body(0, carry)
        a(f's_mov_b64 exec, s[{sSV}:{sSV+1}]')
        a(f's_cbranch_execz K2_FIN{tag}')
        epi_body(1, carry)
        a.label(f'K2_FIN{tag}')
    epilogue('F', True)
    if opts.get('dbgtime'):
        a('s_mov_b64 exec, -1')
        a('s_waitcnt vmcnt(0)')
        a(f's_memrealtime s[{t2}:{t3}]')
        a(f's_cmp_lg_u32 s{sW}, 7')
        a('s_cbranch_scc1 K2_DBGX')
        a('s_and_b32 s3, s2, 31')
        a('s_cmp_lg_u32 s3, 0')
        a('s_cbranch_scc1 K2_DBGX')
        a('s_lshr_b32 s3, s2, 5')
        a('s_cmp_ge_u32 s3, 2')
        a('s_cbranch_scc1 K2_DBGX')
        a(f's_lshl_b32 s{t0}, s3, 2')
        a(f's_add_u32 s{t0}, s{t0}, 0x1200000')
        a(f'v_mov_b32 v4, s{t0}')
        a(f'global_load_dword v5, v4, s[{sWS}:{sWS+1}]')
        a(f'global_load_dword v6, v4, s[{sWS}:{sWS+1}] offset:256')
        a('s_waitcnt vmcnt(0) lgkmcnt(0)')
        a(f'v_sub_u32 v8, v6, v5')
        a(f'v_sub_u32 v9, s{sT0}, v5')
        a(f'v_sub_u32 v10, s{sT1}, v5')
        a(f'v_sub_u32 v11, s{sT2}, v5')
        a(f'v_sub_u32 v12, s{t2}, v5')
        a('s_lshl_b32 s3, s3, 5')
        a('v_mov_b32 v4, s3')
        a('s_mov_b64 exec, 1')
        a(f'global_store_dwordx4 v4, v[8:11], s[{sDBG}:{sDBG+1}]')
        a(f'global_store_dword v4, v12, s[{sDBG}:{sDBG+1}] offset:16')
        a.label('K2_DBGX')
    if STAMP:
        a('s_mov_b64 exec, -1')
        a('s_waitcnt vmcnt(0)')
        stamp(9)
        a(f's_memrealtime s[{t2}:{t3}]')
        a('s_waitcnt lgkmcnt(0)')
        a(f'v_writelane_b32 v{vST}, s{t2}, 12')
        a(f's_mul_i32 s{t0}, s2, {NW}')
        a(f's_add_u32 s{t0}, s{t0}, s{sW}')
        a(f's_lshl_b32 s{t0}, s{t0}, 8')
        a(f's_add_u32 s{t0}, s{t0}, 0x1000000')
        srd_off(a, rT, sWS, f's{t0}', 256)
        a(f'v_writelane_b32 v{vST}, s{sL}, 10')
        a(f'v_lshlrev_b32 v4, 2, v{vLANE}')
        a(f'buffer_store_dword v{vST}, v4, s[{rT}:{rT+3}], 0 offen')
    a('s_endpgm')
    a.label('K2_CSEL')
    a(f'v_mov_b32 v{tD}, 0')
    a(f'v_mov_b32 v{tE}, 0')
    a(f'v_mov_b32 v{tF}, 0')
    for it in range(8):
        a(f'v_lshrrev_b32 v{tG}, 24, v{SG+it}')
        a(f'v_cmp_lt_u32 vcc, 32, v{tG}')
        a(f'v_mad_u32_u24 v{tJ}, v{SG+it}, 8, v{tB}')
        a(f'v_add_u32 v{RKC}, 1, v{tF}')
        a(f'v_cndmask_b32 v{tD}, v{tD}, v{tJ}, vcc')
        a(f'v_cndmask_b32 v{tE}, v{tE}, v{tG}, vcc')
        a(f'v_cndmask_b32 v{tF}, v{tF}, v{RKC}, vcc')
    a(f'v_cmp_lt_u32 vcc, 1, v{tF}')
    a(f'v_cmp_lt_u32 s[{sSV2}:{sSV2+1}], 48, v{tE}')
    a(f'v_add_u32 v{tG}, 32, v{tC}')
    a(f's_or_b64 s[{sSV2}:{sSV2+1}], s[{sSV2}:{sSV2+1}], vcc')
    a(f'v_cmp_gt_u32 s[{MKC}:{MKC+1}], v{tE}, v{tG}')
    a('s_nop 0')
    a(f's_mov_b64 exec, s[{MKC}:{MKC+1}]')
    a(f'buffer_load_dwordx2 v[{RC}:{RC+1}], v{tD}, s[{rR}:{rR+3}], 0 offen offset:256')
    a('s_mov_b64 exec, -1')
    a('s_branch K2_CBACK')
    a.label('K2_ZROWS')
    a(f's_mov_b64 exec, s[{sSV}:{sSV+1}]')
    for i in range(4):
        a(f'v_mov_b32 v{TR+i}, 0')
    for nd in range(2):
        a(f'v_cmp_eq_u32 vcc, 0, v{TQ+nd}')
        a(f's_and_b64 exec, vcc, s[{sSV}:{sSV+1}]')
        for k in range(32):
            a(f'ds_write_b128 v{nROW0}, v[{TR}:{TR+3}] offset:{nd*ROWB + 16*k}')
        a(f's_mov_b64 exec, s[{sSV}:{sSV+1}]')
    a('s_mov_b64 exec, -1')
    a('s_branch K2_ZBACK')

    a.label('K2_SLOW')
    w_frags()
    consts()
    a('s_waitcnt vmcnt(0) lgkmcnt(0)')
    a('s_barrier')
    a(f's_lshl_b32 s{t1}, s2, 10')
    a(f's_add_u32 s{t1}, s{t1}, {WS_TAB2}')
    srd_off(a, rT, sWS, f's{t1}', 1024)
    a(f'v_lshlrev_b32 v{tA}, 4, v{vLANE}')
    a(f'buffer_load_dwordx4 v[{TQ}:{TQ+3}], v{tA}, s[{rT}:{rT+3}], 0 offen')
    a('s_waitcnt vmcnt(0)')
    a(f'v_max_u32 v{tE}, v{TQ}, v{TQ+1}')
    a(f'v_max3_u32 v{tE}, v{tE}, v{TQ+2}, v{TQ+3}')
    wave_scan(a, 'v_max_u32', tE)
    a('s_nop 0')
    a(f'v_readlane_b32 s{t1}, v{tE}, 63')
    a(f's_add_u32 s{t1}, s{t1}, {WSLOW-1}')
    a(f's_mul_i32 s{t1}, s{t1}, 5042')
    a(f's_lshr_b32 s{sNP}, s{t1}, 16')
    a(f's_mov_b32 s{sP}, 0')
    for i in range(4):
        a(f'v_mov_b32 v{TR+i}, 0')
    a(f'v_lshrrev_b32 v{tA}, 5, v0')
    a(f'v_mul_u32_u24 v{tA}, {ROWB}, v{tA}')
    a(f'v_and_b32 v{tB}, 31, v{vLANE}')
    a(f'v_lshl_add_u32 v{tA}, v{tB}, 4, v{tA}')
    a(f'v_add_u32 v{tA}, {L_ACC}, v{tA}')
    for i in range(6):
        a(f'ds_write_b128 v{tA}, v[{TR}:{TR+3}]')
        a(f'v_add_u32 v{tA}, {16*ROWB}, v{tA}')
    a(f'v_cmp_gt_u32 vcc, 64, v0')
    a(f's_and_saveexec_b64 s[{sSV}:{sSV+1}], vcc')
    a(f'ds_write_b128 v{tA}, v[{TR}:{TR+3}]')
    a(f's_mov_b64 exec, s[{sSV}:{sSV+1}]')
    a.label('K2_SPASS')
    a(f's_lshl_b32 s{t0}, s{sW}, 1')
    a(f'v_lshrrev_b32 v{sidA}, 5, v{vLANE}')
    a(f'v_add_u32 v{sidA}, s{t0}, v{sidA}')
    a(f'v_bfe_u32 v{jA}, v{vLANE}, 3, 2')
    a(f'v_bfe_u32 v{sidR}, v{vLANE}, 2, 1')
    a(f'v_add_u32 v{sidR}, s{t0}, v{sidR}')
    a(f'v_and_b32 v{iR4}, 3, v{vLANE}')
    a(f'v_lshlrev_b32 v{iR4}, 2, v{iR4}')
    a(f's_lshl_b32 s{t1}, s2, 10')
    a(f's_add_u32 s{t1}, s{t1}, {WS_TAB}')
    srd_off(a, rT, sWS, f's{t1}', WS_TAB2 - WS_TAB + 1024)
    a(f'v_lshrrev_b32 v{tD}, 4, v{vLANE}')
    a(f'v_lshlrev_b32 v{tD}, 5, v{tD}')
    a(f's_lshl_b32 s{t0}, s{sW}, 7')
    a(f'v_add_u32 v{tD}, s{t0}, v{tD}')
    a(f's_mov_b32 s{t0}, {WS_TAB2 - WS_TAB}')
    for i in range(2):
        a(f'buffer_load_dwordx4 v[{SG+4*i}:{SG+4*i+3}], v{tD}, s[{rT}:{rT+3}], 0 offen offset:{16*i}')
    for i in range(2):
        a(f'buffer_load_dwordx4 v[{AX+4*i}:{AX+4*i+3}], v{tD}, s[{rT}:{rT+3}], s{t0} offen offset:{16*i}')
    a(f'v_and_b32 v{tC}, 15, v{vLANE}')
    a(f's_mul_i32 s{t0}, s{sP}, {WSLOW}')
    a(f'v_cmp_gt_u32 vcc, {WSLOW}, v{tC}')
    a(f'v_add_u32 v{tC}, s{t0}, v{tC}')
    a(f'v_lshlrev_b32 v{tB}, 3, v{tC}')
    a(f'v_mov_b32 v{tD}, 0x10000')
    a(f'v_cndmask_b32 v{tC}, v{tD}, v{tC}, vcc')
    a('s_waitcnt vmcnt(0)')
    a(f's_mov_b64 s[{MKC}:{MKC+1}], 0')
    for it in range(8):
        a(f'v_cmp_gt_u32 s[{MK+2*it}:{MK+2*it+1}], v{AX+it}, v{tC}')
        a(f's_mov_b64 s[{MK+16+2*it}:{MK+16+2*it+1}], 0')
    rec_loads(tB, 8)
    lds_init()
    a('s_waitcnt vmcnt(0) lgkmcnt(0)')
    a('s_barrier')
    hist()
    a('s_waitcnt lgkmcnt(0)')
    a('s_barrier')
    scan_nodes('S')
    qi_fill('S', False)
    scatter()
    a('s_waitcnt lgkmcnt(0)')
    a('s_barrier')
    a(f's_cmp_eq_u32 s{sL}, 0')
    a('s_cbranch_scc1 K2_SNEXT')
    setup_ptrs()
    a('s_waitcnt lgkmcnt(0)')
    for ins in dma_addr(): a(ins)
    for ins in dma_issue(): a(ins)
    forced_flags()
    pipeline_fill()
    main_loop('S', True)
    a.label('K2_SNEXT')
    a('s_waitcnt vmcnt(0) lgkmcnt(0)')
    a('s_barrier')
    a(f's_add_u32 s{sP}, s{sP}, 1')
    a(f's_cmp_lt_u32 s{sP}, s{sNP}')
    a('s_cbranch_scc1 K2_SPASS')
    epilogue('S', False)
    a.label('K2_END')
    a('s_endpgm')
    return nvgpr, nsgpr

def kd(name, nv, ns):
    acc = (nv + 3) // 4 * 4
    return f'''.amdhsa_kernel {name}
  .amdhsa_next_free_vgpr {nv}
  .amdhsa_next_free_sgpr {ns}
  .amdhsa_accum_offset {acc}
  .amdhsa_group_segment_fixed_size 0
  .amdhsa_kernarg_size 96
  .amdhsa_user_sgpr_count 2
  .amdhsa_user_sgpr_kernarg_segment_ptr 1
  .amdhsa_system_sgpr_workgroup_id_x 1
  .amdhsa_float_denorm_mode_32 3
.end_amdhsa_kernel
'''

def build(opts=None):
    opts = opts or {}
    a = Asm()
    gen_k1(a, opts)
    nv, ns = gen_k2(a, opts)
    out = HEADER
    out += f'; @launch kernel=gs_part_kernel grid=(256,1,1) block=({K1_THREADS},1,1) lds={LDS_K1}\n'
    out += f'; @launch kernel=gs_main_kernel grid=(256,1,1) block=({NW*64},1,1) lds={LDS_MAIN}\n'
    out += '.amdgcn_target "amdgcn-amd-amdhsa--gfx950"\n.text\n'
    out += a.text()
    out += '.section .rodata,"a"\n.p2align 6\n'
    out += kd('gs_part_kernel', 60, 60)
    out += '.p2align 6\n'
    out += kd('gs_main_kernel', nv, ns)
    return out

if __name__ == '__main__':
    path = sys.argv[1] if len(sys.argv) > 1 else 'gather_scatter__edge_featured_mpnn_gatedgcn__graph.s'
    opts = {}
    for o in sys.argv[2:]:
        k, _, val = o.partition('=')
        opts[k] = int(val) if val else True
    open(path, 'w').write(build(opts))
    print('written', path, 'LDS', LDS_MAIN)
```

```python
import sys, os, struct
sys.path.insert(0, os.path.dirname(__file__))
from asmlib import *

N = 25000; E = 800000
NBK = 256
CH = 3136
RECB = CH * 8
WS_TAB = 0x700000
WS_TAB2 = 0x740000
WS_FRAG = 0x780000
MAGIC_B = 43980466
LOG2E = 0xBFB8AA3B
SBITS = 50
C_SCALE = (127 - SBITS) << 23
EPS_SCALED = 0x4E8637BD
assert abs(struct.unpack('<f', struct.pack('<I', EPS_SCALED))[0] / (1e-6 * 2.0**50) - 1) < 1e-6

NW = 8
NSTREAM = 16
NIT = 16
CAP = 3456
WSLOW = 13
ROWB = 784
MAXN = 98
ENT_QUADS = 960
VROWB = 640
L_CNT = 0
L_ZERO = 512
L_TAB = 1024
L_QI = 1536
L_ENT = L_QI + ENT_QUADS * 4
L_ACC = L_ENT + ENT_QUADS * 16
L_VIRT = L_ACC + MAXN * ROWB
L_WST = L_VIRT + NSTREAM * VROWB
L_WST = (L_WST + 255) // 256 * 256
L_DMA = L_WST + 16384
LDS_MAIN = L_DMA + NW * 4096
assert LDS_MAIN <= 163840, LDS_MAIN
assert L_ACC % 16 == 0 and L_VIRT % 16 == 0

K1_THREADS = 896
K1_HIST = 0
K1_STAGE = 1024
LDS_K1 = K1_STAGE + RECB

HEADER = open(os.path.join(os.path.dirname(__file__), 'header.txt')).read()

def srd(a, sreg, ptr, size):
    a(f's_mov_b32 s{sreg}, s{ptr}')
    a(f's_and_b32 s{sreg+1}, s{ptr+1}, 0xffff')
    a(f's_mov_b32 s{sreg+2}, {size}')
    a(f's_mov_b32 s{sreg+3}, 0x20000')

def srd_off(a, sreg, ptr, off, size):
    a(f's_add_u32 s{sreg}, s{ptr}, {off}')
    a(f's_addc_u32 s{sreg+1}, s{ptr+1}, 0')
    a(f's_and_b32 s{sreg+1}, s{sreg+1}, 0xffff')
    a(f's_mov_b32 s{sreg+2}, {size}')
    a(f's_mov_b32 s{sreg+3}, 0x20000')

def wave_scan(a, op, r):
    for sh in (1, 2, 4, 8):
        a('s_nop 1')
        a(f'{op}_dpp v{r}, v{r}, v{r} row_shr:{sh} row_mask:0xf bank_mask:0xf')
    a('s_nop 1')
    a(f'{op}_dpp v{r}, v{r}, v{r} row_bcast:15 row_mask:0xa bank_mask:0xf')
    a('s_nop 1')
    a(f'{op}_dpp v{r}, v{r}, v{r} row_bcast:31 row_mask:0xc bank_mask:0xf')

def wave_scan2(a, op1, r1, op2, r2):
    steps = [f'row_shr:{sh} row_mask:0xf bank_mask:0xf' for sh in (1, 2, 4, 8)] + \
            ['row_bcast:15 row_mask:0xa bank_mask:0xf', 'row_bcast:31 row_mask:0xc bank_mask:0xf']
    a('s_nop 1')
    for st in steps:
        a(f'{op1}_dpp v{r1}, v{r1}, v{r1} {st}')
        a(f'{op2}_dpp v{r2}, v{r2}, v{r2} {st}')
        a('s_nop 0')

def gen_k1(a, opts):
    a.raw('.p2align 8')
    a.raw('.globl gs_part_kernel')
    a.raw('.type gs_part_kernel,@function')
    a.label('gs_part_kernel')
    a('s_cmp_ge_u32 s2, 256')
    a('s_cbranch_scc1 K1_END')
    a('s_load_dwordx4 s[4:7], s[0:1], 8')
    a('s_load_dwordx2 s[8:9], s[0:1], 24')
    a('s_load_dwordx2 s[10:11], s[0:1], 88')
    a('s_load_dwordx2 s[44:45], s[0:1], 0')
    if opts.get('dbgtime'):
        a('s_memrealtime s[54:55]')
        a('s_waitcnt lgkmcnt(0)')
        a('s_cmp_ge_u32 s2, 8')
        a('s_cbranch_scc1 K1_NODBG')
        a('v_mov_b32 v20, s54')
        a('s_lshl_b32 s56, s2, 2')
        a('s_add_u32 s56, s56, 0x1200000')
        a('v_mov_b32 v22, s56')
        a('v_cmp_eq_u32 vcc, 0, v0')
        a('s_and_saveexec_b64 s[58:59], vcc')
        a('global_store_dword v22, v20, s[10:11]')
        a('s_mov_b64 exec, s[58:59]')
        a.label('K1_NODBG')
    a('v_lshrrev_b32 v1, 6, v0')
    a('s_mul_i32 s12, s2, %d' % (CH * 4))
    a('v_readfirstlane_b32 s3, v1')
    a('s_lshr_b32 s13, s12, 1')
    a('v_lshlrev_b32 v2, 4, v0')
    a('v_add_u32 v2, s12, v2')
    a('s_cmp_eq_u32 s3, 13')
    a('s_cbranch_scc1 K1_FRAG')
    a('v_lshlrev_b32 v3, 3, v0')
    a('v_add_u32 v3, s13, v3')
    a('s_waitcnt lgkmcnt(0)')
    srd(a, 20, 8, E * 4)
    a('buffer_load_dwordx4 v[4:7], v2, s[20:23], 0 offen')
    srd(a, 24, 6, E * 4)
    a('buffer_load_dwordx4 v[8:11], v2, s[24:27], 0 offen')
    srd(a, 28, 4, E * 2)
    a('buffer_load_dwordx2 v[12:13], v3, s[28:31], 0 offen')
    if opts.get('xpre', 1):
        a('s_and_b32 s46, s2, 7')
        a('s_lshr_b32 s47, s2, 3')
        a('s_lshl_b32 s46, s46, 5')
        a('s_add_u32 s46, s46, s47')
        a('s_mul_i32 s46, s46, 3125')
        a('s_add_u32 s46, s46, 31')
        a('s_lshr_b32 s46, s46, 5')
        a('s_lshl_b32 s46, s46, 7')
        a('s_and_b32 s45, s45, 0xffff')
        a('s_mov_b32 s48, s44')
        a('s_mov_b32 s49, s45')
        a('s_mov_b32 s50, %d' % (N * 128))
        a('s_mov_b32 s51, 0x20000')
        a('v_lshlrev_b32 v40, 4, v0')
        a('buffer_load_dwordx4 v[56:59], v40, s[48:51], s46 offen')
    a('v_lshlrev_b32 v14, 2, v0')
    a('v_mov_b32 v15, 0')
    a('v_cmp_gt_u32 vcc, 256, v0')
    a('s_and_saveexec_b64 s[18:19], vcc')
    a('ds_write_b32 v14, v15 offset:%d' % K1_HIST)
    a('s_mov_b64 exec, s[18:19]')
    a('v_cmp_gt_u32 vcc, %d, v0' % (CH // 4))
    a('s_mov_b32 s14, %d' % (E * 4))
    a('v_cmp_gt_u32 s[16:17], s14, v2')
    a('s_and_b64 s[16:17], s[16:17], vcc')
    a('s_mul_i32 s15, s2, %d' % RECB)
    srd_off(a, 32, 10, 's15', RECB)
    srd_off(a, 36, 10, WS_TAB, 0x80000)
    a('s_mov_b32 s40, %d' % MAGIC_B)
    a('s_movk_i32 s41, 3125')
    a('v_mov_b32 v15, 1')
    a('s_waitcnt lgkmcnt(0)')
    a('s_barrier')
    a('s_mov_b64 exec, s[16:17]')
    a('s_cbranch_execz K1_NOEDGE1')
    a('s_waitcnt vmcnt(%d)' % (3 if opts.get('xpre', 1) else 2))
    for k in range(4):
        a(f'v_mul_hi_u32 v{16+k}, v{4+k}, s40')
    for k in range(4):
        a(f'v_lshlrev_b32 v{20+k}, 2, v{16+k}')
        a(f'ds_add_rtn_u32 v{24+k}, v{20+k}, v15 offset:{K1_HIST}')
    for k in range(4):
        a(f'v_mul_u32_u24 v{28+k}, s41, v{16+k}')
        a(f'v_add_u32 v{28+k}, 31, v{28+k}')
        a(f'v_lshrrev_b32 v{28+k}, 5, v{28+k}')
        a(f'v_sub_u32 v{28+k}, v{4+k}, v{28+k}')
        a(f'v_lshlrev_b32 v{33+2*k}, 2, v{28+k}')
    a('s_waitcnt vmcnt(%d)' % (1 if opts.get('xpre', 1) else 0))
    a('s_mov_b32 s42, 0xffff0000')
    a('v_lshl_or_b32 v32, v12, 16, v8')
    a('v_and_or_b32 v34, v12, s42, v9')
    a('v_lshl_or_b32 v36, v13, 16, v10')
    a('v_and_or_b32 v38, v13, s42, v11')
    a.label('K1_NOEDGE1')
    a('s_mov_b64 exec, -1')
    a('s_waitcnt lgkmcnt(0)')
    a('s_barrier')
    a('s_cmp_lg_u32 s3, 0')
    a('s_cbranch_scc1 K1_SCANDONE')
    a('v_lshlrev_b32 v40, 4, v0')
    a('ds_read_b128 v[44:47], v40 offset:%d' % K1_HIST)
    a('v_lshlrev_b32 v41, 12, v0')
    a('s_lshl_b32 s15, s2, 2')
    a('v_add_u32 v41, s15, v41')
    a('s_waitcnt lgkmcnt(0)')
    a('v_add_u32 v48, v44, v45')
    a('v_add_u32 v49, v48, v46')
    a('v_add_u32 v50, v49, v47')
    a('v_mov_b32 v51, v50')
    wave_scan(a, 'v_add_u32', 51)
    a('v_sub_u32 v52, v51, v50')
    a('v_add_u32 v53, v52, v44')
    a('v_add_u32 v54, v52, v48')
    a('v_add_u32 v55, v52, v49')
    a('ds_write_b128 v40, v[52:55] offset:%d' % K1_HIST)
    a('s_mul_i32 s15, s2, %d' % CH)
    a('s_mov_b32 s43, %d' % (WS_TAB2 - WS_TAB))
    for k in range(4):
        a(f'buffer_store_dword v{44+k}, v41, s[36:39], s43 offen offset:{k*1024}' + (' sc1' if opts.get('tabst', 0) else ''))
        a(f'v_min_u32 v{48+k}, 0xff, v{44+k}')
        a(f'v_add_u32 v{52+k}, s15, v{52+k}')
        a(f'v_lshl_or_b32 v{48+k}, v{48+k}, 24, v{52+k}')
        a(f'buffer_store_dword v{48+k}, v41, s[36:39], 0 offen offset:{k*1024}' + (' sc1' if opts.get('tabst', 0) else ''))
    a.label('K1_SCANDONE')
    a('s_waitcnt lgkmcnt(0)')
    a('s_barrier')
    a('s_mov_b64 exec, s[16:17]')
    a('s_cbranch_execz K1_NOEDGE2')
    for k in range(4):
        a(f'ds_read_b32 v{28+k}, v{20+k} offset:{K1_HIST}')
    for k in range(4):
        a(f's_waitcnt lgkmcnt({3 if k == 0 else 3})')
        a(f'v_add_lshl_u32 v{28+k}, v{28+k}, v{24+k}, 3')
        a(f'ds_write_b64 v{28+k}, v[{32+2*k}:{33+2*k}] offset:{K1_STAGE}')
    a.label('K1_NOEDGE2')
    a('s_mov_b64 exec, -1')
    a('v_lshlrev_b32 v2, 4, v0')
    a('v_add_u32 v3, %d, v2' % (RECB // 2))
    a('v_cmp_gt_u32 vcc, %d, v0' % (CH // 4))
    a('s_waitcnt lgkmcnt(0)')
    a('s_barrier')
    a('s_and_saveexec_b64 s[18:19], vcc')
    a('s_cbranch_execz K1_END')
    a('ds_read_b128 v[4:7], v2 offset:%d' % K1_STAGE)
    a('ds_read_b128 v[8:11], v2 offset:%d' % (K1_STAGE + RECB // 2))
    a('s_waitcnt lgkmcnt(1)')
    sfx = {0: '', 1: ' sc1', 2: ' nt', 3: ' sc0 sc1', 4: ' sc1 nt'}[opts.get('k1st', 1)]
    a('buffer_store_dwordx4 v[4:7], v2, s[32:35], 0 offen' + sfx)
    a('s_waitcnt lgkmcnt(0)')
    a('buffer_store_dwordx4 v[8:11], v3, s[32:35], 0 offen' + sfx)
    if opts.get('dbgtime'):
        a('s_waitcnt vmcnt(0)')
        a('s_memrealtime s[54:55]')
        a('s_waitcnt lgkmcnt(0)')
        a('s_cmp_ge_u32 s2, 8')
        a('s_cbranch_scc1 K1_END')
        a('s_cmp_lg_u32 s3, 0')
        a('s_cbranch_scc1 K1_END')
        a('v_mov_b32 v20, s54')
        a('s_lshl_b32 s56, s2, 2')
        a('s_add_u32 s56, s56, 0x1200100')
        a('v_mov_b32 v22, s56')
        a('s_mov_b64 exec, 1')
        a('global_store_dword v22, v20, s[10:11]')
    a('s_endpgm')
    a.label('K1_FRAG')
    if opts.get('codepre', 0):
        a('s_cmp_lt_u32 s2, 32')
        a('s_cbranch_scc1 K1_FRAG2')
        a('s_cmp_ge_u32 s2, 64')
        a('s_cbranch_scc1 K1_END')
        a('s_getpc_b64 s[12:13]')
        a.label('K1_PCREF')
        a('s_add_u32 s12, s12, gs_main_kernel-K1_PCREF')
        a('s_addc_u32 s13, s13, 0')
        a('v_and_b32 v1, 63, v0')
        a('v_lshlrev_b32 v2, 4, v1')
        for i in range(opts.get('codekb', 20)):
            a(f'global_load_dwordx4 v[4:7], v2, s[12:13]')
            a('v_add_u32 v2, 1024, v2')
        a('s_endpgm')
        a.label('K1_FRAG2')
    a('s_cmp_ge_u32 s2, 32')
    a('s_cbranch_scc1 K1_END')
    a('s_load_dwordx4 s[12:15], s[0:1], 32')
    a('s_load_dwordx4 s[16:19], s[0:1], 56')
    a('s_lshr_b32 s20, s2, 3')
    a('s_waitcnt lgkmcnt(0)')
    a('s_mov_b32 s22, s14')
    a('s_mov_b32 s23, s15')
    a('s_cmp_eq_u32 s20, 1')
    a('s_cselect_b32 s22, s18, s22')
    a('s_cselect_b32 s23, s19, s23')
    a('s_cmp_eq_u32 s20, 2')
    a('s_cselect_b32 s22, s12, s22')
    a('s_cselect_b32 s23, s13, s23')
    a('s_cmp_eq_u32 s20, 3')
    a('s_cselect_b32 s22, s16, s22')
    a('s_cselect_b32 s23, s17, s23')
    srd(a, 24, 22, 64 * 64 * 2)
    srd_off(a, 28, 10, WS_FRAG, 32 * 1024)
    a('s_and_b32 s32, s2, 3')
    a('s_lshr_b32 s33, s2, 2')
    a('s_and_b32 s33, s33, 1')
    a('s_lshl_b32 s32, s32, 11')
    a('s_lshl_b32 s33, s33, 6')
    a('s_add_u32 s32, s32, s33')
    a('v_and_b32 v1, 63, v0')
    a('v_and_b32 v2, 31, v1')
    a('v_lshlrev_b32 v2, 1, v2')
    a('v_lshrrev_b32 v3, 5, v1')
    a('v_lshlrev_b32 v3, 10, v3')
    a('v_add3_u32 v2, v2, v3, s32')
    for i in range(8):
        a(f'buffer_load_ushort v{8+i}, v2, s[24:27], 0 offen offset:{i*128}')
    a('s_mov_b32 s34, 1.0')
    a('s_and_b32 s36, s20, 1')
    a('s_cmp_eq_u32 s36, 0')
    a('s_cselect_b32 s34, 0x%x, s34' % LOG2E)
    a('s_waitcnt vmcnt(0)')
    for i in range(8):
        a(f'v_lshlrev_b32 v{8+i}, 16, v{8+i}')
        a(f'v_mul_f32 v{8+i}, s34, v{8+i}')
    for i in range(4):
        a(f'v_cvt_pk_bf16_f32 v{16+i}, v{8+2*i}, v{9+2*i}')
    a('v_lshlrev_b32 v4, 4, v1')
    a('s_lshl_b32 s35, s2, 10')
    a('v_add_u32 v4, s35, v4')
    a('buffer_store_dwordx4 v[16:19], v4, s[28:31], 0 offen')
    a.label('K1_END')
    a('s_endpgm')

def gen_k2(a, opts):
    STAMP = opts.get('stamp', False)
    vLANE = 1; BC = 2
    WB = 4; WV = 36; AX = 68
    GA = 84; HA = 100; GB = 116; HB = 132
    PP = 148; TT_ = 156; ZZ = 164
    DEN = 172; NUM = 176
    AE = [180, 184]; BE = 188; R0 = 192
    QA = [196, 200]
    EN = 204; RA = 208; CO = 212
    pEN = 216; pEE = 217; pQI = 218; pQF = 219
    C4 = 220; SEL = [221, 222]; EE = 223; QF = 224
    F0 = 225; F1 = 226; F2 = 252; F3 = 227
    tA = 227; tB = 228; tC = 229; tD = 230; tE = 231; tF = 232; tG = 233; tH = 234; tI = 235
    TQ = 236; TR = 240
    sidA = 244; jA = 245; sidR = 246; iR4 = 247
    vST = 253; GF = 249; GD = 250
    PB = 228; TB = 236; ZB = 244
    RC = 252; RKC = 254; tJ = 255
    nvgpr = 256
    REC = PP; RK = GB; SG = HB
    G_ = [GA, GB]; H_ = [HA, HB]
    nOFF0 = AE[0]+0 if False else QA[0]; nOFF1 = QA[0]+1; nEND0 = QA[0]+2; nEND1 = QA[0]+3; nROW0 = QA[1]
    S = Regs('s', 3, 102)
    sX = S.alloc('x', 2, 2); sWC = S.alloc('wc', 2, 2); sOUT = S.alloc('out', 2, 2); sWS = S.alloc('ws', 2, 2)
    rX = S.alloc('rX', 4, 4); rT = S.alloc('rT', 4, 4); rR = S.alloc('rR', 4, 4); rF = S.alloc('rF', 4, 4)
    sW = S.alloc('w'); sNS = S.alloc('ns'); sNN = S.alloc('nn')
    sP = S.alloc('pass'); sNP = S.alloc('npass')
    sL = S.alloc('L'); sCNT = S.alloc('cnt'); sLA = S.alloc('La'); sLB = S.alloc('Lb'); sSO = S.alloc('streamoff')
    sC = S.alloc('C', 2, 2)
    sF = [S.alloc('F0', 2, 2), S.alloc('F1', 2, 2)]
    sANY = [S.alloc('any0'), S.alloc('any1')]
    s128 = S.alloc('c128'); sLO = S.alloc('lo16'); sHI = S.alloc('hi16')
    t0 = S.alloc('t0'); t1 = S.alloc('t1'); t2 = S.alloc('t2', 1, 2); t3 = S.alloc('t3')
    sSV = S.alloc('sv', 2, 2); sSV2 = S.alloc('sv2', 2, 2)
    sDB = S.alloc('dmabase'); sSWAP = S.alloc('swap')
    sDBG = S.alloc('dbg', 2, 2) if opts.get('dbgtime') else None
    sT0 = S.alloc('dbgt0', 2, 2) if opts.get('dbgtime') else None
    sT1 = S.alloc('dbgt1') if opts.get('dbgtime') else None
    sT2 = S.alloc('dbgt2') if opts.get('dbgtime') else None
    MK = S.alloc('MK', 32, 2)
    MKC = S.alloc('MKC', 2, 2)
    rO = rT
    nsgpr = S.hi
    def stamp(i):
        if not STAMP: return
        a(f's_memtime s[{t2}:{t3}]')
        a('s_waitcnt lgkmcnt(0)')
        a(f'v_writelane_b32 v{vST}, s{t2}, {i}')
    XB = 4096

    a.raw('.p2align 8')
    a.raw('.globl gs_main_kernel')
    a.raw('.type gs_main_kernel,@function')
    a.label('gs_main_kernel')
    a('s_cmp_ge_u32 s2, 256')
    a('s_cbranch_scc1 K2_END')
    a(f's_load_dwordx2 s[{sWS}:{sWS+1}], s[0:1], 88')
    a(f's_load_dwordx2 s[{sX}:{sX+1}], s[0:1], 0')
    a(f's_load_dwordx2 s[{sWC}:{sWC+1}], s[0:1], 48')
    a(f's_load_dwordx2 s[{sOUT}:{sOUT+1}], s[0:1], 72')
    a('s_and_b32 s3, s2, 7')
    a('s_lshr_b32 s2, s2, 3')
    a('s_lshl_b32 s3, s3, 5')
    a('s_add_u32 s2, s2, s3')
    if opts.get('dbgtime'):
        a(f's_load_dwordx2 s[{sDBG}:{sDBG+1}], s[0:1], 80')
        a(f's_memrealtime s[{sT0}:{sT0+1}]')
        a('s_waitcnt lgkmcnt(0)')
    if STAMP:
        a(f'v_mov_b32 v{vST}, 0')
    stamp(0)
    if STAMP:
        a(f's_memrealtime s[{t2}:{t3}]')
        a('s_waitcnt lgkmcnt(0)')
        a(f'v_writelane_b32 v{vST}, s{t2}, 11')
    a(f'v_lshrrev_b32 v{tA}, 6, v0')
    a(f'v_and_b32 v{vLANE}, 63, v0')
    a(f'v_readfirstlane_b32 s{sW}, v{tA}')
    a(f'v_lshrrev_b32 v{sidA}, 5, v{vLANE}')
    if opts.get('proprio'):
        a('s_nop 2')
        a(f's_cmp_ge_u32 s{sW}, 4')
        a('s_cbranch_scc0 K2_PP0')
        a('s_setprio 1')
        a.label('K2_PP0')
    a(f's_lshl_b32 s{t1}, s2, 10')
    a(f's_add_u32 s{t1}, s{t1}, {WS_TAB}')
    a(f's_lshl_b32 s{t0}, s{sW}, 1')
    a(f'v_add_u32 v{sidA}, s{t0}, v{sidA}')
    a(f'v_lshrrev_b32 v{tD}, 4, v{vLANE}')
    a(f'v_lshlrev_b32 v{tD}, 5, v{tD}')
    a(f's_lshl_b32 s{t0}, s{sW}, 7')
    a(f'v_add_u32 v{tD}, s{t0}, v{tD}')
    a(f'v_lshlrev_b32 v{tA}, 4, v{vLANE}')
    a('s_waitcnt lgkmcnt(0)')
    srd_off(a, rT, sWS, f's{t1}', 1024)
    for i in range(2):
        a(f'buffer_load_dwordx4 v[{SG+4*i}:{SG+4*i+3}], v{tD}, s[{rT}:{rT+3}], 0 offen offset:{16*i}')
    a(f's_mul_i32 s{t0}, s2, 3125')
    a(f's_add_u32 s{sNS}, s{t0}, 31')
    a(f's_lshr_b32 s{sNS}, s{sNS}, 5')
    a(f's_add_u32 s{t0}, s{t0}, {3125+31}')
    a(f's_lshr_b32 s{t0}, s{t0}, 5')
    a(f's_sub_u32 s{sNN}, s{t0}, s{sNS}')
    a(f's_sub_u32 s{rX}, s{sX}, {XB}')
    a(f's_subb_u32 s{rX+1}, s{sX+1}, 0')
    a(f's_and_b32 s{rX+1}, s{rX+1}, 0xffff')
    a(f's_mov_b32 s{rX+2}, {N*128 + XB}')
    a(f's_mov_b32 s{rX+3}, 0x20000')
    srd_off(a, rF, sWS, WS_FRAG, 32 * 1024)
    a(f's_lshl_b32 s{sDB}, s{sW}, 12')
    a(f's_add_u32 s{sDB}, s{sDB}, {L_DMA}')
    a(f'v_bfe_u32 v{tE}, v{vLANE}, 4, 1')
    a(f'v_and_b32 v{tF}, 7, v{vLANE}')
    a(f'v_xor_b32 v{tE}, v{tE}, v{tF}')
    a(f'v_lshlrev_b32 v{tE}, 4, v{tE}')
    for i in range(4):
        if i: a(f'v_xor_b32 v{tF}, {32*i}, v{tE}')
        a(f'v_add_u32 v{CO+i}, {XB - 1024*i}, v{tF if i else tE}')
    a(f'v_bfe_u32 v{jA}, v{vLANE}, 3, 2')
    a(f'v_lshrrev_b32 v{tF}, 5, v{vLANE}')
    a(f'v_lshlrev_b32 v{tE}, 3, v{jA}')
    a(f'v_lshl_add_u32 v{tE}, v{tF}, 2, v{tE}')
    a(f's_lshr_b32 s{t0}, s{sW}, 1')
    a(f's_lshl_b32 s{t1}, s{t0}, 5')
    a(f's_add_u32 s{t1}, s{t1}, s{sNS}')
    a(f's_and_b32 s{t2}, s{sW}, 1')
    a(f's_lshl_b32 s{t2}, s{t2}, 1')
    a(f's_add_u32 s{t1}, s{t1}, s{t2}')
    a(f'v_add_u32 v{tE}, s{t1}, v{tE}')
    a(f'v_lshlrev_b32 v{tE}, 7, v{tE}')
    a(f's_cmp_eq_u32 s{t2}, 0')
    a(f's_cbranch_scc0 K2_XI2')
    a(f'v_add_u32 v{tH}, v{tE}, v{CO}')
    a(f'v_add_u32 v{tI}, v{tE}, v{CO+1}')
    a('s_branch K2_XI')
    a.label('K2_XI2')
    a(f'v_add_u32 v{tH}, v{tE}, v{CO+2}')
    a(f'v_add_u32 v{tI}, v{tE}, v{CO+3}')
    a(f'v_add_u32 v{tH}, 2048, v{tH}')
    a(f'v_add_u32 v{tI}, 2048, v{tI}')
    a.label('K2_XI')
    a(f'v_add_u32 v{tI}, 128, v{tI}')
    a(f'v_and_b32 v{C4}, 31, v{vLANE}')
    def staging():
        a(f's_lshr_b32 s{t0}, s{sW}, 1')
        a(f's_lshl_b32 s{t0}, s{t0}, 12')
        a(f's_and_b32 s{t2}, s{sW}, 1')
        a(f's_lshl_b32 s{t2}, s{t2}, 11')
        a(f's_add_u32 s{t0}, s{t0}, s{t2}')
        a(f's_add_u32 s{t0}, s{t0}, {L_DMA}')
        a(f's_mov_b32 m0, s{t0}')
        a(f'v_lshlrev_b32 v{tA}, 4, v{vLANE}')
        a(f'buffer_load_dwordx4 v{tH}, s[{rX}:{rX+3}], 0 offen lds')
        a(f'buffer_load_dwordx4 v{tI}, s[{rX}:{rX+3}], 0 offen offset:1024 lds')
        a(f's_lshl_b32 s{t0}, s{sW}, 11')
        a(f's_add_u32 s{t1}, s{t0}, {L_DMA + 4*4096}')
        a(f's_mov_b32 m0, s{t1}')
        a(f's_add_u32 s{t2}, s{t0}, {16*1024}')
        a(f'buffer_load_dwordx4 v{tA}, s[{rF}:{rF+3}], s{t2} offen lds')
        a(f'buffer_load_dwordx4 v{tA}, s[{rF}:{rF+3}], s{t2} offen offset:1024 lds')
        a(f's_add_u32 s{t1}, s{t0}, {L_WST}')
        a(f's_mov_b32 m0, s{t1}')
        a('s_nop 0')
        a(f'buffer_load_dwordx4 v{tA}, s[{rF}:{rF+3}], s{t0} offen lds')
        a(f'buffer_load_dwordx4 v{tA}, s[{rF}:{rF+3}], s{t0} offen offset:1024 lds')
        srd(a, rR, sWC, 128)
        a(f'v_lshlrev_b32 v{tE}, 1, v{C4}')
        a(f'buffer_load_ushort v{BC}, v{tE}, s[{rR}:{rR+3}], 0 offen')
        a(f'buffer_load_ushort v{BC+1}, v{tE}, s[{rR}:{rR+3}], 0 offen offset:64')
    staging()
    def lds_init():
        a(f'v_lshlrev_b32 v{tE}, 4, v0')
        for i in range(4):
            a(f'v_mov_b32 v{TR+i}, 0xffff')
        a(f'ds_write_b128 v{tE}, v[{TR}:{TR+3}] offset:{L_ENT}')
        a(f's_cmp_ge_u32 s{sW}, {(ENT_QUADS - 512) // 64}')
        a(f's_cbranch_scc1 K2_I1{tag_i[0]}')
        a(f'ds_write_b128 v{tE}, v[{TR}:{TR+3}] offset:{L_ENT + 512*16}')
        a.label(f'K2_I1{tag_i[0]}')
        assert (ENT_QUADS - 512) % 64 == 0
        for i in range(4):
            a(f'v_mov_b32 v{TR+i}, {L_VIRT}')
        a(f'v_cmp_gt_u32 vcc, {ENT_QUADS // 4}, v0')
        a(f's_and_saveexec_b64 s[{sSV}:{sSV+1}], vcc')
        a(f'ds_write_b128 v{tE}, v[{TR}:{TR+3}] offset:{L_QI}')
        a(f's_mov_b64 exec, s[{sSV}:{sSV+1}]')
        a(f's_cmp_lg_u32 s{sW}, 0')
        a(f's_cbranch_scc1 K2_I2{tag_i[0]}')
        for i in range(4):
            a(f'v_mov_b32 v{TR+i}, 0')
        a(f'ds_write_b128 v{tE}, v[{TR}:{TR+3}] offset:{L_CNT}')
        a(f'v_add_u32 v{tE}, {L_VIRT + 512}, v{tE}')
        a('s_mov_b64 exec, 0xff')
        a(f'ds_write_b128 v{tE}, v[{TR}:{TR+3}]')
        a('s_mov_b64 exec, -1')
        a.label(f'K2_I2{tag_i[0]}')
        tag_i[0] += 1
    tag_i = [0]
    lds_init()
    a(f'v_and_b32 v{tE}, 3, v{vLANE}')
    a(f'v_lshlrev_b32 v{iR4}, 2, v{tE}')
    a(f'v_lshl_add_u32 v{RA}, v{tE}, 3, v{jA}')
    a(f'v_lshrrev_b32 v{tF}, 1, v{jA}')
    a(f'v_lshl_add_u32 v{tE}, v{tE}, 1, v{tF}')
    a(f'v_bfe_u32 v{tF}, v{vLANE}, 2, 1')
    a(f's_lshl_b32 s{t0}, s{sW}, 1')
    a(f'v_add_u32 v{sidR}, s{t0}, v{tF}')
    a(f'v_lshl_add_u32 v{RA}, v{tF}, 2, v{RA}')
    a(f'v_lshrrev_b32 v{tG}, 5, v{vLANE}')
    a(f'v_cmp_eq_u32 vcc, v{tF}, v{tG}')
    a(f'v_xor_b32 v{tE}, v{tE}, v{tG}')
    a(f'v_lshlrev_b32 v{tE}, 4, v{tE}')
    a(f'v_lshl_add_u32 v{RA}, v{RA}, 7, v{tE}')
    a(f'v_mov_b32 v{tF}, 0x3f80')
    a(f'v_cndmask_b32 v{tF}, 0, v{tF}, vcc')
    for q in range(4):
        a(f'v_cmp_eq_u32 vcc, {q}, v{jA}')
        a('s_nop 1')
        a(f'v_cndmask_b32 v{AE[0]+q}, 0, v{tF}, vcc')
        a(f'v_lshlrev_b32 v{AE[1]+q}, 16, v{AE[0]+q}')
    a(f'v_cmp_gt_u32 vcc, 32, v{vLANE}')
    a(f'v_mov_b32 v{tE}, 0x0a0c0100')
    a(f'v_mov_b32 v{tF}, 0x07060100')
    a(f'v_cndmask_b32 v{SEL[0]}, v{tE}, v{tF}, vcc')
    a(f'v_mov_b32 v{tE}, 0x03020a0c')
    a(f'v_mov_b32 v{tF}, 0x03020706')
    a(f'v_cndmask_b32 v{SEL[1]}, v{tE}, v{tF}, vcc')
    a(f's_mov_b32 s{sC}, 0x{C_SCALE:x}')
    a(f's_mov_b32 s{sC+1}, 0x{C_SCALE:x}')
    a(f's_mov_b32 s{s128}, 128')
    a(f's_mov_b32 s{sLO}, 0xffff')
    a(f's_mov_b32 s{sHI}, 0xffff0000')
    a(f'v_and_b32 v{tB}, 15, v{vLANE}')
    a(f'v_lshlrev_b32 v{tB}, 3, v{tB}')
    a(f'v_lshlrev_b32 v{C4}, 2, v{C4}')
    a('s_waitcnt vmcnt(0) lgkmcnt(0)')
    stamp(1)
    a('s_barrier')
    srd(a, rR, sWS, NBK * RECB)
    def rec_loads(vk8, nit):
        for it in range(8):
            a(f'v_mad_u32_u24 v{RK+it}, v{SG+it}, 8, v{vk8}')
        for it in range(nit):
            a(f's_mov_b64 exec, s[{MK+2*it}:{MK+2*it+1}]')
            off = ' offset:128' if it >= 8 else ''
            sk = a.newlabel('skl') if (it >= 8 and opts.get('skipb', 1)) else None
            if sk: a(f's_cbranch_execz {sk}')
            a(f'buffer_load_dwordx2 v[{REC+2*it}:{REC+2*it+1}], v{RK+it%8}, s[{rR}:{rR+3}], 0 offen{off}')
            if sk: a.label(sk)
        a('s_mov_b64 exec, -1')
    a(f'v_lshrrev_b32 v{tC}, 3, v{tB}')
    a(f'v_add_u32 v{tD}, 16, v{tC}')
    for it in range(8):
        a(f'v_cmp_gt_u32_sdwa s[{MK+2*it}:{MK+2*it+1}], v{SG+it}, v{tC} src0_sel:BYTE_3 src1_sel:DWORD')
    for it in range(8):
        a(f'v_cmp_gt_u32_sdwa s[{MK+16+2*it}:{MK+16+2*it+1}], v{SG+it}, v{tD} src0_sel:BYTE_3 src1_sel:DWORD')
    stamp(25)
    rec_loads(tB, 16)
    stamp(26)
    a(f'v_max3_u32 v{tD}, v{SG}, v{SG+1}, v{SG+2}')
    a(f'v_max3_u32 v{tD}, v{tD}, v{SG+3}, v{SG+4}')
    a(f'v_max3_u32 v{tD}, v{tD}, v{SG+5}, v{SG+6}')
    a(f'v_max_u32 v{tD}, v{tD}, v{SG+7}')
    a(f'v_lshrrev_b32 v{tD}, 24, v{tD}')
    a(f'v_cmp_lt_u32 s[{sSV2}:{sSV2+1}], 32, v{tD}')
    a(f's_mov_b64 s[{MKC}:{MKC+1}], 0')
    a(f's_cmp_lg_u64 s[{sSV2}:{sSV2+1}], 0')
    a('s_cbranch_scc1 K2_CSEL')
    a.label('K2_CBACK')

    def gemm_issue():
        a(f's_lshr_b32 s{t0}, s{sW}, 1')
        a(f's_lshl_b32 s{t1}, s{t0}, 12')
        a(f's_add_u32 s{t1}, s{t1}, {L_DMA}')
        a(f'v_add_u32 v{tA}, s{t1}, v{RA}')
        a(f'v_xor_b32 v{tB}, 32, v{tA}')
        a(f'ds_read_b128 v[{AX}:{AX+3}], v{tA}')
        a(f'ds_read_b128 v[{AX+4}:{AX+7}], v{tB}')
        a(f'v_xor_b32 v{tB}, 64, v{tA}')
        a(f'v_xor_b32 v{tC}, 96, v{tA}')
        a(f'ds_read_b128 v[{AX+8}:{AX+11}], v{tB}')
        a(f'ds_read_b128 v[{AX+12}:{AX+15}], v{tC}')
        a(f's_and_b32 s{t2}, s{sW}, 1')
        a(f's_lshl_b32 s{t3}, s{t2}, 13')
        a(f's_add_u32 s{t3}, s{t3}, {L_DMA + 4*4096}')
        a(f'v_lshlrev_b32 v{GF}, 4, v{vLANE}')
        a(f'v_add_u32 v{GF}, s{t3}, v{GF}')
        for f in range(4):
            a(f'ds_read_b128 v[{SG+4*f}:{SG+4*f+3}], v{GF} offset:{f*1024}')
        for f in range(4):
            a(f'ds_read_b128 v[{RK+4*f}:{RK+4*f+3}], v{GF} offset:{(4+f)*1024}')
        a(f's_mul_i32 s{t1}, s{t0}, {32*ROWB}')
        a(f's_lshl_b32 s{t3}, s{t2}, 7')
        a(f's_add_u32 s{t1}, s{t1}, s{t3}')
        a(f's_add_u32 s{t1}, s{t1}, {L_ACC + 512}')
        a(f'v_lshrrev_b32 v{GD}, 5, v{vLANE}')
        a(f'v_mul_u32_u24 v{GD}, {4*ROWB}, v{GD}')
        a(f'v_add3_u32 v{GD}, v{GD}, v{C4}, s{t1}')
    def gemm_mid():
        a('s_waitcnt lgkmcnt(0)')
        for kp in range(4):
            c = '0' if kp == 0 else f'v[{GA}:{GA+15}]'
            a(f'v_mfma_f32_32x32x16_bf16 v[{GA}:{GA+15}], v[{AX+4*kp}:{AX+4*kp+3}], v[{SG+4*kp}:{SG+4*kp+3}], {c}')
            c = '0' if kp == 0 else f'v[{HA}:{HA+15}]'
            a(f'v_mfma_f32_32x32x16_bf16 v[{HA}:{HA+15}], v[{AX+4*kp}:{AX+4*kp+3}], v[{RK+4*kp}:{RK+4*kp+3}], {c}')
    def gemm_mid2():
        a('s_nop 7')
        a('s_nop 3')
    def w_frags():
        a(f'v_lshlrev_b32 v{GF}, 4, v{vLANE}')
        a(f'v_add_u32 v{GF}, {L_WST}, v{GF}')
        for f in range(16):
            dst = (WB + 4*f) if f < 8 else (WV + 4*(f-8))
            if f == 12: a('s_waitcnt lgkmcnt(8)')
            a(f'ds_read_b128 v[{dst}:{dst+3}], v{GF} offset:{f*1024}')
    def gemm_store(tag):
        for i in range(16):
            a(f'v_cvt_pk_bf16_f32 v{GA+i}, v{GA+i}, v{HA+i}')
        a(f's_lshr_b32 s{t0}, s{sW}, 1')
        a(f's_cmp_eq_u32 s{t0}, 3')
        a(f's_cbranch_scc1 K2_RT3{tag}')
        for vv in range(16):
            if vv == 12: a('s_waitcnt lgkmcnt(8)')
            a(f'ds_write_b32 v{GD}, v{GA+vv} offset:{(8*(vv//4) + vv%4) * ROWB}')
        a(f's_branch K2_RTD{tag}')
        a.label(f'K2_RT3{tag}')
        a('s_mov_b32 exec_hi, 0')
        for vv in range(2):
            a(f'ds_write_b32 v{GD}, v{GA+vv} offset:{vv * ROWB}')
        a('s_mov_b64 exec, -1')
        a.label(f'K2_RTD{tag}')
    def consts():
        a(f'v_add_u32 v{RA}, s{sDB}, v{RA}')
        for kp in range(1, 4):
            a(f'v_xor_b32 v{RA+kp}, {32*kp}, v{RA}')
        a(f's_mov_b32 s{t3}, 0x{LOG2E:x}')
        for cc in range(2):
            a(f'v_lshlrev_b32 v{BC+cc}, 16, v{BC+cc}')
            a(f'v_mul_f32 v{BC+cc}, s{t3}, v{BC+cc}')
        a(f'v_cvt_pk_bf16_f32 v{BC}, 0, v{BC}')
        a(f'v_cvt_pk_bf16_f32 v{BC+1}, v{BC+1}, 0')
        a(f'v_cmp_gt_u32 vcc, 32, v{vLANE}')
        a(f'v_mov_b32 v{tG}, 0xb2000000')
        a(f'v_mov_b32 v{tH}, 0xb200')
        a(f'v_cndmask_b32 v{BC}, v{tG}, v{BC}, vcc')
        a(f'v_cndmask_b32 v{BC+1}, v{tH}, v{BC+1}, vcc')

    def hist():
        a(f'v_mov_b32 v{tE}, 1')
        for it in range(NIT):
            if it == 12: a('s_waitcnt lgkmcnt(8)')
            a(f's_mov_b64 exec, s[{MK+2*it}:{MK+2*it+1}]')
            sk = a.newlabel('skh') if (it >= 8 and opts.get('skipb', 1)) else None
            if sk: a(f's_cbranch_execz {sk}')
            a(f'ds_add_rtn_u32 v{RK+it}, v{REC+2*it+1}, v{tE} offset:{L_CNT}')
            if sk: a.label(sk)
        sk = a.newlabel('skhc')
        a(f's_mov_b64 exec, s[{MKC}:{MKC+1}]')
        a(f's_cbranch_execz {sk}')
        a(f'ds_add_rtn_u32 v{RKC}, v{RC+1}, v{tE} offset:{L_CNT}')
        a.label(sk)
        a('s_mov_b64 exec, -1')

    def scan_nodes(tag, mid=None):
        a(f'v_lshlrev_b32 v{tA}, 3, v{vLANE}')
        a(f'ds_read_b64 v[{TQ}:{TQ+1}], v{tA} offset:{L_CNT}')
        a(f'v_mul_u32_u24 v{nROW0}, {2*ROWB}, v{vLANE}')
        a(f'v_add_u32 v{nROW0}, {L_ACC}, v{nROW0}')
        if mid: mid()
        else: a('s_waitcnt lgkmcnt(0)')
        a(f'v_add_u32 v{tE}, 3, v{TQ}')
        a(f'v_add_u32 v{tF}, 3, v{TQ+1}')
        a(f'v_and_b32 v{tE}, -4, v{tE}')
        a(f'v_and_b32 v{tF}, -4, v{tF}')
        a(f'v_add_u32 v{tC}, v{tE}, v{tF}')
        a(f'v_max_u32 v{tB}, v{tE}, v{tF}')
        a(f'v_mov_b32 v{tD}, v{tC}')
        wave_scan(a, 'v_add_u32', tD)
        a(f'v_sub_u32 v{nOFF0}, v{tD}, v{tC}')
        a(f'v_readlane_b32 s{t1}, v{tD}, 63')
        a(f'v_add_u32 v{nOFF1}, v{nOFF0}, v{tE}')
        a(f'v_lshlrev_b32 v{TQ+2}, 2, v{nOFF0}')
        a(f'v_lshlrev_b32 v{TQ+3}, 2, v{nOFF1}')
        a(f'ds_write_b64 v{tA}, v[{TQ+2}:{TQ+3}] offset:{L_TAB}')
        a(f'v_mov_b32 v{nEND0}, v{nOFF1}')
        a(f'v_add_u32 v{nEND1}, v{nOFF1}, v{tF}')
        a(f's_add_u32 s{t1}, s{t1}, 127')
        a(f's_lshr_b32 s{t1}, s{t1}, 7')
        a(f's_lshr_b32 s{t0}, s{t1}, 1')
        a(f's_sub_u32 s{t1}, s{t1}, s{t0}')
        a(f's_lshl_b32 s{sLA}, s{t1}, 2')
        a(f's_lshl_b32 s{sLB}, s{t0}, 2')
        a(f's_sub_u32 s{sSO}, s{sLA}, s{sLB}')
        a(f's_lshl_b32 s{sSO}, s{sSO}, 3')
        a(f's_cmp_lt_u32 s{sW}, 4')
        a(f's_cselect_b32 s{sL}, s{sLA}, s{sLB}')
        a(f's_cselect_b32 s{sSO}, 0, s{sSO}')
        a(f's_lshr_b32 s{sCNT}, s{sL}, 2')
        a(f's_sub_u32 s{sCNT}, s{sCNT}, 1')
    def qi_fill(tag, split):
        B0 = TQ + 2; B1 = TQ + 3; V0 = TR + 1; V1 = TR + 2
        a(f'v_max_u32 v{TR}, v{tE}, v{tF}')
        if split:
            a(f'v_cvt_f32_u32 v{tA}, s{sLA}')
            a(f'v_cvt_f32_u32 v{tD}, s{sLB}')
            a(f'v_rcp_f32 v{tA}, v{tA}')
            a(f'v_rcp_f32 v{tD}, v{tD}')
            a(f's_lshl_b32 s{t0}, s{sLA}, 5')
            a(f's_sub_u32 s{t1}, s{sLA}, s{sLB}')
            a(f's_lshl_b32 s{t1}, s{t1}, 5')
            a(f'v_mul_f32 v{tA}, 0.25, v{tA}')
            a(f'v_mul_f32 v{tD}, 0.25, v{tD}')
            for (OFF, nx, B, Vv) in ((nOFF0, tB, B0, V0), (nOFF1, tC, B1, V1)):
                a(f'v_cmp_gt_u32 vcc, s{t0}, v{OFF}')
                a(f'v_subrev_u32 v{tG}, s{t1}, v{OFF}')
                a('s_nop 0')
                a(f'v_cndmask_b32 v{tG}, v{tG}, v{OFF}, vcc')
                a(f'v_cndmask_b32 v{tH}, v{tD}, v{tA}, vcc')
                a(f'v_cvt_f32_u32 v{tG}, v{tG}')
                a(f'v_add_f32 v{tG}, 2.0, v{tG}')
                a(f'v_mul_f32 v{tG}, v{tH}, v{tG}')
                a(f'v_cvt_u32_f32 v{nx}, v{tG}')
                a(f'v_add_u32 v{nx}, 1, v{nx}')
                a(f'v_mov_b32 v{tG}, s{sLB}')
                a(f'v_mov_b32 v{tH}, s{sLA}')
                a(f'v_cndmask_b32 v{tG}, v{tG}, v{tH}, vcc')
                a(f'v_mov_b32 v{tH}, s{t1}')
                a(f'v_cndmask_b32 v{tH}, v{tH}, 0, vcc')
                a(f'v_lshlrev_b32 v{tG}, 2, v{tG}')
                a(f'v_mad_u32_u24 v{B}, v{nx}, v{tG}, v{tH}')
            a(f's_movk_i32 s{t1}, {VROWB}')
            a(f'v_mov_b32 v{tD}, {L_VIRT}')
            a(f'v_mad_u32_u24 v{V0}, v{tB}, s{t1}, v{tD}')
            a(f'v_mad_u32_u24 v{V1}, v{tC}, s{t1}, v{tD}')
            a(f'v_add_u32 v{tD}, {ROWB}, v{nROW0}')
            for nd, (B, Vv, END, nx) in enumerate(((B0, V0, nEND0, tB), (B1, V1, nEND1, tC))):
                lab = a.newlabel('nosplit')
                a(f'v_lshrrev_b32 v{tG}, 1, v{nx}')
                a(f'v_cmp_lt_u32 vcc, v{B}, v{END}')
                a(f'v_cmp_eq_u32 s[{sSV}:{sSV+1}], s{sW}, v{tG}')
                a(f's_and_b64 vcc, vcc, s[{sSV}:{sSV+1}]')
                a(f's_cbranch_scc0 {lab}')
                lp = a.newlabel('splitlp')
                a.label(lp)
                a(f's_ff1_i32_b64 s{t0}, vcc')
                a(f's_bitset0_b64 vcc, s{t0}')
                a(f'v_readlane_b32 s{t2}, v{nROW0 if nd == 0 else tD}, s{t0}')
                a(f'v_readlane_b32 s{t3}, v{Vv}, s{t0}')
                a(f'v_lshrrev_b32 v{tG}, 0, v{C4}')
                a('s_mov_b32 exec_hi, 0')
                a(f'v_add_u32 v{tH}, s{t2}, v{tG}')
                a(f'ds_read_b32 v{tI}, v{tH} offset:512')
                a(f'v_add_u32 v{tH}, s{t3}, v{tG}')
                a(f'v_mov_b32 v{tG}, s{t2}')
                a(f'v_mov_b32 v{tA}, s{t3}')
                a(f'ds_write_b32 v{tG}, v{tA} offset:768')
                a('s_waitcnt lgkmcnt(1)')
                a(f'ds_write_b32 v{tH}, v{tI} offset:512')
                a('s_mov_b64 exec, -1')
                a(f's_cmp_lg_u64 vcc, 0')
                a(f's_cbranch_scc1 {lp}')
                a.label(lab)
        a(f's_lshl_b32 s{t0}, s{sW}, 2')
        a(f'v_add_u32 v{tA}, s{t0}, v{nOFF0}')
        a(f'v_add_u32 v{tB}, s{t0}, v{nOFF1}')
        a(f'v_add_u32 v{tC}, {ROWB}, v{nROW0}')
        lp = f'K2_QF{tag}'
        a.label(lp)
        a(f's_add_u32 s{t1}, s{t0}, 4')
        a(f'v_cmp_eq_u32 s[{sSV}:{sSV+1}], s{t1}, v{tE}')
        a(f'v_cmp_eq_u32 s[{sSV2}:{sSV2+1}], s{t1}, v{tF}')
        if split:
            a(f'v_add_u32 v{tG}, 4, v{tA}')
            a(f'v_add_u32 v{tH}, 4, v{tB}')
            a(f'v_cmp_eq_u32 vcc, v{tG}, v{B0}')
            a(f's_or_b64 s[{sSV}:{sSV+1}], s[{sSV}:{sSV+1}], vcc')
            a(f'v_cmp_eq_u32 vcc, v{tH}, v{B1}')
            a(f's_or_b64 s[{sSV2}:{sSV2+1}], s[{sSV2}:{sSV2+1}], vcc')
            a(f'v_cmp_ge_u32 vcc, v{tA}, v{B0}')
            a('s_nop 1')
            a(f'v_cndmask_b32 v{tG}, v{nROW0}, v{V0}, vcc')
            a(f'v_cmp_ge_u32 vcc, v{tB}, v{B1}')
            a('s_nop 1')
            a(f'v_cndmask_b32 v{tH}, v{tC}, v{V1}, vcc')
        else:
            a(f'v_mov_b32 v{tG}, v{nROW0}')
            a(f'v_mov_b32 v{tH}, v{tC}')
        a(f'v_or_b32 v{tD}, 0x80000000, v{tG}')
        a(f'v_or_b32 v{tI}, 0x80000000, v{tH}')
        a(f'v_cmp_lt_u32 vcc, s{t0}, v{tE}')
        a(f'v_cndmask_b32 v{tG}, v{tG}, v{tD}, s[{sSV}:{sSV+1}]')
        a(f'v_cndmask_b32 v{tH}, v{tH}, v{tI}, s[{sSV2}:{sSV2+1}]')
        a(f'v_cmp_lt_u32 s[{sSV}:{sSV+1}], s{t0}, v{tF}')
        a('s_mov_b64 exec, vcc')
        a(f'ds_write_b32 v{tA}, v{tG} offset:{L_QI}')
        a(f's_mov_b64 exec, s[{sSV}:{sSV+1}]')
        a(f'ds_write_b32 v{tB}, v{tH} offset:{L_QI}')
        a('s_mov_b64 exec, -1')
        a(f's_add_u32 s{t0}, s{t0}, 32')
        a(f'v_add_u32 v{tA}, 32, v{tA}')
        a(f'v_add_u32 v{tB}, 32, v{tB}')
        a(f'v_cmp_lt_u32 vcc, s{t0}, v{TR}')
        a(f's_cbranch_vccnz {lp}')
    def scatter():
        a('s_waitcnt lgkmcnt(0)')
        for it in range(8):
            a(f's_mov_b64 exec, s[{MK+2*it}:{MK+2*it+1}]')
            a(f'ds_read_b32 v{AX+it}, v{REC+2*it+1} offset:{L_TAB}')
        for it in range(8):
            a(f's_mov_b64 exec, s[{MK+2*it}:{MK+2*it+1}]')
            a('s_waitcnt lgkmcnt(7)')
            a(f'v_lshl_add_u32 v{AX+it}, v{RK+it}, 2, v{AX+it}')
            a(f'ds_write_b32 v{AX+it}, v{REC+2*it} offset:{L_ENT}')
        for it in range(8, 16):
            sk = a.newlabel('sks')
            a(f's_mov_b64 exec, s[{MK+2*it}:{MK+2*it+1}]')
            if opts.get('skipb', 1): a(f's_cbranch_execz {sk}')
            a(f'ds_read_b32 v{AX+it}, v{REC+2*it+1} offset:{L_TAB}')
            a('s_waitcnt lgkmcnt(0)')
            a(f'v_lshl_add_u32 v{AX+it}, v{RK+it}, 2, v{AX+it}')
            a(f'ds_write_b32 v{AX+it}, v{REC+2*it} offset:{L_ENT}')
            a.label(sk)
        sk = a.newlabel('sksc')
        a(f's_mov_b64 exec, s[{MKC}:{MKC+1}]')
        a(f's_cbranch_execz {sk}')
        a(f'ds_read_b32 v{tJ}, v{RC+1} offset:{L_TAB}')
        a('s_waitcnt lgkmcnt(0)')
        a(f'v_lshl_add_u32 v{tJ}, v{RKC}, 2, v{tJ}')
        a(f'ds_write_b32 v{tJ}, v{RC} offset:{L_ENT}')
        a.label(sk)
        a('s_mov_b64 exec, -1')

    def setup_ptrs():
        a(f'v_add_u32 v{tB}, s{sSO}, v{jA}')
        a(f'v_mad_u32_u24 v{tA}, v{sidA}, s{sL}, v{tB}')
        a(f'v_lshlrev_b32 v{pEN}, 4, v{tA}')
        a(f'ds_read_b128 v[{EN}:{EN+3}], v{pEN} offset:{L_ENT}')
        a(f'v_lshlrev_b32 v{pQF}, 2, v{tA}')
        a(f'v_sub_u32 v{pQI}, v{tA}, v{jA}')
        a(f'v_lshlrev_b32 v{pQI}, 2, v{pQI}')
        a(f'v_add_u32 v{pQI}, {L_QI}, v{pQI}')
        a(f'v_mad_u32_u24 v{tA}, v{sidR}, s{sL}, v{tB}')
        a(f'v_lshl_add_u32 v{pEE}, v{tA}, 4, v{iR4}')
        a(f's_mov_b32 m0, s{sDB}')

    def dma_addr():
        return [f'v_mad_u32_u16 v{EN+i}, v{EN+i}, s{s128}, v{CO+i}' for i in range(4)]
    def dma_issue():
        if opts.get('nodma'): return []
        return [f'buffer_load_dwordx4 v{EN+i}, s[{rX}:{rX+3}], 0 offen offset:{1024*i} lds' if i else
                f'buffer_load_dwordx4 v{EN}, s[{rX}:{rX+3}], 0 offen lds' for i in range(4)]

    def main_loop(tag, atomic):
        flush_blocks = []
        PS = [(PP, TT_, ZZ), (PB, TB, ZB)]
        def flush_body(par, j):
            a(f's_bfe_i32 exec_lo, s{sF[par]}, 0x{(1<<16)|(8*j):x}')
            a(f's_bfe_i32 exec_hi, s{sF[par]+1}, 0x{(1<<16)|(8*j):x}')
            a(f'v_add_f32 v{F0}, v{DEN}, v{DEN+1}')
            a(f'v_add_f32 v{F1}, v{NUM}, v{NUM+1}')
            a(f'v_add_f32 v{F2}, v{DEN+2}, v{DEN+3}')
            a(f'v_add_f32 v{F3}, v{NUM+2}, v{NUM+3}')
            a(f'v_mov_b64 v[{DEN}:{DEN+1}], 0')
            a(f'v_mov_b64 v[{NUM}:{NUM+1}], 0')
            if atomic:
                a(f'ds_add_f32 v{QA[par]+j}, v{F0}')
                a(f'ds_add_f32 v{QA[par]+j}, v{F1} offset:256')
                a(f'ds_add_f32 v{QA[par]+j}, v{F2} offset:128')
                a(f'ds_add_f32 v{QA[par]+j}, v{F3} offset:384')
            else:
                a(f'ds_write2_b32 v{QA[par]+j}, v{F0}, v{F1} offset0:0 offset1:64')
                a(f'ds_write2_b32 v{QA[par]+j}, v{F2}, v{F3} offset0:32 offset1:96')
            a(f'v_mov_b64 v[{DEN+2}:{DEN+3}], 0')
            a(f'v_mov_b64 v[{NUM+2}:{NUM+3}], 0')
            a('s_mov_b64 exec, -1')
        def post2(par):
            for j in range(4):
                for cc in range(2):
                    p, t, z = (r + 2*j for r in PS[cc])
                    a(f'v_pk_fma_f32 v[{NUM+2*cc}:{NUM+2*cc+1}], v[{p}:{p+1}], v[{t}:{t+1}], v[{NUM+2*cc}:{NUM+2*cc+1}]')
                    a(f'v_pk_fma_f32 v[{DEN+2*cc}:{DEN+2*cc+1}], v[{p}:{p+1}], v[{z}:{z+1}], v[{DEN+2*cc}:{DEN+2*cc+1}]')
                if opts.get('noflush'): continue
                fl = a.newlabel('fl'); back = a.newlabel('bk')
                a(f's_bitcmp1_b32 s{sANY[par]}, {8*j}')
                a(f's_cbranch_scc1 {fl}')
                a.label(back)
                flush_blocks.append((fl, back, par, j))
        def pre(cur):
            g0 = G_[cur]; h0 = H_[cur]; P_, T_, Z_ = PS[cur]
            for j in range(4):
                g = g0 + 4*j
                a(f'v_pk_fma_f32 v[{g}:{g+1}], v[{g}:{g+1}], s[{sC}:{sC+1}], s[{sC}:{sC+1}] clamp')
                a(f'v_pk_fma_f32 v[{g+2}:{g+3}], v[{g+2}:{g+3}], s[{sC}:{sC+1}], s[{sC}:{sC+1}] clamp')
            for j in range(4):
                g = g0 + 4*j; h = h0 + 4*j
                X = f'v[{g}:{g+1}]'; Y = f'v[{g+2}:{g+3}]'
                p = P_ + 2*j; t = T_ + 2*j; z = Z_ + 2*j
                a(f'v_pk_mul_f32 v[{t}:{t+1}], {Y}, v[{h}:{h+1}]')
                a(f'v_pk_mul_f32 v[{p}:{p+1}], {X}, {Y}')
                a(f'v_pk_add_f32 v[{z}:{z+1}], {X}, {Y}')
                a(f'v_pk_fma_f32 v[{t}:{t+1}], {X}, v[{h+2}:{h+3}], v[{t}:{t+1}]')
        def mfma_list(nxt, cc):
            Gs = f'v[{G_[nxt]}:{G_[nxt]+15}]'; Hs = f'v[{H_[nxt]}:{H_[nxt]+15}]'
            out = []
            for kp in range(4):
                wb = WB + 16*cc + 4*kp; wv = WV + 16*cc + 4*kp; ax = AX + 4*kp
                out.append(f'v_mfma_f32_32x32x16_bf16 {Hs}, v[{ax}:{ax+3}], v[{wv}:{wv+3}], {"0" if kp == 0 else Hs}')
                out.append(f'v_mfma_f32_32x32x16_bf16 {Gs}, v[{ax}:{ax+3}], v[{wb}:{wb+3}], {"0" if kp == 0 else Gs}')
            out.append(f'v_mfma_f32_32x32x16_bf16 {Gs}, v[{AE[cc]}:{AE[cc]+3}], v[{BE}:{BE+3}], {Gs}')
            return out
        def trans_list(cur):
            Pp = PS[cur ^ 1][0]
            return [f'v_rcp_f32 v{Pp+i}, v{Pp+i}' for i in range(8)] + [f'v_exp_f32 v{G_[cur]+i}, v{G_[cur]+i}' for i in range(16)]
        def weave(mf, tr, gaps):
            dist = [3, 3, 3, 3, 3, 3, 2, 2, 2]
            if opts.get('nogaps'): gaps = {}
            if opts.get('nomf'): mf = None
            k = 0
            for m in range(9):
                for ins in gaps.get(('m', m), []): a(ins)
                if mf: a(mf[m])
                for _ in range(dist[m]):
                    a(tr[k])
                    for ins in gaps.get(k, []): a(ins)
                    k += 1
            assert k == len(tr)
        def stage0(par):
            g = {}
            da = dma_addr()
            g[0] = [f'ds_read_b32 v{QF}, v{pQF} offset:{L_QI + 16*(par+1)}']
            g[1] = [f'ds_read_b32 v{EE}, v{pEE} offset:{L_ENT + 64*(par+1)}']
            g[3] = [f'v_and_or_b32 v{BE}, v{R0}, s{sHI}, v{BC+1}']
            g[6] = [da[0]]; g[9] = [da[1]]; g[12] = [da[2]]; g[15] = [da[3]]
            axr = [f'ds_read_b128 v[{AX+4*kp}:{AX+4*kp+3}], v{RA+kp}' for kp in range(4)]
            early = opts.get('axearly', 0)
            if early:
                for kp, gp in enumerate(opts.get('axgaps', (8, 11, 17, 21))):
                    g.setdefault(gp, [])
                    g[gp] = g[gp] + ((['s_waitcnt vmcnt(0)'] if kp == 0 else []) + [axr[kp]])
            weave(mfma_list(1, 1), trans_list(0), g)
            post2(par ^ 1)
            qn = QA[par ^ 1]
            if not opts.get('nogaps'):
                a(f'ds_read_b128 v[{qn}:{qn+3}], v{pQI} offset:{16*(par+1)}')
                if not early:
                    a('s_waitcnt vmcnt(0)')
                    for ins in axr: a(ins)
            pre(0)
            a(f's_sub_u32 s{sCNT}, s{sCNT}, 1')
        def stage1(par):
            qn = QA[par ^ 1]
            g = {}
            di = dma_issue()
            g[('m', 0)] = ['s_waitcnt lgkmcnt(0)']
            g[0] = [f'v_mad_u32_u24 v{qn}, v{qn}, 1, v{C4}'] + di[0:1]
            g[1] = [f'v_mad_u32_u24 v{qn+1}, v{qn+1}, 1, v{C4}'] + di[1:2]
            g[2] = [f'ds_read_b32 v{R0}, v{qn} offset:512'] + di[2:3]
            g[3] = [f'v_mad_u32_u24 v{qn+2}, v{qn+2}, 1, v{C4}', f'ds_read_b32 v{BE+1}, v{qn+1} offset:512'] + di[3:4]
            g[4] = [f'v_mad_u32_u24 v{qn+3}, v{qn+3}, 1, v{C4}', f'ds_read_b32 v{BE+2}, v{qn+2} offset:512']
            g[5] = [f'ds_read_b32 v{BE+3}, v{qn+3} offset:512']
            g[6] = [f'ds_read_b128 v[{EN}:{EN+3}], v{pEN} offset:{L_ENT + 64*(par+3)}']
            g[7] = [f'v_perm_b32 v{AE[0]}, v{EE}, v{AE[0]}, v{SEL[0]}']
            g[9] = [f'v_perm_b32 v{AE[1]}, v{EE}, v{AE[1]}, v{SEL[1]}']
            g[11] = [f'v_cmp_gt_i32 s[{sF[par^1]}:{sF[par^1]+1}], 0, v{QF}']
            if par == 1:
                g[13] = [f'v_add_u32 v{pQI}, 32, v{pQI}']
                g[14] = [f'v_add_u32 v{pQF}, 32, v{pQF}']
                g[15] = [f'v_add_u32 v{pEE}, 128, v{pEE}']
                g[16] = [f'v_add_u32 v{pEN}, 128, v{pEN}']
            g[17] = [f's_or_b32 s{sANY[par^1]}, s{sF[par^1]}, s{sF[par^1]+1}'] if not opts.get('noany') else [f's_mov_b32 s{sANY[par^1]}, 0']
            g[19] = ['s_waitcnt lgkmcnt(0)', f'v_and_or_b32 v{BE}, v{R0}, s{sLO}, v{BC}']
            weave(mfma_list(0, 0), trans_list(1), g)
            pre(1)
        def last_stage1(par):
            weave(None, trans_list(1), {})
            pre(1)
            for i in range(8):
                a(f'v_rcp_f32 v{PB+i}, v{PB+i}')
            a('s_nop 0')
            post2(par)
        L0 = f'K2_T0{tag}'; E0 = f'K2_E0{tag}'; E1 = f'K2_E1{tag}'; DONE = f'K2_MD{tag}'
        PR = opts.get('prio', 1)
        if PR:
            a(f's_add_u32 s{t0}, s{sCNT}, 1')
            a(f's_mul_i32 s{t0}, s{t0}, {opts.get("pfrac", 20)}')
            a(f's_lshr_b32 s{t0}, s{t0}, 6')
            a(f's_lshl_b32 s{t0}, s{t0}, 1')
            a(f's_sub_u32 s{sSWAP}, s{sCNT}, s{t0}')
            a(f's_cmp_ge_u32 s{sW}, 4')
            a(f's_cbranch_scc0 K2_PR0{tag}')
            a('s_setprio 1')
            a.label(f'K2_PR0{tag}')
        if PR == 3:
            a(f's_cmp_ge_u32 s{sW}, 4')
            a(f's_cselect_b32 s{sSWAP}, 1, 0')
        a.label(L0)
        if PR == 3:
            a(f's_xor_b32 s{sSWAP}, s{sSWAP}, 1')
            a(f's_cbranch_scc1 K2_PH{tag}')
            a('s_setprio 0')
            a(f's_branch K2_PD{tag}')
            a.label(f'K2_PH{tag}')
            a('s_setprio 1')
            a.label(f'K2_PD{tag}')
        elif PR:
            a(f's_cmp_eq_u32 s{sCNT}, s{sSWAP}')
            a(f's_cbranch_scc1 K2_SWP{tag}')
            a.label(f'K2_SWB{tag}')
        stage0(0)
        a(f's_cbranch_scc1 {E0}')
        stage1(0)
        stage0(1)
        a(f's_cbranch_scc1 {E1}')
        stage1(1)
        a(f's_branch {L0}')
        a.label(E0)
        last_stage1(0)
        a(f's_branch {DONE}')
        a.label(E1)
        last_stage1(1)
        a(f's_branch {DONE}')
        if PR and PR != 3:
            a.label(f'K2_SWP{tag}')
            a(f's_cmp_ge_u32 s{sW}, 4')
            a(f's_cbranch_scc1 K2_SW0{tag}')
            a('s_setprio 1')
            a(f's_branch K2_SWB{tag}')
            a.label(f'K2_SW0{tag}')
            a('s_setprio 0')
            a(f's_branch K2_SWB{tag}')
        for (fl, back, par, j) in flush_blocks:
            a.label(fl)
            flush_body(par, j)
            a(f's_branch {back}')
        a.label(DONE)
        if PR: a('s_setprio 0')

    def pipeline_fill():
        q0 = QA[0]
        a(f'ds_read_b128 v[{q0}:{q0+3}], v{pQI}')
        a(f'ds_read_b32 v{QF}, v{pQF} offset:{L_QI}')
        a(f'ds_read_b32 v{EE}, v{pEE} offset:{L_ENT}')
        a(f'ds_read_b128 v[{EN}:{EN+3}], v{pEN} offset:{L_ENT + 64}')
        for i in range(2):
            a(f'v_mov_b64 v[{DEN+2*i}:{DEN+2*i+1}], 0')
            a(f'v_mov_b64 v[{NUM+2*i}:{NUM+2*i+1}], 0')
        for i in range(8):
            a(f'v_mov_b32 v{PP+i}, 1.0')
            a(f'v_mov_b32 v{PB+i}, 1.0')
        for i in range(4):
            a(f'v_mov_b64 v[{TT_+2*i}:{TT_+2*i+1}], 0')
            a(f'v_mov_b64 v[{ZZ+2*i}:{ZZ+2*i+1}], 0')
            a(f'v_mov_b64 v[{TB+2*i}:{TB+2*i+1}], 0')
            a(f'v_mov_b64 v[{ZB+2*i}:{ZB+2*i+1}], 0')
        a(f's_mov_b32 s{sANY[1]}, 0')
        a('s_waitcnt lgkmcnt(0)')
        for q in range(4):
            a(f'v_mad_u32_u24 v{q0+q}, v{q0+q}, 1, v{C4}')
        a(f'ds_read_b32 v{R0}, v{q0} offset:512')
        for q in range(1, 4):
            a(f'ds_read_b32 v{BE+q}, v{q0+q} offset:512')
        a(f'v_perm_b32 v{AE[0]}, v{EE}, v{AE[0]}, v{SEL[0]}')
        a(f'v_perm_b32 v{AE[1]}, v{EE}, v{AE[1]}, v{SEL[1]}')
        a(f'v_cmp_gt_i32 s[{sF[0]}:{sF[0]+1}], 0, v{QF}')
        for ins in dma_addr(): a(ins)
        stamp(21)
        a('s_waitcnt vmcnt(0)')
        stamp(22)
        for kp in range(4):
            a(f'ds_read_b128 v[{AX+4*kp}:{AX+4*kp+3}], v{RA+kp}')
        a(f's_or_b32 s{sANY[0]}, s{sF[0]}, s{sF[0]+1}')
        a('s_waitcnt lgkmcnt(0)')
        a(f'v_and_or_b32 v{BE}, v{R0}, s{sLO}, v{BC}')
        for ins in dma_issue(): a(ins)
        a(f'ds_read_b128 v[{EN}:{EN+3}], v{pEN} offset:{L_ENT + 128}')
        Gs = f'v[{GA}:{GA+15}]'; Hs = f'v[{HA}:{HA+15}]'
        for kp in range(4):
            a(f'v_mfma_f32_32x32x16_bf16 {Hs}, v[{AX+4*kp}:{AX+4*kp+3}], v[{WV+4*kp}:{WV+4*kp+3}], {"0" if kp == 0 else Hs}')
            a(f'v_mfma_f32_32x32x16_bf16 {Gs}, v[{AX+4*kp}:{AX+4*kp+3}], v[{WB+4*kp}:{WB+4*kp+3}], {"0" if kp == 0 else Gs}')
        a(f'v_mfma_f32_32x32x16_bf16 {Gs}, v[{AE[0]}:{AE[0]+3}], v[{BE}:{BE+3}], {Gs}')
        a('s_waitcnt lgkmcnt(0)')
        a('s_nop 7')
        a('s_nop 3')
    def forced_flags():
        a(f's_sub_u32 s{t1}, s{sL}, 1')
        a(f's_lshl_b32 s{t1}, s{t1}, 2')
        a(f'v_add_u32 v{tB}, s{t1}, v{pQI}')
        a(f'v_mov_b32 v{tA}, 0x80000000')
        a('s_mov_b32 exec_lo, 1')
        a('s_mov_b32 exec_hi, 1')
        a(f'ds_or_b32 v{tB}, v{tA}')
        a('s_mov_b64 exec, -1')

    stamp(2)
    a(f's_mov_b64 exec, s[{sSV2}:{sSV2+1}]')
    a(f'v_mov_b32 v{tD}, {L_CNT + 127*4}')
    a(f'v_mov_b32 v{tE}, 1')
    a(f'ds_write_b32 v{tD}, v{tE}')
    a('s_mov_b64 exec, -1')
    gemm_issue()
    stamp(28)
    gemm_mid()
    gemm_mid2()
    stamp(29)
    a(f's_cmp_lg_u32 s{sW}, 0')
    a('s_cbranch_scc1 K2_NOCI')
    a(f'v_mul_u32_u24 v{tA}, {2*ROWB}, v{vLANE}')
    a(f'v_mov_b32 v{tB}, {L_ZERO}')
    a(f'v_add_u32 v{tA}, {L_ACC}, v{tA}')
    a(f's_mov_b32 exec_hi, {(1 << (MAXN // 2 - 32)) - 1}')
    a(f'ds_write_b32 v{tA}, v{tB} offset:768')
    a(f'ds_write_b32 v{tA}, v{tB} offset:{768 + ROWB}')
    a('s_mov_b64 exec, -1')
    a.label('K2_NOCI')
    gemm_store('F')
    stamp(3)
    a('s_waitcnt vmcnt(0) lgkmcnt(0)')
    stamp(23)
    hist()
    a('s_waitcnt lgkmcnt(0)')
    stamp(24)
    if opts.get('proprio') == 1: a('s_setprio 0')
    a('s_barrier')
    stamp(4)
    scan_nodes('F')
    a(f'v_readlane_b32 s{t0}, v{TQ+1}, 63')
    a(f's_cmp_eq_u32 s{sLB}, 0')
    a(f's_cselect_b32 s{t1}, s{sLA}, s{sLB}')
    a(f's_lshl_b32 s{t1}, s{t1}, 2')
    a(f'v_cmp_lt_u32 vcc, s{t1}, v{tB}')
    a(f's_cmp_lg_u32 s{t0}, 0')
    a('s_cbranch_scc1 K2_SLOW')
    a(f's_add_u32 s{t1}, s{sLA}, s{sLB}')
    a(f's_cmp_gt_u32 s{t1}, {(ENT_QUADS - 8) // 8}')
    a('s_cbranch_scc1 K2_SLOW')
    a('s_cbranch_vccnz K2_SLOW')
    stamp(15)
    scatter()
    stamp(16)
    a('s_waitcnt lgkmcnt(0)')
    a('s_barrier')
    stamp(5)
    a(f's_cmp_eq_u32 s{sL}, 0')
    a('s_cbranch_scc1 K2_NOL')
    setup_ptrs()
    a('s_waitcnt lgkmcnt(0)')
    for ins in dma_addr(): a(ins)
    for ins in dma_issue(): a(ins)
    a.label('K2_NOL')
    stamp(17)
    a(f'v_cmp_gt_u32 vcc, {MAXN // 2}, v{vLANE}')
    a(f'v_lshl_or_b32 v{tB}, v{vLANE}, 1, 1')
    a(f'v_cmp_le_u32 s[{sSV}:{sSV+1}], s{sNN}, v{tB}')
    a(f'v_mov_b32 v{tC}, 1')
    a('s_nop 0')
    a(f'v_cndmask_b32 v{tB}, v{TQ+1}, v{tC}, s[{sSV}:{sSV+1}]')
    a(f'v_min_u32 v{tB}, v{TQ}, v{tB}')
    a(f'v_cmp_eq_u32 s[{sSV}:{sSV+1}], 0, v{tB}')
    a(f's_and_b64 s[{sSV}:{sSV+1}], s[{sSV}:{sSV+1}], vcc')
    a('s_cbranch_scc1 K2_ZROWS')
    a.label('K2_ZBACK')
    qi_fill('F', True)
    stamp(18)
    w_frags()
    consts()
    a('s_waitcnt lgkmcnt(0)')
    stamp(19)
    if opts.get('proprio') == 2: a('s_setprio 0')
    a('s_barrier')
    stamp(20)
    a(f's_cmp_eq_u32 s{sL}, 0')
    a('s_cbranch_scc1 K2_EPI')
    pipeline_fill()
    stamp(6)
    if opts.get('dbgtime'):
        a(f's_memrealtime s[{t2}:{t3}]')
        a('s_waitcnt lgkmcnt(0)')
        a(f's_mov_b32 s{sT1}, s{t2}')
    if STAMP:
        a(f's_memrealtime s[{t2}:{t3}]')
        a('s_waitcnt lgkmcnt(0)')
        a(f'v_writelane_b32 v{vST}, s{t2}, 13')
    if opts.get('half'):
        a(f's_cmp_ge_u32 s{sW}, 4')
        a('s_cbranch_scc1 K2_MDF')
    main_loop('F', False)
    stamp(7)
    if opts.get('dbgtime'):
        a(f's_memrealtime s[{t2}:{t3}]')
        a('s_waitcnt lgkmcnt(0)')
        a(f's_mov_b32 s{sT2}, s{t2}')
    if STAMP:
        a(f's_memrealtime s[{t2}:{t3}]')
        a('s_waitcnt lgkmcnt(0)')
        a(f'v_writelane_b32 v{vST}, s{t2}, 14')
    a.label('K2_EPI')
    e0 = 4
    XV = [e0, e0 + 4]; UU = [e0 + 8, e0 + 12]
    DN = [e0 + 16, e0 + 48]; NM = [e0 + 24, e0 + 56]; CD = [e0 + 32, e0 + 64]; CN = [e0 + 40, e0 + 72]
    O = e0 + 80; ADR = [e0 + 84, e0 + 85]; GO = [e0 + 86, e0 + 87]; CP = [e0 + 88, e0 + 89]; OC = [e0 + 90, e0 + 91]
    T1 = e0 + 92; ND = e0 + 93
    def epi_addr(r):
        a(f'v_add_u32 v{T1}, {512*r}, v0') if r else a(f'v_mov_b32 v{T1}, v0')
        a(f'v_lshrrev_b32 v{ND}, 3, v{T1}')
        a(f'v_and_b32 v{T1}, 7, v{T1}')
        a(f'v_lshlrev_b32 v{OC[r]}, 4, v{T1}')
        a(f'v_mul_u32_u24 v{CP[r]}, s{t0}, v{ND}')
        a(f'v_add_u32 v{CP[r]}, {L_ACC}, v{CP[r]}')
        a(f'v_add_u32 v{ADR[r]}, v{CP[r]}, v{OC[r]}')
        a(f'v_add_u32 v{GO[r]}, s{sNS}, v{ND}')
        a(f'v_lshlrev_b32 v{GO[r]}, 7, v{GO[r]}')
        a(f'v_lshl_add_u32 v{GO[r]}, v{T1}, 3, v{GO[r]}')
    def epi_static(r, carry):
        a(f'buffer_load_dwordx2 v[{XV[r]}:{XV[r]+1}], v{GO[r]}, s[{rF}:{rF+3}], 0 offen')
        a(f'buffer_load_dwordx2 v[{XV[r]+2}:{XV[r]+3}], v{GO[r]}, s[{rF}:{rF+3}], 0 offen offset:64')
        a(f'ds_read_b128 v[{UU[r]}:{UU[r]+3}], v{ADR[r]} offset:640')
        if carry: a(f'ds_read_b32 v{CP[r]}, v{CP[r]} offset:768')
    def epi_reads(r, carry):
        ad = ADR[r]
        a(f'ds_read_b128 v[{DN[r]}:{DN[r]+3}], v{ad}')
        a(f'ds_read_b128 v[{DN[r]+4}:{DN[r]+7}], v{ad} offset:128')
        a(f'ds_read_b128 v[{NM[r]}:{NM[r]+3}], v{ad} offset:256')
        a(f'ds_read_b128 v[{NM[r]+4}:{NM[r]+7}], v{ad} offset:384')
        if carry:
            a(f'ds_read_b128 v[{CD[r]}:{CD[r]+3}], v{CP[r]}')
            a(f'ds_read_b128 v[{CD[r]+4}:{CD[r]+7}], v{CP[r]} offset:128')
            a(f'ds_read_b128 v[{CN[r]}:{CN[r]+3}], v{CP[r]} offset:256')
            if r == 1: a('s_waitcnt lgkmcnt(14)')
            a(f'ds_read_b128 v[{CN[r]+4}:{CN[r]+7}], v{CP[r]} offset:384')
    def epi_math(r, carry):
        dn, nm, cd, cn, uu, xv = DN[r], NM[r], CD[r], CN[r], UU[r], XV[r]
        if carry:
            for i in range(0, 8, 2):
                a(f'v_pk_add_f32 v[{dn+i}:{dn+i+1}], v[{dn+i}:{dn+i+1}], v[{cd+i}:{cd+i+1}]')
                a(f'v_pk_add_f32 v[{nm+i}:{nm+i+1}], v[{nm+i}:{nm+i+1}], v[{cn+i}:{cn+i+1}]')
        for i in range(0, 8, 2):
            a(f'v_pk_add_f32 v[{dn+i}:{dn+i+1}], v[{dn+i}:{dn+i+1}], s[{sC}:{sC+1}]')
        for i in range(8):
            a(f'v_rcp_f32 v{dn+i}, v{dn+i}')
        for i in range(4):
            a(f'v_lshlrev_b32 v{cd+i}, 16, v{uu+i}')
            a(f'v_and_b32 v{cd+4+i}, s{sHI}, v{uu+i}')
        for i in range(0, 8, 2):
            a(f'v_pk_fma_f32 v[{nm+i}:{nm+i+1}], v[{nm+i}:{nm+i+1}], v[{dn+i}:{dn+i+1}], v[{cd+i}:{cd+i+1}]')
        for i in range(8):
            a(f'v_max_f32 v{nm+i}, 0, v{nm+i}')
        for i in range(4):
            a(f'v_lshlrev_b32 v{cd+2*i}, 16, v{xv+i}')
            a(f'v_and_b32 v{cd+2*i+1}, s{sHI}, v{xv+i}')
        for i in range(0, 8, 2):
            a(f'v_pk_add_f32 v[{nm+i}:{nm+i+1}], v[{nm+i}:{nm+i+1}], v[{cd+i}:{cd+i+1}]')
        for i in range(4):
            a(f'v_cvt_pk_bf16_f32 v{O+i}, v{nm+2*i}, v{nm+2*i+1}')
        osf = {0: '', 1: ' sc1', 2: ' nt', 3: ' sc0 sc1'}[opts.get('outst', 1)]
        a(f'buffer_store_dwordx2 v[{O}:{O+1}], v{GO[r]}, s[{rO}:{rO+3}], 0 offen' + osf)
        a(f'buffer_store_dwordx2 v[{O+2}:{O+3}], v{GO[r]}, s[{rO}:{rO+3}], 0 offen offset:64' + osf)
    def epilogue(tag, carry):
        srd(a, rO, sOUT, N * 128)
        srd(a, rF, sX, N * 128)
        a(f's_mov_b32 s{t0}, {ROWB}')
        a(f's_mov_b32 s{sC}, 0x{EPS_SCALED:x}')
        a(f's_mov_b32 s{sC+1}, 0x{EPS_SCALED:x}')
        a(f's_mov_b32 s{sHI}, 0xffff0000')
        a('s_waitcnt vmcnt(0)')
        epi_addr(0)
        epi_static(0, carry)
        epi_addr(1)
        a(f'v_cmp_gt_u32 s[{sSV}:{sSV+1}], s{sNN}, v{ND}')
        a('s_nop 3')
        a(f's_mov_b64 exec, s[{sSV}:{sSV+1}]')
        a(f's_cbranch_execz K2_NS2{tag}')
        epi_static(1, carry)
        a.label(f'K2_NS2{tag}')
        a('s_mov_b64 exec, -1')
        a('s_waitcnt lgkmcnt(0)')
        if carry:
            a(f'v_add_u32 v{CP[0]}, v{CP[0]}, v{OC[0]}')
            a(f'v_add_u32 v{CP[1]}, v{CP[1]}, v{OC[1]}')
        a('s_barrier')
        if STAMP and tag == 'F': stamp(8)
        epi_reads(0, carry)
        a(f's_mov_b64 exec, s[{sSV}:{sSV+1}]')
        a(f's_cbranch_execz K2_ONE{tag}')
        epi_reads(1, carry)
        a('s_mov_b64 exec, -1')
        a(f's_waitcnt vmcnt(0) lgkmcnt({8 if carry else 4})')
        epi_math(0, carry)
        a(f's_mov_b64 exec, s[{sSV}:{sSV+1}]')
        a('s_waitcnt lgkmcnt(0)')
        epi_math(1, carry)
        a(f's_branch K2_FIN{tag}')
        a.label(f'K2_ONE{tag}')
        a('s_mov_b64 exec, -1')
        a('s_waitcnt vmcnt(0) lgkmcnt(0)')
        epi_math(0, carry)
        a.label(f'K2_FIN{tag}')
    epilogue('F', True)
    if opts.get('dbgtime'):
        a('s_mov_b64 exec, -1')
        a('s_waitcnt vmcnt(0)')
        a(f's_memrealtime s[{t2}:{t3}]')
        a(f's_cmp_lg_u32 s{sW}, 7')
        a('s_cbranch_scc1 K2_DBGX')
        a('s_and_b32 s3, s2, 31')
        a('s_cmp_lg_u32 s3, 0')
        a('s_cbranch_scc1 K2_DBGX')
        a('s_lshr_b32 s3, s2, 5')
        a('s_cmp_ge_u32 s3, 2')
        a('s_cbranch_scc1 K2_DBGX')
        a(f's_lshl_b32 s{t0}, s3, 2')
        a(f's_add_u32 s{t0}, s{t0}, 0x1200000')
        a(f'v_mov_b32 v4, s{t0}')
        a(f'global_load_dword v5, v4, s[{sWS}:{sWS+1}]')
        a(f'global_load_dword v6, v4, s[{sWS}:{sWS+1}] offset:256')
        a('s_waitcnt vmcnt(0) lgkmcnt(0)')
        a(f'v_sub_u32 v8, v6, v5')
        a(f'v_sub_u32 v9, s{sT0}, v5')
        a(f'v_sub_u32 v10, s{sT1}, v5')
        a(f'v_sub_u32 v11, s{sT2}, v5')
        a(f'v_sub_u32 v12, s{t2}, v5')
        a('s_lshl_b32 s3, s3, 5')
        a('v_mov_b32 v4, s3')
        a('s_mov_b64 exec, 1')
        a(f'global_store_dwordx4 v4, v[8:11], s[{sDBG}:{sDBG+1}]')
        a(f'global_store_dword v4, v12, s[{sDBG}:{sDBG+1}] offset:16')
        a.label('K2_DBGX')
    if STAMP:
        a('s_mov_b64 exec, -1')
        a('s_waitcnt vmcnt(0)')
        stamp(9)
        a(f's_memrealtime s[{t2}:{t3}]')
        a('s_waitcnt lgkmcnt(0)')
        a(f'v_writelane_b32 v{vST}, s{t2}, 12')
        a(f's_mul_i32 s{t0}, s2, {NW}')
        a(f's_add_u32 s{t0}, s{t0}, s{sW}')
        a(f's_lshl_b32 s{t0}, s{t0}, 8')
        a(f's_add_u32 s{t0}, s{t0}, 0x1000000')
        srd_off(a, rT, sWS, f's{t0}', 256)
        a(f'v_writelane_b32 v{vST}, s{sL}, 10')
        a(f'v_lshlrev_b32 v4, 2, v{vLANE}')
        a(f'buffer_store_dword v{vST}, v4, s[{rT}:{rT+3}], 0 offen')
    a('s_endpgm')
    a.label('K2_CSEL')
    a(f'v_mov_b32 v{tD}, 0')
    a(f'v_mov_b32 v{tE}, 0')
    a(f'v_mov_b32 v{tF}, 0')
    for it in range(8):
        a(f'v_lshrrev_b32 v{tG}, 24, v{SG+it}')
        a(f'v_cmp_lt_u32 vcc, 32, v{tG}')
        a(f'v_mad_u32_u24 v{tJ}, v{SG+it}, 8, v{tB}')
        a(f'v_add_u32 v{RKC}, 1, v{tF}')
        a(f'v_cndmask_b32 v{tD}, v{tD}, v{tJ}, vcc')
        a(f'v_cndmask_b32 v{tE}, v{tE}, v{tG}, vcc')
        a(f'v_cndmask_b32 v{tF}, v{tF}, v{RKC}, vcc')
    a(f'v_cmp_lt_u32 vcc, 1, v{tF}')
    a(f'v_cmp_lt_u32 s[{sSV2}:{sSV2+1}], 48, v{tE}')
    a(f'v_add_u32 v{tG}, 32, v{tC}')
    a(f's_or_b64 s[{sSV2}:{sSV2+1}], s[{sSV2}:{sSV2+1}], vcc')
    a(f'v_cmp_gt_u32 s[{MKC}:{MKC+1}], v{tE}, v{tG}')
    a('s_nop 0')
    a(f's_mov_b64 exec, s[{MKC}:{MKC+1}]')
    a(f'buffer_load_dwordx2 v[{RC}:{RC+1}], v{tD}, s[{rR}:{rR+3}], 0 offen offset:256')
    a('s_mov_b64 exec, -1')
    a('s_branch K2_CBACK')
    a.label('K2_ZROWS')
    a(f's_mov_b64 exec, s[{sSV}:{sSV+1}]')
    for i in range(4):
        a(f'v_mov_b32 v{TR+i}, 0')
    for nd in range(2):
        a(f'v_cmp_eq_u32 vcc, 0, v{TQ+nd}')
        a(f's_and_b64 exec, vcc, s[{sSV}:{sSV+1}]')
        for k in range(32):
            a(f'ds_write_b128 v{nROW0}, v[{TR}:{TR+3}] offset:{nd*ROWB + 16*k}')
        a(f's_mov_b64 exec, s[{sSV}:{sSV+1}]')
    a('s_mov_b64 exec, -1')
    a('s_branch K2_ZBACK')

    a.label('K2_SLOW')
    w_frags()
    consts()
    a('s_waitcnt vmcnt(0) lgkmcnt(0)')
    a('s_barrier')
    a(f's_lshl_b32 s{t1}, s2, 10')
    a(f's_add_u32 s{t1}, s{t1}, {WS_TAB2}')
    srd_off(a, rT, sWS, f's{t1}', 1024)
    a(f'v_lshlrev_b32 v{tA}, 4, v{vLANE}')
    a(f'buffer_load_dwordx4 v[{TQ}:{TQ+3}], v{tA}, s[{rT}:{rT+3}], 0 offen')
    a('s_waitcnt vmcnt(0)')
    a(f'v_max_u32 v{tE}, v{TQ}, v{TQ+1}')
    a(f'v_max3_u32 v{tE}, v{tE}, v{TQ+2}, v{TQ+3}')
    wave_scan(a, 'v_max_u32', tE)
    a('s_nop 0')
    a(f'v_readlane_b32 s{t1}, v{tE}, 63')
    a(f's_add_u32 s{t1}, s{t1}, {WSLOW-1}')
    a(f's_mul_i32 s{t1}, s{t1}, 5042')
    a(f's_lshr_b32 s{sNP}, s{t1}, 16')
    a(f's_mov_b32 s{sP}, 0')
    for i in range(4):
        a(f'v_mov_b32 v{TR+i}, 0')
    a(f'v_lshrrev_b32 v{tA}, 5, v0')
    a(f'v_mul_u32_u24 v{tA}, {ROWB}, v{tA}')
    a(f'v_and_b32 v{tB}, 31, v{vLANE}')
    a(f'v_lshl_add_u32 v{tA}, v{tB}, 4, v{tA}')
    a(f'v_add_u32 v{tA}, {L_ACC}, v{tA}')
    for i in range(6):
        a(f'ds_write_b128 v{tA}, v[{TR}:{TR+3}]')
        a(f'v_add_u32 v{tA}, {16*ROWB}, v{tA}')
    a(f'v_cmp_gt_u32 vcc, 64, v0')
    a(f's_and_saveexec_b64 s[{sSV}:{sSV+1}], vcc')
    a(f'ds_write_b128 v{tA}, v[{TR}:{TR+3}]')
    a(f's_mov_b64 exec, s[{sSV}:{sSV+1}]')
    a.label('K2_SPASS')
    a(f's_lshl_b32 s{t0}, s{sW}, 1')
    a(f'v_lshrrev_b32 v{sidA}, 5, v{vLANE}')
    a(f'v_add_u32 v{sidA}, s{t0}, v{sidA}')
    a(f'v_bfe_u32 v{jA}, v{vLANE}, 3, 2')
    a(f'v_bfe_u32 v{sidR}, v{vLANE}, 2, 1')
    a(f'v_add_u32 v{sidR}, s{t0}, v{sidR}')
    a(f'v_and_b32 v{iR4}, 3, v{vLANE}')
    a(f'v_lshlrev_b32 v{iR4}, 2, v{iR4}')
    a(f's_lshl_b32 s{t1}, s2, 10')
    a(f's_add_u32 s{t1}, s{t1}, {WS_TAB}')
    srd_off(a, rT, sWS, f's{t1}', WS_TAB2 - WS_TAB + 1024)
    a(f'v_lshrrev_b32 v{tD}, 4, v{vLANE}')
    a(f'v_lshlrev_b32 v{tD}, 5, v{tD}')
    a(f's_lshl_b32 s{t0}, s{sW}, 7')
    a(f'v_add_u32 v{tD}, s{t0}, v{tD}')
    a(f's_mov_b32 s{t0}, {WS_TAB2 - WS_TAB}')
    for i in range(2):
        a(f'buffer_load_dwordx4 v[{SG+4*i}:{SG+4*i+3}], v{tD}, s[{rT}:{rT+3}], 0 offen offset:{16*i}')
    for i in range(2):
        a(f'buffer_load_dwordx4 v[{AX+4*i}:{AX+4*i+3}], v{tD}, s[{rT}:{rT+3}], s{t0} offen offset:{16*i}')
    a(f'v_and_b32 v{tC}, 15, v{vLANE}')
    a(f's_mul_i32 s{t0}, s{sP}, {WSLOW}')
    a(f'v_cmp_gt_u32 vcc, {WSLOW}, v{tC}')
    a(f'v_add_u32 v{tC}, s{t0}, v{tC}')
    a(f'v_lshlrev_b32 v{tB}, 3, v{tC}')
    a(f'v_mov_b32 v{tD}, 0x10000')
    a(f'v_cndmask_b32 v{tC}, v{tD}, v{tC}, vcc')
    a('s_waitcnt vmcnt(0)')
    a(f's_mov_b64 s[{MKC}:{MKC+1}], 0')
    for it in range(8):
        a(f'v_cmp_gt_u32 s[{MK+2*it}:{MK+2*it+1}], v{AX+it}, v{tC}')
        a(f's_mov_b64 s[{MK+16+2*it}:{MK+16+2*it+1}], 0')
    rec_loads(tB, 8)
    lds_init()
    a('s_waitcnt vmcnt(0) lgkmcnt(0)')
    a('s_barrier')
    hist()
    a('s_waitcnt lgkmcnt(0)')
    a('s_barrier')
    scan_nodes('S')
    qi_fill('S', False)
    scatter()
    a('s_waitcnt lgkmcnt(0)')
    a('s_barrier')
    a(f's_cmp_eq_u32 s{sL}, 0')
    a('s_cbranch_scc1 K2_SNEXT')
    setup_ptrs()
    a('s_waitcnt lgkmcnt(0)')
    for ins in dma_addr(): a(ins)
    for ins in dma_issue(): a(ins)
    forced_flags()
    pipeline_fill()
    main_loop('S', True)
    a.label('K2_SNEXT')
    a('s_waitcnt vmcnt(0) lgkmcnt(0)')
    a('s_barrier')
    a(f's_add_u32 s{sP}, s{sP}, 1')
    a(f's_cmp_lt_u32 s{sP}, s{sNP}')
    a('s_cbranch_scc1 K2_SPASS')
    epilogue('S', False)
    a.label('K2_END')
    a('s_endpgm')
    return nvgpr, nsgpr

def kd(name, nv, ns):
    acc = (nv + 3) // 4 * 4
    return f'''.amdhsa_kernel {name}
  .amdhsa_next_free_vgpr {nv}
  .amdhsa_next_free_sgpr {ns}
  .amdhsa_accum_offset {acc}
  .amdhsa_group_segment_fixed_size 0
  .amdhsa_kernarg_size 96
  .amdhsa_user_sgpr_count 2
  .amdhsa_user_sgpr_kernarg_segment_ptr 1
  .amdhsa_system_sgpr_workgroup_id_x 1
  .amdhsa_float_denorm_mode_32 3
.end_amdhsa_kernel
'''

def build(opts=None):
    opts = opts or {}
    a = Asm()
    gen_k1(a, opts)
    nv, ns = gen_k2(a, opts)
    out = HEADER
    out += f'; @launch kernel=gs_part_kernel grid=(256,1,1) block=({K1_THREADS},1,1) lds={LDS_K1}\n'
    out += f'; @launch kernel=gs_main_kernel grid=(256,1,1) block=({NW*64},1,1) lds={LDS_MAIN}\n'
    out += '.amdgcn_target "amdgcn-amd-amdhsa--gfx950"\n.text\n'
    out += a.text()
    out += '.section .rodata,"a"\n.p2align 6\n'
    out += kd('gs_part_kernel', 60, 60)
    out += '.p2align 6\n'
    out += kd('gs_main_kernel', nv, ns)
    return out

if __name__ == '__main__':
    path = sys.argv[1] if len(sys.argv) > 1 else 'gather_scatter__edge_featured_mpnn_gatedgcn__graph.s'
    opts = {}
    for o in sys.argv[2:]:
        k, _, val = o.partition('=')
        opts[k] = int(val) if val else True
    open(path, 'w').write(build(opts))
    print('written', path, 'LDS', LDS_MAIN)
```

```python
import sys, os, struct
sys.path.insert(0, os.path.dirname(__file__))
from asmlib import *

N = 25000; E = 800000
NBK = 256
CH = 3136
RECB = CH * 8
WS_TAB = 0x700000
WS_TAB2 = 0x740000
WS_FRAG = 0x780000
MAGIC_B = 43980466
LOG2E = 0xBFB8AA3B
SBITS = 50
C_SCALE = (127 - SBITS) << 23
EPS_SCALED = 0x4E8637BD
assert abs(struct.unpack('<f', struct.pack('<I', EPS_SCALED))[0] / (1e-6 * 2.0**50) - 1) < 1e-6

NW = 8
NSTREAM = 16
NIT = 16
CAP = 3456
WSLOW = 13
ROWB = 784
MAXN = 98
ENT_QUADS = 960
VROWB = 640
L_CNT = 0
L_ZERO = 512
L_TAB = 1024
L_QI = 1536
L_ENT = L_QI + ENT_QUADS * 4
L_ACC = L_ENT + ENT_QUADS * 16
L_VIRT = L_ACC + MAXN * ROWB
L_WST = L_VIRT + NSTREAM * VROWB
L_WST = (L_WST + 255) // 256 * 256
L_DMA = L_WST + 16384
LDS_MAIN = L_DMA + NW * 4096
assert LDS_MAIN <= 163840, LDS_MAIN
assert L_ACC % 16 == 0 and L_VIRT % 16 == 0

K1_THREADS = 896
K1_HIST = 0
K1_STAGE = 1024
LDS_K1 = K1_STAGE + RECB

HEADER = open(os.path.join(os.path.dirname(__file__), 'header.txt')).read()

def srd(a, sreg, ptr, size):
    a(f's_mov_b32 s{sreg}, s{ptr}')
    a(f's_and_b32 s{sreg+1}, s{ptr+1}, 0xffff')
    a(f's_mov_b32 s{sreg+2}, {size}')
    a(f's_mov_b32 s{sreg+3}, 0x20000')

def srd_off(a, sreg, ptr, off, size):
    a(f's_add_u32 s{sreg}, s{ptr}, {off}')
    a(f's_addc_u32 s{sreg+1}, s{ptr+1}, 0')
    a(f's_and_b32 s{sreg+1}, s{sreg+1}, 0xffff')
    a(f's_mov_b32 s{sreg+2}, {size}')
    a(f's_mov_b32 s{sreg+3}, 0x20000')

def wave_scan(a, op, r):
    for sh in (1, 2, 4, 8):
        a('s_nop 1')
        a(f'{op}_dpp v{r}, v{r}, v{r} row_shr:{sh} row_mask:0xf bank_mask:0xf')
    a('s_nop 1')
    a(f'{op}_dpp v{r}, v{r}, v{r} row_bcast:15 row_mask:0xa bank_mask:0xf')
    a('s_nop 1')
    a(f'{op}_dpp v{r}, v{r}, v{r} row_bcast:31 row_mask:0xc bank_mask:0xf')

def wave_scan2(a, op1, r1, op2, r2):
    steps = [f'row_shr:{sh} row_mask:0xf bank_mask:0xf' for sh in (1, 2, 4, 8)] + \
            ['row_bcast:15 row_mask:0xa bank_mask:0xf', 'row_bcast:31 row_mask:0xc bank_mask:0xf']
    a('s_nop 1')
    for st in steps:
        a(f'{op1}_dpp v{r1}, v{r1}, v{r1} {st}')
        a(f'{op2}_dpp v{r2}, v{r2}, v{r2} {st}')
        a('s_nop 0')

def gen_k1(a, opts):
    ST = opts.get('stamp1', False)
    def stamp(i):
        if not ST: return
        a('s_memtime s[56:57]')
        a('s_waitcnt lgkmcnt(0)')
        a(f'v_writelane_b32 v60, s56, {i}')
    a.raw('.p2align 8')
    a.raw('.globl gs_part_kernel')
    a.raw('.type gs_part_kernel,@function')
    a.label('gs_part_kernel')
    a('s_cmp_ge_u32 s2, 256')
    a('s_cbranch_scc1 K1_END')
    a('s_load_dwordx4 s[4:7], s[0:1], 8')
    a('s_load_dwordx2 s[8:9], s[0:1], 24')
    a('s_load_dwordx2 s[10:11], s[0:1], 88')
    a('s_load_dwordx2 s[44:45], s[0:1], 0')
    if ST: a('v_mov_b32 v60, 0')
    stamp(0)
    if opts.get('dbgtime'):
        a('s_memrealtime s[54:55]')
        a('s_waitcnt lgkmcnt(0)')
        a('s_cmp_ge_u32 s2, 8')
        a('s_cbranch_scc1 K1_NODBG')
        a('v_mov_b32 v20, s54')
        a('s_lshl_b32 s56, s2, 2')
        a('s_add_u32 s56, s56, 0x1200000')
        a('v_mov_b32 v22, s56')
        a('v_cmp_eq_u32 vcc, 0, v0')
        a('s_and_saveexec_b64 s[58:59], vcc')
        a('global_store_dword v22, v20, s[10:11]')
        a('s_mov_b64 exec, s[58:59]')
        a.label('K1_NODBG')
    a('v_lshrrev_b32 v1, 6, v0')
    a('s_mul_i32 s12, s2, %d' % (CH * 4))
    a('v_readfirstlane_b32 s3, v1')
    a('s_lshr_b32 s13, s12, 1')
    a('v_lshlrev_b32 v2, 4, v0')
    a('v_add_u32 v2, s12, v2')
    a('s_cmp_eq_u32 s3, 13')
    a('s_cbranch_scc1 K1_FRAG')
    a('v_lshlrev_b32 v3, 3, v0')
    a('v_add_u32 v3, s13, v3')
    a('s_waitcnt lgkmcnt(0)')
    srd(a, 20, 8, E * 4)
    a('buffer_load_dwordx4 v[4:7], v2, s[20:23], 0 offen')
    srd(a, 24, 6, E * 4)
    srd(a, 28, 4, E * 2)
    if not opts.get('dstfirst', 1):
        a('buffer_load_dwordx4 v[8:11], v2, s[24:27], 0 offen')
        a('buffer_load_dwordx2 v[12:13], v3, s[28:31], 0 offen')
    a('v_lshlrev_b32 v14, 2, v0')
    a('v_mov_b32 v15, 0')
    a('v_cmp_gt_u32 vcc, 256, v0')
    a('s_and_saveexec_b64 s[18:19], vcc')
    a('ds_write_b32 v14, v15 offset:%d' % K1_HIST)
    a('s_mov_b64 exec, s[18:19]')
    a('v_cmp_gt_u32 vcc, %d, v0' % (CH // 4))
    a('s_mov_b32 s14, %d' % (E * 4))
    a('v_cmp_gt_u32 s[16:17], s14, v2')
    a('s_and_b64 s[16:17], s[16:17], vcc')
    a('s_mul_i32 s15, s2, %d' % RECB)
    srd_off(a, 32, 10, 's15', RECB)
    srd_off(a, 36, 10, WS_TAB, 0x80000)
    a('s_mov_b32 s40, %d' % MAGIC_B)
    a('s_movk_i32 s41, 3125')
    a('v_mov_b32 v15, 1')
    a('s_waitcnt lgkmcnt(0)')
    a('s_barrier')
    if opts.get('dstfirst', 1):
        a('s_waitcnt vmcnt(0)')
        a('buffer_load_dwordx4 v[8:11], v2, s[24:27], 0 offen')
        a('buffer_load_dwordx2 v[12:13], v3, s[28:31], 0 offen')
    if opts.get('xpre', 1):
        a('s_and_b32 s46, s2, 7')
        a('s_lshr_b32 s47, s2, 3')
        a('s_lshl_b32 s46, s46, 5')
        a('s_add_u32 s46, s46, s47')
        a('s_mul_i32 s46, s46, 3125')
        a('s_add_u32 s46, s46, 31')
        a('s_lshr_b32 s46, s46, 5')
        a('s_lshl_b32 s46, s46, 7')
        a('s_and_b32 s45, s45, 0xffff')
        a('s_mov_b32 s48, s44')
        a('s_mov_b32 s49, s45')
        a('s_mov_b32 s50, %d' % (N * 128))
        a('s_mov_b32 s51, 0x20000')
        a('v_lshlrev_b32 v40, 4, v0')
        a('buffer_load_dwordx4 v[56:59], v40, s[48:51], s46 offen')
    a('s_mov_b64 exec, s[16:17]')
    a('s_cbranch_execz K1_NOEDGE1')
    stamp(1)
    if not opts.get('dstfirst', 1): a('s_waitcnt vmcnt(%d)' % (3 if opts.get('xpre', 1) else 2))
    stamp(2)
    for k in range(4):
        a(f'v_mul_hi_u32 v{16+k}, v{4+k}, s40')
    for k in range(4):
        a(f'v_lshlrev_b32 v{20+k}, 2, v{16+k}')
        a(f'ds_add_rtn_u32 v{24+k}, v{20+k}, v15 offset:{K1_HIST}')
    for k in range(4):
        a(f'v_mul_u32_u24 v{28+k}, s41, v{16+k}')
        a(f'v_add_u32 v{28+k}, 31, v{28+k}')
        a(f'v_lshrrev_b32 v{28+k}, 5, v{28+k}')
        a(f'v_sub_u32 v{28+k}, v{4+k}, v{28+k}')
        a(f'v_lshlrev_b32 v{33+2*k}, 2, v{28+k}')
    a.label('K1_NOEDGE1')
    a('s_mov_b64 exec, -1')
    a('s_waitcnt lgkmcnt(0)')
    stamp(3)
    a('s_barrier')
    stamp(4)
    a('s_cmp_lg_u32 s3, 0')
    a('s_cbranch_scc1 K1_SCANDONE')
    a('v_lshlrev_b32 v40, 4, v0')
    a('ds_read_b128 v[44:47], v40 offset:%d' % K1_HIST)
    a('v_lshlrev_b32 v41, 12, v0')
    a('s_lshl_b32 s15, s2, 2')
    a('v_add_u32 v41, s15, v41')
    a('s_waitcnt lgkmcnt(0)')
    a('v_add_u32 v48, v44, v45')
    a('v_add_u32 v49, v48, v46')
    a('v_add_u32 v50, v49, v47')
    a('v_mov_b32 v51, v50')
    wave_scan(a, 'v_add_u32', 51)
    a('v_sub_u32 v52, v51, v50')
    a('v_add_u32 v53, v52, v44')
    a('v_add_u32 v54, v52, v48')
    a('v_add_u32 v55, v52, v49')
    a('ds_write_b128 v40, v[52:55] offset:%d' % K1_HIST)
    a('s_waitcnt vmcnt(%d)' % (1 if opts.get('xpre', 1) else 0))
    a('s_mul_i32 s15, s2, %d' % CH)
    a('s_mov_b32 s43, %d' % (WS_TAB2 - WS_TAB))
    for k in range(4):
        a(f'buffer_store_dword v{44+k}, v41, s[36:39], s43 offen offset:{k*1024}' + (' sc1' if opts.get('tabst', 0) else ''))
        a(f'v_min_u32 v{48+k}, 0xff, v{44+k}')
        a(f'v_add_u32 v{52+k}, s15, v{52+k}')
        a(f'v_lshl_or_b32 v{48+k}, v{48+k}, 24, v{52+k}')
        a(f'buffer_store_dword v{48+k}, v41, s[36:39], 0 offen offset:{k*1024}' + (' sc1' if opts.get('tabst', 0) else ''))
    a.label('K1_SCANDONE')
    a('s_waitcnt lgkmcnt(0)')
    a('s_barrier')
    stamp(5)
    a('s_mov_b64 exec, s[16:17]')
    a('s_cbranch_execz K1_NOEDGE2')
    for k in range(4):
        a(f'ds_read_b32 v{28+k}, v{20+k} offset:{K1_HIST}')
    a('s_cmp_eq_u32 s3, 0')
    a('s_cbranch_scc1 K1_HAVE')
    a('s_waitcnt vmcnt(%d)' % (1 if opts.get('xpre', 1) else 0))
    a.label('K1_HAVE')
    a('s_mov_b32 s42, 0xffff0000')
    a('v_lshl_or_b32 v32, v12, 16, v8')
    a('v_and_or_b32 v34, v12, s42, v9')
    a('v_lshl_or_b32 v36, v13, 16, v10')
    a('v_and_or_b32 v38, v13, s42, v11')
    for k in range(4):
        a(f's_waitcnt lgkmcnt({3 if k == 0 else 3})')
        a(f'v_add_lshl_u32 v{28+k}, v{28+k}, v{24+k}, 3')
        a(f'ds_write_b64 v{28+k}, v[{32+2*k}:{33+2*k}] offset:{K1_STAGE}')
    a.label('K1_NOEDGE2')
    a('s_mov_b64 exec, -1')
    a('v_lshlrev_b32 v2, 4, v0')
    a('v_add_u32 v3, %d, v2' % (RECB // 2))
    a('v_cmp_gt_u32 vcc, %d, v0' % (CH // 4))
    a('s_waitcnt lgkmcnt(0)')
    stamp(6)
    a('s_barrier')
    stamp(7)
    a('s_and_saveexec_b64 s[18:19], vcc')
    a('s_cbranch_execz K1_END')
    a('ds_read_b128 v[4:7], v2 offset:%d' % K1_STAGE)
    a('ds_read_b128 v[8:11], v2 offset:%d' % (K1_STAGE + RECB // 2))
    a('s_waitcnt lgkmcnt(1)')
    sfx = {0: '', 1: ' sc1', 2: ' nt', 3: ' sc0 sc1', 4: ' sc1 nt'}[opts.get('k1st', 1)]
    a('buffer_store_dwordx4 v[4:7], v2, s[32:35], 0 offen' + sfx)
    a('s_waitcnt lgkmcnt(0)')
    a('buffer_store_dwordx4 v[8:11], v3, s[32:35], 0 offen' + sfx)
    if ST:
        stamp(8)
        a('s_waitcnt vmcnt(0)')
        stamp(9)
        a('s_mul_i32 s12, s2, 16')
        a('s_add_u32 s12, s12, s3')
        a('s_lshl_b32 s12, s12, 8')
        a('s_add_u32 s12, s12, 0x1100000')
        a('s_add_u32 s32, s10, s12')
        a('s_addc_u32 s33, s11, 0')
        a('s_and_b32 s33, s33, 0xffff')
        a('s_mov_b32 s34, 256')
        a('s_mov_b64 exec, -1')
        a('v_and_b32 v4, 63, v0')
        a('v_lshlrev_b32 v4, 2, v4')
        a('buffer_store_dword v60, v4, s[32:35], 0 offen')
    if opts.get('dbgtime'):
        a('s_waitcnt vmcnt(0)')
        a('s_memrealtime s[54:55]')
        a('s_waitcnt lgkmcnt(0)')
        a('s_cmp_ge_u32 s2, 8')
        a('s_cbranch_scc1 K1_END')
        a('s_cmp_lg_u32 s3, 0')
        a('s_cbranch_scc1 K1_END')
        a('v_mov_b32 v20, s54')
        a('s_lshl_b32 s56, s2, 2')
        a('s_add_u32 s56, s56, 0x1200100')
        a('v_mov_b32 v22, s56')
        a('s_mov_b64 exec, 1')
        a('global_store_dword v22, v20, s[10:11]')
    a('s_endpgm')
    a.label('K1_FRAG')
    if opts.get('codepre', 0):
        a('s_cmp_lt_u32 s2, 32')
        a('s_cbranch_scc1 K1_FRAG2')
        a('s_cmp_ge_u32 s2, 64')
        a('s_cbranch_scc1 K1_END')
        a('s_getpc_b64 s[12:13]')
        a.label('K1_PCREF')
        a('s_add_u32 s12, s12, gs_main_kernel-K1_PCREF')
        a('s_addc_u32 s13, s13, 0')
        a('v_and_b32 v1, 63, v0')
        a('v_lshlrev_b32 v2, 4, v1')
        for i in range(opts.get('codekb', 20)):
            a(f'global_load_dwordx4 v[4:7], v2, s[12:13]')
            a('v_add_u32 v2, 1024, v2')
        a('s_endpgm')
        a.label('K1_FRAG2')
    a('s_cmp_ge_u32 s2, 32')
    a('s_cbranch_scc1 K1_END')
    a('s_load_dwordx4 s[12:15], s[0:1], 32')
    a('s_load_dwordx4 s[16:19], s[0:1], 56')
    a('s_lshr_b32 s20, s2, 3')
    a('s_waitcnt lgkmcnt(0)')
    a('s_mov_b32 s22, s14')
    a('s_mov_b32 s23, s15')
    a('s_cmp_eq_u32 s20, 1')
    a('s_cselect_b32 s22, s18, s22')
    a('s_cselect_b32 s23, s19, s23')
    a('s_cmp_eq_u32 s20, 2')
    a('s_cselect_b32 s22, s12, s22')
    a('s_cselect_b32 s23, s13, s23')
    a('s_cmp_eq_u32 s20, 3')
    a('s_cselect_b32 s22, s16, s22')
    a('s_cselect_b32 s23, s17, s23')
    srd(a, 24, 22, 64 * 64 * 2)
    srd_off(a, 28, 10, WS_FRAG, 32 * 1024)
    a('s_and_b32 s32, s2, 3')
    a('s_lshr_b32 s33, s2, 2')
    a('s_and_b32 s33, s33, 1')
    a('s_lshl_b32 s32, s32, 11')
    a('s_lshl_b32 s33, s33, 6')
    a('s_add_u32 s32, s32, s33')
    a('v_and_b32 v1, 63, v0')
    a('v_and_b32 v2, 31, v1')
    a('v_lshlrev_b32 v2, 1, v2')
    a('v_lshrrev_b32 v3, 5, v1')
    a('v_lshlrev_b32 v3, 10, v3')
    a('v_add3_u32 v2, v2, v3, s32')
    for i in range(8):
        a(f'buffer_load_ushort v{8+i}, v2, s[24:27], 0 offen offset:{i*128}')
    a('s_mov_b32 s34, 1.0')
    a('s_and_b32 s36, s20, 1')
    a('s_cmp_eq_u32 s36, 0')
    a('s_cselect_b32 s34, 0x%x, s34' % LOG2E)
    a('s_waitcnt vmcnt(0)')
    for i in range(8):
        a(f'v_lshlrev_b32 v{8+i}, 16, v{8+i}')
        a(f'v_mul_f32 v{8+i}, s34, v{8+i}')
    for i in range(4):
        a(f'v_cvt_pk_bf16_f32 v{16+i}, v{8+2*i}, v{9+2*i}')
    a('v_lshlrev_b32 v4, 4, v1')
    a('s_lshl_b32 s35, s2, 10')
    a('v_add_u32 v4, s35, v4')
    a('buffer_store_dwordx4 v[16:19], v4, s[28:31], 0 offen')
    a.label('K1_END')
    a('s_endpgm')

def gen_k2(a, opts):
    STAMP = opts.get('stamp', False)
    vLANE = 1; BC = 2
    WB = 4; WV = 36; AX = 68
    GA = 84; HA = 100; GB = 116; HB = 132
    PP = 148; TT_ = 156; ZZ = 164
    DEN = 172; NUM = 176
    AE = [180, 184]; BE = 188; R0 = 192
    QA = [196, 200]
    EN = 204; RA = 208; CO = 212
    pEN = 216; pEE = 217; pQI = 218; pQF = 219
    C4 = 220; SEL = [221, 222]; EE = 223; QF = 224
    F0 = 225; F1 = 226; F2 = 252; F3 = 227
    tA = 227; tB = 228; tC = 229; tD = 230; tE = 231; tF = 232; tG = 233; tH = 234; tI = 235
    TQ = 236; TR = 240
    sidA = 244; jA = 245; sidR = 246; iR4 = 247
    vST = 253; GF = 249; GD = 250
    PB = 228; TB = 236; ZB = 244
    RC = 252; RKC = 254; tJ = 255
    nvgpr = 256
    REC = PP; RK = GB; SG = HB
    G_ = [GA, GB]; H_ = [HA, HB]
    nOFF0 = AE[0]+0 if False else QA[0]; nOFF1 = QA[0]+1; nEND0 = QA[0]+2; nEND1 = QA[0]+3; nROW0 = QA[1]
    S = Regs('s', 3, 102)
    sX = S.alloc('x', 2, 2); sWC = S.alloc('wc', 2, 2); sOUT = S.alloc('out', 2, 2); sWS = S.alloc('ws', 2, 2)
    rX = S.alloc('rX', 4, 4); rT = S.alloc('rT', 4, 4); rR = S.alloc('rR', 4, 4); rF = S.alloc('rF', 4, 4)
    sW = S.alloc('w'); sNS = S.alloc('ns'); sNN = S.alloc('nn')
    sP = S.alloc('pass'); sNP = S.alloc('npass')
    sL = S.alloc('L'); sCNT = S.alloc('cnt'); sLA = S.alloc('La'); sLB = S.alloc('Lb'); sSO = S.alloc('streamoff')
    sC = S.alloc('C', 2, 2)
    sF = [S.alloc('F0', 2, 2), S.alloc('F1', 2, 2)]
    sANY = [S.alloc('any0'), S.alloc('any1')]
    s128 = S.alloc('c128'); sLO = S.alloc('lo16'); sHI = S.alloc('hi16')
    t0 = S.alloc('t0'); t1 = S.alloc('t1'); t2 = S.alloc('t2', 1, 2); t3 = S.alloc('t3')
    sSV = S.alloc('sv', 2, 2); sSV2 = S.alloc('sv2', 2, 2)
    sDB = S.alloc('dmabase'); sSWAP = S.alloc('swap')
    sDBG = S.alloc('dbg', 2, 2) if opts.get('dbgtime') else None
    sT0 = S.alloc('dbgt0', 2, 2) if opts.get('dbgtime') else None
    sT1 = S.alloc('dbgt1') if opts.get('dbgtime') else None
    sT2 = S.alloc('dbgt2') if opts.get('dbgtime') else None
    MK = S.alloc('MK', 32, 2)
    MKC = S.alloc('MKC', 2, 2)
    rO = rT
    nsgpr = S.hi
    def stamp(i):
        if not STAMP: return
        a(f's_memtime s[{t2}:{t3}]')
        a('s_waitcnt lgkmcnt(0)')
        a(f'v_writelane_b32 v{vST}, s{t2}, {i}')
    XB = 4096

    a.raw('.p2align 8')
    a.raw('.globl gs_main_kernel')
    a.raw('.type gs_main_kernel,@function')
    a.label('gs_main_kernel')
    a('s_cmp_ge_u32 s2, 256')
    a('s_cbranch_scc1 K2_END')
    a(f's_load_dwordx2 s[{sWS}:{sWS+1}], s[0:1], 88')
    a(f's_load_dwordx2 s[{sX}:{sX+1}], s[0:1], 0')
    a(f's_load_dwordx2 s[{sWC}:{sWC+1}], s[0:1], 48')
    a(f's_load_dwordx2 s[{sOUT}:{sOUT+1}], s[0:1], 72')
    a('s_and_b32 s3, s2, 7')
    a('s_lshr_b32 s2, s2, 3')
    a('s_lshl_b32 s3, s3, 5')
    a('s_add_u32 s2, s2, s3')
    if opts.get('dbgtime'):
        a(f's_load_dwordx2 s[{sDBG}:{sDBG+1}], s[0:1], 80')
        a(f's_memrealtime s[{sT0}:{sT0+1}]')
        a('s_waitcnt lgkmcnt(0)')
    if STAMP:
        a(f'v_mov_b32 v{vST}, 0')
    stamp(0)
    if STAMP:
        a(f's_memrealtime s[{t2}:{t3}]')
        a('s_waitcnt lgkmcnt(0)')
        a(f'v_writelane_b32 v{vST}, s{t2}, 11')
    a(f'v_lshrrev_b32 v{tA}, 6, v0')
    a(f'v_and_b32 v{vLANE}, 63, v0')
    a(f'v_readfirstlane_b32 s{sW}, v{tA}')
    a(f'v_lshrrev_b32 v{sidA}, 5, v{vLANE}')
    if opts.get('proprio'):
        a('s_nop 2')
        a(f's_cmp_ge_u32 s{sW}, 4')
        a('s_cbranch_scc0 K2_PP0')
        a('s_setprio 1')
        a.label('K2_PP0')
    a(f's_lshl_b32 s{t1}, s2, 10')
    a(f's_add_u32 s{t1}, s{t1}, {WS_TAB}')
    a(f's_lshl_b32 s{t0}, s{sW}, 1')
    a(f'v_add_u32 v{sidA}, s{t0}, v{sidA}')
    a(f'v_lshrrev_b32 v{tD}, 4, v{vLANE}')
    a(f'v_lshlrev_b32 v{tD}, 5, v{tD}')
    a(f's_lshl_b32 s{t0}, s{sW}, 7')
    a(f'v_add_u32 v{tD}, s{t0}, v{tD}')
    a(f'v_lshlrev_b32 v{tA}, 4, v{vLANE}')
    a('s_waitcnt lgkmcnt(0)')
    srd_off(a, rT, sWS, f's{t1}', 1024)
    for i in range(2):
        a(f'buffer_load_dwordx4 v[{SG+4*i}:{SG+4*i+3}], v{tD}, s[{rT}:{rT+3}], 0 offen offset:{16*i}')
    a(f's_mul_i32 s{t0}, s2, 3125')
    a(f's_add_u32 s{sNS}, s{t0}, 31')
    a(f's_lshr_b32 s{sNS}, s{sNS}, 5')
    a(f's_add_u32 s{t0}, s{t0}, {3125+31}')
    a(f's_lshr_b32 s{t0}, s{t0}, 5')
    a(f's_sub_u32 s{sNN}, s{t0}, s{sNS}')
    a(f's_sub_u32 s{rX}, s{sX}, {XB}')
    a(f's_subb_u32 s{rX+1}, s{sX+1}, 0')
    a(f's_and_b32 s{rX+1}, s{rX+1}, 0xffff')
    a(f's_mov_b32 s{rX+2}, {N*128 + XB}')
    a(f's_mov_b32 s{rX+3}, 0x20000')
    srd_off(a, rF, sWS, WS_FRAG, 32 * 1024)
    a(f's_lshl_b32 s{sDB}, s{sW}, 12')
    a(f's_add_u32 s{sDB}, s{sDB}, {L_DMA}')
    a(f'v_bfe_u32 v{tE}, v{vLANE}, 4, 1')
    a(f'v_and_b32 v{tF}, 7, v{vLANE}')
    a(f'v_xor_b32 v{tE}, v{tE}, v{tF}')
    a(f'v_lshlrev_b32 v{tE}, 4, v{tE}')
    for i in range(4):
        if i: a(f'v_xor_b32 v{tF}, {32*i}, v{tE}')
        a(f'v_add_u32 v{CO+i}, {XB - 1024*i}, v{tF if i else tE}')
    a(f'v_bfe_u32 v{jA}, v{vLANE}, 3, 2')
    a(f'v_lshrrev_b32 v{tF}, 5, v{vLANE}')
    a(f'v_lshlrev_b32 v{tE}, 3, v{jA}')
    a(f'v_lshl_add_u32 v{tE}, v{tF}, 2, v{tE}')
    a(f's_lshr_b32 s{t0}, s{sW}, 1')
    a(f's_lshl_b32 s{t1}, s{t0}, 5')
    a(f's_add_u32 s{t1}, s{t1}, s{sNS}')
    a(f's_and_b32 s{t2}, s{sW}, 1')
    a(f's_lshl_b32 s{t2}, s{t2}, 1')
    a(f's_add_u32 s{t1}, s{t1}, s{t2}')
    a(f'v_add_u32 v{tE}, s{t1}, v{tE}')
    a(f'v_lshlrev_b32 v{tE}, 7, v{tE}')
    a(f's_cmp_eq_u32 s{t2}, 0')
    a(f's_cbranch_scc0 K2_XI2')
    a(f'v_add_u32 v{tH}, v{tE}, v{CO}')
    a(f'v_add_u32 v{tI}, v{tE}, v{CO+1}')
    a('s_branch K2_XI')
    a.label('K2_XI2')
    a(f'v_add_u32 v{tH}, v{tE}, v{CO+2}')
    a(f'v_add_u32 v{tI}, v{tE}, v{CO+3}')
    a(f'v_add_u32 v{tH}, 2048, v{tH}')
    a(f'v_add_u32 v{tI}, 2048, v{tI}')
    a.label('K2_XI')
    a(f'v_add_u32 v{tI}, 128, v{tI}')
    a(f'v_and_b32 v{C4}, 31, v{vLANE}')
    def staging():
        a(f's_lshr_b32 s{t0}, s{sW}, 1')
        a(f's_lshl_b32 s{t0}, s{t0}, 12')
        a(f's_and_b32 s{t2}, s{sW}, 1')
        a(f's_lshl_b32 s{t2}, s{t2}, 11')
        a(f's_add_u32 s{t0}, s{t0}, s{t2}')
        a(f's_add_u32 s{t0}, s{t0}, {L_DMA}')
        a(f's_mov_b32 m0, s{t0}')
        a(f'v_lshlrev_b32 v{tA}, 4, v{vLANE}')
        a(f'buffer_load_dwordx4 v{tH}, s[{rX}:{rX+3}], 0 offen lds')
        a(f'buffer_load_dwordx4 v{tI}, s[{rX}:{rX+3}], 0 offen offset:1024 lds')
        a(f's_lshl_b32 s{t0}, s{sW}, 11')
        a(f's_add_u32 s{t1}, s{t0}, {L_DMA + 4*4096}')
        a(f's_mov_b32 m0, s{t1}')
        a(f's_add_u32 s{t2}, s{t0}, {16*1024}')
        a(f'buffer_load_dwordx4 v{tA}, s[{rF}:{rF+3}], s{t2} offen lds')
        a(f'buffer_load_dwordx4 v{tA}, s[{rF}:{rF+3}], s{t2} offen offset:1024 lds')
        a(f's_add_u32 s{t1}, s{t0}, {L_WST}')
        a(f's_mov_b32 m0, s{t1}')
        a('s_nop 0')
        a(f'buffer_load_dwordx4 v{tA}, s[{rF}:{rF+3}], s{t0} offen lds')
        a(f'buffer_load_dwordx4 v{tA}, s[{rF}:{rF+3}], s{t0} offen offset:1024 lds')
        srd(a, rR, sWC, 128)
        a(f'v_lshlrev_b32 v{tE}, 1, v{C4}')
        a(f'buffer_load_ushort v{BC}, v{tE}, s[{rR}:{rR+3}], 0 offen')
        a(f'buffer_load_ushort v{BC+1}, v{tE}, s[{rR}:{rR+3}], 0 offen offset:64')
    staging()
    def lds_init():
        a(f'v_lshlrev_b32 v{tE}, 4, v0')
        for i in range(4):
            a(f'v_mov_b32 v{TR+i}, 0xffff')
        a(f'ds_write_b128 v{tE}, v[{TR}:{TR+3}] offset:{L_ENT}')
        a(f's_cmp_ge_u32 s{sW}, {(ENT_QUADS - 512) // 64}')
        a(f's_cbranch_scc1 K2_I1{tag_i[0]}')
        a(f'ds_write_b128 v{tE}, v[{TR}:{TR+3}] offset:{L_ENT + 512*16}')
        a.label(f'K2_I1{tag_i[0]}')
        assert (ENT_QUADS - 512) % 64 == 0
        for i in range(4):
            a(f'v_mov_b32 v{TR+i}, {L_VIRT}')
        a(f'v_cmp_gt_u32 vcc, {ENT_QUADS // 4}, v0')
        a(f's_and_saveexec_b64 s[{sSV}:{sSV+1}], vcc')
        a(f'ds_write_b128 v{tE}, v[{TR}:{TR+3}] offset:{L_QI}')
        a(f's_mov_b64 exec, s[{sSV}:{sSV+1}]')
        a(f's_cmp_lg_u32 s{sW}, 0')
        a(f's_cbranch_scc1 K2_I2{tag_i[0]}')
        for i in range(4):
            a(f'v_mov_b32 v{TR+i}, 0')
        a(f'ds_write_b128 v{tE}, v[{TR}:{TR+3}] offset:{L_CNT}')
        a(f'v_add_u32 v{tE}, {L_VIRT + 512}, v{tE}')
        a('s_mov_b64 exec, 0xff')
        a(f'ds_write_b128 v{tE}, v[{TR}:{TR+3}]')
        a('s_mov_b64 exec, -1')
        a.label(f'K2_I2{tag_i[0]}')
        tag_i[0] += 1
    tag_i = [0]
    lds_init()
    a(f'v_and_b32 v{tE}, 3, v{vLANE}')
    a(f'v_lshlrev_b32 v{iR4}, 2, v{tE}')
    a(f'v_lshl_add_u32 v{RA}, v{tE}, 3, v{jA}')
    a(f'v_lshrrev_b32 v{tF}, 1, v{jA}')
    a(f'v_lshl_add_u32 v{tE}, v{tE}, 1, v{tF}')
    a(f'v_bfe_u32 v{tF}, v{vLANE}, 2, 1')
    a(f's_lshl_b32 s{t0}, s{sW}, 1')
    a(f'v_add_u32 v{sidR}, s{t0}, v{tF}')
    a(f'v_lshl_add_u32 v{RA}, v{tF}, 2, v{RA}')
    a(f'v_lshrrev_b32 v{tG}, 5, v{vLANE}')
    a(f'v_cmp_eq_u32 vcc, v{tF}, v{tG}')
    a(f'v_xor_b32 v{tE}, v{tE}, v{tG}')
    a(f'v_lshlrev_b32 v{tE}, 4, v{tE}')
    a(f'v_lshl_add_u32 v{RA}, v{RA}, 7, v{tE}')
    a(f'v_mov_b32 v{tF}, 0x3f80')
    a(f'v_cndmask_b32 v{tF}, 0, v{tF}, vcc')
    for q in range(4):
        a(f'v_cmp_eq_u32 vcc, {q}, v{jA}')
        a('s_nop 1')
        a(f'v_cndmask_b32 v{AE[0]+q}, 0, v{tF}, vcc')
        a(f'v_lshlrev_b32 v{AE[1]+q}, 16, v{AE[0]+q}')
    a(f'v_cmp_gt_u32 vcc, 32, v{vLANE}')
    a(f'v_mov_b32 v{tE}, 0x0a0c0100')
    a(f'v_mov_b32 v{tF}, 0x07060100')
    a(f'v_cndmask_b32 v{SEL[0]}, v{tE}, v{tF}, vcc')
    a(f'v_mov_b32 v{tE}, 0x03020a0c')
    a(f'v_mov_b32 v{tF}, 0x03020706')
    a(f'v_cndmask_b32 v{SEL[1]}, v{tE}, v{tF}, vcc')
    a(f's_mov_b32 s{sC}, 0x{C_SCALE:x}')
    a(f's_mov_b32 s{sC+1}, 0x{C_SCALE:x}')
    a(f's_mov_b32 s{s128}, 128')
    a(f's_mov_b32 s{sLO}, 0xffff')
    a(f's_mov_b32 s{sHI}, 0xffff0000')
    a(f'v_and_b32 v{tB}, 15, v{vLANE}')
    a(f'v_lshlrev_b32 v{tB}, 3, v{tB}')
    a(f'v_lshlrev_b32 v{C4}, 2, v{C4}')
    a('s_waitcnt vmcnt(0) lgkmcnt(0)')
    stamp(1)
    a('s_barrier')
    srd(a, rR, sWS, NBK * RECB)
    def rec_loads(vk8, nit):
        for it in range(8):
            a(f'v_mad_u32_u24 v{RK+it}, v{SG+it}, 8, v{vk8}')
        for it in range(nit):
            a(f's_mov_b64 exec, s[{MK+2*it}:{MK+2*it+1}]')
            off = ' offset:128' if it >= 8 else ''
            sk = a.newlabel('skl') if (it >= 8 and opts.get('skipb', 1)) else None
            if sk: a(f's_cbranch_execz {sk}')
            a(f'buffer_load_dwordx2 v[{REC+2*it}:{REC+2*it+1}], v{RK+it%8}, s[{rR}:{rR+3}], 0 offen{off}')
            if sk: a.label(sk)
        a('s_mov_b64 exec, -1')
    a(f'v_lshrrev_b32 v{tC}, 3, v{tB}')
    a(f'v_add_u32 v{tD}, 16, v{tC}')
    for it in range(8):
        a(f'v_cmp_gt_u32_sdwa s[{MK+2*it}:{MK+2*it+1}], v{SG+it}, v{tC} src0_sel:BYTE_3 src1_sel:DWORD')
    for it in range(8):
        a(f'v_cmp_gt_u32_sdwa s[{MK+16+2*it}:{MK+16+2*it+1}], v{SG+it}, v{tD} src0_sel:BYTE_3 src1_sel:DWORD')
    stamp(25)
    rec_loads(tB, 16)
    stamp(26)
    a(f'v_max3_u32 v{tD}, v{SG}, v{SG+1}, v{SG+2}')
    a(f'v_max3_u32 v{tD}, v{tD}, v{SG+3}, v{SG+4}')
    a(f'v_max3_u32 v{tD}, v{tD}, v{SG+5}, v{SG+6}')
    a(f'v_max_u32 v{tD}, v{tD}, v{SG+7}')
    a(f'v_lshrrev_b32 v{tD}, 24, v{tD}')
    a(f'v_cmp_lt_u32 s[{sSV2}:{sSV2+1}], 32, v{tD}')
    a(f's_mov_b64 s[{MKC}:{MKC+1}], 0')
    a(f's_cmp_lg_u64 s[{sSV2}:{sSV2+1}], 0')
    a('s_cbranch_scc1 K2_CSEL')
    a.label('K2_CBACK')

    def gemm_issue():
        a(f's_lshr_b32 s{t0}, s{sW}, 1')
        a(f's_lshl_b32 s{t1}, s{t0}, 12')
        a(f's_add_u32 s{t1}, s{t1}, {L_DMA}')
        a(f'v_add_u32 v{tA}, s{t1}, v{RA}')
        a(f'v_xor_b32 v{tB}, 32, v{tA}')
        a(f'ds_read_b128 v[{AX}:{AX+3}], v{tA}')
        a(f'ds_read_b128 v[{AX+4}:{AX+7}], v{tB}')
        a(f'v_xor_b32 v{tB}, 64, v{tA}')
        a(f'v_xor_b32 v{tC}, 96, v{tA}')
        a(f'ds_read_b128 v[{AX+8}:{AX+11}], v{tB}')
        a(f'ds_read_b128 v[{AX+12}:{AX+15}], v{tC}')
        a(f's_and_b32 s{t2}, s{sW}, 1')
        a(f's_lshl_b32 s{t3}, s{t2}, 13')
        a(f's_add_u32 s{t3}, s{t3}, {L_DMA + 4*4096}')
        a(f'v_lshlrev_b32 v{GF}, 4, v{vLANE}')
        a(f'v_add_u32 v{GF}, s{t3}, v{GF}')
        for f in range(4):
            a(f'ds_read_b128 v[{SG+4*f}:{SG+4*f+3}], v{GF} offset:{f*1024}')
        for f in range(4):
            a(f'ds_read_b128 v[{RK+4*f}:{RK+4*f+3}], v{GF} offset:{(4+f)*1024}')
        a(f's_mul_i32 s{t1}, s{t0}, {32*ROWB}')
        a(f's_lshl_b32 s{t3}, s{t2}, 7')
        a(f's_add_u32 s{t1}, s{t1}, s{t3}')
        a(f's_add_u32 s{t1}, s{t1}, {L_ACC + 512}')
        a(f'v_lshrrev_b32 v{GD}, 5, v{vLANE}')
        a(f'v_mul_u32_u24 v{GD}, {4*ROWB}, v{GD}')
        a(f'v_add3_u32 v{GD}, v{GD}, v{C4}, s{t1}')
    def gemm_mid():
        a('s_waitcnt lgkmcnt(0)')
        for kp in range(4):
            c = '0' if kp == 0 else f'v[{GA}:{GA+15}]'
            a(f'v_mfma_f32_32x32x16_bf16 v[{GA}:{GA+15}], v[{AX+4*kp}:{AX+4*kp+3}], v[{SG+4*kp}:{SG+4*kp+3}], {c}')
            c = '0' if kp == 0 else f'v[{HA}:{HA+15}]'
            a(f'v_mfma_f32_32x32x16_bf16 v[{HA}:{HA+15}], v[{AX+4*kp}:{AX+4*kp+3}], v[{RK+4*kp}:{RK+4*kp+3}], {c}')
    def gemm_mid2():
        a('s_nop 7')
        a('s_nop 3')
    def w_frags():
        a(f'v_lshlrev_b32 v{GF}, 4, v{vLANE}')
        a(f'v_add_u32 v{GF}, {L_WST}, v{GF}')
        for f in range(16):
            dst = (WB + 4*f) if f < 8 else (WV + 4*(f-8))
            if f == 12: a('s_waitcnt lgkmcnt(8)')
            a(f'ds_read_b128 v[{dst}:{dst+3}], v{GF} offset:{f*1024}')
    def gemm_store(tag):
        for i in range(16):
            a(f'v_cvt_pk_bf16_f32 v{GA+i}, v{GA+i}, v{HA+i}')
        a(f's_lshr_b32 s{t0}, s{sW}, 1')
        a(f's_cmp_eq_u32 s{t0}, 3')
        a(f's_cbranch_scc1 K2_RT3{tag}')
        for vv in range(16):
            if vv == 12: a('s_waitcnt lgkmcnt(8)')
            a(f'ds_write_b32 v{GD}, v{GA+vv} offset:{(8*(vv//4) + vv%4) * ROWB}')
        a(f's_branch K2_RTD{tag}')
        a.label(f'K2_RT3{tag}')
        a('s_mov_b32 exec_hi, 0')
        for vv in range(2):
            a(f'ds_write_b32 v{GD}, v{GA+vv} offset:{vv * ROWB}')
        a('s_mov_b64 exec, -1')
        a.label(f'K2_RTD{tag}')
    def consts():
        a(f'v_add_u32 v{RA}, s{sDB}, v{RA}')
        for kp in range(1, 4):
            a(f'v_xor_b32 v{RA+kp}, {32*kp}, v{RA}')
        a(f's_mov_b32 s{t3}, 0x{LOG2E:x}')
        for cc in range(2):
            a(f'v_lshlrev_b32 v{BC+cc}, 16, v{BC+cc}')
            a(f'v_mul_f32 v{BC+cc}, s{t3}, v{BC+cc}')
        a(f'v_cvt_pk_bf16_f32 v{BC}, 0, v{BC}')
        a(f'v_cvt_pk_bf16_f32 v{BC+1}, v{BC+1}, 0')
        a(f'v_cmp_gt_u32 vcc, 32, v{vLANE}')
        a(f'v_mov_b32 v{tG}, 0xb2000000')
        a(f'v_mov_b32 v{tH}, 0xb200')
        a(f'v_cndmask_b32 v{BC}, v{tG}, v{BC}, vcc')
        a(f'v_cndmask_b32 v{BC+1}, v{tH}, v{BC+1}, vcc')

    def hist():
        a(f'v_mov_b32 v{tE}, 1')
        for it in range(NIT):
            if it == 12: a('s_waitcnt lgkmcnt(8)')
            a(f's_mov_b64 exec, s[{MK+2*it}:{MK+2*it+1}]')
            sk = a.newlabel('skh') if (it >= 8 and opts.get('skipb', 1)) else None
            if sk: a(f's_cbranch_execz {sk}')
            a(f'ds_add_rtn_u32 v{RK+it}, v{REC+2*it+1}, v{tE} offset:{L_CNT}')
            if sk: a.label(sk)
        sk = a.newlabel('skhc')
        a(f's_mov_b64 exec, s[{MKC}:{MKC+1}]')
        a(f's_cbranch_execz {sk}')
        a(f'ds_add_rtn_u32 v{RKC}, v{RC+1}, v{tE} offset:{L_CNT}')
        a.label(sk)
        a('s_mov_b64 exec, -1')

    def scan_nodes(tag, mid=None):
        a(f'v_lshlrev_b32 v{tA}, 3, v{vLANE}')
        a(f'ds_read_b64 v[{TQ}:{TQ+1}], v{tA} offset:{L_CNT}')
        a(f'v_mul_u32_u24 v{nROW0}, {2*ROWB}, v{vLANE}')
        a(f'v_add_u32 v{nROW0}, {L_ACC}, v{nROW0}')
        if mid: mid()
        else: a('s_waitcnt lgkmcnt(0)')
        a(f'v_add_u32 v{tE}, 3, v{TQ}')
        a(f'v_add_u32 v{tF}, 3, v{TQ+1}')
        a(f'v_and_b32 v{tE}, -4, v{tE}')
        a(f'v_and_b32 v{tF}, -4, v{tF}')
        a(f'v_add_u32 v{tC}, v{tE}, v{tF}')
        a(f'v_max_u32 v{tB}, v{tE}, v{tF}')
        a(f'v_mov_b32 v{tD}, v{tC}')
        wave_scan(a, 'v_add_u32', tD)
        a(f'v_sub_u32 v{nOFF0}, v{tD}, v{tC}')
        a(f'v_readlane_b32 s{t1}, v{tD}, 63')
        a(f'v_add_u32 v{nOFF1}, v{nOFF0}, v{tE}')
        a(f'v_lshlrev_b32 v{TQ+2}, 2, v{nOFF0}')
        a(f'v_lshlrev_b32 v{TQ+3}, 2, v{nOFF1}')
        a(f'ds_write_b64 v{tA}, v[{TQ+2}:{TQ+3}] offset:{L_TAB}')
        a(f'v_mov_b32 v{nEND0}, v{nOFF1}')
        a(f'v_add_u32 v{nEND1}, v{nOFF1}, v{tF}')
        a(f's_add_u32 s{t1}, s{t1}, 127')
        a(f's_lshr_b32 s{t1}, s{t1}, 7')
        a(f's_lshr_b32 s{t0}, s{t1}, 1')
        a(f's_sub_u32 s{t1}, s{t1}, s{t0}')
        a(f's_lshl_b32 s{sLA}, s{t1}, 2')
        a(f's_lshl_b32 s{sLB}, s{t0}, 2')
        a(f's_sub_u32 s{sSO}, s{sLA}, s{sLB}')
        a(f's_lshl_b32 s{sSO}, s{sSO}, 3')
        a(f's_cmp_lt_u32 s{sW}, 4')
        a(f's_cselect_b32 s{sL}, s{sLA}, s{sLB}')
        a(f's_cselect_b32 s{sSO}, 0, s{sSO}')
        a(f's_lshr_b32 s{sCNT}, s{sL}, 2')
        a(f's_sub_u32 s{sCNT}, s{sCNT}, 1')
    def qi_fill(tag, split):
        B0 = TQ + 2; B1 = TQ + 3; V0 = TR + 1; V1 = TR + 2
        a(f'v_max_u32 v{TR}, v{tE}, v{tF}')
        if split:
            a(f'v_cvt_f32_u32 v{tA}, s{sLA}')
            a(f'v_cvt_f32_u32 v{tD}, s{sLB}')
            a(f'v_rcp_f32 v{tA}, v{tA}')
            a(f'v_rcp_f32 v{tD}, v{tD}')
            a(f's_lshl_b32 s{t0}, s{sLA}, 5')
            a(f's_sub_u32 s{t1}, s{sLA}, s{sLB}')
            a(f's_lshl_b32 s{t1}, s{t1}, 5')
            a(f'v_mul_f32 v{tA}, 0.25, v{tA}')
            a(f'v_mul_f32 v{tD}, 0.25, v{tD}')
            for (OFF, nx, B, Vv) in ((nOFF0, tB, B0, V0), (nOFF1, tC, B1, V1)):
                a(f'v_cmp_gt_u32 vcc, s{t0}, v{OFF}')
                a(f'v_subrev_u32 v{tG}, s{t1}, v{OFF}')
                a('s_nop 0')
                a(f'v_cndmask_b32 v{tG}, v{tG}, v{OFF}, vcc')
                a(f'v_cndmask_b32 v{tH}, v{tD}, v{tA}, vcc')
                a(f'v_cvt_f32_u32 v{tG}, v{tG}')
                a(f'v_add_f32 v{tG}, 2.0, v{tG}')
                a(f'v_mul_f32 v{tG}, v{tH}, v{tG}')
                a(f'v_cvt_u32_f32 v{nx}, v{tG}')
                a(f'v_add_u32 v{nx}, 1, v{nx}')
                a(f'v_mov_b32 v{tG}, s{sLB}')
                a(f'v_mov_b32 v{tH}, s{sLA}')
                a(f'v_cndmask_b32 v{tG}, v{tG}, v{tH}, vcc')
                a(f'v_mov_b32 v{tH}, s{t1}')
                a(f'v_cndmask_b32 v{tH}, v{tH}, 0, vcc')
                a(f'v_lshlrev_b32 v{tG}, 2, v{tG}')
                a(f'v_mad_u32_u24 v{B}, v{nx}, v{tG}, v{tH}')
            a(f's_movk_i32 s{t1}, {VROWB}')
            a(f'v_mov_b32 v{tD}, {L_VIRT}')
            a(f'v_mad_u32_u24 v{V0}, v{tB}, s{t1}, v{tD}')
            a(f'v_mad_u32_u24 v{V1}, v{tC}, s{t1}, v{tD}')
            a(f'v_add_u32 v{tD}, {ROWB}, v{nROW0}')
            for nd, (B, Vv, END, nx) in enumerate(((B0, V0, nEND0, tB), (B1, V1, nEND1, tC))):
                lab = a.newlabel('nosplit')
                a(f'v_lshrrev_b32 v{tG}, 1, v{nx}')
                a(f'v_cmp_lt_u32 vcc, v{B}, v{END}')
                a(f'v_cmp_eq_u32 s[{sSV}:{sSV+1}], s{sW}, v{tG}')
                a(f's_and_b64 vcc, vcc, s[{sSV}:{sSV+1}]')
                a(f's_cbranch_scc0 {lab}')
                lp = a.newlabel('splitlp')
                a.label(lp)
                a(f's_ff1_i32_b64 s{t0}, vcc')
                a(f's_bitset0_b64 vcc, s{t0}')
                a(f'v_readlane_b32 s{t2}, v{nROW0 if nd == 0 else tD}, s{t0}')
                a(f'v_readlane_b32 s{t3}, v{Vv}, s{t0}')
                a(f'v_lshrrev_b32 v{tG}, 0, v{C4}')
                a('s_mov_b32 exec_hi, 0')
                a(f'v_add_u32 v{tH}, s{t2}, v{tG}')
                a(f'ds_read_b32 v{tI}, v{tH} offset:512')
                a(f'v_add_u32 v{tH}, s{t3}, v{tG}')
                a(f'v_mov_b32 v{tG}, s{t2}')
                a(f'v_mov_b32 v{tA}, s{t3}')
                a(f'ds_write_b32 v{tG}, v{tA} offset:768')
                a('s_waitcnt lgkmcnt(1)')
                a(f'ds_write_b32 v{tH}, v{tI} offset:512')
                a('s_mov_b64 exec, -1')
                a(f's_cmp_lg_u64 vcc, 0')
                a(f's_cbranch_scc1 {lp}')
                a.label(lab)
        a(f's_lshl_b32 s{t0}, s{sW}, 2')
        a(f'v_add_u32 v{tA}, s{t0}, v{nOFF0}')
        a(f'v_add_u32 v{tB}, s{t0}, v{nOFF1}')
        a(f'v_add_u32 v{tC}, {ROWB}, v{nROW0}')
        lp = f'K2_QF{tag}'
        a.label(lp)
        a(f's_add_u32 s{t1}, s{t0}, 4')
        a(f'v_cmp_eq_u32 s[{sSV}:{sSV+1}], s{t1}, v{tE}')
        a(f'v_cmp_eq_u32 s[{sSV2}:{sSV2+1}], s{t1}, v{tF}')
        if split:
            a(f'v_add_u32 v{tG}, 4, v{tA}')
            a(f'v_add_u32 v{tH}, 4, v{tB}')
            a(f'v_cmp_eq_u32 vcc, v{tG}, v{B0}')
            a(f's_or_b64 s[{sSV}:{sSV+1}], s[{sSV}:{sSV+1}], vcc')
            a(f'v_cmp_eq_u32 vcc, v{tH}, v{B1}')
            a(f's_or_b64 s[{sSV2}:{sSV2+1}], s[{sSV2}:{sSV2+1}], vcc')
            a(f'v_cmp_ge_u32 vcc, v{tA}, v{B0}')
            a('s_nop 1')
            a(f'v_cndmask_b32 v{tG}, v{nROW0}, v{V0}, vcc')
            a(f'v_cmp_ge_u32 vcc, v{tB}, v{B1}')
            a('s_nop 1')
            a(f'v_cndmask_b32 v{tH}, v{tC}, v{V1}, vcc')
        else:
            a(f'v_mov_b32 v{tG}, v{nROW0}')
            a(f'v_mov_b32 v{tH}, v{tC}')
        a(f'v_or_b32 v{tD}, 0x80000000, v{tG}')
        a(f'v_or_b32 v{tI}, 0x80000000, v{tH}')
        a(f'v_cmp_lt_u32 vcc, s{t0}, v{tE}')
        a(f'v_cndmask_b32 v{tG}, v{tG}, v{tD}, s[{sSV}:{sSV+1}]')
        a(f'v_cndmask_b32 v{tH}, v{tH}, v{tI}, s[{sSV2}:{sSV2+1}]')
        a(f'v_cmp_lt_u32 s[{sSV}:{sSV+1}], s{t0}, v{tF}')
        a('s_mov_b64 exec, vcc')
        a(f'ds_write_b32 v{tA}, v{tG} offset:{L_QI}')
        a(f's_mov_b64 exec, s[{sSV}:{sSV+1}]')
        a(f'ds_write_b32 v{tB}, v{tH} offset:{L_QI}')
        a('s_mov_b64 exec, -1')
        a(f's_add_u32 s{t0}, s{t0}, 32')
        a(f'v_add_u32 v{tA}, 32, v{tA}')
        a(f'v_add_u32 v{tB}, 32, v{tB}')
        a(f'v_cmp_lt_u32 vcc, s{t0}, v{TR}')
        a(f's_cbranch_vccnz {lp}')
    def scatter():
        a('s_waitcnt lgkmcnt(0)')
        for it in range(8):
            a(f's_mov_b64 exec, s[{MK+2*it}:{MK+2*it+1}]')
            a(f'ds_read_b32 v{AX+it}, v{REC+2*it+1} offset:{L_TAB}')
        for it in range(8):
            a(f's_mov_b64 exec, s[{MK+2*it}:{MK+2*it+1}]')
            a('s_waitcnt lgkmcnt(7)')
            a(f'v_lshl_add_u32 v{AX+it}, v{RK+it}, 2, v{AX+it}')
            a(f'ds_write_b32 v{AX+it}, v{REC+2*it} offset:{L_ENT}')
        for it in range(8, 16):
            sk = a.newlabel('sks')
            a(f's_mov_b64 exec, s[{MK+2*it}:{MK+2*it+1}]')
            if opts.get('skipb', 1): a(f's_cbranch_execz {sk}')
            a(f'ds_read_b32 v{AX+it}, v{REC+2*it+1} offset:{L_TAB}')
            a('s_waitcnt lgkmcnt(0)')
            a(f'v_lshl_add_u32 v{AX+it}, v{RK+it}, 2, v{AX+it}')
            a(f'ds_write_b32 v{AX+it}, v{REC+2*it} offset:{L_ENT}')
            a.label(sk)
        sk = a.newlabel('sksc')
        a(f's_mov_b64 exec, s[{MKC}:{MKC+1}]')
        a(f's_cbranch_execz {sk}')
        a(f'ds_read_b32 v{tJ}, v{RC+1} offset:{L_TAB}')
        a('s_waitcnt lgkmcnt(0)')
        a(f'v_lshl_add_u32 v{tJ}, v{RKC}, 2, v{tJ}')
        a(f'ds_write_b32 v{tJ}, v{RC} offset:{L_ENT}')
        a.label(sk)
        a('s_mov_b64 exec, -1')

    def setup_ptrs():
        a(f'v_add_u32 v{tB}, s{sSO}, v{jA}')
        a(f'v_mad_u32_u24 v{tA}, v{sidA}, s{sL}, v{tB}')
        a(f'v_lshlrev_b32 v{pEN}, 4, v{tA}')
        a(f'ds_read_b128 v[{EN}:{EN+3}], v{pEN} offset:{L_ENT}')
        a(f'v_lshlrev_b32 v{pQF}, 2, v{tA}')
        a(f'v_sub_u32 v{pQI}, v{tA}, v{jA}')
        a(f'v_lshlrev_b32 v{pQI}, 2, v{pQI}')
        a(f'v_add_u32 v{pQI}, {L_QI}, v{pQI}')
        a(f'v_mad_u32_u24 v{tA}, v{sidR}, s{sL}, v{tB}')
        a(f'v_lshl_add_u32 v{pEE}, v{tA}, 4, v{iR4}')
        a(f's_mov_b32 m0, s{sDB}')

    def dma_addr():
        return [f'v_mad_u32_u16 v{EN+i}, v{EN+i}, s{s128}, v{CO+i}' for i in range(4)]
    def dma_issue():
        if opts.get('nodma'): return []
        return [f'buffer_load_dwordx4 v{EN+i}, s[{rX}:{rX+3}], 0 offen offset:{1024*i} lds' if i else
                f'buffer_load_dwordx4 v{EN}, s[{rX}:{rX+3}], 0 offen lds' for i in range(4)]

    def main_loop(tag, atomic):
        flush_blocks = []
        PS = [(PP, TT_, ZZ), (PB, TB, ZB)]
        def flush_body(par, j):
            a(f's_bfe_i32 exec_lo, s{sF[par]}, 0x{(1<<16)|(8*j):x}')
            a(f's_bfe_i32 exec_hi, s{sF[par]+1}, 0x{(1<<16)|(8*j):x}')
            a(f'v_add_f32 v{F0}, v{DEN}, v{DEN+1}')
            a(f'v_add_f32 v{F1}, v{NUM}, v{NUM+1}')
            a(f'v_add_f32 v{F2}, v{DEN+2}, v{DEN+3}')
            a(f'v_add_f32 v{F3}, v{NUM+2}, v{NUM+3}')
            a(f'v_mov_b64 v[{DEN}:{DEN+1}], 0')
            a(f'v_mov_b64 v[{NUM}:{NUM+1}], 0')
            if atomic:
                a(f'ds_add_f32 v{QA[par]+j}, v{F0}')
                a(f'ds_add_f32 v{QA[par]+j}, v{F1} offset:256')
                a(f'ds_add_f32 v{QA[par]+j}, v{F2} offset:128')
                a(f'ds_add_f32 v{QA[par]+j}, v{F3} offset:384')
            else:
                a(f'ds_write2_b32 v{QA[par]+j}, v{F0}, v{F1} offset0:0 offset1:64')
                a(f'ds_write2_b32 v{QA[par]+j}, v{F2}, v{F3} offset0:32 offset1:96')
            a(f'v_mov_b64 v[{DEN+2}:{DEN+3}], 0')
            a(f'v_mov_b64 v[{NUM+2}:{NUM+3}], 0')
            a('s_mov_b64 exec, -1')
        def post2(par):
            for j in range(4):
                for cc in range(2):
                    p, t, z = (r + 2*j for r in PS[cc])
                    a(f'v_pk_fma_f32 v[{NUM+2*cc}:{NUM+2*cc+1}], v[{p}:{p+1}], v[{t}:{t+1}], v[{NUM+2*cc}:{NUM+2*cc+1}]')
                    a(f'v_pk_fma_f32 v[{DEN+2*cc}:{DEN+2*cc+1}], v[{p}:{p+1}], v[{z}:{z+1}], v[{DEN+2*cc}:{DEN+2*cc+1}]')
                if opts.get('noflush'): continue
                fl = a.newlabel('fl'); back = a.newlabel('bk')
                a(f's_bitcmp1_b32 s{sANY[par]}, {8*j}')
                a(f's_cbranch_scc1 {fl}')
                a.label(back)
                flush_blocks.append((fl, back, par, j))
        def pre(cur):
            g0 = G_[cur]; h0 = H_[cur]; P_, T_, Z_ = PS[cur]
            for j in range(4):
                g = g0 + 4*j
                a(f'v_pk_fma_f32 v[{g}:{g+1}], v[{g}:{g+1}], s[{sC}:{sC+1}], s[{sC}:{sC+1}] clamp')
                a(f'v_pk_fma_f32 v[{g+2}:{g+3}], v[{g+2}:{g+3}], s[{sC}:{sC+1}], s[{sC}:{sC+1}] clamp')
            for j in range(4):
                g = g0 + 4*j; h = h0 + 4*j
                X = f'v[{g}:{g+1}]'; Y = f'v[{g+2}:{g+3}]'
                p = P_ + 2*j; t = T_ + 2*j; z = Z_ + 2*j
                a(f'v_pk_mul_f32 v[{t}:{t+1}], {Y}, v[{h}:{h+1}]')
                a(f'v_pk_mul_f32 v[{p}:{p+1}], {X}, {Y}')
                a(f'v_pk_add_f32 v[{z}:{z+1}], {X}, {Y}')
                a(f'v_pk_fma_f32 v[{t}:{t+1}], {X}, v[{h+2}:{h+3}], v[{t}:{t+1}]')
        def mfma_list(nxt, cc):
            Gs = f'v[{G_[nxt]}:{G_[nxt]+15}]'; Hs = f'v[{H_[nxt]}:{H_[nxt]+15}]'
            out = []
            for kp in range(4):
                wb = WB + 16*cc + 4*kp; wv = WV + 16*cc + 4*kp; ax = AX + 4*kp
                out.append(f'v_mfma_f32_32x32x16_bf16 {Hs}, v[{ax}:{ax+3}], v[{wv}:{wv+3}], {"0" if kp == 0 else Hs}')
                out.append(f'v_mfma_f32_32x32x16_bf16 {Gs}, v[{ax}:{ax+3}], v[{wb}:{wb+3}], {"0" if kp == 0 else Gs}')
            out.append(f'v_mfma_f32_32x32x16_bf16 {Gs}, v[{AE[cc]}:{AE[cc]+3}], v[{BE}:{BE+3}], {Gs}')
            return out
        def trans_list(cur):
            Pp = PS[cur ^ 1][0]
            return [f'v_rcp_f32 v{Pp+i}, v{Pp+i}' for i in range(8)] + [f'v_exp_f32 v{G_[cur]+i}, v{G_[cur]+i}' for i in range(16)]
        def weave(mf, tr, gaps):
            dist = [3, 3, 3, 3, 3, 3, 2, 2, 2]
            if opts.get('nogaps'): gaps = {}
            if opts.get('nomf'): mf = None
            k = 0
            for m in range(9):
                for ins in gaps.get(('m', m), []): a(ins)
                if mf: a(mf[m])
                for _ in range(dist[m]):
                    a(tr[k])
                    for ins in gaps.get(k, []): a(ins)
                    k += 1
            assert k == len(tr)
        def stage0(par):
            g = {}
            da = dma_addr()
            g[0] = [f'ds_read_b32 v{QF}, v{pQF} offset:{L_QI + 16*(par+1)}']
            g[1] = [f'ds_read_b32 v{EE}, v{pEE} offset:{L_ENT + 64*(par+1)}']
            g[3] = [f'v_and_or_b32 v{BE}, v{R0}, s{sHI}, v{BC+1}']
            g[6] = [da[0]]; g[9] = [da[1]]; g[12] = [da[2]]; g[15] = [da[3]]
            axr = [f'ds_read_b128 v[{AX+4*kp}:{AX+4*kp+3}], v{RA+kp}' for kp in range(4)]
            early = opts.get('axearly', 0)
            if early:
                for kp, gp in enumerate(opts.get('axgaps', (8, 11, 17, 21))):
                    g.setdefault(gp, [])
                    g[gp] = g[gp] + ((['s_waitcnt vmcnt(0)'] if kp == 0 else []) + [axr[kp]])
            weave(mfma_list(1, 1), trans_list(0), g)
            axpre = opts.get('axpre', 1)
            if axpre and not early and not opts.get('nogaps'):
                a('s_waitcnt vmcnt(0)')
                for ins in axr: a(ins)
            post2(par ^ 1)
            qn = QA[par ^ 1]
            if not opts.get('nogaps'):
                a(f'ds_read_b128 v[{qn}:{qn+3}], v{pQI} offset:{16*(par+1)}')
                if not early and not axpre:
                    a('s_waitcnt vmcnt(0)')
                    for ins in axr: a(ins)
            pre(0)
            a(f's_sub_u32 s{sCNT}, s{sCNT}, 1')
        def stage1(par):
            qn = QA[par ^ 1]
            g = {}
            di = dma_issue()
            g[('m', 0)] = ['s_waitcnt lgkmcnt(0)']
            g[0] = [f'v_mad_u32_u24 v{qn}, v{qn}, 1, v{C4}'] + di[0:1]
            g[1] = [f'v_mad_u32_u24 v{qn+1}, v{qn+1}, 1, v{C4}'] + di[1:2]
            g[2] = [f'ds_read_b32 v{R0}, v{qn} offset:512'] + di[2:3]
            g[3] = [f'v_mad_u32_u24 v{qn+2}, v{qn+2}, 1, v{C4}', f'ds_read_b32 v{BE+1}, v{qn+1} offset:512'] + di[3:4]
            g[4] = [f'v_mad_u32_u24 v{qn+3}, v{qn+3}, 1, v{C4}', f'ds_read_b32 v{BE+2}, v{qn+2} offset:512']
            g[5] = [f'ds_read_b32 v{BE+3}, v{qn+3} offset:512']
            g[6] = [f'ds_read_b128 v[{EN}:{EN+3}], v{pEN} offset:{L_ENT + 64*(par+3)}']
            g[7] = [f'v_perm_b32 v{AE[0]}, v{EE}, v{AE[0]}, v{SEL[0]}']
            g[9] = [f'v_perm_b32 v{AE[1]}, v{EE}, v{AE[1]}, v{SEL[1]}']
            g[11] = [f'v_cmp_gt_i32 s[{sF[par^1]}:{sF[par^1]+1}], 0, v{QF}']
            if par == 1:
                g[13] = [f'v_add_u32 v{pQI}, 32, v{pQI}']
                g[14] = [f'v_add_u32 v{pQF}, 32, v{pQF}']
                g[15] = [f'v_add_u32 v{pEE}, 128, v{pEE}']
                g[16] = [f'v_add_u32 v{pEN}, 128, v{pEN}']
            g[17] = [f's_or_b32 s{sANY[par^1]}, s{sF[par^1]}, s{sF[par^1]+1}'] if not opts.get('noany') else [f's_mov_b32 s{sANY[par^1]}, 0']
            g[19] = ['s_waitcnt lgkmcnt(0)', f'v_and_or_b32 v{BE}, v{R0}, s{sLO}, v{BC}']
            weave(mfma_list(0, 0), trans_list(1), g)
            pre(1)
        def last_stage1(par):
            weave(None, trans_list(1), {})
            pre(1)
            for i in range(8):
                a(f'v_rcp_f32 v{PB+i}, v{PB+i}')
            a('s_nop 0')
            post2(par)
        L0 = f'K2_T0{tag}'; E0 = f'K2_E0{tag}'; E1 = f'K2_E1{tag}'; DONE = f'K2_MD{tag}'
        PR = opts.get('prio', 1)
        if PR:
            a(f's_add_u32 s{t0}, s{sCNT}, 1')
            a(f's_mul_i32 s{t0}, s{t0}, {opts.get("pfrac", 20)}')
            a(f's_lshr_b32 s{t0}, s{t0}, 6')
            a(f's_lshl_b32 s{t0}, s{t0}, 1')
            a(f's_sub_u32 s{sSWAP}, s{sCNT}, s{t0}')
            a(f's_cmp_ge_u32 s{sW}, 4')
            a(f's_cbranch_scc0 K2_PR0{tag}')
            a('s_setprio 1')
            a.label(f'K2_PR0{tag}')
        if PR == 3:
            a(f's_cmp_ge_u32 s{sW}, 4')
            a(f's_cselect_b32 s{sSWAP}, 1, 0')
        a.label(L0)
        if PR == 3:
            a(f's_xor_b32 s{sSWAP}, s{sSWAP}, 1')
            a(f's_cbranch_scc1 K2_PH{tag}')
            a('s_setprio 0')
            a(f's_branch K2_PD{tag}')
            a.label(f'K2_PH{tag}')
            a('s_setprio 1')
            a.label(f'K2_PD{tag}')
        elif PR:
            a(f's_cmp_eq_u32 s{sCNT}, s{sSWAP}')
            a(f's_cbranch_scc1 K2_SWP{tag}')
            a.label(f'K2_SWB{tag}')
        stage0(0)
        a(f's_cbranch_scc1 {E0}')
        stage1(0)
        stage0(1)
        a(f's_cbranch_scc1 {E1}')
        stage1(1)
        a(f's_branch {L0}')
        a.label(E0)
        last_stage1(0)
        a(f's_branch {DONE}')
        a.label(E1)
        last_stage1(1)
        a(f's_branch {DONE}')
        if PR and PR != 3:
            a.label(f'K2_SWP{tag}')
            a(f's_cmp_ge_u32 s{sW}, 4')
            a(f's_cbranch_scc1 K2_SW0{tag}')
            a('s_setprio 1')
            a(f's_branch K2_SWB{tag}')
            a.label(f'K2_SW0{tag}')
            a('s_setprio 0')
            a(f's_branch K2_SWB{tag}')
        for (fl, back, par, j) in flush_blocks:
            a.label(fl)
            flush_body(par, j)
            a(f's_branch {back}')
        a.label(DONE)
        if PR: a('s_setprio 0')

    def pipeline_fill():
        q0 = QA[0]
        a(f'ds_read_b128 v[{q0}:{q0+3}], v{pQI}')
        a(f'ds_read_b32 v{QF}, v{pQF} offset:{L_QI}')
        a(f'ds_read_b32 v{EE}, v{pEE} offset:{L_ENT}')
        a(f'ds_read_b128 v[{EN}:{EN+3}], v{pEN} offset:{L_ENT + 64}')
        for i in range(2):
            a(f'v_mov_b64 v[{DEN+2*i}:{DEN+2*i+1}], 0')
            a(f'v_mov_b64 v[{NUM+2*i}:{NUM+2*i+1}], 0')
        for i in range(8):
            a(f'v_mov_b32 v{PP+i}, 1.0')
            a(f'v_mov_b32 v{PB+i}, 1.0')
        for i in range(4):
            a(f'v_mov_b64 v[{TT_+2*i}:{TT_+2*i+1}], 0')
            a(f'v_mov_b64 v[{ZZ+2*i}:{ZZ+2*i+1}], 0')
            a(f'v_mov_b64 v[{TB+2*i}:{TB+2*i+1}], 0')
            a(f'v_mov_b64 v[{ZB+2*i}:{ZB+2*i+1}], 0')
        a(f's_mov_b32 s{sANY[1]}, 0')
        a('s_waitcnt lgkmcnt(0)')
        for q in range(4):
            a(f'v_mad_u32_u24 v{q0+q}, v{q0+q}, 1, v{C4}')
        a(f'ds_read_b32 v{R0}, v{q0} offset:512')
        for q in range(1, 4):
            a(f'ds_read_b32 v{BE+q}, v{q0+q} offset:512')
        a(f'v_perm_b32 v{AE[0]}, v{EE}, v{AE[0]}, v{SEL[0]}')
        a(f'v_perm_b32 v{AE[1]}, v{EE}, v{AE[1]}, v{SEL[1]}')
        a(f'v_cmp_gt_i32 s[{sF[0]}:{sF[0]+1}], 0, v{QF}')
        for ins in dma_addr(): a(ins)
        stamp(21)
        a('s_waitcnt vmcnt(0)')
        stamp(22)
        for kp in range(4):
            a(f'ds_read_b128 v[{AX+4*kp}:{AX+4*kp+3}], v{RA+kp}')
        a(f's_or_b32 s{sANY[0]}, s{sF[0]}, s{sF[0]+1}')
        a('s_waitcnt lgkmcnt(0)')
        a(f'v_and_or_b32 v{BE}, v{R0}, s{sLO}, v{BC}')
        for ins in dma_issue(): a(ins)
        a(f'ds_read_b128 v[{EN}:{EN+3}], v{pEN} offset:{L_ENT + 128}')
        Gs = f'v[{GA}:{GA+15}]'; Hs = f'v[{HA}:{HA+15}]'
        for kp in range(4):
            a(f'v_mfma_f32_32x32x16_bf16 {Hs}, v[{AX+4*kp}:{AX+4*kp+3}], v[{WV+4*kp}:{WV+4*kp+3}], {"0" if kp == 0 else Hs}')
            a(f'v_mfma_f32_32x32x16_bf16 {Gs}, v[{AX+4*kp}:{AX+4*kp+3}], v[{WB+4*kp}:{WB+4*kp+3}], {"0" if kp == 0 else Gs}')
        a(f'v_mfma_f32_32x32x16_bf16 {Gs}, v[{AE[0]}:{AE[0]+3}], v[{BE}:{BE+3}], {Gs}')
        a('s_waitcnt lgkmcnt(0)')
        a('s_nop 7')
        a('s_nop 3')
    def forced_flags():
        a(f's_sub_u32 s{t1}, s{sL}, 1')
        a(f's_lshl_b32 s{t1}, s{t1}, 2')
        a(f'v_add_u32 v{tB}, s{t1}, v{pQI}')
        a(f'v_mov_b32 v{tA}, 0x80000000')
        a('s_mov_b32 exec_lo, 1')
        a('s_mov_b32 exec_hi, 1')
        a(f'ds_or_b32 v{tB}, v{tA}')
        a('s_mov_b64 exec, -1')

    stamp(2)
    a(f's_mov_b64 exec, s[{sSV2}:{sSV2+1}]')
    a(f'v_mov_b32 v{tD}, {L_CNT + 127*4}')
    a(f'v_mov_b32 v{tE}, 1')
    a(f'ds_write_b32 v{tD}, v{tE}')
    a('s_mov_b64 exec, -1')
    gemm_issue()
    stamp(28)
    gemm_mid()
    gemm_mid2()
    stamp(29)
    a(f's_cmp_lg_u32 s{sW}, 0')
    a('s_cbranch_scc1 K2_NOCI')
    a(f'v_mul_u32_u24 v{tA}, {2*ROWB}, v{vLANE}')
    a(f'v_mov_b32 v{tB}, {L_ZERO}')
    a(f'v_add_u32 v{tA}, {L_ACC}, v{tA}')
    a(f's_mov_b32 exec_hi, {(1 << (MAXN // 2 - 32)) - 1}')
    a(f'ds_write_b32 v{tA}, v{tB} offset:768')
    a(f'ds_write_b32 v{tA}, v{tB} offset:{768 + ROWB}')
    a('s_mov_b64 exec, -1')
    a.label('K2_NOCI')
    gemm_store('F')
    stamp(3)
    a('s_waitcnt vmcnt(0) lgkmcnt(0)')
    stamp(23)
    hist()
    a('s_waitcnt lgkmcnt(0)')
    stamp(24)
    if opts.get('proprio') == 1: a('s_setprio 0')
    a('s_barrier')
    stamp(4)
    scan_nodes('F')
    a(f'v_readlane_b32 s{t0}, v{TQ+1}, 63')
    a(f's_cmp_eq_u32 s{sLB}, 0')
    a(f's_cselect_b32 s{t1}, s{sLA}, s{sLB}')
    a(f's_lshl_b32 s{t1}, s{t1}, 2')
    a(f'v_cmp_lt_u32 vcc, s{t1}, v{tB}')
    a(f's_cmp_lg_u32 s{t0}, 0')
    a('s_cbranch_scc1 K2_SLOW')
    a(f's_add_u32 s{t1}, s{sLA}, s{sLB}')
    a(f's_cmp_gt_u32 s{t1}, {(ENT_QUADS - 8) // 8}')
    a('s_cbranch_scc1 K2_SLOW')
    a('s_cbranch_vccnz K2_SLOW')
    stamp(15)
    scatter()
    stamp(16)
    a('s_waitcnt lgkmcnt(0)')
    a('s_barrier')
    stamp(5)
    a(f's_cmp_eq_u32 s{sL}, 0')
    a('s_cbranch_scc1 K2_NOL')
    setup_ptrs()
    a('s_waitcnt lgkmcnt(0)')
    for ins in dma_addr(): a(ins)
    for ins in dma_issue(): a(ins)
    a.label('K2_NOL')
    stamp(17)
    a(f'v_cmp_gt_u32 vcc, {MAXN // 2}, v{vLANE}')
    a(f'v_lshl_or_b32 v{tB}, v{vLANE}, 1, 1')
    a(f'v_cmp_le_u32 s[{sSV}:{sSV+1}], s{sNN}, v{tB}')
    a(f'v_mov_b32 v{tC}, 1')
    a('s_nop 0')
    a(f'v_cndmask_b32 v{tB}, v{TQ+1}, v{tC}, s[{sSV}:{sSV+1}]')
    a(f'v_min_u32 v{tB}, v{TQ}, v{tB}')
    a(f'v_cmp_eq_u32 s[{sSV}:{sSV+1}], 0, v{tB}')
    a(f's_and_b64 s[{sSV}:{sSV+1}], s[{sSV}:{sSV+1}], vcc')
    a('s_cbranch_scc1 K2_ZROWS')
    a.label('K2_ZBACK')
    qi_fill('F', True)
    stamp(18)
    w_frags()
    consts()
    a('s_waitcnt lgkmcnt(0)')
    stamp(19)
    if opts.get('proprio') == 2: a('s_setprio 0')
    a('s_barrier')
    stamp(20)
    a(f's_cmp_eq_u32 s{sL}, 0')
    a('s_cbranch_scc1 K2_EPI')
    pipeline_fill()
    stamp(6)
    if opts.get('dbgtime'):
        a(f's_memrealtime s[{t2}:{t3}]')
        a('s_waitcnt lgkmcnt(0)')
        a(f's_mov_b32 s{sT1}, s{t2}')
    if STAMP:
        a(f's_memrealtime s[{t2}:{t3}]')
        a('s_waitcnt lgkmcnt(0)')
        a(f'v_writelane_b32 v{vST}, s{t2}, 13')
    if opts.get('half'):
        a(f's_cmp_ge_u32 s{sW}, 4')
        a('s_cbranch_scc1 K2_MDF')
    main_loop('F', False)
    stamp(7)
    if opts.get('dbgtime'):
        a(f's_memrealtime s[{t2}:{t3}]')
        a('s_waitcnt lgkmcnt(0)')
        a(f's_mov_b32 s{sT2}, s{t2}')
    if STAMP:
        a(f's_memrealtime s[{t2}:{t3}]')
        a('s_waitcnt lgkmcnt(0)')
        a(f'v_writelane_b32 v{vST}, s{t2}, 14')
    a.label('K2_EPI')
    e0 = 4
    XV = [e0, e0 + 4]; UU = [e0 + 8, e0 + 12]
    DN = [e0 + 16, e0 + 48]; NM = [e0 + 24, e0 + 56]; CD = [e0 + 32, e0 + 64]; CN = [e0 + 40, e0 + 72]
    O = e0 + 80; ADR = [e0 + 84, e0 + 85]; GO = [e0 + 86, e0 + 87]; CP = [e0 + 88, e0 + 89]; OC = [e0 + 90, e0 + 91]
    T1 = e0 + 92; ND = e0 + 93
    def epi_addr(r):
        a(f'v_add_u32 v{T1}, {512*r}, v0') if r else a(f'v_mov_b32 v{T1}, v0')
        a(f'v_lshrrev_b32 v{ND}, 3, v{T1}')
        a(f'v_and_b32 v{T1}, 7, v{T1}')
        a(f'v_lshlrev_b32 v{OC[r]}, 4, v{T1}')
        a(f'v_mul_u32_u24 v{CP[r]}, s{t0}, v{ND}')
        a(f'v_add_u32 v{CP[r]}, {L_ACC}, v{CP[r]}')
        a(f'v_add_u32 v{ADR[r]}, v{CP[r]}, v{OC[r]}')
        a(f'v_add_u32 v{GO[r]}, s{sNS}, v{ND}')
        a(f'v_lshlrev_b32 v{GO[r]}, 7, v{GO[r]}')
        a(f'v_lshl_add_u32 v{GO[r]}, v{T1}, 3, v{GO[r]}')
    def epi_static(r, carry):
        a(f'buffer_load_dwordx2 v[{XV[r]}:{XV[r]+1}], v{GO[r]}, s[{rF}:{rF+3}], 0 offen')
        a(f'buffer_load_dwordx2 v[{XV[r]+2}:{XV[r]+3}], v{GO[r]}, s[{rF}:{rF+3}], 0 offen offset:64')
        a(f'ds_read_b128 v[{UU[r]}:{UU[r]+3}], v{ADR[r]} offset:640')
        if carry: a(f'ds_read_b32 v{CP[r]}, v{CP[r]} offset:768')
    def epi_reads(r, carry):
        ad = ADR[r]
        a(f'ds_read_b128 v[{DN[r]}:{DN[r]+3}], v{ad}')
        a(f'ds_read_b128 v[{DN[r]+4}:{DN[r]+7}], v{ad} offset:128')
        a(f'ds_read_b128 v[{NM[r]}:{NM[r]+3}], v{ad} offset:256')
        a(f'ds_read_b128 v[{NM[r]+4}:{NM[r]+7}], v{ad} offset:384')
        if carry:
            a(f'ds_read_b128 v[{CD[r]}:{CD[r]+3}], v{CP[r]}')
            a(f'ds_read_b128 v[{CD[r]+4}:{CD[r]+7}], v{CP[r]} offset:128')
            a(f'ds_read_b128 v[{CN[r]}:{CN[r]+3}], v{CP[r]} offset:256')
            if r == 1: a('s_waitcnt lgkmcnt(14)')
            a(f'ds_read_b128 v[{CN[r]+4}:{CN[r]+7}], v{CP[r]} offset:384')
    def epi_math(r, carry):
        dn, nm, cd, cn, uu, xv = DN[r], NM[r], CD[r], CN[r], UU[r], XV[r]
        if carry:
            for i in range(0, 8, 2):
                a(f'v_pk_add_f32 v[{dn+i}:{dn+i+1}], v[{dn+i}:{dn+i+1}], v[{cd+i}:{cd+i+1}]')
                a(f'v_pk_add_f32 v[{nm+i}:{nm+i+1}], v[{nm+i}:{nm+i+1}], v[{cn+i}:{cn+i+1}]')
        for i in range(0, 8, 2):
            a(f'v_pk_add_f32 v[{dn+i}:{dn+i+1}], v[{dn+i}:{dn+i+1}], s[{sC}:{sC+1}]')
        for i in range(8):
            a(f'v_rcp_f32 v{dn+i}, v{dn+i}')
        for i in range(4):
            a(f'v_lshlrev_b32 v{cd+i}, 16, v{uu+i}')
            a(f'v_and_b32 v{cd+4+i}, s{sHI}, v{uu+i}')
        for i in range(0, 8, 2):
            a(f'v_pk_fma_f32 v[{nm+i}:{nm+i+1}], v[{nm+i}:{nm+i+1}], v[{dn+i}:{dn+i+1}], v[{cd+i}:{cd+i+1}]')
        for i in range(8):
            a(f'v_max_f32 v{nm+i}, 0, v{nm+i}')
        for i in range(4):
            a(f'v_lshlrev_b32 v{cd+2*i}, 16, v{xv+i}')
            a(f'v_and_b32 v{cd+2*i+1}, s{sHI}, v{xv+i}')
        for i in range(0, 8, 2):
            a(f'v_pk_add_f32 v[{nm+i}:{nm+i+1}], v[{nm+i}:{nm+i+1}], v[{cd+i}:{cd+i+1}]')
        for i in range(4):
            a(f'v_cvt_pk_bf16_f32 v{O+i}, v{nm+2*i}, v{nm+2*i+1}')
        osf = {0: '', 1: ' sc1', 2: ' nt', 3: ' sc0 sc1'}[opts.get('outst', 1)]
        a(f'buffer_store_dwordx2 v[{O}:{O+1}], v{GO[r]}, s[{rO}:{rO+3}], 0 offen' + osf)
        a(f'buffer_store_dwordx2 v[{O+2}:{O+3}], v{GO[r]}, s[{rO}:{rO+3}], 0 offen offset:64' + osf)
    def epilogue(tag, carry):
        srd(a, rO, sOUT, N * 128)
        srd(a, rF, sX, N * 128)
        a(f's_mov_b32 s{t0}, {ROWB}')
        a(f's_mov_b32 s{sC}, 0x{EPS_SCALED:x}')
        a(f's_mov_b32 s{sC+1}, 0x{EPS_SCALED:x}')
        a(f's_mov_b32 s{sHI}, 0xffff0000')
        a('s_waitcnt vmcnt(0)')
        epi_addr(0)
        epi_static(0, carry)
        epi_addr(1)
        a(f'v_cmp_gt_u32 s[{sSV}:{sSV+1}], s{sNN}, v{ND}')
        a('s_nop 3')
        a(f's_mov_b64 exec, s[{sSV}:{sSV+1}]')
        a(f's_cbranch_execz K2_NS2{tag}')
        epi_static(1, carry)
        a.label(f'K2_NS2{tag}')
        a('s_mov_b64 exec, -1')
        a('s_waitcnt lgkmcnt(0)')
        if carry:
            a(f'v_add_u32 v{CP[0]}, v{CP[0]}, v{OC[0]}')
            a(f'v_add_u32 v{CP[1]}, v{CP[1]}, v{OC[1]}')
        a('s_barrier')
        if STAMP and tag == 'F': stamp(8)
        epi_reads(0, carry)
        a(f's_mov_b64 exec, s[{sSV}:{sSV+1}]')
        a(f's_cbranch_execz K2_ONE{tag}')
        epi_reads(1, carry)
        a('s_mov_b64 exec, -1')
        a(f's_waitcnt vmcnt(0) lgkmcnt({8 if carry else 4})')
        epi_math(0, carry)
        a(f's_mov_b64 exec, s[{sSV}:{sSV+1}]')
        a('s_waitcnt lgkmcnt(0)')
        epi_math(1, carry)
        a(f's_branch K2_FIN{tag}')
        a.label(f'K2_ONE{tag}')
        a('s_mov_b64 exec, -1')
        a('s_waitcnt vmcnt(0) lgkmcnt(0)')
        epi_math(0, carry)
        a.label(f'K2_FIN{tag}')
    epilogue('F', True)
    if opts.get('dbgtime'):
        a('s_mov_b64 exec, -1')
        a('s_waitcnt vmcnt(0)')
        a(f's_memrealtime s[{t2}:{t3}]')
        a(f's_cmp_lg_u32 s{sW}, 7')
        a('s_cbranch_scc1 K2_DBGX')
        a('s_and_b32 s3, s2, 31')
        a('s_cmp_lg_u32 s3, 0')
        a('s_cbranch_scc1 K2_DBGX')
        a('s_lshr_b32 s3, s2, 5')
        a('s_cmp_ge_u32 s3, 2')
        a('s_cbranch_scc1 K2_DBGX')
        a(f's_lshl_b32 s{t0}, s3, 2')
        a(f's_add_u32 s{t0}, s{t0}, 0x1200000')
        a(f'v_mov_b32 v4, s{t0}')
        a(f'global_load_dword v5, v4, s[{sWS}:{sWS+1}]')
        a(f'global_load_dword v6, v4, s[{sWS}:{sWS+1}] offset:256')
        a('s_waitcnt vmcnt(0) lgkmcnt(0)')
        a(f'v_sub_u32 v8, v6, v5')
        a(f'v_sub_u32 v9, s{sT0}, v5')
        a(f'v_sub_u32 v10, s{sT1}, v5')
        a(f'v_sub_u32 v11, s{sT2}, v5')
        a(f'v_sub_u32 v12, s{t2}, v5')
        a('s_lshl_b32 s3, s3, 5')
        a('v_mov_b32 v4, s3')
        a('s_mov_b64 exec, 1')
        a(f'global_store_dwordx4 v4, v[8:11], s[{sDBG}:{sDBG+1}]')
        a(f'global_store_dword v4, v12, s[{sDBG}:{sDBG+1}] offset:16')
        a.label('K2_DBGX')
    if STAMP:
        a('s_mov_b64 exec, -1')
        a('s_waitcnt vmcnt(0)')
        stamp(9)
        a(f's_memrealtime s[{t2}:{t3}]')
        a('s_waitcnt lgkmcnt(0)')
        a(f'v_writelane_b32 v{vST}, s{t2}, 12')
        a(f's_mul_i32 s{t0}, s2, {NW}')
        a(f's_add_u32 s{t0}, s{t0}, s{sW}')
        a(f's_lshl_b32 s{t0}, s{t0}, 8')
        a(f's_add_u32 s{t0}, s{t0}, 0x1000000')
        srd_off(a, rT, sWS, f's{t0}', 256)
        a(f'v_writelane_b32 v{vST}, s{sL}, 10')
        a(f'v_lshlrev_b32 v4, 2, v{vLANE}')
        a(f'buffer_store_dword v{vST}, v4, s[{rT}:{rT+3}], 0 offen')
    a('s_endpgm')
    a.label('K2_CSEL')
    a(f'v_mov_b32 v{tD}, 0')
    a(f'v_mov_b32 v{tE}, 0')
    a(f'v_mov_b32 v{tF}, 0')
    for it in range(8):
        a(f'v_lshrrev_b32 v{tG}, 24, v{SG+it}')
        a(f'v_cmp_lt_u32 vcc, 32, v{tG}')
        a(f'v_mad_u32_u24 v{tJ}, v{SG+it}, 8, v{tB}')
        a(f'v_add_u32 v{RKC}, 1, v{tF}')
        a(f'v_cndmask_b32 v{tD}, v{tD}, v{tJ}, vcc')
        a(f'v_cndmask_b32 v{tE}, v{tE}, v{tG}, vcc')
        a(f'v_cndmask_b32 v{tF}, v{tF}, v{RKC}, vcc')
    a(f'v_cmp_lt_u32 vcc, 1, v{tF}')
    a(f'v_cmp_lt_u32 s[{sSV2}:{sSV2+1}], 48, v{tE}')
    a(f'v_add_u32 v{tG}, 32, v{tC}')
    a(f's_or_b64 s[{sSV2}:{sSV2+1}], s[{sSV2}:{sSV2+1}], vcc')
    a(f'v_cmp_gt_u32 s[{MKC}:{MKC+1}], v{tE}, v{tG}')
    a('s_nop 0')
    a(f's_mov_b64 exec, s[{MKC}:{MKC+1}]')
    a(f'buffer_load_dwordx2 v[{RC}:{RC+1}], v{tD}, s[{rR}:{rR+3}], 0 offen offset:256')
    a('s_mov_b64 exec, -1')
    a('s_branch K2_CBACK')
    a.label('K2_ZROWS')
    a(f's_mov_b64 exec, s[{sSV}:{sSV+1}]')
    for i in range(4):
        a(f'v_mov_b32 v{TR+i}, 0')
    for nd in range(2):
        a(f'v_cmp_eq_u32 vcc, 0, v{TQ+nd}')
        a(f's_and_b64 exec, vcc, s[{sSV}:{sSV+1}]')
        for k in range(32):
            a(f'ds_write_b128 v{nROW0}, v[{TR}:{TR+3}] offset:{nd*ROWB + 16*k}')
        a(f's_mov_b64 exec, s[{sSV}:{sSV+1}]')
    a('s_mov_b64 exec, -1')
    a('s_branch K2_ZBACK')

    a.label('K2_SLOW')
    w_frags()
    consts()
    a('s_waitcnt vmcnt(0) lgkmcnt(0)')
    a('s_barrier')
    a(f's_lshl_b32 s{t1}, s2, 10')
    a(f's_add_u32 s{t1}, s{t1}, {WS_TAB2}')
    srd_off(a, rT, sWS, f's{t1}', 1024)
    a(f'v_lshlrev_b32 v{tA}, 4, v{vLANE}')
    a(f'buffer_load_dwordx4 v[{TQ}:{TQ+3}], v{tA}, s[{rT}:{rT+3}], 0 offen')
    a('s_waitcnt vmcnt(0)')
    a(f'v_max_u32 v{tE}, v{TQ}, v{TQ+1}')
    a(f'v_max3_u32 v{tE}, v{tE}, v{TQ+2}, v{TQ+3}')
    wave_scan(a, 'v_max_u32', tE)
    a('s_nop 0')
    a(f'v_readlane_b32 s{t1}, v{tE}, 63')
    a(f's_add_u32 s{t1}, s{t1}, {WSLOW-1}')
    a(f's_mul_i32 s{t1}, s{t1}, 5042')
    a(f's_lshr_b32 s{sNP}, s{t1}, 16')
    a(f's_mov_b32 s{sP}, 0')
    for i in range(4):
        a(f'v_mov_b32 v{TR+i}, 0')
    a(f'v_lshrrev_b32 v{tA}, 5, v0')
    a(f'v_mul_u32_u24 v{tA}, {ROWB}, v{tA}')
    a(f'v_and_b32 v{tB}, 31, v{vLANE}')
    a(f'v_lshl_add_u32 v{tA}, v{tB}, 4, v{tA}')
    a(f'v_add_u32 v{tA}, {L_ACC}, v{tA}')
    for i in range(6):
        a(f'ds_write_b128 v{tA}, v[{TR}:{TR+3}]')
        a(f'v_add_u32 v{tA}, {16*ROWB}, v{tA}')
    a(f'v_cmp_gt_u32 vcc, 64, v0')
    a(f's_and_saveexec_b64 s[{sSV}:{sSV+1}], vcc')
    a(f'ds_write_b128 v{tA}, v[{TR}:{TR+3}]')
    a(f's_mov_b64 exec, s[{sSV}:{sSV+1}]')
    a.label('K2_SPASS')
    a(f's_lshl_b32 s{t0}, s{sW}, 1')
    a(f'v_lshrrev_b32 v{sidA}, 5, v{vLANE}')
    a(f'v_add_u32 v{sidA}, s{t0}, v{sidA}')
    a(f'v_bfe_u32 v{jA}, v{vLANE}, 3, 2')
    a(f'v_bfe_u32 v{sidR}, v{vLANE}, 2, 1')
    a(f'v_add_u32 v{sidR}, s{t0}, v{sidR}')
    a(f'v_and_b32 v{iR4}, 3, v{vLANE}')
    a(f'v_lshlrev_b32 v{iR4}, 2, v{iR4}')
    a(f's_lshl_b32 s{t1}, s2, 10')
    a(f's_add_u32 s{t1}, s{t1}, {WS_TAB}')
    srd_off(a, rT, sWS, f's{t1}', WS_TAB2 - WS_TAB + 1024)
    a(f'v_lshrrev_b32 v{tD}, 4, v{vLANE}')
    a(f'v_lshlrev_b32 v{tD}, 5, v{tD}')
    a(f's_lshl_b32 s{t0}, s{sW}, 7')
    a(f'v_add_u32 v{tD}, s{t0}, v{tD}')
    a(f's_mov_b32 s{t0}, {WS_TAB2 - WS_TAB}')
    for i in range(2):
        a(f'buffer_load_dwordx4 v[{SG+4*i}:{SG+4*i+3}], v{tD}, s[{rT}:{rT+3}], 0 offen offset:{16*i}')
    for i in range(2):
        a(f'buffer_load_dwordx4 v[{AX+4*i}:{AX+4*i+3}], v{tD}, s[{rT}:{rT+3}], s{t0} offen offset:{16*i}')
    a(f'v_and_b32 v{tC}, 15, v{vLANE}')
    a(f's_mul_i32 s{t0}, s{sP}, {WSLOW}')
    a(f'v_cmp_gt_u32 vcc, {WSLOW}, v{tC}')
    a(f'v_add_u32 v{tC}, s{t0}, v{tC}')
    a(f'v_lshlrev_b32 v{tB}, 3, v{tC}')
    a(f'v_mov_b32 v{tD}, 0x10000')
    a(f'v_cndmask_b32 v{tC}, v{tD}, v{tC}, vcc')
    a('s_waitcnt vmcnt(0)')
    a(f's_mov_b64 s[{MKC}:{MKC+1}], 0')
    for it in range(8):
        a(f'v_cmp_gt_u32 s[{MK+2*it}:{MK+2*it+1}], v{AX+it}, v{tC}')
        a(f's_mov_b64 s[{MK+16+2*it}:{MK+16+2*it+1}], 0')
    rec_loads(tB, 8)
    lds_init()
    a('s_waitcnt vmcnt(0) lgkmcnt(0)')
    a('s_barrier')
    hist()
    a('s_waitcnt lgkmcnt(0)')
    a('s_barrier')
    scan_nodes('S')
    qi_fill('S', False)
    scatter()
    a('s_waitcnt lgkmcnt(0)')
    a('s_barrier')
    a(f's_cmp_eq_u32 s{sL}, 0')
    a('s_cbranch_scc1 K2_SNEXT')
    setup_ptrs()
    a('s_waitcnt lgkmcnt(0)')
    for ins in dma_addr(): a(ins)
    for ins in dma_issue(): a(ins)
    forced_flags()
    pipeline_fill()
    main_loop('S', True)
    a.label('K2_SNEXT')
    a('s_waitcnt vmcnt(0) lgkmcnt(0)')
    a('s_barrier')
    a(f's_add_u32 s{sP}, s{sP}, 1')
    a(f's_cmp_lt_u32 s{sP}, s{sNP}')
    a('s_cbranch_scc1 K2_SPASS')
    epilogue('S', False)
    a.label('K2_END')
    a('s_endpgm')
    return nvgpr, nsgpr

def kd(name, nv, ns):
    acc = (nv + 3) // 4 * 4
    return f'''.amdhsa_kernel {name}
  .amdhsa_next_free_vgpr {nv}
  .amdhsa_next_free_sgpr {ns}
  .amdhsa_accum_offset {acc}
  .amdhsa_group_segment_fixed_size 0
  .amdhsa_kernarg_size 96
  .amdhsa_user_sgpr_count 2
  .amdhsa_user_sgpr_kernarg_segment_ptr 1
  .amdhsa_system_sgpr_workgroup_id_x 1
  .amdhsa_float_denorm_mode_32 3
.end_amdhsa_kernel
'''

def build(opts=None):
    opts = opts or {}
    a = Asm()
    gen_k1(a, opts)
    nv, ns = gen_k2(a, opts)
    out = HEADER
    out += f'; @launch kernel=gs_part_kernel grid=(256,1,1) block=({K1_THREADS},1,1) lds={LDS_K1}\n'
    out += f'; @launch kernel=gs_main_kernel grid=(256,1,1) block=({NW*64},1,1) lds={LDS_MAIN}\n'
    out += '.amdgcn_target "amdgcn-amd-amdhsa--gfx950"\n.text\n'
    out += a.text()
    out += '.section .rodata,"a"\n.p2align 6\n'
    out += kd('gs_part_kernel', 62 if opts.get('stamp1') else 60, 60)
    out += '.p2align 6\n'
    out += kd('gs_main_kernel', nv, ns)
    return out

if __name__ == '__main__':
    path = sys.argv[1] if len(sys.argv) > 1 else 'gather_scatter__edge_featured_mpnn_gatedgcn__graph.s'
    opts = {}
    for o in sys.argv[2:]:
        k, _, val = o.partition('=')
        opts[k] = int(val) if val else True
    open(path, 'w').write(build(opts))
    print('written', path, 'LDS', LDS_MAIN)
```

```python
import sys, os, struct
sys.path.insert(0, os.path.dirname(__file__))
from asmlib import *

N = 25000; E = 800000
NBK = 256
CH = 3136
RECB = CH * 8
WS_TAB = 0x700000
WS_TAB2 = 0x740000
WS_FRAG = 0x780000
MAGIC_B = 43980466
LOG2E = 0xBFB8AA3B
SBITS = 50
C_SCALE = (127 - SBITS) << 23
EPS_SCALED = 0x4E8637BD
assert abs(struct.unpack('<f', struct.pack('<I', EPS_SCALED))[0] / (1e-6 * 2.0**50) - 1) < 1e-6

NW = 8
NSTREAM = 16
NIT = 16
CAP = 3456
WSLOW = 13
ROWB = 784
MAXN = 98
ENT_QUADS = 960
VROWB = 640
L_CNT = 0
L_ZERO = 512
L_TAB = 1024
L_QI = 1536
L_ENT = L_QI + ENT_QUADS * 4
L_ACC = L_ENT + ENT_QUADS * 16
L_VIRT = L_ACC + MAXN * ROWB
L_WST = L_VIRT + NSTREAM * VROWB
L_WST = (L_WST + 255) // 256 * 256
L_DMA = L_WST + 16384
LDS_MAIN = L_DMA + NW * 4096
assert LDS_MAIN <= 163840, LDS_MAIN
assert L_ACC % 16 == 0 and L_VIRT % 16 == 0

K1_THREADS = 896
K1_HIST = 0
K1_STAGE = 1024
LDS_K1 = K1_STAGE + RECB

HEADER = open(os.path.join(os.path.dirname(__file__), 'header.txt')).read()

def srd(a, sreg, ptr, size):
    a(f's_mov_b32 s{sreg}, s{ptr}')
    a(f's_and_b32 s{sreg+1}, s{ptr+1}, 0xffff')
    a(f's_mov_b32 s{sreg+2}, {size}')
    a(f's_mov_b32 s{sreg+3}, 0x20000')

def srd_off(a, sreg, ptr, off, size):
    a(f's_add_u32 s{sreg}, s{ptr}, {off}')
    a(f's_addc_u32 s{sreg+1}, s{ptr+1}, 0')
    a(f's_and_b32 s{sreg+1}, s{sreg+1}, 0xffff')
    a(f's_mov_b32 s{sreg+2}, {size}')
    a(f's_mov_b32 s{sreg+3}, 0x20000')

def wave_scan(a, op, r):
    for sh in (1, 2, 4, 8):
        a('s_nop 1')
        a(f'{op}_dpp v{r}, v{r}, v{r} row_shr:{sh} row_mask:0xf bank_mask:0xf')
    a('s_nop 1')
    a(f'{op}_dpp v{r}, v{r}, v{r} row_bcast:15 row_mask:0xa bank_mask:0xf')
    a('s_nop 1')
    a(f'{op}_dpp v{r}, v{r}, v{r} row_bcast:31 row_mask:0xc bank_mask:0xf')

def wave_scan2(a, op1, r1, op2, r2):
    steps = [f'row_shr:{sh} row_mask:0xf bank_mask:0xf' for sh in (1, 2, 4, 8)] + \
            ['row_bcast:15 row_mask:0xa bank_mask:0xf', 'row_bcast:31 row_mask:0xc bank_mask:0xf']
    a('s_nop 1')
    for st in steps:
        a(f'{op1}_dpp v{r1}, v{r1}, v{r1} {st}')
        a(f'{op2}_dpp v{r2}, v{r2}, v{r2} {st}')
        a('s_nop 0')

def gen_k1(a, opts):
    ST = opts.get('stamp1', False)
    def stamp(i):
        if not ST: return
        a('s_memtime s[56:57]')
        a('s_waitcnt lgkmcnt(0)')
        a(f'v_writelane_b32 v60, s56, {i}')
    a.raw('.p2align 8')
    a.raw('.globl gs_part_kernel')
    a.raw('.type gs_part_kernel,@function')
    a.label('gs_part_kernel')
    a('s_cmp_ge_u32 s2, 256')
    a('s_cbranch_scc1 K1_END')
    a('s_load_dwordx4 s[4:7], s[0:1], 8')
    a('s_load_dwordx2 s[8:9], s[0:1], 24')
    a('s_load_dwordx2 s[10:11], s[0:1], 88')
    a('s_load_dwordx2 s[44:45], s[0:1], 0')
    if ST: a('v_mov_b32 v60, 0')
    stamp(0)
    if opts.get('dbgtime'):
        a('s_memrealtime s[54:55]')
        a('s_waitcnt lgkmcnt(0)')
        a('s_cmp_ge_u32 s2, 8')
        a('s_cbranch_scc1 K1_NODBG')
        a('v_mov_b32 v20, s54')
        a('s_lshl_b32 s56, s2, 2')
        a('s_add_u32 s56, s56, 0x1200000')
        a('v_mov_b32 v22, s56')
        a('v_cmp_eq_u32 vcc, 0, v0')
        a('s_and_saveexec_b64 s[58:59], vcc')
        a('global_store_dword v22, v20, s[10:11]')
        a('s_mov_b64 exec, s[58:59]')
        a.label('K1_NODBG')
    a('v_lshrrev_b32 v1, 6, v0')
    a('s_mul_i32 s12, s2, %d' % (CH * 4))
    a('v_readfirstlane_b32 s3, v1')
    a('s_lshr_b32 s13, s12, 1')
    a('v_lshlrev_b32 v2, 4, v0')
    a('v_add_u32 v2, s12, v2')
    a('s_cmp_eq_u32 s3, 13')
    a('s_cbranch_scc1 K1_FRAG')
    a('v_lshlrev_b32 v3, 3, v0')
    a('v_add_u32 v3, s13, v3')
    a('s_waitcnt lgkmcnt(0)')
    srd(a, 20, 8, E * 4)
    a('buffer_load_dwordx4 v[4:7], v2, s[20:23], 0 offen')
    srd(a, 24, 6, E * 4)
    srd(a, 28, 4, E * 2)
    if not opts.get('dstfirst', 1):
        a('buffer_load_dwordx4 v[8:11], v2, s[24:27], 0 offen')
        a('buffer_load_dwordx2 v[12:13], v3, s[28:31], 0 offen')
    a('v_lshlrev_b32 v14, 2, v0')
    a('v_mov_b32 v15, 0')
    a('v_cmp_gt_u32 vcc, 256, v0')
    a('s_and_saveexec_b64 s[18:19], vcc')
    a('ds_write_b32 v14, v15 offset:%d' % K1_HIST)
    a('s_mov_b64 exec, s[18:19]')
    a('v_cmp_gt_u32 vcc, %d, v0' % (CH // 4))
    a('s_mov_b32 s14, %d' % (E * 4))
    a('v_cmp_gt_u32 s[16:17], s14, v2')
    a('s_and_b64 s[16:17], s[16:17], vcc')
    a('s_mul_i32 s15, s2, %d' % RECB)
    srd_off(a, 32, 10, 's15', RECB)
    srd_off(a, 36, 10, WS_TAB, 0x80000)
    if opts.get('touch', 1):
        a('s_cmp_lg_u32 s3, 1')
        a('s_cbranch_scc1 K1_NOTOUCH')
        a('v_mov_b32 v41, 0')
        a('buffer_load_dword v42, v41, s[32:35], 0 offen')
        a('buffer_load_dword v43, v41, s[36:39], 0 offen')
        a.label('K1_NOTOUCH')
    a('s_mov_b32 s40, %d' % MAGIC_B)
    a('s_movk_i32 s41, 3125')
    a('v_mov_b32 v15, 1')
    a('s_waitcnt lgkmcnt(0)')
    a('s_barrier')
    if opts.get('dstfirst', 1):
        a('s_waitcnt vmcnt(0)')
        a('buffer_load_dwordx4 v[8:11], v2, s[24:27], 0 offen')
        a('buffer_load_dwordx2 v[12:13], v3, s[28:31], 0 offen')
    if opts.get('xpre', 1):
        a('s_and_b32 s46, s2, 7')
        a('s_lshr_b32 s47, s2, 3')
        a('s_lshl_b32 s46, s46, 5')
        a('s_add_u32 s46, s46, s47')
        a('s_mul_i32 s46, s46, 3125')
        a('s_add_u32 s46, s46, 31')
        a('s_lshr_b32 s46, s46, 5')
        a('s_lshl_b32 s46, s46, 7')
        a('s_and_b32 s45, s45, 0xffff')
        a('s_mov_b32 s48, s44')
        a('s_mov_b32 s49, s45')
        a('s_mov_b32 s50, %d' % (N * 128))
        a('s_mov_b32 s51, 0x20000')
        a('v_lshlrev_b32 v40, 4, v0')
        a('buffer_load_dwordx4 v[56:59], v40, s[48:51], s46 offen')
    a('s_mov_b64 exec, s[16:17]')
    a('s_cbranch_execz K1_NOEDGE1')
    stamp(1)
    if not opts.get('dstfirst', 1): a('s_waitcnt vmcnt(%d)' % (3 if opts.get('xpre', 1) else 2))
    stamp(2)
    for k in range(4):
        a(f'v_mul_hi_u32 v{16+k}, v{4+k}, s40')
    for k in range(4):
        a(f'v_lshlrev_b32 v{20+k}, 2, v{16+k}')
        a(f'ds_add_rtn_u32 v{24+k}, v{20+k}, v15 offset:{K1_HIST}')
    for k in range(4):
        a(f'v_mul_u32_u24 v{28+k}, s41, v{16+k}')
        a(f'v_add_u32 v{28+k}, 31, v{28+k}')
        a(f'v_lshrrev_b32 v{28+k}, 5, v{28+k}')
        a(f'v_sub_u32 v{28+k}, v{4+k}, v{28+k}')
        a(f'v_lshlrev_b32 v{33+2*k}, 2, v{28+k}')
    a.label('K1_NOEDGE1')
    a('s_mov_b64 exec, -1')
    a('s_waitcnt lgkmcnt(0)')
    stamp(3)
    a('s_barrier')
    stamp(4)
    a('s_cmp_lg_u32 s3, 0')
    a('s_cbranch_scc1 K1_SCANDONE')
    a('v_lshlrev_b32 v40, 4, v0')
    a('ds_read_b128 v[44:47], v40 offset:%d' % K1_HIST)
    a('v_lshlrev_b32 v41, 12, v0')
    a('s_lshl_b32 s15, s2, 2')
    a('v_add_u32 v41, s15, v41')
    a('s_waitcnt lgkmcnt(0)')
    a('v_add_u32 v48, v44, v45')
    a('v_add_u32 v49, v48, v46')
    a('v_add_u32 v50, v49, v47')
    a('v_mov_b32 v51, v50')
    wave_scan(a, 'v_add_u32', 51)
    a('v_sub_u32 v52, v51, v50')
    a('v_add_u32 v53, v52, v44')
    a('v_add_u32 v54, v52, v48')
    a('v_add_u32 v55, v52, v49')
    a('ds_write_b128 v40, v[52:55] offset:%d' % K1_HIST)
    a('s_waitcnt vmcnt(%d)' % (1 if opts.get('xpre', 1) else 0))
    a('s_mul_i32 s15, s2, %d' % CH)
    a('s_mov_b32 s43, %d' % (WS_TAB2 - WS_TAB))
    for k in range(4):
        a(f'buffer_store_dword v{44+k}, v41, s[36:39], s43 offen offset:{k*1024}' + (' sc1' if opts.get('tabst', 0) else ''))
        a(f'v_min_u32 v{48+k}, 0xff, v{44+k}')
        a(f'v_add_u32 v{52+k}, s15, v{52+k}')
        a(f'v_lshl_or_b32 v{48+k}, v{48+k}, 24, v{52+k}')
        a(f'buffer_store_dword v{48+k}, v41, s[36:39], 0 offen offset:{k*1024}' + (' sc1' if opts.get('tabst', 0) else ''))
    a.label('K1_SCANDONE')
    a('s_waitcnt lgkmcnt(0)')
    a('s_barrier')
    stamp(5)
    a('s_mov_b64 exec, s[16:17]')
    a('s_cbranch_execz K1_NOEDGE2')
    for k in range(4):
        a(f'ds_read_b32 v{28+k}, v{20+k} offset:{K1_HIST}')
    a('s_cmp_eq_u32 s3, 0')
    a('s_cbranch_scc1 K1_HAVE')
    a('s_waitcnt vmcnt(%d)' % (1 if opts.get('xpre', 1) else 0))
    a.label('K1_HAVE')
    a('s_mov_b32 s42, 0xffff0000')
    a('v_lshl_or_b32 v32, v12, 16, v8')
    a('v_and_or_b32 v34, v12, s42, v9')
    a('v_lshl_or_b32 v36, v13, 16, v10')
    a('v_and_or_b32 v38, v13, s42, v11')
    for k in range(4):
        a(f's_waitcnt lgkmcnt({3 if k == 0 else 3})')
        a(f'v_add_lshl_u32 v{28+k}, v{28+k}, v{24+k}, 3')
        a(f'ds_write_b64 v{28+k}, v[{32+2*k}:{33+2*k}] offset:{K1_STAGE}')
    a.label('K1_NOEDGE2')
    a('s_mov_b64 exec, -1')
    a('v_lshlrev_b32 v2, 4, v0')
    a('v_add_u32 v3, %d, v2' % (RECB // 2))
    a('v_cmp_gt_u32 vcc, %d, v0' % (CH // 4))
    a('s_waitcnt lgkmcnt(0)')
    stamp(6)
    a('s_barrier')
    stamp(7)
    a('s_and_saveexec_b64 s[18:19], vcc')
    a('s_cbranch_execz K1_END')
    a('ds_read_b128 v[4:7], v2 offset:%d' % K1_STAGE)
    a('ds_read_b128 v[8:11], v2 offset:%d' % (K1_STAGE + RECB // 2))
    a('s_waitcnt lgkmcnt(1)')
    sfx = {0: '', 1: ' sc1', 2: ' nt', 3: ' sc0 sc1', 4: ' sc1 nt'}[opts.get('k1st', 1)]
    a('buffer_store_dwordx4 v[4:7], v2, s[32:35], 0 offen' + sfx)
    a('s_waitcnt lgkmcnt(0)')
    a('buffer_store_dwordx4 v[8:11], v3, s[32:35], 0 offen' + sfx)
    if ST:
        stamp(8)
        a('s_waitcnt vmcnt(0)')
        stamp(9)
        a('s_mul_i32 s12, s2, 16')
        a('s_add_u32 s12, s12, s3')
        a('s_lshl_b32 s12, s12, 8')
        a('s_add_u32 s12, s12, 0x1100000')
        a('s_add_u32 s32, s10, s12')
        a('s_addc_u32 s33, s11, 0')
        a('s_and_b32 s33, s33, 0xffff')
        a('s_mov_b32 s34, 256')
        a('s_mov_b64 exec, -1')
        a('v_and_b32 v4, 63, v0')
        a('v_lshlrev_b32 v4, 2, v4')
        a('buffer_store_dword v60, v4, s[32:35], 0 offen')
    if opts.get('dbgtime'):
        a('s_waitcnt vmcnt(0)')
        a('s_memrealtime s[54:55]')
        a('s_waitcnt lgkmcnt(0)')
        a('s_cmp_ge_u32 s2, 8')
        a('s_cbranch_scc1 K1_END')
        a('s_cmp_lg_u32 s3, 0')
        a('s_cbranch_scc1 K1_END')
        a('v_mov_b32 v20, s54')
        a('s_lshl_b32 s56, s2, 2')
        a('s_add_u32 s56, s56, 0x1200100')
        a('v_mov_b32 v22, s56')
        a('s_mov_b64 exec, 1')
        a('global_store_dword v22, v20, s[10:11]')
    a('s_endpgm')
    a.label('K1_FRAG')
    if opts.get('codepre', 0):
        a('s_cmp_lt_u32 s2, 32')
        a('s_cbranch_scc1 K1_FRAG2')
        a('s_cmp_ge_u32 s2, 64')
        a('s_cbranch_scc1 K1_END')
        a('s_getpc_b64 s[12:13]')
        a.label('K1_PCREF')
        a('s_add_u32 s12, s12, gs_main_kernel-K1_PCREF')
        a('s_addc_u32 s13, s13, 0')
        a('v_and_b32 v1, 63, v0')
        a('v_lshlrev_b32 v2, 4, v1')
        for i in range(opts.get('codekb', 20)):
            a(f'global_load_dwordx4 v[4:7], v2, s[12:13]')
            a('v_add_u32 v2, 1024, v2')
        a('s_endpgm')
        a.label('K1_FRAG2')
    a('s_cmp_ge_u32 s2, 32')
    a('s_cbranch_scc1 K1_END')
    a('s_load_dwordx4 s[12:15], s[0:1], 32')
    a('s_load_dwordx4 s[16:19], s[0:1], 56')
    a('s_lshr_b32 s20, s2, 3')
    a('s_waitcnt lgkmcnt(0)')
    a('s_mov_b32 s22, s14')
    a('s_mov_b32 s23, s15')
    a('s_cmp_eq_u32 s20, 1')
    a('s_cselect_b32 s22, s18, s22')
    a('s_cselect_b32 s23, s19, s23')
    a('s_cmp_eq_u32 s20, 2')
    a('s_cselect_b32 s22, s12, s22')
    a('s_cselect_b32 s23, s13, s23')
    a('s_cmp_eq_u32 s20, 3')
    a('s_cselect_b32 s22, s16, s22')
    a('s_cselect_b32 s23, s17, s23')
    srd(a, 24, 22, 64 * 64 * 2)
    srd_off(a, 28, 10, WS_FRAG, 32 * 1024)
    a('s_and_b32 s32, s2, 3')
    a('s_lshr_b32 s33, s2, 2')
    a('s_and_b32 s33, s33, 1')
    a('s_lshl_b32 s32, s32, 11')
    a('s_lshl_b32 s33, s33, 6')
    a('s_add_u32 s32, s32, s33')
    a('v_and_b32 v1, 63, v0')
    a('v_and_b32 v2, 31, v1')
    a('v_lshlrev_b32 v2, 1, v2')
    a('v_lshrrev_b32 v3, 5, v1')
    a('v_lshlrev_b32 v3, 10, v3')
    a('v_add3_u32 v2, v2, v3, s32')
    for i in range(8):
        a(f'buffer_load_ushort v{8+i}, v2, s[24:27], 0 offen offset:{i*128}')
    a('s_mov_b32 s34, 1.0')
    a('s_and_b32 s36, s20, 1')
    a('s_cmp_eq_u32 s36, 0')
    a('s_cselect_b32 s34, 0x%x, s34' % LOG2E)
    a('s_waitcnt vmcnt(0)')
    for i in range(8):
        a(f'v_lshlrev_b32 v{8+i}, 16, v{8+i}')
        a(f'v_mul_f32 v{8+i}, s34, v{8+i}')
    for i in range(4):
        a(f'v_cvt_pk_bf16_f32 v{16+i}, v{8+2*i}, v{9+2*i}')
    a('v_lshlrev_b32 v4, 4, v1')
    a('s_lshl_b32 s35, s2, 10')
    a('v_add_u32 v4, s35, v4')
    a('buffer_store_dwordx4 v[16:19], v4, s[28:31], 0 offen')
    a.label('K1_END')
    a('s_endpgm')

def gen_k2(a, opts):
    STAMP = opts.get('stamp', False)
    vLANE = 1; BC = 2
    WB = 4; WV = 36; AX = 68
    GA = 84; HA = 100; GB = 116; HB = 132
    PP = 148; TT_ = 156; ZZ = 164
    DEN = 172; NUM = 176
    AE = [180, 184]; BE = 188; R0 = 192
    QA = [196, 200]
    EN = 204; RA = 208; CO = 212
    pEN = 216; pEE = 217; pQI = 218; pQF = 219
    C4 = 220; SEL = [221, 222]; EE = 223; QF = 224
    F0 = 225; F1 = 226; F2 = 252; F3 = 227
    tA = 227; tB = 228; tC = 229; tD = 230; tE = 231; tF = 232; tG = 233; tH = 234; tI = 235
    TQ = 236; TR = 240
    sidA = 244; jA = 245; sidR = 246; iR4 = 247
    vST = 253; GF = 249; GD = 250
    PB = 228; TB = 236; ZB = 244
    RC = 252; RKC = 254; tJ = 255
    nvgpr = 256
    REC = PP; RK = GB; SG = HB
    G_ = [GA, GB]; H_ = [HA, HB]
    nOFF0 = AE[0]+0 if False else QA[0]; nOFF1 = QA[0]+1; nEND0 = QA[0]+2; nEND1 = QA[0]+3; nROW0 = QA[1]
    S = Regs('s', 3, 102)
    sX = S.alloc('x', 2, 2); sWC = S.alloc('wc', 2, 2); sOUT = S.alloc('out', 2, 2); sWS = S.alloc('ws', 2, 2)
    rX = S.alloc('rX', 4, 4); rT = S.alloc('rT', 4, 4); rR = S.alloc('rR', 4, 4); rF = S.alloc('rF', 4, 4)
    sW = S.alloc('w'); sNS = S.alloc('ns'); sNN = S.alloc('nn')
    sP = S.alloc('pass'); sNP = S.alloc('npass')
    sL = S.alloc('L'); sCNT = S.alloc('cnt'); sLA = S.alloc('La'); sLB = S.alloc('Lb'); sSO = S.alloc('streamoff')
    sC = S.alloc('C', 2, 2)
    sF = [S.alloc('F0', 2, 2), S.alloc('F1', 2, 2)]
    sANY = [S.alloc('any0'), S.alloc('any1')]
    s128 = S.alloc('c128'); sLO = S.alloc('lo16'); sHI = S.alloc('hi16')
    t0 = S.alloc('t0'); t1 = S.alloc('t1'); t2 = S.alloc('t2', 1, 2); t3 = S.alloc('t3')
    sSV = S.alloc('sv', 2, 2); sSV2 = S.alloc('sv2', 2, 2)
    sDB = S.alloc('dmabase'); sSWAP = S.alloc('swap')
    sDBG = S.alloc('dbg', 2, 2) if opts.get('dbgtime') else None
    sT0 = S.alloc('dbgt0', 2, 2) if opts.get('dbgtime') else None
    sT1 = S.alloc('dbgt1') if opts.get('dbgtime') else None
    sT2 = S.alloc('dbgt2') if opts.get('dbgtime') else None
    MK = S.alloc('MK', 32, 2)
    MKC = S.alloc('MKC', 2, 2)
    rO = rT
    nsgpr = S.hi
    def stamp(i):
        if not STAMP: return
        a(f's_memtime s[{t2}:{t3}]')
        a('s_waitcnt lgkmcnt(0)')
        a(f'v_writelane_b32 v{vST}, s{t2}, {i}')
    XB = 4096

    a.raw('.p2align 8')
    a.raw('.globl gs_main_kernel')
    a.raw('.type gs_main_kernel,@function')
    a.label('gs_main_kernel')
    a('s_cmp_ge_u32 s2, 256')
    a('s_cbranch_scc1 K2_END')
    a(f's_load_dwordx2 s[{sWS}:{sWS+1}], s[0:1], 88')
    a(f's_load_dwordx2 s[{sX}:{sX+1}], s[0:1], 0')
    a(f's_load_dwordx2 s[{sWC}:{sWC+1}], s[0:1], 48')
    a(f's_load_dwordx2 s[{sOUT}:{sOUT+1}], s[0:1], 72')
    a('s_and_b32 s3, s2, 7')
    a('s_lshr_b32 s2, s2, 3')
    a('s_lshl_b32 s3, s3, 5')
    a('s_add_u32 s2, s2, s3')
    if opts.get('dbgtime'):
        a(f's_load_dwordx2 s[{sDBG}:{sDBG+1}], s[0:1], 80')
        a(f's_memrealtime s[{sT0}:{sT0+1}]')
        a('s_waitcnt lgkmcnt(0)')
    if STAMP:
        a(f'v_mov_b32 v{vST}, 0')
    stamp(0)
    if STAMP:
        a(f's_memrealtime s[{t2}:{t3}]')
        a('s_waitcnt lgkmcnt(0)')
        a(f'v_writelane_b32 v{vST}, s{t2}, 11')
    a(f'v_lshrrev_b32 v{tA}, 6, v0')
    a(f'v_and_b32 v{vLANE}, 63, v0')
    a(f'v_readfirstlane_b32 s{sW}, v{tA}')
    a(f'v_lshrrev_b32 v{sidA}, 5, v{vLANE}')
    if opts.get('proprio'):
        a('s_nop 2')
        a(f's_cmp_ge_u32 s{sW}, 4')
        a('s_cbranch_scc0 K2_PP0')
        a('s_setprio 1')
        a.label('K2_PP0')
    a(f's_lshl_b32 s{t1}, s2, 10')
    a(f's_add_u32 s{t1}, s{t1}, {WS_TAB}')
    a(f's_lshl_b32 s{t0}, s{sW}, 1')
    a(f'v_add_u32 v{sidA}, s{t0}, v{sidA}')
    a(f'v_lshrrev_b32 v{tD}, 4, v{vLANE}')
    a(f'v_lshlrev_b32 v{tD}, 5, v{tD}')
    a(f's_lshl_b32 s{t0}, s{sW}, 7')
    a(f'v_add_u32 v{tD}, s{t0}, v{tD}')
    a(f'v_lshlrev_b32 v{tA}, 4, v{vLANE}')
    a('s_waitcnt lgkmcnt(0)')
    srd_off(a, rT, sWS, f's{t1}', 1024)
    for i in range(2):
        a(f'buffer_load_dwordx4 v[{SG+4*i}:{SG+4*i+3}], v{tD}, s[{rT}:{rT+3}], 0 offen offset:{16*i}')
    a(f's_mul_i32 s{t0}, s2, 3125')
    a(f's_add_u32 s{sNS}, s{t0}, 31')
    a(f's_lshr_b32 s{sNS}, s{sNS}, 5')
    a(f's_add_u32 s{t0}, s{t0}, {3125+31}')
    a(f's_lshr_b32 s{t0}, s{t0}, 5')
    a(f's_sub_u32 s{sNN}, s{t0}, s{sNS}')
    a(f's_sub_u32 s{rX}, s{sX}, {XB}')
    a(f's_subb_u32 s{rX+1}, s{sX+1}, 0')
    a(f's_and_b32 s{rX+1}, s{rX+1}, 0xffff')
    a(f's_mov_b32 s{rX+2}, {N*128 + XB}')
    a(f's_mov_b32 s{rX+3}, 0x20000')
    srd_off(a, rF, sWS, WS_FRAG, 32 * 1024)
    a(f's_lshl_b32 s{sDB}, s{sW}, 12')
    a(f's_add_u32 s{sDB}, s{sDB}, {L_DMA}')
    a(f'v_bfe_u32 v{tE}, v{vLANE}, 4, 1')
    a(f'v_and_b32 v{tF}, 7, v{vLANE}')
    a(f'v_xor_b32 v{tE}, v{tE}, v{tF}')
    a(f'v_lshlrev_b32 v{tE}, 4, v{tE}')
    for i in range(4):
        if i: a(f'v_xor_b32 v{tF}, {32*i}, v{tE}')
        a(f'v_add_u32 v{CO+i}, {XB - 1024*i}, v{tF if i else tE}')
    a(f'v_bfe_u32 v{jA}, v{vLANE}, 3, 2')
    a(f'v_lshrrev_b32 v{tF}, 5, v{vLANE}')
    a(f'v_lshlrev_b32 v{tE}, 3, v{jA}')
    a(f'v_lshl_add_u32 v{tE}, v{tF}, 2, v{tE}')
    a(f's_lshr_b32 s{t0}, s{sW}, 1')
    a(f's_lshl_b32 s{t1}, s{t0}, 5')
    a(f's_add_u32 s{t1}, s{t1}, s{sNS}')
    a(f's_and_b32 s{t2}, s{sW}, 1')
    a(f's_lshl_b32 s{t2}, s{t2}, 1')
    a(f's_add_u32 s{t1}, s{t1}, s{t2}')
    a(f'v_add_u32 v{tE}, s{t1}, v{tE}')
    a(f'v_lshlrev_b32 v{tE}, 7, v{tE}')
    a(f's_cmp_eq_u32 s{t2}, 0')
    a(f's_cbranch_scc0 K2_XI2')
    a(f'v_add_u32 v{tH}, v{tE}, v{CO}')
    a(f'v_add_u32 v{tI}, v{tE}, v{CO+1}')
    a('s_branch K2_XI')
    a.label('K2_XI2')
    a(f'v_add_u32 v{tH}, v{tE}, v{CO+2}')
    a(f'v_add_u32 v{tI}, v{tE}, v{CO+3}')
    a(f'v_add_u32 v{tH}, 2048, v{tH}')
    a(f'v_add_u32 v{tI}, 2048, v{tI}')
    a.label('K2_XI')
    a(f'v_add_u32 v{tI}, 128, v{tI}')
    a(f'v_and_b32 v{C4}, 31, v{vLANE}')
    def staging():
        a(f's_lshr_b32 s{t0}, s{sW}, 1')
        a(f's_lshl_b32 s{t0}, s{t0}, 12')
        a(f's_and_b32 s{t2}, s{sW}, 1')
        a(f's_lshl_b32 s{t2}, s{t2}, 11')
        a(f's_add_u32 s{t0}, s{t0}, s{t2}')
        a(f's_add_u32 s{t0}, s{t0}, {L_DMA}')
        a(f's_mov_b32 m0, s{t0}')
        a(f'v_lshlrev_b32 v{tA}, 4, v{vLANE}')
        a(f'buffer_load_dwordx4 v{tH}, s[{rX}:{rX+3}], 0 offen lds')
        a(f'buffer_load_dwordx4 v{tI}, s[{rX}:{rX+3}], 0 offen offset:1024 lds')
        a(f's_lshl_b32 s{t0}, s{sW}, 11')
        a(f's_add_u32 s{t1}, s{t0}, {L_DMA + 4*4096}')
        a(f's_mov_b32 m0, s{t1}')
        a(f's_add_u32 s{t2}, s{t0}, {16*1024}')
        a(f'buffer_load_dwordx4 v{tA}, s[{rF}:{rF+3}], s{t2} offen lds')
        a(f'buffer_load_dwordx4 v{tA}, s[{rF}:{rF+3}], s{t2} offen offset:1024 lds')
        a(f's_add_u32 s{t1}, s{t0}, {L_WST}')
        a(f's_mov_b32 m0, s{t1}')
        a('s_nop 0')
        a(f'buffer_load_dwordx4 v{tA}, s[{rF}:{rF+3}], s{t0} offen lds')
        a(f'buffer_load_dwordx4 v{tA}, s[{rF}:{rF+3}], s{t0} offen offset:1024 lds')
        srd(a, rR, sWC, 128)
        a(f'v_lshlrev_b32 v{tE}, 1, v{C4}')
        a(f'buffer_load_ushort v{BC}, v{tE}, s[{rR}:{rR+3}], 0 offen')
        a(f'buffer_load_ushort v{BC+1}, v{tE}, s[{rR}:{rR+3}], 0 offen offset:64')
    staging()
    MKT = (MK + 3) // 4 * 4
    if opts.get('touch', 1):
        srd(a, MKT, sWS, NBK * RECB)
        a(f'v_and_b32 v{tE}, 3, v{vLANE}')
        a(f'v_lshlrev_b32 v{tE}, 21, v{tE}')
        a(f'buffer_load_dword v{F0}, v{tE}, s[{MKT}:{MKT+3}], 0 offen')
        srd(a, MKT + 4, sOUT, N * 128)
        a(f'v_and_b32 v{tE}, 1, v{vLANE}')
        a(f'v_lshlrev_b32 v{tE}, 21, v{tE}')
        a(f'buffer_load_dword v{F1}, v{tE}, s[{MKT+4}:{MKT+7}], 0 offen')
    def lds_init():
        a(f'v_lshlrev_b32 v{tE}, 4, v0')
        for i in range(4):
            a(f'v_mov_b32 v{TR+i}, 0xffff')
        a(f'ds_write_b128 v{tE}, v[{TR}:{TR+3}] offset:{L_ENT}')
        a(f's_cmp_ge_u32 s{sW}, {(ENT_QUADS - 512) // 64}')
        a(f's_cbranch_scc1 K2_I1{tag_i[0]}')
        a(f'ds_write_b128 v{tE}, v[{TR}:{TR+3}] offset:{L_ENT + 512*16}')
        a.label(f'K2_I1{tag_i[0]}')
        assert (ENT_QUADS - 512) % 64 == 0
        for i in range(4):
            a(f'v_mov_b32 v{TR+i}, {L_VIRT}')
        a(f'v_cmp_gt_u32 vcc, {ENT_QUADS // 4}, v0')
        a(f's_and_saveexec_b64 s[{sSV}:{sSV+1}], vcc')
        a(f'ds_write_b128 v{tE}, v[{TR}:{TR+3}] offset:{L_QI}')
        a(f's_mov_b64 exec, s[{sSV}:{sSV+1}]')
        a(f's_cmp_lg_u32 s{sW}, 0')
        a(f's_cbranch_scc1 K2_I2{tag_i[0]}')
        for i in range(4):
            a(f'v_mov_b32 v{TR+i}, 0')
        a(f'ds_write_b128 v{tE}, v[{TR}:{TR+3}] offset:{L_CNT}')
        a(f'v_add_u32 v{tE}, {L_VIRT + 512}, v{tE}')
        a('s_mov_b64 exec, 0xff')
        a(f'ds_write_b128 v{tE}, v[{TR}:{TR+3}]')
        a('s_mov_b64 exec, -1')
        a.label(f'K2_I2{tag_i[0]}')
        tag_i[0] += 1
    tag_i = [0]
    lds_init()
    a(f'v_and_b32 v{tE}, 3, v{vLANE}')
    a(f'v_lshlrev_b32 v{iR4}, 2, v{tE}')
    a(f'v_lshl_add_u32 v{RA}, v{tE}, 3, v{jA}')
    a(f'v_lshrrev_b32 v{tF}, 1, v{jA}')
    a(f'v_lshl_add_u32 v{tE}, v{tE}, 1, v{tF}')
    a(f'v_bfe_u32 v{tF}, v{vLANE}, 2, 1')
    a(f's_lshl_b32 s{t0}, s{sW}, 1')
    a(f'v_add_u32 v{sidR}, s{t0}, v{tF}')
    a(f'v_lshl_add_u32 v{RA}, v{tF}, 2, v{RA}')
    a(f'v_lshrrev_b32 v{tG}, 5, v{vLANE}')
    a(f'v_cmp_eq_u32 vcc, v{tF}, v{tG}')
    a(f'v_xor_b32 v{tE}, v{tE}, v{tG}')
    a(f'v_lshlrev_b32 v{tE}, 4, v{tE}')
    a(f'v_lshl_add_u32 v{RA}, v{RA}, 7, v{tE}')
    a(f'v_mov_b32 v{tF}, 0x3f80')
    a(f'v_cndmask_b32 v{tF}, 0, v{tF}, vcc')
    for q in range(4):
        a(f'v_cmp_eq_u32 vcc, {q}, v{jA}')
        a('s_nop 1')
        a(f'v_cndmask_b32 v{AE[0]+q}, 0, v{tF}, vcc')
        a(f'v_lshlrev_b32 v{AE[1]+q}, 16, v{AE[0]+q}')
    a(f'v_cmp_gt_u32 vcc, 32, v{vLANE}')
    a(f'v_mov_b32 v{tE}, 0x0a0c0100')
    a(f'v_mov_b32 v{tF}, 0x07060100')
    a(f'v_cndmask_b32 v{SEL[0]}, v{tE}, v{tF}, vcc')
    a(f'v_mov_b32 v{tE}, 0x03020a0c')
    a(f'v_mov_b32 v{tF}, 0x03020706')
    a(f'v_cndmask_b32 v{SEL[1]}, v{tE}, v{tF}, vcc')
    a(f's_mov_b32 s{sC}, 0x{C_SCALE:x}')
    a(f's_mov_b32 s{sC+1}, 0x{C_SCALE:x}')
    a(f's_mov_b32 s{s128}, 128')
    a(f's_mov_b32 s{sLO}, 0xffff')
    a(f's_mov_b32 s{sHI}, 0xffff0000')
    a(f'v_and_b32 v{tB}, 15, v{vLANE}')
    a(f'v_lshlrev_b32 v{tB}, 3, v{tB}')
    a(f'v_lshlrev_b32 v{C4}, 2, v{C4}')
    a('s_waitcnt vmcnt(%d) lgkmcnt(0)' % (2 if opts.get('touch', 1) else 0))
    stamp(1)
    a('s_barrier')
    srd(a, rR, sWS, NBK * RECB)
    def rec_loads(vk8, nit):
        for it in range(8):
            a(f'v_mad_u32_u24 v{RK+it}, v{SG+it}, 8, v{vk8}')
        for it in range(nit):
            a(f's_mov_b64 exec, s[{MK+2*it}:{MK+2*it+1}]')
            off = ' offset:128' if it >= 8 else ''
            sk = a.newlabel('skl') if (it >= 8 and opts.get('skipb', 1)) else None
            if sk: a(f's_cbranch_execz {sk}')
            a(f'buffer_load_dwordx2 v[{REC+2*it}:{REC+2*it+1}], v{RK+it%8}, s[{rR}:{rR+3}], 0 offen{off}')
            if sk: a.label(sk)
        a('s_mov_b64 exec, -1')
    a(f'v_lshrrev_b32 v{tC}, 3, v{tB}')
    a(f'v_add_u32 v{tD}, 16, v{tC}')
    for it in range(8):
        a(f'v_cmp_gt_u32_sdwa s[{MK+2*it}:{MK+2*it+1}], v{SG+it}, v{tC} src0_sel:BYTE_3 src1_sel:DWORD')
    for it in range(8):
        a(f'v_cmp_gt_u32_sdwa s[{MK+16+2*it}:{MK+16+2*it+1}], v{SG+it}, v{tD} src0_sel:BYTE_3 src1_sel:DWORD')
    stamp(25)
    rec_loads(tB, 16)
    stamp(26)
    a(f'v_max3_u32 v{tD}, v{SG}, v{SG+1}, v{SG+2}')
    a(f'v_max3_u32 v{tD}, v{tD}, v{SG+3}, v{SG+4}')
    a(f'v_max3_u32 v{tD}, v{tD}, v{SG+5}, v{SG+6}')
    a(f'v_max_u32 v{tD}, v{tD}, v{SG+7}')
    a(f'v_lshrrev_b32 v{tD}, 24, v{tD}')
    a(f'v_cmp_lt_u32 s[{sSV2}:{sSV2+1}], 32, v{tD}')
    a(f's_mov_b64 s[{MKC}:{MKC+1}], 0')
    a(f's_cmp_lg_u64 s[{sSV2}:{sSV2+1}], 0')
    a('s_cbranch_scc1 K2_CSEL')
    a.label('K2_CBACK')

    def gemm_issue():
        a(f's_lshr_b32 s{t0}, s{sW}, 1')
        a(f's_lshl_b32 s{t1}, s{t0}, 12')
        a(f's_add_u32 s{t1}, s{t1}, {L_DMA}')
        a(f'v_add_u32 v{tA}, s{t1}, v{RA}')
        a(f'v_xor_b32 v{tB}, 32, v{tA}')
        a(f'ds_read_b128 v[{AX}:{AX+3}], v{tA}')
        a(f'ds_read_b128 v[{AX+4}:{AX+7}], v{tB}')
        a(f'v_xor_b32 v{tB}, 64, v{tA}')
        a(f'v_xor_b32 v{tC}, 96, v{tA}')
        a(f'ds_read_b128 v[{AX+8}:{AX+11}], v{tB}')
        a(f'ds_read_b128 v[{AX+12}:{AX+15}], v{tC}')
        a(f's_and_b32 s{t2}, s{sW}, 1')
        a(f's_lshl_b32 s{t3}, s{t2}, 13')
        a(f's_add_u32 s{t3}, s{t3}, {L_DMA + 4*4096}')
        a(f'v_lshlrev_b32 v{GF}, 4, v{vLANE}')
        a(f'v_add_u32 v{GF}, s{t3}, v{GF}')
        for f in range(4):
            a(f'ds_read_b128 v[{SG+4*f}:{SG+4*f+3}], v{GF} offset:{f*1024}')
        for f in range(4):
            a(f'ds_read_b128 v[{RK+4*f}:{RK+4*f+3}], v{GF} offset:{(4+f)*1024}')
        a(f's_mul_i32 s{t1}, s{t0}, {32*ROWB}')
        a(f's_lshl_b32 s{t3}, s{t2}, 7')
        a(f's_add_u32 s{t1}, s{t1}, s{t3}')
        a(f's_add_u32 s{t1}, s{t1}, {L_ACC + 512}')
        a(f'v_lshrrev_b32 v{GD}, 5, v{vLANE}')
        a(f'v_mul_u32_u24 v{GD}, {4*ROWB}, v{GD}')
        a(f'v_add3_u32 v{GD}, v{GD}, v{C4}, s{t1}')
    def gemm_mid():
        a('s_waitcnt lgkmcnt(0)')
        for kp in range(4):
            c = '0' if kp == 0 else f'v[{GA}:{GA+15}]'
            a(f'v_mfma_f32_32x32x16_bf16 v[{GA}:{GA+15}], v[{AX+4*kp}:{AX+4*kp+3}], v[{SG+4*kp}:{SG+4*kp+3}], {c}')
            c = '0' if kp == 0 else f'v[{HA}:{HA+15}]'
            a(f'v_mfma_f32_32x32x16_bf16 v[{HA}:{HA+15}], v[{AX+4*kp}:{AX+4*kp+3}], v[{RK+4*kp}:{RK+4*kp+3}], {c}')
    def gemm_mid2():
        a('s_nop 7')
        a('s_nop 3')
    def w_frags():
        a(f'v_lshlrev_b32 v{GF}, 4, v{vLANE}')
        a(f'v_add_u32 v{GF}, {L_WST}, v{GF}')
        for f in range(16):
            dst = (WB + 4*f) if f < 8 else (WV + 4*(f-8))
            if f == 12: a('s_waitcnt lgkmcnt(8)')
            a(f'ds_read_b128 v[{dst}:{dst+3}], v{GF} offset:{f*1024}')
    def gemm_store(tag):
        for i in range(16):
            a(f'v_cvt_pk_bf16_f32 v{GA+i}, v{GA+i}, v{HA+i}')
        a(f's_lshr_b32 s{t0}, s{sW}, 1')
        a(f's_cmp_eq_u32 s{t0}, 3')
        a(f's_cbranch_scc1 K2_RT3{tag}')
        for vv in range(16):
            if vv == 12: a('s_waitcnt lgkmcnt(8)')
            a(f'ds_write_b32 v{GD}, v{GA+vv} offset:{(8*(vv//4) + vv%4) * ROWB}')
        a(f's_branch K2_RTD{tag}')
        a.label(f'K2_RT3{tag}')
        a('s_mov_b32 exec_hi, 0')
        for vv in range(2):
            a(f'ds_write_b32 v{GD}, v{GA+vv} offset:{vv * ROWB}')
        a('s_mov_b64 exec, -1')
        a.label(f'K2_RTD{tag}')
    def consts():
        a(f'v_add_u32 v{RA}, s{sDB}, v{RA}')
        for kp in range(1, 4):
            a(f'v_xor_b32 v{RA+kp}, {32*kp}, v{RA}')
        a(f's_mov_b32 s{t3}, 0x{LOG2E:x}')
        for cc in range(2):
            a(f'v_lshlrev_b32 v{BC+cc}, 16, v{BC+cc}')
            a(f'v_mul_f32 v{BC+cc}, s{t3}, v{BC+cc}')
        a(f'v_cvt_pk_bf16_f32 v{BC}, 0, v{BC}')
        a(f'v_cvt_pk_bf16_f32 v{BC+1}, v{BC+1}, 0')
        a(f'v_cmp_gt_u32 vcc, 32, v{vLANE}')
        a(f'v_mov_b32 v{tG}, 0xb2000000')
        a(f'v_mov_b32 v{tH}, 0xb200')
        a(f'v_cndmask_b32 v{BC}, v{tG}, v{BC}, vcc')
        a(f'v_cndmask_b32 v{BC+1}, v{tH}, v{BC+1}, vcc')

    def hist():
        a(f'v_mov_b32 v{tE}, 1')
        for it in range(NIT):
            if it == 12: a('s_waitcnt lgkmcnt(8)')
            a(f's_mov_b64 exec, s[{MK+2*it}:{MK+2*it+1}]')
            sk = a.newlabel('skh') if (it >= 8 and opts.get('skipb', 1)) else None
            if sk: a(f's_cbranch_execz {sk}')
            a(f'ds_add_rtn_u32 v{RK+it}, v{REC+2*it+1}, v{tE} offset:{L_CNT}')
            if sk: a.label(sk)
        sk = a.newlabel('skhc')
        a(f's_mov_b64 exec, s[{MKC}:{MKC+1}]')
        a(f's_cbranch_execz {sk}')
        a(f'ds_add_rtn_u32 v{RKC}, v{RC+1}, v{tE} offset:{L_CNT}')
        a.label(sk)
        a('s_mov_b64 exec, -1')

    def scan_nodes(tag, mid=None):
        a(f'v_lshlrev_b32 v{tA}, 3, v{vLANE}')
        a(f'ds_read_b64 v[{TQ}:{TQ+1}], v{tA} offset:{L_CNT}')
        a(f'v_mul_u32_u24 v{nROW0}, {2*ROWB}, v{vLANE}')
        a(f'v_add_u32 v{nROW0}, {L_ACC}, v{nROW0}')
        if mid: mid()
        else: a('s_waitcnt lgkmcnt(0)')
        a(f'v_add_u32 v{tE}, 3, v{TQ}')
        a(f'v_add_u32 v{tF}, 3, v{TQ+1}')
        a(f'v_and_b32 v{tE}, -4, v{tE}')
        a(f'v_and_b32 v{tF}, -4, v{tF}')
        a(f'v_add_u32 v{tC}, v{tE}, v{tF}')
        a(f'v_max_u32 v{tB}, v{tE}, v{tF}')
        a(f'v_mov_b32 v{tD}, v{tC}')
        wave_scan(a, 'v_add_u32', tD)
        a(f'v_sub_u32 v{nOFF0}, v{tD}, v{tC}')
        a(f'v_readlane_b32 s{t1}, v{tD}, 63')
        a(f'v_add_u32 v{nOFF1}, v{nOFF0}, v{tE}')
        a(f'v_lshlrev_b32 v{TQ+2}, 2, v{nOFF0}')
        a(f'v_lshlrev_b32 v{TQ+3}, 2, v{nOFF1}')
        a(f'ds_write_b64 v{tA}, v[{TQ+2}:{TQ+3}] offset:{L_TAB}')
        a(f'v_mov_b32 v{nEND0}, v{nOFF1}')
        a(f'v_add_u32 v{nEND1}, v{nOFF1}, v{tF}')
        a(f's_add_u32 s{t1}, s{t1}, 127')
        a(f's_lshr_b32 s{t1}, s{t1}, 7')
        a(f's_lshr_b32 s{t0}, s{t1}, 1')
        a(f's_sub_u32 s{t1}, s{t1}, s{t0}')
        a(f's_lshl_b32 s{sLA}, s{t1}, 2')
        a(f's_lshl_b32 s{sLB}, s{t0}, 2')
        a(f's_sub_u32 s{sSO}, s{sLA}, s{sLB}')
        a(f's_lshl_b32 s{sSO}, s{sSO}, 3')
        a(f's_cmp_lt_u32 s{sW}, 4')
        a(f's_cselect_b32 s{sL}, s{sLA}, s{sLB}')
        a(f's_cselect_b32 s{sSO}, 0, s{sSO}')
        a(f's_lshr_b32 s{sCNT}, s{sL}, 2')
        a(f's_sub_u32 s{sCNT}, s{sCNT}, 1')
    def qi_fill(tag, split):
        B0 = TQ + 2; B1 = TQ + 3; V0 = TR + 1; V1 = TR + 2
        a(f'v_max_u32 v{TR}, v{tE}, v{tF}')
        if split:
            a(f'v_cvt_f32_u32 v{tA}, s{sLA}')
            a(f'v_cvt_f32_u32 v{tD}, s{sLB}')
            a(f'v_rcp_f32 v{tA}, v{tA}')
            a(f'v_rcp_f32 v{tD}, v{tD}')
            a(f's_lshl_b32 s{t0}, s{sLA}, 5')
            a(f's_sub_u32 s{t1}, s{sLA}, s{sLB}')
            a(f's_lshl_b32 s{t1}, s{t1}, 5')
            a(f'v_mul_f32 v{tA}, 0.25, v{tA}')
            a(f'v_mul_f32 v{tD}, 0.25, v{tD}')
            for (OFF, nx, B, Vv) in ((nOFF0, tB, B0, V0), (nOFF1, tC, B1, V1)):
                a(f'v_cmp_gt_u32 vcc, s{t0}, v{OFF}')
                a(f'v_subrev_u32 v{tG}, s{t1}, v{OFF}')
                a('s_nop 0')
                a(f'v_cndmask_b32 v{tG}, v{tG}, v{OFF}, vcc')
                a(f'v_cndmask_b32 v{tH}, v{tD}, v{tA}, vcc')
                a(f'v_cvt_f32_u32 v{tG}, v{tG}')
                a(f'v_add_f32 v{tG}, 2.0, v{tG}')
                a(f'v_mul_f32 v{tG}, v{tH}, v{tG}')
                a(f'v_cvt_u32_f32 v{nx}, v{tG}')
                a(f'v_add_u32 v{nx}, 1, v{nx}')
                a(f'v_mov_b32 v{tG}, s{sLB}')
                a(f'v_mov_b32 v{tH}, s{sLA}')
                a(f'v_cndmask_b32 v{tG}, v{tG}, v{tH}, vcc')
                a(f'v_mov_b32 v{tH}, s{t1}')
                a(f'v_cndmask_b32 v{tH}, v{tH}, 0, vcc')
                a(f'v_lshlrev_b32 v{tG}, 2, v{tG}')
                a(f'v_mad_u32_u24 v{B}, v{nx}, v{tG}, v{tH}')
            a(f's_movk_i32 s{t1}, {VROWB}')
            a(f'v_mov_b32 v{tD}, {L_VIRT}')
            a(f'v_mad_u32_u24 v{V0}, v{tB}, s{t1}, v{tD}')
            a(f'v_mad_u32_u24 v{V1}, v{tC}, s{t1}, v{tD}')
            a(f'v_add_u32 v{tD}, {ROWB}, v{nROW0}')
            for nd, (B, Vv, END, nx) in enumerate(((B0, V0, nEND0, tB), (B1, V1, nEND1, tC))):
                lab = a.newlabel('nosplit')
                a(f'v_lshrrev_b32 v{tG}, 1, v{nx}')
                a(f'v_cmp_lt_u32 vcc, v{B}, v{END}')
                a(f'v_cmp_eq_u32 s[{sSV}:{sSV+1}], s{sW}, v{tG}')
                a(f's_and_b64 vcc, vcc, s[{sSV}:{sSV+1}]')
                a(f's_cbranch_scc0 {lab}')
                lp = a.newlabel('splitlp')
                a.label(lp)
                a(f's_ff1_i32_b64 s{t0}, vcc')
                a(f's_bitset0_b64 vcc, s{t0}')
                a(f'v_readlane_b32 s{t2}, v{nROW0 if nd == 0 else tD}, s{t0}')
                a(f'v_readlane_b32 s{t3}, v{Vv}, s{t0}')
                a(f'v_lshrrev_b32 v{tG}, 0, v{C4}')
                a('s_mov_b32 exec_hi, 0')
                a(f'v_add_u32 v{tH}, s{t2}, v{tG}')
                a(f'ds_read_b32 v{tI}, v{tH} offset:512')
                a(f'v_add_u32 v{tH}, s{t3}, v{tG}')
                a(f'v_mov_b32 v{tG}, s{t2}')
                a(f'v_mov_b32 v{tA}, s{t3}')
                a(f'ds_write_b32 v{tG}, v{tA} offset:768')
                a('s_waitcnt lgkmcnt(1)')
                a(f'ds_write_b32 v{tH}, v{tI} offset:512')
                a('s_mov_b64 exec, -1')
                a(f's_cmp_lg_u64 vcc, 0')
                a(f's_cbranch_scc1 {lp}')
                a.label(lab)
        a(f's_lshl_b32 s{t0}, s{sW}, 2')
        a(f'v_add_u32 v{tA}, s{t0}, v{nOFF0}')
        a(f'v_add_u32 v{tB}, s{t0}, v{nOFF1}')
        a(f'v_add_u32 v{tC}, {ROWB}, v{nROW0}')
        lp = f'K2_QF{tag}'
        a.label(lp)
        a(f's_add_u32 s{t1}, s{t0}, 4')
        a(f'v_cmp_eq_u32 s[{sSV}:{sSV+1}], s{t1}, v{tE}')
        a(f'v_cmp_eq_u32 s[{sSV2}:{sSV2+1}], s{t1}, v{tF}')
        if split:
            a(f'v_add_u32 v{tG}, 4, v{tA}')
            a(f'v_add_u32 v{tH}, 4, v{tB}')
            a(f'v_cmp_eq_u32 vcc, v{tG}, v{B0}')
            a(f's_or_b64 s[{sSV}:{sSV+1}], s[{sSV}:{sSV+1}], vcc')
            a(f'v_cmp_eq_u32 vcc, v{tH}, v{B1}')
            a(f's_or_b64 s[{sSV2}:{sSV2+1}], s[{sSV2}:{sSV2+1}], vcc')
            a(f'v_cmp_ge_u32 vcc, v{tA}, v{B0}')
            a('s_nop 1')
            a(f'v_cndmask_b32 v{tG}, v{nROW0}, v{V0}, vcc')
            a(f'v_cmp_ge_u32 vcc, v{tB}, v{B1}')
            a('s_nop 1')
            a(f'v_cndmask_b32 v{tH}, v{tC}, v{V1}, vcc')
        else:
            a(f'v_mov_b32 v{tG}, v{nROW0}')
            a(f'v_mov_b32 v{tH}, v{tC}')
        a(f'v_or_b32 v{tD}, 0x80000000, v{tG}')
        a(f'v_or_b32 v{tI}, 0x80000000, v{tH}')
        a(f'v_cmp_lt_u32 vcc, s{t0}, v{tE}')
        a(f'v_cndmask_b32 v{tG}, v{tG}, v{tD}, s[{sSV}:{sSV+1}]')
        a(f'v_cndmask_b32 v{tH}, v{tH}, v{tI}, s[{sSV2}:{sSV2+1}]')
        a(f'v_cmp_lt_u32 s[{sSV}:{sSV+1}], s{t0}, v{tF}')
        a('s_mov_b64 exec, vcc')
        a(f'ds_write_b32 v{tA}, v{tG} offset:{L_QI}')
        a(f's_mov_b64 exec, s[{sSV}:{sSV+1}]')
        a(f'ds_write_b32 v{tB}, v{tH} offset:{L_QI}')
        a('s_mov_b64 exec, -1')
        a(f's_add_u32 s{t0}, s{t0}, 32')
        a(f'v_add_u32 v{tA}, 32, v{tA}')
        a(f'v_add_u32 v{tB}, 32, v{tB}')
        a(f'v_cmp_lt_u32 vcc, s{t0}, v{TR}')
        a(f's_cbranch_vccnz {lp}')
    def scatter():
        a('s_waitcnt lgkmcnt(0)')
        for it in range(8):
            a(f's_mov_b64 exec, s[{MK+2*it}:{MK+2*it+1}]')
            a(f'ds_read_b32 v{AX+it}, v{REC+2*it+1} offset:{L_TAB}')
        for it in range(8):
            a(f's_mov_b64 exec, s[{MK+2*it}:{MK+2*it+1}]')
            a('s_waitcnt lgkmcnt(7)')
            a(f'v_lshl_add_u32 v{AX+it}, v{RK+it}, 2, v{AX+it}')
            a(f'ds_write_b32 v{AX+it}, v{REC+2*it} offset:{L_ENT}')
        for it in range(8, 16):
            sk = a.newlabel('sks')
            a(f's_mov_b64 exec, s[{MK+2*it}:{MK+2*it+1}]')
            if opts.get('skipb', 1): a(f's_cbranch_execz {sk}')
            a(f'ds_read_b32 v{AX+it}, v{REC+2*it+1} offset:{L_TAB}')
            a('s_waitcnt lgkmcnt(0)')
            a(f'v_lshl_add_u32 v{AX+it}, v{RK+it}, 2, v{AX+it}')
            a(f'ds_write_b32 v{AX+it}, v{REC+2*it} offset:{L_ENT}')
            a.label(sk)
        sk = a.newlabel('sksc')
        a(f's_mov_b64 exec, s[{MKC}:{MKC+1}]')
        a(f's_cbranch_execz {sk}')
        a(f'ds_read_b32 v{tJ}, v{RC+1} offset:{L_TAB}')
        a('s_waitcnt lgkmcnt(0)')
        a(f'v_lshl_add_u32 v{tJ}, v{RKC}, 2, v{tJ}')
        a(f'ds_write_b32 v{tJ}, v{RC} offset:{L_ENT}')
        a.label(sk)
        a('s_mov_b64 exec, -1')

    def setup_ptrs():
        a(f'v_add_u32 v{tB}, s{sSO}, v{jA}')
        a(f'v_mad_u32_u24 v{tA}, v{sidA}, s{sL}, v{tB}')
        a(f'v_lshlrev_b32 v{pEN}, 4, v{tA}')
        a(f'ds_read_b128 v[{EN}:{EN+3}], v{pEN} offset:{L_ENT}')
        a(f'v_lshlrev_b32 v{pQF}, 2, v{tA}')
        a(f'v_sub_u32 v{pQI}, v{tA}, v{jA}')
        a(f'v_lshlrev_b32 v{pQI}, 2, v{pQI}')
        a(f'v_add_u32 v{pQI}, {L_QI}, v{pQI}')
        a(f'v_mad_u32_u24 v{tA}, v{sidR}, s{sL}, v{tB}')
        a(f'v_lshl_add_u32 v{pEE}, v{tA}, 4, v{iR4}')
        a(f's_mov_b32 m0, s{sDB}')

    def dma_addr():
        return [f'v_mad_u32_u16 v{EN+i}, v{EN+i}, s{s128}, v{CO+i}' for i in range(4)]
    def dma_issue():
        if opts.get('nodma'): return []
        return [f'buffer_load_dwordx4 v{EN+i}, s[{rX}:{rX+3}], 0 offen offset:{1024*i} lds' if i else
                f'buffer_load_dwordx4 v{EN}, s[{rX}:{rX+3}], 0 offen lds' for i in range(4)]

    def main_loop(tag, atomic):
        flush_blocks = []
        PS = [(PP, TT_, ZZ), (PB, TB, ZB)]
        def flush_body(par, j):
            a(f's_bfe_i32 exec_lo, s{sF[par]}, 0x{(1<<16)|(8*j):x}')
            a(f's_bfe_i32 exec_hi, s{sF[par]+1}, 0x{(1<<16)|(8*j):x}')
            a(f'v_add_f32 v{F0}, v{DEN}, v{DEN+1}')
            a(f'v_add_f32 v{F1}, v{NUM}, v{NUM+1}')
            a(f'v_add_f32 v{F2}, v{DEN+2}, v{DEN+3}')
            a(f'v_add_f32 v{F3}, v{NUM+2}, v{NUM+3}')
            a(f'v_mov_b64 v[{DEN}:{DEN+1}], 0')
            a(f'v_mov_b64 v[{NUM}:{NUM+1}], 0')
            if atomic:
                a(f'ds_add_f32 v{QA[par]+j}, v{F0}')
                a(f'ds_add_f32 v{QA[par]+j}, v{F1} offset:256')
                a(f'ds_add_f32 v{QA[par]+j}, v{F2} offset:128')
                a(f'ds_add_f32 v{QA[par]+j}, v{F3} offset:384')
            else:
                a(f'ds_write2_b32 v{QA[par]+j}, v{F0}, v{F1} offset0:0 offset1:64')
                a(f'ds_write2_b32 v{QA[par]+j}, v{F2}, v{F3} offset0:32 offset1:96')
            a(f'v_mov_b64 v[{DEN+2}:{DEN+3}], 0')
            a(f'v_mov_b64 v[{NUM+2}:{NUM+3}], 0')
            a('s_mov_b64 exec, -1')
        def post2(par):
            for j in range(4):
                for cc in range(2):
                    p, t, z = (r + 2*j for r in PS[cc])
                    a(f'v_pk_fma_f32 v[{NUM+2*cc}:{NUM+2*cc+1}], v[{p}:{p+1}], v[{t}:{t+1}], v[{NUM+2*cc}:{NUM+2*cc+1}]')
                    a(f'v_pk_fma_f32 v[{DEN+2*cc}:{DEN+2*cc+1}], v[{p}:{p+1}], v[{z}:{z+1}], v[{DEN+2*cc}:{DEN+2*cc+1}]')
                if opts.get('noflush'): continue
                fl = a.newlabel('fl'); back = a.newlabel('bk')
                a(f's_bitcmp1_b32 s{sANY[par]}, {8*j}')
                a(f's_cbranch_scc1 {fl}')
                a.label(back)
                flush_blocks.append((fl, back, par, j))
        def pre(cur):
            g0 = G_[cur]; h0 = H_[cur]; P_, T_, Z_ = PS[cur]
            for j in range(4):
                g = g0 + 4*j
                a(f'v_pk_fma_f32 v[{g}:{g+1}], v[{g}:{g+1}], s[{sC}:{sC+1}], s[{sC}:{sC+1}] clamp')
                a(f'v_pk_fma_f32 v[{g+2}:{g+3}], v[{g+2}:{g+3}], s[{sC}:{sC+1}], s[{sC}:{sC+1}] clamp')
            for j in range(4):
                g = g0 + 4*j; h = h0 + 4*j
                X = f'v[{g}:{g+1}]'; Y = f'v[{g+2}:{g+3}]'
                p = P_ + 2*j; t = T_ + 2*j; z = Z_ + 2*j
                a(f'v_pk_mul_f32 v[{t}:{t+1}], {Y}, v[{h}:{h+1}]')
                a(f'v_pk_mul_f32 v[{p}:{p+1}], {X}, {Y}')
                a(f'v_pk_add_f32 v[{z}:{z+1}], {X}, {Y}')
                a(f'v_pk_fma_f32 v[{t}:{t+1}], {X}, v[{h+2}:{h+3}], v[{t}:{t+1}]')
        def mfma_list(nxt, cc):
            Gs = f'v[{G_[nxt]}:{G_[nxt]+15}]'; Hs = f'v[{H_[nxt]}:{H_[nxt]+15}]'
            out = []
            for kp in range(4):
                wb = WB + 16*cc + 4*kp; wv = WV + 16*cc + 4*kp; ax = AX + 4*kp
                out.append(f'v_mfma_f32_32x32x16_bf16 {Hs}, v[{ax}:{ax+3}], v[{wv}:{wv+3}], {"0" if kp == 0 else Hs}')
                out.append(f'v_mfma_f32_32x32x16_bf16 {Gs}, v[{ax}:{ax+3}], v[{wb}:{wb+3}], {"0" if kp == 0 else Gs}')
            out.append(f'v_mfma_f32_32x32x16_bf16 {Gs}, v[{AE[cc]}:{AE[cc]+3}], v[{BE}:{BE+3}], {Gs}')
            return out
        def trans_list(cur):
            Pp = PS[cur ^ 1][0]
            return [f'v_rcp_f32 v{Pp+i}, v{Pp+i}' for i in range(8)] + [f'v_exp_f32 v{G_[cur]+i}, v{G_[cur]+i}' for i in range(16)]
        def weave(mf, tr, gaps):
            dist = [3, 3, 3, 3, 3, 3, 2, 2, 2]
            if opts.get('nogaps'): gaps = {}
            if opts.get('nomf'): mf = None
            k = 0
            for m in range(9):
                for ins in gaps.get(('m', m), []): a(ins)
                if mf: a(mf[m])
                for _ in range(dist[m]):
                    a(tr[k])
                    for ins in gaps.get(k, []): a(ins)
                    k += 1
            assert k == len(tr)
        def stage0(par):
            g = {}
            da = dma_addr()
            g[0] = [f'ds_read_b32 v{QF}, v{pQF} offset:{L_QI + 16*(par+1)}']
            g[1] = [f'ds_read_b32 v{EE}, v{pEE} offset:{L_ENT + 64*(par+1)}']
            g[3] = [f'v_and_or_b32 v{BE}, v{R0}, s{sHI}, v{BC+1}']
            g[6] = [da[0]]; g[9] = [da[1]]; g[12] = [da[2]]; g[15] = [da[3]]
            axr = [f'ds_read_b128 v[{AX+4*kp}:{AX+4*kp+3}], v{RA+kp}' for kp in range(4)]
            early = opts.get('axearly', 0)
            if early:
                for kp, gp in enumerate(opts.get('axgaps', (8, 11, 17, 21))):
                    g.setdefault(gp, [])
                    g[gp] = g[gp] + ((['s_waitcnt vmcnt(0)'] if kp == 0 else []) + [axr[kp]])
            weave(mfma_list(1, 1), trans_list(0), g)
            axpre = opts.get('axpre', 1)
            if axpre and not early and not opts.get('nogaps'):
                a('s_waitcnt vmcnt(0)')
                for ins in axr: a(ins)
            post2(par ^ 1)
            qn = QA[par ^ 1]
            if not opts.get('nogaps'):
                a(f'ds_read_b128 v[{qn}:{qn+3}], v{pQI} offset:{16*(par+1)}')
                if not early and not axpre:
                    a('s_waitcnt vmcnt(0)')
                    for ins in axr: a(ins)
            pre(0)
            a(f's_sub_u32 s{sCNT}, s{sCNT}, 1')
        def stage1(par):
            qn = QA[par ^ 1]
            g = {}
            di = dma_issue()
            g[('m', 0)] = ['s_waitcnt lgkmcnt(0)']
            g[0] = [f'v_mad_u32_u24 v{qn}, v{qn}, 1, v{C4}'] + di[0:1]
            g[1] = [f'v_mad_u32_u24 v{qn+1}, v{qn+1}, 1, v{C4}'] + di[1:2]
            g[2] = [f'ds_read_b32 v{R0}, v{qn} offset:512'] + di[2:3]
            g[3] = [f'v_mad_u32_u24 v{qn+2}, v{qn+2}, 1, v{C4}', f'ds_read_b32 v{BE+1}, v{qn+1} offset:512'] + di[3:4]
            g[4] = [f'v_mad_u32_u24 v{qn+3}, v{qn+3}, 1, v{C4}', f'ds_read_b32 v{BE+2}, v{qn+2} offset:512']
            g[5] = [f'ds_read_b32 v{BE+3}, v{qn+3} offset:512']
            g[6] = [f'ds_read_b128 v[{EN}:{EN+3}], v{pEN} offset:{L_ENT + 64*(par+3)}']
            g[7] = [f'v_perm_b32 v{AE[0]}, v{EE}, v{AE[0]}, v{SEL[0]}']
            g[9] = [f'v_perm_b32 v{AE[1]}, v{EE}, v{AE[1]}, v{SEL[1]}']
            g[11] = [f'v_cmp_gt_i32 s[{sF[par^1]}:{sF[par^1]+1}], 0, v{QF}']
            if par == 1:
                g[13] = [f'v_add_u32 v{pQI}, 32, v{pQI}']
                g[14] = [f'v_add_u32 v{pQF}, 32, v{pQF}']
                g[15] = [f'v_add_u32 v{pEE}, 128, v{pEE}']
                g[16] = [f'v_add_u32 v{pEN}, 128, v{pEN}']
            g[17] = [f's_or_b32 s{sANY[par^1]}, s{sF[par^1]}, s{sF[par^1]+1}'] if not opts.get('noany') else [f's_mov_b32 s{sANY[par^1]}, 0']
            g[19] = ['s_waitcnt lgkmcnt(0)', f'v_and_or_b32 v{BE}, v{R0}, s{sLO}, v{BC}']
            weave(mfma_list(0, 0), trans_list(1), g)
            pre(1)
        def last_stage1(par):
            weave(None, trans_list(1), {})
            pre(1)
            for i in range(8):
                a(f'v_rcp_f32 v{PB+i}, v{PB+i}')
            a('s_nop 0')
            post2(par)
        L0 = f'K2_T0{tag}'; E0 = f'K2_E0{tag}'; E1 = f'K2_E1{tag}'; DONE = f'K2_MD{tag}'
        PR = opts.get('prio', 1)
        if PR:
            a(f's_add_u32 s{t0}, s{sCNT}, 1')
            a(f's_mul_i32 s{t0}, s{t0}, {opts.get("pfrac", 20)}')
            a(f's_lshr_b32 s{t0}, s{t0}, 6')
            a(f's_lshl_b32 s{t0}, s{t0}, 1')
            a(f's_sub_u32 s{sSWAP}, s{sCNT}, s{t0}')
            a(f's_cmp_ge_u32 s{sW}, 4')
            a(f's_cbranch_scc0 K2_PR0{tag}')
            a('s_setprio 1')
            a.label(f'K2_PR0{tag}')
        if PR == 3:
            a(f's_cmp_ge_u32 s{sW}, 4')
            a(f's_cselect_b32 s{sSWAP}, 1, 0')
        a.label(L0)
        if PR == 3:
            a(f's_xor_b32 s{sSWAP}, s{sSWAP}, 1')
            a(f's_cbranch_scc1 K2_PH{tag}')
            a('s_setprio 0')
            a(f's_branch K2_PD{tag}')
            a.label(f'K2_PH{tag}')
            a('s_setprio 1')
            a.label(f'K2_PD{tag}')
        elif PR:
            a(f's_cmp_eq_u32 s{sCNT}, s{sSWAP}')
            a(f's_cbranch_scc1 K2_SWP{tag}')
            a.label(f'K2_SWB{tag}')
        stage0(0)
        a(f's_cbranch_scc1 {E0}')
        stage1(0)
        stage0(1)
        a(f's_cbranch_scc1 {E1}')
        stage1(1)
        a(f's_branch {L0}')
        a.label(E0)
        last_stage1(0)
        a(f's_branch {DONE}')
        a.label(E1)
        last_stage1(1)
        a(f's_branch {DONE}')
        if PR and PR != 3:
            a.label(f'K2_SWP{tag}')
            a(f's_cmp_ge_u32 s{sW}, 4')
            a(f's_cbranch_scc1 K2_SW0{tag}')
            a('s_setprio 1')
            a(f's_branch K2_SWB{tag}')
            a.label(f'K2_SW0{tag}')
            a('s_setprio 0')
            a(f's_branch K2_SWB{tag}')
        for (fl, back, par, j) in flush_blocks:
            a.label(fl)
            flush_body(par, j)
            a(f's_branch {back}')
        a.label(DONE)
        if PR: a('s_setprio 0')

    def pipeline_fill():
        q0 = QA[0]
        a(f'ds_read_b128 v[{q0}:{q0+3}], v{pQI}')
        a(f'ds_read_b32 v{QF}, v{pQF} offset:{L_QI}')
        a(f'ds_read_b32 v{EE}, v{pEE} offset:{L_ENT}')
        a(f'ds_read_b128 v[{EN}:{EN+3}], v{pEN} offset:{L_ENT + 64}')
        for i in range(2):
            a(f'v_mov_b64 v[{DEN+2*i}:{DEN+2*i+1}], 0')
            a(f'v_mov_b64 v[{NUM+2*i}:{NUM+2*i+1}], 0')
        for i in range(8):
            a(f'v_mov_b32 v{PP+i}, 1.0')
            a(f'v_mov_b32 v{PB+i}, 1.0')
        for i in range(4):
            a(f'v_mov_b64 v[{TT_+2*i}:{TT_+2*i+1}], 0')
            a(f'v_mov_b64 v[{ZZ+2*i}:{ZZ+2*i+1}], 0')
            a(f'v_mov_b64 v[{TB+2*i}:{TB+2*i+1}], 0')
            a(f'v_mov_b64 v[{ZB+2*i}:{ZB+2*i+1}], 0')
        a(f's_mov_b32 s{sANY[1]}, 0')
        a('s_waitcnt lgkmcnt(0)')
        for q in range(4):
            a(f'v_mad_u32_u24 v{q0+q}, v{q0+q}, 1, v{C4}')
        a(f'ds_read_b32 v{R0}, v{q0} offset:512')
        for q in range(1, 4):
            a(f'ds_read_b32 v{BE+q}, v{q0+q} offset:512')
        a(f'v_perm_b32 v{AE[0]}, v{EE}, v{AE[0]}, v{SEL[0]}')
        a(f'v_perm_b32 v{AE[1]}, v{EE}, v{AE[1]}, v{SEL[1]}')
        a(f'v_cmp_gt_i32 s[{sF[0]}:{sF[0]+1}], 0, v{QF}')
        for ins in dma_addr(): a(ins)
        stamp(21)
        a('s_waitcnt vmcnt(0)')
        stamp(22)
        for kp in range(4):
            a(f'ds_read_b128 v[{AX+4*kp}:{AX+4*kp+3}], v{RA+kp}')
        a(f's_or_b32 s{sANY[0]}, s{sF[0]}, s{sF[0]+1}')
        a('s_waitcnt lgkmcnt(0)')
        a(f'v_and_or_b32 v{BE}, v{R0}, s{sLO}, v{BC}')
        for ins in dma_issue(): a(ins)
        a(f'ds_read_b128 v[{EN}:{EN+3}], v{pEN} offset:{L_ENT + 128}')
        Gs = f'v[{GA}:{GA+15}]'; Hs = f'v[{HA}:{HA+15}]'
        for kp in range(4):
            a(f'v_mfma_f32_32x32x16_bf16 {Hs}, v[{AX+4*kp}:{AX+4*kp+3}], v[{WV+4*kp}:{WV+4*kp+3}], {"0" if kp == 0 else Hs}')
            a(f'v_mfma_f32_32x32x16_bf16 {Gs}, v[{AX+4*kp}:{AX+4*kp+3}], v[{WB+4*kp}:{WB+4*kp+3}], {"0" if kp == 0 else Gs}')
        a(f'v_mfma_f32_32x32x16_bf16 {Gs}, v[{AE[0]}:{AE[0]+3}], v[{BE}:{BE+3}], {Gs}')
        a('s_waitcnt lgkmcnt(0)')
        a('s_nop 7')
        a('s_nop 3')
    def forced_flags():
        a(f's_sub_u32 s{t1}, s{sL}, 1')
        a(f's_lshl_b32 s{t1}, s{t1}, 2')
        a(f'v_add_u32 v{tB}, s{t1}, v{pQI}')
        a(f'v_mov_b32 v{tA}, 0x80000000')
        a('s_mov_b32 exec_lo, 1')
        a('s_mov_b32 exec_hi, 1')
        a(f'ds_or_b32 v{tB}, v{tA}')
        a('s_mov_b64 exec, -1')

    stamp(2)
    a(f's_mov_b64 exec, s[{sSV2}:{sSV2+1}]')
    a(f'v_mov_b32 v{tD}, {L_CNT + 127*4}')
    a(f'v_mov_b32 v{tE}, 1')
    a(f'ds_write_b32 v{tD}, v{tE}')
    a('s_mov_b64 exec, -1')
    gemm_issue()
    stamp(28)
    gemm_mid()
    gemm_mid2()
    stamp(29)
    a(f's_cmp_lg_u32 s{sW}, 0')
    a('s_cbranch_scc1 K2_NOCI')
    a(f'v_mul_u32_u24 v{tA}, {2*ROWB}, v{vLANE}')
    a(f'v_mov_b32 v{tB}, {L_ZERO}')
    a(f'v_add_u32 v{tA}, {L_ACC}, v{tA}')
    a(f's_mov_b32 exec_hi, {(1 << (MAXN // 2 - 32)) - 1}')
    a(f'ds_write_b32 v{tA}, v{tB} offset:768')
    a(f'ds_write_b32 v{tA}, v{tB} offset:{768 + ROWB}')
    a('s_mov_b64 exec, -1')
    a.label('K2_NOCI')
    gemm_store('F')
    stamp(3)
    a('s_waitcnt vmcnt(0) lgkmcnt(0)')
    stamp(23)
    hist()
    a('s_waitcnt lgkmcnt(0)')
    stamp(24)
    if opts.get('proprio') == 1: a('s_setprio 0')
    a('s_barrier')
    stamp(4)
    scan_nodes('F')
    a(f'v_readlane_b32 s{t0}, v{TQ+1}, 63')
    a(f's_cmp_eq_u32 s{sLB}, 0')
    a(f's_cselect_b32 s{t1}, s{sLA}, s{sLB}')
    a(f's_lshl_b32 s{t1}, s{t1}, 2')
    a(f'v_cmp_lt_u32 vcc, s{t1}, v{tB}')
    a(f's_cmp_lg_u32 s{t0}, 0')
    a('s_cbranch_scc1 K2_SLOW')
    a(f's_add_u32 s{t1}, s{sLA}, s{sLB}')
    a(f's_cmp_gt_u32 s{t1}, {(ENT_QUADS - 8) // 8}')
    a('s_cbranch_scc1 K2_SLOW')
    a('s_cbranch_vccnz K2_SLOW')
    stamp(15)
    scatter()
    stamp(16)
    a('s_waitcnt lgkmcnt(0)')
    a('s_barrier')
    stamp(5)
    a(f's_cmp_eq_u32 s{sL}, 0')
    a('s_cbranch_scc1 K2_NOL')
    setup_ptrs()
    a('s_waitcnt lgkmcnt(0)')
    for ins in dma_addr(): a(ins)
    for ins in dma_issue(): a(ins)
    a.label('K2_NOL')
    stamp(17)
    a(f'v_cmp_gt_u32 vcc, {MAXN // 2}, v{vLANE}')
    a(f'v_lshl_or_b32 v{tB}, v{vLANE}, 1, 1')
    a(f'v_cmp_le_u32 s[{sSV}:{sSV+1}], s{sNN}, v{tB}')
    a(f'v_mov_b32 v{tC}, 1')
    a('s_nop 0')
    a(f'v_cndmask_b32 v{tB}, v{TQ+1}, v{tC}, s[{sSV}:{sSV+1}]')
    a(f'v_min_u32 v{tB}, v{TQ}, v{tB}')
    a(f'v_cmp_eq_u32 s[{sSV}:{sSV+1}], 0, v{tB}')
    a(f's_and_b64 s[{sSV}:{sSV+1}], s[{sSV}:{sSV+1}], vcc')
    a('s_cbranch_scc1 K2_ZROWS')
    a.label('K2_ZBACK')
    qi_fill('F', True)
    stamp(18)
    w_frags()
    consts()
    a('s_waitcnt lgkmcnt(0)')
    stamp(19)
    if opts.get('proprio') == 2: a('s_setprio 0')
    a('s_barrier')
    stamp(20)
    a(f's_cmp_eq_u32 s{sL}, 0')
    a('s_cbranch_scc1 K2_EPI')
    pipeline_fill()
    stamp(6)
    if opts.get('dbgtime'):
        a(f's_memrealtime s[{t2}:{t3}]')
        a('s_waitcnt lgkmcnt(0)')
        a(f's_mov_b32 s{sT1}, s{t2}')
    if STAMP:
        a(f's_memrealtime s[{t2}:{t3}]')
        a('s_waitcnt lgkmcnt(0)')
        a(f'v_writelane_b32 v{vST}, s{t2}, 13')
    if opts.get('half'):
        a(f's_cmp_ge_u32 s{sW}, 4')
        a('s_cbranch_scc1 K2_MDF')
    main_loop('F', False)
    stamp(7)
    if opts.get('dbgtime'):
        a(f's_memrealtime s[{t2}:{t3}]')
        a('s_waitcnt lgkmcnt(0)')
        a(f's_mov_b32 s{sT2}, s{t2}')
    if STAMP:
        a(f's_memrealtime s[{t2}:{t3}]')
        a('s_waitcnt lgkmcnt(0)')
        a(f'v_writelane_b32 v{vST}, s{t2}, 14')
    a.label('K2_EPI')
    e0 = 4
    XV = [e0, e0 + 4]; UU = [e0 + 8, e0 + 12]
    DN = [e0 + 16, e0 + 48]; NM = [e0 + 24, e0 + 56]; CD = [e0 + 32, e0 + 64]; CN = [e0 + 40, e0 + 72]
    O = e0 + 80; ADR = [e0 + 84, e0 + 85]; GO = [e0 + 86, e0 + 87]; CP = [e0 + 88, e0 + 89]; OC = [e0 + 90, e0 + 91]
    T1 = e0 + 92; ND = e0 + 93
    def epi_addr(r):
        a(f'v_add_u32 v{T1}, {512*r}, v0') if r else a(f'v_mov_b32 v{T1}, v0')
        a(f'v_lshrrev_b32 v{ND}, 3, v{T1}')
        a(f'v_and_b32 v{T1}, 7, v{T1}')
        a(f'v_lshlrev_b32 v{OC[r]}, 4, v{T1}')
        a(f'v_mul_u32_u24 v{CP[r]}, s{t0}, v{ND}')
        a(f'v_add_u32 v{CP[r]}, {L_ACC}, v{CP[r]}')
        a(f'v_add_u32 v{ADR[r]}, v{CP[r]}, v{OC[r]}')
        a(f'v_add_u32 v{GO[r]}, s{sNS}, v{ND}')
        a(f'v_lshlrev_b32 v{GO[r]}, 7, v{GO[r]}')
        a(f'v_lshl_add_u32 v{GO[r]}, v{T1}, 3, v{GO[r]}')
    def epi_static(r, carry):
        a(f'buffer_load_dwordx2 v[{XV[r]}:{XV[r]+1}], v{GO[r]}, s[{rF}:{rF+3}], 0 offen')
        a(f'buffer_load_dwordx2 v[{XV[r]+2}:{XV[r]+3}], v{GO[r]}, s[{rF}:{rF+3}], 0 offen offset:64')
        a(f'ds_read_b128 v[{UU[r]}:{UU[r]+3}], v{ADR[r]} offset:640')
        if carry: a(f'ds_read_b32 v{CP[r]}, v{CP[r]} offset:768')
    def epi_reads(r, carry):
        ad = ADR[r]
        a(f'ds_read_b128 v[{DN[r]}:{DN[r]+3}], v{ad}')
        a(f'ds_read_b128 v[{DN[r]+4}:{DN[r]+7}], v{ad} offset:128')
        a(f'ds_read_b128 v[{NM[r]}:{NM[r]+3}], v{ad} offset:256')
        a(f'ds_read_b128 v[{NM[r]+4}:{NM[r]+7}], v{ad} offset:384')
        if carry:
            a(f'ds_read_b128 v[{CD[r]}:{CD[r]+3}], v{CP[r]}')
            a(f'ds_read_b128 v[{CD[r]+4}:{CD[r]+7}], v{CP[r]} offset:128')
            a(f'ds_read_b128 v[{CN[r]}:{CN[r]+3}], v{CP[r]} offset:256')
            if r == 1: a('s_waitcnt lgkmcnt(14)')
            a(f'ds_read_b128 v[{CN[r]+4}:{CN[r]+7}], v{CP[r]} offset:384')
    def epi_math(r, carry):
        dn, nm, cd, cn, uu, xv = DN[r], NM[r], CD[r], CN[r], UU[r], XV[r]
        if carry:
            for i in range(0, 8, 2):
                a(f'v_pk_add_f32 v[{dn+i}:{dn+i+1}], v[{dn+i}:{dn+i+1}], v[{cd+i}:{cd+i+1}]')
                a(f'v_pk_add_f32 v[{nm+i}:{nm+i+1}], v[{nm+i}:{nm+i+1}], v[{cn+i}:{cn+i+1}]')
        for i in range(0, 8, 2):
            a(f'v_pk_add_f32 v[{dn+i}:{dn+i+1}], v[{dn+i}:{dn+i+1}], s[{sC}:{sC+1}]')
        for i in range(8):
            a(f'v_rcp_f32 v{dn+i}, v{dn+i}')
        for i in range(4):
            a(f'v_lshlrev_b32 v{cd+i}, 16, v{uu+i}')
            a(f'v_and_b32 v{cd+4+i}, s{sHI}, v{uu+i}')
        for i in range(0, 8, 2):
            a(f'v_pk_fma_f32 v[{nm+i}:{nm+i+1}], v[{nm+i}:{nm+i+1}], v[{dn+i}:{dn+i+1}], v[{cd+i}:{cd+i+1}]')
        for i in range(8):
            a(f'v_max_f32 v{nm+i}, 0, v{nm+i}')
        for i in range(4):
            a(f'v_lshlrev_b32 v{cd+2*i}, 16, v{xv+i}')
            a(f'v_and_b32 v{cd+2*i+1}, s{sHI}, v{xv+i}')
        for i in range(0, 8, 2):
            a(f'v_pk_add_f32 v[{nm+i}:{nm+i+1}], v[{nm+i}:{nm+i+1}], v[{cd+i}:{cd+i+1}]')
        for i in range(4):
            a(f'v_cvt_pk_bf16_f32 v{O+i}, v{nm+2*i}, v{nm+2*i+1}')
        osf = {0: '', 1: ' sc1', 2: ' nt', 3: ' sc0 sc1'}[opts.get('outst', 1)]
        a(f'buffer_store_dwordx2 v[{O}:{O+1}], v{GO[r]}, s[{rO}:{rO+3}], 0 offen' + osf)
        a(f'buffer_store_dwordx2 v[{O+2}:{O+3}], v{GO[r]}, s[{rO}:{rO+3}], 0 offen offset:64' + osf)
    def epilogue(tag, carry):
        srd(a, rO, sOUT, N * 128)
        srd(a, rF, sX, N * 128)
        a(f's_mov_b32 s{t0}, {ROWB}')
        a(f's_mov_b32 s{sC}, 0x{EPS_SCALED:x}')
        a(f's_mov_b32 s{sC+1}, 0x{EPS_SCALED:x}')
        a(f's_mov_b32 s{sHI}, 0xffff0000')
        a('s_waitcnt vmcnt(0)')
        epi_addr(0)
        epi_static(0, carry)
        epi_addr(1)
        a(f'v_cmp_gt_u32 s[{sSV}:{sSV+1}], s{sNN}, v{ND}')
        a('s_nop 3')
        a(f's_mov_b64 exec, s[{sSV}:{sSV+1}]')
        a(f's_cbranch_execz K2_NS2{tag}')
        epi_static(1, carry)
        a.label(f'K2_NS2{tag}')
        a('s_mov_b64 exec, -1')
        a('s_waitcnt lgkmcnt(0)')
        if carry:
            a(f'v_add_u32 v{CP[0]}, v{CP[0]}, v{OC[0]}')
            a(f'v_add_u32 v{CP[1]}, v{CP[1]}, v{OC[1]}')
        a('s_barrier')
        if STAMP and tag == 'F': stamp(8)
        epi_reads(0, carry)
        a(f's_mov_b64 exec, s[{sSV}:{sSV+1}]')
        a(f's_cbranch_execz K2_ONE{tag}')
        epi_reads(1, carry)
        a('s_mov_b64 exec, -1')
        a(f's_waitcnt vmcnt(0) lgkmcnt({8 if carry else 4})')
        epi_math(0, carry)
        a(f's_mov_b64 exec, s[{sSV}:{sSV+1}]')
        a('s_waitcnt lgkmcnt(0)')
        epi_math(1, carry)
        a(f's_branch K2_FIN{tag}')
        a.label(f'K2_ONE{tag}')
        a('s_mov_b64 exec, -1')
        a('s_waitcnt vmcnt(0) lgkmcnt(0)')
        epi_math(0, carry)
        a.label(f'K2_FIN{tag}')
    epilogue('F', True)
    if opts.get('dbgtime'):
        a('s_mov_b64 exec, -1')
        a('s_waitcnt vmcnt(0)')
        a(f's_memrealtime s[{t2}:{t3}]')
        a(f's_cmp_lg_u32 s{sW}, 7')
        a('s_cbranch_scc1 K2_DBGX')
        a('s_and_b32 s3, s2, 31')
        a('s_cmp_lg_u32 s3, 0')
        a('s_cbranch_scc1 K2_DBGX')
        a('s_lshr_b32 s3, s2, 5')
        a('s_cmp_ge_u32 s3, 2')
        a('s_cbranch_scc1 K2_DBGX')
        a(f's_lshl_b32 s{t0}, s3, 2')
        a(f's_add_u32 s{t0}, s{t0}, 0x1200000')
        a(f'v_mov_b32 v4, s{t0}')
        a(f'global_load_dword v5, v4, s[{sWS}:{sWS+1}]')
        a(f'global_load_dword v6, v4, s[{sWS}:{sWS+1}] offset:256')
        a('s_waitcnt vmcnt(0) lgkmcnt(0)')
        a(f'v_sub_u32 v8, v6, v5')
        a(f'v_sub_u32 v9, s{sT0}, v5')
        a(f'v_sub_u32 v10, s{sT1}, v5')
        a(f'v_sub_u32 v11, s{sT2}, v5')
        a(f'v_sub_u32 v12, s{t2}, v5')
        a('s_lshl_b32 s3, s3, 5')
        a('v_mov_b32 v4, s3')
        a('s_mov_b64 exec, 1')
        a(f'global_store_dwordx4 v4, v[8:11], s[{sDBG}:{sDBG+1}]')
        a(f'global_store_dword v4, v12, s[{sDBG}:{sDBG+1}] offset:16')
        a.label('K2_DBGX')
    if STAMP:
        a('s_mov_b64 exec, -1')
        a('s_waitcnt vmcnt(0)')
        stamp(9)
        a(f's_memrealtime s[{t2}:{t3}]')
        a('s_waitcnt lgkmcnt(0)')
        a(f'v_writelane_b32 v{vST}, s{t2}, 12')
        a(f's_mul_i32 s{t0}, s2, {NW}')
        a(f's_add_u32 s{t0}, s{t0}, s{sW}')
        a(f's_lshl_b32 s{t0}, s{t0}, 8')
        a(f's_add_u32 s{t0}, s{t0}, 0x1000000')
        srd_off(a, rT, sWS, f's{t0}', 256)
        a(f'v_writelane_b32 v{vST}, s{sL}, 10')
        a(f'v_lshlrev_b32 v4, 2, v{vLANE}')
        a(f'buffer_store_dword v{vST}, v4, s[{rT}:{rT+3}], 0 offen')
    a('s_endpgm')
    a.label('K2_CSEL')
    a(f'v_mov_b32 v{tD}, 0')
    a(f'v_mov_b32 v{tE}, 0')
    a(f'v_mov_b32 v{tF}, 0')
    for it in range(8):
        a(f'v_lshrrev_b32 v{tG}, 24, v{SG+it}')
        a(f'v_cmp_lt_u32 vcc, 32, v{tG}')
        a(f'v_mad_u32_u24 v{tJ}, v{SG+it}, 8, v{tB}')
        a(f'v_add_u32 v{RKC}, 1, v{tF}')
        a(f'v_cndmask_b32 v{tD}, v{tD}, v{tJ}, vcc')
        a(f'v_cndmask_b32 v{tE}, v{tE}, v{tG}, vcc')
        a(f'v_cndmask_b32 v{tF}, v{tF}, v{RKC}, vcc')
    a(f'v_cmp_lt_u32 vcc, 1, v{tF}')
    a(f'v_cmp_lt_u32 s[{sSV2}:{sSV2+1}], 48, v{tE}')
    a(f'v_add_u32 v{tG}, 32, v{tC}')
    a(f's_or_b64 s[{sSV2}:{sSV2+1}], s[{sSV2}:{sSV2+1}], vcc')
    a(f'v_cmp_gt_u32 s[{MKC}:{MKC+1}], v{tE}, v{tG}')
    a('s_nop 0')
    a(f's_mov_b64 exec, s[{MKC}:{MKC+1}]')
    a(f'buffer_load_dwordx2 v[{RC}:{RC+1}], v{tD}, s[{rR}:{rR+3}], 0 offen offset:256')
    a('s_mov_b64 exec, -1')
    a('s_branch K2_CBACK')
    a.label('K2_ZROWS')
    a(f's_mov_b64 exec, s[{sSV}:{sSV+1}]')
    for i in range(4):
        a(f'v_mov_b32 v{TR+i}, 0')
    for nd in range(2):
        a(f'v_cmp_eq_u32 vcc, 0, v{TQ+nd}')
        a(f's_and_b64 exec, vcc, s[{sSV}:{sSV+1}]')
        for k in range(32):
            a(f'ds_write_b128 v{nROW0}, v[{TR}:{TR+3}] offset:{nd*ROWB + 16*k}')
        a(f's_mov_b64 exec, s[{sSV}:{sSV+1}]')
    a('s_mov_b64 exec, -1')
    a('s_branch K2_ZBACK')

    a.label('K2_SLOW')
    w_frags()
    consts()
    a('s_waitcnt vmcnt(0) lgkmcnt(0)')
    a('s_barrier')
    a(f's_lshl_b32 s{t1}, s2, 10')
    a(f's_add_u32 s{t1}, s{t1}, {WS_TAB2}')
    srd_off(a, rT, sWS, f's{t1}', 1024)
    a(f'v_lshlrev_b32 v{tA}, 4, v{vLANE}')
    a(f'buffer_load_dwordx4 v[{TQ}:{TQ+3}], v{tA}, s[{rT}:{rT+3}], 0 offen')
    a('s_waitcnt vmcnt(0)')
    a(f'v_max_u32 v{tE}, v{TQ}, v{TQ+1}')
    a(f'v_max3_u32 v{tE}, v{tE}, v{TQ+2}, v{TQ+3}')
    wave_scan(a, 'v_max_u32', tE)
    a('s_nop 0')
    a(f'v_readlane_b32 s{t1}, v{tE}, 63')
    a(f's_add_u32 s{t1}, s{t1}, {WSLOW-1}')
    a(f's_mul_i32 s{t1}, s{t1}, 5042')
    a(f's_lshr_b32 s{sNP}, s{t1}, 16')
    a(f's_mov_b32 s{sP}, 0')
    for i in range(4):
        a(f'v_mov_b32 v{TR+i}, 0')
    a(f'v_lshrrev_b32 v{tA}, 5, v0')
    a(f'v_mul_u32_u24 v{tA}, {ROWB}, v{tA}')
    a(f'v_and_b32 v{tB}, 31, v{vLANE}')
    a(f'v_lshl_add_u32 v{tA}, v{tB}, 4, v{tA}')
    a(f'v_add_u32 v{tA}, {L_ACC}, v{tA}')
    for i in range(6):
        a(f'ds_write_b128 v{tA}, v[{TR}:{TR+3}]')
        a(f'v_add_u32 v{tA}, {16*ROWB}, v{tA}')
    a(f'v_cmp_gt_u32 vcc, 64, v0')
    a(f's_and_saveexec_b64 s[{sSV}:{sSV+1}], vcc')
    a(f'ds_write_b128 v{tA}, v[{TR}:{TR+3}]')
    a(f's_mov_b64 exec, s[{sSV}:{sSV+1}]')
    a.label('K2_SPASS')
    a(f's_lshl_b32 s{t0}, s{sW}, 1')
    a(f'v_lshrrev_b32 v{sidA}, 5, v{vLANE}')
    a(f'v_add_u32 v{sidA}, s{t0}, v{sidA}')
    a(f'v_bfe_u32 v{jA}, v{vLANE}, 3, 2')
    a(f'v_bfe_u32 v{sidR}, v{vLANE}, 2, 1')
    a(f'v_add_u32 v{sidR}, s{t0}, v{sidR}')
    a(f'v_and_b32 v{iR4}, 3, v{vLANE}')
    a(f'v_lshlrev_b32 v{iR4}, 2, v{iR4}')
    a(f's_lshl_b32 s{t1}, s2, 10')
    a(f's_add_u32 s{t1}, s{t1}, {WS_TAB}')
    srd_off(a, rT, sWS, f's{t1}', WS_TAB2 - WS_TAB + 1024)
    a(f'v_lshrrev_b32 v{tD}, 4, v{vLANE}')
    a(f'v_lshlrev_b32 v{tD}, 5, v{tD}')
    a(f's_lshl_b32 s{t0}, s{sW}, 7')
    a(f'v_add_u32 v{tD}, s{t0}, v{tD}')
    a(f's_mov_b32 s{t0}, {WS_TAB2 - WS_TAB}')
    for i in range(2):
        a(f'buffer_load_dwordx4 v[{SG+4*i}:{SG+4*i+3}], v{tD}, s[{rT}:{rT+3}], 0 offen offset:{16*i}')
    for i in range(2):
        a(f'buffer_load_dwordx4 v[{AX+4*i}:{AX+4*i+3}], v{tD}, s[{rT}:{rT+3}], s{t0} offen offset:{16*i}')
    a(f'v_and_b32 v{tC}, 15, v{vLANE}')
    a(f's_mul_i32 s{t0}, s{sP}, {WSLOW}')
    a(f'v_cmp_gt_u32 vcc, {WSLOW}, v{tC}')
    a(f'v_add_u32 v{tC}, s{t0}, v{tC}')
    a(f'v_lshlrev_b32 v{tB}, 3, v{tC}')
    a(f'v_mov_b32 v{tD}, 0x10000')
    a(f'v_cndmask_b32 v{tC}, v{tD}, v{tC}, vcc')
    a('s_waitcnt vmcnt(0)')
    a(f's_mov_b64 s[{MKC}:{MKC+1}], 0')
    for it in range(8):
        a(f'v_cmp_gt_u32 s[{MK+2*it}:{MK+2*it+1}], v{AX+it}, v{tC}')
        a(f's_mov_b64 s[{MK+16+2*it}:{MK+16+2*it+1}], 0')
    rec_loads(tB, 8)
    lds_init()
    a('s_waitcnt vmcnt(0) lgkmcnt(0)')
    a('s_barrier')
    hist()
    a('s_waitcnt lgkmcnt(0)')
    a('s_barrier')
    scan_nodes('S')
    qi_fill('S', False)
    scatter()
    a('s_waitcnt lgkmcnt(0)')
    a('s_barrier')
    a(f's_cmp_eq_u32 s{sL}, 0')
    a('s_cbranch_scc1 K2_SNEXT')
    setup_ptrs()
    a('s_waitcnt lgkmcnt(0)')
    for ins in dma_addr(): a(ins)
    for ins in dma_issue(): a(ins)
    forced_flags()
    pipeline_fill()
    main_loop('S', True)
    a.label('K2_SNEXT')
    a('s_waitcnt vmcnt(0) lgkmcnt(0)')
    a('s_barrier')
    a(f's_add_u32 s{sP}, s{sP}, 1')
    a(f's_cmp_lt_u32 s{sP}, s{sNP}')
    a('s_cbranch_scc1 K2_SPASS')
    epilogue('S', False)
    a.label('K2_END')
    a('s_endpgm')
    return nvgpr, nsgpr

def kd(name, nv, ns):
    acc = (nv + 3) // 4 * 4
    return f'''.amdhsa_kernel {name}
  .amdhsa_next_free_vgpr {nv}
  .amdhsa_next_free_sgpr {ns}
  .amdhsa_accum_offset {acc}
  .amdhsa_group_segment_fixed_size 0
  .amdhsa_kernarg_size 96
  .amdhsa_user_sgpr_count 2
  .amdhsa_user_sgpr_kernarg_segment_ptr 1
  .amdhsa_system_sgpr_workgroup_id_x 1
  .amdhsa_float_denorm_mode_32 3
.end_amdhsa_kernel
'''

def build(opts=None):
    opts = opts or {}
    a = Asm()
    gen_k1(a, opts)
    nv, ns = gen_k2(a, opts)
    out = HEADER
    out += f'; @launch kernel=gs_part_kernel grid=(256,1,1) block=({K1_THREADS},1,1) lds={LDS_K1}\n'
    out += f'; @launch kernel=gs_main_kernel grid=(256,1,1) block=({NW*64},1,1) lds={LDS_MAIN}\n'
    out += '.amdgcn_target "amdgcn-amd-amdhsa--gfx950"\n.text\n'
    out += a.text()
    out += '.section .rodata,"a"\n.p2align 6\n'
    out += kd('gs_part_kernel', 62 if opts.get('stamp1') else 60, 60)
    out += '.p2align 6\n'
    out += kd('gs_main_kernel', nv, ns)
    return out

if __name__ == '__main__':
    path = sys.argv[1] if len(sys.argv) > 1 else 'gather_scatter__edge_featured_mpnn_gatedgcn__graph.s'
    opts = {}
    for o in sys.argv[2:]:
        k, _, val = o.partition('=')
        opts[k] = int(val) if val else True
    open(path, 'w').write(build(opts))
    print('written', path, 'LDS', LDS_MAIN)
```

```python
import sys, os, struct
sys.path.insert(0, os.path.dirname(__file__))
from asmlib import *

N = 25000; E = 800000
NBK = 256
CH = 3136
RECB = CH * 8
WS_TAB = 0x700000
WS_TAB2 = 0x740000
WS_FRAG = 0x780000
MAGIC_B = 43980466
LOG2E = 0xBFB8AA3B
SBITS = 50
C_SCALE = (127 - SBITS) << 23
EPS_SCALED = 0x4E8637BD
assert abs(struct.unpack('<f', struct.pack('<I', EPS_SCALED))[0] / (1e-6 * 2.0**50) - 1) < 1e-6

NW = 8
NSTREAM = 16
NIT = 16
CAP = 3456
WSLOW = 13
ROWB = 784
MAXN = 98
ENT_QUADS = 960
VROWB = 640
L_CNT = 0
L_ZERO = 512
L_TAB = 1024
L_QI = 1536
L_ENT = L_QI + ENT_QUADS * 4
L_ACC = L_ENT + ENT_QUADS * 16
L_VIRT = L_ACC + MAXN * ROWB
L_WST = L_VIRT + NSTREAM * VROWB
L_WST = (L_WST + 255) // 256 * 256
L_DMA = L_WST + 16384
LDS_MAIN = L_DMA + NW * 4096
assert LDS_MAIN <= 163840, LDS_MAIN
assert L_ACC % 16 == 0 and L_VIRT % 16 == 0

K1_THREADS = 896
K1_HIST = 0
K1_STAGE = 1024
LDS_K1 = K1_STAGE + RECB

HEADER = open(os.path.join(os.path.dirname(__file__), 'header.txt')).read()

def srd(a, sreg, ptr, size):
    a(f's_mov_b32 s{sreg}, s{ptr}')
    a(f's_and_b32 s{sreg+1}, s{ptr+1}, 0xffff')
    a(f's_mov_b32 s{sreg+2}, {size}')
    a(f's_mov_b32 s{sreg+3}, 0x20000')

def srd_off(a, sreg, ptr, off, size):
    a(f's_add_u32 s{sreg}, s{ptr}, {off}')
    a(f's_addc_u32 s{sreg+1}, s{ptr+1}, 0')
    a(f's_and_b32 s{sreg+1}, s{sreg+1}, 0xffff')
    a(f's_mov_b32 s{sreg+2}, {size}')
    a(f's_mov_b32 s{sreg+3}, 0x20000')

def wave_scan(a, op, r):
    for sh in (1, 2, 4, 8):
        a('s_nop 1')
        a(f'{op}_dpp v{r}, v{r}, v{r} row_shr:{sh} row_mask:0xf bank_mask:0xf')
    a('s_nop 1')
    a(f'{op}_dpp v{r}, v{r}, v{r} row_bcast:15 row_mask:0xa bank_mask:0xf')
    a('s_nop 1')
    a(f'{op}_dpp v{r}, v{r}, v{r} row_bcast:31 row_mask:0xc bank_mask:0xf')

def wave_scan2(a, op1, r1, op2, r2):
    steps = [f'row_shr:{sh} row_mask:0xf bank_mask:0xf' for sh in (1, 2, 4, 8)] + \
            ['row_bcast:15 row_mask:0xa bank_mask:0xf', 'row_bcast:31 row_mask:0xc bank_mask:0xf']
    a('s_nop 1')
    for st in steps:
        a(f'{op1}_dpp v{r1}, v{r1}, v{r1} {st}')
        a(f'{op2}_dpp v{r2}, v{r2}, v{r2} {st}')
        a('s_nop 0')

def gen_k1(a, opts):
    ST = opts.get('stamp1', False)
    def stamp(i):
        if not ST: return
        a('s_memtime s[56:57]')
        a('s_waitcnt lgkmcnt(0)')
        a(f'v_writelane_b32 v60, s56, {i}')
    a.raw('.p2align 8')
    a.raw('.globl gs_part_kernel')
    a.raw('.type gs_part_kernel,@function')
    a.label('gs_part_kernel')
    a('s_cmp_ge_u32 s2, 256')
    a('s_cbranch_scc1 K1_END')
    a('s_load_dwordx4 s[4:7], s[0:1], 8')
    a('s_load_dwordx2 s[8:9], s[0:1], 24')
    a('s_load_dwordx2 s[10:11], s[0:1], 88')
    a('s_load_dwordx2 s[44:45], s[0:1], 0')
    if ST: a('v_mov_b32 v60, 0')
    stamp(0)
    if opts.get('dbgtime'):
        a('s_memrealtime s[54:55]')
        a('s_waitcnt lgkmcnt(0)')
        a('s_cmp_ge_u32 s2, 8')
        a('s_cbranch_scc1 K1_NODBG')
        a('v_mov_b32 v20, s54')
        a('s_lshl_b32 s56, s2, 2')
        a('s_add_u32 s56, s56, 0x1200000')
        a('v_mov_b32 v22, s56')
        a('v_cmp_eq_u32 vcc, 0, v0')
        a('s_and_saveexec_b64 s[58:59], vcc')
        a('global_store_dword v22, v20, s[10:11]')
        a('s_mov_b64 exec, s[58:59]')
        a.label('K1_NODBG')
    a('v_lshrrev_b32 v1, 6, v0')
    a('s_mul_i32 s12, s2, %d' % (CH * 4))
    a('v_readfirstlane_b32 s3, v1')
    a('s_lshr_b32 s13, s12, 1')
    a('v_lshlrev_b32 v2, 4, v0')
    a('v_add_u32 v2, s12, v2')
    a('s_cmp_eq_u32 s3, 13')
    a('s_cbranch_scc1 K1_FRAG')
    a('v_lshlrev_b32 v3, 3, v0')
    a('v_add_u32 v3, s13, v3')
    a('s_waitcnt lgkmcnt(0)')
    srd(a, 20, 8, E * 4)
    a('buffer_load_dwordx4 v[4:7], v2, s[20:23], 0 offen')
    srd(a, 24, 6, E * 4)
    srd(a, 28, 4, E * 2)
    if not opts.get('dstfirst', 1):
        a('buffer_load_dwordx4 v[8:11], v2, s[24:27], 0 offen')
        a('buffer_load_dwordx2 v[12:13], v3, s[28:31], 0 offen')
    a('v_lshlrev_b32 v14, 2, v0')
    a('v_mov_b32 v15, 0')
    a('v_cmp_gt_u32 vcc, 256, v0')
    a('s_and_saveexec_b64 s[18:19], vcc')
    a('ds_write_b32 v14, v15 offset:%d' % K1_HIST)
    a('s_mov_b64 exec, s[18:19]')
    a('v_cmp_gt_u32 vcc, %d, v0' % (CH // 4))
    a('s_mov_b32 s14, %d' % (E * 4))
    a('v_cmp_gt_u32 s[16:17], s14, v2')
    a('s_and_b64 s[16:17], s[16:17], vcc')
    a('s_mul_i32 s15, s2, %d' % RECB)
    srd_off(a, 32, 10, 's15', RECB)
    srd_off(a, 36, 10, WS_TAB, 0x80000)
    if opts.get('touch', 0):
        a('s_cmp_lg_u32 s3, 1')
        a('s_cbranch_scc1 K1_NOTOUCH')
        a('v_mov_b32 v41, 0')
        a('buffer_load_dword v42, v41, s[32:35], 0 offen')
        a('buffer_load_dword v43, v41, s[36:39], 0 offen')
        a.label('K1_NOTOUCH')
    a('s_mov_b32 s40, %d' % MAGIC_B)
    a('s_movk_i32 s41, 3125')
    a('v_mov_b32 v15, 1')
    a('s_waitcnt lgkmcnt(0)')
    a('s_barrier')
    if opts.get('dstfirst', 1):
        a('s_waitcnt vmcnt(0)')
        a('buffer_load_dwordx4 v[8:11], v2, s[24:27], 0 offen')
        a('buffer_load_dwordx2 v[12:13], v3, s[28:31], 0 offen')
    if opts.get('xpre', 1):
        a('s_and_b32 s46, s2, 7')
        a('s_lshr_b32 s47, s2, 3')
        a('s_lshl_b32 s46, s46, 5')
        a('s_add_u32 s46, s46, s47')
        a('s_mul_i32 s46, s46, 3125')
        a('s_add_u32 s46, s46, 31')
        a('s_lshr_b32 s46, s46, 5')
        a('s_lshl_b32 s46, s46, 7')
        a('s_and_b32 s45, s45, 0xffff')
        a('s_mov_b32 s48, s44')
        a('s_mov_b32 s49, s45')
        a('s_mov_b32 s50, %d' % (N * 128))
        a('s_mov_b32 s51, 0x20000')
        a('v_lshlrev_b32 v40, 4, v0')
        a('buffer_load_dwordx4 v[56:59], v40, s[48:51], s46 offen')
    a('s_mov_b64 exec, s[16:17]')
    a('s_cbranch_execz K1_NOEDGE1')
    stamp(1)
    if not opts.get('dstfirst', 1): a('s_waitcnt vmcnt(%d)' % (3 if opts.get('xpre', 1) else 2))
    stamp(2)
    for k in range(4):
        a(f'v_mul_hi_u32 v{16+k}, v{4+k}, s40')
    for k in range(4):
        a(f'v_lshlrev_b32 v{20+k}, 2, v{16+k}')
        a(f'ds_add_rtn_u32 v{24+k}, v{20+k}, v15 offset:{K1_HIST}')
    for k in range(4):
        a(f'v_mul_u32_u24 v{28+k}, s41, v{16+k}')
        a(f'v_add_u32 v{28+k}, 31, v{28+k}')
        a(f'v_lshrrev_b32 v{28+k}, 5, v{28+k}')
        a(f'v_sub_u32 v{28+k}, v{4+k}, v{28+k}')
        a(f'v_lshlrev_b32 v{33+2*k}, 2, v{28+k}')
    a.label('K1_NOEDGE1')
    a('s_mov_b64 exec, -1')
    a('s_waitcnt lgkmcnt(0)')
    stamp(3)
    a('s_barrier')
    stamp(4)
    a('s_cmp_lg_u32 s3, 0')
    a('s_cbranch_scc1 K1_SCANDONE')
    a('v_lshlrev_b32 v40, 4, v0')
    a('ds_read_b128 v[44:47], v40 offset:%d' % K1_HIST)
    a('v_lshlrev_b32 v41, 12, v0')
    a('s_lshl_b32 s15, s2, 2')
    a('v_add_u32 v41, s15, v41')
    a('s_waitcnt lgkmcnt(0)')
    a('v_add_u32 v48, v44, v45')
    a('v_add_u32 v49, v48, v46')
    a('v_add_u32 v50, v49, v47')
    a('v_mov_b32 v51, v50')
    wave_scan(a, 'v_add_u32', 51)
    a('v_sub_u32 v52, v51, v50')
    a('v_add_u32 v53, v52, v44')
    a('v_add_u32 v54, v52, v48')
    a('v_add_u32 v55, v52, v49')
    a('ds_write_b128 v40, v[52:55] offset:%d' % K1_HIST)
    a('s_waitcnt vmcnt(%d)' % (1 if opts.get('xpre', 1) else 0))
    a('s_mul_i32 s15, s2, %d' % CH)
    a('s_mov_b32 s43, %d' % (WS_TAB2 - WS_TAB))
    for k in range(4):
        a(f'buffer_store_dword v{44+k}, v41, s[36:39], s43 offen offset:{k*1024}' + (' sc1' if opts.get('tabst', 0) else ''))
        a(f'v_min_u32 v{48+k}, 0xff, v{44+k}')
        a(f'v_add_u32 v{52+k}, s15, v{52+k}')
        a(f'v_lshl_or_b32 v{48+k}, v{48+k}, 24, v{52+k}')
        a(f'buffer_store_dword v{48+k}, v41, s[36:39], 0 offen offset:{k*1024}' + (' sc1' if opts.get('tabst', 0) else ''))
    a.label('K1_SCANDONE')
    a('s_waitcnt lgkmcnt(0)')
    a('s_barrier')
    stamp(5)
    a('s_mov_b64 exec, s[16:17]')
    a('s_cbranch_execz K1_NOEDGE2')
    for k in range(4):
        a(f'ds_read_b32 v{28+k}, v{20+k} offset:{K1_HIST}')
    a('s_cmp_eq_u32 s3, 0')
    a('s_cbranch_scc1 K1_HAVE')
    a('s_waitcnt vmcnt(%d)' % (1 if opts.get('xpre', 1) else 0))
    a.label('K1_HAVE')
    a('s_mov_b32 s42, 0xffff0000')
    a('v_lshl_or_b32 v32, v12, 16, v8')
    a('v_and_or_b32 v34, v12, s42, v9')
    a('v_lshl_or_b32 v36, v13, 16, v10')
    a('v_and_or_b32 v38, v13, s42, v11')
    for k in range(4):
        a(f's_waitcnt lgkmcnt({3 if k == 0 else 3})')
        a(f'v_add_lshl_u32 v{28+k}, v{28+k}, v{24+k}, 3')
        a(f'ds_write_b64 v{28+k}, v[{32+2*k}:{33+2*k}] offset:{K1_STAGE}')
    a.label('K1_NOEDGE2')
    a('s_mov_b64 exec, -1')
    a('v_lshlrev_b32 v2, 4, v0')
    a('v_add_u32 v3, %d, v2' % (RECB // 2))
    a('v_cmp_gt_u32 vcc, %d, v0' % (CH // 4))
    a('s_waitcnt lgkmcnt(0)')
    stamp(6)
    a('s_barrier')
    stamp(7)
    a('s_and_saveexec_b64 s[18:19], vcc')
    a('s_cbranch_execz K1_END')
    a('ds_read_b128 v[4:7], v2 offset:%d' % K1_STAGE)
    a('ds_read_b128 v[8:11], v2 offset:%d' % (K1_STAGE + RECB // 2))
    a('s_waitcnt lgkmcnt(1)')
    sfx = {0: '', 1: ' sc1', 2: ' nt', 3: ' sc0 sc1', 4: ' sc1 nt'}[opts.get('k1st', 1)]
    a('buffer_store_dwordx4 v[4:7], v2, s[32:35], 0 offen' + sfx)
    a('s_waitcnt lgkmcnt(0)')
    a('buffer_store_dwordx4 v[8:11], v3, s[32:35], 0 offen' + sfx)
    if ST:
        stamp(8)
        a('s_waitcnt vmcnt(0)')
        stamp(9)
        a('s_mul_i32 s12, s2, 16')
        a('s_add_u32 s12, s12, s3')
        a('s_lshl_b32 s12, s12, 8')
        a('s_add_u32 s12, s12, 0x1100000')
        a('s_add_u32 s32, s10, s12')
        a('s_addc_u32 s33, s11, 0')
        a('s_and_b32 s33, s33, 0xffff')
        a('s_mov_b32 s34, 256')
        a('s_mov_b64 exec, -1')
        a('v_and_b32 v4, 63, v0')
        a('v_lshlrev_b32 v4, 2, v4')
        a('buffer_store_dword v60, v4, s[32:35], 0 offen')
    if opts.get('dbgtime'):
        a('s_waitcnt vmcnt(0)')
        a('s_memrealtime s[54:55]')
        a('s_waitcnt lgkmcnt(0)')
        a('s_cmp_ge_u32 s2, 8')
        a('s_cbranch_scc1 K1_END')
        a('s_cmp_lg_u32 s3, 0')
        a('s_cbranch_scc1 K1_END')
        a('v_mov_b32 v20, s54')
        a('s_lshl_b32 s56, s2, 2')
        a('s_add_u32 s56, s56, 0x1200100')
        a('v_mov_b32 v22, s56')
        a('s_mov_b64 exec, 1')
        a('global_store_dword v22, v20, s[10:11]')
    a('s_endpgm')
    a.label('K1_FRAG')
    if opts.get('codepre', 0):
        a('s_cmp_lt_u32 s2, 32')
        a('s_cbranch_scc1 K1_FRAG2')
        a('s_cmp_ge_u32 s2, 64')
        a('s_cbranch_scc1 K1_END')
        a('s_getpc_b64 s[12:13]')
        a.label('K1_PCREF')
        a('s_add_u32 s12, s12, gs_main_kernel-K1_PCREF')
        a('s_addc_u32 s13, s13, 0')
        a('v_and_b32 v1, 63, v0')
        a('v_lshlrev_b32 v2, 4, v1')
        for i in range(opts.get('codekb', 20)):
            a(f'global_load_dwordx4 v[4:7], v2, s[12:13]')
            a('v_add_u32 v2, 1024, v2')
        a('s_endpgm')
        a.label('K1_FRAG2')
    a('s_cmp_ge_u32 s2, 32')
    a('s_cbranch_scc1 K1_END')
    if opts.get('fragbar', 1):
        a('s_barrier')
    a('s_load_dwordx4 s[12:15], s[0:1], 32')
    a('s_load_dwordx4 s[16:19], s[0:1], 56')
    a('s_lshr_b32 s20, s2, 3')
    a('s_waitcnt lgkmcnt(0)')
    a('s_mov_b32 s22, s14')
    a('s_mov_b32 s23, s15')
    a('s_cmp_eq_u32 s20, 1')
    a('s_cselect_b32 s22, s18, s22')
    a('s_cselect_b32 s23, s19, s23')
    a('s_cmp_eq_u32 s20, 2')
    a('s_cselect_b32 s22, s12, s22')
    a('s_cselect_b32 s23, s13, s23')
    a('s_cmp_eq_u32 s20, 3')
    a('s_cselect_b32 s22, s16, s22')
    a('s_cselect_b32 s23, s17, s23')
    srd(a, 24, 22, 64 * 64 * 2)
    srd_off(a, 28, 10, WS_FRAG, 32 * 1024)
    a('s_and_b32 s32, s2, 3')
    a('s_lshr_b32 s33, s2, 2')
    a('s_and_b32 s33, s33, 1')
    a('s_lshl_b32 s32, s32, 11')
    a('s_lshl_b32 s33, s33, 6')
    a('s_add_u32 s32, s32, s33')
    a('v_and_b32 v1, 63, v0')
    a('v_and_b32 v2, 31, v1')
    a('v_lshlrev_b32 v2, 1, v2')
    a('v_lshrrev_b32 v3, 5, v1')
    a('v_lshlrev_b32 v3, 10, v3')
    a('v_add3_u32 v2, v2, v3, s32')
    for i in range(8):
        a(f'buffer_load_ushort v{8+i}, v2, s[24:27], 0 offen offset:{i*128}')
    a('s_mov_b32 s34, 1.0')
    a('s_and_b32 s36, s20, 1')
    a('s_cmp_eq_u32 s36, 0')
    a('s_cselect_b32 s34, 0x%x, s34' % LOG2E)
    a('s_waitcnt vmcnt(0)')
    for i in range(8):
        a(f'v_lshlrev_b32 v{8+i}, 16, v{8+i}')
        a(f'v_mul_f32 v{8+i}, s34, v{8+i}')
    for i in range(4):
        a(f'v_cvt_pk_bf16_f32 v{16+i}, v{8+2*i}, v{9+2*i}')
    a('v_lshlrev_b32 v4, 4, v1')
    a('s_lshl_b32 s35, s2, 10')
    a('v_add_u32 v4, s35, v4')
    a('buffer_store_dwordx4 v[16:19], v4, s[28:31], 0 offen')
    a.label('K1_END')
    a('s_endpgm')

def gen_k2(a, opts):
    STAMP = opts.get('stamp', False)
    vLANE = 1; BC = 2
    WB = 4; WV = 36; AX = 68
    GA = 84; HA = 100; GB = 116; HB = 132
    PP = 148; TT_ = 156; ZZ = 164
    DEN = 172; NUM = 176
    AE = [180, 184]; BE = 188; R0 = 192
    QA = [196, 200]
    EN = 204; RA = 208; CO = 212
    pEN = 216; pEE = 217; pQI = 218; pQF = 219
    C4 = 220; SEL = [221, 222]; EE = 223; QF = 224
    F0 = 225; F1 = 226; F2 = 252; F3 = 227
    tA = 227; tB = 228; tC = 229; tD = 230; tE = 231; tF = 232; tG = 233; tH = 234; tI = 235
    TQ = 236; TR = 240
    sidA = 244; jA = 245; sidR = 246; iR4 = 247
    vST = 253; GF = 249; GD = 250
    PB = 228; TB = 236; ZB = 244
    RC = 252; RKC = 254; tJ = 255
    nvgpr = 256
    REC = PP; RK = GB; SG = HB
    G_ = [GA, GB]; H_ = [HA, HB]
    nOFF0 = AE[0]+0 if False else QA[0]; nOFF1 = QA[0]+1; nEND0 = QA[0]+2; nEND1 = QA[0]+3; nROW0 = QA[1]
    S = Regs('s', 3, 102)
    sX = S.alloc('x', 2, 2); sWC = S.alloc('wc', 2, 2); sOUT = S.alloc('out', 2, 2); sWS = S.alloc('ws', 2, 2)
    rX = S.alloc('rX', 4, 4); rT = S.alloc('rT', 4, 4); rR = S.alloc('rR', 4, 4); rF = S.alloc('rF', 4, 4)
    sW = S.alloc('w'); sNS = S.alloc('ns'); sNN = S.alloc('nn')
    sP = S.alloc('pass'); sNP = S.alloc('npass')
    sL = S.alloc('L'); sCNT = S.alloc('cnt'); sLA = S.alloc('La'); sLB = S.alloc('Lb'); sSO = S.alloc('streamoff')
    sC = S.alloc('C', 2, 2)
    sF = [S.alloc('F0', 2, 2), S.alloc('F1', 2, 2)]
    sANY = [S.alloc('any0'), S.alloc('any1')]
    s128 = S.alloc('c128'); sLO = S.alloc('lo16'); sHI = S.alloc('hi16')
    t0 = S.alloc('t0'); t1 = S.alloc('t1'); t2 = S.alloc('t2', 1, 2); t3 = S.alloc('t3')
    sSV = S.alloc('sv', 2, 2); sSV2 = S.alloc('sv2', 2, 2)
    sDB = S.alloc('dmabase'); sSWAP = S.alloc('swap')
    sDBG = S.alloc('dbg', 2, 2) if opts.get('dbgtime') else None
    sT0 = S.alloc('dbgt0', 2, 2) if opts.get('dbgtime') else None
    sT1 = S.alloc('dbgt1') if opts.get('dbgtime') else None
    sT2 = S.alloc('dbgt2') if opts.get('dbgtime') else None
    MK = S.alloc('MK', 32, 2)
    MKC = S.alloc('MKC', 2, 2)
    rO = rT
    nsgpr = S.hi
    def stamp(i):
        if not STAMP: return
        a(f's_memtime s[{t2}:{t3}]')
        a('s_waitcnt lgkmcnt(0)')
        a(f'v_writelane_b32 v{vST}, s{t2}, {i}')
    XB = 4096

    a.raw('.p2align 8')
    a.raw('.globl gs_main_kernel')
    a.raw('.type gs_main_kernel,@function')
    a.label('gs_main_kernel')
    a('s_cmp_ge_u32 s2, 256')
    a('s_cbranch_scc1 K2_END')
    a(f's_load_dwordx2 s[{sWS}:{sWS+1}], s[0:1], 88')
    a(f's_load_dwordx2 s[{sX}:{sX+1}], s[0:1], 0')
    a(f's_load_dwordx2 s[{sWC}:{sWC+1}], s[0:1], 48')
    a(f's_load_dwordx2 s[{sOUT}:{sOUT+1}], s[0:1], 72')
    a('s_and_b32 s3, s2, 7')
    a('s_lshr_b32 s2, s2, 3')
    a('s_lshl_b32 s3, s3, 5')
    a('s_add_u32 s2, s2, s3')
    if opts.get('dbgtime'):
        a(f's_load_dwordx2 s[{sDBG}:{sDBG+1}], s[0:1], 80')
        a(f's_memrealtime s[{sT0}:{sT0+1}]')
        a('s_waitcnt lgkmcnt(0)')
    if STAMP:
        a(f'v_mov_b32 v{vST}, 0')
    stamp(0)
    if STAMP:
        a(f's_memrealtime s[{t2}:{t3}]')
        a('s_waitcnt lgkmcnt(0)')
        a(f'v_writelane_b32 v{vST}, s{t2}, 11')
    a(f'v_lshrrev_b32 v{tA}, 6, v0')
    a(f'v_and_b32 v{vLANE}, 63, v0')
    a(f'v_readfirstlane_b32 s{sW}, v{tA}')
    a(f'v_lshrrev_b32 v{sidA}, 5, v{vLANE}')
    if opts.get('proprio'):
        a('s_nop 2')
        a(f's_cmp_ge_u32 s{sW}, 4')
        a('s_cbranch_scc0 K2_PP0')
        a('s_setprio 1')
        a.label('K2_PP0')
    a(f's_lshl_b32 s{t1}, s2, 10')
    a(f's_add_u32 s{t1}, s{t1}, {WS_TAB}')
    a(f's_lshl_b32 s{t0}, s{sW}, 1')
    a(f'v_add_u32 v{sidA}, s{t0}, v{sidA}')
    a(f'v_lshrrev_b32 v{tD}, 4, v{vLANE}')
    a(f'v_lshlrev_b32 v{tD}, 5, v{tD}')
    a(f's_lshl_b32 s{t0}, s{sW}, 7')
    a(f'v_add_u32 v{tD}, s{t0}, v{tD}')
    a(f'v_lshlrev_b32 v{tA}, 4, v{vLANE}')
    a('s_waitcnt lgkmcnt(0)')
    srd_off(a, rT, sWS, f's{t1}', 1024)
    for i in range(2):
        a(f'buffer_load_dwordx4 v[{SG+4*i}:{SG+4*i+3}], v{tD}, s[{rT}:{rT+3}], 0 offen offset:{16*i}')
    a(f's_mul_i32 s{t0}, s2, 3125')
    a(f's_add_u32 s{sNS}, s{t0}, 31')
    a(f's_lshr_b32 s{sNS}, s{sNS}, 5')
    a(f's_add_u32 s{t0}, s{t0}, {3125+31}')
    a(f's_lshr_b32 s{t0}, s{t0}, 5')
    a(f's_sub_u32 s{sNN}, s{t0}, s{sNS}')
    a(f's_sub_u32 s{rX}, s{sX}, {XB}')
    a(f's_subb_u32 s{rX+1}, s{sX+1}, 0')
    a(f's_and_b32 s{rX+1}, s{rX+1}, 0xffff')
    a(f's_mov_b32 s{rX+2}, {N*128 + XB}')
    a(f's_mov_b32 s{rX+3}, 0x20000')
    srd_off(a, rF, sWS, WS_FRAG, 32 * 1024)
    a(f's_lshl_b32 s{sDB}, s{sW}, 12')
    a(f's_add_u32 s{sDB}, s{sDB}, {L_DMA}')
    a(f'v_bfe_u32 v{tE}, v{vLANE}, 4, 1')
    a(f'v_and_b32 v{tF}, 7, v{vLANE}')
    a(f'v_xor_b32 v{tE}, v{tE}, v{tF}')
    a(f'v_lshlrev_b32 v{tE}, 4, v{tE}')
    for i in range(4):
        if i: a(f'v_xor_b32 v{tF}, {32*i}, v{tE}')
        a(f'v_add_u32 v{CO+i}, {XB - 1024*i}, v{tF if i else tE}')
    a(f'v_bfe_u32 v{jA}, v{vLANE}, 3, 2')
    a(f'v_lshrrev_b32 v{tF}, 5, v{vLANE}')
    a(f'v_lshlrev_b32 v{tE}, 3, v{jA}')
    a(f'v_lshl_add_u32 v{tE}, v{tF}, 2, v{tE}')
    a(f's_lshr_b32 s{t0}, s{sW}, 1')
    a(f's_lshl_b32 s{t1}, s{t0}, 5')
    a(f's_add_u32 s{t1}, s{t1}, s{sNS}')
    a(f's_and_b32 s{t2}, s{sW}, 1')
    a(f's_lshl_b32 s{t2}, s{t2}, 1')
    a(f's_add_u32 s{t1}, s{t1}, s{t2}')
    a(f'v_add_u32 v{tE}, s{t1}, v{tE}')
    a(f'v_lshlrev_b32 v{tE}, 7, v{tE}')
    a(f's_cmp_eq_u32 s{t2}, 0')
    a(f's_cbranch_scc0 K2_XI2')
    a(f'v_add_u32 v{tH}, v{tE}, v{CO}')
    a(f'v_add_u32 v{tI}, v{tE}, v{CO+1}')
    a('s_branch K2_XI')
    a.label('K2_XI2')
    a(f'v_add_u32 v{tH}, v{tE}, v{CO+2}')
    a(f'v_add_u32 v{tI}, v{tE}, v{CO+3}')
    a(f'v_add_u32 v{tH}, 2048, v{tH}')
    a(f'v_add_u32 v{tI}, 2048, v{tI}')
    a.label('K2_XI')
    a(f'v_add_u32 v{tI}, 128, v{tI}')
    a(f'v_and_b32 v{C4}, 31, v{vLANE}')
    def staging():
        a(f's_lshr_b32 s{t0}, s{sW}, 1')
        a(f's_lshl_b32 s{t0}, s{t0}, 12')
        a(f's_and_b32 s{t2}, s{sW}, 1')
        a(f's_lshl_b32 s{t2}, s{t2}, 11')
        a(f's_add_u32 s{t0}, s{t0}, s{t2}')
        a(f's_add_u32 s{t0}, s{t0}, {L_DMA}')
        a(f's_mov_b32 m0, s{t0}')
        a(f'v_lshlrev_b32 v{tA}, 4, v{vLANE}')
        a(f'buffer_load_dwordx4 v{tH}, s[{rX}:{rX+3}], 0 offen lds')
        a(f'buffer_load_dwordx4 v{tI}, s[{rX}:{rX+3}], 0 offen offset:1024 lds')
        a(f's_lshl_b32 s{t0}, s{sW}, 11')
        a(f's_add_u32 s{t1}, s{t0}, {L_DMA + 4*4096}')
        a(f's_mov_b32 m0, s{t1}')
        a(f's_add_u32 s{t2}, s{t0}, {16*1024}')
        a(f'buffer_load_dwordx4 v{tA}, s[{rF}:{rF+3}], s{t2} offen lds')
        a(f'buffer_load_dwordx4 v{tA}, s[{rF}:{rF+3}], s{t2} offen offset:1024 lds')
        a(f's_add_u32 s{t1}, s{t0}, {L_WST}')
        a(f's_mov_b32 m0, s{t1}')
        a('s_nop 0')
        a(f'buffer_load_dwordx4 v{tA}, s[{rF}:{rF+3}], s{t0} offen lds')
        a(f'buffer_load_dwordx4 v{tA}, s[{rF}:{rF+3}], s{t0} offen offset:1024 lds')
        srd(a, rR, sWC, 128)
        a(f'v_lshlrev_b32 v{tE}, 1, v{C4}')
        a(f'buffer_load_ushort v{BC}, v{tE}, s[{rR}:{rR+3}], 0 offen')
        a(f'buffer_load_ushort v{BC+1}, v{tE}, s[{rR}:{rR+3}], 0 offen offset:64')
    staging()
    MKT = (MK + 3) // 4 * 4
    if opts.get('touch', 0):
        srd(a, MKT, sWS, NBK * RECB)
        a(f'v_and_b32 v{tE}, 3, v{vLANE}')
        a(f'v_lshlrev_b32 v{tE}, 21, v{tE}')
        a(f'buffer_load_dword v{F0}, v{tE}, s[{MKT}:{MKT+3}], 0 offen')
        srd(a, MKT + 4, sOUT, N * 128)
        a(f'v_and_b32 v{tE}, 1, v{vLANE}')
        a(f'v_lshlrev_b32 v{tE}, 21, v{tE}')
        a(f'buffer_load_dword v{F1}, v{tE}, s[{MKT+4}:{MKT+7}], 0 offen')
    def lds_init():
        a(f'v_lshlrev_b32 v{tE}, 4, v0')
        for i in range(4):
            a(f'v_mov_b32 v{TR+i}, 0xffff')
        a(f'ds_write_b128 v{tE}, v[{TR}:{TR+3}] offset:{L_ENT}')
        a(f's_cmp_ge_u32 s{sW}, {(ENT_QUADS - 512) // 64}')
        a(f's_cbranch_scc1 K2_I1{tag_i[0]}')
        a(f'ds_write_b128 v{tE}, v[{TR}:{TR+3}] offset:{L_ENT + 512*16}')
        a.label(f'K2_I1{tag_i[0]}')
        assert (ENT_QUADS - 512) % 64 == 0
        for i in range(4):
            a(f'v_mov_b32 v{TR+i}, {L_VIRT}')
        a(f'v_cmp_gt_u32 vcc, {ENT_QUADS // 4}, v0')
        a(f's_and_saveexec_b64 s[{sSV}:{sSV+1}], vcc')
        a(f'ds_write_b128 v{tE}, v[{TR}:{TR+3}] offset:{L_QI}')
        a(f's_mov_b64 exec, s[{sSV}:{sSV+1}]')
        a(f's_cmp_lg_u32 s{sW}, 0')
        a(f's_cbranch_scc1 K2_I2{tag_i[0]}')
        for i in range(4):
            a(f'v_mov_b32 v{TR+i}, 0')
        a(f'ds_write_b128 v{tE}, v[{TR}:{TR+3}] offset:{L_CNT}')
        a(f'v_add_u32 v{tE}, {L_VIRT + 512}, v{tE}')
        a('s_mov_b64 exec, 0xff')
        a(f'ds_write_b128 v{tE}, v[{TR}:{TR+3}]')
        a('s_mov_b64 exec, -1')
        a.label(f'K2_I2{tag_i[0]}')
        tag_i[0] += 1
    tag_i = [0]
    lds_init()
    a(f'v_and_b32 v{tE}, 3, v{vLANE}')
    a(f'v_lshlrev_b32 v{iR4}, 2, v{tE}')
    a(f'v_lshl_add_u32 v{RA}, v{tE}, 3, v{jA}')
    a(f'v_lshrrev_b32 v{tF}, 1, v{jA}')
    a(f'v_lshl_add_u32 v{tE}, v{tE}, 1, v{tF}')
    a(f'v_bfe_u32 v{tF}, v{vLANE}, 2, 1')
    a(f's_lshl_b32 s{t0}, s{sW}, 1')
    a(f'v_add_u32 v{sidR}, s{t0}, v{tF}')
    a(f'v_lshl_add_u32 v{RA}, v{tF}, 2, v{RA}')
    a(f'v_lshrrev_b32 v{tG}, 5, v{vLANE}')
    a(f'v_cmp_eq_u32 vcc, v{tF}, v{tG}')
    a(f'v_xor_b32 v{tE}, v{tE}, v{tG}')
    a(f'v_lshlrev_b32 v{tE}, 4, v{tE}')
    a(f'v_lshl_add_u32 v{RA}, v{RA}, 7, v{tE}')
    a(f'v_mov_b32 v{tF}, 0x3f80')
    a(f'v_cndmask_b32 v{tF}, 0, v{tF}, vcc')
    for q in range(4):
        a(f'v_cmp_eq_u32 vcc, {q}, v{jA}')
        a('s_nop 1')
        a(f'v_cndmask_b32 v{AE[0]+q}, 0, v{tF}, vcc')
        a(f'v_lshlrev_b32 v{AE[1]+q}, 16, v{AE[0]+q}')
    a(f'v_cmp_gt_u32 vcc, 32, v{vLANE}')
    a(f'v_mov_b32 v{tE}, 0x0a0c0100')
    a(f'v_mov_b32 v{tF}, 0x07060100')
    a(f'v_cndmask_b32 v{SEL[0]}, v{tE}, v{tF}, vcc')
    a(f'v_mov_b32 v{tE}, 0x03020a0c')
    a(f'v_mov_b32 v{tF}, 0x03020706')
    a(f'v_cndmask_b32 v{SEL[1]}, v{tE}, v{tF}, vcc')
    a(f's_mov_b32 s{sC}, 0x{C_SCALE:x}')
    a(f's_mov_b32 s{sC+1}, 0x{C_SCALE:x}')
    a(f's_mov_b32 s{s128}, 128')
    a(f's_mov_b32 s{sLO}, 0xffff')
    a(f's_mov_b32 s{sHI}, 0xffff0000')
    a(f'v_and_b32 v{tB}, 15, v{vLANE}')
    a(f'v_lshlrev_b32 v{tB}, 3, v{tB}')
    a(f'v_lshlrev_b32 v{C4}, 2, v{C4}')
    a('s_waitcnt vmcnt(%d) lgkmcnt(0)' % (2 if opts.get('touch', 0) else 0))
    stamp(1)
    a('s_barrier')
    srd(a, rR, sWS, NBK * RECB)
    def rec_loads(vk8, nit):
        for it in range(8):
            a(f'v_mad_u32_u24 v{RK+it}, v{SG+it}, 8, v{vk8}')
        for it in range(nit):
            a(f's_mov_b64 exec, s[{MK+2*it}:{MK+2*it+1}]')
            off = ' offset:128' if it >= 8 else ''
            sk = a.newlabel('skl') if (it >= 8 and opts.get('skipb', 1)) else None
            if sk: a(f's_cbranch_execz {sk}')
            a(f'buffer_load_dwordx2 v[{REC+2*it}:{REC+2*it+1}], v{RK+it%8}, s[{rR}:{rR+3}], 0 offen{off}')
            if sk: a.label(sk)
        a('s_mov_b64 exec, -1')
    a(f'v_lshrrev_b32 v{tC}, 3, v{tB}')
    a(f'v_add_u32 v{tD}, 16, v{tC}')
    for it in range(8):
        a(f'v_cmp_gt_u32_sdwa s[{MK+2*it}:{MK+2*it+1}], v{SG+it}, v{tC} src0_sel:BYTE_3 src1_sel:DWORD')
    for it in range(8):
        a(f'v_cmp_gt_u32_sdwa s[{MK+16+2*it}:{MK+16+2*it+1}], v{SG+it}, v{tD} src0_sel:BYTE_3 src1_sel:DWORD')
    stamp(25)
    rec_loads(tB, 16)
    stamp(26)
    a(f'v_max3_u32 v{tD}, v{SG}, v{SG+1}, v{SG+2}')
    a(f'v_max3_u32 v{tD}, v{tD}, v{SG+3}, v{SG+4}')
    a(f'v_max3_u32 v{tD}, v{tD}, v{SG+5}, v{SG+6}')
    a(f'v_max_u32 v{tD}, v{tD}, v{SG+7}')
    a(f'v_lshrrev_b32 v{tD}, 24, v{tD}')
    a(f'v_cmp_lt_u32 s[{sSV2}:{sSV2+1}], 32, v{tD}')
    a(f's_mov_b64 s[{MKC}:{MKC+1}], 0')
    a(f's_cmp_lg_u64 s[{sSV2}:{sSV2+1}], 0')
    a('s_cbranch_scc1 K2_CSEL')
    a.label('K2_CBACK')

    def gemm_issue():
        a(f's_lshr_b32 s{t0}, s{sW}, 1')
        a(f's_lshl_b32 s{t1}, s{t0}, 12')
        a(f's_add_u32 s{t1}, s{t1}, {L_DMA}')
        a(f'v_add_u32 v{tA}, s{t1}, v{RA}')
        a(f'v_xor_b32 v{tB}, 32, v{tA}')
        a(f'ds_read_b128 v[{AX}:{AX+3}], v{tA}')
        a(f'ds_read_b128 v[{AX+4}:{AX+7}], v{tB}')
        a(f'v_xor_b32 v{tB}, 64, v{tA}')
        a(f'v_xor_b32 v{tC}, 96, v{tA}')
        a(f'ds_read_b128 v[{AX+8}:{AX+11}], v{tB}')
        a(f'ds_read_b128 v[{AX+12}:{AX+15}], v{tC}')
        a(f's_and_b32 s{t2}, s{sW}, 1')
        a(f's_lshl_b32 s{t3}, s{t2}, 13')
        a(f's_add_u32 s{t3}, s{t3}, {L_DMA + 4*4096}')
        a(f'v_lshlrev_b32 v{GF}, 4, v{vLANE}')
        a(f'v_add_u32 v{GF}, s{t3}, v{GF}')
        for f in range(4):
            a(f'ds_read_b128 v[{SG+4*f}:{SG+4*f+3}], v{GF} offset:{f*1024}')
        for f in range(4):
            a(f'ds_read_b128 v[{RK+4*f}:{RK+4*f+3}], v{GF} offset:{(4+f)*1024}')
        a(f's_mul_i32 s{t1}, s{t0}, {32*ROWB}')
        a(f's_lshl_b32 s{t3}, s{t2}, 7')
        a(f's_add_u32 s{t1}, s{t1}, s{t3}')
        a(f's_add_u32 s{t1}, s{t1}, {L_ACC + 512}')
        a(f'v_lshrrev_b32 v{GD}, 5, v{vLANE}')
        a(f'v_mul_u32_u24 v{GD}, {4*ROWB}, v{GD}')
        a(f'v_add3_u32 v{GD}, v{GD}, v{C4}, s{t1}')
    def gemm_mid():
        a('s_waitcnt lgkmcnt(0)')
        for kp in range(4):
            c = '0' if kp == 0 else f'v[{GA}:{GA+15}]'
            a(f'v_mfma_f32_32x32x16_bf16 v[{GA}:{GA+15}], v[{AX+4*kp}:{AX+4*kp+3}], v[{SG+4*kp}:{SG+4*kp+3}], {c}')
            c = '0' if kp == 0 else f'v[{HA}:{HA+15}]'
            a(f'v_mfma_f32_32x32x16_bf16 v[{HA}:{HA+15}], v[{AX+4*kp}:{AX+4*kp+3}], v[{RK+4*kp}:{RK+4*kp+3}], {c}')
    def gemm_mid2():
        a('s_nop 7')
        a('s_nop 3')
    def w_frags():
        a(f'v_lshlrev_b32 v{GF}, 4, v{vLANE}')
        a(f'v_add_u32 v{GF}, {L_WST}, v{GF}')
        for f in range(16):
            dst = (WB + 4*f) if f < 8 else (WV + 4*(f-8))
            if f == 12: a('s_waitcnt lgkmcnt(8)')
            a(f'ds_read_b128 v[{dst}:{dst+3}], v{GF} offset:{f*1024}')
    def gemm_store(tag):
        for i in range(16):
            a(f'v_cvt_pk_bf16_f32 v{GA+i}, v{GA+i}, v{HA+i}')
        a(f's_lshr_b32 s{t0}, s{sW}, 1')
        a(f's_cmp_eq_u32 s{t0}, 3')
        a(f's_cbranch_scc1 K2_RT3{tag}')
        for vv in range(16):
            if vv == 12: a('s_waitcnt lgkmcnt(8)')
            a(f'ds_write_b32 v{GD}, v{GA+vv} offset:{(8*(vv//4) + vv%4) * ROWB}')
        a(f's_branch K2_RTD{tag}')
        a.label(f'K2_RT3{tag}')
        a('s_mov_b32 exec_hi, 0')
        for vv in range(2):
            a(f'ds_write_b32 v{GD}, v{GA+vv} offset:{vv * ROWB}')
        a('s_mov_b64 exec, -1')
        a.label(f'K2_RTD{tag}')
    def consts():
        a(f'v_add_u32 v{RA}, s{sDB}, v{RA}')
        for kp in range(1, 4):
            a(f'v_xor_b32 v{RA+kp}, {32*kp}, v{RA}')
        a(f's_mov_b32 s{t3}, 0x{LOG2E:x}')
        for cc in range(2):
            a(f'v_lshlrev_b32 v{BC+cc}, 16, v{BC+cc}')
            a(f'v_mul_f32 v{BC+cc}, s{t3}, v{BC+cc}')
        a(f'v_cvt_pk_bf16_f32 v{BC}, 0, v{BC}')
        a(f'v_cvt_pk_bf16_f32 v{BC+1}, v{BC+1}, 0')
        a(f'v_cmp_gt_u32 vcc, 32, v{vLANE}')
        a(f'v_mov_b32 v{tG}, 0xb2000000')
        a(f'v_mov_b32 v{tH}, 0xb200')
        a(f'v_cndmask_b32 v{BC}, v{tG}, v{BC}, vcc')
        a(f'v_cndmask_b32 v{BC+1}, v{tH}, v{BC+1}, vcc')

    def hist():
        a(f'v_mov_b32 v{tE}, 1')
        for it in range(NIT):
            if it == 12: a('s_waitcnt lgkmcnt(8)')
            a(f's_mov_b64 exec, s[{MK+2*it}:{MK+2*it+1}]')
            sk = a.newlabel('skh') if (it >= 8 and opts.get('skipb', 1)) else None
            if sk: a(f's_cbranch_execz {sk}')
            a(f'ds_add_rtn_u32 v{RK+it}, v{REC+2*it+1}, v{tE} offset:{L_CNT}')
            if sk: a.label(sk)
        sk = a.newlabel('skhc')
        a(f's_mov_b64 exec, s[{MKC}:{MKC+1}]')
        a(f's_cbranch_execz {sk}')
        a(f'ds_add_rtn_u32 v{RKC}, v{RC+1}, v{tE} offset:{L_CNT}')
        a.label(sk)
        a('s_mov_b64 exec, -1')

    def scan_nodes(tag, mid=None):
        a(f'v_lshlrev_b32 v{tA}, 3, v{vLANE}')
        a(f'ds_read_b64 v[{TQ}:{TQ+1}], v{tA} offset:{L_CNT}')
        a(f'v_mul_u32_u24 v{nROW0}, {2*ROWB}, v{vLANE}')
        a(f'v_add_u32 v{nROW0}, {L_ACC}, v{nROW0}')
        if mid: mid()
        else: a('s_waitcnt lgkmcnt(0)')
        a(f'v_add_u32 v{tE}, 3, v{TQ}')
        a(f'v_add_u32 v{tF}, 3, v{TQ+1}')
        a(f'v_and_b32 v{tE}, -4, v{tE}')
        a(f'v_and_b32 v{tF}, -4, v{tF}')
        a(f'v_add_u32 v{tC}, v{tE}, v{tF}')
        a(f'v_max_u32 v{tB}, v{tE}, v{tF}')
        a(f'v_mov_b32 v{tD}, v{tC}')
        wave_scan(a, 'v_add_u32', tD)
        a(f'v_sub_u32 v{nOFF0}, v{tD}, v{tC}')
        a(f'v_readlane_b32 s{t1}, v{tD}, 63')
        a(f'v_add_u32 v{nOFF1}, v{nOFF0}, v{tE}')
        a(f'v_lshlrev_b32 v{TQ+2}, 2, v{nOFF0}')
        a(f'v_lshlrev_b32 v{TQ+3}, 2, v{nOFF1}')
        a(f'ds_write_b64 v{tA}, v[{TQ+2}:{TQ+3}] offset:{L_TAB}')
        a(f'v_mov_b32 v{nEND0}, v{nOFF1}')
        a(f'v_add_u32 v{nEND1}, v{nOFF1}, v{tF}')
        a(f's_add_u32 s{t1}, s{t1}, 127')
        a(f's_lshr_b32 s{t1}, s{t1}, 7')
        a(f's_lshr_b32 s{t0}, s{t1}, 1')
        a(f's_sub_u32 s{t1}, s{t1}, s{t0}')
        a(f's_lshl_b32 s{sLA}, s{t1}, 2')
        a(f's_lshl_b32 s{sLB}, s{t0}, 2')
        a(f's_sub_u32 s{sSO}, s{sLA}, s{sLB}')
        a(f's_lshl_b32 s{sSO}, s{sSO}, 3')
        a(f's_cmp_lt_u32 s{sW}, 4')
        a(f's_cselect_b32 s{sL}, s{sLA}, s{sLB}')
        a(f's_cselect_b32 s{sSO}, 0, s{sSO}')
        a(f's_lshr_b32 s{sCNT}, s{sL}, 2')
        a(f's_sub_u32 s{sCNT}, s{sCNT}, 1')
    def qi_fill(tag, split):
        B0 = TQ + 2; B1 = TQ + 3; V0 = TR + 1; V1 = TR + 2
        a(f'v_max_u32 v{TR}, v{tE}, v{tF}')
        if split:
            a(f'v_cvt_f32_u32 v{tA}, s{sLA}')
            a(f'v_cvt_f32_u32 v{tD}, s{sLB}')
            a(f'v_rcp_f32 v{tA}, v{tA}')
            a(f'v_rcp_f32 v{tD}, v{tD}')
            a(f's_lshl_b32 s{t0}, s{sLA}, 5')
            a(f's_sub_u32 s{t1}, s{sLA}, s{sLB}')
            a(f's_lshl_b32 s{t1}, s{t1}, 5')
            a(f'v_mul_f32 v{tA}, 0.25, v{tA}')
            a(f'v_mul_f32 v{tD}, 0.25, v{tD}')
            for (OFF, nx, B, Vv) in ((nOFF0, tB, B0, V0), (nOFF1, tC, B1, V1)):
                a(f'v_cmp_gt_u32 vcc, s{t0}, v{OFF}')
                a(f'v_subrev_u32 v{tG}, s{t1}, v{OFF}')
                a('s_nop 0')
                a(f'v_cndmask_b32 v{tG}, v{tG}, v{OFF}, vcc')
                a(f'v_cndmask_b32 v{tH}, v{tD}, v{tA}, vcc')
                a(f'v_cvt_f32_u32 v{tG}, v{tG}')
                a(f'v_add_f32 v{tG}, 2.0, v{tG}')
                a(f'v_mul_f32 v{tG}, v{tH}, v{tG}')
                a(f'v_cvt_u32_f32 v{nx}, v{tG}')
                a(f'v_add_u32 v{nx}, 1, v{nx}')
                a(f'v_mov_b32 v{tG}, s{sLB}')
                a(f'v_mov_b32 v{tH}, s{sLA}')
                a(f'v_cndmask_b32 v{tG}, v{tG}, v{tH}, vcc')
                a(f'v_mov_b32 v{tH}, s{t1}')
                a(f'v_cndmask_b32 v{tH}, v{tH}, 0, vcc')
                a(f'v_lshlrev_b32 v{tG}, 2, v{tG}')
                a(f'v_mad_u32_u24 v{B}, v{nx}, v{tG}, v{tH}')
            a(f's_movk_i32 s{t1}, {VROWB}')
            a(f'v_mov_b32 v{tD}, {L_VIRT}')
            a(f'v_mad_u32_u24 v{V0}, v{tB}, s{t1}, v{tD}')
            a(f'v_mad_u32_u24 v{V1}, v{tC}, s{t1}, v{tD}')
            a(f'v_add_u32 v{tD}, {ROWB}, v{nROW0}')
            for nd, (B, Vv, END, nx) in enumerate(((B0, V0, nEND0, tB), (B1, V1, nEND1, tC))):
                lab = a.newlabel('nosplit')
                a(f'v_lshrrev_b32 v{tG}, 1, v{nx}')
                a(f'v_cmp_lt_u32 vcc, v{B}, v{END}')
                a(f'v_cmp_eq_u32 s[{sSV}:{sSV+1}], s{sW}, v{tG}')
                a(f's_and_b64 vcc, vcc, s[{sSV}:{sSV+1}]')
                a(f's_cbranch_scc0 {lab}')
                lp = a.newlabel('splitlp')
                a.label(lp)
                a(f's_ff1_i32_b64 s{t0}, vcc')
                a(f's_bitset0_b64 vcc, s{t0}')
                a(f'v_readlane_b32 s{t2}, v{nROW0 if nd == 0 else tD}, s{t0}')
                a(f'v_readlane_b32 s{t3}, v{Vv}, s{t0}')
                a(f'v_lshrrev_b32 v{tG}, 0, v{C4}')
                a('s_mov_b32 exec_hi, 0')
                a(f'v_add_u32 v{tH}, s{t2}, v{tG}')
                a(f'ds_read_b32 v{tI}, v{tH} offset:512')
                a(f'v_add_u32 v{tH}, s{t3}, v{tG}')
                a(f'v_mov_b32 v{tG}, s{t2}')
                a(f'v_mov_b32 v{tA}, s{t3}')
                a(f'ds_write_b32 v{tG}, v{tA} offset:768')
                a('s_waitcnt lgkmcnt(1)')
                a(f'ds_write_b32 v{tH}, v{tI} offset:512')
                a('s_mov_b64 exec, -1')
                a(f's_cmp_lg_u64 vcc, 0')
                a(f's_cbranch_scc1 {lp}')
                a.label(lab)
        a(f's_lshl_b32 s{t0}, s{sW}, 2')
        a(f'v_add_u32 v{tA}, s{t0}, v{nOFF0}')
        a(f'v_add_u32 v{tB}, s{t0}, v{nOFF1}')
        a(f'v_add_u32 v{tC}, {ROWB}, v{nROW0}')
        lp = f'K2_QF{tag}'
        a.label(lp)
        a(f's_add_u32 s{t1}, s{t0}, 4')
        a(f'v_cmp_eq_u32 s[{sSV}:{sSV+1}], s{t1}, v{tE}')
        a(f'v_cmp_eq_u32 s[{sSV2}:{sSV2+1}], s{t1}, v{tF}')
        if split:
            a(f'v_add_u32 v{tG}, 4, v{tA}')
            a(f'v_add_u32 v{tH}, 4, v{tB}')
            a(f'v_cmp_eq_u32 vcc, v{tG}, v{B0}')
            a(f's_or_b64 s[{sSV}:{sSV+1}], s[{sSV}:{sSV+1}], vcc')
            a(f'v_cmp_eq_u32 vcc, v{tH}, v{B1}')
            a(f's_or_b64 s[{sSV2}:{sSV2+1}], s[{sSV2}:{sSV2+1}], vcc')
            a(f'v_cmp_ge_u32 vcc, v{tA}, v{B0}')
            a('s_nop 1')
            a(f'v_cndmask_b32 v{tG}, v{nROW0}, v{V0}, vcc')
            a(f'v_cmp_ge_u32 vcc, v{tB}, v{B1}')
            a('s_nop 1')
            a(f'v_cndmask_b32 v{tH}, v{tC}, v{V1}, vcc')
        else:
            a(f'v_mov_b32 v{tG}, v{nROW0}')
            a(f'v_mov_b32 v{tH}, v{tC}')
        a(f'v_or_b32 v{tD}, 0x80000000, v{tG}')
        a(f'v_or_b32 v{tI}, 0x80000000, v{tH}')
        a(f'v_cmp_lt_u32 vcc, s{t0}, v{tE}')
        a(f'v_cndmask_b32 v{tG}, v{tG}, v{tD}, s[{sSV}:{sSV+1}]')
        a(f'v_cndmask_b32 v{tH}, v{tH}, v{tI}, s[{sSV2}:{sSV2+1}]')
        a(f'v_cmp_lt_u32 s[{sSV}:{sSV+1}], s{t0}, v{tF}')
        a('s_mov_b64 exec, vcc')
        a(f'ds_write_b32 v{tA}, v{tG} offset:{L_QI}')
        a(f's_mov_b64 exec, s[{sSV}:{sSV+1}]')
        a(f'ds_write_b32 v{tB}, v{tH} offset:{L_QI}')
        a('s_mov_b64 exec, -1')
        a(f's_add_u32 s{t0}, s{t0}, 32')
        a(f'v_add_u32 v{tA}, 32, v{tA}')
        a(f'v_add_u32 v{tB}, 32, v{tB}')
        a(f'v_cmp_lt_u32 vcc, s{t0}, v{TR}')
        a(f's_cbranch_vccnz {lp}')
    def scatter():
        a('s_waitcnt lgkmcnt(0)')
        for it in range(8):
            a(f's_mov_b64 exec, s[{MK+2*it}:{MK+2*it+1}]')
            a(f'ds_read_b32 v{AX+it}, v{REC+2*it+1} offset:{L_TAB}')
        for it in range(8):
            a(f's_mov_b64 exec, s[{MK+2*it}:{MK+2*it+1}]')
            a('s_waitcnt lgkmcnt(7)')
            a(f'v_lshl_add_u32 v{AX+it}, v{RK+it}, 2, v{AX+it}')
            a(f'ds_write_b32 v{AX+it}, v{REC+2*it} offset:{L_ENT}')
        for it in range(8, 16):
            sk = a.newlabel('sks')
            a(f's_mov_b64 exec, s[{MK+2*it}:{MK+2*it+1}]')
            if opts.get('skipb', 1): a(f's_cbranch_execz {sk}')
            a(f'ds_read_b32 v{AX+it}, v{REC+2*it+1} offset:{L_TAB}')
            a('s_waitcnt lgkmcnt(0)')
            a(f'v_lshl_add_u32 v{AX+it}, v{RK+it}, 2, v{AX+it}')
            a(f'ds_write_b32 v{AX+it}, v{REC+2*it} offset:{L_ENT}')
            a.label(sk)
        sk = a.newlabel('sksc')
        a(f's_mov_b64 exec, s[{MKC}:{MKC+1}]')
        a(f's_cbranch_execz {sk}')
        a(f'ds_read_b32 v{tJ}, v{RC+1} offset:{L_TAB}')
        a('s_waitcnt lgkmcnt(0)')
        a(f'v_lshl_add_u32 v{tJ}, v{RKC}, 2, v{tJ}')
        a(f'ds_write_b32 v{tJ}, v{RC} offset:{L_ENT}')
        a.label(sk)
        a('s_mov_b64 exec, -1')

    def setup_ptrs():
        a(f'v_add_u32 v{tB}, s{sSO}, v{jA}')
        a(f'v_mad_u32_u24 v{tA}, v{sidA}, s{sL}, v{tB}')
        a(f'v_lshlrev_b32 v{pEN}, 4, v{tA}')
        a(f'ds_read_b128 v[{EN}:{EN+3}], v{pEN} offset:{L_ENT}')
        a(f'v_lshlrev_b32 v{pQF}, 2, v{tA}')
        a(f'v_sub_u32 v{pQI}, v{tA}, v{jA}')
        a(f'v_lshlrev_b32 v{pQI}, 2, v{pQI}')
        a(f'v_add_u32 v{pQI}, {L_QI}, v{pQI}')
        a(f'v_mad_u32_u24 v{tA}, v{sidR}, s{sL}, v{tB}')
        a(f'v_lshl_add_u32 v{pEE}, v{tA}, 4, v{iR4}')
        a(f's_mov_b32 m0, s{sDB}')

    def dma_addr():
        return [f'v_mad_u32_u16 v{EN+i}, v{EN+i}, s{s128}, v{CO+i}' for i in range(4)]
    def dma_issue():
        if opts.get('nodma'): return []
        return [f'buffer_load_dwordx4 v{EN+i}, s[{rX}:{rX+3}], 0 offen offset:{1024*i} lds' if i else
                f'buffer_load_dwordx4 v{EN}, s[{rX}:{rX+3}], 0 offen lds' for i in range(4)]

    def main_loop(tag, atomic):
        flush_blocks = []
        PS = [(PP, TT_, ZZ), (PB, TB, ZB)]
        def flush_body(par, j):
            a(f's_bfe_i32 exec_lo, s{sF[par]}, 0x{(1<<16)|(8*j):x}')
            a(f's_bfe_i32 exec_hi, s{sF[par]+1}, 0x{(1<<16)|(8*j):x}')
            a(f'v_add_f32 v{F0}, v{DEN}, v{DEN+1}')
            a(f'v_add_f32 v{F1}, v{NUM}, v{NUM+1}')
            a(f'v_add_f32 v{F2}, v{DEN+2}, v{DEN+3}')
            a(f'v_add_f32 v{F3}, v{NUM+2}, v{NUM+3}')
            a(f'v_mov_b64 v[{DEN}:{DEN+1}], 0')
            a(f'v_mov_b64 v[{NUM}:{NUM+1}], 0')
            if atomic:
                a(f'ds_add_f32 v{QA[par]+j}, v{F0}')
                a(f'ds_add_f32 v{QA[par]+j}, v{F1} offset:256')
                a(f'ds_add_f32 v{QA[par]+j}, v{F2} offset:128')
                a(f'ds_add_f32 v{QA[par]+j}, v{F3} offset:384')
            else:
                a(f'ds_write2_b32 v{QA[par]+j}, v{F0}, v{F1} offset0:0 offset1:64')
                a(f'ds_write2_b32 v{QA[par]+j}, v{F2}, v{F3} offset0:32 offset1:96')
            a(f'v_mov_b64 v[{DEN+2}:{DEN+3}], 0')
            a(f'v_mov_b64 v[{NUM+2}:{NUM+3}], 0')
            a('s_mov_b64 exec, -1')
        def post2(par):
            for j in range(4):
                for cc in range(2):
                    p, t, z = (r + 2*j for r in PS[cc])
                    a(f'v_pk_fma_f32 v[{NUM+2*cc}:{NUM+2*cc+1}], v[{p}:{p+1}], v[{t}:{t+1}], v[{NUM+2*cc}:{NUM+2*cc+1}]')
                    a(f'v_pk_fma_f32 v[{DEN+2*cc}:{DEN+2*cc+1}], v[{p}:{p+1}], v[{z}:{z+1}], v[{DEN+2*cc}:{DEN+2*cc+1}]')
                if opts.get('noflush'): continue
                fl = a.newlabel('fl'); back = a.newlabel('bk')
                a(f's_bitcmp1_b32 s{sANY[par]}, {8*j}')
                a(f's_cbranch_scc1 {fl}')
                a.label(back)
                flush_blocks.append((fl, back, par, j))
        def pre(cur):
            g0 = G_[cur]; h0 = H_[cur]; P_, T_, Z_ = PS[cur]
            for j in range(4):
                g = g0 + 4*j
                a(f'v_pk_fma_f32 v[{g}:{g+1}], v[{g}:{g+1}], s[{sC}:{sC+1}], s[{sC}:{sC+1}] clamp')
                a(f'v_pk_fma_f32 v[{g+2}:{g+3}], v[{g+2}:{g+3}], s[{sC}:{sC+1}], s[{sC}:{sC+1}] clamp')
            for j in range(4):
                g = g0 + 4*j; h = h0 + 4*j
                X = f'v[{g}:{g+1}]'; Y = f'v[{g+2}:{g+3}]'
                p = P_ + 2*j; t = T_ + 2*j; z = Z_ + 2*j
                a(f'v_pk_mul_f32 v[{t}:{t+1}], {Y}, v[{h}:{h+1}]')
                a(f'v_pk_mul_f32 v[{p}:{p+1}], {X}, {Y}')
                a(f'v_pk_add_f32 v[{z}:{z+1}], {X}, {Y}')
                a(f'v_pk_fma_f32 v[{t}:{t+1}], {X}, v[{h+2}:{h+3}], v[{t}:{t+1}]')
        def mfma_list(nxt, cc):
            Gs = f'v[{G_[nxt]}:{G_[nxt]+15}]'; Hs = f'v[{H_[nxt]}:{H_[nxt]+15}]'
            out = []
            for kp in range(4):
                wb = WB + 16*cc + 4*kp; wv = WV + 16*cc + 4*kp; ax = AX + 4*kp
                out.append(f'v_mfma_f32_32x32x16_bf16 {Hs}, v[{ax}:{ax+3}], v[{wv}:{wv+3}], {"0" if kp == 0 else Hs}')
                out.append(f'v_mfma_f32_32x32x16_bf16 {Gs}, v[{ax}:{ax+3}], v[{wb}:{wb+3}], {"0" if kp == 0 else Gs}')
            out.append(f'v_mfma_f32_32x32x16_bf16 {Gs}, v[{AE[cc]}:{AE[cc]+3}], v[{BE}:{BE+3}], {Gs}')
            return out
        def trans_list(cur):
            Pp = PS[cur ^ 1][0]
            return [f'v_rcp_f32 v{Pp+i}, v{Pp+i}' for i in range(8)] + [f'v_exp_f32 v{G_[cur]+i}, v{G_[cur]+i}' for i in range(16)]
        def weave(mf, tr, gaps):
            dist = [3, 3, 3, 3, 3, 3, 2, 2, 2]
            if opts.get('nogaps'): gaps = {}
            if opts.get('nomf'): mf = None
            k = 0
            for m in range(9):
                for ins in gaps.get(('m', m), []): a(ins)
                if mf: a(mf[m])
                for _ in range(dist[m]):
                    a(tr[k])
                    for ins in gaps.get(k, []): a(ins)
                    k += 1
            assert k == len(tr)
        def stage0(par):
            g = {}
            da = dma_addr()
            g[0] = [f'ds_read_b32 v{QF}, v{pQF} offset:{L_QI + 16*(par+1)}']
            g[1] = [f'ds_read_b32 v{EE}, v{pEE} offset:{L_ENT + 64*(par+1)}']
            g[3] = [f'v_and_or_b32 v{BE}, v{R0}, s{sHI}, v{BC+1}']
            g[6] = [da[0]]; g[9] = [da[1]]; g[12] = [da[2]]; g[15] = [da[3]]
            axr = [f'ds_read_b128 v[{AX+4*kp}:{AX+4*kp+3}], v{RA+kp}' for kp in range(4)]
            early = opts.get('axearly', 0)
            if early:
                for kp, gp in enumerate(opts.get('axgaps', (8, 11, 17, 21))):
                    g.setdefault(gp, [])
                    g[gp] = g[gp] + ((['s_waitcnt vmcnt(0)'] if kp == 0 else []) + [axr[kp]])
            weave(mfma_list(1, 1), trans_list(0), g)
            axpre = opts.get('axpre', 1)
            if axpre and not early and not opts.get('nogaps'):
                a('s_waitcnt vmcnt(0)')
                for ins in axr: a(ins)
            post2(par ^ 1)
            qn = QA[par ^ 1]
            if not opts.get('nogaps'):
                a(f'ds_read_b128 v[{qn}:{qn+3}], v{pQI} offset:{16*(par+1)}')
                if not early and not axpre:
                    a('s_waitcnt vmcnt(0)')
                    for ins in axr: a(ins)
            pre(0)
            a(f's_sub_u32 s{sCNT}, s{sCNT}, 1')
        def stage1(par):
            qn = QA[par ^ 1]
            g = {}
            di = dma_issue()
            g[('m', 0)] = ['s_waitcnt lgkmcnt(0)']
            g[0] = [f'v_mad_u32_u24 v{qn}, v{qn}, 1, v{C4}'] + di[0:1]
            g[1] = [f'v_mad_u32_u24 v{qn+1}, v{qn+1}, 1, v{C4}'] + di[1:2]
            g[2] = [f'ds_read_b32 v{R0}, v{qn} offset:512'] + di[2:3]
            g[3] = [f'v_mad_u32_u24 v{qn+2}, v{qn+2}, 1, v{C4}', f'ds_read_b32 v{BE+1}, v{qn+1} offset:512'] + di[3:4]
            g[4] = [f'v_mad_u32_u24 v{qn+3}, v{qn+3}, 1, v{C4}', f'ds_read_b32 v{BE+2}, v{qn+2} offset:512']
            g[5] = [f'ds_read_b32 v{BE+3}, v{qn+3} offset:512']
            g[6] = [f'ds_read_b128 v[{EN}:{EN+3}], v{pEN} offset:{L_ENT + 64*(par+3)}']
            g[7] = [f'v_perm_b32 v{AE[0]}, v{EE}, v{AE[0]}, v{SEL[0]}']
            g[9] = [f'v_perm_b32 v{AE[1]}, v{EE}, v{AE[1]}, v{SEL[1]}']
            g[11] = [f'v_cmp_gt_i32 s[{sF[par^1]}:{sF[par^1]+1}], 0, v{QF}']
            if par == 1:
                g[13] = [f'v_add_u32 v{pQI}, 32, v{pQI}']
                g[14] = [f'v_add_u32 v{pQF}, 32, v{pQF}']
                g[15] = [f'v_add_u32 v{pEE}, 128, v{pEE}']
                g[16] = [f'v_add_u32 v{pEN}, 128, v{pEN}']
            g[17] = [f's_or_b32 s{sANY[par^1]}, s{sF[par^1]}, s{sF[par^1]+1}'] if not opts.get('noany') else [f's_mov_b32 s{sANY[par^1]}, 0']
            g[19] = ['s_waitcnt lgkmcnt(0)', f'v_and_or_b32 v{BE}, v{R0}, s{sLO}, v{BC}']
            weave(mfma_list(0, 0), trans_list(1), g)
            pre(1)
        def last_stage1(par):
            weave(None, trans_list(1), {})
            pre(1)
            for i in range(8):
                a(f'v_rcp_f32 v{PB+i}, v{PB+i}')
            a('s_nop 0')
            post2(par)
        L0 = f'K2_T0{tag}'; E0 = f'K2_E0{tag}'; E1 = f'K2_E1{tag}'; DONE = f'K2_MD{tag}'
        PR = opts.get('prio', 1)
        if PR:
            a(f's_add_u32 s{t0}, s{sCNT}, 1')
            a(f's_mul_i32 s{t0}, s{t0}, {opts.get("pfrac", 20)}')
            a(f's_lshr_b32 s{t0}, s{t0}, 6')
            a(f's_lshl_b32 s{t0}, s{t0}, 1')
            a(f's_sub_u32 s{sSWAP}, s{sCNT}, s{t0}')
            a(f's_cmp_ge_u32 s{sW}, 4')
            a(f's_cbranch_scc0 K2_PR0{tag}')
            a('s_setprio 1')
            a.label(f'K2_PR0{tag}')
        if PR == 3:
            a(f's_cmp_ge_u32 s{sW}, 4')
            a(f's_cselect_b32 s{sSWAP}, 1, 0')
        a.label(L0)
        if PR == 3:
            a(f's_xor_b32 s{sSWAP}, s{sSWAP}, 1')
            a(f's_cbranch_scc1 K2_PH{tag}')
            a('s_setprio 0')
            a(f's_branch K2_PD{tag}')
            a.label(f'K2_PH{tag}')
            a('s_setprio 1')
            a.label(f'K2_PD{tag}')
        elif PR:
            a(f's_cmp_eq_u32 s{sCNT}, s{sSWAP}')
            a(f's_cbranch_scc1 K2_SWP{tag}')
            a.label(f'K2_SWB{tag}')
        stage0(0)
        a(f's_cbranch_scc1 {E0}')
        stage1(0)
        stage0(1)
        a(f's_cbranch_scc1 {E1}')
        stage1(1)
        a(f's_branch {L0}')
        a.label(E0)
        last_stage1(0)
        a(f's_branch {DONE}')
        a.label(E1)
        last_stage1(1)
        a(f's_branch {DONE}')
        if PR and PR != 3:
            a.label(f'K2_SWP{tag}')
            a(f's_cmp_ge_u32 s{sW}, 4')
            a(f's_cbranch_scc1 K2_SW0{tag}')
            a('s_setprio 1')
            a(f's_branch K2_SWB{tag}')
            a.label(f'K2_SW0{tag}')
            a('s_setprio 0')
            a(f's_branch K2_SWB{tag}')
        for (fl, back, par, j) in flush_blocks:
            a.label(fl)
            flush_body(par, j)
            a(f's_branch {back}')
        a.label(DONE)
        if PR: a('s_setprio 0')

    def pipeline_fill():
        q0 = QA[0]
        a(f'ds_read_b128 v[{q0}:{q0+3}], v{pQI}')
        a(f'ds_read_b32 v{QF}, v{pQF} offset:{L_QI}')
        a(f'ds_read_b32 v{EE}, v{pEE} offset:{L_ENT}')
        a(f'ds_read_b128 v[{EN}:{EN+3}], v{pEN} offset:{L_ENT + 64}')
        for i in range(2):
            a(f'v_mov_b64 v[{DEN+2*i}:{DEN+2*i+1}], 0')
            a(f'v_mov_b64 v[{NUM+2*i}:{NUM+2*i+1}], 0')
        for i in range(8):
            a(f'v_mov_b32 v{PP+i}, 1.0')
            a(f'v_mov_b32 v{PB+i}, 1.0')
        for i in range(4):
            a(f'v_mov_b64 v[{TT_+2*i}:{TT_+2*i+1}], 0')
            a(f'v_mov_b64 v[{ZZ+2*i}:{ZZ+2*i+1}], 0')
            a(f'v_mov_b64 v[{TB+2*i}:{TB+2*i+1}], 0')
            a(f'v_mov_b64 v[{ZB+2*i}:{ZB+2*i+1}], 0')
        a(f's_mov_b32 s{sANY[1]}, 0')
        a('s_waitcnt lgkmcnt(0)')
        for q in range(4):
            a(f'v_mad_u32_u24 v{q0+q}, v{q0+q}, 1, v{C4}')
        a(f'ds_read_b32 v{R0}, v{q0} offset:512')
        for q in range(1, 4):
            a(f'ds_read_b32 v{BE+q}, v{q0+q} offset:512')
        a(f'v_perm_b32 v{AE[0]}, v{EE}, v{AE[0]}, v{SEL[0]}')
        a(f'v_perm_b32 v{AE[1]}, v{EE}, v{AE[1]}, v{SEL[1]}')
        a(f'v_cmp_gt_i32 s[{sF[0]}:{sF[0]+1}], 0, v{QF}')
        for ins in dma_addr(): a(ins)
        stamp(21)
        a('s_waitcnt vmcnt(0)')
        stamp(22)
        for kp in range(4):
            a(f'ds_read_b128 v[{AX+4*kp}:{AX+4*kp+3}], v{RA+kp}')
        a(f's_or_b32 s{sANY[0]}, s{sF[0]}, s{sF[0]+1}')
        a('s_waitcnt lgkmcnt(0)')
        a(f'v_and_or_b32 v{BE}, v{R0}, s{sLO}, v{BC}')
        for ins in dma_issue(): a(ins)
        a(f'ds_read_b128 v[{EN}:{EN+3}], v{pEN} offset:{L_ENT + 128}')
        Gs = f'v[{GA}:{GA+15}]'; Hs = f'v[{HA}:{HA+15}]'
        for kp in range(4):
            a(f'v_mfma_f32_32x32x16_bf16 {Hs}, v[{AX+4*kp}:{AX+4*kp+3}], v[{WV+4*kp}:{WV+4*kp+3}], {"0" if kp == 0 else Hs}')
            a(f'v_mfma_f32_32x32x16_bf16 {Gs}, v[{AX+4*kp}:{AX+4*kp+3}], v[{WB+4*kp}:{WB+4*kp+3}], {"0" if kp == 0 else Gs}')
        a(f'v_mfma_f32_32x32x16_bf16 {Gs}, v[{AE[0]}:{AE[0]+3}], v[{BE}:{BE+3}], {Gs}')
        a('s_waitcnt lgkmcnt(0)')
        a('s_nop 7')
        a('s_nop 3')
    def forced_flags():
        a(f's_sub_u32 s{t1}, s{sL}, 1')
        a(f's_lshl_b32 s{t1}, s{t1}, 2')
        a(f'v_add_u32 v{tB}, s{t1}, v{pQI}')
        a(f'v_mov_b32 v{tA}, 0x80000000')
        a('s_mov_b32 exec_lo, 1')
        a('s_mov_b32 exec_hi, 1')
        a(f'ds_or_b32 v{tB}, v{tA}')
        a('s_mov_b64 exec, -1')

    stamp(2)
    a(f's_mov_b64 exec, s[{sSV2}:{sSV2+1}]')
    a(f'v_mov_b32 v{tD}, {L_CNT + 127*4}')
    a(f'v_mov_b32 v{tE}, 1')
    a(f'ds_write_b32 v{tD}, v{tE}')
    a('s_mov_b64 exec, -1')
    gemm_issue()
    stamp(28)
    gemm_mid()
    gemm_mid2()
    stamp(29)
    a(f's_cmp_lg_u32 s{sW}, 0')
    a('s_cbranch_scc1 K2_NOCI')
    a(f'v_mul_u32_u24 v{tA}, {2*ROWB}, v{vLANE}')
    a(f'v_mov_b32 v{tB}, {L_ZERO}')
    a(f'v_add_u32 v{tA}, {L_ACC}, v{tA}')
    a(f's_mov_b32 exec_hi, {(1 << (MAXN // 2 - 32)) - 1}')
    a(f'ds_write_b32 v{tA}, v{tB} offset:768')
    a(f'ds_write_b32 v{tA}, v{tB} offset:{768 + ROWB}')
    a('s_mov_b64 exec, -1')
    a.label('K2_NOCI')
    gemm_store('F')
    stamp(3)
    a('s_waitcnt vmcnt(0) lgkmcnt(0)')
    stamp(23)
    hist()
    a('s_waitcnt lgkmcnt(0)')
    stamp(24)
    if opts.get('proprio') == 1: a('s_setprio 0')
    a('s_barrier')
    stamp(4)
    scan_nodes('F')
    a(f'v_readlane_b32 s{t0}, v{TQ+1}, 63')
    a(f's_cmp_eq_u32 s{sLB}, 0')
    a(f's_cselect_b32 s{t1}, s{sLA}, s{sLB}')
    a(f's_lshl_b32 s{t1}, s{t1}, 2')
    a(f'v_cmp_lt_u32 vcc, s{t1}, v{tB}')
    a(f's_cmp_lg_u32 s{t0}, 0')
    a('s_cbranch_scc1 K2_SLOW')
    a(f's_add_u32 s{t1}, s{sLA}, s{sLB}')
    a(f's_cmp_gt_u32 s{t1}, {(ENT_QUADS - 8) // 8}')
    a('s_cbranch_scc1 K2_SLOW')
    a('s_cbranch_vccnz K2_SLOW')
    stamp(15)
    scatter()
    stamp(16)
    a('s_waitcnt lgkmcnt(0)')
    a('s_barrier')
    stamp(5)
    a(f's_cmp_eq_u32 s{sL}, 0')
    a('s_cbranch_scc1 K2_NOL')
    setup_ptrs()
    a('s_waitcnt lgkmcnt(0)')
    for ins in dma_addr(): a(ins)
    for ins in dma_issue(): a(ins)
    a.label('K2_NOL')
    stamp(17)
    a(f'v_cmp_gt_u32 vcc, {MAXN // 2}, v{vLANE}')
    a(f'v_lshl_or_b32 v{tB}, v{vLANE}, 1, 1')
    a(f'v_cmp_le_u32 s[{sSV}:{sSV+1}], s{sNN}, v{tB}')
    a(f'v_mov_b32 v{tC}, 1')
    a('s_nop 0')
    a(f'v_cndmask_b32 v{tB}, v{TQ+1}, v{tC}, s[{sSV}:{sSV+1}]')
    a(f'v_min_u32 v{tB}, v{TQ}, v{tB}')
    a(f'v_cmp_eq_u32 s[{sSV}:{sSV+1}], 0, v{tB}')
    a(f's_and_b64 s[{sSV}:{sSV+1}], s[{sSV}:{sSV+1}], vcc')
    a('s_cbranch_scc1 K2_ZROWS')
    a.label('K2_ZBACK')
    qi_fill('F', True)
    stamp(18)
    w_frags()
    consts()
    a('s_waitcnt lgkmcnt(0)')
    stamp(19)
    if opts.get('proprio') == 2: a('s_setprio 0')
    a('s_barrier')
    stamp(20)
    a(f's_cmp_eq_u32 s{sL}, 0')
    a('s_cbranch_scc1 K2_EPI')
    pipeline_fill()
    stamp(6)
    if opts.get('dbgtime'):
        a(f's_memrealtime s[{t2}:{t3}]')
        a('s_waitcnt lgkmcnt(0)')
        a(f's_mov_b32 s{sT1}, s{t2}')
    if STAMP:
        a(f's_memrealtime s[{t2}:{t3}]')
        a('s_waitcnt lgkmcnt(0)')
        a(f'v_writelane_b32 v{vST}, s{t2}, 13')
    if opts.get('half'):
        a(f's_cmp_ge_u32 s{sW}, 4')
        a('s_cbranch_scc1 K2_MDF')
    main_loop('F', False)
    stamp(7)
    if opts.get('dbgtime'):
        a(f's_memrealtime s[{t2}:{t3}]')
        a('s_waitcnt lgkmcnt(0)')
        a(f's_mov_b32 s{sT2}, s{t2}')
    if STAMP:
        a(f's_memrealtime s[{t2}:{t3}]')
        a('s_waitcnt lgkmcnt(0)')
        a(f'v_writelane_b32 v{vST}, s{t2}, 14')
    a.label('K2_EPI')
    e0 = 4
    XV = [e0, e0 + 4]; UU = [e0 + 8, e0 + 12]
    DN = [e0 + 16, e0 + 48]; NM = [e0 + 24, e0 + 56]; CD = [e0 + 32, e0 + 64]; CN = [e0 + 40, e0 + 72]
    O = e0 + 80; ADR = [e0 + 84, e0 + 85]; GO = [e0 + 86, e0 + 87]; CP = [e0 + 88, e0 + 89]; OC = [e0 + 90, e0 + 91]
    T1 = e0 + 92; ND = e0 + 93
    def epi_addr(r):
        a(f'v_add_u32 v{T1}, {512*r}, v0') if r else a(f'v_mov_b32 v{T1}, v0')
        a(f'v_lshrrev_b32 v{ND}, 3, v{T1}')
        a(f'v_and_b32 v{T1}, 7, v{T1}')
        a(f'v_lshlrev_b32 v{OC[r]}, 4, v{T1}')
        a(f'v_mul_u32_u24 v{CP[r]}, s{t0}, v{ND}')
        a(f'v_add_u32 v{CP[r]}, {L_ACC}, v{CP[r]}')
        a(f'v_add_u32 v{ADR[r]}, v{CP[r]}, v{OC[r]}')
        a(f'v_add_u32 v{GO[r]}, s{sNS}, v{ND}')
        a(f'v_lshlrev_b32 v{GO[r]}, 7, v{GO[r]}')
        a(f'v_lshl_add_u32 v{GO[r]}, v{T1}, 3, v{GO[r]}')
    def epi_static(r, carry):
        a(f'buffer_load_dwordx2 v[{XV[r]}:{XV[r]+1}], v{GO[r]}, s[{rF}:{rF+3}], 0 offen')
        a(f'buffer_load_dwordx2 v[{XV[r]+2}:{XV[r]+3}], v{GO[r]}, s[{rF}:{rF+3}], 0 offen offset:64')
        a(f'ds_read_b128 v[{UU[r]}:{UU[r]+3}], v{ADR[r]} offset:640')
        if carry: a(f'ds_read_b32 v{CP[r]}, v{CP[r]} offset:768')
    def epi_reads(r, carry):
        ad = ADR[r]
        a(f'ds_read_b128 v[{DN[r]}:{DN[r]+3}], v{ad}')
        a(f'ds_read_b128 v[{DN[r]+4}:{DN[r]+7}], v{ad} offset:128')
        a(f'ds_read_b128 v[{NM[r]}:{NM[r]+3}], v{ad} offset:256')
        a(f'ds_read_b128 v[{NM[r]+4}:{NM[r]+7}], v{ad} offset:384')
        if carry:
            a(f'ds_read_b128 v[{CD[r]}:{CD[r]+3}], v{CP[r]}')
            a(f'ds_read_b128 v[{CD[r]+4}:{CD[r]+7}], v{CP[r]} offset:128')
            a(f'ds_read_b128 v[{CN[r]}:{CN[r]+3}], v{CP[r]} offset:256')
            if r == 1: a('s_waitcnt lgkmcnt(14)')
            a(f'ds_read_b128 v[{CN[r]+4}:{CN[r]+7}], v{CP[r]} offset:384')
    def epi_math(r, carry):
        dn, nm, cd, cn, uu, xv = DN[r], NM[r], CD[r], CN[r], UU[r], XV[r]
        if carry:
            for i in range(0, 8, 2):
                a(f'v_pk_add_f32 v[{dn+i}:{dn+i+1}], v[{dn+i}:{dn+i+1}], v[{cd+i}:{cd+i+1}]')
                a(f'v_pk_add_f32 v[{nm+i}:{nm+i+1}], v[{nm+i}:{nm+i+1}], v[{cn+i}:{cn+i+1}]')
        for i in range(0, 8, 2):
            a(f'v_pk_add_f32 v[{dn+i}:{dn+i+1}], v[{dn+i}:{dn+i+1}], s[{sC}:{sC+1}]')
        for i in range(8):
            a(f'v_rcp_f32 v{dn+i}, v{dn+i}')
        for i in range(4):
            a(f'v_lshlrev_b32 v{cd+i}, 16, v{uu+i}')
            a(f'v_and_b32 v{cd+4+i}, s{sHI}, v{uu+i}')
        for i in range(0, 8, 2):
            a(f'v_pk_fma_f32 v[{nm+i}:{nm+i+1}], v[{nm+i}:{nm+i+1}], v[{dn+i}:{dn+i+1}], v[{cd+i}:{cd+i+1}]')
        for i in range(8):
            a(f'v_max_f32 v{nm+i}, 0, v{nm+i}')
        for i in range(4):
            a(f'v_lshlrev_b32 v{cd+2*i}, 16, v{xv+i}')
            a(f'v_and_b32 v{cd+2*i+1}, s{sHI}, v{xv+i}')
        for i in range(0, 8, 2):
            a(f'v_pk_add_f32 v[{nm+i}:{nm+i+1}], v[{nm+i}:{nm+i+1}], v[{cd+i}:{cd+i+1}]')
        for i in range(4):
            a(f'v_cvt_pk_bf16_f32 v{O+i}, v{nm+2*i}, v{nm+2*i+1}')
        osf = {0: '', 1: ' sc1', 2: ' nt', 3: ' sc0 sc1'}[opts.get('outst', 1)]
        a(f'buffer_store_dwordx2 v[{O}:{O+1}], v{GO[r]}, s[{rO}:{rO+3}], 0 offen' + osf)
        a(f'buffer_store_dwordx2 v[{O+2}:{O+3}], v{GO[r]}, s[{rO}:{rO+3}], 0 offen offset:64' + osf)
    def epilogue(tag, carry):
        srd(a, rO, sOUT, N * 128)
        srd(a, rF, sX, N * 128)
        a(f's_mov_b32 s{t0}, {ROWB}')
        a(f's_mov_b32 s{sC}, 0x{EPS_SCALED:x}')
        a(f's_mov_b32 s{sC+1}, 0x{EPS_SCALED:x}')
        a(f's_mov_b32 s{sHI}, 0xffff0000')
        a('s_waitcnt vmcnt(0)')
        epi_addr(0)
        epi_static(0, carry)
        epi_addr(1)
        a(f'v_cmp_gt_u32 s[{sSV}:{sSV+1}], s{sNN}, v{ND}')
        a('s_nop 3')
        a(f's_mov_b64 exec, s[{sSV}:{sSV+1}]')
        a(f's_cbranch_execz K2_NS2{tag}')
        epi_static(1, carry)
        a.label(f'K2_NS2{tag}')
        a('s_mov_b64 exec, -1')
        a('s_waitcnt lgkmcnt(0)')
        if carry:
            a(f'v_add_u32 v{CP[0]}, v{CP[0]}, v{OC[0]}')
            a(f'v_add_u32 v{CP[1]}, v{CP[1]}, v{OC[1]}')
        a('s_barrier')
        if STAMP and tag == 'F': stamp(8)
        epi_reads(0, carry)
        a(f's_mov_b64 exec, s[{sSV}:{sSV+1}]')
        a(f's_cbranch_execz K2_ONE{tag}')
        epi_reads(1, carry)
        a('s_mov_b64 exec, -1')
        a(f's_waitcnt vmcnt(0) lgkmcnt({8 if carry else 4})')
        epi_math(0, carry)
        a(f's_mov_b64 exec, s[{sSV}:{sSV+1}]')
        a('s_waitcnt lgkmcnt(0)')
        epi_math(1, carry)
        a(f's_branch K2_FIN{tag}')
        a.label(f'K2_ONE{tag}')
        a('s_mov_b64 exec, -1')
        a('s_waitcnt vmcnt(0) lgkmcnt(0)')
        epi_math(0, carry)
        a.label(f'K2_FIN{tag}')
    epilogue('F', True)
    if opts.get('dbgtime'):
        a('s_mov_b64 exec, -1')
        a('s_waitcnt vmcnt(0)')
        a(f's_memrealtime s[{t2}:{t3}]')
        a(f's_cmp_lg_u32 s{sW}, 7')
        a('s_cbranch_scc1 K2_DBGX')
        a('s_and_b32 s3, s2, 31')
        a('s_cmp_lg_u32 s3, 0')
        a('s_cbranch_scc1 K2_DBGX')
        a('s_lshr_b32 s3, s2, 5')
        a('s_cmp_ge_u32 s3, 2')
        a('s_cbranch_scc1 K2_DBGX')
        a(f's_lshl_b32 s{t0}, s3, 2')
        a(f's_add_u32 s{t0}, s{t0}, 0x1200000')
        a(f'v_mov_b32 v4, s{t0}')
        a(f'global_load_dword v5, v4, s[{sWS}:{sWS+1}]')
        a(f'global_load_dword v6, v4, s[{sWS}:{sWS+1}] offset:256')
        a('s_waitcnt vmcnt(0) lgkmcnt(0)')
        a(f'v_sub_u32 v8, v6, v5')
        a(f'v_sub_u32 v9, s{sT0}, v5')
        a(f'v_sub_u32 v10, s{sT1}, v5')
        a(f'v_sub_u32 v11, s{sT2}, v5')
        a(f'v_sub_u32 v12, s{t2}, v5')
        a('s_lshl_b32 s3, s3, 5')
        a('v_mov_b32 v4, s3')
        a('s_mov_b64 exec, 1')
        a(f'global_store_dwordx4 v4, v[8:11], s[{sDBG}:{sDBG+1}]')
        a(f'global_store_dword v4, v12, s[{sDBG}:{sDBG+1}] offset:16')
        a.label('K2_DBGX')
    if STAMP:
        a('s_mov_b64 exec, -1')
        a('s_waitcnt vmcnt(0)')
        stamp(9)
        a(f's_memrealtime s[{t2}:{t3}]')
        a('s_waitcnt lgkmcnt(0)')
        a(f'v_writelane_b32 v{vST}, s{t2}, 12')
        a(f's_mul_i32 s{t0}, s2, {NW}')
        a(f's_add_u32 s{t0}, s{t0}, s{sW}')
        a(f's_lshl_b32 s{t0}, s{t0}, 8')
        a(f's_add_u32 s{t0}, s{t0}, 0x1000000')
        srd_off(a, rT, sWS, f's{t0}', 256)
        a(f'v_writelane_b32 v{vST}, s{sL}, 10')
        a(f'v_lshlrev_b32 v4, 2, v{vLANE}')
        a(f'buffer_store_dword v{vST}, v4, s[{rT}:{rT+3}], 0 offen')
    a('s_endpgm')
    a.label('K2_CSEL')
    a(f'v_mov_b32 v{tD}, 0')
    a(f'v_mov_b32 v{tE}, 0')
    a(f'v_mov_b32 v{tF}, 0')
    for it in range(8):
        a(f'v_lshrrev_b32 v{tG}, 24, v{SG+it}')
        a(f'v_cmp_lt_u32 vcc, 32, v{tG}')
        a(f'v_mad_u32_u24 v{tJ}, v{SG+it}, 8, v{tB}')
        a(f'v_add_u32 v{RKC}, 1, v{tF}')
        a(f'v_cndmask_b32 v{tD}, v{tD}, v{tJ}, vcc')
        a(f'v_cndmask_b32 v{tE}, v{tE}, v{tG}, vcc')
        a(f'v_cndmask_b32 v{tF}, v{tF}, v{RKC}, vcc')
    a(f'v_cmp_lt_u32 vcc, 1, v{tF}')
    a(f'v_cmp_lt_u32 s[{sSV2}:{sSV2+1}], 48, v{tE}')
    a(f'v_add_u32 v{tG}, 32, v{tC}')
    a(f's_or_b64 s[{sSV2}:{sSV2+1}], s[{sSV2}:{sSV2+1}], vcc')
    a(f'v_cmp_gt_u32 s[{MKC}:{MKC+1}], v{tE}, v{tG}')
    a('s_nop 0')
    a(f's_mov_b64 exec, s[{MKC}:{MKC+1}]')
    a(f'buffer_load_dwordx2 v[{RC}:{RC+1}], v{tD}, s[{rR}:{rR+3}], 0 offen offset:256')
    a('s_mov_b64 exec, -1')
    a('s_branch K2_CBACK')
    a.label('K2_ZROWS')
    a(f's_mov_b64 exec, s[{sSV}:{sSV+1}]')
    for i in range(4):
        a(f'v_mov_b32 v{TR+i}, 0')
    for nd in range(2):
        a(f'v_cmp_eq_u32 vcc, 0, v{TQ+nd}')
        a(f's_and_b64 exec, vcc, s[{sSV}:{sSV+1}]')
        for k in range(32):
            a(f'ds_write_b128 v{nROW0}, v[{TR}:{TR+3}] offset:{nd*ROWB + 16*k}')
        a(f's_mov_b64 exec, s[{sSV}:{sSV+1}]')
    a('s_mov_b64 exec, -1')
    a('s_branch K2_ZBACK')

    a.label('K2_SLOW')
    w_frags()
    consts()
    a('s_waitcnt vmcnt(0) lgkmcnt(0)')
    a('s_barrier')
    a(f's_lshl_b32 s{t1}, s2, 10')
    a(f's_add_u32 s{t1}, s{t1}, {WS_TAB2}')
    srd_off(a, rT, sWS, f's{t1}', 1024)
    a(f'v_lshlrev_b32 v{tA}, 4, v{vLANE}')
    a(f'buffer_load_dwordx4 v[{TQ}:{TQ+3}], v{tA}, s[{rT}:{rT+3}], 0 offen')
    a('s_waitcnt vmcnt(0)')
    a(f'v_max_u32 v{tE}, v{TQ}, v{TQ+1}')
    a(f'v_max3_u32 v{tE}, v{tE}, v{TQ+2}, v{TQ+3}')
    wave_scan(a, 'v_max_u32', tE)
    a('s_nop 0')
    a(f'v_readlane_b32 s{t1}, v{tE}, 63')
    a(f's_add_u32 s{t1}, s{t1}, {WSLOW-1}')
    a(f's_mul_i32 s{t1}, s{t1}, 5042')
    a(f's_lshr_b32 s{sNP}, s{t1}, 16')
    a(f's_mov_b32 s{sP}, 0')
    for i in range(4):
        a(f'v_mov_b32 v{TR+i}, 0')
    a(f'v_lshrrev_b32 v{tA}, 5, v0')
    a(f'v_mul_u32_u24 v{tA}, {ROWB}, v{tA}')
    a(f'v_and_b32 v{tB}, 31, v{vLANE}')
    a(f'v_lshl_add_u32 v{tA}, v{tB}, 4, v{tA}')
    a(f'v_add_u32 v{tA}, {L_ACC}, v{tA}')
    for i in range(6):
        a(f'ds_write_b128 v{tA}, v[{TR}:{TR+3}]')
        a(f'v_add_u32 v{tA}, {16*ROWB}, v{tA}')
    a(f'v_cmp_gt_u32 vcc, 64, v0')
    a(f's_and_saveexec_b64 s[{sSV}:{sSV+1}], vcc')
    a(f'ds_write_b128 v{tA}, v[{TR}:{TR+3}]')
    a(f's_mov_b64 exec, s[{sSV}:{sSV+1}]')
    a.label('K2_SPASS')
    a(f's_lshl_b32 s{t0}, s{sW}, 1')
    a(f'v_lshrrev_b32 v{sidA}, 5, v{vLANE}')
    a(f'v_add_u32 v{sidA}, s{t0}, v{sidA}')
    a(f'v_bfe_u32 v{jA}, v{vLANE}, 3, 2')
    a(f'v_bfe_u32 v{sidR}, v{vLANE}, 2, 1')
    a(f'v_add_u32 v{sidR}, s{t0}, v{sidR}')
    a(f'v_and_b32 v{iR4}, 3, v{vLANE}')
    a(f'v_lshlrev_b32 v{iR4}, 2, v{iR4}')
    a(f's_lshl_b32 s{t1}, s2, 10')
    a(f's_add_u32 s{t1}, s{t1}, {WS_TAB}')
    srd_off(a, rT, sWS, f's{t1}', WS_TAB2 - WS_TAB + 1024)
    a(f'v_lshrrev_b32 v{tD}, 4, v{vLANE}')
    a(f'v_lshlrev_b32 v{tD}, 5, v{tD}')
    a(f's_lshl_b32 s{t0}, s{sW}, 7')
    a(f'v_add_u32 v{tD}, s{t0}, v{tD}')
    a(f's_mov_b32 s{t0}, {WS_TAB2 - WS_TAB}')
    for i in range(2):
        a(f'buffer_load_dwordx4 v[{SG+4*i}:{SG+4*i+3}], v{tD}, s[{rT}:{rT+3}], 0 offen offset:{16*i}')
    for i in range(2):
        a(f'buffer_load_dwordx4 v[{AX+4*i}:{AX+4*i+3}], v{tD}, s[{rT}:{rT+3}], s{t0} offen offset:{16*i}')
    a(f'v_and_b32 v{tC}, 15, v{vLANE}')
    a(f's_mul_i32 s{t0}, s{sP}, {WSLOW}')
    a(f'v_cmp_gt_u32 vcc, {WSLOW}, v{tC}')
    a(f'v_add_u32 v{tC}, s{t0}, v{tC}')
    a(f'v_lshlrev_b32 v{tB}, 3, v{tC}')
    a(f'v_mov_b32 v{tD}, 0x10000')
    a(f'v_cndmask_b32 v{tC}, v{tD}, v{tC}, vcc')
    a('s_waitcnt vmcnt(0)')
    a(f's_mov_b64 s[{MKC}:{MKC+1}], 0')
    for it in range(8):
        a(f'v_cmp_gt_u32 s[{MK+2*it}:{MK+2*it+1}], v{AX+it}, v{tC}')
        a(f's_mov_b64 s[{MK+16+2*it}:{MK+16+2*it+1}], 0')
    rec_loads(tB, 8)
    lds_init()
    a('s_waitcnt vmcnt(0) lgkmcnt(0)')
    a('s_barrier')
    hist()
    a('s_waitcnt lgkmcnt(0)')
    a('s_barrier')
    scan_nodes('S')
    qi_fill('S', False)
    scatter()
    a('s_waitcnt lgkmcnt(0)')
    a('s_barrier')
    a(f's_cmp_eq_u32 s{sL}, 0')
    a('s_cbranch_scc1 K2_SNEXT')
    setup_ptrs()
    a('s_waitcnt lgkmcnt(0)')
    for ins in dma_addr(): a(ins)
    for ins in dma_issue(): a(ins)
    forced_flags()
    pipeline_fill()
    main_loop('S', True)
    a.label('K2_SNEXT')
    a('s_waitcnt vmcnt(0) lgkmcnt(0)')
    a('s_barrier')
    a(f's_add_u32 s{sP}, s{sP}, 1')
    a(f's_cmp_lt_u32 s{sP}, s{sNP}')
    a('s_cbranch_scc1 K2_SPASS')
    epilogue('S', False)
    a.label('K2_END')
    a('s_endpgm')
    return nvgpr, nsgpr

def kd(name, nv, ns):
    acc = (nv + 3) // 4 * 4
    return f'''.amdhsa_kernel {name}
  .amdhsa_next_free_vgpr {nv}
  .amdhsa_next_free_sgpr {ns}
  .amdhsa_accum_offset {acc}
  .amdhsa_group_segment_fixed_size 0
  .amdhsa_kernarg_size 96
  .amdhsa_user_sgpr_count 2
  .amdhsa_user_sgpr_kernarg_segment_ptr 1
  .amdhsa_system_sgpr_workgroup_id_x 1
  .amdhsa_float_denorm_mode_32 3
.end_amdhsa_kernel
'''

def build(opts=None):
    opts = opts or {}
    a = Asm()
    gen_k1(a, opts)
    nv, ns = gen_k2(a, opts)
    out = HEADER
    out += f'; @launch kernel=gs_part_kernel grid=(256,1,1) block=({K1_THREADS},1,1) lds={LDS_K1}\n'
    out += f'; @launch kernel=gs_main_kernel grid=(256,1,1) block=({NW*64},1,1) lds={LDS_MAIN}\n'
    out += '.amdgcn_target "amdgcn-amd-amdhsa--gfx950"\n.text\n'
    out += a.text()
    out += '.section .rodata,"a"\n.p2align 6\n'
    out += kd('gs_part_kernel', 62 if opts.get('stamp1') else 60, 60)
    out += '.p2align 6\n'
    out += kd('gs_main_kernel', nv, ns)
    return out

if __name__ == '__main__':
    path = sys.argv[1] if len(sys.argv) > 1 else 'gather_scatter__edge_featured_mpnn_gatedgcn__graph.s'
    opts = {}
    for o in sys.argv[2:]:
        k, _, val = o.partition('=')
        opts[k] = int(val) if val else True
    open(path, 'w').write(build(opts))
    print('written', path, 'LDS', LDS_MAIN)
```

```python
import sys, os, struct
sys.path.insert(0, os.path.dirname(__file__))
from asmlib import *

N = 25000; E = 800000
NBK = 256
CH = 3136
RECB = CH * 8
WS_TAB = 0x700000
WS_TAB2 = 0x740000
WS_FRAG = 0x780000
MAGIC_B = 43980466
LOG2E = 0xBFB8AA3B
SBITS = 50
C_SCALE = (127 - SBITS) << 23
EPS_SCALED = 0x4E8637BD
assert abs(struct.unpack('<f', struct.pack('<I', EPS_SCALED))[0] / (1e-6 * 2.0**50) - 1) < 1e-6

NW = 8
NSTREAM = 16
NIT = 16
CAP = 3456
WSLOW = 13
ROWB = 784
MAXN = 98
ENT_QUADS = 960
VROWB = 640
L_CNT = 0
L_ZERO = 512
L_TAB = 1024
L_QI = 1536
L_ENT = L_QI + ENT_QUADS * 4
L_ACC = L_ENT + ENT_QUADS * 16
L_VIRT = L_ACC + MAXN * ROWB
L_WST = L_VIRT + NSTREAM * VROWB
L_WST = (L_WST + 255) // 256 * 256
L_DMA = L_WST + 16384
LDS_MAIN = L_DMA + NW * 4096
assert LDS_MAIN <= 163840, LDS_MAIN
assert L_ACC % 16 == 0 and L_VIRT % 16 == 0

K1_THREADS = 896
K1_HIST = 0
K1_STAGE = 1024
LDS_K1 = K1_STAGE + RECB

HEADER = open(os.path.join(os.path.dirname(__file__), 'header.txt')).read()

def srd(a, sreg, ptr, size):
    a(f's_mov_b32 s{sreg}, s{ptr}')
    a(f's_and_b32 s{sreg+1}, s{ptr+1}, 0xffff')
    a(f's_mov_b32 s{sreg+2}, {size}')
    a(f's_mov_b32 s{sreg+3}, 0x20000')

def srd_off(a, sreg, ptr, off, size):
    a(f's_add_u32 s{sreg}, s{ptr}, {off}')
    a(f's_addc_u32 s{sreg+1}, s{ptr+1}, 0')
    a(f's_and_b32 s{sreg+1}, s{sreg+1}, 0xffff')
    a(f's_mov_b32 s{sreg+2}, {size}')
    a(f's_mov_b32 s{sreg+3}, 0x20000')

def wave_scan(a, op, r):
    for sh in (1, 2, 4, 8):
        a('s_nop 1')
        a(f'{op}_dpp v{r}, v{r}, v{r} row_shr:{sh} row_mask:0xf bank_mask:0xf')
    a('s_nop 1')
    a(f'{op}_dpp v{r}, v{r}, v{r} row_bcast:15 row_mask:0xa bank_mask:0xf')
    a('s_nop 1')
    a(f'{op}_dpp v{r}, v{r}, v{r} row_bcast:31 row_mask:0xc bank_mask:0xf')

def wave_scan2(a, op1, r1, op2, r2):
    steps = [f'row_shr:{sh} row_mask:0xf bank_mask:0xf' for sh in (1, 2, 4, 8)] + \
            ['row_bcast:15 row_mask:0xa bank_mask:0xf', 'row_bcast:31 row_mask:0xc bank_mask:0xf']
    a('s_nop 1')
    for st in steps:
        a(f'{op1}_dpp v{r1}, v{r1}, v{r1} {st}')
        a(f'{op2}_dpp v{r2}, v{r2}, v{r2} {st}')
        a('s_nop 0')

def gen_k1(a, opts):
    ST = opts.get('stamp1', False)
    def stamp(i):
        if not ST: return
        a('s_memtime s[56:57]')
        a('s_waitcnt lgkmcnt(0)')
        a(f'v_writelane_b32 v60, s56, {i}')
    a.raw('.p2align 8')
    a.raw('.globl gs_part_kernel')
    a.raw('.type gs_part_kernel,@function')
    a.label('gs_part_kernel')
    a('s_cmp_ge_u32 s2, 256')
    a('s_cbranch_scc1 K1_END')
    a('s_load_dwordx4 s[4:7], s[0:1], 8')
    a('s_load_dwordx2 s[8:9], s[0:1], 24')
    a('s_load_dwordx2 s[10:11], s[0:1], 88')
    a('s_load_dwordx2 s[44:45], s[0:1], 0')
    if ST: a('v_mov_b32 v60, 0')
    stamp(0)
    if opts.get('dbgtime'):
        a('s_memrealtime s[54:55]')
        a('s_waitcnt lgkmcnt(0)')
        a('s_cmp_ge_u32 s2, 8')
        a('s_cbranch_scc1 K1_NODBG')
        a('v_mov_b32 v20, s54')
        a('s_lshl_b32 s56, s2, 2')
        a('s_add_u32 s56, s56, 0x1200000')
        a('v_mov_b32 v22, s56')
        a('v_cmp_eq_u32 vcc, 0, v0')
        a('s_and_saveexec_b64 s[58:59], vcc')
        a('global_store_dword v22, v20, s[10:11]')
        a('s_mov_b64 exec, s[58:59]')
        a.label('K1_NODBG')
    a('v_lshrrev_b32 v1, 6, v0')
    a('s_mul_i32 s12, s2, %d' % (CH * 4))
    a('v_readfirstlane_b32 s3, v1')
    a('s_lshr_b32 s13, s12, 1')
    a('v_lshlrev_b32 v2, 4, v0')
    a('v_add_u32 v2, s12, v2')
    a('s_cmp_eq_u32 s3, 13')
    a('s_cbranch_scc1 K1_FRAG')
    a('v_lshlrev_b32 v3, 3, v0')
    a('v_add_u32 v3, s13, v3')
    a('s_waitcnt lgkmcnt(0)')
    srd(a, 20, 8, E * 4)
    a('buffer_load_dwordx4 v[4:7], v2, s[20:23], 0 offen')
    srd(a, 24, 6, E * 4)
    srd(a, 28, 4, E * 2)
    if not opts.get('dstfirst', 1):
        a('buffer_load_dwordx4 v[8:11], v2, s[24:27], 0 offen')
        a('buffer_load_dwordx2 v[12:13], v3, s[28:31], 0 offen')
    a('v_lshlrev_b32 v14, 2, v0')
    a('v_mov_b32 v15, 0')
    a('v_cmp_gt_u32 vcc, 256, v0')
    a('s_and_saveexec_b64 s[18:19], vcc')
    a('ds_write_b32 v14, v15 offset:%d' % K1_HIST)
    a('s_mov_b64 exec, s[18:19]')
    a('v_cmp_gt_u32 vcc, %d, v0' % (CH // 4))
    a('s_mov_b32 s14, %d' % (E * 4))
    a('v_cmp_gt_u32 s[16:17], s14, v2')
    a('s_and_b64 s[16:17], s[16:17], vcc')
    a('s_mul_i32 s15, s2, %d' % RECB)
    srd_off(a, 32, 10, 's15', RECB)
    srd_off(a, 36, 10, WS_TAB, 0x80000)
    if opts.get('touch', 0):
        a('s_cmp_lg_u32 s3, 1')
        a('s_cbranch_scc1 K1_NOTOUCH')
        a('v_mov_b32 v41, 0')
        a('buffer_load_dword v42, v41, s[32:35], 0 offen')
        a('buffer_load_dword v43, v41, s[36:39], 0 offen')
        a.label('K1_NOTOUCH')
    a('s_mov_b32 s40, %d' % MAGIC_B)
    a('s_movk_i32 s41, 3125')
    a('v_mov_b32 v15, 1')
    a('s_waitcnt lgkmcnt(0)')
    a('s_barrier')
    if opts.get('dstfirst', 1) == 1:
        a('s_waitcnt vmcnt(0)')
        a('buffer_load_dwordx4 v[8:11], v2, s[24:27], 0 offen')
        a('buffer_load_dwordx2 v[12:13], v3, s[28:31], 0 offen')
    elif opts.get('dstfirst', 1) == 2:
        a('buffer_load_dwordx4 v[8:11], v2, s[24:27], 0 offen')
        a('buffer_load_dwordx2 v[12:13], v3, s[28:31], 0 offen')
        a('s_waitcnt vmcnt(2)')
    if opts.get('xpre', 1):
        a('s_and_b32 s46, s2, 7')
        a('s_lshr_b32 s47, s2, 3')
        a('s_lshl_b32 s46, s46, 5')
        a('s_add_u32 s46, s46, s47')
        a('s_mul_i32 s46, s46, 3125')
        a('s_add_u32 s46, s46, 31')
        a('s_lshr_b32 s46, s46, 5')
        a('s_lshl_b32 s46, s46, 7')
        a('s_and_b32 s45, s45, 0xffff')
        a('s_mov_b32 s48, s44')
        a('s_mov_b32 s49, s45')
        a('s_mov_b32 s50, %d' % (N * 128))
        a('s_mov_b32 s51, 0x20000')
        a('v_lshlrev_b32 v40, 4, v0')
        a('buffer_load_dwordx4 v[56:59], v40, s[48:51], s46 offen')
    a('s_mov_b64 exec, s[16:17]')
    a('s_cbranch_execz K1_NOEDGE1')
    stamp(1)
    if not opts.get('dstfirst', 1): a('s_waitcnt vmcnt(%d)' % (3 if opts.get('xpre', 1) else 2))
    stamp(2)
    for k in range(4):
        a(f'v_mul_hi_u32 v{16+k}, v{4+k}, s40')
    for k in range(4):
        a(f'v_lshlrev_b32 v{20+k}, 2, v{16+k}')
        a(f'ds_add_rtn_u32 v{24+k}, v{20+k}, v15 offset:{K1_HIST}')
    for k in range(4):
        a(f'v_mul_u32_u24 v{28+k}, s41, v{16+k}')
        a(f'v_add_u32 v{28+k}, 31, v{28+k}')
        a(f'v_lshrrev_b32 v{28+k}, 5, v{28+k}')
        a(f'v_sub_u32 v{28+k}, v{4+k}, v{28+k}')
        a(f'v_lshlrev_b32 v{33+2*k}, 2, v{28+k}')
    a.label('K1_NOEDGE1')
    a('s_mov_b64 exec, -1')
    a('s_waitcnt lgkmcnt(0)')
    stamp(3)
    a('s_barrier')
    stamp(4)
    a('s_cmp_lg_u32 s3, 0')
    a('s_cbranch_scc1 K1_SCANDONE')
    a('v_lshlrev_b32 v40, 4, v0')
    a('ds_read_b128 v[44:47], v40 offset:%d' % K1_HIST)
    a('v_lshlrev_b32 v41, 12, v0')
    a('s_lshl_b32 s15, s2, 2')
    a('v_add_u32 v41, s15, v41')
    a('s_waitcnt lgkmcnt(0)')
    a('v_add_u32 v48, v44, v45')
    a('v_add_u32 v49, v48, v46')
    a('v_add_u32 v50, v49, v47')
    a('v_mov_b32 v51, v50')
    wave_scan(a, 'v_add_u32', 51)
    a('v_sub_u32 v52, v51, v50')
    a('v_add_u32 v53, v52, v44')
    a('v_add_u32 v54, v52, v48')
    a('v_add_u32 v55, v52, v49')
    a('ds_write_b128 v40, v[52:55] offset:%d' % K1_HIST)
    if not opts.get('w0late', 1): a('s_waitcnt vmcnt(%d)' % (1 if opts.get('xpre', 1) else 0))
    a('s_mul_i32 s15, s2, %d' % CH)
    a('s_mov_b32 s43, %d' % (WS_TAB2 - WS_TAB))
    for k in range(4):
        a(f'buffer_store_dword v{44+k}, v41, s[36:39], s43 offen offset:{k*1024}' + (' sc1' if opts.get('tabst', 0) else ''))
        a(f'v_min_u32 v{48+k}, 0xff, v{44+k}')
        a(f'v_add_u32 v{52+k}, s15, v{52+k}')
        a(f'v_lshl_or_b32 v{48+k}, v{48+k}, 24, v{52+k}')
        a(f'buffer_store_dword v{48+k}, v41, s[36:39], 0 offen offset:{k*1024}' + (' sc1' if opts.get('tabst', 0) else ''))
    a.label('K1_SCANDONE')
    a('s_waitcnt lgkmcnt(0)')
    a('s_barrier')
    stamp(5)
    a('s_mov_b64 exec, s[16:17]')
    a('s_cbranch_execz K1_NOEDGE2')
    for k in range(4):
        a(f'ds_read_b32 v{28+k}, v{20+k} offset:{K1_HIST}')
    a('s_cmp_eq_u32 s3, 0')
    a('s_cbranch_scc1 K1_W0')
    a('s_waitcnt vmcnt(%d)' % (1 if opts.get('xpre', 1) else 0))
    a('s_branch K1_HAVE')
    a.label('K1_W0')
    a('s_waitcnt vmcnt(%d)' % (9 if opts.get('xpre', 1) else 8))
    a.label('K1_HAVE')
    a('s_mov_b32 s42, 0xffff0000')
    a('v_lshl_or_b32 v32, v12, 16, v8')
    a('v_and_or_b32 v34, v12, s42, v9')
    a('v_lshl_or_b32 v36, v13, 16, v10')
    a('v_and_or_b32 v38, v13, s42, v11')
    for k in range(4):
        a(f's_waitcnt lgkmcnt({3 if k == 0 else 3})')
        a(f'v_add_lshl_u32 v{28+k}, v{28+k}, v{24+k}, 3')
        a(f'ds_write_b64 v{28+k}, v[{32+2*k}:{33+2*k}] offset:{K1_STAGE}')
    a.label('K1_NOEDGE2')
    a('s_mov_b64 exec, -1')
    a('v_lshlrev_b32 v2, 4, v0')
    a('v_add_u32 v3, %d, v2' % (RECB // 2))
    a('v_cmp_gt_u32 vcc, %d, v0' % (CH // 4))
    a('s_waitcnt lgkmcnt(0)')
    stamp(6)
    a('s_barrier')
    stamp(7)
    a('s_and_saveexec_b64 s[18:19], vcc')
    a('s_cbranch_execz K1_END')
    a('ds_read_b128 v[4:7], v2 offset:%d' % K1_STAGE)
    a('ds_read_b128 v[8:11], v2 offset:%d' % (K1_STAGE + RECB // 2))
    a('s_waitcnt lgkmcnt(1)')
    sfx = {0: '', 1: ' sc1', 2: ' nt', 3: ' sc0 sc1', 4: ' sc1 nt'}[opts.get('k1st', 1)]
    a('buffer_store_dwordx4 v[4:7], v2, s[32:35], 0 offen' + sfx)
    a('s_waitcnt lgkmcnt(0)')
    a('buffer_store_dwordx4 v[8:11], v3, s[32:35], 0 offen' + sfx)
    if opts.get('endwait', 1): a('s_waitcnt vmcnt(0)')
    if ST:
        stamp(8)
        a('s_waitcnt vmcnt(0)')
        stamp(9)
        a('s_mul_i32 s12, s2, 16')
        a('s_add_u32 s12, s12, s3')
        a('s_lshl_b32 s12, s12, 8')
        a('s_add_u32 s12, s12, 0x1100000')
        a('s_add_u32 s32, s10, s12')
        a('s_addc_u32 s33, s11, 0')
        a('s_and_b32 s33, s33, 0xffff')
        a('s_mov_b32 s34, 256')
        a('s_mov_b64 exec, -1')
        a('v_and_b32 v4, 63, v0')
        a('v_lshlrev_b32 v4, 2, v4')
        a('buffer_store_dword v60, v4, s[32:35], 0 offen')
    if opts.get('dbgtime'):
        a('s_waitcnt vmcnt(0)')
        a('s_memrealtime s[54:55]')
        a('s_waitcnt lgkmcnt(0)')
        a('s_cmp_ge_u32 s2, 8')
        a('s_cbranch_scc1 K1_END')
        a('s_cmp_lg_u32 s3, 0')
        a('s_cbranch_scc1 K1_END')
        a('v_mov_b32 v20, s54')
        a('s_lshl_b32 s56, s2, 2')
        a('s_add_u32 s56, s56, 0x1200100')
        a('v_mov_b32 v22, s56')
        a('s_mov_b64 exec, 1')
        a('global_store_dword v22, v20, s[10:11]')
    a('s_endpgm')
    a.label('K1_FRAG')
    if opts.get('codepre', 0):
        a('s_cmp_lt_u32 s2, 32')
        a('s_cbranch_scc1 K1_FRAG2')
        a('s_cmp_ge_u32 s2, 64')
        a('s_cbranch_scc1 K1_END')
        a('s_getpc_b64 s[12:13]')
        a.label('K1_PCREF')
        a('s_add_u32 s12, s12, gs_main_kernel-K1_PCREF')
        a('s_addc_u32 s13, s13, 0')
        a('v_and_b32 v1, 63, v0')
        a('v_lshlrev_b32 v2, 4, v1')
        for i in range(opts.get('codekb', 20)):
            a(f'global_load_dwordx4 v[4:7], v2, s[12:13]')
            a('v_add_u32 v2, 1024, v2')
        a('s_endpgm')
        a.label('K1_FRAG2')
    a('s_cmp_ge_u32 s2, 32')
    a('s_cbranch_scc1 K1_END')
    if opts.get('fragbar', 1):
        a('s_barrier')
    a('s_load_dwordx4 s[12:15], s[0:1], 32')
    a('s_load_dwordx4 s[16:19], s[0:1], 56')
    a('s_lshr_b32 s20, s2, 3')
    a('s_waitcnt lgkmcnt(0)')
    a('s_mov_b32 s22, s14')
    a('s_mov_b32 s23, s15')
    a('s_cmp_eq_u32 s20, 1')
    a('s_cselect_b32 s22, s18, s22')
    a('s_cselect_b32 s23, s19, s23')
    a('s_cmp_eq_u32 s20, 2')
    a('s_cselect_b32 s22, s12, s22')
    a('s_cselect_b32 s23, s13, s23')
    a('s_cmp_eq_u32 s20, 3')
    a('s_cselect_b32 s22, s16, s22')
    a('s_cselect_b32 s23, s17, s23')
    srd(a, 24, 22, 64 * 64 * 2)
    srd_off(a, 28, 10, WS_FRAG, 32 * 1024)
    a('s_and_b32 s32, s2, 3')
    a('s_lshr_b32 s33, s2, 2')
    a('s_and_b32 s33, s33, 1')
    a('s_lshl_b32 s32, s32, 11')
    a('s_lshl_b32 s33, s33, 6')
    a('s_add_u32 s32, s32, s33')
    a('v_and_b32 v1, 63, v0')
    a('v_and_b32 v2, 31, v1')
    a('v_lshlrev_b32 v2, 1, v2')
    a('v_lshrrev_b32 v3, 5, v1')
    a('v_lshlrev_b32 v3, 10, v3')
    a('v_add3_u32 v2, v2, v3, s32')
    for i in range(8):
        a(f'buffer_load_ushort v{8+i}, v2, s[24:27], 0 offen offset:{i*128}')
    a('s_mov_b32 s34, 1.0')
    a('s_and_b32 s36, s20, 1')
    a('s_cmp_eq_u32 s36, 0')
    a('s_cselect_b32 s34, 0x%x, s34' % LOG2E)
    a('s_waitcnt vmcnt(0)')
    for i in range(8):
        a(f'v_lshlrev_b32 v{8+i}, 16, v{8+i}')
        a(f'v_mul_f32 v{8+i}, s34, v{8+i}')
    for i in range(4):
        a(f'v_cvt_pk_bf16_f32 v{16+i}, v{8+2*i}, v{9+2*i}')
    a('v_lshlrev_b32 v4, 4, v1')
    a('s_lshl_b32 s35, s2, 10')
    a('v_add_u32 v4, s35, v4')
    a('buffer_store_dwordx4 v[16:19], v4, s[28:31], 0 offen')
    if opts.get('endwait', 1): a('s_waitcnt vmcnt(0)')
    a.label('K1_END')
    a('s_endpgm')

def gen_k2(a, opts):
    STAMP = opts.get('stamp', False)
    vLANE = 1; BC = 2
    WB = 4; WV = 36; AX = 68
    GA = 84; HA = 100; GB = 116; HB = 132
    PP = 148; TT_ = 156; ZZ = 164
    DEN = 172; NUM = 176
    AE = [180, 184]; BE = 188; R0 = 192
    QA = [196, 200]
    EN = 204; RA = 208; CO = 212
    pEN = 216; pEE = 217; pQI = 218; pQF = 219
    C4 = 220; SEL = [221, 222]; EE = 223; QF = 224
    F0 = 225; F1 = 226; F2 = 252; F3 = 227
    tA = 227; tB = 228; tC = 229; tD = 230; tE = 231; tF = 232; tG = 233; tH = 234; tI = 235
    TQ = 236; TR = 240
    sidA = 244; jA = 245; sidR = 246; iR4 = 247
    vST = 253; GF = 249; GD = 250
    PB = 228; TB = 236; ZB = 244
    RC = 252; RKC = 254; tJ = 255
    nvgpr = 256
    REC = PP; RK = GB; SG = HB
    G_ = [GA, GB]; H_ = [HA, HB]
    nOFF0 = AE[0]+0 if False else QA[0]; nOFF1 = QA[0]+1; nEND0 = QA[0]+2; nEND1 = QA[0]+3; nROW0 = QA[1]
    S = Regs('s', 3, 102)
    sX = S.alloc('x', 2, 2); sWC = S.alloc('wc', 2, 2); sOUT = S.alloc('out', 2, 2); sWS = S.alloc('ws', 2, 2)
    rX = S.alloc('rX', 4, 4); rT = S.alloc('rT', 4, 4); rR = S.alloc('rR', 4, 4); rF = S.alloc('rF', 4, 4)
    sW = S.alloc('w'); sNS = S.alloc('ns'); sNN = S.alloc('nn')
    sP = S.alloc('pass'); sNP = S.alloc('npass')
    sL = S.alloc('L'); sCNT = S.alloc('cnt'); sLA = S.alloc('La'); sLB = S.alloc('Lb'); sSO = S.alloc('streamoff')
    sC = S.alloc('C', 2, 2)
    sF = [S.alloc('F0', 2, 2), S.alloc('F1', 2, 2)]
    sANY = [S.alloc('any0'), S.alloc('any1')]
    s128 = S.alloc('c128'); sLO = S.alloc('lo16'); sHI = S.alloc('hi16')
    t0 = S.alloc('t0'); t1 = S.alloc('t1'); t2 = S.alloc('t2', 1, 2); t3 = S.alloc('t3')
    sSV = S.alloc('sv', 2, 2); sSV2 = S.alloc('sv2', 2, 2)
    sDB = S.alloc('dmabase'); sSWAP = S.alloc('swap')
    sDBG = S.alloc('dbg', 2, 2) if opts.get('dbgtime') else None
    sT0 = S.alloc('dbgt0', 2, 2) if opts.get('dbgtime') else None
    sT1 = S.alloc('dbgt1') if opts.get('dbgtime') else None
    sT2 = S.alloc('dbgt2') if opts.get('dbgtime') else None
    MK = S.alloc('MK', 32, 2)
    MKC = S.alloc('MKC', 2, 2)
    rO = rT
    nsgpr = S.hi
    def stamp(i):
        if not STAMP: return
        a(f's_memtime s[{t2}:{t3}]')
        a('s_waitcnt lgkmcnt(0)')
        a(f'v_writelane_b32 v{vST}, s{t2}, {i}')
    XB = 4096

    a.raw('.p2align 8')
    a.raw('.globl gs_main_kernel')
    a.raw('.type gs_main_kernel,@function')
    a.label('gs_main_kernel')
    a('s_cmp_ge_u32 s2, 256')
    a('s_cbranch_scc1 K2_END')
    a(f's_load_dwordx2 s[{sWS}:{sWS+1}], s[0:1], 88')
    a(f's_load_dwordx2 s[{sX}:{sX+1}], s[0:1], 0')
    a(f's_load_dwordx2 s[{sWC}:{sWC+1}], s[0:1], 48')
    a(f's_load_dwordx2 s[{sOUT}:{sOUT+1}], s[0:1], 72')
    a('s_and_b32 s3, s2, 7')
    a('s_lshr_b32 s2, s2, 3')
    a('s_lshl_b32 s3, s3, 5')
    a('s_add_u32 s2, s2, s3')
    if opts.get('dbgtime'):
        a(f's_load_dwordx2 s[{sDBG}:{sDBG+1}], s[0:1], 80')
        a(f's_memrealtime s[{sT0}:{sT0+1}]')
        a('s_waitcnt lgkmcnt(0)')
    if STAMP:
        a(f'v_mov_b32 v{vST}, 0')
    stamp(0)
    if STAMP:
        a(f's_memrealtime s[{t2}:{t3}]')
        a('s_waitcnt lgkmcnt(0)')
        a(f'v_writelane_b32 v{vST}, s{t2}, 11')
    a(f'v_lshrrev_b32 v{tA}, 6, v0')
    a(f'v_and_b32 v{vLANE}, 63, v0')
    a(f'v_readfirstlane_b32 s{sW}, v{tA}')
    a(f'v_lshrrev_b32 v{sidA}, 5, v{vLANE}')
    if opts.get('proprio'):
        a('s_nop 2')
        a(f's_cmp_ge_u32 s{sW}, 4')
        a('s_cbranch_scc0 K2_PP0')
        a('s_setprio 1')
        a.label('K2_PP0')
    a(f's_lshl_b32 s{t1}, s2, 10')
    a(f's_add_u32 s{t1}, s{t1}, {WS_TAB}')
    a(f's_lshl_b32 s{t0}, s{sW}, 1')
    a(f'v_add_u32 v{sidA}, s{t0}, v{sidA}')
    a(f'v_lshrrev_b32 v{tD}, 4, v{vLANE}')
    a(f'v_lshlrev_b32 v{tD}, 5, v{tD}')
    a(f's_lshl_b32 s{t0}, s{sW}, 7')
    a(f'v_add_u32 v{tD}, s{t0}, v{tD}')
    a(f'v_lshlrev_b32 v{tA}, 4, v{vLANE}')
    a('s_waitcnt lgkmcnt(0)')
    srd_off(a, rT, sWS, f's{t1}', 1024)
    for i in range(2):
        a(f'buffer_load_dwordx4 v[{SG+4*i}:{SG+4*i+3}], v{tD}, s[{rT}:{rT+3}], 0 offen offset:{16*i}')
    a(f's_mul_i32 s{t0}, s2, 3125')
    a(f's_add_u32 s{sNS}, s{t0}, 31')
    a(f's_lshr_b32 s{sNS}, s{sNS}, 5')
    a(f's_add_u32 s{t0}, s{t0}, {3125+31}')
    a(f's_lshr_b32 s{t0}, s{t0}, 5')
    a(f's_sub_u32 s{sNN}, s{t0}, s{sNS}')
    a(f's_sub_u32 s{rX}, s{sX}, {XB}')
    a(f's_subb_u32 s{rX+1}, s{sX+1}, 0')
    a(f's_and_b32 s{rX+1}, s{rX+1}, 0xffff')
    a(f's_mov_b32 s{rX+2}, {N*128 + XB}')
    a(f's_mov_b32 s{rX+3}, 0x20000')
    srd_off(a, rF, sWS, WS_FRAG, 32 * 1024)
    a(f's_lshl_b32 s{sDB}, s{sW}, 12')
    a(f's_add_u32 s{sDB}, s{sDB}, {L_DMA}')
    a(f'v_bfe_u32 v{tE}, v{vLANE}, 4, 1')
    a(f'v_and_b32 v{tF}, 7, v{vLANE}')
    a(f'v_xor_b32 v{tE}, v{tE}, v{tF}')
    a(f'v_lshlrev_b32 v{tE}, 4, v{tE}')
    for i in range(4):
        if i: a(f'v_xor_b32 v{tF}, {32*i}, v{tE}')
        a(f'v_add_u32 v{CO+i}, {XB - 1024*i}, v{tF if i else tE}')
    a(f'v_bfe_u32 v{jA}, v{vLANE}, 3, 2')
    a(f'v_lshrrev_b32 v{tF}, 5, v{vLANE}')
    a(f'v_lshlrev_b32 v{tE}, 3, v{jA}')
    a(f'v_lshl_add_u32 v{tE}, v{tF}, 2, v{tE}')
    a(f's_lshr_b32 s{t0}, s{sW}, 1')
    a(f's_lshl_b32 s{t1}, s{t0}, 5')
    a(f's_add_u32 s{t1}, s{t1}, s{sNS}')
    a(f's_and_b32 s{t2}, s{sW}, 1')
    a(f's_lshl_b32 s{t2}, s{t2}, 1')
    a(f's_add_u32 s{t1}, s{t1}, s{t2}')
    a(f'v_add_u32 v{tE}, s{t1}, v{tE}')
    a(f'v_lshlrev_b32 v{tE}, 7, v{tE}')
    a(f's_cmp_eq_u32 s{t2}, 0')
    a(f's_cbranch_scc0 K2_XI2')
    a(f'v_add_u32 v{tH}, v{tE}, v{CO}')
    a(f'v_add_u32 v{tI}, v{tE}, v{CO+1}')
    a('s_branch K2_XI')
    a.label('K2_XI2')
    a(f'v_add_u32 v{tH}, v{tE}, v{CO+2}')
    a(f'v_add_u32 v{tI}, v{tE}, v{CO+3}')
    a(f'v_add_u32 v{tH}, 2048, v{tH}')
    a(f'v_add_u32 v{tI}, 2048, v{tI}')
    a.label('K2_XI')
    a(f'v_add_u32 v{tI}, 128, v{tI}')
    a(f'v_and_b32 v{C4}, 31, v{vLANE}')
    def staging():
        a(f's_lshr_b32 s{t0}, s{sW}, 1')
        a(f's_lshl_b32 s{t0}, s{t0}, 12')
        a(f's_and_b32 s{t2}, s{sW}, 1')
        a(f's_lshl_b32 s{t2}, s{t2}, 11')
        a(f's_add_u32 s{t0}, s{t0}, s{t2}')
        a(f's_add_u32 s{t0}, s{t0}, {L_DMA}')
        a(f's_mov_b32 m0, s{t0}')
        a(f'v_lshlrev_b32 v{tA}, 4, v{vLANE}')
        a(f'buffer_load_dwordx4 v{tH}, s[{rX}:{rX+3}], 0 offen lds')
        a(f'buffer_load_dwordx4 v{tI}, s[{rX}:{rX+3}], 0 offen offset:1024 lds')
        a(f's_lshl_b32 s{t0}, s{sW}, 11')
        a(f's_add_u32 s{t1}, s{t0}, {L_DMA + 4*4096}')
        a(f's_mov_b32 m0, s{t1}')
        a(f's_add_u32 s{t2}, s{t0}, {16*1024}')
        a(f'buffer_load_dwordx4 v{tA}, s[{rF}:{rF+3}], s{t2} offen lds')
        a(f'buffer_load_dwordx4 v{tA}, s[{rF}:{rF+3}], s{t2} offen offset:1024 lds')
        a(f's_add_u32 s{t1}, s{t0}, {L_WST}')
        a(f's_mov_b32 m0, s{t1}')
        a('s_nop 0')
        a(f'buffer_load_dwordx4 v{tA}, s[{rF}:{rF+3}], s{t0} offen lds')
        a(f'buffer_load_dwordx4 v{tA}, s[{rF}:{rF+3}], s{t0} offen offset:1024 lds')
        srd(a, rR, sWC, 128)
        a(f'v_lshlrev_b32 v{tE}, 1, v{C4}')
        a(f'buffer_load_ushort v{BC}, v{tE}, s[{rR}:{rR+3}], 0 offen')
        a(f'buffer_load_ushort v{BC+1}, v{tE}, s[{rR}:{rR+3}], 0 offen offset:64')
    staging()
    MKT = (MK + 3) // 4 * 4
    if opts.get('touch', 0):
        srd(a, MKT, sWS, NBK * RECB)
        a(f'v_and_b32 v{tE}, 3, v{vLANE}')
        a(f'v_lshlrev_b32 v{tE}, 21, v{tE}')
        a(f'buffer_load_dword v{F0}, v{tE}, s[{MKT}:{MKT+3}], 0 offen')
        srd(a, MKT + 4, sOUT, N * 128)
        a(f'v_and_b32 v{tE}, 1, v{vLANE}')
        a(f'v_lshlrev_b32 v{tE}, 21, v{tE}')
        a(f'buffer_load_dword v{F1}, v{tE}, s[{MKT+4}:{MKT+7}], 0 offen')
    def lds_init():
        a(f'v_lshlrev_b32 v{tE}, 4, v0')
        for i in range(4):
            a(f'v_mov_b32 v{TR+i}, 0xffff')
        a(f'ds_write_b128 v{tE}, v[{TR}:{TR+3}] offset:{L_ENT}')
        a(f's_cmp_ge_u32 s{sW}, {(ENT_QUADS - 512) // 64}')
        a(f's_cbranch_scc1 K2_I1{tag_i[0]}')
        a(f'ds_write_b128 v{tE}, v[{TR}:{TR+3}] offset:{L_ENT + 512*16}')
        a.label(f'K2_I1{tag_i[0]}')
        assert (ENT_QUADS - 512) % 64 == 0
        for i in range(4):
            a(f'v_mov_b32 v{TR+i}, {L_VIRT}')
        a(f'v_cmp_gt_u32 vcc, {ENT_QUADS // 4}, v0')
        a(f's_and_saveexec_b64 s[{sSV}:{sSV+1}], vcc')
        a(f'ds_write_b128 v{tE}, v[{TR}:{TR+3}] offset:{L_QI}')
        a(f's_mov_b64 exec, s[{sSV}:{sSV+1}]')
        a(f's_cmp_lg_u32 s{sW}, 0')
        a(f's_cbranch_scc1 K2_I2{tag_i[0]}')
        for i in range(4):
            a(f'v_mov_b32 v{TR+i}, 0')
        a(f'ds_write_b128 v{tE}, v[{TR}:{TR+3}] offset:{L_CNT}')
        a(f'v_add_u32 v{tE}, {L_VIRT + 512}, v{tE}')
        a('s_mov_b64 exec, 0xff')
        a(f'ds_write_b128 v{tE}, v[{TR}:{TR+3}]')
        a('s_mov_b64 exec, -1')
        a.label(f'K2_I2{tag_i[0]}')
        tag_i[0] += 1
    tag_i = [0]
    lds_init()
    a(f'v_and_b32 v{tE}, 3, v{vLANE}')
    a(f'v_lshlrev_b32 v{iR4}, 2, v{tE}')
    a(f'v_lshl_add_u32 v{RA}, v{tE}, 3, v{jA}')
    a(f'v_lshrrev_b32 v{tF}, 1, v{jA}')
    a(f'v_lshl_add_u32 v{tE}, v{tE}, 1, v{tF}')
    a(f'v_bfe_u32 v{tF}, v{vLANE}, 2, 1')
    a(f's_lshl_b32 s{t0}, s{sW}, 1')
    a(f'v_add_u32 v{sidR}, s{t0}, v{tF}')
    a(f'v_lshl_add_u32 v{RA}, v{tF}, 2, v{RA}')
    a(f'v_lshrrev_b32 v{tG}, 5, v{vLANE}')
    a(f'v_cmp_eq_u32 vcc, v{tF}, v{tG}')
    a(f'v_xor_b32 v{tE}, v{tE}, v{tG}')
    a(f'v_lshlrev_b32 v{tE}, 4, v{tE}')
    a(f'v_lshl_add_u32 v{RA}, v{RA}, 7, v{tE}')
    a(f'v_mov_b32 v{tF}, 0x3f80')
    a(f'v_cndmask_b32 v{tF}, 0, v{tF}, vcc')
    for q in range(4):
        a(f'v_cmp_eq_u32 vcc, {q}, v{jA}')
        a('s_nop 1')
        a(f'v_cndmask_b32 v{AE[0]+q}, 0, v{tF}, vcc')
        a(f'v_lshlrev_b32 v{AE[1]+q}, 16, v{AE[0]+q}')
    a(f'v_cmp_gt_u32 vcc, 32, v{vLANE}')
    a(f'v_mov_b32 v{tE}, 0x0a0c0100')
    a(f'v_mov_b32 v{tF}, 0x07060100')
    a(f'v_cndmask_b32 v{SEL[0]}, v{tE}, v{tF}, vcc')
    a(f'v_mov_b32 v{tE}, 0x03020a0c')
    a(f'v_mov_b32 v{tF}, 0x03020706')
    a(f'v_cndmask_b32 v{SEL[1]}, v{tE}, v{tF}, vcc')
    a(f's_mov_b32 s{sC}, 0x{C_SCALE:x}')
    a(f's_mov_b32 s{sC+1}, 0x{C_SCALE:x}')
    a(f's_mov_b32 s{s128}, 128')
    a(f's_mov_b32 s{sLO}, 0xffff')
    a(f's_mov_b32 s{sHI}, 0xffff0000')
    a(f'v_and_b32 v{tB}, 15, v{vLANE}')
    a(f'v_lshlrev_b32 v{tB}, 3, v{tB}')
    a(f'v_lshlrev_b32 v{C4}, 2, v{C4}')
    a('s_waitcnt vmcnt(%d) lgkmcnt(0)' % (2 if opts.get('touch', 0) else 0))
    stamp(1)
    a('s_barrier')
    srd(a, rR, sWS, NBK * RECB)
    def rec_loads(vk8, nit):
        for it in range(8):
            a(f'v_mad_u32_u24 v{RK+it}, v{SG+it}, 8, v{vk8}')
        for it in range(nit):
            a(f's_mov_b64 exec, s[{MK+2*it}:{MK+2*it+1}]')
            off = ' offset:128' if it >= 8 else ''
            sk = a.newlabel('skl') if (it >= 8 and opts.get('skipb', 1)) else None
            if sk: a(f's_cbranch_execz {sk}')
            a(f'buffer_load_dwordx2 v[{REC+2*it}:{REC+2*it+1}], v{RK+it%8}, s[{rR}:{rR+3}], 0 offen{off}')
            if sk: a.label(sk)
        a('s_mov_b64 exec, -1')
    a(f'v_lshrrev_b32 v{tC}, 3, v{tB}')
    a(f'v_add_u32 v{tD}, 16, v{tC}')
    for it in range(8):
        a(f'v_cmp_gt_u32_sdwa s[{MK+2*it}:{MK+2*it+1}], v{SG+it}, v{tC} src0_sel:BYTE_3 src1_sel:DWORD')
    for it in range(8):
        a(f'v_cmp_gt_u32_sdwa s[{MK+16+2*it}:{MK+16+2*it+1}], v{SG+it}, v{tD} src0_sel:BYTE_3 src1_sel:DWORD')
    stamp(25)
    rec_loads(tB, 16)
    stamp(26)
    a(f'v_max3_u32 v{tD}, v{SG}, v{SG+1}, v{SG+2}')
    a(f'v_max3_u32 v{tD}, v{tD}, v{SG+3}, v{SG+4}')
    a(f'v_max3_u32 v{tD}, v{tD}, v{SG+5}, v{SG+6}')
    a(f'v_max_u32 v{tD}, v{tD}, v{SG+7}')
    a(f'v_lshrrev_b32 v{tD}, 24, v{tD}')
    a(f'v_cmp_lt_u32 s[{sSV2}:{sSV2+1}], 32, v{tD}')
    a(f's_mov_b64 s[{MKC}:{MKC+1}], 0')
    a(f's_cmp_lg_u64 s[{sSV2}:{sSV2+1}], 0')
    a('s_cbranch_scc1 K2_CSEL')
    a.label('K2_CBACK')

    def gemm_issue():
        a(f's_lshr_b32 s{t0}, s{sW}, 1')
        a(f's_lshl_b32 s{t1}, s{t0}, 12')
        a(f's_add_u32 s{t1}, s{t1}, {L_DMA}')
        a(f'v_add_u32 v{tA}, s{t1}, v{RA}')
        a(f'v_xor_b32 v{tB}, 32, v{tA}')
        a(f'ds_read_b128 v[{AX}:{AX+3}], v{tA}')
        a(f'ds_read_b128 v[{AX+4}:{AX+7}], v{tB}')
        a(f'v_xor_b32 v{tB}, 64, v{tA}')
        a(f'v_xor_b32 v{tC}, 96, v{tA}')
        a(f'ds_read_b128 v[{AX+8}:{AX+11}], v{tB}')
        a(f'ds_read_b128 v[{AX+12}:{AX+15}], v{tC}')
        a(f's_and_b32 s{t2}, s{sW}, 1')
        a(f's_lshl_b32 s{t3}, s{t2}, 13')
        a(f's_add_u32 s{t3}, s{t3}, {L_DMA + 4*4096}')
        a(f'v_lshlrev_b32 v{GF}, 4, v{vLANE}')
        a(f'v_add_u32 v{GF}, s{t3}, v{GF}')
        for f in range(4):
            a(f'ds_read_b128 v[{SG+4*f}:{SG+4*f+3}], v{GF} offset:{f*1024}')
        for f in range(4):
            a(f'ds_read_b128 v[{RK+4*f}:{RK+4*f+3}], v{GF} offset:{(4+f)*1024}')
        a(f's_mul_i32 s{t1}, s{t0}, {32*ROWB}')
        a(f's_lshl_b32 s{t3}, s{t2}, 7')
        a(f's_add_u32 s{t1}, s{t1}, s{t3}')
        a(f's_add_u32 s{t1}, s{t1}, {L_ACC + 512}')
        a(f'v_lshrrev_b32 v{GD}, 5, v{vLANE}')
        a(f'v_mul_u32_u24 v{GD}, {4*ROWB}, v{GD}')
        a(f'v_add3_u32 v{GD}, v{GD}, v{C4}, s{t1}')
    def gemm_mid():
        a('s_waitcnt lgkmcnt(0)')
        for kp in range(4):
            c = '0' if kp == 0 else f'v[{GA}:{GA+15}]'
            a(f'v_mfma_f32_32x32x16_bf16 v[{GA}:{GA+15}], v[{AX+4*kp}:{AX+4*kp+3}], v[{SG+4*kp}:{SG+4*kp+3}], {c}')
            c = '0' if kp == 0 else f'v[{HA}:{HA+15}]'
            a(f'v_mfma_f32_32x32x16_bf16 v[{HA}:{HA+15}], v[{AX+4*kp}:{AX+4*kp+3}], v[{RK+4*kp}:{RK+4*kp+3}], {c}')
    def gemm_mid2():
        a('s_nop 7')
        a('s_nop 3')
    def w_frags():
        a(f'v_lshlrev_b32 v{GF}, 4, v{vLANE}')
        a(f'v_add_u32 v{GF}, {L_WST}, v{GF}')
        for f in range(16):
            dst = (WB + 4*f) if f < 8 else (WV + 4*(f-8))
            if f == 12: a('s_waitcnt lgkmcnt(8)')
            a(f'ds_read_b128 v[{dst}:{dst+3}], v{GF} offset:{f*1024}')
    def gemm_store(tag):
        for i in range(16):
            a(f'v_cvt_pk_bf16_f32 v{GA+i}, v{GA+i}, v{HA+i}')
        a(f's_lshr_b32 s{t0}, s{sW}, 1')
        a(f's_cmp_eq_u32 s{t0}, 3')
        a(f's_cbranch_scc1 K2_RT3{tag}')
        for vv in range(16):
            if vv == 12: a('s_waitcnt lgkmcnt(8)')
            a(f'ds_write_b32 v{GD}, v{GA+vv} offset:{(8*(vv//4) + vv%4) * ROWB}')
        a(f's_branch K2_RTD{tag}')
        a.label(f'K2_RT3{tag}')
        a('s_mov_b32 exec_hi, 0')
        for vv in range(2):
            a(f'ds_write_b32 v{GD}, v{GA+vv} offset:{vv * ROWB}')
        a('s_mov_b64 exec, -1')
        a.label(f'K2_RTD{tag}')
    def consts():
        a(f'v_add_u32 v{RA}, s{sDB}, v{RA}')
        for kp in range(1, 4):
            a(f'v_xor_b32 v{RA+kp}, {32*kp}, v{RA}')
        a(f's_mov_b32 s{t3}, 0x{LOG2E:x}')
        for cc in range(2):
            a(f'v_lshlrev_b32 v{BC+cc}, 16, v{BC+cc}')
            a(f'v_mul_f32 v{BC+cc}, s{t3}, v{BC+cc}')
        a(f'v_cvt_pk_bf16_f32 v{BC}, 0, v{BC}')
        a(f'v_cvt_pk_bf16_f32 v{BC+1}, v{BC+1}, 0')
        a(f'v_cmp_gt_u32 vcc, 32, v{vLANE}')
        a(f'v_mov_b32 v{tG}, 0xb2000000')
        a(f'v_mov_b32 v{tH}, 0xb200')
        a(f'v_cndmask_b32 v{BC}, v{tG}, v{BC}, vcc')
        a(f'v_cndmask_b32 v{BC+1}, v{tH}, v{BC+1}, vcc')

    def hist():
        a(f'v_mov_b32 v{tE}, 1')
        for it in range(NIT):
            if it == 12: a('s_waitcnt lgkmcnt(8)')
            a(f's_mov_b64 exec, s[{MK+2*it}:{MK+2*it+1}]')
            sk = a.newlabel('skh') if (it >= 8 and opts.get('skipb', 1)) else None
            if sk: a(f's_cbranch_execz {sk}')
            a(f'ds_add_rtn_u32 v{RK+it}, v{REC+2*it+1}, v{tE} offset:{L_CNT}')
            if sk: a.label(sk)
        sk = a.newlabel('skhc')
        a(f's_mov_b64 exec, s[{MKC}:{MKC+1}]')
        a(f's_cbranch_execz {sk}')
        a(f'ds_add_rtn_u32 v{RKC}, v{RC+1}, v{tE} offset:{L_CNT}')
        a.label(sk)
        a('s_mov_b64 exec, -1')

    def scan_nodes(tag, mid=None):
        a(f'v_lshlrev_b32 v{tA}, 3, v{vLANE}')
        a(f'ds_read_b64 v[{TQ}:{TQ+1}], v{tA} offset:{L_CNT}')
        a(f'v_mul_u32_u24 v{nROW0}, {2*ROWB}, v{vLANE}')
        a(f'v_add_u32 v{nROW0}, {L_ACC}, v{nROW0}')
        if mid: mid()
        else: a('s_waitcnt lgkmcnt(0)')
        a(f'v_add_u32 v{tE}, 3, v{TQ}')
        a(f'v_add_u32 v{tF}, 3, v{TQ+1}')
        a(f'v_and_b32 v{tE}, -4, v{tE}')
        a(f'v_and_b32 v{tF}, -4, v{tF}')
        a(f'v_add_u32 v{tC}, v{tE}, v{tF}')
        a(f'v_max_u32 v{tB}, v{tE}, v{tF}')
        a(f'v_mov_b32 v{tD}, v{tC}')
        wave_scan(a, 'v_add_u32', tD)
        a(f'v_sub_u32 v{nOFF0}, v{tD}, v{tC}')
        a(f'v_readlane_b32 s{t1}, v{tD}, 63')
        a(f'v_add_u32 v{nOFF1}, v{nOFF0}, v{tE}')
        a(f'v_lshlrev_b32 v{TQ+2}, 2, v{nOFF0}')
        a(f'v_lshlrev_b32 v{TQ+3}, 2, v{nOFF1}')
        a(f'ds_write_b64 v{tA}, v[{TQ+2}:{TQ+3}] offset:{L_TAB}')
        a(f'v_mov_b32 v{nEND0}, v{nOFF1}')
        a(f'v_add_u32 v{nEND1}, v{nOFF1}, v{tF}')
        a(f's_add_u32 s{t1}, s{t1}, 127')
        a(f's_lshr_b32 s{t1}, s{t1}, 7')
        a(f's_lshr_b32 s{t0}, s{t1}, 1')
        a(f's_sub_u32 s{t1}, s{t1}, s{t0}')
        a(f's_lshl_b32 s{sLA}, s{t1}, 2')
        a(f's_lshl_b32 s{sLB}, s{t0}, 2')
        a(f's_sub_u32 s{sSO}, s{sLA}, s{sLB}')
        a(f's_lshl_b32 s{sSO}, s{sSO}, 3')
        a(f's_cmp_lt_u32 s{sW}, 4')
        a(f's_cselect_b32 s{sL}, s{sLA}, s{sLB}')
        a(f's_cselect_b32 s{sSO}, 0, s{sSO}')
        a(f's_lshr_b32 s{sCNT}, s{sL}, 2')
        a(f's_sub_u32 s{sCNT}, s{sCNT}, 1')
    def qi_fill(tag, split):
        B0 = TQ + 2; B1 = TQ + 3; V0 = TR + 1; V1 = TR + 2
        a(f'v_max_u32 v{TR}, v{tE}, v{tF}')
        if split:
            a(f'v_cvt_f32_u32 v{tA}, s{sLA}')
            a(f'v_cvt_f32_u32 v{tD}, s{sLB}')
            a(f'v_rcp_f32 v{tA}, v{tA}')
            a(f'v_rcp_f32 v{tD}, v{tD}')
            a(f's_lshl_b32 s{t0}, s{sLA}, 5')
            a(f's_sub_u32 s{t1}, s{sLA}, s{sLB}')
            a(f's_lshl_b32 s{t1}, s{t1}, 5')
            a(f'v_mul_f32 v{tA}, 0.25, v{tA}')
            a(f'v_mul_f32 v{tD}, 0.25, v{tD}')
            for (OFF, nx, B, Vv) in ((nOFF0, tB, B0, V0), (nOFF1, tC, B1, V1)):
                a(f'v_cmp_gt_u32 vcc, s{t0}, v{OFF}')
                a(f'v_subrev_u32 v{tG}, s{t1}, v{OFF}')
                a('s_nop 0')
                a(f'v_cndmask_b32 v{tG}, v{tG}, v{OFF}, vcc')
                a(f'v_cndmask_b32 v{tH}, v{tD}, v{tA}, vcc')
                a(f'v_cvt_f32_u32 v{tG}, v{tG}')
                a(f'v_add_f32 v{tG}, 2.0, v{tG}')
                a(f'v_mul_f32 v{tG}, v{tH}, v{tG}')
                a(f'v_cvt_u32_f32 v{nx}, v{tG}')
                a(f'v_add_u32 v{nx}, 1, v{nx}')
                a(f'v_mov_b32 v{tG}, s{sLB}')
                a(f'v_mov_b32 v{tH}, s{sLA}')
                a(f'v_cndmask_b32 v{tG}, v{tG}, v{tH}, vcc')
                a(f'v_mov_b32 v{tH}, s{t1}')
                a(f'v_cndmask_b32 v{tH}, v{tH}, 0, vcc')
                a(f'v_lshlrev_b32 v{tG}, 2, v{tG}')
                a(f'v_mad_u32_u24 v{B}, v{nx}, v{tG}, v{tH}')
            a(f's_movk_i32 s{t1}, {VROWB}')
            a(f'v_mov_b32 v{tD}, {L_VIRT}')
            a(f'v_mad_u32_u24 v{V0}, v{tB}, s{t1}, v{tD}')
            a(f'v_mad_u32_u24 v{V1}, v{tC}, s{t1}, v{tD}')
            a(f'v_add_u32 v{tD}, {ROWB}, v{nROW0}')
            for nd, (B, Vv, END, nx) in enumerate(((B0, V0, nEND0, tB), (B1, V1, nEND1, tC))):
                lab = a.newlabel('nosplit')
                a(f'v_lshrrev_b32 v{tG}, 1, v{nx}')
                a(f'v_cmp_lt_u32 vcc, v{B}, v{END}')
                a(f'v_cmp_eq_u32 s[{sSV}:{sSV+1}], s{sW}, v{tG}')
                a(f's_and_b64 vcc, vcc, s[{sSV}:{sSV+1}]')
                a(f's_cbranch_scc0 {lab}')
                lp = a.newlabel('splitlp')
                a.label(lp)
                a(f's_ff1_i32_b64 s{t0}, vcc')
                a(f's_bitset0_b64 vcc, s{t0}')
                a(f'v_readlane_b32 s{t2}, v{nROW0 if nd == 0 else tD}, s{t0}')
                a(f'v_readlane_b32 s{t3}, v{Vv}, s{t0}')
                a(f'v_lshrrev_b32 v{tG}, 0, v{C4}')
                a('s_mov_b32 exec_hi, 0')
                a(f'v_add_u32 v{tH}, s{t2}, v{tG}')
                a(f'ds_read_b32 v{tI}, v{tH} offset:512')
                a(f'v_add_u32 v{tH}, s{t3}, v{tG}')
                a(f'v_mov_b32 v{tG}, s{t2}')
                a(f'v_mov_b32 v{tA}, s{t3}')
                a(f'ds_write_b32 v{tG}, v{tA} offset:768')
                a('s_waitcnt lgkmcnt(1)')
                a(f'ds_write_b32 v{tH}, v{tI} offset:512')
                a('s_mov_b64 exec, -1')
                a(f's_cmp_lg_u64 vcc, 0')
                a(f's_cbranch_scc1 {lp}')
                a.label(lab)
        a(f's_lshl_b32 s{t0}, s{sW}, 2')
        a(f'v_add_u32 v{tA}, s{t0}, v{nOFF0}')
        a(f'v_add_u32 v{tB}, s{t0}, v{nOFF1}')
        a(f'v_add_u32 v{tC}, {ROWB}, v{nROW0}')
        lp = f'K2_QF{tag}'
        a.label(lp)
        a(f's_add_u32 s{t1}, s{t0}, 4')
        a(f'v_cmp_eq_u32 s[{sSV}:{sSV+1}], s{t1}, v{tE}')
        a(f'v_cmp_eq_u32 s[{sSV2}:{sSV2+1}], s{t1}, v{tF}')
        if split:
            a(f'v_add_u32 v{tG}, 4, v{tA}')
            a(f'v_add_u32 v{tH}, 4, v{tB}')
            a(f'v_cmp_eq_u32 vcc, v{tG}, v{B0}')
            a(f's_or_b64 s[{sSV}:{sSV+1}], s[{sSV}:{sSV+1}], vcc')
            a(f'v_cmp_eq_u32 vcc, v{tH}, v{B1}')
            a(f's_or_b64 s[{sSV2}:{sSV2+1}], s[{sSV2}:{sSV2+1}], vcc')
            a(f'v_cmp_ge_u32 vcc, v{tA}, v{B0}')
            a('s_nop 1')
            a(f'v_cndmask_b32 v{tG}, v{nROW0}, v{V0}, vcc')
            a(f'v_cmp_ge_u32 vcc, v{tB}, v{B1}')
            a('s_nop 1')
            a(f'v_cndmask_b32 v{tH}, v{tC}, v{V1}, vcc')
        else:
            a(f'v_mov_b32 v{tG}, v{nROW0}')
            a(f'v_mov_b32 v{tH}, v{tC}')
        a(f'v_or_b32 v{tD}, 0x80000000, v{tG}')
        a(f'v_or_b32 v{tI}, 0x80000000, v{tH}')
        a(f'v_cmp_lt_u32 vcc, s{t0}, v{tE}')
        a(f'v_cndmask_b32 v{tG}, v{tG}, v{tD}, s[{sSV}:{sSV+1}]')
        a(f'v_cndmask_b32 v{tH}, v{tH}, v{tI}, s[{sSV2}:{sSV2+1}]')
        a(f'v_cmp_lt_u32 s[{sSV}:{sSV+1}], s{t0}, v{tF}')
        a('s_mov_b64 exec, vcc')
        a(f'ds_write_b32 v{tA}, v{tG} offset:{L_QI}')
        a(f's_mov_b64 exec, s[{sSV}:{sSV+1}]')
        a(f'ds_write_b32 v{tB}, v{tH} offset:{L_QI}')
        a('s_mov_b64 exec, -1')
        a(f's_add_u32 s{t0}, s{t0}, 32')
        a(f'v_add_u32 v{tA}, 32, v{tA}')
        a(f'v_add_u32 v{tB}, 32, v{tB}')
        a(f'v_cmp_lt_u32 vcc, s{t0}, v{TR}')
        a(f's_cbranch_vccnz {lp}')
    def scatter():
        a('s_waitcnt lgkmcnt(0)')
        for it in range(8):
            a(f's_mov_b64 exec, s[{MK+2*it}:{MK+2*it+1}]')
            a(f'ds_read_b32 v{AX+it}, v{REC+2*it+1} offset:{L_TAB}')
        for it in range(8):
            a(f's_mov_b64 exec, s[{MK+2*it}:{MK+2*it+1}]')
            a('s_waitcnt lgkmcnt(7)')
            a(f'v_lshl_add_u32 v{AX+it}, v{RK+it}, 2, v{AX+it}')
            a(f'ds_write_b32 v{AX+it}, v{REC+2*it} offset:{L_ENT}')
        for it in range(8, 16):
            sk = a.newlabel('sks')
            a(f's_mov_b64 exec, s[{MK+2*it}:{MK+2*it+1}]')
            if opts.get('skipb', 1): a(f's_cbranch_execz {sk}')
            a(f'ds_read_b32 v{AX+it}, v{REC+2*it+1} offset:{L_TAB}')
            a('s_waitcnt lgkmcnt(0)')
            a(f'v_lshl_add_u32 v{AX+it}, v{RK+it}, 2, v{AX+it}')
            a(f'ds_write_b32 v{AX+it}, v{REC+2*it} offset:{L_ENT}')
            a.label(sk)
        sk = a.newlabel('sksc')
        a(f's_mov_b64 exec, s[{MKC}:{MKC+1}]')
        a(f's_cbranch_execz {sk}')
        a(f'ds_read_b32 v{tJ}, v{RC+1} offset:{L_TAB}')
        a('s_waitcnt lgkmcnt(0)')
        a(f'v_lshl_add_u32 v{tJ}, v{RKC}, 2, v{tJ}')
        a(f'ds_write_b32 v{tJ}, v{RC} offset:{L_ENT}')
        a.label(sk)
        a('s_mov_b64 exec, -1')

    def setup_ptrs():
        a(f'v_add_u32 v{tB}, s{sSO}, v{jA}')
        a(f'v_mad_u32_u24 v{tA}, v{sidA}, s{sL}, v{tB}')
        a(f'v_lshlrev_b32 v{pEN}, 4, v{tA}')
        a(f'ds_read_b128 v[{EN}:{EN+3}], v{pEN} offset:{L_ENT}')
        a(f'v_lshlrev_b32 v{pQF}, 2, v{tA}')
        a(f'v_sub_u32 v{pQI}, v{tA}, v{jA}')
        a(f'v_lshlrev_b32 v{pQI}, 2, v{pQI}')
        a(f'v_add_u32 v{pQI}, {L_QI}, v{pQI}')
        a(f'v_mad_u32_u24 v{tA}, v{sidR}, s{sL}, v{tB}')
        a(f'v_lshl_add_u32 v{pEE}, v{tA}, 4, v{iR4}')
        a(f's_mov_b32 m0, s{sDB}')

    def dma_addr():
        return [f'v_mad_u32_u16 v{EN+i}, v{EN+i}, s{s128}, v{CO+i}' for i in range(4)]
    def dma_issue():
        if opts.get('nodma'): return []
        return [f'buffer_load_dwordx4 v{EN+i}, s[{rX}:{rX+3}], 0 offen offset:{1024*i} lds' if i else
                f'buffer_load_dwordx4 v{EN}, s[{rX}:{rX+3}], 0 offen lds' for i in range(4)]

    def main_loop(tag, atomic):
        flush_blocks = []
        PS = [(PP, TT_, ZZ), (PB, TB, ZB)]
        def flush_body(par, j):
            a(f's_bfe_i32 exec_lo, s{sF[par]}, 0x{(1<<16)|(8*j):x}')
            a(f's_bfe_i32 exec_hi, s{sF[par]+1}, 0x{(1<<16)|(8*j):x}')
            a(f'v_add_f32 v{F0}, v{DEN}, v{DEN+1}')
            a(f'v_add_f32 v{F1}, v{NUM}, v{NUM+1}')
            a(f'v_add_f32 v{F2}, v{DEN+2}, v{DEN+3}')
            a(f'v_add_f32 v{F3}, v{NUM+2}, v{NUM+3}')
            a(f'v_mov_b64 v[{DEN}:{DEN+1}], 0')
            a(f'v_mov_b64 v[{NUM}:{NUM+1}], 0')
            if atomic:
                a(f'ds_add_f32 v{QA[par]+j}, v{F0}')
                a(f'ds_add_f32 v{QA[par]+j}, v{F1} offset:256')
                a(f'ds_add_f32 v{QA[par]+j}, v{F2} offset:128')
                a(f'ds_add_f32 v{QA[par]+j}, v{F3} offset:384')
            else:
                a(f'ds_write2_b32 v{QA[par]+j}, v{F0}, v{F1} offset0:0 offset1:64')
                a(f'ds_write2_b32 v{QA[par]+j}, v{F2}, v{F3} offset0:32 offset1:96')
            a(f'v_mov_b64 v[{DEN+2}:{DEN+3}], 0')
            a(f'v_mov_b64 v[{NUM+2}:{NUM+3}], 0')
            a('s_mov_b64 exec, -1')
        def post2(par):
            for j in range(4):
                for cc in range(2):
                    p, t, z = (r + 2*j for r in PS[cc])
                    a(f'v_pk_fma_f32 v[{NUM+2*cc}:{NUM+2*cc+1}], v[{p}:{p+1}], v[{t}:{t+1}], v[{NUM+2*cc}:{NUM+2*cc+1}]')
                    a(f'v_pk_fma_f32 v[{DEN+2*cc}:{DEN+2*cc+1}], v[{p}:{p+1}], v[{z}:{z+1}], v[{DEN+2*cc}:{DEN+2*cc+1}]')
                if opts.get('noflush'): continue
                fl = a.newlabel('fl'); back = a.newlabel('bk')
                a(f's_bitcmp1_b32 s{sANY[par]}, {8*j}')
                a(f's_cbranch_scc1 {fl}')
                a.label(back)
                flush_blocks.append((fl, back, par, j))
        def pre(cur):
            g0 = G_[cur]; h0 = H_[cur]; P_, T_, Z_ = PS[cur]
            for j in range(4):
                g = g0 + 4*j
                a(f'v_pk_fma_f32 v[{g}:{g+1}], v[{g}:{g+1}], s[{sC}:{sC+1}], s[{sC}:{sC+1}] clamp')
                a(f'v_pk_fma_f32 v[{g+2}:{g+3}], v[{g+2}:{g+3}], s[{sC}:{sC+1}], s[{sC}:{sC+1}] clamp')
            for j in range(4):
                g = g0 + 4*j; h = h0 + 4*j
                X = f'v[{g}:{g+1}]'; Y = f'v[{g+2}:{g+3}]'
                p = P_ + 2*j; t = T_ + 2*j; z = Z_ + 2*j
                a(f'v_pk_mul_f32 v[{t}:{t+1}], {Y}, v[{h}:{h+1}]')
                a(f'v_pk_mul_f32 v[{p}:{p+1}], {X}, {Y}')
                a(f'v_pk_add_f32 v[{z}:{z+1}], {X}, {Y}')
                a(f'v_pk_fma_f32 v[{t}:{t+1}], {X}, v[{h+2}:{h+3}], v[{t}:{t+1}]')
        def mfma_list(nxt, cc):
            Gs = f'v[{G_[nxt]}:{G_[nxt]+15}]'; Hs = f'v[{H_[nxt]}:{H_[nxt]+15}]'
            out = []
            for kp in range(4):
                wb = WB + 16*cc + 4*kp; wv = WV + 16*cc + 4*kp; ax = AX + 4*kp
                out.append(f'v_mfma_f32_32x32x16_bf16 {Hs}, v[{ax}:{ax+3}], v[{wv}:{wv+3}], {"0" if kp == 0 else Hs}')
                out.append(f'v_mfma_f32_32x32x16_bf16 {Gs}, v[{ax}:{ax+3}], v[{wb}:{wb+3}], {"0" if kp == 0 else Gs}')
            out.append(f'v_mfma_f32_32x32x16_bf16 {Gs}, v[{AE[cc]}:{AE[cc]+3}], v[{BE}:{BE+3}], {Gs}')
            return out
        def trans_list(cur):
            Pp = PS[cur ^ 1][0]
            return [f'v_rcp_f32 v{Pp+i}, v{Pp+i}' for i in range(8)] + [f'v_exp_f32 v{G_[cur]+i}, v{G_[cur]+i}' for i in range(16)]
        def weave(mf, tr, gaps):
            dist = [3, 3, 3, 3, 3, 3, 2, 2, 2]
            if opts.get('nogaps'): gaps = {}
            if opts.get('nomf'): mf = None
            k = 0
            for m in range(9):
                for ins in gaps.get(('m', m), []): a(ins)
                if mf: a(mf[m])
                for _ in range(dist[m]):
                    a(tr[k])
                    for ins in gaps.get(k, []): a(ins)
                    k += 1
            assert k == len(tr)
        def stage0(par):
            g = {}
            da = dma_addr()
            g[0] = [f'ds_read_b32 v{QF}, v{pQF} offset:{L_QI + 16*(par+1)}']
            g[1] = [f'ds_read_b32 v{EE}, v{pEE} offset:{L_ENT + 64*(par+1)}']
            g[3] = [f'v_and_or_b32 v{BE}, v{R0}, s{sHI}, v{BC+1}']
            g[6] = [da[0]]; g[9] = [da[1]]; g[12] = [da[2]]; g[15] = [da[3]]
            axr = [f'ds_read_b128 v[{AX+4*kp}:{AX+4*kp+3}], v{RA+kp}' for kp in range(4)]
            early = opts.get('axearly', 0)
            if early:
                for kp, gp in enumerate(opts.get('axgaps', (8, 11, 17, 21))):
                    g.setdefault(gp, [])
                    g[gp] = g[gp] + ((['s_waitcnt vmcnt(0)'] if kp == 0 else []) + [axr[kp]])
            weave(mfma_list(1, 1), trans_list(0), g)
            axpre = opts.get('axpre', 1)
            if axpre and not early and not opts.get('nogaps'):
                a('s_waitcnt vmcnt(0)')
                for ins in axr: a(ins)
            post2(par ^ 1)
            qn = QA[par ^ 1]
            if not opts.get('nogaps'):
                a(f'ds_read_b128 v[{qn}:{qn+3}], v{pQI} offset:{16*(par+1)}')
                if not early and not axpre:
                    a('s_waitcnt vmcnt(0)')
                    for ins in axr: a(ins)
            pre(0)
            a(f's_sub_u32 s{sCNT}, s{sCNT}, 1')
        def stage1(par):
            qn = QA[par ^ 1]
            g = {}
            di = dma_issue()
            g[('m', 0)] = ['s_waitcnt lgkmcnt(0)']
            g[0] = [f'v_mad_u32_u24 v{qn}, v{qn}, 1, v{C4}'] + di[0:1]
            g[1] = [f'v_mad_u32_u24 v{qn+1}, v{qn+1}, 1, v{C4}'] + di[1:2]
            g[2] = [f'ds_read_b32 v{R0}, v{qn} offset:512'] + di[2:3]
            g[3] = [f'v_mad_u32_u24 v{qn+2}, v{qn+2}, 1, v{C4}', f'ds_read_b32 v{BE+1}, v{qn+1} offset:512'] + di[3:4]
            g[4] = [f'v_mad_u32_u24 v{qn+3}, v{qn+3}, 1, v{C4}', f'ds_read_b32 v{BE+2}, v{qn+2} offset:512']
            g[5] = [f'ds_read_b32 v{BE+3}, v{qn+3} offset:512']
            g[6] = [f'ds_read_b128 v[{EN}:{EN+3}], v{pEN} offset:{L_ENT + 64*(par+3)}']
            g[7] = [f'v_perm_b32 v{AE[0]}, v{EE}, v{AE[0]}, v{SEL[0]}']
            g[9] = [f'v_perm_b32 v{AE[1]}, v{EE}, v{AE[1]}, v{SEL[1]}']
            g[11] = [f'v_cmp_gt_i32 s[{sF[par^1]}:{sF[par^1]+1}], 0, v{QF}']
            if par == 1:
                g[13] = [f'v_add_u32 v{pQI}, 32, v{pQI}']
                g[14] = [f'v_add_u32 v{pQF}, 32, v{pQF}']
                g[15] = [f'v_add_u32 v{pEE}, 128, v{pEE}']
                g[16] = [f'v_add_u32 v{pEN}, 128, v{pEN}']
            g[17] = [f's_or_b32 s{sANY[par^1]}, s{sF[par^1]}, s{sF[par^1]+1}'] if not opts.get('noany') else [f's_mov_b32 s{sANY[par^1]}, 0']
            g[19] = ['s_waitcnt lgkmcnt(0)', f'v_and_or_b32 v{BE}, v{R0}, s{sLO}, v{BC}']
            weave(mfma_list(0, 0), trans_list(1), g)
            pre(1)
        def last_stage1(par):
            weave(None, trans_list(1), {})
            pre(1)
            for i in range(8):
                a(f'v_rcp_f32 v{PB+i}, v{PB+i}')
            a('s_nop 0')
            post2(par)
        L0 = f'K2_T0{tag}'; E0 = f'K2_E0{tag}'; E1 = f'K2_E1{tag}'; DONE = f'K2_MD{tag}'
        PR = opts.get('prio', 1)
        if PR:
            a(f's_add_u32 s{t0}, s{sCNT}, 1')
            a(f's_mul_i32 s{t0}, s{t0}, {opts.get("pfrac", 20)}')
            a(f's_lshr_b32 s{t0}, s{t0}, 6')
            a(f's_lshl_b32 s{t0}, s{t0}, 1')
            a(f's_sub_u32 s{sSWAP}, s{sCNT}, s{t0}')
            a(f's_cmp_ge_u32 s{sW}, 4')
            a(f's_cbranch_scc0 K2_PR0{tag}')
            a('s_setprio 1')
            a.label(f'K2_PR0{tag}')
        if PR == 3:
            a(f's_cmp_ge_u32 s{sW}, 4')
            a(f's_cselect_b32 s{sSWAP}, 1, 0')
        a.label(L0)
        if PR == 3:
            a(f's_xor_b32 s{sSWAP}, s{sSWAP}, 1')
            a(f's_cbranch_scc1 K2_PH{tag}')
            a('s_setprio 0')
            a(f's_branch K2_PD{tag}')
            a.label(f'K2_PH{tag}')
            a('s_setprio 1')
            a.label(f'K2_PD{tag}')
        elif PR:
            a(f's_cmp_eq_u32 s{sCNT}, s{sSWAP}')
            a(f's_cbranch_scc1 K2_SWP{tag}')
            a.label(f'K2_SWB{tag}')
        stage0(0)
        a(f's_cbranch_scc1 {E0}')
        stage1(0)
        stage0(1)
        a(f's_cbranch_scc1 {E1}')
        stage1(1)
        a(f's_branch {L0}')
        a.label(E0)
        last_stage1(0)
        a(f's_branch {DONE}')
        a.label(E1)
        last_stage1(1)
        a(f's_branch {DONE}')
        if PR and PR != 3:
            a.label(f'K2_SWP{tag}')
            a(f's_cmp_ge_u32 s{sW}, 4')
            a(f's_cbranch_scc1 K2_SW0{tag}')
            a('s_setprio 1')
            a(f's_branch K2_SWB{tag}')
            a.label(f'K2_SW0{tag}')
            a('s_setprio 0')
            a(f's_branch K2_SWB{tag}')
        for (fl, back, par, j) in flush_blocks:
            a.label(fl)
            flush_body(par, j)
            a(f's_branch {back}')
        a.label(DONE)
        if PR: a('s_setprio 0')

    def pipeline_fill():
        q0 = QA[0]
        a(f'ds_read_b128 v[{q0}:{q0+3}], v{pQI}')
        a(f'ds_read_b32 v{QF}, v{pQF} offset:{L_QI}')
        a(f'ds_read_b32 v{EE}, v{pEE} offset:{L_ENT}')
        a(f'ds_read_b128 v[{EN}:{EN+3}], v{pEN} offset:{L_ENT + 64}')
        for i in range(2):
            a(f'v_mov_b64 v[{DEN+2*i}:{DEN+2*i+1}], 0')
            a(f'v_mov_b64 v[{NUM+2*i}:{NUM+2*i+1}], 0')
        for i in range(8):
            a(f'v_mov_b32 v{PP+i}, 1.0')
            a(f'v_mov_b32 v{PB+i}, 1.0')
        for i in range(4):
            a(f'v_mov_b64 v[{TT_+2*i}:{TT_+2*i+1}], 0')
            a(f'v_mov_b64 v[{ZZ+2*i}:{ZZ+2*i+1}], 0')
            a(f'v_mov_b64 v[{TB+2*i}:{TB+2*i+1}], 0')
            a(f'v_mov_b64 v[{ZB+2*i}:{ZB+2*i+1}], 0')
        a(f's_mov_b32 s{sANY[1]}, 0')
        a('s_waitcnt lgkmcnt(0)')
        for q in range(4):
            a(f'v_mad_u32_u24 v{q0+q}, v{q0+q}, 1, v{C4}')
        a(f'ds_read_b32 v{R0}, v{q0} offset:512')
        for q in range(1, 4):
            a(f'ds_read_b32 v{BE+q}, v{q0+q} offset:512')
        a(f'v_perm_b32 v{AE[0]}, v{EE}, v{AE[0]}, v{SEL[0]}')
        a(f'v_perm_b32 v{AE[1]}, v{EE}, v{AE[1]}, v{SEL[1]}')
        a(f'v_cmp_gt_i32 s[{sF[0]}:{sF[0]+1}], 0, v{QF}')
        for ins in dma_addr(): a(ins)
        stamp(21)
        a('s_waitcnt vmcnt(0)')
        stamp(22)
        for kp in range(4):
            a(f'ds_read_b128 v[{AX+4*kp}:{AX+4*kp+3}], v{RA+kp}')
        a(f's_or_b32 s{sANY[0]}, s{sF[0]}, s{sF[0]+1}')
        a('s_waitcnt lgkmcnt(0)')
        a(f'v_and_or_b32 v{BE}, v{R0}, s{sLO}, v{BC}')
        for ins in dma_issue(): a(ins)
        a(f'ds_read_b128 v[{EN}:{EN+3}], v{pEN} offset:{L_ENT + 128}')
        Gs = f'v[{GA}:{GA+15}]'; Hs = f'v[{HA}:{HA+15}]'
        for kp in range(4):
            a(f'v_mfma_f32_32x32x16_bf16 {Hs}, v[{AX+4*kp}:{AX+4*kp+3}], v[{WV+4*kp}:{WV+4*kp+3}], {"0" if kp == 0 else Hs}')
            a(f'v_mfma_f32_32x32x16_bf16 {Gs}, v[{AX+4*kp}:{AX+4*kp+3}], v[{WB+4*kp}:{WB+4*kp+3}], {"0" if kp == 0 else Gs}')
        a(f'v_mfma_f32_32x32x16_bf16 {Gs}, v[{AE[0]}:{AE[0]+3}], v[{BE}:{BE+3}], {Gs}')
        a('s_waitcnt lgkmcnt(0)')
        a('s_nop 7')
        a('s_nop 3')
    def forced_flags():
        a(f's_sub_u32 s{t1}, s{sL}, 1')
        a(f's_lshl_b32 s{t1}, s{t1}, 2')
        a(f'v_add_u32 v{tB}, s{t1}, v{pQI}')
        a(f'v_mov_b32 v{tA}, 0x80000000')
        a('s_mov_b32 exec_lo, 1')
        a('s_mov_b32 exec_hi, 1')
        a(f'ds_or_b32 v{tB}, v{tA}')
        a('s_mov_b64 exec, -1')

    stamp(2)
    a(f's_mov_b64 exec, s[{sSV2}:{sSV2+1}]')
    a(f'v_mov_b32 v{tD}, {L_CNT + 127*4}')
    a(f'v_mov_b32 v{tE}, 1')
    a(f'ds_write_b32 v{tD}, v{tE}')
    a('s_mov_b64 exec, -1')
    gemm_issue()
    stamp(28)
    gemm_mid()
    gemm_mid2()
    stamp(29)
    a(f's_cmp_lg_u32 s{sW}, 0')
    a('s_cbranch_scc1 K2_NOCI')
    a(f'v_mul_u32_u24 v{tA}, {2*ROWB}, v{vLANE}')
    a(f'v_mov_b32 v{tB}, {L_ZERO}')
    a(f'v_add_u32 v{tA}, {L_ACC}, v{tA}')
    a(f's_mov_b32 exec_hi, {(1 << (MAXN // 2 - 32)) - 1}')
    a(f'ds_write_b32 v{tA}, v{tB} offset:768')
    a(f'ds_write_b32 v{tA}, v{tB} offset:{768 + ROWB}')
    a('s_mov_b64 exec, -1')
    a.label('K2_NOCI')
    gemm_store('F')
    stamp(3)
    a('s_waitcnt vmcnt(0) lgkmcnt(0)')
    stamp(23)
    hist()
    a('s_waitcnt lgkmcnt(0)')
    stamp(24)
    if opts.get('proprio') == 1: a('s_setprio 0')
    a('s_barrier')
    stamp(4)
    scan_nodes('F')
    a(f'v_readlane_b32 s{t0}, v{TQ+1}, 63')
    a(f's_cmp_eq_u32 s{sLB}, 0')
    a(f's_cselect_b32 s{t1}, s{sLA}, s{sLB}')
    a(f's_lshl_b32 s{t1}, s{t1}, 2')
    a(f'v_cmp_lt_u32 vcc, s{t1}, v{tB}')
    a(f's_cmp_lg_u32 s{t0}, 0')
    a('s_cbranch_scc1 K2_SLOW')
    a(f's_add_u32 s{t1}, s{sLA}, s{sLB}')
    a(f's_cmp_gt_u32 s{t1}, {(ENT_QUADS - 8) // 8}')
    a('s_cbranch_scc1 K2_SLOW')
    a('s_cbranch_vccnz K2_SLOW')
    stamp(15)
    scatter()
    stamp(16)
    a('s_waitcnt lgkmcnt(0)')
    a('s_barrier')
    stamp(5)
    a(f's_cmp_eq_u32 s{sL}, 0')
    a('s_cbranch_scc1 K2_NOL')
    setup_ptrs()
    a('s_waitcnt lgkmcnt(0)')
    for ins in dma_addr(): a(ins)
    for ins in dma_issue(): a(ins)
    a.label('K2_NOL')
    stamp(17)
    a(f'v_cmp_gt_u32 vcc, {MAXN // 2}, v{vLANE}')
    a(f'v_lshl_or_b32 v{tB}, v{vLANE}, 1, 1')
    a(f'v_cmp_le_u32 s[{sSV}:{sSV+1}], s{sNN}, v{tB}')
    a(f'v_mov_b32 v{tC}, 1')
    a('s_nop 0')
    a(f'v_cndmask_b32 v{tB}, v{TQ+1}, v{tC}, s[{sSV}:{sSV+1}]')
    a(f'v_min_u32 v{tB}, v{TQ}, v{tB}')
    a(f'v_cmp_eq_u32 s[{sSV}:{sSV+1}], 0, v{tB}')
    a(f's_and_b64 s[{sSV}:{sSV+1}], s[{sSV}:{sSV+1}], vcc')
    a('s_cbranch_scc1 K2_ZROWS')
    a.label('K2_ZBACK')
    qi_fill('F', True)
    stamp(18)
    w_frags()
    consts()
    a('s_waitcnt lgkmcnt(0)')
    stamp(19)
    if opts.get('proprio') == 2: a('s_setprio 0')
    a('s_barrier')
    stamp(20)
    a(f's_cmp_eq_u32 s{sL}, 0')
    a('s_cbranch_scc1 K2_EPI')
    pipeline_fill()
    stamp(6)
    if opts.get('dbgtime'):
        a(f's_memrealtime s[{t2}:{t3}]')
        a('s_waitcnt lgkmcnt(0)')
        a(f's_mov_b32 s{sT1}, s{t2}')
    if STAMP:
        a(f's_memrealtime s[{t2}:{t3}]')
        a('s_waitcnt lgkmcnt(0)')
        a(f'v_writelane_b32 v{vST}, s{t2}, 13')
    if opts.get('half'):
        a(f's_cmp_ge_u32 s{sW}, 4')
        a('s_cbranch_scc1 K2_MDF')
    main_loop('F', False)
    stamp(7)
    if opts.get('dbgtime'):
        a(f's_memrealtime s[{t2}:{t3}]')
        a('s_waitcnt lgkmcnt(0)')
        a(f's_mov_b32 s{sT2}, s{t2}')
    if STAMP:
        a(f's_memrealtime s[{t2}:{t3}]')
        a('s_waitcnt lgkmcnt(0)')
        a(f'v_writelane_b32 v{vST}, s{t2}, 14')
    a.label('K2_EPI')
    e0 = 4
    XV = [e0, e0 + 4]; UU = [e0 + 8, e0 + 12]
    DN = [e0 + 16, e0 + 48]; NM = [e0 + 24, e0 + 56]; CD = [e0 + 32, e0 + 64]; CN = [e0 + 40, e0 + 72]
    O = e0 + 80; ADR = [e0 + 84, e0 + 85]; GO = [e0 + 86, e0 + 87]; CP = [e0 + 88, e0 + 89]; OC = [e0 + 90, e0 + 91]
    T1 = e0 + 92; ND = e0 + 93
    def epi_addr(r):
        a(f'v_add_u32 v{T1}, {512*r}, v0') if r else a(f'v_mov_b32 v{T1}, v0')
        a(f'v_lshrrev_b32 v{ND}, 3, v{T1}')
        a(f'v_and_b32 v{T1}, 7, v{T1}')
        a(f'v_lshlrev_b32 v{OC[r]}, 4, v{T1}')
        a(f'v_mul_u32_u24 v{CP[r]}, s{t0}, v{ND}')
        a(f'v_add_u32 v{CP[r]}, {L_ACC}, v{CP[r]}')
        a(f'v_add_u32 v{ADR[r]}, v{CP[r]}, v{OC[r]}')
        a(f'v_add_u32 v{GO[r]}, s{sNS}, v{ND}')
        a(f'v_lshlrev_b32 v{GO[r]}, 7, v{GO[r]}')
        a(f'v_lshl_add_u32 v{GO[r]}, v{T1}, 3, v{GO[r]}')
    def epi_static(r, carry):
        a(f'buffer_load_dwordx2 v[{XV[r]}:{XV[r]+1}], v{GO[r]}, s[{rF}:{rF+3}], 0 offen')
        a(f'buffer_load_dwordx2 v[{XV[r]+2}:{XV[r]+3}], v{GO[r]}, s[{rF}:{rF+3}], 0 offen offset:64')
        a(f'ds_read_b128 v[{UU[r]}:{UU[r]+3}], v{ADR[r]} offset:640')
        if carry: a(f'ds_read_b32 v{CP[r]}, v{CP[r]} offset:768')
    def epi_reads(r, carry):
        ad = ADR[r]
        a(f'ds_read_b128 v[{DN[r]}:{DN[r]+3}], v{ad}')
        a(f'ds_read_b128 v[{DN[r]+4}:{DN[r]+7}], v{ad} offset:128')
        a(f'ds_read_b128 v[{NM[r]}:{NM[r]+3}], v{ad} offset:256')
        a(f'ds_read_b128 v[{NM[r]+4}:{NM[r]+7}], v{ad} offset:384')
        if carry:
            a(f'ds_read_b128 v[{CD[r]}:{CD[r]+3}], v{CP[r]}')
            a(f'ds_read_b128 v[{CD[r]+4}:{CD[r]+7}], v{CP[r]} offset:128')
            a(f'ds_read_b128 v[{CN[r]}:{CN[r]+3}], v{CP[r]} offset:256')
            if r == 1: a('s_waitcnt lgkmcnt(14)')
            a(f'ds_read_b128 v[{CN[r]+4}:{CN[r]+7}], v{CP[r]} offset:384')
    def epi_math(r, carry):
        dn, nm, cd, cn, uu, xv = DN[r], NM[r], CD[r], CN[r], UU[r], XV[r]
        if carry:
            for i in range(0, 8, 2):
                a(f'v_pk_add_f32 v[{dn+i}:{dn+i+1}], v[{dn+i}:{dn+i+1}], v[{cd+i}:{cd+i+1}]')
                a(f'v_pk_add_f32 v[{nm+i}:{nm+i+1}], v[{nm+i}:{nm+i+1}], v[{cn+i}:{cn+i+1}]')
        for i in range(0, 8, 2):
            a(f'v_pk_add_f32 v[{dn+i}:{dn+i+1}], v[{dn+i}:{dn+i+1}], s[{sC}:{sC+1}]')
        for i in range(8):
            a(f'v_rcp_f32 v{dn+i}, v{dn+i}')
        for i in range(4):
            a(f'v_lshlrev_b32 v{cd+i}, 16, v{uu+i}')
            a(f'v_and_b32 v{cd+4+i}, s{sHI}, v{uu+i}')
        for i in range(0, 8, 2):
            a(f'v_pk_fma_f32 v[{nm+i}:{nm+i+1}], v[{nm+i}:{nm+i+1}], v[{dn+i}:{dn+i+1}], v[{cd+i}:{cd+i+1}]')
        for i in range(8):
            a(f'v_max_f32 v{nm+i}, 0, v{nm+i}')
        for i in range(4):
            a(f'v_lshlrev_b32 v{cd+2*i}, 16, v{xv+i}')
            a(f'v_and_b32 v{cd+2*i+1}, s{sHI}, v{xv+i}')
        for i in range(0, 8, 2):
            a(f'v_pk_add_f32 v[{nm+i}:{nm+i+1}], v[{nm+i}:{nm+i+1}], v[{cd+i}:{cd+i+1}]')
        for i in range(4):
            a(f'v_cvt_pk_bf16_f32 v{O+i}, v{nm+2*i}, v{nm+2*i+1}')
        osf = {0: '', 1: ' sc1', 2: ' nt', 3: ' sc0 sc1'}[opts.get('outst', 1)]
        a(f'buffer_store_dwordx2 v[{O}:{O+1}], v{GO[r]}, s[{rO}:{rO+3}], 0 offen' + osf)
        a(f'buffer_store_dwordx2 v[{O+2}:{O+3}], v{GO[r]}, s[{rO}:{rO+3}], 0 offen offset:64' + osf)
    def epilogue(tag, carry):
        srd(a, rO, sOUT, N * 128)
        srd(a, rF, sX, N * 128)
        a(f's_mov_b32 s{t0}, {ROWB}')
        a(f's_mov_b32 s{sC}, 0x{EPS_SCALED:x}')
        a(f's_mov_b32 s{sC+1}, 0x{EPS_SCALED:x}')
        a(f's_mov_b32 s{sHI}, 0xffff0000')
        a('s_waitcnt vmcnt(0)')
        epi_addr(0)
        epi_static(0, carry)
        epi_addr(1)
        a(f'v_cmp_gt_u32 s[{sSV}:{sSV+1}], s{sNN}, v{ND}')
        a('s_nop 3')
        a(f's_mov_b64 exec, s[{sSV}:{sSV+1}]')
        a(f's_cbranch_execz K2_NS2{tag}')
        epi_static(1, carry)
        a.label(f'K2_NS2{tag}')
        a('s_mov_b64 exec, -1')
        a('s_waitcnt lgkmcnt(0)')
        if carry:
            a(f'v_add_u32 v{CP[0]}, v{CP[0]}, v{OC[0]}')
            a(f'v_add_u32 v{CP[1]}, v{CP[1]}, v{OC[1]}')
        a('s_barrier')
        if STAMP and tag == 'F': stamp(8)
        epi_reads(0, carry)
        a(f's_mov_b64 exec, s[{sSV}:{sSV+1}]')
        a(f's_cbranch_execz K2_ONE{tag}')
        epi_reads(1, carry)
        a('s_mov_b64 exec, -1')
        a(f's_waitcnt vmcnt(0) lgkmcnt({8 if carry else 4})')
        epi_math(0, carry)
        a(f's_mov_b64 exec, s[{sSV}:{sSV+1}]')
        a('s_waitcnt lgkmcnt(0)')
        epi_math(1, carry)
        a(f's_branch K2_FIN{tag}')
        a.label(f'K2_ONE{tag}')
        a('s_mov_b64 exec, -1')
        a('s_waitcnt vmcnt(0) lgkmcnt(0)')
        epi_math(0, carry)
        a.label(f'K2_FIN{tag}')
        if opts.get('endwait', 1): a('s_waitcnt vmcnt(0)')
    epilogue('F', True)
    if opts.get('dbgtime'):
        a('s_mov_b64 exec, -1')
        a('s_waitcnt vmcnt(0)')
        a(f's_memrealtime s[{t2}:{t3}]')
        a(f's_cmp_lg_u32 s{sW}, 7')
        a('s_cbranch_scc1 K2_DBGX')
        a('s_and_b32 s3, s2, 31')
        a('s_cmp_lg_u32 s3, 0')
        a('s_cbranch_scc1 K2_DBGX')
        a('s_lshr_b32 s3, s2, 5')
        a('s_cmp_ge_u32 s3, 2')
        a('s_cbranch_scc1 K2_DBGX')
        a(f's_lshl_b32 s{t0}, s3, 2')
        a(f's_add_u32 s{t0}, s{t0}, 0x1200000')
        a(f'v_mov_b32 v4, s{t0}')
        a(f'global_load_dword v5, v4, s[{sWS}:{sWS+1}]')
        a(f'global_load_dword v6, v4, s[{sWS}:{sWS+1}] offset:256')
        a('s_waitcnt vmcnt(0) lgkmcnt(0)')
        a(f'v_sub_u32 v8, v6, v5')
        a(f'v_sub_u32 v9, s{sT0}, v5')
        a(f'v_sub_u32 v10, s{sT1}, v5')
        a(f'v_sub_u32 v11, s{sT2}, v5')
        a(f'v_sub_u32 v12, s{t2}, v5')
        a('s_lshl_b32 s3, s3, 5')
        a('v_mov_b32 v4, s3')
        a('s_mov_b64 exec, 1')
        a(f'global_store_dwordx4 v4, v[8:11], s[{sDBG}:{sDBG+1}]')
        a(f'global_store_dword v4, v12, s[{sDBG}:{sDBG+1}] offset:16')
        a.label('K2_DBGX')
    if STAMP:
        a('s_mov_b64 exec, -1')
        a('s_waitcnt vmcnt(0)')
        stamp(9)
        a(f's_memrealtime s[{t2}:{t3}]')
        a('s_waitcnt lgkmcnt(0)')
        a(f'v_writelane_b32 v{vST}, s{t2}, 12')
        a(f's_mul_i32 s{t0}, s2, {NW}')
        a(f's_add_u32 s{t0}, s{t0}, s{sW}')
        a(f's_lshl_b32 s{t0}, s{t0}, 8')
        a(f's_add_u32 s{t0}, s{t0}, 0x1000000')
        srd_off(a, rT, sWS, f's{t0}', 256)
        a(f'v_writelane_b32 v{vST}, s{sL}, 10')
        a(f'v_lshlrev_b32 v4, 2, v{vLANE}')
        a(f'buffer_store_dword v{vST}, v4, s[{rT}:{rT+3}], 0 offen')
    a('s_endpgm')
    a.label('K2_CSEL')
    a(f'v_mov_b32 v{tD}, 0')
    a(f'v_mov_b32 v{tE}, 0')
    a(f'v_mov_b32 v{tF}, 0')
    for it in range(8):
        a(f'v_lshrrev_b32 v{tG}, 24, v{SG+it}')
        a(f'v_cmp_lt_u32 vcc, 32, v{tG}')
        a(f'v_mad_u32_u24 v{tJ}, v{SG+it}, 8, v{tB}')
        a(f'v_add_u32 v{RKC}, 1, v{tF}')
        a(f'v_cndmask_b32 v{tD}, v{tD}, v{tJ}, vcc')
        a(f'v_cndmask_b32 v{tE}, v{tE}, v{tG}, vcc')
        a(f'v_cndmask_b32 v{tF}, v{tF}, v{RKC}, vcc')
    a(f'v_cmp_lt_u32 vcc, 1, v{tF}')
    a(f'v_cmp_lt_u32 s[{sSV2}:{sSV2+1}], 48, v{tE}')
    a(f'v_add_u32 v{tG}, 32, v{tC}')
    a(f's_or_b64 s[{sSV2}:{sSV2+1}], s[{sSV2}:{sSV2+1}], vcc')
    a(f'v_cmp_gt_u32 s[{MKC}:{MKC+1}], v{tE}, v{tG}')
    a('s_nop 0')
    a(f's_mov_b64 exec, s[{MKC}:{MKC+1}]')
    a(f'buffer_load_dwordx2 v[{RC}:{RC+1}], v{tD}, s[{rR}:{rR+3}], 0 offen offset:256')
    a('s_mov_b64 exec, -1')
    a('s_branch K2_CBACK')
    a.label('K2_ZROWS')
    a(f's_mov_b64 exec, s[{sSV}:{sSV+1}]')
    for i in range(4):
        a(f'v_mov_b32 v{TR+i}, 0')
    for nd in range(2):
        a(f'v_cmp_eq_u32 vcc, 0, v{TQ+nd}')
        a(f's_and_b64 exec, vcc, s[{sSV}:{sSV+1}]')
        for k in range(32):
            a(f'ds_write_b128 v{nROW0}, v[{TR}:{TR+3}] offset:{nd*ROWB + 16*k}')
        a(f's_mov_b64 exec, s[{sSV}:{sSV+1}]')
    a('s_mov_b64 exec, -1')
    a('s_branch K2_ZBACK')

    a.label('K2_SLOW')
    w_frags()
    consts()
    a('s_waitcnt vmcnt(0) lgkmcnt(0)')
    a('s_barrier')
    a(f's_lshl_b32 s{t1}, s2, 10')
    a(f's_add_u32 s{t1}, s{t1}, {WS_TAB2}')
    srd_off(a, rT, sWS, f's{t1}', 1024)
    a(f'v_lshlrev_b32 v{tA}, 4, v{vLANE}')
    a(f'buffer_load_dwordx4 v[{TQ}:{TQ+3}], v{tA}, s[{rT}:{rT+3}], 0 offen')
    a('s_waitcnt vmcnt(0)')
    a(f'v_max_u32 v{tE}, v{TQ}, v{TQ+1}')
    a(f'v_max3_u32 v{tE}, v{tE}, v{TQ+2}, v{TQ+3}')
    wave_scan(a, 'v_max_u32', tE)
    a('s_nop 0')
    a(f'v_readlane_b32 s{t1}, v{tE}, 63')
    a(f's_add_u32 s{t1}, s{t1}, {WSLOW-1}')
    a(f's_mul_i32 s{t1}, s{t1}, 5042')
    a(f's_lshr_b32 s{sNP}, s{t1}, 16')
    a(f's_mov_b32 s{sP}, 0')
    for i in range(4):
        a(f'v_mov_b32 v{TR+i}, 0')
    a(f'v_lshrrev_b32 v{tA}, 5, v0')
    a(f'v_mul_u32_u24 v{tA}, {ROWB}, v{tA}')
    a(f'v_and_b32 v{tB}, 31, v{vLANE}')
    a(f'v_lshl_add_u32 v{tA}, v{tB}, 4, v{tA}')
    a(f'v_add_u32 v{tA}, {L_ACC}, v{tA}')
    for i in range(6):
        a(f'ds_write_b128 v{tA}, v[{TR}:{TR+3}]')
        a(f'v_add_u32 v{tA}, {16*ROWB}, v{tA}')
    a(f'v_cmp_gt_u32 vcc, 64, v0')
    a(f's_and_saveexec_b64 s[{sSV}:{sSV+1}], vcc')
    a(f'ds_write_b128 v{tA}, v[{TR}:{TR+3}]')
    a(f's_mov_b64 exec, s[{sSV}:{sSV+1}]')
    a.label('K2_SPASS')
    a(f's_lshl_b32 s{t0}, s{sW}, 1')
    a(f'v_lshrrev_b32 v{sidA}, 5, v{vLANE}')
    a(f'v_add_u32 v{sidA}, s{t0}, v{sidA}')
    a(f'v_bfe_u32 v{jA}, v{vLANE}, 3, 2')
    a(f'v_bfe_u32 v{sidR}, v{vLANE}, 2, 1')
    a(f'v_add_u32 v{sidR}, s{t0}, v{sidR}')
    a(f'v_and_b32 v{iR4}, 3, v{vLANE}')
    a(f'v_lshlrev_b32 v{iR4}, 2, v{iR4}')
    a(f's_lshl_b32 s{t1}, s2, 10')
    a(f's_add_u32 s{t1}, s{t1}, {WS_TAB}')
    srd_off(a, rT, sWS, f's{t1}', WS_TAB2 - WS_TAB + 1024)
    a(f'v_lshrrev_b32 v{tD}, 4, v{vLANE}')
    a(f'v_lshlrev_b32 v{tD}, 5, v{tD}')
    a(f's_lshl_b32 s{t0}, s{sW}, 7')
    a(f'v_add_u32 v{tD}, s{t0}, v{tD}')
    a(f's_mov_b32 s{t0}, {WS_TAB2 - WS_TAB}')
    for i in range(2):
        a(f'buffer_load_dwordx4 v[{SG+4*i}:{SG+4*i+3}], v{tD}, s[{rT}:{rT+3}], 0 offen offset:{16*i}')
    for i in range(2):
        a(f'buffer_load_dwordx4 v[{AX+4*i}:{AX+4*i+3}], v{tD}, s[{rT}:{rT+3}], s{t0} offen offset:{16*i}')
    a(f'v_and_b32 v{tC}, 15, v{vLANE}')
    a(f's_mul_i32 s{t0}, s{sP}, {WSLOW}')
    a(f'v_cmp_gt_u32 vcc, {WSLOW}, v{tC}')
    a(f'v_add_u32 v{tC}, s{t0}, v{tC}')
    a(f'v_lshlrev_b32 v{tB}, 3, v{tC}')
    a(f'v_mov_b32 v{tD}, 0x10000')
    a(f'v_cndmask_b32 v{tC}, v{tD}, v{tC}, vcc')
    a('s_waitcnt vmcnt(0)')
    a(f's_mov_b64 s[{MKC}:{MKC+1}], 0')
    for it in range(8):
        a(f'v_cmp_gt_u32 s[{MK+2*it}:{MK+2*it+1}], v{AX+it}, v{tC}')
        a(f's_mov_b64 s[{MK+16+2*it}:{MK+16+2*it+1}], 0')
    rec_loads(tB, 8)
    lds_init()
    a('s_waitcnt vmcnt(0) lgkmcnt(0)')
    a('s_barrier')
    hist()
    a('s_waitcnt lgkmcnt(0)')
    a('s_barrier')
    scan_nodes('S')
    qi_fill('S', False)
    scatter()
    a('s_waitcnt lgkmcnt(0)')
    a('s_barrier')
    a(f's_cmp_eq_u32 s{sL}, 0')
    a('s_cbranch_scc1 K2_SNEXT')
    setup_ptrs()
    a('s_waitcnt lgkmcnt(0)')
    for ins in dma_addr(): a(ins)
    for ins in dma_issue(): a(ins)
    forced_flags()
    pipeline_fill()
    main_loop('S', True)
    a.label('K2_SNEXT')
    a('s_waitcnt vmcnt(0) lgkmcnt(0)')
    a('s_barrier')
    a(f's_add_u32 s{sP}, s{sP}, 1')
    a(f's_cmp_lt_u32 s{sP}, s{sNP}')
    a('s_cbranch_scc1 K2_SPASS')
    epilogue('S', False)
    a.label('K2_END')
    a('s_endpgm')
    return nvgpr, nsgpr

def kd(name, nv, ns):
    acc = (nv + 3) // 4 * 4
    return f'''.amdhsa_kernel {name}
  .amdhsa_next_free_vgpr {nv}
  .amdhsa_next_free_sgpr {ns}
  .amdhsa_accum_offset {acc}
  .amdhsa_group_segment_fixed_size 0
  .amdhsa_kernarg_size 96
  .amdhsa_user_sgpr_count 2
  .amdhsa_user_sgpr_kernarg_segment_ptr 1
  .amdhsa_system_sgpr_workgroup_id_x 1
  .amdhsa_float_denorm_mode_32 3
.end_amdhsa_kernel
'''

def build(opts=None):
    opts = opts or {}
    a = Asm()
    gen_k1(a, opts)
    nv, ns = gen_k2(a, opts)
    out = HEADER
    out += f'; @launch kernel=gs_part_kernel grid=(256,1,1) block=({K1_THREADS},1,1) lds={LDS_K1}\n'
    out += f'; @launch kernel=gs_main_kernel grid=(256,1,1) block=({NW*64},1,1) lds={LDS_MAIN}\n'
    out += '.amdgcn_target "amdgcn-amd-amdhsa--gfx950"\n.text\n'
    out += a.text()
    out += '.section .rodata,"a"\n.p2align 6\n'
    out += kd('gs_part_kernel', 62 if opts.get('stamp1') else 60, 60)
    out += '.p2align 6\n'
    out += kd('gs_main_kernel', nv, ns)
    return out

if __name__ == '__main__':
    path = sys.argv[1] if len(sys.argv) > 1 else 'gather_scatter__edge_featured_mpnn_gatedgcn__graph.s'
    opts = {}
    for o in sys.argv[2:]:
        k, _, val = o.partition('=')
        opts[k] = int(val) if val else True
    open(path, 'w').write(build(opts))
    print('written', path, 'LDS', LDS_MAIN)
```

```python
import sys, os, struct
sys.path.insert(0, os.path.dirname(__file__))
from asmlib import *

N = 25000; E = 800000
NBK = 256
CH = 3136
RECB = CH * 8
WS_TAB = 0x700000
WS_TAB2 = 0x740000
WS_FRAG = 0x780000
MAGIC_B = 43980466
LOG2E = 0xBFB8AA3B
SBITS = 50
C_SCALE = (127 - SBITS) << 23
EPS_SCALED = 0x4E8637BD
assert abs(struct.unpack('<f', struct.pack('<I', EPS_SCALED))[0] / (1e-6 * 2.0**50) - 1) < 1e-6

NW = 8
NSTREAM = 16
NIT = 16
CAP = 3456
WSLOW = 13
ROWB = 784
MAXN = 98
ENT_QUADS = 960
VROWB = 640
L_CNT = 0
L_ZERO = 512
L_TAB = 1024
L_QI = 1536
L_ENT = L_QI + ENT_QUADS * 4
L_ACC = L_ENT + ENT_QUADS * 16
L_VIRT = L_ACC + MAXN * ROWB
L_WST = L_VIRT + NSTREAM * VROWB
L_WST = (L_WST + 255) // 256 * 256
L_DMA = L_WST + 16384
LDS_MAIN = L_DMA + NW * 4096
assert LDS_MAIN <= 163840, LDS_MAIN
assert L_ACC % 16 == 0 and L_VIRT % 16 == 0

K1_THREADS = 896
K1_HIST = 0
K1_STAGE = 1024
LDS_K1 = K1_STAGE + RECB

HEADER = open(os.path.join(os.path.dirname(__file__), 'header.txt')).read()

def srd(a, sreg, ptr, size):
    a(f's_mov_b32 s{sreg}, s{ptr}')
    a(f's_and_b32 s{sreg+1}, s{ptr+1}, 0xffff')
    a(f's_mov_b32 s{sreg+2}, {size}')
    a(f's_mov_b32 s{sreg+3}, 0x20000')

def srd_off(a, sreg, ptr, off, size):
    a(f's_add_u32 s{sreg}, s{ptr}, {off}')
    a(f's_addc_u32 s{sreg+1}, s{ptr+1}, 0')
    a(f's_and_b32 s{sreg+1}, s{sreg+1}, 0xffff')
    a(f's_mov_b32 s{sreg+2}, {size}')
    a(f's_mov_b32 s{sreg+3}, 0x20000')

def wave_scan(a, op, r):
    for sh in (1, 2, 4, 8):
        a('s_nop 1')
        a(f'{op}_dpp v{r}, v{r}, v{r} row_shr:{sh} row_mask:0xf bank_mask:0xf')
    a('s_nop 1')
    a(f'{op}_dpp v{r}, v{r}, v{r} row_bcast:15 row_mask:0xa bank_mask:0xf')
    a('s_nop 1')
    a(f'{op}_dpp v{r}, v{r}, v{r} row_bcast:31 row_mask:0xc bank_mask:0xf')

def wave_scan2(a, op1, r1, op2, r2):
    steps = [f'row_shr:{sh} row_mask:0xf bank_mask:0xf' for sh in (1, 2, 4, 8)] + \
            ['row_bcast:15 row_mask:0xa bank_mask:0xf', 'row_bcast:31 row_mask:0xc bank_mask:0xf']
    a('s_nop 1')
    for st in steps:
        a(f'{op1}_dpp v{r1}, v{r1}, v{r1} {st}')
        a(f'{op2}_dpp v{r2}, v{r2}, v{r2} {st}')
        a('s_nop 0')

def gen_k1(a, opts):
    ST = opts.get('stamp1', False)
    def stamp(i):
        if not ST: return
        a('s_memtime s[56:57]')
        a('s_waitcnt lgkmcnt(0)')
        a(f'v_writelane_b32 v60, s56, {i}')
    a.raw('.p2align 8')
    a.raw('.globl gs_part_kernel')
    a.raw('.type gs_part_kernel,@function')
    a.label('gs_part_kernel')
    a('s_cmp_ge_u32 s2, 256')
    a('s_cbranch_scc1 K1_END')
    a('s_load_dwordx4 s[4:7], s[0:1], 8')
    a('s_load_dwordx2 s[8:9], s[0:1], 24')
    a('s_load_dwordx2 s[10:11], s[0:1], 88')
    a('s_load_dwordx2 s[44:45], s[0:1], 0')
    if ST: a('v_mov_b32 v60, 0')
    stamp(0)
    if opts.get('dbgtime'):
        a('s_memrealtime s[54:55]')
        a('s_waitcnt lgkmcnt(0)')
        a('s_cmp_ge_u32 s2, 8')
        a('s_cbranch_scc1 K1_NODBG')
        a('v_mov_b32 v20, s54')
        a('s_lshl_b32 s56, s2, 2')
        a('s_add_u32 s56, s56, 0x1200000')
        a('v_mov_b32 v22, s56')
        a('v_cmp_eq_u32 vcc, 0, v0')
        a('s_and_saveexec_b64 s[58:59], vcc')
        a('global_store_dword v22, v20, s[10:11]')
        a('s_mov_b64 exec, s[58:59]')
        a.label('K1_NODBG')
    a('v_lshrrev_b32 v1, 6, v0')
    a('s_mul_i32 s12, s2, %d' % (CH * 4))
    a('v_readfirstlane_b32 s3, v1')
    a('s_lshr_b32 s13, s12, 1')
    a('v_lshlrev_b32 v2, 4, v0')
    a('v_add_u32 v2, s12, v2')
    a('s_cmp_eq_u32 s3, 13')
    a('s_cbranch_scc1 K1_FRAG')
    a('v_lshlrev_b32 v3, 3, v0')
    a('v_add_u32 v3, s13, v3')
    a('s_waitcnt lgkmcnt(0)')
    srd(a, 20, 8, E * 4)
    a('buffer_load_dwordx4 v[4:7], v2, s[20:23], 0 offen')
    srd(a, 24, 6, E * 4)
    srd(a, 28, 4, E * 2)
    if not opts.get('dstfirst', 1):
        a('buffer_load_dwordx4 v[8:11], v2, s[24:27], 0 offen')
        a('buffer_load_dwordx2 v[12:13], v3, s[28:31], 0 offen')
    a('v_lshlrev_b32 v14, 2, v0')
    a('v_mov_b32 v15, 0')
    a('v_cmp_gt_u32 vcc, 256, v0')
    a('s_and_saveexec_b64 s[18:19], vcc')
    a('ds_write_b32 v14, v15 offset:%d' % K1_HIST)
    a('s_mov_b64 exec, s[18:19]')
    a('v_cmp_gt_u32 vcc, %d, v0' % (CH // 4))
    a('s_mov_b32 s14, %d' % (E * 4))
    a('v_cmp_gt_u32 s[16:17], s14, v2')
    a('s_and_b64 s[16:17], s[16:17], vcc')
    a('s_mul_i32 s15, s2, %d' % RECB)
    srd_off(a, 32, 10, 's15', RECB)
    srd_off(a, 36, 10, WS_TAB, 0x80000)
    if opts.get('touch', 0):
        a('s_cmp_lg_u32 s3, 1')
        a('s_cbranch_scc1 K1_NOTOUCH')
        a('v_mov_b32 v41, 0')
        a('buffer_load_dword v42, v41, s[32:35], 0 offen')
        a('buffer_load_dword v43, v41, s[36:39], 0 offen')
        a.label('K1_NOTOUCH')
    a('s_mov_b32 s40, %d' % MAGIC_B)
    a('s_movk_i32 s41, 3125')
    a('v_mov_b32 v15, 1')
    a('s_waitcnt lgkmcnt(0)')
    a('s_barrier')
    if opts.get('dstfirst', 1) == 1:
        a('s_waitcnt vmcnt(0)')
        a('buffer_load_dwordx4 v[8:11], v2, s[24:27], 0 offen')
        a('buffer_load_dwordx2 v[12:13], v3, s[28:31], 0 offen')
    elif opts.get('dstfirst', 1) == 2:
        a('buffer_load_dwordx4 v[8:11], v2, s[24:27], 0 offen')
        a('buffer_load_dwordx2 v[12:13], v3, s[28:31], 0 offen')
        a('s_waitcnt vmcnt(2)')
    if opts.get('xpre', 1):
        a('s_and_b32 s46, s2, 7')
        a('s_lshr_b32 s47, s2, 3')
        a('s_lshl_b32 s46, s46, 5')
        a('s_add_u32 s46, s46, s47')
        a('s_mul_i32 s46, s46, 3125')
        a('s_add_u32 s46, s46, 31')
        a('s_lshr_b32 s46, s46, 5')
        a('s_lshl_b32 s46, s46, 7')
        a('s_and_b32 s45, s45, 0xffff')
        a('s_mov_b32 s48, s44')
        a('s_mov_b32 s49, s45')
        a('s_mov_b32 s50, %d' % (N * 128))
        a('s_mov_b32 s51, 0x20000')
        a('v_lshlrev_b32 v40, 4, v0')
        a('buffer_load_dwordx4 v[56:59], v40, s[48:51], s46 offen')
    a('s_mov_b64 exec, s[16:17]')
    a('s_cbranch_execz K1_NOEDGE1')
    stamp(1)
    if not opts.get('dstfirst', 1): a('s_waitcnt vmcnt(%d)' % (3 if opts.get('xpre', 1) else 2))
    stamp(2)
    for k in range(4):
        a(f'v_mul_hi_u32 v{16+k}, v{4+k}, s40')
    for k in range(4):
        a(f'v_lshlrev_b32 v{20+k}, 2, v{16+k}')
        a(f'ds_add_rtn_u32 v{24+k}, v{20+k}, v15 offset:{K1_HIST}')
    for k in range(4):
        a(f'v_mul_u32_u24 v{28+k}, s41, v{16+k}')
        a(f'v_add_u32 v{28+k}, 31, v{28+k}')
        a(f'v_lshrrev_b32 v{28+k}, 5, v{28+k}')
        a(f'v_sub_u32 v{28+k}, v{4+k}, v{28+k}')
        a(f'v_lshlrev_b32 v{33+2*k}, 2, v{28+k}')
    a.label('K1_NOEDGE1')
    a('s_mov_b64 exec, -1')
    a('s_waitcnt lgkmcnt(0)')
    stamp(3)
    a('s_barrier')
    stamp(4)
    a('s_cmp_lg_u32 s3, 0')
    a('s_cbranch_scc1 K1_SCANDONE')
    a('v_lshlrev_b32 v40, 4, v0')
    a('ds_read_b128 v[44:47], v40 offset:%d' % K1_HIST)
    a('v_lshlrev_b32 v41, 12, v0')
    a('s_lshl_b32 s15, s2, 2')
    a('v_add_u32 v41, s15, v41')
    a('s_waitcnt lgkmcnt(0)')
    a('v_add_u32 v48, v44, v45')
    a('v_add_u32 v49, v48, v46')
    a('v_add_u32 v50, v49, v47')
    a('v_mov_b32 v51, v50')
    wave_scan(a, 'v_add_u32', 51)
    a('v_sub_u32 v52, v51, v50')
    a('v_add_u32 v53, v52, v44')
    a('v_add_u32 v54, v52, v48')
    a('v_add_u32 v55, v52, v49')
    a('ds_write_b128 v40, v[52:55] offset:%d' % K1_HIST)
    if not opts.get('w0late', 1): a('s_waitcnt vmcnt(%d)' % (1 if opts.get('xpre', 1) else 0))
    a('s_mul_i32 s15, s2, %d' % CH)
    a('s_mov_b32 s43, %d' % (WS_TAB2 - WS_TAB))
    for k in range(4):
        a(f'buffer_store_dword v{44+k}, v41, s[36:39], s43 offen offset:{k*1024}' + (' sc1' if opts.get('tabst', 0) else ''))
        a(f'v_min_u32 v{48+k}, 0xff, v{44+k}')
        a(f'v_add_u32 v{52+k}, s15, v{52+k}')
        a(f'v_lshl_or_b32 v{48+k}, v{48+k}, 24, v{52+k}')
        a(f'buffer_store_dword v{48+k}, v41, s[36:39], 0 offen offset:{k*1024}' + (' sc1' if opts.get('tabst', 0) else ''))
    a.label('K1_SCANDONE')
    a('s_waitcnt lgkmcnt(0)')
    a('s_barrier')
    stamp(5)
    a('s_mov_b64 exec, s[16:17]')
    a('s_cbranch_execz K1_NOEDGE2')
    for k in range(4):
        a(f'ds_read_b32 v{28+k}, v{20+k} offset:{K1_HIST}')
    a('s_cmp_eq_u32 s3, 0')
    a('s_cbranch_scc1 K1_W0')
    a('s_waitcnt vmcnt(%d)' % (1 if opts.get('xpre', 1) else 0))
    a('s_branch K1_HAVE')
    a.label('K1_W0')
    a('s_waitcnt vmcnt(%d)' % (9 if opts.get('xpre', 1) else 8))
    a.label('K1_HAVE')
    a('s_mov_b32 s42, 0xffff0000')
    a('v_lshl_or_b32 v32, v12, 16, v8')
    a('v_and_or_b32 v34, v12, s42, v9')
    a('v_lshl_or_b32 v36, v13, 16, v10')
    a('v_and_or_b32 v38, v13, s42, v11')
    for k in range(4):
        a(f's_waitcnt lgkmcnt({3 if k == 0 else 3})')
        a(f'v_add_lshl_u32 v{28+k}, v{28+k}, v{24+k}, 3')
        a(f'ds_write_b64 v{28+k}, v[{32+2*k}:{33+2*k}] offset:{K1_STAGE}')
    a.label('K1_NOEDGE2')
    a('s_mov_b64 exec, -1')
    a('v_lshlrev_b32 v2, 4, v0')
    a('v_add_u32 v3, %d, v2' % (RECB // 2))
    a('v_cmp_gt_u32 vcc, %d, v0' % (CH // 4))
    a('s_waitcnt lgkmcnt(0)')
    stamp(6)
    a('s_barrier')
    stamp(7)
    a('s_and_saveexec_b64 s[18:19], vcc')
    a('s_cbranch_execz K1_END')
    a('ds_read_b128 v[4:7], v2 offset:%d' % K1_STAGE)
    a('ds_read_b128 v[8:11], v2 offset:%d' % (K1_STAGE + RECB // 2))
    a('s_waitcnt lgkmcnt(1)')
    sfx = {0: '', 1: ' sc1', 2: ' nt', 3: ' sc0 sc1', 4: ' sc1 nt'}[opts.get('k1st', 1)]
    a('buffer_store_dwordx4 v[4:7], v2, s[32:35], 0 offen' + sfx)
    a('s_waitcnt lgkmcnt(0)')
    a('buffer_store_dwordx4 v[8:11], v3, s[32:35], 0 offen' + sfx)
    if opts.get('endwait', 1): a('s_waitcnt vmcnt(0)')
    if ST:
        stamp(8)
        a('s_waitcnt vmcnt(0)')
        stamp(9)
        a('s_mul_i32 s12, s2, 16')
        a('s_add_u32 s12, s12, s3')
        a('s_lshl_b32 s12, s12, 8')
        a('s_add_u32 s12, s12, 0x1100000')
        a('s_add_u32 s32, s10, s12')
        a('s_addc_u32 s33, s11, 0')
        a('s_and_b32 s33, s33, 0xffff')
        a('s_mov_b32 s34, 256')
        a('s_mov_b64 exec, -1')
        a('v_and_b32 v4, 63, v0')
        a('v_lshlrev_b32 v4, 2, v4')
        a('buffer_store_dword v60, v4, s[32:35], 0 offen')
    if opts.get('dbgtime'):
        a('s_waitcnt vmcnt(0)')
        a('s_memrealtime s[54:55]')
        a('s_waitcnt lgkmcnt(0)')
        a('s_cmp_ge_u32 s2, 8')
        a('s_cbranch_scc1 K1_END')
        a('s_cmp_lg_u32 s3, 0')
        a('s_cbranch_scc1 K1_END')
        a('v_mov_b32 v20, s54')
        a('s_lshl_b32 s56, s2, 2')
        a('s_add_u32 s56, s56, 0x1200100')
        a('v_mov_b32 v22, s56')
        a('s_mov_b64 exec, 1')
        a('global_store_dword v22, v20, s[10:11]')
    a('s_endpgm')
    a.label('K1_FRAG')
    if opts.get('codepre', 0):
        a('s_cmp_lt_u32 s2, 32')
        a('s_cbranch_scc1 K1_FRAG2')
        a('s_cmp_ge_u32 s2, 64')
        a('s_cbranch_scc1 K1_END')
        a('s_getpc_b64 s[12:13]')
        a.label('K1_PCREF')
        a('s_add_u32 s12, s12, gs_main_kernel-K1_PCREF')
        a('s_addc_u32 s13, s13, 0')
        a('v_and_b32 v1, 63, v0')
        a('v_lshlrev_b32 v2, 4, v1')
        for i in range(opts.get('codekb', 20)):
            a(f'global_load_dwordx4 v[4:7], v2, s[12:13]')
            a('v_add_u32 v2, 1024, v2')
        a('s_endpgm')
        a.label('K1_FRAG2')
    a('s_cmp_ge_u32 s2, 32')
    a('s_cbranch_scc1 K1_END')
    if opts.get('fragbar', 1):
        a('s_barrier')
    a('s_load_dwordx4 s[12:15], s[0:1], 32')
    a('s_load_dwordx4 s[16:19], s[0:1], 56')
    a('s_lshr_b32 s20, s2, 3')
    a('s_waitcnt lgkmcnt(0)')
    a('s_mov_b32 s22, s14')
    a('s_mov_b32 s23, s15')
    a('s_cmp_eq_u32 s20, 1')
    a('s_cselect_b32 s22, s18, s22')
    a('s_cselect_b32 s23, s19, s23')
    a('s_cmp_eq_u32 s20, 2')
    a('s_cselect_b32 s22, s12, s22')
    a('s_cselect_b32 s23, s13, s23')
    a('s_cmp_eq_u32 s20, 3')
    a('s_cselect_b32 s22, s16, s22')
    a('s_cselect_b32 s23, s17, s23')
    srd(a, 24, 22, 64 * 64 * 2)
    srd_off(a, 28, 10, WS_FRAG, 32 * 1024)
    a('s_and_b32 s32, s2, 3')
    a('s_lshr_b32 s33, s2, 2')
    a('s_and_b32 s33, s33, 1')
    a('s_lshl_b32 s32, s32, 11')
    a('s_lshl_b32 s33, s33, 6')
    a('s_add_u32 s32, s32, s33')
    a('v_and_b32 v1, 63, v0')
    a('v_and_b32 v2, 31, v1')
    a('v_lshlrev_b32 v2, 1, v2')
    a('v_lshrrev_b32 v3, 5, v1')
    a('v_lshlrev_b32 v3, 10, v3')
    a('v_add3_u32 v2, v2, v3, s32')
    for i in range(8):
        a(f'buffer_load_ushort v{8+i}, v2, s[24:27], 0 offen offset:{i*128}')
    a('s_mov_b32 s34, 1.0')
    a('s_and_b32 s36, s20, 1')
    a('s_cmp_eq_u32 s36, 0')
    a('s_cselect_b32 s34, 0x%x, s34' % LOG2E)
    a('s_waitcnt vmcnt(0)')
    for i in range(8):
        a(f'v_lshlrev_b32 v{8+i}, 16, v{8+i}')
        a(f'v_mul_f32 v{8+i}, s34, v{8+i}')
    for i in range(4):
        a(f'v_cvt_pk_bf16_f32 v{16+i}, v{8+2*i}, v{9+2*i}')
    a('v_lshlrev_b32 v4, 4, v1')
    a('s_lshl_b32 s35, s2, 10')
    a('v_add_u32 v4, s35, v4')
    a('buffer_store_dwordx4 v[16:19], v4, s[28:31], 0 offen')
    if opts.get('endwait', 1): a('s_waitcnt vmcnt(0)')
    a.label('K1_END')
    a('s_endpgm')

def gen_k2(a, opts):
    STAMP = opts.get('stamp', False)
    vLANE = 1; BC = 2
    WB = 4; WV = 36; AX = 68
    GA = 84; HA = 100; GB = 116; HB = 132
    PP = 148; TT_ = 156; ZZ = 164
    DEN = 172; NUM = 176
    AE = [180, 184]; BE = 188; R0 = 192
    QA = [196, 200]
    EN = 204; RA = 208; CO = 212
    pEN = 216; pEE = 217; pQI = 218; pQF = 219
    C4 = 220; SEL = [221, 222]; EE = 223; QF = 224
    F0 = 225; F1 = 226; F2 = 252; F3 = 227
    tA = 227; tB = 228; tC = 229; tD = 230; tE = 231; tF = 232; tG = 233; tH = 234; tI = 235
    TQ = 236; TR = 240
    sidA = 244; jA = 245; sidR = 246; iR4 = 247
    vST = 253; GF = 249; GD = 250
    PB = 228; TB = 236; ZB = 244
    RC = 252; RKC = 254; tJ = 255
    nvgpr = 256
    REC = PP; RK = GB; SG = HB
    G_ = [GA, GB]; H_ = [HA, HB]
    nOFF0 = AE[0]+0 if False else QA[0]; nOFF1 = QA[0]+1; nEND0 = QA[0]+2; nEND1 = QA[0]+3; nROW0 = QA[1]
    S = Regs('s', 3, 102)
    sX = S.alloc('x', 2, 2); sWC = S.alloc('wc', 2, 2); sOUT = S.alloc('out', 2, 2); sWS = S.alloc('ws', 2, 2)
    rX = S.alloc('rX', 4, 4); rT = S.alloc('rT', 4, 4); rR = S.alloc('rR', 4, 4); rF = S.alloc('rF', 4, 4)
    sW = S.alloc('w'); sNS = S.alloc('ns'); sNN = S.alloc('nn')
    sP = S.alloc('pass'); sNP = S.alloc('npass')
    sL = S.alloc('L'); sCNT = S.alloc('cnt'); sLA = S.alloc('La'); sLB = S.alloc('Lb'); sSO = S.alloc('streamoff')
    sC = S.alloc('C', 2, 2)
    sF = [S.alloc('F0', 2, 2), S.alloc('F1', 2, 2)]
    sANY = [S.alloc('any0'), S.alloc('any1')]
    s128 = S.alloc('c128'); sLO = S.alloc('lo16'); sHI = S.alloc('hi16')
    t0 = S.alloc('t0'); t1 = S.alloc('t1'); t2 = S.alloc('t2', 1, 2); t3 = S.alloc('t3')
    sSV = S.alloc('sv', 2, 2); sSV2 = S.alloc('sv2', 2, 2)
    sDB = S.alloc('dmabase'); sSWAP = S.alloc('swap')
    sDBG = S.alloc('dbg', 2, 2) if opts.get('dbgtime') else None
    sT0 = S.alloc('dbgt0', 2, 2) if opts.get('dbgtime') else None
    sT1 = S.alloc('dbgt1') if opts.get('dbgtime') else None
    sT2 = S.alloc('dbgt2') if opts.get('dbgtime') else None
    MK = S.alloc('MK', 32, 2)
    MKC = S.alloc('MKC', 2, 2)
    rO = rT
    nsgpr = S.hi
    def stamp(i):
        if not STAMP: return
        a(f's_memtime s[{t2}:{t3}]')
        a('s_waitcnt lgkmcnt(0)')
        a(f'v_writelane_b32 v{vST}, s{t2}, {i}')
    XB = 4096

    a.raw('.p2align 8')
    a.raw('.globl gs_main_kernel')
    a.raw('.type gs_main_kernel,@function')
    a.label('gs_main_kernel')
    a('s_cmp_ge_u32 s2, 256')
    a('s_cbranch_scc1 K2_END')
    a(f's_load_dwordx2 s[{sWS}:{sWS+1}], s[0:1], 88')
    a(f's_load_dwordx2 s[{sX}:{sX+1}], s[0:1], 0')
    a(f's_load_dwordx2 s[{sWC}:{sWC+1}], s[0:1], 48')
    a(f's_load_dwordx2 s[{sOUT}:{sOUT+1}], s[0:1], 72')
    a('s_and_b32 s3, s2, 7')
    a('s_lshr_b32 s2, s2, 3')
    a('s_lshl_b32 s3, s3, 5')
    a('s_add_u32 s2, s2, s3')
    if opts.get('dbgtime'):
        a(f's_load_dwordx2 s[{sDBG}:{sDBG+1}], s[0:1], 80')
        a(f's_memrealtime s[{sT0}:{sT0+1}]')
        a('s_waitcnt lgkmcnt(0)')
    if STAMP:
        a(f'v_mov_b32 v{vST}, 0')
    stamp(0)
    if STAMP:
        a(f's_memrealtime s[{t2}:{t3}]')
        a('s_waitcnt lgkmcnt(0)')
        a(f'v_writelane_b32 v{vST}, s{t2}, 11')
    a(f'v_lshrrev_b32 v{tA}, 6, v0')
    a(f'v_and_b32 v{vLANE}, 63, v0')
    a(f'v_readfirstlane_b32 s{sW}, v{tA}')
    a(f'v_lshrrev_b32 v{sidA}, 5, v{vLANE}')
    if opts.get('proprio'):
        a('s_nop 2')
        a(f's_cmp_ge_u32 s{sW}, 4')
        a('s_cbranch_scc0 K2_PP0')
        a('s_setprio 1')
        a.label('K2_PP0')
    a(f's_lshl_b32 s{t1}, s2, 10')
    a(f's_add_u32 s{t1}, s{t1}, {WS_TAB}')
    a(f's_lshl_b32 s{t0}, s{sW}, 1')
    a(f'v_add_u32 v{sidA}, s{t0}, v{sidA}')
    a(f'v_lshrrev_b32 v{tD}, 4, v{vLANE}')
    a(f'v_lshlrev_b32 v{tD}, 5, v{tD}')
    a(f's_lshl_b32 s{t0}, s{sW}, 7')
    a(f'v_add_u32 v{tD}, s{t0}, v{tD}')
    a(f'v_lshlrev_b32 v{tA}, 4, v{vLANE}')
    a('s_waitcnt lgkmcnt(0)')
    srd_off(a, rT, sWS, f's{t1}', 1024)
    for i in range(2):
        a(f'buffer_load_dwordx4 v[{SG+4*i}:{SG+4*i+3}], v{tD}, s[{rT}:{rT+3}], 0 offen offset:{16*i}')
    a(f's_mul_i32 s{t0}, s2, 3125')
    a(f's_add_u32 s{sNS}, s{t0}, 31')
    a(f's_lshr_b32 s{sNS}, s{sNS}, 5')
    a(f's_add_u32 s{t0}, s{t0}, {3125+31}')
    a(f's_lshr_b32 s{t0}, s{t0}, 5')
    a(f's_sub_u32 s{sNN}, s{t0}, s{sNS}')
    a(f's_sub_u32 s{rX}, s{sX}, {XB}')
    a(f's_subb_u32 s{rX+1}, s{sX+1}, 0')
    a(f's_and_b32 s{rX+1}, s{rX+1}, 0xffff')
    a(f's_mov_b32 s{rX+2}, {N*128 + XB}')
    a(f's_mov_b32 s{rX+3}, 0x20000')
    srd_off(a, rF, sWS, WS_FRAG, 32 * 1024)
    a(f's_lshl_b32 s{sDB}, s{sW}, 12')
    a(f's_add_u32 s{sDB}, s{sDB}, {L_DMA}')
    a(f'v_bfe_u32 v{tE}, v{vLANE}, 4, 1')
    a(f'v_and_b32 v{tF}, 7, v{vLANE}')
    a(f'v_xor_b32 v{tE}, v{tE}, v{tF}')
    a(f'v_lshlrev_b32 v{tE}, 4, v{tE}')
    for i in range(4):
        if i: a(f'v_xor_b32 v{tF}, {32*i}, v{tE}')
        a(f'v_add_u32 v{CO+i}, {XB - 1024*i}, v{tF if i else tE}')
    a(f'v_bfe_u32 v{jA}, v{vLANE}, 3, 2')
    a(f'v_lshrrev_b32 v{tF}, 5, v{vLANE}')
    a(f'v_lshlrev_b32 v{tE}, 3, v{jA}')
    a(f'v_lshl_add_u32 v{tE}, v{tF}, 2, v{tE}')
    a(f's_lshr_b32 s{t0}, s{sW}, 1')
    a(f's_lshl_b32 s{t1}, s{t0}, 5')
    a(f's_add_u32 s{t1}, s{t1}, s{sNS}')
    a(f's_and_b32 s{t2}, s{sW}, 1')
    a(f's_lshl_b32 s{t2}, s{t2}, 1')
    a(f's_add_u32 s{t1}, s{t1}, s{t2}')
    a(f'v_add_u32 v{tE}, s{t1}, v{tE}')
    a(f'v_lshlrev_b32 v{tE}, 7, v{tE}')
    a(f's_cmp_eq_u32 s{t2}, 0')
    a(f's_cbranch_scc0 K2_XI2')
    a(f'v_add_u32 v{tH}, v{tE}, v{CO}')
    a(f'v_add_u32 v{tI}, v{tE}, v{CO+1}')
    a('s_branch K2_XI')
    a.label('K2_XI2')
    a(f'v_add_u32 v{tH}, v{tE}, v{CO+2}')
    a(f'v_add_u32 v{tI}, v{tE}, v{CO+3}')
    a(f'v_add_u32 v{tH}, 2048, v{tH}')
    a(f'v_add_u32 v{tI}, 2048, v{tI}')
    a.label('K2_XI')
    a(f'v_add_u32 v{tI}, 128, v{tI}')
    a(f'v_and_b32 v{C4}, 31, v{vLANE}')
    def staging():
        a(f's_lshr_b32 s{t0}, s{sW}, 1')
        a(f's_lshl_b32 s{t0}, s{t0}, 12')
        a(f's_and_b32 s{t2}, s{sW}, 1')
        a(f's_lshl_b32 s{t2}, s{t2}, 11')
        a(f's_add_u32 s{t0}, s{t0}, s{t2}')
        a(f's_add_u32 s{t0}, s{t0}, {L_DMA}')
        a(f's_mov_b32 m0, s{t0}')
        a(f'v_lshlrev_b32 v{tA}, 4, v{vLANE}')
        if not opts.get('noxown'):
            a(f'buffer_load_dwordx4 v{tH}, s[{rX}:{rX+3}], 0 offen lds')
            a(f'buffer_load_dwordx4 v{tI}, s[{rX}:{rX+3}], 0 offen offset:1024 lds')
        a(f's_lshl_b32 s{t0}, s{sW}, 11')
        a(f's_add_u32 s{t1}, s{t0}, {L_DMA + 4*4096}')
        a(f's_mov_b32 m0, s{t1}')
        a(f's_add_u32 s{t2}, s{t0}, {16*1024}')
        a(f'buffer_load_dwordx4 v{tA}, s[{rF}:{rF+3}], s{t2} offen lds')
        a(f'buffer_load_dwordx4 v{tA}, s[{rF}:{rF+3}], s{t2} offen offset:1024 lds')
        a(f's_add_u32 s{t1}, s{t0}, {L_WST}')
        a(f's_mov_b32 m0, s{t1}')
        a('s_nop 0')
        a(f'buffer_load_dwordx4 v{tA}, s[{rF}:{rF+3}], s{t0} offen lds')
        a(f'buffer_load_dwordx4 v{tA}, s[{rF}:{rF+3}], s{t0} offen offset:1024 lds')
        srd(a, rR, sWC, 128)
        a(f'v_lshlrev_b32 v{tE}, 1, v{C4}')
        if not opts.get('nowc'):
            a(f'buffer_load_ushort v{BC}, v{tE}, s[{rR}:{rR+3}], 0 offen')
            a(f'buffer_load_ushort v{BC+1}, v{tE}, s[{rR}:{rR+3}], 0 offen offset:64')
    staging()
    MKT = (MK + 3) // 4 * 4
    if opts.get('touch', 0):
        srd(a, MKT, sWS, NBK * RECB)
        a(f'v_and_b32 v{tE}, 3, v{vLANE}')
        a(f'v_lshlrev_b32 v{tE}, 21, v{tE}')
        a(f'buffer_load_dword v{F0}, v{tE}, s[{MKT}:{MKT+3}], 0 offen')
        srd(a, MKT + 4, sOUT, N * 128)
        a(f'v_and_b32 v{tE}, 1, v{vLANE}')
        a(f'v_lshlrev_b32 v{tE}, 21, v{tE}')
        a(f'buffer_load_dword v{F1}, v{tE}, s[{MKT+4}:{MKT+7}], 0 offen')
    def lds_init():
        a(f'v_lshlrev_b32 v{tE}, 4, v0')
        for i in range(4):
            a(f'v_mov_b32 v{TR+i}, 0xffff')
        a(f'ds_write_b128 v{tE}, v[{TR}:{TR+3}] offset:{L_ENT}')
        a(f's_cmp_ge_u32 s{sW}, {(ENT_QUADS - 512) // 64}')
        a(f's_cbranch_scc1 K2_I1{tag_i[0]}')
        a(f'ds_write_b128 v{tE}, v[{TR}:{TR+3}] offset:{L_ENT + 512*16}')
        a.label(f'K2_I1{tag_i[0]}')
        assert (ENT_QUADS - 512) % 64 == 0
        for i in range(4):
            a(f'v_mov_b32 v{TR+i}, {L_VIRT}')
        a(f'v_cmp_gt_u32 vcc, {ENT_QUADS // 4}, v0')
        a(f's_and_saveexec_b64 s[{sSV}:{sSV+1}], vcc')
        a(f'ds_write_b128 v{tE}, v[{TR}:{TR+3}] offset:{L_QI}')
        a(f's_mov_b64 exec, s[{sSV}:{sSV+1}]')
        a(f's_cmp_lg_u32 s{sW}, 0')
        a(f's_cbranch_scc1 K2_I2{tag_i[0]}')
        for i in range(4):
            a(f'v_mov_b32 v{TR+i}, 0')
        a(f'ds_write_b128 v{tE}, v[{TR}:{TR+3}] offset:{L_CNT}')
        a(f'v_add_u32 v{tE}, {L_VIRT + 512}, v{tE}')
        a('s_mov_b64 exec, 0xff')
        a(f'ds_write_b128 v{tE}, v[{TR}:{TR+3}]')
        a('s_mov_b64 exec, -1')
        a.label(f'K2_I2{tag_i[0]}')
        tag_i[0] += 1
    tag_i = [0]
    lds_init()
    a(f'v_and_b32 v{tE}, 3, v{vLANE}')
    a(f'v_lshlrev_b32 v{iR4}, 2, v{tE}')
    a(f'v_lshl_add_u32 v{RA}, v{tE}, 3, v{jA}')
    a(f'v_lshrrev_b32 v{tF}, 1, v{jA}')
    a(f'v_lshl_add_u32 v{tE}, v{tE}, 1, v{tF}')
    a(f'v_bfe_u32 v{tF}, v{vLANE}, 2, 1')
    a(f's_lshl_b32 s{t0}, s{sW}, 1')
    a(f'v_add_u32 v{sidR}, s{t0}, v{tF}')
    a(f'v_lshl_add_u32 v{RA}, v{tF}, 2, v{RA}')
    a(f'v_lshrrev_b32 v{tG}, 5, v{vLANE}')
    a(f'v_cmp_eq_u32 vcc, v{tF}, v{tG}')
    a(f'v_xor_b32 v{tE}, v{tE}, v{tG}')
    a(f'v_lshlrev_b32 v{tE}, 4, v{tE}')
    a(f'v_lshl_add_u32 v{RA}, v{RA}, 7, v{tE}')
    a(f'v_mov_b32 v{tF}, 0x3f80')
    a(f'v_cndmask_b32 v{tF}, 0, v{tF}, vcc')
    for q in range(4):
        a(f'v_cmp_eq_u32 vcc, {q}, v{jA}')
        a('s_nop 1')
        a(f'v_cndmask_b32 v{AE[0]+q}, 0, v{tF}, vcc')
        a(f'v_lshlrev_b32 v{AE[1]+q}, 16, v{AE[0]+q}')
    a(f'v_cmp_gt_u32 vcc, 32, v{vLANE}')
    a(f'v_mov_b32 v{tE}, 0x0a0c0100')
    a(f'v_mov_b32 v{tF}, 0x07060100')
    a(f'v_cndmask_b32 v{SEL[0]}, v{tE}, v{tF}, vcc')
    a(f'v_mov_b32 v{tE}, 0x03020a0c')
    a(f'v_mov_b32 v{tF}, 0x03020706')
    a(f'v_cndmask_b32 v{SEL[1]}, v{tE}, v{tF}, vcc')
    a(f's_mov_b32 s{sC}, 0x{C_SCALE:x}')
    a(f's_mov_b32 s{sC+1}, 0x{C_SCALE:x}')
    a(f's_mov_b32 s{s128}, 128')
    a(f's_mov_b32 s{sLO}, 0xffff')
    a(f's_mov_b32 s{sHI}, 0xffff0000')
    a(f'v_and_b32 v{tB}, 15, v{vLANE}')
    a(f'v_lshlrev_b32 v{tB}, 3, v{tB}')
    a(f'v_lshlrev_b32 v{C4}, 2, v{C4}')
    a('s_waitcnt vmcnt(%d) lgkmcnt(0)' % (2 if opts.get('touch', 0) else 0))
    stamp(1)
    a('s_barrier')
    srd(a, rR, sWS, NBK * RECB)
    def rec_loads(vk8, nit):
        for it in range(8):
            a(f'v_mad_u32_u24 v{RK+it}, v{SG+it}, 8, v{vk8}')
        for it in range(nit):
            a(f's_mov_b64 exec, s[{MK+2*it}:{MK+2*it+1}]')
            off = ' offset:128' if it >= 8 else ''
            sk = a.newlabel('skl') if (it >= 8 and opts.get('skipb', 1)) else None
            if sk: a(f's_cbranch_execz {sk}')
            a(f'buffer_load_dwordx2 v[{REC+2*it}:{REC+2*it+1}], v{RK+it%8}, s[{rR}:{rR+3}], 0 offen{off}')
            if sk: a.label(sk)
        a('s_mov_b64 exec, -1')
    a(f'v_lshrrev_b32 v{tC}, 3, v{tB}')
    a(f'v_add_u32 v{tD}, 16, v{tC}')
    for it in range(8):
        a(f'v_cmp_gt_u32_sdwa s[{MK+2*it}:{MK+2*it+1}], v{SG+it}, v{tC} src0_sel:BYTE_3 src1_sel:DWORD')
    for it in range(8):
        a(f'v_cmp_gt_u32_sdwa s[{MK+16+2*it}:{MK+16+2*it+1}], v{SG+it}, v{tD} src0_sel:BYTE_3 src1_sel:DWORD')
    stamp(25)
    rec_loads(tB, 16)
    stamp(26)
    a(f'v_max3_u32 v{tD}, v{SG}, v{SG+1}, v{SG+2}')
    a(f'v_max3_u32 v{tD}, v{tD}, v{SG+3}, v{SG+4}')
    a(f'v_max3_u32 v{tD}, v{tD}, v{SG+5}, v{SG+6}')
    a(f'v_max_u32 v{tD}, v{tD}, v{SG+7}')
    a(f'v_lshrrev_b32 v{tD}, 24, v{tD}')
    a(f'v_cmp_lt_u32 s[{sSV2}:{sSV2+1}], 32, v{tD}')
    a(f's_mov_b64 s[{MKC}:{MKC+1}], 0')
    a(f's_cmp_lg_u64 s[{sSV2}:{sSV2+1}], 0')
    a('s_cbranch_scc1 K2_CSEL')
    a.label('K2_CBACK')

    def gemm_issue():
        a(f's_lshr_b32 s{t0}, s{sW}, 1')
        a(f's_lshl_b32 s{t1}, s{t0}, 12')
        a(f's_add_u32 s{t1}, s{t1}, {L_DMA}')
        a(f'v_add_u32 v{tA}, s{t1}, v{RA}')
        a(f'v_xor_b32 v{tB}, 32, v{tA}')
        a(f'ds_read_b128 v[{AX}:{AX+3}], v{tA}')
        a(f'ds_read_b128 v[{AX+4}:{AX+7}], v{tB}')
        a(f'v_xor_b32 v{tB}, 64, v{tA}')
        a(f'v_xor_b32 v{tC}, 96, v{tA}')
        a(f'ds_read_b128 v[{AX+8}:{AX+11}], v{tB}')
        a(f'ds_read_b128 v[{AX+12}:{AX+15}], v{tC}')
        a(f's_and_b32 s{t2}, s{sW}, 1')
        a(f's_lshl_b32 s{t3}, s{t2}, 13')
        a(f's_add_u32 s{t3}, s{t3}, {L_DMA + 4*4096}')
        a(f'v_lshlrev_b32 v{GF}, 4, v{vLANE}')
        a(f'v_add_u32 v{GF}, s{t3}, v{GF}')
        for f in range(4):
            a(f'ds_read_b128 v[{SG+4*f}:{SG+4*f+3}], v{GF} offset:{f*1024}')
        for f in range(4):
            a(f'ds_read_b128 v[{RK+4*f}:{RK+4*f+3}], v{GF} offset:{(4+f)*1024}')
        a(f's_mul_i32 s{t1}, s{t0}, {32*ROWB}')
        a(f's_lshl_b32 s{t3}, s{t2}, 7')
        a(f's_add_u32 s{t1}, s{t1}, s{t3}')
        a(f's_add_u32 s{t1}, s{t1}, {L_ACC + 512}')
        a(f'v_lshrrev_b32 v{GD}, 5, v{vLANE}')
        a(f'v_mul_u32_u24 v{GD}, {4*ROWB}, v{GD}')
        a(f'v_add3_u32 v{GD}, v{GD}, v{C4}, s{t1}')
    def gemm_mid():
        a('s_waitcnt lgkmcnt(0)')
        for kp in range(4):
            c = '0' if kp == 0 else f'v[{GA}:{GA+15}]'
            a(f'v_mfma_f32_32x32x16_bf16 v[{GA}:{GA+15}], v[{AX+4*kp}:{AX+4*kp+3}], v[{SG+4*kp}:{SG+4*kp+3}], {c}')
            c = '0' if kp == 0 else f'v[{HA}:{HA+15}]'
            a(f'v_mfma_f32_32x32x16_bf16 v[{HA}:{HA+15}], v[{AX+4*kp}:{AX+4*kp+3}], v[{RK+4*kp}:{RK+4*kp+3}], {c}')
    def gemm_mid2():
        a('s_nop 7')
        a('s_nop 3')
    def w_frags():
        a(f'v_lshlrev_b32 v{GF}, 4, v{vLANE}')
        a(f'v_add_u32 v{GF}, {L_WST}, v{GF}')
        for f in range(16):
            dst = (WB + 4*f) if f < 8 else (WV + 4*(f-8))
            if f == 12: a('s_waitcnt lgkmcnt(8)')
            a(f'ds_read_b128 v[{dst}:{dst+3}], v{GF} offset:{f*1024}')
    def gemm_store(tag):
        for i in range(16):
            a(f'v_cvt_pk_bf16_f32 v{GA+i}, v{GA+i}, v{HA+i}')
        a(f's_lshr_b32 s{t0}, s{sW}, 1')
        a(f's_cmp_eq_u32 s{t0}, 3')
        a(f's_cbranch_scc1 K2_RT3{tag}')
        for vv in range(16):
            if vv == 12: a('s_waitcnt lgkmcnt(8)')
            a(f'ds_write_b32 v{GD}, v{GA+vv} offset:{(8*(vv//4) + vv%4) * ROWB}')
        a(f's_branch K2_RTD{tag}')
        a.label(f'K2_RT3{tag}')
        a('s_mov_b32 exec_hi, 0')
        for vv in range(2):
            a(f'ds_write_b32 v{GD}, v{GA+vv} offset:{vv * ROWB}')
        a('s_mov_b64 exec, -1')
        a.label(f'K2_RTD{tag}')
    def consts():
        a(f'v_add_u32 v{RA}, s{sDB}, v{RA}')
        for kp in range(1, 4):
            a(f'v_xor_b32 v{RA+kp}, {32*kp}, v{RA}')
        a(f's_mov_b32 s{t3}, 0x{LOG2E:x}')
        for cc in range(2):
            a(f'v_lshlrev_b32 v{BC+cc}, 16, v{BC+cc}')
            a(f'v_mul_f32 v{BC+cc}, s{t3}, v{BC+cc}')
        a(f'v_cvt_pk_bf16_f32 v{BC}, 0, v{BC}')
        a(f'v_cvt_pk_bf16_f32 v{BC+1}, v{BC+1}, 0')
        a(f'v_cmp_gt_u32 vcc, 32, v{vLANE}')
        a(f'v_mov_b32 v{tG}, 0xb2000000')
        a(f'v_mov_b32 v{tH}, 0xb200')
        a(f'v_cndmask_b32 v{BC}, v{tG}, v{BC}, vcc')
        a(f'v_cndmask_b32 v{BC+1}, v{tH}, v{BC+1}, vcc')

    def hist():
        a(f'v_mov_b32 v{tE}, 1')
        for it in range(NIT):
            if it == 12: a('s_waitcnt lgkmcnt(8)')
            a(f's_mov_b64 exec, s[{MK+2*it}:{MK+2*it+1}]')
            sk = a.newlabel('skh') if (it >= 8 and opts.get('skipb', 1)) else None
            if sk: a(f's_cbranch_execz {sk}')
            a(f'ds_add_rtn_u32 v{RK+it}, v{REC+2*it+1}, v{tE} offset:{L_CNT}')
            if sk: a.label(sk)
        sk = a.newlabel('skhc')
        a(f's_mov_b64 exec, s[{MKC}:{MKC+1}]')
        a(f's_cbranch_execz {sk}')
        a(f'ds_add_rtn_u32 v{RKC}, v{RC+1}, v{tE} offset:{L_CNT}')
        a.label(sk)
        a('s_mov_b64 exec, -1')

    def scan_nodes(tag, mid=None):
        a(f'v_lshlrev_b32 v{tA}, 3, v{vLANE}')
        a(f'ds_read_b64 v[{TQ}:{TQ+1}], v{tA} offset:{L_CNT}')
        a(f'v_mul_u32_u24 v{nROW0}, {2*ROWB}, v{vLANE}')
        a(f'v_add_u32 v{nROW0}, {L_ACC}, v{nROW0}')
        if mid: mid()
        else: a('s_waitcnt lgkmcnt(0)')
        a(f'v_add_u32 v{tE}, 3, v{TQ}')
        a(f'v_add_u32 v{tF}, 3, v{TQ+1}')
        a(f'v_and_b32 v{tE}, -4, v{tE}')
        a(f'v_and_b32 v{tF}, -4, v{tF}')
        a(f'v_add_u32 v{tC}, v{tE}, v{tF}')
        a(f'v_max_u32 v{tB}, v{tE}, v{tF}')
        a(f'v_mov_b32 v{tD}, v{tC}')
        wave_scan(a, 'v_add_u32', tD)
        a(f'v_sub_u32 v{nOFF0}, v{tD}, v{tC}')
        a(f'v_readlane_b32 s{t1}, v{tD}, 63')
        a(f'v_add_u32 v{nOFF1}, v{nOFF0}, v{tE}')
        a(f'v_lshlrev_b32 v{TQ+2}, 2, v{nOFF0}')
        a(f'v_lshlrev_b32 v{TQ+3}, 2, v{nOFF1}')
        a(f'ds_write_b64 v{tA}, v[{TQ+2}:{TQ+3}] offset:{L_TAB}')
        a(f'v_mov_b32 v{nEND0}, v{nOFF1}')
        a(f'v_add_u32 v{nEND1}, v{nOFF1}, v{tF}')
        a(f's_add_u32 s{t1}, s{t1}, 127')
        a(f's_lshr_b32 s{t1}, s{t1}, 7')
        a(f's_lshr_b32 s{t0}, s{t1}, 1')
        a(f's_sub_u32 s{t1}, s{t1}, s{t0}')
        a(f's_lshl_b32 s{sLA}, s{t1}, 2')
        a(f's_lshl_b32 s{sLB}, s{t0}, 2')
        a(f's_sub_u32 s{sSO}, s{sLA}, s{sLB}')
        a(f's_lshl_b32 s{sSO}, s{sSO}, 3')
        a(f's_cmp_lt_u32 s{sW}, 4')
        a(f's_cselect_b32 s{sL}, s{sLA}, s{sLB}')
        a(f's_cselect_b32 s{sSO}, 0, s{sSO}')
        a(f's_lshr_b32 s{sCNT}, s{sL}, 2')
        a(f's_sub_u32 s{sCNT}, s{sCNT}, 1')
    def qi_fill(tag, split, nwq=8):
        B0 = TQ + 2; B1 = TQ + 3; V0 = TR + 1; V1 = TR + 2
        a(f'v_max_u32 v{TR}, v{tE}, v{tF}')
        if split:
            a(f'v_cvt_f32_u32 v{tA}, s{sLA}')
            a(f'v_cvt_f32_u32 v{tD}, s{sLB}')
            a(f'v_rcp_f32 v{tA}, v{tA}')
            a(f'v_rcp_f32 v{tD}, v{tD}')
            a(f's_lshl_b32 s{t0}, s{sLA}, 5')
            a(f's_sub_u32 s{t1}, s{sLA}, s{sLB}')
            a(f's_lshl_b32 s{t1}, s{t1}, 5')
            a(f'v_mul_f32 v{tA}, 0.25, v{tA}')
            a(f'v_mul_f32 v{tD}, 0.25, v{tD}')
            for (OFF, nx, B, Vv) in ((nOFF0, tB, B0, V0), (nOFF1, tC, B1, V1)):
                a(f'v_cmp_gt_u32 vcc, s{t0}, v{OFF}')
                a(f'v_subrev_u32 v{tG}, s{t1}, v{OFF}')
                a('s_nop 0')
                a(f'v_cndmask_b32 v{tG}, v{tG}, v{OFF}, vcc')
                a(f'v_cndmask_b32 v{tH}, v{tD}, v{tA}, vcc')
                a(f'v_cvt_f32_u32 v{tG}, v{tG}')
                a(f'v_add_f32 v{tG}, 2.0, v{tG}')
                a(f'v_mul_f32 v{tG}, v{tH}, v{tG}')
                a(f'v_cvt_u32_f32 v{nx}, v{tG}')
                a(f'v_add_u32 v{nx}, 1, v{nx}')
                a(f'v_mov_b32 v{tG}, s{sLB}')
                a(f'v_mov_b32 v{tH}, s{sLA}')
                a(f'v_cndmask_b32 v{tG}, v{tG}, v{tH}, vcc')
                a(f'v_mov_b32 v{tH}, s{t1}')
                a(f'v_cndmask_b32 v{tH}, v{tH}, 0, vcc')
                a(f'v_lshlrev_b32 v{tG}, 2, v{tG}')
                a(f'v_mad_u32_u24 v{B}, v{nx}, v{tG}, v{tH}')
            a(f's_movk_i32 s{t1}, {VROWB}')
            a(f'v_mov_b32 v{tD}, {L_VIRT}')
            a(f'v_mad_u32_u24 v{V0}, v{tB}, s{t1}, v{tD}')
            a(f'v_mad_u32_u24 v{V1}, v{tC}, s{t1}, v{tD}')
            a(f'v_add_u32 v{tD}, {ROWB}, v{nROW0}')
            for nd, (B, Vv, END, nx) in enumerate(((B0, V0, nEND0, tB), (B1, V1, nEND1, tC))):
                lab = a.newlabel('nosplit')
                a(f'v_lshrrev_b32 v{tG}, {1 if nwq == 8 else 2}, v{nx}')
                a(f'v_cmp_lt_u32 vcc, v{B}, v{END}')
                a(f'v_cmp_eq_u32 s[{sSV}:{sSV+1}], s{sW}, v{tG}')
                a(f's_and_b64 vcc, vcc, s[{sSV}:{sSV+1}]')
                a(f's_cbranch_scc0 {lab}')
                lp = a.newlabel('splitlp')
                a.label(lp)
                a(f's_ff1_i32_b64 s{t0}, vcc')
                a(f's_bitset0_b64 vcc, s{t0}')
                a(f'v_readlane_b32 s{t2}, v{nROW0 if nd == 0 else tD}, s{t0}')
                a(f'v_readlane_b32 s{t3}, v{Vv}, s{t0}')
                a(f'v_lshrrev_b32 v{tG}, 0, v{C4}')
                a('s_mov_b32 exec_hi, 0')
                a(f'v_add_u32 v{tH}, s{t2}, v{tG}')
                a(f'ds_read_b32 v{tI}, v{tH} offset:512')
                a(f'v_add_u32 v{tH}, s{t3}, v{tG}')
                a(f'v_mov_b32 v{tG}, s{t2}')
                a(f'v_mov_b32 v{tA}, s{t3}')
                a(f'ds_write_b32 v{tG}, v{tA} offset:768')
                a('s_waitcnt lgkmcnt(1)')
                a(f'ds_write_b32 v{tH}, v{tI} offset:512')
                a('s_mov_b64 exec, -1')
                a(f's_cmp_lg_u64 vcc, 0')
                a(f's_cbranch_scc1 {lp}')
                a.label(lab)
        a(f's_lshl_b32 s{t0}, s{sW}, 2')
        a(f'v_add_u32 v{tA}, s{t0}, v{nOFF0}')
        a(f'v_add_u32 v{tB}, s{t0}, v{nOFF1}')
        a(f'v_add_u32 v{tC}, {ROWB}, v{nROW0}')
        lp = f'K2_QF{tag}'
        a.label(lp)
        a(f's_add_u32 s{t1}, s{t0}, 4')
        a(f'v_cmp_eq_u32 s[{sSV}:{sSV+1}], s{t1}, v{tE}')
        a(f'v_cmp_eq_u32 s[{sSV2}:{sSV2+1}], s{t1}, v{tF}')
        if split:
            a(f'v_add_u32 v{tG}, 4, v{tA}')
            a(f'v_add_u32 v{tH}, 4, v{tB}')
            a(f'v_cmp_eq_u32 vcc, v{tG}, v{B0}')
            a(f's_or_b64 s[{sSV}:{sSV+1}], s[{sSV}:{sSV+1}], vcc')
            a(f'v_cmp_eq_u32 vcc, v{tH}, v{B1}')
            a(f's_or_b64 s[{sSV2}:{sSV2+1}], s[{sSV2}:{sSV2+1}], vcc')
            a(f'v_cmp_ge_u32 vcc, v{tA}, v{B0}')
            a('s_nop 1')
            a(f'v_cndmask_b32 v{tG}, v{nROW0}, v{V0}, vcc')
            a(f'v_cmp_ge_u32 vcc, v{tB}, v{B1}')
            a('s_nop 1')
            a(f'v_cndmask_b32 v{tH}, v{tC}, v{V1}, vcc')
        else:
            a(f'v_mov_b32 v{tG}, v{nROW0}')
            a(f'v_mov_b32 v{tH}, v{tC}')
        a(f'v_or_b32 v{tD}, 0x80000000, v{tG}')
        a(f'v_or_b32 v{tI}, 0x80000000, v{tH}')
        a(f'v_cmp_lt_u32 vcc, s{t0}, v{tE}')
        a(f'v_cndmask_b32 v{tG}, v{tG}, v{tD}, s[{sSV}:{sSV+1}]')
        a(f'v_cndmask_b32 v{tH}, v{tH}, v{tI}, s[{sSV2}:{sSV2+1}]')
        a(f'v_cmp_lt_u32 s[{sSV}:{sSV+1}], s{t0}, v{tF}')
        a('s_mov_b64 exec, vcc')
        a(f'ds_write_b32 v{tA}, v{tG} offset:{L_QI}')
        a(f's_mov_b64 exec, s[{sSV}:{sSV+1}]')
        a(f'ds_write_b32 v{tB}, v{tH} offset:{L_QI}')
        a('s_mov_b64 exec, -1')
        a(f's_add_u32 s{t0}, s{t0}, {4*nwq}')
        a(f'v_add_u32 v{tA}, {4*nwq}, v{tA}')
        a(f'v_add_u32 v{tB}, {4*nwq}, v{tB}')
        a(f'v_cmp_lt_u32 vcc, s{t0}, v{TR}')
        a(f's_cbranch_vccnz {lp}')
    def scatter():
        a('s_waitcnt lgkmcnt(0)')
        for it in range(8):
            a(f's_mov_b64 exec, s[{MK+2*it}:{MK+2*it+1}]')
            a(f'ds_read_b32 v{AX+it}, v{REC+2*it+1} offset:{L_TAB}')
        for it in range(8):
            a(f's_mov_b64 exec, s[{MK+2*it}:{MK+2*it+1}]')
            a('s_waitcnt lgkmcnt(7)')
            a(f'v_lshl_add_u32 v{AX+it}, v{RK+it}, 2, v{AX+it}')
            a(f'ds_write_b32 v{AX+it}, v{REC+2*it} offset:{L_ENT}')
        for it in range(8, 16):
            sk = a.newlabel('sks')
            a(f's_mov_b64 exec, s[{MK+2*it}:{MK+2*it+1}]')
            if opts.get('skipb', 1): a(f's_cbranch_execz {sk}')
            a(f'ds_read_b32 v{AX+it}, v{REC+2*it+1} offset:{L_TAB}')
            a('s_waitcnt lgkmcnt(0)')
            a(f'v_lshl_add_u32 v{AX+it}, v{RK+it}, 2, v{AX+it}')
            a(f'ds_write_b32 v{AX+it}, v{REC+2*it} offset:{L_ENT}')
            a.label(sk)
        sk = a.newlabel('sksc')
        a(f's_mov_b64 exec, s[{MKC}:{MKC+1}]')
        a(f's_cbranch_execz {sk}')
        a(f'ds_read_b32 v{tJ}, v{RC+1} offset:{L_TAB}')
        a('s_waitcnt lgkmcnt(0)')
        a(f'v_lshl_add_u32 v{tJ}, v{RKC}, 2, v{tJ}')
        a(f'ds_write_b32 v{tJ}, v{RC} offset:{L_ENT}')
        a.label(sk)
        a('s_mov_b64 exec, -1')

    def setup_ptrs():
        a(f'v_add_u32 v{tB}, s{sSO}, v{jA}')
        a(f'v_mad_u32_u24 v{tA}, v{sidA}, s{sL}, v{tB}')
        a(f'v_lshlrev_b32 v{pEN}, 4, v{tA}')
        a(f'ds_read_b128 v[{EN}:{EN+3}], v{pEN} offset:{L_ENT}')
        a(f'v_lshlrev_b32 v{pQF}, 2, v{tA}')
        a(f'v_sub_u32 v{pQI}, v{tA}, v{jA}')
        a(f'v_lshlrev_b32 v{pQI}, 2, v{pQI}')
        a(f'v_add_u32 v{pQI}, {L_QI}, v{pQI}')
        a(f'v_mad_u32_u24 v{tA}, v{sidR}, s{sL}, v{tB}')
        a(f'v_lshl_add_u32 v{pEE}, v{tA}, 4, v{iR4}')
        a(f's_mov_b32 m0, s{sDB}')

    def dma_addr():
        return [f'v_mad_u32_u16 v{EN+i}, v{EN+i}, s{s128}, v{CO+i}' for i in range(4)]
    def dma_issue():
        if opts.get('nodma'): return []
        return [f'buffer_load_dwordx4 v{EN+i}, s[{rX}:{rX+3}], 0 offen offset:{1024*i} lds' if i else
                f'buffer_load_dwordx4 v{EN}, s[{rX}:{rX+3}], 0 offen lds' for i in range(4)]

    def main_loop(tag, atomic):
        flush_blocks = []
        PS = [(PP, TT_, ZZ), (PB, TB, ZB)]
        def flush_body(par, j):
            a(f's_bfe_i32 exec_lo, s{sF[par]}, 0x{(1<<16)|(8*j):x}')
            a(f's_bfe_i32 exec_hi, s{sF[par]+1}, 0x{(1<<16)|(8*j):x}')
            a(f'v_add_f32 v{F0}, v{DEN}, v{DEN+1}')
            a(f'v_add_f32 v{F1}, v{NUM}, v{NUM+1}')
            a(f'v_add_f32 v{F2}, v{DEN+2}, v{DEN+3}')
            a(f'v_add_f32 v{F3}, v{NUM+2}, v{NUM+3}')
            a(f'v_mov_b64 v[{DEN}:{DEN+1}], 0')
            a(f'v_mov_b64 v[{NUM}:{NUM+1}], 0')
            if atomic:
                a(f'ds_add_f32 v{QA[par]+j}, v{F0}')
                a(f'ds_add_f32 v{QA[par]+j}, v{F1} offset:256')
                a(f'ds_add_f32 v{QA[par]+j}, v{F2} offset:128')
                a(f'ds_add_f32 v{QA[par]+j}, v{F3} offset:384')
            else:
                a(f'ds_write2_b32 v{QA[par]+j}, v{F0}, v{F1} offset0:0 offset1:64')
                a(f'ds_write2_b32 v{QA[par]+j}, v{F2}, v{F3} offset0:32 offset1:96')
            a(f'v_mov_b64 v[{DEN+2}:{DEN+3}], 0')
            a(f'v_mov_b64 v[{NUM+2}:{NUM+3}], 0')
            a('s_mov_b64 exec, -1')
        def post2(par):
            for j in range(4):
                for cc in range(2):
                    p, t, z = (r + 2*j for r in PS[cc])
                    a(f'v_pk_fma_f32 v[{NUM+2*cc}:{NUM+2*cc+1}], v[{p}:{p+1}], v[{t}:{t+1}], v[{NUM+2*cc}:{NUM+2*cc+1}]')
                    a(f'v_pk_fma_f32 v[{DEN+2*cc}:{DEN+2*cc+1}], v[{p}:{p+1}], v[{z}:{z+1}], v[{DEN+2*cc}:{DEN+2*cc+1}]')
                if opts.get('noflush'): continue
                fl = a.newlabel('fl'); back = a.newlabel('bk')
                a(f's_bitcmp1_b32 s{sANY[par]}, {8*j}')
                a(f's_cbranch_scc1 {fl}')
                a.label(back)
                flush_blocks.append((fl, back, par, j))
        def pre(cur):
            g0 = G_[cur]; h0 = H_[cur]; P_, T_, Z_ = PS[cur]
            for j in range(4):
                g = g0 + 4*j
                a(f'v_pk_fma_f32 v[{g}:{g+1}], v[{g}:{g+1}], s[{sC}:{sC+1}], s[{sC}:{sC+1}] clamp')
                a(f'v_pk_fma_f32 v[{g+2}:{g+3}], v[{g+2}:{g+3}], s[{sC}:{sC+1}], s[{sC}:{sC+1}] clamp')
            for j in range(4):
                g = g0 + 4*j; h = h0 + 4*j
                X = f'v[{g}:{g+1}]'; Y = f'v[{g+2}:{g+3}]'
                p = P_ + 2*j; t = T_ + 2*j; z = Z_ + 2*j
                a(f'v_pk_mul_f32 v[{t}:{t+1}], {Y}, v[{h}:{h+1}]')
                a(f'v_pk_mul_f32 v[{p}:{p+1}], {X}, {Y}')
                a(f'v_pk_add_f32 v[{z}:{z+1}], {X}, {Y}')
                a(f'v_pk_fma_f32 v[{t}:{t+1}], {X}, v[{h+2}:{h+3}], v[{t}:{t+1}]')
        def mfma_list(nxt, cc):
            Gs = f'v[{G_[nxt]}:{G_[nxt]+15}]'; Hs = f'v[{H_[nxt]}:{H_[nxt]+15}]'
            out = []
            for kp in range(4):
                wb = WB + 16*cc + 4*kp; wv = WV + 16*cc + 4*kp; ax = AX + 4*kp
                out.append(f'v_mfma_f32_32x32x16_bf16 {Hs}, v[{ax}:{ax+3}], v[{wv}:{wv+3}], {"0" if kp == 0 else Hs}')
                out.append(f'v_mfma_f32_32x32x16_bf16 {Gs}, v[{ax}:{ax+3}], v[{wb}:{wb+3}], {"0" if kp == 0 else Gs}')
            out.append(f'v_mfma_f32_32x32x16_bf16 {Gs}, v[{AE[cc]}:{AE[cc]+3}], v[{BE}:{BE+3}], {Gs}')
            return out
        def trans_list(cur):
            Pp = PS[cur ^ 1][0]
            return [f'v_rcp_f32 v{Pp+i}, v{Pp+i}' for i in range(8)] + [f'v_exp_f32 v{G_[cur]+i}, v{G_[cur]+i}' for i in range(16)]
        def weave(mf, tr, gaps):
            dist = [3, 3, 3, 3, 3, 3, 2, 2, 2]
            if opts.get('nogaps'): gaps = {}
            if opts.get('nomf'): mf = None
            k = 0
            for m in range(9):
                for ins in gaps.get(('m', m), []): a(ins)
                if mf: a(mf[m])
                for _ in range(dist[m]):
                    a(tr[k])
                    for ins in gaps.get(k, []): a(ins)
                    k += 1
            assert k == len(tr)
        def stage0(par):
            g = {}
            da = dma_addr()
            g[0] = [f'ds_read_b32 v{QF}, v{pQF} offset:{L_QI + 16*(par+1)}']
            g[1] = [f'ds_read_b32 v{EE}, v{pEE} offset:{L_ENT + 64*(par+1)}']
            g[3] = [f'v_and_or_b32 v{BE}, v{R0}, s{sHI}, v{BC+1}']
            g[6] = [da[0]]; g[9] = [da[1]]; g[12] = [da[2]]; g[15] = [da[3]]
            axr = [f'ds_read_b128 v[{AX+4*kp}:{AX+4*kp+3}], v{RA+kp}' for kp in range(4)]
            early = opts.get('axearly', 0)
            if early:
                for kp, gp in enumerate(opts.get('axgaps', (8, 11, 17, 21))):
                    g.setdefault(gp, [])
                    g[gp] = g[gp] + ((['s_waitcnt vmcnt(0)'] if kp == 0 else []) + [axr[kp]])
            weave(mfma_list(1, 1), trans_list(0), g)
            axpre = opts.get('axpre', 1)
            if axpre and not early and not opts.get('nogaps'):
                a('s_waitcnt vmcnt(0)')
                for ins in axr: a(ins)
            post2(par ^ 1)
            qn = QA[par ^ 1]
            if not opts.get('nogaps'):
                a(f'ds_read_b128 v[{qn}:{qn+3}], v{pQI} offset:{16*(par+1)}')
                if not early and not axpre:
                    a('s_waitcnt vmcnt(0)')
                    for ins in axr: a(ins)
            pre(0)
            a(f's_sub_u32 s{sCNT}, s{sCNT}, 1')
        def stage1(par):
            qn = QA[par ^ 1]
            g = {}
            di = dma_issue()
            g[('m', 0)] = ['s_waitcnt lgkmcnt(0)']
            dg = opts.get('dmag', 0)
            dd = {0: (0, 1, 2, 3), 1: (8, 10, 12, 14), 2: (6, 8, 10, 12), 3: (12, 14, 16, 18)}[dg]
            g[0] = [f'v_mad_u32_u24 v{qn}, v{qn}, 1, v{C4}']
            g[1] = [f'v_mad_u32_u24 v{qn+1}, v{qn+1}, 1, v{C4}']
            g[2] = [f'ds_read_b32 v{R0}, v{qn} offset:512']
            g[3] = [f'v_mad_u32_u24 v{qn+2}, v{qn+2}, 1, v{C4}', f'ds_read_b32 v{BE+1}, v{qn+1} offset:512']
            g[4] = [f'v_mad_u32_u24 v{qn+3}, v{qn+3}, 1, v{C4}', f'ds_read_b32 v{BE+2}, v{qn+2} offset:512']
            g[5] = [f'ds_read_b32 v{BE+3}, v{qn+3} offset:512']
            g[7] = [f'v_perm_b32 v{AE[0]}, v{EE}, v{AE[0]}, v{SEL[0]}']
            g[9] = [f'v_perm_b32 v{AE[1]}, v{EE}, v{AE[1]}, v{SEL[1]}']
            g[11] = [f'v_cmp_gt_i32 s[{sF[par^1]}:{sF[par^1]+1}], 0, v{QF}']
            if par == 1:
                g[13] = [f'v_add_u32 v{pQI}, 32, v{pQI}']
                g[14] = [f'v_add_u32 v{pQF}, 32, v{pQF}']
                g[15] = [f'v_add_u32 v{pEE}, 128, v{pEE}']
                g[16] = [f'v_add_u32 v{pEN}, 128, v{pEN}']
            g[17] = [f's_or_b32 s{sANY[par^1]}, s{sF[par^1]}, s{sF[par^1]+1}'] if not opts.get('noany') else [f's_mov_b32 s{sANY[par^1]}, 0']
            g[19] = ['s_waitcnt lgkmcnt(%d)' % (1 if dd[3] >= 18 else 0), f'v_and_or_b32 v{BE}, v{R0}, s{sLO}, v{BC}']
            for i_, gp in enumerate(dd):
                if di: g[gp] = g.get(gp, []) + [di[i_]]
            en_gap = max(dd[3] + 1, 6)
            en_rd = f'ds_read_b128 v[{EN}:{EN+3}], v{pEN} offset:{L_ENT + 64*(par+3)}'
            if en_gap >= 19:
                g[20] = g.get(20, []) + [en_rd]
            else:
                g[en_gap] = g.get(en_gap, []) + [en_rd]
            if par == 1:
                pass
            weave(mfma_list(0, 0), trans_list(1), g)
            pre(1)
        def last_stage1(par):
            weave(None, trans_list(1), {})
            pre(1)
            for i in range(8):
                a(f'v_rcp_f32 v{PB+i}, v{PB+i}')
            a('s_nop 0')
            post2(par)
        L0 = f'K2_T0{tag}'; E0 = f'K2_E0{tag}'; E1 = f'K2_E1{tag}'; DONE = f'K2_MD{tag}'
        PR = opts.get('prio', 1)
        if PR:
            a(f's_add_u32 s{t0}, s{sCNT}, 1')
            a(f's_mul_i32 s{t0}, s{t0}, {opts.get("pfrac", 20)}')
            a(f's_lshr_b32 s{t0}, s{t0}, 6')
            a(f's_lshl_b32 s{t0}, s{t0}, 1')
            a(f's_sub_u32 s{sSWAP}, s{sCNT}, s{t0}')
            a(f's_cmp_ge_u32 s{sW}, 4')
            a(f's_cbranch_scc0 K2_PR0{tag}')
            a('s_setprio 1')
            a.label(f'K2_PR0{tag}')
        if PR == 3:
            a(f's_cmp_ge_u32 s{sW}, 4')
            a(f's_cselect_b32 s{sSWAP}, 1, 0')
        a.label(L0)
        if PR == 3:
            a(f's_xor_b32 s{sSWAP}, s{sSWAP}, 1')
            a(f's_cbranch_scc1 K2_PH{tag}')
            a('s_setprio 0')
            a(f's_branch K2_PD{tag}')
            a.label(f'K2_PH{tag}')
            a('s_setprio 1')
            a.label(f'K2_PD{tag}')
        elif PR:
            a(f's_cmp_eq_u32 s{sCNT}, s{sSWAP}')
            a(f's_cbranch_scc1 K2_SWP{tag}')
            a.label(f'K2_SWB{tag}')
        stage0(0)
        a(f's_cbranch_scc1 {E0}')
        stage1(0)
        stage0(1)
        a(f's_cbranch_scc1 {E1}')
        stage1(1)
        a(f's_branch {L0}')
        a.label(E0)
        last_stage1(0)
        a(f's_branch {DONE}')
        a.label(E1)
        last_stage1(1)
        a(f's_branch {DONE}')
        if PR and PR != 3:
            a.label(f'K2_SWP{tag}')
            a(f's_cmp_ge_u32 s{sW}, 4')
            a(f's_cbranch_scc1 K2_SW0{tag}')
            a('s_setprio 1')
            a(f's_branch K2_SWB{tag}')
            a.label(f'K2_SW0{tag}')
            a('s_setprio 0')
            a(f's_branch K2_SWB{tag}')
        for (fl, back, par, j) in flush_blocks:
            a.label(fl)
            flush_body(par, j)
            a(f's_branch {back}')
        a.label(DONE)
        if PR: a('s_setprio 0')

    def pipeline_fill():
        q0 = QA[0]
        a(f'ds_read_b128 v[{q0}:{q0+3}], v{pQI}')
        a(f'ds_read_b32 v{QF}, v{pQF} offset:{L_QI}')
        a(f'ds_read_b32 v{EE}, v{pEE} offset:{L_ENT}')
        a(f'ds_read_b128 v[{EN}:{EN+3}], v{pEN} offset:{L_ENT + 64}')
        for i in range(2):
            a(f'v_mov_b64 v[{DEN+2*i}:{DEN+2*i+1}], 0')
            a(f'v_mov_b64 v[{NUM+2*i}:{NUM+2*i+1}], 0')
        for i in range(8):
            a(f'v_mov_b32 v{PP+i}, 1.0')
            a(f'v_mov_b32 v{PB+i}, 1.0')
        for i in range(4):
            a(f'v_mov_b64 v[{TT_+2*i}:{TT_+2*i+1}], 0')
            a(f'v_mov_b64 v[{ZZ+2*i}:{ZZ+2*i+1}], 0')
            a(f'v_mov_b64 v[{TB+2*i}:{TB+2*i+1}], 0')
            a(f'v_mov_b64 v[{ZB+2*i}:{ZB+2*i+1}], 0')
        a(f's_mov_b32 s{sANY[1]}, 0')
        a('s_waitcnt lgkmcnt(0)')
        for q in range(4):
            a(f'v_mad_u32_u24 v{q0+q}, v{q0+q}, 1, v{C4}')
        a(f'ds_read_b32 v{R0}, v{q0} offset:512')
        for q in range(1, 4):
            a(f'ds_read_b32 v{BE+q}, v{q0+q} offset:512')
        a(f'v_perm_b32 v{AE[0]}, v{EE}, v{AE[0]}, v{SEL[0]}')
        a(f'v_perm_b32 v{AE[1]}, v{EE}, v{AE[1]}, v{SEL[1]}')
        a(f'v_cmp_gt_i32 s[{sF[0]}:{sF[0]+1}], 0, v{QF}')
        for ins in dma_addr(): a(ins)
        stamp(21)
        a('s_waitcnt vmcnt(0)')
        stamp(22)
        for kp in range(4):
            a(f'ds_read_b128 v[{AX+4*kp}:{AX+4*kp+3}], v{RA+kp}')
        a(f's_or_b32 s{sANY[0]}, s{sF[0]}, s{sF[0]+1}')
        a('s_waitcnt lgkmcnt(0)')
        a(f'v_and_or_b32 v{BE}, v{R0}, s{sLO}, v{BC}')
        for ins in dma_issue(): a(ins)
        a(f'ds_read_b128 v[{EN}:{EN+3}], v{pEN} offset:{L_ENT + 128}')
        Gs = f'v[{GA}:{GA+15}]'; Hs = f'v[{HA}:{HA+15}]'
        for kp in range(4):
            a(f'v_mfma_f32_32x32x16_bf16 {Hs}, v[{AX+4*kp}:{AX+4*kp+3}], v[{WV+4*kp}:{WV+4*kp+3}], {"0" if kp == 0 else Hs}')
            a(f'v_mfma_f32_32x32x16_bf16 {Gs}, v[{AX+4*kp}:{AX+4*kp+3}], v[{WB+4*kp}:{WB+4*kp+3}], {"0" if kp == 0 else Gs}')
        a(f'v_mfma_f32_32x32x16_bf16 {Gs}, v[{AE[0]}:{AE[0]+3}], v[{BE}:{BE+3}], {Gs}')
        a('s_waitcnt lgkmcnt(0)')
        a('s_nop 7')
        a('s_nop 3')
    def forced_flags():
        a(f's_sub_u32 s{t1}, s{sL}, 1')
        a(f's_lshl_b32 s{t1}, s{t1}, 2')
        a(f'v_add_u32 v{tB}, s{t1}, v{pQI}')
        a(f'v_mov_b32 v{tA}, 0x80000000')
        a('s_mov_b32 exec_lo, 1')
        a('s_mov_b32 exec_hi, 1')
        a(f'ds_or_b32 v{tB}, v{tA}')
        a('s_mov_b64 exec, -1')

    stamp(2)
    a(f's_mov_b64 exec, s[{sSV2}:{sSV2+1}]')
    a(f'v_mov_b32 v{tD}, {L_CNT + 127*4}')
    a(f'v_mov_b32 v{tE}, 1')
    a(f'ds_write_b32 v{tD}, v{tE}')
    a('s_mov_b64 exec, -1')
    gemm_issue()
    stamp(28)
    gemm_mid()
    gemm_mid2()
    stamp(29)
    a(f's_cmp_lg_u32 s{sW}, 0')
    a('s_cbranch_scc1 K2_NOCI')
    a(f'v_mul_u32_u24 v{tA}, {2*ROWB}, v{vLANE}')
    a(f'v_mov_b32 v{tB}, {L_ZERO}')
    a(f'v_add_u32 v{tA}, {L_ACC}, v{tA}')
    a(f's_mov_b32 exec_hi, {(1 << (MAXN // 2 - 32)) - 1}')
    a(f'ds_write_b32 v{tA}, v{tB} offset:768')
    a(f'ds_write_b32 v{tA}, v{tB} offset:{768 + ROWB}')
    a('s_mov_b64 exec, -1')
    a.label('K2_NOCI')
    gemm_store('F')
    stamp(3)
    a('s_waitcnt vmcnt(0) lgkmcnt(0)')
    stamp(23)
    hist()
    a('s_waitcnt lgkmcnt(0)')
    stamp(24)
    if opts.get('proprio') == 1: a('s_setprio 0')
    a('s_barrier')
    stamp(4)
    scan_nodes('F')
    a(f'v_readlane_b32 s{t0}, v{TQ+1}, 63')
    a(f's_cmp_eq_u32 s{sLB}, 0')
    a(f's_cselect_b32 s{t1}, s{sLA}, s{sLB}')
    a(f's_lshl_b32 s{t1}, s{t1}, 2')
    a(f'v_cmp_lt_u32 vcc, s{t1}, v{tB}')
    a(f's_cmp_lg_u32 s{t0}, 0')
    a('s_cbranch_scc1 K2_SLOW')
    a(f's_add_u32 s{t1}, s{sLA}, s{sLB}')
    a(f's_cmp_gt_u32 s{t1}, {(ENT_QUADS - 8) // 8}')
    a('s_cbranch_scc1 K2_SLOW')
    a('s_cbranch_vccnz K2_SLOW')
    stamp(15)
    scatter()
    stamp(16)
    a('s_waitcnt lgkmcnt(0)')
    a('s_barrier')
    stamp(5)
    a(f's_cmp_eq_u32 s{sL}, 0')
    a('s_cbranch_scc1 K2_NOL')
    setup_ptrs()
    a('s_waitcnt lgkmcnt(0)')
    for ins in dma_addr(): a(ins)
    for ins in dma_issue(): a(ins)
    a.label('K2_NOL')
    stamp(17)
    if opts.get('qi4', 0):
        a(f's_cmp_ge_u32 s{sW}, 4')
        a('s_cbranch_scc1 K2_QIDONE')
    a(f'v_cmp_gt_u32 vcc, {MAXN // 2}, v{vLANE}')
    a(f'v_lshl_or_b32 v{tB}, v{vLANE}, 1, 1')
    a(f'v_cmp_le_u32 s[{sSV}:{sSV+1}], s{sNN}, v{tB}')
    a(f'v_mov_b32 v{tC}, 1')
    a('s_nop 0')
    a(f'v_cndmask_b32 v{tB}, v{TQ+1}, v{tC}, s[{sSV}:{sSV+1}]')
    a(f'v_min_u32 v{tB}, v{TQ}, v{tB}')
    a(f'v_cmp_eq_u32 s[{sSV}:{sSV+1}], 0, v{tB}')
    a(f's_and_b64 s[{sSV}:{sSV+1}], s[{sSV}:{sSV+1}], vcc')
    a('s_cbranch_scc1 K2_ZROWS')
    a.label('K2_ZBACK')
    if opts.get('qi4', 0):
        qi_fill('F', True, 4)
        a.label('K2_QIDONE')
    else:
        qi_fill('F', True)
    stamp(18)
    w_frags()
    consts()
    a('s_waitcnt lgkmcnt(0)')
    stamp(19)
    if opts.get('proprio') == 2: a('s_setprio 0')
    a('s_barrier')
    stamp(20)
    a(f's_cmp_eq_u32 s{sL}, 0')
    a('s_cbranch_scc1 K2_EPI')
    pipeline_fill()
    stamp(6)
    if opts.get('dbgtime'):
        a(f's_memrealtime s[{t2}:{t3}]')
        a('s_waitcnt lgkmcnt(0)')
        a(f's_mov_b32 s{sT1}, s{t2}')
    if STAMP:
        a(f's_memrealtime s[{t2}:{t3}]')
        a('s_waitcnt lgkmcnt(0)')
        a(f'v_writelane_b32 v{vST}, s{t2}, 13')
    if opts.get('half'):
        a(f's_cmp_ge_u32 s{sW}, 4')
        a('s_cbranch_scc1 K2_MDF')
    main_loop('F', False)
    stamp(7)
    if opts.get('dbgtime'):
        a(f's_memrealtime s[{t2}:{t3}]')
        a('s_waitcnt lgkmcnt(0)')
        a(f's_mov_b32 s{sT2}, s{t2}')
    if STAMP:
        a(f's_memrealtime s[{t2}:{t3}]')
        a('s_waitcnt lgkmcnt(0)')
        a(f'v_writelane_b32 v{vST}, s{t2}, 14')
    a.label('K2_EPI')
    e0 = 4
    XV = [e0, e0 + 4]; UU = [e0 + 8, e0 + 12]
    DN = [e0 + 16, e0 + 48]; NM = [e0 + 24, e0 + 56]; CD = [e0 + 32, e0 + 64]; CN = [e0 + 40, e0 + 72]
    O = e0 + 80; ADR = [e0 + 84, e0 + 85]; GO = [e0 + 86, e0 + 87]; CP = [e0 + 88, e0 + 89]; OC = [e0 + 90, e0 + 91]
    T1 = e0 + 92; ND = e0 + 93
    def epi_addr(r):
        a(f'v_add_u32 v{T1}, {512*r}, v0') if r else a(f'v_mov_b32 v{T1}, v0')
        a(f'v_lshrrev_b32 v{ND}, 3, v{T1}')
        a(f'v_and_b32 v{T1}, 7, v{T1}')
        a(f'v_lshlrev_b32 v{OC[r]}, 4, v{T1}')
        a(f'v_mul_u32_u24 v{CP[r]}, s{t0}, v{ND}')
        a(f'v_add_u32 v{CP[r]}, {L_ACC}, v{CP[r]}')
        a(f'v_add_u32 v{ADR[r]}, v{CP[r]}, v{OC[r]}')
        a(f'v_add_u32 v{GO[r]}, s{sNS}, v{ND}')
        a(f'v_lshlrev_b32 v{GO[r]}, 7, v{GO[r]}')
        a(f'v_lshl_add_u32 v{GO[r]}, v{T1}, 3, v{GO[r]}')
    def epi_static(r, carry):
        a(f'buffer_load_dwordx2 v[{XV[r]}:{XV[r]+1}], v{GO[r]}, s[{rF}:{rF+3}], 0 offen')
        a(f'buffer_load_dwordx2 v[{XV[r]+2}:{XV[r]+3}], v{GO[r]}, s[{rF}:{rF+3}], 0 offen offset:64')
        a(f'ds_read_b128 v[{UU[r]}:{UU[r]+3}], v{ADR[r]} offset:640')
        if carry: a(f'ds_read_b32 v{CP[r]}, v{CP[r]} offset:768')
    def epi_reads(r, carry):
        ad = ADR[r]
        a(f'ds_read_b128 v[{DN[r]}:{DN[r]+3}], v{ad}')
        a(f'ds_read_b128 v[{DN[r]+4}:{DN[r]+7}], v{ad} offset:128')
        a(f'ds_read_b128 v[{NM[r]}:{NM[r]+3}], v{ad} offset:256')
        a(f'ds_read_b128 v[{NM[r]+4}:{NM[r]+7}], v{ad} offset:384')
        if carry:
            a(f'ds_read_b128 v[{CD[r]}:{CD[r]+3}], v{CP[r]}')
            a(f'ds_read_b128 v[{CD[r]+4}:{CD[r]+7}], v{CP[r]} offset:128')
            a(f'ds_read_b128 v[{CN[r]}:{CN[r]+3}], v{CP[r]} offset:256')
            if r == 1: a('s_waitcnt lgkmcnt(14)')
            a(f'ds_read_b128 v[{CN[r]+4}:{CN[r]+7}], v{CP[r]} offset:384')
    def epi_math(r, carry):
        dn, nm, cd, cn, uu, xv = DN[r], NM[r], CD[r], CN[r], UU[r], XV[r]
        if carry:
            for i in range(0, 8, 2):
                a(f'v_pk_add_f32 v[{dn+i}:{dn+i+1}], v[{dn+i}:{dn+i+1}], v[{cd+i}:{cd+i+1}]')
                a(f'v_pk_add_f32 v[{nm+i}:{nm+i+1}], v[{nm+i}:{nm+i+1}], v[{cn+i}:{cn+i+1}]')
        for i in range(0, 8, 2):
            a(f'v_pk_add_f32 v[{dn+i}:{dn+i+1}], v[{dn+i}:{dn+i+1}], s[{sC}:{sC+1}]')
        for i in range(8):
            a(f'v_rcp_f32 v{dn+i}, v{dn+i}')
        for i in range(4):
            a(f'v_lshlrev_b32 v{cd+i}, 16, v{uu+i}')
            a(f'v_and_b32 v{cd+4+i}, s{sHI}, v{uu+i}')
        for i in range(0, 8, 2):
            a(f'v_pk_fma_f32 v[{nm+i}:{nm+i+1}], v[{nm+i}:{nm+i+1}], v[{dn+i}:{dn+i+1}], v[{cd+i}:{cd+i+1}]')
        for i in range(8):
            a(f'v_max_f32 v{nm+i}, 0, v{nm+i}')
        for i in range(4):
            a(f'v_lshlrev_b32 v{cd+2*i}, 16, v{xv+i}')
            a(f'v_and_b32 v{cd+2*i+1}, s{sHI}, v{xv+i}')
        for i in range(0, 8, 2):
            a(f'v_pk_add_f32 v[{nm+i}:{nm+i+1}], v[{nm+i}:{nm+i+1}], v[{cd+i}:{cd+i+1}]')
        for i in range(4):
            a(f'v_cvt_pk_bf16_f32 v{O+i}, v{nm+2*i}, v{nm+2*i+1}')
        osf = {0: '', 1: ' sc1', 2: ' nt', 3: ' sc0 sc1'}[opts.get('outst', 1)]
        a(f'buffer_store_dwordx2 v[{O}:{O+1}], v{GO[r]}, s[{rO}:{rO+3}], 0 offen' + osf)
        a(f'buffer_store_dwordx2 v[{O+2}:{O+3}], v{GO[r]}, s[{rO}:{rO+3}], 0 offen offset:64' + osf)
    def epilogue(tag, carry):
        srd(a, rO, sOUT, N * 128)
        srd(a, rF, sX, N * 128)
        a(f's_mov_b32 s{t0}, {ROWB}')
        a(f's_mov_b32 s{sC}, 0x{EPS_SCALED:x}')
        a(f's_mov_b32 s{sC+1}, 0x{EPS_SCALED:x}')
        a(f's_mov_b32 s{sHI}, 0xffff0000')
        a('s_waitcnt vmcnt(0)')
        epi_addr(0)
        epi_static(0, carry)
        epi_addr(1)
        a(f'v_cmp_gt_u32 s[{sSV}:{sSV+1}], s{sNN}, v{ND}')
        a('s_nop 3')
        a(f's_mov_b64 exec, s[{sSV}:{sSV+1}]')
        a(f's_cbranch_execz K2_NS2{tag}')
        epi_static(1, carry)
        a.label(f'K2_NS2{tag}')
        a('s_mov_b64 exec, -1')
        a('s_waitcnt lgkmcnt(0)')
        if carry:
            a(f'v_add_u32 v{CP[0]}, v{CP[0]}, v{OC[0]}')
            a(f'v_add_u32 v{CP[1]}, v{CP[1]}, v{OC[1]}')
        a('s_barrier')
        if STAMP and tag == 'F': stamp(8)
        epi_reads(0, carry)
        a(f's_mov_b64 exec, s[{sSV}:{sSV+1}]')
        a(f's_cbranch_execz K2_ONE{tag}')
        epi_reads(1, carry)
        a('s_mov_b64 exec, -1')
        a(f's_waitcnt vmcnt(0) lgkmcnt({8 if carry else 4})')
        epi_math(0, carry)
        a(f's_mov_b64 exec, s[{sSV}:{sSV+1}]')
        a('s_waitcnt lgkmcnt(0)')
        epi_math(1, carry)
        a(f's_branch K2_FIN{tag}')
        a.label(f'K2_ONE{tag}')
        a('s_mov_b64 exec, -1')
        a('s_waitcnt vmcnt(0) lgkmcnt(0)')
        epi_math(0, carry)
        a.label(f'K2_FIN{tag}')
        if opts.get('endwait', 1): a('s_waitcnt vmcnt(0)')
    epilogue('F', True)
    if opts.get('dbgtime'):
        a('s_mov_b64 exec, -1')
        a('s_waitcnt vmcnt(0)')
        a(f's_memrealtime s[{t2}:{t3}]')
        a(f's_cmp_lg_u32 s{sW}, 7')
        a('s_cbranch_scc1 K2_DBGX')
        a('s_and_b32 s3, s2, 31')
        a('s_cmp_lg_u32 s3, 0')
        a('s_cbranch_scc1 K2_DBGX')
        a('s_lshr_b32 s3, s2, 5')
        a('s_cmp_ge_u32 s3, 2')
        a('s_cbranch_scc1 K2_DBGX')
        a(f's_lshl_b32 s{t0}, s3, 2')
        a(f's_add_u32 s{t0}, s{t0}, 0x1200000')
        a(f'v_mov_b32 v4, s{t0}')
        a(f'global_load_dword v5, v4, s[{sWS}:{sWS+1}]')
        a(f'global_load_dword v6, v4, s[{sWS}:{sWS+1}] offset:256')
        a('s_waitcnt vmcnt(0) lgkmcnt(0)')
        a(f'v_sub_u32 v8, v6, v5')
        a(f'v_sub_u32 v9, s{sT0}, v5')
        a(f'v_sub_u32 v10, s{sT1}, v5')
        a(f'v_sub_u32 v11, s{sT2}, v5')
        a(f'v_sub_u32 v12, s{t2}, v5')
        a('s_lshl_b32 s3, s3, 5')
        a('v_mov_b32 v4, s3')
        a('s_mov_b64 exec, 1')
        a(f'global_store_dwordx4 v4, v[8:11], s[{sDBG}:{sDBG+1}]')
        a(f'global_store_dword v4, v12, s[{sDBG}:{sDBG+1}] offset:16')
        a.label('K2_DBGX')
    if STAMP:
        a('s_mov_b64 exec, -1')
        a('s_waitcnt vmcnt(0)')
        stamp(9)
        a(f's_memrealtime s[{t2}:{t3}]')
        a('s_waitcnt lgkmcnt(0)')
        a(f'v_writelane_b32 v{vST}, s{t2}, 12')
        a(f's_mul_i32 s{t0}, s2, {NW}')
        a(f's_add_u32 s{t0}, s{t0}, s{sW}')
        a(f's_lshl_b32 s{t0}, s{t0}, 8')
        a(f's_add_u32 s{t0}, s{t0}, 0x1000000')
        srd_off(a, rT, sWS, f's{t0}', 256)
        a(f'v_writelane_b32 v{vST}, s{sL}, 10')
        a(f'v_lshlrev_b32 v4, 2, v{vLANE}')
        a(f'buffer_store_dword v{vST}, v4, s[{rT}:{rT+3}], 0 offen')
    a('s_endpgm')
    a.label('K2_CSEL')
    a(f'v_mov_b32 v{tD}, 0')
    a(f'v_mov_b32 v{tE}, 0')
    a(f'v_mov_b32 v{tF}, 0')
    for it in range(8):
        a(f'v_lshrrev_b32 v{tG}, 24, v{SG+it}')
        a(f'v_cmp_lt_u32 vcc, 32, v{tG}')
        a(f'v_mad_u32_u24 v{tJ}, v{SG+it}, 8, v{tB}')
        a(f'v_add_u32 v{RKC}, 1, v{tF}')
        a(f'v_cndmask_b32 v{tD}, v{tD}, v{tJ}, vcc')
        a(f'v_cndmask_b32 v{tE}, v{tE}, v{tG}, vcc')
        a(f'v_cndmask_b32 v{tF}, v{tF}, v{RKC}, vcc')
    a(f'v_cmp_lt_u32 vcc, 1, v{tF}')
    a(f'v_cmp_lt_u32 s[{sSV2}:{sSV2+1}], 48, v{tE}')
    a(f'v_add_u32 v{tG}, 32, v{tC}')
    a(f's_or_b64 s[{sSV2}:{sSV2+1}], s[{sSV2}:{sSV2+1}], vcc')
    a(f'v_cmp_gt_u32 s[{MKC}:{MKC+1}], v{tE}, v{tG}')
    a('s_nop 0')
    a(f's_mov_b64 exec, s[{MKC}:{MKC+1}]')
    a(f'buffer_load_dwordx2 v[{RC}:{RC+1}], v{tD}, s[{rR}:{rR+3}], 0 offen offset:256')
    a('s_mov_b64 exec, -1')
    a('s_branch K2_CBACK')
    a.label('K2_ZROWS')
    a(f's_mov_b64 exec, s[{sSV}:{sSV+1}]')
    for i in range(4):
        a(f'v_mov_b32 v{TR+i}, 0')
    for nd in range(2):
        a(f'v_cmp_eq_u32 vcc, 0, v{TQ+nd}')
        a(f's_and_b64 exec, vcc, s[{sSV}:{sSV+1}]')
        for k in range(32):
            a(f'ds_write_b128 v{nROW0}, v[{TR}:{TR+3}] offset:{nd*ROWB + 16*k}')
        a(f's_mov_b64 exec, s[{sSV}:{sSV+1}]')
    a('s_mov_b64 exec, -1')
    a('s_branch K2_ZBACK')

    a.label('K2_SLOW')
    w_frags()
    consts()
    a('s_waitcnt vmcnt(0) lgkmcnt(0)')
    a('s_barrier')
    a(f's_lshl_b32 s{t1}, s2, 10')
    a(f's_add_u32 s{t1}, s{t1}, {WS_TAB2}')
    srd_off(a, rT, sWS, f's{t1}', 1024)
    a(f'v_lshlrev_b32 v{tA}, 4, v{vLANE}')
    a(f'buffer_load_dwordx4 v[{TQ}:{TQ+3}], v{tA}, s[{rT}:{rT+3}], 0 offen')
    a('s_waitcnt vmcnt(0)')
    a(f'v_max_u32 v{tE}, v{TQ}, v{TQ+1}')
    a(f'v_max3_u32 v{tE}, v{tE}, v{TQ+2}, v{TQ+3}')
    wave_scan(a, 'v_max_u32', tE)
    a('s_nop 0')
    a(f'v_readlane_b32 s{t1}, v{tE}, 63')
    a(f's_add_u32 s{t1}, s{t1}, {WSLOW-1}')
    a(f's_mul_i32 s{t1}, s{t1}, 5042')
    a(f's_lshr_b32 s{sNP}, s{t1}, 16')
    a(f's_mov_b32 s{sP}, 0')
    for i in range(4):
        a(f'v_mov_b32 v{TR+i}, 0')
    a(f'v_lshrrev_b32 v{tA}, 5, v0')
    a(f'v_mul_u32_u24 v{tA}, {ROWB}, v{tA}')
    a(f'v_and_b32 v{tB}, 31, v{vLANE}')
    a(f'v_lshl_add_u32 v{tA}, v{tB}, 4, v{tA}')
    a(f'v_add_u32 v{tA}, {L_ACC}, v{tA}')
    for i in range(6):
        a(f'ds_write_b128 v{tA}, v[{TR}:{TR+3}]')
        a(f'v_add_u32 v{tA}, {16*ROWB}, v{tA}')
    a(f'v_cmp_gt_u32 vcc, 64, v0')
    a(f's_and_saveexec_b64 s[{sSV}:{sSV+1}], vcc')
    a(f'ds_write_b128 v{tA}, v[{TR}:{TR+3}]')
    a(f's_mov_b64 exec, s[{sSV}:{sSV+1}]')
    a.label('K2_SPASS')
    a(f's_lshl_b32 s{t0}, s{sW}, 1')
    a(f'v_lshrrev_b32 v{sidA}, 5, v{vLANE}')
    a(f'v_add_u32 v{sidA}, s{t0}, v{sidA}')
    a(f'v_bfe_u32 v{jA}, v{vLANE}, 3, 2')
    a(f'v_bfe_u32 v{sidR}, v{vLANE}, 2, 1')
    a(f'v_add_u32 v{sidR}, s{t0}, v{sidR}')
    a(f'v_and_b32 v{iR4}, 3, v{vLANE}')
    a(f'v_lshlrev_b32 v{iR4}, 2, v{iR4}')
    a(f's_lshl_b32 s{t1}, s2, 10')
    a(f's_add_u32 s{t1}, s{t1}, {WS_TAB}')
    srd_off(a, rT, sWS, f's{t1}', WS_TAB2 - WS_TAB + 1024)
    a(f'v_lshrrev_b32 v{tD}, 4, v{vLANE}')
    a(f'v_lshlrev_b32 v{tD}, 5, v{tD}')
    a(f's_lshl_b32 s{t0}, s{sW}, 7')
    a(f'v_add_u32 v{tD}, s{t0}, v{tD}')
    a(f's_mov_b32 s{t0}, {WS_TAB2 - WS_TAB}')
    for i in range(2):
        a(f'buffer_load_dwordx4 v[{SG+4*i}:{SG+4*i+3}], v{tD}, s[{rT}:{rT+3}], 0 offen offset:{16*i}')
    for i in range(2):
        a(f'buffer_load_dwordx4 v[{AX+4*i}:{AX+4*i+3}], v{tD}, s[{rT}:{rT+3}], s{t0} offen offset:{16*i}')
    a(f'v_and_b32 v{tC}, 15, v{vLANE}')
    a(f's_mul_i32 s{t0}, s{sP}, {WSLOW}')
    a(f'v_cmp_gt_u32 vcc, {WSLOW}, v{tC}')
    a(f'v_add_u32 v{tC}, s{t0}, v{tC}')
    a(f'v_lshlrev_b32 v{tB}, 3, v{tC}')
    a(f'v_mov_b32 v{tD}, 0x10000')
    a(f'v_cndmask_b32 v{tC}, v{tD}, v{tC}, vcc')
    a('s_waitcnt vmcnt(0)')
    a(f's_mov_b64 s[{MKC}:{MKC+1}], 0')
    for it in range(8):
        a(f'v_cmp_gt_u32 s[{MK+2*it}:{MK+2*it+1}], v{AX+it}, v{tC}')
        a(f's_mov_b64 s[{MK+16+2*it}:{MK+16+2*it+1}], 0')
    rec_loads(tB, 8)
    lds_init()
    a('s_waitcnt vmcnt(0) lgkmcnt(0)')
    a('s_barrier')
    hist()
    a('s_waitcnt lgkmcnt(0)')
    a('s_barrier')
    scan_nodes('S')
    qi_fill('S', False)
    scatter()
    a('s_waitcnt lgkmcnt(0)')
    a('s_barrier')
    a(f's_cmp_eq_u32 s{sL}, 0')
    a('s_cbranch_scc1 K2_SNEXT')
    setup_ptrs()
    a('s_waitcnt lgkmcnt(0)')
    for ins in dma_addr(): a(ins)
    for ins in dma_issue(): a(ins)
    forced_flags()
    pipeline_fill()
    main_loop('S', True)
    a.label('K2_SNEXT')
    a('s_waitcnt vmcnt(0) lgkmcnt(0)')
    a('s_barrier')
    a(f's_add_u32 s{sP}, s{sP}, 1')
    a(f's_cmp_lt_u32 s{sP}, s{sNP}')
    a('s_cbranch_scc1 K2_SPASS')
    epilogue('S', False)
    a.label('K2_END')
    a('s_endpgm')
    return nvgpr, nsgpr

def kd(name, nv, ns):
    acc = (nv + 3) // 4 * 4
    return f'''.amdhsa_kernel {name}
  .amdhsa_next_free_vgpr {nv}
  .amdhsa_next_free_sgpr {ns}
  .amdhsa_accum_offset {acc}
  .amdhsa_group_segment_fixed_size 0
  .amdhsa_kernarg_size 96
  .amdhsa_user_sgpr_count 2
  .amdhsa_user_sgpr_kernarg_segment_ptr 1
  .amdhsa_system_sgpr_workgroup_id_x 1
  .amdhsa_float_denorm_mode_32 3
.end_amdhsa_kernel
'''

DOC = """;
;
"""

def build(opts=None):
    opts = opts or {}
    a = Asm()
    gen_k1(a, opts)
    nv, ns = gen_k2(a, opts)
    out = HEADER
    out += f'; @launch kernel=gs_part_kernel grid=(256,1,1) block=({K1_THREADS},1,1) lds={LDS_K1}\n'
    out += f'; @launch kernel=gs_main_kernel grid=(256,1,1) block=({NW*64},1,1) lds={LDS_MAIN}\n'
    out += DOC
    out += '.amdgcn_target "amdgcn-amd-amdhsa--gfx950"\n.text\n'
    out += a.text()
    out += '.section .rodata,"a"\n.p2align 6\n'
    out += kd('gs_part_kernel', 62 if opts.get('stamp1') else 60, 60)
    out += '.p2align 6\n'
    out += kd('gs_main_kernel', nv, ns)
    return out

if __name__ == '__main__':
    path = sys.argv[1] if len(sys.argv) > 1 else 'gather_scatter__edge_featured_mpnn_gatedgcn__graph.s'
    opts = {}
    for o in sys.argv[2:]:
        k, _, val = o.partition('=')
        opts[k] = int(val) if val else True
    open(path, 'w').write(build(opts))
    print('written', path, 'LDS', LDS_MAIN)
```

```python
import sys, os, struct
sys.path.insert(0, os.path.dirname(__file__))
from asmlib import *

N = 25000; E = 800000
NBK = 256
CH = 3136
RECB = CH * 8
WS_TAB = 0x700000
WS_TAB2 = 0x740000
WS_FRAG = 0x780000
MAGIC_B = 43980466
LOG2E = 0xBFB8AA3B
SBITS = 50
C_SCALE = (127 - SBITS) << 23
EPS_SCALED = 0x4E8637BD
assert abs(struct.unpack('<f', struct.pack('<I', EPS_SCALED))[0] / (1e-6 * 2.0**50) - 1) < 1e-6

NW = 8
NSTREAM = 16
NIT = 16
CAP = 3456
WSLOW = 13
ROWB = 784
MAXN = 98
ENT_QUADS = 960
VROWB = 640
L_CNT = 0
L_ZERO = 512
L_TAB = 1024
L_QI = 1536
L_ENT = L_QI + ENT_QUADS * 4
L_ACC = L_ENT + ENT_QUADS * 16
L_VIRT = L_ACC + MAXN * ROWB
L_WST = L_VIRT + NSTREAM * VROWB
L_WST = (L_WST + 255) // 256 * 256
L_DMA = L_WST + 16384
LDS_MAIN = L_DMA + NW * 4096
assert LDS_MAIN <= 163840, LDS_MAIN
assert L_ACC % 16 == 0 and L_VIRT % 16 == 0

K1_THREADS = 896
K1_HIST = 0
K1_STAGE = 1024
LDS_K1 = K1_STAGE + RECB

HEADER = open(os.path.join(os.path.dirname(__file__), 'header.txt')).read()

def srd(a, sreg, ptr, size):
    a(f's_mov_b32 s{sreg}, s{ptr}')
    a(f's_and_b32 s{sreg+1}, s{ptr+1}, 0xffff')
    a(f's_mov_b32 s{sreg+2}, {size}')
    a(f's_mov_b32 s{sreg+3}, 0x20000')

def srd_off(a, sreg, ptr, off, size):
    a(f's_add_u32 s{sreg}, s{ptr}, {off}')
    a(f's_addc_u32 s{sreg+1}, s{ptr+1}, 0')
    a(f's_and_b32 s{sreg+1}, s{sreg+1}, 0xffff')
    a(f's_mov_b32 s{sreg+2}, {size}')
    a(f's_mov_b32 s{sreg+3}, 0x20000')

def wave_scan(a, op, r):
    for sh in (1, 2, 4, 8):
        a('s_nop 1')
        a(f'{op}_dpp v{r}, v{r}, v{r} row_shr:{sh} row_mask:0xf bank_mask:0xf')
    a('s_nop 1')
    a(f'{op}_dpp v{r}, v{r}, v{r} row_bcast:15 row_mask:0xa bank_mask:0xf')
    a('s_nop 1')
    a(f'{op}_dpp v{r}, v{r}, v{r} row_bcast:31 row_mask:0xc bank_mask:0xf')

def wave_scan2(a, op1, r1, op2, r2):
    steps = [f'row_shr:{sh} row_mask:0xf bank_mask:0xf' for sh in (1, 2, 4, 8)] + \
            ['row_bcast:15 row_mask:0xa bank_mask:0xf', 'row_bcast:31 row_mask:0xc bank_mask:0xf']
    a('s_nop 1')
    for st in steps:
        a(f'{op1}_dpp v{r1}, v{r1}, v{r1} {st}')
        a(f'{op2}_dpp v{r2}, v{r2}, v{r2} {st}')
        a('s_nop 0')

def gen_k1(a, opts):
    ST = opts.get('stamp1', False)
    def stamp(i):
        if not ST: return
        a('s_memtime s[56:57]')
        a('s_waitcnt lgkmcnt(0)')
        a(f'v_writelane_b32 v60, s56, {i}')
    a.raw('.p2align 8')
    a.raw('.globl gs_part_kernel')
    a.raw('.type gs_part_kernel,@function')
    a.label('gs_part_kernel')
    a('s_cmp_ge_u32 s2, 256')
    a('s_cbranch_scc1 K1_END')
    a('s_load_dwordx4 s[4:7], s[0:1], 8')
    a('s_load_dwordx2 s[8:9], s[0:1], 24')
    a('s_load_dwordx2 s[10:11], s[0:1], 88')
    a('s_load_dwordx2 s[44:45], s[0:1], 0')
    if ST: a('v_mov_b32 v60, 0')
    stamp(0)
    if opts.get('dbgtime'):
        a('s_memrealtime s[54:55]')
        a('s_waitcnt lgkmcnt(0)')
        a('s_cmp_ge_u32 s2, 8')
        a('s_cbranch_scc1 K1_NODBG')
        a('v_mov_b32 v20, s54')
        a('s_lshl_b32 s56, s2, 2')
        a('s_add_u32 s56, s56, 0x1200000')
        a('v_mov_b32 v22, s56')
        a('v_cmp_eq_u32 vcc, 0, v0')
        a('s_and_saveexec_b64 s[58:59], vcc')
        a('global_store_dword v22, v20, s[10:11]')
        a('s_mov_b64 exec, s[58:59]')
        a.label('K1_NODBG')
    a('v_lshrrev_b32 v1, 6, v0')
    a('s_mul_i32 s12, s2, %d' % (CH * 4))
    a('v_readfirstlane_b32 s3, v1')
    a('s_lshr_b32 s13, s12, 1')
    a('v_lshlrev_b32 v2, 4, v0')
    a('v_add_u32 v2, s12, v2')
    a('s_cmp_eq_u32 s3, 13')
    a('s_cbranch_scc1 K1_FRAG')
    a('v_lshlrev_b32 v3, 3, v0')
    a('v_add_u32 v3, s13, v3')
    a('s_waitcnt lgkmcnt(0)')
    srd(a, 20, 8, E * 4)
    a('buffer_load_dwordx4 v[4:7], v2, s[20:23], 0 offen')
    srd(a, 24, 6, E * 4)
    srd(a, 28, 4, E * 2)
    if not opts.get('dstfirst', 1):
        a('buffer_load_dwordx4 v[8:11], v2, s[24:27], 0 offen')
        a('buffer_load_dwordx2 v[12:13], v3, s[28:31], 0 offen')
    a('v_lshlrev_b32 v14, 2, v0')
    a('v_mov_b32 v15, 0')
    a('v_cmp_gt_u32 vcc, 256, v0')
    a('s_and_saveexec_b64 s[18:19], vcc')
    a('ds_write_b32 v14, v15 offset:%d' % K1_HIST)
    a('s_mov_b64 exec, s[18:19]')
    a('v_cmp_gt_u32 vcc, %d, v0' % (CH // 4))
    a('s_mov_b32 s14, %d' % (E * 4))
    a('v_cmp_gt_u32 s[16:17], s14, v2')
    a('s_and_b64 s[16:17], s[16:17], vcc')
    a('s_mul_i32 s15, s2, %d' % RECB)
    srd_off(a, 32, 10, 's15', RECB)
    srd_off(a, 36, 10, WS_TAB, 0x80000)
    if opts.get('touch', 0):
        a('s_cmp_lg_u32 s3, 1')
        a('s_cbranch_scc1 K1_NOTOUCH')
        a('v_mov_b32 v41, 0')
        a('buffer_load_dword v42, v41, s[32:35], 0 offen')
        a('buffer_load_dword v43, v41, s[36:39], 0 offen')
        a.label('K1_NOTOUCH')
    a('s_mov_b32 s40, %d' % MAGIC_B)
    a('s_movk_i32 s41, 3125')
    a('v_mov_b32 v15, 1')
    a('s_waitcnt lgkmcnt(0)')
    a('s_barrier')
    if opts.get('dstfirst', 1) == 1:
        a('s_waitcnt vmcnt(0)')
        a('buffer_load_dwordx4 v[8:11], v2, s[24:27], 0 offen')
        a('buffer_load_dwordx2 v[12:13], v3, s[28:31], 0 offen')
    elif opts.get('dstfirst', 1) == 2:
        a('buffer_load_dwordx4 v[8:11], v2, s[24:27], 0 offen')
        a('buffer_load_dwordx2 v[12:13], v3, s[28:31], 0 offen')
        a('s_waitcnt vmcnt(2)')
    if opts.get('xpre', 1) == 1:
        a('s_and_b32 s46, s2, 7')
        a('s_lshr_b32 s47, s2, 3')
        a('s_lshl_b32 s46, s46, 5')
        a('s_add_u32 s46, s46, s47')
        a('s_mul_i32 s46, s46, 3125')
        a('s_add_u32 s46, s46, 31')
        a('s_lshr_b32 s46, s46, 5')
        a('s_lshl_b32 s46, s46, 7')
        a('s_and_b32 s45, s45, 0xffff')
        a('s_mov_b32 s48, s44')
        a('s_mov_b32 s49, s45')
        a('s_mov_b32 s50, %d' % (N * 128))
        a('s_mov_b32 s51, 0x20000')
        a('v_lshlrev_b32 v40, 4, v0')
        a('buffer_load_dwordx4 v[56:59], v40, s[48:51], s46 offen')
    a('s_mov_b64 exec, s[16:17]')
    a('s_cbranch_execz K1_NOEDGE1')
    stamp(1)
    if not opts.get('dstfirst', 1): a('s_waitcnt vmcnt(%d)' % (3 if opts.get('xpre', 1) else 2))
    stamp(2)
    for k in range(4):
        a(f'v_mul_hi_u32 v{16+k}, v{4+k}, s40')
    for k in range(4):
        a(f'v_lshlrev_b32 v{20+k}, 2, v{16+k}')
        a(f'ds_add_rtn_u32 v{24+k}, v{20+k}, v15 offset:{K1_HIST}')
    for k in range(4):
        a(f'v_mul_u32_u24 v{28+k}, s41, v{16+k}')
        a(f'v_add_u32 v{28+k}, 31, v{28+k}')
        a(f'v_lshrrev_b32 v{28+k}, 5, v{28+k}')
        a(f'v_sub_u32 v{28+k}, v{4+k}, v{28+k}')
        a(f'v_lshlrev_b32 v{33+2*k}, 2, v{28+k}')
    a.label('K1_NOEDGE1')
    a('s_mov_b64 exec, -1')
    a('s_waitcnt lgkmcnt(0)')
    stamp(3)
    a('s_barrier')
    stamp(4)
    if opts.get('xpre', 1) == 2:
        a('s_and_b32 s46, s2, 7')
        a('s_lshr_b32 s47, s2, 3')
        a('s_lshl_b32 s46, s46, 5')
        a('s_add_u32 s46, s46, s47')
        a('s_mul_i32 s46, s46, 3125')
        a('s_add_u32 s46, s46, 31')
        a('s_lshr_b32 s46, s46, 5')
        a('s_lshl_b32 s46, s46, 7')
        a('s_and_b32 s45, s45, 0xffff')
        a('s_mov_b32 s48, s44')
        a('s_mov_b32 s49, s45')
        a('s_mov_b32 s50, %d' % (N * 128))
        a('s_mov_b32 s51, 0x20000')
        a('v_lshlrev_b32 v40, 4, v0')
        a('buffer_load_dwordx4 v[56:59], v40, s[48:51], s46 offen')
    a('s_cmp_lg_u32 s3, 0')
    a('s_cbranch_scc1 K1_SCANDONE')
    a('v_lshlrev_b32 v40, 4, v0')
    a('ds_read_b128 v[44:47], v40 offset:%d' % K1_HIST)
    a('v_lshlrev_b32 v41, 12, v0')
    a('s_lshl_b32 s15, s2, 2')
    a('v_add_u32 v41, s15, v41')
    a('s_waitcnt lgkmcnt(0)')
    a('v_add_u32 v48, v44, v45')
    a('v_add_u32 v49, v48, v46')
    a('v_add_u32 v50, v49, v47')
    a('v_mov_b32 v51, v50')
    wave_scan(a, 'v_add_u32', 51)
    a('v_sub_u32 v52, v51, v50')
    a('v_add_u32 v53, v52, v44')
    a('v_add_u32 v54, v52, v48')
    a('v_add_u32 v55, v52, v49')
    a('ds_write_b128 v40, v[52:55] offset:%d' % K1_HIST)
    if not opts.get('w0late', 1): a('s_waitcnt vmcnt(%d)' % (1 if opts.get('xpre', 1) else 0))
    a('s_mul_i32 s15, s2, %d' % CH)
    a('s_mov_b32 s43, %d' % (WS_TAB2 - WS_TAB))
    for k in range(4):
        a(f'buffer_store_dword v{44+k}, v41, s[36:39], s43 offen offset:{k*1024}' + (' sc1' if opts.get('tabst', 0) else ''))
        a(f'v_min_u32 v{48+k}, 0xff, v{44+k}')
        a(f'v_add_u32 v{52+k}, s15, v{52+k}')
        a(f'v_lshl_or_b32 v{48+k}, v{48+k}, 24, v{52+k}')
        a(f'buffer_store_dword v{48+k}, v41, s[36:39], 0 offen offset:{k*1024}' + (' sc1' if opts.get('tabst', 0) else ''))
    a.label('K1_SCANDONE')
    a('s_waitcnt lgkmcnt(0)')
    a('s_barrier')
    stamp(5)
    a('s_mov_b64 exec, s[16:17]')
    a('s_cbranch_execz K1_NOEDGE2')
    for k in range(4):
        a(f'ds_read_b32 v{28+k}, v{20+k} offset:{K1_HIST}')
    a('s_cmp_eq_u32 s3, 0')
    a('s_cbranch_scc1 K1_W0')
    a('s_waitcnt vmcnt(%d)' % (1 if opts.get('xpre', 1) else 0))
    a('s_branch K1_HAVE')
    a.label('K1_W0')
    a('s_waitcnt vmcnt(%d)' % (9 if opts.get('xpre', 1) else 8))
    a.label('K1_HAVE')
    a('s_mov_b32 s42, 0xffff0000')
    a('v_lshl_or_b32 v32, v12, 16, v8')
    a('v_and_or_b32 v34, v12, s42, v9')
    a('v_lshl_or_b32 v36, v13, 16, v10')
    a('v_and_or_b32 v38, v13, s42, v11')
    for k in range(4):
        a(f's_waitcnt lgkmcnt({3 if k == 0 else 3})')
        a(f'v_add_lshl_u32 v{28+k}, v{28+k}, v{24+k}, 3')
        a(f'ds_write_b64 v{28+k}, v[{32+2*k}:{33+2*k}] offset:{K1_STAGE}')
    a.label('K1_NOEDGE2')
    a('s_mov_b64 exec, -1')
    a('v_lshlrev_b32 v2, 4, v0')
    a('v_add_u32 v3, %d, v2' % (RECB // 2))
    a('v_cmp_gt_u32 vcc, %d, v0' % (CH // 4))
    a('s_waitcnt lgkmcnt(0)')
    stamp(6)
    a('s_barrier')
    stamp(7)
    a('s_and_saveexec_b64 s[18:19], vcc')
    a('s_cbranch_execz K1_END')
    a('ds_read_b128 v[4:7], v2 offset:%d' % K1_STAGE)
    a('ds_read_b128 v[8:11], v2 offset:%d' % (K1_STAGE + RECB // 2))
    a('s_waitcnt lgkmcnt(1)')
    sfx = {0: '', 1: ' sc1', 2: ' nt', 3: ' sc0 sc1', 4: ' sc1 nt'}[opts.get('k1st', 1)]
    a('buffer_store_dwordx4 v[4:7], v2, s[32:35], 0 offen' + sfx)
    a('s_waitcnt lgkmcnt(0)')
    a('buffer_store_dwordx4 v[8:11], v3, s[32:35], 0 offen' + sfx)
    if opts.get('endwait', 1): a('s_waitcnt vmcnt(0)')
    if ST:
        stamp(8)
        a('s_waitcnt vmcnt(0)')
        stamp(9)
        a('s_mul_i32 s12, s2, 16')
        a('s_add_u32 s12, s12, s3')
        a('s_lshl_b32 s12, s12, 8')
        a('s_add_u32 s12, s12, 0x1100000')
        a('s_add_u32 s32, s10, s12')
        a('s_addc_u32 s33, s11, 0')
        a('s_and_b32 s33, s33, 0xffff')
        a('s_mov_b32 s34, 256')
        a('s_mov_b64 exec, -1')
        a('v_and_b32 v4, 63, v0')
        a('v_lshlrev_b32 v4, 2, v4')
        a('buffer_store_dword v60, v4, s[32:35], 0 offen')
    if opts.get('dbgtime'):
        a('s_waitcnt vmcnt(0)')
        a('s_memrealtime s[54:55]')
        a('s_waitcnt lgkmcnt(0)')
        a('s_cmp_ge_u32 s2, 8')
        a('s_cbranch_scc1 K1_END')
        a('s_cmp_lg_u32 s3, 0')
        a('s_cbranch_scc1 K1_END')
        a('v_mov_b32 v20, s54')
        a('s_lshl_b32 s56, s2, 2')
        a('s_add_u32 s56, s56, 0x1200100')
        a('v_mov_b32 v22, s56')
        a('s_mov_b64 exec, 1')
        a('global_store_dword v22, v20, s[10:11]')
    a('s_endpgm')
    a.label('K1_FRAG')
    if opts.get('codepre', 0):
        a('s_cmp_lt_u32 s2, 32')
        a('s_cbranch_scc1 K1_FRAG2')
        a('s_cmp_ge_u32 s2, 64')
        a('s_cbranch_scc1 K1_END')
        a('s_getpc_b64 s[12:13]')
        a.label('K1_PCREF')
        a('s_add_u32 s12, s12, gs_main_kernel-K1_PCREF')
        a('s_addc_u32 s13, s13, 0')
        a('v_and_b32 v1, 63, v0')
        a('v_lshlrev_b32 v2, 4, v1')
        for i in range(opts.get('codekb', 20)):
            a(f'global_load_dwordx4 v[4:7], v2, s[12:13]')
            a('v_add_u32 v2, 1024, v2')
        a('s_endpgm')
        a.label('K1_FRAG2')
    a('s_cmp_ge_u32 s2, 32')
    a('s_cbranch_scc1 K1_END')
    if opts.get('fragbar', 1):
        a('s_barrier')
    a('s_load_dwordx4 s[12:15], s[0:1], 32')
    a('s_load_dwordx4 s[16:19], s[0:1], 56')
    a('s_lshr_b32 s20, s2, 3')
    a('s_waitcnt lgkmcnt(0)')
    a('s_mov_b32 s22, s14')
    a('s_mov_b32 s23, s15')
    a('s_cmp_eq_u32 s20, 1')
    a('s_cselect_b32 s22, s18, s22')
    a('s_cselect_b32 s23, s19, s23')
    a('s_cmp_eq_u32 s20, 2')
    a('s_cselect_b32 s22, s12, s22')
    a('s_cselect_b32 s23, s13, s23')
    a('s_cmp_eq_u32 s20, 3')
    a('s_cselect_b32 s22, s16, s22')
    a('s_cselect_b32 s23, s17, s23')
    srd(a, 24, 22, 64 * 64 * 2)
    srd_off(a, 28, 10, WS_FRAG, 32 * 1024)
    a('s_and_b32 s32, s2, 3')
    a('s_lshr_b32 s33, s2, 2')
    a('s_and_b32 s33, s33, 1')
    a('s_lshl_b32 s32, s32, 11')
    a('s_lshl_b32 s33, s33, 6')
    a('s_add_u32 s32, s32, s33')
    a('v_and_b32 v1, 63, v0')
    a('v_and_b32 v2, 31, v1')
    a('v_lshlrev_b32 v2, 1, v2')
    a('v_lshrrev_b32 v3, 5, v1')
    a('v_lshlrev_b32 v3, 10, v3')
    a('v_add3_u32 v2, v2, v3, s32')
    for i in range(8):
        a(f'buffer_load_ushort v{8+i}, v2, s[24:27], 0 offen offset:{i*128}')
    a('s_mov_b32 s34, 1.0')
    a('s_and_b32 s36, s20, 1')
    a('s_cmp_eq_u32 s36, 0')
    a('s_cselect_b32 s34, 0x%x, s34' % LOG2E)
    a('s_waitcnt vmcnt(0)')
    for i in range(8):
        a(f'v_lshlrev_b32 v{8+i}, 16, v{8+i}')
        a(f'v_mul_f32 v{8+i}, s34, v{8+i}')
    for i in range(4):
        a(f'v_cvt_pk_bf16_f32 v{16+i}, v{8+2*i}, v{9+2*i}')
    a('v_lshlrev_b32 v4, 4, v1')
    a('s_lshl_b32 s35, s2, 10')
    a('v_add_u32 v4, s35, v4')
    a('buffer_store_dwordx4 v[16:19], v4, s[28:31], 0 offen')
    if opts.get('endwait', 1): a('s_waitcnt vmcnt(0)')
    a.label('K1_END')
    a('s_endpgm')

def gen_k2(a, opts):
    STAMP = opts.get('stamp', False)
    vLANE = 1; BC = 2
    WB = 4; WV = 36; AX = 68
    GA = 84; HA = 100; GB = 116; HB = 132
    PP = 148; TT_ = 156; ZZ = 164
    DEN = 172; NUM = 176
    AE = [180, 184]; BE = 188; R0 = 192
    QA = [196, 200]
    EN = 204; RA = 208; CO = 212
    pEN = 216; pEE = 217; pQI = 218; pQF = 219
    C4 = 220; SEL = [221, 222]; EE = 223; QF = 224
    F0 = 225; F1 = 226; F2 = 252; F3 = 227
    tA = 227; tB = 228; tC = 229; tD = 230; tE = 231; tF = 232; tG = 233; tH = 234; tI = 235
    TQ = 236; TR = 240
    sidA = 244; jA = 245; sidR = 246; iR4 = 247
    vST = 253; GF = 249; GD = 250
    PB = 228; TB = 236; ZB = 244
    RC = 252; RKC = 254; tJ = 255
    nvgpr = 256
    REC = PP; RK = GB; SG = HB
    G_ = [GA, GB]; H_ = [HA, HB]
    nOFF0 = AE[0]+0 if False else QA[0]; nOFF1 = QA[0]+1; nEND0 = QA[0]+2; nEND1 = QA[0]+3; nROW0 = QA[1]
    S = Regs('s', 3, 102)
    sX = S.alloc('x', 2, 2); sWC = S.alloc('wc', 2, 2); sOUT = S.alloc('out', 2, 2); sWS = S.alloc('ws', 2, 2)
    rX = S.alloc('rX', 4, 4); rT = S.alloc('rT', 4, 4); rR = S.alloc('rR', 4, 4); rF = S.alloc('rF', 4, 4)
    sW = S.alloc('w'); sNS = S.alloc('ns'); sNN = S.alloc('nn')
    sP = S.alloc('pass'); sNP = S.alloc('npass')
    sL = S.alloc('L'); sCNT = S.alloc('cnt'); sLA = S.alloc('La'); sLB = S.alloc('Lb'); sSO = S.alloc('streamoff')
    sC = S.alloc('C', 2, 2)
    sF = [S.alloc('F0', 2, 2), S.alloc('F1', 2, 2)]
    sANY = [S.alloc('any0'), S.alloc('any1')]
    s128 = S.alloc('c128'); sLO = S.alloc('lo16'); sHI = S.alloc('hi16')
    t0 = S.alloc('t0'); t1 = S.alloc('t1'); t2 = S.alloc('t2', 1, 2); t3 = S.alloc('t3')
    sSV = S.alloc('sv', 2, 2); sSV2 = S.alloc('sv2', 2, 2)
    sDB = S.alloc('dmabase'); sSWAP = S.alloc('swap')
    sDBG = S.alloc('dbg', 2, 2) if opts.get('dbgtime') else None
    sT0 = S.alloc('dbgt0', 2, 2) if opts.get('dbgtime') else None
    sT1 = S.alloc('dbgt1') if opts.get('dbgtime') else None
    sT2 = S.alloc('dbgt2') if opts.get('dbgtime') else None
    MK = S.alloc('MK', 32, 2)
    MKC = S.alloc('MKC', 2, 2)
    rO = rT
    nsgpr = S.hi
    def stamp(i):
        if not STAMP: return
        a(f's_memtime s[{t2}:{t3}]')
        a('s_waitcnt lgkmcnt(0)')
        a(f'v_writelane_b32 v{vST}, s{t2}, {i}')
    XB = 4096

    a.raw('.p2align 8')
    a.raw('.globl gs_main_kernel')
    a.raw('.type gs_main_kernel,@function')
    a.label('gs_main_kernel')
    a('s_cmp_ge_u32 s2, 256')
    a('s_cbranch_scc1 K2_END')
    a(f's_load_dwordx2 s[{sWS}:{sWS+1}], s[0:1], 88')
    a(f's_load_dwordx2 s[{sX}:{sX+1}], s[0:1], 0')
    a(f's_load_dwordx2 s[{sWC}:{sWC+1}], s[0:1], 48')
    a(f's_load_dwordx2 s[{sOUT}:{sOUT+1}], s[0:1], 72')
    a('s_and_b32 s3, s2, 7')
    a('s_lshr_b32 s2, s2, 3')
    a('s_lshl_b32 s3, s3, 5')
    a('s_add_u32 s2, s2, s3')
    if opts.get('dbgtime'):
        a(f's_load_dwordx2 s[{sDBG}:{sDBG+1}], s[0:1], 80')
        a(f's_memrealtime s[{sT0}:{sT0+1}]')
        a('s_waitcnt lgkmcnt(0)')
    if STAMP:
        a(f'v_mov_b32 v{vST}, 0')
    stamp(0)
    if STAMP:
        a(f's_memrealtime s[{t2}:{t3}]')
        a('s_waitcnt lgkmcnt(0)')
        a(f'v_writelane_b32 v{vST}, s{t2}, 11')
    a(f'v_lshrrev_b32 v{tA}, 6, v0')
    a(f'v_and_b32 v{vLANE}, 63, v0')
    a(f'v_readfirstlane_b32 s{sW}, v{tA}')
    a(f'v_lshrrev_b32 v{sidA}, 5, v{vLANE}')
    if opts.get('proprio'):
        a('s_nop 2')
        a(f's_cmp_ge_u32 s{sW}, 4')
        a('s_cbranch_scc0 K2_PP0')
        a('s_setprio 1')
        a.label('K2_PP0')
    a(f's_lshl_b32 s{t1}, s2, 10')
    a(f's_add_u32 s{t1}, s{t1}, {WS_TAB}')
    a(f's_lshl_b32 s{t0}, s{sW}, 1')
    a(f'v_add_u32 v{sidA}, s{t0}, v{sidA}')
    a(f'v_lshrrev_b32 v{tD}, 4, v{vLANE}')
    a(f'v_lshlrev_b32 v{tD}, 5, v{tD}')
    a(f's_lshl_b32 s{t0}, s{sW}, 7')
    a(f'v_add_u32 v{tD}, s{t0}, v{tD}')
    a(f'v_lshlrev_b32 v{tA}, 4, v{vLANE}')
    a('s_waitcnt lgkmcnt(0)')
    srd_off(a, rT, sWS, f's{t1}', 1024)
    for i in range(2):
        a(f'buffer_load_dwordx4 v[{SG+4*i}:{SG+4*i+3}], v{tD}, s[{rT}:{rT+3}], 0 offen offset:{16*i}')
    a(f's_mul_i32 s{t0}, s2, 3125')
    a(f's_add_u32 s{sNS}, s{t0}, 31')
    a(f's_lshr_b32 s{sNS}, s{sNS}, 5')
    a(f's_add_u32 s{t0}, s{t0}, {3125+31}')
    a(f's_lshr_b32 s{t0}, s{t0}, 5')
    a(f's_sub_u32 s{sNN}, s{t0}, s{sNS}')
    a(f's_sub_u32 s{rX}, s{sX}, {XB}')
    a(f's_subb_u32 s{rX+1}, s{sX+1}, 0')
    a(f's_and_b32 s{rX+1}, s{rX+1}, 0xffff')
    a(f's_mov_b32 s{rX+2}, {N*128 + XB}')
    a(f's_mov_b32 s{rX+3}, 0x20000')
    srd_off(a, rF, sWS, WS_FRAG, 32 * 1024)
    a(f's_lshl_b32 s{sDB}, s{sW}, 12')
    a(f's_add_u32 s{sDB}, s{sDB}, {L_DMA}')
    a(f'v_bfe_u32 v{tE}, v{vLANE}, 4, 1')
    a(f'v_and_b32 v{tF}, 7, v{vLANE}')
    a(f'v_xor_b32 v{tE}, v{tE}, v{tF}')
    a(f'v_lshlrev_b32 v{tE}, 4, v{tE}')
    for i in range(4):
        if i: a(f'v_xor_b32 v{tF}, {32*i}, v{tE}')
        a(f'v_add_u32 v{CO+i}, {XB - 1024*i}, v{tF if i else tE}')
    a(f'v_bfe_u32 v{jA}, v{vLANE}, 3, 2')
    a(f'v_lshrrev_b32 v{tF}, 5, v{vLANE}')
    a(f'v_lshlrev_b32 v{tE}, 3, v{jA}')
    a(f'v_lshl_add_u32 v{tE}, v{tF}, 2, v{tE}')
    a(f's_lshr_b32 s{t0}, s{sW}, 1')
    a(f's_lshl_b32 s{t1}, s{t0}, 5')
    a(f's_add_u32 s{t1}, s{t1}, s{sNS}')
    a(f's_and_b32 s{t2}, s{sW}, 1')
    a(f's_lshl_b32 s{t2}, s{t2}, 1')
    a(f's_add_u32 s{t1}, s{t1}, s{t2}')
    a(f'v_add_u32 v{tE}, s{t1}, v{tE}')
    a(f'v_lshlrev_b32 v{tE}, 7, v{tE}')
    a(f's_cmp_eq_u32 s{t2}, 0')
    a(f's_cbranch_scc0 K2_XI2')
    a(f'v_add_u32 v{tH}, v{tE}, v{CO}')
    a(f'v_add_u32 v{tI}, v{tE}, v{CO+1}')
    a('s_branch K2_XI')
    a.label('K2_XI2')
    a(f'v_add_u32 v{tH}, v{tE}, v{CO+2}')
    a(f'v_add_u32 v{tI}, v{tE}, v{CO+3}')
    a(f'v_add_u32 v{tH}, 2048, v{tH}')
    a(f'v_add_u32 v{tI}, 2048, v{tI}')
    a.label('K2_XI')
    a(f'v_add_u32 v{tI}, 128, v{tI}')
    a(f'v_and_b32 v{C4}, 31, v{vLANE}')
    def staging():
        a(f's_lshr_b32 s{t0}, s{sW}, 1')
        a(f's_lshl_b32 s{t0}, s{t0}, 12')
        a(f's_and_b32 s{t2}, s{sW}, 1')
        a(f's_lshl_b32 s{t2}, s{t2}, 11')
        a(f's_add_u32 s{t0}, s{t0}, s{t2}')
        a(f's_add_u32 s{t0}, s{t0}, {L_DMA}')
        a(f's_mov_b32 m0, s{t0}')
        a(f'v_lshlrev_b32 v{tA}, 4, v{vLANE}')
        if not opts.get('noxown'):
            a(f'buffer_load_dwordx4 v{tH}, s[{rX}:{rX+3}], 0 offen lds')
            a(f'buffer_load_dwordx4 v{tI}, s[{rX}:{rX+3}], 0 offen offset:1024 lds')
        a(f's_lshl_b32 s{t0}, s{sW}, 11')
        a(f's_add_u32 s{t1}, s{t0}, {L_DMA + 4*4096}')
        a(f's_mov_b32 m0, s{t1}')
        a(f's_add_u32 s{t2}, s{t0}, {16*1024}')
        a(f'buffer_load_dwordx4 v{tA}, s[{rF}:{rF+3}], s{t2} offen lds')
        a(f'buffer_load_dwordx4 v{tA}, s[{rF}:{rF+3}], s{t2} offen offset:1024 lds')
        a(f's_add_u32 s{t1}, s{t0}, {L_WST}')
        a(f's_mov_b32 m0, s{t1}')
        a('s_nop 0')
        a(f'buffer_load_dwordx4 v{tA}, s[{rF}:{rF+3}], s{t0} offen lds')
        a(f'buffer_load_dwordx4 v{tA}, s[{rF}:{rF+3}], s{t0} offen offset:1024 lds')
        srd(a, rR, sWC, 128)
        a(f'v_lshlrev_b32 v{tE}, 1, v{C4}')
        if not opts.get('nowc'):
            a(f'buffer_load_ushort v{BC}, v{tE}, s[{rR}:{rR+3}], 0 offen')
            a(f'buffer_load_ushort v{BC+1}, v{tE}, s[{rR}:{rR+3}], 0 offen offset:64')
    staging()
    MKT = (MK + 3) // 4 * 4
    if opts.get('touch', 0):
        srd(a, MKT, sWS, NBK * RECB)
        a(f'v_and_b32 v{tE}, 3, v{vLANE}')
        a(f'v_lshlrev_b32 v{tE}, 21, v{tE}')
        a(f'buffer_load_dword v{F0}, v{tE}, s[{MKT}:{MKT+3}], 0 offen')
        srd(a, MKT + 4, sOUT, N * 128)
        a(f'v_and_b32 v{tE}, 1, v{vLANE}')
        a(f'v_lshlrev_b32 v{tE}, 21, v{tE}')
        a(f'buffer_load_dword v{F1}, v{tE}, s[{MKT+4}:{MKT+7}], 0 offen')
    def lds_init():
        a(f'v_lshlrev_b32 v{tE}, 4, v0')
        for i in range(4):
            a(f'v_mov_b32 v{TR+i}, 0xffff')
        a(f'ds_write_b128 v{tE}, v[{TR}:{TR+3}] offset:{L_ENT}')
        a(f's_cmp_ge_u32 s{sW}, {(ENT_QUADS - 512) // 64}')
        a(f's_cbranch_scc1 K2_I1{tag_i[0]}')
        a(f'ds_write_b128 v{tE}, v[{TR}:{TR+3}] offset:{L_ENT + 512*16}')
        a.label(f'K2_I1{tag_i[0]}')
        assert (ENT_QUADS - 512) % 64 == 0
        for i in range(4):
            a(f'v_mov_b32 v{TR+i}, {L_VIRT}')
        a(f'v_cmp_gt_u32 vcc, {ENT_QUADS // 4}, v0')
        a(f's_and_saveexec_b64 s[{sSV}:{sSV+1}], vcc')
        a(f'ds_write_b128 v{tE}, v[{TR}:{TR+3}] offset:{L_QI}')
        a(f's_mov_b64 exec, s[{sSV}:{sSV+1}]')
        a(f's_cmp_lg_u32 s{sW}, 0')
        a(f's_cbranch_scc1 K2_I2{tag_i[0]}')
        for i in range(4):
            a(f'v_mov_b32 v{TR+i}, 0')
        a(f'ds_write_b128 v{tE}, v[{TR}:{TR+3}] offset:{L_CNT}')
        a(f'v_add_u32 v{tE}, {L_VIRT + 512}, v{tE}')
        a('s_mov_b64 exec, 0xff')
        a(f'ds_write_b128 v{tE}, v[{TR}:{TR+3}]')
        a('s_mov_b64 exec, -1')
        a.label(f'K2_I2{tag_i[0]}')
        tag_i[0] += 1
    tag_i = [0]
    lds_init()
    a(f'v_and_b32 v{tE}, 3, v{vLANE}')
    a(f'v_lshlrev_b32 v{iR4}, 2, v{tE}')
    a(f'v_lshl_add_u32 v{RA}, v{tE}, 3, v{jA}')
    a(f'v_lshrrev_b32 v{tF}, 1, v{jA}')
    a(f'v_lshl_add_u32 v{tE}, v{tE}, 1, v{tF}')
    a(f'v_bfe_u32 v{tF}, v{vLANE}, 2, 1')
    a(f's_lshl_b32 s{t0}, s{sW}, 1')
    a(f'v_add_u32 v{sidR}, s{t0}, v{tF}')
    a(f'v_lshl_add_u32 v{RA}, v{tF}, 2, v{RA}')
    a(f'v_lshrrev_b32 v{tG}, 5, v{vLANE}')
    a(f'v_cmp_eq_u32 vcc, v{tF}, v{tG}')
    a(f'v_xor_b32 v{tE}, v{tE}, v{tG}')
    a(f'v_lshlrev_b32 v{tE}, 4, v{tE}')
    a(f'v_lshl_add_u32 v{RA}, v{RA}, 7, v{tE}')
    a(f'v_mov_b32 v{tF}, 0x3f80')
    a(f'v_cndmask_b32 v{tF}, 0, v{tF}, vcc')
    for q in range(4):
        a(f'v_cmp_eq_u32 vcc, {q}, v{jA}')
        a('s_nop 1')
        a(f'v_cndmask_b32 v{AE[0]+q}, 0, v{tF}, vcc')
        a(f'v_lshlrev_b32 v{AE[1]+q}, 16, v{AE[0]+q}')
    a(f'v_cmp_gt_u32 vcc, 32, v{vLANE}')
    a(f'v_mov_b32 v{tE}, 0x0a0c0100')
    a(f'v_mov_b32 v{tF}, 0x07060100')
    a(f'v_cndmask_b32 v{SEL[0]}, v{tE}, v{tF}, vcc')
    a(f'v_mov_b32 v{tE}, 0x03020a0c')
    a(f'v_mov_b32 v{tF}, 0x03020706')
    a(f'v_cndmask_b32 v{SEL[1]}, v{tE}, v{tF}, vcc')
    a(f's_mov_b32 s{sC}, 0x{C_SCALE:x}')
    a(f's_mov_b32 s{sC+1}, 0x{C_SCALE:x}')
    a(f's_mov_b32 s{s128}, 128')
    a(f's_mov_b32 s{sLO}, 0xffff')
    a(f's_mov_b32 s{sHI}, 0xffff0000')
    a(f'v_and_b32 v{tB}, 15, v{vLANE}')
    a(f'v_lshlrev_b32 v{tB}, 3, v{tB}')
    a(f'v_lshlrev_b32 v{C4}, 2, v{C4}')
    a('s_waitcnt vmcnt(%d) lgkmcnt(0)' % (2 if opts.get('touch', 0) else 0))
    stamp(1)
    a('s_barrier')
    srd(a, rR, sWS, NBK * RECB)
    def rec_loads(vk8, nit):
        for it in range(8):
            a(f'v_mad_u32_u24 v{RK+it}, v{SG+it}, 8, v{vk8}')
        for it in range(nit):
            a(f's_mov_b64 exec, s[{MK+2*it}:{MK+2*it+1}]')
            off = ' offset:128' if it >= 8 else ''
            sk = a.newlabel('skl') if (it >= 8 and opts.get('skipb', 1)) else None
            if sk: a(f's_cbranch_execz {sk}')
            a(f'buffer_load_dwordx2 v[{REC+2*it}:{REC+2*it+1}], v{RK+it%8}, s[{rR}:{rR+3}], 0 offen{off}')
            if sk: a.label(sk)
        a('s_mov_b64 exec, -1')
    a(f'v_lshrrev_b32 v{tC}, 3, v{tB}')
    a(f'v_add_u32 v{tD}, 16, v{tC}')
    for it in range(8):
        a(f'v_cmp_gt_u32_sdwa s[{MK+2*it}:{MK+2*it+1}], v{SG+it}, v{tC} src0_sel:BYTE_3 src1_sel:DWORD')
    for it in range(8):
        a(f'v_cmp_gt_u32_sdwa s[{MK+16+2*it}:{MK+16+2*it+1}], v{SG+it}, v{tD} src0_sel:BYTE_3 src1_sel:DWORD')
    stamp(25)
    rec_loads(tB, 16)
    stamp(26)
    a(f'v_max3_u32 v{tD}, v{SG}, v{SG+1}, v{SG+2}')
    a(f'v_max3_u32 v{tD}, v{tD}, v{SG+3}, v{SG+4}')
    a(f'v_max3_u32 v{tD}, v{tD}, v{SG+5}, v{SG+6}')
    a(f'v_max_u32 v{tD}, v{tD}, v{SG+7}')
    a(f'v_lshrrev_b32 v{tD}, 24, v{tD}')
    a(f'v_cmp_lt_u32 s[{sSV2}:{sSV2+1}], 32, v{tD}')
    a(f's_mov_b64 s[{MKC}:{MKC+1}], 0')
    a(f's_cmp_lg_u64 s[{sSV2}:{sSV2+1}], 0')
    a('s_cbranch_scc1 K2_CSEL')
    a.label('K2_CBACK')

    def gemm_issue():
        a(f's_lshr_b32 s{t0}, s{sW}, 1')
        a(f's_lshl_b32 s{t1}, s{t0}, 12')
        a(f's_add_u32 s{t1}, s{t1}, {L_DMA}')
        a(f'v_add_u32 v{tA}, s{t1}, v{RA}')
        a(f'v_xor_b32 v{tB}, 32, v{tA}')
        a(f'ds_read_b128 v[{AX}:{AX+3}], v{tA}')
        a(f'ds_read_b128 v[{AX+4}:{AX+7}], v{tB}')
        a(f'v_xor_b32 v{tB}, 64, v{tA}')
        a(f'v_xor_b32 v{tC}, 96, v{tA}')
        a(f'ds_read_b128 v[{AX+8}:{AX+11}], v{tB}')
        a(f'ds_read_b128 v[{AX+12}:{AX+15}], v{tC}')
        a(f's_and_b32 s{t2}, s{sW}, 1')
        a(f's_lshl_b32 s{t3}, s{t2}, 13')
        a(f's_add_u32 s{t3}, s{t3}, {L_DMA + 4*4096}')
        a(f'v_lshlrev_b32 v{GF}, 4, v{vLANE}')
        a(f'v_add_u32 v{GF}, s{t3}, v{GF}')
        for f in range(4):
            a(f'ds_read_b128 v[{SG+4*f}:{SG+4*f+3}], v{GF} offset:{f*1024}')
        for f in range(4):
            a(f'ds_read_b128 v[{RK+4*f}:{RK+4*f+3}], v{GF} offset:{(4+f)*1024}')
        a(f's_mul_i32 s{t1}, s{t0}, {32*ROWB}')
        a(f's_lshl_b32 s{t3}, s{t2}, 7')
        a(f's_add_u32 s{t1}, s{t1}, s{t3}')
        a(f's_add_u32 s{t1}, s{t1}, {L_ACC + 512}')
        a(f'v_lshrrev_b32 v{GD}, 5, v{vLANE}')
        a(f'v_mul_u32_u24 v{GD}, {4*ROWB}, v{GD}')
        a(f'v_add3_u32 v{GD}, v{GD}, v{C4}, s{t1}')
    def gemm_mid():
        a('s_waitcnt lgkmcnt(0)')
        for kp in range(4):
            c = '0' if kp == 0 else f'v[{GA}:{GA+15}]'
            a(f'v_mfma_f32_32x32x16_bf16 v[{GA}:{GA+15}], v[{AX+4*kp}:{AX+4*kp+3}], v[{SG+4*kp}:{SG+4*kp+3}], {c}')
            c = '0' if kp == 0 else f'v[{HA}:{HA+15}]'
            a(f'v_mfma_f32_32x32x16_bf16 v[{HA}:{HA+15}], v[{AX+4*kp}:{AX+4*kp+3}], v[{RK+4*kp}:{RK+4*kp+3}], {c}')
    def gemm_mid2():
        a('s_nop 7')
        a('s_nop 3')
    def w_frags():
        a(f'v_lshlrev_b32 v{GF}, 4, v{vLANE}')
        a(f'v_add_u32 v{GF}, {L_WST}, v{GF}')
        for f in range(16):
            dst = (WB + 4*f) if f < 8 else (WV + 4*(f-8))
            if f == 12: a('s_waitcnt lgkmcnt(8)')
            a(f'ds_read_b128 v[{dst}:{dst+3}], v{GF} offset:{f*1024}')
    def gemm_store(tag):
        for i in range(16):
            a(f'v_cvt_pk_bf16_f32 v{GA+i}, v{GA+i}, v{HA+i}')
        a(f's_lshr_b32 s{t0}, s{sW}, 1')
        a(f's_cmp_eq_u32 s{t0}, 3')
        a(f's_cbranch_scc1 K2_RT3{tag}')
        for vv in range(16):
            if vv == 12: a('s_waitcnt lgkmcnt(8)')
            a(f'ds_write_b32 v{GD}, v{GA+vv} offset:{(8*(vv//4) + vv%4) * ROWB}')
        a(f's_branch K2_RTD{tag}')
        a.label(f'K2_RT3{tag}')
        a('s_mov_b32 exec_hi, 0')
        for vv in range(2):
            a(f'ds_write_b32 v{GD}, v{GA+vv} offset:{vv * ROWB}')
        a('s_mov_b64 exec, -1')
        a.label(f'K2_RTD{tag}')
    def consts():
        a(f'v_add_u32 v{RA}, s{sDB}, v{RA}')
        for kp in range(1, 4):
            a(f'v_xor_b32 v{RA+kp}, {32*kp}, v{RA}')
        a(f's_mov_b32 s{t3}, 0x{LOG2E:x}')
        for cc in range(2):
            a(f'v_lshlrev_b32 v{BC+cc}, 16, v{BC+cc}')
            a(f'v_mul_f32 v{BC+cc}, s{t3}, v{BC+cc}')
        a(f'v_cvt_pk_bf16_f32 v{BC}, 0, v{BC}')
        a(f'v_cvt_pk_bf16_f32 v{BC+1}, v{BC+1}, 0')
        a(f'v_cmp_gt_u32 vcc, 32, v{vLANE}')
        a(f'v_mov_b32 v{tG}, 0xb2000000')
        a(f'v_mov_b32 v{tH}, 0xb200')
        a(f'v_cndmask_b32 v{BC}, v{tG}, v{BC}, vcc')
        a(f'v_cndmask_b32 v{BC+1}, v{tH}, v{BC+1}, vcc')

    def hist():
        a(f'v_mov_b32 v{tE}, 1')
        for it in range(NIT):
            if it == 12: a('s_waitcnt lgkmcnt(8)')
            a(f's_mov_b64 exec, s[{MK+2*it}:{MK+2*it+1}]')
            sk = a.newlabel('skh') if (it >= 8 and opts.get('skipb', 1)) else None
            if sk: a(f's_cbranch_execz {sk}')
            a(f'ds_add_rtn_u32 v{RK+it}, v{REC+2*it+1}, v{tE} offset:{L_CNT}')
            if sk: a.label(sk)
        sk = a.newlabel('skhc')
        a(f's_mov_b64 exec, s[{MKC}:{MKC+1}]')
        a(f's_cbranch_execz {sk}')
        a(f'ds_add_rtn_u32 v{RKC}, v{RC+1}, v{tE} offset:{L_CNT}')
        a.label(sk)
        a('s_mov_b64 exec, -1')

    def scan_nodes(tag, mid=None):
        a(f'v_lshlrev_b32 v{tA}, 3, v{vLANE}')
        a(f'ds_read_b64 v[{TQ}:{TQ+1}], v{tA} offset:{L_CNT}')
        a(f'v_mul_u32_u24 v{nROW0}, {2*ROWB}, v{vLANE}')
        a(f'v_add_u32 v{nROW0}, {L_ACC}, v{nROW0}')
        if mid: mid()
        else: a('s_waitcnt lgkmcnt(0)')
        a(f'v_add_u32 v{tE}, 3, v{TQ}')
        a(f'v_add_u32 v{tF}, 3, v{TQ+1}')
        a(f'v_and_b32 v{tE}, -4, v{tE}')
        a(f'v_and_b32 v{tF}, -4, v{tF}')
        a(f'v_add_u32 v{tC}, v{tE}, v{tF}')
        a(f'v_max_u32 v{tB}, v{tE}, v{tF}')
        a(f'v_mov_b32 v{tD}, v{tC}')
        wave_scan(a, 'v_add_u32', tD)
        a(f'v_sub_u32 v{nOFF0}, v{tD}, v{tC}')
        a(f'v_readlane_b32 s{t1}, v{tD}, 63')
        a(f'v_add_u32 v{nOFF1}, v{nOFF0}, v{tE}')
        a(f'v_lshlrev_b32 v{TQ+2}, 2, v{nOFF0}')
        a(f'v_lshlrev_b32 v{TQ+3}, 2, v{nOFF1}')
        a(f'ds_write_b64 v{tA}, v[{TQ+2}:{TQ+3}] offset:{L_TAB}')
        a(f'v_mov_b32 v{nEND0}, v{nOFF1}')
        a(f'v_add_u32 v{nEND1}, v{nOFF1}, v{tF}')
        a(f's_add_u32 s{t1}, s{t1}, 127')
        a(f's_lshr_b32 s{t1}, s{t1}, 7')
        a(f's_lshr_b32 s{t0}, s{t1}, 1')
        a(f's_sub_u32 s{t1}, s{t1}, s{t0}')
        a(f's_lshl_b32 s{sLA}, s{t1}, 2')
        a(f's_lshl_b32 s{sLB}, s{t0}, 2')
        a(f's_sub_u32 s{sSO}, s{sLA}, s{sLB}')
        a(f's_lshl_b32 s{sSO}, s{sSO}, 3')
        a(f's_cmp_lt_u32 s{sW}, 4')
        a(f's_cselect_b32 s{sL}, s{sLA}, s{sLB}')
        a(f's_cselect_b32 s{sSO}, 0, s{sSO}')
        a(f's_lshr_b32 s{sCNT}, s{sL}, 2')
        a(f's_sub_u32 s{sCNT}, s{sCNT}, 1')
    def qi_fill(tag, split, nwq=8):
        B0 = TQ + 2; B1 = TQ + 3; V0 = TR + 1; V1 = TR + 2
        a(f'v_max_u32 v{TR}, v{tE}, v{tF}')
        if split:
            a(f'v_cvt_f32_u32 v{tA}, s{sLA}')
            a(f'v_cvt_f32_u32 v{tD}, s{sLB}')
            a(f'v_rcp_f32 v{tA}, v{tA}')
            a(f'v_rcp_f32 v{tD}, v{tD}')
            a(f's_lshl_b32 s{t0}, s{sLA}, 5')
            a(f's_sub_u32 s{t1}, s{sLA}, s{sLB}')
            a(f's_lshl_b32 s{t1}, s{t1}, 5')
            a(f'v_mul_f32 v{tA}, 0.25, v{tA}')
            a(f'v_mul_f32 v{tD}, 0.25, v{tD}')
            for (OFF, nx, B, Vv) in ((nOFF0, tB, B0, V0), (nOFF1, tC, B1, V1)):
                a(f'v_cmp_gt_u32 vcc, s{t0}, v{OFF}')
                a(f'v_subrev_u32 v{tG}, s{t1}, v{OFF}')
                a('s_nop 0')
                a(f'v_cndmask_b32 v{tG}, v{tG}, v{OFF}, vcc')
                a(f'v_cndmask_b32 v{tH}, v{tD}, v{tA}, vcc')
                a(f'v_cvt_f32_u32 v{tG}, v{tG}')
                a(f'v_add_f32 v{tG}, 2.0, v{tG}')
                a(f'v_mul_f32 v{tG}, v{tH}, v{tG}')
                a(f'v_cvt_u32_f32 v{nx}, v{tG}')
                a(f'v_add_u32 v{nx}, 1, v{nx}')
                a(f'v_mov_b32 v{tG}, s{sLB}')
                a(f'v_mov_b32 v{tH}, s{sLA}')
                a(f'v_cndmask_b32 v{tG}, v{tG}, v{tH}, vcc')
                a(f'v_mov_b32 v{tH}, s{t1}')
                a(f'v_cndmask_b32 v{tH}, v{tH}, 0, vcc')
                a(f'v_lshlrev_b32 v{tG}, 2, v{tG}')
                a(f'v_mad_u32_u24 v{B}, v{nx}, v{tG}, v{tH}')
            a(f's_movk_i32 s{t1}, {VROWB}')
            a(f'v_mov_b32 v{tD}, {L_VIRT}')
            a(f'v_mad_u32_u24 v{V0}, v{tB}, s{t1}, v{tD}')
            a(f'v_mad_u32_u24 v{V1}, v{tC}, s{t1}, v{tD}')
            a(f'v_add_u32 v{tD}, {ROWB}, v{nROW0}')
            for nd, (B, Vv, END, nx) in enumerate(((B0, V0, nEND0, tB), (B1, V1, nEND1, tC))):
                lab = a.newlabel('nosplit')
                a(f'v_lshrrev_b32 v{tG}, {1 if nwq == 8 else 2}, v{nx}')
                a(f'v_cmp_lt_u32 vcc, v{B}, v{END}')
                a(f'v_cmp_eq_u32 s[{sSV}:{sSV+1}], s{sW}, v{tG}')
                a(f's_and_b64 vcc, vcc, s[{sSV}:{sSV+1}]')
                a(f's_cbranch_scc0 {lab}')
                lp = a.newlabel('splitlp')
                a.label(lp)
                a(f's_ff1_i32_b64 s{t0}, vcc')
                a(f's_bitset0_b64 vcc, s{t0}')
                a(f'v_readlane_b32 s{t2}, v{nROW0 if nd == 0 else tD}, s{t0}')
                a(f'v_readlane_b32 s{t3}, v{Vv}, s{t0}')
                a(f'v_lshrrev_b32 v{tG}, 0, v{C4}')
                a('s_mov_b32 exec_hi, 0')
                a(f'v_add_u32 v{tH}, s{t2}, v{tG}')
                a(f'ds_read_b32 v{tI}, v{tH} offset:512')
                a(f'v_add_u32 v{tH}, s{t3}, v{tG}')
                a(f'v_mov_b32 v{tG}, s{t2}')
                a(f'v_mov_b32 v{tA}, s{t3}')
                a(f'ds_write_b32 v{tG}, v{tA} offset:768')
                a('s_waitcnt lgkmcnt(1)')
                a(f'ds_write_b32 v{tH}, v{tI} offset:512')
                a('s_mov_b64 exec, -1')
                a(f's_cmp_lg_u64 vcc, 0')
                a(f's_cbranch_scc1 {lp}')
                a.label(lab)
        a(f's_lshl_b32 s{t0}, s{sW}, 2')
        a(f'v_add_u32 v{tA}, s{t0}, v{nOFF0}')
        a(f'v_add_u32 v{tB}, s{t0}, v{nOFF1}')
        a(f'v_add_u32 v{tC}, {ROWB}, v{nROW0}')
        lp = f'K2_QF{tag}'
        a.label(lp)
        a(f's_add_u32 s{t1}, s{t0}, 4')
        a(f'v_cmp_eq_u32 s[{sSV}:{sSV+1}], s{t1}, v{tE}')
        a(f'v_cmp_eq_u32 s[{sSV2}:{sSV2+1}], s{t1}, v{tF}')
        if split:
            a(f'v_add_u32 v{tG}, 4, v{tA}')
            a(f'v_add_u32 v{tH}, 4, v{tB}')
            a(f'v_cmp_eq_u32 vcc, v{tG}, v{B0}')
            a(f's_or_b64 s[{sSV}:{sSV+1}], s[{sSV}:{sSV+1}], vcc')
            a(f'v_cmp_eq_u32 vcc, v{tH}, v{B1}')
            a(f's_or_b64 s[{sSV2}:{sSV2+1}], s[{sSV2}:{sSV2+1}], vcc')
            a(f'v_cmp_ge_u32 vcc, v{tA}, v{B0}')
            a('s_nop 1')
            a(f'v_cndmask_b32 v{tG}, v{nROW0}, v{V0}, vcc')
            a(f'v_cmp_ge_u32 vcc, v{tB}, v{B1}')
            a('s_nop 1')
            a(f'v_cndmask_b32 v{tH}, v{tC}, v{V1}, vcc')
        else:
            a(f'v_mov_b32 v{tG}, v{nROW0}')
            a(f'v_mov_b32 v{tH}, v{tC}')
        a(f'v_or_b32 v{tD}, 0x80000000, v{tG}')
        a(f'v_or_b32 v{tI}, 0x80000000, v{tH}')
        a(f'v_cmp_lt_u32 vcc, s{t0}, v{tE}')
        a(f'v_cndmask_b32 v{tG}, v{tG}, v{tD}, s[{sSV}:{sSV+1}]')
        a(f'v_cndmask_b32 v{tH}, v{tH}, v{tI}, s[{sSV2}:{sSV2+1}]')
        a(f'v_cmp_lt_u32 s[{sSV}:{sSV+1}], s{t0}, v{tF}')
        a('s_mov_b64 exec, vcc')
        a(f'ds_write_b32 v{tA}, v{tG} offset:{L_QI}')
        a(f's_mov_b64 exec, s[{sSV}:{sSV+1}]')
        a(f'ds_write_b32 v{tB}, v{tH} offset:{L_QI}')
        a('s_mov_b64 exec, -1')
        a(f's_add_u32 s{t0}, s{t0}, {4*nwq}')
        a(f'v_add_u32 v{tA}, {4*nwq}, v{tA}')
        a(f'v_add_u32 v{tB}, {4*nwq}, v{tB}')
        a(f'v_cmp_lt_u32 vcc, s{t0}, v{TR}')
        a(f's_cbranch_vccnz {lp}')
    def scatter():
        a('s_waitcnt lgkmcnt(0)')
        for it in range(8):
            a(f's_mov_b64 exec, s[{MK+2*it}:{MK+2*it+1}]')
            a(f'ds_read_b32 v{AX+it}, v{REC+2*it+1} offset:{L_TAB}')
        for it in range(8):
            a(f's_mov_b64 exec, s[{MK+2*it}:{MK+2*it+1}]')
            a('s_waitcnt lgkmcnt(7)')
            a(f'v_lshl_add_u32 v{AX+it}, v{RK+it}, 2, v{AX+it}')
            a(f'ds_write_b32 v{AX+it}, v{REC+2*it} offset:{L_ENT}')
        for it in range(8, 16):
            sk = a.newlabel('sks')
            a(f's_mov_b64 exec, s[{MK+2*it}:{MK+2*it+1}]')
            if opts.get('skipb', 1): a(f's_cbranch_execz {sk}')
            a(f'ds_read_b32 v{AX+it}, v{REC+2*it+1} offset:{L_TAB}')
            a('s_waitcnt lgkmcnt(0)')
            a(f'v_lshl_add_u32 v{AX+it}, v{RK+it}, 2, v{AX+it}')
            a(f'ds_write_b32 v{AX+it}, v{REC+2*it} offset:{L_ENT}')
            a.label(sk)
        sk = a.newlabel('sksc')
        a(f's_mov_b64 exec, s[{MKC}:{MKC+1}]')
        a(f's_cbranch_execz {sk}')
        a(f'ds_read_b32 v{tJ}, v{RC+1} offset:{L_TAB}')
        a('s_waitcnt lgkmcnt(0)')
        a(f'v_lshl_add_u32 v{tJ}, v{RKC}, 2, v{tJ}')
        a(f'ds_write_b32 v{tJ}, v{RC} offset:{L_ENT}')
        a.label(sk)
        a('s_mov_b64 exec, -1')

    def setup_ptrs():
        a(f'v_add_u32 v{tB}, s{sSO}, v{jA}')
        a(f'v_mad_u32_u24 v{tA}, v{sidA}, s{sL}, v{tB}')
        a(f'v_lshlrev_b32 v{pEN}, 4, v{tA}')
        a(f'ds_read_b128 v[{EN}:{EN+3}], v{pEN} offset:{L_ENT}')
        a(f'v_lshlrev_b32 v{pQF}, 2, v{tA}')
        a(f'v_sub_u32 v{pQI}, v{tA}, v{jA}')
        a(f'v_lshlrev_b32 v{pQI}, 2, v{pQI}')
        a(f'v_add_u32 v{pQI}, {L_QI}, v{pQI}')
        a(f'v_mad_u32_u24 v{tA}, v{sidR}, s{sL}, v{tB}')
        a(f'v_lshl_add_u32 v{pEE}, v{tA}, 4, v{iR4}')
        a(f's_mov_b32 m0, s{sDB}')

    def dma_addr():
        return [f'v_mad_u32_u16 v{EN+i}, v{EN+i}, s{s128}, v{CO+i}' for i in range(4)]
    def dma_issue():
        if opts.get('nodma'): return []
        return [f'buffer_load_dwordx4 v{EN+i}, s[{rX}:{rX+3}], 0 offen offset:{1024*i} lds' if i else
                f'buffer_load_dwordx4 v{EN}, s[{rX}:{rX+3}], 0 offen lds' for i in range(4)]

    def main_loop(tag, atomic):
        flush_blocks = []
        PS = [(PP, TT_, ZZ), (PB, TB, ZB)]
        def flush_body(par, j):
            a(f's_bfe_i32 exec_lo, s{sF[par]}, 0x{(1<<16)|(8*j):x}')
            a(f's_bfe_i32 exec_hi, s{sF[par]+1}, 0x{(1<<16)|(8*j):x}')
            a(f'v_add_f32 v{F0}, v{DEN}, v{DEN+1}')
            a(f'v_add_f32 v{F1}, v{NUM}, v{NUM+1}')
            a(f'v_add_f32 v{F2}, v{DEN+2}, v{DEN+3}')
            a(f'v_add_f32 v{F3}, v{NUM+2}, v{NUM+3}')
            a(f'v_mov_b64 v[{DEN}:{DEN+1}], 0')
            a(f'v_mov_b64 v[{NUM}:{NUM+1}], 0')
            if atomic:
                a(f'ds_add_f32 v{QA[par]+j}, v{F0}')
                a(f'ds_add_f32 v{QA[par]+j}, v{F1} offset:256')
                a(f'ds_add_f32 v{QA[par]+j}, v{F2} offset:128')
                a(f'ds_add_f32 v{QA[par]+j}, v{F3} offset:384')
            else:
                a(f'ds_write2_b32 v{QA[par]+j}, v{F0}, v{F1} offset0:0 offset1:64')
                a(f'ds_write2_b32 v{QA[par]+j}, v{F2}, v{F3} offset0:32 offset1:96')
            a(f'v_mov_b64 v[{DEN+2}:{DEN+3}], 0')
            a(f'v_mov_b64 v[{NUM+2}:{NUM+3}], 0')
            a('s_mov_b64 exec, -1')
        def post2(par):
            for j in range(4):
                for cc in range(2):
                    p, t, z = (r + 2*j for r in PS[cc])
                    a(f'v_pk_fma_f32 v[{NUM+2*cc}:{NUM+2*cc+1}], v[{p}:{p+1}], v[{t}:{t+1}], v[{NUM+2*cc}:{NUM+2*cc+1}]')
                    a(f'v_pk_fma_f32 v[{DEN+2*cc}:{DEN+2*cc+1}], v[{p}:{p+1}], v[{z}:{z+1}], v[{DEN+2*cc}:{DEN+2*cc+1}]')
                if opts.get('noflush'): continue
                fl = a.newlabel('fl'); back = a.newlabel('bk')
                a(f's_bitcmp1_b32 s{sANY[par]}, {8*j}')
                a(f's_cbranch_scc1 {fl}')
                a.label(back)
                flush_blocks.append((fl, back, par, j))
        def pre(cur):
            g0 = G_[cur]; h0 = H_[cur]; P_, T_, Z_ = PS[cur]
            for j in range(4):
                g = g0 + 4*j
                a(f'v_pk_fma_f32 v[{g}:{g+1}], v[{g}:{g+1}], s[{sC}:{sC+1}], s[{sC}:{sC+1}] clamp')
                a(f'v_pk_fma_f32 v[{g+2}:{g+3}], v[{g+2}:{g+3}], s[{sC}:{sC+1}], s[{sC}:{sC+1}] clamp')
            for j in range(4):
                g = g0 + 4*j; h = h0 + 4*j
                X = f'v[{g}:{g+1}]'; Y = f'v[{g+2}:{g+3}]'
                p = P_ + 2*j; t = T_ + 2*j; z = Z_ + 2*j
                a(f'v_pk_mul_f32 v[{t}:{t+1}], {Y}, v[{h}:{h+1}]')
                a(f'v_pk_mul_f32 v[{p}:{p+1}], {X}, {Y}')
                a(f'v_pk_add_f32 v[{z}:{z+1}], {X}, {Y}')
                a(f'v_pk_fma_f32 v[{t}:{t+1}], {X}, v[{h+2}:{h+3}], v[{t}:{t+1}]')
        def mfma_list(nxt, cc):
            Gs = f'v[{G_[nxt]}:{G_[nxt]+15}]'; Hs = f'v[{H_[nxt]}:{H_[nxt]+15}]'
            out = []
            for kp in range(4):
                wb = WB + 16*cc + 4*kp; wv = WV + 16*cc + 4*kp; ax = AX + 4*kp
                out.append(f'v_mfma_f32_32x32x16_bf16 {Hs}, v[{ax}:{ax+3}], v[{wv}:{wv+3}], {"0" if kp == 0 else Hs}')
                out.append(f'v_mfma_f32_32x32x16_bf16 {Gs}, v[{ax}:{ax+3}], v[{wb}:{wb+3}], {"0" if kp == 0 else Gs}')
            out.append(f'v_mfma_f32_32x32x16_bf16 {Gs}, v[{AE[cc]}:{AE[cc]+3}], v[{BE}:{BE+3}], {Gs}')
            return out
        def trans_list(cur):
            Pp = PS[cur ^ 1][0]
            return [f'v_rcp_f32 v{Pp+i}, v{Pp+i}' for i in range(8)] + [f'v_exp_f32 v{G_[cur]+i}, v{G_[cur]+i}' for i in range(16)]
        def weave(mf, tr, gaps):
            dist = [3, 3, 3, 3, 3, 3, 2, 2, 2]
            if opts.get('nogaps'): gaps = {}
            if opts.get('nomf'): mf = None
            k = 0
            for m in range(9):
                for ins in gaps.get(('m', m), []): a(ins)
                if mf: a(mf[m])
                for _ in range(dist[m]):
                    a(tr[k])
                    for ins in gaps.get(k, []): a(ins)
                    k += 1
            assert k == len(tr)
        def stage0(par):
            g = {}
            da = dma_addr()
            g[0] = [f'ds_read_b32 v{QF}, v{pQF} offset:{L_QI + 16*(par+1)}']
            g[1] = [f'ds_read_b32 v{EE}, v{pEE} offset:{L_ENT + 64*(par+1)}']
            g[3] = [f'v_and_or_b32 v{BE}, v{R0}, s{sHI}, v{BC+1}']
            g[6] = [da[0]]; g[9] = [da[1]]; g[12] = [da[2]]; g[15] = [da[3]]
            axr = [f'ds_read_b128 v[{AX+4*kp}:{AX+4*kp+3}], v{RA+kp}' for kp in range(4)]
            early = opts.get('axearly', 0)
            if early:
                for kp, gp in enumerate(opts.get('axgaps', (8, 11, 17, 21))):
                    g.setdefault(gp, [])
                    g[gp] = g[gp] + ((['s_waitcnt vmcnt(0)'] if kp == 0 else []) + [axr[kp]])
            weave(mfma_list(1, 1), trans_list(0), g)
            axpre = opts.get('axpre', 1)
            if axpre and not early and not opts.get('nogaps'):
                a('s_waitcnt vmcnt(0)')
                for ins in axr: a(ins)
            post2(par ^ 1)
            qn = QA[par ^ 1]
            if not opts.get('nogaps'):
                a(f'ds_read_b128 v[{qn}:{qn+3}], v{pQI} offset:{16*(par+1)}')
                if not early and not axpre:
                    a('s_waitcnt vmcnt(0)')
                    for ins in axr: a(ins)
            pre(0)
            a(f's_sub_u32 s{sCNT}, s{sCNT}, 1')
        def stage1(par):
            qn = QA[par ^ 1]
            g = {}
            di = dma_issue()
            g[('m', 0)] = ['s_waitcnt lgkmcnt(0)']
            dg = opts.get('dmag', 0)
            dd = {0: (0, 1, 2, 3), 1: (8, 10, 12, 14), 2: (6, 8, 10, 12), 3: (12, 14, 16, 18)}[dg]
            g[0] = [f'v_mad_u32_u24 v{qn}, v{qn}, 1, v{C4}']
            g[1] = [f'v_mad_u32_u24 v{qn+1}, v{qn+1}, 1, v{C4}']
            g[2] = [f'ds_read_b32 v{R0}, v{qn} offset:512']
            g[3] = [f'v_mad_u32_u24 v{qn+2}, v{qn+2}, 1, v{C4}', f'ds_read_b32 v{BE+1}, v{qn+1} offset:512']
            g[4] = [f'v_mad_u32_u24 v{qn+3}, v{qn+3}, 1, v{C4}', f'ds_read_b32 v{BE+2}, v{qn+2} offset:512']
            g[5] = [f'ds_read_b32 v{BE+3}, v{qn+3} offset:512']
            g[7] = [f'v_perm_b32 v{AE[0]}, v{EE}, v{AE[0]}, v{SEL[0]}']
            g[9] = [f'v_perm_b32 v{AE[1]}, v{EE}, v{AE[1]}, v{SEL[1]}']
            g[11] = [f'v_cmp_gt_i32 s[{sF[par^1]}:{sF[par^1]+1}], 0, v{QF}']
            if par == 1:
                g[13] = [f'v_add_u32 v{pQI}, 32, v{pQI}']
                g[14] = [f'v_add_u32 v{pQF}, 32, v{pQF}']
                g[15] = [f'v_add_u32 v{pEE}, 128, v{pEE}']
                g[16] = [f'v_add_u32 v{pEN}, 128, v{pEN}']
            g[17] = [f's_or_b32 s{sANY[par^1]}, s{sF[par^1]}, s{sF[par^1]+1}'] if not opts.get('noany') else [f's_mov_b32 s{sANY[par^1]}, 0']
            g[19] = ['s_waitcnt lgkmcnt(%d)' % (1 if dd[3] >= 18 else 0), f'v_and_or_b32 v{BE}, v{R0}, s{sLO}, v{BC}']
            for i_, gp in enumerate(dd):
                if di: g[gp] = g.get(gp, []) + [di[i_]]
            en_gap = max(dd[3] + 1, 6)
            en_rd = f'ds_read_b128 v[{EN}:{EN+3}], v{pEN} offset:{L_ENT + 64*(par+3)}'
            if en_gap >= 19:
                g[20] = g.get(20, []) + [en_rd]
            else:
                g[en_gap] = g.get(en_gap, []) + [en_rd]
            if par == 1:
                pass
            weave(mfma_list(0, 0), trans_list(1), g)
            pre(1)
        def last_stage1(par):
            weave(None, trans_list(1), {})
            pre(1)
            for i in range(8):
                a(f'v_rcp_f32 v{PB+i}, v{PB+i}')
            a('s_nop 0')
            post2(par)
        L0 = f'K2_T0{tag}'; E0 = f'K2_E0{tag}'; E1 = f'K2_E1{tag}'; DONE = f'K2_MD{tag}'
        PR = opts.get('prio', 1)
        if PR:
            a(f's_add_u32 s{t0}, s{sCNT}, 1')
            a(f's_mul_i32 s{t0}, s{t0}, {opts.get("pfrac", 20)}')
            a(f's_lshr_b32 s{t0}, s{t0}, 6')
            a(f's_lshl_b32 s{t0}, s{t0}, 1')
            a(f's_sub_u32 s{sSWAP}, s{sCNT}, s{t0}')
            a(f's_cmp_ge_u32 s{sW}, 4')
            a(f's_cbranch_scc0 K2_PR0{tag}')
            a('s_setprio 1')
            a.label(f'K2_PR0{tag}')
        if PR == 3:
            a(f's_cmp_ge_u32 s{sW}, 4')
            a(f's_cselect_b32 s{sSWAP}, 1, 0')
        a.label(L0)
        if PR == 3:
            a(f's_xor_b32 s{sSWAP}, s{sSWAP}, 1')
            a(f's_cbranch_scc1 K2_PH{tag}')
            a('s_setprio 0')
            a(f's_branch K2_PD{tag}')
            a.label(f'K2_PH{tag}')
            a('s_setprio 1')
            a.label(f'K2_PD{tag}')
        elif PR:
            a(f's_cmp_eq_u32 s{sCNT}, s{sSWAP}')
            a(f's_cbranch_scc1 K2_SWP{tag}')
            a.label(f'K2_SWB{tag}')
        stage0(0)
        a(f's_cbranch_scc1 {E0}')
        stage1(0)
        stage0(1)
        a(f's_cbranch_scc1 {E1}')
        stage1(1)
        a(f's_branch {L0}')
        a.label(E0)
        last_stage1(0)
        a(f's_branch {DONE}')
        a.label(E1)
        last_stage1(1)
        a(f's_branch {DONE}')
        if PR and PR != 3:
            a.label(f'K2_SWP{tag}')
            a(f's_cmp_ge_u32 s{sW}, 4')
            a(f's_cbranch_scc1 K2_SW0{tag}')
            a('s_setprio 1')
            a(f's_branch K2_SWB{tag}')
            a.label(f'K2_SW0{tag}')
            a('s_setprio 0')
            a(f's_branch K2_SWB{tag}')
        for (fl, back, par, j) in flush_blocks:
            a.label(fl)
            flush_body(par, j)
            a(f's_branch {back}')
        a.label(DONE)
        if PR: a('s_setprio 0')

    def pipeline_fill():
        q0 = QA[0]
        a(f'ds_read_b128 v[{q0}:{q0+3}], v{pQI}')
        a(f'ds_read_b32 v{QF}, v{pQF} offset:{L_QI}')
        a(f'ds_read_b32 v{EE}, v{pEE} offset:{L_ENT}')
        a(f'ds_read_b128 v[{EN}:{EN+3}], v{pEN} offset:{L_ENT + 64}')
        for i in range(2):
            a(f'v_mov_b64 v[{DEN+2*i}:{DEN+2*i+1}], 0')
            a(f'v_mov_b64 v[{NUM+2*i}:{NUM+2*i+1}], 0')
        for i in range(8):
            a(f'v_mov_b32 v{PP+i}, 1.0')
            a(f'v_mov_b32 v{PB+i}, 1.0')
        for i in range(4):
            a(f'v_mov_b64 v[{TT_+2*i}:{TT_+2*i+1}], 0')
            a(f'v_mov_b64 v[{ZZ+2*i}:{ZZ+2*i+1}], 0')
            a(f'v_mov_b64 v[{TB+2*i}:{TB+2*i+1}], 0')
            a(f'v_mov_b64 v[{ZB+2*i}:{ZB+2*i+1}], 0')
        a(f's_mov_b32 s{sANY[1]}, 0')
        a('s_waitcnt lgkmcnt(0)')
        for q in range(4):
            a(f'v_mad_u32_u24 v{q0+q}, v{q0+q}, 1, v{C4}')
        a(f'ds_read_b32 v{R0}, v{q0} offset:512')
        for q in range(1, 4):
            a(f'ds_read_b32 v{BE+q}, v{q0+q} offset:512')
        a(f'v_perm_b32 v{AE[0]}, v{EE}, v{AE[0]}, v{SEL[0]}')
        a(f'v_perm_b32 v{AE[1]}, v{EE}, v{AE[1]}, v{SEL[1]}')
        a(f'v_cmp_gt_i32 s[{sF[0]}:{sF[0]+1}], 0, v{QF}')
        for ins in dma_addr(): a(ins)
        stamp(21)
        a('s_waitcnt vmcnt(0)')
        stamp(22)
        for kp in range(4):
            a(f'ds_read_b128 v[{AX+4*kp}:{AX+4*kp+3}], v{RA+kp}')
        a(f's_or_b32 s{sANY[0]}, s{sF[0]}, s{sF[0]+1}')
        a('s_waitcnt lgkmcnt(0)')
        a(f'v_and_or_b32 v{BE}, v{R0}, s{sLO}, v{BC}')
        for ins in dma_issue(): a(ins)
        a(f'ds_read_b128 v[{EN}:{EN+3}], v{pEN} offset:{L_ENT + 128}')
        Gs = f'v[{GA}:{GA+15}]'; Hs = f'v[{HA}:{HA+15}]'
        for kp in range(4):
            a(f'v_mfma_f32_32x32x16_bf16 {Hs}, v[{AX+4*kp}:{AX+4*kp+3}], v[{WV+4*kp}:{WV+4*kp+3}], {"0" if kp == 0 else Hs}')
            a(f'v_mfma_f32_32x32x16_bf16 {Gs}, v[{AX+4*kp}:{AX+4*kp+3}], v[{WB+4*kp}:{WB+4*kp+3}], {"0" if kp == 0 else Gs}')
        a(f'v_mfma_f32_32x32x16_bf16 {Gs}, v[{AE[0]}:{AE[0]+3}], v[{BE}:{BE+3}], {Gs}')
        a('s_waitcnt lgkmcnt(0)')
        a('s_nop 7')
        a('s_nop 3')
    def forced_flags():
        a(f's_sub_u32 s{t1}, s{sL}, 1')
        a(f's_lshl_b32 s{t1}, s{t1}, 2')
        a(f'v_add_u32 v{tB}, s{t1}, v{pQI}')
        a(f'v_mov_b32 v{tA}, 0x80000000')
        a('s_mov_b32 exec_lo, 1')
        a('s_mov_b32 exec_hi, 1')
        a(f'ds_or_b32 v{tB}, v{tA}')
        a('s_mov_b64 exec, -1')

    stamp(2)
    a(f's_mov_b64 exec, s[{sSV2}:{sSV2+1}]')
    a(f'v_mov_b32 v{tD}, {L_CNT + 127*4}')
    a(f'v_mov_b32 v{tE}, 1')
    a(f'ds_write_b32 v{tD}, v{tE}')
    a('s_mov_b64 exec, -1')
    gemm_issue()
    stamp(28)
    gemm_mid()
    gemm_mid2()
    stamp(29)
    a(f's_cmp_lg_u32 s{sW}, 0')
    a('s_cbranch_scc1 K2_NOCI')
    a(f'v_mul_u32_u24 v{tA}, {2*ROWB}, v{vLANE}')
    a(f'v_mov_b32 v{tB}, {L_ZERO}')
    a(f'v_add_u32 v{tA}, {L_ACC}, v{tA}')
    a(f's_mov_b32 exec_hi, {(1 << (MAXN // 2 - 32)) - 1}')
    a(f'ds_write_b32 v{tA}, v{tB} offset:768')
    a(f'ds_write_b32 v{tA}, v{tB} offset:{768 + ROWB}')
    a('s_mov_b64 exec, -1')
    a.label('K2_NOCI')
    gemm_store('F')
    stamp(3)
    a('s_waitcnt vmcnt(0) lgkmcnt(0)')
    stamp(23)
    hist()
    a('s_waitcnt lgkmcnt(0)')
    stamp(24)
    if opts.get('proprio') == 1: a('s_setprio 0')
    a('s_barrier')
    stamp(4)
    scan_nodes('F')
    a(f'v_readlane_b32 s{t0}, v{TQ+1}, 63')
    a(f's_cmp_eq_u32 s{sLB}, 0')
    a(f's_cselect_b32 s{t1}, s{sLA}, s{sLB}')
    a(f's_lshl_b32 s{t1}, s{t1}, 2')
    a(f'v_cmp_lt_u32 vcc, s{t1}, v{tB}')
    a(f's_cmp_lg_u32 s{t0}, 0')
    a('s_cbranch_scc1 K2_SLOW')
    a(f's_add_u32 s{t1}, s{sLA}, s{sLB}')
    a(f's_cmp_gt_u32 s{t1}, {(ENT_QUADS - 8) // 8}')
    a('s_cbranch_scc1 K2_SLOW')
    a('s_cbranch_vccnz K2_SLOW')
    stamp(15)
    scatter()
    stamp(16)
    a('s_waitcnt lgkmcnt(0)')
    a('s_barrier')
    stamp(5)
    a(f's_cmp_eq_u32 s{sL}, 0')
    a('s_cbranch_scc1 K2_NOL')
    setup_ptrs()
    a('s_waitcnt lgkmcnt(0)')
    for ins in dma_addr(): a(ins)
    for ins in dma_issue(): a(ins)
    a.label('K2_NOL')
    stamp(17)
    if opts.get('qi4', 0):
        a(f's_cmp_ge_u32 s{sW}, 4')
        a('s_cbranch_scc1 K2_QIDONE')
    a(f'v_cmp_gt_u32 vcc, {MAXN // 2}, v{vLANE}')
    a(f'v_lshl_or_b32 v{tB}, v{vLANE}, 1, 1')
    a(f'v_cmp_le_u32 s[{sSV}:{sSV+1}], s{sNN}, v{tB}')
    a(f'v_mov_b32 v{tC}, 1')
    a('s_nop 0')
    a(f'v_cndmask_b32 v{tB}, v{TQ+1}, v{tC}, s[{sSV}:{sSV+1}]')
    a(f'v_min_u32 v{tB}, v{TQ}, v{tB}')
    a(f'v_cmp_eq_u32 s[{sSV}:{sSV+1}], 0, v{tB}')
    a(f's_and_b64 s[{sSV}:{sSV+1}], s[{sSV}:{sSV+1}], vcc')
    a('s_cbranch_scc1 K2_ZROWS')
    a.label('K2_ZBACK')
    if opts.get('qi4', 0):
        qi_fill('F', True, 4)
        a.label('K2_QIDONE')
    else:
        qi_fill('F', True)
    stamp(18)
    w_frags()
    consts()
    a('s_waitcnt lgkmcnt(0)')
    stamp(19)
    if opts.get('proprio') == 2: a('s_setprio 0')
    a('s_barrier')
    stamp(20)
    a(f's_cmp_eq_u32 s{sL}, 0')
    a('s_cbranch_scc1 K2_EPI')
    pipeline_fill()
    stamp(6)
    if opts.get('dbgtime'):
        a(f's_memrealtime s[{t2}:{t3}]')
        a('s_waitcnt lgkmcnt(0)')
        a(f's_mov_b32 s{sT1}, s{t2}')
    if STAMP:
        a(f's_memrealtime s[{t2}:{t3}]')
        a('s_waitcnt lgkmcnt(0)')
        a(f'v_writelane_b32 v{vST}, s{t2}, 13')
    if opts.get('half'):
        a(f's_cmp_ge_u32 s{sW}, 4')
        a('s_cbranch_scc1 K2_MDF')
    main_loop('F', False)
    stamp(7)
    if opts.get('dbgtime'):
        a(f's_memrealtime s[{t2}:{t3}]')
        a('s_waitcnt lgkmcnt(0)')
        a(f's_mov_b32 s{sT2}, s{t2}')
    if STAMP:
        a(f's_memrealtime s[{t2}:{t3}]')
        a('s_waitcnt lgkmcnt(0)')
        a(f'v_writelane_b32 v{vST}, s{t2}, 14')
    a.label('K2_EPI')
    e0 = 4
    XV = [e0, e0 + 4]; UU = [e0 + 8, e0 + 12]
    DN = [e0 + 16, e0 + 48]; NM = [e0 + 24, e0 + 56]; CD = [e0 + 32, e0 + 64]; CN = [e0 + 40, e0 + 72]
    O = e0 + 80; ADR = [e0 + 84, e0 + 85]; GO = [e0 + 86, e0 + 87]; CP = [e0 + 88, e0 + 89]; OC = [e0 + 90, e0 + 91]
    T1 = e0 + 92; ND = e0 + 93
    def epi_addr(r):
        a(f'v_add_u32 v{T1}, {512*r}, v0') if r else a(f'v_mov_b32 v{T1}, v0')
        a(f'v_lshrrev_b32 v{ND}, 3, v{T1}')
        a(f'v_and_b32 v{T1}, 7, v{T1}')
        a(f'v_lshlrev_b32 v{OC[r]}, 4, v{T1}')
        a(f'v_mul_u32_u24 v{CP[r]}, s{t0}, v{ND}')
        a(f'v_add_u32 v{CP[r]}, {L_ACC}, v{CP[r]}')
        a(f'v_add_u32 v{ADR[r]}, v{CP[r]}, v{OC[r]}')
        a(f'v_add_u32 v{GO[r]}, s{sNS}, v{ND}')
        a(f'v_lshlrev_b32 v{GO[r]}, 7, v{GO[r]}')
        a(f'v_lshl_add_u32 v{GO[r]}, v{T1}, 3, v{GO[r]}')
    def epi_static(r, carry):
        a(f'buffer_load_dwordx2 v[{XV[r]}:{XV[r]+1}], v{GO[r]}, s[{rF}:{rF+3}], 0 offen')
        a(f'buffer_load_dwordx2 v[{XV[r]+2}:{XV[r]+3}], v{GO[r]}, s[{rF}:{rF+3}], 0 offen offset:64')
        a(f'ds_read_b128 v[{UU[r]}:{UU[r]+3}], v{ADR[r]} offset:640')
        if carry: a(f'ds_read_b32 v{CP[r]}, v{CP[r]} offset:768')
    def epi_reads(r, carry):
        ad = ADR[r]
        a(f'ds_read_b128 v[{DN[r]}:{DN[r]+3}], v{ad}')
        a(f'ds_read_b128 v[{DN[r]+4}:{DN[r]+7}], v{ad} offset:128')
        a(f'ds_read_b128 v[{NM[r]}:{NM[r]+3}], v{ad} offset:256')
        a(f'ds_read_b128 v[{NM[r]+4}:{NM[r]+7}], v{ad} offset:384')
        if carry:
            a(f'ds_read_b128 v[{CD[r]}:{CD[r]+3}], v{CP[r]}')
            a(f'ds_read_b128 v[{CD[r]+4}:{CD[r]+7}], v{CP[r]} offset:128')
            a(f'ds_read_b128 v[{CN[r]}:{CN[r]+3}], v{CP[r]} offset:256')
            if r == 1: a('s_waitcnt lgkmcnt(14)')
            a(f'ds_read_b128 v[{CN[r]+4}:{CN[r]+7}], v{CP[r]} offset:384')
    def epi_math(r, carry):
        dn, nm, cd, cn, uu, xv = DN[r], NM[r], CD[r], CN[r], UU[r], XV[r]
        if carry:
            for i in range(0, 8, 2):
                a(f'v_pk_add_f32 v[{dn+i}:{dn+i+1}], v[{dn+i}:{dn+i+1}], v[{cd+i}:{cd+i+1}]')
                a(f'v_pk_add_f32 v[{nm+i}:{nm+i+1}], v[{nm+i}:{nm+i+1}], v[{cn+i}:{cn+i+1}]')
        for i in range(0, 8, 2):
            a(f'v_pk_add_f32 v[{dn+i}:{dn+i+1}], v[{dn+i}:{dn+i+1}], s[{sC}:{sC+1}]')
        for i in range(8):
            a(f'v_rcp_f32 v{dn+i}, v{dn+i}')
        for i in range(4):
            a(f'v_lshlrev_b32 v{cd+i}, 16, v{uu+i}')
            a(f'v_and_b32 v{cd+4+i}, s{sHI}, v{uu+i}')
        for i in range(0, 8, 2):
            a(f'v_pk_fma_f32 v[{nm+i}:{nm+i+1}], v[{nm+i}:{nm+i+1}], v[{dn+i}:{dn+i+1}], v[{cd+i}:{cd+i+1}]')
        for i in range(8):
            a(f'v_max_f32 v{nm+i}, 0, v{nm+i}')
        for i in range(4):
            a(f'v_lshlrev_b32 v{cd+2*i}, 16, v{xv+i}')
            a(f'v_and_b32 v{cd+2*i+1}, s{sHI}, v{xv+i}')
        for i in range(0, 8, 2):
            a(f'v_pk_add_f32 v[{nm+i}:{nm+i+1}], v[{nm+i}:{nm+i+1}], v[{cd+i}:{cd+i+1}]')
        for i in range(4):
            a(f'v_cvt_pk_bf16_f32 v{O+i}, v{nm+2*i}, v{nm+2*i+1}')
        osf = {0: '', 1: ' sc1', 2: ' nt', 3: ' sc0 sc1'}[opts.get('outst', 1)]
        a(f'buffer_store_dwordx2 v[{O}:{O+1}], v{GO[r]}, s[{rO}:{rO+3}], 0 offen' + osf)
        a(f'buffer_store_dwordx2 v[{O+2}:{O+3}], v{GO[r]}, s[{rO}:{rO+3}], 0 offen offset:64' + osf)
    def epilogue(tag, carry):
        srd(a, rO, sOUT, N * 128)
        srd(a, rF, sX, N * 128)
        a(f's_mov_b32 s{t0}, {ROWB}')
        a(f's_mov_b32 s{sC}, 0x{EPS_SCALED:x}')
        a(f's_mov_b32 s{sC+1}, 0x{EPS_SCALED:x}')
        a(f's_mov_b32 s{sHI}, 0xffff0000')
        a('s_waitcnt vmcnt(0)')
        epi_addr(0)
        epi_static(0, carry)
        epi_addr(1)
        a(f'v_cmp_gt_u32 s[{sSV}:{sSV+1}], s{sNN}, v{ND}')
        a('s_nop 3')
        a(f's_mov_b64 exec, s[{sSV}:{sSV+1}]')
        a(f's_cbranch_execz K2_NS2{tag}')
        epi_static(1, carry)
        a.label(f'K2_NS2{tag}')
        a('s_mov_b64 exec, -1')
        a('s_waitcnt lgkmcnt(0)')
        if carry:
            a(f'v_add_u32 v{CP[0]}, v{CP[0]}, v{OC[0]}')
            a(f'v_add_u32 v{CP[1]}, v{CP[1]}, v{OC[1]}')
        a('s_barrier')
        if STAMP and tag == 'F': stamp(8)
        epi_reads(0, carry)
        a(f's_mov_b64 exec, s[{sSV}:{sSV+1}]')
        a(f's_cbranch_execz K2_ONE{tag}')
        epi_reads(1, carry)
        a('s_mov_b64 exec, -1')
        a(f's_waitcnt vmcnt(0) lgkmcnt({8 if carry else 4})')
        epi_math(0, carry)
        a(f's_mov_b64 exec, s[{sSV}:{sSV+1}]')
        a('s_waitcnt lgkmcnt(0)')
        epi_math(1, carry)
        a(f's_branch K2_FIN{tag}')
        a.label(f'K2_ONE{tag}')
        a('s_mov_b64 exec, -1')
        a('s_waitcnt vmcnt(0) lgkmcnt(0)')
        epi_math(0, carry)
        a.label(f'K2_FIN{tag}')
        if opts.get('endwait', 1): a('s_waitcnt vmcnt(0)')
    epilogue('F', True)
    if opts.get('dbgtime'):
        a('s_mov_b64 exec, -1')
        a('s_waitcnt vmcnt(0)')
        a(f's_memrealtime s[{t2}:{t3}]')
        a(f's_cmp_lg_u32 s{sW}, 7')
        a('s_cbranch_scc1 K2_DBGX')
        a('s_and_b32 s3, s2, 31')
        a('s_cmp_lg_u32 s3, 0')
        a('s_cbranch_scc1 K2_DBGX')
        a('s_lshr_b32 s3, s2, 5')
        a('s_cmp_ge_u32 s3, 2')
        a('s_cbranch_scc1 K2_DBGX')
        a(f's_lshl_b32 s{t0}, s3, 2')
        a(f's_add_u32 s{t0}, s{t0}, 0x1200000')
        a(f'v_mov_b32 v4, s{t0}')
        a(f'global_load_dword v5, v4, s[{sWS}:{sWS+1}]')
        a(f'global_load_dword v6, v4, s[{sWS}:{sWS+1}] offset:256')
        a('s_waitcnt vmcnt(0) lgkmcnt(0)')
        a(f'v_sub_u32 v8, v6, v5')
        a(f'v_sub_u32 v9, s{sT0}, v5')
        a(f'v_sub_u32 v10, s{sT1}, v5')
        a(f'v_sub_u32 v11, s{sT2}, v5')
        a(f'v_sub_u32 v12, s{t2}, v5')
        a('s_lshl_b32 s3, s3, 5')
        a('v_mov_b32 v4, s3')
        a('s_mov_b64 exec, 1')
        a(f'global_store_dwordx4 v4, v[8:11], s[{sDBG}:{sDBG+1}]')
        a(f'global_store_dword v4, v12, s[{sDBG}:{sDBG+1}] offset:16')
        a.label('K2_DBGX')
    if STAMP:
        a('s_mov_b64 exec, -1')
        a('s_waitcnt vmcnt(0)')
        stamp(9)
        a(f's_memrealtime s[{t2}:{t3}]')
        a('s_waitcnt lgkmcnt(0)')
        a(f'v_writelane_b32 v{vST}, s{t2}, 12')
        a(f's_mul_i32 s{t0}, s2, {NW}')
        a(f's_add_u32 s{t0}, s{t0}, s{sW}')
        a(f's_lshl_b32 s{t0}, s{t0}, 8')
        a(f's_add_u32 s{t0}, s{t0}, 0x1000000')
        srd_off(a, rT, sWS, f's{t0}', 256)
        a(f'v_writelane_b32 v{vST}, s{sL}, 10')
        a(f'v_lshlrev_b32 v4, 2, v{vLANE}')
        a(f'buffer_store_dword v{vST}, v4, s[{rT}:{rT+3}], 0 offen')
    a('s_endpgm')
    a.label('K2_CSEL')
    a(f'v_mov_b32 v{tD}, 0')
    a(f'v_mov_b32 v{tE}, 0')
    a(f'v_mov_b32 v{tF}, 0')
    for it in range(8):
        a(f'v_lshrrev_b32 v{tG}, 24, v{SG+it}')
        a(f'v_cmp_lt_u32 vcc, 32, v{tG}')
        a(f'v_mad_u32_u24 v{tJ}, v{SG+it}, 8, v{tB}')
        a(f'v_add_u32 v{RKC}, 1, v{tF}')
        a(f'v_cndmask_b32 v{tD}, v{tD}, v{tJ}, vcc')
        a(f'v_cndmask_b32 v{tE}, v{tE}, v{tG}, vcc')
        a(f'v_cndmask_b32 v{tF}, v{tF}, v{RKC}, vcc')
    a(f'v_cmp_lt_u32 vcc, 1, v{tF}')
    a(f'v_cmp_lt_u32 s[{sSV2}:{sSV2+1}], 48, v{tE}')
    a(f'v_add_u32 v{tG}, 32, v{tC}')
    a(f's_or_b64 s[{sSV2}:{sSV2+1}], s[{sSV2}:{sSV2+1}], vcc')
    a(f'v_cmp_gt_u32 s[{MKC}:{MKC+1}], v{tE}, v{tG}')
    a('s_nop 0')
    a(f's_mov_b64 exec, s[{MKC}:{MKC+1}]')
    a(f'buffer_load_dwordx2 v[{RC}:{RC+1}], v{tD}, s[{rR}:{rR+3}], 0 offen offset:256')
    a('s_mov_b64 exec, -1')
    a('s_branch K2_CBACK')
    a.label('K2_ZROWS')
    a(f's_mov_b64 exec, s[{sSV}:{sSV+1}]')
    for i in range(4):
        a(f'v_mov_b32 v{TR+i}, 0')
    for nd in range(2):
        a(f'v_cmp_eq_u32 vcc, 0, v{TQ+nd}')
        a(f's_and_b64 exec, vcc, s[{sSV}:{sSV+1}]')
        for k in range(32):
            a(f'ds_write_b128 v{nROW0}, v[{TR}:{TR+3}] offset:{nd*ROWB + 16*k}')
        a(f's_mov_b64 exec, s[{sSV}:{sSV+1}]')
    a('s_mov_b64 exec, -1')
    a('s_branch K2_ZBACK')

    a.label('K2_SLOW')
    w_frags()
    consts()
    a('s_waitcnt vmcnt(0) lgkmcnt(0)')
    a('s_barrier')
    a(f's_lshl_b32 s{t1}, s2, 10')
    a(f's_add_u32 s{t1}, s{t1}, {WS_TAB2}')
    srd_off(a, rT, sWS, f's{t1}', 1024)
    a(f'v_lshlrev_b32 v{tA}, 4, v{vLANE}')
    a(f'buffer_load_dwordx4 v[{TQ}:{TQ+3}], v{tA}, s[{rT}:{rT+3}], 0 offen')
    a('s_waitcnt vmcnt(0)')
    a(f'v_max_u32 v{tE}, v{TQ}, v{TQ+1}')
    a(f'v_max3_u32 v{tE}, v{tE}, v{TQ+2}, v{TQ+3}')
    wave_scan(a, 'v_max_u32', tE)
    a('s_nop 0')
    a(f'v_readlane_b32 s{t1}, v{tE}, 63')
    a(f's_add_u32 s{t1}, s{t1}, {WSLOW-1}')
    a(f's_mul_i32 s{t1}, s{t1}, 5042')
    a(f's_lshr_b32 s{sNP}, s{t1}, 16')
    a(f's_mov_b32 s{sP}, 0')
    for i in range(4):
        a(f'v_mov_b32 v{TR+i}, 0')
    a(f'v_lshrrev_b32 v{tA}, 5, v0')
    a(f'v_mul_u32_u24 v{tA}, {ROWB}, v{tA}')
    a(f'v_and_b32 v{tB}, 31, v{vLANE}')
    a(f'v_lshl_add_u32 v{tA}, v{tB}, 4, v{tA}')
    a(f'v_add_u32 v{tA}, {L_ACC}, v{tA}')
    for i in range(6):
        a(f'ds_write_b128 v{tA}, v[{TR}:{TR+3}]')
        a(f'v_add_u32 v{tA}, {16*ROWB}, v{tA}')
    a(f'v_cmp_gt_u32 vcc, 64, v0')
    a(f's_and_saveexec_b64 s[{sSV}:{sSV+1}], vcc')
    a(f'ds_write_b128 v{tA}, v[{TR}:{TR+3}]')
    a(f's_mov_b64 exec, s[{sSV}:{sSV+1}]')
    a.label('K2_SPASS')
    a(f's_lshl_b32 s{t0}, s{sW}, 1')
    a(f'v_lshrrev_b32 v{sidA}, 5, v{vLANE}')
    a(f'v_add_u32 v{sidA}, s{t0}, v{sidA}')
    a(f'v_bfe_u32 v{jA}, v{vLANE}, 3, 2')
    a(f'v_bfe_u32 v{sidR}, v{vLANE}, 2, 1')
    a(f'v_add_u32 v{sidR}, s{t0}, v{sidR}')
    a(f'v_and_b32 v{iR4}, 3, v{vLANE}')
    a(f'v_lshlrev_b32 v{iR4}, 2, v{iR4}')
    a(f's_lshl_b32 s{t1}, s2, 10')
    a(f's_add_u32 s{t1}, s{t1}, {WS_TAB}')
    srd_off(a, rT, sWS, f's{t1}', WS_TAB2 - WS_TAB + 1024)
    a(f'v_lshrrev_b32 v{tD}, 4, v{vLANE}')
    a(f'v_lshlrev_b32 v{tD}, 5, v{tD}')
    a(f's_lshl_b32 s{t0}, s{sW}, 7')
    a(f'v_add_u32 v{tD}, s{t0}, v{tD}')
    a(f's_mov_b32 s{t0}, {WS_TAB2 - WS_TAB}')
    for i in range(2):
        a(f'buffer_load_dwordx4 v[{SG+4*i}:{SG+4*i+3}], v{tD}, s[{rT}:{rT+3}], 0 offen offset:{16*i}')
    for i in range(2):
        a(f'buffer_load_dwordx4 v[{AX+4*i}:{AX+4*i+3}], v{tD}, s[{rT}:{rT+3}], s{t0} offen offset:{16*i}')
    a(f'v_and_b32 v{tC}, 15, v{vLANE}')
    a(f's_mul_i32 s{t0}, s{sP}, {WSLOW}')
    a(f'v_cmp_gt_u32 vcc, {WSLOW}, v{tC}')
    a(f'v_add_u32 v{tC}, s{t0}, v{tC}')
    a(f'v_lshlrev_b32 v{tB}, 3, v{tC}')
    a(f'v_mov_b32 v{tD}, 0x10000')
    a(f'v_cndmask_b32 v{tC}, v{tD}, v{tC}, vcc')
    a('s_waitcnt vmcnt(0)')
    a(f's_mov_b64 s[{MKC}:{MKC+1}], 0')
    for it in range(8):
        a(f'v_cmp_gt_u32 s[{MK+2*it}:{MK+2*it+1}], v{AX+it}, v{tC}')
        a(f's_mov_b64 s[{MK+16+2*it}:{MK+16+2*it+1}], 0')
    rec_loads(tB, 8)
    lds_init()
    a('s_waitcnt vmcnt(0) lgkmcnt(0)')
    a('s_barrier')
    hist()
    a('s_waitcnt lgkmcnt(0)')
    a('s_barrier')
    scan_nodes('S')
    qi_fill('S', False)
    scatter()
    a('s_waitcnt lgkmcnt(0)')
    a('s_barrier')
    a(f's_cmp_eq_u32 s{sL}, 0')
    a('s_cbranch_scc1 K2_SNEXT')
    setup_ptrs()
    a('s_waitcnt lgkmcnt(0)')
    for ins in dma_addr(): a(ins)
    for ins in dma_issue(): a(ins)
    forced_flags()
    pipeline_fill()
    main_loop('S', True)
    a.label('K2_SNEXT')
    a('s_waitcnt vmcnt(0) lgkmcnt(0)')
    a('s_barrier')
    a(f's_add_u32 s{sP}, s{sP}, 1')
    a(f's_cmp_lt_u32 s{sP}, s{sNP}')
    a('s_cbranch_scc1 K2_SPASS')
    epilogue('S', False)
    a.label('K2_END')
    a('s_endpgm')
    return nvgpr, nsgpr

def kd(name, nv, ns):
    acc = (nv + 3) // 4 * 4
    return f'''.amdhsa_kernel {name}
  .amdhsa_next_free_vgpr {nv}
  .amdhsa_next_free_sgpr {ns}
  .amdhsa_accum_offset {acc}
  .amdhsa_group_segment_fixed_size 0
  .amdhsa_kernarg_size 96
  .amdhsa_user_sgpr_count 2
  .amdhsa_user_sgpr_kernarg_segment_ptr 1
  .amdhsa_system_sgpr_workgroup_id_x 1
  .amdhsa_float_denorm_mode_32 3
.end_amdhsa_kernel
'''

DOC = """;
;
"""

def build(opts=None):
    opts = opts or {}
    a = Asm()
    gen_k1(a, opts)
    nv, ns = gen_k2(a, opts)
    out = HEADER
    out += f'; @launch kernel=gs_part_kernel grid=(256,1,1) block=({K1_THREADS},1,1) lds={LDS_K1}\n'
    out += f'; @launch kernel=gs_main_kernel grid=(256,1,1) block=({NW*64},1,1) lds={LDS_MAIN}\n'
    out += DOC
    out += '.amdgcn_target "amdgcn-amd-amdhsa--gfx950"\n.text\n'
    out += a.text()
    out += '.section .rodata,"a"\n.p2align 6\n'
    out += kd('gs_part_kernel', 62 if opts.get('stamp1') else 60, 60)
    out += '.p2align 6\n'
    out += kd('gs_main_kernel', nv, ns)
    return out

if __name__ == '__main__':
    path = sys.argv[1] if len(sys.argv) > 1 else 'gather_scatter__edge_featured_mpnn_gatedgcn__graph.s'
    opts = {}
    for o in sys.argv[2:]:
        k, _, val = o.partition('=')
        opts[k] = int(val) if val else True
    open(path, 'w').write(build(opts))
    print('written', path, 'LDS', LDS_MAIN)
```

```python
import sys, os, struct
sys.path.insert(0, os.path.dirname(__file__))
from asmlib import *

N = 25000; E = 800000
NBK = 256
CH = 3136
RECB = CH * 8
WS_TAB = 0x700000
WS_TAB2 = 0x740000
WS_FRAG = 0x780000
MAGIC_B = 43980466
LOG2E = 0xBFB8AA3B
SBITS = 50
C_SCALE = (127 - SBITS) << 23
EPS_SCALED = 0x4E8637BD
assert abs(struct.unpack('<f', struct.pack('<I', EPS_SCALED))[0] / (1e-6 * 2.0**50) - 1) < 1e-6

NW = 8
NSTREAM = 16
NIT = 16
CAP = 3456
WSLOW = 13
ROWB = 784
MAXN = 98
ENT_QUADS = 960
VROWB = 640
L_CNT = 0
L_ZERO = 512
L_TAB = 1024
L_QI = 1536
L_ENT = L_QI + ENT_QUADS * 4
L_ACC = L_ENT + ENT_QUADS * 16
L_VIRT = L_ACC + MAXN * ROWB
L_WST = L_VIRT + NSTREAM * VROWB
L_WST = (L_WST + 255) // 256 * 256
L_DMA = L_WST + 16384
LDS_MAIN = L_DMA + NW * 4096
assert LDS_MAIN <= 163840, LDS_MAIN
assert L_ACC % 16 == 0 and L_VIRT % 16 == 0

K1_THREADS = 896
K1_HIST = 0
K1_STAGE = 1024
LDS_K1 = K1_STAGE + RECB

HEADER = open(os.path.join(os.path.dirname(__file__), 'header.txt')).read()

def srd(a, sreg, ptr, size):
    a(f's_mov_b32 s{sreg}, s{ptr}')
    a(f's_and_b32 s{sreg+1}, s{ptr+1}, 0xffff')
    a(f's_mov_b32 s{sreg+2}, {size}')
    a(f's_mov_b32 s{sreg+3}, 0x20000')

def srd_off(a, sreg, ptr, off, size):
    a(f's_add_u32 s{sreg}, s{ptr}, {off}')
    a(f's_addc_u32 s{sreg+1}, s{ptr+1}, 0')
    a(f's_and_b32 s{sreg+1}, s{sreg+1}, 0xffff')
    a(f's_mov_b32 s{sreg+2}, {size}')
    a(f's_mov_b32 s{sreg+3}, 0x20000')

def wave_scan(a, op, r):
    for sh in (1, 2, 4, 8):
        a('s_nop 1')
        a(f'{op}_dpp v{r}, v{r}, v{r} row_shr:{sh} row_mask:0xf bank_mask:0xf')
    a('s_nop 1')
    a(f'{op}_dpp v{r}, v{r}, v{r} row_bcast:15 row_mask:0xa bank_mask:0xf')
    a('s_nop 1')
    a(f'{op}_dpp v{r}, v{r}, v{r} row_bcast:31 row_mask:0xc bank_mask:0xf')

def wave_scan2(a, op1, r1, op2, r2):
    steps = [f'row_shr:{sh} row_mask:0xf bank_mask:0xf' for sh in (1, 2, 4, 8)] + \
            ['row_bcast:15 row_mask:0xa bank_mask:0xf', 'row_bcast:31 row_mask:0xc bank_mask:0xf']
    a('s_nop 1')
    for st in steps:
        a(f'{op1}_dpp v{r1}, v{r1}, v{r1} {st}')
        a(f'{op2}_dpp v{r2}, v{r2}, v{r2} {st}')
        a('s_nop 0')

def gen_k1(a, opts):
    ST = opts.get('stamp1', False)
    def stamp(i):
        if not ST: return
        a('s_memtime s[56:57]')
        a('s_waitcnt lgkmcnt(0)')
        a(f'v_writelane_b32 v60, s56, {i}')
    a.raw('.p2align 8')
    a.raw('.globl gs_part_kernel')
    a.raw('.type gs_part_kernel,@function')
    a.label('gs_part_kernel')
    a('s_cmp_ge_u32 s2, 256')
    a('s_cbranch_scc1 K1_END')
    a('s_load_dwordx4 s[4:7], s[0:1], 8')
    a('s_load_dwordx2 s[8:9], s[0:1], 24')
    a('s_load_dwordx2 s[10:11], s[0:1], 88')
    a('s_load_dwordx2 s[44:45], s[0:1], 0')
    if ST: a('v_mov_b32 v60, 0')
    stamp(0)
    if opts.get('dbgtime'):
        a('s_memrealtime s[54:55]')
        a('s_waitcnt lgkmcnt(0)')
        a('s_cmp_ge_u32 s2, 8')
        a('s_cbranch_scc1 K1_NODBG')
        a('v_mov_b32 v20, s54')
        a('s_lshl_b32 s56, s2, 2')
        a('s_add_u32 s56, s56, 0x1200000')
        a('v_mov_b32 v22, s56')
        a('v_cmp_eq_u32 vcc, 0, v0')
        a('s_and_saveexec_b64 s[58:59], vcc')
        a('global_store_dword v22, v20, s[10:11]')
        a('s_mov_b64 exec, s[58:59]')
        a.label('K1_NODBG')
    a('v_lshrrev_b32 v1, 6, v0')
    a('s_mul_i32 s12, s2, %d' % (CH * 4))
    a('v_readfirstlane_b32 s3, v1')
    a('s_lshr_b32 s13, s12, 1')
    a('v_lshlrev_b32 v2, 4, v0')
    a('v_add_u32 v2, s12, v2')
    a('s_cmp_eq_u32 s3, 13')
    a('s_cbranch_scc1 K1_FRAG')
    a('v_lshlrev_b32 v3, 3, v0')
    a('v_add_u32 v3, s13, v3')
    a('s_waitcnt lgkmcnt(0)')
    srd(a, 20, 8, E * 4)
    a('buffer_load_dwordx4 v[4:7], v2, s[20:23], 0 offen')
    srd(a, 24, 6, E * 4)
    srd(a, 28, 4, E * 2)
    if not opts.get('dstfirst', 1):
        a('buffer_load_dwordx4 v[8:11], v2, s[24:27], 0 offen')
        a('buffer_load_dwordx2 v[12:13], v3, s[28:31], 0 offen')
    a('v_lshlrev_b32 v14, 2, v0')
    a('v_mov_b32 v15, 0')
    a('v_cmp_gt_u32 vcc, 256, v0')
    a('s_and_saveexec_b64 s[18:19], vcc')
    a('ds_write_b32 v14, v15 offset:%d' % K1_HIST)
    a('s_mov_b64 exec, s[18:19]')
    a('v_cmp_gt_u32 vcc, %d, v0' % (CH // 4))
    a('s_mov_b32 s14, %d' % (E * 4))
    a('v_cmp_gt_u32 s[16:17], s14, v2')
    a('s_and_b64 s[16:17], s[16:17], vcc')
    a('s_mul_i32 s15, s2, %d' % RECB)
    srd_off(a, 32, 10, 's15', RECB)
    srd_off(a, 36, 10, WS_TAB, 0x80000)
    if opts.get('touch', 0):
        a('s_cmp_lg_u32 s3, 1')
        a('s_cbranch_scc1 K1_NOTOUCH')
        a('v_mov_b32 v41, 0')
        a('buffer_load_dword v42, v41, s[32:35], 0 offen')
        a('buffer_load_dword v43, v41, s[36:39], 0 offen')
        a.label('K1_NOTOUCH')
    a('s_mov_b32 s40, %d' % MAGIC_B)
    a('s_movk_i32 s41, 3125')
    a('v_mov_b32 v15, 1')
    a('s_waitcnt lgkmcnt(0)')
    a('s_barrier')
    if opts.get('dstfirst', 1) == 1:
        a('s_waitcnt vmcnt(0)')
        a('buffer_load_dwordx4 v[8:11], v2, s[24:27], 0 offen')
        a('buffer_load_dwordx2 v[12:13], v3, s[28:31], 0 offen')
    elif opts.get('dstfirst', 1) == 2:
        a('buffer_load_dwordx4 v[8:11], v2, s[24:27], 0 offen')
        a('buffer_load_dwordx2 v[12:13], v3, s[28:31], 0 offen')
        a('s_waitcnt vmcnt(2)')
    if opts.get('xpre', 1) == 1:
        a('s_and_b32 s46, s2, 7')
        a('s_lshr_b32 s47, s2, 3')
        a('s_lshl_b32 s46, s46, 5')
        a('s_add_u32 s46, s46, s47')
        a('s_mul_i32 s46, s46, 3125')
        a('s_add_u32 s46, s46, 31')
        a('s_lshr_b32 s46, s46, 5')
        a('s_lshl_b32 s46, s46, 7')
        a('s_and_b32 s45, s45, 0xffff')
        a('s_mov_b32 s48, s44')
        a('s_mov_b32 s49, s45')
        a('s_mov_b32 s50, %d' % (N * 128))
        a('s_mov_b32 s51, 0x20000')
        a('v_lshlrev_b32 v40, 4, v0')
        a('buffer_load_dwordx4 v[56:59], v40, s[48:51], s46 offen')
    a('s_mov_b64 exec, s[16:17]')
    a('s_cbranch_execz K1_NOEDGE1')
    stamp(1)
    if not opts.get('dstfirst', 1): a('s_waitcnt vmcnt(%d)' % (3 if opts.get('xpre', 1) else 2))
    stamp(2)
    for k in range(4):
        a(f'v_mul_hi_u32 v{16+k}, v{4+k}, s40')
    for k in range(4):
        a(f'v_lshlrev_b32 v{20+k}, 2, v{16+k}')
        a(f'ds_add_rtn_u32 v{24+k}, v{20+k}, v15 offset:{K1_HIST}')
    for k in range(4):
        a(f'v_mul_u32_u24 v{28+k}, s41, v{16+k}')
        a(f'v_add_u32 v{28+k}, 31, v{28+k}')
        a(f'v_lshrrev_b32 v{28+k}, 5, v{28+k}')
        a(f'v_sub_u32 v{28+k}, v{4+k}, v{28+k}')
        a(f'v_lshlrev_b32 v{33+2*k}, 2, v{28+k}')
    a.label('K1_NOEDGE1')
    a('s_mov_b64 exec, -1')
    a('s_waitcnt lgkmcnt(0)')
    stamp(3)
    a('s_barrier')
    stamp(4)
    if opts.get('xpre', 1) == 2:
        a('s_and_b32 s46, s2, 7')
        a('s_lshr_b32 s47, s2, 3')
        a('s_lshl_b32 s46, s46, 5')
        a('s_add_u32 s46, s46, s47')
        a('s_mul_i32 s46, s46, 3125')
        a('s_add_u32 s46, s46, 31')
        a('s_lshr_b32 s46, s46, 5')
        a('s_lshl_b32 s46, s46, 7')
        a('s_and_b32 s45, s45, 0xffff')
        a('s_mov_b32 s48, s44')
        a('s_mov_b32 s49, s45')
        a('s_mov_b32 s50, %d' % (N * 128))
        a('s_mov_b32 s51, 0x20000')
        a('v_lshlrev_b32 v40, 4, v0')
        a('buffer_load_dwordx4 v[56:59], v40, s[48:51], s46 offen')
    a('s_cmp_lg_u32 s3, 0')
    a('s_cbranch_scc1 K1_SCANDONE')
    a('v_lshlrev_b32 v40, 4, v0')
    a('ds_read_b128 v[44:47], v40 offset:%d' % K1_HIST)
    a('v_lshlrev_b32 v41, 12, v0')
    a('s_lshl_b32 s15, s2, 2')
    a('v_add_u32 v41, s15, v41')
    a('s_waitcnt lgkmcnt(0)')
    a('v_add_u32 v48, v44, v45')
    a('v_add_u32 v49, v48, v46')
    a('v_add_u32 v50, v49, v47')
    a('v_mov_b32 v51, v50')
    wave_scan(a, 'v_add_u32', 51)
    a('v_sub_u32 v52, v51, v50')
    a('v_add_u32 v53, v52, v44')
    a('v_add_u32 v54, v52, v48')
    a('v_add_u32 v55, v52, v49')
    a('ds_write_b128 v40, v[52:55] offset:%d' % K1_HIST)
    if not opts.get('w0late', 1): a('s_waitcnt vmcnt(%d)' % (1 if opts.get('xpre', 1) else 0))
    a('s_mul_i32 s15, s2, %d' % CH)
    a('s_mov_b32 s43, %d' % (WS_TAB2 - WS_TAB))
    for k in range(4):
        a(f'buffer_store_dword v{44+k}, v41, s[36:39], s43 offen offset:{k*1024}' + (' sc1' if opts.get('tabst', 0) else ''))
        a(f'v_min_u32 v{48+k}, 0xff, v{44+k}')
        a(f'v_add_u32 v{52+k}, s15, v{52+k}')
        a(f'v_lshl_or_b32 v{48+k}, v{48+k}, 24, v{52+k}')
        a(f'buffer_store_dword v{48+k}, v41, s[36:39], 0 offen offset:{k*1024}' + (' sc1' if opts.get('tabst', 0) else ''))
    a.label('K1_SCANDONE')
    a('s_waitcnt lgkmcnt(0)')
    a('s_barrier')
    stamp(5)
    a('s_mov_b64 exec, s[16:17]')
    a('s_cbranch_execz K1_NOEDGE2')
    for k in range(4):
        a(f'ds_read_b32 v{28+k}, v{20+k} offset:{K1_HIST}')
    a('s_cmp_eq_u32 s3, 0')
    a('s_cbranch_scc1 K1_W0')
    a('s_waitcnt vmcnt(%d)' % (1 if opts.get('xpre', 1) else 0))
    a('s_branch K1_HAVE')
    a.label('K1_W0')
    a('s_waitcnt vmcnt(%d)' % (9 if opts.get('xpre', 1) else 8))
    a.label('K1_HAVE')
    a('s_mov_b32 s42, 0xffff0000')
    a('v_lshl_or_b32 v32, v12, 16, v8')
    a('v_and_or_b32 v34, v12, s42, v9')
    a('v_lshl_or_b32 v36, v13, 16, v10')
    a('v_and_or_b32 v38, v13, s42, v11')
    for k in range(4):
        a(f's_waitcnt lgkmcnt({3 if k == 0 else 3})')
        a(f'v_add_lshl_u32 v{28+k}, v{28+k}, v{24+k}, 3')
        a(f'ds_write_b64 v{28+k}, v[{32+2*k}:{33+2*k}] offset:{K1_STAGE}')
    a.label('K1_NOEDGE2')
    a('s_mov_b64 exec, -1')
    a('v_lshlrev_b32 v2, 4, v0')
    a('v_add_u32 v3, %d, v2' % (RECB // 2))
    a('v_cmp_gt_u32 vcc, %d, v0' % (CH // 4))
    a('s_waitcnt lgkmcnt(0)')
    stamp(6)
    a('s_barrier')
    stamp(7)
    a('s_and_saveexec_b64 s[18:19], vcc')
    a('s_cbranch_execz K1_END')
    a('ds_read_b128 v[4:7], v2 offset:%d' % K1_STAGE)
    a('ds_read_b128 v[8:11], v2 offset:%d' % (K1_STAGE + RECB // 2))
    a('s_waitcnt lgkmcnt(1)')
    sfx = {0: '', 1: ' sc1', 2: ' nt', 3: ' sc0 sc1', 4: ' sc1 nt'}[opts.get('k1st', 1)]
    a('buffer_store_dwordx4 v[4:7], v2, s[32:35], 0 offen' + sfx)
    a('s_waitcnt lgkmcnt(0)')
    a('buffer_store_dwordx4 v[8:11], v3, s[32:35], 0 offen' + sfx)
    if opts.get('endwait', 1): a('s_waitcnt vmcnt(0)')
    if ST:
        stamp(8)
        a('s_waitcnt vmcnt(0)')
        stamp(9)
        a('s_mul_i32 s12, s2, 16')
        a('s_add_u32 s12, s12, s3')
        a('s_lshl_b32 s12, s12, 8')
        a('s_add_u32 s12, s12, 0x1100000')
        a('s_add_u32 s32, s10, s12')
        a('s_addc_u32 s33, s11, 0')
        a('s_and_b32 s33, s33, 0xffff')
        a('s_mov_b32 s34, 256')
        a('s_mov_b64 exec, -1')
        a('v_and_b32 v4, 63, v0')
        a('v_lshlrev_b32 v4, 2, v4')
        a('buffer_store_dword v60, v4, s[32:35], 0 offen')
    if opts.get('dbgtime'):
        a('s_waitcnt vmcnt(0)')
        a('s_memrealtime s[54:55]')
        a('s_waitcnt lgkmcnt(0)')
        a('s_cmp_ge_u32 s2, 8')
        a('s_cbranch_scc1 K1_END')
        a('s_cmp_lg_u32 s3, 0')
        a('s_cbranch_scc1 K1_END')
        a('v_mov_b32 v20, s54')
        a('s_lshl_b32 s56, s2, 2')
        a('s_add_u32 s56, s56, 0x1200100')
        a('v_mov_b32 v22, s56')
        a('s_mov_b64 exec, 1')
        a('global_store_dword v22, v20, s[10:11]')
    a('s_endpgm')
    a.label('K1_FRAG')
    if opts.get('codepre', 0):
        a('s_cmp_lt_u32 s2, 32')
        a('s_cbranch_scc1 K1_FRAG2')
        a('s_cmp_ge_u32 s2, 64')
        a('s_cbranch_scc1 K1_END')
        a('s_getpc_b64 s[12:13]')
        a.label('K1_PCREF')
        a('s_add_u32 s12, s12, gs_main_kernel-K1_PCREF')
        a('s_addc_u32 s13, s13, 0')
        a('v_and_b32 v1, 63, v0')
        a('v_lshlrev_b32 v2, 4, v1')
        for i in range(opts.get('codekb', 20)):
            a(f'global_load_dwordx4 v[4:7], v2, s[12:13]')
            a('v_add_u32 v2, 1024, v2')
        a('s_endpgm')
        a.label('K1_FRAG2')
    a('s_cmp_ge_u32 s2, 32')
    a('s_cbranch_scc1 K1_END')
    if opts.get('fragbar', 1):
        a('s_barrier')
    a('s_load_dwordx4 s[12:15], s[0:1], 32')
    a('s_load_dwordx4 s[16:19], s[0:1], 56')
    a('s_lshr_b32 s20, s2, 3')
    a('s_waitcnt lgkmcnt(0)')
    a('s_mov_b32 s22, s14')
    a('s_mov_b32 s23, s15')
    a('s_cmp_eq_u32 s20, 1')
    a('s_cselect_b32 s22, s18, s22')
    a('s_cselect_b32 s23, s19, s23')
    a('s_cmp_eq_u32 s20, 2')
    a('s_cselect_b32 s22, s12, s22')
    a('s_cselect_b32 s23, s13, s23')
    a('s_cmp_eq_u32 s20, 3')
    a('s_cselect_b32 s22, s16, s22')
    a('s_cselect_b32 s23, s17, s23')
    srd(a, 24, 22, 64 * 64 * 2)
    srd_off(a, 28, 10, WS_FRAG, 32 * 1024)
    a('s_and_b32 s32, s2, 3')
    a('s_lshr_b32 s33, s2, 2')
    a('s_and_b32 s33, s33, 1')
    a('s_lshl_b32 s32, s32, 11')
    a('s_lshl_b32 s33, s33, 6')
    a('s_add_u32 s32, s32, s33')
    a('v_and_b32 v1, 63, v0')
    a('v_and_b32 v2, 31, v1')
    a('v_lshlrev_b32 v2, 1, v2')
    a('v_lshrrev_b32 v3, 5, v1')
    a('v_lshlrev_b32 v3, 10, v3')
    a('v_add3_u32 v2, v2, v3, s32')
    for i in range(8):
        a(f'buffer_load_ushort v{8+i}, v2, s[24:27], 0 offen offset:{i*128}')
    a('s_mov_b32 s34, 1.0')
    a('s_and_b32 s36, s20, 1')
    a('s_cmp_eq_u32 s36, 0')
    a('s_cselect_b32 s34, 0x%x, s34' % LOG2E)
    a('s_waitcnt vmcnt(0)')
    for i in range(8):
        a(f'v_lshlrev_b32 v{8+i}, 16, v{8+i}')
        a(f'v_mul_f32 v{8+i}, s34, v{8+i}')
    for i in range(4):
        a(f'v_cvt_pk_bf16_f32 v{16+i}, v{8+2*i}, v{9+2*i}')
    a('v_lshlrev_b32 v4, 4, v1')
    a('s_lshl_b32 s35, s2, 10')
    a('v_add_u32 v4, s35, v4')
    a('buffer_store_dwordx4 v[16:19], v4, s[28:31], 0 offen')
    if opts.get('endwait', 1): a('s_waitcnt vmcnt(0)')
    a.label('K1_END')
    a('s_endpgm')

def gen_k2(a, opts):
    STAMP = opts.get('stamp', False)
    vLANE = 1; BC = 2
    WB = 4; WV = 36; AX = 68
    GA = 84; HA = 100; GB = 116; HB = 132
    PP = 148; TT_ = 156; ZZ = 164
    DEN = 172; NUM = 176
    AE = [180, 184]; BE = 188; R0 = 192
    QA = [196, 200]
    EN = 204; RA = 208; CO = 212
    pEN = 216; pEE = 217; pQI = 218; pQF = 219
    C4 = 220; SEL = [221, 222]; EE = 223; QF = 224
    F0 = 225; F1 = 226; F2 = 252; F3 = 227
    tA = 227; tB = 228; tC = 229; tD = 230; tE = 231; tF = 232; tG = 233; tH = 234; tI = 235
    TQ = 236; TR = 240
    sidA = 244; jA = 245; sidR = 246; iR4 = 247
    vST = 253; GF = 249; GD = 250
    PB = 228; TB = 236; ZB = 244
    RC = 252; RKC = 225; RKC2 = 226; tJ = 251
    nvgpr = 256
    REC = PP; RK = GB; SG = HB
    G_ = [GA, GB]; H_ = [HA, HB]
    nOFF0 = AE[0]+0 if False else QA[0]; nOFF1 = QA[0]+1; nEND0 = QA[0]+2; nEND1 = QA[0]+3; nROW0 = QA[1]
    S = Regs('s', 3, 102)
    sX = S.alloc('x', 2, 2); sWC = S.alloc('wc', 2, 2); sOUT = S.alloc('out', 2, 2); sWS = S.alloc('ws', 2, 2)
    rX = S.alloc('rX', 4, 4); rT = S.alloc('rT', 4, 4); rR = S.alloc('rR', 4, 4); rF = S.alloc('rF', 4, 4)
    sW = S.alloc('w'); sNS = S.alloc('ns'); sNN = S.alloc('nn')
    sP = S.alloc('pass'); sNP = S.alloc('npass')
    sL = S.alloc('L'); sCNT = S.alloc('cnt'); sLA = S.alloc('La'); sLB = S.alloc('Lb'); sSO = S.alloc('streamoff')
    sC = S.alloc('C', 2, 2)
    sF = [S.alloc('F0', 2, 2), S.alloc('F1', 2, 2)]
    sANY = [S.alloc('any0'), S.alloc('any1')]
    s128 = S.alloc('c128'); sLO = S.alloc('lo16'); sHI = S.alloc('hi16')
    t0 = S.alloc('t0'); t1 = S.alloc('t1'); t2 = S.alloc('t2', 1, 2); t3 = S.alloc('t3')
    sSV = S.alloc('sv', 2, 2); sSV2 = S.alloc('sv2', 2, 2)
    sDB = S.alloc('dmabase'); sSWAP = S.alloc('swap')
    sDBG = S.alloc('dbg', 2, 2) if opts.get('dbgtime') else None
    sT0 = S.alloc('dbgt0', 2, 2) if opts.get('dbgtime') else None
    sT1 = S.alloc('dbgt1') if opts.get('dbgtime') else None
    sT2 = S.alloc('dbgt2') if opts.get('dbgtime') else None
    MK = S.alloc('MK', 32, 2)
    MKC = S.alloc('MKC', 2, 2); MKC2 = S.alloc('MKC2', 2, 2)
    rO = rT
    nsgpr = S.hi
    def stamp(i):
        if not STAMP: return
        a(f's_memtime s[{t2}:{t3}]')
        a('s_waitcnt lgkmcnt(0)')
        a(f'v_writelane_b32 v{vST}, s{t2}, {i}')
    XB = 4096

    a.raw('.p2align 8')
    a.raw('.globl gs_main_kernel')
    a.raw('.type gs_main_kernel,@function')
    a.label('gs_main_kernel')
    a('s_cmp_ge_u32 s2, 256')
    a('s_cbranch_scc1 K2_END')
    a(f's_load_dwordx2 s[{sWS}:{sWS+1}], s[0:1], 88')
    a(f's_load_dwordx2 s[{sX}:{sX+1}], s[0:1], 0')
    a(f's_load_dwordx2 s[{sWC}:{sWC+1}], s[0:1], 48')
    a(f's_load_dwordx2 s[{sOUT}:{sOUT+1}], s[0:1], 72')
    a('s_and_b32 s3, s2, 7')
    a('s_lshr_b32 s2, s2, 3')
    a('s_lshl_b32 s3, s3, 5')
    a('s_add_u32 s2, s2, s3')
    if opts.get('dbgtime'):
        a(f's_load_dwordx2 s[{sDBG}:{sDBG+1}], s[0:1], 80')
        a(f's_memrealtime s[{sT0}:{sT0+1}]')
        a('s_waitcnt lgkmcnt(0)')
    if STAMP:
        a(f'v_mov_b32 v{vST}, 0')
        a(f's_memtime s[{MK}:{MK+1}]')
        a(f's_memrealtime s[{MK+2}:{MK+3}]')
    a(f'v_lshrrev_b32 v{tA}, 6, v0')
    a(f'v_and_b32 v{vLANE}, 63, v0')
    a(f'v_readfirstlane_b32 s{sW}, v{tA}')
    a(f'v_lshrrev_b32 v{sidA}, 5, v{vLANE}')
    if opts.get('proprio'):
        a('s_nop 2')
        a(f's_cmp_ge_u32 s{sW}, 4')
        a('s_cbranch_scc0 K2_PP0')
        a('s_setprio 1')
        a.label('K2_PP0')
    a(f's_lshl_b32 s{t0}, s{sW}, 1')
    a(f'v_add_u32 v{sidA}, s{t0}, v{sidA}')
    a(f'v_lshrrev_b32 v{tD}, 3, v{vLANE}')
    a(f'v_lshlrev_b32 v{tD}, 4, v{tD}')
    a(f's_lshl_b32 s{t0}, s{sW}, 7')
    a(f'v_add_u32 v{tD}, s{t0}, v{tD}')
    a(f'v_lshlrev_b32 v{tA}, 4, v{vLANE}')
    a(f's_mul_i32 s{t0}, s2, 3125')
    a(f's_add_u32 s{sNS}, s{t0}, 31')
    a(f's_lshr_b32 s{sNS}, s{sNS}, 5')
    a(f's_add_u32 s{t0}, s{t0}, {3125+31}')
    a(f's_lshr_b32 s{t0}, s{t0}, 5')
    a(f's_sub_u32 s{sNN}, s{t0}, s{sNS}')
    a(f's_lshl_b32 s{sDB}, s{sW}, 12')
    a(f's_add_u32 s{sDB}, s{sDB}, {L_DMA}')
    a(f'v_bfe_u32 v{tE}, v{vLANE}, 4, 1')
    a(f'v_and_b32 v{tF}, 7, v{vLANE}')
    a(f'v_xor_b32 v{tE}, v{tE}, v{tF}')
    a(f'v_lshlrev_b32 v{tE}, 4, v{tE}')
    for i in range(4):
        if i: a(f'v_xor_b32 v{tF}, {32*i}, v{tE}')
        a(f'v_add_u32 v{CO+i}, {XB - 1024*i}, v{tF if i else tE}')
    a(f'v_bfe_u32 v{jA}, v{vLANE}, 3, 2')
    a(f'v_lshrrev_b32 v{tF}, 5, v{vLANE}')
    a(f'v_lshlrev_b32 v{tE}, 3, v{jA}')
    a(f'v_lshl_add_u32 v{tE}, v{tF}, 2, v{tE}')
    a(f's_lshr_b32 s{t0}, s{sW}, 1')
    a(f's_lshl_b32 s{t1}, s{t0}, 5')
    a(f's_add_u32 s{t1}, s{t1}, s{sNS}')
    a(f's_and_b32 s{t2}, s{sW}, 1')
    a(f's_lshl_b32 s{t2}, s{t2}, 1')
    a(f's_add_u32 s{t1}, s{t1}, s{t2}')
    a(f'v_add_u32 v{tE}, s{t1}, v{tE}')
    a(f'v_lshlrev_b32 v{tE}, 7, v{tE}')
    a(f's_cmp_eq_u32 s{t2}, 0')
    a(f's_cbranch_scc0 K2_XI2')
    a(f'v_add_u32 v{tH}, v{tE}, v{CO}')
    a(f'v_add_u32 v{tI}, v{tE}, v{CO+1}')
    a('s_branch K2_XI')
    a.label('K2_XI2')
    a(f'v_add_u32 v{tH}, v{tE}, v{CO+2}')
    a(f'v_add_u32 v{tI}, v{tE}, v{CO+3}')
    a(f'v_add_u32 v{tH}, 2048, v{tH}')
    a(f'v_add_u32 v{tI}, 2048, v{tI}')
    a.label('K2_XI')
    a(f'v_add_u32 v{tI}, 128, v{tI}')
    a(f'v_and_b32 v{C4}, 31, v{vLANE}')
    a(f's_lshl_b32 s{t1}, s2, 10')
    a(f's_add_u32 s{t1}, s{t1}, {WS_TAB}')
    a('s_waitcnt lgkmcnt(0)')
    if STAMP:
        a(f'v_writelane_b32 v{vST}, s{MK}, 0')
        a(f'v_writelane_b32 v{vST}, s{MK+2}, 11')
    srd_off(a, rT, sWS, f's{t1}', 1024)
    a(f'buffer_load_dwordx4 v[{SG}:{SG+3}], v{tD}, s[{rT}:{rT+3}], 0 offen')
    a(f's_sub_u32 s{rX}, s{sX}, {XB}')
    a(f's_subb_u32 s{rX+1}, s{sX+1}, 0')
    a(f's_and_b32 s{rX+1}, s{rX+1}, 0xffff')
    a(f's_mov_b32 s{rX+2}, {N*128 + XB}')
    a(f's_mov_b32 s{rX+3}, 0x20000')
    srd_off(a, rF, sWS, WS_FRAG, 32 * 1024)
    def staging():
        a(f's_lshr_b32 s{t0}, s{sW}, 1')
        a(f's_lshl_b32 s{t0}, s{t0}, 12')
        a(f's_and_b32 s{t2}, s{sW}, 1')
        a(f's_lshl_b32 s{t2}, s{t2}, 11')
        a(f's_add_u32 s{t0}, s{t0}, s{t2}')
        a(f's_add_u32 s{t0}, s{t0}, {L_DMA}')
        a(f's_mov_b32 m0, s{t0}')
        a(f'v_lshlrev_b32 v{tA}, 4, v{vLANE}')
        if not opts.get('noxown'):
            a(f'buffer_load_dwordx4 v{tH}, s[{rX}:{rX+3}], 0 offen lds')
            a(f'buffer_load_dwordx4 v{tI}, s[{rX}:{rX+3}], 0 offen offset:1024 lds')
        a(f's_lshl_b32 s{t0}, s{sW}, 11')
        a(f's_add_u32 s{t1}, s{t0}, {L_DMA + 4*4096}')
        a(f's_mov_b32 m0, s{t1}')
        a(f's_add_u32 s{t2}, s{t0}, {16*1024}')
        a(f'buffer_load_dwordx4 v{tA}, s[{rF}:{rF+3}], s{t2} offen lds')
        a(f'buffer_load_dwordx4 v{tA}, s[{rF}:{rF+3}], s{t2} offen offset:1024 lds')
        a(f's_add_u32 s{t1}, s{t0}, {L_WST}')
        a(f's_mov_b32 m0, s{t1}')
        a('s_nop 0')
        a(f'buffer_load_dwordx4 v{tA}, s[{rF}:{rF+3}], s{t0} offen lds')
        a(f'buffer_load_dwordx4 v{tA}, s[{rF}:{rF+3}], s{t0} offen offset:1024 lds')
        srd(a, rR, sWC, 128)
        a(f'v_lshlrev_b32 v{tE}, 1, v{C4}')
        if not opts.get('nowc'):
            a(f'buffer_load_ushort v{BC}, v{tE}, s[{rR}:{rR+3}], 0 offen')
            a(f'buffer_load_ushort v{BC+1}, v{tE}, s[{rR}:{rR+3}], 0 offen offset:64')
    staging()
    MKT = (MK + 3) // 4 * 4
    if opts.get('touch', 0):
        srd(a, MKT, sWS, NBK * RECB)
        a(f'v_and_b32 v{tE}, 3, v{vLANE}')
        a(f'v_lshlrev_b32 v{tE}, 21, v{tE}')
        a(f'buffer_load_dword v{F0}, v{tE}, s[{MKT}:{MKT+3}], 0 offen')
        srd(a, MKT + 4, sOUT, N * 128)
        a(f'v_and_b32 v{tE}, 1, v{vLANE}')
        a(f'v_lshlrev_b32 v{tE}, 21, v{tE}')
        a(f'buffer_load_dword v{F1}, v{tE}, s[{MKT+4}:{MKT+7}], 0 offen')
    def lds_init():
        a(f'v_lshlrev_b32 v{tE}, 4, v0')
        a(f'v_mov_b32 v{TR}, 0xffff')
        a(f'v_mov_b32 v{TR+1}, 0xffff')
        a(f'v_mov_b64 v[{TR+2}:{TR+3}], v[{TR}:{TR+1}]')
        a(f'ds_write_b128 v{tE}, v[{TR}:{TR+3}] offset:{L_ENT}')
        a(f's_cmp_ge_u32 s{sW}, {(ENT_QUADS - 512) // 64}')
        a(f's_cbranch_scc1 K2_I1{tag_i[0]}')
        a(f'ds_write_b128 v{tE}, v[{TR}:{TR+3}] offset:{L_ENT + 512*16}')
        a.label(f'K2_I1{tag_i[0]}')
        assert (ENT_QUADS - 512) % 64 == 0
        a(f'v_mov_b32 v{TR}, {L_VIRT}')
        a(f'v_mov_b32 v{TR+1}, {L_VIRT}')
        a(f'v_mov_b64 v[{TR+2}:{TR+3}], v[{TR}:{TR+1}]')
        a(f'v_cmp_gt_u32 vcc, {ENT_QUADS // 4}, v0')
        a(f's_and_saveexec_b64 s[{sSV}:{sSV+1}], vcc')
        a(f'ds_write_b128 v{tE}, v[{TR}:{TR+3}] offset:{L_QI}')
        a(f's_mov_b64 exec, s[{sSV}:{sSV+1}]')
        a(f's_cmp_lg_u32 s{sW}, 0')
        a(f's_cbranch_scc1 K2_I2{tag_i[0]}')
        a(f'v_mov_b64 v[{TR}:{TR+1}], 0')
        a(f'v_mov_b64 v[{TR+2}:{TR+3}], 0')
        a(f'ds_write_b128 v{tE}, v[{TR}:{TR+3}] offset:{L_CNT}')
        a(f'v_add_u32 v{tE}, {L_VIRT + 512}, v{tE}')
        a('s_mov_b64 exec, 0xff')
        a(f'ds_write_b128 v{tE}, v[{TR}:{TR+3}]')
        a('s_mov_b64 exec, -1')
        a.label(f'K2_I2{tag_i[0]}')
        tag_i[0] += 1
    tag_i = [0]
    lds_init()
    a(f'v_and_b32 v{tE}, 3, v{vLANE}')
    a(f'v_lshlrev_b32 v{iR4}, 2, v{tE}')
    a(f'v_lshl_add_u32 v{RA}, v{tE}, 3, v{jA}')
    a(f'v_lshrrev_b32 v{tF}, 1, v{jA}')
    a(f'v_lshl_add_u32 v{tE}, v{tE}, 1, v{tF}')
    a(f'v_bfe_u32 v{tF}, v{vLANE}, 2, 1')
    a(f's_lshl_b32 s{t0}, s{sW}, 1')
    a(f'v_add_u32 v{sidR}, s{t0}, v{tF}')
    a(f'v_lshl_add_u32 v{RA}, v{tF}, 2, v{RA}')
    a(f'v_lshrrev_b32 v{tG}, 5, v{vLANE}')
    a(f'v_cmp_eq_u32 vcc, v{tF}, v{tG}')
    a(f'v_xor_b32 v{tE}, v{tE}, v{tG}')
    a(f'v_lshlrev_b32 v{tE}, 4, v{tE}')
    a(f'v_lshl_add_u32 v{RA}, v{RA}, 7, v{tE}')
    a(f'v_mov_b32 v{tF}, 0x3f80')
    a(f'v_cndmask_b32 v{tF}, 0, v{tF}, vcc')
    a(f'v_lshlrev_b32 v{tG}, v{jA}, 1') if False else None
    a(f'v_mov_b32 v{tG}, 1')
    a(f'v_lshlrev_b32 v{tG}, v{jA}, v{tG}')
    for q in range(4):
        a(f'v_bfe_u32 v{tE}, v{tG}, {q}, 1')
        a(f'v_mul_u32_u24 v{AE[0]+q}, v{tE}, v{tF}')
        a(f'v_lshlrev_b32 v{AE[1]+q}, 16, v{AE[0]+q}')
    a(f'v_cmp_gt_u32 vcc, 32, v{vLANE}')
    a(f'v_mov_b32 v{tE}, 0x0a0c0100')
    a(f'v_mov_b32 v{tF}, 0x07060100')
    a(f'v_cndmask_b32 v{SEL[0]}, v{tE}, v{tF}, vcc')
    a(f'v_mov_b32 v{tE}, 0x03020a0c')
    a(f'v_mov_b32 v{tF}, 0x03020706')
    a(f'v_cndmask_b32 v{SEL[1]}, v{tE}, v{tF}, vcc')
    a(f's_mov_b32 s{sC}, 0x{C_SCALE:x}')
    a(f's_mov_b32 s{sC+1}, 0x{C_SCALE:x}')
    a(f's_mov_b32 s{s128}, 128')
    a(f's_mov_b32 s{sLO}, 0xffff')
    a(f's_mov_b32 s{sHI}, 0xffff0000')
    a(f'v_and_b32 v{tB}, 7, v{vLANE}')
    a(f'v_lshlrev_b32 v{tB}, 4, v{tB}')
    a(f'v_lshlrev_b32 v{C4}, 2, v{C4}')
    a('s_waitcnt vmcnt(%d) lgkmcnt(0)' % (2 if opts.get('touch', 0) else 0))
    stamp(1)
    a('s_barrier')
    srd(a, rR, sWS, NBK * RECB)
    def slot_ent(sl): return REC + 2*sl
    def rec_loads(vk16, nwin):
        for it in range(4):
            a(f'v_mad_u32_u24 v{RK+it}, v{SG+it}, 8, v{vk16}')
        for w_ in range(nwin):
            for it in range(4):
                sl = 8*w_ + 2*it
                a(f's_mov_b64 exec, s[{MK+2*sl}:{MK+2*sl+1}]')
                sk = a.newlabel('skl') if w_ else None
                if sk: a(f's_cbranch_execz {sk}')
                a(f'buffer_load_dwordx4 v[{REC+2*sl}:{REC+2*sl+3}], v{RK+it}, s[{rR}:{rR+3}], 0 offen' + (' offset:128' if w_ else ''))
                if sk: a.label(sk)
        a('s_mov_b64 exec, -1')
    a(f'v_lshrrev_b32 v{tC}, 3, v{tB}')
    for w_ in range(2):
        for sub in range(2):
            if w_ or sub: a(f'v_add_u32 v{tD}, {16*w_ + sub}, v{tC}')
            for it in range(4):
                sl = 8*w_ + 2*it + sub
                a(f'v_cmp_gt_u32_sdwa s[{MK+2*sl}:{MK+2*sl+1}], v{SG+it}, v{tD if (w_ or sub) else tC} src0_sel:BYTE_3 src1_sel:DWORD')
    stamp(25)
    rec_loads(tB, 2)
    stamp(26)
    a(f'v_max3_u32 v{tD}, v{SG}, v{SG+1}, v{SG+2}')
    a(f'v_max_u32 v{tD}, v{tD}, v{SG+3}')
    a(f'v_lshrrev_b32 v{tD}, 24, v{tD}')
    a(f'v_cmp_lt_u32 s[{sSV2}:{sSV2+1}], 32, v{tD}')
    a(f's_mov_b64 s[{MKC}:{MKC+1}], 0')
    a(f's_mov_b64 s[{MKC2}:{MKC2+1}], 0')
    a(f's_cmp_lg_u64 s[{sSV2}:{sSV2+1}], 0')
    a('s_cbranch_scc1 K2_CSEL')
    a.label('K2_CBACK')

    def gemm_issue():
        a(f's_lshr_b32 s{t0}, s{sW}, 1')
        a(f's_lshl_b32 s{t1}, s{t0}, 12')
        a(f's_add_u32 s{t1}, s{t1}, {L_DMA}')
        a(f'v_add_u32 v{tA}, s{t1}, v{RA}')
        a(f'v_xor_b32 v{tB}, 32, v{tA}')
        a(f'ds_read_b128 v[{AX}:{AX+3}], v{tA}')
        a(f'ds_read_b128 v[{AX+4}:{AX+7}], v{tB}')
        a(f'v_xor_b32 v{tB}, 64, v{tA}')
        a(f'v_xor_b32 v{tC}, 96, v{tA}')
        a(f'ds_read_b128 v[{AX+8}:{AX+11}], v{tB}')
        a(f'ds_read_b128 v[{AX+12}:{AX+15}], v{tC}')
        a(f's_and_b32 s{t2}, s{sW}, 1')
        a(f's_lshl_b32 s{t3}, s{t2}, 13')
        a(f's_add_u32 s{t3}, s{t3}, {L_DMA + 4*4096}')
        a(f'v_lshlrev_b32 v{GF}, 4, v{vLANE}')
        a(f'v_add_u32 v{GF}, s{t3}, v{GF}')
        for f in range(4):
            a(f'ds_read_b128 v[{SG+4*f}:{SG+4*f+3}], v{GF} offset:{f*1024}')
        for f in range(4):
            a(f'ds_read_b128 v[{RK+4*f}:{RK+4*f+3}], v{GF} offset:{(4+f)*1024}')
        a(f's_mul_i32 s{t1}, s{t0}, {32*ROWB}')
        a(f's_lshl_b32 s{t3}, s{t2}, 7')
        a(f's_add_u32 s{t1}, s{t1}, s{t3}')
        a(f's_add_u32 s{t1}, s{t1}, {L_ACC + 512}')
        a(f'v_lshrrev_b32 v{GD}, 5, v{vLANE}')
        a(f'v_mul_u32_u24 v{GD}, {4*ROWB}, v{GD}')
        a(f'v_add3_u32 v{GD}, v{GD}, v{C4}, s{t1}')
    def gemm_mid():
        a('s_waitcnt lgkmcnt(0)')
        for kp in range(4):
            c = '0' if kp == 0 else f'v[{GA}:{GA+15}]'
            a(f'v_mfma_f32_32x32x16_bf16 v[{GA}:{GA+15}], v[{AX+4*kp}:{AX+4*kp+3}], v[{SG+4*kp}:{SG+4*kp+3}], {c}')
            c = '0' if kp == 0 else f'v[{HA}:{HA+15}]'
            a(f'v_mfma_f32_32x32x16_bf16 v[{HA}:{HA+15}], v[{AX+4*kp}:{AX+4*kp+3}], v[{RK+4*kp}:{RK+4*kp+3}], {c}')
    def gemm_mid2():
        a('s_nop 7')
        a('s_nop 3')
    def w_frags():
        a(f'v_lshlrev_b32 v{GF}, 4, v{vLANE}')
        a(f'v_add_u32 v{GF}, {L_WST}, v{GF}')
        for f in range(16):
            dst = (WB + 4*f) if f < 8 else (WV + 4*(f-8))
            if f == 12: a('s_waitcnt lgkmcnt(8)')
            a(f'ds_read_b128 v[{dst}:{dst+3}], v{GF} offset:{f*1024}')
    def gemm_store(tag):
        for i in range(16):
            a(f'v_cvt_pk_bf16_f32 v{GA+i}, v{GA+i}, v{HA+i}')
        a(f's_lshr_b32 s{t0}, s{sW}, 1')
        a(f's_cmp_eq_u32 s{t0}, 3')
        a(f's_cbranch_scc1 K2_RT3{tag}')
        for vv in range(16):
            if vv == 12: a('s_waitcnt lgkmcnt(8)')
            a(f'ds_write_b32 v{GD}, v{GA+vv} offset:{(8*(vv//4) + vv%4) * ROWB}')
        a(f's_branch K2_RTD{tag}')
        a.label(f'K2_RT3{tag}')
        a('s_mov_b32 exec_hi, 0')
        for vv in range(2):
            a(f'ds_write_b32 v{GD}, v{GA+vv} offset:{vv * ROWB}')
        a('s_mov_b64 exec, -1')
        a.label(f'K2_RTD{tag}')
    def consts():
        a(f'v_add_u32 v{RA}, s{sDB}, v{RA}')
        for kp in range(1, 4):
            a(f'v_xor_b32 v{RA+kp}, {32*kp}, v{RA}')
        a(f's_mov_b32 s{t3}, 0x{LOG2E:x}')
        for cc in range(2):
            a(f'v_lshlrev_b32 v{BC+cc}, 16, v{BC+cc}')
            a(f'v_mul_f32 v{BC+cc}, s{t3}, v{BC+cc}')
        a(f'v_cvt_pk_bf16_f32 v{BC}, 0, v{BC}')
        a(f'v_cvt_pk_bf16_f32 v{BC+1}, v{BC+1}, 0')
        a(f'v_cmp_gt_u32 vcc, 32, v{vLANE}')
        a(f'v_mov_b32 v{tG}, 0xb2000000')
        a(f'v_mov_b32 v{tH}, 0xb200')
        a(f'v_cndmask_b32 v{BC}, v{tG}, v{BC}, vcc')
        a(f'v_cndmask_b32 v{BC+1}, v{tH}, v{BC+1}, vcc')

    def hist():
        a(f'v_mov_b32 v{tE}, 1')
        for sl in range(8):
            a(f's_mov_b64 exec, s[{MK+2*sl}:{MK+2*sl+1}]')
            a(f'ds_add_rtn_u32 v{RK+sl}, v{REC+2*sl+1}, v{tE} offset:{L_CNT}')
        a('s_waitcnt lgkmcnt(6)')
        for sl in range(8, 16, 2):
            sk = a.newlabel('skh')
            a(f's_mov_b64 exec, s[{MK+2*sl}:{MK+2*sl+1}]')
            a(f's_cbranch_execz {sk}')
            a(f'ds_add_rtn_u32 v{RK+sl}, v{REC+2*sl+1}, v{tE} offset:{L_CNT}')
            a(f's_mov_b64 exec, s[{MK+2*sl+2}:{MK+2*sl+3}]')
            a(f'ds_add_rtn_u32 v{RK+sl+1}, v{REC+2*sl+3}, v{tE} offset:{L_CNT}')
            a.label(sk)
        sk = a.newlabel('skhc')
        a(f's_mov_b64 exec, s[{MKC}:{MKC+1}]')
        a(f's_cbranch_execz {sk}')
        a('s_waitcnt lgkmcnt(6)')
        a(f'ds_add_rtn_u32 v{RKC}, v{RC+1}, v{tE} offset:{L_CNT}')
        a(f's_mov_b64 exec, s[{MKC2}:{MKC2+1}]')
        a(f'ds_add_rtn_u32 v{RKC2}, v{RC+3}, v{tE} offset:{L_CNT}')
        a.label(sk)
        a('s_mov_b64 exec, -1')

    def scan_nodes(tag, mid=None):
        a(f'v_lshlrev_b32 v{tA}, 3, v{vLANE}')
        a(f'ds_read_b64 v[{TQ}:{TQ+1}], v{tA} offset:{L_CNT}')
        a(f'v_mul_u32_u24 v{nROW0}, {2*ROWB}, v{vLANE}')
        a(f'v_add_u32 v{nROW0}, {L_ACC}, v{nROW0}')
        if mid: mid()
        else: a('s_waitcnt lgkmcnt(0)')
        a(f'v_add_u32 v{tE}, 3, v{TQ}')
        a(f'v_add_u32 v{tF}, 3, v{TQ+1}')
        a(f'v_and_b32 v{tE}, -4, v{tE}')
        a(f'v_and_b32 v{tF}, -4, v{tF}')
        a(f'v_add_u32 v{tC}, v{tE}, v{tF}')
        a(f'v_max_u32 v{tB}, v{tE}, v{tF}')
        a(f'v_mov_b32 v{tD}, v{tC}')
        wave_scan(a, 'v_add_u32', tD)
        a(f'v_sub_u32 v{nOFF0}, v{tD}, v{tC}')
        a(f'v_readlane_b32 s{t1}, v{tD}, 63')
        a(f'v_add_u32 v{nOFF1}, v{nOFF0}, v{tE}')
        a(f'v_lshlrev_b32 v{TQ+2}, 2, v{nOFF0}')
        a(f'v_lshlrev_b32 v{TQ+3}, 2, v{nOFF1}')
        a(f'ds_write_b64 v{tA}, v[{TQ+2}:{TQ+3}] offset:{L_TAB}')
        a(f'v_mov_b32 v{nEND0}, v{nOFF1}')
        a(f'v_add_u32 v{nEND1}, v{nOFF1}, v{tF}')
        a(f's_add_u32 s{t1}, s{t1}, 127')
        a(f's_lshr_b32 s{t1}, s{t1}, 7')
        a(f's_lshr_b32 s{t0}, s{t1}, 1')
        a(f's_sub_u32 s{t1}, s{t1}, s{t0}')
        a(f's_lshl_b32 s{sLA}, s{t1}, 2')
        a(f's_lshl_b32 s{sLB}, s{t0}, 2')
        a(f's_sub_u32 s{sSO}, s{sLA}, s{sLB}')
        a(f's_lshl_b32 s{sSO}, s{sSO}, 3')
        a(f's_cmp_lt_u32 s{sW}, 4')
        a(f's_cselect_b32 s{sL}, s{sLA}, s{sLB}')
        a(f's_cselect_b32 s{sSO}, 0, s{sSO}')
        a(f's_lshr_b32 s{sCNT}, s{sL}, 2')
        a(f's_sub_u32 s{sCNT}, s{sCNT}, 1')
    def qi_fill(tag, split, nwq=8):
        B0 = TQ + 2; B1 = TQ + 3; V0 = TR + 1; V1 = TR + 2
        a(f'v_max_u32 v{TR}, v{tE}, v{tF}')
        if split:
            a(f'v_cvt_f32_u32 v{tA}, s{sLA}')
            a(f'v_cvt_f32_u32 v{tD}, s{sLB}')
            a(f'v_rcp_f32 v{tA}, v{tA}')
            a(f'v_rcp_f32 v{tD}, v{tD}')
            a(f's_lshl_b32 s{t0}, s{sLA}, 5')
            a(f's_sub_u32 s{t1}, s{sLA}, s{sLB}')
            a(f's_lshl_b32 s{t1}, s{t1}, 5')
            a(f'v_mul_f32 v{tA}, 0.25, v{tA}')
            a(f'v_mul_f32 v{tD}, 0.25, v{tD}')
            for (OFF, nx, B, Vv) in ((nOFF0, tB, B0, V0), (nOFF1, tC, B1, V1)):
                a(f'v_cmp_gt_u32 vcc, s{t0}, v{OFF}')
                a(f'v_subrev_u32 v{tG}, s{t1}, v{OFF}')
                a('s_nop 0')
                a(f'v_cndmask_b32 v{tG}, v{tG}, v{OFF}, vcc')
                a(f'v_cndmask_b32 v{tH}, v{tD}, v{tA}, vcc')
                a(f'v_cvt_f32_u32 v{tG}, v{tG}')
                a(f'v_add_f32 v{tG}, 2.0, v{tG}')
                a(f'v_mul_f32 v{tG}, v{tH}, v{tG}')
                a(f'v_cvt_u32_f32 v{nx}, v{tG}')
                a(f'v_add_u32 v{nx}, 1, v{nx}')
                a(f'v_mov_b32 v{tG}, s{sLB}')
                a(f'v_mov_b32 v{tH}, s{sLA}')
                a(f'v_cndmask_b32 v{tG}, v{tG}, v{tH}, vcc')
                a(f'v_mov_b32 v{tH}, s{t1}')
                a(f'v_cndmask_b32 v{tH}, v{tH}, 0, vcc')
                a(f'v_lshlrev_b32 v{tG}, 2, v{tG}')
                a(f'v_mad_u32_u24 v{B}, v{nx}, v{tG}, v{tH}')
            a(f's_movk_i32 s{t1}, {VROWB}')
            a(f'v_mov_b32 v{tD}, {L_VIRT}')
            a(f'v_mad_u32_u24 v{V0}, v{tB}, s{t1}, v{tD}')
            a(f'v_mad_u32_u24 v{V1}, v{tC}, s{t1}, v{tD}')
            a(f'v_add_u32 v{tD}, {ROWB}, v{nROW0}')
            for nd, (B, Vv, END, nx) in enumerate(((B0, V0, nEND0, tB), (B1, V1, nEND1, tC))):
                lab = a.newlabel('nosplit')
                a(f'v_lshrrev_b32 v{tG}, {1 if nwq == 8 else 2}, v{nx}')
                a(f'v_cmp_lt_u32 vcc, v{B}, v{END}')
                a(f'v_cmp_eq_u32 s[{sSV}:{sSV+1}], s{sW}, v{tG}')
                a(f's_and_b64 vcc, vcc, s[{sSV}:{sSV+1}]')
                a(f's_cbranch_scc0 {lab}')
                lp = a.newlabel('splitlp')
                a.label(lp)
                a(f's_ff1_i32_b64 s{t0}, vcc')
                a(f's_bitset0_b64 vcc, s{t0}')
                a(f'v_readlane_b32 s{t2}, v{nROW0 if nd == 0 else tD}, s{t0}')
                a(f'v_readlane_b32 s{t3}, v{Vv}, s{t0}')
                a(f'v_lshrrev_b32 v{tG}, 0, v{C4}')
                a('s_mov_b32 exec_hi, 0')
                a(f'v_add_u32 v{tH}, s{t2}, v{tG}')
                a(f'ds_read_b32 v{tI}, v{tH} offset:512')
                a(f'v_add_u32 v{tH}, s{t3}, v{tG}')
                a(f'v_mov_b32 v{tG}, s{t2}')
                a(f'v_mov_b32 v{tA}, s{t3}')
                a(f'ds_write_b32 v{tG}, v{tA} offset:768')
                a('s_waitcnt lgkmcnt(1)')
                a(f'ds_write_b32 v{tH}, v{tI} offset:512')
                a('s_mov_b64 exec, -1')
                a(f's_cmp_lg_u64 vcc, 0')
                a(f's_cbranch_scc1 {lp}')
                a.label(lab)
        a(f's_lshl_b32 s{t0}, s{sW}, 2')
        a(f'v_add_u32 v{tA}, s{t0}, v{nOFF0}')
        a(f'v_add_u32 v{tB}, s{t0}, v{nOFF1}')
        a(f'v_add_u32 v{tC}, {ROWB}, v{nROW0}')
        lp = f'K2_QF{tag}'
        a.label(lp)
        a(f's_add_u32 s{t1}, s{t0}, 4')
        a(f'v_cmp_eq_u32 s[{sSV}:{sSV+1}], s{t1}, v{tE}')
        a(f'v_cmp_eq_u32 s[{sSV2}:{sSV2+1}], s{t1}, v{tF}')
        if split:
            a(f'v_add_u32 v{tG}, 4, v{tA}')
            a(f'v_add_u32 v{tH}, 4, v{tB}')
            a(f'v_cmp_eq_u32 vcc, v{tG}, v{B0}')
            a(f's_or_b64 s[{sSV}:{sSV+1}], s[{sSV}:{sSV+1}], vcc')
            a(f'v_cmp_eq_u32 vcc, v{tH}, v{B1}')
            a(f's_or_b64 s[{sSV2}:{sSV2+1}], s[{sSV2}:{sSV2+1}], vcc')
            a(f'v_cmp_ge_u32 vcc, v{tA}, v{B0}')
            a('s_nop 1')
            a(f'v_cndmask_b32 v{tG}, v{nROW0}, v{V0}, vcc')
            a(f'v_cmp_ge_u32 vcc, v{tB}, v{B1}')
            a('s_nop 1')
            a(f'v_cndmask_b32 v{tH}, v{tC}, v{V1}, vcc')
        else:
            a(f'v_mov_b32 v{tG}, v{nROW0}')
            a(f'v_mov_b32 v{tH}, v{tC}')
        a(f'v_or_b32 v{tD}, 0x80000000, v{tG}')
        a(f'v_or_b32 v{tI}, 0x80000000, v{tH}')
        a(f'v_cmp_lt_u32 vcc, s{t0}, v{tE}')
        a(f'v_cndmask_b32 v{tG}, v{tG}, v{tD}, s[{sSV}:{sSV+1}]')
        a(f'v_cndmask_b32 v{tH}, v{tH}, v{tI}, s[{sSV2}:{sSV2+1}]')
        a(f'v_cmp_lt_u32 s[{sSV}:{sSV+1}], s{t0}, v{tF}')
        a('s_mov_b64 exec, vcc')
        a(f'ds_write_b32 v{tA}, v{tG} offset:{L_QI}')
        a(f's_mov_b64 exec, s[{sSV}:{sSV+1}]')
        a(f'ds_write_b32 v{tB}, v{tH} offset:{L_QI}')
        a('s_mov_b64 exec, -1')
        a(f's_add_u32 s{t0}, s{t0}, {4*nwq}')
        a(f'v_add_u32 v{tA}, {4*nwq}, v{tA}')
        a(f'v_add_u32 v{tB}, {4*nwq}, v{tB}')
        a(f'v_cmp_lt_u32 vcc, s{t0}, v{TR}')
        a(f's_cbranch_vccnz {lp}')
    def scatter():
        a('s_waitcnt lgkmcnt(0)')
        for sl in range(8):
            a(f's_mov_b64 exec, s[{MK+2*sl}:{MK+2*sl+1}]')
            a(f'ds_read_b32 v{AX+sl}, v{REC+2*sl+1} offset:{L_TAB}')
        for sl in range(8):
            a(f's_mov_b64 exec, s[{MK+2*sl}:{MK+2*sl+1}]')
            a('s_waitcnt lgkmcnt(7)')
            a(f'v_lshl_add_u32 v{AX+sl}, v{RK+sl}, 2, v{AX+sl}')
            a(f'ds_write_b32 v{AX+sl}, v{REC+2*sl} offset:{L_ENT}')
        for sl in range(8, 16, 2):
            sk = a.newlabel('sks')
            a(f's_mov_b64 exec, s[{MK+2*sl}:{MK+2*sl+1}]')
            a(f's_cbranch_execz {sk}')
            a(f'ds_read_b32 v{AX+sl}, v{REC+2*sl+1} offset:{L_TAB}')
            a(f's_mov_b64 exec, s[{MK+2*sl+2}:{MK+2*sl+3}]')
            a(f'ds_read_b32 v{AX+sl+1}, v{REC+2*sl+3} offset:{L_TAB}')
            a('s_waitcnt lgkmcnt(0)')
            a(f'v_lshl_add_u32 v{AX+sl+1}, v{RK+sl+1}, 2, v{AX+sl+1}')
            a(f'ds_write_b32 v{AX+sl+1}, v{REC+2*sl+2} offset:{L_ENT}')
            a(f's_mov_b64 exec, s[{MK+2*sl}:{MK+2*sl+1}]')
            a(f'v_lshl_add_u32 v{AX+sl}, v{RK+sl}, 2, v{AX+sl}')
            a(f'ds_write_b32 v{AX+sl}, v{REC+2*sl} offset:{L_ENT}')
            a.label(sk)
        sk = a.newlabel('sksc')
        a(f's_mov_b64 exec, s[{MKC}:{MKC+1}]')
        a(f's_cbranch_execz {sk}')
        a(f'ds_read_b32 v{AX}, v{RC+1} offset:{L_TAB}')
        a(f's_mov_b64 exec, s[{MKC2}:{MKC2+1}]')
        a(f'ds_read_b32 v{AX+1}, v{RC+3} offset:{L_TAB}')
        a('s_waitcnt lgkmcnt(0)')
        a(f'v_lshl_add_u32 v{AX+1}, v{RKC2}, 2, v{AX+1}')
        a(f'ds_write_b32 v{AX+1}, v{RC+2} offset:{L_ENT}')
        a(f's_mov_b64 exec, s[{MKC}:{MKC+1}]')
        a(f'v_lshl_add_u32 v{AX}, v{RKC}, 2, v{AX}')
        a(f'ds_write_b32 v{AX}, v{RC} offset:{L_ENT}')
        a.label(sk)
        a('s_mov_b64 exec, -1')

    def setup_ptrs():
        a(f'v_add_u32 v{tB}, s{sSO}, v{jA}')
        a(f'v_mad_u32_u24 v{tA}, v{sidA}, s{sL}, v{tB}')
        a(f'v_lshlrev_b32 v{pEN}, 4, v{tA}')
        a(f'ds_read_b128 v[{EN}:{EN+3}], v{pEN} offset:{L_ENT}')
        a(f'v_lshlrev_b32 v{pQF}, 2, v{tA}')
        a(f'v_sub_u32 v{pQI}, v{tA}, v{jA}')
        a(f'v_lshlrev_b32 v{pQI}, 2, v{pQI}')
        a(f'v_add_u32 v{pQI}, {L_QI}, v{pQI}')
        a(f'v_mad_u32_u24 v{tA}, v{sidR}, s{sL}, v{tB}')
        a(f'v_lshl_add_u32 v{pEE}, v{tA}, 4, v{iR4}')
        a(f's_mov_b32 m0, s{sDB}')

    def dma_addr():
        return [f'v_mad_u32_u16 v{EN+i}, v{EN+i}, s{s128}, v{CO+i}' for i in range(4)]
    def dma_issue():
        if opts.get('nodma'): return []
        return [f'buffer_load_dwordx4 v{EN+i}, s[{rX}:{rX+3}], 0 offen offset:{1024*i} lds' if i else
                f'buffer_load_dwordx4 v{EN}, s[{rX}:{rX+3}], 0 offen lds' for i in range(4)]

    def main_loop(tag, atomic):
        flush_blocks = []
        PS = [(PP, TT_, ZZ), (PB, TB, ZB)]
        def flush_body(par, j):
            a(f's_bfe_i32 exec_lo, s{sF[par]}, 0x{(1<<16)|(8*j):x}')
            a(f's_bfe_i32 exec_hi, s{sF[par]+1}, 0x{(1<<16)|(8*j):x}')
            a(f'v_add_f32 v{F0}, v{DEN}, v{DEN+1}')
            a(f'v_add_f32 v{F1}, v{NUM}, v{NUM+1}')
            a(f'v_add_f32 v{F2}, v{DEN+2}, v{DEN+3}')
            a(f'v_add_f32 v{F3}, v{NUM+2}, v{NUM+3}')
            a(f'v_mov_b64 v[{DEN}:{DEN+1}], 0')
            a(f'v_mov_b64 v[{NUM}:{NUM+1}], 0')
            if atomic:
                a(f'ds_add_f32 v{QA[par]+j}, v{F0}')
                a(f'ds_add_f32 v{QA[par]+j}, v{F1} offset:256')
                a(f'ds_add_f32 v{QA[par]+j}, v{F2} offset:128')
                a(f'ds_add_f32 v{QA[par]+j}, v{F3} offset:384')
            else:
                a(f'ds_write2_b32 v{QA[par]+j}, v{F0}, v{F1} offset0:0 offset1:64')
                a(f'ds_write2_b32 v{QA[par]+j}, v{F2}, v{F3} offset0:32 offset1:96')
            a(f'v_mov_b64 v[{DEN+2}:{DEN+3}], 0')
            a(f'v_mov_b64 v[{NUM+2}:{NUM+3}], 0')
            a('s_mov_b64 exec, -1')
        def post2(par):
            for j in range(4):
                for cc in range(2):
                    p, t, z = (r + 2*j for r in PS[cc])
                    a(f'v_pk_fma_f32 v[{NUM+2*cc}:{NUM+2*cc+1}], v[{p}:{p+1}], v[{t}:{t+1}], v[{NUM+2*cc}:{NUM+2*cc+1}]')
                    a(f'v_pk_fma_f32 v[{DEN+2*cc}:{DEN+2*cc+1}], v[{p}:{p+1}], v[{z}:{z+1}], v[{DEN+2*cc}:{DEN+2*cc+1}]')
                if opts.get('noflush'): continue
                fl = a.newlabel('fl'); back = a.newlabel('bk')
                a(f's_bitcmp1_b32 s{sANY[par]}, {8*j}')
                a(f's_cbranch_scc1 {fl}')
                a.label(back)
                flush_blocks.append((fl, back, par, j))
        def pre(cur):
            g0 = G_[cur]; h0 = H_[cur]; P_, T_, Z_ = PS[cur]
            for j in range(4):
                g = g0 + 4*j
                a(f'v_pk_fma_f32 v[{g}:{g+1}], v[{g}:{g+1}], s[{sC}:{sC+1}], s[{sC}:{sC+1}] clamp')
                a(f'v_pk_fma_f32 v[{g+2}:{g+3}], v[{g+2}:{g+3}], s[{sC}:{sC+1}], s[{sC}:{sC+1}] clamp')
            for j in range(4):
                g = g0 + 4*j; h = h0 + 4*j
                X = f'v[{g}:{g+1}]'; Y = f'v[{g+2}:{g+3}]'
                p = P_ + 2*j; t = T_ + 2*j; z = Z_ + 2*j
                a(f'v_pk_mul_f32 v[{t}:{t+1}], {Y}, v[{h}:{h+1}]')
                a(f'v_pk_mul_f32 v[{p}:{p+1}], {X}, {Y}')
                a(f'v_pk_add_f32 v[{z}:{z+1}], {X}, {Y}')
                a(f'v_pk_fma_f32 v[{t}:{t+1}], {X}, v[{h+2}:{h+3}], v[{t}:{t+1}]')
        def mfma_list(nxt, cc):
            Gs = f'v[{G_[nxt]}:{G_[nxt]+15}]'; Hs = f'v[{H_[nxt]}:{H_[nxt]+15}]'
            out = []
            for kp in range(4):
                wb = WB + 16*cc + 4*kp; wv = WV + 16*cc + 4*kp; ax = AX + 4*kp
                out.append(f'v_mfma_f32_32x32x16_bf16 {Hs}, v[{ax}:{ax+3}], v[{wv}:{wv+3}], {"0" if kp == 0 else Hs}')
                out.append(f'v_mfma_f32_32x32x16_bf16 {Gs}, v[{ax}:{ax+3}], v[{wb}:{wb+3}], {"0" if kp == 0 else Gs}')
            out.append(f'v_mfma_f32_32x32x16_bf16 {Gs}, v[{AE[cc]}:{AE[cc]+3}], v[{BE}:{BE+3}], {Gs}')
            return out
        def trans_list(cur):
            Pp = PS[cur ^ 1][0]
            return [f'v_rcp_f32 v{Pp+i}, v{Pp+i}' for i in range(8)] + [f'v_exp_f32 v{G_[cur]+i}, v{G_[cur]+i}' for i in range(16)]
        def weave(mf, tr, gaps):
            dist = [3, 3, 3, 3, 3, 3, 2, 2, 2]
            if opts.get('nogaps'): gaps = {}
            if opts.get('nomf'): mf = None
            k = 0
            for m in range(9):
                for ins in gaps.get(('m', m), []): a(ins)
                if mf: a(mf[m])
                for _ in range(dist[m]):
                    a(tr[k])
                    for ins in gaps.get(k, []): a(ins)
                    k += 1
            assert k == len(tr)
        def stage0(par):
            g = {}
            da = dma_addr()
            g[0] = [f'ds_read_b32 v{QF}, v{pQF} offset:{L_QI + 16*(par+1)}']
            g[1] = [f'ds_read_b32 v{EE}, v{pEE} offset:{L_ENT + 64*(par+1)}']
            g[3] = [f'v_and_or_b32 v{BE}, v{R0}, s{sHI}, v{BC+1}']
            g[6] = [da[0]]; g[9] = [da[1]]; g[12] = [da[2]]; g[15] = [da[3]]
            axr = [f'ds_read_b128 v[{AX+4*kp}:{AX+4*kp+3}], v{RA+kp}' for kp in range(4)]
            early = opts.get('axearly', 0)
            if early:
                for kp, gp in enumerate(opts.get('axgaps', (8, 11, 17, 21))):
                    g.setdefault(gp, [])
                    g[gp] = g[gp] + ((['s_waitcnt vmcnt(0)'] if kp == 0 else []) + [axr[kp]])
            weave(mfma_list(1, 1), trans_list(0), g)
            axpre = opts.get('axpre', 1)
            if axpre and not early and not opts.get('nogaps'):
                a('s_waitcnt vmcnt(0)')
                for ins in axr: a(ins)
            post2(par ^ 1)
            qn = QA[par ^ 1]
            if not opts.get('nogaps'):
                a(f'ds_read_b128 v[{qn}:{qn+3}], v{pQI} offset:{16*(par+1)}')
                if not early and not axpre:
                    a('s_waitcnt vmcnt(0)')
                    for ins in axr: a(ins)
            pre(0)
            a(f's_sub_u32 s{sCNT}, s{sCNT}, 1')
        def stage1(par):
            qn = QA[par ^ 1]
            g = {}
            di = dma_issue()
            g[('m', 0)] = ['s_waitcnt lgkmcnt(0)']
            dg = opts.get('dmag', 0)
            dd = {0: (0, 1, 2, 3), 1: (8, 10, 12, 14), 2: (6, 8, 10, 12), 3: (12, 14, 16, 18)}[dg]
            g[0] = [f'v_mad_u32_u24 v{qn}, v{qn}, 1, v{C4}']
            g[1] = [f'v_mad_u32_u24 v{qn+1}, v{qn+1}, 1, v{C4}']
            g[2] = [f'ds_read_b32 v{R0}, v{qn} offset:512']
            g[3] = [f'v_mad_u32_u24 v{qn+2}, v{qn+2}, 1, v{C4}', f'ds_read_b32 v{BE+1}, v{qn+1} offset:512']
            g[4] = [f'v_mad_u32_u24 v{qn+3}, v{qn+3}, 1, v{C4}', f'ds_read_b32 v{BE+2}, v{qn+2} offset:512']
            g[5] = [f'ds_read_b32 v{BE+3}, v{qn+3} offset:512']
            g[7] = [f'v_perm_b32 v{AE[0]}, v{EE}, v{AE[0]}, v{SEL[0]}']
            g[9] = [f'v_perm_b32 v{AE[1]}, v{EE}, v{AE[1]}, v{SEL[1]}']
            g[11] = [f'v_cmp_gt_i32 s[{sF[par^1]}:{sF[par^1]+1}], 0, v{QF}']
            if par == 1:
                g[13] = [f'v_add_u32 v{pQI}, 32, v{pQI}']
                g[14] = [f'v_add_u32 v{pQF}, 32, v{pQF}']
                g[15] = [f'v_add_u32 v{pEE}, 128, v{pEE}']
                g[16] = [f'v_add_u32 v{pEN}, 128, v{pEN}']
            g[17] = [f's_or_b32 s{sANY[par^1]}, s{sF[par^1]}, s{sF[par^1]+1}'] if not opts.get('noany') else [f's_mov_b32 s{sANY[par^1]}, 0']
            g[19] = ['s_waitcnt lgkmcnt(%d)' % (1 if dd[3] >= 18 else 0), f'v_and_or_b32 v{BE}, v{R0}, s{sLO}, v{BC}']
            for i_, gp in enumerate(dd):
                if di: g[gp] = g.get(gp, []) + [di[i_]]
            en_gap = max(dd[3] + 1, 6)
            en_rd = f'ds_read_b128 v[{EN}:{EN+3}], v{pEN} offset:{L_ENT + 64*(par+3)}'
            if en_gap >= 19:
                g[20] = g.get(20, []) + [en_rd]
            else:
                g[en_gap] = g.get(en_gap, []) + [en_rd]
            if par == 1:
                pass
            weave(mfma_list(0, 0), trans_list(1), g)
            pre(1)
        def last_stage1(par):
            weave(None, trans_list(1), {})
            pre(1)
            for i in range(8):
                a(f'v_rcp_f32 v{PB+i}, v{PB+i}')
            a('s_nop 0')
            post2(par)
        L0 = f'K2_T0{tag}'; E0 = f'K2_E0{tag}'; E1 = f'K2_E1{tag}'; DONE = f'K2_MD{tag}'
        PR = opts.get('prio', 1)
        if PR:
            a(f's_add_u32 s{t0}, s{sCNT}, 1')
            a(f's_mul_i32 s{t0}, s{t0}, {opts.get("pfrac", 20)}')
            a(f's_lshr_b32 s{t0}, s{t0}, 6')
            a(f's_lshl_b32 s{t0}, s{t0}, 1')
            a(f's_sub_u32 s{sSWAP}, s{sCNT}, s{t0}')
            a(f's_cmp_ge_u32 s{sW}, 4')
            a(f's_cbranch_scc0 K2_PR0{tag}')
            a('s_setprio 1')
            a.label(f'K2_PR0{tag}')
        if PR == 3:
            a(f's_cmp_ge_u32 s{sW}, 4')
            a(f's_cselect_b32 s{sSWAP}, 1, 0')
        a.label(L0)
        if PR == 3:
            a(f's_xor_b32 s{sSWAP}, s{sSWAP}, 1')
            a(f's_cbranch_scc1 K2_PH{tag}')
            a('s_setprio 0')
            a(f's_branch K2_PD{tag}')
            a.label(f'K2_PH{tag}')
            a('s_setprio 1')
            a.label(f'K2_PD{tag}')
        elif PR:
            a(f's_cmp_eq_u32 s{sCNT}, s{sSWAP}')
            a(f's_cbranch_scc1 K2_SWP{tag}')
            a.label(f'K2_SWB{tag}')
        stage0(0)
        a(f's_cbranch_scc1 {E0}')
        stage1(0)
        stage0(1)
        a(f's_cbranch_scc1 {E1}')
        stage1(1)
        a(f's_branch {L0}')
        a.label(E0)
        last_stage1(0)
        a(f's_branch {DONE}')
        a.label(E1)
        last_stage1(1)
        a(f's_branch {DONE}')
        if PR and PR != 3:
            a.label(f'K2_SWP{tag}')
            a(f's_cmp_ge_u32 s{sW}, 4')
            a(f's_cbranch_scc1 K2_SW0{tag}')
            a('s_setprio 1')
            a(f's_branch K2_SWB{tag}')
            a.label(f'K2_SW0{tag}')
            a('s_setprio 0')
            a(f's_branch K2_SWB{tag}')
        for (fl, back, par, j) in flush_blocks:
            a.label(fl)
            flush_body(par, j)
            a(f's_branch {back}')
        a.label(DONE)
        if PR: a('s_setprio 0')

    def pipeline_fill():
        q0 = QA[0]
        a(f'ds_read_b128 v[{q0}:{q0+3}], v{pQI}')
        a(f'ds_read_b32 v{QF}, v{pQF} offset:{L_QI}')
        a(f'ds_read_b32 v{EE}, v{pEE} offset:{L_ENT}')
        a(f'ds_read_b128 v[{EN}:{EN+3}], v{pEN} offset:{L_ENT + 64}')
        for i in range(2):
            a(f'v_mov_b64 v[{DEN+2*i}:{DEN+2*i+1}], 0')
            a(f'v_mov_b64 v[{NUM+2*i}:{NUM+2*i+1}], 0')
        for i in range(8):
            a(f'v_mov_b32 v{PP+i}, 1.0')
            a(f'v_mov_b32 v{PB+i}, 1.0')
        for i in range(4):
            a(f'v_mov_b64 v[{TT_+2*i}:{TT_+2*i+1}], 0')
            a(f'v_mov_b64 v[{ZZ+2*i}:{ZZ+2*i+1}], 0')
            a(f'v_mov_b64 v[{TB+2*i}:{TB+2*i+1}], 0')
            a(f'v_mov_b64 v[{ZB+2*i}:{ZB+2*i+1}], 0')
        a(f's_mov_b32 s{sANY[1]}, 0')
        a('s_waitcnt lgkmcnt(0)')
        for q in range(4):
            a(f'v_mad_u32_u24 v{q0+q}, v{q0+q}, 1, v{C4}')
        a(f'ds_read_b32 v{R0}, v{q0} offset:512')
        for q in range(1, 4):
            a(f'ds_read_b32 v{BE+q}, v{q0+q} offset:512')
        a(f'v_perm_b32 v{AE[0]}, v{EE}, v{AE[0]}, v{SEL[0]}')
        a(f'v_perm_b32 v{AE[1]}, v{EE}, v{AE[1]}, v{SEL[1]}')
        a(f'v_cmp_gt_i32 s[{sF[0]}:{sF[0]+1}], 0, v{QF}')
        for ins in dma_addr(): a(ins)
        stamp(21)
        a('s_waitcnt vmcnt(0)')
        stamp(22)
        for kp in range(4):
            a(f'ds_read_b128 v[{AX+4*kp}:{AX+4*kp+3}], v{RA+kp}')
        a(f's_or_b32 s{sANY[0]}, s{sF[0]}, s{sF[0]+1}')
        a('s_waitcnt lgkmcnt(0)')
        a(f'v_and_or_b32 v{BE}, v{R0}, s{sLO}, v{BC}')
        for ins in dma_issue(): a(ins)
        a(f'ds_read_b128 v[{EN}:{EN+3}], v{pEN} offset:{L_ENT + 128}')
        Gs = f'v[{GA}:{GA+15}]'; Hs = f'v[{HA}:{HA+15}]'
        for kp in range(4):
            a(f'v_mfma_f32_32x32x16_bf16 {Hs}, v[{AX+4*kp}:{AX+4*kp+3}], v[{WV+4*kp}:{WV+4*kp+3}], {"0" if kp == 0 else Hs}')
            a(f'v_mfma_f32_32x32x16_bf16 {Gs}, v[{AX+4*kp}:{AX+4*kp+3}], v[{WB+4*kp}:{WB+4*kp+3}], {"0" if kp == 0 else Gs}')
        a(f'v_mfma_f32_32x32x16_bf16 {Gs}, v[{AE[0]}:{AE[0]+3}], v[{BE}:{BE+3}], {Gs}')
        a('s_waitcnt lgkmcnt(0)')
        a('s_nop 7')
        a('s_nop 3')
    def forced_flags():
        a(f's_sub_u32 s{t1}, s{sL}, 1')
        a(f's_lshl_b32 s{t1}, s{t1}, 2')
        a(f'v_add_u32 v{tB}, s{t1}, v{pQI}')
        a(f'v_mov_b32 v{tA}, 0x80000000')
        a('s_mov_b32 exec_lo, 1')
        a('s_mov_b32 exec_hi, 1')
        a(f'ds_or_b32 v{tB}, v{tA}')
        a('s_mov_b64 exec, -1')

    stamp(2)
    a(f's_mov_b64 exec, s[{sSV2}:{sSV2+1}]')
    a(f'v_mov_b32 v{tD}, {L_CNT + 127*4}')
    a(f'v_mov_b32 v{tE}, 1')
    a(f'ds_write_b32 v{tD}, v{tE}')
    a('s_mov_b64 exec, -1')
    gemm_issue()
    stamp(28)
    gemm_mid()
    gemm_mid2()
    stamp(29)
    a(f's_cmp_lg_u32 s{sW}, 0')
    a('s_cbranch_scc1 K2_NOCI')
    a(f'v_mul_u32_u24 v{tA}, {2*ROWB}, v{vLANE}')
    a(f'v_mov_b32 v{tB}, {L_ZERO}')
    a(f'v_add_u32 v{tA}, {L_ACC}, v{tA}')
    a(f's_mov_b32 exec_hi, {(1 << (MAXN // 2 - 32)) - 1}')
    a(f'ds_write_b32 v{tA}, v{tB} offset:768')
    a(f'ds_write_b32 v{tA}, v{tB} offset:{768 + ROWB}')
    a('s_mov_b64 exec, -1')
    a.label('K2_NOCI')
    gemm_store('F')
    stamp(3)
    a('s_waitcnt vmcnt(0) lgkmcnt(0)')
    stamp(23)
    hist()
    a('s_waitcnt lgkmcnt(0)')
    stamp(24)
    if opts.get('proprio') == 1: a('s_setprio 0')
    a('s_barrier')
    stamp(4)
    scan_nodes('F')
    a(f'v_readlane_b32 s{t0}, v{TQ+1}, 63')
    a(f's_cmp_eq_u32 s{sLB}, 0')
    a(f's_cselect_b32 s{t1}, s{sLA}, s{sLB}')
    a(f's_lshl_b32 s{t1}, s{t1}, 2')
    a(f'v_cmp_lt_u32 vcc, s{t1}, v{tB}')
    a(f's_cmp_lg_u32 s{t0}, 0')
    a('s_cbranch_scc1 K2_SLOW')
    a(f's_add_u32 s{t1}, s{sLA}, s{sLB}')
    a(f's_cmp_gt_u32 s{t1}, {(ENT_QUADS - 8) // 8}')
    a('s_cbranch_scc1 K2_SLOW')
    a('s_cbranch_vccnz K2_SLOW')
    stamp(15)
    scatter()
    stamp(16)
    a('s_waitcnt lgkmcnt(0)')
    a('s_barrier')
    stamp(5)
    a(f's_cmp_eq_u32 s{sL}, 0')
    a('s_cbranch_scc1 K2_NOL')
    setup_ptrs()
    a('s_waitcnt lgkmcnt(0)')
    for ins in dma_addr(): a(ins)
    for ins in dma_issue(): a(ins)
    a.label('K2_NOL')
    stamp(17)
    if opts.get('qi4', 0):
        a(f's_cmp_ge_u32 s{sW}, 4')
        a('s_cbranch_scc1 K2_QIDONE')
    a(f'v_cmp_gt_u32 vcc, {MAXN // 2}, v{vLANE}')
    a(f'v_lshl_or_b32 v{tB}, v{vLANE}, 1, 1')
    a(f'v_cmp_le_u32 s[{sSV}:{sSV+1}], s{sNN}, v{tB}')
    a(f'v_mov_b32 v{tC}, 1')
    a('s_nop 0')
    a(f'v_cndmask_b32 v{tB}, v{TQ+1}, v{tC}, s[{sSV}:{sSV+1}]')
    a(f'v_min_u32 v{tB}, v{TQ}, v{tB}')
    a(f'v_cmp_eq_u32 s[{sSV}:{sSV+1}], 0, v{tB}')
    a(f's_and_b64 s[{sSV}:{sSV+1}], s[{sSV}:{sSV+1}], vcc')
    a('s_cbranch_scc1 K2_ZROWS')
    a.label('K2_ZBACK')
    if opts.get('qi4', 0):
        qi_fill('F', True, 4)
        a.label('K2_QIDONE')
    else:
        qi_fill('F', True)
    stamp(18)
    w_frags()
    consts()
    a('s_waitcnt lgkmcnt(0)')
    stamp(19)
    if opts.get('proprio') == 2: a('s_setprio 0')
    a('s_barrier')
    stamp(20)
    a(f's_cmp_eq_u32 s{sL}, 0')
    a('s_cbranch_scc1 K2_EPI')
    pipeline_fill()
    stamp(6)
    if opts.get('dbgtime'):
        a(f's_memrealtime s[{t2}:{t3}]')
        a('s_waitcnt lgkmcnt(0)')
        a(f's_mov_b32 s{sT1}, s{t2}')
    if STAMP:
        a(f's_memrealtime s[{t2}:{t3}]')
        a('s_waitcnt lgkmcnt(0)')
        a(f'v_writelane_b32 v{vST}, s{t2}, 13')
    if opts.get('half'):
        a(f's_cmp_ge_u32 s{sW}, 4')
        a('s_cbranch_scc1 K2_MDF')
    main_loop('F', False)
    stamp(7)
    if opts.get('dbgtime'):
        a(f's_memrealtime s[{t2}:{t3}]')
        a('s_waitcnt lgkmcnt(0)')
        a(f's_mov_b32 s{sT2}, s{t2}')
    if STAMP:
        a(f's_memrealtime s[{t2}:{t3}]')
        a('s_waitcnt lgkmcnt(0)')
        a(f'v_writelane_b32 v{vST}, s{t2}, 14')
    a.label('K2_EPI')
    e0 = 4
    XV = [e0, e0 + 4]; UU = [e0 + 8, e0 + 12]
    DN = [e0 + 16, e0 + 48]; NM = [e0 + 24, e0 + 56]; CD = [e0 + 32, e0 + 64]; CN = [e0 + 40, e0 + 72]
    O = e0 + 80; ADR = [e0 + 84, e0 + 85]; GO = [e0 + 86, e0 + 87]; CP = [e0 + 88, e0 + 89]; OC = [e0 + 90, e0 + 91]
    T1 = e0 + 92; ND = e0 + 93
    def epi_addr(r):
        a(f'v_add_u32 v{T1}, {512*r}, v0') if r else a(f'v_mov_b32 v{T1}, v0')
        a(f'v_lshrrev_b32 v{ND}, 3, v{T1}')
        a(f'v_and_b32 v{T1}, 7, v{T1}')
        a(f'v_lshlrev_b32 v{OC[r]}, 4, v{T1}')
        a(f'v_mul_u32_u24 v{CP[r]}, s{t0}, v{ND}')
        a(f'v_add_u32 v{CP[r]}, {L_ACC}, v{CP[r]}')
        a(f'v_add_u32 v{ADR[r]}, v{CP[r]}, v{OC[r]}')
        a(f'v_add_u32 v{GO[r]}, s{sNS}, v{ND}')
        a(f'v_lshlrev_b32 v{GO[r]}, 7, v{GO[r]}')
        a(f'v_lshl_add_u32 v{GO[r]}, v{T1}, 3, v{GO[r]}')
    def epi_static(r, carry):
        a(f'buffer_load_dwordx2 v[{XV[r]}:{XV[r]+1}], v{GO[r]}, s[{rF}:{rF+3}], 0 offen')
        a(f'buffer_load_dwordx2 v[{XV[r]+2}:{XV[r]+3}], v{GO[r]}, s[{rF}:{rF+3}], 0 offen offset:64')
        a(f'ds_read_b128 v[{UU[r]}:{UU[r]+3}], v{ADR[r]} offset:640')
        if carry: a(f'ds_read_b32 v{CP[r]}, v{CP[r]} offset:768')
    def epi_reads(r, carry):
        ad = ADR[r]
        a(f'ds_read_b128 v[{DN[r]}:{DN[r]+3}], v{ad}')
        a(f'ds_read_b128 v[{DN[r]+4}:{DN[r]+7}], v{ad} offset:128')
        a(f'ds_read_b128 v[{NM[r]}:{NM[r]+3}], v{ad} offset:256')
        a(f'ds_read_b128 v[{NM[r]+4}:{NM[r]+7}], v{ad} offset:384')
        if carry:
            a(f'ds_read_b128 v[{CD[r]}:{CD[r]+3}], v{CP[r]}')
            a(f'ds_read_b128 v[{CD[r]+4}:{CD[r]+7}], v{CP[r]} offset:128')
            a(f'ds_read_b128 v[{CN[r]}:{CN[r]+3}], v{CP[r]} offset:256')
            if r == 1: a('s_waitcnt lgkmcnt(14)')
            a(f'ds_read_b128 v[{CN[r]+4}:{CN[r]+7}], v{CP[r]} offset:384')
    def epi_math(r, carry):
        dn, nm, cd, cn, uu, xv = DN[r], NM[r], CD[r], CN[r], UU[r], XV[r]
        if carry:
            for i in range(0, 8, 2):
                a(f'v_pk_add_f32 v[{dn+i}:{dn+i+1}], v[{dn+i}:{dn+i+1}], v[{cd+i}:{cd+i+1}]')
                a(f'v_pk_add_f32 v[{nm+i}:{nm+i+1}], v[{nm+i}:{nm+i+1}], v[{cn+i}:{cn+i+1}]')
        for i in range(0, 8, 2):
            a(f'v_pk_add_f32 v[{dn+i}:{dn+i+1}], v[{dn+i}:{dn+i+1}], s[{sC}:{sC+1}]')
        for i in range(8):
            a(f'v_rcp_f32 v{dn+i}, v{dn+i}')
        for i in range(4):
            a(f'v_lshlrev_b32 v{cd+i}, 16, v{uu+i}')
            a(f'v_and_b32 v{cd+4+i}, s{sHI}, v{uu+i}')
        for i in range(0, 8, 2):
            a(f'v_pk_fma_f32 v[{nm+i}:{nm+i+1}], v[{nm+i}:{nm+i+1}], v[{dn+i}:{dn+i+1}], v[{cd+i}:{cd+i+1}]')
        for i in range(8):
            a(f'v_max_f32 v{nm+i}, 0, v{nm+i}')
        for i in range(4):
            a(f'v_lshlrev_b32 v{cd+2*i}, 16, v{xv+i}')
            a(f'v_and_b32 v{cd+2*i+1}, s{sHI}, v{xv+i}')
        for i in range(0, 8, 2):
            a(f'v_pk_add_f32 v[{nm+i}:{nm+i+1}], v[{nm+i}:{nm+i+1}], v[{cd+i}:{cd+i+1}]')
        for i in range(4):
            a(f'v_cvt_pk_bf16_f32 v{O+i}, v{nm+2*i}, v{nm+2*i+1}')
        osf = {0: '', 1: ' sc1', 2: ' nt', 3: ' sc0 sc1'}[opts.get('outst', 1)]
        a(f'buffer_store_dwordx2 v[{O}:{O+1}], v{GO[r]}, s[{rO}:{rO+3}], 0 offen' + osf)
        a(f'buffer_store_dwordx2 v[{O+2}:{O+3}], v{GO[r]}, s[{rO}:{rO+3}], 0 offen offset:64' + osf)
    def epilogue(tag, carry):
        srd(a, rO, sOUT, N * 128)
        srd(a, rF, sX, N * 128)
        a(f's_mov_b32 s{t0}, {ROWB}')
        a(f's_mov_b32 s{sC}, 0x{EPS_SCALED:x}')
        a(f's_mov_b32 s{sC+1}, 0x{EPS_SCALED:x}')
        a(f's_mov_b32 s{sHI}, 0xffff0000')
        a('s_waitcnt vmcnt(0)')
        epi_addr(0)
        epi_static(0, carry)
        epi_addr(1)
        a(f'v_cmp_gt_u32 s[{sSV}:{sSV+1}], s{sNN}, v{ND}')
        a('s_nop 3')
        a(f's_mov_b64 exec, s[{sSV}:{sSV+1}]')
        a(f's_cbranch_execz K2_NS2{tag}')
        epi_static(1, carry)
        a.label(f'K2_NS2{tag}')
        a('s_mov_b64 exec, -1')
        a('s_waitcnt lgkmcnt(0)')
        if carry:
            a(f'v_add_u32 v{CP[0]}, v{CP[0]}, v{OC[0]}')
            a(f'v_add_u32 v{CP[1]}, v{CP[1]}, v{OC[1]}')
        a('s_barrier')
        if STAMP and tag == 'F': stamp(8)
        epi_reads(0, carry)
        a(f's_mov_b64 exec, s[{sSV}:{sSV+1}]')
        a(f's_cbranch_execz K2_ONE{tag}')
        epi_reads(1, carry)
        a('s_mov_b64 exec, -1')
        a(f's_waitcnt vmcnt(0) lgkmcnt({8 if carry else 4})')
        epi_math(0, carry)
        a(f's_mov_b64 exec, s[{sSV}:{sSV+1}]')
        a('s_waitcnt lgkmcnt(0)')
        epi_math(1, carry)
        a(f's_branch K2_FIN{tag}')
        a.label(f'K2_ONE{tag}')
        a('s_mov_b64 exec, -1')
        a('s_waitcnt vmcnt(0) lgkmcnt(0)')
        epi_math(0, carry)
        a.label(f'K2_FIN{tag}')
        if opts.get('endwait', 1): a('s_waitcnt vmcnt(0)')
    epilogue('F', True)
    if opts.get('dbgtime'):
        a('s_mov_b64 exec, -1')
        a('s_waitcnt vmcnt(0)')
        a(f's_memrealtime s[{t2}:{t3}]')
        a(f's_cmp_lg_u32 s{sW}, 7')
        a('s_cbranch_scc1 K2_DBGX')
        a('s_and_b32 s3, s2, 31')
        a('s_cmp_lg_u32 s3, 0')
        a('s_cbranch_scc1 K2_DBGX')
        a('s_lshr_b32 s3, s2, 5')
        a('s_cmp_ge_u32 s3, 2')
        a('s_cbranch_scc1 K2_DBGX')
        a(f's_lshl_b32 s{t0}, s3, 2')
        a(f's_add_u32 s{t0}, s{t0}, 0x1200000')
        a(f'v_mov_b32 v4, s{t0}')
        a(f'global_load_dword v5, v4, s[{sWS}:{sWS+1}]')
        a(f'global_load_dword v6, v4, s[{sWS}:{sWS+1}] offset:256')
        a('s_waitcnt vmcnt(0) lgkmcnt(0)')
        a(f'v_sub_u32 v8, v6, v5')
        a(f'v_sub_u32 v9, s{sT0}, v5')
        a(f'v_sub_u32 v10, s{sT1}, v5')
        a(f'v_sub_u32 v11, s{sT2}, v5')
        a(f'v_sub_u32 v12, s{t2}, v5')
        a('s_lshl_b32 s3, s3, 5')
        a('v_mov_b32 v4, s3')
        a('s_mov_b64 exec, 1')
        a(f'global_store_dwordx4 v4, v[8:11], s[{sDBG}:{sDBG+1}]')
        a(f'global_store_dword v4, v12, s[{sDBG}:{sDBG+1}] offset:16')
        a.label('K2_DBGX')
    if STAMP:
        a('s_mov_b64 exec, -1')
        a('s_waitcnt vmcnt(0)')
        stamp(9)
        a(f's_memrealtime s[{t2}:{t3}]')
        a('s_waitcnt lgkmcnt(0)')
        a(f'v_writelane_b32 v{vST}, s{t2}, 12')
        a(f's_mul_i32 s{t0}, s2, {NW}')
        a(f's_add_u32 s{t0}, s{t0}, s{sW}')
        a(f's_lshl_b32 s{t0}, s{t0}, 8')
        a(f's_add_u32 s{t0}, s{t0}, 0x1000000')
        srd_off(a, rT, sWS, f's{t0}', 256)
        a(f'v_writelane_b32 v{vST}, s{sL}, 10')
        a(f'v_lshlrev_b32 v4, 2, v{vLANE}')
        a(f'buffer_store_dword v{vST}, v4, s[{rT}:{rT+3}], 0 offen')
    a('s_endpgm')
    a.label('K2_CSEL')
    a(f'v_mov_b32 v{tD}, 0')
    a(f'v_mov_b32 v{tE}, 0')
    a(f'v_mov_b32 v{tF}, 0')
    for it in range(4):
        a(f'v_lshrrev_b32 v{tG}, 24, v{SG+it}')
        a(f'v_cmp_lt_u32 vcc, 32, v{tG}')
        a(f'v_mad_u32_u24 v{tJ}, v{SG+it}, 8, v{tB}')
        a(f'v_add_u32 v{RKC}, 1, v{tF}')
        a(f'v_cndmask_b32 v{tD}, v{tD}, v{tJ}, vcc')
        a(f'v_cndmask_b32 v{tE}, v{tE}, v{tG}, vcc')
        a(f'v_cndmask_b32 v{tF}, v{tF}, v{RKC}, vcc')
    a(f'v_cmp_lt_u32 vcc, 1, v{tF}')
    a(f'v_cmp_lt_u32 s[{sSV2}:{sSV2+1}], 48, v{tE}')
    a(f'v_add_u32 v{tG}, 32, v{tC}')
    a(f's_or_b64 s[{sSV2}:{sSV2+1}], s[{sSV2}:{sSV2+1}], vcc')
    a(f'v_cmp_gt_u32 s[{MKC}:{MKC+1}], v{tE}, v{tG}')
    a(f'v_add_u32 v{tG}, 33, v{tC}')
    a(f'v_cmp_gt_u32 s[{MKC2}:{MKC2+1}], v{tE}, v{tG}')
    a('s_nop 0')
    a(f's_mov_b64 exec, s[{MKC}:{MKC+1}]')
    a(f'buffer_load_dwordx4 v[{RC}:{RC+3}], v{tD}, s[{rR}:{rR+3}], 0 offen offset:256')
    a('s_mov_b64 exec, -1')
    a('s_branch K2_CBACK')
    a.label('K2_ZROWS')
    a(f's_mov_b64 exec, s[{sSV}:{sSV+1}]')
    for i in range(4):
        a(f'v_mov_b32 v{TR+i}, 0')
    for nd in range(2):
        a(f'v_cmp_eq_u32 vcc, 0, v{TQ+nd}')
        a(f's_and_b64 exec, vcc, s[{sSV}:{sSV+1}]')
        for k in range(32):
            a(f'ds_write_b128 v{nROW0}, v[{TR}:{TR+3}] offset:{nd*ROWB + 16*k}')
        a(f's_mov_b64 exec, s[{sSV}:{sSV+1}]')
    a('s_mov_b64 exec, -1')
    a('s_branch K2_ZBACK')

    a.label('K2_SLOW')
    w_frags()
    consts()
    a('s_waitcnt vmcnt(0) lgkmcnt(0)')
    a('s_barrier')
    a(f's_lshl_b32 s{t1}, s2, 10')
    a(f's_add_u32 s{t1}, s{t1}, {WS_TAB2}')
    srd_off(a, rT, sWS, f's{t1}', 1024)
    a(f'v_lshlrev_b32 v{tA}, 4, v{vLANE}')
    a(f'buffer_load_dwordx4 v[{TQ}:{TQ+3}], v{tA}, s[{rT}:{rT+3}], 0 offen')
    a('s_waitcnt vmcnt(0)')
    a(f'v_max_u32 v{tE}, v{TQ}, v{TQ+1}')
    a(f'v_max3_u32 v{tE}, v{tE}, v{TQ+2}, v{TQ+3}')
    wave_scan(a, 'v_max_u32', tE)
    a('s_nop 0')
    a(f'v_readlane_b32 s{t1}, v{tE}, 63')
    a(f's_add_u32 s{t1}, s{t1}, {WSLOW-1}')
    a(f's_mul_i32 s{t1}, s{t1}, 5042')
    a(f's_lshr_b32 s{sNP}, s{t1}, 16')
    a(f's_mov_b32 s{sP}, 0')
    for i in range(4):
        a(f'v_mov_b32 v{TR+i}, 0')
    a(f'v_lshrrev_b32 v{tA}, 5, v0')
    a(f'v_mul_u32_u24 v{tA}, {ROWB}, v{tA}')
    a(f'v_and_b32 v{tB}, 31, v{vLANE}')
    a(f'v_lshl_add_u32 v{tA}, v{tB}, 4, v{tA}')
    a(f'v_add_u32 v{tA}, {L_ACC}, v{tA}')
    for i in range(6):
        a(f'ds_write_b128 v{tA}, v[{TR}:{TR+3}]')
        a(f'v_add_u32 v{tA}, {16*ROWB}, v{tA}')
    a(f'v_cmp_gt_u32 vcc, 64, v0')
    a(f's_and_saveexec_b64 s[{sSV}:{sSV+1}], vcc')
    a(f'ds_write_b128 v{tA}, v[{TR}:{TR+3}]')
    a(f's_mov_b64 exec, s[{sSV}:{sSV+1}]')
    a.label('K2_SPASS')
    a(f's_lshl_b32 s{t0}, s{sW}, 1')
    a(f'v_lshrrev_b32 v{sidA}, 5, v{vLANE}')
    a(f'v_add_u32 v{sidA}, s{t0}, v{sidA}')
    a(f'v_bfe_u32 v{jA}, v{vLANE}, 3, 2')
    a(f'v_bfe_u32 v{sidR}, v{vLANE}, 2, 1')
    a(f'v_add_u32 v{sidR}, s{t0}, v{sidR}')
    a(f'v_and_b32 v{iR4}, 3, v{vLANE}')
    a(f'v_lshlrev_b32 v{iR4}, 2, v{iR4}')
    a(f's_lshl_b32 s{t1}, s2, 10')
    a(f's_add_u32 s{t1}, s{t1}, {WS_TAB}')
    srd_off(a, rT, sWS, f's{t1}', WS_TAB2 - WS_TAB + 1024)
    a(f'v_lshrrev_b32 v{tD}, 3, v{vLANE}')
    a(f'v_lshlrev_b32 v{tD}, 4, v{tD}')
    a(f's_lshl_b32 s{t0}, s{sW}, 7')
    a(f'v_add_u32 v{tD}, s{t0}, v{tD}')
    a(f's_mov_b32 s{t0}, {WS_TAB2 - WS_TAB}')
    a(f'buffer_load_dwordx4 v[{SG}:{SG+3}], v{tD}, s[{rT}:{rT+3}], 0 offen')
    a(f'buffer_load_dwordx4 v[{AX}:{AX+3}], v{tD}, s[{rT}:{rT+3}], s{t0} offen')
    a(f'v_and_b32 v{tC}, 7, v{vLANE}')
    a(f'v_lshlrev_b32 v{tC}, 1, v{tC}')
    a(f's_mul_i32 s{t0}, s{sP}, {WSLOW}')
    a(f'v_add_u32 v{tB}, s{t0}, v{tC}')
    a(f'v_lshlrev_b32 v{tB}, 3, v{tB}')
    a(f'v_mov_b32 v{tF}, 0x10000')
    a(f's_mov_b64 s[{MKC}:{MKC+1}], 0')
    a(f's_mov_b64 s[{MKC2}:{MKC2+1}], 0')
    for sub in range(2):
        a(f'v_add_u32 v{tD}, {sub}, v{tC}')
        a(f'v_cmp_gt_u32 vcc, {WSLOW}, v{tD}')
        a(f'v_add_u32 v{tD}, s{t0}, v{tD}')
        a('s_nop 0')
        a(f'v_cndmask_b32 v{tE if sub == 0 else tG}, v{tF}, v{tD}, vcc')
    a('s_waitcnt vmcnt(0)')
    for it in range(4):
        a(f'v_cmp_gt_u32 s[{MK+4*it}:{MK+4*it+1}], v{AX+it}, v{tE}')
        a(f'v_cmp_gt_u32 s[{MK+4*it+2}:{MK+4*it+3}], v{AX+it}, v{tG}')
    for sl in range(8, 16):
        a(f's_mov_b64 s[{MK+2*sl}:{MK+2*sl+1}], 0')
    rec_loads(tB, 1)
    lds_init()
    a('s_waitcnt vmcnt(0) lgkmcnt(0)')
    a('s_barrier')
    hist()
    a('s_waitcnt lgkmcnt(0)')
    a('s_barrier')
    scan_nodes('S')
    qi_fill('S', False)
    scatter()
    a('s_waitcnt lgkmcnt(0)')
    a('s_barrier')
    a(f's_cmp_eq_u32 s{sL}, 0')
    a('s_cbranch_scc1 K2_SNEXT')
    setup_ptrs()
    a('s_waitcnt lgkmcnt(0)')
    for ins in dma_addr(): a(ins)
    for ins in dma_issue(): a(ins)
    forced_flags()
    pipeline_fill()
    main_loop('S', True)
    a.label('K2_SNEXT')
    a('s_waitcnt vmcnt(0) lgkmcnt(0)')
    a('s_barrier')
    a(f's_add_u32 s{sP}, s{sP}, 1')
    a(f's_cmp_lt_u32 s{sP}, s{sNP}')
    a('s_cbranch_scc1 K2_SPASS')
    epilogue('S', False)
    a.label('K2_END')
    a('s_endpgm')
    return nvgpr, nsgpr

def kd(name, nv, ns):
    acc = (nv + 3) // 4 * 4
    return f'''.amdhsa_kernel {name}
  .amdhsa_next_free_vgpr {nv}
  .amdhsa_next_free_sgpr {ns}
  .amdhsa_accum_offset {acc}
  .amdhsa_group_segment_fixed_size 0
  .amdhsa_kernarg_size 96
  .amdhsa_user_sgpr_count 2
  .amdhsa_user_sgpr_kernarg_segment_ptr 1
  .amdhsa_system_sgpr_workgroup_id_x 1
  .amdhsa_float_denorm_mode_32 3
.end_amdhsa_kernel
'''

DOC = """;
;
"""

def build(opts=None):
    opts = opts or {}
    a = Asm()
    gen_k1(a, opts)
    nv, ns = gen_k2(a, opts)
    out = HEADER
    out += f'; @launch kernel=gs_part_kernel grid=(256,1,1) block=({K1_THREADS},1,1) lds={LDS_K1}\n'
    out += f'; @launch kernel=gs_main_kernel grid=(256,1,1) block=({NW*64},1,1) lds={LDS_MAIN}\n'
    out += DOC
    out += '.amdgcn_target "amdgcn-amd-amdhsa--gfx950"\n.text\n'
    out += a.text()
    out += '.section .rodata,"a"\n.p2align 6\n'
    out += kd('gs_part_kernel', 62 if opts.get('stamp1') else 60, 60)
    out += '.p2align 6\n'
    out += kd('gs_main_kernel', nv, ns)
    return out

if __name__ == '__main__':
    path = sys.argv[1] if len(sys.argv) > 1 else 'gather_scatter__edge_featured_mpnn_gatedgcn__graph.s'
    opts = {}
    for o in sys.argv[2:]:
        k, _, val = o.partition('=')
        opts[k] = int(val) if val else True
    open(path, 'w').write(build(opts))
    print('written', path, 'LDS', LDS_MAIN)
```

```python
import sys, os, struct
sys.path.insert(0, os.path.dirname(__file__))
from asmlib import *

N = 25000; E = 800000
NBK = 256
CH = 3136
RECB = CH * 8
WS_TAB = 0x700000
WS_TAB2 = 0x740000
WS_FRAG = 0x780000
MAGIC_B = 43980466
LOG2E = 0xBFB8AA3B
SBITS = 50
C_SCALE = (127 - SBITS) << 23
EPS_SCALED = 0x4E8637BD
assert abs(struct.unpack('<f', struct.pack('<I', EPS_SCALED))[0] / (1e-6 * 2.0**50) - 1) < 1e-6

NW = 8
NSTREAM = 16
NIT = 16
CAP = 3456
WSLOW = 13
ROWB = 784
MAXN = 98
ENT_QUADS = 960
VROWB = 640
L_CNT = 0
L_ZERO = 512
L_TAB = 1024
L_QI = 1536
L_ENT = L_QI + ENT_QUADS * 4
L_ACC = L_ENT + ENT_QUADS * 16
L_VIRT = L_ACC + MAXN * ROWB
L_WST = L_VIRT + NSTREAM * VROWB
L_WST = (L_WST + 255) // 256 * 256
L_DMA = L_WST + 16384
LDS_MAIN = L_DMA + NW * 4096
assert LDS_MAIN <= 163840, LDS_MAIN
assert L_ACC % 16 == 0 and L_VIRT % 16 == 0

K1_THREADS = 896
K1_HIST = 0
K1_STAGE = 1024
LDS_K1 = K1_STAGE + RECB

HEADER = open(os.path.join(os.path.dirname(__file__), 'header.txt')).read()

def srd(a, sreg, ptr, size):
    a(f's_mov_b32 s{sreg}, s{ptr}')
    a(f's_and_b32 s{sreg+1}, s{ptr+1}, 0xffff')
    a(f's_mov_b32 s{sreg+2}, {size}')
    a(f's_mov_b32 s{sreg+3}, 0x20000')

def srd_off(a, sreg, ptr, off, size):
    a(f's_add_u32 s{sreg}, s{ptr}, {off}')
    a(f's_addc_u32 s{sreg+1}, s{ptr+1}, 0')
    a(f's_and_b32 s{sreg+1}, s{sreg+1}, 0xffff')
    a(f's_mov_b32 s{sreg+2}, {size}')
    a(f's_mov_b32 s{sreg+3}, 0x20000')

def wave_scan(a, op, r):
    for sh in (1, 2, 4, 8):
        a('s_nop 1')
        a(f'{op}_dpp v{r}, v{r}, v{r} row_shr:{sh} row_mask:0xf bank_mask:0xf')
    a('s_nop 1')
    a(f'{op}_dpp v{r}, v{r}, v{r} row_bcast:15 row_mask:0xa bank_mask:0xf')
    a('s_nop 1')
    a(f'{op}_dpp v{r}, v{r}, v{r} row_bcast:31 row_mask:0xc bank_mask:0xf')

def wave_scan2(a, op1, r1, op2, r2):
    steps = [f'row_shr:{sh} row_mask:0xf bank_mask:0xf' for sh in (1, 2, 4, 8)] + \
            ['row_bcast:15 row_mask:0xa bank_mask:0xf', 'row_bcast:31 row_mask:0xc bank_mask:0xf']
    a('s_nop 1')
    for st in steps:
        a(f'{op1}_dpp v{r1}, v{r1}, v{r1} {st}')
        a(f'{op2}_dpp v{r2}, v{r2}, v{r2} {st}')
        a('s_nop 0')

def gen_k1(a, opts):
    ST = opts.get('stamp1', False)
    def stamp(i):
        if not ST: return
        a('s_memtime s[56:57]')
        a('s_waitcnt lgkmcnt(0)')
        a(f'v_writelane_b32 v60, s56, {i}')
    a.raw('.p2align 8')
    a.raw('.globl gs_part_kernel')
    a.raw('.type gs_part_kernel,@function')
    a.label('gs_part_kernel')
    a('s_cmp_ge_u32 s2, 256')
    a('s_cbranch_scc1 K1_END')
    a('s_load_dwordx4 s[4:7], s[0:1], 8')
    a('s_load_dwordx2 s[8:9], s[0:1], 24')
    a('s_load_dwordx2 s[10:11], s[0:1], 88')
    a('s_load_dwordx2 s[44:45], s[0:1], 0')
    if ST: a('v_mov_b32 v60, 0')
    stamp(0)
    if opts.get('dbgtime'):
        a('s_memrealtime s[54:55]')
        a('s_waitcnt lgkmcnt(0)')
        a('s_cmp_ge_u32 s2, 8')
        a('s_cbranch_scc1 K1_NODBG')
        a('v_mov_b32 v20, s54')
        a('s_lshl_b32 s56, s2, 2')
        a('s_add_u32 s56, s56, 0x1200000')
        a('v_mov_b32 v22, s56')
        a('v_cmp_eq_u32 vcc, 0, v0')
        a('s_and_saveexec_b64 s[58:59], vcc')
        a('global_store_dword v22, v20, s[10:11]')
        a('s_mov_b64 exec, s[58:59]')
        a.label('K1_NODBG')
    a('v_lshrrev_b32 v1, 6, v0')
    a('s_mul_i32 s12, s2, %d' % (CH * 4))
    a('v_readfirstlane_b32 s3, v1')
    a('s_lshr_b32 s13, s12, 1')
    a('v_lshlrev_b32 v2, 4, v0')
    a('v_add_u32 v2, s12, v2')
    a('s_cmp_eq_u32 s3, 13')
    a('s_cbranch_scc1 K1_FRAG')
    a('v_lshlrev_b32 v3, 3, v0')
    a('v_add_u32 v3, s13, v3')
    a('s_waitcnt lgkmcnt(0)')
    srd(a, 20, 8, E * 4)
    a('buffer_load_dwordx4 v[4:7], v2, s[20:23], 0 offen')
    srd(a, 24, 6, E * 4)
    srd(a, 28, 4, E * 2)
    if not opts.get('dstfirst', 1):
        a('buffer_load_dwordx4 v[8:11], v2, s[24:27], 0 offen')
        a('buffer_load_dwordx2 v[12:13], v3, s[28:31], 0 offen')
    a('v_lshlrev_b32 v14, 2, v0')
    a('v_mov_b32 v15, 0')
    a('v_cmp_gt_u32 vcc, 256, v0')
    a('s_and_saveexec_b64 s[18:19], vcc')
    a('ds_write_b32 v14, v15 offset:%d' % K1_HIST)
    a('s_mov_b64 exec, s[18:19]')
    a('v_cmp_gt_u32 vcc, %d, v0' % (CH // 4))
    a('s_mov_b32 s14, %d' % (E * 4))
    a('v_cmp_gt_u32 s[16:17], s14, v2')
    a('s_and_b64 s[16:17], s[16:17], vcc')
    a('s_mul_i32 s15, s2, %d' % RECB)
    srd_off(a, 32, 10, 's15', RECB)
    srd_off(a, 36, 10, WS_TAB, 0x80000)
    if opts.get('touch', 0):
        a('s_cmp_lg_u32 s3, 1')
        a('s_cbranch_scc1 K1_NOTOUCH')
        a('v_mov_b32 v41, 0')
        a('buffer_load_dword v42, v41, s[32:35], 0 offen')
        a('buffer_load_dword v43, v41, s[36:39], 0 offen')
        a.label('K1_NOTOUCH')
    a('s_mov_b32 s40, %d' % MAGIC_B)
    a('s_movk_i32 s41, 3125')
    a('v_mov_b32 v15, 1')
    a('s_waitcnt lgkmcnt(0)')
    a('s_barrier')
    if opts.get('dstfirst', 1) == 1:
        a('s_waitcnt vmcnt(0)')
        a('buffer_load_dwordx4 v[8:11], v2, s[24:27], 0 offen')
        a('buffer_load_dwordx2 v[12:13], v3, s[28:31], 0 offen')
    elif opts.get('dstfirst', 1) == 2:
        a('buffer_load_dwordx4 v[8:11], v2, s[24:27], 0 offen')
        a('buffer_load_dwordx2 v[12:13], v3, s[28:31], 0 offen')
        a('s_waitcnt vmcnt(2)')
    if opts.get('xpre', 1) == 1:
        a('s_and_b32 s46, s2, 7')
        a('s_lshr_b32 s47, s2, 3')
        a('s_lshl_b32 s46, s46, 5')
        a('s_add_u32 s46, s46, s47')
        a('s_mul_i32 s46, s46, 3125')
        a('s_add_u32 s46, s46, 31')
        a('s_lshr_b32 s46, s46, 5')
        a('s_lshl_b32 s46, s46, 7')
        a('s_and_b32 s45, s45, 0xffff')
        a('s_mov_b32 s48, s44')
        a('s_mov_b32 s49, s45')
        a('s_mov_b32 s50, %d' % (N * 128))
        a('s_mov_b32 s51, 0x20000')
        a('v_lshlrev_b32 v40, 4, v0')
        a('buffer_load_dwordx4 v[56:59], v40, s[48:51], s46 offen')
    a('s_mov_b64 exec, s[16:17]')
    a('s_cbranch_execz K1_NOEDGE1')
    stamp(1)
    if not opts.get('dstfirst', 1): a('s_waitcnt vmcnt(%d)' % (3 if opts.get('xpre', 1) else 2))
    stamp(2)
    for k in range(4):
        a(f'v_mul_hi_u32 v{16+k}, v{4+k}, s40')
    for k in range(4):
        a(f'v_lshlrev_b32 v{20+k}, 2, v{16+k}')
        a(f'ds_add_rtn_u32 v{24+k}, v{20+k}, v15 offset:{K1_HIST}')
    for k in range(4):
        a(f'v_mul_u32_u24 v{28+k}, s41, v{16+k}')
        a(f'v_add_u32 v{28+k}, 31, v{28+k}')
        a(f'v_lshrrev_b32 v{28+k}, 5, v{28+k}')
        a(f'v_sub_u32 v{28+k}, v{4+k}, v{28+k}')
        a(f'v_lshlrev_b32 v{33+2*k}, 2, v{28+k}')
    a.label('K1_NOEDGE1')
    a('s_mov_b64 exec, -1')
    a('s_waitcnt lgkmcnt(0)')
    stamp(3)
    a('s_barrier')
    stamp(4)
    if opts.get('xpre', 1) == 2:
        a('s_and_b32 s46, s2, 7')
        a('s_lshr_b32 s47, s2, 3')
        a('s_lshl_b32 s46, s46, 5')
        a('s_add_u32 s46, s46, s47')
        a('s_mul_i32 s46, s46, 3125')
        a('s_add_u32 s46, s46, 31')
        a('s_lshr_b32 s46, s46, 5')
        a('s_lshl_b32 s46, s46, 7')
        a('s_and_b32 s45, s45, 0xffff')
        a('s_mov_b32 s48, s44')
        a('s_mov_b32 s49, s45')
        a('s_mov_b32 s50, %d' % (N * 128))
        a('s_mov_b32 s51, 0x20000')
        a('v_lshlrev_b32 v40, 4, v0')
        a('buffer_load_dwordx4 v[56:59], v40, s[48:51], s46 offen')
    a('s_cmp_lg_u32 s3, 0')
    a('s_cbranch_scc1 K1_SCANDONE')
    a('v_lshlrev_b32 v40, 4, v0')
    a('ds_read_b128 v[44:47], v40 offset:%d' % K1_HIST)
    a('v_lshlrev_b32 v41, 12, v0')
    a('s_lshl_b32 s15, s2, 2')
    a('v_add_u32 v41, s15, v41')
    a('s_waitcnt lgkmcnt(0)')
    a('v_add_u32 v48, v44, v45')
    a('v_add_u32 v49, v48, v46')
    a('v_add_u32 v50, v49, v47')
    a('v_mov_b32 v51, v50')
    wave_scan(a, 'v_add_u32', 51)
    a('v_sub_u32 v52, v51, v50')
    a('v_add_u32 v53, v52, v44')
    a('v_add_u32 v54, v52, v48')
    a('v_add_u32 v55, v52, v49')
    a('ds_write_b128 v40, v[52:55] offset:%d' % K1_HIST)
    if not opts.get('w0late', 1): a('s_waitcnt vmcnt(%d)' % (1 if opts.get('xpre', 1) else 0))
    a('s_mul_i32 s15, s2, %d' % CH)
    a('s_mov_b32 s43, %d' % (WS_TAB2 - WS_TAB))
    for k in range(4):
        a(f'buffer_store_dword v{44+k}, v41, s[36:39], s43 offen offset:{k*1024}' + (' sc1' if opts.get('tabst', 0) else ''))
        a(f'v_min_u32 v{48+k}, 0xff, v{44+k}')
        a(f'v_add_u32 v{52+k}, s15, v{52+k}')
        a(f'v_lshl_or_b32 v{48+k}, v{48+k}, 24, v{52+k}')
        a(f'buffer_store_dword v{48+k}, v41, s[36:39], 0 offen offset:{k*1024}' + (' sc1' if opts.get('tabst', 0) else ''))
    a.label('K1_SCANDONE')
    a('s_waitcnt lgkmcnt(0)')
    a('s_barrier')
    stamp(5)
    a('s_mov_b64 exec, s[16:17]')
    a('s_cbranch_execz K1_NOEDGE2')
    for k in range(4):
        a(f'ds_read_b32 v{28+k}, v{20+k} offset:{K1_HIST}')
    a('s_cmp_eq_u32 s3, 0')
    a('s_cbranch_scc1 K1_W0')
    a('s_waitcnt vmcnt(%d)' % (1 if opts.get('xpre', 1) else 0))
    a('s_branch K1_HAVE')
    a.label('K1_W0')
    a('s_waitcnt vmcnt(%d)' % (9 if opts.get('xpre', 1) else 8))
    a.label('K1_HAVE')
    a('s_mov_b32 s42, 0xffff0000')
    a('v_lshl_or_b32 v32, v12, 16, v8')
    a('v_and_or_b32 v34, v12, s42, v9')
    a('v_lshl_or_b32 v36, v13, 16, v10')
    a('v_and_or_b32 v38, v13, s42, v11')
    for k in range(4):
        a(f's_waitcnt lgkmcnt({3 if k == 0 else 3})')
        a(f'v_add_lshl_u32 v{28+k}, v{28+k}, v{24+k}, 3')
        a(f'ds_write_b64 v{28+k}, v[{32+2*k}:{33+2*k}] offset:{K1_STAGE}')
    a.label('K1_NOEDGE2')
    a('s_mov_b64 exec, -1')
    a('v_lshlrev_b32 v2, 4, v0')
    a('v_add_u32 v3, %d, v2' % (RECB // 2))
    a('v_cmp_gt_u32 vcc, %d, v0' % (CH // 4))
    a('s_waitcnt lgkmcnt(0)')
    stamp(6)
    a('s_barrier')
    stamp(7)
    a('s_and_saveexec_b64 s[18:19], vcc')
    a('s_cbranch_execz K1_END')
    a('ds_read_b128 v[4:7], v2 offset:%d' % K1_STAGE)
    a('ds_read_b128 v[8:11], v2 offset:%d' % (K1_STAGE + RECB // 2))
    a('s_waitcnt lgkmcnt(1)')
    sfx = {0: '', 1: ' sc1', 2: ' nt', 3: ' sc0 sc1', 4: ' sc1 nt'}[opts.get('k1st', 1)]
    a('buffer_store_dwordx4 v[4:7], v2, s[32:35], 0 offen' + sfx)
    a('s_waitcnt lgkmcnt(0)')
    a('buffer_store_dwordx4 v[8:11], v3, s[32:35], 0 offen' + sfx)
    if opts.get('endwait', 1): a('s_waitcnt vmcnt(0)')
    if ST:
        stamp(8)
        a('s_waitcnt vmcnt(0)')
        stamp(9)
        a('s_mul_i32 s12, s2, 16')
        a('s_add_u32 s12, s12, s3')
        a('s_lshl_b32 s12, s12, 8')
        a('s_add_u32 s12, s12, 0x1100000')
        a('s_add_u32 s32, s10, s12')
        a('s_addc_u32 s33, s11, 0')
        a('s_and_b32 s33, s33, 0xffff')
        a('s_mov_b32 s34, 256')
        a('s_mov_b64 exec, -1')
        a('v_and_b32 v4, 63, v0')
        a('v_lshlrev_b32 v4, 2, v4')
        a('buffer_store_dword v60, v4, s[32:35], 0 offen')
    if opts.get('dbgtime'):
        a('s_waitcnt vmcnt(0)')
        a('s_memrealtime s[54:55]')
        a('s_waitcnt lgkmcnt(0)')
        a('s_cmp_ge_u32 s2, 8')
        a('s_cbranch_scc1 K1_END')
        a('s_cmp_lg_u32 s3, 0')
        a('s_cbranch_scc1 K1_END')
        a('v_mov_b32 v20, s54')
        a('s_lshl_b32 s56, s2, 2')
        a('s_add_u32 s56, s56, 0x1200100')
        a('v_mov_b32 v22, s56')
        a('s_mov_b64 exec, 1')
        a('global_store_dword v22, v20, s[10:11]')
    a('s_endpgm')
    a.label('K1_FRAG')
    if opts.get('codepre', 0):
        a('s_cmp_lt_u32 s2, 32')
        a('s_cbranch_scc1 K1_FRAG2')
        a('s_cmp_ge_u32 s2, 64')
        a('s_cbranch_scc1 K1_END')
        a('s_getpc_b64 s[12:13]')
        a.label('K1_PCREF')
        a('s_add_u32 s12, s12, gs_main_kernel-K1_PCREF')
        a('s_addc_u32 s13, s13, 0')
        a('v_and_b32 v1, 63, v0')
        a('v_lshlrev_b32 v2, 4, v1')
        for i in range(opts.get('codekb', 20)):
            a(f'global_load_dwordx4 v[4:7], v2, s[12:13]')
            a('v_add_u32 v2, 1024, v2')
        a('s_endpgm')
        a.label('K1_FRAG2')
    a('s_cmp_ge_u32 s2, 32')
    a('s_cbranch_scc1 K1_END')
    if opts.get('fragbar', 1):
        a('s_barrier')
    a('s_load_dwordx4 s[12:15], s[0:1], 32')
    a('s_load_dwordx4 s[16:19], s[0:1], 56')
    a('s_lshr_b32 s20, s2, 3')
    a('s_waitcnt lgkmcnt(0)')
    a('s_mov_b32 s22, s14')
    a('s_mov_b32 s23, s15')
    a('s_cmp_eq_u32 s20, 1')
    a('s_cselect_b32 s22, s18, s22')
    a('s_cselect_b32 s23, s19, s23')
    a('s_cmp_eq_u32 s20, 2')
    a('s_cselect_b32 s22, s12, s22')
    a('s_cselect_b32 s23, s13, s23')
    a('s_cmp_eq_u32 s20, 3')
    a('s_cselect_b32 s22, s16, s22')
    a('s_cselect_b32 s23, s17, s23')
    srd(a, 24, 22, 64 * 64 * 2)
    srd_off(a, 28, 10, WS_FRAG, 32 * 1024)
    a('s_and_b32 s32, s2, 3')
    a('s_lshr_b32 s33, s2, 2')
    a('s_and_b32 s33, s33, 1')
    a('s_lshl_b32 s32, s32, 11')
    a('s_lshl_b32 s33, s33, 6')
    a('s_add_u32 s32, s32, s33')
    a('v_and_b32 v1, 63, v0')
    a('v_and_b32 v2, 31, v1')
    a('v_lshlrev_b32 v2, 1, v2')
    a('v_lshrrev_b32 v3, 5, v1')
    a('v_lshlrev_b32 v3, 10, v3')
    a('v_add3_u32 v2, v2, v3, s32')
    for i in range(8):
        a(f'buffer_load_ushort v{8+i}, v2, s[24:27], 0 offen offset:{i*128}')
    a('s_mov_b32 s34, 1.0')
    a('s_and_b32 s36, s20, 1')
    a('s_cmp_eq_u32 s36, 0')
    a('s_cselect_b32 s34, 0x%x, s34' % LOG2E)
    a('s_waitcnt vmcnt(0)')
    for i in range(8):
        a(f'v_lshlrev_b32 v{8+i}, 16, v{8+i}')
        a(f'v_mul_f32 v{8+i}, s34, v{8+i}')
    for i in range(4):
        a(f'v_cvt_pk_bf16_f32 v{16+i}, v{8+2*i}, v{9+2*i}')
    a('v_lshlrev_b32 v4, 4, v1')
    a('s_lshl_b32 s35, s2, 10')
    a('v_add_u32 v4, s35, v4')
    a('buffer_store_dwordx4 v[16:19], v4, s[28:31], 0 offen')
    if opts.get('endwait', 1): a('s_waitcnt vmcnt(0)')
    a.label('K1_END')
    a('s_endpgm')

def gen_k2(a, opts):
    STAMP = opts.get('stamp', False)
    vLANE = 1; BC = 2
    WB = 4; WV = 36; AX = 68
    GA = 84; HA = 100; GB = 116; HB = 132
    PP = 148; TT_ = 156; ZZ = 164
    DEN = 172; NUM = 176
    AE = [180, 184]; BE = 188; R0 = 192
    QA = [196, 200]
    EN = 204; RA = 208; CO = 212
    pEN = 216; pEE = 217; pQI = 218; pQF = 219
    C4 = 220; SEL = [221, 222]; EE = 223; QF = 224
    F0 = 225; F1 = 226; F2 = 252; F3 = 227
    tA = 227; tB = 228; tC = 229; tD = 230; tE = 231; tF = 232; tG = 233; tH = 234; tI = 235
    TQ = 236; TR = 240
    sidA = 244; jA = 245; sidR = 246; iR4 = 247
    vST = 253; GF = 249; GD = 250
    PB = 228; TB = 236; ZB = 244
    RC = 252; RKC = 225; RKC2 = 226; tJ = 251
    nvgpr = 256
    REC = PP; RK = GB; SG = HB
    G_ = [GA, GB]; H_ = [HA, HB]
    nOFF0 = AE[0]+0 if False else QA[0]; nOFF1 = QA[0]+1; nEND0 = QA[0]+2; nEND1 = QA[0]+3; nROW0 = QA[1]
    S = Regs('s', 3, 102)
    sX = S.alloc('x', 2, 2); sWC = S.alloc('wc', 2, 2); sOUT = S.alloc('out', 2, 2); sWS = S.alloc('ws', 2, 2)
    rX = S.alloc('rX', 4, 4); rT = S.alloc('rT', 4, 4); rR = S.alloc('rR', 4, 4); rF = S.alloc('rF', 4, 4)
    sW = S.alloc('w'); sNS = S.alloc('ns'); sNN = S.alloc('nn')
    sP = S.alloc('pass'); sNP = S.alloc('npass')
    sL = S.alloc('L'); sCNT = S.alloc('cnt'); sLA = S.alloc('La'); sLB = S.alloc('Lb'); sSO = S.alloc('streamoff')
    sC = S.alloc('C', 2, 2)
    sF = [S.alloc('F0', 2, 2), S.alloc('F1', 2, 2)]
    sANY = [S.alloc('any0'), S.alloc('any1')]
    s128 = S.alloc('c128'); sLO = S.alloc('lo16'); sHI = S.alloc('hi16')
    t0 = S.alloc('t0'); t1 = S.alloc('t1'); t2 = S.alloc('t2', 1, 2); t3 = S.alloc('t3')
    sSV = S.alloc('sv', 2, 2); sSV2 = S.alloc('sv2', 2, 2)
    sDB = S.alloc('dmabase'); sSWAP = S.alloc('swap')
    sDBG = S.alloc('dbg', 2, 2) if opts.get('dbgtime') else None
    sT0 = S.alloc('dbgt0', 2, 2) if opts.get('dbgtime') else None
    sT1 = S.alloc('dbgt1') if opts.get('dbgtime') else None
    sT2 = S.alloc('dbgt2') if opts.get('dbgtime') else None
    MK = S.alloc('MK', 32, 2)
    MKC = S.alloc('MKC', 2, 2); MKC2 = S.alloc('MKC2', 2, 2)
    rO = rT
    nsgpr = S.hi
    def stamp(i):
        if not STAMP: return
        a(f's_memtime s[{t2}:{t3}]')
        a('s_waitcnt lgkmcnt(0)')
        a(f'v_writelane_b32 v{vST}, s{t2}, {i}')
    XB = 4096

    a.raw('.p2align 8')
    a.raw('.globl gs_main_kernel')
    a.raw('.type gs_main_kernel,@function')
    a.label('gs_main_kernel')
    a('s_cmp_ge_u32 s2, 256')
    a('s_cbranch_scc1 K2_END')
    a(f's_load_dwordx2 s[{sWS}:{sWS+1}], s[0:1], 88')
    a(f's_load_dwordx2 s[{sX}:{sX+1}], s[0:1], 0')
    a(f's_load_dwordx2 s[{sWC}:{sWC+1}], s[0:1], 48')
    a(f's_load_dwordx2 s[{sOUT}:{sOUT+1}], s[0:1], 72')
    a('s_and_b32 s3, s2, 7')
    a('s_lshr_b32 s2, s2, 3')
    a('s_lshl_b32 s3, s3, 5')
    a('s_add_u32 s2, s2, s3')
    if opts.get('dbgtime'):
        a(f's_load_dwordx2 s[{sDBG}:{sDBG+1}], s[0:1], 80')
        a(f's_memrealtime s[{sT0}:{sT0+1}]')
        a('s_waitcnt lgkmcnt(0)')
    if STAMP:
        a(f'v_mov_b32 v{vST}, 0')
        a(f's_memtime s[{MK}:{MK+1}]')
        a(f's_memrealtime s[{MK+2}:{MK+3}]')
    a(f'v_lshrrev_b32 v{tA}, 6, v0')
    a(f'v_and_b32 v{vLANE}, 63, v0')
    a(f'v_readfirstlane_b32 s{sW}, v{tA}')
    a(f'v_lshrrev_b32 v{sidA}, 5, v{vLANE}')
    if opts.get('proprio'):
        a('s_nop 2')
        a(f's_cmp_ge_u32 s{sW}, 4')
        a('s_cbranch_scc0 K2_PP0')
        a('s_setprio 1')
        a.label('K2_PP0')
    a(f's_lshl_b32 s{t0}, s{sW}, 1')
    a(f'v_add_u32 v{sidA}, s{t0}, v{sidA}')
    a(f'v_lshrrev_b32 v{tD}, 3, v{vLANE}')
    a(f'v_lshlrev_b32 v{tD}, 4, v{tD}')
    a(f's_lshl_b32 s{t0}, s{sW}, 7')
    a(f'v_add_u32 v{tD}, s{t0}, v{tD}')
    a(f'v_lshlrev_b32 v{tA}, 4, v{vLANE}')
    a(f's_mul_i32 s{t0}, s2, 3125')
    a(f's_add_u32 s{sNS}, s{t0}, 31')
    a(f's_lshr_b32 s{sNS}, s{sNS}, 5')
    a(f's_add_u32 s{t0}, s{t0}, {3125+31}')
    a(f's_lshr_b32 s{t0}, s{t0}, 5')
    a(f's_sub_u32 s{sNN}, s{t0}, s{sNS}')
    a(f's_lshl_b32 s{sDB}, s{sW}, 12')
    a(f's_add_u32 s{sDB}, s{sDB}, {L_DMA}')
    a(f'v_bfe_u32 v{tE}, v{vLANE}, 4, 1')
    a(f'v_and_b32 v{tF}, 7, v{vLANE}')
    a(f'v_xor_b32 v{tE}, v{tE}, v{tF}')
    a(f'v_lshlrev_b32 v{tE}, 4, v{tE}')
    for i in range(4):
        if i: a(f'v_xor_b32 v{tF}, {32*i}, v{tE}')
        a(f'v_add_u32 v{CO+i}, {XB - 1024*i}, v{tF if i else tE}')
    a(f'v_bfe_u32 v{jA}, v{vLANE}, 3, 2')
    a(f'v_lshrrev_b32 v{tF}, 5, v{vLANE}')
    a(f'v_lshlrev_b32 v{tE}, 3, v{jA}')
    a(f'v_lshl_add_u32 v{tE}, v{tF}, 2, v{tE}')
    a(f's_lshr_b32 s{t0}, s{sW}, 1')
    a(f's_lshl_b32 s{t1}, s{t0}, 5')
    a(f's_add_u32 s{t1}, s{t1}, s{sNS}')
    a(f's_and_b32 s{t2}, s{sW}, 1')
    a(f's_lshl_b32 s{t2}, s{t2}, 1')
    a(f's_add_u32 s{t1}, s{t1}, s{t2}')
    a(f'v_add_u32 v{tE}, s{t1}, v{tE}')
    a(f'v_lshlrev_b32 v{tE}, 7, v{tE}')
    a(f's_cmp_eq_u32 s{t2}, 0')
    a(f's_cbranch_scc0 K2_XI2')
    a(f'v_add_u32 v{tH}, v{tE}, v{CO}')
    a(f'v_add_u32 v{tI}, v{tE}, v{CO+1}')
    a('s_branch K2_XI')
    a.label('K2_XI2')
    a(f'v_add_u32 v{tH}, v{tE}, v{CO+2}')
    a(f'v_add_u32 v{tI}, v{tE}, v{CO+3}')
    a(f'v_add_u32 v{tH}, 2048, v{tH}')
    a(f'v_add_u32 v{tI}, 2048, v{tI}')
    a.label('K2_XI')
    a(f'v_add_u32 v{tI}, 128, v{tI}')
    a(f'v_and_b32 v{C4}, 31, v{vLANE}')
    a(f's_lshl_b32 s{t1}, s2, 10')
    a(f's_add_u32 s{t1}, s{t1}, {WS_TAB}')
    a('s_waitcnt lgkmcnt(0)')
    if STAMP:
        a(f'v_writelane_b32 v{vST}, s{MK}, 0')
        a(f'v_writelane_b32 v{vST}, s{MK+2}, 11')
    srd_off(a, rT, sWS, f's{t1}', 1024)
    a(f'buffer_load_dwordx4 v[{SG}:{SG+3}], v{tD}, s[{rT}:{rT+3}], 0 offen')
    a(f's_sub_u32 s{rX}, s{sX}, {XB}')
    a(f's_subb_u32 s{rX+1}, s{sX+1}, 0')
    a(f's_and_b32 s{rX+1}, s{rX+1}, 0xffff')
    a(f's_mov_b32 s{rX+2}, {N*128 + XB}')
    a(f's_mov_b32 s{rX+3}, 0x20000')
    srd_off(a, rF, sWS, WS_FRAG, 32 * 1024)
    def staging():
        a(f's_lshr_b32 s{t0}, s{sW}, 1')
        a(f's_lshl_b32 s{t0}, s{t0}, 12')
        a(f's_and_b32 s{t2}, s{sW}, 1')
        a(f's_lshl_b32 s{t2}, s{t2}, 11')
        a(f's_add_u32 s{t0}, s{t0}, s{t2}')
        a(f's_add_u32 s{t0}, s{t0}, {L_DMA}')
        a(f's_mov_b32 m0, s{t0}')
        a(f'v_lshlrev_b32 v{tA}, 4, v{vLANE}')
        if not opts.get('noxown'):
            a(f'buffer_load_dwordx4 v{tH}, s[{rX}:{rX+3}], 0 offen lds')
            a(f'buffer_load_dwordx4 v{tI}, s[{rX}:{rX+3}], 0 offen offset:1024 lds')
        a(f's_lshl_b32 s{t0}, s{sW}, 11')
        a(f's_add_u32 s{t1}, s{t0}, {L_DMA + 4*4096}')
        a(f's_mov_b32 m0, s{t1}')
        a(f's_add_u32 s{t2}, s{t0}, {16*1024}')
        a(f'buffer_load_dwordx4 v{tA}, s[{rF}:{rF+3}], s{t2} offen lds')
        a(f'buffer_load_dwordx4 v{tA}, s[{rF}:{rF+3}], s{t2} offen offset:1024 lds')
        a(f's_add_u32 s{t1}, s{t0}, {L_WST}')
        a(f's_mov_b32 m0, s{t1}')
        a('s_nop 0')
        a(f'buffer_load_dwordx4 v{tA}, s[{rF}:{rF+3}], s{t0} offen lds')
        a(f'buffer_load_dwordx4 v{tA}, s[{rF}:{rF+3}], s{t0} offen offset:1024 lds')
        srd(a, rR, sWC, 128)
        a(f'v_lshlrev_b32 v{tE}, 1, v{C4}')
        if not opts.get('nowc'):
            a(f'buffer_load_ushort v{BC}, v{tE}, s[{rR}:{rR+3}], 0 offen')
            a(f'buffer_load_ushort v{BC+1}, v{tE}, s[{rR}:{rR+3}], 0 offen offset:64')
    staging()
    MKT = (MK + 3) // 4 * 4
    if opts.get('touch', 0):
        srd(a, MKT, sWS, NBK * RECB)
        a(f'v_and_b32 v{tE}, 3, v{vLANE}')
        a(f'v_lshlrev_b32 v{tE}, 21, v{tE}')
        a(f'buffer_load_dword v{F0}, v{tE}, s[{MKT}:{MKT+3}], 0 offen')
        srd(a, MKT + 4, sOUT, N * 128)
        a(f'v_and_b32 v{tE}, 1, v{vLANE}')
        a(f'v_lshlrev_b32 v{tE}, 21, v{tE}')
        a(f'buffer_load_dword v{F1}, v{tE}, s[{MKT+4}:{MKT+7}], 0 offen')
    def lds_init():
        a(f'v_lshlrev_b32 v{tE}, 4, v0')
        a(f'v_mov_b32 v{TR}, 0xffff')
        a(f'v_mov_b32 v{TR+1}, 0xffff')
        a(f'v_mov_b64 v[{TR+2}:{TR+3}], v[{TR}:{TR+1}]')
        a(f'ds_write_b128 v{tE}, v[{TR}:{TR+3}] offset:{L_ENT}')
        a(f's_cmp_ge_u32 s{sW}, {(ENT_QUADS - 512) // 64}')
        a(f's_cbranch_scc1 K2_I1{tag_i[0]}')
        a(f'ds_write_b128 v{tE}, v[{TR}:{TR+3}] offset:{L_ENT + 512*16}')
        a.label(f'K2_I1{tag_i[0]}')
        assert (ENT_QUADS - 512) % 64 == 0
        a(f'v_mov_b32 v{TR}, {L_VIRT}')
        a(f'v_mov_b32 v{TR+1}, {L_VIRT}')
        a(f'v_mov_b64 v[{TR+2}:{TR+3}], v[{TR}:{TR+1}]')
        a(f'v_cmp_gt_u32 vcc, {ENT_QUADS // 4}, v0')
        a(f's_and_saveexec_b64 s[{sSV}:{sSV+1}], vcc')
        a(f'ds_write_b128 v{tE}, v[{TR}:{TR+3}] offset:{L_QI}')
        a(f's_mov_b64 exec, s[{sSV}:{sSV+1}]')
        a(f's_cmp_lg_u32 s{sW}, 0')
        a(f's_cbranch_scc1 K2_I2{tag_i[0]}')
        a(f'v_mov_b64 v[{TR}:{TR+1}], 0')
        a(f'v_mov_b64 v[{TR+2}:{TR+3}], 0')
        a(f'ds_write_b128 v{tE}, v[{TR}:{TR+3}] offset:{L_CNT}')
        a(f'v_add_u32 v{tE}, {L_VIRT + 512}, v{tE}')
        a('s_mov_b64 exec, 0xff')
        a(f'ds_write_b128 v{tE}, v[{TR}:{TR+3}]')
        a('s_mov_b64 exec, -1')
        a.label(f'K2_I2{tag_i[0]}')
        tag_i[0] += 1
    tag_i = [0]
    lds_init()
    a(f'v_and_b32 v{tE}, 3, v{vLANE}')
    a(f'v_lshlrev_b32 v{iR4}, 2, v{tE}')
    a(f'v_lshl_add_u32 v{RA}, v{tE}, 3, v{jA}')
    a(f'v_lshrrev_b32 v{tF}, 1, v{jA}')
    a(f'v_lshl_add_u32 v{tE}, v{tE}, 1, v{tF}')
    a(f'v_bfe_u32 v{tF}, v{vLANE}, 2, 1')
    a(f's_lshl_b32 s{t0}, s{sW}, 1')
    a(f'v_add_u32 v{sidR}, s{t0}, v{tF}')
    a(f'v_lshl_add_u32 v{RA}, v{tF}, 2, v{RA}')
    a(f'v_lshrrev_b32 v{tG}, 5, v{vLANE}')
    a(f'v_cmp_eq_u32 vcc, v{tF}, v{tG}')
    a(f'v_xor_b32 v{tE}, v{tE}, v{tG}')
    a(f'v_lshlrev_b32 v{tE}, 4, v{tE}')
    a(f'v_lshl_add_u32 v{RA}, v{RA}, 7, v{tE}')
    a(f'v_mov_b32 v{tF}, 0x3f80')
    a(f'v_cndmask_b32 v{tF}, 0, v{tF}, vcc')
    a(f'v_lshlrev_b32 v{tG}, v{jA}, 1') if False else None
    a(f'v_mov_b32 v{tG}, 1')
    a(f'v_lshlrev_b32 v{tG}, v{jA}, v{tG}')
    for q in range(4):
        a(f'v_bfe_u32 v{tE}, v{tG}, {q}, 1')
        a(f'v_mul_u32_u24 v{AE[0]+q}, v{tE}, v{tF}')
        a(f'v_lshlrev_b32 v{AE[1]+q}, 16, v{AE[0]+q}')
    a(f'v_cmp_gt_u32 vcc, 32, v{vLANE}')
    a(f'v_mov_b32 v{tE}, 0x0a0c0100')
    a(f'v_mov_b32 v{tF}, 0x07060100')
    a(f'v_cndmask_b32 v{SEL[0]}, v{tE}, v{tF}, vcc')
    a(f'v_mov_b32 v{tE}, 0x03020a0c')
    a(f'v_mov_b32 v{tF}, 0x03020706')
    a(f'v_cndmask_b32 v{SEL[1]}, v{tE}, v{tF}, vcc')
    a(f's_mov_b32 s{sC}, 0x{C_SCALE:x}')
    a(f's_mov_b32 s{sC+1}, 0x{C_SCALE:x}')
    a(f's_mov_b32 s{s128}, 128')
    a(f's_mov_b32 s{sLO}, 0xffff')
    a(f's_mov_b32 s{sHI}, 0xffff0000')
    a(f'v_and_b32 v{tB}, 7, v{vLANE}')
    a(f'v_lshlrev_b32 v{tB}, 4, v{tB}')
    a(f'v_lshlrev_b32 v{C4}, 2, v{C4}')
    a('s_waitcnt vmcnt(%d) lgkmcnt(0)' % (2 if opts.get('touch', 0) else 0))
    stamp(1)
    a('s_barrier')
    srd(a, rR, sWS, NBK * RECB)
    def slot_ent(sl): return REC + 2*sl
    def rec_loads(vk16, nwin):
        for it in range(4):
            a(f'v_mad_u32_u24 v{RK+it}, v{SG+it}, 8, v{vk16}')
        for w_ in range(nwin):
            for it in range(4):
                sl = 8*w_ + 2*it
                a(f's_mov_b64 exec, s[{MK+2*sl}:{MK+2*sl+1}]')
                sk = a.newlabel('skl') if w_ else None
                if sk: a(f's_cbranch_execz {sk}')
                a(f'buffer_load_dwordx4 v[{REC+2*sl}:{REC+2*sl+3}], v{RK+it}, s[{rR}:{rR+3}], 0 offen' + (' offset:128' if w_ else ''))
                if sk: a.label(sk)
        a('s_mov_b64 exec, -1')
    a(f'v_lshrrev_b32 v{tC}, 3, v{tB}')
    for w_ in range(2):
        for sub in range(2):
            if w_ or sub: a(f'v_add_u32 v{tD}, {16*w_ + sub}, v{tC}')
            for it in range(4):
                sl = 8*w_ + 2*it + sub
                a(f'v_cmp_gt_u32_sdwa s[{MK+2*sl}:{MK+2*sl+1}], v{SG+it}, v{tD if (w_ or sub) else tC} src0_sel:BYTE_3 src1_sel:DWORD')
    stamp(25)
    rec_loads(tB, 2)
    stamp(26)
    a(f'v_max3_u32 v{tD}, v{SG}, v{SG+1}, v{SG+2}')
    a(f'v_max_u32 v{tD}, v{tD}, v{SG+3}')
    a(f'v_lshrrev_b32 v{tD}, 24, v{tD}')
    a(f'v_cmp_lt_u32 s[{sSV2}:{sSV2+1}], 32, v{tD}')
    a(f's_mov_b64 s[{MKC}:{MKC+1}], 0')
    a(f's_mov_b64 s[{MKC2}:{MKC2+1}], 0')
    a(f's_cmp_lg_u64 s[{sSV2}:{sSV2+1}], 0')
    a('s_cbranch_scc1 K2_CSEL')
    a.label('K2_CBACK')

    def gemm_issue():
        a(f's_lshr_b32 s{t0}, s{sW}, 1')
        a(f's_lshl_b32 s{t1}, s{t0}, 12')
        a(f's_add_u32 s{t1}, s{t1}, {L_DMA}')
        a(f'v_add_u32 v{tA}, s{t1}, v{RA}')
        a(f'v_xor_b32 v{tB}, 32, v{tA}')
        a(f'ds_read_b128 v[{AX}:{AX+3}], v{tA}')
        a(f'ds_read_b128 v[{AX+4}:{AX+7}], v{tB}')
        a(f'v_xor_b32 v{tB}, 64, v{tA}')
        a(f'v_xor_b32 v{tC}, 96, v{tA}')
        a(f'ds_read_b128 v[{AX+8}:{AX+11}], v{tB}')
        a(f'ds_read_b128 v[{AX+12}:{AX+15}], v{tC}')
        a(f's_and_b32 s{t2}, s{sW}, 1')
        a(f's_lshl_b32 s{t3}, s{t2}, 13')
        a(f's_add_u32 s{t3}, s{t3}, {L_DMA + 4*4096}')
        a(f'v_lshlrev_b32 v{GF}, 4, v{vLANE}')
        a(f'v_add_u32 v{GF}, s{t3}, v{GF}')
        for f in range(4):
            a(f'ds_read_b128 v[{SG+4*f}:{SG+4*f+3}], v{GF} offset:{f*1024}')
        for f in range(4):
            a(f'ds_read_b128 v[{RK+4*f}:{RK+4*f+3}], v{GF} offset:{(4+f)*1024}')
        a(f's_mul_i32 s{t1}, s{t0}, {32*ROWB}')
        a(f's_lshl_b32 s{t3}, s{t2}, 7')
        a(f's_add_u32 s{t1}, s{t1}, s{t3}')
        a(f's_add_u32 s{t1}, s{t1}, {L_ACC + 512}')
        a(f'v_lshrrev_b32 v{GD}, 5, v{vLANE}')
        a(f'v_mul_u32_u24 v{GD}, {4*ROWB}, v{GD}')
        a(f'v_add3_u32 v{GD}, v{GD}, v{C4}, s{t1}')
    def gemm_mid():
        a('s_waitcnt lgkmcnt(0)')
        for kp in range(4):
            c = '0' if kp == 0 else f'v[{GA}:{GA+15}]'
            a(f'v_mfma_f32_32x32x16_bf16 v[{GA}:{GA+15}], v[{AX+4*kp}:{AX+4*kp+3}], v[{SG+4*kp}:{SG+4*kp+3}], {c}')
            c = '0' if kp == 0 else f'v[{HA}:{HA+15}]'
            a(f'v_mfma_f32_32x32x16_bf16 v[{HA}:{HA+15}], v[{AX+4*kp}:{AX+4*kp+3}], v[{RK+4*kp}:{RK+4*kp+3}], {c}')
    def gemm_mid2():
        a('s_nop 7')
        a('s_nop 3')
    def w_frags():
        a(f'v_lshlrev_b32 v{GF}, 4, v{vLANE}')
        a(f'v_add_u32 v{GF}, {L_WST}, v{GF}')
        for f in range(16):
            dst = (WB + 4*f) if f < 8 else (WV + 4*(f-8))
            if f == 12: a('s_waitcnt lgkmcnt(8)')
            a(f'ds_read_b128 v[{dst}:{dst+3}], v{GF} offset:{f*1024}')
    def gemm_store(tag):
        for i in range(16):
            a(f'v_cvt_pk_bf16_f32 v{GA+i}, v{GA+i}, v{HA+i}')
        a(f's_lshr_b32 s{t0}, s{sW}, 1')
        a(f's_cmp_eq_u32 s{t0}, 3')
        a(f's_cbranch_scc1 K2_RT3{tag}')
        for vv in range(16):
            if vv == 12: a('s_waitcnt lgkmcnt(8)')
            a(f'ds_write_b32 v{GD}, v{GA+vv} offset:{(8*(vv//4) + vv%4) * ROWB}')
        a(f's_branch K2_RTD{tag}')
        a.label(f'K2_RT3{tag}')
        a('s_mov_b32 exec_hi, 0')
        for vv in range(2):
            a(f'ds_write_b32 v{GD}, v{GA+vv} offset:{vv * ROWB}')
        a('s_mov_b64 exec, -1')
        a.label(f'K2_RTD{tag}')
    def consts():
        a(f'v_add_u32 v{RA}, s{sDB}, v{RA}')
        for kp in range(1, 4):
            a(f'v_xor_b32 v{RA+kp}, {32*kp}, v{RA}')
        a(f's_mov_b32 s{t3}, 0x{LOG2E:x}')
        for cc in range(2):
            a(f'v_lshlrev_b32 v{BC+cc}, 16, v{BC+cc}')
            a(f'v_mul_f32 v{BC+cc}, s{t3}, v{BC+cc}')
        a(f'v_cvt_pk_bf16_f32 v{BC}, 0, v{BC}')
        a(f'v_cvt_pk_bf16_f32 v{BC+1}, v{BC+1}, 0')
        a(f'v_cmp_gt_u32 vcc, 32, v{vLANE}')
        a(f'v_mov_b32 v{tG}, 0xb2000000')
        a(f'v_mov_b32 v{tH}, 0xb200')
        a(f'v_cndmask_b32 v{BC}, v{tG}, v{BC}, vcc')
        a(f'v_cndmask_b32 v{BC+1}, v{tH}, v{BC+1}, vcc')

    def hist():
        a(f'v_mov_b32 v{tE}, 1')
        for sl in range(8):
            a(f's_mov_b64 exec, s[{MK+2*sl}:{MK+2*sl+1}]')
            a(f'ds_add_rtn_u32 v{RK+sl}, v{REC+2*sl+1}, v{tE} offset:{L_CNT}')
        a('s_waitcnt lgkmcnt(6)')
        for sl in range(8, 16, 2):
            sk = a.newlabel('skh')
            a(f's_mov_b64 exec, s[{MK+2*sl}:{MK+2*sl+1}]')
            a(f's_cbranch_execz {sk}')
            a(f'ds_add_rtn_u32 v{RK+sl}, v{REC+2*sl+1}, v{tE} offset:{L_CNT}')
            a(f's_mov_b64 exec, s[{MK+2*sl+2}:{MK+2*sl+3}]')
            a(f'ds_add_rtn_u32 v{RK+sl+1}, v{REC+2*sl+3}, v{tE} offset:{L_CNT}')
            a.label(sk)
        sk = a.newlabel('skhc')
        a(f's_mov_b64 exec, s[{MKC}:{MKC+1}]')
        a(f's_cbranch_execz {sk}')
        a('s_waitcnt lgkmcnt(6)')
        a(f'ds_add_rtn_u32 v{RKC}, v{RC+1}, v{tE} offset:{L_CNT}')
        a(f's_mov_b64 exec, s[{MKC2}:{MKC2+1}]')
        a(f'ds_add_rtn_u32 v{RKC2}, v{RC+3}, v{tE} offset:{L_CNT}')
        a.label(sk)
        a('s_mov_b64 exec, -1')

    def scan_nodes(tag, mid=None):
        a(f'v_lshlrev_b32 v{tA}, 3, v{vLANE}')
        a(f'ds_read_b64 v[{TQ}:{TQ+1}], v{tA} offset:{L_CNT}')
        a(f'v_mul_u32_u24 v{nROW0}, {2*ROWB}, v{vLANE}')
        a(f'v_add_u32 v{nROW0}, {L_ACC}, v{nROW0}')
        if mid: mid()
        else: a('s_waitcnt lgkmcnt(0)')
        a(f'v_add_u32 v{tE}, 3, v{TQ}')
        a(f'v_add_u32 v{tF}, 3, v{TQ+1}')
        a(f'v_and_b32 v{tE}, -4, v{tE}')
        a(f'v_and_b32 v{tF}, -4, v{tF}')
        a(f'v_add_u32 v{tC}, v{tE}, v{tF}')
        a(f'v_max_u32 v{tB}, v{tE}, v{tF}')
        a(f'v_mov_b32 v{tD}, v{tC}')
        wave_scan(a, 'v_add_u32', tD)
        a(f'v_sub_u32 v{nOFF0}, v{tD}, v{tC}')
        a(f'v_readlane_b32 s{t1}, v{tD}, 63')
        a(f'v_add_u32 v{nOFF1}, v{nOFF0}, v{tE}')
        a(f'v_lshlrev_b32 v{TQ+2}, 2, v{nOFF0}')
        a(f'v_lshlrev_b32 v{TQ+3}, 2, v{nOFF1}')
        a(f'ds_write_b64 v{tA}, v[{TQ+2}:{TQ+3}] offset:{L_TAB}')
        a(f'v_mov_b32 v{nEND0}, v{nOFF1}')
        a(f'v_add_u32 v{nEND1}, v{nOFF1}, v{tF}')
        a(f's_add_u32 s{t1}, s{t1}, 127')
        a(f's_lshr_b32 s{t1}, s{t1}, 7')
        a(f's_lshr_b32 s{t0}, s{t1}, 1')
        a(f's_sub_u32 s{t1}, s{t1}, s{t0}')
        a(f's_lshl_b32 s{sLA}, s{t1}, 2')
        a(f's_lshl_b32 s{sLB}, s{t0}, 2')
        a(f's_sub_u32 s{sSO}, s{sLA}, s{sLB}')
        a(f's_lshl_b32 s{sSO}, s{sSO}, 3')
        a(f's_cmp_lt_u32 s{sW}, 4')
        a(f's_cselect_b32 s{sL}, s{sLA}, s{sLB}')
        a(f's_cselect_b32 s{sSO}, 0, s{sSO}')
        a(f's_lshr_b32 s{sCNT}, s{sL}, 2')
        a(f's_sub_u32 s{sCNT}, s{sCNT}, 1')
    def qi_fill(tag, split, nwq=8):
        B0 = TQ + 2; B1 = TQ + 3; V0 = TR + 1; V1 = TR + 2
        a(f'v_max_u32 v{TR}, v{tE}, v{tF}')
        if split:
            a(f'v_cvt_f32_u32 v{tA}, s{sLA}')
            a(f'v_cvt_f32_u32 v{tD}, s{sLB}')
            a(f'v_rcp_f32 v{tA}, v{tA}')
            a(f'v_rcp_f32 v{tD}, v{tD}')
            a(f's_lshl_b32 s{t0}, s{sLA}, 5')
            a(f's_sub_u32 s{t1}, s{sLA}, s{sLB}')
            a(f's_lshl_b32 s{t1}, s{t1}, 5')
            a(f'v_mul_f32 v{tA}, 0.25, v{tA}')
            a(f'v_mul_f32 v{tD}, 0.25, v{tD}')
            for (OFF, nx, B, Vv) in ((nOFF0, tB, B0, V0), (nOFF1, tC, B1, V1)):
                a(f'v_cmp_gt_u32 vcc, s{t0}, v{OFF}')
                a(f'v_subrev_u32 v{tG}, s{t1}, v{OFF}')
                a('s_nop 0')
                a(f'v_cndmask_b32 v{tG}, v{tG}, v{OFF}, vcc')
                a(f'v_cndmask_b32 v{tH}, v{tD}, v{tA}, vcc')
                a(f'v_cvt_f32_u32 v{tG}, v{tG}')
                a(f'v_add_f32 v{tG}, 2.0, v{tG}')
                a(f'v_mul_f32 v{tG}, v{tH}, v{tG}')
                a(f'v_cvt_u32_f32 v{nx}, v{tG}')
                a(f'v_add_u32 v{nx}, 1, v{nx}')
                a(f'v_mov_b32 v{tG}, s{sLB}')
                a(f'v_mov_b32 v{tH}, s{sLA}')
                a(f'v_cndmask_b32 v{tG}, v{tG}, v{tH}, vcc')
                a(f'v_mov_b32 v{tH}, s{t1}')
                a(f'v_cndmask_b32 v{tH}, v{tH}, 0, vcc')
                a(f'v_lshlrev_b32 v{tG}, 2, v{tG}')
                a(f'v_mad_u32_u24 v{B}, v{nx}, v{tG}, v{tH}')
            a(f's_movk_i32 s{t1}, {VROWB}')
            a(f'v_mov_b32 v{tD}, {L_VIRT}')
            a(f'v_mad_u32_u24 v{V0}, v{tB}, s{t1}, v{tD}')
            a(f'v_mad_u32_u24 v{V1}, v{tC}, s{t1}, v{tD}')
            a(f'v_add_u32 v{tD}, {ROWB}, v{nROW0}')
            for nd, (B, Vv, END, nx) in enumerate(((B0, V0, nEND0, tB), (B1, V1, nEND1, tC))):
                lab = a.newlabel('nosplit')
                a(f'v_lshrrev_b32 v{tG}, {1 if nwq == 8 else 2}, v{nx}')
                a(f'v_cmp_lt_u32 vcc, v{B}, v{END}')
                a(f'v_cmp_eq_u32 s[{sSV}:{sSV+1}], s{sW}, v{tG}')
                a(f's_and_b64 vcc, vcc, s[{sSV}:{sSV+1}]')
                a(f's_cbranch_scc0 {lab}')
                lp = a.newlabel('splitlp')
                a.label(lp)
                a(f's_ff1_i32_b64 s{t0}, vcc')
                a(f's_bitset0_b64 vcc, s{t0}')
                a(f'v_readlane_b32 s{t2}, v{nROW0 if nd == 0 else tD}, s{t0}')
                a(f'v_readlane_b32 s{t3}, v{Vv}, s{t0}')
                a(f'v_lshrrev_b32 v{tG}, 0, v{C4}')
                a('s_mov_b32 exec_hi, 0')
                a(f'v_add_u32 v{tH}, s{t2}, v{tG}')
                a(f'ds_read_b32 v{tI}, v{tH} offset:512')
                a(f'v_add_u32 v{tH}, s{t3}, v{tG}')
                a(f'v_mov_b32 v{tG}, s{t2}')
                a(f'v_mov_b32 v{tA}, s{t3}')
                a(f'ds_write_b32 v{tG}, v{tA} offset:768')
                a('s_waitcnt lgkmcnt(1)')
                a(f'ds_write_b32 v{tH}, v{tI} offset:512')
                a('s_mov_b64 exec, -1')
                a(f's_cmp_lg_u64 vcc, 0')
                a(f's_cbranch_scc1 {lp}')
                a.label(lab)
        a(f's_lshl_b32 s{t0}, s{sW}, 2')
        a(f'v_add_u32 v{tA}, s{t0}, v{nOFF0}')
        a(f'v_add_u32 v{tB}, s{t0}, v{nOFF1}')
        a(f'v_add_u32 v{tC}, {ROWB}, v{nROW0}')
        lp = f'K2_QF{tag}'
        a.label(lp)
        a(f's_add_u32 s{t1}, s{t0}, 4')
        a(f'v_cmp_eq_u32 s[{sSV}:{sSV+1}], s{t1}, v{tE}')
        a(f'v_cmp_eq_u32 s[{sSV2}:{sSV2+1}], s{t1}, v{tF}')
        if split:
            a(f'v_add_u32 v{tG}, 4, v{tA}')
            a(f'v_add_u32 v{tH}, 4, v{tB}')
            a(f'v_cmp_eq_u32 vcc, v{tG}, v{B0}')
            a(f's_or_b64 s[{sSV}:{sSV+1}], s[{sSV}:{sSV+1}], vcc')
            a(f'v_cmp_eq_u32 vcc, v{tH}, v{B1}')
            a(f's_or_b64 s[{sSV2}:{sSV2+1}], s[{sSV2}:{sSV2+1}], vcc')
            a(f'v_cmp_ge_u32 vcc, v{tA}, v{B0}')
            a('s_nop 1')
            a(f'v_cndmask_b32 v{tG}, v{nROW0}, v{V0}, vcc')
            a(f'v_cmp_ge_u32 vcc, v{tB}, v{B1}')
            a('s_nop 1')
            a(f'v_cndmask_b32 v{tH}, v{tC}, v{V1}, vcc')
        else:
            a(f'v_mov_b32 v{tG}, v{nROW0}')
            a(f'v_mov_b32 v{tH}, v{tC}')
        a(f'v_or_b32 v{tD}, 0x80000000, v{tG}')
        a(f'v_or_b32 v{tI}, 0x80000000, v{tH}')
        a(f'v_cmp_lt_u32 vcc, s{t0}, v{tE}')
        a(f'v_cndmask_b32 v{tG}, v{tG}, v{tD}, s[{sSV}:{sSV+1}]')
        a(f'v_cndmask_b32 v{tH}, v{tH}, v{tI}, s[{sSV2}:{sSV2+1}]')
        a(f'v_cmp_lt_u32 s[{sSV}:{sSV+1}], s{t0}, v{tF}')
        a('s_mov_b64 exec, vcc')
        a(f'ds_write_b32 v{tA}, v{tG} offset:{L_QI}')
        a(f's_mov_b64 exec, s[{sSV}:{sSV+1}]')
        a(f'ds_write_b32 v{tB}, v{tH} offset:{L_QI}')
        a('s_mov_b64 exec, -1')
        a(f's_add_u32 s{t0}, s{t0}, {4*nwq}')
        a(f'v_add_u32 v{tA}, {4*nwq}, v{tA}')
        a(f'v_add_u32 v{tB}, {4*nwq}, v{tB}')
        a(f'v_cmp_lt_u32 vcc, s{t0}, v{TR}')
        a(f's_cbranch_vccnz {lp}')
    def scatter():
        a('s_waitcnt lgkmcnt(0)')
        for sl in range(8):
            a(f's_mov_b64 exec, s[{MK+2*sl}:{MK+2*sl+1}]')
            a(f'ds_read_b32 v{AX+sl}, v{REC+2*sl+1} offset:{L_TAB}')
        for sl in range(8):
            a(f's_mov_b64 exec, s[{MK+2*sl}:{MK+2*sl+1}]')
            a('s_waitcnt lgkmcnt(7)')
            a(f'v_lshl_add_u32 v{AX+sl}, v{RK+sl}, 2, v{AX+sl}')
            a(f'ds_write_b32 v{AX+sl}, v{REC+2*sl} offset:{L_ENT}')
        for sl in range(8, 16, 2):
            sk = a.newlabel('sks')
            a(f's_mov_b64 exec, s[{MK+2*sl}:{MK+2*sl+1}]')
            a(f's_cbranch_execz {sk}')
            a(f'ds_read_b32 v{AX+sl}, v{REC+2*sl+1} offset:{L_TAB}')
            a(f's_mov_b64 exec, s[{MK+2*sl+2}:{MK+2*sl+3}]')
            a(f'ds_read_b32 v{AX+sl+1}, v{REC+2*sl+3} offset:{L_TAB}')
            a('s_waitcnt lgkmcnt(0)')
            a(f'v_lshl_add_u32 v{AX+sl+1}, v{RK+sl+1}, 2, v{AX+sl+1}')
            a(f'ds_write_b32 v{AX+sl+1}, v{REC+2*sl+2} offset:{L_ENT}')
            a(f's_mov_b64 exec, s[{MK+2*sl}:{MK+2*sl+1}]')
            a(f'v_lshl_add_u32 v{AX+sl}, v{RK+sl}, 2, v{AX+sl}')
            a(f'ds_write_b32 v{AX+sl}, v{REC+2*sl} offset:{L_ENT}')
            a.label(sk)
        sk = a.newlabel('sksc')
        a(f's_mov_b64 exec, s[{MKC}:{MKC+1}]')
        a(f's_cbranch_execz {sk}')
        a(f'ds_read_b32 v{AX}, v{RC+1} offset:{L_TAB}')
        a(f's_mov_b64 exec, s[{MKC2}:{MKC2+1}]')
        a(f'ds_read_b32 v{AX+1}, v{RC+3} offset:{L_TAB}')
        a('s_waitcnt lgkmcnt(0)')
        a(f'v_lshl_add_u32 v{AX+1}, v{RKC2}, 2, v{AX+1}')
        a(f'ds_write_b32 v{AX+1}, v{RC+2} offset:{L_ENT}')
        a(f's_mov_b64 exec, s[{MKC}:{MKC+1}]')
        a(f'v_lshl_add_u32 v{AX}, v{RKC}, 2, v{AX}')
        a(f'ds_write_b32 v{AX}, v{RC} offset:{L_ENT}')
        a.label(sk)
        a('s_mov_b64 exec, -1')

    def setup_ptrs():
        a(f'v_add_u32 v{tB}, s{sSO}, v{jA}')
        a(f'v_mad_u32_u24 v{tA}, v{sidA}, s{sL}, v{tB}')
        a(f'v_lshlrev_b32 v{pEN}, 4, v{tA}')
        a(f'ds_read_b128 v[{EN}:{EN+3}], v{pEN} offset:{L_ENT}')
        a(f'v_lshlrev_b32 v{pQF}, 2, v{tA}')
        a(f'v_sub_u32 v{pQI}, v{tA}, v{jA}')
        a(f'v_lshlrev_b32 v{pQI}, 2, v{pQI}')
        a(f'v_add_u32 v{pQI}, {L_QI}, v{pQI}')
        a(f'v_mad_u32_u24 v{tA}, v{sidR}, s{sL}, v{tB}')
        a(f'v_lshl_add_u32 v{pEE}, v{tA}, 4, v{iR4}')
        a(f's_mov_b32 m0, s{sDB}')

    def dma_addr():
        return [f'v_mad_u32_u16 v{EN+i}, v{EN+i}, s{s128}, v{CO+i}' for i in range(4)]
    def dma_issue():
        if opts.get('nodma'): return []
        return [f'buffer_load_dwordx4 v{EN+i}, s[{rX}:{rX+3}], 0 offen offset:{1024*i} lds' if i else
                f'buffer_load_dwordx4 v{EN}, s[{rX}:{rX+3}], 0 offen lds' for i in range(4)]

    def main_loop(tag, atomic):
        flush_blocks = []
        PS = [(PP, TT_, ZZ), (PB, TB, ZB)]
        def flush_body(par, j):
            a(f's_bfe_i32 exec_lo, s{sF[par]}, 0x{(1<<16)|(8*j):x}')
            a(f's_bfe_i32 exec_hi, s{sF[par]+1}, 0x{(1<<16)|(8*j):x}')
            a(f'v_add_f32 v{F0}, v{DEN}, v{DEN+1}')
            a(f'v_add_f32 v{F1}, v{NUM}, v{NUM+1}')
            a(f'v_add_f32 v{F2}, v{DEN+2}, v{DEN+3}')
            a(f'v_add_f32 v{F3}, v{NUM+2}, v{NUM+3}')
            a(f'v_mov_b64 v[{DEN}:{DEN+1}], 0')
            a(f'v_mov_b64 v[{NUM}:{NUM+1}], 0')
            if atomic:
                a(f'ds_add_f32 v{QA[par]+j}, v{F0}')
                a(f'ds_add_f32 v{QA[par]+j}, v{F1} offset:256')
                a(f'ds_add_f32 v{QA[par]+j}, v{F2} offset:128')
                a(f'ds_add_f32 v{QA[par]+j}, v{F3} offset:384')
            else:
                a(f'ds_write2_b32 v{QA[par]+j}, v{F0}, v{F1} offset0:0 offset1:64')
                a(f'ds_write2_b32 v{QA[par]+j}, v{F2}, v{F3} offset0:32 offset1:96')
            a(f'v_mov_b64 v[{DEN+2}:{DEN+3}], 0')
            a(f'v_mov_b64 v[{NUM+2}:{NUM+3}], 0')
            a('s_mov_b64 exec, -1')
        def post2(par):
            for j in range(4):
                for cc in range(2):
                    p, t, z = (r + 2*j for r in PS[cc])
                    a(f'v_pk_fma_f32 v[{NUM+2*cc}:{NUM+2*cc+1}], v[{p}:{p+1}], v[{t}:{t+1}], v[{NUM+2*cc}:{NUM+2*cc+1}]')
                    a(f'v_pk_fma_f32 v[{DEN+2*cc}:{DEN+2*cc+1}], v[{p}:{p+1}], v[{z}:{z+1}], v[{DEN+2*cc}:{DEN+2*cc+1}]')
                if opts.get('noflush'): continue
                fl = a.newlabel('fl'); back = a.newlabel('bk')
                a(f's_bitcmp1_b32 s{sANY[par]}, {8*j}')
                a(f's_cbranch_scc1 {fl}')
                a.label(back)
                flush_blocks.append((fl, back, par, j))
        def pre(cur):
            g0 = G_[cur]; h0 = H_[cur]; P_, T_, Z_ = PS[cur]
            for j in range(4):
                g = g0 + 4*j
                a(f'v_pk_fma_f32 v[{g}:{g+1}], v[{g}:{g+1}], s[{sC}:{sC+1}], s[{sC}:{sC+1}] clamp')
                a(f'v_pk_fma_f32 v[{g+2}:{g+3}], v[{g+2}:{g+3}], s[{sC}:{sC+1}], s[{sC}:{sC+1}] clamp')
            for j in range(4):
                g = g0 + 4*j; h = h0 + 4*j
                X = f'v[{g}:{g+1}]'; Y = f'v[{g+2}:{g+3}]'
                p = P_ + 2*j; t = T_ + 2*j; z = Z_ + 2*j
                a(f'v_pk_mul_f32 v[{t}:{t+1}], {Y}, v[{h}:{h+1}]')
                a(f'v_pk_mul_f32 v[{p}:{p+1}], {X}, {Y}')
                a(f'v_pk_add_f32 v[{z}:{z+1}], {X}, {Y}')
                a(f'v_pk_fma_f32 v[{t}:{t+1}], {X}, v[{h+2}:{h+3}], v[{t}:{t+1}]')
        def mfma_list(nxt, cc):
            Gs = f'v[{G_[nxt]}:{G_[nxt]+15}]'; Hs = f'v[{H_[nxt]}:{H_[nxt]+15}]'
            out = []
            for kp in range(4):
                wb = WB + 16*cc + 4*kp; wv = WV + 16*cc + 4*kp; ax = AX + 4*kp
                out.append(f'v_mfma_f32_32x32x16_bf16 {Hs}, v[{ax}:{ax+3}], v[{wv}:{wv+3}], {"0" if kp == 0 else Hs}')
                out.append(f'v_mfma_f32_32x32x16_bf16 {Gs}, v[{ax}:{ax+3}], v[{wb}:{wb+3}], {"0" if kp == 0 else Gs}')
            out.append(f'v_mfma_f32_32x32x16_bf16 {Gs}, v[{AE[cc]}:{AE[cc]+3}], v[{BE}:{BE+3}], {Gs}')
            return out
        def trans_list(cur):
            Pp = PS[cur ^ 1][0]
            return [f'v_rcp_f32 v{Pp+i}, v{Pp+i}' for i in range(8)] + [f'v_exp_f32 v{G_[cur]+i}, v{G_[cur]+i}' for i in range(16)]
        def weave(mf, tr, gaps):
            dist = [3, 3, 3, 3, 3, 3, 2, 2, 2]
            if opts.get('nogaps'): gaps = {}
            if opts.get('nomf'): mf = None
            k = 0
            for m in range(9):
                for ins in gaps.get(('m', m), []): a(ins)
                if mf: a(mf[m])
                for _ in range(dist[m]):
                    a(tr[k])
                    for ins in gaps.get(k, []): a(ins)
                    k += 1
            assert k == len(tr)
        def stage0(par):
            g = {}
            da = dma_addr()
            g[0] = [f'ds_read_b32 v{QF}, v{pQF} offset:{L_QI + 16*(par+1)}']
            g[1] = [f'ds_read_b32 v{EE}, v{pEE} offset:{L_ENT + 64*(par+1)}']
            g[3] = [f'v_and_or_b32 v{BE}, v{R0}, s{sHI}, v{BC+1}']
            g[6] = [da[0]]; g[9] = [da[1]]; g[12] = [da[2]]; g[15] = [da[3]]
            axr = [f'ds_read_b128 v[{AX+4*kp}:{AX+4*kp+3}], v{RA+kp}' for kp in range(4)]
            early = opts.get('axearly', 0)
            if early:
                for kp, gp in enumerate(opts.get('axgaps', (8, 11, 17, 21))):
                    g.setdefault(gp, [])
                    g[gp] = g[gp] + ((['s_waitcnt vmcnt(0)'] if kp == 0 else []) + [axr[kp]])
            weave(mfma_list(1, 1), trans_list(0), g)
            axpre = opts.get('axpre', 1)
            if axpre and not early and not opts.get('nogaps'):
                a('s_waitcnt vmcnt(0)')
                for ins in axr: a(ins)
            post2(par ^ 1)
            qn = QA[par ^ 1]
            if not opts.get('nogaps'):
                a(f'ds_read_b128 v[{qn}:{qn+3}], v{pQI} offset:{16*(par+1)}')
                if not early and not axpre:
                    a('s_waitcnt vmcnt(0)')
                    for ins in axr: a(ins)
            pre(0)
            a(f's_sub_u32 s{sCNT}, s{sCNT}, 1')
        def stage1(par):
            qn = QA[par ^ 1]
            g = {}
            di = dma_issue()
            g[('m', 0)] = ['s_waitcnt lgkmcnt(0)']
            dg = opts.get('dmag', 0)
            dd = {0: (0, 1, 2, 3), 1: (8, 10, 12, 14), 2: (6, 8, 10, 12), 3: (12, 14, 16, 18)}[dg]
            g[0] = [f'v_mad_u32_u24 v{qn}, v{qn}, 1, v{C4}']
            g[1] = [f'v_mad_u32_u24 v{qn+1}, v{qn+1}, 1, v{C4}']
            g[2] = [f'ds_read_b32 v{R0}, v{qn} offset:512']
            g[3] = [f'v_mad_u32_u24 v{qn+2}, v{qn+2}, 1, v{C4}', f'ds_read_b32 v{BE+1}, v{qn+1} offset:512']
            g[4] = [f'v_mad_u32_u24 v{qn+3}, v{qn+3}, 1, v{C4}', f'ds_read_b32 v{BE+2}, v{qn+2} offset:512']
            g[5] = [f'ds_read_b32 v{BE+3}, v{qn+3} offset:512']
            g[7] = [f'v_perm_b32 v{AE[0]}, v{EE}, v{AE[0]}, v{SEL[0]}']
            g[9] = [f'v_perm_b32 v{AE[1]}, v{EE}, v{AE[1]}, v{SEL[1]}']
            g[11] = [f'v_cmp_gt_i32 s[{sF[par^1]}:{sF[par^1]+1}], 0, v{QF}']
            if par == 1:
                g[13] = [f'v_add_u32 v{pQI}, 32, v{pQI}']
                g[14] = [f'v_add_u32 v{pQF}, 32, v{pQF}']
                g[15] = [f'v_add_u32 v{pEE}, 128, v{pEE}']
                g[16] = [f'v_add_u32 v{pEN}, 128, v{pEN}']
            g[17] = [f's_or_b32 s{sANY[par^1]}, s{sF[par^1]}, s{sF[par^1]+1}'] if not opts.get('noany') else [f's_mov_b32 s{sANY[par^1]}, 0']
            g[19] = ['s_waitcnt lgkmcnt(%d)' % (1 if dd[3] >= 18 else 0), f'v_and_or_b32 v{BE}, v{R0}, s{sLO}, v{BC}']
            for i_, gp in enumerate(dd):
                if di: g[gp] = g.get(gp, []) + [di[i_]]
            en_gap = max(dd[3] + 1, 6)
            en_rd = f'ds_read_b128 v[{EN}:{EN+3}], v{pEN} offset:{L_ENT + 64*(par+3)}'
            if en_gap >= 19:
                g[20] = g.get(20, []) + [en_rd]
            else:
                g[en_gap] = g.get(en_gap, []) + [en_rd]
            if par == 1:
                pass
            weave(mfma_list(0, 0), trans_list(1), g)
            pre(1)
        def last_stage1(par):
            weave(None, trans_list(1), {})
            pre(1)
            for i in range(8):
                a(f'v_rcp_f32 v{PB+i}, v{PB+i}')
            a('s_nop 0')
            post2(par)
        L0 = f'K2_T0{tag}'; E0 = f'K2_E0{tag}'; E1 = f'K2_E1{tag}'; DONE = f'K2_MD{tag}'
        PR = opts.get('prio', 1)
        if PR:
            a(f's_add_u32 s{t0}, s{sCNT}, 1')
            a(f's_mul_i32 s{t0}, s{t0}, {opts.get("pfrac", 20)}')
            a(f's_lshr_b32 s{t0}, s{t0}, 6')
            a(f's_lshl_b32 s{t0}, s{t0}, 1')
            a(f's_sub_u32 s{sSWAP}, s{sCNT}, s{t0}')
            a(f's_cmp_ge_u32 s{sW}, 4')
            a(f's_cbranch_scc0 K2_PR0{tag}')
            a('s_setprio 1')
            a.label(f'K2_PR0{tag}')
        if PR == 3:
            a(f's_cmp_ge_u32 s{sW}, 4')
            a(f's_cselect_b32 s{sSWAP}, 1, 0')
        a.label(L0)
        if PR == 3:
            a(f's_xor_b32 s{sSWAP}, s{sSWAP}, 1')
            a(f's_cbranch_scc1 K2_PH{tag}')
            a('s_setprio 0')
            a(f's_branch K2_PD{tag}')
            a.label(f'K2_PH{tag}')
            a('s_setprio 1')
            a.label(f'K2_PD{tag}')
        elif PR:
            a(f's_cmp_eq_u32 s{sCNT}, s{sSWAP}')
            a(f's_cbranch_scc1 K2_SWP{tag}')
            a.label(f'K2_SWB{tag}')
        stage0(0)
        a(f's_cbranch_scc1 {E0}')
        stage1(0)
        stage0(1)
        a(f's_cbranch_scc1 {E1}')
        stage1(1)
        a(f's_branch {L0}')
        a.label(E0)
        last_stage1(0)
        a(f's_branch {DONE}')
        a.label(E1)
        last_stage1(1)
        a(f's_branch {DONE}')
        if PR and PR != 3:
            a.label(f'K2_SWP{tag}')
            a(f's_cmp_ge_u32 s{sW}, 4')
            a(f's_cbranch_scc1 K2_SW0{tag}')
            a('s_setprio 1')
            a(f's_branch K2_SWB{tag}')
            a.label(f'K2_SW0{tag}')
            a('s_setprio 0')
            a(f's_branch K2_SWB{tag}')
        for (fl, back, par, j) in flush_blocks:
            a.label(fl)
            flush_body(par, j)
            a(f's_branch {back}')
        a.label(DONE)
        if PR: a('s_setprio 0')

    def pipeline_fill():
        q0 = QA[0]
        a(f'ds_read_b128 v[{q0}:{q0+3}], v{pQI}')
        a(f'ds_read_b32 v{QF}, v{pQF} offset:{L_QI}')
        a(f'ds_read_b32 v{EE}, v{pEE} offset:{L_ENT}')
        a(f'ds_read_b128 v[{EN}:{EN+3}], v{pEN} offset:{L_ENT + 64}')
        for i in range(2):
            a(f'v_mov_b64 v[{DEN+2*i}:{DEN+2*i+1}], 0')
            a(f'v_mov_b64 v[{NUM+2*i}:{NUM+2*i+1}], 0')
        for i in range(8):
            a(f'v_mov_b32 v{PP+i}, 1.0')
            a(f'v_mov_b32 v{PB+i}, 1.0')
        for i in range(4):
            a(f'v_mov_b64 v[{TT_+2*i}:{TT_+2*i+1}], 0')
            a(f'v_mov_b64 v[{ZZ+2*i}:{ZZ+2*i+1}], 0')
            a(f'v_mov_b64 v[{TB+2*i}:{TB+2*i+1}], 0')
            a(f'v_mov_b64 v[{ZB+2*i}:{ZB+2*i+1}], 0')
        a(f's_mov_b32 s{sANY[1]}, 0')
        a('s_waitcnt lgkmcnt(0)')
        for q in range(4):
            a(f'v_mad_u32_u24 v{q0+q}, v{q0+q}, 1, v{C4}')
        a(f'ds_read_b32 v{R0}, v{q0} offset:512')
        for q in range(1, 4):
            a(f'ds_read_b32 v{BE+q}, v{q0+q} offset:512')
        a(f'v_perm_b32 v{AE[0]}, v{EE}, v{AE[0]}, v{SEL[0]}')
        a(f'v_perm_b32 v{AE[1]}, v{EE}, v{AE[1]}, v{SEL[1]}')
        a(f'v_cmp_gt_i32 s[{sF[0]}:{sF[0]+1}], 0, v{QF}')
        for ins in dma_addr(): a(ins)
        stamp(21)
        a('s_waitcnt vmcnt(0)')
        stamp(22)
        for kp in range(4):
            a(f'ds_read_b128 v[{AX+4*kp}:{AX+4*kp+3}], v{RA+kp}')
        a(f's_or_b32 s{sANY[0]}, s{sF[0]}, s{sF[0]+1}')
        a('s_waitcnt lgkmcnt(0)')
        a(f'v_and_or_b32 v{BE}, v{R0}, s{sLO}, v{BC}')
        for ins in dma_issue(): a(ins)
        a(f'ds_read_b128 v[{EN}:{EN+3}], v{pEN} offset:{L_ENT + 128}')
        Gs = f'v[{GA}:{GA+15}]'; Hs = f'v[{HA}:{HA+15}]'
        for kp in range(4):
            a(f'v_mfma_f32_32x32x16_bf16 {Hs}, v[{AX+4*kp}:{AX+4*kp+3}], v[{WV+4*kp}:{WV+4*kp+3}], {"0" if kp == 0 else Hs}')
            a(f'v_mfma_f32_32x32x16_bf16 {Gs}, v[{AX+4*kp}:{AX+4*kp+3}], v[{WB+4*kp}:{WB+4*kp+3}], {"0" if kp == 0 else Gs}')
        a(f'v_mfma_f32_32x32x16_bf16 {Gs}, v[{AE[0]}:{AE[0]+3}], v[{BE}:{BE+3}], {Gs}')
        a('s_waitcnt lgkmcnt(0)')
        a('s_nop 7')
        a('s_nop 3')
    def forced_flags():
        a(f's_sub_u32 s{t1}, s{sL}, 1')
        a(f's_lshl_b32 s{t1}, s{t1}, 2')
        a(f'v_add_u32 v{tB}, s{t1}, v{pQI}')
        a(f'v_mov_b32 v{tA}, 0x80000000')
        a('s_mov_b32 exec_lo, 1')
        a('s_mov_b32 exec_hi, 1')
        a(f'ds_or_b32 v{tB}, v{tA}')
        a('s_mov_b64 exec, -1')

    stamp(2)
    a(f's_mov_b64 exec, s[{sSV2}:{sSV2+1}]')
    a(f'v_mov_b32 v{tD}, {L_CNT + 127*4}')
    a(f'v_mov_b32 v{tE}, 1')
    a(f'ds_write_b32 v{tD}, v{tE}')
    a('s_mov_b64 exec, -1')
    gemm_issue()
    stamp(28)
    gemm_mid()
    gemm_mid2()
    stamp(29)
    a(f's_cmp_lg_u32 s{sW}, 0')
    a('s_cbranch_scc1 K2_NOCI')
    a(f'v_mul_u32_u24 v{tA}, {2*ROWB}, v{vLANE}')
    a(f'v_mov_b32 v{tB}, {L_ZERO}')
    a(f'v_add_u32 v{tA}, {L_ACC}, v{tA}')
    a(f's_mov_b32 exec_hi, {(1 << (MAXN // 2 - 32)) - 1}')
    a(f'ds_write_b32 v{tA}, v{tB} offset:768')
    a(f'ds_write_b32 v{tA}, v{tB} offset:{768 + ROWB}')
    a('s_mov_b64 exec, -1')
    a.label('K2_NOCI')
    gemm_store('F')
    if opts.get('wearly', 0) == 1:
        w_frags()
        consts()
    elif opts.get('wearly', 0) == 2:
        a(f's_cmp_ge_u32 s{sW}, 4')
        a('s_cbranch_scc1 K2_WE0')
        w_frags()
        consts()
        a.label('K2_WE0')
    stamp(3)
    a('s_waitcnt vmcnt(0) lgkmcnt(0)')
    stamp(23)
    hist()
    a('s_waitcnt lgkmcnt(0)')
    stamp(24)
    if opts.get('proprio') == 1: a('s_setprio 0')
    a('s_barrier')
    stamp(4)
    scan_nodes('F')
    a(f'v_readlane_b32 s{t0}, v{TQ+1}, 63')
    a(f's_cmp_eq_u32 s{sLB}, 0')
    a(f's_cselect_b32 s{t1}, s{sLA}, s{sLB}')
    a(f's_lshl_b32 s{t1}, s{t1}, 2')
    a(f'v_cmp_lt_u32 vcc, s{t1}, v{tB}')
    a(f's_cmp_lg_u32 s{t0}, 0')
    a('s_cbranch_scc1 K2_SLOW')
    a(f's_add_u32 s{t1}, s{sLA}, s{sLB}')
    a(f's_cmp_gt_u32 s{t1}, {(ENT_QUADS - 8) // 8}')
    a('s_cbranch_scc1 K2_SLOW')
    a('s_cbranch_vccnz K2_SLOW')
    stamp(15)
    scatter()
    stamp(16)
    a('s_waitcnt lgkmcnt(0)')
    a('s_barrier')
    stamp(5)
    a(f's_cmp_eq_u32 s{sL}, 0')
    a('s_cbranch_scc1 K2_NOL')
    setup_ptrs()
    a('s_waitcnt lgkmcnt(0)')
    for ins in dma_addr(): a(ins)
    for ins in dma_issue(): a(ins)
    a.label('K2_NOL')
    stamp(17)
    if opts.get('qi4', 0):
        a(f's_cmp_ge_u32 s{sW}, 4')
        a('s_cbranch_scc1 K2_QIDONE')
    a(f'v_cmp_gt_u32 vcc, {MAXN // 2}, v{vLANE}')
    a(f'v_lshl_or_b32 v{tB}, v{vLANE}, 1, 1')
    a(f'v_cmp_le_u32 s[{sSV}:{sSV+1}], s{sNN}, v{tB}')
    a(f'v_mov_b32 v{tC}, 1')
    a('s_nop 0')
    a(f'v_cndmask_b32 v{tB}, v{TQ+1}, v{tC}, s[{sSV}:{sSV+1}]')
    a(f'v_min_u32 v{tB}, v{TQ}, v{tB}')
    a(f'v_cmp_eq_u32 s[{sSV}:{sSV+1}], 0, v{tB}')
    a(f's_and_b64 s[{sSV}:{sSV+1}], s[{sSV}:{sSV+1}], vcc')
    a('s_cbranch_scc1 K2_ZROWS')
    a.label('K2_ZBACK')
    if opts.get('qi4', 0):
        qi_fill('F', True, 4)
        a.label('K2_QIDONE')
    else:
        qi_fill('F', True)
    stamp(18)
    if opts.get('wearly', 0) == 0:
        w_frags()
        consts()
    elif opts.get('wearly', 0) == 2:
        a(f's_cmp_lt_u32 s{sW}, 4')
        a('s_cbranch_scc1 K2_WE1')
        w_frags()
        consts()
        a.label('K2_WE1')
    a('s_waitcnt lgkmcnt(0)')
    stamp(19)
    if opts.get('proprio') == 2: a('s_setprio 0')
    a('s_barrier')
    stamp(20)
    a(f's_cmp_eq_u32 s{sL}, 0')
    a('s_cbranch_scc1 K2_EPI')
    pipeline_fill()
    stamp(6)
    if opts.get('dbgtime'):
        a(f's_memrealtime s[{t2}:{t3}]')
        a('s_waitcnt lgkmcnt(0)')
        a(f's_mov_b32 s{sT1}, s{t2}')
    if STAMP:
        a(f's_memrealtime s[{t2}:{t3}]')
        a('s_waitcnt lgkmcnt(0)')
        a(f'v_writelane_b32 v{vST}, s{t2}, 13')
    if opts.get('half'):
        a(f's_cmp_ge_u32 s{sW}, 4')
        a('s_cbranch_scc1 K2_MDF')
    main_loop('F', False)
    stamp(7)
    if opts.get('dbgtime'):
        a(f's_memrealtime s[{t2}:{t3}]')
        a('s_waitcnt lgkmcnt(0)')
        a(f's_mov_b32 s{sT2}, s{t2}')
    if STAMP:
        a(f's_memrealtime s[{t2}:{t3}]')
        a('s_waitcnt lgkmcnt(0)')
        a(f'v_writelane_b32 v{vST}, s{t2}, 14')
    a.label('K2_EPI')
    e0 = 4
    XV = [e0, e0 + 4]; UU = [e0 + 8, e0 + 12]
    DN = [e0 + 16, e0 + 48]; NM = [e0 + 24, e0 + 56]; CD = [e0 + 32, e0 + 64]; CN = [e0 + 40, e0 + 72]
    O = e0 + 80; ADR = [e0 + 84, e0 + 85]; GO = [e0 + 86, e0 + 87]; CP = [e0 + 88, e0 + 89]; OC = [e0 + 90, e0 + 91]
    T1 = e0 + 92; ND = e0 + 93
    def epi_addr(r):
        a(f'v_add_u32 v{T1}, {512*r}, v0') if r else a(f'v_mov_b32 v{T1}, v0')
        a(f'v_lshrrev_b32 v{ND}, 3, v{T1}')
        a(f'v_and_b32 v{T1}, 7, v{T1}')
        a(f'v_lshlrev_b32 v{OC[r]}, 4, v{T1}')
        a(f'v_mul_u32_u24 v{CP[r]}, s{t0}, v{ND}')
        a(f'v_add_u32 v{CP[r]}, {L_ACC}, v{CP[r]}')
        a(f'v_add_u32 v{ADR[r]}, v{CP[r]}, v{OC[r]}')
        a(f'v_add_u32 v{GO[r]}, s{sNS}, v{ND}')
        a(f'v_lshlrev_b32 v{GO[r]}, 7, v{GO[r]}')
        a(f'v_lshl_add_u32 v{GO[r]}, v{T1}, 3, v{GO[r]}')
    def epi_static(r, carry):
        a(f'buffer_load_dwordx2 v[{XV[r]}:{XV[r]+1}], v{GO[r]}, s[{rF}:{rF+3}], 0 offen')
        a(f'buffer_load_dwordx2 v[{XV[r]+2}:{XV[r]+3}], v{GO[r]}, s[{rF}:{rF+3}], 0 offen offset:64')
        a(f'ds_read_b128 v[{UU[r]}:{UU[r]+3}], v{ADR[r]} offset:640')
        if carry: a(f'ds_read_b32 v{CP[r]}, v{CP[r]} offset:768')
    def epi_reads(r, carry):
        ad = ADR[r]
        a(f'ds_read_b128 v[{DN[r]}:{DN[r]+3}], v{ad}')
        a(f'ds_read_b128 v[{DN[r]+4}:{DN[r]+7}], v{ad} offset:128')
        a(f'ds_read_b128 v[{NM[r]}:{NM[r]+3}], v{ad} offset:256')
        a(f'ds_read_b128 v[{NM[r]+4}:{NM[r]+7}], v{ad} offset:384')
        if carry:
            a(f'ds_read_b128 v[{CD[r]}:{CD[r]+3}], v{CP[r]}')
            a(f'ds_read_b128 v[{CD[r]+4}:{CD[r]+7}], v{CP[r]} offset:128')
            a(f'ds_read_b128 v[{CN[r]}:{CN[r]+3}], v{CP[r]} offset:256')
            if r == 1: a('s_waitcnt lgkmcnt(14)')
            a(f'ds_read_b128 v[{CN[r]+4}:{CN[r]+7}], v{CP[r]} offset:384')
    def epi_math(r, carry):
        dn, nm, cd, cn, uu, xv = DN[r], NM[r], CD[r], CN[r], UU[r], XV[r]
        if carry:
            for i in range(0, 8, 2):
                a(f'v_pk_add_f32 v[{dn+i}:{dn+i+1}], v[{dn+i}:{dn+i+1}], v[{cd+i}:{cd+i+1}]')
                a(f'v_pk_add_f32 v[{nm+i}:{nm+i+1}], v[{nm+i}:{nm+i+1}], v[{cn+i}:{cn+i+1}]')
        for i in range(0, 8, 2):
            a(f'v_pk_add_f32 v[{dn+i}:{dn+i+1}], v[{dn+i}:{dn+i+1}], s[{sC}:{sC+1}]')
        for i in range(8):
            a(f'v_rcp_f32 v{dn+i}, v{dn+i}')
        for i in range(4):
            a(f'v_lshlrev_b32 v{cd+i}, 16, v{uu+i}')
            a(f'v_and_b32 v{cd+4+i}, s{sHI}, v{uu+i}')
        for i in range(0, 8, 2):
            a(f'v_pk_fma_f32 v[{nm+i}:{nm+i+1}], v[{nm+i}:{nm+i+1}], v[{dn+i}:{dn+i+1}], v[{cd+i}:{cd+i+1}]')
        for i in range(8):
            a(f'v_max_f32 v{nm+i}, 0, v{nm+i}')
        for i in range(4):
            a(f'v_lshlrev_b32 v{cd+2*i}, 16, v{xv+i}')
            a(f'v_and_b32 v{cd+2*i+1}, s{sHI}, v{xv+i}')
        for i in range(0, 8, 2):
            a(f'v_pk_add_f32 v[{nm+i}:{nm+i+1}], v[{nm+i}:{nm+i+1}], v[{cd+i}:{cd+i+1}]')
        for i in range(4):
            a(f'v_cvt_pk_bf16_f32 v{O+i}, v{nm+2*i}, v{nm+2*i+1}')
        osf = {0: '', 1: ' sc1', 2: ' nt', 3: ' sc0 sc1'}[opts.get('outst', 1)]
        a(f'buffer_store_dwordx2 v[{O}:{O+1}], v{GO[r]}, s[{rO}:{rO+3}], 0 offen' + osf)
        a(f'buffer_store_dwordx2 v[{O+2}:{O+3}], v{GO[r]}, s[{rO}:{rO+3}], 0 offen offset:64' + osf)
    def epilogue(tag, carry):
        srd(a, rO, sOUT, N * 128)
        srd(a, rF, sX, N * 128)
        a(f's_mov_b32 s{t0}, {ROWB}')
        a(f's_mov_b32 s{sC}, 0x{EPS_SCALED:x}')
        a(f's_mov_b32 s{sC+1}, 0x{EPS_SCALED:x}')
        a(f's_mov_b32 s{sHI}, 0xffff0000')
        a('s_waitcnt vmcnt(0)')
        epi_addr(0)
        epi_static(0, carry)
        epi_addr(1)
        a(f'v_cmp_gt_u32 s[{sSV}:{sSV+1}], s{sNN}, v{ND}')
        a('s_nop 3')
        a(f's_mov_b64 exec, s[{sSV}:{sSV+1}]')
        a(f's_cbranch_execz K2_NS2{tag}')
        epi_static(1, carry)
        a.label(f'K2_NS2{tag}')
        a('s_mov_b64 exec, -1')
        a('s_waitcnt lgkmcnt(0)')
        if carry:
            a(f'v_add_u32 v{CP[0]}, v{CP[0]}, v{OC[0]}')
            a(f'v_add_u32 v{CP[1]}, v{CP[1]}, v{OC[1]}')
        a('s_barrier')
        if STAMP and tag == 'F': stamp(8)
        epi_reads(0, carry)
        a(f's_mov_b64 exec, s[{sSV}:{sSV+1}]')
        a(f's_cbranch_execz K2_ONE{tag}')
        epi_reads(1, carry)
        a('s_mov_b64 exec, -1')
        a(f's_waitcnt vmcnt(0) lgkmcnt({8 if carry else 4})')
        epi_math(0, carry)
        a(f's_mov_b64 exec, s[{sSV}:{sSV+1}]')
        a('s_waitcnt lgkmcnt(0)')
        epi_math(1, carry)
        a(f's_branch K2_FIN{tag}')
        a.label(f'K2_ONE{tag}')
        a('s_mov_b64 exec, -1')
        a('s_waitcnt vmcnt(0) lgkmcnt(0)')
        epi_math(0, carry)
        a.label(f'K2_FIN{tag}')
        if opts.get('endwait', 1): a('s_waitcnt vmcnt(0)')
    epilogue('F', True)
    if opts.get('dbgtime'):
        a('s_mov_b64 exec, -1')
        a('s_waitcnt vmcnt(0)')
        a(f's_memrealtime s[{t2}:{t3}]')
        a(f's_cmp_lg_u32 s{sW}, 7')
        a('s_cbranch_scc1 K2_DBGX')
        a('s_and_b32 s3, s2, 31')
        a('s_cmp_lg_u32 s3, 0')
        a('s_cbranch_scc1 K2_DBGX')
        a('s_lshr_b32 s3, s2, 5')
        a('s_cmp_ge_u32 s3, 2')
        a('s_cbranch_scc1 K2_DBGX')
        a(f's_lshl_b32 s{t0}, s3, 2')
        a(f's_add_u32 s{t0}, s{t0}, 0x1200000')
        a(f'v_mov_b32 v4, s{t0}')
        a(f'global_load_dword v5, v4, s[{sWS}:{sWS+1}]')
        a(f'global_load_dword v6, v4, s[{sWS}:{sWS+1}] offset:256')
        a('s_waitcnt vmcnt(0) lgkmcnt(0)')
        a(f'v_sub_u32 v8, v6, v5')
        a(f'v_sub_u32 v9, s{sT0}, v5')
        a(f'v_sub_u32 v10, s{sT1}, v5')
        a(f'v_sub_u32 v11, s{sT2}, v5')
        a(f'v_sub_u32 v12, s{t2}, v5')
        a('s_lshl_b32 s3, s3, 5')
        a('v_mov_b32 v4, s3')
        a('s_mov_b64 exec, 1')
        a(f'global_store_dwordx4 v4, v[8:11], s[{sDBG}:{sDBG+1}]')
        a(f'global_store_dword v4, v12, s[{sDBG}:{sDBG+1}] offset:16')
        a.label('K2_DBGX')
    if STAMP:
        a('s_mov_b64 exec, -1')
        a('s_waitcnt vmcnt(0)')
        stamp(9)
        a(f's_memrealtime s[{t2}:{t3}]')
        a('s_waitcnt lgkmcnt(0)')
        a(f'v_writelane_b32 v{vST}, s{t2}, 12')
        a(f's_mul_i32 s{t0}, s2, {NW}')
        a(f's_add_u32 s{t0}, s{t0}, s{sW}')
        a(f's_lshl_b32 s{t0}, s{t0}, 8')
        a(f's_add_u32 s{t0}, s{t0}, 0x1000000')
        srd_off(a, rT, sWS, f's{t0}', 256)
        a(f'v_writelane_b32 v{vST}, s{sL}, 10')
        a(f'v_lshlrev_b32 v4, 2, v{vLANE}')
        a(f'buffer_store_dword v{vST}, v4, s[{rT}:{rT+3}], 0 offen')
    a('s_endpgm')
    a.label('K2_CSEL')
    a(f'v_mov_b32 v{tD}, 0')
    a(f'v_mov_b32 v{tE}, 0')
    a(f'v_mov_b32 v{tF}, 0')
    for it in range(4):
        a(f'v_lshrrev_b32 v{tG}, 24, v{SG+it}')
        a(f'v_cmp_lt_u32 vcc, 32, v{tG}')
        a(f'v_mad_u32_u24 v{tJ}, v{SG+it}, 8, v{tB}')
        a(f'v_add_u32 v{RKC}, 1, v{tF}')
        a(f'v_cndmask_b32 v{tD}, v{tD}, v{tJ}, vcc')
        a(f'v_cndmask_b32 v{tE}, v{tE}, v{tG}, vcc')
        a(f'v_cndmask_b32 v{tF}, v{tF}, v{RKC}, vcc')
    a(f'v_cmp_lt_u32 vcc, 1, v{tF}')
    a(f'v_cmp_lt_u32 s[{sSV2}:{sSV2+1}], 48, v{tE}')
    a(f'v_add_u32 v{tG}, 32, v{tC}')
    a(f's_or_b64 s[{sSV2}:{sSV2+1}], s[{sSV2}:{sSV2+1}], vcc')
    a(f'v_cmp_gt_u32 s[{MKC}:{MKC+1}], v{tE}, v{tG}')
    a(f'v_add_u32 v{tG}, 33, v{tC}')
    a(f'v_cmp_gt_u32 s[{MKC2}:{MKC2+1}], v{tE}, v{tG}')
    a('s_nop 0')
    a(f's_mov_b64 exec, s[{MKC}:{MKC+1}]')
    a(f'buffer_load_dwordx4 v[{RC}:{RC+3}], v{tD}, s[{rR}:{rR+3}], 0 offen offset:256')
    a('s_mov_b64 exec, -1')
    a('s_branch K2_CBACK')
    a.label('K2_ZROWS')
    a(f's_mov_b64 exec, s[{sSV}:{sSV+1}]')
    for i in range(4):
        a(f'v_mov_b32 v{TR+i}, 0')
    for nd in range(2):
        a(f'v_cmp_eq_u32 vcc, 0, v{TQ+nd}')
        a(f's_and_b64 exec, vcc, s[{sSV}:{sSV+1}]')
        for k in range(32):
            a(f'ds_write_b128 v{nROW0}, v[{TR}:{TR+3}] offset:{nd*ROWB + 16*k}')
        a(f's_mov_b64 exec, s[{sSV}:{sSV+1}]')
    a('s_mov_b64 exec, -1')
    a('s_branch K2_ZBACK')

    a.label('K2_SLOW')
    if opts.get('wearly', 0) == 0:
        w_frags()
        consts()
    elif opts.get('wearly', 0) == 2:
        a(f's_cmp_lt_u32 s{sW}, 4')
        a('s_cbranch_scc1 K2_WE2')
        w_frags()
        consts()
        a.label('K2_WE2')
    a('s_waitcnt vmcnt(0) lgkmcnt(0)')
    a('s_barrier')
    a(f's_lshl_b32 s{t1}, s2, 10')
    a(f's_add_u32 s{t1}, s{t1}, {WS_TAB2}')
    srd_off(a, rT, sWS, f's{t1}', 1024)
    a(f'v_lshlrev_b32 v{tA}, 4, v{vLANE}')
    a(f'buffer_load_dwordx4 v[{TQ}:{TQ+3}], v{tA}, s[{rT}:{rT+3}], 0 offen')
    a('s_waitcnt vmcnt(0)')
    a(f'v_max_u32 v{tE}, v{TQ}, v{TQ+1}')
    a(f'v_max3_u32 v{tE}, v{tE}, v{TQ+2}, v{TQ+3}')
    wave_scan(a, 'v_max_u32', tE)
    a('s_nop 0')
    a(f'v_readlane_b32 s{t1}, v{tE}, 63')
    a(f's_add_u32 s{t1}, s{t1}, {WSLOW-1}')
    a(f's_mul_i32 s{t1}, s{t1}, 5042')
    a(f's_lshr_b32 s{sNP}, s{t1}, 16')
    a(f's_mov_b32 s{sP}, 0')
    for i in range(4):
        a(f'v_mov_b32 v{TR+i}, 0')
    a(f'v_lshrrev_b32 v{tA}, 5, v0')
    a(f'v_mul_u32_u24 v{tA}, {ROWB}, v{tA}')
    a(f'v_and_b32 v{tB}, 31, v{vLANE}')
    a(f'v_lshl_add_u32 v{tA}, v{tB}, 4, v{tA}')
    a(f'v_add_u32 v{tA}, {L_ACC}, v{tA}')
    for i in range(6):
        a(f'ds_write_b128 v{tA}, v[{TR}:{TR+3}]')
        a(f'v_add_u32 v{tA}, {16*ROWB}, v{tA}')
    a(f'v_cmp_gt_u32 vcc, 64, v0')
    a(f's_and_saveexec_b64 s[{sSV}:{sSV+1}], vcc')
    a(f'ds_write_b128 v{tA}, v[{TR}:{TR+3}]')
    a(f's_mov_b64 exec, s[{sSV}:{sSV+1}]')
    a.label('K2_SPASS')
    a(f's_lshl_b32 s{t0}, s{sW}, 1')
    a(f'v_lshrrev_b32 v{sidA}, 5, v{vLANE}')
    a(f'v_add_u32 v{sidA}, s{t0}, v{sidA}')
    a(f'v_bfe_u32 v{jA}, v{vLANE}, 3, 2')
    a(f'v_bfe_u32 v{sidR}, v{vLANE}, 2, 1')
    a(f'v_add_u32 v{sidR}, s{t0}, v{sidR}')
    a(f'v_and_b32 v{iR4}, 3, v{vLANE}')
    a(f'v_lshlrev_b32 v{iR4}, 2, v{iR4}')
    a(f's_lshl_b32 s{t1}, s2, 10')
    a(f's_add_u32 s{t1}, s{t1}, {WS_TAB}')
    srd_off(a, rT, sWS, f's{t1}', WS_TAB2 - WS_TAB + 1024)
    a(f'v_lshrrev_b32 v{tD}, 3, v{vLANE}')
    a(f'v_lshlrev_b32 v{tD}, 4, v{tD}')
    a(f's_lshl_b32 s{t0}, s{sW}, 7')
    a(f'v_add_u32 v{tD}, s{t0}, v{tD}')
    a(f's_mov_b32 s{t0}, {WS_TAB2 - WS_TAB}')
    a(f'buffer_load_dwordx4 v[{SG}:{SG+3}], v{tD}, s[{rT}:{rT+3}], 0 offen')
    a(f'buffer_load_dwordx4 v[{AX}:{AX+3}], v{tD}, s[{rT}:{rT+3}], s{t0} offen')
    a(f'v_and_b32 v{tC}, 7, v{vLANE}')
    a(f'v_lshlrev_b32 v{tC}, 1, v{tC}')
    a(f's_mul_i32 s{t0}, s{sP}, {WSLOW}')
    a(f'v_add_u32 v{tB}, s{t0}, v{tC}')
    a(f'v_lshlrev_b32 v{tB}, 3, v{tB}')
    a(f'v_mov_b32 v{tF}, 0x10000')
    a(f's_mov_b64 s[{MKC}:{MKC+1}], 0')
    a(f's_mov_b64 s[{MKC2}:{MKC2+1}], 0')
    for sub in range(2):
        a(f'v_add_u32 v{tD}, {sub}, v{tC}')
        a(f'v_cmp_gt_u32 vcc, {WSLOW}, v{tD}')
        a(f'v_add_u32 v{tD}, s{t0}, v{tD}')
        a('s_nop 0')
        a(f'v_cndmask_b32 v{tE if sub == 0 else tG}, v{tF}, v{tD}, vcc')
    a('s_waitcnt vmcnt(0)')
    for it in range(4):
        a(f'v_cmp_gt_u32 s[{MK+4*it}:{MK+4*it+1}], v{AX+it}, v{tE}')
        a(f'v_cmp_gt_u32 s[{MK+4*it+2}:{MK+4*it+3}], v{AX+it}, v{tG}')
    for sl in range(8, 16):
        a(f's_mov_b64 s[{MK+2*sl}:{MK+2*sl+1}], 0')
    rec_loads(tB, 1)
    lds_init()
    a('s_waitcnt vmcnt(0) lgkmcnt(0)')
    a('s_barrier')
    hist()
    a('s_waitcnt lgkmcnt(0)')
    a('s_barrier')
    scan_nodes('S')
    qi_fill('S', False)
    scatter()
    a('s_waitcnt lgkmcnt(0)')
    a('s_barrier')
    a(f's_cmp_eq_u32 s{sL}, 0')
    a('s_cbranch_scc1 K2_SNEXT')
    setup_ptrs()
    a('s_waitcnt lgkmcnt(0)')
    for ins in dma_addr(): a(ins)
    for ins in dma_issue(): a(ins)
    forced_flags()
    pipeline_fill()
    main_loop('S', True)
    a.label('K2_SNEXT')
    a('s_waitcnt vmcnt(0) lgkmcnt(0)')
    a('s_barrier')
    a(f's_add_u32 s{sP}, s{sP}, 1')
    a(f's_cmp_lt_u32 s{sP}, s{sNP}')
    a('s_cbranch_scc1 K2_SPASS')
    epilogue('S', False)
    a.label('K2_END')
    a('s_endpgm')
    return nvgpr, nsgpr

def kd(name, nv, ns):
    acc = (nv + 3) // 4 * 4
    return f'''.amdhsa_kernel {name}
  .amdhsa_next_free_vgpr {nv}
  .amdhsa_next_free_sgpr {ns}
  .amdhsa_accum_offset {acc}
  .amdhsa_group_segment_fixed_size 0
  .amdhsa_kernarg_size 96
  .amdhsa_user_sgpr_count 2
  .amdhsa_user_sgpr_kernarg_segment_ptr 1
  .amdhsa_system_sgpr_workgroup_id_x 1
  .amdhsa_float_denorm_mode_32 3
.end_amdhsa_kernel
'''

DOC = """;
;
"""

def build(opts=None):
    opts = opts or {}
    a = Asm()
    gen_k1(a, opts)
    nv, ns = gen_k2(a, opts)
    out = HEADER
    out += f'; @launch kernel=gs_part_kernel grid=(256,1,1) block=({K1_THREADS},1,1) lds={LDS_K1}\n'
    out += f'; @launch kernel=gs_main_kernel grid=(256,1,1) block=({NW*64},1,1) lds={LDS_MAIN}\n'
    out += DOC
    out += '.amdgcn_target "amdgcn-amd-amdhsa--gfx950"\n.text\n'
    out += a.text()
    out += '.section .rodata,"a"\n.p2align 6\n'
    out += kd('gs_part_kernel', 62 if opts.get('stamp1') else 60, 60)
    out += '.p2align 6\n'
    out += kd('gs_main_kernel', nv, ns)
    return out

if __name__ == '__main__':
    path = sys.argv[1] if len(sys.argv) > 1 else 'gather_scatter__edge_featured_mpnn_gatedgcn__graph.s'
    opts = {}
    for o in sys.argv[2:]:
        k, _, val = o.partition('=')
        opts[k] = int(val) if val else True
    open(path, 'w').write(build(opts))
    print('written', path, 'LDS', LDS_MAIN)
```

```python
import sys, os, struct
sys.path.insert(0, os.path.dirname(__file__))
from asmlib import *

N = 25000; E = 800000
NBK = 256
CH = 3136
RECB = CH * 8
WS_TAB = 0x700000
WS_TAB2 = 0x740000
WS_FRAG = 0x780000
MAGIC_B = 43980466
LOG2E = 0xBFB8AA3B
SBITS = 50
C_SCALE = (127 - SBITS) << 23
EPS_SCALED = 0x4E8637BD
assert abs(struct.unpack('<f', struct.pack('<I', EPS_SCALED))[0] / (1e-6 * 2.0**50) - 1) < 1e-6

NW = 8
NSTREAM = 16
NIT = 16
CAP = 3456
WSLOW = 13
ROWB = 784
MAXN = 98
ENT_QUADS = 960
VROWB = 640
L_CNT = 0
L_ZERO = 512
L_TAB = 1024
L_QI = 1536
L_ENT = L_QI + ENT_QUADS * 4
L_ACC = L_ENT + ENT_QUADS * 16
L_VIRT = L_ACC + MAXN * ROWB
L_WST = L_VIRT + NSTREAM * VROWB
L_WST = (L_WST + 255) // 256 * 256
L_DMA = L_WST + 16384
LDS_MAIN = L_DMA + NW * 4096
assert LDS_MAIN <= 163840, LDS_MAIN
assert L_ACC % 16 == 0 and L_VIRT % 16 == 0

K1_THREADS = 896
K1_HIST = 0
K1_STAGE = 1024
LDS_K1 = K1_STAGE + RECB

HEADER = open(os.path.join(os.path.dirname(__file__), 'header.txt')).read()

def srd(a, sreg, ptr, size):
    a(f's_mov_b32 s{sreg}, s{ptr}')
    a(f's_and_b32 s{sreg+1}, s{ptr+1}, 0xffff')
    a(f's_mov_b32 s{sreg+2}, {size}')
    a(f's_mov_b32 s{sreg+3}, 0x20000')

def srd_off(a, sreg, ptr, off, size):
    a(f's_add_u32 s{sreg}, s{ptr}, {off}')
    a(f's_addc_u32 s{sreg+1}, s{ptr+1}, 0')
    a(f's_and_b32 s{sreg+1}, s{sreg+1}, 0xffff')
    a(f's_mov_b32 s{sreg+2}, {size}')
    a(f's_mov_b32 s{sreg+3}, 0x20000')

def wave_scan(a, op, r):
    for sh in (1, 2, 4, 8):
        a('s_nop 1')
        a(f'{op}_dpp v{r}, v{r}, v{r} row_shr:{sh} row_mask:0xf bank_mask:0xf')
    a('s_nop 1')
    a(f'{op}_dpp v{r}, v{r}, v{r} row_bcast:15 row_mask:0xa bank_mask:0xf')
    a('s_nop 1')
    a(f'{op}_dpp v{r}, v{r}, v{r} row_bcast:31 row_mask:0xc bank_mask:0xf')

def wave_scan2(a, op1, r1, op2, r2):
    steps = [f'row_shr:{sh} row_mask:0xf bank_mask:0xf' for sh in (1, 2, 4, 8)] + \
            ['row_bcast:15 row_mask:0xa bank_mask:0xf', 'row_bcast:31 row_mask:0xc bank_mask:0xf']
    a('s_nop 1')
    for st in steps:
        a(f'{op1}_dpp v{r1}, v{r1}, v{r1} {st}')
        a(f'{op2}_dpp v{r2}, v{r2}, v{r2} {st}')
        a('s_nop 0')

def gen_k1(a, opts):
    ST = opts.get('stamp1', False)
    def stamp(i):
        if not ST: return
        a('s_memtime s[56:57]')
        a('s_waitcnt lgkmcnt(0)')
        a(f'v_writelane_b32 v60, s56, {i}')
    a.raw('.p2align 8')
    a.raw('.globl gs_part_kernel')
    a.raw('.type gs_part_kernel,@function')
    a.label('gs_part_kernel')
    a('s_cmp_ge_u32 s2, 256')
    a('s_cbranch_scc1 K1_END')
    a('s_load_dwordx4 s[4:7], s[0:1], 8')
    a('s_load_dwordx2 s[8:9], s[0:1], 24')
    a('s_load_dwordx2 s[10:11], s[0:1], 88')
    a('s_load_dwordx2 s[44:45], s[0:1], 0')
    if ST: a('v_mov_b32 v60, 0')
    stamp(0)
    if opts.get('dbgtime'):
        a('s_memrealtime s[54:55]')
        a('s_waitcnt lgkmcnt(0)')
        a('s_cmp_ge_u32 s2, 8')
        a('s_cbranch_scc1 K1_NODBG')
        a('v_mov_b32 v20, s54')
        a('s_lshl_b32 s56, s2, 2')
        a('s_add_u32 s56, s56, 0x1200000')
        a('v_mov_b32 v22, s56')
        a('v_cmp_eq_u32 vcc, 0, v0')
        a('s_and_saveexec_b64 s[58:59], vcc')
        a('global_store_dword v22, v20, s[10:11]')
        a('s_mov_b64 exec, s[58:59]')
        a.label('K1_NODBG')
    a('v_lshrrev_b32 v1, 6, v0')
    a('s_mul_i32 s12, s2, %d' % (CH * 4))
    a('v_readfirstlane_b32 s3, v1')
    a('s_lshr_b32 s13, s12, 1')
    a('v_lshlrev_b32 v2, 4, v0')
    a('v_add_u32 v2, s12, v2')
    a('s_cmp_eq_u32 s3, 13')
    a('s_cbranch_scc1 K1_FRAG')
    a('v_lshlrev_b32 v3, 3, v0')
    a('v_add_u32 v3, s13, v3')
    a('s_waitcnt lgkmcnt(0)')
    srd(a, 20, 8, E * 4)
    a('buffer_load_dwordx4 v[4:7], v2, s[20:23], 0 offen')
    srd(a, 24, 6, E * 4)
    srd(a, 28, 4, E * 2)
    if not opts.get('dstfirst', 1):
        a('buffer_load_dwordx4 v[8:11], v2, s[24:27], 0 offen')
        a('buffer_load_dwordx2 v[12:13], v3, s[28:31], 0 offen')
    a('v_lshlrev_b32 v14, 2, v0')
    a('v_mov_b32 v15, 0')
    a('v_cmp_gt_u32 vcc, 256, v0')
    a('s_and_saveexec_b64 s[18:19], vcc')
    a('ds_write_b32 v14, v15 offset:%d' % K1_HIST)
    a('s_mov_b64 exec, s[18:19]')
    a('v_cmp_gt_u32 vcc, %d, v0' % (CH // 4))
    a('s_mov_b32 s14, %d' % (E * 4))
    a('v_cmp_gt_u32 s[16:17], s14, v2')
    a('s_and_b64 s[16:17], s[16:17], vcc')
    a('s_mul_i32 s15, s2, %d' % RECB)
    srd_off(a, 32, 10, 's15', RECB)
    srd_off(a, 36, 10, WS_TAB, 0x80000)
    if opts.get('touch', 0):
        a('s_cmp_lg_u32 s3, 1')
        a('s_cbranch_scc1 K1_NOTOUCH')
        a('v_mov_b32 v41, 0')
        a('buffer_load_dword v42, v41, s[32:35], 0 offen')
        a('buffer_load_dword v43, v41, s[36:39], 0 offen')
        a.label('K1_NOTOUCH')
    a('s_mov_b32 s40, %d' % MAGIC_B)
    a('s_movk_i32 s41, 3125')
    a('v_mov_b32 v15, 1')
    a('s_waitcnt lgkmcnt(0)')
    a('s_barrier')
    if opts.get('dstfirst', 1) == 1:
        a('s_waitcnt vmcnt(0)')
        a('buffer_load_dwordx4 v[8:11], v2, s[24:27], 0 offen')
        a('buffer_load_dwordx2 v[12:13], v3, s[28:31], 0 offen')
    elif opts.get('dstfirst', 1) == 2:
        a('buffer_load_dwordx4 v[8:11], v2, s[24:27], 0 offen')
        a('buffer_load_dwordx2 v[12:13], v3, s[28:31], 0 offen')
        a('s_waitcnt vmcnt(2)')
    if opts.get('xpre', 1) == 1:
        a('s_and_b32 s46, s2, 7')
        a('s_lshr_b32 s47, s2, 3')
        a('s_lshl_b32 s46, s46, 5')
        a('s_add_u32 s46, s46, s47')
        a('s_mul_i32 s46, s46, 3125')
        a('s_add_u32 s46, s46, 31')
        a('s_lshr_b32 s46, s46, 5')
        a('s_lshl_b32 s46, s46, 7')
        a('s_and_b32 s45, s45, 0xffff')
        a('s_mov_b32 s48, s44')
        a('s_mov_b32 s49, s45')
        a('s_mov_b32 s50, %d' % (N * 128))
        a('s_mov_b32 s51, 0x20000')
        a('v_lshlrev_b32 v40, 4, v0')
        a('buffer_load_dwordx4 v[56:59], v40, s[48:51], s46 offen')
    a('s_mov_b64 exec, s[16:17]')
    a('s_cbranch_execz K1_NOEDGE1')
    stamp(1)
    if not opts.get('dstfirst', 1): a('s_waitcnt vmcnt(%d)' % (3 if opts.get('xpre', 1) else 2))
    stamp(2)
    for k in range(4):
        a(f'v_mul_hi_u32 v{16+k}, v{4+k}, s40')
    for k in range(4):
        a(f'v_lshlrev_b32 v{20+k}, 2, v{16+k}')
        a(f'ds_add_rtn_u32 v{24+k}, v{20+k}, v15 offset:{K1_HIST}')
    for k in range(4):
        a(f'v_mul_u32_u24 v{28+k}, s41, v{16+k}')
        a(f'v_add_u32 v{28+k}, 31, v{28+k}')
        a(f'v_lshrrev_b32 v{28+k}, 5, v{28+k}')
        a(f'v_sub_u32 v{28+k}, v{4+k}, v{28+k}')
        a(f'v_lshlrev_b32 v{33+2*k}, 2, v{28+k}')
    a.label('K1_NOEDGE1')
    a('s_mov_b64 exec, -1')
    a('s_waitcnt lgkmcnt(0)')
    stamp(3)
    a('s_barrier')
    stamp(4)
    if opts.get('xpre', 1) == 2:
        a('s_and_b32 s46, s2, 7')
        a('s_lshr_b32 s47, s2, 3')
        a('s_lshl_b32 s46, s46, 5')
        a('s_add_u32 s46, s46, s47')
        a('s_mul_i32 s46, s46, 3125')
        a('s_add_u32 s46, s46, 31')
        a('s_lshr_b32 s46, s46, 5')
        a('s_lshl_b32 s46, s46, 7')
        a('s_and_b32 s45, s45, 0xffff')
        a('s_mov_b32 s48, s44')
        a('s_mov_b32 s49, s45')
        a('s_mov_b32 s50, %d' % (N * 128))
        a('s_mov_b32 s51, 0x20000')
        a('v_lshlrev_b32 v40, 4, v0')
        a('buffer_load_dwordx4 v[56:59], v40, s[48:51], s46 offen')
    a('s_cmp_lg_u32 s3, 0')
    a('s_cbranch_scc1 K1_SCANDONE')
    a('v_lshlrev_b32 v40, 4, v0')
    a('ds_read_b128 v[44:47], v40 offset:%d' % K1_HIST)
    a('v_lshlrev_b32 v41, 12, v0')
    a('s_lshl_b32 s15, s2, 2')
    a('v_add_u32 v41, s15, v41')
    a('s_waitcnt lgkmcnt(0)')
    a('v_add_u32 v48, v44, v45')
    a('v_add_u32 v49, v48, v46')
    a('v_add_u32 v50, v49, v47')
    a('v_mov_b32 v51, v50')
    wave_scan(a, 'v_add_u32', 51)
    a('v_sub_u32 v52, v51, v50')
    a('v_add_u32 v53, v52, v44')
    a('v_add_u32 v54, v52, v48')
    a('v_add_u32 v55, v52, v49')
    a('ds_write_b128 v40, v[52:55] offset:%d' % K1_HIST)
    if not opts.get('w0late', 1): a('s_waitcnt vmcnt(%d)' % (1 if opts.get('xpre', 1) else 0))
    a('s_mul_i32 s15, s2, %d' % CH)
    for k in range(4):
        a(f'v_min_u32 v{48+k}, 0xff, v{44+k}')
        a(f'v_add_u32 v{52+k}, s15, v{52+k}')
        a(f'v_lshl_or_b32 v{48+k}, v{48+k}, 24, v{52+k}')
        a(f'buffer_store_dword v{48+k}, v41, s[36:39], 0 offen offset:{k*1024}' + (' sc1' if opts.get('tabst', 0) else ''))
    a.label('K1_SCANDONE')
    a('s_waitcnt lgkmcnt(0)')
    a('s_barrier')
    stamp(5)
    a('s_mov_b64 exec, s[16:17]')
    a('s_cbranch_execz K1_NOEDGE2')
    for k in range(4):
        a(f'ds_read_b32 v{28+k}, v{20+k} offset:{K1_HIST}')
    a('s_cmp_eq_u32 s3, 0')
    a('s_cbranch_scc1 K1_W0')
    a('s_waitcnt vmcnt(%d)' % (1 if opts.get('xpre', 1) else 0))
    a('s_branch K1_HAVE')
    a.label('K1_W0')
    a('s_waitcnt vmcnt(%d)' % (5 if opts.get('xpre', 1) else 4))
    a.label('K1_HAVE')
    a('s_mov_b32 s42, 0xffff0000')
    a('v_lshl_or_b32 v32, v12, 16, v8')
    a('v_and_or_b32 v34, v12, s42, v9')
    a('v_lshl_or_b32 v36, v13, 16, v10')
    a('v_and_or_b32 v38, v13, s42, v11')
    for k in range(4):
        a(f's_waitcnt lgkmcnt({3 if k == 0 else 3})')
        a(f'v_add_lshl_u32 v{28+k}, v{28+k}, v{24+k}, 3')
        a(f'ds_write_b64 v{28+k}, v[{32+2*k}:{33+2*k}] offset:{K1_STAGE}')
    a.label('K1_NOEDGE2')
    a('s_mov_b64 exec, -1')
    a('v_lshlrev_b32 v2, 4, v0')
    a('v_add_u32 v3, %d, v2' % (RECB // 2))
    a('v_cmp_gt_u32 vcc, %d, v0' % (CH // 4))
    a('s_waitcnt lgkmcnt(0)')
    stamp(6)
    a('s_barrier')
    stamp(7)
    a('s_and_saveexec_b64 s[18:19], vcc')
    a('s_cbranch_execz K1_END')
    a('ds_read_b128 v[4:7], v2 offset:%d' % K1_STAGE)
    a('ds_read_b128 v[8:11], v2 offset:%d' % (K1_STAGE + RECB // 2))
    a('s_waitcnt lgkmcnt(1)')
    sfx = {0: '', 1: ' sc1', 2: ' nt', 3: ' sc0 sc1', 4: ' sc1 nt'}[opts.get('k1st', 1)]
    a('buffer_store_dwordx4 v[4:7], v2, s[32:35], 0 offen' + sfx)
    a('s_waitcnt lgkmcnt(0)')
    a('buffer_store_dwordx4 v[8:11], v3, s[32:35], 0 offen' + sfx)
    if opts.get('endwait', 1): a('s_waitcnt vmcnt(0)')
    if ST:
        stamp(8)
        a('s_waitcnt vmcnt(0)')
        stamp(9)
        a('s_mul_i32 s12, s2, 16')
        a('s_add_u32 s12, s12, s3')
        a('s_lshl_b32 s12, s12, 8')
        a('s_add_u32 s12, s12, 0x1100000')
        a('s_add_u32 s32, s10, s12')
        a('s_addc_u32 s33, s11, 0')
        a('s_and_b32 s33, s33, 0xffff')
        a('s_mov_b32 s34, 256')
        a('s_mov_b64 exec, -1')
        a('v_and_b32 v4, 63, v0')
        a('v_lshlrev_b32 v4, 2, v4')
        a('buffer_store_dword v60, v4, s[32:35], 0 offen')
    if opts.get('dbgtime'):
        a('s_waitcnt vmcnt(0)')
        a('s_memrealtime s[54:55]')
        a('s_waitcnt lgkmcnt(0)')
        a('s_cmp_ge_u32 s2, 8')
        a('s_cbranch_scc1 K1_END')
        a('s_cmp_lg_u32 s3, 0')
        a('s_cbranch_scc1 K1_END')
        a('v_mov_b32 v20, s54')
        a('s_lshl_b32 s56, s2, 2')
        a('s_add_u32 s56, s56, 0x1200100')
        a('v_mov_b32 v22, s56')
        a('s_mov_b64 exec, 1')
        a('global_store_dword v22, v20, s[10:11]')
    a('s_endpgm')
    a.label('K1_FRAG')
    if opts.get('codepre', 0):
        a('s_cmp_lt_u32 s2, 32')
        a('s_cbranch_scc1 K1_FRAG2')
        a('s_cmp_ge_u32 s2, 64')
        a('s_cbranch_scc1 K1_END')
        a('s_getpc_b64 s[12:13]')
        a.label('K1_PCREF')
        a('s_add_u32 s12, s12, gs_main_kernel-K1_PCREF')
        a('s_addc_u32 s13, s13, 0')
        a('v_and_b32 v1, 63, v0')
        a('v_lshlrev_b32 v2, 4, v1')
        for i in range(opts.get('codekb', 20)):
            a(f'global_load_dwordx4 v[4:7], v2, s[12:13]')
            a('v_add_u32 v2, 1024, v2')
        a('s_endpgm')
        a.label('K1_FRAG2')
    a('s_cmp_ge_u32 s2, 32')
    a('s_cbranch_scc1 K1_END')
    if opts.get('fragbar', 1):
        a('s_barrier')
    a('s_load_dwordx4 s[12:15], s[0:1], 32')
    a('s_load_dwordx4 s[16:19], s[0:1], 56')
    a('s_lshr_b32 s20, s2, 3')
    a('s_waitcnt lgkmcnt(0)')
    a('s_mov_b32 s22, s14')
    a('s_mov_b32 s23, s15')
    a('s_cmp_eq_u32 s20, 1')
    a('s_cselect_b32 s22, s18, s22')
    a('s_cselect_b32 s23, s19, s23')
    a('s_cmp_eq_u32 s20, 2')
    a('s_cselect_b32 s22, s12, s22')
    a('s_cselect_b32 s23, s13, s23')
    a('s_cmp_eq_u32 s20, 3')
    a('s_cselect_b32 s22, s16, s22')
    a('s_cselect_b32 s23, s17, s23')
    srd(a, 24, 22, 64 * 64 * 2)
    srd_off(a, 28, 10, WS_FRAG, 32 * 1024)
    a('s_and_b32 s32, s2, 3')
    a('s_lshr_b32 s33, s2, 2')
    a('s_and_b32 s33, s33, 1')
    a('s_lshl_b32 s32, s32, 11')
    a('s_lshl_b32 s33, s33, 6')
    a('s_add_u32 s32, s32, s33')
    a('v_and_b32 v1, 63, v0')
    a('v_and_b32 v2, 31, v1')
    a('v_lshlrev_b32 v2, 1, v2')
    a('v_lshrrev_b32 v3, 5, v1')
    a('v_lshlrev_b32 v3, 10, v3')
    a('v_add3_u32 v2, v2, v3, s32')
    for i in range(8):
        a(f'buffer_load_ushort v{8+i}, v2, s[24:27], 0 offen offset:{i*128}')
    a('s_mov_b32 s34, 1.0')
    a('s_and_b32 s36, s20, 1')
    a('s_cmp_eq_u32 s36, 0')
    a('s_cselect_b32 s34, 0x%x, s34' % LOG2E)
    a('s_waitcnt vmcnt(0)')
    for i in range(8):
        a(f'v_lshlrev_b32 v{8+i}, 16, v{8+i}')
        a(f'v_mul_f32 v{8+i}, s34, v{8+i}')
    for i in range(4):
        a(f'v_cvt_pk_bf16_f32 v{16+i}, v{8+2*i}, v{9+2*i}')
    a('v_lshlrev_b32 v4, 4, v1')
    a('s_lshl_b32 s35, s2, 10')
    a('v_add_u32 v4, s35, v4')
    a('buffer_store_dwordx4 v[16:19], v4, s[28:31], 0 offen')
    if opts.get('endwait', 1): a('s_waitcnt vmcnt(0)')
    a.label('K1_END')
    a('s_endpgm')

def gen_k2(a, opts):
    STAMP = opts.get('stamp', False)
    vLANE = 1; BC = 2
    WB = 4; WV = 36; AX = 68
    GA = 84; HA = 100; GB = 116; HB = 132
    PP = 148; TT_ = 156; ZZ = 164
    DEN = 172; NUM = 176
    AE = [180, 184]; BE = 188; R0 = 192
    QA = [196, 200]
    EN = 204; RA = 208; CO = 212
    pEN = 216; pEE = 217; pQI = 218; pQF = 219
    C4 = 220; SEL = [221, 222]; EE = 223; QF = 224
    F0 = 225; F1 = 226; F2 = 252; F3 = 227
    tA = 227; tB = 228; tC = 229; tD = 230; tE = 231; tF = 232; tG = 233; tH = 234; tI = 235
    TQ = 236; TR = 240
    sidA = 244; jA = 245; sidR = 246; iR4 = 247
    vST = 253; GF = 249; GD = 250
    PB = 228; TB = 236; ZB = 244
    RC = 252; RKC = 225; RKC2 = 226; tJ = 251
    nvgpr = 256
    REC = PP; RK = GB; SG = HB
    G_ = [GA, GB]; H_ = [HA, HB]
    nOFF0 = AE[0]+0 if False else QA[0]; nOFF1 = QA[0]+1; nEND0 = QA[0]+2; nEND1 = QA[0]+3; nROW0 = QA[1]
    S = Regs('s', 3, 102)
    sX = S.alloc('x', 2, 2); sWC = S.alloc('wc', 2, 2); sOUT = S.alloc('out', 2, 2); sWS = S.alloc('ws', 2, 2)
    rX = S.alloc('rX', 4, 4); rT = S.alloc('rT', 4, 4); rR = S.alloc('rR', 4, 4); rF = S.alloc('rF', 4, 4)
    sW = S.alloc('w'); sNS = S.alloc('ns'); sNN = S.alloc('nn')
    sP = S.alloc('pass'); sNP = S.alloc('npass')
    sL = S.alloc('L'); sCNT = S.alloc('cnt'); sLA = S.alloc('La'); sLB = S.alloc('Lb'); sSO = S.alloc('streamoff')
    sC = S.alloc('C', 2, 2)
    sF = [S.alloc('F0', 2, 2), S.alloc('F1', 2, 2)]
    sANY = [S.alloc('any0'), S.alloc('any1')]
    s128 = S.alloc('c128'); sLO = S.alloc('lo16'); sHI = S.alloc('hi16')
    t0 = S.alloc('t0'); t1 = S.alloc('t1'); t2 = S.alloc('t2', 1, 2); t3 = S.alloc('t3')
    sSV = S.alloc('sv', 2, 2); sSV2 = S.alloc('sv2', 2, 2)
    sDB = S.alloc('dmabase'); sSWAP = S.alloc('swap')
    sDBG = S.alloc('dbg', 2, 2) if opts.get('dbgtime') else None
    sT0 = S.alloc('dbgt0', 2, 2) if opts.get('dbgtime') else None
    sT1 = S.alloc('dbgt1') if opts.get('dbgtime') else None
    sT2 = S.alloc('dbgt2') if opts.get('dbgtime') else None
    MK = S.alloc('MK', 32, 2)
    MKC = S.alloc('MKC', 2, 2); MKC2 = S.alloc('MKC2', 2, 2)
    rO = rT
    nsgpr = S.hi
    def stamp(i):
        if not STAMP: return
        a(f's_memtime s[{t2}:{t3}]')
        a('s_waitcnt lgkmcnt(0)')
        a(f'v_writelane_b32 v{vST}, s{t2}, {i}')
    XB = 4096

    a.raw('.p2align 8')
    a.raw('.globl gs_main_kernel')
    a.raw('.type gs_main_kernel,@function')
    a.label('gs_main_kernel')
    a('s_cmp_ge_u32 s2, 256')
    a('s_cbranch_scc1 K2_END')
    a(f's_load_dwordx2 s[{sWS}:{sWS+1}], s[0:1], 88')
    a(f's_load_dwordx2 s[{sX}:{sX+1}], s[0:1], 0')
    a(f's_load_dwordx2 s[{sWC}:{sWC+1}], s[0:1], 48')
    a(f's_load_dwordx2 s[{sOUT}:{sOUT+1}], s[0:1], 72')
    a('s_and_b32 s3, s2, 7')
    a('s_lshr_b32 s2, s2, 3')
    a('s_lshl_b32 s3, s3, 5')
    a('s_add_u32 s2, s2, s3')
    if opts.get('dbgtime'):
        a(f's_load_dwordx2 s[{sDBG}:{sDBG+1}], s[0:1], 80')
        a(f's_memrealtime s[{sT0}:{sT0+1}]')
        a('s_waitcnt lgkmcnt(0)')
    if STAMP:
        a(f'v_mov_b32 v{vST}, 0')
        a(f's_memtime s[{MK}:{MK+1}]')
        a(f's_memrealtime s[{MK+2}:{MK+3}]')
    a(f'v_lshrrev_b32 v{tA}, 6, v0')
    a(f'v_and_b32 v{vLANE}, 63, v0')
    a(f'v_readfirstlane_b32 s{sW}, v{tA}')
    a(f'v_lshrrev_b32 v{sidA}, 5, v{vLANE}')
    if opts.get('proprio'):
        a('s_nop 2')
        a(f's_cmp_ge_u32 s{sW}, 4')
        a('s_cbranch_scc0 K2_PP0')
        a('s_setprio 1')
        a.label('K2_PP0')
    a(f's_lshl_b32 s{t0}, s{sW}, 1')
    a(f'v_add_u32 v{sidA}, s{t0}, v{sidA}')
    a(f'v_lshrrev_b32 v{tD}, 3, v{vLANE}')
    a(f'v_lshlrev_b32 v{tD}, 4, v{tD}')
    a(f's_lshl_b32 s{t0}, s{sW}, 7')
    a(f'v_add_u32 v{tD}, s{t0}, v{tD}')
    a(f'v_lshlrev_b32 v{tA}, 4, v{vLANE}')
    a(f's_mul_i32 s{t0}, s2, 3125')
    a(f's_add_u32 s{sNS}, s{t0}, 31')
    a(f's_lshr_b32 s{sNS}, s{sNS}, 5')
    a(f's_add_u32 s{t0}, s{t0}, {3125+31}')
    a(f's_lshr_b32 s{t0}, s{t0}, 5')
    a(f's_sub_u32 s{sNN}, s{t0}, s{sNS}')
    a(f's_lshl_b32 s{sDB}, s{sW}, 12')
    a(f's_add_u32 s{sDB}, s{sDB}, {L_DMA}')
    a(f'v_bfe_u32 v{tE}, v{vLANE}, 4, 1')
    a(f'v_and_b32 v{tF}, 7, v{vLANE}')
    a(f'v_xor_b32 v{tE}, v{tE}, v{tF}')
    a(f'v_lshlrev_b32 v{tE}, 4, v{tE}')
    for i in range(4):
        if i: a(f'v_xor_b32 v{tF}, {32*i}, v{tE}')
        a(f'v_add_u32 v{CO+i}, {XB - 1024*i}, v{tF if i else tE}')
    a(f'v_bfe_u32 v{jA}, v{vLANE}, 3, 2')
    a(f'v_lshrrev_b32 v{tF}, 5, v{vLANE}')
    a(f'v_lshlrev_b32 v{tE}, 3, v{jA}')
    a(f'v_lshl_add_u32 v{tE}, v{tF}, 2, v{tE}')
    a(f's_lshr_b32 s{t0}, s{sW}, 1')
    a(f's_lshl_b32 s{t1}, s{t0}, 5')
    a(f's_add_u32 s{t1}, s{t1}, s{sNS}')
    a(f's_and_b32 s{t2}, s{sW}, 1')
    a(f's_lshl_b32 s{t2}, s{t2}, 1')
    a(f's_add_u32 s{t1}, s{t1}, s{t2}')
    a(f'v_add_u32 v{tE}, s{t1}, v{tE}')
    a(f'v_lshlrev_b32 v{tE}, 7, v{tE}')
    a(f's_cmp_eq_u32 s{t2}, 0')
    a(f's_cbranch_scc0 K2_XI2')
    a(f'v_add_u32 v{tH}, v{tE}, v{CO}')
    a(f'v_add_u32 v{tI}, v{tE}, v{CO+1}')
    a('s_branch K2_XI')
    a.label('K2_XI2')
    a(f'v_add_u32 v{tH}, v{tE}, v{CO+2}')
    a(f'v_add_u32 v{tI}, v{tE}, v{CO+3}')
    a(f'v_add_u32 v{tH}, 2048, v{tH}')
    a(f'v_add_u32 v{tI}, 2048, v{tI}')
    a.label('K2_XI')
    a(f'v_add_u32 v{tI}, 128, v{tI}')
    a(f'v_and_b32 v{C4}, 31, v{vLANE}')
    a(f's_lshl_b32 s{t1}, s2, 10')
    a(f's_add_u32 s{t1}, s{t1}, {WS_TAB}')
    a('s_waitcnt lgkmcnt(0)')
    if STAMP:
        a(f'v_writelane_b32 v{vST}, s{MK}, 0')
        a(f'v_writelane_b32 v{vST}, s{MK+2}, 11')
    srd_off(a, rT, sWS, f's{t1}', 1024)
    a(f'buffer_load_dwordx4 v[{SG}:{SG+3}], v{tD}, s[{rT}:{rT+3}], 0 offen')
    a(f's_sub_u32 s{rX}, s{sX}, {XB}')
    a(f's_subb_u32 s{rX+1}, s{sX+1}, 0')
    a(f's_and_b32 s{rX+1}, s{rX+1}, 0xffff')
    a(f's_mov_b32 s{rX+2}, {N*128 + XB}')
    a(f's_mov_b32 s{rX+3}, 0x20000')
    srd_off(a, rF, sWS, WS_FRAG, 32 * 1024)
    def staging():
        a(f's_lshr_b32 s{t0}, s{sW}, 1')
        a(f's_lshl_b32 s{t0}, s{t0}, 12')
        a(f's_and_b32 s{t2}, s{sW}, 1')
        a(f's_lshl_b32 s{t2}, s{t2}, 11')
        a(f's_add_u32 s{t0}, s{t0}, s{t2}')
        a(f's_add_u32 s{t0}, s{t0}, {L_DMA}')
        a(f's_mov_b32 m0, s{t0}')
        a(f'v_lshlrev_b32 v{tA}, 4, v{vLANE}')
        if not opts.get('noxown'):
            a(f'buffer_load_dwordx4 v{tH}, s[{rX}:{rX+3}], 0 offen lds')
            a(f'buffer_load_dwordx4 v{tI}, s[{rX}:{rX+3}], 0 offen offset:1024 lds')
        a(f's_lshl_b32 s{t0}, s{sW}, 11')
        a(f's_add_u32 s{t1}, s{t0}, {L_DMA + 4*4096}')
        a(f's_mov_b32 m0, s{t1}')
        a(f's_add_u32 s{t2}, s{t0}, {16*1024}')
        a(f'buffer_load_dwordx4 v{tA}, s[{rF}:{rF+3}], s{t2} offen lds')
        a(f'buffer_load_dwordx4 v{tA}, s[{rF}:{rF+3}], s{t2} offen offset:1024 lds')
        a(f's_add_u32 s{t1}, s{t0}, {L_WST}')
        a(f's_mov_b32 m0, s{t1}')
        a('s_nop 0')
        a(f'buffer_load_dwordx4 v{tA}, s[{rF}:{rF+3}], s{t0} offen lds')
        a(f'buffer_load_dwordx4 v{tA}, s[{rF}:{rF+3}], s{t0} offen offset:1024 lds')
        srd(a, rR, sWC, 128)
        a(f'v_lshlrev_b32 v{tE}, 1, v{C4}')
        if not opts.get('nowc'):
            a(f'buffer_load_ushort v{BC}, v{tE}, s[{rR}:{rR+3}], 0 offen')
            a(f'buffer_load_ushort v{BC+1}, v{tE}, s[{rR}:{rR+3}], 0 offen offset:64')
    staging()
    MKT = (MK + 3) // 4 * 4
    if opts.get('touch', 0):
        srd(a, MKT, sWS, NBK * RECB)
        a(f'v_and_b32 v{tE}, 3, v{vLANE}')
        a(f'v_lshlrev_b32 v{tE}, 21, v{tE}')
        a(f'buffer_load_dword v{F0}, v{tE}, s[{MKT}:{MKT+3}], 0 offen')
        srd(a, MKT + 4, sOUT, N * 128)
        a(f'v_and_b32 v{tE}, 1, v{vLANE}')
        a(f'v_lshlrev_b32 v{tE}, 21, v{tE}')
        a(f'buffer_load_dword v{F1}, v{tE}, s[{MKT+4}:{MKT+7}], 0 offen')
    def lds_init():
        a(f'v_lshlrev_b32 v{tE}, 4, v0')
        a(f'v_mov_b32 v{TR}, 0xffff')
        a(f'v_mov_b32 v{TR+1}, 0xffff')
        a(f'v_mov_b64 v[{TR+2}:{TR+3}], v[{TR}:{TR+1}]')
        a(f'ds_write_b128 v{tE}, v[{TR}:{TR+3}] offset:{L_ENT}')
        a(f's_cmp_ge_u32 s{sW}, {(ENT_QUADS - 512) // 64}')
        a(f's_cbranch_scc1 K2_I1{tag_i[0]}')
        a(f'ds_write_b128 v{tE}, v[{TR}:{TR+3}] offset:{L_ENT + 512*16}')
        a.label(f'K2_I1{tag_i[0]}')
        assert (ENT_QUADS - 512) % 64 == 0
        a(f'v_mov_b32 v{TR}, {L_VIRT}')
        a(f'v_mov_b32 v{TR+1}, {L_VIRT}')
        a(f'v_mov_b64 v[{TR+2}:{TR+3}], v[{TR}:{TR+1}]')
        a(f'v_cmp_gt_u32 vcc, {ENT_QUADS // 4}, v0')
        a(f's_and_saveexec_b64 s[{sSV}:{sSV+1}], vcc')
        a(f'ds_write_b128 v{tE}, v[{TR}:{TR+3}] offset:{L_QI}')
        a(f's_mov_b64 exec, s[{sSV}:{sSV+1}]')
        a(f's_cmp_lg_u32 s{sW}, 0')
        a(f's_cbranch_scc1 K2_I2{tag_i[0]}')
        a(f'v_mov_b64 v[{TR}:{TR+1}], 0')
        a(f'v_mov_b64 v[{TR+2}:{TR+3}], 0')
        a(f'ds_write_b128 v{tE}, v[{TR}:{TR+3}] offset:{L_CNT}')
        a(f'v_add_u32 v{tE}, {L_VIRT + 512}, v{tE}')
        a('s_mov_b64 exec, 0xff')
        a(f'ds_write_b128 v{tE}, v[{TR}:{TR+3}]')
        a('s_mov_b64 exec, -1')
        a.label(f'K2_I2{tag_i[0]}')
        tag_i[0] += 1
    tag_i = [0]
    lds_init()
    a(f'v_and_b32 v{tE}, 3, v{vLANE}')
    a(f'v_lshlrev_b32 v{iR4}, 2, v{tE}')
    a(f'v_lshl_add_u32 v{RA}, v{tE}, 3, v{jA}')
    a(f'v_lshrrev_b32 v{tF}, 1, v{jA}')
    a(f'v_lshl_add_u32 v{tE}, v{tE}, 1, v{tF}')
    a(f'v_bfe_u32 v{tF}, v{vLANE}, 2, 1')
    a(f's_lshl_b32 s{t0}, s{sW}, 1')
    a(f'v_add_u32 v{sidR}, s{t0}, v{tF}')
    a(f'v_lshl_add_u32 v{RA}, v{tF}, 2, v{RA}')
    a(f'v_lshrrev_b32 v{tG}, 5, v{vLANE}')
    a(f'v_cmp_eq_u32 vcc, v{tF}, v{tG}')
    a(f'v_xor_b32 v{tE}, v{tE}, v{tG}')
    a(f'v_lshlrev_b32 v{tE}, 4, v{tE}')
    a(f'v_lshl_add_u32 v{RA}, v{RA}, 7, v{tE}')
    a(f'v_mov_b32 v{tF}, 0x3f80')
    a(f'v_cndmask_b32 v{tF}, 0, v{tF}, vcc')
    a(f'v_lshlrev_b32 v{tG}, v{jA}, 1') if False else None
    a(f'v_mov_b32 v{tG}, 1')
    a(f'v_lshlrev_b32 v{tG}, v{jA}, v{tG}')
    for q in range(4):
        a(f'v_bfe_u32 v{tE}, v{tG}, {q}, 1')
        a(f'v_mul_u32_u24 v{AE[0]+q}, v{tE}, v{tF}')
        a(f'v_lshlrev_b32 v{AE[1]+q}, 16, v{AE[0]+q}')
    a(f'v_cmp_gt_u32 vcc, 32, v{vLANE}')
    a(f'v_mov_b32 v{tE}, 0x0a0c0100')
    a(f'v_mov_b32 v{tF}, 0x07060100')
    a(f'v_cndmask_b32 v{SEL[0]}, v{tE}, v{tF}, vcc')
    a(f'v_mov_b32 v{tE}, 0x03020a0c')
    a(f'v_mov_b32 v{tF}, 0x03020706')
    a(f'v_cndmask_b32 v{SEL[1]}, v{tE}, v{tF}, vcc')
    a(f's_mov_b32 s{sC}, 0x{C_SCALE:x}')
    a(f's_mov_b32 s{sC+1}, 0x{C_SCALE:x}')
    a(f's_mov_b32 s{s128}, 128')
    a(f's_mov_b32 s{sLO}, 0xffff')
    a(f's_mov_b32 s{sHI}, 0xffff0000')
    a(f'v_and_b32 v{tB}, 7, v{vLANE}')
    a(f'v_lshlrev_b32 v{tB}, 4, v{tB}')
    a(f'v_lshlrev_b32 v{C4}, 2, v{C4}')
    a('s_waitcnt vmcnt(%d) lgkmcnt(0)' % (2 if opts.get('touch', 0) else 0))
    stamp(1)
    a('s_barrier')
    srd(a, rR, sWS, NBK * RECB)
    def slot_ent(sl): return REC + 2*sl
    def rec_loads(vk16, nwin):
        for it in range(4):
            a(f'v_mad_u32_u24 v{RK+it}, v{SG+it}, 8, v{vk16}')
        for w_ in range(nwin):
            for it in range(4):
                sl = 8*w_ + 2*it
                a(f's_mov_b64 exec, s[{MK+2*sl}:{MK+2*sl+1}]')
                sk = a.newlabel('skl') if w_ else None
                if sk: a(f's_cbranch_execz {sk}')
                a(f'buffer_load_dwordx4 v[{REC+2*sl}:{REC+2*sl+3}], v{RK+it}, s[{rR}:{rR+3}], 0 offen' + (' offset:128' if w_ else ''))
                if sk: a.label(sk)
        a('s_mov_b64 exec, -1')
    a(f'v_lshrrev_b32 v{tC}, 3, v{tB}')
    for w_ in range(2):
        for sub in range(2):
            if w_ or sub: a(f'v_add_u32 v{tD}, {16*w_ + sub}, v{tC}')
            for it in range(4):
                sl = 8*w_ + 2*it + sub
                a(f'v_cmp_gt_u32_sdwa s[{MK+2*sl}:{MK+2*sl+1}], v{SG+it}, v{tD if (w_ or sub) else tC} src0_sel:BYTE_3 src1_sel:DWORD')
    stamp(25)
    rec_loads(tB, 2)
    stamp(26)
    a(f'v_max3_u32 v{tD}, v{SG}, v{SG+1}, v{SG+2}')
    a(f'v_max_u32 v{tD}, v{tD}, v{SG+3}')
    a(f'v_lshrrev_b32 v{tD}, 24, v{tD}')
    a(f'v_cmp_lt_u32 s[{sSV2}:{sSV2+1}], 32, v{tD}')
    a(f's_mov_b64 s[{MKC}:{MKC+1}], 0')
    a(f's_mov_b64 s[{MKC2}:{MKC2+1}], 0')
    a(f's_cmp_lg_u64 s[{sSV2}:{sSV2+1}], 0')
    a('s_cbranch_scc1 K2_CSEL')
    a.label('K2_CBACK')

    def gemm_issue():
        a(f's_lshr_b32 s{t0}, s{sW}, 1')
        a(f's_lshl_b32 s{t1}, s{t0}, 12')
        a(f's_add_u32 s{t1}, s{t1}, {L_DMA}')
        a(f'v_add_u32 v{tA}, s{t1}, v{RA}')
        a(f'v_xor_b32 v{tB}, 32, v{tA}')
        a(f'ds_read_b128 v[{AX}:{AX+3}], v{tA}')
        a(f'ds_read_b128 v[{AX+4}:{AX+7}], v{tB}')
        a(f'v_xor_b32 v{tB}, 64, v{tA}')
        a(f'v_xor_b32 v{tC}, 96, v{tA}')
        a(f'ds_read_b128 v[{AX+8}:{AX+11}], v{tB}')
        a(f'ds_read_b128 v[{AX+12}:{AX+15}], v{tC}')
        a(f's_and_b32 s{t2}, s{sW}, 1')
        a(f's_lshl_b32 s{t3}, s{t2}, 13')
        a(f's_add_u32 s{t3}, s{t3}, {L_DMA + 4*4096}')
        a(f'v_lshlrev_b32 v{GF}, 4, v{vLANE}')
        a(f'v_add_u32 v{GF}, s{t3}, v{GF}')
        for f in range(4):
            a(f'ds_read_b128 v[{SG+4*f}:{SG+4*f+3}], v{GF} offset:{f*1024}')
        for f in range(4):
            a(f'ds_read_b128 v[{RK+4*f}:{RK+4*f+3}], v{GF} offset:{(4+f)*1024}')
        a(f's_mul_i32 s{t1}, s{t0}, {32*ROWB}')
        a(f's_lshl_b32 s{t3}, s{t2}, 7')
        a(f's_add_u32 s{t1}, s{t1}, s{t3}')
        a(f's_add_u32 s{t1}, s{t1}, {L_ACC + 512}')
        a(f'v_lshrrev_b32 v{GD}, 5, v{vLANE}')
        a(f'v_mul_u32_u24 v{GD}, {4*ROWB}, v{GD}')
        a(f'v_add3_u32 v{GD}, v{GD}, v{C4}, s{t1}')
    def gemm_mid():
        a('s_waitcnt lgkmcnt(0)')
        for kp in range(4):
            c = '0' if kp == 0 else f'v[{GA}:{GA+15}]'
            a(f'v_mfma_f32_32x32x16_bf16 v[{GA}:{GA+15}], v[{AX+4*kp}:{AX+4*kp+3}], v[{SG+4*kp}:{SG+4*kp+3}], {c}')
            c = '0' if kp == 0 else f'v[{HA}:{HA+15}]'
            a(f'v_mfma_f32_32x32x16_bf16 v[{HA}:{HA+15}], v[{AX+4*kp}:{AX+4*kp+3}], v[{RK+4*kp}:{RK+4*kp+3}], {c}')
    def gemm_mid2():
        a('s_nop 7')
        a('s_nop 3')
    def w_frags():
        a(f'v_lshlrev_b32 v{GF}, 4, v{vLANE}')
        a(f'v_add_u32 v{GF}, {L_WST}, v{GF}')
        for f in range(16):
            dst = (WB + 4*f) if f < 8 else (WV + 4*(f-8))
            if f == 12: a('s_waitcnt lgkmcnt(8)')
            a(f'ds_read_b128 v[{dst}:{dst+3}], v{GF} offset:{f*1024}')
    def gemm_store(tag):
        for i in range(16):
            a(f'v_cvt_pk_bf16_f32 v{GA+i}, v{GA+i}, v{HA+i}')
        a(f's_lshr_b32 s{t0}, s{sW}, 1')
        a(f's_cmp_eq_u32 s{t0}, 3')
        a(f's_cbranch_scc1 K2_RT3{tag}')
        for vv in range(16):
            if vv == 12: a('s_waitcnt lgkmcnt(8)')
            a(f'ds_write_b32 v{GD}, v{GA+vv} offset:{(8*(vv//4) + vv%4) * ROWB}')
        a(f's_branch K2_RTD{tag}')
        a.label(f'K2_RT3{tag}')
        a('s_mov_b32 exec_hi, 0')
        for vv in range(2):
            a(f'ds_write_b32 v{GD}, v{GA+vv} offset:{vv * ROWB}')
        a('s_mov_b64 exec, -1')
        a.label(f'K2_RTD{tag}')
    def consts():
        a(f'v_add_u32 v{RA}, s{sDB}, v{RA}')
        for kp in range(1, 4):
            a(f'v_xor_b32 v{RA+kp}, {32*kp}, v{RA}')
        a(f's_mov_b32 s{t3}, 0x{LOG2E:x}')
        for cc in range(2):
            a(f'v_lshlrev_b32 v{BC+cc}, 16, v{BC+cc}')
            a(f'v_mul_f32 v{BC+cc}, s{t3}, v{BC+cc}')
        a(f'v_cvt_pk_bf16_f32 v{BC}, 0, v{BC}')
        a(f'v_cvt_pk_bf16_f32 v{BC+1}, v{BC+1}, 0')
        a(f'v_cmp_gt_u32 vcc, 32, v{vLANE}')
        a(f'v_mov_b32 v{tG}, 0xb2000000')
        a(f'v_mov_b32 v{tH}, 0xb200')
        a(f'v_cndmask_b32 v{BC}, v{tG}, v{BC}, vcc')
        a(f'v_cndmask_b32 v{BC+1}, v{tH}, v{BC+1}, vcc')

    def hist():
        a(f'v_mov_b32 v{tE}, 1')
        for sl in range(8):
            a(f's_mov_b64 exec, s[{MK+2*sl}:{MK+2*sl+1}]')
            a(f'ds_add_rtn_u32 v{RK+sl}, v{REC+2*sl+1}, v{tE} offset:{L_CNT}')
        a('s_waitcnt lgkmcnt(6)')
        for sl in range(8, 16, 2):
            sk = a.newlabel('skh')
            a(f's_mov_b64 exec, s[{MK+2*sl}:{MK+2*sl+1}]')
            a(f's_cbranch_execz {sk}')
            a(f'ds_add_rtn_u32 v{RK+sl}, v{REC+2*sl+1}, v{tE} offset:{L_CNT}')
            a(f's_mov_b64 exec, s[{MK+2*sl+2}:{MK+2*sl+3}]')
            a(f'ds_add_rtn_u32 v{RK+sl+1}, v{REC+2*sl+3}, v{tE} offset:{L_CNT}')
            a.label(sk)
        sk = a.newlabel('skhc')
        a(f's_mov_b64 exec, s[{MKC}:{MKC+1}]')
        a(f's_cbranch_execz {sk}')
        a('s_waitcnt lgkmcnt(6)')
        a(f'ds_add_rtn_u32 v{RKC}, v{RC+1}, v{tE} offset:{L_CNT}')
        a(f's_mov_b64 exec, s[{MKC2}:{MKC2+1}]')
        a(f'ds_add_rtn_u32 v{RKC2}, v{RC+3}, v{tE} offset:{L_CNT}')
        a.label(sk)
        a('s_mov_b64 exec, -1')

    def scan_nodes(tag, mid=None):
        a(f'v_lshlrev_b32 v{tA}, 3, v{vLANE}')
        a(f'ds_read_b64 v[{TQ}:{TQ+1}], v{tA} offset:{L_CNT}')
        a(f'v_mul_u32_u24 v{nROW0}, {2*ROWB}, v{vLANE}')
        a(f'v_add_u32 v{nROW0}, {L_ACC}, v{nROW0}')
        if mid: mid()
        else: a('s_waitcnt lgkmcnt(0)')
        a(f'v_add_u32 v{tE}, 3, v{TQ}')
        a(f'v_add_u32 v{tF}, 3, v{TQ+1}')
        a(f'v_and_b32 v{tE}, -4, v{tE}')
        a(f'v_and_b32 v{tF}, -4, v{tF}')
        a(f'v_add_u32 v{tC}, v{tE}, v{tF}')
        a(f'v_max_u32 v{tB}, v{tE}, v{tF}')
        a(f'v_mov_b32 v{tD}, v{tC}')
        wave_scan(a, 'v_add_u32', tD)
        a(f'v_sub_u32 v{nOFF0}, v{tD}, v{tC}')
        a(f'v_readlane_b32 s{t1}, v{tD}, 63')
        a(f'v_add_u32 v{nOFF1}, v{nOFF0}, v{tE}')
        a(f'v_lshlrev_b32 v{TQ+2}, 2, v{nOFF0}')
        a(f'v_lshlrev_b32 v{TQ+3}, 2, v{nOFF1}')
        a(f'ds_write_b64 v{tA}, v[{TQ+2}:{TQ+3}] offset:{L_TAB}')
        a(f'v_mov_b32 v{nEND0}, v{nOFF1}')
        a(f'v_add_u32 v{nEND1}, v{nOFF1}, v{tF}')
        a(f's_add_u32 s{t1}, s{t1}, 127')
        a(f's_lshr_b32 s{t1}, s{t1}, 7')
        a(f's_lshr_b32 s{t0}, s{t1}, 1')
        a(f's_sub_u32 s{t1}, s{t1}, s{t0}')
        a(f's_lshl_b32 s{sLA}, s{t1}, 2')
        a(f's_lshl_b32 s{sLB}, s{t0}, 2')
        a(f's_sub_u32 s{sSO}, s{sLA}, s{sLB}')
        a(f's_lshl_b32 s{sSO}, s{sSO}, 3')
        a(f's_cmp_lt_u32 s{sW}, 4')
        a(f's_cselect_b32 s{sL}, s{sLA}, s{sLB}')
        a(f's_cselect_b32 s{sSO}, 0, s{sSO}')
        a(f's_lshr_b32 s{sCNT}, s{sL}, 2')
        a(f's_sub_u32 s{sCNT}, s{sCNT}, 1')
    def qi_fill(tag, split, nwq=8):
        B0 = TQ + 2; B1 = TQ + 3; V0 = TR + 1; V1 = TR + 2
        a(f'v_max_u32 v{TR}, v{tE}, v{tF}')
        if split:
            a(f'v_cvt_f32_u32 v{tA}, s{sLA}')
            a(f'v_cvt_f32_u32 v{tD}, s{sLB}')
            a(f'v_rcp_f32 v{tA}, v{tA}')
            a(f'v_rcp_f32 v{tD}, v{tD}')
            a(f's_lshl_b32 s{t0}, s{sLA}, 5')
            a(f's_sub_u32 s{t1}, s{sLA}, s{sLB}')
            a(f's_lshl_b32 s{t1}, s{t1}, 5')
            a(f'v_mul_f32 v{tA}, 0.25, v{tA}')
            a(f'v_mul_f32 v{tD}, 0.25, v{tD}')
            for (OFF, nx, B, Vv) in ((nOFF0, tB, B0, V0), (nOFF1, tC, B1, V1)):
                a(f'v_cmp_gt_u32 vcc, s{t0}, v{OFF}')
                a(f'v_subrev_u32 v{tG}, s{t1}, v{OFF}')
                a('s_nop 0')
                a(f'v_cndmask_b32 v{tG}, v{tG}, v{OFF}, vcc')
                a(f'v_cndmask_b32 v{tH}, v{tD}, v{tA}, vcc')
                a(f'v_cvt_f32_u32 v{tG}, v{tG}')
                a(f'v_add_f32 v{tG}, 2.0, v{tG}')
                a(f'v_mul_f32 v{tG}, v{tH}, v{tG}')
                a(f'v_cvt_u32_f32 v{nx}, v{tG}')
                a(f'v_add_u32 v{nx}, 1, v{nx}')
                a(f'v_mov_b32 v{tG}, s{sLB}')
                a(f'v_mov_b32 v{tH}, s{sLA}')
                a(f'v_cndmask_b32 v{tG}, v{tG}, v{tH}, vcc')
                a(f'v_mov_b32 v{tH}, s{t1}')
                a(f'v_cndmask_b32 v{tH}, v{tH}, 0, vcc')
                a(f'v_lshlrev_b32 v{tG}, 2, v{tG}')
                a(f'v_mad_u32_u24 v{B}, v{nx}, v{tG}, v{tH}')
            a(f's_movk_i32 s{t1}, {VROWB}')
            a(f'v_mov_b32 v{tD}, {L_VIRT}')
            a(f'v_mad_u32_u24 v{V0}, v{tB}, s{t1}, v{tD}')
            a(f'v_mad_u32_u24 v{V1}, v{tC}, s{t1}, v{tD}')
            a(f'v_add_u32 v{tD}, {ROWB}, v{nROW0}')
            for nd, (B, Vv, END, nx) in enumerate(((B0, V0, nEND0, tB), (B1, V1, nEND1, tC))):
                lab = a.newlabel('nosplit')
                a(f'v_lshrrev_b32 v{tG}, {1 if nwq == 8 else 2}, v{nx}')
                a(f'v_cmp_lt_u32 vcc, v{B}, v{END}')
                a(f'v_cmp_eq_u32 s[{sSV}:{sSV+1}], s{sW}, v{tG}')
                a(f's_and_b64 vcc, vcc, s[{sSV}:{sSV+1}]')
                a(f's_cbranch_scc0 {lab}')
                lp = a.newlabel('splitlp')
                a.label(lp)
                a(f's_ff1_i32_b64 s{t0}, vcc')
                a(f's_bitset0_b64 vcc, s{t0}')
                a(f'v_readlane_b32 s{t2}, v{nROW0 if nd == 0 else tD}, s{t0}')
                a(f'v_readlane_b32 s{t3}, v{Vv}, s{t0}')
                a(f'v_lshrrev_b32 v{tG}, 0, v{C4}')
                a('s_mov_b32 exec_hi, 0')
                a(f'v_add_u32 v{tH}, s{t2}, v{tG}')
                a(f'ds_read_b32 v{tI}, v{tH} offset:512')
                a(f'v_add_u32 v{tH}, s{t3}, v{tG}')
                a(f'v_mov_b32 v{tG}, s{t2}')
                a(f'v_mov_b32 v{tA}, s{t3}')
                a(f'ds_write_b32 v{tG}, v{tA} offset:768')
                a('s_waitcnt lgkmcnt(1)')
                a(f'ds_write_b32 v{tH}, v{tI} offset:512')
                a('s_mov_b64 exec, -1')
                a(f's_cmp_lg_u64 vcc, 0')
                a(f's_cbranch_scc1 {lp}')
                a.label(lab)
        a(f's_lshl_b32 s{t0}, s{sW}, 2')
        a(f'v_add_u32 v{tA}, s{t0}, v{nOFF0}')
        a(f'v_add_u32 v{tB}, s{t0}, v{nOFF1}')
        a(f'v_add_u32 v{tC}, {ROWB}, v{nROW0}')
        lp = f'K2_QF{tag}'
        a.label(lp)
        a(f's_add_u32 s{t1}, s{t0}, 4')
        a(f'v_cmp_eq_u32 s[{sSV}:{sSV+1}], s{t1}, v{tE}')
        a(f'v_cmp_eq_u32 s[{sSV2}:{sSV2+1}], s{t1}, v{tF}')
        if split:
            a(f'v_add_u32 v{tG}, 4, v{tA}')
            a(f'v_add_u32 v{tH}, 4, v{tB}')
            a(f'v_cmp_eq_u32 vcc, v{tG}, v{B0}')
            a(f's_or_b64 s[{sSV}:{sSV+1}], s[{sSV}:{sSV+1}], vcc')
            a(f'v_cmp_eq_u32 vcc, v{tH}, v{B1}')
            a(f's_or_b64 s[{sSV2}:{sSV2+1}], s[{sSV2}:{sSV2+1}], vcc')
            a(f'v_cmp_ge_u32 vcc, v{tA}, v{B0}')
            a('s_nop 1')
            a(f'v_cndmask_b32 v{tG}, v{nROW0}, v{V0}, vcc')
            a(f'v_cmp_ge_u32 vcc, v{tB}, v{B1}')
            a('s_nop 1')
            a(f'v_cndmask_b32 v{tH}, v{tC}, v{V1}, vcc')
        else:
            a(f'v_mov_b32 v{tG}, v{nROW0}')
            a(f'v_mov_b32 v{tH}, v{tC}')
        a(f'v_or_b32 v{tD}, 0x80000000, v{tG}')
        a(f'v_or_b32 v{tI}, 0x80000000, v{tH}')
        a(f'v_cmp_lt_u32 vcc, s{t0}, v{tE}')
        a(f'v_cndmask_b32 v{tG}, v{tG}, v{tD}, s[{sSV}:{sSV+1}]')
        a(f'v_cndmask_b32 v{tH}, v{tH}, v{tI}, s[{sSV2}:{sSV2+1}]')
        a(f'v_cmp_lt_u32 s[{sSV}:{sSV+1}], s{t0}, v{tF}')
        a('s_mov_b64 exec, vcc')
        a(f'ds_write_b32 v{tA}, v{tG} offset:{L_QI}')
        a(f's_mov_b64 exec, s[{sSV}:{sSV+1}]')
        a(f'ds_write_b32 v{tB}, v{tH} offset:{L_QI}')
        a('s_mov_b64 exec, -1')
        a(f's_add_u32 s{t0}, s{t0}, {4*nwq}')
        a(f'v_add_u32 v{tA}, {4*nwq}, v{tA}')
        a(f'v_add_u32 v{tB}, {4*nwq}, v{tB}')
        a(f'v_cmp_lt_u32 vcc, s{t0}, v{TR}')
        a(f's_cbranch_vccnz {lp}')
    def scatter():
        a('s_waitcnt lgkmcnt(0)')
        for sl in range(8):
            a(f's_mov_b64 exec, s[{MK+2*sl}:{MK+2*sl+1}]')
            a(f'ds_read_b32 v{AX+sl}, v{REC+2*sl+1} offset:{L_TAB}')
        for sl in range(8):
            a(f's_mov_b64 exec, s[{MK+2*sl}:{MK+2*sl+1}]')
            a('s_waitcnt lgkmcnt(7)')
            a(f'v_lshl_add_u32 v{AX+sl}, v{RK+sl}, 2, v{AX+sl}')
            a(f'ds_write_b32 v{AX+sl}, v{REC+2*sl} offset:{L_ENT}')
        for sl in range(8, 16, 2):
            sk = a.newlabel('sks')
            a(f's_mov_b64 exec, s[{MK+2*sl}:{MK+2*sl+1}]')
            a(f's_cbranch_execz {sk}')
            a(f'ds_read_b32 v{AX+sl}, v{REC+2*sl+1} offset:{L_TAB}')
            a(f's_mov_b64 exec, s[{MK+2*sl+2}:{MK+2*sl+3}]')
            a(f'ds_read_b32 v{AX+sl+1}, v{REC+2*sl+3} offset:{L_TAB}')
            a('s_waitcnt lgkmcnt(0)')
            a(f'v_lshl_add_u32 v{AX+sl+1}, v{RK+sl+1}, 2, v{AX+sl+1}')
            a(f'ds_write_b32 v{AX+sl+1}, v{REC+2*sl+2} offset:{L_ENT}')
            a(f's_mov_b64 exec, s[{MK+2*sl}:{MK+2*sl+1}]')
            a(f'v_lshl_add_u32 v{AX+sl}, v{RK+sl}, 2, v{AX+sl}')
            a(f'ds_write_b32 v{AX+sl}, v{REC+2*sl} offset:{L_ENT}')
            a.label(sk)
        sk = a.newlabel('sksc')
        a(f's_mov_b64 exec, s[{MKC}:{MKC+1}]')
        a(f's_cbranch_execz {sk}')
        a(f'ds_read_b32 v{AX}, v{RC+1} offset:{L_TAB}')
        a(f's_mov_b64 exec, s[{MKC2}:{MKC2+1}]')
        a(f'ds_read_b32 v{AX+1}, v{RC+3} offset:{L_TAB}')
        a('s_waitcnt lgkmcnt(0)')
        a(f'v_lshl_add_u32 v{AX+1}, v{RKC2}, 2, v{AX+1}')
        a(f'ds_write_b32 v{AX+1}, v{RC+2} offset:{L_ENT}')
        a(f's_mov_b64 exec, s[{MKC}:{MKC+1}]')
        a(f'v_lshl_add_u32 v{AX}, v{RKC}, 2, v{AX}')
        a(f'ds_write_b32 v{AX}, v{RC} offset:{L_ENT}')
        a.label(sk)
        a('s_mov_b64 exec, -1')

    def setup_ptrs():
        a(f'v_add_u32 v{tB}, s{sSO}, v{jA}')
        a(f'v_mad_u32_u24 v{tA}, v{sidA}, s{sL}, v{tB}')
        a(f'v_lshlrev_b32 v{pEN}, 4, v{tA}')
        a(f'ds_read_b128 v[{EN}:{EN+3}], v{pEN} offset:{L_ENT}')
        a(f'v_lshlrev_b32 v{pQF}, 2, v{tA}')
        a(f'v_sub_u32 v{pQI}, v{tA}, v{jA}')
        a(f'v_lshlrev_b32 v{pQI}, 2, v{pQI}')
        a(f'v_add_u32 v{pQI}, {L_QI}, v{pQI}')
        a(f'v_mad_u32_u24 v{tA}, v{sidR}, s{sL}, v{tB}')
        a(f'v_lshl_add_u32 v{pEE}, v{tA}, 4, v{iR4}')
        a(f's_mov_b32 m0, s{sDB}')

    def dma_addr():
        return [f'v_mad_u32_u16 v{EN+i}, v{EN+i}, s{s128}, v{CO+i}' for i in range(4)]
    def dma_issue():
        if opts.get('nodma'): return []
        return [f'buffer_load_dwordx4 v{EN+i}, s[{rX}:{rX+3}], 0 offen offset:{1024*i} lds' if i else
                f'buffer_load_dwordx4 v{EN}, s[{rX}:{rX+3}], 0 offen lds' for i in range(4)]

    def main_loop(tag, atomic):
        flush_blocks = []
        PS = [(PP, TT_, ZZ), (PB, TB, ZB)]
        def flush_body(par, j):
            a(f's_bfe_i32 exec_lo, s{sF[par]}, 0x{(1<<16)|(8*j):x}')
            a(f's_bfe_i32 exec_hi, s{sF[par]+1}, 0x{(1<<16)|(8*j):x}')
            a(f'v_add_f32 v{F0}, v{DEN}, v{DEN+1}')
            a(f'v_add_f32 v{F1}, v{NUM}, v{NUM+1}')
            a(f'v_add_f32 v{F2}, v{DEN+2}, v{DEN+3}')
            a(f'v_add_f32 v{F3}, v{NUM+2}, v{NUM+3}')
            a(f'v_mov_b64 v[{DEN}:{DEN+1}], 0')
            a(f'v_mov_b64 v[{NUM}:{NUM+1}], 0')
            if atomic:
                a(f'ds_add_f32 v{QA[par]+j}, v{F0}')
                a(f'ds_add_f32 v{QA[par]+j}, v{F1} offset:256')
                a(f'ds_add_f32 v{QA[par]+j}, v{F2} offset:128')
                a(f'ds_add_f32 v{QA[par]+j}, v{F3} offset:384')
            else:
                a(f'ds_write2_b32 v{QA[par]+j}, v{F0}, v{F1} offset0:0 offset1:64')
                a(f'ds_write2_b32 v{QA[par]+j}, v{F2}, v{F3} offset0:32 offset1:96')
            a(f'v_mov_b64 v[{DEN+2}:{DEN+3}], 0')
            a(f'v_mov_b64 v[{NUM+2}:{NUM+3}], 0')
            a('s_mov_b64 exec, -1')
        def post2(par):
            for j in range(4):
                for cc in range(2):
                    p, t, z = (r + 2*j for r in PS[cc])
                    a(f'v_pk_fma_f32 v[{NUM+2*cc}:{NUM+2*cc+1}], v[{p}:{p+1}], v[{t}:{t+1}], v[{NUM+2*cc}:{NUM+2*cc+1}]')
                    a(f'v_pk_fma_f32 v[{DEN+2*cc}:{DEN+2*cc+1}], v[{p}:{p+1}], v[{z}:{z+1}], v[{DEN+2*cc}:{DEN+2*cc+1}]')
                if opts.get('noflush'): continue
                fl = a.newlabel('fl'); back = a.newlabel('bk')
                a(f's_bitcmp1_b32 s{sANY[par]}, {8*j}')
                a(f's_cbranch_scc1 {fl}')
                a.label(back)
                flush_blocks.append((fl, back, par, j))
        def pre(cur):
            g0 = G_[cur]; h0 = H_[cur]; P_, T_, Z_ = PS[cur]
            for j in range(4):
                g = g0 + 4*j
                a(f'v_pk_fma_f32 v[{g}:{g+1}], v[{g}:{g+1}], s[{sC}:{sC+1}], s[{sC}:{sC+1}] clamp')
                a(f'v_pk_fma_f32 v[{g+2}:{g+3}], v[{g+2}:{g+3}], s[{sC}:{sC+1}], s[{sC}:{sC+1}] clamp')
            for j in range(4):
                g = g0 + 4*j; h = h0 + 4*j
                X = f'v[{g}:{g+1}]'; Y = f'v[{g+2}:{g+3}]'
                p = P_ + 2*j; t = T_ + 2*j; z = Z_ + 2*j
                a(f'v_pk_mul_f32 v[{t}:{t+1}], {Y}, v[{h}:{h+1}]')
                a(f'v_pk_mul_f32 v[{p}:{p+1}], {X}, {Y}')
                a(f'v_pk_add_f32 v[{z}:{z+1}], {X}, {Y}')
                a(f'v_pk_fma_f32 v[{t}:{t+1}], {X}, v[{h+2}:{h+3}], v[{t}:{t+1}]')
        def mfma_list(nxt, cc):
            Gs = f'v[{G_[nxt]}:{G_[nxt]+15}]'; Hs = f'v[{H_[nxt]}:{H_[nxt]+15}]'
            out = []
            for kp in range(4):
                wb = WB + 16*cc + 4*kp; wv = WV + 16*cc + 4*kp; ax = AX + 4*kp
                out.append(f'v_mfma_f32_32x32x16_bf16 {Hs}, v[{ax}:{ax+3}], v[{wv}:{wv+3}], {"0" if kp == 0 else Hs}')
                out.append(f'v_mfma_f32_32x32x16_bf16 {Gs}, v[{ax}:{ax+3}], v[{wb}:{wb+3}], {"0" if kp == 0 else Gs}')
            out.append(f'v_mfma_f32_32x32x16_bf16 {Gs}, v[{AE[cc]}:{AE[cc]+3}], v[{BE}:{BE+3}], {Gs}')
            return out
        def trans_list(cur):
            Pp = PS[cur ^ 1][0]
            return [f'v_rcp_f32 v{Pp+i}, v{Pp+i}' for i in range(8)] + [f'v_exp_f32 v{G_[cur]+i}, v{G_[cur]+i}' for i in range(16)]
        def weave(mf, tr, gaps):
            dist = [3, 3, 3, 3, 3, 3, 2, 2, 2]
            if opts.get('nogaps'): gaps = {}
            if opts.get('nomf'): mf = None
            k = 0
            for m in range(9):
                for ins in gaps.get(('m', m), []): a(ins)
                if mf: a(mf[m])
                for _ in range(dist[m]):
                    a(tr[k])
                    for ins in gaps.get(k, []): a(ins)
                    k += 1
            assert k == len(tr)
        def stage0(par):
            g = {}
            da = dma_addr()
            g[0] = [f'ds_read_b32 v{QF}, v{pQF} offset:{L_QI + 16*(par+1)}']
            g[1] = [f'ds_read_b32 v{EE}, v{pEE} offset:{L_ENT + 64*(par+1)}']
            g[3] = [f'v_and_or_b32 v{BE}, v{R0}, s{sHI}, v{BC+1}']
            g[6] = [da[0]]; g[9] = [da[1]]; g[12] = [da[2]]; g[15] = [da[3]]
            axr = [f'ds_read_b128 v[{AX+4*kp}:{AX+4*kp+3}], v{RA+kp}' for kp in range(4)]
            early = opts.get('axearly', 0)
            if early:
                for kp, gp in enumerate(opts.get('axgaps', (8, 11, 17, 21))):
                    g.setdefault(gp, [])
                    g[gp] = g[gp] + ((['s_waitcnt vmcnt(0)'] if kp == 0 else []) + [axr[kp]])
            weave(mfma_list(1, 1), trans_list(0), g)
            axpre = opts.get('axpre', 1)
            if axpre and not early and not opts.get('nogaps'):
                a('s_waitcnt vmcnt(0)')
                for ins in axr: a(ins)
            post2(par ^ 1)
            qn = QA[par ^ 1]
            if not opts.get('nogaps'):
                a(f'ds_read_b128 v[{qn}:{qn+3}], v{pQI} offset:{16*(par+1)}')
                if not early and not axpre:
                    a('s_waitcnt vmcnt(0)')
                    for ins in axr: a(ins)
            pre(0)
            a(f's_sub_u32 s{sCNT}, s{sCNT}, 1')
        def stage1(par):
            qn = QA[par ^ 1]
            g = {}
            di = dma_issue()
            g[('m', 0)] = ['s_waitcnt lgkmcnt(0)']
            dg = opts.get('dmag', 0)
            dd = {0: (0, 1, 2, 3), 1: (8, 10, 12, 14), 2: (6, 8, 10, 12), 3: (12, 14, 16, 18)}[dg]
            g[0] = [f'v_mad_u32_u24 v{qn}, v{qn}, 1, v{C4}']
            g[1] = [f'v_mad_u32_u24 v{qn+1}, v{qn+1}, 1, v{C4}']
            g[2] = [f'ds_read_b32 v{R0}, v{qn} offset:512']
            g[3] = [f'v_mad_u32_u24 v{qn+2}, v{qn+2}, 1, v{C4}', f'ds_read_b32 v{BE+1}, v{qn+1} offset:512']
            g[4] = [f'v_mad_u32_u24 v{qn+3}, v{qn+3}, 1, v{C4}', f'ds_read_b32 v{BE+2}, v{qn+2} offset:512']
            g[5] = [f'ds_read_b32 v{BE+3}, v{qn+3} offset:512']
            g[7] = [f'v_perm_b32 v{AE[0]}, v{EE}, v{AE[0]}, v{SEL[0]}']
            g[9] = [f'v_perm_b32 v{AE[1]}, v{EE}, v{AE[1]}, v{SEL[1]}']
            g[11] = [f'v_cmp_gt_i32 s[{sF[par^1]}:{sF[par^1]+1}], 0, v{QF}']
            if par == 1:
                g[13] = [f'v_add_u32 v{pQI}, 32, v{pQI}']
                g[14] = [f'v_add_u32 v{pQF}, 32, v{pQF}']
                g[15] = [f'v_add_u32 v{pEE}, 128, v{pEE}']
                g[16] = [f'v_add_u32 v{pEN}, 128, v{pEN}']
            g[17] = [f's_or_b32 s{sANY[par^1]}, s{sF[par^1]}, s{sF[par^1]+1}'] if not opts.get('noany') else [f's_mov_b32 s{sANY[par^1]}, 0']
            g[19] = ['s_waitcnt lgkmcnt(%d)' % (1 if dd[3] >= 18 else 0), f'v_and_or_b32 v{BE}, v{R0}, s{sLO}, v{BC}']
            for i_, gp in enumerate(dd):
                if di: g[gp] = g.get(gp, []) + [di[i_]]
            en_gap = max(dd[3] + 1, 6)
            en_rd = f'ds_read_b128 v[{EN}:{EN+3}], v{pEN} offset:{L_ENT + 64*(par+3)}'
            if en_gap >= 19:
                g[20] = g.get(20, []) + [en_rd]
            else:
                g[en_gap] = g.get(en_gap, []) + [en_rd]
            if par == 1:
                pass
            weave(mfma_list(0, 0), trans_list(1), g)
            pre(1)
        def last_stage1(par):
            weave(None, trans_list(1), {})
            pre(1)
            for i in range(8):
                a(f'v_rcp_f32 v{PB+i}, v{PB+i}')
            a('s_nop 0')
            post2(par)
        L0 = f'K2_T0{tag}'; E0 = f'K2_E0{tag}'; E1 = f'K2_E1{tag}'; DONE = f'K2_MD{tag}'
        PR = opts.get('prio', 1)
        if PR:
            a(f's_add_u32 s{t0}, s{sCNT}, 1')
            a(f's_mul_i32 s{t0}, s{t0}, {opts.get("pfrac", 20)}')
            a(f's_lshr_b32 s{t0}, s{t0}, 6')
            a(f's_lshl_b32 s{t0}, s{t0}, 1')
            a(f's_sub_u32 s{sSWAP}, s{sCNT}, s{t0}')
            a(f's_cmp_ge_u32 s{sW}, 4')
            a(f's_cbranch_scc0 K2_PR0{tag}')
            a('s_setprio 1')
            a.label(f'K2_PR0{tag}')
        if PR == 3:
            a(f's_cmp_ge_u32 s{sW}, 4')
            a(f's_cselect_b32 s{sSWAP}, 1, 0')
        a.label(L0)
        if PR == 3:
            a(f's_xor_b32 s{sSWAP}, s{sSWAP}, 1')
            a(f's_cbranch_scc1 K2_PH{tag}')
            a('s_setprio 0')
            a(f's_branch K2_PD{tag}')
            a.label(f'K2_PH{tag}')
            a('s_setprio 1')
            a.label(f'K2_PD{tag}')
        elif PR:
            a(f's_cmp_eq_u32 s{sCNT}, s{sSWAP}')
            a(f's_cbranch_scc1 K2_SWP{tag}')
            a.label(f'K2_SWB{tag}')
        stage0(0)
        a(f's_cbranch_scc1 {E0}')
        stage1(0)
        stage0(1)
        a(f's_cbranch_scc1 {E1}')
        stage1(1)
        a(f's_branch {L0}')
        a.label(E0)
        last_stage1(0)
        a(f's_branch {DONE}')
        a.label(E1)
        last_stage1(1)
        a(f's_branch {DONE}')
        if PR and PR != 3:
            a.label(f'K2_SWP{tag}')
            a(f's_cmp_ge_u32 s{sW}, 4')
            a(f's_cbranch_scc1 K2_SW0{tag}')
            a('s_setprio 1')
            a(f's_branch K2_SWB{tag}')
            a.label(f'K2_SW0{tag}')
            a('s_setprio 0')
            a(f's_branch K2_SWB{tag}')
        for (fl, back, par, j) in flush_blocks:
            a.label(fl)
            flush_body(par, j)
            a(f's_branch {back}')
        a.label(DONE)
        if PR: a('s_setprio 0')

    def pipeline_fill():
        q0 = QA[0]
        a(f'ds_read_b128 v[{q0}:{q0+3}], v{pQI}')
        a(f'ds_read_b32 v{QF}, v{pQF} offset:{L_QI}')
        a(f'ds_read_b32 v{EE}, v{pEE} offset:{L_ENT}')
        a(f'ds_read_b128 v[{EN}:{EN+3}], v{pEN} offset:{L_ENT + 64}')
        for i in range(2):
            a(f'v_mov_b64 v[{DEN+2*i}:{DEN+2*i+1}], 0')
            a(f'v_mov_b64 v[{NUM+2*i}:{NUM+2*i+1}], 0')
        for i in range(8):
            a(f'v_mov_b32 v{PP+i}, 1.0')
            a(f'v_mov_b32 v{PB+i}, 1.0')
        for i in range(4):
            a(f'v_mov_b64 v[{TT_+2*i}:{TT_+2*i+1}], 0')
            a(f'v_mov_b64 v[{ZZ+2*i}:{ZZ+2*i+1}], 0')
            a(f'v_mov_b64 v[{TB+2*i}:{TB+2*i+1}], 0')
            a(f'v_mov_b64 v[{ZB+2*i}:{ZB+2*i+1}], 0')
        a(f's_mov_b32 s{sANY[1]}, 0')
        a('s_waitcnt lgkmcnt(0)')
        for q in range(4):
            a(f'v_mad_u32_u24 v{q0+q}, v{q0+q}, 1, v{C4}')
        a(f'ds_read_b32 v{R0}, v{q0} offset:512')
        for q in range(1, 4):
            a(f'ds_read_b32 v{BE+q}, v{q0+q} offset:512')
        a(f'v_perm_b32 v{AE[0]}, v{EE}, v{AE[0]}, v{SEL[0]}')
        a(f'v_perm_b32 v{AE[1]}, v{EE}, v{AE[1]}, v{SEL[1]}')
        a(f'v_cmp_gt_i32 s[{sF[0]}:{sF[0]+1}], 0, v{QF}')
        for ins in dma_addr(): a(ins)
        stamp(21)
        a('s_waitcnt vmcnt(0)')
        stamp(22)
        for kp in range(4):
            a(f'ds_read_b128 v[{AX+4*kp}:{AX+4*kp+3}], v{RA+kp}')
        a(f's_or_b32 s{sANY[0]}, s{sF[0]}, s{sF[0]+1}')
        a('s_waitcnt lgkmcnt(0)')
        a(f'v_and_or_b32 v{BE}, v{R0}, s{sLO}, v{BC}')
        for ins in dma_issue(): a(ins)
        a(f'ds_read_b128 v[{EN}:{EN+3}], v{pEN} offset:{L_ENT + 128}')
        Gs = f'v[{GA}:{GA+15}]'; Hs = f'v[{HA}:{HA+15}]'
        for kp in range(4):
            a(f'v_mfma_f32_32x32x16_bf16 {Hs}, v[{AX+4*kp}:{AX+4*kp+3}], v[{WV+4*kp}:{WV+4*kp+3}], {"0" if kp == 0 else Hs}')
            a(f'v_mfma_f32_32x32x16_bf16 {Gs}, v[{AX+4*kp}:{AX+4*kp+3}], v[{WB+4*kp}:{WB+4*kp+3}], {"0" if kp == 0 else Gs}')
        a(f'v_mfma_f32_32x32x16_bf16 {Gs}, v[{AE[0]}:{AE[0]+3}], v[{BE}:{BE+3}], {Gs}')
        a('s_waitcnt lgkmcnt(0)')
        a('s_nop 7')
        a('s_nop 3')
    def forced_flags():
        a(f's_sub_u32 s{t1}, s{sL}, 1')
        a(f's_lshl_b32 s{t1}, s{t1}, 2')
        a(f'v_add_u32 v{tB}, s{t1}, v{pQI}')
        a(f'v_mov_b32 v{tA}, 0x80000000')
        a('s_mov_b32 exec_lo, 1')
        a('s_mov_b32 exec_hi, 1')
        a(f'ds_or_b32 v{tB}, v{tA}')
        a('s_mov_b64 exec, -1')

    stamp(2)
    a(f's_mov_b64 exec, s[{sSV2}:{sSV2+1}]')
    a(f'v_mov_b32 v{tD}, {L_CNT + 127*4}')
    a(f'v_mov_b32 v{tE}, 1')
    a(f'ds_write_b32 v{tD}, v{tE}')
    a('s_mov_b64 exec, -1')
    gemm_issue()
    stamp(28)
    gemm_mid()
    gemm_mid2()
    stamp(29)
    a(f's_cmp_lg_u32 s{sW}, 0')
    a('s_cbranch_scc1 K2_NOCI')
    a(f'v_mul_u32_u24 v{tA}, {2*ROWB}, v{vLANE}')
    a(f'v_mov_b32 v{tB}, {L_ZERO}')
    a(f'v_add_u32 v{tA}, {L_ACC}, v{tA}')
    a(f's_mov_b32 exec_hi, {(1 << (MAXN // 2 - 32)) - 1}')
    a(f'ds_write_b32 v{tA}, v{tB} offset:768')
    a(f'ds_write_b32 v{tA}, v{tB} offset:{768 + ROWB}')
    a('s_mov_b64 exec, -1')
    a.label('K2_NOCI')
    gemm_store('F')
    if opts.get('wearly', 0) == 1:
        w_frags()
        consts()
    elif opts.get('wearly', 0) == 2:
        a(f's_cmp_ge_u32 s{sW}, 4')
        a('s_cbranch_scc1 K2_WE0')
        w_frags()
        consts()
        a.label('K2_WE0')
    stamp(3)
    a('s_waitcnt vmcnt(0) lgkmcnt(0)')
    stamp(23)
    hist()
    a('s_waitcnt lgkmcnt(0)')
    stamp(24)
    if opts.get('proprio') == 1: a('s_setprio 0')
    a('s_barrier')
    stamp(4)
    scan_nodes('F')
    a(f'v_readlane_b32 s{t0}, v{TQ+1}, 63')
    a(f's_cmp_eq_u32 s{sLB}, 0')
    a(f's_cselect_b32 s{t1}, s{sLA}, s{sLB}')
    a(f's_lshl_b32 s{t1}, s{t1}, 2')
    a(f'v_cmp_lt_u32 vcc, s{t1}, v{tB}')
    a(f's_cmp_lg_u32 s{t0}, 0')
    a('s_cbranch_scc1 K2_SLOW')
    a(f's_add_u32 s{t1}, s{sLA}, s{sLB}')
    a(f's_cmp_gt_u32 s{t1}, {(ENT_QUADS - 8) // 8}')
    a('s_cbranch_scc1 K2_SLOW')
    a('s_cbranch_vccnz K2_SLOW')
    stamp(15)
    scatter()
    stamp(16)
    a('s_waitcnt lgkmcnt(0)')
    a('s_barrier')
    stamp(5)
    a(f's_cmp_eq_u32 s{sL}, 0')
    a('s_cbranch_scc1 K2_NOL')
    setup_ptrs()
    a('s_waitcnt lgkmcnt(0)')
    for ins in dma_addr(): a(ins)
    for ins in dma_issue(): a(ins)
    a.label('K2_NOL')
    stamp(17)
    if opts.get('qi4', 0):
        a(f's_cmp_ge_u32 s{sW}, 4')
        a('s_cbranch_scc1 K2_QIDONE')
    a(f'v_cmp_gt_u32 vcc, {MAXN // 2}, v{vLANE}')
    a(f'v_lshl_or_b32 v{tB}, v{vLANE}, 1, 1')
    a(f'v_cmp_le_u32 s[{sSV}:{sSV+1}], s{sNN}, v{tB}')
    a(f'v_mov_b32 v{tC}, 1')
    a('s_nop 0')
    a(f'v_cndmask_b32 v{tB}, v{TQ+1}, v{tC}, s[{sSV}:{sSV+1}]')
    a(f'v_min_u32 v{tB}, v{TQ}, v{tB}')
    a(f'v_cmp_eq_u32 s[{sSV}:{sSV+1}], 0, v{tB}')
    a(f's_and_b64 s[{sSV}:{sSV+1}], s[{sSV}:{sSV+1}], vcc')
    a('s_cbranch_scc1 K2_ZROWS')
    a.label('K2_ZBACK')
    if opts.get('qi4', 0):
        qi_fill('F', True, 4)
        a.label('K2_QIDONE')
    else:
        qi_fill('F', True)
    stamp(18)
    if opts.get('wearly', 0) == 0:
        w_frags()
        consts()
    elif opts.get('wearly', 0) == 2:
        a(f's_cmp_lt_u32 s{sW}, 4')
        a('s_cbranch_scc1 K2_WE1')
        w_frags()
        consts()
        a.label('K2_WE1')
    a('s_waitcnt lgkmcnt(0)')
    stamp(19)
    if opts.get('proprio') == 2: a('s_setprio 0')
    a('s_barrier')
    stamp(20)
    a(f's_cmp_eq_u32 s{sL}, 0')
    a('s_cbranch_scc1 K2_EPI')
    pipeline_fill()
    stamp(6)
    if opts.get('dbgtime'):
        a(f's_memrealtime s[{t2}:{t3}]')
        a('s_waitcnt lgkmcnt(0)')
        a(f's_mov_b32 s{sT1}, s{t2}')
    if STAMP:
        a(f's_memrealtime s[{t2}:{t3}]')
        a('s_waitcnt lgkmcnt(0)')
        a(f'v_writelane_b32 v{vST}, s{t2}, 13')
    if opts.get('half'):
        a(f's_cmp_ge_u32 s{sW}, 4')
        a('s_cbranch_scc1 K2_MDF')
    main_loop('F', False)
    stamp(7)
    if opts.get('dbgtime'):
        a(f's_memrealtime s[{t2}:{t3}]')
        a('s_waitcnt lgkmcnt(0)')
        a(f's_mov_b32 s{sT2}, s{t2}')
    if STAMP:
        a(f's_memrealtime s[{t2}:{t3}]')
        a('s_waitcnt lgkmcnt(0)')
        a(f'v_writelane_b32 v{vST}, s{t2}, 14')
    a.label('K2_EPI')
    e0 = 4
    XV = [e0, e0 + 4]; UU = [e0 + 8, e0 + 12]
    DN = [e0 + 16, e0 + 48]; NM = [e0 + 24, e0 + 56]; CD = [e0 + 32, e0 + 64]; CN = [e0 + 40, e0 + 72]
    O = e0 + 80; ADR = [e0 + 84, e0 + 85]; GO = [e0 + 86, e0 + 87]; CP = [e0 + 88, e0 + 89]; OC = [e0 + 90, e0 + 91]
    T1 = e0 + 92; ND = e0 + 93
    def epi_addr(r):
        a(f'v_add_u32 v{T1}, {512*r}, v0') if r else a(f'v_mov_b32 v{T1}, v0')
        a(f'v_lshrrev_b32 v{ND}, 3, v{T1}')
        a(f'v_and_b32 v{T1}, 7, v{T1}')
        a(f'v_lshlrev_b32 v{OC[r]}, 4, v{T1}')
        a(f'v_mul_u32_u24 v{CP[r]}, s{t0}, v{ND}')
        a(f'v_add_u32 v{CP[r]}, {L_ACC}, v{CP[r]}')
        a(f'v_add_u32 v{ADR[r]}, v{CP[r]}, v{OC[r]}')
        a(f'v_add_u32 v{GO[r]}, s{sNS}, v{ND}')
        a(f'v_lshlrev_b32 v{GO[r]}, 7, v{GO[r]}')
        a(f'v_lshl_add_u32 v{GO[r]}, v{T1}, 3, v{GO[r]}')
    def epi_static(r, carry):
        a(f'buffer_load_dwordx2 v[{XV[r]}:{XV[r]+1}], v{GO[r]}, s[{rF}:{rF+3}], 0 offen')
        a(f'buffer_load_dwordx2 v[{XV[r]+2}:{XV[r]+3}], v{GO[r]}, s[{rF}:{rF+3}], 0 offen offset:64')
        a(f'ds_read_b128 v[{UU[r]}:{UU[r]+3}], v{ADR[r]} offset:640')
        if carry: a(f'ds_read_b32 v{CP[r]}, v{CP[r]} offset:768')
    def epi_reads(r, carry):
        ad = ADR[r]
        a(f'ds_read_b128 v[{DN[r]}:{DN[r]+3}], v{ad}')
        a(f'ds_read_b128 v[{DN[r]+4}:{DN[r]+7}], v{ad} offset:128')
        a(f'ds_read_b128 v[{NM[r]}:{NM[r]+3}], v{ad} offset:256')
        a(f'ds_read_b128 v[{NM[r]+4}:{NM[r]+7}], v{ad} offset:384')
        if carry:
            a(f'ds_read_b128 v[{CD[r]}:{CD[r]+3}], v{CP[r]}')
            a(f'ds_read_b128 v[{CD[r]+4}:{CD[r]+7}], v{CP[r]} offset:128')
            a(f'ds_read_b128 v[{CN[r]}:{CN[r]+3}], v{CP[r]} offset:256')
            if r == 1: a('s_waitcnt lgkmcnt(14)')
            a(f'ds_read_b128 v[{CN[r]+4}:{CN[r]+7}], v{CP[r]} offset:384')
    def epi_math(r, carry):
        dn, nm, cd, cn, uu, xv = DN[r], NM[r], CD[r], CN[r], UU[r], XV[r]
        if carry:
            for i in range(0, 8, 2):
                a(f'v_pk_add_f32 v[{dn+i}:{dn+i+1}], v[{dn+i}:{dn+i+1}], v[{cd+i}:{cd+i+1}]')
                a(f'v_pk_add_f32 v[{nm+i}:{nm+i+1}], v[{nm+i}:{nm+i+1}], v[{cn+i}:{cn+i+1}]')
        for i in range(0, 8, 2):
            a(f'v_pk_add_f32 v[{dn+i}:{dn+i+1}], v[{dn+i}:{dn+i+1}], s[{sC}:{sC+1}]')
        for i in range(8):
            a(f'v_rcp_f32 v{dn+i}, v{dn+i}')
        for i in range(4):
            a(f'v_lshlrev_b32 v{cd+i}, 16, v{uu+i}')
            a(f'v_and_b32 v{cd+4+i}, s{sHI}, v{uu+i}')
        for i in range(0, 8, 2):
            a(f'v_pk_fma_f32 v[{nm+i}:{nm+i+1}], v[{nm+i}:{nm+i+1}], v[{dn+i}:{dn+i+1}], v[{cd+i}:{cd+i+1}]')
        for i in range(8):
            a(f'v_max_f32 v{nm+i}, 0, v{nm+i}')
        for i in range(4):
            a(f'v_lshlrev_b32 v{cd+2*i}, 16, v{xv+i}')
            a(f'v_and_b32 v{cd+2*i+1}, s{sHI}, v{xv+i}')
        for i in range(0, 8, 2):
            a(f'v_pk_add_f32 v[{nm+i}:{nm+i+1}], v[{nm+i}:{nm+i+1}], v[{cd+i}:{cd+i+1}]')
        for i in range(4):
            a(f'v_cvt_pk_bf16_f32 v{O+i}, v{nm+2*i}, v{nm+2*i+1}')
        osf = {0: '', 1: ' sc1', 2: ' nt', 3: ' sc0 sc1'}[opts.get('outst', 1)]
        a(f'buffer_store_dwordx2 v[{O}:{O+1}], v{GO[r]}, s[{rO}:{rO+3}], 0 offen' + osf)
        a(f'buffer_store_dwordx2 v[{O+2}:{O+3}], v{GO[r]}, s[{rO}:{rO+3}], 0 offen offset:64' + osf)
    def epilogue(tag, carry):
        srd(a, rO, sOUT, N * 128)
        srd(a, rF, sX, N * 128)
        a(f's_mov_b32 s{t0}, {ROWB}')
        a(f's_mov_b32 s{sC}, 0x{EPS_SCALED:x}')
        a(f's_mov_b32 s{sC+1}, 0x{EPS_SCALED:x}')
        a(f's_mov_b32 s{sHI}, 0xffff0000')
        a('s_waitcnt vmcnt(0)')
        epi_addr(0)
        epi_static(0, carry)
        epi_addr(1)
        a(f'v_cmp_gt_u32 s[{sSV}:{sSV+1}], s{sNN}, v{ND}')
        a('s_nop 3')
        a(f's_mov_b64 exec, s[{sSV}:{sSV+1}]')
        a(f's_cbranch_execz K2_NS2{tag}')
        epi_static(1, carry)
        a.label(f'K2_NS2{tag}')
        a('s_mov_b64 exec, -1')
        a('s_waitcnt lgkmcnt(0)')
        if carry:
            a(f'v_add_u32 v{CP[0]}, v{CP[0]}, v{OC[0]}')
            a(f'v_add_u32 v{CP[1]}, v{CP[1]}, v{OC[1]}')
        a('s_barrier')
        if STAMP and tag == 'F': stamp(8)
        epi_reads(0, carry)
        a(f's_mov_b64 exec, s[{sSV}:{sSV+1}]')
        a(f's_cbranch_execz K2_ONE{tag}')
        epi_reads(1, carry)
        a('s_mov_b64 exec, -1')
        a(f's_waitcnt vmcnt(0) lgkmcnt({8 if carry else 4})')
        epi_math(0, carry)
        a(f's_mov_b64 exec, s[{sSV}:{sSV+1}]')
        a('s_waitcnt lgkmcnt(0)')
        epi_math(1, carry)
        a(f's_branch K2_FIN{tag}')
        a.label(f'K2_ONE{tag}')
        a('s_mov_b64 exec, -1')
        a('s_waitcnt vmcnt(0) lgkmcnt(0)')
        epi_math(0, carry)
        a.label(f'K2_FIN{tag}')
        if opts.get('endwait', 1): a('s_waitcnt vmcnt(0)')
    epilogue('F', True)
    if opts.get('dbgtime'):
        a('s_mov_b64 exec, -1')
        a('s_waitcnt vmcnt(0)')
        a(f's_memrealtime s[{t2}:{t3}]')
        a(f's_cmp_lg_u32 s{sW}, 7')
        a('s_cbranch_scc1 K2_DBGX')
        a('s_and_b32 s3, s2, 31')
        a('s_cmp_lg_u32 s3, 0')
        a('s_cbranch_scc1 K2_DBGX')
        a('s_lshr_b32 s3, s2, 5')
        a('s_cmp_ge_u32 s3, 2')
        a('s_cbranch_scc1 K2_DBGX')
        a(f's_lshl_b32 s{t0}, s3, 2')
        a(f's_add_u32 s{t0}, s{t0}, 0x1200000')
        a(f'v_mov_b32 v4, s{t0}')
        a(f'global_load_dword v5, v4, s[{sWS}:{sWS+1}]')
        a(f'global_load_dword v6, v4, s[{sWS}:{sWS+1}] offset:256')
        a('s_waitcnt vmcnt(0) lgkmcnt(0)')
        a(f'v_sub_u32 v8, v6, v5')
        a(f'v_sub_u32 v9, s{sT0}, v5')
        a(f'v_sub_u32 v10, s{sT1}, v5')
        a(f'v_sub_u32 v11, s{sT2}, v5')
        a(f'v_sub_u32 v12, s{t2}, v5')
        a('s_lshl_b32 s3, s3, 5')
        a('v_mov_b32 v4, s3')
        a('s_mov_b64 exec, 1')
        a(f'global_store_dwordx4 v4, v[8:11], s[{sDBG}:{sDBG+1}]')
        a(f'global_store_dword v4, v12, s[{sDBG}:{sDBG+1}] offset:16')
        a.label('K2_DBGX')
    if STAMP:
        a('s_mov_b64 exec, -1')
        a('s_waitcnt vmcnt(0)')
        stamp(9)
        a(f's_memrealtime s[{t2}:{t3}]')
        a('s_waitcnt lgkmcnt(0)')
        a(f'v_writelane_b32 v{vST}, s{t2}, 12')
        a(f's_mul_i32 s{t0}, s2, {NW}')
        a(f's_add_u32 s{t0}, s{t0}, s{sW}')
        a(f's_lshl_b32 s{t0}, s{t0}, 8')
        a(f's_add_u32 s{t0}, s{t0}, 0x1000000')
        srd_off(a, rT, sWS, f's{t0}', 256)
        a(f'v_writelane_b32 v{vST}, s{sL}, 10')
        a(f'v_lshlrev_b32 v4, 2, v{vLANE}')
        a(f'buffer_store_dword v{vST}, v4, s[{rT}:{rT+3}], 0 offen')
    a('s_endpgm')
    a.label('K2_CSEL')
    a(f'v_mov_b32 v{tD}, 0')
    a(f'v_mov_b32 v{tE}, 0')
    a(f'v_mov_b32 v{tF}, 0')
    for it in range(4):
        a(f'v_lshrrev_b32 v{tG}, 24, v{SG+it}')
        a(f'v_cmp_lt_u32 vcc, 32, v{tG}')
        a(f'v_mad_u32_u24 v{tJ}, v{SG+it}, 8, v{tB}')
        a(f'v_add_u32 v{RKC}, 1, v{tF}')
        a(f'v_cndmask_b32 v{tD}, v{tD}, v{tJ}, vcc')
        a(f'v_cndmask_b32 v{tE}, v{tE}, v{tG}, vcc')
        a(f'v_cndmask_b32 v{tF}, v{tF}, v{RKC}, vcc')
    a(f'v_cmp_lt_u32 vcc, 1, v{tF}')
    a(f'v_cmp_lt_u32 s[{sSV2}:{sSV2+1}], 48, v{tE}')
    a(f'v_add_u32 v{tG}, 32, v{tC}')
    a(f's_or_b64 s[{sSV2}:{sSV2+1}], s[{sSV2}:{sSV2+1}], vcc')
    a(f'v_cmp_gt_u32 s[{MKC}:{MKC+1}], v{tE}, v{tG}')
    a(f'v_add_u32 v{tG}, 33, v{tC}')
    a(f'v_cmp_gt_u32 s[{MKC2}:{MKC2+1}], v{tE}, v{tG}')
    a('s_nop 0')
    a(f's_mov_b64 exec, s[{MKC}:{MKC+1}]')
    a(f'buffer_load_dwordx4 v[{RC}:{RC+3}], v{tD}, s[{rR}:{rR+3}], 0 offen offset:256')
    a('s_mov_b64 exec, -1')
    a('s_branch K2_CBACK')
    a.label('K2_ZROWS')
    a(f's_mov_b64 exec, s[{sSV}:{sSV+1}]')
    for i in range(4):
        a(f'v_mov_b32 v{TR+i}, 0')
    for nd in range(2):
        a(f'v_cmp_eq_u32 vcc, 0, v{TQ+nd}')
        a(f's_and_b64 exec, vcc, s[{sSV}:{sSV+1}]')
        for k in range(32):
            a(f'ds_write_b128 v{nROW0}, v[{TR}:{TR+3}] offset:{nd*ROWB + 16*k}')
        a(f's_mov_b64 exec, s[{sSV}:{sSV+1}]')
    a('s_mov_b64 exec, -1')
    a('s_branch K2_ZBACK')

    a.label('K2_SLOW')
    if opts.get('wearly', 0) == 0:
        w_frags()
        consts()
    elif opts.get('wearly', 0) == 2:
        a(f's_cmp_lt_u32 s{sW}, 4')
        a('s_cbranch_scc1 K2_WE2')
        w_frags()
        consts()
        a.label('K2_WE2')
    a('s_waitcnt vmcnt(0) lgkmcnt(0)')
    a('s_barrier')
    def full_counts(voff, c0reg):
        a(f's_lshl_b32 s{t1}, s2, 10')
        a(f's_add_u32 s{t1}, s{t1}, {WS_TAB}')
        srd_off(a, rT, sWS, f's{t1}', 2048)
        a(f'buffer_load_dwordx4 v[{SG}:{SG+3}], v{voff}, s[{rT}:{rT+3}], 0 offen')
        a(f'buffer_load_dwordx4 v[{TQ}:{TQ+3}], v{voff}, s[{rT}:{rT+3}], 0 offen offset:1024')
        a(f's_mov_b32 s{t0}, 0xfffff')
        a(f's_cmp_eq_u32 s2, 255')
        a(f's_cselect_b64 s[{sSV}:{sSV+1}], -1, 0')
        a('s_waitcnt vmcnt(0)')
        for i in range(4):
            a(f'v_add_u32 v{tG}, {i+1}, v{c0reg}')
            a(f'v_mul_u32_u24 v{tG}, {CH}, v{tG}')
            a(f'v_min_u32 v{tG}, {E}, v{tG}')
            a(f'v_and_b32 v{TQ+i}, s{t0}, v{TQ+i}')
            a(f'v_cndmask_b32 v{TQ+i}, v{TQ+i}, v{tG}, s[{sSV}:{sSV+1}]')
            a(f'v_and_b32 v{tG}, s{t0}, v{SG+i}')
            a(f'v_sub_u32 v{TQ+i}, v{TQ+i}, v{tG}')
    a(f'v_lshlrev_b32 v{tA}, 4, v{vLANE}')
    a(f'v_lshlrev_b32 v{tB}, 2, v{vLANE}')
    full_counts(tA, tB)
    a(f'v_max_u32 v{tE}, v{TQ}, v{TQ+1}')
    a(f'v_max3_u32 v{tE}, v{tE}, v{TQ+2}, v{TQ+3}')
    wave_scan(a, 'v_max_u32', tE)
    a('s_nop 0')
    a(f'v_readlane_b32 s{t1}, v{tE}, 63')
    a(f's_add_u32 s{t1}, s{t1}, {WSLOW-1}')
    a(f's_mul_i32 s{t1}, s{t1}, 5042')
    a(f's_lshr_b32 s{sNP}, s{t1}, 16')
    a(f's_mov_b32 s{sP}, 0')
    for i in range(4):
        a(f'v_mov_b32 v{TR+i}, 0')
    a(f'v_lshrrev_b32 v{tA}, 5, v0')
    a(f'v_mul_u32_u24 v{tA}, {ROWB}, v{tA}')
    a(f'v_and_b32 v{tB}, 31, v{vLANE}')
    a(f'v_lshl_add_u32 v{tA}, v{tB}, 4, v{tA}')
    a(f'v_add_u32 v{tA}, {L_ACC}, v{tA}')
    for i in range(6):
        a(f'ds_write_b128 v{tA}, v[{TR}:{TR+3}]')
        a(f'v_add_u32 v{tA}, {16*ROWB}, v{tA}')
    a(f'v_cmp_gt_u32 vcc, 64, v0')
    a(f's_and_saveexec_b64 s[{sSV}:{sSV+1}], vcc')
    a(f'ds_write_b128 v{tA}, v[{TR}:{TR+3}]')
    a(f's_mov_b64 exec, s[{sSV}:{sSV+1}]')
    a.label('K2_SPASS')
    a(f's_lshl_b32 s{t0}, s{sW}, 1')
    a(f'v_lshrrev_b32 v{sidA}, 5, v{vLANE}')
    a(f'v_add_u32 v{sidA}, s{t0}, v{sidA}')
    a(f'v_bfe_u32 v{jA}, v{vLANE}, 3, 2')
    a(f'v_bfe_u32 v{sidR}, v{vLANE}, 2, 1')
    a(f'v_add_u32 v{sidR}, s{t0}, v{sidR}')
    a(f'v_and_b32 v{iR4}, 3, v{vLANE}')
    a(f'v_lshlrev_b32 v{iR4}, 2, v{iR4}')
    a(f'v_lshrrev_b32 v{tA}, 3, v{vLANE}')
    a(f'v_lshlrev_b32 v{tA}, 2, v{tA}')
    a(f's_lshl_b32 s{t0}, s{sW}, 5')
    a(f'v_add_u32 v{tA}, s{t0}, v{tA}')
    a(f'v_lshlrev_b32 v{tD}, 2, v{tA}')
    full_counts(tD, tA)
    for i in range(4):
        a(f'v_mov_b32 v{AX+i}, v{TQ+i}')
    a(f'v_and_b32 v{tC}, 7, v{vLANE}')
    a(f'v_lshlrev_b32 v{tC}, 1, v{tC}')
    a(f's_mul_i32 s{t0}, s{sP}, {WSLOW}')
    a(f'v_add_u32 v{tB}, s{t0}, v{tC}')
    a(f'v_lshlrev_b32 v{tB}, 3, v{tB}')
    a(f'v_mov_b32 v{tF}, 0x10000')
    a(f's_mov_b64 s[{MKC}:{MKC+1}], 0')
    a(f's_mov_b64 s[{MKC2}:{MKC2+1}], 0')
    for sub in range(2):
        a(f'v_add_u32 v{tD}, {sub}, v{tC}')
        a(f'v_cmp_gt_u32 vcc, {WSLOW}, v{tD}')
        a(f'v_add_u32 v{tD}, s{t0}, v{tD}')
        a('s_nop 0')
        a(f'v_cndmask_b32 v{tE if sub == 0 else tG}, v{tF}, v{tD}, vcc')
    for it in range(4):
        a(f'v_cmp_gt_u32 s[{MK+4*it}:{MK+4*it+1}], v{AX+it}, v{tE}')
        a(f'v_cmp_gt_u32 s[{MK+4*it+2}:{MK+4*it+3}], v{AX+it}, v{tG}')
    for sl in range(8, 16):
        a(f's_mov_b64 s[{MK+2*sl}:{MK+2*sl+1}], 0')
    rec_loads(tB, 1)
    lds_init()
    a('s_waitcnt vmcnt(0) lgkmcnt(0)')
    a('s_barrier')
    hist()
    a('s_waitcnt lgkmcnt(0)')
    a('s_barrier')
    scan_nodes('S')
    qi_fill('S', False)
    scatter()
    a('s_waitcnt lgkmcnt(0)')
    a('s_barrier')
    a(f's_cmp_eq_u32 s{sL}, 0')
    a('s_cbranch_scc1 K2_SNEXT')
    setup_ptrs()
    a('s_waitcnt lgkmcnt(0)')
    for ins in dma_addr(): a(ins)
    for ins in dma_issue(): a(ins)
    forced_flags()
    pipeline_fill()
    main_loop('S', True)
    a.label('K2_SNEXT')
    a('s_waitcnt vmcnt(0) lgkmcnt(0)')
    a('s_barrier')
    a(f's_add_u32 s{sP}, s{sP}, 1')
    a(f's_cmp_lt_u32 s{sP}, s{sNP}')
    a('s_cbranch_scc1 K2_SPASS')
    epilogue('S', False)
    a.label('K2_END')
    a('s_endpgm')
    return nvgpr, nsgpr

def kd(name, nv, ns):
    acc = (nv + 3) // 4 * 4
    return f'''.amdhsa_kernel {name}
  .amdhsa_next_free_vgpr {nv}
  .amdhsa_next_free_sgpr {ns}
  .amdhsa_accum_offset {acc}
  .amdhsa_group_segment_fixed_size 0
  .amdhsa_kernarg_size 96
  .amdhsa_user_sgpr_count 2
  .amdhsa_user_sgpr_kernarg_segment_ptr 1
  .amdhsa_system_sgpr_workgroup_id_x 1
  .amdhsa_float_denorm_mode_32 3
.end_amdhsa_kernel
'''

DOC = """;
;
"""

def build(opts=None):
    opts = opts or {}
    a = Asm()
    gen_k1(a, opts)
    nv, ns = gen_k2(a, opts)
    out = HEADER
    out += f'; @launch kernel=gs_part_kernel grid=(256,1,1) block=({K1_THREADS},1,1) lds={LDS_K1}\n'
    out += f'; @launch kernel=gs_main_kernel grid=(256,1,1) block=({NW*64},1,1) lds={LDS_MAIN}\n'
    out += DOC
    out += '.amdgcn_target "amdgcn-amd-amdhsa--gfx950"\n.text\n'
    out += a.text()
    out += '.section .rodata,"a"\n.p2align 6\n'
    out += kd('gs_part_kernel', 62 if opts.get('stamp1') else 60, 60)
    out += '.p2align 6\n'
    out += kd('gs_main_kernel', nv, ns)
    return out

if __name__ == '__main__':
    path = sys.argv[1] if len(sys.argv) > 1 else 'gather_scatter__edge_featured_mpnn_gatedgcn__graph.s'
    opts = {}
    for o in sys.argv[2:]:
        k, _, val = o.partition('=')
        opts[k] = int(val) if val else True
    open(path, 'w').write(build(opts))
    print('written', path, 'LDS', LDS_MAIN)
```

```python
import sys, os, struct
sys.path.insert(0, os.path.dirname(__file__))
from asmlib import *

N = 25000; E = 800000
NBK = 256
CH = 3136
RECB = CH * 8
WS_TAB = 0x700000
WS_TAB2 = 0x740000
WS_FRAG = 0x780000
MAGIC_B = 43980466
LOG2E = 0xBFB8AA3B
SBITS = 50
C_SCALE = (127 - SBITS) << 23
EPS_SCALED = 0x4E8637BD
assert abs(struct.unpack('<f', struct.pack('<I', EPS_SCALED))[0] / (1e-6 * 2.0**50) - 1) < 1e-6

NW = 8
NSTREAM = 16
NIT = 16
CAP = 3456
WSLOW = 13
ROWB = 784
MAXN = 98
ENT_QUADS = 960
VROWB = 640
L_CNT = 0
L_ZERO = 512
L_TAB = 1024
L_QI = 1536
L_ENT = L_QI + ENT_QUADS * 4
L_ACC = L_ENT + ENT_QUADS * 16
L_VIRT = L_ACC + MAXN * ROWB
L_WST = L_VIRT + NSTREAM * VROWB
L_WST = (L_WST + 255) // 256 * 256
L_DMA = L_WST + 16384
LDS_MAIN = L_DMA + NW * 4096
assert LDS_MAIN <= 163840, LDS_MAIN
assert L_ACC % 16 == 0 and L_VIRT % 16 == 0

K1_THREADS = 896
K1_HIST = 0
K1_STAGE = 1024
LDS_K1 = K1_STAGE + RECB

HEADER = open(os.path.join(os.path.dirname(__file__), 'header.txt')).read()

def srd(a, sreg, ptr, size):
    a(f's_mov_b32 s{sreg}, s{ptr}')
    a(f's_and_b32 s{sreg+1}, s{ptr+1}, 0xffff')
    a(f's_mov_b32 s{sreg+2}, {size}')
    a(f's_mov_b32 s{sreg+3}, 0x20000')

def srd_off(a, sreg, ptr, off, size):
    a(f's_add_u32 s{sreg}, s{ptr}, {off}')
    a(f's_addc_u32 s{sreg+1}, s{ptr+1}, 0')
    a(f's_and_b32 s{sreg+1}, s{sreg+1}, 0xffff')
    a(f's_mov_b32 s{sreg+2}, {size}')
    a(f's_mov_b32 s{sreg+3}, 0x20000')

def wave_scan(a, op, r):
    for sh in (1, 2, 4, 8):
        a('s_nop 1')
        a(f'{op}_dpp v{r}, v{r}, v{r} row_shr:{sh} row_mask:0xf bank_mask:0xf')
    a('s_nop 1')
    a(f'{op}_dpp v{r}, v{r}, v{r} row_bcast:15 row_mask:0xa bank_mask:0xf')
    a('s_nop 1')
    a(f'{op}_dpp v{r}, v{r}, v{r} row_bcast:31 row_mask:0xc bank_mask:0xf')

def wave_scan2(a, op1, r1, op2, r2):
    steps = [f'row_shr:{sh} row_mask:0xf bank_mask:0xf' for sh in (1, 2, 4, 8)] + \
            ['row_bcast:15 row_mask:0xa bank_mask:0xf', 'row_bcast:31 row_mask:0xc bank_mask:0xf']
    a('s_nop 1')
    for st in steps:
        a(f'{op1}_dpp v{r1}, v{r1}, v{r1} {st}')
        a(f'{op2}_dpp v{r2}, v{r2}, v{r2} {st}')
        a('s_nop 0')

def gen_k1(a, opts):
    ST = opts.get('stamp1', False)
    def stamp(i):
        if not ST: return
        a('s_memtime s[56:57]')
        a('s_waitcnt lgkmcnt(0)')
        a(f'v_writelane_b32 v60, s56, {i}')
    a.raw('.p2align 8')
    a.raw('.globl gs_part_kernel')
    a.raw('.type gs_part_kernel,@function')
    a.label('gs_part_kernel')
    a('s_cmp_ge_u32 s2, 256')
    a('s_cbranch_scc1 K1_END')
    a('s_load_dwordx4 s[4:7], s[0:1], 8')
    a('s_load_dwordx2 s[8:9], s[0:1], 24')
    a('s_load_dwordx2 s[10:11], s[0:1], 88')
    a('s_load_dwordx2 s[44:45], s[0:1], 0')
    if ST: a('v_mov_b32 v60, 0')
    stamp(0)
    if opts.get('dbgtime'):
        a('s_memrealtime s[54:55]')
        a('s_waitcnt lgkmcnt(0)')
        a('s_cmp_ge_u32 s2, 8')
        a('s_cbranch_scc1 K1_NODBG')
        a('v_mov_b32 v20, s54')
        a('s_lshl_b32 s56, s2, 2')
        a('s_add_u32 s56, s56, 0x1200000')
        a('v_mov_b32 v22, s56')
        a('v_cmp_eq_u32 vcc, 0, v0')
        a('s_and_saveexec_b64 s[58:59], vcc')
        a('global_store_dword v22, v20, s[10:11]')
        a('s_mov_b64 exec, s[58:59]')
        a.label('K1_NODBG')
    a('v_lshrrev_b32 v1, 6, v0')
    a('s_mul_i32 s12, s2, %d' % (CH * 4))
    a('v_readfirstlane_b32 s3, v1')
    a('s_lshr_b32 s13, s12, 1')
    a('v_lshlrev_b32 v2, 4, v0')
    a('v_add_u32 v2, s12, v2')
    a('s_cmp_eq_u32 s3, 13')
    a('s_cbranch_scc1 K1_FRAG')
    a('v_lshlrev_b32 v3, 3, v0')
    a('v_add_u32 v3, s13, v3')
    a('s_waitcnt lgkmcnt(0)')
    srd(a, 20, 8, E * 4)
    a('buffer_load_dwordx4 v[4:7], v2, s[20:23], 0 offen')
    srd(a, 24, 6, E * 4)
    srd(a, 28, 4, E * 2)
    if not opts.get('dstfirst', 1):
        a('buffer_load_dwordx4 v[8:11], v2, s[24:27], 0 offen')
        a('buffer_load_dwordx2 v[12:13], v3, s[28:31], 0 offen')
    a('v_lshlrev_b32 v14, 2, v0')
    a('v_mov_b32 v15, 0')
    a('v_cmp_gt_u32 vcc, 256, v0')
    a('s_and_saveexec_b64 s[18:19], vcc')
    a('ds_write_b32 v14, v15 offset:%d' % K1_HIST)
    a('s_mov_b64 exec, s[18:19]')
    a('v_cmp_gt_u32 vcc, %d, v0' % (CH // 4))
    a('s_mov_b32 s14, %d' % (E * 4))
    a('v_cmp_gt_u32 s[16:17], s14, v2')
    a('s_and_b64 s[16:17], s[16:17], vcc')
    a('s_mul_i32 s15, s2, %d' % RECB)
    srd_off(a, 32, 10, 's15', RECB)
    srd_off(a, 36, 10, WS_TAB, 0x80000)
    if opts.get('touch', 0):
        a('s_cmp_lg_u32 s3, 1')
        a('s_cbranch_scc1 K1_NOTOUCH')
        a('v_mov_b32 v41, 0')
        a('buffer_load_dword v42, v41, s[32:35], 0 offen')
        a('buffer_load_dword v43, v41, s[36:39], 0 offen')
        a.label('K1_NOTOUCH')
    a('s_mov_b32 s40, %d' % MAGIC_B)
    a('s_movk_i32 s41, 3125')
    a('v_mov_b32 v15, 1')
    a('s_waitcnt lgkmcnt(0)')
    a('s_barrier')
    if opts.get('dstfirst', 1) == 1:
        a('s_waitcnt vmcnt(0)')
        a('buffer_load_dwordx4 v[8:11], v2, s[24:27], 0 offen')
        a('buffer_load_dwordx2 v[12:13], v3, s[28:31], 0 offen')
    elif opts.get('dstfirst', 1) == 2:
        a('buffer_load_dwordx4 v[8:11], v2, s[24:27], 0 offen')
        a('buffer_load_dwordx2 v[12:13], v3, s[28:31], 0 offen')
        a('s_waitcnt vmcnt(2)')
    if opts.get('xpre', 1) == 1:
        a('s_and_b32 s46, s2, 7')
        a('s_lshr_b32 s47, s2, 3')
        a('s_lshl_b32 s46, s46, 5')
        a('s_add_u32 s46, s46, s47')
        a('s_mul_i32 s46, s46, 3125')
        a('s_add_u32 s46, s46, 31')
        a('s_lshr_b32 s46, s46, 5')
        a('s_lshl_b32 s46, s46, 7')
        a('s_and_b32 s45, s45, 0xffff')
        a('s_mov_b32 s48, s44')
        a('s_mov_b32 s49, s45')
        a('s_mov_b32 s50, %d' % (N * 128))
        a('s_mov_b32 s51, 0x20000')
        a('v_lshlrev_b32 v40, 4, v0')
        a('buffer_load_dwordx4 v[56:59], v40, s[48:51], s46 offen')
    a('s_mov_b64 exec, s[16:17]')
    a('s_cbranch_execz K1_NOEDGE1')
    stamp(1)
    if not opts.get('dstfirst', 1): a('s_waitcnt vmcnt(%d)' % (3 if opts.get('xpre', 1) else 2))
    stamp(2)
    for k in range(4):
        a(f'v_mul_hi_u32 v{16+k}, v{4+k}, s40')
    for k in range(4):
        a(f'v_lshlrev_b32 v{20+k}, 2, v{16+k}')
        a(f'ds_add_rtn_u32 v{24+k}, v{20+k}, v15 offset:{K1_HIST}')
    for k in range(4):
        a(f'v_mul_u32_u24 v{28+k}, s41, v{16+k}')
        a(f'v_add_u32 v{28+k}, 31, v{28+k}')
        a(f'v_lshrrev_b32 v{28+k}, 5, v{28+k}')
        a(f'v_sub_u32 v{28+k}, v{4+k}, v{28+k}')
        a(f'v_lshlrev_b32 v{33+2*k}, 2, v{28+k}')
    a.label('K1_NOEDGE1')
    a('s_mov_b64 exec, -1')
    a('s_waitcnt lgkmcnt(0)')
    stamp(3)
    a('s_barrier')
    stamp(4)
    if opts.get('xpre', 1) == 2:
        a('s_and_b32 s46, s2, 7')
        a('s_lshr_b32 s47, s2, 3')
        a('s_lshl_b32 s46, s46, 5')
        a('s_add_u32 s46, s46, s47')
        a('s_mul_i32 s46, s46, 3125')
        a('s_add_u32 s46, s46, 31')
        a('s_lshr_b32 s46, s46, 5')
        a('s_lshl_b32 s46, s46, 7')
        a('s_and_b32 s45, s45, 0xffff')
        a('s_mov_b32 s48, s44')
        a('s_mov_b32 s49, s45')
        a('s_mov_b32 s50, %d' % (N * 128))
        a('s_mov_b32 s51, 0x20000')
        a('v_lshlrev_b32 v40, 4, v0')
        a('buffer_load_dwordx4 v[56:59], v40, s[48:51], s46 offen')
    a('s_cmp_lg_u32 s3, 0')
    a('s_cbranch_scc1 K1_SCANDONE')
    a('v_lshlrev_b32 v40, 4, v0')
    a('ds_read_b128 v[44:47], v40 offset:%d' % K1_HIST)
    a('s_waitcnt lgkmcnt(0)')
    a('v_add_u32 v48, v44, v45')
    a('v_add_u32 v49, v48, v46')
    a('v_add_u32 v50, v49, v47')
    a('v_mov_b32 v51, v50')
    wave_scan(a, 'v_add_u32', 51)
    a('v_sub_u32 v52, v51, v50')
    a('v_add_u32 v53, v52, v44')
    a('v_add_u32 v54, v52, v48')
    a('v_add_u32 v55, v52, v49')
    a('ds_write_b128 v40, v[52:55] offset:%d' % K1_HIST)
    if not opts.get('w0late', 1): a('s_waitcnt vmcnt(%d)' % (1 if opts.get('xpre', 1) else 0))
    a('s_mul_i32 s15, s2, %d' % CH)
    for k in range(4):
        a(f'v_min_u32 v{48+k}, 0xff, v{44+k}')
        a(f'v_add_u32 v{52+k}, s15, v{52+k}')
        a(f'v_lshl_or_b32 v{48+k}, v{48+k}, 24, v{52+k}')
    a('s_lshl_b32 s15, s2, 10')
    a('buffer_store_dwordx4 v[48:51], v40, s[36:39], s15 offen' + (' sc1' if opts.get('tabst', 1) else ''))
    a.label('K1_SCANDONE')
    a('s_waitcnt lgkmcnt(0)')
    a('s_barrier')
    stamp(5)
    a('s_mov_b64 exec, s[16:17]')
    a('s_cbranch_execz K1_NOEDGE2')
    for k in range(4):
        a(f'ds_read_b32 v{28+k}, v{20+k} offset:{K1_HIST}')
    a('s_cmp_eq_u32 s3, 0')
    a('s_cbranch_scc1 K1_W0')
    a('s_waitcnt vmcnt(%d)' % (1 if opts.get('xpre', 1) else 0))
    a('s_branch K1_HAVE')
    a.label('K1_W0')
    a('s_waitcnt vmcnt(%d)' % (2 if opts.get('xpre', 1) else 1))
    a.label('K1_HAVE')
    a('s_mov_b32 s42, 0xffff0000')
    a('v_lshl_or_b32 v32, v12, 16, v8')
    a('v_and_or_b32 v34, v12, s42, v9')
    a('v_lshl_or_b32 v36, v13, 16, v10')
    a('v_and_or_b32 v38, v13, s42, v11')
    for k in range(4):
        a(f's_waitcnt lgkmcnt({3 if k == 0 else 3})')
        a(f'v_add_lshl_u32 v{28+k}, v{28+k}, v{24+k}, 3')
        a(f'ds_write_b64 v{28+k}, v[{32+2*k}:{33+2*k}] offset:{K1_STAGE}')
    a.label('K1_NOEDGE2')
    a('s_mov_b64 exec, -1')
    a('v_lshlrev_b32 v2, 4, v0')
    a('v_add_u32 v3, %d, v2' % (RECB // 2))
    a('v_cmp_gt_u32 vcc, %d, v0' % (CH // 4))
    a('s_waitcnt lgkmcnt(0)')
    stamp(6)
    a('s_barrier')
    stamp(7)
    a('s_and_saveexec_b64 s[18:19], vcc')
    a('s_cbranch_execz K1_END')
    a('ds_read_b128 v[4:7], v2 offset:%d' % K1_STAGE)
    a('ds_read_b128 v[8:11], v2 offset:%d' % (K1_STAGE + RECB // 2))
    a('s_waitcnt lgkmcnt(1)')
    sfx = {0: '', 1: ' sc1', 2: ' nt', 3: ' sc0 sc1', 4: ' sc1 nt'}[opts.get('k1st', 1)]
    a('buffer_store_dwordx4 v[4:7], v2, s[32:35], 0 offen' + sfx)
    a('s_waitcnt lgkmcnt(0)')
    a('buffer_store_dwordx4 v[8:11], v3, s[32:35], 0 offen' + sfx)
    if opts.get('endwait', 1): a('s_waitcnt vmcnt(0)')
    if ST:
        stamp(8)
        a('s_waitcnt vmcnt(0)')
        stamp(9)
        a('s_mul_i32 s12, s2, 16')
        a('s_add_u32 s12, s12, s3')
        a('s_lshl_b32 s12, s12, 8')
        a('s_add_u32 s12, s12, 0x1100000')
        a('s_add_u32 s32, s10, s12')
        a('s_addc_u32 s33, s11, 0')
        a('s_and_b32 s33, s33, 0xffff')
        a('s_mov_b32 s34, 256')
        a('s_mov_b64 exec, -1')
        a('v_and_b32 v4, 63, v0')
        a('v_lshlrev_b32 v4, 2, v4')
        a('buffer_store_dword v60, v4, s[32:35], 0 offen')
    if opts.get('dbgtime'):
        a('s_waitcnt vmcnt(0)')
        a('s_memrealtime s[54:55]')
        a('s_waitcnt lgkmcnt(0)')
        a('s_cmp_ge_u32 s2, 8')
        a('s_cbranch_scc1 K1_END')
        a('s_cmp_lg_u32 s3, 0')
        a('s_cbranch_scc1 K1_END')
        a('v_mov_b32 v20, s54')
        a('s_lshl_b32 s56, s2, 2')
        a('s_add_u32 s56, s56, 0x1200100')
        a('v_mov_b32 v22, s56')
        a('s_mov_b64 exec, 1')
        a('global_store_dword v22, v20, s[10:11]')
    a('s_endpgm')
    a.label('K1_FRAG')
    if opts.get('codepre', 0):
        a('s_cmp_lt_u32 s2, 32')
        a('s_cbranch_scc1 K1_FRAG2')
        a('s_cmp_ge_u32 s2, 64')
        a('s_cbranch_scc1 K1_END')
        a('s_getpc_b64 s[12:13]')
        a.label('K1_PCREF')
        a('s_add_u32 s12, s12, gs_main_kernel-K1_PCREF')
        a('s_addc_u32 s13, s13, 0')
        a('v_and_b32 v1, 63, v0')
        a('v_lshlrev_b32 v2, 4, v1')
        for i in range(opts.get('codekb', 20)):
            a(f'global_load_dwordx4 v[4:7], v2, s[12:13]')
            a('v_add_u32 v2, 1024, v2')
        a('s_endpgm')
        a.label('K1_FRAG2')
    a('s_cmp_ge_u32 s2, 32')
    a('s_cbranch_scc1 K1_END')
    if opts.get('fragbar', 1):
        a('s_barrier')
    a('s_load_dwordx4 s[12:15], s[0:1], 32')
    a('s_load_dwordx4 s[16:19], s[0:1], 56')
    a('s_lshr_b32 s20, s2, 3')
    a('s_waitcnt lgkmcnt(0)')
    a('s_mov_b32 s22, s14')
    a('s_mov_b32 s23, s15')
    a('s_cmp_eq_u32 s20, 1')
    a('s_cselect_b32 s22, s18, s22')
    a('s_cselect_b32 s23, s19, s23')
    a('s_cmp_eq_u32 s20, 2')
    a('s_cselect_b32 s22, s12, s22')
    a('s_cselect_b32 s23, s13, s23')
    a('s_cmp_eq_u32 s20, 3')
    a('s_cselect_b32 s22, s16, s22')
    a('s_cselect_b32 s23, s17, s23')
    srd(a, 24, 22, 64 * 64 * 2)
    srd_off(a, 28, 10, WS_FRAG, 32 * 1024)
    a('s_and_b32 s32, s2, 3')
    a('s_lshr_b32 s33, s2, 2')
    a('s_and_b32 s33, s33, 1')
    a('s_lshl_b32 s32, s32, 11')
    a('s_lshl_b32 s33, s33, 6')
    a('s_add_u32 s32, s32, s33')
    a('v_and_b32 v1, 63, v0')
    a('v_and_b32 v2, 31, v1')
    a('v_lshlrev_b32 v2, 1, v2')
    a('v_lshrrev_b32 v3, 5, v1')
    a('v_lshlrev_b32 v3, 10, v3')
    a('v_add3_u32 v2, v2, v3, s32')
    for i in range(8):
        a(f'buffer_load_ushort v{8+i}, v2, s[24:27], 0 offen offset:{i*128}')
    a('s_mov_b32 s34, 1.0')
    a('s_and_b32 s36, s20, 1')
    a('s_cmp_eq_u32 s36, 0')
    a('s_cselect_b32 s34, 0x%x, s34' % LOG2E)
    a('s_waitcnt vmcnt(0)')
    for i in range(8):
        a(f'v_lshlrev_b32 v{8+i}, 16, v{8+i}')
        a(f'v_mul_f32 v{8+i}, s34, v{8+i}')
    for i in range(4):
        a(f'v_cvt_pk_bf16_f32 v{16+i}, v{8+2*i}, v{9+2*i}')
    a('v_lshlrev_b32 v4, 4, v1')
    a('s_lshl_b32 s35, s2, 10')
    a('v_add_u32 v4, s35, v4')
    a('buffer_store_dwordx4 v[16:19], v4, s[28:31], 0 offen' + (' sc1' if opts.get('fragst', 0) else ''))
    if opts.get('endwait', 1): a('s_waitcnt vmcnt(0)')
    a.label('K1_END')
    a('s_endpgm')

def gen_k2(a, opts):
    STAMP = opts.get('stamp', False)
    vLANE = 1; BC = 2
    WB = 4; WV = 36; AX = 68
    GA = 84; HA = 100; GB = 116; HB = 132
    PP = 148; TT_ = 156; ZZ = 164
    DEN = 172; NUM = 176
    AE = [180, 184]; BE = 188; R0 = 192
    QA = [196, 200]
    EN = 204; RA = 208; CO = 212
    pEN = 216; pEE = 217; pQI = 218; pQF = 219
    C4 = 220; SEL = [221, 222]; EE = 223; QF = 224
    F0 = 225; F1 = 226; F2 = 252; F3 = 227
    tA = 227; tB = 228; tC = 229; tD = 230; tE = 231; tF = 232; tG = 233; tH = 234; tI = 235
    TQ = 236; TR = 240
    sidA = 244; jA = 245; sidR = 246; iR4 = 247
    vST = 253; GF = 249; GD = 250
    PB = 228; TB = 236; ZB = 244
    RC = 252; RKC = 225; RKC2 = 226; tJ = 251
    nvgpr = 256
    REC = PP; RK = GB; SG = HB
    G_ = [GA, GB]; H_ = [HA, HB]
    nOFF0 = AE[0]+0 if False else QA[0]; nOFF1 = QA[0]+1; nEND0 = QA[0]+2; nEND1 = QA[0]+3; nROW0 = QA[1]
    S = Regs('s', 3, 102)
    sX = S.alloc('x', 2, 2); sWC = S.alloc('wc', 2, 2); sOUT = S.alloc('out', 2, 2); sWS = S.alloc('ws', 2, 2)
    rX = S.alloc('rX', 4, 4); rT = S.alloc('rT', 4, 4); rR = S.alloc('rR', 4, 4); rF = S.alloc('rF', 4, 4)
    sW = S.alloc('w'); sNS = S.alloc('ns'); sNN = S.alloc('nn')
    sP = S.alloc('pass'); sNP = S.alloc('npass')
    sL = S.alloc('L'); sCNT = S.alloc('cnt'); sLA = S.alloc('La'); sLB = S.alloc('Lb'); sSO = S.alloc('streamoff')
    sC = S.alloc('C', 2, 2)
    sF = [S.alloc('F0', 2, 2), S.alloc('F1', 2, 2)]
    sANY = [S.alloc('any0'), S.alloc('any1')]
    s128 = S.alloc('c128'); sLO = S.alloc('lo16'); sHI = S.alloc('hi16')
    t0 = S.alloc('t0'); t1 = S.alloc('t1'); t2 = S.alloc('t2', 1, 2); t3 = S.alloc('t3')
    sSV = S.alloc('sv', 2, 2); sSV2 = S.alloc('sv2', 2, 2)
    sDB = S.alloc('dmabase'); sSWAP = S.alloc('swap')
    sDBG = S.alloc('dbg', 2, 2) if opts.get('dbgtime') else None
    sT0 = S.alloc('dbgt0', 2, 2) if opts.get('dbgtime') else None
    sT1 = S.alloc('dbgt1') if opts.get('dbgtime') else None
    sT2 = S.alloc('dbgt2') if opts.get('dbgtime') else None
    MK = S.alloc('MK', 32, 2)
    MKC = S.alloc('MKC', 2, 2); MKC2 = S.alloc('MKC2', 2, 2)
    rO = rT
    nsgpr = S.hi
    def stamp(i):
        if not STAMP: return
        a(f's_memtime s[{t2}:{t3}]')
        a('s_waitcnt lgkmcnt(0)')
        a(f'v_writelane_b32 v{vST}, s{t2}, {i}')
    XB = 4096

    a.raw('.p2align 8')
    a.raw('.globl gs_main_kernel')
    a.raw('.type gs_main_kernel,@function')
    a.label('gs_main_kernel')
    a('s_cmp_ge_u32 s2, 256')
    a('s_cbranch_scc1 K2_END')
    a(f's_load_dwordx2 s[{sWS}:{sWS+1}], s[0:1], 88')
    a(f's_load_dwordx2 s[{sX}:{sX+1}], s[0:1], 0')
    a(f's_load_dwordx2 s[{sWC}:{sWC+1}], s[0:1], 48')
    a(f's_load_dwordx2 s[{sOUT}:{sOUT+1}], s[0:1], 72')
    a('s_and_b32 s3, s2, 7')
    a('s_lshr_b32 s2, s2, 3')
    a('s_lshl_b32 s3, s3, 5')
    a('s_add_u32 s2, s2, s3')
    if opts.get('dbgtime'):
        a(f's_load_dwordx2 s[{sDBG}:{sDBG+1}], s[0:1], 80')
        a(f's_memrealtime s[{sT0}:{sT0+1}]')
        a('s_waitcnt lgkmcnt(0)')
    if STAMP:
        a(f'v_mov_b32 v{vST}, 0')
        a(f's_memtime s[{MK}:{MK+1}]')
        a(f's_memrealtime s[{MK+2}:{MK+3}]')
    a(f'v_lshrrev_b32 v{tA}, 6, v0')
    a(f'v_and_b32 v{vLANE}, 63, v0')
    a(f'v_readfirstlane_b32 s{sW}, v{tA}')
    a(f'v_lshrrev_b32 v{sidA}, 5, v{vLANE}')
    if opts.get('proprio'):
        a('s_nop 2')
        a(f's_cmp_ge_u32 s{sW}, 4')
        a('s_cbranch_scc0 K2_PP0')
        a('s_setprio 1')
        a.label('K2_PP0')
    a(f's_lshl_b32 s{t0}, s{sW}, 1')
    a(f'v_add_u32 v{sidA}, s{t0}, v{sidA}')
    a(f'v_lshrrev_b32 v{tD}, 3, v{vLANE}')
    a(f'v_lshlrev_b32 v{tD}, 12, v{tD}')
    a(f's_lshl_b32 s{t0}, s{sW}, 15')
    a(f'v_add_u32 v{tD}, s{t0}, v{tD}')
    a(f'v_lshlrev_b32 v{tA}, 4, v{vLANE}')
    a(f's_mul_i32 s{t0}, s2, 3125')
    a(f's_add_u32 s{sNS}, s{t0}, 31')
    a(f's_lshr_b32 s{sNS}, s{sNS}, 5')
    a(f's_add_u32 s{t0}, s{t0}, {3125+31}')
    a(f's_lshr_b32 s{t0}, s{t0}, 5')
    a(f's_sub_u32 s{sNN}, s{t0}, s{sNS}')
    a(f's_lshl_b32 s{sDB}, s{sW}, 12')
    a(f's_add_u32 s{sDB}, s{sDB}, {L_DMA}')
    a(f'v_bfe_u32 v{tE}, v{vLANE}, 4, 1')
    a(f'v_and_b32 v{tF}, 7, v{vLANE}')
    a(f'v_xor_b32 v{tE}, v{tE}, v{tF}')
    a(f'v_lshlrev_b32 v{tE}, 4, v{tE}')
    for i in range(4):
        if i: a(f'v_xor_b32 v{tF}, {32*i}, v{tE}')
        a(f'v_add_u32 v{CO+i}, {XB - 1024*i}, v{tF if i else tE}')
    a(f'v_bfe_u32 v{jA}, v{vLANE}, 3, 2')
    a(f'v_lshrrev_b32 v{tF}, 5, v{vLANE}')
    a(f'v_lshlrev_b32 v{tE}, 3, v{jA}')
    a(f'v_lshl_add_u32 v{tE}, v{tF}, 2, v{tE}')
    a(f's_lshr_b32 s{t0}, s{sW}, 1')
    a(f's_lshl_b32 s{t1}, s{t0}, 5')
    a(f's_add_u32 s{t1}, s{t1}, s{sNS}')
    a(f's_and_b32 s{t2}, s{sW}, 1')
    a(f's_lshl_b32 s{t2}, s{t2}, 1')
    a(f's_add_u32 s{t1}, s{t1}, s{t2}')
    a(f'v_add_u32 v{tE}, s{t1}, v{tE}')
    a(f'v_lshlrev_b32 v{tE}, 7, v{tE}')
    a(f's_cmp_eq_u32 s{t2}, 0')
    a(f's_cbranch_scc0 K2_XI2')
    a(f'v_add_u32 v{tH}, v{tE}, v{CO}')
    a(f'v_add_u32 v{tI}, v{tE}, v{CO+1}')
    a('s_branch K2_XI')
    a.label('K2_XI2')
    a(f'v_add_u32 v{tH}, v{tE}, v{CO+2}')
    a(f'v_add_u32 v{tI}, v{tE}, v{CO+3}')
    a(f'v_add_u32 v{tH}, 2048, v{tH}')
    a(f'v_add_u32 v{tI}, 2048, v{tI}')
    a.label('K2_XI')
    a(f'v_add_u32 v{tI}, 128, v{tI}')
    a(f'v_and_b32 v{C4}, 31, v{vLANE}')
    a(f's_lshl_b32 s{t1}, s2, 2')
    a(f's_add_u32 s{t1}, s{t1}, {WS_TAB}')
    a('s_waitcnt lgkmcnt(0)')
    if STAMP:
        a(f'v_writelane_b32 v{vST}, s{MK}, 0')
        a(f'v_writelane_b32 v{vST}, s{MK+2}, 11')
    srd_off(a, rT, sWS, f's{t1}', 256 * 1024)
    for it in range(4):
        a(f'buffer_load_dword v{SG+it}, v{tD}, s[{rT}:{rT+3}], 0 offen' + (f' offset:{1024*it}' if it else ''))
    a(f's_sub_u32 s{rX}, s{sX}, {XB}')
    a(f's_subb_u32 s{rX+1}, s{sX+1}, 0')
    a(f's_and_b32 s{rX+1}, s{rX+1}, 0xffff')
    a(f's_mov_b32 s{rX+2}, {N*128 + XB}')
    a(f's_mov_b32 s{rX+3}, 0x20000')
    srd_off(a, rF, sWS, WS_FRAG, 32 * 1024)
    def staging():
        a(f's_lshr_b32 s{t0}, s{sW}, 1')
        a(f's_lshl_b32 s{t0}, s{t0}, 12')
        a(f's_and_b32 s{t2}, s{sW}, 1')
        a(f's_lshl_b32 s{t2}, s{t2}, 11')
        a(f's_add_u32 s{t0}, s{t0}, s{t2}')
        a(f's_add_u32 s{t0}, s{t0}, {L_DMA}')
        a(f's_mov_b32 m0, s{t0}')
        a(f'v_lshlrev_b32 v{tA}, 4, v{vLANE}')
        if not opts.get('noxown'):
            a(f'buffer_load_dwordx4 v{tH}, s[{rX}:{rX+3}], 0 offen lds')
            a(f'buffer_load_dwordx4 v{tI}, s[{rX}:{rX+3}], 0 offen offset:1024 lds')
        a(f's_lshl_b32 s{t0}, s{sW}, 11')
        a(f's_add_u32 s{t1}, s{t0}, {L_DMA + 4*4096}')
        a(f's_mov_b32 m0, s{t1}')
        a(f's_add_u32 s{t2}, s{t0}, {16*1024}')
        a(f'buffer_load_dwordx4 v{tA}, s[{rF}:{rF+3}], s{t2} offen lds')
        a(f'buffer_load_dwordx4 v{tA}, s[{rF}:{rF+3}], s{t2} offen offset:1024 lds')
        a(f's_add_u32 s{t1}, s{t0}, {L_WST}')
        a(f's_mov_b32 m0, s{t1}')
        a('s_nop 0')
        a(f'buffer_load_dwordx4 v{tA}, s[{rF}:{rF+3}], s{t0} offen lds')
        a(f'buffer_load_dwordx4 v{tA}, s[{rF}:{rF+3}], s{t0} offen offset:1024 lds')
        srd(a, rR, sWC, 128)
        a(f'v_lshlrev_b32 v{tE}, 1, v{C4}')
        if not opts.get('nowc'):
            a(f'buffer_load_ushort v{BC}, v{tE}, s[{rR}:{rR+3}], 0 offen')
            a(f'buffer_load_ushort v{BC+1}, v{tE}, s[{rR}:{rR+3}], 0 offen offset:64')
    staging()
    MKT = (MK + 3) // 4 * 4
    if opts.get('touch', 0):
        srd(a, MKT, sWS, NBK * RECB)
        a(f'v_and_b32 v{tE}, 3, v{vLANE}')
        a(f'v_lshlrev_b32 v{tE}, 21, v{tE}')
        a(f'buffer_load_dword v{F0}, v{tE}, s[{MKT}:{MKT+3}], 0 offen')
        srd(a, MKT + 4, sOUT, N * 128)
        a(f'v_and_b32 v{tE}, 1, v{vLANE}')
        a(f'v_lshlrev_b32 v{tE}, 21, v{tE}')
        a(f'buffer_load_dword v{F1}, v{tE}, s[{MKT+4}:{MKT+7}], 0 offen')
    def lds_init():
        a(f'v_lshlrev_b32 v{tE}, 4, v0')
        a(f'v_mov_b32 v{TR}, 0xffff')
        a(f'v_mov_b32 v{TR+1}, 0xffff')
        a(f'v_mov_b64 v[{TR+2}:{TR+3}], v[{TR}:{TR+1}]')
        a(f'ds_write_b128 v{tE}, v[{TR}:{TR+3}] offset:{L_ENT}')
        a(f's_cmp_ge_u32 s{sW}, {(ENT_QUADS - 512) // 64}')
        a(f's_cbranch_scc1 K2_I1{tag_i[0]}')
        a(f'ds_write_b128 v{tE}, v[{TR}:{TR+3}] offset:{L_ENT + 512*16}')
        a.label(f'K2_I1{tag_i[0]}')
        assert (ENT_QUADS - 512) % 64 == 0
        a(f'v_mov_b32 v{TR}, {L_VIRT}')
        a(f'v_mov_b32 v{TR+1}, {L_VIRT}')
        a(f'v_mov_b64 v[{TR+2}:{TR+3}], v[{TR}:{TR+1}]')
        a(f'v_cmp_gt_u32 vcc, {ENT_QUADS // 4}, v0')
        a(f's_and_saveexec_b64 s[{sSV}:{sSV+1}], vcc')
        a(f'ds_write_b128 v{tE}, v[{TR}:{TR+3}] offset:{L_QI}')
        a(f's_mov_b64 exec, s[{sSV}:{sSV+1}]')
        a(f's_cmp_lg_u32 s{sW}, 0')
        a(f's_cbranch_scc1 K2_I2{tag_i[0]}')
        a(f'v_mov_b64 v[{TR}:{TR+1}], 0')
        a(f'v_mov_b64 v[{TR+2}:{TR+3}], 0')
        a(f'ds_write_b128 v{tE}, v[{TR}:{TR+3}] offset:{L_CNT}')
        a(f'v_add_u32 v{tE}, {L_VIRT + 512}, v{tE}')
        a('s_mov_b64 exec, 0xff')
        a(f'ds_write_b128 v{tE}, v[{TR}:{TR+3}]')
        a('s_mov_b64 exec, -1')
        a.label(f'K2_I2{tag_i[0]}')
        tag_i[0] += 1
    tag_i = [0]
    lds_init()
    a(f'v_and_b32 v{tE}, 3, v{vLANE}')
    a(f'v_lshlrev_b32 v{iR4}, 2, v{tE}')
    a(f'v_lshl_add_u32 v{RA}, v{tE}, 3, v{jA}')
    a(f'v_lshrrev_b32 v{tF}, 1, v{jA}')
    a(f'v_lshl_add_u32 v{tE}, v{tE}, 1, v{tF}')
    a(f'v_bfe_u32 v{tF}, v{vLANE}, 2, 1')
    a(f's_lshl_b32 s{t0}, s{sW}, 1')
    a(f'v_add_u32 v{sidR}, s{t0}, v{tF}')
    a(f'v_lshl_add_u32 v{RA}, v{tF}, 2, v{RA}')
    a(f'v_lshrrev_b32 v{tG}, 5, v{vLANE}')
    a(f'v_cmp_eq_u32 vcc, v{tF}, v{tG}')
    a(f'v_xor_b32 v{tE}, v{tE}, v{tG}')
    a(f'v_lshlrev_b32 v{tE}, 4, v{tE}')
    a(f'v_lshl_add_u32 v{RA}, v{RA}, 7, v{tE}')
    a(f'v_mov_b32 v{tF}, 0x3f80')
    a(f'v_cndmask_b32 v{tF}, 0, v{tF}, vcc')
    a(f'v_lshlrev_b32 v{tG}, v{jA}, 1') if False else None
    a(f'v_mov_b32 v{tG}, 1')
    a(f'v_lshlrev_b32 v{tG}, v{jA}, v{tG}')
    for q in range(4):
        a(f'v_bfe_u32 v{tE}, v{tG}, {q}, 1')
        a(f'v_mul_u32_u24 v{AE[0]+q}, v{tE}, v{tF}')
        a(f'v_lshlrev_b32 v{AE[1]+q}, 16, v{AE[0]+q}')
    a(f'v_cmp_gt_u32 vcc, 32, v{vLANE}')
    a(f'v_mov_b32 v{tE}, 0x0a0c0100')
    a(f'v_mov_b32 v{tF}, 0x07060100')
    a(f'v_cndmask_b32 v{SEL[0]}, v{tE}, v{tF}, vcc')
    a(f'v_mov_b32 v{tE}, 0x03020a0c')
    a(f'v_mov_b32 v{tF}, 0x03020706')
    a(f'v_cndmask_b32 v{SEL[1]}, v{tE}, v{tF}, vcc')
    a(f's_mov_b32 s{sC}, 0x{C_SCALE:x}')
    a(f's_mov_b32 s{sC+1}, 0x{C_SCALE:x}')
    a(f's_mov_b32 s{s128}, 128')
    a(f's_mov_b32 s{sLO}, 0xffff')
    a(f's_mov_b32 s{sHI}, 0xffff0000')
    a(f'v_and_b32 v{tB}, 7, v{vLANE}')
    a(f'v_lshlrev_b32 v{tB}, 4, v{tB}')
    a(f'v_lshlrev_b32 v{C4}, 2, v{C4}')
    a('s_waitcnt vmcnt(%d) lgkmcnt(0)' % (2 if opts.get('touch', 0) else 0))
    stamp(1)
    a('s_barrier')
    srd(a, rR, sWS, NBK * RECB)
    def slot_ent(sl): return REC + 2*sl
    def rec_loads(vk16, nwin):
        for it in range(4):
            a(f'v_mad_u32_u24 v{RK+it}, v{SG+it}, 8, v{vk16}')
        for w_ in range(nwin):
            for it in range(4):
                sl = 8*w_ + 2*it
                a(f's_mov_b64 exec, s[{MK+2*sl}:{MK+2*sl+1}]')
                sk = a.newlabel('skl') if w_ else None
                if sk: a(f's_cbranch_execz {sk}')
                a(f'buffer_load_dwordx4 v[{REC+2*sl}:{REC+2*sl+3}], v{RK+it}, s[{rR}:{rR+3}], 0 offen' + (' offset:128' if w_ else ''))
                if sk: a.label(sk)
        a('s_mov_b64 exec, -1')
    a(f'v_lshrrev_b32 v{tC}, 3, v{tB}')
    for w_ in range(2):
        for sub in range(2):
            if w_ or sub: a(f'v_add_u32 v{tD}, {16*w_ + sub}, v{tC}')
            for it in range(4):
                sl = 8*w_ + 2*it + sub
                a(f'v_cmp_gt_u32_sdwa s[{MK+2*sl}:{MK+2*sl+1}], v{SG+it}, v{tD if (w_ or sub) else tC} src0_sel:BYTE_3 src1_sel:DWORD')
    stamp(25)
    rec_loads(tB, 2)
    stamp(26)
    a(f'v_max3_u32 v{tD}, v{SG}, v{SG+1}, v{SG+2}')
    a(f'v_max_u32 v{tD}, v{tD}, v{SG+3}')
    a(f'v_lshrrev_b32 v{tD}, 24, v{tD}')
    a(f'v_cmp_lt_u32 s[{sSV2}:{sSV2+1}], 32, v{tD}')
    a(f's_mov_b64 s[{MKC}:{MKC+1}], 0')
    a(f's_mov_b64 s[{MKC2}:{MKC2+1}], 0')
    a(f's_cmp_lg_u64 s[{sSV2}:{sSV2+1}], 0')
    a('s_cbranch_scc1 K2_CSEL')
    a.label('K2_CBACK')

    def gemm_issue():
        a(f's_lshr_b32 s{t0}, s{sW}, 1')
        a(f's_lshl_b32 s{t1}, s{t0}, 12')
        a(f's_add_u32 s{t1}, s{t1}, {L_DMA}')
        a(f'v_add_u32 v{tA}, s{t1}, v{RA}')
        a(f'v_xor_b32 v{tB}, 32, v{tA}')
        a(f'ds_read_b128 v[{AX}:{AX+3}], v{tA}')
        a(f'ds_read_b128 v[{AX+4}:{AX+7}], v{tB}')
        a(f'v_xor_b32 v{tB}, 64, v{tA}')
        a(f'v_xor_b32 v{tC}, 96, v{tA}')
        a(f'ds_read_b128 v[{AX+8}:{AX+11}], v{tB}')
        a(f'ds_read_b128 v[{AX+12}:{AX+15}], v{tC}')
        a(f's_and_b32 s{t2}, s{sW}, 1')
        a(f's_lshl_b32 s{t3}, s{t2}, 13')
        a(f's_add_u32 s{t3}, s{t3}, {L_DMA + 4*4096}')
        a(f'v_lshlrev_b32 v{GF}, 4, v{vLANE}')
        a(f'v_add_u32 v{GF}, s{t3}, v{GF}')
        for f in range(4):
            a(f'ds_read_b128 v[{SG+4*f}:{SG+4*f+3}], v{GF} offset:{f*1024}')
        for f in range(4):
            a(f'ds_read_b128 v[{RK+4*f}:{RK+4*f+3}], v{GF} offset:{(4+f)*1024}')
        a(f's_mul_i32 s{t1}, s{t0}, {32*ROWB}')
        a(f's_lshl_b32 s{t3}, s{t2}, 7')
        a(f's_add_u32 s{t1}, s{t1}, s{t3}')
        a(f's_add_u32 s{t1}, s{t1}, {L_ACC + 512}')
        a(f'v_lshrrev_b32 v{GD}, 5, v{vLANE}')
        a(f'v_mul_u32_u24 v{GD}, {4*ROWB}, v{GD}')
        a(f'v_add3_u32 v{GD}, v{GD}, v{C4}, s{t1}')
    def gemm_mid():
        a('s_waitcnt lgkmcnt(0)')
        for kp in range(4):
            c = '0' if kp == 0 else f'v[{GA}:{GA+15}]'
            a(f'v_mfma_f32_32x32x16_bf16 v[{GA}:{GA+15}], v[{AX+4*kp}:{AX+4*kp+3}], v[{SG+4*kp}:{SG+4*kp+3}], {c}')
            c = '0' if kp == 0 else f'v[{HA}:{HA+15}]'
            a(f'v_mfma_f32_32x32x16_bf16 v[{HA}:{HA+15}], v[{AX+4*kp}:{AX+4*kp+3}], v[{RK+4*kp}:{RK+4*kp+3}], {c}')
    def gemm_mid2():
        a('s_nop 7')
        a('s_nop 3')
    def w_frags():
        a(f'v_lshlrev_b32 v{GF}, 4, v{vLANE}')
        a(f'v_add_u32 v{GF}, {L_WST}, v{GF}')
        for f in range(16):
            dst = (WB + 4*f) if f < 8 else (WV + 4*(f-8))
            if f == 12: a('s_waitcnt lgkmcnt(8)')
            a(f'ds_read_b128 v[{dst}:{dst+3}], v{GF} offset:{f*1024}')
    def gemm_store(tag):
        for i in range(16):
            a(f'v_cvt_pk_bf16_f32 v{GA+i}, v{GA+i}, v{HA+i}')
        a(f's_lshr_b32 s{t0}, s{sW}, 1')
        a(f's_cmp_eq_u32 s{t0}, 3')
        a(f's_cbranch_scc1 K2_RT3{tag}')
        for vv in range(16):
            if vv == 12: a('s_waitcnt lgkmcnt(8)')
            a(f'ds_write_b32 v{GD}, v{GA+vv} offset:{(8*(vv//4) + vv%4) * ROWB}')
        a(f's_branch K2_RTD{tag}')
        a.label(f'K2_RT3{tag}')
        a('s_mov_b32 exec_hi, 0')
        for vv in range(2):
            a(f'ds_write_b32 v{GD}, v{GA+vv} offset:{vv * ROWB}')
        a('s_mov_b64 exec, -1')
        a.label(f'K2_RTD{tag}')
    def consts():
        a(f'v_add_u32 v{RA}, s{sDB}, v{RA}')
        for kp in range(1, 4):
            a(f'v_xor_b32 v{RA+kp}, {32*kp}, v{RA}')
        a(f's_mov_b32 s{t3}, 0x{LOG2E:x}')
        for cc in range(2):
            a(f'v_lshlrev_b32 v{BC+cc}, 16, v{BC+cc}')
            a(f'v_mul_f32 v{BC+cc}, s{t3}, v{BC+cc}')
        a(f'v_cvt_pk_bf16_f32 v{BC}, 0, v{BC}')
        a(f'v_cvt_pk_bf16_f32 v{BC+1}, v{BC+1}, 0')
        a(f'v_cmp_gt_u32 vcc, 32, v{vLANE}')
        a(f'v_mov_b32 v{tG}, 0xb2000000')
        a(f'v_mov_b32 v{tH}, 0xb200')
        a(f'v_cndmask_b32 v{BC}, v{tG}, v{BC}, vcc')
        a(f'v_cndmask_b32 v{BC+1}, v{tH}, v{BC+1}, vcc')

    def hist():
        a(f'v_mov_b32 v{tE}, 1')
        for sl in range(8):
            a(f's_mov_b64 exec, s[{MK+2*sl}:{MK+2*sl+1}]')
            a(f'ds_add_rtn_u32 v{RK+sl}, v{REC+2*sl+1}, v{tE} offset:{L_CNT}')
        a('s_waitcnt lgkmcnt(6)')
        for sl in range(8, 16, 2):
            sk = a.newlabel('skh')
            a(f's_mov_b64 exec, s[{MK+2*sl}:{MK+2*sl+1}]')
            a(f's_cbranch_execz {sk}')
            a(f'ds_add_rtn_u32 v{RK+sl}, v{REC+2*sl+1}, v{tE} offset:{L_CNT}')
            a(f's_mov_b64 exec, s[{MK+2*sl+2}:{MK+2*sl+3}]')
            a(f'ds_add_rtn_u32 v{RK+sl+1}, v{REC+2*sl+3}, v{tE} offset:{L_CNT}')
            a.label(sk)
        sk = a.newlabel('skhc')
        a(f's_mov_b64 exec, s[{MKC}:{MKC+1}]')
        a(f's_cbranch_execz {sk}')
        a('s_waitcnt lgkmcnt(6)')
        a(f'ds_add_rtn_u32 v{RKC}, v{RC+1}, v{tE} offset:{L_CNT}')
        a(f's_mov_b64 exec, s[{MKC2}:{MKC2+1}]')
        a(f'ds_add_rtn_u32 v{RKC2}, v{RC+3}, v{tE} offset:{L_CNT}')
        a.label(sk)
        a('s_mov_b64 exec, -1')

    def scan_nodes(tag, mid=None):
        a(f'v_lshlrev_b32 v{tA}, 3, v{vLANE}')
        a(f'ds_read_b64 v[{TQ}:{TQ+1}], v{tA} offset:{L_CNT}')
        a(f'v_mul_u32_u24 v{nROW0}, {2*ROWB}, v{vLANE}')
        a(f'v_add_u32 v{nROW0}, {L_ACC}, v{nROW0}')
        if mid: mid()
        else: a('s_waitcnt lgkmcnt(0)')
        a(f'v_add_u32 v{tE}, 3, v{TQ}')
        a(f'v_add_u32 v{tF}, 3, v{TQ+1}')
        a(f'v_and_b32 v{tE}, -4, v{tE}')
        a(f'v_and_b32 v{tF}, -4, v{tF}')
        a(f'v_add_u32 v{tC}, v{tE}, v{tF}')
        a(f'v_max_u32 v{tB}, v{tE}, v{tF}')
        a(f'v_mov_b32 v{tD}, v{tC}')
        wave_scan(a, 'v_add_u32', tD)
        a(f'v_sub_u32 v{nOFF0}, v{tD}, v{tC}')
        a(f'v_readlane_b32 s{t1}, v{tD}, 63')
        a(f'v_add_u32 v{nOFF1}, v{nOFF0}, v{tE}')
        a(f'v_lshlrev_b32 v{TQ+2}, 2, v{nOFF0}')
        a(f'v_lshlrev_b32 v{TQ+3}, 2, v{nOFF1}')
        a(f'ds_write_b64 v{tA}, v[{TQ+2}:{TQ+3}] offset:{L_TAB}')
        a(f'v_mov_b32 v{nEND0}, v{nOFF1}')
        a(f'v_add_u32 v{nEND1}, v{nOFF1}, v{tF}')
        a(f's_add_u32 s{t1}, s{t1}, 127')
        a(f's_lshr_b32 s{t1}, s{t1}, 7')
        a(f's_lshr_b32 s{t0}, s{t1}, 1')
        a(f's_sub_u32 s{t1}, s{t1}, s{t0}')
        a(f's_lshl_b32 s{sLA}, s{t1}, 2')
        a(f's_lshl_b32 s{sLB}, s{t0}, 2')
        a(f's_sub_u32 s{sSO}, s{sLA}, s{sLB}')
        a(f's_lshl_b32 s{sSO}, s{sSO}, 3')
        a(f's_cmp_lt_u32 s{sW}, 4')
        a(f's_cselect_b32 s{sL}, s{sLA}, s{sLB}')
        a(f's_cselect_b32 s{sSO}, 0, s{sSO}')
        a(f's_lshr_b32 s{sCNT}, s{sL}, 2')
        a(f's_sub_u32 s{sCNT}, s{sCNT}, 1')
    def qi_fill(tag, split, nwq=8):
        B0 = TQ + 2; B1 = TQ + 3; V0 = TR + 1; V1 = TR + 2
        a(f'v_max_u32 v{TR}, v{tE}, v{tF}')
        if split:
            a(f'v_cvt_f32_u32 v{tA}, s{sLA}')
            a(f'v_cvt_f32_u32 v{tD}, s{sLB}')
            a(f'v_rcp_f32 v{tA}, v{tA}')
            a(f'v_rcp_f32 v{tD}, v{tD}')
            a(f's_lshl_b32 s{t0}, s{sLA}, 5')
            a(f's_sub_u32 s{t1}, s{sLA}, s{sLB}')
            a(f's_lshl_b32 s{t1}, s{t1}, 5')
            a(f'v_mul_f32 v{tA}, 0.25, v{tA}')
            a(f'v_mul_f32 v{tD}, 0.25, v{tD}')
            for (OFF, nx, B, Vv) in ((nOFF0, tB, B0, V0), (nOFF1, tC, B1, V1)):
                a(f'v_cmp_gt_u32 vcc, s{t0}, v{OFF}')
                a(f'v_subrev_u32 v{tG}, s{t1}, v{OFF}')
                a('s_nop 0')
                a(f'v_cndmask_b32 v{tG}, v{tG}, v{OFF}, vcc')
                a(f'v_cndmask_b32 v{tH}, v{tD}, v{tA}, vcc')
                a(f'v_cvt_f32_u32 v{tG}, v{tG}')
                a(f'v_add_f32 v{tG}, 2.0, v{tG}')
                a(f'v_mul_f32 v{tG}, v{tH}, v{tG}')
                a(f'v_cvt_u32_f32 v{nx}, v{tG}')
                a(f'v_add_u32 v{nx}, 1, v{nx}')
                a(f'v_mov_b32 v{tG}, s{sLB}')
                a(f'v_mov_b32 v{tH}, s{sLA}')
                a(f'v_cndmask_b32 v{tG}, v{tG}, v{tH}, vcc')
                a(f'v_mov_b32 v{tH}, s{t1}')
                a(f'v_cndmask_b32 v{tH}, v{tH}, 0, vcc')
                a(f'v_lshlrev_b32 v{tG}, 2, v{tG}')
                a(f'v_mad_u32_u24 v{B}, v{nx}, v{tG}, v{tH}')
            a(f's_movk_i32 s{t1}, {VROWB}')
            a(f'v_mov_b32 v{tD}, {L_VIRT}')
            a(f'v_mad_u32_u24 v{V0}, v{tB}, s{t1}, v{tD}')
            a(f'v_mad_u32_u24 v{V1}, v{tC}, s{t1}, v{tD}')
            a(f'v_add_u32 v{tD}, {ROWB}, v{nROW0}')
            for nd, (B, Vv, END, nx) in enumerate(((B0, V0, nEND0, tB), (B1, V1, nEND1, tC))):
                lab = a.newlabel('nosplit')
                a(f'v_lshrrev_b32 v{tG}, {1 if nwq == 8 else 2}, v{nx}')
                a(f'v_cmp_lt_u32 vcc, v{B}, v{END}')
                a(f'v_cmp_eq_u32 s[{sSV}:{sSV+1}], s{sW}, v{tG}')
                a(f's_and_b64 vcc, vcc, s[{sSV}:{sSV+1}]')
                a(f's_cbranch_scc0 {lab}')
                lp = a.newlabel('splitlp')
                a.label(lp)
                a(f's_ff1_i32_b64 s{t0}, vcc')
                a(f's_bitset0_b64 vcc, s{t0}')
                a(f'v_readlane_b32 s{t2}, v{nROW0 if nd == 0 else tD}, s{t0}')
                a(f'v_readlane_b32 s{t3}, v{Vv}, s{t0}')
                a(f'v_lshrrev_b32 v{tG}, 0, v{C4}')
                a('s_mov_b32 exec_hi, 0')
                a(f'v_add_u32 v{tH}, s{t2}, v{tG}')
                a(f'ds_read_b32 v{tI}, v{tH} offset:512')
                a(f'v_add_u32 v{tH}, s{t3}, v{tG}')
                a(f'v_mov_b32 v{tG}, s{t2}')
                a(f'v_mov_b32 v{tA}, s{t3}')
                a(f'ds_write_b32 v{tG}, v{tA} offset:768')
                a('s_waitcnt lgkmcnt(1)')
                a(f'ds_write_b32 v{tH}, v{tI} offset:512')
                a('s_mov_b64 exec, -1')
                a(f's_cmp_lg_u64 vcc, 0')
                a(f's_cbranch_scc1 {lp}')
                a.label(lab)
        a(f's_lshl_b32 s{t0}, s{sW}, 2')
        a(f'v_add_u32 v{tA}, s{t0}, v{nOFF0}')
        a(f'v_add_u32 v{tB}, s{t0}, v{nOFF1}')
        a(f'v_add_u32 v{tC}, {ROWB}, v{nROW0}')
        lp = f'K2_QF{tag}'
        a.label(lp)
        a(f's_add_u32 s{t1}, s{t0}, 4')
        a(f'v_cmp_eq_u32 s[{sSV}:{sSV+1}], s{t1}, v{tE}')
        a(f'v_cmp_eq_u32 s[{sSV2}:{sSV2+1}], s{t1}, v{tF}')
        if split:
            a(f'v_add_u32 v{tG}, 4, v{tA}')
            a(f'v_add_u32 v{tH}, 4, v{tB}')
            a(f'v_cmp_eq_u32 vcc, v{tG}, v{B0}')
            a(f's_or_b64 s[{sSV}:{sSV+1}], s[{sSV}:{sSV+1}], vcc')
            a(f'v_cmp_eq_u32 vcc, v{tH}, v{B1}')
            a(f's_or_b64 s[{sSV2}:{sSV2+1}], s[{sSV2}:{sSV2+1}], vcc')
            a(f'v_cmp_ge_u32 vcc, v{tA}, v{B0}')
            a('s_nop 1')
            a(f'v_cndmask_b32 v{tG}, v{nROW0}, v{V0}, vcc')
            a(f'v_cmp_ge_u32 vcc, v{tB}, v{B1}')
            a('s_nop 1')
            a(f'v_cndmask_b32 v{tH}, v{tC}, v{V1}, vcc')
        else:
            a(f'v_mov_b32 v{tG}, v{nROW0}')
            a(f'v_mov_b32 v{tH}, v{tC}')
        a(f'v_or_b32 v{tD}, 0x80000000, v{tG}')
        a(f'v_or_b32 v{tI}, 0x80000000, v{tH}')
        a(f'v_cmp_lt_u32 vcc, s{t0}, v{tE}')
        a(f'v_cndmask_b32 v{tG}, v{tG}, v{tD}, s[{sSV}:{sSV+1}]')
        a(f'v_cndmask_b32 v{tH}, v{tH}, v{tI}, s[{sSV2}:{sSV2+1}]')
        a(f'v_cmp_lt_u32 s[{sSV}:{sSV+1}], s{t0}, v{tF}')
        a('s_mov_b64 exec, vcc')
        a(f'ds_write_b32 v{tA}, v{tG} offset:{L_QI}')
        a(f's_mov_b64 exec, s[{sSV}:{sSV+1}]')
        a(f'ds_write_b32 v{tB}, v{tH} offset:{L_QI}')
        a('s_mov_b64 exec, -1')
        a(f's_add_u32 s{t0}, s{t0}, {4*nwq}')
        a(f'v_add_u32 v{tA}, {4*nwq}, v{tA}')
        a(f'v_add_u32 v{tB}, {4*nwq}, v{tB}')
        a(f'v_cmp_lt_u32 vcc, s{t0}, v{TR}')
        a(f's_cbranch_vccnz {lp}')
    def scatter():
        a('s_waitcnt lgkmcnt(0)')
        for sl in range(8):
            a(f's_mov_b64 exec, s[{MK+2*sl}:{MK+2*sl+1}]')
            a(f'ds_read_b32 v{AX+sl}, v{REC+2*sl+1} offset:{L_TAB}')
        for sl in range(8):
            a(f's_mov_b64 exec, s[{MK+2*sl}:{MK+2*sl+1}]')
            a('s_waitcnt lgkmcnt(7)')
            a(f'v_lshl_add_u32 v{AX+sl}, v{RK+sl}, 2, v{AX+sl}')
            a(f'ds_write_b32 v{AX+sl}, v{REC+2*sl} offset:{L_ENT}')
        for sl in range(8, 16, 2):
            sk = a.newlabel('sks')
            a(f's_mov_b64 exec, s[{MK+2*sl}:{MK+2*sl+1}]')
            a(f's_cbranch_execz {sk}')
            a(f'ds_read_b32 v{AX+sl}, v{REC+2*sl+1} offset:{L_TAB}')
            a(f's_mov_b64 exec, s[{MK+2*sl+2}:{MK+2*sl+3}]')
            a(f'ds_read_b32 v{AX+sl+1}, v{REC+2*sl+3} offset:{L_TAB}')
            a('s_waitcnt lgkmcnt(0)')
            a(f'v_lshl_add_u32 v{AX+sl+1}, v{RK+sl+1}, 2, v{AX+sl+1}')
            a(f'ds_write_b32 v{AX+sl+1}, v{REC+2*sl+2} offset:{L_ENT}')
            a(f's_mov_b64 exec, s[{MK+2*sl}:{MK+2*sl+1}]')
            a(f'v_lshl_add_u32 v{AX+sl}, v{RK+sl}, 2, v{AX+sl}')
            a(f'ds_write_b32 v{AX+sl}, v{REC+2*sl} offset:{L_ENT}')
            a.label(sk)
        sk = a.newlabel('sksc')
        a(f's_mov_b64 exec, s[{MKC}:{MKC+1}]')
        a(f's_cbranch_execz {sk}')
        a(f'ds_read_b32 v{AX}, v{RC+1} offset:{L_TAB}')
        a(f's_mov_b64 exec, s[{MKC2}:{MKC2+1}]')
        a(f'ds_read_b32 v{AX+1}, v{RC+3} offset:{L_TAB}')
        a('s_waitcnt lgkmcnt(0)')
        a(f'v_lshl_add_u32 v{AX+1}, v{RKC2}, 2, v{AX+1}')
        a(f'ds_write_b32 v{AX+1}, v{RC+2} offset:{L_ENT}')
        a(f's_mov_b64 exec, s[{MKC}:{MKC+1}]')
        a(f'v_lshl_add_u32 v{AX}, v{RKC}, 2, v{AX}')
        a(f'ds_write_b32 v{AX}, v{RC} offset:{L_ENT}')
        a.label(sk)
        a('s_mov_b64 exec, -1')

    def setup_ptrs():
        a(f'v_add_u32 v{tB}, s{sSO}, v{jA}')
        a(f'v_mad_u32_u24 v{tA}, v{sidA}, s{sL}, v{tB}')
        a(f'v_lshlrev_b32 v{pEN}, 4, v{tA}')
        a(f'ds_read_b128 v[{EN}:{EN+3}], v{pEN} offset:{L_ENT}')
        a(f'v_lshlrev_b32 v{pQF}, 2, v{tA}')
        a(f'v_sub_u32 v{pQI}, v{tA}, v{jA}')
        a(f'v_lshlrev_b32 v{pQI}, 2, v{pQI}')
        a(f'v_add_u32 v{pQI}, {L_QI}, v{pQI}')
        a(f'v_mad_u32_u24 v{tA}, v{sidR}, s{sL}, v{tB}')
        a(f'v_lshl_add_u32 v{pEE}, v{tA}, 4, v{iR4}')
        a(f's_mov_b32 m0, s{sDB}')

    def dma_addr():
        return [f'v_mad_u32_u16 v{EN+i}, v{EN+i}, s{s128}, v{CO+i}' for i in range(4)]
    def dma_issue():
        if opts.get('nodma'): return []
        return [f'buffer_load_dwordx4 v{EN+i}, s[{rX}:{rX+3}], 0 offen offset:{1024*i} lds' if i else
                f'buffer_load_dwordx4 v{EN}, s[{rX}:{rX+3}], 0 offen lds' for i in range(4)]

    def main_loop(tag, atomic):
        flush_blocks = []
        PS = [(PP, TT_, ZZ), (PB, TB, ZB)]
        def flush_body(par, j):
            a(f's_bfe_i32 exec_lo, s{sF[par]}, 0x{(1<<16)|(8*j):x}')
            a(f's_bfe_i32 exec_hi, s{sF[par]+1}, 0x{(1<<16)|(8*j):x}')
            a(f'v_add_f32 v{F0}, v{DEN}, v{DEN+1}')
            a(f'v_add_f32 v{F1}, v{NUM}, v{NUM+1}')
            a(f'v_add_f32 v{F2}, v{DEN+2}, v{DEN+3}')
            a(f'v_add_f32 v{F3}, v{NUM+2}, v{NUM+3}')
            a(f'v_mov_b64 v[{DEN}:{DEN+1}], 0')
            a(f'v_mov_b64 v[{NUM}:{NUM+1}], 0')
            if atomic:
                a(f'ds_add_f32 v{QA[par]+j}, v{F0}')
                a(f'ds_add_f32 v{QA[par]+j}, v{F1} offset:256')
                a(f'ds_add_f32 v{QA[par]+j}, v{F2} offset:128')
                a(f'ds_add_f32 v{QA[par]+j}, v{F3} offset:384')
            else:
                a(f'ds_write2_b32 v{QA[par]+j}, v{F0}, v{F1} offset0:0 offset1:64')
                a(f'ds_write2_b32 v{QA[par]+j}, v{F2}, v{F3} offset0:32 offset1:96')
            a(f'v_mov_b64 v[{DEN+2}:{DEN+3}], 0')
            a(f'v_mov_b64 v[{NUM+2}:{NUM+3}], 0')
            a('s_mov_b64 exec, -1')
        def post2(par):
            for j in range(4):
                for cc in range(2):
                    p, t, z = (r + 2*j for r in PS[cc])
                    a(f'v_pk_fma_f32 v[{NUM+2*cc}:{NUM+2*cc+1}], v[{p}:{p+1}], v[{t}:{t+1}], v[{NUM+2*cc}:{NUM+2*cc+1}]')
                    a(f'v_pk_fma_f32 v[{DEN+2*cc}:{DEN+2*cc+1}], v[{p}:{p+1}], v[{z}:{z+1}], v[{DEN+2*cc}:{DEN+2*cc+1}]')
                if opts.get('noflush'): continue
                fl = a.newlabel('fl'); back = a.newlabel('bk')
                a(f's_bitcmp1_b32 s{sANY[par]}, {8*j}')
                a(f's_cbranch_scc1 {fl}')
                a.label(back)
                flush_blocks.append((fl, back, par, j))
        def pre(cur):
            g0 = G_[cur]; h0 = H_[cur]; P_, T_, Z_ = PS[cur]
            for j in range(4):
                g = g0 + 4*j
                a(f'v_pk_fma_f32 v[{g}:{g+1}], v[{g}:{g+1}], s[{sC}:{sC+1}], s[{sC}:{sC+1}] clamp')
                a(f'v_pk_fma_f32 v[{g+2}:{g+3}], v[{g+2}:{g+3}], s[{sC}:{sC+1}], s[{sC}:{sC+1}] clamp')
            for j in range(4):
                g = g0 + 4*j; h = h0 + 4*j
                X = f'v[{g}:{g+1}]'; Y = f'v[{g+2}:{g+3}]'
                p = P_ + 2*j; t = T_ + 2*j; z = Z_ + 2*j
                a(f'v_pk_mul_f32 v[{t}:{t+1}], {Y}, v[{h}:{h+1}]')
                a(f'v_pk_mul_f32 v[{p}:{p+1}], {X}, {Y}')
                a(f'v_pk_add_f32 v[{z}:{z+1}], {X}, {Y}')
                a(f'v_pk_fma_f32 v[{t}:{t+1}], {X}, v[{h+2}:{h+3}], v[{t}:{t+1}]')
        def mfma_list(nxt, cc):
            Gs = f'v[{G_[nxt]}:{G_[nxt]+15}]'; Hs = f'v[{H_[nxt]}:{H_[nxt]+15}]'
            out = []
            for kp in range(4):
                wb = WB + 16*cc + 4*kp; wv = WV + 16*cc + 4*kp; ax = AX + 4*kp
                out.append(f'v_mfma_f32_32x32x16_bf16 {Hs}, v[{ax}:{ax+3}], v[{wv}:{wv+3}], {"0" if kp == 0 else Hs}')
                out.append(f'v_mfma_f32_32x32x16_bf16 {Gs}, v[{ax}:{ax+3}], v[{wb}:{wb+3}], {"0" if kp == 0 else Gs}')
            out.append(f'v_mfma_f32_32x32x16_bf16 {Gs}, v[{AE[cc]}:{AE[cc]+3}], v[{BE}:{BE+3}], {Gs}')
            return out
        def trans_list(cur):
            Pp = PS[cur ^ 1][0]
            return [f'v_rcp_f32 v{Pp+i}, v{Pp+i}' for i in range(8)] + [f'v_exp_f32 v{G_[cur]+i}, v{G_[cur]+i}' for i in range(16)]
        def weave(mf, tr, gaps):
            dist = [3, 3, 3, 3, 3, 3, 2, 2, 2]
            if opts.get('nogaps'): gaps = {}
            if opts.get('nomf'): mf = None
            k = 0
            for m in range(9):
                for ins in gaps.get(('m', m), []): a(ins)
                if mf: a(mf[m])
                for _ in range(dist[m]):
                    a(tr[k])
                    for ins in gaps.get(k, []): a(ins)
                    k += 1
            assert k == len(tr)
        def stage0(par):
            g = {}
            da = dma_addr()
            g[0] = [f'ds_read_b32 v{QF}, v{pQF} offset:{L_QI + 16*(par+1)}']
            g[1] = [f'ds_read_b32 v{EE}, v{pEE} offset:{L_ENT + 64*(par+1)}']
            g[3] = [f'v_and_or_b32 v{BE}, v{R0}, s{sHI}, v{BC+1}']
            g[6] = [da[0]]; g[9] = [da[1]]; g[12] = [da[2]]; g[15] = [da[3]]
            axr = [f'ds_read_b128 v[{AX+4*kp}:{AX+4*kp+3}], v{RA+kp}' for kp in range(4)]
            early = opts.get('axearly', 0)
            if early:
                for kp, gp in enumerate(opts.get('axgaps', (8, 11, 17, 21))):
                    g.setdefault(gp, [])
                    g[gp] = g[gp] + ((['s_waitcnt vmcnt(0)'] if kp == 0 else []) + [axr[kp]])
            weave(mfma_list(1, 1), trans_list(0), g)
            axpre = opts.get('axpre', 1)
            if axpre and not early and not opts.get('nogaps'):
                a('s_waitcnt vmcnt(0)')
                for ins in axr: a(ins)
            post2(par ^ 1)
            qn = QA[par ^ 1]
            if not opts.get('nogaps'):
                a(f'ds_read_b128 v[{qn}:{qn+3}], v{pQI} offset:{16*(par+1)}')
                if not early and not axpre:
                    a('s_waitcnt vmcnt(0)')
                    for ins in axr: a(ins)
            pre(0)
            a(f's_sub_u32 s{sCNT}, s{sCNT}, 1')
        def stage1(par):
            qn = QA[par ^ 1]
            g = {}
            di = dma_issue()
            g[('m', 0)] = ['s_waitcnt lgkmcnt(0)']
            dg = opts.get('dmag', 0)
            dd = {0: (0, 1, 2, 3), 1: (8, 10, 12, 14), 2: (6, 8, 10, 12), 3: (12, 14, 16, 18)}[dg]
            g[0] = [f'v_mad_u32_u24 v{qn}, v{qn}, 1, v{C4}']
            g[1] = [f'v_mad_u32_u24 v{qn+1}, v{qn+1}, 1, v{C4}']
            g[2] = [f'ds_read_b32 v{R0}, v{qn} offset:512']
            g[3] = [f'v_mad_u32_u24 v{qn+2}, v{qn+2}, 1, v{C4}', f'ds_read_b32 v{BE+1}, v{qn+1} offset:512']
            g[4] = [f'v_mad_u32_u24 v{qn+3}, v{qn+3}, 1, v{C4}', f'ds_read_b32 v{BE+2}, v{qn+2} offset:512']
            g[5] = [f'ds_read_b32 v{BE+3}, v{qn+3} offset:512']
            g[7] = [f'v_perm_b32 v{AE[0]}, v{EE}, v{AE[0]}, v{SEL[0]}']
            g[9] = [f'v_perm_b32 v{AE[1]}, v{EE}, v{AE[1]}, v{SEL[1]}']
            g[11] = [f'v_cmp_gt_i32 s[{sF[par^1]}:{sF[par^1]+1}], 0, v{QF}']
            if par == 1:
                g[13] = [f'v_add_u32 v{pQI}, 32, v{pQI}']
                g[14] = [f'v_add_u32 v{pQF}, 32, v{pQF}']
                g[15] = [f'v_add_u32 v{pEE}, 128, v{pEE}']
                g[16] = [f'v_add_u32 v{pEN}, 128, v{pEN}']
            g[17] = [f's_or_b32 s{sANY[par^1]}, s{sF[par^1]}, s{sF[par^1]+1}'] if not opts.get('noany') else [f's_mov_b32 s{sANY[par^1]}, 0']
            g[19] = ['s_waitcnt lgkmcnt(%d)' % (1 if dd[3] >= 18 else 0), f'v_and_or_b32 v{BE}, v{R0}, s{sLO}, v{BC}']
            for i_, gp in enumerate(dd):
                if di: g[gp] = g.get(gp, []) + [di[i_]]
            en_gap = max(dd[3] + 1, 6)
            en_rd = f'ds_read_b128 v[{EN}:{EN+3}], v{pEN} offset:{L_ENT + 64*(par+3)}'
            if en_gap >= 19:
                g[20] = g.get(20, []) + [en_rd]
            else:
                g[en_gap] = g.get(en_gap, []) + [en_rd]
            if par == 1:
                pass
            weave(mfma_list(0, 0), trans_list(1), g)
            pre(1)
        def last_stage1(par):
            weave(None, trans_list(1), {})
            pre(1)
            for i in range(8):
                a(f'v_rcp_f32 v{PB+i}, v{PB+i}')
            a('s_nop 0')
            post2(par)
        L0 = f'K2_T0{tag}'; E0 = f'K2_E0{tag}'; E1 = f'K2_E1{tag}'; DONE = f'K2_MD{tag}'
        PR = opts.get('prio', 1)
        if PR:
            a(f's_add_u32 s{t0}, s{sCNT}, 1')
            a(f's_mul_i32 s{t0}, s{t0}, {opts.get("pfrac", 20)}')
            a(f's_lshr_b32 s{t0}, s{t0}, 6')
            a(f's_lshl_b32 s{t0}, s{t0}, 1')
            a(f's_sub_u32 s{sSWAP}, s{sCNT}, s{t0}')
            a(f's_cmp_ge_u32 s{sW}, 4')
            a(f's_cbranch_scc0 K2_PR0{tag}')
            a('s_setprio 1')
            a.label(f'K2_PR0{tag}')
        if PR == 3:
            a(f's_cmp_ge_u32 s{sW}, 4')
            a(f's_cselect_b32 s{sSWAP}, 1, 0')
        a.label(L0)
        if PR == 3:
            a(f's_xor_b32 s{sSWAP}, s{sSWAP}, 1')
            a(f's_cbranch_scc1 K2_PH{tag}')
            a('s_setprio 0')
            a(f's_branch K2_PD{tag}')
            a.label(f'K2_PH{tag}')
            a('s_setprio 1')
            a.label(f'K2_PD{tag}')
        elif PR:
            a(f's_cmp_eq_u32 s{sCNT}, s{sSWAP}')
            a(f's_cbranch_scc1 K2_SWP{tag}')
            a.label(f'K2_SWB{tag}')
        stage0(0)
        a(f's_cbranch_scc1 {E0}')
        stage1(0)
        stage0(1)
        a(f's_cbranch_scc1 {E1}')
        stage1(1)
        a(f's_branch {L0}')
        a.label(E0)
        last_stage1(0)
        a(f's_branch {DONE}')
        a.label(E1)
        last_stage1(1)
        a(f's_branch {DONE}')
        if PR and PR != 3:
            a.label(f'K2_SWP{tag}')
            a(f's_cmp_ge_u32 s{sW}, 4')
            a(f's_cbranch_scc1 K2_SW0{tag}')
            a('s_setprio 1')
            a(f's_branch K2_SWB{tag}')
            a.label(f'K2_SW0{tag}')
            a('s_setprio 0')
            a(f's_branch K2_SWB{tag}')
        for (fl, back, par, j) in flush_blocks:
            a.label(fl)
            flush_body(par, j)
            a(f's_branch {back}')
        a.label(DONE)
        if PR: a('s_setprio 0')

    def pipeline_fill():
        q0 = QA[0]
        a(f'ds_read_b128 v[{q0}:{q0+3}], v{pQI}')
        a(f'ds_read_b32 v{QF}, v{pQF} offset:{L_QI}')
        a(f'ds_read_b32 v{EE}, v{pEE} offset:{L_ENT}')
        a(f'ds_read_b128 v[{EN}:{EN+3}], v{pEN} offset:{L_ENT + 64}')
        for i in range(2):
            a(f'v_mov_b64 v[{DEN+2*i}:{DEN+2*i+1}], 0')
            a(f'v_mov_b64 v[{NUM+2*i}:{NUM+2*i+1}], 0')
        for i in range(8):
            a(f'v_mov_b32 v{PP+i}, 1.0')
            a(f'v_mov_b32 v{PB+i}, 1.0')
        for i in range(4):
            a(f'v_mov_b64 v[{TT_+2*i}:{TT_+2*i+1}], 0')
            a(f'v_mov_b64 v[{ZZ+2*i}:{ZZ+2*i+1}], 0')
            a(f'v_mov_b64 v[{TB+2*i}:{TB+2*i+1}], 0')
            a(f'v_mov_b64 v[{ZB+2*i}:{ZB+2*i+1}], 0')
        a(f's_mov_b32 s{sANY[1]}, 0')
        a('s_waitcnt lgkmcnt(0)')
        for q in range(4):
            a(f'v_mad_u32_u24 v{q0+q}, v{q0+q}, 1, v{C4}')
        a(f'ds_read_b32 v{R0}, v{q0} offset:512')
        for q in range(1, 4):
            a(f'ds_read_b32 v{BE+q}, v{q0+q} offset:512')
        a(f'v_perm_b32 v{AE[0]}, v{EE}, v{AE[0]}, v{SEL[0]}')
        a(f'v_perm_b32 v{AE[1]}, v{EE}, v{AE[1]}, v{SEL[1]}')
        a(f'v_cmp_gt_i32 s[{sF[0]}:{sF[0]+1}], 0, v{QF}')
        for ins in dma_addr(): a(ins)
        stamp(21)
        a('s_waitcnt vmcnt(0)')
        stamp(22)
        for kp in range(4):
            a(f'ds_read_b128 v[{AX+4*kp}:{AX+4*kp+3}], v{RA+kp}')
        a(f's_or_b32 s{sANY[0]}, s{sF[0]}, s{sF[0]+1}')
        a('s_waitcnt lgkmcnt(0)')
        a(f'v_and_or_b32 v{BE}, v{R0}, s{sLO}, v{BC}')
        for ins in dma_issue(): a(ins)
        a(f'ds_read_b128 v[{EN}:{EN+3}], v{pEN} offset:{L_ENT + 128}')
        Gs = f'v[{GA}:{GA+15}]'; Hs = f'v[{HA}:{HA+15}]'
        for kp in range(4):
            a(f'v_mfma_f32_32x32x16_bf16 {Hs}, v[{AX+4*kp}:{AX+4*kp+3}], v[{WV+4*kp}:{WV+4*kp+3}], {"0" if kp == 0 else Hs}')
            a(f'v_mfma_f32_32x32x16_bf16 {Gs}, v[{AX+4*kp}:{AX+4*kp+3}], v[{WB+4*kp}:{WB+4*kp+3}], {"0" if kp == 0 else Gs}')
        a(f'v_mfma_f32_32x32x16_bf16 {Gs}, v[{AE[0]}:{AE[0]+3}], v[{BE}:{BE+3}], {Gs}')
        a('s_waitcnt lgkmcnt(0)')
        a('s_nop 7')
        a('s_nop 3')
    def forced_flags():
        a(f's_sub_u32 s{t1}, s{sL}, 1')
        a(f's_lshl_b32 s{t1}, s{t1}, 2')
        a(f'v_add_u32 v{tB}, s{t1}, v{pQI}')
        a(f'v_mov_b32 v{tA}, 0x80000000')
        a('s_mov_b32 exec_lo, 1')
        a('s_mov_b32 exec_hi, 1')
        a(f'ds_or_b32 v{tB}, v{tA}')
        a('s_mov_b64 exec, -1')

    stamp(2)
    a(f's_mov_b64 exec, s[{sSV2}:{sSV2+1}]')
    a(f'v_mov_b32 v{tD}, {L_CNT + 127*4}')
    a(f'v_mov_b32 v{tE}, 1')
    a(f'ds_write_b32 v{tD}, v{tE}')
    a('s_mov_b64 exec, -1')
    gemm_issue()
    stamp(28)
    gemm_mid()
    gemm_mid2()
    stamp(29)
    a(f's_cmp_lg_u32 s{sW}, 0')
    a('s_cbranch_scc1 K2_NOCI')
    a(f'v_mul_u32_u24 v{tA}, {2*ROWB}, v{vLANE}')
    a(f'v_mov_b32 v{tB}, {L_ZERO}')
    a(f'v_add_u32 v{tA}, {L_ACC}, v{tA}')
    a(f's_mov_b32 exec_hi, {(1 << (MAXN // 2 - 32)) - 1}')
    a(f'ds_write_b32 v{tA}, v{tB} offset:768')
    a(f'ds_write_b32 v{tA}, v{tB} offset:{768 + ROWB}')
    a('s_mov_b64 exec, -1')
    a.label('K2_NOCI')
    gemm_store('F')
    if opts.get('wearly', 0) == 1:
        w_frags()
        consts()
    elif opts.get('wearly', 0) == 2:
        a(f's_cmp_ge_u32 s{sW}, 4')
        a('s_cbranch_scc1 K2_WE0')
        w_frags()
        consts()
        a.label('K2_WE0')
    stamp(3)
    a('s_waitcnt vmcnt(0) lgkmcnt(0)')
    stamp(23)
    hist()
    a('s_waitcnt lgkmcnt(0)')
    stamp(24)
    if opts.get('proprio') == 1: a('s_setprio 0')
    a('s_barrier')
    stamp(4)
    scan_nodes('F')
    a(f'v_readlane_b32 s{t0}, v{TQ+1}, 63')
    a(f's_cmp_eq_u32 s{sLB}, 0')
    a(f's_cselect_b32 s{t1}, s{sLA}, s{sLB}')
    a(f's_lshl_b32 s{t1}, s{t1}, 2')
    a(f'v_cmp_lt_u32 vcc, s{t1}, v{tB}')
    a(f's_cmp_lg_u32 s{t0}, 0')
    a('s_cbranch_scc1 K2_SLOW')
    a(f's_add_u32 s{t1}, s{sLA}, s{sLB}')
    a(f's_cmp_gt_u32 s{t1}, {(ENT_QUADS - 8) // 8}')
    a('s_cbranch_scc1 K2_SLOW')
    a('s_cbranch_vccnz K2_SLOW')
    stamp(15)
    scatter()
    stamp(16)
    a('s_waitcnt lgkmcnt(0)')
    a('s_barrier')
    stamp(5)
    a(f's_cmp_eq_u32 s{sL}, 0')
    a('s_cbranch_scc1 K2_NOL')
    setup_ptrs()
    a('s_waitcnt lgkmcnt(0)')
    for ins in dma_addr(): a(ins)
    for ins in dma_issue(): a(ins)
    a.label('K2_NOL')
    stamp(17)
    if opts.get('qi4', 0):
        a(f's_cmp_ge_u32 s{sW}, 4')
        a('s_cbranch_scc1 K2_QIDONE')
    a(f'v_cmp_gt_u32 vcc, {MAXN // 2}, v{vLANE}')
    a(f'v_lshl_or_b32 v{tB}, v{vLANE}, 1, 1')
    a(f'v_cmp_le_u32 s[{sSV}:{sSV+1}], s{sNN}, v{tB}')
    a(f'v_mov_b32 v{tC}, 1')
    a('s_nop 0')
    a(f'v_cndmask_b32 v{tB}, v{TQ+1}, v{tC}, s[{sSV}:{sSV+1}]')
    a(f'v_min_u32 v{tB}, v{TQ}, v{tB}')
    a(f'v_cmp_eq_u32 s[{sSV}:{sSV+1}], 0, v{tB}')
    a(f's_and_b64 s[{sSV}:{sSV+1}], s[{sSV}:{sSV+1}], vcc')
    a('s_cbranch_scc1 K2_ZROWS')
    a.label('K2_ZBACK')
    if opts.get('qi4', 0):
        qi_fill('F', True, 4)
        a.label('K2_QIDONE')
    else:
        qi_fill('F', True)
    stamp(18)
    if opts.get('wearly', 0) == 0:
        w_frags()
        consts()
    elif opts.get('wearly', 0) == 2:
        a(f's_cmp_lt_u32 s{sW}, 4')
        a('s_cbranch_scc1 K2_WE1')
        w_frags()
        consts()
        a.label('K2_WE1')
    a('s_waitcnt lgkmcnt(0)')
    stamp(19)
    if opts.get('proprio') == 2: a('s_setprio 0')
    a('s_barrier')
    stamp(20)
    a(f's_cmp_eq_u32 s{sL}, 0')
    a('s_cbranch_scc1 K2_EPI')
    pipeline_fill()
    stamp(6)
    if opts.get('dbgtime'):
        a(f's_memrealtime s[{t2}:{t3}]')
        a('s_waitcnt lgkmcnt(0)')
        a(f's_mov_b32 s{sT1}, s{t2}')
    if STAMP:
        a(f's_memrealtime s[{t2}:{t3}]')
        a('s_waitcnt lgkmcnt(0)')
        a(f'v_writelane_b32 v{vST}, s{t2}, 13')
    if opts.get('half'):
        a(f's_cmp_ge_u32 s{sW}, 4')
        a('s_cbranch_scc1 K2_MDF')
    main_loop('F', False)
    stamp(7)
    if opts.get('dbgtime'):
        a(f's_memrealtime s[{t2}:{t3}]')
        a('s_waitcnt lgkmcnt(0)')
        a(f's_mov_b32 s{sT2}, s{t2}')
    if STAMP:
        a(f's_memrealtime s[{t2}:{t3}]')
        a('s_waitcnt lgkmcnt(0)')
        a(f'v_writelane_b32 v{vST}, s{t2}, 14')
    a.label('K2_EPI')
    e0 = 4
    XV = [e0, e0 + 4]; UU = [e0 + 8, e0 + 12]
    DN = [e0 + 16, e0 + 48]; NM = [e0 + 24, e0 + 56]; CD = [e0 + 32, e0 + 64]; CN = [e0 + 40, e0 + 72]
    O = e0 + 80; ADR = [e0 + 84, e0 + 85]; GO = [e0 + 86, e0 + 87]; CP = [e0 + 88, e0 + 89]; OC = [e0 + 90, e0 + 91]
    T1 = e0 + 92; ND = e0 + 93
    def epi_addr(r):
        a(f'v_add_u32 v{T1}, {512*r}, v0') if r else a(f'v_mov_b32 v{T1}, v0')
        a(f'v_lshrrev_b32 v{ND}, 3, v{T1}')
        a(f'v_and_b32 v{T1}, 7, v{T1}')
        a(f'v_lshlrev_b32 v{OC[r]}, 4, v{T1}')
        a(f'v_mul_u32_u24 v{CP[r]}, s{t0}, v{ND}')
        a(f'v_add_u32 v{CP[r]}, {L_ACC}, v{CP[r]}')
        a(f'v_add_u32 v{ADR[r]}, v{CP[r]}, v{OC[r]}')
        a(f'v_add_u32 v{GO[r]}, s{sNS}, v{ND}')
        a(f'v_lshlrev_b32 v{GO[r]}, 7, v{GO[r]}')
        a(f'v_lshl_add_u32 v{GO[r]}, v{T1}, 3, v{GO[r]}')
    def epi_static(r, carry):
        a(f'buffer_load_dwordx2 v[{XV[r]}:{XV[r]+1}], v{GO[r]}, s[{rF}:{rF+3}], 0 offen')
        a(f'buffer_load_dwordx2 v[{XV[r]+2}:{XV[r]+3}], v{GO[r]}, s[{rF}:{rF+3}], 0 offen offset:64')
        a(f'ds_read_b128 v[{UU[r]}:{UU[r]+3}], v{ADR[r]} offset:640')
        if carry: a(f'ds_read_b32 v{CP[r]}, v{CP[r]} offset:768')
    def epi_reads(r, carry):
        ad = ADR[r]
        a(f'ds_read_b128 v[{DN[r]}:{DN[r]+3}], v{ad}')
        a(f'ds_read_b128 v[{DN[r]+4}:{DN[r]+7}], v{ad} offset:128')
        a(f'ds_read_b128 v[{NM[r]}:{NM[r]+3}], v{ad} offset:256')
        a(f'ds_read_b128 v[{NM[r]+4}:{NM[r]+7}], v{ad} offset:384')
        if carry:
            a(f'ds_read_b128 v[{CD[r]}:{CD[r]+3}], v{CP[r]}')
            a(f'ds_read_b128 v[{CD[r]+4}:{CD[r]+7}], v{CP[r]} offset:128')
            a(f'ds_read_b128 v[{CN[r]}:{CN[r]+3}], v{CP[r]} offset:256')
            if r == 1: a('s_waitcnt lgkmcnt(14)')
            a(f'ds_read_b128 v[{CN[r]+4}:{CN[r]+7}], v{CP[r]} offset:384')
    def epi_math(r, carry):
        dn, nm, cd, cn, uu, xv = DN[r], NM[r], CD[r], CN[r], UU[r], XV[r]
        if carry:
            for i in range(0, 8, 2):
                a(f'v_pk_add_f32 v[{dn+i}:{dn+i+1}], v[{dn+i}:{dn+i+1}], v[{cd+i}:{cd+i+1}]')
                a(f'v_pk_add_f32 v[{nm+i}:{nm+i+1}], v[{nm+i}:{nm+i+1}], v[{cn+i}:{cn+i+1}]')
        for i in range(0, 8, 2):
            a(f'v_pk_add_f32 v[{dn+i}:{dn+i+1}], v[{dn+i}:{dn+i+1}], s[{sC}:{sC+1}]')
        for i in range(8):
            a(f'v_rcp_f32 v{dn+i}, v{dn+i}')
        for i in range(4):
            a(f'v_lshlrev_b32 v{cd+i}, 16, v{uu+i}')
            a(f'v_and_b32 v{cd+4+i}, s{sHI}, v{uu+i}')
        for i in range(0, 8, 2):
            a(f'v_pk_fma_f32 v[{nm+i}:{nm+i+1}], v[{nm+i}:{nm+i+1}], v[{dn+i}:{dn+i+1}], v[{cd+i}:{cd+i+1}]')
        for i in range(8):
            a(f'v_max_f32 v{nm+i}, 0, v{nm+i}')
        for i in range(4):
            a(f'v_lshlrev_b32 v{cd+2*i}, 16, v{xv+i}')
            a(f'v_and_b32 v{cd+2*i+1}, s{sHI}, v{xv+i}')
        for i in range(0, 8, 2):
            a(f'v_pk_add_f32 v[{nm+i}:{nm+i+1}], v[{nm+i}:{nm+i+1}], v[{cd+i}:{cd+i+1}]')
        for i in range(4):
            a(f'v_cvt_pk_bf16_f32 v{O+i}, v{nm+2*i}, v{nm+2*i+1}')
        osf = {0: '', 1: ' sc1', 2: ' nt', 3: ' sc0 sc1'}[opts.get('outst', 1)]
        a(f'buffer_store_dwordx2 v[{O}:{O+1}], v{GO[r]}, s[{rO}:{rO+3}], 0 offen' + osf)
        a(f'buffer_store_dwordx2 v[{O+2}:{O+3}], v{GO[r]}, s[{rO}:{rO+3}], 0 offen offset:64' + osf)
    def epilogue(tag, carry):
        srd(a, rO, sOUT, N * 128)
        srd(a, rF, sX, N * 128)
        a(f's_mov_b32 s{t0}, {ROWB}')
        a(f's_mov_b32 s{sC}, 0x{EPS_SCALED:x}')
        a(f's_mov_b32 s{sC+1}, 0x{EPS_SCALED:x}')
        a(f's_mov_b32 s{sHI}, 0xffff0000')
        a('s_waitcnt vmcnt(0)')
        epi_addr(0)
        epi_static(0, carry)
        epi_addr(1)
        a(f'v_cmp_gt_u32 s[{sSV}:{sSV+1}], s{sNN}, v{ND}')
        a('s_nop 3')
        a(f's_mov_b64 exec, s[{sSV}:{sSV+1}]')
        a(f's_cbranch_execz K2_NS2{tag}')
        epi_static(1, carry)
        a.label(f'K2_NS2{tag}')
        a('s_mov_b64 exec, -1')
        a('s_waitcnt lgkmcnt(0)')
        if carry:
            a(f'v_add_u32 v{CP[0]}, v{CP[0]}, v{OC[0]}')
            a(f'v_add_u32 v{CP[1]}, v{CP[1]}, v{OC[1]}')
        a('s_barrier')
        if STAMP and tag == 'F': stamp(8)
        epi_reads(0, carry)
        a(f's_mov_b64 exec, s[{sSV}:{sSV+1}]')
        a(f's_cbranch_execz K2_ONE{tag}')
        epi_reads(1, carry)
        a('s_mov_b64 exec, -1')
        a(f's_waitcnt vmcnt(0) lgkmcnt({8 if carry else 4})')
        epi_math(0, carry)
        a(f's_mov_b64 exec, s[{sSV}:{sSV+1}]')
        a('s_waitcnt lgkmcnt(0)')
        epi_math(1, carry)
        a(f's_branch K2_FIN{tag}')
        a.label(f'K2_ONE{tag}')
        a('s_mov_b64 exec, -1')
        a('s_waitcnt vmcnt(0) lgkmcnt(0)')
        epi_math(0, carry)
        a.label(f'K2_FIN{tag}')
        if opts.get('endwait', 1): a('s_waitcnt vmcnt(0)')
    epilogue('F', True)
    if opts.get('dbgtime'):
        a('s_mov_b64 exec, -1')
        a('s_waitcnt vmcnt(0)')
        a(f's_memrealtime s[{t2}:{t3}]')
        a(f's_cmp_lg_u32 s{sW}, 7')
        a('s_cbranch_scc1 K2_DBGX')
        a('s_and_b32 s3, s2, 31')
        a('s_cmp_lg_u32 s3, 0')
        a('s_cbranch_scc1 K2_DBGX')
        a('s_lshr_b32 s3, s2, 5')
        a('s_cmp_ge_u32 s3, 2')
        a('s_cbranch_scc1 K2_DBGX')
        a(f's_lshl_b32 s{t0}, s3, 2')
        a(f's_add_u32 s{t0}, s{t0}, 0x1200000')
        a(f'v_mov_b32 v4, s{t0}')
        a(f'global_load_dword v5, v4, s[{sWS}:{sWS+1}]')
        a(f'global_load_dword v6, v4, s[{sWS}:{sWS+1}] offset:256')
        a('s_waitcnt vmcnt(0) lgkmcnt(0)')
        a(f'v_sub_u32 v8, v6, v5')
        a(f'v_sub_u32 v9, s{sT0}, v5')
        a(f'v_sub_u32 v10, s{sT1}, v5')
        a(f'v_sub_u32 v11, s{sT2}, v5')
        a(f'v_sub_u32 v12, s{t2}, v5')
        a('s_lshl_b32 s3, s3, 5')
        a('v_mov_b32 v4, s3')
        a('s_mov_b64 exec, 1')
        a(f'global_store_dwordx4 v4, v[8:11], s[{sDBG}:{sDBG+1}]')
        a(f'global_store_dword v4, v12, s[{sDBG}:{sDBG+1}] offset:16')
        a.label('K2_DBGX')
    if STAMP:
        a('s_mov_b64 exec, -1')
        a('s_waitcnt vmcnt(0)')
        stamp(9)
        a(f's_memrealtime s[{t2}:{t3}]')
        a('s_waitcnt lgkmcnt(0)')
        a(f'v_writelane_b32 v{vST}, s{t2}, 12')
        a(f's_mul_i32 s{t0}, s2, {NW}')
        a(f's_add_u32 s{t0}, s{t0}, s{sW}')
        a(f's_lshl_b32 s{t0}, s{t0}, 8')
        a(f's_add_u32 s{t0}, s{t0}, 0x1000000')
        srd_off(a, rT, sWS, f's{t0}', 256)
        a(f'v_writelane_b32 v{vST}, s{sL}, 10')
        a(f'v_lshlrev_b32 v4, 2, v{vLANE}')
        a(f'buffer_store_dword v{vST}, v4, s[{rT}:{rT+3}], 0 offen')
    a('s_endpgm')
    a.label('K2_CSEL')
    a(f'v_mov_b32 v{tD}, 0')
    a(f'v_mov_b32 v{tE}, 0')
    a(f'v_mov_b32 v{tF}, 0')
    for it in range(4):
        a(f'v_lshrrev_b32 v{tG}, 24, v{SG+it}')
        a(f'v_cmp_lt_u32 vcc, 32, v{tG}')
        a(f'v_mad_u32_u24 v{tJ}, v{SG+it}, 8, v{tB}')
        a(f'v_add_u32 v{RKC}, 1, v{tF}')
        a(f'v_cndmask_b32 v{tD}, v{tD}, v{tJ}, vcc')
        a(f'v_cndmask_b32 v{tE}, v{tE}, v{tG}, vcc')
        a(f'v_cndmask_b32 v{tF}, v{tF}, v{RKC}, vcc')
    a(f'v_cmp_lt_u32 vcc, 1, v{tF}')
    a(f'v_cmp_lt_u32 s[{sSV2}:{sSV2+1}], 48, v{tE}')
    a(f'v_add_u32 v{tG}, 32, v{tC}')
    a(f's_or_b64 s[{sSV2}:{sSV2+1}], s[{sSV2}:{sSV2+1}], vcc')
    a(f'v_cmp_gt_u32 s[{MKC}:{MKC+1}], v{tE}, v{tG}')
    a(f'v_add_u32 v{tG}, 33, v{tC}')
    a(f'v_cmp_gt_u32 s[{MKC2}:{MKC2+1}], v{tE}, v{tG}')
    a('s_nop 0')
    a(f's_mov_b64 exec, s[{MKC}:{MKC+1}]')
    a(f'buffer_load_dwordx4 v[{RC}:{RC+3}], v{tD}, s[{rR}:{rR+3}], 0 offen offset:256')
    a('s_mov_b64 exec, -1')
    a('s_branch K2_CBACK')
    a.label('K2_ZROWS')
    a(f's_mov_b64 exec, s[{sSV}:{sSV+1}]')
    for i in range(4):
        a(f'v_mov_b32 v{TR+i}, 0')
    for nd in range(2):
        a(f'v_cmp_eq_u32 vcc, 0, v{TQ+nd}')
        a(f's_and_b64 exec, vcc, s[{sSV}:{sSV+1}]')
        for k in range(32):
            a(f'ds_write_b128 v{nROW0}, v[{TR}:{TR+3}] offset:{nd*ROWB + 16*k}')
        a(f's_mov_b64 exec, s[{sSV}:{sSV+1}]')
    a('s_mov_b64 exec, -1')
    a('s_branch K2_ZBACK')

    a.label('K2_SLOW')
    if opts.get('wearly', 0) == 0:
        w_frags()
        consts()
    elif opts.get('wearly', 0) == 2:
        a(f's_cmp_lt_u32 s{sW}, 4')
        a('s_cbranch_scc1 K2_WE2')
        w_frags()
        consts()
        a.label('K2_WE2')
    a('s_waitcnt vmcnt(0) lgkmcnt(0)')
    a('s_barrier')
    def full_counts(c0reg):
        a(f's_lshl_b32 s{t1}, s2, 2')
        a(f's_add_u32 s{t1}, s{t1}, {WS_TAB}')
        srd_off(a, rT, sWS, f's{t1}', 256 * 1024 + 64)
        a(f'v_lshlrev_b32 v{tG}, 10, v{c0reg}')
        for i in range(4):
            a(f'buffer_load_dword v{SG+i}, v{tG}, s[{rT}:{rT+3}], 0 offen offset:{1024*i}')
        a(f'v_add_u32 v{tG}, 4, v{tG}')
        for i in range(4):
            a(f'buffer_load_dword v{TQ+i}, v{tG}, s[{rT}:{rT+3}], 0 offen offset:{1024*i}')
        a(f's_mov_b32 s{t0}, 0xfffff')
        a(f's_cmp_eq_u32 s2, 255')
        a(f's_cselect_b64 s[{sSV}:{sSV+1}], -1, 0')
        a('s_waitcnt vmcnt(0)')
        for i in range(4):
            a(f'v_add_u32 v{tG}, {i+1}, v{c0reg}')
            a(f'v_mul_u32_u24 v{tG}, {CH}, v{tG}')
            a(f'v_min_u32 v{tG}, {E}, v{tG}')
            a(f'v_and_b32 v{TQ+i}, s{t0}, v{TQ+i}')
            a(f'v_cndmask_b32 v{TQ+i}, v{TQ+i}, v{tG}, s[{sSV}:{sSV+1}]')
            a(f'v_and_b32 v{tG}, s{t0}, v{SG+i}')
            a(f'v_sub_u32 v{TQ+i}, v{TQ+i}, v{tG}')
    a(f'v_lshlrev_b32 v{tB}, 2, v{vLANE}')
    full_counts(tB)
    a(f'v_max_u32 v{tE}, v{TQ}, v{TQ+1}')
    a(f'v_max3_u32 v{tE}, v{tE}, v{TQ+2}, v{TQ+3}')
    wave_scan(a, 'v_max_u32', tE)
    a('s_nop 0')
    a(f'v_readlane_b32 s{t1}, v{tE}, 63')
    a(f's_add_u32 s{t1}, s{t1}, {WSLOW-1}')
    a(f's_mul_i32 s{t1}, s{t1}, 5042')
    a(f's_lshr_b32 s{sNP}, s{t1}, 16')
    a(f's_mov_b32 s{sP}, 0')
    for i in range(4):
        a(f'v_mov_b32 v{TR+i}, 0')
    a(f'v_lshrrev_b32 v{tA}, 5, v0')
    a(f'v_mul_u32_u24 v{tA}, {ROWB}, v{tA}')
    a(f'v_and_b32 v{tB}, 31, v{vLANE}')
    a(f'v_lshl_add_u32 v{tA}, v{tB}, 4, v{tA}')
    a(f'v_add_u32 v{tA}, {L_ACC}, v{tA}')
    for i in range(6):
        a(f'ds_write_b128 v{tA}, v[{TR}:{TR+3}]')
        a(f'v_add_u32 v{tA}, {16*ROWB}, v{tA}')
    a(f'v_cmp_gt_u32 vcc, 64, v0')
    a(f's_and_saveexec_b64 s[{sSV}:{sSV+1}], vcc')
    a(f'ds_write_b128 v{tA}, v[{TR}:{TR+3}]')
    a(f's_mov_b64 exec, s[{sSV}:{sSV+1}]')
    a.label('K2_SPASS')
    a(f's_lshl_b32 s{t0}, s{sW}, 1')
    a(f'v_lshrrev_b32 v{sidA}, 5, v{vLANE}')
    a(f'v_add_u32 v{sidA}, s{t0}, v{sidA}')
    a(f'v_bfe_u32 v{jA}, v{vLANE}, 3, 2')
    a(f'v_bfe_u32 v{sidR}, v{vLANE}, 2, 1')
    a(f'v_add_u32 v{sidR}, s{t0}, v{sidR}')
    a(f'v_and_b32 v{iR4}, 3, v{vLANE}')
    a(f'v_lshlrev_b32 v{iR4}, 2, v{iR4}')
    a(f'v_lshrrev_b32 v{tA}, 3, v{vLANE}')
    a(f'v_lshlrev_b32 v{tA}, 2, v{tA}')
    a(f's_lshl_b32 s{t0}, s{sW}, 5')
    a(f'v_add_u32 v{tA}, s{t0}, v{tA}')
    full_counts(tA)
    for i in range(4):
        a(f'v_mov_b32 v{AX+i}, v{TQ+i}')
    a(f'v_and_b32 v{tC}, 7, v{vLANE}')
    a(f'v_lshlrev_b32 v{tC}, 1, v{tC}')
    a(f's_mul_i32 s{t0}, s{sP}, {WSLOW}')
    a(f'v_add_u32 v{tB}, s{t0}, v{tC}')
    a(f'v_lshlrev_b32 v{tB}, 3, v{tB}')
    a(f'v_mov_b32 v{tF}, 0x10000')
    a(f's_mov_b64 s[{MKC}:{MKC+1}], 0')
    a(f's_mov_b64 s[{MKC2}:{MKC2+1}], 0')
    for sub in range(2):
        a(f'v_add_u32 v{tD}, {sub}, v{tC}')
        a(f'v_cmp_gt_u32 vcc, {WSLOW}, v{tD}')
        a(f'v_add_u32 v{tD}, s{t0}, v{tD}')
        a('s_nop 0')
        a(f'v_cndmask_b32 v{tE if sub == 0 else tG}, v{tF}, v{tD}, vcc')
    for it in range(4):
        a(f'v_cmp_gt_u32 s[{MK+4*it}:{MK+4*it+1}], v{AX+it}, v{tE}')
        a(f'v_cmp_gt_u32 s[{MK+4*it+2}:{MK+4*it+3}], v{AX+it}, v{tG}')
    for sl in range(8, 16):
        a(f's_mov_b64 s[{MK+2*sl}:{MK+2*sl+1}], 0')
    rec_loads(tB, 1)
    lds_init()
    a('s_waitcnt vmcnt(0) lgkmcnt(0)')
    a('s_barrier')
    hist()
    a('s_waitcnt lgkmcnt(0)')
    a('s_barrier')
    scan_nodes('S')
    qi_fill('S', False)
    scatter()
    a('s_waitcnt lgkmcnt(0)')
    a('s_barrier')
    a(f's_cmp_eq_u32 s{sL}, 0')
    a('s_cbranch_scc1 K2_SNEXT')
    setup_ptrs()
    a('s_waitcnt lgkmcnt(0)')
    for ins in dma_addr(): a(ins)
    for ins in dma_issue(): a(ins)
    forced_flags()
    pipeline_fill()
    main_loop('S', True)
    a.label('K2_SNEXT')
    a('s_waitcnt vmcnt(0) lgkmcnt(0)')
    a('s_barrier')
    a(f's_add_u32 s{sP}, s{sP}, 1')
    a(f's_cmp_lt_u32 s{sP}, s{sNP}')
    a('s_cbranch_scc1 K2_SPASS')
    epilogue('S', False)
    a.label('K2_END')
    a('s_endpgm')
    return nvgpr, nsgpr

def kd(name, nv, ns):
    acc = (nv + 3) // 4 * 4
    return f'''.amdhsa_kernel {name}
  .amdhsa_next_free_vgpr {nv}
  .amdhsa_next_free_sgpr {ns}
  .amdhsa_accum_offset {acc}
  .amdhsa_group_segment_fixed_size 0
  .amdhsa_kernarg_size 96
  .amdhsa_user_sgpr_count 2
  .amdhsa_user_sgpr_kernarg_segment_ptr 1
  .amdhsa_system_sgpr_workgroup_id_x 1
  .amdhsa_float_denorm_mode_32 3
.end_amdhsa_kernel
'''

DOC = """;
;
"""

def build(opts=None):
    opts = opts or {}
    a = Asm()
    gen_k1(a, opts)
    nv, ns = gen_k2(a, opts)
    out = HEADER
    out += f'; @launch kernel=gs_part_kernel grid=(256,1,1) block=({K1_THREADS},1,1) lds={LDS_K1}\n'
    out += f'; @launch kernel=gs_main_kernel grid=(256,1,1) block=({NW*64},1,1) lds={LDS_MAIN}\n'
    out += DOC
    out += '.amdgcn_target "amdgcn-amd-amdhsa--gfx950"\n.text\n'
    out += a.text()
    out += '.section .rodata,"a"\n.p2align 6\n'
    out += kd('gs_part_kernel', 62 if opts.get('stamp1') else 60, 60)
    out += '.p2align 6\n'
    out += kd('gs_main_kernel', nv, ns)
    return out

if __name__ == '__main__':
    path = sys.argv[1] if len(sys.argv) > 1 else 'gather_scatter__edge_featured_mpnn_gatedgcn__graph.s'
    opts = {}
    for o in sys.argv[2:]:
        k, _, val = o.partition('=')
        opts[k] = int(val) if val else True
    open(path, 'w').write(build(opts))
    print('written', path, 'LDS', LDS_MAIN)
```

```python
import sys, os, struct
sys.path.insert(0, os.path.dirname(__file__))
from asmlib import *

N = 25000; E = 800000
NBK = 256
CH = 3136
RECB = CH * 8
WS_TAB = 0x700000
WS_TAB2 = 0x740000
WS_FRAG = 0x780000
MAGIC_B = 43980466
LOG2E = 0xBFB8AA3B
SBITS = 50
C_SCALE = (127 - SBITS) << 23
EPS_SCALED = 0x4E8637BD
assert abs(struct.unpack('<f', struct.pack('<I', EPS_SCALED))[0] / (1e-6 * 2.0**50) - 1) < 1e-6

NW = 8
NSTREAM = 16
NIT = 16
CAP = 3456
WSLOW = 13
ROWB = 784
MAXN = 98
ENT_QUADS = 960
VROWB = 640
L_CNT = 0
L_ZERO = 512
L_TAB = 1024
L_QI = 1536
L_ENT = L_QI + ENT_QUADS * 4
L_ACC = L_ENT + ENT_QUADS * 16
L_VIRT = L_ACC + MAXN * ROWB
L_WST = L_VIRT + NSTREAM * VROWB
L_WST = (L_WST + 255) // 256 * 256
L_DMA = L_WST + 16384
LDS_MAIN = L_DMA + NW * 4096
assert LDS_MAIN <= 163840, LDS_MAIN
assert L_ACC % 16 == 0 and L_VIRT % 16 == 0

K1_THREADS = 896
K1_HIST = 0
K1_STAGE = 1024
LDS_K1 = K1_STAGE + RECB

HEADER = open(os.path.join(os.path.dirname(__file__), 'header.txt')).read()

def srd(a, sreg, ptr, size):
    a(f's_mov_b32 s{sreg}, s{ptr}')
    a(f's_and_b32 s{sreg+1}, s{ptr+1}, 0xffff')
    a(f's_mov_b32 s{sreg+2}, {size}')
    a(f's_mov_b32 s{sreg+3}, 0x20000')

def srd_off(a, sreg, ptr, off, size):
    a(f's_add_u32 s{sreg}, s{ptr}, {off}')
    a(f's_addc_u32 s{sreg+1}, s{ptr+1}, 0')
    a(f's_and_b32 s{sreg+1}, s{sreg+1}, 0xffff')
    a(f's_mov_b32 s{sreg+2}, {size}')
    a(f's_mov_b32 s{sreg+3}, 0x20000')

def wave_scan(a, op, r):
    for sh in (1, 2, 4, 8):
        a('s_nop 1')
        a(f'{op}_dpp v{r}, v{r}, v{r} row_shr:{sh} row_mask:0xf bank_mask:0xf')
    a('s_nop 1')
    a(f'{op}_dpp v{r}, v{r}, v{r} row_bcast:15 row_mask:0xa bank_mask:0xf')
    a('s_nop 1')
    a(f'{op}_dpp v{r}, v{r}, v{r} row_bcast:31 row_mask:0xc bank_mask:0xf')

def wave_scan2(a, op1, r1, op2, r2):
    steps = [f'row_shr:{sh} row_mask:0xf bank_mask:0xf' for sh in (1, 2, 4, 8)] + \
            ['row_bcast:15 row_mask:0xa bank_mask:0xf', 'row_bcast:31 row_mask:0xc bank_mask:0xf']
    a('s_nop 1')
    for st in steps:
        a(f'{op1}_dpp v{r1}, v{r1}, v{r1} {st}')
        a(f'{op2}_dpp v{r2}, v{r2}, v{r2} {st}')
        a('s_nop 0')

def gen_k1(a, opts):
    ST = opts.get('stamp1', False)
    def stamp(i):
        if not ST: return
        a('s_memtime s[56:57]')
        a('s_waitcnt lgkmcnt(0)')
        a(f'v_writelane_b32 v60, s56, {i}')
    a.raw('.p2align 8')
    a.raw('.globl gs_part_kernel')
    a.raw('.type gs_part_kernel,@function')
    a.label('gs_part_kernel')
    a('s_cmp_ge_u32 s2, 256')
    a('s_cbranch_scc1 K1_END')
    a('s_load_dwordx4 s[4:7], s[0:1], 8')
    a('s_load_dwordx2 s[8:9], s[0:1], 24')
    a('s_load_dwordx2 s[10:11], s[0:1], 88')
    a('s_load_dwordx2 s[44:45], s[0:1], 0')
    if ST: a('v_mov_b32 v60, 0')
    stamp(0)
    if opts.get('dbgtime'):
        a('s_memrealtime s[54:55]')
        a('s_waitcnt lgkmcnt(0)')
        a('s_cmp_ge_u32 s2, 8')
        a('s_cbranch_scc1 K1_NODBG')
        a('v_mov_b32 v20, s54')
        a('s_lshl_b32 s56, s2, 2')
        a('s_add_u32 s56, s56, 0x1200000')
        a('v_mov_b32 v22, s56')
        a('v_cmp_eq_u32 vcc, 0, v0')
        a('s_and_saveexec_b64 s[58:59], vcc')
        a('global_store_dword v22, v20, s[10:11]')
        a('s_mov_b64 exec, s[58:59]')
        a.label('K1_NODBG')
    a('v_lshrrev_b32 v1, 6, v0')
    a('s_mul_i32 s12, s2, %d' % (CH * 4))
    a('v_readfirstlane_b32 s3, v1')
    a('s_lshr_b32 s13, s12, 1')
    a('v_lshlrev_b32 v2, 4, v0')
    a('v_add_u32 v2, s12, v2')
    a('s_cmp_eq_u32 s3, 13')
    a('s_cbranch_scc1 K1_FRAG')
    a('v_lshlrev_b32 v3, 3, v0')
    a('v_add_u32 v3, s13, v3')
    a('s_waitcnt lgkmcnt(0)')
    srd(a, 20, 8, E * 4)
    a('buffer_load_dwordx4 v[4:7], v2, s[20:23], 0 offen')
    srd(a, 24, 6, E * 4)
    srd(a, 28, 4, E * 2)
    if not opts.get('dstfirst', 1):
        a('buffer_load_dwordx4 v[8:11], v2, s[24:27], 0 offen')
        a('buffer_load_dwordx2 v[12:13], v3, s[28:31], 0 offen')
    a('v_lshlrev_b32 v14, 2, v0')
    a('v_mov_b32 v15, 0')
    a('v_cmp_gt_u32 vcc, 256, v0')
    a('s_and_saveexec_b64 s[18:19], vcc')
    a('ds_write_b32 v14, v15 offset:%d' % K1_HIST)
    a('s_mov_b64 exec, s[18:19]')
    a('v_cmp_gt_u32 vcc, %d, v0' % (CH // 4))
    a('s_mov_b32 s14, %d' % (E * 4))
    a('v_cmp_gt_u32 s[16:17], s14, v2')
    a('s_and_b64 s[16:17], s[16:17], vcc')
    a('s_mul_i32 s15, s2, %d' % RECB)
    srd_off(a, 32, 10, 's15', RECB)
    srd_off(a, 36, 10, WS_TAB, 0x80000)
    if opts.get('touch', 0):
        a('s_cmp_lg_u32 s3, 1')
        a('s_cbranch_scc1 K1_NOTOUCH')
        a('v_mov_b32 v41, 0')
        a('buffer_load_dword v42, v41, s[32:35], 0 offen')
        a('buffer_load_dword v43, v41, s[36:39], 0 offen')
        a.label('K1_NOTOUCH')
    a('s_mov_b32 s40, %d' % MAGIC_B)
    a('s_movk_i32 s41, 3125')
    a('v_mov_b32 v15, 1')
    a('s_waitcnt lgkmcnt(0)')
    a('s_barrier')
    if opts.get('dstfirst', 1) == 1:
        a('s_waitcnt vmcnt(0)')
        a('buffer_load_dwordx4 v[8:11], v2, s[24:27], 0 offen')
        a('buffer_load_dwordx2 v[12:13], v3, s[28:31], 0 offen')
    elif opts.get('dstfirst', 1) == 2:
        a('buffer_load_dwordx4 v[8:11], v2, s[24:27], 0 offen')
        a('buffer_load_dwordx2 v[12:13], v3, s[28:31], 0 offen')
        a('s_waitcnt vmcnt(2)')
    if opts.get('xpre', 1) == 1:
        a('s_and_b32 s46, s2, 7')
        a('s_lshr_b32 s47, s2, 3')
        a('s_lshl_b32 s46, s46, 5')
        a('s_add_u32 s46, s46, s47')
        a('s_mul_i32 s46, s46, 3125')
        a('s_add_u32 s46, s46, 31')
        a('s_lshr_b32 s46, s46, 5')
        a('s_lshl_b32 s46, s46, 7')
        a('s_and_b32 s45, s45, 0xffff')
        a('s_mov_b32 s48, s44')
        a('s_mov_b32 s49, s45')
        a('s_mov_b32 s50, %d' % (N * 128))
        a('s_mov_b32 s51, 0x20000')
        a('v_lshlrev_b32 v40, 4, v0')
        a('buffer_load_dwordx4 v[56:59], v40, s[48:51], s46 offen')
    a('s_mov_b64 exec, s[16:17]')
    a('s_cbranch_execz K1_NOEDGE1')
    stamp(1)
    if not opts.get('dstfirst', 1): a('s_waitcnt vmcnt(%d)' % (3 if opts.get('xpre', 1) else 2))
    stamp(2)
    for k in range(4):
        a(f'v_mul_hi_u32 v{16+k}, v{4+k}, s40')
    for k in range(4):
        a(f'v_lshlrev_b32 v{20+k}, 2, v{16+k}')
        a(f'ds_add_rtn_u32 v{24+k}, v{20+k}, v15 offset:{K1_HIST}')
    for k in range(4):
        a(f'v_mul_u32_u24 v{28+k}, s41, v{16+k}')
        a(f'v_add_u32 v{28+k}, 31, v{28+k}')
        a(f'v_lshrrev_b32 v{28+k}, 5, v{28+k}')
        a(f'v_sub_u32 v{28+k}, v{4+k}, v{28+k}')
        a(f'v_lshlrev_b32 v{33+2*k}, 2, v{28+k}')
    a.label('K1_NOEDGE1')
    a('s_mov_b64 exec, -1')
    a('s_waitcnt lgkmcnt(0)')
    stamp(3)
    a('s_barrier')
    stamp(4)
    if opts.get('xpre', 1) == 2:
        a('s_and_b32 s46, s2, 7')
        a('s_lshr_b32 s47, s2, 3')
        a('s_lshl_b32 s46, s46, 5')
        a('s_add_u32 s46, s46, s47')
        a('s_mul_i32 s46, s46, 3125')
        a('s_add_u32 s46, s46, 31')
        a('s_lshr_b32 s46, s46, 5')
        a('s_lshl_b32 s46, s46, 7')
        a('s_and_b32 s45, s45, 0xffff')
        a('s_mov_b32 s48, s44')
        a('s_mov_b32 s49, s45')
        a('s_mov_b32 s50, %d' % (N * 128))
        a('s_mov_b32 s51, 0x20000')
        a('v_lshlrev_b32 v40, 4, v0')
        a('buffer_load_dwordx4 v[56:59], v40, s[48:51], s46 offen')
    a('s_cmp_lg_u32 s3, 0')
    a('s_cbranch_scc1 K1_SCANDONE')
    a('v_lshlrev_b32 v40, 4, v0')
    a('ds_read_b128 v[44:47], v40 offset:%d' % K1_HIST)
    a('s_waitcnt lgkmcnt(0)')
    a('v_add_u32 v48, v44, v45')
    a('v_add_u32 v49, v48, v46')
    a('v_add_u32 v50, v49, v47')
    a('v_mov_b32 v51, v50')
    wave_scan(a, 'v_add_u32', 51)
    a('v_sub_u32 v52, v51, v50')
    a('v_add_u32 v53, v52, v44')
    a('v_add_u32 v54, v52, v48')
    a('v_add_u32 v55, v52, v49')
    a('ds_write_b128 v40, v[52:55] offset:%d' % K1_HIST)
    if not opts.get('w0late', 1): a('s_waitcnt vmcnt(%d)' % (1 if opts.get('xpre', 1) else 0))
    a('s_mul_i32 s15, s2, %d' % CH)
    for k in range(4):
        a(f'v_min_u32 v{48+k}, 0xff, v{44+k}')
        a(f'v_add_u32 v{52+k}, s15, v{52+k}')
        a(f'v_lshl_or_b32 v{48+k}, v{48+k}, 24, v{52+k}')
    a('s_lshl_b32 s15, s2, 10')
    a('buffer_store_dwordx4 v[48:51], v40, s[36:39], s15 offen' + (' sc1' if opts.get('tabst', 1) else ''))
    a.label('K1_SCANDONE')
    a('s_waitcnt lgkmcnt(0)')
    a('s_barrier')
    stamp(5)
    a('s_mov_b64 exec, s[16:17]')
    a('s_cbranch_execz K1_NOEDGE2')
    for k in range(4):
        a(f'ds_read_b32 v{28+k}, v{20+k} offset:{K1_HIST}')
    a('s_cmp_eq_u32 s3, 0')
    a('s_cbranch_scc1 K1_W0')
    a('s_waitcnt vmcnt(%d)' % (1 if opts.get('xpre', 1) else 0))
    a('s_branch K1_HAVE')
    a.label('K1_W0')
    a('s_waitcnt vmcnt(%d)' % (2 if opts.get('xpre', 1) else 1))
    a.label('K1_HAVE')
    a('s_mov_b32 s42, 0xffff0000')
    a('v_lshl_or_b32 v32, v12, 16, v8')
    a('v_and_or_b32 v34, v12, s42, v9')
    a('v_lshl_or_b32 v36, v13, 16, v10')
    a('v_and_or_b32 v38, v13, s42, v11')
    for k in range(4):
        a(f's_waitcnt lgkmcnt({3 if k == 0 else 3})')
        a(f'v_add_lshl_u32 v{28+k}, v{28+k}, v{24+k}, 3')
        a(f'ds_write_b64 v{28+k}, v[{32+2*k}:{33+2*k}] offset:{K1_STAGE}')
    a.label('K1_NOEDGE2')
    a('s_mov_b64 exec, -1')
    a('v_lshlrev_b32 v2, 4, v0')
    a('v_add_u32 v3, %d, v2' % (RECB // 2))
    a('v_cmp_gt_u32 vcc, %d, v0' % (CH // 4))
    a('s_waitcnt lgkmcnt(0)')
    stamp(6)
    a('s_barrier')
    stamp(7)
    a('s_and_saveexec_b64 s[18:19], vcc')
    a('s_cbranch_execz K1_END')
    a('ds_read_b128 v[4:7], v2 offset:%d' % K1_STAGE)
    a('ds_read_b128 v[8:11], v2 offset:%d' % (K1_STAGE + RECB // 2))
    a('s_waitcnt lgkmcnt(1)')
    sfx = {0: '', 1: ' sc1', 2: ' nt', 3: ' sc0 sc1', 4: ' sc1 nt'}[opts.get('k1st', 1)]
    a('buffer_store_dwordx4 v[4:7], v2, s[32:35], 0 offen' + sfx)
    a('s_waitcnt lgkmcnt(0)')
    a('buffer_store_dwordx4 v[8:11], v3, s[32:35], 0 offen' + sfx)
    if opts.get('endwait', 1): a('s_waitcnt vmcnt(0)')
    if ST:
        stamp(8)
        a('s_waitcnt vmcnt(0)')
        stamp(9)
        a('s_mul_i32 s12, s2, 16')
        a('s_add_u32 s12, s12, s3')
        a('s_lshl_b32 s12, s12, 8')
        a('s_add_u32 s12, s12, 0x1100000')
        a('s_add_u32 s32, s10, s12')
        a('s_addc_u32 s33, s11, 0')
        a('s_and_b32 s33, s33, 0xffff')
        a('s_mov_b32 s34, 256')
        a('s_mov_b64 exec, -1')
        a('v_and_b32 v4, 63, v0')
        a('v_lshlrev_b32 v4, 2, v4')
        a('buffer_store_dword v60, v4, s[32:35], 0 offen')
    if opts.get('dbgtime'):
        a('s_waitcnt vmcnt(0)')
        a('s_memrealtime s[54:55]')
        a('s_waitcnt lgkmcnt(0)')
        a('s_cmp_ge_u32 s2, 8')
        a('s_cbranch_scc1 K1_END')
        a('s_cmp_lg_u32 s3, 0')
        a('s_cbranch_scc1 K1_END')
        a('v_mov_b32 v20, s54')
        a('s_lshl_b32 s56, s2, 2')
        a('s_add_u32 s56, s56, 0x1200100')
        a('v_mov_b32 v22, s56')
        a('s_mov_b64 exec, 1')
        a('global_store_dword v22, v20, s[10:11]')
    a('s_endpgm')
    a.label('K1_FRAG')
    if opts.get('codepre', 0):
        a('s_cmp_lt_u32 s2, 32')
        a('s_cbranch_scc1 K1_FRAG2')
        a('s_cmp_ge_u32 s2, 64')
        a('s_cbranch_scc1 K1_END')
        a('s_getpc_b64 s[12:13]')
        a.label('K1_PCREF')
        a('s_add_u32 s12, s12, gs_main_kernel-K1_PCREF')
        a('s_addc_u32 s13, s13, 0')
        a('v_and_b32 v1, 63, v0')
        a('v_lshlrev_b32 v2, 4, v1')
        for i in range(opts.get('codekb', 20)):
            a(f'global_load_dwordx4 v[4:7], v2, s[12:13]')
            a('v_add_u32 v2, 1024, v2')
        a('s_endpgm')
        a.label('K1_FRAG2')
    a('s_cmp_ge_u32 s2, 32')
    a('s_cbranch_scc1 K1_END')
    if opts.get('fragbar', 1):
        a('s_barrier')
    a('s_load_dwordx4 s[12:15], s[0:1], 32')
    a('s_load_dwordx4 s[16:19], s[0:1], 56')
    a('s_lshr_b32 s20, s2, 3')
    a('s_waitcnt lgkmcnt(0)')
    a('s_mov_b32 s22, s14')
    a('s_mov_b32 s23, s15')
    a('s_cmp_eq_u32 s20, 1')
    a('s_cselect_b32 s22, s18, s22')
    a('s_cselect_b32 s23, s19, s23')
    a('s_cmp_eq_u32 s20, 2')
    a('s_cselect_b32 s22, s12, s22')
    a('s_cselect_b32 s23, s13, s23')
    a('s_cmp_eq_u32 s20, 3')
    a('s_cselect_b32 s22, s16, s22')
    a('s_cselect_b32 s23, s17, s23')
    srd(a, 24, 22, 64 * 64 * 2)
    srd_off(a, 28, 10, WS_FRAG, 32 * 1024)
    a('s_and_b32 s32, s2, 3')
    a('s_lshr_b32 s33, s2, 2')
    a('s_and_b32 s33, s33, 1')
    a('s_lshl_b32 s32, s32, 11')
    a('s_lshl_b32 s33, s33, 6')
    a('s_add_u32 s32, s32, s33')
    a('v_and_b32 v1, 63, v0')
    a('v_and_b32 v2, 31, v1')
    a('v_lshlrev_b32 v2, 1, v2')
    a('v_lshrrev_b32 v3, 5, v1')
    a('v_lshlrev_b32 v3, 10, v3')
    a('v_add3_u32 v2, v2, v3, s32')
    for i in range(8):
        a(f'buffer_load_ushort v{8+i}, v2, s[24:27], 0 offen offset:{i*128}')
    a('s_mov_b32 s34, 1.0')
    a('s_and_b32 s36, s20, 1')
    a('s_cmp_eq_u32 s36, 0')
    a('s_cselect_b32 s34, 0x%x, s34' % LOG2E)
    a('s_waitcnt vmcnt(0)')
    for i in range(8):
        a(f'v_lshlrev_b32 v{8+i}, 16, v{8+i}')
        a(f'v_mul_f32 v{8+i}, s34, v{8+i}')
    for i in range(4):
        a(f'v_cvt_pk_bf16_f32 v{16+i}, v{8+2*i}, v{9+2*i}')
    a('v_lshlrev_b32 v4, 4, v1')
    a('s_lshl_b32 s35, s2, 10')
    a('v_add_u32 v4, s35, v4')
    a('buffer_store_dwordx4 v[16:19], v4, s[28:31], 0 offen' + (' sc1' if opts.get('fragst', 0) else ''))
    if opts.get('endwait', 1): a('s_waitcnt vmcnt(0)')
    a.label('K1_END')
    a('s_endpgm')

def gen_k2(a, opts):
    STAMP = opts.get('stamp', False)
    vLANE = 1; BC = 2
    WB = 4; WV = 36; AX = 68
    GA = 84; HA = 100; GB = 116; HB = 132
    PP = 148; TT_ = 156; ZZ = 164
    DEN = 172; NUM = 176
    AE = [180, 184]; BE = 188; R0 = 192
    QA = [196, 200]
    EN = 204; RA = 208; CO = 212
    pEN = 216; pEE = 217; pQI = 218; pQF = 219
    C4 = 220; SEL = [221, 222]; EE = 223; QF = 224
    F0 = 225; F1 = 226; F2 = 252; F3 = 227
    tA = 227; tB = 228; tC = 229; tD = 230; tE = 231; tF = 232; tG = 233; tH = 234; tI = 235
    TQ = 236; TR = 240
    sidA = 244; jA = 245; sidR = 246; iR4 = 247
    vST = 253; GF = 249; GD = 250
    PB = 228; TB = 236; ZB = 244
    RC = 252; RKC = 225; RKC2 = 226; tJ = 251
    nvgpr = 256
    REC = PP; RK = GB; SG = HB
    G_ = [GA, GB]; H_ = [HA, HB]
    nOFF0 = AE[0]+0 if False else QA[0]; nOFF1 = QA[0]+1; nEND0 = QA[0]+2; nEND1 = QA[0]+3; nROW0 = QA[1]
    S = Regs('s', 3, 102)
    sX = S.alloc('x', 2, 2); sWC = S.alloc('wc', 2, 2); sOUT = S.alloc('out', 2, 2); sWS = S.alloc('ws', 2, 2)
    rX = S.alloc('rX', 4, 4); rT = S.alloc('rT', 4, 4); rR = S.alloc('rR', 4, 4); rF = S.alloc('rF', 4, 4)
    sW = S.alloc('w'); sNS = S.alloc('ns'); sNN = S.alloc('nn')
    sP = S.alloc('pass'); sNP = S.alloc('npass')
    sL = S.alloc('L'); sCNT = S.alloc('cnt'); sLA = S.alloc('La'); sLB = S.alloc('Lb'); sSO = S.alloc('streamoff')
    sC = S.alloc('C', 2, 2)
    sF = [S.alloc('F0', 2, 2), S.alloc('F1', 2, 2)]
    sANY = [S.alloc('any0'), S.alloc('any1')]
    s128 = S.alloc('c128'); sLO = S.alloc('lo16'); sHI = S.alloc('hi16')
    t0 = S.alloc('t0'); t1 = S.alloc('t1'); t2 = S.alloc('t2', 1, 2); t3 = S.alloc('t3')
    sSV = S.alloc('sv', 2, 2); sSV2 = S.alloc('sv2', 2, 2)
    sDB = S.alloc('dmabase'); sSWAP = S.alloc('swap')
    sDBG = S.alloc('dbg', 2, 2) if opts.get('dbgtime') else None
    sT0 = S.alloc('dbgt0', 2, 2) if opts.get('dbgtime') else None
    sT1 = S.alloc('dbgt1') if opts.get('dbgtime') else None
    sT2 = S.alloc('dbgt2') if opts.get('dbgtime') else None
    MK = S.alloc('MK', 32, 2)
    MKC = S.alloc('MKC', 2, 2); MKC2 = S.alloc('MKC2', 2, 2)
    rO = rT
    nsgpr = S.hi
    def stamp(i):
        if not STAMP: return
        a(f's_memtime s[{t2}:{t3}]')
        a('s_waitcnt lgkmcnt(0)')
        a(f'v_writelane_b32 v{vST}, s{t2}, {i}')
    XB = 4096

    a.raw('.p2align 8')
    a.raw('.globl gs_main_kernel')
    a.raw('.type gs_main_kernel,@function')
    a.label('gs_main_kernel')
    a('s_cmp_ge_u32 s2, 256')
    a('s_cbranch_scc1 K2_END')
    a(f's_load_dwordx2 s[{sWS}:{sWS+1}], s[0:1], 88')
    a(f's_load_dwordx2 s[{sX}:{sX+1}], s[0:1], 0')
    a(f's_load_dwordx2 s[{sWC}:{sWC+1}], s[0:1], 48')
    a(f's_load_dwordx2 s[{sOUT}:{sOUT+1}], s[0:1], 72')
    a('s_and_b32 s3, s2, 7')
    a('s_lshr_b32 s2, s2, 3')
    a('s_lshl_b32 s3, s3, 5')
    a('s_add_u32 s2, s2, s3')
    if opts.get('dbgtime'):
        a(f's_load_dwordx2 s[{sDBG}:{sDBG+1}], s[0:1], 80')
        a(f's_memrealtime s[{sT0}:{sT0+1}]')
        a('s_waitcnt lgkmcnt(0)')
    if STAMP:
        a(f'v_mov_b32 v{vST}, 0')
        a(f's_memtime s[{MK}:{MK+1}]')
        a(f's_memrealtime s[{MK+2}:{MK+3}]')
    a(f'v_lshrrev_b32 v{tA}, 6, v0')
    a(f'v_and_b32 v{vLANE}, 63, v0')
    a(f'v_readfirstlane_b32 s{sW}, v{tA}')
    a(f'v_lshrrev_b32 v{sidA}, 5, v{vLANE}')
    if opts.get('proprio'):
        a('s_nop 2')
        a(f's_cmp_ge_u32 s{sW}, 4')
        a('s_cbranch_scc0 K2_PP0')
        a('s_setprio 1')
        a.label('K2_PP0')
    a(f's_lshl_b32 s{t0}, s{sW}, 1')
    a(f'v_add_u32 v{sidA}, s{t0}, v{sidA}')
    a(f'v_lshrrev_b32 v{tD}, 3, v{vLANE}')
    a(f'v_lshlrev_b32 v{tD}, 12, v{tD}')
    a(f's_lshl_b32 s{t0}, s{sW}, 15')
    a(f'v_add_u32 v{tD}, s{t0}, v{tD}')
    a(f'v_lshlrev_b32 v{tA}, 4, v{vLANE}')
    a(f's_mul_i32 s{t0}, s2, 3125')
    a(f's_add_u32 s{sNS}, s{t0}, 31')
    a(f's_lshr_b32 s{sNS}, s{sNS}, 5')
    a(f's_add_u32 s{t0}, s{t0}, {3125+31}')
    a(f's_lshr_b32 s{t0}, s{t0}, 5')
    a(f's_sub_u32 s{sNN}, s{t0}, s{sNS}')
    a(f's_lshl_b32 s{sDB}, s{sW}, 12')
    a(f's_add_u32 s{sDB}, s{sDB}, {L_DMA}')
    a(f'v_bfe_u32 v{tE}, v{vLANE}, 4, 1')
    a(f'v_and_b32 v{tF}, 7, v{vLANE}')
    a(f'v_xor_b32 v{tE}, v{tE}, v{tF}')
    a(f'v_lshlrev_b32 v{tE}, 4, v{tE}')
    for i in range(4):
        if i: a(f'v_xor_b32 v{tF}, {32*i}, v{tE}')
        a(f'v_add_u32 v{CO+i}, {XB - 1024*i}, v{tF if i else tE}')
    a(f'v_bfe_u32 v{jA}, v{vLANE}, 3, 2')
    a(f'v_lshrrev_b32 v{tF}, 5, v{vLANE}')
    a(f'v_lshlrev_b32 v{tE}, 3, v{jA}')
    a(f'v_lshl_add_u32 v{tE}, v{tF}, 2, v{tE}')
    a(f's_lshr_b32 s{t0}, s{sW}, 1')
    a(f's_lshl_b32 s{t1}, s{t0}, 5')
    a(f's_add_u32 s{t1}, s{t1}, s{sNS}')
    a(f's_and_b32 s{t2}, s{sW}, 1')
    a(f's_lshl_b32 s{t2}, s{t2}, 1')
    a(f's_add_u32 s{t1}, s{t1}, s{t2}')
    a(f'v_add_u32 v{tE}, s{t1}, v{tE}')
    a(f'v_lshlrev_b32 v{tE}, 7, v{tE}')
    a(f's_cmp_eq_u32 s{t2}, 0')
    a(f's_cbranch_scc0 K2_XI2')
    a(f'v_add_u32 v{tH}, v{tE}, v{CO}')
    a(f'v_add_u32 v{tI}, v{tE}, v{CO+1}')
    a('s_branch K2_XI')
    a.label('K2_XI2')
    a(f'v_add_u32 v{tH}, v{tE}, v{CO+2}')
    a(f'v_add_u32 v{tI}, v{tE}, v{CO+3}')
    a(f'v_add_u32 v{tH}, 2048, v{tH}')
    a(f'v_add_u32 v{tI}, 2048, v{tI}')
    a.label('K2_XI')
    a(f'v_add_u32 v{tI}, 128, v{tI}')
    a(f'v_and_b32 v{C4}, 31, v{vLANE}')
    a(f's_lshl_b32 s{t1}, s2, 2')
    a(f's_add_u32 s{t1}, s{t1}, {WS_TAB}')
    a('s_waitcnt lgkmcnt(0)')
    if STAMP:
        a(f'v_writelane_b32 v{vST}, s{MK}, 0')
        a(f'v_writelane_b32 v{vST}, s{MK+2}, 11')
    srd_off(a, rT, sWS, f's{t1}', 256 * 1024)
    for it in range(4):
        a(f'buffer_load_dword v{SG+it}, v{tD}, s[{rT}:{rT+3}], 0 offen' + (f' offset:{1024*it}' if it else ''))
    a(f's_sub_u32 s{rX}, s{sX}, {XB}')
    a(f's_subb_u32 s{rX+1}, s{sX+1}, 0')
    a(f's_and_b32 s{rX+1}, s{rX+1}, 0xffff')
    a(f's_mov_b32 s{rX+2}, {N*128 + XB}')
    a(f's_mov_b32 s{rX+3}, 0x20000')
    srd_off(a, rF, sWS, WS_FRAG, 32 * 1024)
    def staging():
        a(f's_lshr_b32 s{t0}, s{sW}, 1')
        a(f's_lshl_b32 s{t0}, s{t0}, 12')
        a(f's_and_b32 s{t2}, s{sW}, 1')
        a(f's_lshl_b32 s{t2}, s{t2}, 11')
        a(f's_add_u32 s{t0}, s{t0}, s{t2}')
        a(f's_add_u32 s{t0}, s{t0}, {L_DMA}')
        a(f's_mov_b32 m0, s{t0}')
        a(f'v_lshlrev_b32 v{tA}, 4, v{vLANE}')
        if not opts.get('noxown'):
            a(f'buffer_load_dwordx4 v{tH}, s[{rX}:{rX+3}], 0 offen lds')
            a(f'buffer_load_dwordx4 v{tI}, s[{rX}:{rX+3}], 0 offen offset:1024 lds')
        a(f's_lshl_b32 s{t0}, s{sW}, 11')
        a(f's_add_u32 s{t1}, s{t0}, {L_DMA + 4*4096}')
        a(f's_mov_b32 m0, s{t1}')
        a(f's_add_u32 s{t2}, s{t0}, {16*1024}')
        a(f'buffer_load_dwordx4 v{tA}, s[{rF}:{rF+3}], s{t2} offen lds')
        a(f'buffer_load_dwordx4 v{tA}, s[{rF}:{rF+3}], s{t2} offen offset:1024 lds')
        a(f's_add_u32 s{t1}, s{t0}, {L_WST}')
        a(f's_mov_b32 m0, s{t1}')
        a('s_nop 0')
        a(f'buffer_load_dwordx4 v{tA}, s[{rF}:{rF+3}], s{t0} offen lds')
        a(f'buffer_load_dwordx4 v{tA}, s[{rF}:{rF+3}], s{t0} offen offset:1024 lds')
        srd(a, rR, sWC, 128)
        a(f'v_lshlrev_b32 v{tE}, 1, v{C4}')
        if not opts.get('nowc'):
            a(f'buffer_load_ushort v{BC}, v{tE}, s[{rR}:{rR+3}], 0 offen')
            a(f'buffer_load_ushort v{BC+1}, v{tE}, s[{rR}:{rR+3}], 0 offen offset:64')
    staging()
    MKT = (MK + 3) // 4 * 4
    if opts.get('touch', 0):
        srd(a, MKT, sWS, NBK * RECB)
        a(f'v_and_b32 v{tE}, 3, v{vLANE}')
        a(f'v_lshlrev_b32 v{tE}, 21, v{tE}')
        a(f'buffer_load_dword v{F0}, v{tE}, s[{MKT}:{MKT+3}], 0 offen')
        srd(a, MKT + 4, sOUT, N * 128)
        a(f'v_and_b32 v{tE}, 1, v{vLANE}')
        a(f'v_lshlrev_b32 v{tE}, 21, v{tE}')
        a(f'buffer_load_dword v{F1}, v{tE}, s[{MKT+4}:{MKT+7}], 0 offen')
    def lds_init():
        a(f'v_lshlrev_b32 v{tE}, 4, v0')
        a(f'v_mov_b32 v{TR}, 0xffff')
        a(f'v_mov_b32 v{TR+1}, 0xffff')
        a(f'v_mov_b64 v[{TR+2}:{TR+3}], v[{TR}:{TR+1}]')
        a(f'ds_write_b128 v{tE}, v[{TR}:{TR+3}] offset:{L_ENT}')
        a(f's_cmp_ge_u32 s{sW}, {(ENT_QUADS - 512) // 64}')
        a(f's_cbranch_scc1 K2_I1{tag_i[0]}')
        a(f'ds_write_b128 v{tE}, v[{TR}:{TR+3}] offset:{L_ENT + 512*16}')
        a.label(f'K2_I1{tag_i[0]}')
        assert (ENT_QUADS - 512) % 64 == 0
        a(f'v_mov_b32 v{TR}, {L_VIRT}')
        a(f'v_mov_b32 v{TR+1}, {L_VIRT}')
        a(f'v_mov_b64 v[{TR+2}:{TR+3}], v[{TR}:{TR+1}]')
        a(f'v_cmp_gt_u32 vcc, {ENT_QUADS // 4}, v0')
        a(f's_and_saveexec_b64 s[{sSV}:{sSV+1}], vcc')
        a(f'ds_write_b128 v{tE}, v[{TR}:{TR+3}] offset:{L_QI}')
        a(f's_mov_b64 exec, s[{sSV}:{sSV+1}]')
        a(f's_cmp_lg_u32 s{sW}, 0')
        a(f's_cbranch_scc1 K2_I2{tag_i[0]}')
        a(f'v_mov_b64 v[{TR}:{TR+1}], 0')
        a(f'v_mov_b64 v[{TR+2}:{TR+3}], 0')
        a(f'ds_write_b128 v{tE}, v[{TR}:{TR+3}] offset:{L_CNT}')
        a(f'v_add_u32 v{tE}, {L_VIRT + 512}, v{tE}')
        a('s_mov_b64 exec, 0xff')
        a(f'ds_write_b128 v{tE}, v[{TR}:{TR+3}]')
        a('s_mov_b64 exec, -1')
        a.label(f'K2_I2{tag_i[0]}')
        tag_i[0] += 1
    tag_i = [0]
    lds_init()
    a(f'v_and_b32 v{tE}, 3, v{vLANE}')
    a(f'v_lshlrev_b32 v{iR4}, 2, v{tE}')
    a(f'v_lshl_add_u32 v{RA}, v{tE}, 3, v{jA}')
    a(f'v_lshrrev_b32 v{tF}, 1, v{jA}')
    a(f'v_lshl_add_u32 v{tE}, v{tE}, 1, v{tF}')
    a(f'v_bfe_u32 v{tF}, v{vLANE}, 2, 1')
    a(f's_lshl_b32 s{t0}, s{sW}, 1')
    a(f'v_add_u32 v{sidR}, s{t0}, v{tF}')
    a(f'v_lshl_add_u32 v{RA}, v{tF}, 2, v{RA}')
    a(f'v_lshrrev_b32 v{tG}, 5, v{vLANE}')
    a(f'v_cmp_eq_u32 vcc, v{tF}, v{tG}')
    a(f'v_xor_b32 v{tE}, v{tE}, v{tG}')
    a(f'v_lshlrev_b32 v{tE}, 4, v{tE}')
    a(f'v_lshl_add_u32 v{RA}, v{RA}, 7, v{tE}')
    a(f'v_mov_b32 v{tF}, 0x3f80')
    a(f'v_cndmask_b32 v{tF}, 0, v{tF}, vcc')
    a(f'v_lshlrev_b32 v{tG}, v{jA}, 1') if False else None
    a(f'v_mov_b32 v{tG}, 1')
    a(f'v_lshlrev_b32 v{tG}, v{jA}, v{tG}')
    for q in range(4):
        a(f'v_bfe_u32 v{tE}, v{tG}, {q}, 1')
        a(f'v_mul_u32_u24 v{AE[0]+q}, v{tE}, v{tF}')
        a(f'v_lshlrev_b32 v{AE[1]+q}, 16, v{AE[0]+q}')
    a(f'v_cmp_gt_u32 vcc, 32, v{vLANE}')
    a(f'v_mov_b32 v{tE}, 0x0a0c0100')
    a(f'v_mov_b32 v{tF}, 0x07060100')
    a(f'v_cndmask_b32 v{SEL[0]}, v{tE}, v{tF}, vcc')
    a(f'v_mov_b32 v{tE}, 0x03020a0c')
    a(f'v_mov_b32 v{tF}, 0x03020706')
    a(f'v_cndmask_b32 v{SEL[1]}, v{tE}, v{tF}, vcc')
    a(f's_mov_b32 s{sC}, 0x{C_SCALE:x}')
    a(f's_mov_b32 s{sC+1}, 0x{C_SCALE:x}')
    a(f's_mov_b32 s{s128}, 128')
    a(f's_mov_b32 s{sLO}, 0xffff')
    a(f's_mov_b32 s{sHI}, 0xffff0000')
    a(f'v_and_b32 v{tB}, 7, v{vLANE}')
    a(f'v_lshlrev_b32 v{tB}, 4, v{tB}')
    a(f'v_lshlrev_b32 v{C4}, 2, v{C4}')
    a('s_waitcnt vmcnt(%d) lgkmcnt(0)' % (2 if opts.get('touch', 0) else 0))
    stamp(1)
    a('s_barrier')
    srd(a, rR, sWS, NBK * RECB)
    def slot_ent(sl): return REC + 2*sl
    def rec_loads(vk16, nwin):
        for it in range(4):
            a(f'v_mad_u32_u24 v{RK+it}, v{SG+it}, 8, v{vk16}')
        for w_ in range(nwin):
            for it in range(4):
                sl = 8*w_ + 2*it
                a(f's_mov_b64 exec, s[{MK+2*sl}:{MK+2*sl+1}]')
                sk = a.newlabel('skl') if w_ else None
                if sk: a(f's_cbranch_execz {sk}')
                a(f'buffer_load_dwordx4 v[{REC+2*sl}:{REC+2*sl+3}], v{RK+it}, s[{rR}:{rR+3}], 0 offen' + (' offset:128' if w_ else ''))
                if sk: a.label(sk)
        a('s_mov_b64 exec, -1')
    a(f'v_lshrrev_b32 v{tC}, 3, v{tB}')
    for w_ in range(2):
        for sub in range(2):
            if w_ or sub: a(f'v_add_u32 v{tD}, {16*w_ + sub}, v{tC}')
            for it in range(4):
                sl = 8*w_ + 2*it + sub
                a(f'v_cmp_gt_u32_sdwa s[{MK+2*sl}:{MK+2*sl+1}], v{SG+it}, v{tD if (w_ or sub) else tC} src0_sel:BYTE_3 src1_sel:DWORD')
    stamp(25)
    rec_loads(tB, 2)
    stamp(26)
    a(f'v_max3_u32 v{tD}, v{SG}, v{SG+1}, v{SG+2}')
    a(f'v_max_u32 v{tD}, v{tD}, v{SG+3}')
    a(f'v_lshrrev_b32 v{tD}, 24, v{tD}')
    a(f'v_cmp_lt_u32 s[{sSV2}:{sSV2+1}], 32, v{tD}')
    a(f's_mov_b64 s[{MKC}:{MKC+1}], 0')
    a(f's_mov_b64 s[{MKC2}:{MKC2+1}], 0')
    a(f's_cmp_lg_u64 s[{sSV2}:{sSV2+1}], 0')
    a('s_cbranch_scc1 K2_CSEL')
    a.label('K2_CBACK')

    def gemm_issue():
        a(f's_lshr_b32 s{t0}, s{sW}, 1')
        a(f's_lshl_b32 s{t1}, s{t0}, 12')
        a(f's_add_u32 s{t1}, s{t1}, {L_DMA}')
        a(f'v_add_u32 v{tA}, s{t1}, v{RA}')
        a(f'v_xor_b32 v{tB}, 32, v{tA}')
        a(f'ds_read_b128 v[{AX}:{AX+3}], v{tA}')
        a(f'ds_read_b128 v[{AX+4}:{AX+7}], v{tB}')
        a(f'v_xor_b32 v{tB}, 64, v{tA}')
        a(f'v_xor_b32 v{tC}, 96, v{tA}')
        a(f'ds_read_b128 v[{AX+8}:{AX+11}], v{tB}')
        a(f'ds_read_b128 v[{AX+12}:{AX+15}], v{tC}')
        a(f's_and_b32 s{t2}, s{sW}, 1')
        a(f's_lshl_b32 s{t3}, s{t2}, 13')
        a(f's_add_u32 s{t3}, s{t3}, {L_DMA + 4*4096}')
        a(f'v_lshlrev_b32 v{GF}, 4, v{vLANE}')
        a(f'v_add_u32 v{GF}, s{t3}, v{GF}')
        for f in range(4):
            a(f'ds_read_b128 v[{SG+4*f}:{SG+4*f+3}], v{GF} offset:{f*1024}')
        for f in range(4):
            a(f'ds_read_b128 v[{RK+4*f}:{RK+4*f+3}], v{GF} offset:{(4+f)*1024}')
        a(f's_mul_i32 s{t1}, s{t0}, {32*ROWB}')
        a(f's_lshl_b32 s{t3}, s{t2}, 7')
        a(f's_add_u32 s{t1}, s{t1}, s{t3}')
        a(f's_add_u32 s{t1}, s{t1}, {L_ACC + 512}')
        a(f'v_lshrrev_b32 v{GD}, 5, v{vLANE}')
        a(f'v_mul_u32_u24 v{GD}, {4*ROWB}, v{GD}')
        a(f'v_add3_u32 v{GD}, v{GD}, v{C4}, s{t1}')
    def gemm_mid():
        a('s_waitcnt lgkmcnt(0)')
        for kp in range(4):
            c = '0' if kp == 0 else f'v[{GA}:{GA+15}]'
            a(f'v_mfma_f32_32x32x16_bf16 v[{GA}:{GA+15}], v[{AX+4*kp}:{AX+4*kp+3}], v[{SG+4*kp}:{SG+4*kp+3}], {c}')
            c = '0' if kp == 0 else f'v[{HA}:{HA+15}]'
            a(f'v_mfma_f32_32x32x16_bf16 v[{HA}:{HA+15}], v[{AX+4*kp}:{AX+4*kp+3}], v[{RK+4*kp}:{RK+4*kp+3}], {c}')
    def gemm_mid2():
        a('s_nop 7')
        a('s_nop 3')
    def w_frags():
        a(f'v_lshlrev_b32 v{GF}, 4, v{vLANE}')
        a(f'v_add_u32 v{GF}, {L_WST}, v{GF}')
        for f in range(16):
            dst = (WB + 4*f) if f < 8 else (WV + 4*(f-8))
            if f == 12: a('s_waitcnt lgkmcnt(8)')
            a(f'ds_read_b128 v[{dst}:{dst+3}], v{GF} offset:{f*1024}')
    def gemm_store(tag):
        for i in range(16):
            a(f'v_cvt_pk_bf16_f32 v{GA+i}, v{GA+i}, v{HA+i}')
        a(f's_lshr_b32 s{t0}, s{sW}, 1')
        a(f's_cmp_eq_u32 s{t0}, 3')
        a(f's_cbranch_scc1 K2_RT3{tag}')
        for vv in range(16):
            if vv == 12: a('s_waitcnt lgkmcnt(8)')
            a(f'ds_write_b32 v{GD}, v{GA+vv} offset:{(8*(vv//4) + vv%4) * ROWB}')
        a(f's_branch K2_RTD{tag}')
        a.label(f'K2_RT3{tag}')
        a('s_mov_b32 exec_hi, 0')
        for vv in range(2):
            a(f'ds_write_b32 v{GD}, v{GA+vv} offset:{vv * ROWB}')
        a('s_mov_b64 exec, -1')
        a.label(f'K2_RTD{tag}')
    def consts():
        a(f'v_add_u32 v{RA}, s{sDB}, v{RA}')
        for kp in range(1, 4):
            a(f'v_xor_b32 v{RA+kp}, {32*kp}, v{RA}')
        a(f's_mov_b32 s{t3}, 0x{LOG2E:x}')
        for cc in range(2):
            a(f'v_lshlrev_b32 v{BC+cc}, 16, v{BC+cc}')
            a(f'v_mul_f32 v{BC+cc}, s{t3}, v{BC+cc}')
        a(f'v_cvt_pk_bf16_f32 v{BC}, 0, v{BC}')
        a(f'v_cvt_pk_bf16_f32 v{BC+1}, v{BC+1}, 0')
        a(f'v_cmp_gt_u32 vcc, 32, v{vLANE}')
        a(f'v_mov_b32 v{tG}, 0xb2000000')
        a(f'v_mov_b32 v{tH}, 0xb200')
        a(f'v_cndmask_b32 v{BC}, v{tG}, v{BC}, vcc')
        a(f'v_cndmask_b32 v{BC+1}, v{tH}, v{BC+1}, vcc')

    def hist():
        a(f'v_mov_b32 v{tE}, 1')
        for sl in range(8):
            a(f's_mov_b64 exec, s[{MK+2*sl}:{MK+2*sl+1}]')
            a(f'ds_add_rtn_u32 v{RK+sl}, v{REC+2*sl+1}, v{tE} offset:{L_CNT}')
        a('s_waitcnt lgkmcnt(6)')
        for sl in range(8, 16, 2):
            sk = a.newlabel('skh')
            a(f's_mov_b64 exec, s[{MK+2*sl}:{MK+2*sl+1}]')
            a(f's_cbranch_execz {sk}')
            a(f'ds_add_rtn_u32 v{RK+sl}, v{REC+2*sl+1}, v{tE} offset:{L_CNT}')
            a(f's_mov_b64 exec, s[{MK+2*sl+2}:{MK+2*sl+3}]')
            a(f'ds_add_rtn_u32 v{RK+sl+1}, v{REC+2*sl+3}, v{tE} offset:{L_CNT}')
            a.label(sk)
        sk = a.newlabel('skhc')
        a(f's_mov_b64 exec, s[{MKC}:{MKC+1}]')
        a(f's_cbranch_execz {sk}')
        a('s_waitcnt lgkmcnt(6)')
        a(f'ds_add_rtn_u32 v{RKC}, v{RC+1}, v{tE} offset:{L_CNT}')
        a(f's_mov_b64 exec, s[{MKC2}:{MKC2+1}]')
        a(f'ds_add_rtn_u32 v{RKC2}, v{RC+3}, v{tE} offset:{L_CNT}')
        a.label(sk)
        a('s_mov_b64 exec, -1')

    def scan_nodes(tag, mid=None):
        a(f'v_lshlrev_b32 v{tA}, 3, v{vLANE}')
        a(f'ds_read_b64 v[{TQ}:{TQ+1}], v{tA} offset:{L_CNT}')
        a(f'v_mul_u32_u24 v{nROW0}, {2*ROWB}, v{vLANE}')
        a(f'v_add_u32 v{nROW0}, {L_ACC}, v{nROW0}')
        if mid: mid()
        else: a('s_waitcnt lgkmcnt(0)')
        a(f'v_add_u32 v{tE}, 3, v{TQ}')
        a(f'v_add_u32 v{tF}, 3, v{TQ+1}')
        a(f'v_and_b32 v{tE}, -4, v{tE}')
        a(f'v_and_b32 v{tF}, -4, v{tF}')
        a(f'v_add_u32 v{tC}, v{tE}, v{tF}')
        a(f'v_max_u32 v{tB}, v{tE}, v{tF}')
        a(f'v_mov_b32 v{tD}, v{tC}')
        wave_scan(a, 'v_add_u32', tD)
        a(f'v_sub_u32 v{nOFF0}, v{tD}, v{tC}')
        a(f'v_readlane_b32 s{t1}, v{tD}, 63')
        a(f'v_add_u32 v{nOFF1}, v{nOFF0}, v{tE}')
        a(f'v_lshlrev_b32 v{TQ+2}, 2, v{nOFF0}')
        a(f'v_lshlrev_b32 v{TQ+3}, 2, v{nOFF1}')
        a(f'ds_write_b64 v{tA}, v[{TQ+2}:{TQ+3}] offset:{L_TAB}')
        a(f'v_mov_b32 v{nEND0}, v{nOFF1}')
        a(f'v_add_u32 v{nEND1}, v{nOFF1}, v{tF}')
        a(f's_add_u32 s{t1}, s{t1}, 127')
        a(f's_lshr_b32 s{t1}, s{t1}, 7')
        a(f's_lshr_b32 s{t0}, s{t1}, 1')
        a(f's_sub_u32 s{t1}, s{t1}, s{t0}')
        a(f's_lshl_b32 s{sLA}, s{t1}, 2')
        a(f's_lshl_b32 s{sLB}, s{t0}, 2')
        a(f's_sub_u32 s{sSO}, s{sLA}, s{sLB}')
        a(f's_lshl_b32 s{sSO}, s{sSO}, 3')
        a(f's_cmp_lt_u32 s{sW}, 4')
        a(f's_cselect_b32 s{sL}, s{sLA}, s{sLB}')
        a(f's_cselect_b32 s{sSO}, 0, s{sSO}')
        a(f's_lshr_b32 s{sCNT}, s{sL}, 2')
        a(f's_sub_u32 s{sCNT}, s{sCNT}, 1')
    def qi_fill(tag, split, nwq=8):
        B0 = TQ + 2; B1 = TQ + 3; V0 = TR + 1; V1 = TR + 2
        a(f'v_max_u32 v{TR}, v{tE}, v{tF}')
        if split:
            a(f'v_cvt_f32_u32 v{tA}, s{sLA}')
            a(f'v_cvt_f32_u32 v{tD}, s{sLB}')
            a(f'v_rcp_f32 v{tA}, v{tA}')
            a(f'v_rcp_f32 v{tD}, v{tD}')
            a(f's_lshl_b32 s{t0}, s{sLA}, 5')
            a(f's_sub_u32 s{t1}, s{sLA}, s{sLB}')
            a(f's_lshl_b32 s{t1}, s{t1}, 5')
            a(f'v_mul_f32 v{tA}, 0.25, v{tA}')
            a(f'v_mul_f32 v{tD}, 0.25, v{tD}')
            for (OFF, nx, B, Vv) in ((nOFF0, tB, B0, V0), (nOFF1, tC, B1, V1)):
                a(f'v_cmp_gt_u32 vcc, s{t0}, v{OFF}')
                a(f'v_subrev_u32 v{tG}, s{t1}, v{OFF}')
                a('s_nop 0')
                a(f'v_cndmask_b32 v{tG}, v{tG}, v{OFF}, vcc')
                a(f'v_cndmask_b32 v{tH}, v{tD}, v{tA}, vcc')
                a(f'v_cvt_f32_u32 v{tG}, v{tG}')
                a(f'v_add_f32 v{tG}, 2.0, v{tG}')
                a(f'v_mul_f32 v{tG}, v{tH}, v{tG}')
                a(f'v_cvt_u32_f32 v{nx}, v{tG}')
                a(f'v_add_u32 v{nx}, 1, v{nx}')
                a(f'v_mov_b32 v{tG}, s{sLB}')
                a(f'v_mov_b32 v{tH}, s{sLA}')
                a(f'v_cndmask_b32 v{tG}, v{tG}, v{tH}, vcc')
                a(f'v_mov_b32 v{tH}, s{t1}')
                a(f'v_cndmask_b32 v{tH}, v{tH}, 0, vcc')
                a(f'v_lshlrev_b32 v{tG}, 2, v{tG}')
                a(f'v_mad_u32_u24 v{B}, v{nx}, v{tG}, v{tH}')
            a(f's_movk_i32 s{t1}, {VROWB}')
            a(f'v_mov_b32 v{tD}, {L_VIRT}')
            a(f'v_mad_u32_u24 v{V0}, v{tB}, s{t1}, v{tD}')
            a(f'v_mad_u32_u24 v{V1}, v{tC}, s{t1}, v{tD}')
            a(f'v_add_u32 v{tD}, {ROWB}, v{nROW0}')
            for nd, (B, Vv, END, nx) in enumerate(((B0, V0, nEND0, tB), (B1, V1, nEND1, tC))):
                lab = a.newlabel('nosplit')
                a(f'v_lshrrev_b32 v{tG}, {1 if nwq == 8 else 2}, v{nx}')
                a(f'v_cmp_lt_u32 vcc, v{B}, v{END}')
                a(f'v_cmp_eq_u32 s[{sSV}:{sSV+1}], s{sW}, v{tG}')
                a(f's_and_b64 vcc, vcc, s[{sSV}:{sSV+1}]')
                a(f's_cbranch_scc0 {lab}')
                lp = a.newlabel('splitlp')
                a.label(lp)
                a(f's_ff1_i32_b64 s{t0}, vcc')
                a(f's_bitset0_b64 vcc, s{t0}')
                a(f'v_readlane_b32 s{t2}, v{nROW0 if nd == 0 else tD}, s{t0}')
                a(f'v_readlane_b32 s{t3}, v{Vv}, s{t0}')
                a(f'v_lshrrev_b32 v{tG}, 0, v{C4}')
                a('s_mov_b32 exec_hi, 0')
                a(f'v_add_u32 v{tH}, s{t2}, v{tG}')
                a(f'ds_read_b32 v{tI}, v{tH} offset:512')
                a(f'v_add_u32 v{tH}, s{t3}, v{tG}')
                a(f'v_mov_b32 v{tG}, s{t2}')
                a(f'v_mov_b32 v{tA}, s{t3}')
                a(f'ds_write_b32 v{tG}, v{tA} offset:768')
                a('s_waitcnt lgkmcnt(1)')
                a(f'ds_write_b32 v{tH}, v{tI} offset:512')
                a('s_mov_b64 exec, -1')
                a(f's_cmp_lg_u64 vcc, 0')
                a(f's_cbranch_scc1 {lp}')
                a.label(lab)
        a(f's_lshl_b32 s{t0}, s{sW}, 2')
        a(f'v_add_u32 v{tA}, s{t0}, v{nOFF0}')
        a(f'v_add_u32 v{tB}, s{t0}, v{nOFF1}')
        a(f'v_add_u32 v{tC}, {ROWB}, v{nROW0}')
        lp = f'K2_QF{tag}'
        a.label(lp)
        a(f's_add_u32 s{t1}, s{t0}, 4')
        a(f'v_cmp_eq_u32 s[{sSV}:{sSV+1}], s{t1}, v{tE}')
        a(f'v_cmp_eq_u32 s[{sSV2}:{sSV2+1}], s{t1}, v{tF}')
        if split:
            a(f'v_add_u32 v{tG}, 4, v{tA}')
            a(f'v_add_u32 v{tH}, 4, v{tB}')
            a(f'v_cmp_eq_u32 vcc, v{tG}, v{B0}')
            a(f's_or_b64 s[{sSV}:{sSV+1}], s[{sSV}:{sSV+1}], vcc')
            a(f'v_cmp_eq_u32 vcc, v{tH}, v{B1}')
            a(f's_or_b64 s[{sSV2}:{sSV2+1}], s[{sSV2}:{sSV2+1}], vcc')
            a(f'v_cmp_ge_u32 vcc, v{tA}, v{B0}')
            a('s_nop 1')
            a(f'v_cndmask_b32 v{tG}, v{nROW0}, v{V0}, vcc')
            a(f'v_cmp_ge_u32 vcc, v{tB}, v{B1}')
            a('s_nop 1')
            a(f'v_cndmask_b32 v{tH}, v{tC}, v{V1}, vcc')
        else:
            a(f'v_mov_b32 v{tG}, v{nROW0}')
            a(f'v_mov_b32 v{tH}, v{tC}')
        a(f'v_or_b32 v{tD}, 0x80000000, v{tG}')
        a(f'v_or_b32 v{tI}, 0x80000000, v{tH}')
        a(f'v_cmp_lt_u32 vcc, s{t0}, v{tE}')
        a(f'v_cndmask_b32 v{tG}, v{tG}, v{tD}, s[{sSV}:{sSV+1}]')
        a(f'v_cndmask_b32 v{tH}, v{tH}, v{tI}, s[{sSV2}:{sSV2+1}]')
        a(f'v_cmp_lt_u32 s[{sSV}:{sSV+1}], s{t0}, v{tF}')
        a('s_mov_b64 exec, vcc')
        a(f'ds_write_b32 v{tA}, v{tG} offset:{L_QI}')
        a(f's_mov_b64 exec, s[{sSV}:{sSV+1}]')
        a(f'ds_write_b32 v{tB}, v{tH} offset:{L_QI}')
        a('s_mov_b64 exec, -1')
        a(f's_add_u32 s{t0}, s{t0}, {4*nwq}')
        a(f'v_add_u32 v{tA}, {4*nwq}, v{tA}')
        a(f'v_add_u32 v{tB}, {4*nwq}, v{tB}')
        a(f'v_cmp_lt_u32 vcc, s{t0}, v{TR}')
        a(f's_cbranch_vccnz {lp}')
    def scatter():
        a('s_waitcnt lgkmcnt(0)')
        for sl in range(8):
            a(f's_mov_b64 exec, s[{MK+2*sl}:{MK+2*sl+1}]')
            a(f'ds_read_b32 v{AX+sl}, v{REC+2*sl+1} offset:{L_TAB}')
        for sl in range(8):
            a(f's_mov_b64 exec, s[{MK+2*sl}:{MK+2*sl+1}]')
            a('s_waitcnt lgkmcnt(7)')
            a(f'v_lshl_add_u32 v{AX+sl}, v{RK+sl}, 2, v{AX+sl}')
            a(f'ds_write_b32 v{AX+sl}, v{REC+2*sl} offset:{L_ENT}')
        for sl in range(8, 16, 2):
            sk = a.newlabel('sks')
            a(f's_mov_b64 exec, s[{MK+2*sl}:{MK+2*sl+1}]')
            a(f's_cbranch_execz {sk}')
            a(f'ds_read_b32 v{AX+sl}, v{REC+2*sl+1} offset:{L_TAB}')
            a(f's_mov_b64 exec, s[{MK+2*sl+2}:{MK+2*sl+3}]')
            a(f'ds_read_b32 v{AX+sl+1}, v{REC+2*sl+3} offset:{L_TAB}')
            a('s_waitcnt lgkmcnt(0)')
            a(f'v_lshl_add_u32 v{AX+sl+1}, v{RK+sl+1}, 2, v{AX+sl+1}')
            a(f'ds_write_b32 v{AX+sl+1}, v{REC+2*sl+2} offset:{L_ENT}')
            a(f's_mov_b64 exec, s[{MK+2*sl}:{MK+2*sl+1}]')
            a(f'v_lshl_add_u32 v{AX+sl}, v{RK+sl}, 2, v{AX+sl}')
            a(f'ds_write_b32 v{AX+sl}, v{REC+2*sl} offset:{L_ENT}')
            a.label(sk)
        sk = a.newlabel('sksc')
        a(f's_mov_b64 exec, s[{MKC}:{MKC+1}]')
        a(f's_cbranch_execz {sk}')
        a(f'ds_read_b32 v{AX}, v{RC+1} offset:{L_TAB}')
        a(f's_mov_b64 exec, s[{MKC2}:{MKC2+1}]')
        a(f'ds_read_b32 v{AX+1}, v{RC+3} offset:{L_TAB}')
        a('s_waitcnt lgkmcnt(0)')
        a(f'v_lshl_add_u32 v{AX+1}, v{RKC2}, 2, v{AX+1}')
        a(f'ds_write_b32 v{AX+1}, v{RC+2} offset:{L_ENT}')
        a(f's_mov_b64 exec, s[{MKC}:{MKC+1}]')
        a(f'v_lshl_add_u32 v{AX}, v{RKC}, 2, v{AX}')
        a(f'ds_write_b32 v{AX}, v{RC} offset:{L_ENT}')
        a.label(sk)
        a('s_mov_b64 exec, -1')

    def setup_ptrs():
        a(f'v_add_u32 v{tB}, s{sSO}, v{jA}')
        a(f'v_mad_u32_u24 v{tA}, v{sidA}, s{sL}, v{tB}')
        a(f'v_lshlrev_b32 v{pEN}, 4, v{tA}')
        a(f'ds_read_b128 v[{EN}:{EN+3}], v{pEN} offset:{L_ENT}')
        a(f'v_lshlrev_b32 v{pQF}, 2, v{tA}')
        a(f'v_sub_u32 v{pQI}, v{tA}, v{jA}')
        a(f'v_lshlrev_b32 v{pQI}, 2, v{pQI}')
        a(f'v_add_u32 v{pQI}, {L_QI}, v{pQI}')
        a(f'v_mad_u32_u24 v{tA}, v{sidR}, s{sL}, v{tB}')
        a(f'v_lshl_add_u32 v{pEE}, v{tA}, 4, v{iR4}')
        a(f's_mov_b32 m0, s{sDB}')

    def dma_addr():
        return [f'v_mad_u32_u16 v{EN+i}, v{EN+i}, s{s128}, v{CO+i}' for i in range(4)]
    def dma_issue():
        if opts.get('nodma'): return []
        return [f'buffer_load_dwordx4 v{EN+i}, s[{rX}:{rX+3}], 0 offen offset:{1024*i} lds' if i else
                f'buffer_load_dwordx4 v{EN}, s[{rX}:{rX+3}], 0 offen lds' for i in range(4)]

    def main_loop(tag, atomic):
        flush_blocks = []
        PS = [(PP, TT_, ZZ), (PB, TB, ZB)]
        def flush_body(par, j):
            a(f's_bfe_i32 exec_lo, s{sF[par]}, 0x{(1<<16)|(8*j):x}')
            a(f's_bfe_i32 exec_hi, s{sF[par]+1}, 0x{(1<<16)|(8*j):x}')
            a(f'v_add_f32 v{F0}, v{DEN}, v{DEN+1}')
            a(f'v_add_f32 v{F1}, v{NUM}, v{NUM+1}')
            a(f'v_add_f32 v{F2}, v{DEN+2}, v{DEN+3}')
            a(f'v_add_f32 v{F3}, v{NUM+2}, v{NUM+3}')
            a(f'v_mov_b64 v[{DEN}:{DEN+1}], 0')
            a(f'v_mov_b64 v[{NUM}:{NUM+1}], 0')
            if atomic:
                a(f'ds_add_f32 v{QA[par]+j}, v{F0}')
                a(f'ds_add_f32 v{QA[par]+j}, v{F1} offset:256')
                a(f'ds_add_f32 v{QA[par]+j}, v{F2} offset:128')
                a(f'ds_add_f32 v{QA[par]+j}, v{F3} offset:384')
            else:
                a(f'ds_write2_b32 v{QA[par]+j}, v{F0}, v{F1} offset0:0 offset1:64')
                a(f'ds_write2_b32 v{QA[par]+j}, v{F2}, v{F3} offset0:32 offset1:96')
            a(f'v_mov_b64 v[{DEN+2}:{DEN+3}], 0')
            a(f'v_mov_b64 v[{NUM+2}:{NUM+3}], 0')
            a('s_mov_b64 exec, -1')
        def post2(par):
            for j in range(4):
                for cc in range(2):
                    p, t, z = (r + 2*j for r in PS[cc])
                    a(f'v_pk_fma_f32 v[{NUM+2*cc}:{NUM+2*cc+1}], v[{p}:{p+1}], v[{t}:{t+1}], v[{NUM+2*cc}:{NUM+2*cc+1}]')
                    a(f'v_pk_fma_f32 v[{DEN+2*cc}:{DEN+2*cc+1}], v[{p}:{p+1}], v[{z}:{z+1}], v[{DEN+2*cc}:{DEN+2*cc+1}]')
                if opts.get('noflush'): continue
                fl = a.newlabel('fl'); back = a.newlabel('bk')
                a(f's_bitcmp1_b32 s{sANY[par]}, {8*j}')
                a(f's_cbranch_scc1 {fl}')
                a.label(back)
                flush_blocks.append((fl, back, par, j))
        def pre(cur):
            g0 = G_[cur]; h0 = H_[cur]; P_, T_, Z_ = PS[cur]
            for j in range(4):
                g = g0 + 4*j
                a(f'v_pk_fma_f32 v[{g}:{g+1}], v[{g}:{g+1}], s[{sC}:{sC+1}], s[{sC}:{sC+1}] clamp')
                a(f'v_pk_fma_f32 v[{g+2}:{g+3}], v[{g+2}:{g+3}], s[{sC}:{sC+1}], s[{sC}:{sC+1}] clamp')
            for j in range(4):
                g = g0 + 4*j; h = h0 + 4*j
                X = f'v[{g}:{g+1}]'; Y = f'v[{g+2}:{g+3}]'
                p = P_ + 2*j; t = T_ + 2*j; z = Z_ + 2*j
                a(f'v_pk_mul_f32 v[{t}:{t+1}], {Y}, v[{h}:{h+1}]')
                a(f'v_pk_mul_f32 v[{p}:{p+1}], {X}, {Y}')
                a(f'v_pk_add_f32 v[{z}:{z+1}], {X}, {Y}')
                a(f'v_pk_fma_f32 v[{t}:{t+1}], {X}, v[{h+2}:{h+3}], v[{t}:{t+1}]')
        def mfma_list(nxt, cc):
            Gs = f'v[{G_[nxt]}:{G_[nxt]+15}]'; Hs = f'v[{H_[nxt]}:{H_[nxt]+15}]'
            out = []
            for kp in range(4):
                wb = WB + 16*cc + 4*kp; wv = WV + 16*cc + 4*kp; ax = AX + 4*kp
                out.append(f'v_mfma_f32_32x32x16_bf16 {Hs}, v[{ax}:{ax+3}], v[{wv}:{wv+3}], {"0" if kp == 0 else Hs}')
                out.append(f'v_mfma_f32_32x32x16_bf16 {Gs}, v[{ax}:{ax+3}], v[{wb}:{wb+3}], {"0" if kp == 0 else Gs}')
            out.append(f'v_mfma_f32_32x32x16_bf16 {Gs}, v[{AE[cc]}:{AE[cc]+3}], v[{BE}:{BE+3}], {Gs}')
            return out
        def trans_list(cur):
            Pp = PS[cur ^ 1][0]
            return [f'v_rcp_f32 v{Pp+i}, v{Pp+i}' for i in range(8)] + [f'v_exp_f32 v{G_[cur]+i}, v{G_[cur]+i}' for i in range(16)]
        def weave(mf, tr, gaps):
            dist = [3, 3, 3, 3, 3, 3, 2, 2, 2]
            if opts.get('nogaps'): gaps = {}
            if opts.get('nomf'): mf = None
            k = 0
            for m in range(9):
                for ins in gaps.get(('m', m), []): a(ins)
                if mf: a(mf[m])
                for _ in range(dist[m]):
                    a(tr[k])
                    for ins in gaps.get(k, []): a(ins)
                    k += 1
            assert k == len(tr)
        def stage0(par):
            g = {}
            da = dma_addr()
            g[0] = [f'ds_read_b32 v{QF}, v{pQF} offset:{L_QI + 16*(par+1)}']
            g[1] = [f'ds_read_b32 v{EE}, v{pEE} offset:{L_ENT + 64*(par+1)}']
            g[3] = [f'v_and_or_b32 v{BE}, v{R0}, s{sHI}, v{BC+1}']
            g[6] = [da[0]]; g[9] = [da[1]]; g[12] = [da[2]]; g[15] = [da[3]]
            axr = [f'ds_read_b128 v[{AX+4*kp}:{AX+4*kp+3}], v{RA+kp}' for kp in range(4)]
            early = opts.get('axearly', 0)
            if early:
                for kp, gp in enumerate(opts.get('axgaps', (8, 11, 17, 21))):
                    g.setdefault(gp, [])
                    g[gp] = g[gp] + ((['s_waitcnt vmcnt(0)'] if kp == 0 else []) + [axr[kp]])
            weave(mfma_list(1, 1), trans_list(0), g)
            axpre = opts.get('axpre', 1)
            if axpre and not early and not opts.get('nogaps'):
                a('s_waitcnt vmcnt(0)')
                for ins in axr: a(ins)
            post2(par ^ 1)
            qn = QA[par ^ 1]
            if not opts.get('nogaps'):
                a(f'ds_read_b128 v[{qn}:{qn+3}], v{pQI} offset:{16*(par+1)}')
                if not early and not axpre:
                    a('s_waitcnt vmcnt(0)')
                    for ins in axr: a(ins)
            pre(0)
            a(f's_sub_u32 s{sCNT}, s{sCNT}, 1')
        def stage1(par):
            qn = QA[par ^ 1]
            g = {}
            di = dma_issue()
            g[('m', 0)] = ['s_waitcnt lgkmcnt(0)']
            dg = opts.get('dmag', 0)
            dd = {0: (0, 1, 2, 3), 1: (8, 10, 12, 14), 2: (6, 8, 10, 12), 3: (12, 14, 16, 18)}[dg]
            g[0] = [f'v_mad_u32_u24 v{qn}, v{qn}, 1, v{C4}']
            g[1] = [f'v_mad_u32_u24 v{qn+1}, v{qn+1}, 1, v{C4}']
            g[2] = [f'ds_read_b32 v{R0}, v{qn} offset:512']
            g[3] = [f'v_mad_u32_u24 v{qn+2}, v{qn+2}, 1, v{C4}', f'ds_read_b32 v{BE+1}, v{qn+1} offset:512']
            g[4] = [f'v_mad_u32_u24 v{qn+3}, v{qn+3}, 1, v{C4}', f'ds_read_b32 v{BE+2}, v{qn+2} offset:512']
            g[5] = [f'ds_read_b32 v{BE+3}, v{qn+3} offset:512']
            g[7] = [f'v_perm_b32 v{AE[0]}, v{EE}, v{AE[0]}, v{SEL[0]}']
            g[9] = [f'v_perm_b32 v{AE[1]}, v{EE}, v{AE[1]}, v{SEL[1]}']
            g[11] = [f'v_cmp_gt_i32 s[{sF[par^1]}:{sF[par^1]+1}], 0, v{QF}']
            if par == 1:
                g[13] = [f'v_add_u32 v{pQI}, 32, v{pQI}']
                g[14] = [f'v_add_u32 v{pQF}, 32, v{pQF}']
                g[15] = [f'v_add_u32 v{pEE}, 128, v{pEE}']
                g[16] = [f'v_add_u32 v{pEN}, 128, v{pEN}']
            g[17] = [f's_or_b32 s{sANY[par^1]}, s{sF[par^1]}, s{sF[par^1]+1}'] if not opts.get('noany') else [f's_mov_b32 s{sANY[par^1]}, 0']
            g[19] = ['s_waitcnt lgkmcnt(%d)' % (1 if dd[3] >= 18 else 0), f'v_and_or_b32 v{BE}, v{R0}, s{sLO}, v{BC}']
            for i_, gp in enumerate(dd):
                if di: g[gp] = g.get(gp, []) + [di[i_]]
            en_gap = max(dd[3] + 1, 6)
            en_rd = f'ds_read_b128 v[{EN}:{EN+3}], v{pEN} offset:{L_ENT + 64*(par+3)}'
            if en_gap >= 19:
                g[20] = g.get(20, []) + [en_rd]
            else:
                g[en_gap] = g.get(en_gap, []) + [en_rd]
            if par == 1:
                pass
            weave(mfma_list(0, 0), trans_list(1), g)
            pre(1)
        def last_stage1(par):
            weave(None, trans_list(1), {})
            pre(1)
            for i in range(8):
                a(f'v_rcp_f32 v{PB+i}, v{PB+i}')
            a('s_nop 0')
            post2(par)
        L0 = f'K2_T0{tag}'; E0 = f'K2_E0{tag}'; E1 = f'K2_E1{tag}'; DONE = f'K2_MD{tag}'
        PR = opts.get('prio', 1)
        if PR:
            a(f's_add_u32 s{t0}, s{sCNT}, 1')
            a(f's_mul_i32 s{t0}, s{t0}, {opts.get("pfrac", 20)}')
            a(f's_lshr_b32 s{t0}, s{t0}, 6')
            a(f's_lshl_b32 s{t0}, s{t0}, 1')
            a(f's_sub_u32 s{sSWAP}, s{sCNT}, s{t0}')
            a(f's_cmp_ge_u32 s{sW}, 4')
            a(f's_cbranch_scc0 K2_PR0{tag}')
            a('s_setprio 1')
            a.label(f'K2_PR0{tag}')
        if PR == 3:
            a(f's_cmp_ge_u32 s{sW}, 4')
            a(f's_cselect_b32 s{sSWAP}, 1, 0')
        a.label(L0)
        if PR == 3:
            a(f's_xor_b32 s{sSWAP}, s{sSWAP}, 1')
            a(f's_cbranch_scc1 K2_PH{tag}')
            a('s_setprio 0')
            a(f's_branch K2_PD{tag}')
            a.label(f'K2_PH{tag}')
            a('s_setprio 1')
            a.label(f'K2_PD{tag}')
        elif PR:
            a(f's_cmp_eq_u32 s{sCNT}, s{sSWAP}')
            a(f's_cbranch_scc1 K2_SWP{tag}')
            a.label(f'K2_SWB{tag}')
        stage0(0)
        a(f's_cbranch_scc1 {E0}')
        stage1(0)
        stage0(1)
        a(f's_cbranch_scc1 {E1}')
        stage1(1)
        a(f's_branch {L0}')
        a.label(E0)
        last_stage1(0)
        a(f's_branch {DONE}')
        a.label(E1)
        last_stage1(1)
        a(f's_branch {DONE}')
        if PR and PR != 3:
            a.label(f'K2_SWP{tag}')
            a(f's_cmp_ge_u32 s{sW}, 4')
            a(f's_cbranch_scc1 K2_SW0{tag}')
            a('s_setprio 1')
            a(f's_branch K2_SWB{tag}')
            a.label(f'K2_SW0{tag}')
            a('s_setprio 0')
            a(f's_branch K2_SWB{tag}')
        for (fl, back, par, j) in flush_blocks:
            a.label(fl)
            flush_body(par, j)
            a(f's_branch {back}')
        a.label(DONE)
        if PR: a('s_setprio 0')

    def pipeline_fill():
        q0 = QA[0]
        a(f'ds_read_b128 v[{q0}:{q0+3}], v{pQI}')
        a(f'ds_read_b32 v{QF}, v{pQF} offset:{L_QI}')
        a(f'ds_read_b32 v{EE}, v{pEE} offset:{L_ENT}')
        a(f'ds_read_b128 v[{EN}:{EN+3}], v{pEN} offset:{L_ENT + 64}')
        for i in range(2):
            a(f'v_mov_b64 v[{DEN+2*i}:{DEN+2*i+1}], 0')
            a(f'v_mov_b64 v[{NUM+2*i}:{NUM+2*i+1}], 0')
        for i in range(8):
            a(f'v_mov_b32 v{PP+i}, 1.0')
            a(f'v_mov_b32 v{PB+i}, 1.0')
        for i in range(4):
            a(f'v_mov_b64 v[{TT_+2*i}:{TT_+2*i+1}], 0')
            a(f'v_mov_b64 v[{ZZ+2*i}:{ZZ+2*i+1}], 0')
            a(f'v_mov_b64 v[{TB+2*i}:{TB+2*i+1}], 0')
            a(f'v_mov_b64 v[{ZB+2*i}:{ZB+2*i+1}], 0')
        a(f's_mov_b32 s{sANY[1]}, 0')
        a('s_waitcnt lgkmcnt(0)')
        for q in range(4):
            a(f'v_mad_u32_u24 v{q0+q}, v{q0+q}, 1, v{C4}')
        a(f'ds_read_b32 v{R0}, v{q0} offset:512')
        for q in range(1, 4):
            a(f'ds_read_b32 v{BE+q}, v{q0+q} offset:512')
        a(f'v_perm_b32 v{AE[0]}, v{EE}, v{AE[0]}, v{SEL[0]}')
        a(f'v_perm_b32 v{AE[1]}, v{EE}, v{AE[1]}, v{SEL[1]}')
        a(f'v_cmp_gt_i32 s[{sF[0]}:{sF[0]+1}], 0, v{QF}')
        for ins in dma_addr(): a(ins)
        stamp(21)
        a('s_waitcnt vmcnt(0)')
        stamp(22)
        for kp in range(4):
            a(f'ds_read_b128 v[{AX+4*kp}:{AX+4*kp+3}], v{RA+kp}')
        a(f's_or_b32 s{sANY[0]}, s{sF[0]}, s{sF[0]+1}')
        a('s_waitcnt lgkmcnt(0)')
        a(f'v_and_or_b32 v{BE}, v{R0}, s{sLO}, v{BC}')
        for ins in dma_issue(): a(ins)
        a(f'ds_read_b128 v[{EN}:{EN+3}], v{pEN} offset:{L_ENT + 128}')
        Gs = f'v[{GA}:{GA+15}]'; Hs = f'v[{HA}:{HA+15}]'
        for kp in range(4):
            a(f'v_mfma_f32_32x32x16_bf16 {Hs}, v[{AX+4*kp}:{AX+4*kp+3}], v[{WV+4*kp}:{WV+4*kp+3}], {"0" if kp == 0 else Hs}')
            a(f'v_mfma_f32_32x32x16_bf16 {Gs}, v[{AX+4*kp}:{AX+4*kp+3}], v[{WB+4*kp}:{WB+4*kp+3}], {"0" if kp == 0 else Gs}')
        a(f'v_mfma_f32_32x32x16_bf16 {Gs}, v[{AE[0]}:{AE[0]+3}], v[{BE}:{BE+3}], {Gs}')
        a('s_waitcnt lgkmcnt(0)')
        a('s_nop 7')
        a('s_nop 3')
    def forced_flags():
        a(f's_sub_u32 s{t1}, s{sL}, 1')
        a(f's_lshl_b32 s{t1}, s{t1}, 2')
        a(f'v_add_u32 v{tB}, s{t1}, v{pQI}')
        a(f'v_mov_b32 v{tA}, 0x80000000')
        a('s_mov_b32 exec_lo, 1')
        a('s_mov_b32 exec_hi, 1')
        a(f'ds_or_b32 v{tB}, v{tA}')
        a('s_mov_b64 exec, -1')

    stamp(2)
    a(f's_mov_b64 exec, s[{sSV2}:{sSV2+1}]')
    a(f'v_mov_b32 v{tD}, {L_CNT + 127*4}')
    a(f'v_mov_b32 v{tE}, 1')
    a(f'ds_write_b32 v{tD}, v{tE}')
    a('s_mov_b64 exec, -1')
    gemm_issue()
    stamp(28)
    gemm_mid()
    gemm_mid2()
    stamp(29)
    a(f's_cmp_lg_u32 s{sW}, 0')
    a('s_cbranch_scc1 K2_NOCI')
    a(f'v_mul_u32_u24 v{tA}, {2*ROWB}, v{vLANE}')
    a(f'v_mov_b32 v{tB}, {L_ZERO}')
    a(f'v_add_u32 v{tA}, {L_ACC}, v{tA}')
    a(f's_mov_b32 exec_hi, {(1 << (MAXN // 2 - 32)) - 1}')
    a(f'ds_write_b32 v{tA}, v{tB} offset:768')
    a(f'ds_write_b32 v{tA}, v{tB} offset:{768 + ROWB}')
    a('s_mov_b64 exec, -1')
    a.label('K2_NOCI')
    gemm_store('F')
    if opts.get('wearly', 0) == 1:
        w_frags()
        consts()
    elif opts.get('wearly', 0) == 2:
        a(f's_cmp_ge_u32 s{sW}, 4')
        a('s_cbranch_scc1 K2_WE0')
        w_frags()
        consts()
        a.label('K2_WE0')
    stamp(3)
    a('s_waitcnt vmcnt(0) lgkmcnt(0)')
    stamp(23)
    hist()
    a('s_waitcnt lgkmcnt(0)')
    stamp(24)
    if opts.get('proprio') == 1: a('s_setprio 0')
    a('s_barrier')
    stamp(4)
    scan_nodes('F')
    a(f'v_readlane_b32 s{t0}, v{TQ+1}, 63')
    a(f's_cmp_eq_u32 s{sLB}, 0')
    a(f's_cselect_b32 s{t1}, s{sLA}, s{sLB}')
    a(f's_lshl_b32 s{t1}, s{t1}, 2')
    a(f'v_cmp_lt_u32 vcc, s{t1}, v{tB}')
    a(f's_cmp_lg_u32 s{t0}, 0')
    a('s_cbranch_scc1 K2_SLOW')
    a(f's_add_u32 s{t1}, s{sLA}, s{sLB}')
    a(f's_cmp_gt_u32 s{t1}, {(ENT_QUADS - 8) // 8}')
    a('s_cbranch_scc1 K2_SLOW')
    a('s_cbranch_vccnz K2_SLOW')
    stamp(15)
    scatter()
    stamp(16)
    a('s_waitcnt lgkmcnt(0)')
    a('s_barrier')
    stamp(5)
    a(f's_cmp_eq_u32 s{sL}, 0')
    a('s_cbranch_scc1 K2_NOL')
    setup_ptrs()
    a('s_waitcnt lgkmcnt(0)')
    for ins in dma_addr(): a(ins)
    for ins in dma_issue(): a(ins)
    a.label('K2_NOL')
    stamp(17)
    if opts.get('qi4', 0):
        a(f's_cmp_ge_u32 s{sW}, 4')
        a('s_cbranch_scc1 K2_QIDONE')
    a(f'v_cmp_gt_u32 vcc, {MAXN // 2}, v{vLANE}')
    a(f'v_lshl_or_b32 v{tB}, v{vLANE}, 1, 1')
    a(f'v_cmp_le_u32 s[{sSV}:{sSV+1}], s{sNN}, v{tB}')
    a(f'v_mov_b32 v{tC}, 1')
    a('s_nop 0')
    a(f'v_cndmask_b32 v{tB}, v{TQ+1}, v{tC}, s[{sSV}:{sSV+1}]')
    a(f'v_min_u32 v{tB}, v{TQ}, v{tB}')
    a(f'v_cmp_eq_u32 s[{sSV}:{sSV+1}], 0, v{tB}')
    a(f's_and_b64 s[{sSV}:{sSV+1}], s[{sSV}:{sSV+1}], vcc')
    a('s_cbranch_scc1 K2_ZROWS')
    a.label('K2_ZBACK')
    if opts.get('qi4', 0):
        qi_fill('F', True, 4)
        a.label('K2_QIDONE')
    else:
        qi_fill('F', True)
    stamp(18)
    if opts.get('wearly', 0) == 0:
        w_frags()
        consts()
    elif opts.get('wearly', 0) == 2:
        a(f's_cmp_lt_u32 s{sW}, 4')
        a('s_cbranch_scc1 K2_WE1')
        w_frags()
        consts()
        a.label('K2_WE1')
    a('s_waitcnt lgkmcnt(0)')
    stamp(19)
    if opts.get('proprio') == 2: a('s_setprio 0')
    a('s_barrier')
    stamp(20)
    a(f's_cmp_eq_u32 s{sL}, 0')
    a('s_cbranch_scc1 K2_EPI')
    pipeline_fill()
    stamp(6)
    if opts.get('dbgtime'):
        a(f's_memrealtime s[{t2}:{t3}]')
        a('s_waitcnt lgkmcnt(0)')
        a(f's_mov_b32 s{sT1}, s{t2}')
    if STAMP:
        a(f's_memrealtime s[{t2}:{t3}]')
        a('s_waitcnt lgkmcnt(0)')
        a(f'v_writelane_b32 v{vST}, s{t2}, 13')
    if opts.get('half'):
        a(f's_cmp_ge_u32 s{sW}, 4')
        a('s_cbranch_scc1 K2_MDF')
    main_loop('F', False)
    stamp(7)
    if opts.get('dbgtime'):
        a(f's_memrealtime s[{t2}:{t3}]')
        a('s_waitcnt lgkmcnt(0)')
        a(f's_mov_b32 s{sT2}, s{t2}')
    if STAMP:
        a(f's_memrealtime s[{t2}:{t3}]')
        a('s_waitcnt lgkmcnt(0)')
        a(f'v_writelane_b32 v{vST}, s{t2}, 14')
    a.label('K2_EPI')
    e0 = 4
    XV = [e0, e0 + 4]; UU = [e0 + 8, e0 + 16]
    DN = [e0 + 24, e0 + 56]; NM = [e0 + 32, e0 + 64]; CD = [e0 + 40, e0 + 72]; CN = [e0 + 48, e0 + 80]
    O = e0 + 88; ADR = [e0 + 96, e0 + 97]; GO = [e0 + 98, e0 + 99]; CP = [e0 + 100, e0 + 101]; OC = [e0 + 102, e0 + 103]
    T1 = e0 + 104; ND = e0 + 105; USEL = e0 + 106; UA = [e0 + 107, e0 + 108]
    def epi_addr(r):
        a(f'v_add_u32 v{T1}, {512*r}, v0') if r else a(f'v_mov_b32 v{T1}, v0')
        a(f'v_lshrrev_b32 v{ND}, 3, v{T1}')
        a(f'v_and_b32 v{T1}, 7, v{T1}')
        a(f'v_lshlrev_b32 v{OC[r]}, 5, v{T1}')
        a(f'v_mul_u32_u24 v{CP[r]}, s{t0}, v{ND}')
        a(f'v_add_u32 v{CP[r]}, {L_ACC}, v{CP[r]}')
        a(f'v_add_u32 v{ADR[r]}, v{CP[r]}, v{OC[r]}')
        a(f'v_and_b32 v{UA[r]}, 3, v{T1}')
        a(f'v_lshl_add_u32 v{UA[r]}, v{UA[r]}, 5, v{CP[r]}')
        a(f'v_add_u32 v{GO[r]}, s{sNS}, v{ND}')
        a(f'v_lshlrev_b32 v{GO[r]}, 7, v{GO[r]}')
        a(f'v_lshl_add_u32 v{GO[r]}, v{T1}, 4, v{GO[r]}')
    def epi_static(r, carry):
        a(f'buffer_load_dwordx4 v[{XV[r]}:{XV[r]+3}], v{GO[r]}, s[{rF}:{rF+3}], 0 offen')
        a(f'ds_read_b128 v[{UU[r]}:{UU[r]+3}], v{UA[r]} offset:640')
        a(f'ds_read_b128 v[{UU[r]+4}:{UU[r]+7}], v{UA[r]} offset:656')
        if carry: a(f'ds_read_b32 v{CP[r]}, v{CP[r]} offset:768')
    def epi_reads(r, carry):
        ad = ADR[r]
        a(f'ds_read_b128 v[{DN[r]}:{DN[r]+3}], v{ad}')
        a(f'ds_read_b128 v[{DN[r]+4}:{DN[r]+7}], v{ad} offset:16')
        a(f'ds_read_b128 v[{NM[r]}:{NM[r]+3}], v{ad} offset:256')
        a(f'ds_read_b128 v[{NM[r]+4}:{NM[r]+7}], v{ad} offset:272')
        if carry:
            a(f'ds_read_b128 v[{CD[r]}:{CD[r]+3}], v{CP[r]}')
            a(f'ds_read_b128 v[{CD[r]+4}:{CD[r]+7}], v{CP[r]} offset:16')
            a(f'ds_read_b128 v[{CN[r]}:{CN[r]+3}], v{CP[r]} offset:256')
            if r == 1: a('s_waitcnt lgkmcnt(14)')
            a(f'ds_read_b128 v[{CN[r]+4}:{CN[r]+7}], v{CP[r]} offset:272')
    def epi_math(r, carry):
        dn, nm, cd, cn, uu, xv = DN[r], NM[r], CD[r], CN[r], UU[r], XV[r]
        if carry:
            for i in range(0, 8, 2):
                a(f'v_pk_add_f32 v[{dn+i}:{dn+i+1}], v[{dn+i}:{dn+i+1}], v[{cd+i}:{cd+i+1}]')
                a(f'v_pk_add_f32 v[{nm+i}:{nm+i+1}], v[{nm+i}:{nm+i+1}], v[{cn+i}:{cn+i+1}]')
        for i in range(0, 8, 2):
            a(f'v_pk_add_f32 v[{dn+i}:{dn+i+1}], v[{dn+i}:{dn+i+1}], s[{sC}:{sC+1}]')
        for i in range(8):
            a(f'v_rcp_f32 v{dn+i}, v{dn+i}')
        for i in range(8):
            a(f'v_perm_b32 v{cd+i}, v{uu+i}, v{uu+i}, v{USEL}')
        for i in range(0, 8, 2):
            a(f'v_pk_fma_f32 v[{nm+i}:{nm+i+1}], v[{nm+i}:{nm+i+1}], v[{dn+i}:{dn+i+1}], v[{cd+i}:{cd+i+1}]')
        for i in range(8):
            a(f'v_max_f32 v{nm+i}, 0, v{nm+i}')
        for i in range(4):
            a(f'v_lshlrev_b32 v{cd+2*i}, 16, v{xv+i}')
            a(f'v_and_b32 v{cd+2*i+1}, s{sHI}, v{xv+i}')
        for i in range(0, 8, 2):
            a(f'v_pk_add_f32 v[{nm+i}:{nm+i+1}], v[{nm+i}:{nm+i+1}], v[{cd+i}:{cd+i+1}]')
        for i in range(4):
            a(f'v_cvt_pk_bf16_f32 v{O+4*r+i}, v{nm+2*i}, v{nm+2*i+1}')
        osf = {0: '', 1: ' sc1', 2: ' nt', 3: ' sc0 sc1'}[opts.get('outst', 1)]
        a(f'buffer_store_dwordx4 v[{O+4*r}:{O+4*r+3}], v{GO[r]}, s[{rO}:{rO+3}], 0 offen' + osf)
    def epilogue(tag, carry):
        srd(a, rO, sOUT, N * 128)
        srd(a, rF, sX, N * 128)
        a(f's_mov_b32 s{t0}, {ROWB}')
        a(f's_mov_b32 s{sC}, 0x{EPS_SCALED:x}')
        a(f's_mov_b32 s{sC+1}, 0x{EPS_SCALED:x}')
        a(f's_mov_b32 s{sHI}, 0xffff0000')
        a('s_waitcnt vmcnt(0)')
        a(f'v_and_b32 v{T1}, 4, v0')
        a(f'v_cmp_eq_u32 vcc, 0, v{T1}')
        a(f'v_mov_b32 v{USEL}, 0x03020c0c')
        a(f'v_mov_b32 v{ND}, 0x01000c0c')
        a(f'v_cndmask_b32 v{USEL}, v{USEL}, v{ND}, vcc')
        epi_addr(0)
        epi_static(0, carry)
        epi_addr(1)
        a(f'v_cmp_gt_u32 s[{sSV}:{sSV+1}], s{sNN}, v{ND}')
        a('s_nop 3')
        a(f's_mov_b64 exec, s[{sSV}:{sSV+1}]')
        a(f's_cbranch_execz K2_NS2{tag}')
        epi_static(1, carry)
        a.label(f'K2_NS2{tag}')
        a('s_mov_b64 exec, -1')
        a('s_waitcnt lgkmcnt(0)')
        if carry:
            a(f'v_add_u32 v{CP[0]}, v{CP[0]}, v{OC[0]}')
            a(f'v_add_u32 v{CP[1]}, v{CP[1]}, v{OC[1]}')
        a('s_barrier')
        if STAMP and tag == 'F': stamp(8)
        epi_reads(0, carry)
        a(f's_mov_b64 exec, s[{sSV}:{sSV+1}]')
        a(f's_cbranch_execz K2_ONE{tag}')
        epi_reads(1, carry)
        a('s_mov_b64 exec, -1')
        a(f's_waitcnt vmcnt(0) lgkmcnt({8 if carry else 4})')
        epi_math(0, carry)
        a(f's_mov_b64 exec, s[{sSV}:{sSV+1}]')
        a('s_waitcnt lgkmcnt(0)')
        epi_math(1, carry)
        a(f's_branch K2_FIN{tag}')
        a.label(f'K2_ONE{tag}')
        a('s_mov_b64 exec, -1')
        a('s_waitcnt vmcnt(0) lgkmcnt(0)')
        epi_math(0, carry)
        a.label(f'K2_FIN{tag}')
        if opts.get('endwait', 1): a('s_waitcnt vmcnt(0)')
    epilogue('F', True)
    if opts.get('dbgtime'):
        a('s_mov_b64 exec, -1')
        a('s_waitcnt vmcnt(0)')
        a(f's_memrealtime s[{t2}:{t3}]')
        a(f's_cmp_lg_u32 s{sW}, 7')
        a('s_cbranch_scc1 K2_DBGX')
        a('s_and_b32 s3, s2, 31')
        a('s_cmp_lg_u32 s3, 0')
        a('s_cbranch_scc1 K2_DBGX')
        a('s_lshr_b32 s3, s2, 5')
        a('s_cmp_ge_u32 s3, 2')
        a('s_cbranch_scc1 K2_DBGX')
        a(f's_lshl_b32 s{t0}, s3, 2')
        a(f's_add_u32 s{t0}, s{t0}, 0x1200000')
        a(f'v_mov_b32 v4, s{t0}')
        a(f'global_load_dword v5, v4, s[{sWS}:{sWS+1}]')
        a(f'global_load_dword v6, v4, s[{sWS}:{sWS+1}] offset:256')
        a('s_waitcnt vmcnt(0) lgkmcnt(0)')
        a(f'v_sub_u32 v8, v6, v5')
        a(f'v_sub_u32 v9, s{sT0}, v5')
        a(f'v_sub_u32 v10, s{sT1}, v5')
        a(f'v_sub_u32 v11, s{sT2}, v5')
        a(f'v_sub_u32 v12, s{t2}, v5')
        a('s_lshl_b32 s3, s3, 5')
        a('v_mov_b32 v4, s3')
        a('s_mov_b64 exec, 1')
        a(f'global_store_dwordx4 v4, v[8:11], s[{sDBG}:{sDBG+1}]')
        a(f'global_store_dword v4, v12, s[{sDBG}:{sDBG+1}] offset:16')
        a.label('K2_DBGX')
    if STAMP:
        a('s_mov_b64 exec, -1')
        a('s_waitcnt vmcnt(0)')
        stamp(9)
        a(f's_memrealtime s[{t2}:{t3}]')
        a('s_waitcnt lgkmcnt(0)')
        a(f'v_writelane_b32 v{vST}, s{t2}, 12')
        a(f's_mul_i32 s{t0}, s2, {NW}')
        a(f's_add_u32 s{t0}, s{t0}, s{sW}')
        a(f's_lshl_b32 s{t0}, s{t0}, 8')
        a(f's_add_u32 s{t0}, s{t0}, 0x1000000')
        srd_off(a, rT, sWS, f's{t0}', 256)
        a(f'v_writelane_b32 v{vST}, s{sL}, 10')
        a(f'v_lshlrev_b32 v4, 2, v{vLANE}')
        a(f'buffer_store_dword v{vST}, v4, s[{rT}:{rT+3}], 0 offen')
    a('s_endpgm')
    a.label('K2_CSEL')
    a(f'v_mov_b32 v{tD}, 0')
    a(f'v_mov_b32 v{tE}, 0')
    a(f'v_mov_b32 v{tF}, 0')
    for it in range(4):
        a(f'v_lshrrev_b32 v{tG}, 24, v{SG+it}')
        a(f'v_cmp_lt_u32 vcc, 32, v{tG}')
        a(f'v_mad_u32_u24 v{tJ}, v{SG+it}, 8, v{tB}')
        a(f'v_add_u32 v{RKC}, 1, v{tF}')
        a(f'v_cndmask_b32 v{tD}, v{tD}, v{tJ}, vcc')
        a(f'v_cndmask_b32 v{tE}, v{tE}, v{tG}, vcc')
        a(f'v_cndmask_b32 v{tF}, v{tF}, v{RKC}, vcc')
    a(f'v_cmp_lt_u32 vcc, 1, v{tF}')
    a(f'v_cmp_lt_u32 s[{sSV2}:{sSV2+1}], 48, v{tE}')
    a(f'v_add_u32 v{tG}, 32, v{tC}')
    a(f's_or_b64 s[{sSV2}:{sSV2+1}], s[{sSV2}:{sSV2+1}], vcc')
    a(f'v_cmp_gt_u32 s[{MKC}:{MKC+1}], v{tE}, v{tG}')
    a(f'v_add_u32 v{tG}, 33, v{tC}')
    a(f'v_cmp_gt_u32 s[{MKC2}:{MKC2+1}], v{tE}, v{tG}')
    a('s_nop 0')
    a(f's_mov_b64 exec, s[{MKC}:{MKC+1}]')
    a(f'buffer_load_dwordx4 v[{RC}:{RC+3}], v{tD}, s[{rR}:{rR+3}], 0 offen offset:256')
    a('s_mov_b64 exec, -1')
    a('s_branch K2_CBACK')
    a.label('K2_ZROWS')
    a(f's_mov_b64 exec, s[{sSV}:{sSV+1}]')
    for i in range(4):
        a(f'v_mov_b32 v{TR+i}, 0')
    for nd in range(2):
        a(f'v_cmp_eq_u32 vcc, 0, v{TQ+nd}')
        a(f's_and_b64 exec, vcc, s[{sSV}:{sSV+1}]')
        for k in range(32):
            a(f'ds_write_b128 v{nROW0}, v[{TR}:{TR+3}] offset:{nd*ROWB + 16*k}')
        a(f's_mov_b64 exec, s[{sSV}:{sSV+1}]')
    a('s_mov_b64 exec, -1')
    a('s_branch K2_ZBACK')

    a.label('K2_SLOW')
    if opts.get('wearly', 0) == 0:
        w_frags()
        consts()
    elif opts.get('wearly', 0) == 2:
        a(f's_cmp_lt_u32 s{sW}, 4')
        a('s_cbranch_scc1 K2_WE2')
        w_frags()
        consts()
        a.label('K2_WE2')
    a('s_waitcnt vmcnt(0) lgkmcnt(0)')
    a('s_barrier')
    def full_counts(c0reg):
        a(f's_lshl_b32 s{t1}, s2, 2')
        a(f's_add_u32 s{t1}, s{t1}, {WS_TAB}')
        srd_off(a, rT, sWS, f's{t1}', 256 * 1024 + 64)
        a(f'v_lshlrev_b32 v{tG}, 10, v{c0reg}')
        for i in range(4):
            a(f'buffer_load_dword v{SG+i}, v{tG}, s[{rT}:{rT+3}], 0 offen offset:{1024*i}')
        a(f'v_add_u32 v{tG}, 4, v{tG}')
        for i in range(4):
            a(f'buffer_load_dword v{TQ+i}, v{tG}, s[{rT}:{rT+3}], 0 offen offset:{1024*i}')
        a(f's_mov_b32 s{t0}, 0xfffff')
        a(f's_cmp_eq_u32 s2, 255')
        a(f's_cselect_b64 s[{sSV}:{sSV+1}], -1, 0')
        a('s_waitcnt vmcnt(0)')
        for i in range(4):
            a(f'v_add_u32 v{tG}, {i+1}, v{c0reg}')
            a(f'v_mul_u32_u24 v{tG}, {CH}, v{tG}')
            a(f'v_min_u32 v{tG}, {E}, v{tG}')
            a(f'v_and_b32 v{TQ+i}, s{t0}, v{TQ+i}')
            a(f'v_cndmask_b32 v{TQ+i}, v{TQ+i}, v{tG}, s[{sSV}:{sSV+1}]')
            a(f'v_and_b32 v{tG}, s{t0}, v{SG+i}')
            a(f'v_sub_u32 v{TQ+i}, v{TQ+i}, v{tG}')
    a(f'v_lshlrev_b32 v{tB}, 2, v{vLANE}')
    full_counts(tB)
    a(f'v_max_u32 v{tE}, v{TQ}, v{TQ+1}')
    a(f'v_max3_u32 v{tE}, v{tE}, v{TQ+2}, v{TQ+3}')
    wave_scan(a, 'v_max_u32', tE)
    a('s_nop 0')
    a(f'v_readlane_b32 s{t1}, v{tE}, 63')
    a(f's_add_u32 s{t1}, s{t1}, {WSLOW-1}')
    a(f's_mul_i32 s{t1}, s{t1}, 5042')
    a(f's_lshr_b32 s{sNP}, s{t1}, 16')
    a(f's_mov_b32 s{sP}, 0')
    for i in range(4):
        a(f'v_mov_b32 v{TR+i}, 0')
    a(f'v_lshrrev_b32 v{tA}, 5, v0')
    a(f'v_mul_u32_u24 v{tA}, {ROWB}, v{tA}')
    a(f'v_and_b32 v{tB}, 31, v{vLANE}')
    a(f'v_lshl_add_u32 v{tA}, v{tB}, 4, v{tA}')
    a(f'v_add_u32 v{tA}, {L_ACC}, v{tA}')
    for i in range(6):
        a(f'ds_write_b128 v{tA}, v[{TR}:{TR+3}]')
        a(f'v_add_u32 v{tA}, {16*ROWB}, v{tA}')
    a(f'v_cmp_gt_u32 vcc, 64, v0')
    a(f's_and_saveexec_b64 s[{sSV}:{sSV+1}], vcc')
    a(f'ds_write_b128 v{tA}, v[{TR}:{TR+3}]')
    a(f's_mov_b64 exec, s[{sSV}:{sSV+1}]')
    a.label('K2_SPASS')
    a(f's_lshl_b32 s{t0}, s{sW}, 1')
    a(f'v_lshrrev_b32 v{sidA}, 5, v{vLANE}')
    a(f'v_add_u32 v{sidA}, s{t0}, v{sidA}')
    a(f'v_bfe_u32 v{jA}, v{vLANE}, 3, 2')
    a(f'v_bfe_u32 v{sidR}, v{vLANE}, 2, 1')
    a(f'v_add_u32 v{sidR}, s{t0}, v{sidR}')
    a(f'v_and_b32 v{iR4}, 3, v{vLANE}')
    a(f'v_lshlrev_b32 v{iR4}, 2, v{iR4}')
    a(f'v_lshrrev_b32 v{tA}, 3, v{vLANE}')
    a(f'v_lshlrev_b32 v{tA}, 2, v{tA}')
    a(f's_lshl_b32 s{t0}, s{sW}, 5')
    a(f'v_add_u32 v{tA}, s{t0}, v{tA}')
    full_counts(tA)
    for i in range(4):
        a(f'v_mov_b32 v{AX+i}, v{TQ+i}')
    a(f'v_and_b32 v{tC}, 7, v{vLANE}')
    a(f'v_lshlrev_b32 v{tC}, 1, v{tC}')
    a(f's_mul_i32 s{t0}, s{sP}, {WSLOW}')
    a(f'v_add_u32 v{tB}, s{t0}, v{tC}')
    a(f'v_lshlrev_b32 v{tB}, 3, v{tB}')
    a(f'v_mov_b32 v{tF}, 0x10000')
    a(f's_mov_b64 s[{MKC}:{MKC+1}], 0')
    a(f's_mov_b64 s[{MKC2}:{MKC2+1}], 0')
    for sub in range(2):
        a(f'v_add_u32 v{tD}, {sub}, v{tC}')
        a(f'v_cmp_gt_u32 vcc, {WSLOW}, v{tD}')
        a(f'v_add_u32 v{tD}, s{t0}, v{tD}')
        a('s_nop 0')
        a(f'v_cndmask_b32 v{tE if sub == 0 else tG}, v{tF}, v{tD}, vcc')
    for it in range(4):
        a(f'v_cmp_gt_u32 s[{MK+4*it}:{MK+4*it+1}], v{AX+it}, v{tE}')
        a(f'v_cmp_gt_u32 s[{MK+4*it+2}:{MK+4*it+3}], v{AX+it}, v{tG}')
    for sl in range(8, 16):
        a(f's_mov_b64 s[{MK+2*sl}:{MK+2*sl+1}], 0')
    rec_loads(tB, 1)
    lds_init()
    a('s_waitcnt vmcnt(0) lgkmcnt(0)')
    a('s_barrier')
    hist()
    a('s_waitcnt lgkmcnt(0)')
    a('s_barrier')
    scan_nodes('S')
    qi_fill('S', False)
    scatter()
    a('s_waitcnt lgkmcnt(0)')
    a('s_barrier')
    a(f's_cmp_eq_u32 s{sL}, 0')
    a('s_cbranch_scc1 K2_SNEXT')
    setup_ptrs()
    a('s_waitcnt lgkmcnt(0)')
    for ins in dma_addr(): a(ins)
    for ins in dma_issue(): a(ins)
    forced_flags()
    pipeline_fill()
    main_loop('S', True)
    a.label('K2_SNEXT')
    a('s_waitcnt vmcnt(0) lgkmcnt(0)')
    a('s_barrier')
    a(f's_add_u32 s{sP}, s{sP}, 1')
    a(f's_cmp_lt_u32 s{sP}, s{sNP}')
    a('s_cbranch_scc1 K2_SPASS')
    epilogue('S', False)
    a.label('K2_END')
    a('s_endpgm')
    return nvgpr, nsgpr

def kd(name, nv, ns):
    acc = (nv + 3) // 4 * 4
    return f'''.amdhsa_kernel {name}
  .amdhsa_next_free_vgpr {nv}
  .amdhsa_next_free_sgpr {ns}
  .amdhsa_accum_offset {acc}
  .amdhsa_group_segment_fixed_size 0
  .amdhsa_kernarg_size 96
  .amdhsa_user_sgpr_count 2
  .amdhsa_user_sgpr_kernarg_segment_ptr 1
  .amdhsa_system_sgpr_workgroup_id_x 1
  .amdhsa_float_denorm_mode_32 3
.end_amdhsa_kernel
'''

DOC = """;
;
"""

def build(opts=None):
    opts = opts or {}
    a = Asm()
    gen_k1(a, opts)
    nv, ns = gen_k2(a, opts)
    out = HEADER
    out += f'; @launch kernel=gs_part_kernel grid=(256,1,1) block=({K1_THREADS},1,1) lds={LDS_K1}\n'
    out += f'; @launch kernel=gs_main_kernel grid=(256,1,1) block=({NW*64},1,1) lds={LDS_MAIN}\n'
    out += DOC
    out += '.amdgcn_target "amdgcn-amd-amdhsa--gfx950"\n.text\n'
    out += a.text()
    out += '.section .rodata,"a"\n.p2align 6\n'
    out += kd('gs_part_kernel', 62 if opts.get('stamp1') else 60, 60)
    out += '.p2align 6\n'
    out += kd('gs_main_kernel', nv, ns)
    return out

if __name__ == '__main__':
    path = sys.argv[1] if len(sys.argv) > 1 else 'gather_scatter__edge_featured_mpnn_gatedgcn__graph.s'
    opts = {}
    for o in sys.argv[2:]:
        k, _, val = o.partition('=')
        opts[k] = int(val) if val else True
    open(path, 'w').write(build(opts))
    print('written', path, 'LDS', LDS_MAIN)
```

```python
import sys, os, struct
sys.path.insert(0, os.path.dirname(__file__))
from asmlib import *

N = 25000; E = 800000
NBK = 256
CH = 3136
RECB = CH * 8
WS_TAB = 0x700000
WS_TAB2 = 0x740000
WS_FRAG = 0x780000
MAGIC_B = 43980466
LOG2E = 0xBFB8AA3B
SBITS = 50
C_SCALE = (127 - SBITS) << 23
EPS_SCALED = 0x4E8637BD
assert abs(struct.unpack('<f', struct.pack('<I', EPS_SCALED))[0] / (1e-6 * 2.0**50) - 1) < 1e-6

NW = 8
NSTREAM = 16
NIT = 16
CAP = 3456
WSLOW = 13
ROWB = 784
MAXN = 98
ENT_QUADS = 960
VROWB = 640
L_CNT = 0
L_ZERO = 512
L_TAB = 1024
L_QI = 1536
L_ENT = L_QI + ENT_QUADS * 4
L_ACC = L_ENT + ENT_QUADS * 16
L_VIRT = L_ACC + MAXN * ROWB
L_WST = L_VIRT + NSTREAM * VROWB
L_WST = (L_WST + 255) // 256 * 256
L_DMA = L_WST + 16384
LDS_MAIN = L_DMA + NW * 4096
assert LDS_MAIN <= 163840, LDS_MAIN
assert L_ACC % 16 == 0 and L_VIRT % 16 == 0

K1_THREADS = 896
K1_HIST = 0
K1_STAGE = 1024
LDS_K1 = K1_STAGE + RECB

HEADER = open(os.path.join(os.path.dirname(__file__), 'header.txt')).read()

def srd(a, sreg, ptr, size):
    a(f's_mov_b32 s{sreg}, s{ptr}')
    a(f's_and_b32 s{sreg+1}, s{ptr+1}, 0xffff')
    a(f's_mov_b32 s{sreg+2}, {size}')
    a(f's_mov_b32 s{sreg+3}, 0x20000')

def srd_off(a, sreg, ptr, off, size):
    a(f's_add_u32 s{sreg}, s{ptr}, {off}')
    a(f's_addc_u32 s{sreg+1}, s{ptr+1}, 0')
    a(f's_and_b32 s{sreg+1}, s{sreg+1}, 0xffff')
    a(f's_mov_b32 s{sreg+2}, {size}')
    a(f's_mov_b32 s{sreg+3}, 0x20000')

def wave_scan(a, op, r):
    for sh in (1, 2, 4, 8):
        a('s_nop 1')
        a(f'{op}_dpp v{r}, v{r}, v{r} row_shr:{sh} row_mask:0xf bank_mask:0xf')
    a('s_nop 1')
    a(f'{op}_dpp v{r}, v{r}, v{r} row_bcast:15 row_mask:0xa bank_mask:0xf')
    a('s_nop 1')
    a(f'{op}_dpp v{r}, v{r}, v{r} row_bcast:31 row_mask:0xc bank_mask:0xf')

def wave_scan2(a, op1, r1, op2, r2):
    steps = [f'row_shr:{sh} row_mask:0xf bank_mask:0xf' for sh in (1, 2, 4, 8)] + \
            ['row_bcast:15 row_mask:0xa bank_mask:0xf', 'row_bcast:31 row_mask:0xc bank_mask:0xf']
    a('s_nop 1')
    for st in steps:
        a(f'{op1}_dpp v{r1}, v{r1}, v{r1} {st}')
        a(f'{op2}_dpp v{r2}, v{r2}, v{r2} {st}')
        a('s_nop 0')

def gen_k1(a, opts):
    ST = opts.get('stamp1', False)
    def stamp(i):
        if not ST: return
        a('s_memtime s[56:57]')
        a('s_waitcnt lgkmcnt(0)')
        a(f'v_writelane_b32 v60, s56, {i}')
    a.raw('.p2align 8')
    a.raw('.globl gs_part_kernel')
    a.raw('.type gs_part_kernel,@function')
    a.label('gs_part_kernel')
    a('s_cmp_ge_u32 s2, 256')
    a('s_cbranch_scc1 K1_END')
    a('s_load_dwordx4 s[4:7], s[0:1], 8')
    a('s_load_dwordx2 s[8:9], s[0:1], 24')
    a('s_load_dwordx2 s[10:11], s[0:1], 88')
    a('s_load_dwordx2 s[44:45], s[0:1], 0')
    if ST: a('v_mov_b32 v60, 0')
    stamp(0)
    if opts.get('dbgtime'):
        a('s_memrealtime s[54:55]')
        a('s_waitcnt lgkmcnt(0)')
        a('s_cmp_ge_u32 s2, 8')
        a('s_cbranch_scc1 K1_NODBG')
        a('v_mov_b32 v20, s54')
        a('s_lshl_b32 s56, s2, 2')
        a('s_add_u32 s56, s56, 0x1200000')
        a('v_mov_b32 v22, s56')
        a('v_cmp_eq_u32 vcc, 0, v0')
        a('s_and_saveexec_b64 s[58:59], vcc')
        a('global_store_dword v22, v20, s[10:11]')
        a('s_mov_b64 exec, s[58:59]')
        a.label('K1_NODBG')
    a('v_lshrrev_b32 v1, 6, v0')
    a('s_mul_i32 s12, s2, %d' % (CH * 4))
    a('v_readfirstlane_b32 s3, v1')
    a('s_lshr_b32 s13, s12, 1')
    a('v_lshlrev_b32 v2, 4, v0')
    a('v_add_u32 v2, s12, v2')
    a('s_cmp_eq_u32 s3, 13')
    a('s_cbranch_scc1 K1_FRAG')
    a('v_lshlrev_b32 v3, 3, v0')
    a('v_add_u32 v3, s13, v3')
    a('s_waitcnt lgkmcnt(0)')
    srd(a, 20, 8, E * 4)
    a('buffer_load_dwordx4 v[4:7], v2, s[20:23], 0 offen')
    srd(a, 24, 6, E * 4)
    srd(a, 28, 4, E * 2)
    if not opts.get('dstfirst', 1):
        a('buffer_load_dwordx4 v[8:11], v2, s[24:27], 0 offen')
        a('buffer_load_dwordx2 v[12:13], v3, s[28:31], 0 offen')
    a('v_lshlrev_b32 v14, 2, v0')
    a('v_mov_b32 v15, 0')
    a('v_cmp_gt_u32 vcc, 256, v0')
    a('s_and_saveexec_b64 s[18:19], vcc')
    a('ds_write_b32 v14, v15 offset:%d' % K1_HIST)
    a('s_mov_b64 exec, s[18:19]')
    a('v_cmp_gt_u32 vcc, %d, v0' % (CH // 4))
    a('s_mov_b32 s14, %d' % (E * 4))
    a('v_cmp_gt_u32 s[16:17], s14, v2')
    a('s_and_b64 s[16:17], s[16:17], vcc')
    a('s_mul_i32 s15, s2, %d' % RECB)
    srd_off(a, 32, 10, 's15', RECB)
    srd_off(a, 36, 10, WS_TAB, 0x80000)
    if opts.get('touch', 0):
        a('s_cmp_lg_u32 s3, 1')
        a('s_cbranch_scc1 K1_NOTOUCH')
        a('v_mov_b32 v41, 0')
        a('buffer_load_dword v42, v41, s[32:35], 0 offen')
        a('buffer_load_dword v43, v41, s[36:39], 0 offen')
        a.label('K1_NOTOUCH')
    a('s_mov_b32 s40, %d' % MAGIC_B)
    a('s_movk_i32 s41, 3125')
    a('v_mov_b32 v15, 1')
    a('s_waitcnt lgkmcnt(0)')
    a('s_barrier')
    if opts.get('dstfirst', 1) == 1:
        a('s_waitcnt vmcnt(0)')
        a('buffer_load_dwordx4 v[8:11], v2, s[24:27], 0 offen')
        a('buffer_load_dwordx2 v[12:13], v3, s[28:31], 0 offen')
    elif opts.get('dstfirst', 1) == 2:
        a('buffer_load_dwordx4 v[8:11], v2, s[24:27], 0 offen')
        a('buffer_load_dwordx2 v[12:13], v3, s[28:31], 0 offen')
        a('s_waitcnt vmcnt(2)')
    if opts.get('xpre', 1) == 1:
        a('s_and_b32 s46, s2, 7')
        a('s_lshr_b32 s47, s2, 3')
        a('s_lshl_b32 s46, s46, 5')
        a('s_add_u32 s46, s46, s47')
        a('s_mul_i32 s46, s46, 3125')
        a('s_add_u32 s46, s46, 31')
        a('s_lshr_b32 s46, s46, 5')
        a('s_lshl_b32 s46, s46, 7')
        a('s_and_b32 s45, s45, 0xffff')
        a('s_mov_b32 s48, s44')
        a('s_mov_b32 s49, s45')
        a('s_mov_b32 s50, %d' % (N * 128))
        a('s_mov_b32 s51, 0x20000')
        a('v_lshlrev_b32 v40, 4, v0')
        a('buffer_load_dwordx4 v[56:59], v40, s[48:51], s46 offen')
    a('s_mov_b64 exec, s[16:17]')
    a('s_cbranch_execz K1_NOEDGE1')
    stamp(1)
    if not opts.get('dstfirst', 1): a('s_waitcnt vmcnt(%d)' % (3 if opts.get('xpre', 1) else 2))
    stamp(2)
    for k in range(4):
        a(f'v_mul_hi_u32 v{16+k}, v{4+k}, s40')
    for k in range(4):
        a(f'v_lshlrev_b32 v{20+k}, 2, v{16+k}')
        a(f'ds_add_rtn_u32 v{24+k}, v{20+k}, v15 offset:{K1_HIST}')
    for k in range(4):
        a(f'v_mul_u32_u24 v{28+k}, s41, v{16+k}')
        a(f'v_add_u32 v{28+k}, 31, v{28+k}')
        a(f'v_lshrrev_b32 v{28+k}, 5, v{28+k}')
        a(f'v_sub_u32 v{28+k}, v{4+k}, v{28+k}')
        a(f'v_lshlrev_b32 v{33+2*k}, 2, v{28+k}')
    a.label('K1_NOEDGE1')
    a('s_mov_b64 exec, -1')
    a('s_waitcnt lgkmcnt(0)')
    stamp(3)
    a('s_barrier')
    stamp(4)
    if opts.get('xpre', 1) == 2:
        a('s_and_b32 s46, s2, 7')
        a('s_lshr_b32 s47, s2, 3')
        a('s_lshl_b32 s46, s46, 5')
        a('s_add_u32 s46, s46, s47')
        a('s_mul_i32 s46, s46, 3125')
        a('s_add_u32 s46, s46, 31')
        a('s_lshr_b32 s46, s46, 5')
        a('s_lshl_b32 s46, s46, 7')
        a('s_and_b32 s45, s45, 0xffff')
        a('s_mov_b32 s48, s44')
        a('s_mov_b32 s49, s45')
        a('s_mov_b32 s50, %d' % (N * 128))
        a('s_mov_b32 s51, 0x20000')
        a('v_lshlrev_b32 v40, 4, v0')
        a('buffer_load_dwordx4 v[56:59], v40, s[48:51], s46 offen')
    a('s_cmp_lg_u32 s3, 0')
    a('s_cbranch_scc1 K1_SCANDONE')
    a('v_lshlrev_b32 v40, 4, v0')
    a('ds_read_b128 v[44:47], v40 offset:%d' % K1_HIST)
    a('s_waitcnt lgkmcnt(0)')
    a('v_add_u32 v48, v44, v45')
    a('v_add_u32 v49, v48, v46')
    a('v_add_u32 v50, v49, v47')
    a('v_mov_b32 v51, v50')
    wave_scan(a, 'v_add_u32', 51)
    a('v_sub_u32 v52, v51, v50')
    a('v_add_u32 v53, v52, v44')
    a('v_add_u32 v54, v52, v48')
    a('v_add_u32 v55, v52, v49')
    a('ds_write_b128 v40, v[52:55] offset:%d' % K1_HIST)
    if not opts.get('w0late', 1): a('s_waitcnt vmcnt(%d)' % (1 if opts.get('xpre', 1) else 0))
    a('s_mul_i32 s15, s2, %d' % CH)
    for k in range(4):
        a(f'v_min_u32 v{48+k}, 0xff, v{44+k}')
        a(f'v_add_u32 v{52+k}, s15, v{52+k}')
        a(f'v_lshl_or_b32 v{48+k}, v{48+k}, 24, v{52+k}')
    a('s_lshl_b32 s15, s2, 10')
    a('buffer_store_dwordx4 v[48:51], v40, s[36:39], s15 offen' + (' sc1' if opts.get('tabst', 1) else ''))
    a.label('K1_SCANDONE')
    a('s_waitcnt lgkmcnt(0)')
    a('s_barrier')
    stamp(5)
    a('s_mov_b64 exec, s[16:17]')
    a('s_cbranch_execz K1_NOEDGE2')
    for k in range(4):
        a(f'ds_read_b32 v{28+k}, v{20+k} offset:{K1_HIST}')
    a('s_cmp_eq_u32 s3, 0')
    a('s_cbranch_scc1 K1_W0')
    a('s_waitcnt vmcnt(%d)' % (1 if opts.get('xpre', 1) else 0))
    a('s_branch K1_HAVE')
    a.label('K1_W0')
    a('s_waitcnt vmcnt(%d)' % (2 if opts.get('xpre', 1) else 1))
    a.label('K1_HAVE')
    a('s_mov_b32 s42, 0xffff0000')
    a('v_lshl_or_b32 v32, v12, 16, v8')
    a('v_and_or_b32 v34, v12, s42, v9')
    a('v_lshl_or_b32 v36, v13, 16, v10')
    a('v_and_or_b32 v38, v13, s42, v11')
    for k in range(4):
        a(f's_waitcnt lgkmcnt({3 if k == 0 else 3})')
        a(f'v_add_lshl_u32 v{28+k}, v{28+k}, v{24+k}, 3')
        a(f'ds_write_b64 v{28+k}, v[{32+2*k}:{33+2*k}] offset:{K1_STAGE}')
    a.label('K1_NOEDGE2')
    a('s_mov_b64 exec, -1')
    a('v_lshlrev_b32 v2, 4, v0')
    a('v_add_u32 v3, %d, v2' % (RECB // 2))
    a('v_cmp_gt_u32 vcc, %d, v0' % (CH // 4))
    a('s_waitcnt lgkmcnt(0)')
    stamp(6)
    a('s_barrier')
    stamp(7)
    a('s_and_saveexec_b64 s[18:19], vcc')
    a('s_cbranch_execz K1_END')
    a('ds_read_b128 v[4:7], v2 offset:%d' % K1_STAGE)
    a('ds_read_b128 v[8:11], v2 offset:%d' % (K1_STAGE + RECB // 2))
    a('s_waitcnt lgkmcnt(1)')
    sfx = {0: '', 1: ' sc1', 2: ' nt', 3: ' sc0 sc1', 4: ' sc1 nt'}[opts.get('k1st', 1)]
    a('buffer_store_dwordx4 v[4:7], v2, s[32:35], 0 offen' + sfx)
    a('s_waitcnt lgkmcnt(0)')
    a('buffer_store_dwordx4 v[8:11], v3, s[32:35], 0 offen' + sfx)
    if opts.get('endwait', 1): a('s_waitcnt vmcnt(0)')
    if ST:
        stamp(8)
        a('s_waitcnt vmcnt(0)')
        stamp(9)
        a('s_mul_i32 s12, s2, 16')
        a('s_add_u32 s12, s12, s3')
        a('s_lshl_b32 s12, s12, 8')
        a('s_add_u32 s12, s12, 0x1100000')
        a('s_add_u32 s32, s10, s12')
        a('s_addc_u32 s33, s11, 0')
        a('s_and_b32 s33, s33, 0xffff')
        a('s_mov_b32 s34, 256')
        a('s_mov_b64 exec, -1')
        a('v_and_b32 v4, 63, v0')
        a('v_lshlrev_b32 v4, 2, v4')
        a('buffer_store_dword v60, v4, s[32:35], 0 offen')
    if opts.get('dbgtime'):
        a('s_waitcnt vmcnt(0)')
        a('s_memrealtime s[54:55]')
        a('s_waitcnt lgkmcnt(0)')
        a('s_cmp_ge_u32 s2, 8')
        a('s_cbranch_scc1 K1_END')
        a('s_cmp_lg_u32 s3, 0')
        a('s_cbranch_scc1 K1_END')
        a('v_mov_b32 v20, s54')
        a('s_lshl_b32 s56, s2, 2')
        a('s_add_u32 s56, s56, 0x1200100')
        a('v_mov_b32 v22, s56')
        a('s_mov_b64 exec, 1')
        a('global_store_dword v22, v20, s[10:11]')
    a('s_endpgm')
    a.label('K1_FRAG')
    if opts.get('codepre', 0):
        a('s_cmp_lt_u32 s2, 32')
        a('s_cbranch_scc1 K1_FRAG2')
        a('s_cmp_ge_u32 s2, 64')
        a('s_cbranch_scc1 K1_END')
        a('s_getpc_b64 s[12:13]')
        a.label('K1_PCREF')
        a('s_add_u32 s12, s12, gs_main_kernel-K1_PCREF')
        a('s_addc_u32 s13, s13, 0')
        a('v_and_b32 v1, 63, v0')
        a('v_lshlrev_b32 v2, 4, v1')
        for i in range(opts.get('codekb', 20)):
            a(f'global_load_dwordx4 v[4:7], v2, s[12:13]')
            a('v_add_u32 v2, 1024, v2')
        a('s_endpgm')
        a.label('K1_FRAG2')
    a('s_cmp_ge_u32 s2, 32')
    a('s_cbranch_scc1 K1_END')
    if opts.get('fragbar', 1):
        a('s_barrier')
    a('s_load_dwordx4 s[12:15], s[0:1], 32')
    a('s_load_dwordx4 s[16:19], s[0:1], 56')
    a('s_lshr_b32 s20, s2, 3')
    a('s_waitcnt lgkmcnt(0)')
    a('s_mov_b32 s22, s14')
    a('s_mov_b32 s23, s15')
    a('s_cmp_eq_u32 s20, 1')
    a('s_cselect_b32 s22, s18, s22')
    a('s_cselect_b32 s23, s19, s23')
    a('s_cmp_eq_u32 s20, 2')
    a('s_cselect_b32 s22, s12, s22')
    a('s_cselect_b32 s23, s13, s23')
    a('s_cmp_eq_u32 s20, 3')
    a('s_cselect_b32 s22, s16, s22')
    a('s_cselect_b32 s23, s17, s23')
    srd(a, 24, 22, 64 * 64 * 2)
    srd_off(a, 28, 10, WS_FRAG, 32 * 1024)
    a('s_and_b32 s32, s2, 3')
    a('s_lshr_b32 s33, s2, 2')
    a('s_and_b32 s33, s33, 1')
    a('s_lshl_b32 s32, s32, 11')
    a('s_lshl_b32 s33, s33, 6')
    a('s_add_u32 s32, s32, s33')
    a('v_and_b32 v1, 63, v0')
    a('v_and_b32 v2, 31, v1')
    a('v_lshlrev_b32 v2, 1, v2')
    a('v_lshrrev_b32 v3, 5, v1')
    a('v_lshlrev_b32 v3, 10, v3')
    a('v_add3_u32 v2, v2, v3, s32')
    for i in range(8):
        a(f'buffer_load_ushort v{8+i}, v2, s[24:27], 0 offen offset:{i*128}')
    a('s_mov_b32 s34, 1.0')
    a('s_and_b32 s36, s20, 1')
    a('s_cmp_eq_u32 s36, 0')
    a('s_cselect_b32 s34, 0x%x, s34' % LOG2E)
    a('s_waitcnt vmcnt(0)')
    for i in range(8):
        a(f'v_lshlrev_b32 v{8+i}, 16, v{8+i}')
        a(f'v_mul_f32 v{8+i}, s34, v{8+i}')
    for i in range(4):
        a(f'v_cvt_pk_bf16_f32 v{16+i}, v{8+2*i}, v{9+2*i}')
    a('v_lshlrev_b32 v4, 4, v1')
    a('s_lshl_b32 s35, s2, 10')
    a('v_add_u32 v4, s35, v4')
    a('buffer_store_dwordx4 v[16:19], v4, s[28:31], 0 offen' + (' sc1' if opts.get('fragst', 0) else ''))
    if opts.get('endwait', 1): a('s_waitcnt vmcnt(0)')
    a.label('K1_END')
    a('s_endpgm')

def gen_k2(a, opts):
    STAMP = opts.get('stamp', False)
    vLANE = 1; BC = 2
    WB = 4; WV = 36; AX = 68
    GA = 84; HA = 100; GB = 116; HB = 132
    PP = 148; TT_ = 156; ZZ = 164
    DEN = 172; NUM = 176
    AE = [180, 184]; BE = 188; R0 = 192
    QA = [196, 200]
    EN = 204; RA = 208; CO = 212
    pEN = 216; pEE = 217; pQI = 218; pQF = 219
    C4 = 220; SEL = [221, 222]; EE = 223; QF = 224
    F0 = 225; F1 = 226; F2 = 252; F3 = 227
    tA = 227; tB = 228; tC = 229; tD = 230; tE = 231; tF = 232; tG = 233; tH = 234; tI = 235
    TQ = 236; TR = 240
    sidA = 244; jA = 245; sidR = 246; iR4 = 247
    vST = 253; GF = 249; GD = 250
    PB = 228; TB = 236; ZB = 244
    RC = 252; RKC = 225; RKC2 = 226; tJ = 251
    nvgpr = 256
    REC = PP; RK = GB; SG = HB
    G_ = [GA, GB]; H_ = [HA, HB]
    nOFF0 = AE[0]+0 if False else QA[0]; nOFF1 = QA[0]+1; nEND0 = QA[0]+2; nEND1 = QA[0]+3; nROW0 = QA[1]
    S = Regs('s', 3, 102)
    sX = S.alloc('x', 2, 2); sWC = S.alloc('wc', 2, 2); sOUT = S.alloc('out', 2, 2); sWS = S.alloc('ws', 2, 2)
    rX = S.alloc('rX', 4, 4); rT = S.alloc('rT', 4, 4); rR = S.alloc('rR', 4, 4); rF = S.alloc('rF', 4, 4)
    sW = S.alloc('w'); sNS = S.alloc('ns'); sNN = S.alloc('nn')
    sP = S.alloc('pass'); sNP = S.alloc('npass')
    sL = S.alloc('L'); sCNT = S.alloc('cnt'); sLA = S.alloc('La'); sLB = S.alloc('Lb'); sSO = S.alloc('streamoff')
    sC = S.alloc('C', 2, 2)
    sF = [S.alloc('F0', 2, 2), S.alloc('F1', 2, 2)]
    sANY = [S.alloc('any0'), S.alloc('any1')]
    s128 = S.alloc('c128'); sLO = S.alloc('lo16'); sHI = S.alloc('hi16')
    t0 = S.alloc('t0'); t1 = S.alloc('t1'); t2 = S.alloc('t2', 1, 2); t3 = S.alloc('t3')
    sSV = S.alloc('sv', 2, 2); sSV2 = S.alloc('sv2', 2, 2)
    sDB = S.alloc('dmabase'); sSWAP = S.alloc('swap')
    sDBG = S.alloc('dbg', 2, 2) if opts.get('dbgtime') else None
    sT0 = S.alloc('dbgt0', 2, 2) if opts.get('dbgtime') else None
    sT1 = S.alloc('dbgt1') if opts.get('dbgtime') else None
    sT2 = S.alloc('dbgt2') if opts.get('dbgtime') else None
    MK = S.alloc('MK', 32, 2)
    MKC = S.alloc('MKC', 2, 2); MKC2 = S.alloc('MKC2', 2, 2)
    rO = rT
    nsgpr = S.hi
    def stamp(i):
        if not STAMP: return
        a(f's_memtime s[{t2}:{t3}]')
        a('s_waitcnt lgkmcnt(0)')
        a(f'v_writelane_b32 v{vST}, s{t2}, {i}')
    XB = 4096

    a.raw('.p2align 8')
    a.raw('.globl gs_main_kernel')
    a.raw('.type gs_main_kernel,@function')
    a.label('gs_main_kernel')
    a('s_cmp_ge_u32 s2, 256')
    a('s_cbranch_scc1 K2_END')
    a(f's_load_dwordx2 s[{sWS}:{sWS+1}], s[0:1], 88')
    a(f's_load_dwordx2 s[{sX}:{sX+1}], s[0:1], 0')
    a(f's_load_dwordx2 s[{sWC}:{sWC+1}], s[0:1], 48')
    a(f's_load_dwordx2 s[{sOUT}:{sOUT+1}], s[0:1], 72')
    a('s_and_b32 s3, s2, 7')
    a('s_lshr_b32 s2, s2, 3')
    a('s_lshl_b32 s3, s3, 5')
    a('s_add_u32 s2, s2, s3')
    if opts.get('dbgtime'):
        a(f's_load_dwordx2 s[{sDBG}:{sDBG+1}], s[0:1], 80')
        a(f's_memrealtime s[{sT0}:{sT0+1}]')
        a('s_waitcnt lgkmcnt(0)')
    if STAMP:
        a(f'v_mov_b32 v{vST}, 0')
        a(f's_memtime s[{MK}:{MK+1}]')
        a(f's_memrealtime s[{MK+2}:{MK+3}]')
    a(f'v_lshrrev_b32 v{tA}, 6, v0')
    a(f'v_and_b32 v{vLANE}, 63, v0')
    a(f'v_readfirstlane_b32 s{sW}, v{tA}')
    a(f'v_lshrrev_b32 v{sidA}, 5, v{vLANE}')
    if opts.get('proprio'):
        a('s_nop 2')
        a(f's_cmp_ge_u32 s{sW}, 4')
        a('s_cbranch_scc0 K2_PP0')
        a('s_setprio 1')
        a.label('K2_PP0')
    a(f's_lshl_b32 s{t0}, s{sW}, 1')
    a(f'v_add_u32 v{sidA}, s{t0}, v{sidA}')
    a(f'v_lshrrev_b32 v{tD}, 3, v{vLANE}')
    a(f'v_lshlrev_b32 v{tD}, 12, v{tD}')
    a(f's_lshl_b32 s{t0}, s{sW}, 15')
    a(f'v_add_u32 v{tD}, s{t0}, v{tD}')
    a(f'v_lshlrev_b32 v{tA}, 4, v{vLANE}')
    a(f's_mul_i32 s{t0}, s2, 3125')
    a(f's_add_u32 s{sNS}, s{t0}, 31')
    a(f's_lshr_b32 s{sNS}, s{sNS}, 5')
    a(f's_add_u32 s{t0}, s{t0}, {3125+31}')
    a(f's_lshr_b32 s{t0}, s{t0}, 5')
    a(f's_sub_u32 s{sNN}, s{t0}, s{sNS}')
    a(f's_lshl_b32 s{sDB}, s{sW}, 12')
    a(f's_add_u32 s{sDB}, s{sDB}, {L_DMA}')
    a(f'v_bfe_u32 v{tE}, v{vLANE}, 4, 1')
    a(f'v_and_b32 v{tF}, 7, v{vLANE}')
    a(f'v_xor_b32 v{tE}, v{tE}, v{tF}')
    a(f'v_lshlrev_b32 v{tE}, 4, v{tE}')
    for i in range(4):
        if i: a(f'v_xor_b32 v{tF}, {32*i}, v{tE}')
        a(f'v_add_u32 v{CO+i}, {XB - 1024*i}, v{tF if i else tE}')
    a(f'v_bfe_u32 v{jA}, v{vLANE}, 3, 2')
    a(f'v_lshrrev_b32 v{tF}, 5, v{vLANE}')
    a(f'v_lshlrev_b32 v{tE}, 3, v{jA}')
    a(f'v_lshl_add_u32 v{tE}, v{tF}, 2, v{tE}')
    a(f's_lshr_b32 s{t0}, s{sW}, 1')
    a(f's_lshl_b32 s{t1}, s{t0}, 5')
    a(f's_add_u32 s{t1}, s{t1}, s{sNS}')
    a(f's_and_b32 s{t2}, s{sW}, 1')
    a(f's_lshl_b32 s{t2}, s{t2}, 1')
    a(f's_add_u32 s{t1}, s{t1}, s{t2}')
    a(f'v_add_u32 v{tE}, s{t1}, v{tE}')
    a(f'v_lshlrev_b32 v{tE}, 7, v{tE}')
    a(f's_cmp_eq_u32 s{t2}, 0')
    a(f's_cbranch_scc0 K2_XI2')
    a(f'v_add_u32 v{tH}, v{tE}, v{CO}')
    a(f'v_add_u32 v{tI}, v{tE}, v{CO+1}')
    a('s_branch K2_XI')
    a.label('K2_XI2')
    a(f'v_add_u32 v{tH}, v{tE}, v{CO+2}')
    a(f'v_add_u32 v{tI}, v{tE}, v{CO+3}')
    a(f'v_add_u32 v{tH}, 2048, v{tH}')
    a(f'v_add_u32 v{tI}, 2048, v{tI}')
    a.label('K2_XI')
    a(f'v_add_u32 v{tI}, 128, v{tI}')
    a(f'v_and_b32 v{C4}, 31, v{vLANE}')
    a(f's_lshl_b32 s{t1}, s2, 2')
    a(f's_add_u32 s{t1}, s{t1}, {WS_TAB}')
    a('s_waitcnt lgkmcnt(0)')
    if STAMP:
        a(f'v_writelane_b32 v{vST}, s{MK}, 0')
        a(f'v_writelane_b32 v{vST}, s{MK+2}, 11')
    srd_off(a, rT, sWS, f's{t1}', 256 * 1024)
    for it in range(4):
        a(f'buffer_load_dword v{SG+it}, v{tD}, s[{rT}:{rT+3}], 0 offen' + (f' offset:{1024*it}' if it else ''))
    a(f's_sub_u32 s{rX}, s{sX}, {XB}')
    a(f's_subb_u32 s{rX+1}, s{sX+1}, 0')
    a(f's_and_b32 s{rX+1}, s{rX+1}, 0xffff')
    a(f's_mov_b32 s{rX+2}, {N*128 + XB}')
    a(f's_mov_b32 s{rX+3}, 0x20000')
    srd_off(a, rF, sWS, WS_FRAG, 32 * 1024)
    def staging():
        a(f's_lshr_b32 s{t0}, s{sW}, 1')
        a(f's_lshl_b32 s{t0}, s{t0}, 12')
        a(f's_and_b32 s{t2}, s{sW}, 1')
        a(f's_lshl_b32 s{t2}, s{t2}, 11')
        a(f's_add_u32 s{t0}, s{t0}, s{t2}')
        a(f's_add_u32 s{t0}, s{t0}, {L_DMA}')
        a(f's_mov_b32 m0, s{t0}')
        a(f'v_lshlrev_b32 v{tA}, 4, v{vLANE}')
        if not opts.get('noxown'):
            a(f'buffer_load_dwordx4 v{tH}, s[{rX}:{rX+3}], 0 offen lds')
            a(f'buffer_load_dwordx4 v{tI}, s[{rX}:{rX+3}], 0 offen offset:1024 lds')
        a(f's_lshl_b32 s{t0}, s{sW}, 11')
        a(f's_add_u32 s{t1}, s{t0}, {L_DMA + 4*4096}')
        a(f's_mov_b32 m0, s{t1}')
        a(f's_add_u32 s{t2}, s{t0}, {16*1024}')
        a(f'buffer_load_dwordx4 v{tA}, s[{rF}:{rF+3}], s{t2} offen lds')
        a(f'buffer_load_dwordx4 v{tA}, s[{rF}:{rF+3}], s{t2} offen offset:1024 lds')
        a(f's_add_u32 s{t1}, s{t0}, {L_WST}')
        a(f's_mov_b32 m0, s{t1}')
        a('s_nop 0')
        a(f'buffer_load_dwordx4 v{tA}, s[{rF}:{rF+3}], s{t0} offen lds')
        a(f'buffer_load_dwordx4 v{tA}, s[{rF}:{rF+3}], s{t0} offen offset:1024 lds')
        srd(a, rR, sWC, 128)
        a(f'v_lshlrev_b32 v{tE}, 1, v{C4}')
        if not opts.get('nowc'):
            a(f'buffer_load_ushort v{BC}, v{tE}, s[{rR}:{rR+3}], 0 offen')
            a(f'buffer_load_ushort v{BC+1}, v{tE}, s[{rR}:{rR+3}], 0 offen offset:64')
    staging()
    MKT = (MK + 3) // 4 * 4
    if opts.get('touch', 0):
        srd(a, MKT, sWS, NBK * RECB)
        a(f'v_and_b32 v{tE}, 3, v{vLANE}')
        a(f'v_lshlrev_b32 v{tE}, 21, v{tE}')
        a(f'buffer_load_dword v{F0}, v{tE}, s[{MKT}:{MKT+3}], 0 offen')
        srd(a, MKT + 4, sOUT, N * 128)
        a(f'v_and_b32 v{tE}, 1, v{vLANE}')
        a(f'v_lshlrev_b32 v{tE}, 21, v{tE}')
        a(f'buffer_load_dword v{F1}, v{tE}, s[{MKT+4}:{MKT+7}], 0 offen')
    def lds_init():
        a(f'v_lshlrev_b32 v{tE}, 4, v0')
        a(f'v_mov_b32 v{TR}, 0xffff')
        a(f'v_mov_b32 v{TR+1}, 0xffff')
        a(f'v_mov_b64 v[{TR+2}:{TR+3}], v[{TR}:{TR+1}]')
        a(f'ds_write_b128 v{tE}, v[{TR}:{TR+3}] offset:{L_ENT}')
        a(f's_cmp_ge_u32 s{sW}, {(ENT_QUADS - 512) // 64}')
        a(f's_cbranch_scc1 K2_I1{tag_i[0]}')
        a(f'ds_write_b128 v{tE}, v[{TR}:{TR+3}] offset:{L_ENT + 512*16}')
        a.label(f'K2_I1{tag_i[0]}')
        assert (ENT_QUADS - 512) % 64 == 0
        a(f'v_mov_b32 v{TR}, {L_VIRT}')
        a(f'v_mov_b32 v{TR+1}, {L_VIRT}')
        a(f'v_mov_b64 v[{TR+2}:{TR+3}], v[{TR}:{TR+1}]')
        a(f'v_cmp_gt_u32 vcc, {ENT_QUADS // 4}, v0')
        a(f's_and_saveexec_b64 s[{sSV}:{sSV+1}], vcc')
        a(f'ds_write_b128 v{tE}, v[{TR}:{TR+3}] offset:{L_QI}')
        a(f's_mov_b64 exec, s[{sSV}:{sSV+1}]')
        a(f's_cmp_lg_u32 s{sW}, 0')
        a(f's_cbranch_scc1 K2_I2{tag_i[0]}')
        a(f'v_mov_b64 v[{TR}:{TR+1}], 0')
        a(f'v_mov_b64 v[{TR+2}:{TR+3}], 0')
        a(f'ds_write_b128 v{tE}, v[{TR}:{TR+3}] offset:{L_CNT}')
        a(f'v_add_u32 v{tE}, {L_VIRT + 512}, v{tE}')
        a('s_mov_b64 exec, 0xff')
        a(f'ds_write_b128 v{tE}, v[{TR}:{TR+3}]')
        a('s_mov_b64 exec, -1')
        a.label(f'K2_I2{tag_i[0]}')
        tag_i[0] += 1
    tag_i = [0]
    lds_init()
    a(f'v_and_b32 v{tE}, 3, v{vLANE}')
    a(f'v_lshlrev_b32 v{iR4}, 2, v{tE}')
    a(f'v_lshl_add_u32 v{RA}, v{tE}, 3, v{jA}')
    a(f'v_lshrrev_b32 v{tF}, 1, v{jA}')
    a(f'v_lshl_add_u32 v{tE}, v{tE}, 1, v{tF}')
    a(f'v_bfe_u32 v{tF}, v{vLANE}, 2, 1')
    a(f's_lshl_b32 s{t0}, s{sW}, 1')
    a(f'v_add_u32 v{sidR}, s{t0}, v{tF}')
    a(f'v_lshl_add_u32 v{RA}, v{tF}, 2, v{RA}')
    a(f'v_lshrrev_b32 v{tG}, 5, v{vLANE}')
    a(f'v_cmp_eq_u32 vcc, v{tF}, v{tG}')
    a(f'v_xor_b32 v{tE}, v{tE}, v{tG}')
    a(f'v_lshlrev_b32 v{tE}, 4, v{tE}')
    a(f'v_lshl_add_u32 v{RA}, v{RA}, 7, v{tE}')
    a(f'v_mov_b32 v{tF}, 0x3f80')
    a(f'v_cndmask_b32 v{tF}, 0, v{tF}, vcc')
    a(f'v_lshlrev_b32 v{tG}, v{jA}, 1') if False else None
    a(f'v_mov_b32 v{tG}, 1')
    a(f'v_lshlrev_b32 v{tG}, v{jA}, v{tG}')
    for q in range(4):
        a(f'v_bfe_u32 v{tE}, v{tG}, {q}, 1')
        a(f'v_mul_u32_u24 v{AE[0]+q}, v{tE}, v{tF}')
        a(f'v_lshlrev_b32 v{AE[1]+q}, 16, v{AE[0]+q}')
    a(f'v_cmp_gt_u32 vcc, 32, v{vLANE}')
    a(f'v_mov_b32 v{tE}, 0x0a0c0100')
    a(f'v_mov_b32 v{tF}, 0x07060100')
    a(f'v_cndmask_b32 v{SEL[0]}, v{tE}, v{tF}, vcc')
    a(f'v_mov_b32 v{tE}, 0x03020a0c')
    a(f'v_mov_b32 v{tF}, 0x03020706')
    a(f'v_cndmask_b32 v{SEL[1]}, v{tE}, v{tF}, vcc')
    a(f's_mov_b32 s{sC}, 0x{C_SCALE:x}')
    a(f's_mov_b32 s{sC+1}, 0x{C_SCALE:x}')
    a(f's_mov_b32 s{s128}, 128')
    a(f's_mov_b32 s{sLO}, 0xffff')
    a(f's_mov_b32 s{sHI}, 0xffff0000')
    a(f'v_and_b32 v{tB}, 7, v{vLANE}')
    a(f'v_lshlrev_b32 v{tB}, 4, v{tB}')
    a(f'v_lshlrev_b32 v{C4}, 2, v{C4}')
    a('s_waitcnt vmcnt(%d) lgkmcnt(0)' % (2 if opts.get('touch', 0) else 0))
    stamp(1)
    a('s_barrier')
    srd(a, rR, sWS, NBK * RECB)
    def slot_ent(sl): return REC + 2*sl
    def rec_loads(vk16, nwin):
        for it in range(4):
            a(f'v_mad_u32_u24 v{RK+it}, v{SG+it}, 8, v{vk16}')
        for w_ in range(nwin):
            for it in range(4):
                sl = 8*w_ + 2*it
                a(f's_mov_b64 exec, s[{MK+2*sl}:{MK+2*sl+1}]')
                sk = a.newlabel('skl') if w_ else None
                if sk: a(f's_cbranch_execz {sk}')
                a(f'buffer_load_dwordx4 v[{REC+2*sl}:{REC+2*sl+3}], v{RK+it}, s[{rR}:{rR+3}], 0 offen' + (' offset:128' if w_ else ''))
                if sk: a.label(sk)
        a('s_mov_b64 exec, -1')
    a(f'v_lshrrev_b32 v{tC}, 3, v{tB}')
    for w_ in range(2):
        for sub in range(2):
            if w_ or sub: a(f'v_add_u32 v{tD}, {16*w_ + sub}, v{tC}')
            for it in range(4):
                sl = 8*w_ + 2*it + sub
                a(f'v_cmp_gt_u32_sdwa s[{MK+2*sl}:{MK+2*sl+1}], v{SG+it}, v{tD if (w_ or sub) else tC} src0_sel:BYTE_3 src1_sel:DWORD')
    stamp(25)
    rec_loads(tB, 2)
    stamp(26)
    a(f'v_max3_u32 v{tD}, v{SG}, v{SG+1}, v{SG+2}')
    a(f'v_max_u32 v{tD}, v{tD}, v{SG+3}')
    a(f'v_lshrrev_b32 v{tD}, 24, v{tD}')
    a(f'v_cmp_lt_u32 s[{sSV2}:{sSV2+1}], 32, v{tD}')
    a(f's_mov_b64 s[{MKC}:{MKC+1}], 0')
    a(f's_mov_b64 s[{MKC2}:{MKC2+1}], 0')
    a(f's_cmp_lg_u64 s[{sSV2}:{sSV2+1}], 0')
    a('s_cbranch_scc1 K2_CSEL')
    a.label('K2_CBACK')

    def gemm_issue():
        a(f's_lshr_b32 s{t0}, s{sW}, 1')
        a(f's_lshl_b32 s{t1}, s{t0}, 12')
        a(f's_add_u32 s{t1}, s{t1}, {L_DMA}')
        a(f'v_add_u32 v{tA}, s{t1}, v{RA}')
        a(f'v_xor_b32 v{tB}, 32, v{tA}')
        a(f'ds_read_b128 v[{AX}:{AX+3}], v{tA}')
        a(f'ds_read_b128 v[{AX+4}:{AX+7}], v{tB}')
        a(f'v_xor_b32 v{tB}, 64, v{tA}')
        a(f'v_xor_b32 v{tC}, 96, v{tA}')
        a(f'ds_read_b128 v[{AX+8}:{AX+11}], v{tB}')
        a(f'ds_read_b128 v[{AX+12}:{AX+15}], v{tC}')
        a(f's_and_b32 s{t2}, s{sW}, 1')
        a(f's_lshl_b32 s{t3}, s{t2}, 13')
        a(f's_add_u32 s{t3}, s{t3}, {L_DMA + 4*4096}')
        a(f'v_lshlrev_b32 v{GF}, 4, v{vLANE}')
        a(f'v_add_u32 v{GF}, s{t3}, v{GF}')
        for f in range(4):
            a(f'ds_read_b128 v[{SG+4*f}:{SG+4*f+3}], v{GF} offset:{f*1024}')
        for f in range(4):
            a(f'ds_read_b128 v[{RK+4*f}:{RK+4*f+3}], v{GF} offset:{(4+f)*1024}')
        a(f's_mul_i32 s{t1}, s{t0}, {32*ROWB}')
        a(f's_lshl_b32 s{t3}, s{t2}, 7')
        a(f's_add_u32 s{t1}, s{t1}, s{t3}')
        a(f's_add_u32 s{t1}, s{t1}, {L_ACC + 512}')
        a(f'v_lshrrev_b32 v{GD}, 5, v{vLANE}')
        a(f'v_mul_u32_u24 v{GD}, {4*ROWB}, v{GD}')
        a(f'v_add3_u32 v{GD}, v{GD}, v{C4}, s{t1}')
    def gemm_mid():
        a('s_waitcnt lgkmcnt(0)')
        for kp in range(4):
            c = '0' if kp == 0 else f'v[{GA}:{GA+15}]'
            a(f'v_mfma_f32_32x32x16_bf16 v[{GA}:{GA+15}], v[{AX+4*kp}:{AX+4*kp+3}], v[{SG+4*kp}:{SG+4*kp+3}], {c}')
            c = '0' if kp == 0 else f'v[{HA}:{HA+15}]'
            a(f'v_mfma_f32_32x32x16_bf16 v[{HA}:{HA+15}], v[{AX+4*kp}:{AX+4*kp+3}], v[{RK+4*kp}:{RK+4*kp+3}], {c}')
    def gemm_mid2():
        a('s_nop 7')
        a('s_nop 3')
    def w_frags():
        a(f'v_lshlrev_b32 v{GF}, 4, v{vLANE}')
        a(f'v_add_u32 v{GF}, {L_WST}, v{GF}')
        for f in range(16):
            dst = (WB + 4*f) if f < 8 else (WV + 4*(f-8))
            if f == 12: a('s_waitcnt lgkmcnt(8)')
            a(f'ds_read_b128 v[{dst}:{dst+3}], v{GF} offset:{f*1024}')
    def gemm_store(tag):
        for i in range(16):
            a(f'v_cvt_pk_bf16_f32 v{GA+i}, v{GA+i}, v{HA+i}')
        a(f's_lshr_b32 s{t0}, s{sW}, 1')
        a(f's_cmp_eq_u32 s{t0}, 3')
        a(f's_cbranch_scc1 K2_RT3{tag}')
        for vv in range(16):
            if vv == 12: a('s_waitcnt lgkmcnt(8)')
            a(f'ds_write_b32 v{GD}, v{GA+vv} offset:{(8*(vv//4) + vv%4) * ROWB}')
        a(f's_branch K2_RTD{tag}')
        a.label(f'K2_RT3{tag}')
        a('s_mov_b32 exec_hi, 0')
        for vv in range(2):
            a(f'ds_write_b32 v{GD}, v{GA+vv} offset:{vv * ROWB}')
        a('s_mov_b64 exec, -1')
        a.label(f'K2_RTD{tag}')
    def consts():
        a(f'v_add_u32 v{RA}, s{sDB}, v{RA}')
        for kp in range(1, 4):
            a(f'v_xor_b32 v{RA+kp}, {32*kp}, v{RA}')
        a(f's_mov_b32 s{t3}, 0x{LOG2E:x}')
        for cc in range(2):
            a(f'v_lshlrev_b32 v{BC+cc}, 16, v{BC+cc}')
            a(f'v_mul_f32 v{BC+cc}, s{t3}, v{BC+cc}')
        a(f'v_cvt_pk_bf16_f32 v{BC}, 0, v{BC}')
        a(f'v_cvt_pk_bf16_f32 v{BC+1}, v{BC+1}, 0')
        a(f'v_cmp_gt_u32 vcc, 32, v{vLANE}')
        a(f'v_mov_b32 v{tG}, 0xb2000000')
        a(f'v_mov_b32 v{tH}, 0xb200')
        a(f'v_cndmask_b32 v{BC}, v{tG}, v{BC}, vcc')
        a(f'v_cndmask_b32 v{BC+1}, v{tH}, v{BC+1}, vcc')

    def hist():
        a(f'v_mov_b32 v{tE}, 1')
        for sl in range(8):
            a(f's_mov_b64 exec, s[{MK+2*sl}:{MK+2*sl+1}]')
            a(f'ds_add_rtn_u32 v{RK+sl}, v{REC+2*sl+1}, v{tE} offset:{L_CNT}')
        a('s_waitcnt lgkmcnt(6)')
        for sl in range(8, 16, 2):
            sk = a.newlabel('skh')
            a(f's_mov_b64 exec, s[{MK+2*sl}:{MK+2*sl+1}]')
            a(f's_cbranch_execz {sk}')
            a(f'ds_add_rtn_u32 v{RK+sl}, v{REC+2*sl+1}, v{tE} offset:{L_CNT}')
            a(f's_mov_b64 exec, s[{MK+2*sl+2}:{MK+2*sl+3}]')
            a(f'ds_add_rtn_u32 v{RK+sl+1}, v{REC+2*sl+3}, v{tE} offset:{L_CNT}')
            a.label(sk)
        sk = a.newlabel('skhc')
        a(f's_mov_b64 exec, s[{MKC}:{MKC+1}]')
        a(f's_cbranch_execz {sk}')
        a('s_waitcnt lgkmcnt(6)')
        a(f'ds_add_rtn_u32 v{RKC}, v{RC+1}, v{tE} offset:{L_CNT}')
        a(f's_mov_b64 exec, s[{MKC2}:{MKC2+1}]')
        a(f'ds_add_rtn_u32 v{RKC2}, v{RC+3}, v{tE} offset:{L_CNT}')
        a.label(sk)
        a('s_mov_b64 exec, -1')

    def scan_nodes(tag, mid=None):
        a(f'v_lshlrev_b32 v{tA}, 3, v{vLANE}')
        a(f'ds_read_b64 v[{TQ}:{TQ+1}], v{tA} offset:{L_CNT}')
        a(f'v_mul_u32_u24 v{nROW0}, {2*ROWB}, v{vLANE}')
        a(f'v_add_u32 v{nROW0}, {L_ACC}, v{nROW0}')
        if mid: mid()
        else: a('s_waitcnt lgkmcnt(0)')
        a(f'v_add_u32 v{tE}, 3, v{TQ}')
        a(f'v_add_u32 v{tF}, 3, v{TQ+1}')
        a(f'v_and_b32 v{tE}, -4, v{tE}')
        a(f'v_and_b32 v{tF}, -4, v{tF}')
        a(f'v_add_u32 v{tC}, v{tE}, v{tF}')
        a(f'v_max_u32 v{tB}, v{tE}, v{tF}')
        a(f'v_mov_b32 v{tD}, v{tC}')
        wave_scan(a, 'v_add_u32', tD)
        a(f'v_sub_u32 v{nOFF0}, v{tD}, v{tC}')
        a(f'v_readlane_b32 s{t1}, v{tD}, 63')
        a(f'v_add_u32 v{nOFF1}, v{nOFF0}, v{tE}')
        a(f'v_lshlrev_b32 v{TQ+2}, 2, v{nOFF0}')
        a(f'v_lshlrev_b32 v{TQ+3}, 2, v{nOFF1}')
        a(f'ds_write_b64 v{tA}, v[{TQ+2}:{TQ+3}] offset:{L_TAB}')
        a(f'v_mov_b32 v{nEND0}, v{nOFF1}')
        a(f'v_add_u32 v{nEND1}, v{nOFF1}, v{tF}')
        a(f's_add_u32 s{t1}, s{t1}, 127')
        a(f's_lshr_b32 s{t1}, s{t1}, 7')
        a(f's_lshr_b32 s{t0}, s{t1}, 1')
        a(f's_sub_u32 s{t1}, s{t1}, s{t0}')
        a(f's_lshl_b32 s{sLA}, s{t1}, 2')
        a(f's_lshl_b32 s{sLB}, s{t0}, 2')
        a(f's_sub_u32 s{sSO}, s{sLA}, s{sLB}')
        a(f's_lshl_b32 s{sSO}, s{sSO}, 3')
        a(f's_cmp_lt_u32 s{sW}, 4')
        a(f's_cselect_b32 s{sL}, s{sLA}, s{sLB}')
        a(f's_cselect_b32 s{sSO}, 0, s{sSO}')
        a(f's_lshr_b32 s{sCNT}, s{sL}, 2')
        a(f's_sub_u32 s{sCNT}, s{sCNT}, 1')
    def qi_fill(tag, split, nwq=8):
        B0 = TQ + 2; B1 = TQ + 3; V0 = TR + 1; V1 = TR + 2
        a(f'v_max_u32 v{TR}, v{tE}, v{tF}')
        if split:
            a(f'v_cvt_f32_u32 v{tA}, s{sLA}')
            a(f'v_cvt_f32_u32 v{tD}, s{sLB}')
            a(f'v_rcp_f32 v{tA}, v{tA}')
            a(f'v_rcp_f32 v{tD}, v{tD}')
            a(f's_lshl_b32 s{t0}, s{sLA}, 5')
            a(f's_sub_u32 s{t1}, s{sLA}, s{sLB}')
            a(f's_lshl_b32 s{t1}, s{t1}, 5')
            a(f'v_mul_f32 v{tA}, 0.25, v{tA}')
            a(f'v_mul_f32 v{tD}, 0.25, v{tD}')
            for (OFF, nx, B, Vv) in ((nOFF0, tB, B0, V0), (nOFF1, tC, B1, V1)):
                a(f'v_cmp_gt_u32 vcc, s{t0}, v{OFF}')
                a(f'v_subrev_u32 v{tG}, s{t1}, v{OFF}')
                a('s_nop 0')
                a(f'v_cndmask_b32 v{tG}, v{tG}, v{OFF}, vcc')
                a(f'v_cndmask_b32 v{tH}, v{tD}, v{tA}, vcc')
                a(f'v_cvt_f32_u32 v{tG}, v{tG}')
                a(f'v_add_f32 v{tG}, 2.0, v{tG}')
                a(f'v_mul_f32 v{tG}, v{tH}, v{tG}')
                a(f'v_cvt_u32_f32 v{nx}, v{tG}')
                a(f'v_add_u32 v{nx}, 1, v{nx}')
                a(f'v_mov_b32 v{tG}, s{sLB}')
                a(f'v_mov_b32 v{tH}, s{sLA}')
                a(f'v_cndmask_b32 v{tG}, v{tG}, v{tH}, vcc')
                a(f'v_mov_b32 v{tH}, s{t1}')
                a(f'v_cndmask_b32 v{tH}, v{tH}, 0, vcc')
                a(f'v_lshlrev_b32 v{tG}, 2, v{tG}')
                a(f'v_mad_u32_u24 v{B}, v{nx}, v{tG}, v{tH}')
            a(f's_movk_i32 s{t1}, {VROWB}')
            a(f'v_mov_b32 v{tD}, {L_VIRT}')
            a(f'v_mad_u32_u24 v{V0}, v{tB}, s{t1}, v{tD}')
            a(f'v_mad_u32_u24 v{V1}, v{tC}, s{t1}, v{tD}')
            a(f'v_add_u32 v{tD}, {ROWB}, v{nROW0}')
            for nd, (B, Vv, END, nx) in enumerate(((B0, V0, nEND0, tB), (B1, V1, nEND1, tC))):
                lab = a.newlabel('nosplit')
                a(f'v_lshrrev_b32 v{tG}, {1 if nwq == 8 else 2}, v{nx}')
                a(f'v_cmp_lt_u32 vcc, v{B}, v{END}')
                a(f'v_cmp_eq_u32 s[{sSV}:{sSV+1}], s{sW}, v{tG}')
                a(f's_and_b64 vcc, vcc, s[{sSV}:{sSV+1}]')
                a(f's_cbranch_scc0 {lab}')
                lp = a.newlabel('splitlp')
                a.label(lp)
                a(f's_ff1_i32_b64 s{t0}, vcc')
                a(f's_bitset0_b64 vcc, s{t0}')
                a(f'v_readlane_b32 s{t2}, v{nROW0 if nd == 0 else tD}, s{t0}')
                a(f'v_readlane_b32 s{t3}, v{Vv}, s{t0}')
                a(f'v_lshrrev_b32 v{tG}, 0, v{C4}')
                a('s_mov_b32 exec_hi, 0')
                a(f'v_add_u32 v{tH}, s{t2}, v{tG}')
                a(f'ds_read_b32 v{tI}, v{tH} offset:512')
                a(f'v_add_u32 v{tH}, s{t3}, v{tG}')
                a(f'v_mov_b32 v{tG}, s{t2}')
                a(f'v_mov_b32 v{tA}, s{t3}')
                a(f'ds_write_b32 v{tG}, v{tA} offset:768')
                a('s_waitcnt lgkmcnt(1)')
                a(f'ds_write_b32 v{tH}, v{tI} offset:512')
                a('s_mov_b64 exec, -1')
                a(f's_cmp_lg_u64 vcc, 0')
                a(f's_cbranch_scc1 {lp}')
                a.label(lab)
        a(f's_lshl_b32 s{t0}, s{sW}, 2')
        a(f'v_add_u32 v{tA}, s{t0}, v{nOFF0}')
        a(f'v_add_u32 v{tB}, s{t0}, v{nOFF1}')
        a(f'v_add_u32 v{tC}, {ROWB}, v{nROW0}')
        lp = f'K2_QF{tag}'
        a.label(lp)
        a(f's_add_u32 s{t1}, s{t0}, 4')
        a(f'v_cmp_eq_u32 s[{sSV}:{sSV+1}], s{t1}, v{tE}')
        a(f'v_cmp_eq_u32 s[{sSV2}:{sSV2+1}], s{t1}, v{tF}')
        if split:
            a(f'v_add_u32 v{tG}, 4, v{tA}')
            a(f'v_add_u32 v{tH}, 4, v{tB}')
            a(f'v_cmp_eq_u32 vcc, v{tG}, v{B0}')
            a(f's_or_b64 s[{sSV}:{sSV+1}], s[{sSV}:{sSV+1}], vcc')
            a(f'v_cmp_eq_u32 vcc, v{tH}, v{B1}')
            a(f's_or_b64 s[{sSV2}:{sSV2+1}], s[{sSV2}:{sSV2+1}], vcc')
            a(f'v_cmp_ge_u32 vcc, v{tA}, v{B0}')
            a('s_nop 1')
            a(f'v_cndmask_b32 v{tG}, v{nROW0}, v{V0}, vcc')
            a(f'v_cmp_ge_u32 vcc, v{tB}, v{B1}')
            a('s_nop 1')
            a(f'v_cndmask_b32 v{tH}, v{tC}, v{V1}, vcc')
        else:
            a(f'v_mov_b32 v{tG}, v{nROW0}')
            a(f'v_mov_b32 v{tH}, v{tC}')
        a(f'v_or_b32 v{tD}, 0x80000000, v{tG}')
        a(f'v_or_b32 v{tI}, 0x80000000, v{tH}')
        a(f'v_cmp_lt_u32 vcc, s{t0}, v{tE}')
        a(f'v_cndmask_b32 v{tG}, v{tG}, v{tD}, s[{sSV}:{sSV+1}]')
        a(f'v_cndmask_b32 v{tH}, v{tH}, v{tI}, s[{sSV2}:{sSV2+1}]')
        a(f'v_cmp_lt_u32 s[{sSV}:{sSV+1}], s{t0}, v{tF}')
        a('s_mov_b64 exec, vcc')
        a(f'ds_write_b32 v{tA}, v{tG} offset:{L_QI}')
        a(f's_mov_b64 exec, s[{sSV}:{sSV+1}]')
        a(f'ds_write_b32 v{tB}, v{tH} offset:{L_QI}')
        a('s_mov_b64 exec, -1')
        a(f's_add_u32 s{t0}, s{t0}, {4*nwq}')
        a(f'v_add_u32 v{tA}, {4*nwq}, v{tA}')
        a(f'v_add_u32 v{tB}, {4*nwq}, v{tB}')
        a(f'v_cmp_lt_u32 vcc, s{t0}, v{TR}')
        a(f's_cbranch_vccnz {lp}')
    def scatter():
        a('s_waitcnt lgkmcnt(0)')
        for sl in range(8):
            a(f's_mov_b64 exec, s[{MK+2*sl}:{MK+2*sl+1}]')
            a(f'ds_read_b32 v{AX+sl}, v{REC+2*sl+1} offset:{L_TAB}')
        for sl in range(8):
            a(f's_mov_b64 exec, s[{MK+2*sl}:{MK+2*sl+1}]')
            a('s_waitcnt lgkmcnt(7)')
            a(f'v_lshl_add_u32 v{AX+sl}, v{RK+sl}, 2, v{AX+sl}')
            a(f'ds_write_b32 v{AX+sl}, v{REC+2*sl} offset:{L_ENT}')
        for sl in range(8, 16, 2):
            sk = a.newlabel('sks')
            a(f's_mov_b64 exec, s[{MK+2*sl}:{MK+2*sl+1}]')
            a(f's_cbranch_execz {sk}')
            a(f'ds_read_b32 v{AX+sl}, v{REC+2*sl+1} offset:{L_TAB}')
            a(f's_mov_b64 exec, s[{MK+2*sl+2}:{MK+2*sl+3}]')
            a(f'ds_read_b32 v{AX+sl+1}, v{REC+2*sl+3} offset:{L_TAB}')
            a('s_waitcnt lgkmcnt(0)')
            a(f'v_lshl_add_u32 v{AX+sl+1}, v{RK+sl+1}, 2, v{AX+sl+1}')
            a(f'ds_write_b32 v{AX+sl+1}, v{REC+2*sl+2} offset:{L_ENT}')
            a(f's_mov_b64 exec, s[{MK+2*sl}:{MK+2*sl+1}]')
            a(f'v_lshl_add_u32 v{AX+sl}, v{RK+sl}, 2, v{AX+sl}')
            a(f'ds_write_b32 v{AX+sl}, v{REC+2*sl} offset:{L_ENT}')
            a.label(sk)
        sk = a.newlabel('sksc')
        a(f's_mov_b64 exec, s[{MKC}:{MKC+1}]')
        a(f's_cbranch_execz {sk}')
        a(f'ds_read_b32 v{AX}, v{RC+1} offset:{L_TAB}')
        a(f's_mov_b64 exec, s[{MKC2}:{MKC2+1}]')
        a(f'ds_read_b32 v{AX+1}, v{RC+3} offset:{L_TAB}')
        a('s_waitcnt lgkmcnt(0)')
        a(f'v_lshl_add_u32 v{AX+1}, v{RKC2}, 2, v{AX+1}')
        a(f'ds_write_b32 v{AX+1}, v{RC+2} offset:{L_ENT}')
        a(f's_mov_b64 exec, s[{MKC}:{MKC+1}]')
        a(f'v_lshl_add_u32 v{AX}, v{RKC}, 2, v{AX}')
        a(f'ds_write_b32 v{AX}, v{RC} offset:{L_ENT}')
        a.label(sk)
        a('s_mov_b64 exec, -1')

    def setup_ptrs():
        a(f'v_add_u32 v{tB}, s{sSO}, v{jA}')
        a(f'v_mad_u32_u24 v{tA}, v{sidA}, s{sL}, v{tB}')
        a(f'v_lshlrev_b32 v{pEN}, 4, v{tA}')
        a(f'ds_read_b128 v[{EN}:{EN+3}], v{pEN} offset:{L_ENT}')
        a(f'v_lshlrev_b32 v{pQF}, 2, v{tA}')
        a(f'v_sub_u32 v{pQI}, v{tA}, v{jA}')
        a(f'v_lshlrev_b32 v{pQI}, 2, v{pQI}')
        a(f'v_add_u32 v{pQI}, {L_QI}, v{pQI}')
        a(f'v_mad_u32_u24 v{tA}, v{sidR}, s{sL}, v{tB}')
        a(f'v_lshl_add_u32 v{pEE}, v{tA}, 4, v{iR4}')
        a(f's_mov_b32 m0, s{sDB}')

    def dma_addr():
        return [f'v_mad_u32_u16 v{EN+i}, v{EN+i}, s{s128}, v{CO+i}' for i in range(4)]
    def dma_issue():
        if opts.get('nodma'): return []
        return [f'buffer_load_dwordx4 v{EN+i}, s[{rX}:{rX+3}], 0 offen offset:{1024*i} lds' if i else
                f'buffer_load_dwordx4 v{EN}, s[{rX}:{rX+3}], 0 offen lds' for i in range(4)]

    def main_loop(tag, atomic):
        flush_blocks = []
        PS = [(PP, TT_, ZZ), (PB, TB, ZB)]
        def flush_body(par, j):
            a(f's_bfe_i32 exec_lo, s{sF[par]}, 0x{(1<<16)|(8*j):x}')
            a(f's_bfe_i32 exec_hi, s{sF[par]+1}, 0x{(1<<16)|(8*j):x}')
            a(f'v_add_f32 v{F0}, v{DEN}, v{DEN+1}')
            a(f'v_add_f32 v{F1}, v{NUM}, v{NUM+1}')
            a(f'v_add_f32 v{F2}, v{DEN+2}, v{DEN+3}')
            a(f'v_add_f32 v{F3}, v{NUM+2}, v{NUM+3}')
            a(f'v_mov_b64 v[{DEN}:{DEN+1}], 0')
            a(f'v_mov_b64 v[{NUM}:{NUM+1}], 0')
            if atomic:
                a(f'ds_add_f32 v{QA[par]+j}, v{F0}')
                a(f'ds_add_f32 v{QA[par]+j}, v{F1} offset:256')
                a(f'ds_add_f32 v{QA[par]+j}, v{F2} offset:128')
                a(f'ds_add_f32 v{QA[par]+j}, v{F3} offset:384')
            else:
                a(f'ds_write2_b32 v{QA[par]+j}, v{F0}, v{F1} offset0:0 offset1:64')
                a(f'ds_write2_b32 v{QA[par]+j}, v{F2}, v{F3} offset0:32 offset1:96')
            a(f'v_mov_b64 v[{DEN+2}:{DEN+3}], 0')
            a(f'v_mov_b64 v[{NUM+2}:{NUM+3}], 0')
            a('s_mov_b64 exec, -1')
        def post2(par):
            for j in range(4):
                for cc in range(2):
                    p, t, z = (r + 2*j for r in PS[cc])
                    a(f'v_pk_fma_f32 v[{NUM+2*cc}:{NUM+2*cc+1}], v[{p}:{p+1}], v[{t}:{t+1}], v[{NUM+2*cc}:{NUM+2*cc+1}]')
                    a(f'v_pk_fma_f32 v[{DEN+2*cc}:{DEN+2*cc+1}], v[{p}:{p+1}], v[{z}:{z+1}], v[{DEN+2*cc}:{DEN+2*cc+1}]')
                if opts.get('noflush'): continue
                fl = a.newlabel('fl'); back = a.newlabel('bk')
                a(f's_bitcmp1_b32 s{sANY[par]}, {8*j}')
                a(f's_cbranch_scc1 {fl}')
                a.label(back)
                flush_blocks.append((fl, back, par, j))
        def pre(cur):
            g0 = G_[cur]; h0 = H_[cur]; P_, T_, Z_ = PS[cur]
            for j in range(4):
                g = g0 + 4*j
                a(f'v_pk_fma_f32 v[{g}:{g+1}], v[{g}:{g+1}], s[{sC}:{sC+1}], s[{sC}:{sC+1}] clamp')
                a(f'v_pk_fma_f32 v[{g+2}:{g+3}], v[{g+2}:{g+3}], s[{sC}:{sC+1}], s[{sC}:{sC+1}] clamp')
            for j in range(4):
                g = g0 + 4*j; h = h0 + 4*j
                X = f'v[{g}:{g+1}]'; Y = f'v[{g+2}:{g+3}]'
                p = P_ + 2*j; t = T_ + 2*j; z = Z_ + 2*j
                a(f'v_pk_mul_f32 v[{t}:{t+1}], {Y}, v[{h}:{h+1}]')
                a(f'v_pk_mul_f32 v[{p}:{p+1}], {X}, {Y}')
                a(f'v_pk_add_f32 v[{z}:{z+1}], {X}, {Y}')
                a(f'v_pk_fma_f32 v[{t}:{t+1}], {X}, v[{h+2}:{h+3}], v[{t}:{t+1}]')
        def mfma_list(nxt, cc):
            Gs = f'v[{G_[nxt]}:{G_[nxt]+15}]'; Hs = f'v[{H_[nxt]}:{H_[nxt]+15}]'
            out = []
            for kp in range(4):
                wb = WB + 16*cc + 4*kp; wv = WV + 16*cc + 4*kp; ax = AX + 4*kp
                out.append(f'v_mfma_f32_32x32x16_bf16 {Hs}, v[{ax}:{ax+3}], v[{wv}:{wv+3}], {"0" if kp == 0 else Hs}')
                out.append(f'v_mfma_f32_32x32x16_bf16 {Gs}, v[{ax}:{ax+3}], v[{wb}:{wb+3}], {"0" if kp == 0 else Gs}')
            out.append(f'v_mfma_f32_32x32x16_bf16 {Gs}, v[{AE[cc]}:{AE[cc]+3}], v[{BE}:{BE+3}], {Gs}')
            return out
        def trans_list(cur):
            Pp = PS[cur ^ 1][0]
            return [f'v_rcp_f32 v{Pp+i}, v{Pp+i}' for i in range(8)] + [f'v_exp_f32 v{G_[cur]+i}, v{G_[cur]+i}' for i in range(16)]
        def weave(mf, tr, gaps):
            dist = [3, 3, 3, 3, 3, 3, 2, 2, 2]
            if opts.get('nogaps'): gaps = {}
            if opts.get('nomf'): mf = None
            k = 0
            for m in range(9):
                for ins in gaps.get(('m', m), []): a(ins)
                if mf: a(mf[m])
                for _ in range(dist[m]):
                    a(tr[k])
                    for ins in gaps.get(k, []): a(ins)
                    k += 1
            assert k == len(tr)
        def stage0(par):
            g = {}
            da = dma_addr()
            g[0] = [f'ds_read_b32 v{QF}, v{pQF} offset:{L_QI + 16*(par+1)}']
            g[1] = [f'ds_read_b32 v{EE}, v{pEE} offset:{L_ENT + 64*(par+1)}']
            g[3] = [f'v_and_or_b32 v{BE}, v{R0}, s{sHI}, v{BC+1}']
            g[6] = [da[0]]; g[9] = [da[1]]; g[12] = [da[2]]; g[15] = [da[3]]
            axr = [f'ds_read_b128 v[{AX+4*kp}:{AX+4*kp+3}], v{RA+kp}' for kp in range(4)]
            early = opts.get('axearly', 0)
            if early:
                for kp, gp in enumerate(opts.get('axgaps', (8, 11, 17, 21))):
                    g.setdefault(gp, [])
                    g[gp] = g[gp] + ((['s_waitcnt vmcnt(0)'] if kp == 0 else []) + [axr[kp]])
            weave(mfma_list(1, 1), trans_list(0), g)
            axpre = opts.get('axpre', 1)
            if axpre and not early and not opts.get('nogaps'):
                a('s_waitcnt vmcnt(0)')
                for ins in axr: a(ins)
            post2(par ^ 1)
            qn = QA[par ^ 1]
            if not opts.get('nogaps'):
                a(f'ds_read_b128 v[{qn}:{qn+3}], v{pQI} offset:{16*(par+1)}')
                if not early and not axpre:
                    a('s_waitcnt vmcnt(0)')
                    for ins in axr: a(ins)
            pre(0)
            a(f's_sub_u32 s{sCNT}, s{sCNT}, 1')
        def stage1(par):
            qn = QA[par ^ 1]
            g = {}
            di = dma_issue()
            g[('m', 0)] = ['s_waitcnt lgkmcnt(0)']
            dg = opts.get('dmag', 0)
            dd = {0: (0, 1, 2, 3), 1: (8, 10, 12, 14), 2: (6, 8, 10, 12), 3: (12, 14, 16, 18)}[dg]
            g[0] = [f'v_mad_u32_u24 v{qn}, v{qn}, 1, v{C4}']
            g[1] = [f'v_mad_u32_u24 v{qn+1}, v{qn+1}, 1, v{C4}']
            g[2] = [f'ds_read_b32 v{R0}, v{qn} offset:512']
            g[3] = [f'v_mad_u32_u24 v{qn+2}, v{qn+2}, 1, v{C4}', f'ds_read_b32 v{BE+1}, v{qn+1} offset:512']
            g[4] = [f'v_mad_u32_u24 v{qn+3}, v{qn+3}, 1, v{C4}', f'ds_read_b32 v{BE+2}, v{qn+2} offset:512']
            g[5] = [f'ds_read_b32 v{BE+3}, v{qn+3} offset:512']
            g[7] = [f'v_perm_b32 v{AE[0]}, v{EE}, v{AE[0]}, v{SEL[0]}']
            g[9] = [f'v_perm_b32 v{AE[1]}, v{EE}, v{AE[1]}, v{SEL[1]}']
            g[11] = [f'v_cmp_gt_i32 s[{sF[par^1]}:{sF[par^1]+1}], 0, v{QF}']
            if par == 1:
                g[13] = [f'v_add_u32 v{pQI}, 32, v{pQI}']
                g[14] = [f'v_add_u32 v{pQF}, 32, v{pQF}']
                g[15] = [f'v_add_u32 v{pEE}, 128, v{pEE}']
                g[16] = [f'v_add_u32 v{pEN}, 128, v{pEN}']
            g[17] = [f's_or_b32 s{sANY[par^1]}, s{sF[par^1]}, s{sF[par^1]+1}'] if not opts.get('noany') else [f's_mov_b32 s{sANY[par^1]}, 0']
            g[19] = ['s_waitcnt lgkmcnt(%d)' % (1 if dd[3] >= 18 else 0), f'v_and_or_b32 v{BE}, v{R0}, s{sLO}, v{BC}']
            for i_, gp in enumerate(dd):
                if di: g[gp] = g.get(gp, []) + [di[i_]]
            en_gap = max(dd[3] + 1, 6)
            en_rd = f'ds_read_b128 v[{EN}:{EN+3}], v{pEN} offset:{L_ENT + 64*(par+3)}'
            if en_gap >= 19:
                g[20] = g.get(20, []) + [en_rd]
            else:
                g[en_gap] = g.get(en_gap, []) + [en_rd]
            if par == 1:
                pass
            weave(mfma_list(0, 0), trans_list(1), g)
            pre(1)
        def last_stage1(par):
            weave(None, trans_list(1), {})
            pre(1)
            for i in range(8):
                a(f'v_rcp_f32 v{PB+i}, v{PB+i}')
            a('s_nop 0')
            post2(par)
        L0 = f'K2_T0{tag}'; E0 = f'K2_E0{tag}'; E1 = f'K2_E1{tag}'; DONE = f'K2_MD{tag}'
        PR = opts.get('prio', 1)
        if PR:
            a(f's_add_u32 s{t0}, s{sCNT}, 1')
            a(f's_mul_i32 s{t0}, s{t0}, {opts.get("pfrac", 20)}')
            a(f's_lshr_b32 s{t0}, s{t0}, 6')
            a(f's_lshl_b32 s{t0}, s{t0}, 1')
            a(f's_sub_u32 s{sSWAP}, s{sCNT}, s{t0}')
            a(f's_cmp_ge_u32 s{sW}, 4')
            a(f's_cbranch_scc0 K2_PR0{tag}')
            a('s_setprio 1')
            a.label(f'K2_PR0{tag}')
        if PR == 3:
            a(f's_cmp_ge_u32 s{sW}, 4')
            a(f's_cselect_b32 s{sSWAP}, 1, 0')
        a.label(L0)
        if PR == 3:
            a(f's_xor_b32 s{sSWAP}, s{sSWAP}, 1')
            a(f's_cbranch_scc1 K2_PH{tag}')
            a('s_setprio 0')
            a(f's_branch K2_PD{tag}')
            a.label(f'K2_PH{tag}')
            a('s_setprio 1')
            a.label(f'K2_PD{tag}')
        elif PR:
            a(f's_cmp_eq_u32 s{sCNT}, s{sSWAP}')
            a(f's_cbranch_scc1 K2_SWP{tag}')
            a.label(f'K2_SWB{tag}')
        stage0(0)
        a(f's_cbranch_scc1 {E0}')
        stage1(0)
        stage0(1)
        a(f's_cbranch_scc1 {E1}')
        stage1(1)
        a(f's_branch {L0}')
        a.label(E0)
        last_stage1(0)
        a(f's_branch {DONE}')
        a.label(E1)
        last_stage1(1)
        a(f's_branch {DONE}')
        if PR and PR != 3:
            a.label(f'K2_SWP{tag}')
            a(f's_cmp_ge_u32 s{sW}, 4')
            a(f's_cbranch_scc1 K2_SW0{tag}')
            a('s_setprio 1')
            a(f's_branch K2_SWB{tag}')
            a.label(f'K2_SW0{tag}')
            a('s_setprio 0')
            a(f's_branch K2_SWB{tag}')
        for (fl, back, par, j) in flush_blocks:
            a.label(fl)
            flush_body(par, j)
            a(f's_branch {back}')
        a.label(DONE)
        if PR: a('s_setprio 0')

    def pipeline_fill():
        q0 = QA[0]
        a(f'ds_read_b128 v[{q0}:{q0+3}], v{pQI}')
        a(f'ds_read_b32 v{QF}, v{pQF} offset:{L_QI}')
        a(f'ds_read_b32 v{EE}, v{pEE} offset:{L_ENT}')
        a(f'ds_read_b128 v[{EN}:{EN+3}], v{pEN} offset:{L_ENT + 64}')
        for i in range(2):
            a(f'v_mov_b64 v[{DEN+2*i}:{DEN+2*i+1}], 0')
            a(f'v_mov_b64 v[{NUM+2*i}:{NUM+2*i+1}], 0')
        for i in range(8):
            a(f'v_mov_b32 v{PP+i}, 1.0')
            a(f'v_mov_b32 v{PB+i}, 1.0')
        for i in range(4):
            a(f'v_mov_b64 v[{TT_+2*i}:{TT_+2*i+1}], 0')
            a(f'v_mov_b64 v[{ZZ+2*i}:{ZZ+2*i+1}], 0')
            a(f'v_mov_b64 v[{TB+2*i}:{TB+2*i+1}], 0')
            a(f'v_mov_b64 v[{ZB+2*i}:{ZB+2*i+1}], 0')
        a(f's_mov_b32 s{sANY[1]}, 0')
        a('s_waitcnt lgkmcnt(0)')
        for q in range(4):
            a(f'v_mad_u32_u24 v{q0+q}, v{q0+q}, 1, v{C4}')
        a(f'ds_read_b32 v{R0}, v{q0} offset:512')
        for q in range(1, 4):
            a(f'ds_read_b32 v{BE+q}, v{q0+q} offset:512')
        a(f'v_perm_b32 v{AE[0]}, v{EE}, v{AE[0]}, v{SEL[0]}')
        a(f'v_perm_b32 v{AE[1]}, v{EE}, v{AE[1]}, v{SEL[1]}')
        a(f'v_cmp_gt_i32 s[{sF[0]}:{sF[0]+1}], 0, v{QF}')
        for ins in dma_addr(): a(ins)
        stamp(21)
        a('s_waitcnt vmcnt(0)')
        stamp(22)
        for kp in range(4):
            a(f'ds_read_b128 v[{AX+4*kp}:{AX+4*kp+3}], v{RA+kp}')
        a(f's_or_b32 s{sANY[0]}, s{sF[0]}, s{sF[0]+1}')
        a('s_waitcnt lgkmcnt(0)')
        a(f'v_and_or_b32 v{BE}, v{R0}, s{sLO}, v{BC}')
        for ins in dma_issue(): a(ins)
        a(f'ds_read_b128 v[{EN}:{EN+3}], v{pEN} offset:{L_ENT + 128}')
        Gs = f'v[{GA}:{GA+15}]'; Hs = f'v[{HA}:{HA+15}]'
        for kp in range(4):
            a(f'v_mfma_f32_32x32x16_bf16 {Hs}, v[{AX+4*kp}:{AX+4*kp+3}], v[{WV+4*kp}:{WV+4*kp+3}], {"0" if kp == 0 else Hs}')
            a(f'v_mfma_f32_32x32x16_bf16 {Gs}, v[{AX+4*kp}:{AX+4*kp+3}], v[{WB+4*kp}:{WB+4*kp+3}], {"0" if kp == 0 else Gs}')
        a(f'v_mfma_f32_32x32x16_bf16 {Gs}, v[{AE[0]}:{AE[0]+3}], v[{BE}:{BE+3}], {Gs}')
        a('s_waitcnt lgkmcnt(0)')
        a('s_nop 7')
        a('s_nop 3')
    def forced_flags():
        a(f's_sub_u32 s{t1}, s{sL}, 1')
        a(f's_lshl_b32 s{t1}, s{t1}, 2')
        a(f'v_add_u32 v{tB}, s{t1}, v{pQI}')
        a(f'v_mov_b32 v{tA}, 0x80000000')
        a('s_mov_b32 exec_lo, 1')
        a('s_mov_b32 exec_hi, 1')
        a(f'ds_or_b32 v{tB}, v{tA}')
        a('s_mov_b64 exec, -1')

    stamp(2)
    a(f's_mov_b64 exec, s[{sSV2}:{sSV2+1}]')
    a(f'v_mov_b32 v{tD}, {L_CNT + 127*4}')
    a(f'v_mov_b32 v{tE}, 1')
    a(f'ds_write_b32 v{tD}, v{tE}')
    a('s_mov_b64 exec, -1')
    gemm_issue()
    stamp(28)
    gemm_mid()
    gemm_mid2()
    stamp(29)
    a(f's_cmp_lg_u32 s{sW}, 0')
    a('s_cbranch_scc1 K2_NOCI')
    a(f'v_mul_u32_u24 v{tA}, {2*ROWB}, v{vLANE}')
    a(f'v_mov_b32 v{tB}, {L_ZERO}')
    a(f'v_add_u32 v{tA}, {L_ACC}, v{tA}')
    a(f's_mov_b32 exec_hi, {(1 << (MAXN // 2 - 32)) - 1}')
    a(f'ds_write_b32 v{tA}, v{tB} offset:768')
    a(f'ds_write_b32 v{tA}, v{tB} offset:{768 + ROWB}')
    a('s_mov_b64 exec, -1')
    a.label('K2_NOCI')
    gemm_store('F')
    if opts.get('wearly', 0) == 1:
        w_frags()
        consts()
    elif opts.get('wearly', 0) == 2:
        a(f's_cmp_ge_u32 s{sW}, 4')
        a('s_cbranch_scc1 K2_WE0')
        w_frags()
        consts()
        a.label('K2_WE0')
    stamp(3)
    a('s_waitcnt vmcnt(0) lgkmcnt(0)')
    stamp(23)
    hist()
    a('s_waitcnt lgkmcnt(0)')
    stamp(24)
    if opts.get('proprio') == 1: a('s_setprio 0')
    a('s_barrier')
    stamp(4)
    scan_nodes('F')
    a(f'v_readlane_b32 s{t0}, v{TQ+1}, 63')
    a(f's_cmp_eq_u32 s{sLB}, 0')
    a(f's_cselect_b32 s{t1}, s{sLA}, s{sLB}')
    a(f's_lshl_b32 s{t1}, s{t1}, 2')
    a(f'v_cmp_lt_u32 vcc, s{t1}, v{tB}')
    a(f's_cmp_lg_u32 s{t0}, 0')
    a('s_cbranch_scc1 K2_SLOW')
    a(f's_add_u32 s{t1}, s{sLA}, s{sLB}')
    a(f's_cmp_gt_u32 s{t1}, {(ENT_QUADS - 8) // 8}')
    a('s_cbranch_scc1 K2_SLOW')
    a('s_cbranch_vccnz K2_SLOW')
    stamp(15)
    scatter()
    stamp(16)
    a('s_waitcnt lgkmcnt(0)')
    a('s_barrier')
    stamp(5)
    a(f's_cmp_eq_u32 s{sL}, 0')
    a('s_cbranch_scc1 K2_NOL')
    setup_ptrs()
    a('s_waitcnt lgkmcnt(0)')
    for ins in dma_addr(): a(ins)
    for ins in dma_issue(): a(ins)
    a.label('K2_NOL')
    stamp(17)
    if opts.get('qi4', 0):
        a(f's_cmp_ge_u32 s{sW}, 4')
        a('s_cbranch_scc1 K2_QIDONE')
    a(f'v_cmp_gt_u32 vcc, {MAXN // 2}, v{vLANE}')
    a(f'v_lshl_or_b32 v{tB}, v{vLANE}, 1, 1')
    a(f'v_cmp_le_u32 s[{sSV}:{sSV+1}], s{sNN}, v{tB}')
    a(f'v_mov_b32 v{tC}, 1')
    a('s_nop 0')
    a(f'v_cndmask_b32 v{tB}, v{TQ+1}, v{tC}, s[{sSV}:{sSV+1}]')
    a(f'v_min_u32 v{tB}, v{TQ}, v{tB}')
    a(f'v_cmp_eq_u32 s[{sSV}:{sSV+1}], 0, v{tB}')
    a(f's_and_b64 s[{sSV}:{sSV+1}], s[{sSV}:{sSV+1}], vcc')
    a('s_cbranch_scc1 K2_ZROWS')
    a.label('K2_ZBACK')
    if opts.get('qi4', 0):
        qi_fill('F', True, 4)
        a.label('K2_QIDONE')
    else:
        qi_fill('F', True)
    stamp(18)
    if opts.get('wearly', 0) == 0:
        w_frags()
        consts()
    elif opts.get('wearly', 0) == 2:
        a(f's_cmp_lt_u32 s{sW}, 4')
        a('s_cbranch_scc1 K2_WE1')
        w_frags()
        consts()
        a.label('K2_WE1')
    a('s_waitcnt lgkmcnt(0)')
    stamp(19)
    if opts.get('proprio') == 2: a('s_setprio 0')
    a('s_barrier')
    stamp(20)
    a(f's_cmp_eq_u32 s{sL}, 0')
    a('s_cbranch_scc1 K2_EPI')
    pipeline_fill()
    stamp(6)
    if opts.get('dbgtime'):
        a(f's_memrealtime s[{t2}:{t3}]')
        a('s_waitcnt lgkmcnt(0)')
        a(f's_mov_b32 s{sT1}, s{t2}')
    if STAMP:
        a(f's_memrealtime s[{t2}:{t3}]')
        a('s_waitcnt lgkmcnt(0)')
        a(f'v_writelane_b32 v{vST}, s{t2}, 13')
    if opts.get('half'):
        a(f's_cmp_ge_u32 s{sW}, 4')
        a('s_cbranch_scc1 K2_MDF')
    main_loop('F', False)
    stamp(7)
    if opts.get('dbgtime'):
        a(f's_memrealtime s[{t2}:{t3}]')
        a('s_waitcnt lgkmcnt(0)')
        a(f's_mov_b32 s{sT2}, s{t2}')
    if STAMP:
        a(f's_memrealtime s[{t2}:{t3}]')
        a('s_waitcnt lgkmcnt(0)')
        a(f'v_writelane_b32 v{vST}, s{t2}, 14')
    a.label('K2_EPI')
    e0 = 4
    XV = [e0, e0 + 4]; UU = [e0 + 8, e0 + 16]
    DN = [e0 + 24, e0 + 56]; NM = [e0 + 32, e0 + 64]; CD = [e0 + 40, e0 + 72]; CN = [e0 + 48, e0 + 80]
    O = e0 + 88; ADR = [e0 + 96, e0 + 97]; GO = [e0 + 98, e0 + 99]; CP = [e0 + 100, e0 + 101]; OC = [e0 + 102, e0 + 103]
    T1 = e0 + 104; ND = e0 + 105; USEL = e0 + 106; UA = [e0 + 107, e0 + 108]
    def epi_addr(r):
        a(f'v_add_u32 v{T1}, {512*r}, v0') if r else a(f'v_mov_b32 v{T1}, v0')
        a(f'v_lshrrev_b32 v{ND}, 3, v{T1}')
        a(f'v_and_b32 v{T1}, 7, v{T1}')
        a(f'v_lshlrev_b32 v{OC[r]}, 5, v{T1}')
        a(f'v_mul_u32_u24 v{CP[r]}, s{t0}, v{ND}')
        a(f'v_add_u32 v{CP[r]}, {L_ACC}, v{CP[r]}')
        a(f'v_add_u32 v{ADR[r]}, v{CP[r]}, v{OC[r]}')
        a(f'v_and_b32 v{UA[r]}, 3, v{T1}')
        a(f'v_lshl_add_u32 v{UA[r]}, v{UA[r]}, 5, v{CP[r]}')
        a(f'v_add_u32 v{GO[r]}, s{sNS}, v{ND}')
        a(f'v_lshlrev_b32 v{GO[r]}, 7, v{GO[r]}')
        a(f'v_lshl_add_u32 v{GO[r]}, v{T1}, 4, v{GO[r]}')
    def epi_static(r, carry):
        a(f'buffer_load_dwordx4 v[{XV[r]}:{XV[r]+3}], v{GO[r]}, s[{rF}:{rF+3}], 0 offen')
        a(f'ds_read_b128 v[{UU[r]}:{UU[r]+3}], v{UA[r]} offset:640')
        a(f'ds_read_b128 v[{UU[r]+4}:{UU[r]+7}], v{UA[r]} offset:656')
        if carry: a(f'ds_read_b32 v{CP[r]}, v{CP[r]} offset:768')
    def epi_reads(r, carry):
        ad = ADR[r]
        a(f'ds_read_b128 v[{DN[r]}:{DN[r]+3}], v{ad}')
        a(f'ds_read_b128 v[{DN[r]+4}:{DN[r]+7}], v{ad} offset:16')
        a(f'ds_read_b128 v[{NM[r]}:{NM[r]+3}], v{ad} offset:256')
        a(f'ds_read_b128 v[{NM[r]+4}:{NM[r]+7}], v{ad} offset:272')
        if carry:
            a(f'ds_read_b128 v[{CD[r]}:{CD[r]+3}], v{CP[r]}')
            a(f'ds_read_b128 v[{CD[r]+4}:{CD[r]+7}], v{CP[r]} offset:16')
            a(f'ds_read_b128 v[{CN[r]}:{CN[r]+3}], v{CP[r]} offset:256')
            if r == 1: a('s_waitcnt lgkmcnt(14)')
            a(f'ds_read_b128 v[{CN[r]+4}:{CN[r]+7}], v{CP[r]} offset:272')
    def epi_math(r, carry):
        dn, nm, cd, cn, uu, xv = DN[r], NM[r], CD[r], CN[r], UU[r], XV[r]
        if carry:
            for i in range(0, 8, 2):
                a(f'v_pk_add_f32 v[{dn+i}:{dn+i+1}], v[{dn+i}:{dn+i+1}], v[{cd+i}:{cd+i+1}]')
                a(f'v_pk_add_f32 v[{nm+i}:{nm+i+1}], v[{nm+i}:{nm+i+1}], v[{cn+i}:{cn+i+1}]')
        for i in range(0, 8, 2):
            a(f'v_pk_add_f32 v[{dn+i}:{dn+i+1}], v[{dn+i}:{dn+i+1}], s[{sC}:{sC+1}]')
        for i in range(8):
            a(f'v_rcp_f32 v{dn+i}, v{dn+i}')
        for i in range(8):
            a(f'v_perm_b32 v{cd+i}, v{uu+i}, v{uu+i}, v{USEL}')
        for i in range(0, 8, 2):
            a(f'v_pk_fma_f32 v[{nm+i}:{nm+i+1}], v[{nm+i}:{nm+i+1}], v[{dn+i}:{dn+i+1}], v[{cd+i}:{cd+i+1}]')
        for i in range(8):
            a(f'v_max_f32 v{nm+i}, 0, v{nm+i}')
        for i in range(4):
            a(f'v_lshlrev_b32 v{cd+2*i}, 16, v{xv+i}')
            a(f'v_and_b32 v{cd+2*i+1}, s{sHI}, v{xv+i}')
        for i in range(0, 8, 2):
            a(f'v_pk_add_f32 v[{nm+i}:{nm+i+1}], v[{nm+i}:{nm+i+1}], v[{cd+i}:{cd+i+1}]')
        for i in range(4):
            a(f'v_cvt_pk_bf16_f32 v{O+4*r+i}, v{nm+2*i}, v{nm+2*i+1}')
        osf = {0: '', 1: ' sc1', 2: ' nt', 3: ' sc0 sc1'}[opts.get('outst', 1)]
        a(f'buffer_store_dwordx4 v[{O+4*r}:{O+4*r+3}], v{GO[r]}, s[{rO}:{rO+3}], 0 offen' + osf)
    def epilogue(tag, carry):
        srd(a, rO, sOUT, N * 128)
        srd(a, rF, sX, N * 128)
        a(f's_mov_b32 s{t0}, {ROWB}')
        a(f's_mov_b32 s{sC}, 0x{EPS_SCALED:x}')
        a(f's_mov_b32 s{sC+1}, 0x{EPS_SCALED:x}')
        a(f's_mov_b32 s{sHI}, 0xffff0000')
        a('s_waitcnt vmcnt(0)')
        a(f'v_and_b32 v{T1}, 4, v0')
        a(f'v_cmp_eq_u32 vcc, 0, v{T1}')
        a(f'v_mov_b32 v{USEL}, 0x03020c0c')
        a(f'v_mov_b32 v{ND}, 0x01000c0c')
        a(f'v_cndmask_b32 v{USEL}, v{USEL}, v{ND}, vcc')
        epi_addr(0)
        epi_static(0, carry)
        epi_addr(1)
        a(f'v_cmp_gt_u32 s[{sSV}:{sSV+1}], s{sNN}, v{ND}')
        a('s_nop 3')
        a(f's_mov_b64 exec, s[{sSV}:{sSV+1}]')
        a(f's_cbranch_execz K2_NS2{tag}')
        epi_static(1, carry)
        a.label(f'K2_NS2{tag}')
        a('s_mov_b64 exec, -1')
        if opts.get('otouch', 1):
            a('s_mov_b64 exec, 1')
            a(f'buffer_load_dword v{T1}, v{GO[0]}, s[{rO}:{rO+3}], 0 offen')
            a('s_mov_b64 exec, -1')
        a('s_waitcnt lgkmcnt(0)')
        if carry:
            a(f'v_add_u32 v{CP[0]}, v{CP[0]}, v{OC[0]}')
            a(f'v_add_u32 v{CP[1]}, v{CP[1]}, v{OC[1]}')
        a('s_barrier')
        if STAMP and tag == 'F': stamp(8)
        epi_reads(0, carry)
        a(f's_mov_b64 exec, s[{sSV}:{sSV+1}]')
        a(f's_cbranch_execz K2_ONE{tag}')
        epi_reads(1, carry)
        a('s_mov_b64 exec, -1')
        a(f's_waitcnt vmcnt({1 if opts.get("otouch", 1) else 0}) lgkmcnt({8 if carry else 4})')
        epi_math(0, carry)
        a(f's_mov_b64 exec, s[{sSV}:{sSV+1}]')
        a('s_waitcnt lgkmcnt(0)')
        epi_math(1, carry)
        a(f's_branch K2_FIN{tag}')
        a.label(f'K2_ONE{tag}')
        a('s_mov_b64 exec, -1')
        a(f's_waitcnt vmcnt({1 if opts.get("otouch", 1) else 0}) lgkmcnt(0)')
        epi_math(0, carry)
        a.label(f'K2_FIN{tag}')
        if opts.get('endwait', 1): a('s_waitcnt vmcnt(0)')
    epilogue('F', True)
    if opts.get('dbgtime'):
        a('s_mov_b64 exec, -1')
        a('s_waitcnt vmcnt(0)')
        a(f's_memrealtime s[{t2}:{t3}]')
        a(f's_cmp_lg_u32 s{sW}, 7')
        a('s_cbranch_scc1 K2_DBGX')
        a('s_and_b32 s3, s2, 31')
        a('s_cmp_lg_u32 s3, 0')
        a('s_cbranch_scc1 K2_DBGX')
        a('s_lshr_b32 s3, s2, 5')
        a('s_cmp_ge_u32 s3, 2')
        a('s_cbranch_scc1 K2_DBGX')
        a(f's_lshl_b32 s{t0}, s3, 2')
        a(f's_add_u32 s{t0}, s{t0}, 0x1200000')
        a(f'v_mov_b32 v4, s{t0}')
        a(f'global_load_dword v5, v4, s[{sWS}:{sWS+1}]')
        a(f'global_load_dword v6, v4, s[{sWS}:{sWS+1}] offset:256')
        a('s_waitcnt vmcnt(0) lgkmcnt(0)')
        a(f'v_sub_u32 v8, v6, v5')
        a(f'v_sub_u32 v9, s{sT0}, v5')
        a(f'v_sub_u32 v10, s{sT1}, v5')
        a(f'v_sub_u32 v11, s{sT2}, v5')
        a(f'v_sub_u32 v12, s{t2}, v5')
        a('s_lshl_b32 s3, s3, 5')
        a('v_mov_b32 v4, s3')
        a('s_mov_b64 exec, 1')
        a(f'global_store_dwordx4 v4, v[8:11], s[{sDBG}:{sDBG+1}]')
        a(f'global_store_dword v4, v12, s[{sDBG}:{sDBG+1}] offset:16')
        a.label('K2_DBGX')
    if STAMP:
        a('s_mov_b64 exec, -1')
        a('s_waitcnt vmcnt(0)')
        stamp(9)
        a(f's_memrealtime s[{t2}:{t3}]')
        a('s_waitcnt lgkmcnt(0)')
        a(f'v_writelane_b32 v{vST}, s{t2}, 12')
        a(f's_mul_i32 s{t0}, s2, {NW}')
        a(f's_add_u32 s{t0}, s{t0}, s{sW}')
        a(f's_lshl_b32 s{t0}, s{t0}, 8')
        a(f's_add_u32 s{t0}, s{t0}, 0x1000000')
        srd_off(a, rT, sWS, f's{t0}', 256)
        a(f'v_writelane_b32 v{vST}, s{sL}, 10')
        a(f'v_lshlrev_b32 v4, 2, v{vLANE}')
        a(f'buffer_store_dword v{vST}, v4, s[{rT}:{rT+3}], 0 offen')
    a('s_endpgm')
    a.label('K2_CSEL')
    a(f'v_mov_b32 v{tD}, 0')
    a(f'v_mov_b32 v{tE}, 0')
    a(f'v_mov_b32 v{tF}, 0')
    for it in range(4):
        a(f'v_lshrrev_b32 v{tG}, 24, v{SG+it}')
        a(f'v_cmp_lt_u32 vcc, 32, v{tG}')
        a(f'v_mad_u32_u24 v{tJ}, v{SG+it}, 8, v{tB}')
        a(f'v_add_u32 v{RKC}, 1, v{tF}')
        a(f'v_cndmask_b32 v{tD}, v{tD}, v{tJ}, vcc')
        a(f'v_cndmask_b32 v{tE}, v{tE}, v{tG}, vcc')
        a(f'v_cndmask_b32 v{tF}, v{tF}, v{RKC}, vcc')
    a(f'v_cmp_lt_u32 vcc, 1, v{tF}')
    a(f'v_cmp_lt_u32 s[{sSV2}:{sSV2+1}], 48, v{tE}')
    a(f'v_add_u32 v{tG}, 32, v{tC}')
    a(f's_or_b64 s[{sSV2}:{sSV2+1}], s[{sSV2}:{sSV2+1}], vcc')
    a(f'v_cmp_gt_u32 s[{MKC}:{MKC+1}], v{tE}, v{tG}')
    a(f'v_add_u32 v{tG}, 33, v{tC}')
    a(f'v_cmp_gt_u32 s[{MKC2}:{MKC2+1}], v{tE}, v{tG}')
    a('s_nop 0')
    a(f's_mov_b64 exec, s[{MKC}:{MKC+1}]')
    a(f'buffer_load_dwordx4 v[{RC}:{RC+3}], v{tD}, s[{rR}:{rR+3}], 0 offen offset:256')
    a('s_mov_b64 exec, -1')
    a('s_branch K2_CBACK')
    a.label('K2_ZROWS')
    a(f's_mov_b64 exec, s[{sSV}:{sSV+1}]')
    for i in range(4):
        a(f'v_mov_b32 v{TR+i}, 0')
    for nd in range(2):
        a(f'v_cmp_eq_u32 vcc, 0, v{TQ+nd}')
        a(f's_and_b64 exec, vcc, s[{sSV}:{sSV+1}]')
        for k in range(32):
            a(f'ds_write_b128 v{nROW0}, v[{TR}:{TR+3}] offset:{nd*ROWB + 16*k}')
        a(f's_mov_b64 exec, s[{sSV}:{sSV+1}]')
    a('s_mov_b64 exec, -1')
    a('s_branch K2_ZBACK')

    a.label('K2_SLOW')
    if opts.get('wearly', 0) == 0:
        w_frags()
        consts()
    elif opts.get('wearly', 0) == 2:
        a(f's_cmp_lt_u32 s{sW}, 4')
        a('s_cbranch_scc1 K2_WE2')
        w_frags()
        consts()
        a.label('K2_WE2')
    a('s_waitcnt vmcnt(0) lgkmcnt(0)')
    a('s_barrier')
    def full_counts(c0reg):
        a(f's_lshl_b32 s{t1}, s2, 2')
        a(f's_add_u32 s{t1}, s{t1}, {WS_TAB}')
        srd_off(a, rT, sWS, f's{t1}', 256 * 1024 + 64)
        a(f'v_lshlrev_b32 v{tG}, 10, v{c0reg}')
        for i in range(4):
            a(f'buffer_load_dword v{SG+i}, v{tG}, s[{rT}:{rT+3}], 0 offen offset:{1024*i}')
        a(f'v_add_u32 v{tG}, 4, v{tG}')
        for i in range(4):
            a(f'buffer_load_dword v{TQ+i}, v{tG}, s[{rT}:{rT+3}], 0 offen offset:{1024*i}')
        a(f's_mov_b32 s{t0}, 0xfffff')
        a(f's_cmp_eq_u32 s2, 255')
        a(f's_cselect_b64 s[{sSV}:{sSV+1}], -1, 0')
        a('s_waitcnt vmcnt(0)')
        for i in range(4):
            a(f'v_add_u32 v{tG}, {i+1}, v{c0reg}')
            a(f'v_mul_u32_u24 v{tG}, {CH}, v{tG}')
            a(f'v_min_u32 v{tG}, {E}, v{tG}')
            a(f'v_and_b32 v{TQ+i}, s{t0}, v{TQ+i}')
            a(f'v_cndmask_b32 v{TQ+i}, v{TQ+i}, v{tG}, s[{sSV}:{sSV+1}]')
            a(f'v_and_b32 v{tG}, s{t0}, v{SG+i}')
            a(f'v_sub_u32 v{TQ+i}, v{TQ+i}, v{tG}')
    a(f'v_lshlrev_b32 v{tB}, 2, v{vLANE}')
    full_counts(tB)
    a(f'v_max_u32 v{tE}, v{TQ}, v{TQ+1}')
    a(f'v_max3_u32 v{tE}, v{tE}, v{TQ+2}, v{TQ+3}')
    wave_scan(a, 'v_max_u32', tE)
    a('s_nop 0')
    a(f'v_readlane_b32 s{t1}, v{tE}, 63')
    a(f's_add_u32 s{t1}, s{t1}, {WSLOW-1}')
    a(f's_mul_i32 s{t1}, s{t1}, 5042')
    a(f's_lshr_b32 s{sNP}, s{t1}, 16')
    a(f's_mov_b32 s{sP}, 0')
    for i in range(4):
        a(f'v_mov_b32 v{TR+i}, 0')
    a(f'v_lshrrev_b32 v{tA}, 5, v0')
    a(f'v_mul_u32_u24 v{tA}, {ROWB}, v{tA}')
    a(f'v_and_b32 v{tB}, 31, v{vLANE}')
    a(f'v_lshl_add_u32 v{tA}, v{tB}, 4, v{tA}')
    a(f'v_add_u32 v{tA}, {L_ACC}, v{tA}')
    for i in range(6):
        a(f'ds_write_b128 v{tA}, v[{TR}:{TR+3}]')
        a(f'v_add_u32 v{tA}, {16*ROWB}, v{tA}')
    a(f'v_cmp_gt_u32 vcc, 64, v0')
    a(f's_and_saveexec_b64 s[{sSV}:{sSV+1}], vcc')
    a(f'ds_write_b128 v{tA}, v[{TR}:{TR+3}]')
    a(f's_mov_b64 exec, s[{sSV}:{sSV+1}]')
    a.label('K2_SPASS')
    a(f's_lshl_b32 s{t0}, s{sW}, 1')
    a(f'v_lshrrev_b32 v{sidA}, 5, v{vLANE}')
    a(f'v_add_u32 v{sidA}, s{t0}, v{sidA}')
    a(f'v_bfe_u32 v{jA}, v{vLANE}, 3, 2')
    a(f'v_bfe_u32 v{sidR}, v{vLANE}, 2, 1')
    a(f'v_add_u32 v{sidR}, s{t0}, v{sidR}')
    a(f'v_and_b32 v{iR4}, 3, v{vLANE}')
    a(f'v_lshlrev_b32 v{iR4}, 2, v{iR4}')
    a(f'v_lshrrev_b32 v{tA}, 3, v{vLANE}')
    a(f'v_lshlrev_b32 v{tA}, 2, v{tA}')
    a(f's_lshl_b32 s{t0}, s{sW}, 5')
    a(f'v_add_u32 v{tA}, s{t0}, v{tA}')
    full_counts(tA)
    for i in range(4):
        a(f'v_mov_b32 v{AX+i}, v{TQ+i}')
    a(f'v_and_b32 v{tC}, 7, v{vLANE}')
    a(f'v_lshlrev_b32 v{tC}, 1, v{tC}')
    a(f's_mul_i32 s{t0}, s{sP}, {WSLOW}')
    a(f'v_add_u32 v{tB}, s{t0}, v{tC}')
    a(f'v_lshlrev_b32 v{tB}, 3, v{tB}')
    a(f'v_mov_b32 v{tF}, 0x10000')
    a(f's_mov_b64 s[{MKC}:{MKC+1}], 0')
    a(f's_mov_b64 s[{MKC2}:{MKC2+1}], 0')
    for sub in range(2):
        a(f'v_add_u32 v{tD}, {sub}, v{tC}')
        a(f'v_cmp_gt_u32 vcc, {WSLOW}, v{tD}')
        a(f'v_add_u32 v{tD}, s{t0}, v{tD}')
        a('s_nop 0')
        a(f'v_cndmask_b32 v{tE if sub == 0 else tG}, v{tF}, v{tD}, vcc')
    for it in range(4):
        a(f'v_cmp_gt_u32 s[{MK+4*it}:{MK+4*it+1}], v{AX+it}, v{tE}')
        a(f'v_cmp_gt_u32 s[{MK+4*it+2}:{MK+4*it+3}], v{AX+it}, v{tG}')
    for sl in range(8, 16):
        a(f's_mov_b64 s[{MK+2*sl}:{MK+2*sl+1}], 0')
    rec_loads(tB, 1)
    lds_init()
    a('s_waitcnt vmcnt(0) lgkmcnt(0)')
    a('s_barrier')
    hist()
    a('s_waitcnt lgkmcnt(0)')
    a('s_barrier')
    scan_nodes('S')
    qi_fill('S', False)
    scatter()
    a('s_waitcnt lgkmcnt(0)')
    a('s_barrier')
    a(f's_cmp_eq_u32 s{sL}, 0')
    a('s_cbranch_scc1 K2_SNEXT')
    setup_ptrs()
    a('s_waitcnt lgkmcnt(0)')
    for ins in dma_addr(): a(ins)
    for ins in dma_issue(): a(ins)
    forced_flags()
    pipeline_fill()
    main_loop('S', True)
    a.label('K2_SNEXT')
    a('s_waitcnt vmcnt(0) lgkmcnt(0)')
    a('s_barrier')
    a(f's_add_u32 s{sP}, s{sP}, 1')
    a(f's_cmp_lt_u32 s{sP}, s{sNP}')
    a('s_cbranch_scc1 K2_SPASS')
    epilogue('S', False)
    a.label('K2_END')
    a('s_endpgm')
    return nvgpr, nsgpr

def kd(name, nv, ns):
    acc = (nv + 3) // 4 * 4
    return f'''.amdhsa_kernel {name}
  .amdhsa_next_free_vgpr {nv}
  .amdhsa_next_free_sgpr {ns}
  .amdhsa_accum_offset {acc}
  .amdhsa_group_segment_fixed_size 0
  .amdhsa_kernarg_size 96
  .amdhsa_user_sgpr_count 2
  .amdhsa_user_sgpr_kernarg_segment_ptr 1
  .amdhsa_system_sgpr_workgroup_id_x 1
  .amdhsa_float_denorm_mode_32 3
.end_amdhsa_kernel
'''

DOC = """;
;
"""

def build(opts=None):
    opts = opts or {}
    a = Asm()
    gen_k1(a, opts)
    nv, ns = gen_k2(a, opts)
    out = HEADER
    out += f'; @launch kernel=gs_part_kernel grid=(256,1,1) block=({K1_THREADS},1,1) lds={LDS_K1}\n'
    out += f'; @launch kernel=gs_main_kernel grid=(256,1,1) block=({NW*64},1,1) lds={LDS_MAIN}\n'
    out += DOC
    out += '.amdgcn_target "amdgcn-amd-amdhsa--gfx950"\n.text\n'
    out += a.text()
    out += '.section .rodata,"a"\n.p2align 6\n'
    out += kd('gs_part_kernel', 62 if opts.get('stamp1') else 60, 60)
    out += '.p2align 6\n'
    out += kd('gs_main_kernel', nv, ns)
    return out

if __name__ == '__main__':
    path = sys.argv[1] if len(sys.argv) > 1 else 'gather_scatter__edge_featured_mpnn_gatedgcn__graph.s'
    opts = {}
    for o in sys.argv[2:]:
        k, _, val = o.partition('=')
        opts[k] = int(val) if val else True
    open(path, 'w').write(build(opts))
    print('written', path, 'LDS', LDS_MAIN)
```
